```python
import torch

def _softmax(x, axis=-1):
    return torch.softmax(x, dim=axis)

def _gelu(x):
    return torch.nn.functional.gelu(x, approximate='tanh')

def _silu(x):
    return torch.nn.functional.silu(x)

def _sigmoid(x):
    return torch.sigmoid(x)

def _layernorm(x, axis=-1, eps=1e-05):
    m = x.mean(dim=axis, keepdim=True)
    v = x.var(dim=axis, keepdim=True, unbiased=False)
    return (x - m) / torch.sqrt(v + eps)

def _scatter_add(tgt, idx, src, axis=0):
    return tgt.clone().index_add_(axis, idx, src)

def _segment_sum(src, seg, n):
    out = torch.zeros((n,) + src.shape[1:], dtype=src.dtype)
    return out.index_add_(0, seg, src)

def _pad(x, pw):
    flat = tuple((v for pair in reversed(pw) for v in pair))
    return torch.nn.functional.pad(x, flat)
kernel_name = 'standalone__dit_adaln_block__diffusion'

def setup_inputs():

    _w = lambda a: (lambda t: t.to(torch.bfloat16) if t.is_floating_point() else t)(torch.as_tensor(a))
    B, N, D = (2, 256, 1152)
    return {'x': _w((lambda *s: torch.randn(*s, dtype=torch.bfloat16) * 0.05)(B, N, D)), 'c': _w((lambda *s: torch.randn(*s, dtype=torch.bfloat16) * 0.2)(B, D)), 'wqkv': _w((lambda *s: torch.randn(*s, dtype=torch.bfloat16) * 0.05)(D, 3 * D)), 'wo': _w((lambda *s: torch.randn(*s, dtype=torch.bfloat16) * 0.05)(D, D)), 'w_mod': _w((lambda *s: torch.randn(*s, dtype=torch.bfloat16) * 0.2)(D, 6 * D))}

def reference(x, c, wqkv, wo, w_mod):
    B, N, D = x.shape
    mod = (_silu(c) @ w_mod).reshape(B, 6, 1, D)
    shift_a, scale_a, gate_a, shift_m, scale_m, gate_m = [mod[:, i] for i in range(6)]
    h = _layernorm(x, axis=-1) * (1 + scale_a) + shift_a
    qkv = h @ wqkv
    q, k, v = (qkv[..., :D].clone(), qkv[..., D:2 * D].clone(), qkv[..., 2 * D:].clone())
    p = _softmax(torch.einsum('bqd,bkd->bqk', q, k) * D ** (-0.5), axis=-1)
    a = torch.einsum('bqk,bkd->bqd', p, v) @ wo
    return x + gate_a * a
```

```python
class Asm:
    def __init__(self):
        self.lines = []
        self.nlabel = 0
    def __call__(self, s):
        for ln in s.split('\n'):
            ln = ln.strip()
            if ln:
                self.lines.append(('' if ln.endswith(':') else '    ') + ln)
    def raw(self, s):
        self.lines.append(s)
    def label(self, base):
        self.nlabel += 1
        return f"L_{base}_{self.nlabel}"
    def text(self):
        return '\n'.join(self.lines) + '\n'

def vr(b, n=1):
    return f"v{b}" if n == 1 else f"v[{b}:{b+n-1}]"
def sr(b, n=1):
    return f"s{b}" if n == 1 else f"s[{b}:{b+n-1}]"
def ar(b, n=1):
    return f"a{b}" if n == 1 else f"a[{b}:{b+n-1}]"

def kd(name, vgpr, sgpr=96, accum=None):
    if accum is None:
        accum = (vgpr + 3) // 4 * 4
    return f""".section .rodata,"a"
.p2align 6
.amdhsa_kernel {name}
  .amdhsa_next_free_vgpr {vgpr}
  .amdhsa_next_free_sgpr {sgpr}
  .amdhsa_accum_offset {accum}
  .amdhsa_group_segment_fixed_size 0
  .amdhsa_kernarg_size 64
  .amdhsa_user_sgpr_count 2
  .amdhsa_user_sgpr_kernarg_segment_ptr 1
  .amdhsa_system_sgpr_workgroup_id_x 1
  .amdhsa_float_denorm_mode_32 3
.end_amdhsa_kernel
"""
```

```python
import sys
from asmlib import *

STAMP = '--stamp' in sys.argv
NEMPTY = 0
for a_ in sys.argv:
    if a_.startswith('--empty='):
        NEMPTY = int(a_.split('=')[1])

D = 1152
SZ_X = 512*D*2; SZ_C = 2*D*2; SZ_WQKV = D*3*D*2; SZ_WO = D*D*2; SZ_WMOD = D*6*D*2
SZ_WS = 1 << 28
WS_STAT = 0
WS_GATE = 0x1000
WS_MODDBG = 0x4000
WS_STAMP = 0x8000
WS_H = 0x20000
WS_QKV = 0x140000
WS_L = 0x4A0000
WS_U = 0x500000
LOG2E = 0x3fb8aa3b

S_X, S_C, S_WQKV, S_WO, S_WMOD, S_OUT, S_DBG, S_WS = 16, 18, 20, 22, 24, 26, 28, 30
R_A, R_B, R_C, R_WS = 32, 36, 40, 44
S_W = 3
S_T0 = 48
S_ST = 64

def srd(a, r, ptr, size):
    a(f"""s_mov_b32 s{r}, s{ptr}
s_and_b32 s{r+1}, s{ptr+1}, 0xffff
s_mov_b32 s{r+2}, {hex(size)}
s_mov_b32 s{r+3}, 0x20000""")

def prologue(a, name, nwg):
    a.raw(f".globl {name}\n.p2align 8\n.type {name},@function\n{name}:")
    a(f"""s_cmp_ge_u32 s2, {nwg}
s_cbranch_scc1 {name}_end
s_load_dwordx16 s[16:31], s[0:1], 0""")
    if STAMP:
        a(f"s_memrealtime s[{S_ST}:{S_ST+1}]")
    a(f"""v_lshrrev_b32 v1, 6, v0
v_and_b32 v0, 63, v0
s_nop 0
v_readfirstlane_b32 s{S_W}, v1
s_waitcnt lgkmcnt(0)""")
    srd(a, R_WS, S_WS, SZ_WS)

def epilogue(a, name, kid):
    if STAMP:
        a(f"""s_waitcnt vmcnt(0) lgkmcnt(0)
s_barrier
s_cmp_lg_u32 s{S_W}, 0
s_cbranch_scc1 {name}_end
s_memrealtime s[{S_ST+2}:{S_ST+3}]
s_getreg_b32 s{S_T0}, hwreg(HW_REG_XCC_ID)
s_waitcnt lgkmcnt(0)
v_mov_b32 v4, s{S_ST}
v_mov_b32 v5, s{S_ST+2}
v_mov_b32 v6, s{S_T0}
v_mov_b32 v7, s{S_ST+1}
s_lshl_b32 s{S_T0}, s2, 4
s_add_u32 s{S_T0}, s{S_T0}, {WS_STAMP + kid*512*16}
v_mov_b32 v1, 0
s_mov_b64 exec, 1
buffer_store_dwordx4 v[4:7], v1, s[{R_WS}:{R_WS+3}], s{S_T0} offen""")
    a(f"{name}_end:\ns_endpgm")

def unpack(a, lo, hi, src):
    a(f"v_lshlrev_b32 v{lo}, 16, v{src}\nv_and_b32 v{hi}, 0xffff0000, v{src}")

def wave_sum(a, v, sdst):
    for m in ("quad_perm:[1,0,3,2]", "quad_perm:[2,3,0,1]", "row_half_mirror", "row_mirror"):
        a(f"s_nop 1\nv_add_f32_dpp v{v}, v{v}, v{v} {m} row_mask:0xf bank_mask:0xf")
    a(f"s_nop 1\nv_add_f32_dpp v{v}, v{v}, v{v} row_bcast:15 row_mask:0xa bank_mask:0xf")
    a(f"s_nop 1\nv_add_f32_dpp v{v}, v{v}, v{v} row_bcast:31 row_mask:0xc bank_mask:0xf")
    a(f"s_nop 1\nv_readlane_b32 s{sdst}, v{v}, 63\ns_nop 1")

def round_bf16(a, v):
    a(f"v_cvt_pk_bf16_f32 v{v}, v{v}, v{v}\nv_lshlrev_b32 v{v}, 16, v{v}")

def swap23(a, dst, lane, t):
    a(f"""v_and_b32 v{dst}, 0x33, v{lane}
v_and_b32 v{t}, 4, v{lane}
v_lshl_or_b32 v{dst}, v{t}, 1, v{dst}
v_and_b32 v{t}, 8, v{lane}
v_lshrrev_b32 v{t}, 1, v{t}
v_or_b32 v{dst}, v{dst}, v{t}""")

def dma_chunk_idx(a, dst, t):
    a(f"""v_lshrrev_b32 v{t}, 2, v0
v_and_b32 v{t}, 4, v{t}
v_and_b32 v{dst}, 7, v0
v_xor_b32 v{dst}, v{dst}, v{t}""")

def tr_bases(a, b0, b1, t0, t1):
    a(f"""v_lshrrev_b32 v{t0}, 5, v0
v_lshlrev_b32 v{b0}, 10, v{t0}
v_and_b32 v{t0}, 12, v0
v_lshl_or_b32 v{b0}, v{t0}, 5, v{b0}
v_and_b32 v{t0}, 8, v0
v_lshl_or_b32 v{b0}, v{t0}, 3, v{b0}
v_and_b32 v{t0}, 16, v0
v_lshl_or_b32 v{b0}, v{t0}, 1, v{b0}
v_and_b32 v{t0}, 1, v0
v_lshl_or_b32 v{b0}, v{t0}, 4, v{b0}
v_and_b32 v{t0}, 2, v0
v_lshl_or_b32 v{b0}, v{t0}, 2, v{b0}
v_xor_b32 v{b1}, 64, v{b0}""")

def mfma(a, acc, A, B, first=False):
    c = "0" if first else vr(acc, 16)
    a(f"v_mfma_f32_32x32x16_bf16 {vr(acc,16)}, {vr(A,4)}, {vr(B,4)}, {c}")

def k_stats(a):
    name = "stats_kernel"
    prologue(a, name, 64)
    srd(a, R_A, S_X, SZ_X)
    T = S_T0
    a(f"""s_lshl_b32 s{T}, s2, 3
s_add_u32 s{T}, s{T}, s{S_W}
s_mul_i32 s{T+1}, s{T}, 2304
v_lshlrev_b32 v1, 4, v0
buffer_load_dwordx4 v[4:7], v1, s[{R_A}:{R_A+3}], s{T+1} offen
buffer_load_dwordx4 v[8:11], v1, s[{R_A}:{R_A+3}], s{T+1} offen offset:1024
s_mov_b64 exec, 0xffff
buffer_load_dwordx4 v[12:15], v1, s[{R_A}:{R_A+3}], s{T+1} offen offset:2048
s_mov_b64 exec, -1
s_waitcnt vmcnt(0)""")
    for i in range(12):
        unpack(a, 16+2*i, 17+2*i, 4+i)
    a("v_add_f32 v2, v16, v17")
    for i in range(18, 32):
        a(f"v_add_f32 v2, v2, v{i}")
    a("s_mov_b64 exec, 0xffff")
    for i in range(32, 40):
        a(f"v_add_f32 v2, v2, v{i}")
    a("s_mov_b64 exec, -1")
    wave_sum(a, 2, T+2)
    a(f"""v_mov_b32 v3, 0x3a638e39
v_mul_f32 v3, s{T+2}, v3""")
    for i in range(16, 40):
        a(f"v_sub_f32 v{i}, v{i}, v3")
    a("v_mul_f32 v2, v16, v16")
    for i in range(17, 32):
        a(f"v_fmac_f32 v2, v{i}, v{i}")
    a("s_mov_b64 exec, 0xffff")
    for i in range(32, 40):
        a(f"v_fmac_f32 v2, v{i}, v{i}")
    a("s_mov_b64 exec, -1")
    wave_sum(a, 2, T+2)
    a(f"""v_mov_b32 v5, 0x3a638e39
v_mul_f32 v5, s{T+2}, v5""")
    round_bf16(a, 5)
    a("v_add_f32 v5, 0x3727c5ac, v5")
    round_bf16(a, 5)
    a("v_sqrt_f32 v5, v5\ns_nop 0")
    round_bf16(a, 5)
    a("v_rcp_f32 v5, v5")
    a("v_mov_b32 v4, v3")
    round_bf16(a, 4)
    a(f"""s_lshl_b32 s{T}, s{T}, 3
s_add_u32 s{T}, s{T}, {WS_STAT}
v_mov_b32 v1, 0
s_mov_b64 exec, 1
buffer_store_dwordx2 v[4:5], v1, s[{R_WS}:{R_WS+3}], s{T} offen
s_mov_b64 exec, -1""")
    epilogue(a, name, 0)
    return kd(name, 40)

L_SIL = 147456
L_RED = L_SIL + 4608
L_FIN = L_RED + 4096
def k_modh(a):
    name = "modh_kernel"
    prologue(a, name, 54)
    srd(a, R_A, S_WMOD, SZ_WMOD)
    srd(a, R_B, S_X, SZ_X)
    srd(a, R_C, S_C, SZ_C)
    T = S_T0
    sColA, sDiff, sRow0, sOff, sIsGate = T, T+1, T+2, T+3, T+4
    lg = a.label("gate"); lj = a.label("join")
    a(f"""s_cmp_ge_u32 s2, 36
s_cbranch_scc1 {lg}
s_lshl_b32 s{sColA}, s2, 6
s_movk_i32 s{sDiff}, 2304
s_mov_b32 s{sIsGate}, 0
s_branch {lj}
{lg}:
s_sub_u32 s{sColA}, s2, 36
s_lshl_b32 s{sColA}, s{sColA}, 7
s_add_u32 s{sColA}, s{sColA}, 4608
s_movk_i32 s{sDiff}, 64
s_mov_b32 s{sIsGate}, 1
{lj}:
s_mul_i32 s{sRow0}, s{S_W}, 144""")
    vHF, vTok, vD, vB0, vB1, vSil = 1, 2, 3, 4, 5, 6
    vT0, vT1 = 7, 8
    vC = 12
    vST = 16
    vX = 20
    vXN = 36
    vAcc = 68
    vWF = 100
    vSF = 116
    vM = 124
    a(f"""v_lshrrev_b32 v{vHF}, 5, v0
v_and_b32 v{vTok}, 31, v0
v_min_u32 v{vT0}, 17, v{vTok}
v_lshlrev_b32 v{vT0}, 4, v{vT0}
v_mul_u32_u24 v{vT1}, 2304, v{vHF}
v_add_u32 v9, v{vT0}, v{vT1}
s_lshl_b32 s{sOff}, s{sRow0}, 1
buffer_load_dwordx4 {vr(vC,4)}, v9, s[{R_C}:{R_C+3}], s{sOff} offen""")
    lskip = a.label("nox")
    a(f"""s_cmp_lg_u32 s{sIsGate}, 0
s_cbranch_scc1 {lskip}
v_lshlrev_b32 v{vT0}, 3, v{vTok}
s_lshl_b32 s{sOff}, s{S_W}, 9
s_add_u32 s{sOff}, s{sOff}, {WS_STAT}
buffer_load_dwordx2 {vr(vST,2)}, v{vT0}, s[{R_WS}:{R_WS+3}], s{sOff} offen
buffer_load_dwordx2 {vr(vST+2,2)}, v{vT0}, s[{R_WS}:{R_WS+3}], s{sOff} offen offset:256
v_mul_u32_u24 v{vT0}, 2304, v{vTok}
v_lshl_add_u32 v{vT0}, v{vHF}, 4, v{vT0}
s_mul_i32 s{sOff}, s{S_W}, {64*2304}
s_add_u32 s{sOff}, s{sOff}, s{sColA}
buffer_load_dwordx4 {vr(vX,4)}, v{vT0}, s[{R_B}:{R_B+3}], s{sOff} offen
buffer_load_dwordx4 {vr(vX+4,4)}, v{vT0}, s[{R_B}:{R_B+3}], s{sOff} offen offset:32
s_add_u32 s{sOff}, s{sOff}, {32*2304}
buffer_load_dwordx4 {vr(vX+8,4)}, v{vT0}, s[{R_B}:{R_B+3}], s{sOff} offen
buffer_load_dwordx4 {vr(vX+12,4)}, v{vT0}, s[{R_B}:{R_B+3}], s{sOff} offen offset:32
{lskip}:""")
    dma_chunk_idx(a, vT0, vT1)
    a(f"""v_lshrrev_b32 v{vT1}, 2, v{vT0}
v_mul_lo_u32 v{vT1}, v{vT1}, s{sDiff}
v_and_b32 v{vT0}, 3, v{vT0}
v_lshl_add_u32 v{vD}, v{vT0}, 4, v{vT1}
v_lshrrev_b32 v{vT0}, 3, v0
v_mul_u32_u24 v{vT0}, 13824, v{vT0}
v_add3_u32 v{vD}, v{vD}, v{vT0}, s{sColA}
s_mul_i32 s{sOff}, s{sRow0}, 13824
s_lshl_b32 m0, s{sRow0}, 7""")
    for t in range(18):
        a(f"""s_nop 0
buffer_load_dwordx4 v{vD}, s[{R_A}:{R_A+3}], s{sOff} offen lds""")
        if t < 17:
            a(f"s_add_u32 s{sOff}, s{sOff}, {8*13824}\ns_add_u32 m0, m0, 1024")
    tr_bases(a, vB0, vB1, vT0, vT1)
    a(f"""s_lshl_b32 s{sOff}, s{sRow0}, 7
v_add_u32 v{vB0}, s{sOff}, v{vB0}
v_add_u32 v{vB1}, s{sOff}, v{vB1}""")
    a("s_waitcnt vmcnt(18)")
    for i in range(4):
        lo, hi = vM+2*i, vM+2*i+1
        unpack(a, lo, hi, vC+i)
    for i in range(8):
        a(f"v_mul_f32 v{vM+8+i}, 0xbfb8aa3b, v{vM+i}")
    for i in range(8):
        a(f"v_exp_f32 v{vM+8+i}, v{vM+8+i}")
    for i in range(8):
        a(f"v_add_f32 v{vM+8+i}, 1.0, v{vM+8+i}")
    for i in range(8):
        a(f"v_rcp_f32 v{vM+8+i}, v{vM+8+i}")
    for i in range(8):
        a(f"v_mul_f32 v{vM+i}, v{vM+i}, v{vM+8+i}")
    for i in range(4):
        a(f"v_cvt_pk_bf16_f32 v{vC+i}, v{vM+2*i}, v{vM+2*i+1}")
    a(f"""s_lshl_b32 s{sOff}, s{sRow0}, 1
s_add_u32 s{sOff}, s{sOff}, {L_SIL}
v_add_u32 v9, s{sOff}, v9
ds_write_b128 v9, {vr(vC,4)}
v_and_b32 v{vT0}, 1, v0
v_mul_u32_u24 v{vT0}, 2304, v{vT0}
v_lshl_add_u32 v{vT0}, v{vHF}, 4, v{vT0}
v_add_u32 v{vSil}, s{sOff}, v{vT0}""")
    for q in range(4):
        m, rd = vST + 2*(q >> 1), vST + 2*(q >> 1) + 1
        for i in range(4):
            lo, hi = vXN+8*q+2*i, vXN+8*q+2*i+1
            s = vX+4*q+i
            unpack(a, lo, hi, s)
            a(f"""v_sub_f32 v{lo}, v{lo}, v{m}
v_sub_f32 v{hi}, v{hi}, v{m}
v_cvt_pk_bf16_f32 v{s}, v{lo}, v{hi}""")
            unpack(a, lo, hi, s)
            a(f"""v_mul_f32 v{lo}, v{lo}, v{rd}
v_mul_f32 v{hi}, v{hi}, v{rd}
v_cvt_pk_bf16_f32 v{s}, v{lo}, v{hi}""")
            unpack(a, lo, hi, s)
    a("s_waitcnt lgkmcnt(0)")
    for s in range(9):
        wf = vWF + 8*(s & 1); sf = vSF + 4*(s & 1)
        a(f"s_waitcnt vmcnt({18-2*(s+1)})")
        a(f"""ds_read_b128 {vr(sf,4)}, v{vSil} offset:{s*32}
ds_read_b64_tr_b16 {vr(wf,2)}, v{vB0} offset:{s*2048}
ds_read_b64_tr_b16 {vr(wf+2,2)}, v{vB0} offset:{s*2048+512}
ds_read_b64_tr_b16 {vr(wf+4,2)}, v{vB1} offset:{s*2048}
ds_read_b64_tr_b16 {vr(wf+6,2)}, v{vB1} offset:{s*2048+512}
s_waitcnt lgkmcnt(2)""")
        mfma(a, vAcc, wf, sf, s == 0)
        a("s_waitcnt lgkmcnt(0)")
        mfma(a, vAcc+16, wf+4, sf, s == 0)
    a(f"""v_and_b32 v{vT0}, 1, v0
v_lshlrev_b32 v{vT0}, 8, v{vT0}
v_lshl_add_u32 v{vT0}, v{vHF}, 5, v{vT0}
s_lshl_b32 s{sOff}, s{S_W}, 9
s_add_u32 s{sOff}, s{sOff}, {L_RED}
v_add_u32 v{vT0}, s{sOff}, v{vT0}
s_mov_b32 exec_lo, 3
s_mov_b32 exec_hi, 3
s_nop 15""")
    for cb in range(2):
        for q, off in enumerate((0, 16, 64, 80)):
            a(f"ds_write_b128 v{vT0}, {vr(vAcc+16*cb+4*q,4)} offset:{cb*128+off}")
    a(f"""s_mov_b64 exec, -1
s_waitcnt lgkmcnt(0)
s_barrier
s_lshr_b32 s{sOff}, s{S_W}, 2
s_lshl_b32 s{sOff}, s{sOff}, 8
s_add_u32 s{sOff}, s{sOff}, {L_RED}
v_lshlrev_b32 v{vT0}, 2, v0
v_add_u32 v{vT1}, s{sOff}, v{vT0}""")
    for w in range(8):
        a(f"ds_read_b32 v{vAcc+w}, v{vT1} offset:{w*512}")
    a("s_waitcnt lgkmcnt(0)")
    for w in range(1, 8):
        a(f"v_add_f32 v{vAcc}, v{vAcc}, v{vAcc+w}")
    round_bf16(a, vAcc)
    lh = a.label("hrole"); le = a.label("end")
    a(f"""s_cmp_eq_u32 s{sIsGate}, 0
s_cbranch_scc1 {lh}
s_and_b32 s{sOff}, s{S_W}, 3
s_cmp_lg_u32 s{sOff}, 0
s_cbranch_scc1 {le}
s_lshr_b32 s{sOff}, s{S_W}, 2
s_mul_i32 s{sOff}, s{sOff}, 4608
s_sub_u32 s{sColA}, s{sColA}, 4608
s_lshl_b32 s{sColA}, s{sColA}, 1
s_add_u32 s{sOff}, s{sOff}, s{sColA}
s_add_u32 s{sOff}, s{sOff}, {WS_GATE}
buffer_store_dword v{vAcc}, v{vT0}, s[{R_WS}:{R_WS+3}], s{sOff} offen
s_branch {le}
{lh}:
v_add_f32 v{vAcc+1}, 1.0, v{vAcc}""")
    round_bf16(a, vAcc+1)
    a(f"""v_cmp_lt_u32 vcc, 31, v0
s_lshl_b32 s{sOff}, s{S_W}, 8
s_add_u32 s{sOff}, s{sOff}, {L_FIN}
v_cndmask_b32 v{vAcc}, v{vAcc}, v{vAcc+1}, vcc
v_add_u32 v{vT0}, s{sOff}, v{vT0}
ds_write_b32 v{vT0}, v{vAcc}
v_lshlrev_b32 v{vT1}, 5, v{vHF}
v_add_u32 v{vT1}, s{sOff}, v{vT1}
s_waitcnt lgkmcnt(0)""")
    for ks in range(2):
        a(f"""ds_read_b128 {vr(vM+16*ks,4)}, v{vT1} offset:{ks*64}
ds_read_b128 {vr(vM+16*ks+4,4)}, v{vT1} offset:{ks*64+16}
ds_read_b128 {vr(vM+16*ks+8,4)}, v{vT1} offset:{128+ks*64}
ds_read_b128 {vr(vM+16*ks+12,4)}, v{vT1} offset:{128+ks*64+16}""")
    a(f"""v_lshlrev_b32 v{vT0}, 4, v0
s_mul_i32 s{sOff}, s{S_W}, {2*72*1024}
s_lshl_b32 s{sDiff}, s2, 11
s_add_u32 s{sOff}, s{sOff}, s{sDiff}
s_add_u32 s{sOff}, s{sOff}, {WS_H}
s_waitcnt lgkmcnt(0)""")
    for q in range(4):
        ks = q & 1
        for i in range(4):
            lo, hi = vXN+8*q+2*i, vXN+8*q+2*i+1
            s = vX+4*q+i
            a(f"""v_mul_f32 v{lo}, v{lo}, v{vM+16*ks+8+2*i}
v_mul_f32 v{hi}, v{hi}, v{vM+16*ks+8+2*i+1}
v_cvt_pk_bf16_f32 v{s}, v{lo}, v{hi}""")
            unpack(a, lo, hi, s)
            a(f"""v_add_f32 v{lo}, v{lo}, v{vM+16*ks+2*i}
v_add_f32 v{hi}, v{hi}, v{vM+16*ks+2*i+1}
v_cvt_pk_bf16_f32 v{s}, v{lo}, v{hi}""")
        if q == 2:
            a(f"s_add_u32 s{sOff}, s{sOff}, {72*1024}")
        a(f"buffer_store_dwordx4 {vr(vX+4*q,4)}, v{vT0}, s[{R_WS}:{R_WS+3}], s{sOff} offen offset:{ks*1024}")
    a(f"{le}:")
    epilogue(a, name, 1)
    return kd(name, 156)

def k_qkv(a):
    name = "qkv_kernel"
    prologue(a, name, 216)
    srd(a, R_A, S_WQKV, SZ_WQKV)
    T = S_T0
    sCt, sTb, sKh, sOffA, sOffB, sOffH, sM0 = T, T+1, T+2, T+3, T+4, T+5, T+6
    a(f"""s_and_b32 s{T+7}, s2, 7
s_mul_i32 s{T+7}, s{T+7}, 27
s_lshr_b32 s{T+8}, s2, 3
s_add_u32 s{T+7}, s{T+7}, s{T+8}
s_lshr_b32 s{sCt}, s{T+7}, 2
s_and_b32 s{sTb}, s{T+7}, 3
s_lshl_b32 s{sTb}, s{sTb}, 2
s_and_b32 s{T+8}, s{S_W}, 3
s_add_u32 s{sTb}, s{sTb}, s{T+8}
s_lshr_b32 s{sKh}, s{S_W}, 2""")
    vD, vL16, vB0, vB1, vT0, vT1 = 1, 2, 3, 4, 5, 6
    vAcc = 8
    vWF = 40
    vH = 72
    dma_chunk_idx(a, vT0, vT1)
    a(f"""v_lshlrev_b32 v{vD}, 4, v{vT0}
v_lshrrev_b32 v{vT0}, 3, v0
v_mul_u32_u24 v{vT0}, 6912, v{vT0}
s_lshl_b32 s{T+8}, s{sCt}, 7
v_add3_u32 v{vD}, v{vD}, v{vT0}, s{T+8}
v_lshlrev_b32 v{vL16}, 4, v0
s_mul_i32 s{sOffA}, s{S_W}, {8*6912}
s_add_u32 s{sOffB}, s{sOffA}, {576*6912}
s_lshl_b32 s{sM0}, s{S_W}, 10
s_mul_i32 s{sOffH}, s{sTb}, {72*1024}
s_mul_i32 s{T+8}, s{sKh}, {36*1024}
s_add_u32 s{sOffH}, s{sOffH}, s{T+8}
s_add_u32 s{sOffH}, s{sOffH}, {WS_H}""")
    for t in range(9):
        a(f"""s_mov_b32 m0, s{sM0}
s_nop 0
buffer_load_dwordx4 v{vD}, s[{R_A}:{R_A+3}], s{sOffA} offen lds
s_add_u32 m0, s{sM0}, {576*128}
s_nop 0
buffer_load_dwordx4 v{vD}, s[{R_A}:{R_A+3}], s{sOffB} offen lds""")
        for j in range(4):
            a(f"buffer_load_dwordx4 {vr(vH+16*t+4*j,4)}, v{vL16}, s[{R_WS}:{R_WS+3}], s{sOffH} offen offset:{j*1024}")
        if t < 8:
            a(f"""s_add_u32 s{sOffA}, s{sOffA}, {64*6912}
s_add_u32 s{sOffB}, s{sOffB}, {64*6912}
s_add_u32 s{sM0}, s{sM0}, {64*128}
s_add_u32 s{sOffH}, s{sOffH}, 4096""")
    tr_bases(a, vB0, vB1, vT0, vT1)
    a(f"""s_mul_i32 s{T+8}, s{sKh}, {576*128}
v_add_u32 v{vB0}, s{T+8}, v{vB0}
v_add_u32 v{vB1}, s{T+8}, v{vB1}""")
    def reads(j, off):
        wf = vWF + 8*j
        a(f"""ds_read_b64_tr_b16 {vr(wf,2)}, v{vB0} offset:{off}
ds_read_b64_tr_b16 {vr(wf+2,2)}, v{vB0} offset:{off+512}
ds_read_b64_tr_b16 {vr(wf+4,2)}, v{vB1} offset:{off}
ds_read_b64_tr_b16 {vr(wf+6,2)}, v{vB1} offset:{off+512}""")
    for t in range(9):
        if t == 4:
            a(f"v_add_u32 v{vB0}, {4*8192}, v{vB0}\nv_add_u32 v{vB1}, {4*8192}, v{vB1}")
        base = (t if t < 4 else t-4) * 8192
        a(f"s_waitcnt vmcnt({54-6*(t+1)})\ns_barrier")
        for j in range(3):
            reads(j, base + j*2048)
        for j in range(4):
            outstanding_after = [8, 8, 4, 0][j]
            if j == 1:
                reads(3, base + 3*2048)
            a(f"s_waitcnt lgkmcnt({outstanding_after+2})")
            mfma(a, vAcc, vWF+8*j, vH+16*t+4*j, t == 0 and j == 0)
            a(f"s_waitcnt lgkmcnt({outstanding_after})")
            mfma(a, vAcc+16, vWF+8*j+4, vH+16*t+4*j, t == 0 and j == 0)
    lk1 = a.label("kh1"); lj = a.label("j")
    a(f"""s_lshl_b32 s{T+8}, s{S_W}, 12
v_add_u32 v{vT0}, s{T+8}, v{vL16}
v_xor_b32 v{vT1}, {4*4096}, v{vT0}
s_nop 15
s_cmp_lg_u32 s{sKh}, 0
s_cbranch_scc1 {lk1}""")
    for q in range(4):
        a(f"ds_write_b128 v{vT0}, {vr(vAcc+16+4*q,4)} offset:{q*1024}")
    a(f"s_branch {lj}\n{lk1}:")
    for q in range(4):
        a(f"ds_write_b128 v{vT0}, {vr(vAcc+4*q,4)} offset:{q*1024}")
    for r in range(16):
        a(f"v_mov_b32 v{vAcc+r}, v{vAcc+16+r}")
    a(f"{lj}:\ns_waitcnt lgkmcnt(0)\ns_barrier")
    for q in range(4):
        a(f"ds_read_b128 {vr(vWF+4*q,4)}, v{vT1} offset:{q*1024}")
    a(f"""s_mul_i32 s{sOffH}, s{sTb}, {216*1024}
s_lshl_b32 s{T+8}, s{sCt}, 12
s_add_u32 s{sOffH}, s{sOffH}, s{T+8}
s_lshl_b32 s{T+8}, s{sKh}, 11
s_add_u32 s{sOffH}, s{sOffH}, s{T+8}
s_add_u32 s{sOffH}, s{sOffH}, {WS_QKV}
s_waitcnt lgkmcnt(0)""")
    for r in range(16):
        a(f"v_add_f32 v{vAcc+r}, v{vAcc+r}, v{vWF+r}")
    for r in range(8):
        a(f"v_cvt_pk_bf16_f32 v{vWF+16+r}, v{vAcc+2*r}, v{vAcc+2*r+1}")
    a(f"""buffer_store_dwordx4 {vr(vWF+16,4)}, v{vL16}, s[{R_WS}:{R_WS+3}], s{sOffH} offen
buffer_store_dwordx4 {vr(vWF+20,4)}, v{vL16}, s[{R_WS}:{R_WS+3}], s{sOffH} offen offset:1024""")
    epilogue(a, name, 2)
    return kd(name, 216)

def k_su(a):
    name = "su_kernel"
    prologue(a, name, 208)
    srd(a, R_A, S_WO, SZ_WO)
    T = S_T0
    ls = a.label("srole"); le = a.label("end")
    vD, vL16, vB0, vB1, vT0, vT1, vP16 = 1, 2, 3, 4, 5, 6, 7
    vAcc = 8
    vWF = 40
    vR = 56
    vH = 80
    swap23(a, vP16, 0, vT0)
    a(f"""v_lshlrev_b32 v{vP16}, 4, v{vP16}
v_lshlrev_b32 v{vL16}, 4, v0
s_cmp_ge_u32 s2, 144
s_cbranch_scc1 {ls}""")
    sCt, sTb, sKq, sOffA, sOffB, sOffH, sM0 = T, T+1, T+2, T+3, T+4, T+5, T+6
    a(f"""s_and_b32 s{T+7}, s2, 7
s_mul_i32 s{T+7}, s{T+7}, 18
s_lshr_b32 s{T+8}, s2, 3
s_add_u32 s{T+7}, s{T+7}, s{T+8}
s_lshr_b32 s{sCt}, s{T+7}, 3
s_and_b32 s{sTb}, s{T+7}, 7
s_lshl_b32 s{sTb}, s{sTb}, 1
s_and_b32 s{T+8}, s{S_W}, 1
s_add_u32 s{sTb}, s{sTb}, s{T+8}
s_lshr_b32 s{sKq}, s{S_W}, 1""")
    dma_chunk_idx(a, vT0, vT1)
    a(f"""v_lshlrev_b32 v{vD}, 4, v{vT0}
v_lshrrev_b32 v{vT0}, 3, v0
v_mul_u32_u24 v{vT0}, 2304, v{vT0}
s_lshl_b32 s{T+8}, s{sCt}, 7
v_add3_u32 v{vD}, v{vD}, v{vT0}, s{T+8}
s_lshr_b32 s{T+7}, s{S_W}, 2
s_mul_i32 s{T+7}, s{T+7}, 288
s_and_b32 s{T+8}, s{S_W}, 3
s_lshl_b32 s{T+8}, s{T+8}, 3
s_add_u32 s{T+7}, s{T+7}, s{T+8}
s_mul_i32 s{sOffA}, s{T+7}, 2304
s_add_u32 s{sOffB}, s{sOffA}, {576*2304}
s_lshl_b32 s{sM0}, s{T+7}, 7
s_mul_i32 s{sOffH}, s{sTb}, {216*1024}
s_mul_i32 s{T+8}, s{sKq}, {18*1024}
s_add_u32 s{sOffH}, s{sOffH}, s{T+8}
s_add_u32 s{sOffH}, s{sOffH}, {WS_QKV + 144*1024}""")
    for t in range(9):
        a(f"""s_mov_b32 m0, s{sM0}
s_nop 0
buffer_load_dwordx4 v{vD}, s[{R_A}:{R_A+3}], s{sOffA} offen lds
s_add_u32 m0, s{sM0}, {576*128}
s_nop 0
buffer_load_dwordx4 v{vD}, s[{R_A}:{R_A+3}], s{sOffB} offen lds""")
        for j in range(2):
            a(f"buffer_load_dwordx4 {vr(vH+8*t+4*j,4)}, v{vP16}, s[{R_WS}:{R_WS+3}], s{sOffH} offen offset:{j*1024}")
        if t < 8:
            a(f"""s_add_u32 s{sOffA}, s{sOffA}, {32*2304}
s_add_u32 s{sOffB}, s{sOffB}, {32*2304}
s_add_u32 s{sM0}, s{sM0}, {32*128}
s_add_u32 s{sOffH}, s{sOffH}, 2048""")
    tr_bases(a, vB0, vB1, vT0, vT1)
    a(f"""s_mul_i32 s{T+8}, s{sKq}, {288*128}
v_add_u32 v{vB0}, s{T+8}, v{vB0}
v_add_u32 v{vB1}, s{T+8}, v{vB1}""")
    for t in range(9):
        a(f"s_waitcnt vmcnt({36-4*(t+1)})\ns_barrier")
        for j in range(2):
            wf = vWF + 8*j; off = t*4096 + j*2048
            a(f"""ds_read_b64_tr_b16 {vr(wf,2)}, v{vB0} offset:{off}
ds_read_b64_tr_b16 {vr(wf+2,2)}, v{vB0} offset:{off+512}
ds_read_b64_tr_b16 {vr(wf+4,2)}, v{vB1} offset:{off}
ds_read_b64_tr_b16 {vr(wf+6,2)}, v{vB1} offset:{off+512}""")
        for j in range(2):
            a(f"s_waitcnt lgkmcnt({6-4*j})")
            mfma(a, vAcc, vH+8*t+4*j, vWF+8*j, t == 0 and j == 0)
            a(f"s_waitcnt lgkmcnt({4-4*j})")
            mfma(a, vAcc+16, vH+8*t+4*j, vWF+8*j+4, t == 0 and j == 0)
    a(f"""s_lshl_b32 s{T+8}, s{S_W}, 13
v_add_u32 v{vT0}, s{T+8}, v{vL16}
s_nop 15
s_barrier""")
    for q in range(8):
        a(f"ds_write_b128 v{vT0}, {vr(vAcc+4*q,4)} offset:{q*1024}")
    a(f"""s_and_b32 s{T+8}, s{S_W}, 1
s_lshl_b32 s{T+8}, s{T+8}, 13
s_lshl_b32 s{T+7}, s{sKq}, 11
s_add_u32 s{T+8}, s{T+8}, s{T+7}
v_add_u32 v{vT1}, s{T+8}, v{vL16}
s_waitcnt lgkmcnt(0)
s_barrier""")
    for j in range(4):
        a(f"""ds_read_b128 {vr(vAcc+8*j,4)}, v{vT1} offset:{j*16384}
ds_read_b128 {vr(vAcc+8*j+4,4)}, v{vT1} offset:{j*16384+1024}""")
    a(f"""s_lshr_b32 s{T+7}, s{sTb}, 3
s_mul_i32 s{T+7}, s{T+7}, 36
s_lshl_b32 s{T+8}, s{sCt}, 1
s_add_u32 s{T+7}, s{T+7}, s{T+8}
s_lshr_b32 s{T+8}, s{sKq}, 1
s_add_u32 s{T+7}, s{T+7}, s{T+8}
s_lshl_b32 s{T+7}, s{T+7}, 4
s_and_b32 s{T+8}, s{sTb}, 7
s_lshl_b32 s{T+8}, s{T+8}, 1
s_add_u32 s{T+7}, s{T+7}, s{T+8}
s_and_b32 s{T+8}, s{sKq}, 1
s_add_u32 s{T+7}, s{T+7}, s{T+8}
s_lshl_b32 s{T+7}, s{T+7}, 10
s_add_u32 s{T+7}, s{T+7}, {WS_U}
s_waitcnt lgkmcnt(0)""")
    for r in range(8):
        a(f"""v_add_f32 v{vAcc+r}, v{vAcc+r}, v{vAcc+8+r}
v_add_f32 v{vAcc+16+r}, v{vAcc+16+r}, v{vAcc+24+r}""")
    for r in range(8):
        a(f"v_add_f32 v{vAcc+r}, v{vAcc+r}, v{vAcc+16+r}")
    for r in range(4):
        a(f"v_cvt_pk_bf16_f32 v{vR+r}, v{vAcc+2*r}, v{vAcc+2*r+1}")
    a(f"""buffer_store_dwordx4 {vr(vR,4)}, v{vL16}, s[{R_WS}:{R_WS+3}], s{T+7} offen
s_branch {le}""")
    a(f"{ls}:")
    sB, sKb, sQb, sOffK, sOffQ = T, T+1, T+3, T+4, T+5
    a(f"""s_sub_u32 s{T+7}, s2, 144
s_lshr_b32 s{sB}, s{T+7}, 5
s_lshr_b32 s{sKb}, s{T+7}, 3
s_and_b32 s{sKb}, s{sKb}, 3
s_lshl_b32 s{sKb}, s{sKb}, 1
s_and_b32 s{T+8}, s{S_W}, 1
s_add_u32 s{sKb}, s{sKb}, s{T+8}
s_and_b32 s{sQb}, s{T+7}, 7
s_lshr_b32 s{sKq}, s{S_W}, 1
s_lshl_b32 s{T+7}, s{sB}, 3
s_add_u32 s{T+8}, s{T+7}, s{sKb}
s_mul_i32 s{sOffK}, s{T+8}, {216*1024}
s_add_u32 s{T+8}, s{T+7}, s{sQb}
s_mul_i32 s{sOffQ}, s{T+8}, {216*1024}
s_mul_i32 s{T+8}, s{sKq}, {18*1024}
s_add_u32 s{sOffK}, s{sOffK}, s{T+8}
s_add_u32 s{sOffQ}, s{sOffQ}, s{T+8}
s_add_u32 s{sOffK}, s{sOffK}, {WS_QKV + 72*1024}
s_add_u32 s{sOffQ}, s{sOffQ}, {WS_QKV}""")
    for s in range(18):
        a(f"""buffer_load_dwordx4 {vr(vH+8*s,4)}, v{vP16}, s[{R_WS}:{R_WS+3}], s{sOffK} offen offset:{(s&1)*1024}
buffer_load_dwordx4 {vr(vH+8*s+4,4)}, v{vL16}, s[{R_WS}:{R_WS+3}], s{sOffQ} offen offset:{(s&1)*1024}""")
        if s & 1:
            a(f"s_add_u32 s{sOffK}, s{sOffK}, 2048\ns_add_u32 s{sOffQ}, s{sOffQ}, 2048")
    for s in range(18):
        a(f"s_waitcnt vmcnt({36-2*(s+1)})")
        mfma(a, vAcc, vH+8*s, vH+8*s+4, s == 0)
    a(f"""s_lshl_b32 s{T+8}, s{S_W}, 12
v_add_u32 v{vT0}, s{T+8}, v{vL16}
s_nop 15""")
    for q in range(4):
        a(f"ds_write_b128 v{vT0}, {vr(vAcc+4*q,4)} offset:{q*1024}")
    a(f"""s_and_b32 s{T+8}, s{S_W}, 1
s_lshl_b32 s{T+8}, s{T+8}, 12
s_lshl_b32 s{T+7}, s{sKq}, 10
s_add_u32 s{T+8}, s{T+8}, s{T+7}
v_add_u32 v{vT1}, s{T+8}, v{vL16}
s_waitcnt lgkmcnt(0)
s_barrier""")
    for j in range(4):
        a(f"ds_read_b128 {vr(vAcc+4*j,4)}, v{vT1} offset:{j*8192}")
    a(f"""s_lshl_b32 s{T+7}, s{sB}, 3
s_add_u32 s{T+7}, s{T+7}, s{sQb}
s_lshl_b32 s{T+7}, s{T+7}, 4
s_lshl_b32 s{T+8}, s{sKb}, 1
s_add_u32 s{T+7}, s{T+7}, s{T+8}
s_lshr_b32 s{T+8}, s{sKq}, 1
s_add_u32 s{T+7}, s{T+7}, s{T+8}
s_lshl_b32 s{T+7}, s{T+7}, 10
s_and_b32 s{T+8}, s{sKq}, 1
s_lshl_b32 s{T+8}, s{T+8}, 3
s_add_u32 s{T+7}, s{T+7}, s{T+8}
s_add_u32 s{T+7}, s{T+7}, {WS_L}
s_waitcnt lgkmcnt(0)""")
    for r in range(4):
        a(f"""v_add_f32 v{vAcc+r}, v{vAcc+r}, v{vAcc+4+r}
v_add_f32 v{vAcc+8+r}, v{vAcc+8+r}, v{vAcc+12+r}""")
    for r in range(4):
        a(f"v_add_f32 v{vAcc+r}, v{vAcc+r}, v{vAcc+8+r}")
    import struct
    sc = struct.unpack('<I', struct.pack('<f', D ** -0.5))[0]
    for r in range(2):
        a(f"v_cvt_pk_bf16_f32 v{vR+r}, v{vAcc+2*r}, v{vAcc+2*r+1}")
        unpack(a, vAcc+2*r, vAcc+2*r+1, vR+r)
        a(f"""v_mul_f32 v{vAcc+2*r}, {hex(sc)}, v{vAcc+2*r}
v_mul_f32 v{vAcc+2*r+1}, {hex(sc)}, v{vAcc+2*r+1}
v_cvt_pk_bf16_f32 v{vR+r}, v{vAcc+2*r}, v{vAcc+2*r+1}""")
    a(f"buffer_store_dwordx2 {vr(vR,2)}, v{vL16}, s[{R_WS}:{R_WS+3}], s{T+7} offen")
    a(f"{le}:")
    epilogue(a, name, 3)
    return kd(name, 224)

def k_out(a):
    name = "out_kernel"
    prologue(a, name, 144)
    srd(a, R_A, S_X, SZ_X)
    srd(a, R_B, S_OUT, SZ_X)
    T = S_T0
    sQt, sCt, sCb, sKh, sOff, sXo = T, T+1, T+2, T+3, T+4, T+5
    vL16, vT0, vT1, vXo, vTok, vHF, vMx, vS = 1, 2, 3, 4, 5, 6, 7, 8
    vLd = 12
    vX = 20
    vG = 24
    vF = 32
    vR = 48
    vAcc = 56
    vU = 72
    vP = 104
    L_MX, L_SM, L_P, L_EX = 0, 1024, 2048, 2048+16384
    a(f"""s_and_b32 s{sQt}, s2, 15
s_lshr_b32 s{sCt}, s2, 4
s_and_b32 s{sCb}, s{S_W}, 3
s_lshr_b32 s{sKh}, s{S_W}, 2
v_lshlrev_b32 v{vL16}, 4, v0
v_and_b32 v{vTok}, 31, v0
v_lshrrev_b32 v{vHF}, 5, v0
s_lshl_b32 s{sOff}, s{sQt}, 14
s_lshl_b32 s{T+8}, s{S_W}, 11
s_add_u32 s{sOff}, s{sOff}, s{T+8}
s_add_u32 s{sOff}, s{sOff}, {WS_L}
buffer_load_dwordx4 {vr(vLd,4)}, v{vL16}, s[{R_WS}:{R_WS+3}], s{sOff} offen
buffer_load_dwordx4 {vr(vLd+4,4)}, v{vL16}, s[{R_WS}:{R_WS+3}], s{sOff} offen offset:1024
s_lshr_b32 s{T+7}, s{sQt}, 3
s_mul_i32 s{sOff}, s{T+7}, 36
s_lshl_b32 s{T+8}, s{sCt}, 2
s_add_u32 s{sOff}, s{sOff}, s{T+8}
s_add_u32 s{sOff}, s{sOff}, s{sCb}
s_lshl_b32 s{sOff}, s{sOff}, 4
s_lshl_b32 s{T+8}, s{sKh}, 3
s_add_u32 s{sOff}, s{sOff}, s{T+8}
s_lshl_b32 s{sOff}, s{sOff}, 10
s_add_u32 s{sOff}, s{sOff}, {WS_U}""")
    for s in range(8):
        a(f"buffer_load_dwordx4 {vr(vU+4*s,4)}, v{vL16}, s[{R_WS}:{R_WS+3}], s{sOff} offen offset:{(s&3)*1024}")
        if s == 3:
            a(f"s_add_u32 s{sOff}, s{sOff}, 4096")
    a(f"""s_lshl_b32 s{T+8}, s{sCt}, 7
s_lshl_b32 s{T+9}, s{sCb}, 5
s_add_u32 s{T+8}, s{T+8}, s{T+9}
s_lshl_b32 s{T+9}, s{sKh}, 4
s_add_u32 s{T+8}, s{T+8}, s{T+9}
s_mul_i32 s{sXo}, s{sQt}, {32*2304}
s_lshl_b32 s{T+9}, s{T+8}, 1
s_add_u32 s{sXo}, s{sXo}, s{T+9}
v_mul_u32_u24 v{vXo}, 2304, v{vTok}
v_lshl_add_u32 v{vXo}, v{vHF}, 4, v{vXo}
buffer_load_dwordx4 {vr(vX,4)}, v{vXo}, s[{R_A}:{R_A+3}], s{sXo} offen
s_mul_i32 s{sOff}, s{T+7}, 4608
s_lshl_b32 s{T+9}, s{T+8}, 2
s_add_u32 s{sOff}, s{sOff}, s{T+9}
s_add_u32 s{sOff}, s{sOff}, {WS_GATE}
v_lshlrev_b32 v{vT0}, 5, v{vHF}
buffer_load_dwordx4 {vr(vG,4)}, v{vT0}, s[{R_WS}:{R_WS+3}], s{sOff} offen
buffer_load_dwordx4 {vr(vG+4,4)}, v{vT0}, s[{R_WS}:{R_WS+3}], s{sOff} offen offset:16
v_lshlrev_b32 v{vT1}, 5, v{vTok}
s_lshl_b32 s{T+8}, s{S_W}, 2
v_add_u32 v{vT0}, s{T+8}, v{vT1}
s_waitcnt vmcnt(11)""")
    for i in range(8):
        unpack(a, vF+2*i, vF+2*i+1, vLd+i)
    a(f"v_max3_f32 v{vMx}, v{vF}, v{vF+1}, v{vF+2}")
    for i in range(3, 15, 2):
        a(f"v_max3_f32 v{vMx}, v{vMx}, v{vF+i}, v{vF+i+1}")
    a(f"""v_max_f32 v{vMx}, v{vMx}, v{vF+15}
v_mov_b32 v{vS}, v{vMx}
s_nop 1
v_permlane32_swap_b32 v{vMx}, v{vS}
s_nop 1
v_max_f32 v{vMx}, v{vMx}, v{vS}
ds_write_b32 v{vT0}, v{vMx} offset:{L_MX}
s_waitcnt lgkmcnt(0)
s_barrier
ds_read_b128 {vr(vR,4)}, v{vT1} offset:{L_MX}
ds_read_b128 {vr(vR+4,4)}, v{vT1} offset:{L_MX+16}
s_waitcnt lgkmcnt(0)
v_max3_f32 v{vMx}, v{vR}, v{vR+1}, v{vR+2}
v_max3_f32 v{vMx}, v{vMx}, v{vR+3}, v{vR+4}
v_max3_f32 v{vMx}, v{vMx}, v{vR+5}, v{vR+6}
v_max_f32 v{vMx}, v{vMx}, v{vR+7}""")
    for i in range(16):
        a(f"v_sub_f32 v{vF+i}, v{vF+i}, v{vMx}")
    for i in range(16):
        a(f"v_mul_f32 v{vF+i}, {hex(LOG2E)}, v{vF+i}")
    for i in range(16):
        a(f"v_exp_f32 v{vF+i}, v{vF+i}")
    a(f"s_nop 0\nv_add_f32 v{vS}, v{vF}, v{vF+1}")
    for i in range(2, 16):
        a(f"v_add_f32 v{vS}, v{vS}, v{vF+i}")
    a(f"""v_mov_b32 v{vMx}, v{vS}
s_nop 1
v_permlane32_swap_b32 v{vMx}, v{vS}
s_nop 1
v_add_f32 v{vS}, v{vMx}, v{vS}
ds_write_b32 v{vT0}, v{vS} offset:{L_SM}
s_waitcnt lgkmcnt(0)
s_barrier
ds_read_b128 {vr(vR,4)}, v{vT1} offset:{L_SM}
ds_read_b128 {vr(vR+4,4)}, v{vT1} offset:{L_SM+16}
s_waitcnt lgkmcnt(0)
v_add_f32 v{vS}, v{vR}, v{vR+1}""")
    for i in range(2, 8):
        a(f"v_add_f32 v{vS}, v{vS}, v{vR+i}")
    a(f"v_rcp_f32 v{vS}, v{vS}\ns_nop 0")
    for i in range(16):
        a(f"v_mul_f32 v{vF+i}, v{vF+i}, v{vS}")
    for i in range(8):
        a(f"v_cvt_pk_bf16_f32 v{vLd+i}, v{vF+2*i}, v{vF+2*i+1}")
    a(f"""s_lshl_b32 s{T+8}, s{S_W}, 11
v_add_u32 v{vT0}, s{T+8}, v{vL16}
ds_write_b128 v{vT0}, {vr(vLd,4)} offset:{L_P}
ds_write_b128 v{vT0}, {vr(vLd+4,4)} offset:{L_P+1024}
s_lshl_b32 s{T+8}, s{sKh}, 13
v_add_u32 v{vT1}, s{T+8}, v{vL16}
s_waitcnt lgkmcnt(0)
s_barrier""")
    for s in range(8):
        a(f"ds_read_b128 {vr(vP+4*s,4)}, v{vT1} offset:{L_P+s*1024}")
    a("s_waitcnt vmcnt(3)")
    for s in range(8):
        a(f"s_waitcnt lgkmcnt({7-s})")
        mfma(a, vAcc, vU+4*s, vP+4*s, s == 0)
    lk1 = a.label("kh1"); lj = a.label("j")
    a(f"""s_lshl_b32 s{T+8}, s{S_W}, 11
v_add_u32 v{vT0}, s{T+8}, v{vL16}
v_xor_b32 v{vT1}, {4*2048}, v{vT0}
s_nop 15
s_cmp_lg_u32 s{sKh}, 0
s_cbranch_scc1 {lk1}
ds_write_b128 v{vT0}, {vr(vAcc+8,4)} offset:{L_EX}
ds_write_b128 v{vT0}, {vr(vAcc+12,4)} offset:{L_EX+1024}
s_branch {lj}
{lk1}:
ds_write_b128 v{vT0}, {vr(vAcc,4)} offset:{L_EX}
ds_write_b128 v{vT0}, {vr(vAcc+4,4)} offset:{L_EX+1024}""")
    for r in range(8):
        a(f"v_mov_b32 v{vAcc+r}, v{vAcc+8+r}")
    a(f"""{lj}:
s_waitcnt lgkmcnt(0)
s_barrier
ds_read_b128 {vr(vR,4)}, v{vT1} offset:{L_EX}
ds_read_b128 {vr(vR+4,4)}, v{vT1} offset:{L_EX+1024}
s_waitcnt vmcnt(0) lgkmcnt(0)""")
    for r in range(8):
        a(f"v_add_f32 v{vAcc+r}, v{vAcc+r}, v{vR+r}")
    for i in range(4):
        lo, hi = vAcc+2*i, vAcc+2*i+1
        a(f"v_cvt_pk_bf16_f32 v{vR+i}, v{lo}, v{hi}")
        unpack(a, lo, hi, vR+i)
        a(f"""v_mul_f32 v{lo}, v{lo}, v{vG+2*i}
v_mul_f32 v{hi}, v{hi}, v{vG+2*i+1}
v_cvt_pk_bf16_f32 v{vR+i}, v{lo}, v{hi}""")
        unpack(a, lo, hi, vR+i)
        unpack(a, vF, vF+1, vX+i)
        a(f"""v_add_f32 v{lo}, v{lo}, v{vF}
v_add_f32 v{hi}, v{hi}, v{vF+1}
v_cvt_pk_bf16_f32 v{vR+i}, v{lo}, v{hi}""")
    a(f"buffer_store_dwordx4 {vr(vR,4)}, v{vXo}, s[{R_B}:{R_B+3}], s{sXo} offen")
    epilogue(a, name, 4)
    return kd(name, 136)

def k_empty(a):
    name = "empty_kernel"
    a.raw(f".globl {name}\n.p2align 8\n.type {name},@function\n{name}:")
    a("s_endpgm")
    return kd(name, 8)

def main():
    a = Asm()
    hdr = []
    hdr.append("; @launch kernel=stats_kernel grid=(64,1,1) block=(512,1,1) lds=0")
    hdr.append("; @launch kernel=modh_kernel grid=(54,1,1) block=(512,1,1) lds=163840")
    hdr.append("; @launch kernel=qkv_kernel grid=(216,1,1) block=(512,1,1) lds=147456")
    hdr.append("; @launch kernel=su_kernel grid=(208,1,1) block=(512,1,1) lds=147456")
    hdr.append("; @launch kernel=out_kernel grid=(144,1,1) block=(512,1,1) lds=36864")
    for i in range(NEMPTY):
        hdr.append("; @launch kernel=empty_kernel grid=(256,1,1) block=(256,1,1) lds=0")
    a.raw('\n'.join(hdr))
    a.raw('.amdgcn_target "amdgcn-amd-amdhsa--gfx950"\n.text')
    kds = [k_stats(a), k_modh(a), k_qkv(a), k_su(a), k_out(a)]
    if NEMPTY:
        kds.append(k_empty(a))
    out = a.text() + ''.join(kds)
    path = [x for x in sys.argv[1:] if not x.startswith('--')][0]
    open(path, 'w').write(out)
main()
```

```python
import sys, struct
from asmlib import *

OPT = dict(la='3', nt='nt')
for a_ in sys.argv[1:]:
    if a_.startswith('--'):
        k, _, v = a_[2:].partition('=')
        OPT[k] = v
STAMP = 'stamp' in OPT
NT = OPT['nt']

NAME = "standalone__dit_adaln_block__diffusion_kernel"
D = 1152
SZ_X = 512*D*2; SZ_C = 2*D*2; SZ_WQKV = D*3*D*2; SZ_WO = D*D*2; SZ_WMOD = D*6*D*2
SZ_WS = 1 << 28
F_STAT = 0x0
F_H = 0x2000
F_L = 0x4000
F_U = F_L + 64*128
F_G = F_U + 144*128
F_QKV = 0xC000
EPOCH = 0x13000
WS_GATE = 0x14000
WS_H = 0x20000
WS_QKV = 0x140000
WS_L = 0x4A0000
WS_U = 0x500000
WS_STAMP = 0x700000
LOG2E = 0x3fb8aa3b

S_W, S_TAG, S_G, S_SLOT, S_TO = 3, 4, 5, 6, 7
S_X, S_C, S_WQKV, S_WO, S_WMOD, S_OUT, S_DBG, S_WS = 16, 18, 20, 22, 24, 26, 28, 30
R_A, R_B, R_C, R_WS = 32, 36, 40, 44
T = 48
S_ST = 64
WS = f"s[{R_WS}:{R_WS+3}]"
RA = f"s[{R_A}:{R_A+3}]"; RB = f"s[{R_B}:{R_B+3}]"; RC = f"s[{R_C}:{R_C+3}]"
vL16, vP16, vB0, vB1, vCH, vR8, vHF, vTok = 1, 2, 3, 4, 5, 6, 7, 8
vT0, vT1, vT2, vT3 = 9, 10, 11, 12
vTAG = 13
V0 = 16

L_MISC = 147456
L_SIL = L_MISC
L_RED = L_SIL + 4608
L_FIN = L_RED + 4096

def srd(a, r, ptr, size):
    a(f"""s_mov_b32 s{r}, s{ptr}
s_and_b32 s{r+1}, s{ptr+1}, 0xffff
s_mov_b32 s{r+2}, {hex(size)}
s_mov_b32 s{r+3}, 0x20000""")

def stamp(a, i):
    if STAMP:
        a(f"s_memrealtime s[{S_ST+2*i}:{S_ST+2*i+1}]")

def unpack(a, lo, hi, src):
    a(f"v_lshlrev_b32 v{lo}, 16, v{src}\nv_and_b32 v{hi}, 0xffff0000, v{src}")

def wave_sum2(a, v, w, sdst, sdst2):
    for m in ("quad_perm:[1,0,3,2]", "quad_perm:[2,3,0,1]", "row_half_mirror", "row_mirror"):
        a(f"s_nop 0\nv_add_f32_dpp v{v}, v{v}, v{v} {m} row_mask:0xf bank_mask:0xf\nv_add_f32_dpp v{w}, v{w}, v{w} {m} row_mask:0xf bank_mask:0xf")
    for m in ("row_bcast:15 row_mask:0xa", "row_bcast:31 row_mask:0xc"):
        a(f"s_nop 0\nv_add_f32_dpp v{v}, v{v}, v{v} {m} bank_mask:0xf\nv_add_f32_dpp v{w}, v{w}, v{w} {m} bank_mask:0xf")
    a(f"s_nop 1\nv_readlane_b32 s{sdst}, v{v}, 63\nv_readlane_b32 s{sdst2}, v{w}, 63\ns_nop 1")

def round_bf16(a, v):
    a(f"v_cvt_pk_bf16_f32 v{v}, v{v}, v{v}\nv_lshlrev_b32 v{v}, 16, v{v}")

def mfma(a, acc, A, B, first=False):
    c = "0" if first else vr(acc, 16)
    a(f"v_mfma_f32_32x32x16_bf16 {vr(acc,16)}, {vr(A,4)}, {vr(B,4)}, {c}")

def wrap_add(a, s, step, s_end, s_start):
    a(f"""s_add_u32 s{s}, s{s}, {step}
s_cmp_eq_u32 s{s}, s{s_end}
s_cselect_b32 s{s}, s{s_start}, s{s}""")

def poll(a, vaddr, soff, vtmp):
    l = a.label("poll"); d = a.label("polld")
    a(f"""s_cmp_lg_u32 s{S_W}, 0
s_cbranch_scc1 {d}
{l}:
buffer_load_dword v{vtmp}, v{vaddr}, {WS}, {soff} offen sc1
s_waitcnt vmcnt(0)
v_cmp_ne_u32 vcc, s{S_TAG}, v{vtmp}
s_cbranch_vccz {d}
s_sleep {OPT.get('sleep', 2)}
s_sub_u32 s{S_TO}, s{S_TO}, 1
s_cmp_lg_u32 s{S_TO}, 0
s_cbranch_scc1 {l}
s_mov_b32 s{S_TO}, 1
{d}:
s_barrier""")

def raw_flag(a, soff):
    a(f"""v_mov_b32 v{vT3}, 0
s_mov_b64 exec, 1
buffer_store_dword v{vTAG}, v{vT3}, {WS}, {soff} offen sc1
s_mov_b64 exec, -1""")

def set_flag(a, soff):
    d = a.label("fl")
    a(f"""s_waitcnt vmcnt(0)
s_barrier
s_cmp_lg_u32 s{S_W}, 0
s_cbranch_scc1 {d}""")
    raw_flag(a, soff)
    a(f"{d}:")

def trreads(a, wf, b0, b1, off):
    a(f"""ds_read_b64_tr_b16 {vr(wf,2)}, v{b0} offset:{off}
ds_read_b64_tr_b16 {vr(wf+2,2)}, v{b0} offset:{off+512}
ds_read_b64_tr_b16 {vr(wf+4,2)}, v{b1} offset:{off}
ds_read_b64_tr_b16 {vr(wf+6,2)}, v{b1} offset:{off+512}""")

def dma_tile(a, srdname, vD, pitch, s_rot, flags, n0=0, n1=18):
    sN, sO = T+10, T+11
    if s_rot is None:
        a(f"s_add_u32 s{sN}, s{S_W}, {8*n0}")
    else:
        a(f"s_lshl_b32 s{sN}, s{s_rot}, 3\ns_add_u32 s{sN}, s{sN}, s{S_W}")
    for n in range(n0, n1):
        a(f"""s_lshl_b32 m0, s{sN}, 10
s_mul_i32 s{sO}, s{sN}, {8*pitch}
buffer_load_dwordx4 v{vD}, {srdname}, s{sO} offen {flags} lds""")
        if n < n1-1:
            a(f"s_add_u32 s{sN}, s{sN}, 8")
            if s_rot is not None:
                a(f"""s_sub_u32 s{sO}, s{sN}, 144
s_cmp_ge_u32 s{sN}, 144
s_cselect_b32 s{sN}, s{sO}, s{sN}""")

def prologue(a):
    a.raw(f".globl {NAME}\n.p2align 8\n.type {NAME},@function\n{NAME}:")
    a(f"""s_cmp_ge_u32 s2, 256
s_cbranch_scc1 L_end
s_load_dwordx16 s[16:31], s[0:1], 0""")
    if STAMP:
        a(f"s_memrealtime s[{S_ST}:{S_ST+1}]\ns_memtime s[96:97]")
        for i in range(1, 16):
            a(f"s_mov_b32 s{S_ST+2*i}, 0")
    a(f"""v_lshrrev_b32 v1, 6, v0
v_and_b32 v0, 63, v0
s_and_b32 s{S_G}, s2, 7
v_readfirstlane_b32 s{S_W}, v1
s_lshr_b32 s{S_SLOT}, s2, 3
s_mov_b32 s{S_TO}, 0x40000
v_lshlrev_b32 v{vL16}, 4, v0
v_lshrrev_b32 v{vHF}, 5, v0
v_and_b32 v{vTok}, 31, v0
v_lshrrev_b32 v{vR8}, 3, v0
v_and_b32 v{vP16}, 0x33, v0
v_and_b32 v{vT0}, 4, v0
v_lshl_or_b32 v{vP16}, v{vT0}, 1, v{vP16}
v_and_b32 v{vT0}, 8, v0
v_lshrrev_b32 v{vT0}, 1, v{vT0}
v_or_b32 v{vP16}, v{vP16}, v{vT0}
v_lshlrev_b32 v{vP16}, 4, v{vP16}
v_lshrrev_b32 v{vT0}, 2, v0
v_and_b32 v{vT0}, 4, v{vT0}
v_and_b32 v{vCH}, 7, v0
v_xor_b32 v{vCH}, v{vCH}, v{vT0}
v_lshlrev_b32 v{vB0}, 10, v{vHF}
v_and_b32 v{vT0}, 12, v0
v_lshl_or_b32 v{vB0}, v{vT0}, 5, v{vB0}
v_and_b32 v{vT0}, 8, v0
v_lshl_or_b32 v{vB0}, v{vT0}, 3, v{vB0}
v_and_b32 v{vT0}, 16, v0
v_lshl_or_b32 v{vB0}, v{vT0}, 1, v{vB0}
v_and_b32 v{vT0}, 1, v0
v_lshl_or_b32 v{vB0}, v{vT0}, 4, v{vB0}
v_and_b32 v{vT0}, 2, v0
v_lshl_or_b32 v{vB0}, v{vT0}, 2, v{vB0}
v_xor_b32 v{vB1}, 64, v{vB0}
s_waitcnt lgkmcnt(0)
s_load_dword s{S_TAG}, s[{S_WS}:{S_WS+1}], {EPOCH}""")
    srd(a, R_WS, S_WS, SZ_WS)

def get_tag(a):
    a(f"""s_waitcnt lgkmcnt(0)
s_mul_i32 s{S_TAG}, s{S_TAG}, 1664525
s_add_u32 s{S_TAG}, s{S_TAG}, 1013904223
v_mov_b32 v{vTAG}, s{S_TAG}""")

def gemv_dma(a, sColA, sDiff, vD):
    sRow0, sOff = T+2, T+3
    a(f"""v_lshrrev_b32 v{vT1}, 2, v{vCH}
v_mul_lo_u32 v{vT1}, v{vT1}, s{sDiff}
v_and_b32 v{vT0}, 3, v{vCH}
v_lshl_add_u32 v{vD}, v{vT0}, 4, v{vT1}
v_mul_u32_u24 v{vT0}, 13824, v{vR8}
v_add3_u32 v{vD}, v{vD}, v{vT0}, s{sColA}
s_mul_i32 s{sOff}, s{sRow0}, 13824
s_lshl_b32 m0, s{sRow0}, 7""")
    for t in range(18):
        a(f"""s_nop 0
buffer_load_dwordx4 v{vD}, {RA}, s{sOff} offen {NT} lds""")
        if t < 17:
            a(f"s_add_u32 s{sOff}, s{sOff}, {8*13824}\ns_add_u32 m0, m0, 1024")

def gemv_loop(a, vA0, vA1, vSil, vAcc, vWF, vSF, extra_after=None, mid=None):
    for s in range(9):
        wf = vWF + 8*(s & 1); sf = vSF + 4*(s & 1)
        n_extra = extra_after if (mid is not None and s > mid[0]) else 0
        a(f"s_waitcnt vmcnt({18-2*(s+1)+n_extra})")
        a(f"ds_read_b128 {vr(sf,4)}, v{vSil} offset:{s*32}")
        trreads(a, wf, vA0, vA1, s*2048)
        if mid is not None and s == mid[0]:
            mid[1]()
        a("s_waitcnt lgkmcnt(2)")
        mfma(a, vAcc, wf, sf, s == 0)
        a("s_waitcnt lgkmcnt(0)")
        mfma(a, vAcc+16, wf+4, sf, s == 0)

def gemv_red_write(a, vAcc):
    sOff = T+3
    a(f"""v_and_b32 v{vT0}, 1, v0
v_lshlrev_b32 v{vT0}, 8, v{vT0}
v_lshl_add_u32 v{vT0}, v{vHF}, 5, v{vT0}
s_lshl_b32 s{sOff}, s{S_W}, 9
s_add_u32 s{sOff}, s{sOff}, {L_RED}
v_add_u32 v{vT0}, s{sOff}, v{vT0}
s_mov_b32 exec_lo, 3
s_mov_b32 exec_hi, 3
s_nop 8""")
    for cb in range(2):
        for q, off in enumerate((0, 16, 64, 80)):
            a(f"ds_write_b128 v{vT0}, {vr(vAcc+16*cb+4*q,4)} offset:{cb*128+off}")
    a("s_mov_b64 exec, -1")

def gemv_red_read(a, vAcc):
    sOff = T+3
    a(f"""s_lshr_b32 s{sOff}, s{S_W}, 2
s_lshl_b32 s{sOff}, s{sOff}, 8
s_add_u32 s{sOff}, s{sOff}, {L_RED}
v_lshlrev_b32 v{vT0}, 2, v0
v_add_u32 v{vT1}, s{sOff}, v{vT0}""")
    for w in range(8):
        a(f"ds_read_b32 v{vAcc+w}, v{vT1} offset:{w*512}")
    a("s_waitcnt lgkmcnt(0)")
    for w in range(1, 8):
        a(f"v_add_f32 v{vAcc}, v{vAcc}, v{vAcc+w}")
    round_bf16(a, vAcc)

def phase_a_owner(a):
    sColA, sDiff, sRow0, sOff, sO, sJ = T, T+1, T+2, T+3, T+4, T+5
    vD, vA0, vA1, vSil, vCs = V0, V0+1, V0+2, V0+3, V0+4
    vC = 24
    vST = 28
    vX = 36
    vXN = 52
    vAcc = 84
    vWF = 116
    vSF = 132
    vM = 140
    srd(a, R_A, S_WMOD, SZ_WMOD)
    srd(a, R_B, S_X, SZ_X)
    srd(a, R_C, S_C, SZ_C)
    a(f"""s_sub_u32 s{sJ}, s{S_SLOT}, 27
s_lshl_b32 s{sO}, s{S_G}, 2
s_add_u32 s{sO}, s{sO}, s{sJ}
s_add_u32 s{sOff}, s{S_G}, 32
s_cmp_eq_u32 s{sJ}, 4
s_cselect_b32 s{sO}, s{sOff}, s{sO}
s_cmp_ge_u32 s{sO}, 36
s_cbranch_scc1 L_o_pref
s_mul_i32 s{sRow0}, s{S_W}, 144
v_min_u32 v{vT0}, 17, v{vTok}
v_lshlrev_b32 v{vT0}, 4, v{vT0}
v_mul_u32_u24 v{vT1}, 2304, v{vHF}
v_add_u32 v{vCs}, v{vT0}, v{vT1}
s_lshl_b32 s{sOff}, s{sRow0}, 1
buffer_load_dwordx4 {vr(vC,4)}, v{vCs}, {RC}, s{sOff} offen
s_lshl_b32 s{sColA}, s{sO}, 6
s_movk_i32 s{sDiff}, 2304""")
    get_tag(a)
    a(f"""s_lshl_b32 s{sOff}, s{sRow0}, 7
v_add_u32 v{vA0}, s{sOff}, v{vB0}
v_add_u32 v{vA1}, s{sOff}, v{vB1}
s_waitcnt vmcnt(0)""")
    stamp(a, 1)
    gemv_dma(a, sColA, sDiff, vD)
    a(f"""v_mul_u32_u24 v{vT0}, 2304, v{vTok}
v_lshl_add_u32 v{vT0}, v{vHF}, 4, v{vT0}
s_mul_i32 s{sOff}, s{S_W}, {64*2304}
s_add_u32 s{sOff}, s{sOff}, s{sColA}
buffer_load_dwordx4 {vr(vX,4)}, v{vT0}, {RB}, s{sOff} offen {NT}
buffer_load_dwordx4 {vr(vX+4,4)}, v{vT0}, {RB}, s{sOff} offen offset:32 {NT}
s_add_u32 s{sOff}, s{sOff}, {32*2304}
buffer_load_dwordx4 {vr(vX+8,4)}, v{vT0}, {RB}, s{sOff} offen {NT}
buffer_load_dwordx4 {vr(vX+12,4)}, v{vT0}, {RB}, s{sOff} offen offset:32 {NT}""")
    def statload():
        a(f"""v_lshlrev_b32 v{vT2}, 4, v{vTok}
s_lshl_b32 s{T+9}, s{S_W}, 10
s_add_u32 s{T+9}, s{T+9}, {F_STAT}
buffer_load_dwordx4 {vr(vST,4)}, v{vT2}, {WS}, s{T+9} offen sc1
buffer_load_dwordx4 {vr(vST+4,4)}, v{vT2}, {WS}, s{T+9} offen offset:512 sc1""")
    statload()
    stamp(a, 2)
    silu_to_lds(a, vC, vM, vCs, vSil)
    for s in range(9):
        wf = vWF + 8*(s & 1); sf = vSF + 4*(s & 1)
        a(f"s_waitcnt vmcnt({18-2*(s+1)+6})")
        if s == 0: stamp(a, 3)
        a(f"ds_read_b128 {vr(sf,4)}, v{vSil} offset:{s*32}")
        trreads(a, wf, vA0, vA1, s*2048)
        a("s_waitcnt lgkmcnt(2)")
        mfma(a, vAcc, wf, sf, s == 0)
        a("s_waitcnt lgkmcnt(0)")
        mfma(a, vAcc+16, wf+4, sf, s == 0)
    stamp(a, 4)
    gemv_red_write(a, vAcc)
    lp = a.label("stp"); ld = a.label("std")
    a(f"""{lp}:
s_waitcnt vmcnt(0)
v_cmp_ne_u32 vcc, s{S_TAG}, v{vST+2}
v_cmp_ne_u32 s[{T+12}:{T+13}], s{S_TAG}, v{vST+6}
s_or_b64 vcc, vcc, s[{T+12}:{T+13}]
s_cbranch_vccz {ld}
s_sub_u32 s{S_TO}, s{S_TO}, 1
s_cmp_eq_u32 s{S_TO}, 0
s_cbranch_scc1 {ld}
s_sleep 2""")
    statload()
    a(f"s_branch {lp}\n{ld}:")
    a(f"s_max_u32 s{S_TO}, s{S_TO}, 1")
    stamp(a, 5)
    for q in range(4):
        m, rd = vST + 4*(q >> 1), vST + 4*(q >> 1) + 1
        for i in range(4):
            lo, hi = vXN+8*q+2*i, vXN+8*q+2*i+1
            s = vX+4*q+i
            unpack(a, lo, hi, s)
            a(f"""v_sub_f32 v{lo}, v{lo}, v{m}
v_sub_f32 v{hi}, v{hi}, v{m}
v_cvt_pk_bf16_f32 v{s}, v{lo}, v{hi}""")
            unpack(a, lo, hi, s)
            a(f"""v_mul_f32 v{lo}, v{lo}, v{rd}
v_mul_f32 v{hi}, v{hi}, v{rd}
v_cvt_pk_bf16_f32 v{s}, v{lo}, v{hi}""")
            unpack(a, lo, hi, s)
    a("s_waitcnt lgkmcnt(0)\ns_barrier")
    gemv_red_read(a, vAcc)
    a(f"v_add_f32 v{vAcc+1}, 1.0, v{vAcc}")
    round_bf16(a, vAcc+1)
    a(f"""v_cmp_lt_u32 vcc, 31, v0
s_lshl_b32 s{sOff}, s{S_W}, 8
s_add_u32 s{sOff}, s{sOff}, {L_FIN}
v_cndmask_b32 v{vAcc}, v{vAcc}, v{vAcc+1}, vcc
v_add_u32 v{vT0}, s{sOff}, v{vT0}
ds_write_b32 v{vT0}, v{vAcc}
v_lshlrev_b32 v{vT1}, 5, v{vHF}
v_add_u32 v{vT1}, s{sOff}, v{vT1}
s_waitcnt lgkmcnt(0)""")
    for ks in range(2):
        a(f"""ds_read_b128 {vr(vM+16*ks,4)}, v{vT1} offset:{ks*64}
ds_read_b128 {vr(vM+16*ks+4,4)}, v{vT1} offset:{ks*64+16}
ds_read_b128 {vr(vM+16*ks+8,4)}, v{vT1} offset:{128+ks*64}
ds_read_b128 {vr(vM+16*ks+12,4)}, v{vT1} offset:{128+ks*64+16}""")
    a(f"""s_mul_i32 s{sOff}, s{S_W}, {2*72*1024}
s_lshl_b32 s{sDiff}, s{sO}, 11
s_add_u32 s{sOff}, s{sOff}, s{sDiff}
s_add_u32 s{sOff}, s{sOff}, {WS_H}
s_waitcnt lgkmcnt(0)""")
    for q in range(4):
        ks = q & 1
        for i in range(4):
            lo, hi = vXN+8*q+2*i, vXN+8*q+2*i+1
            s = vX+4*q+i
            a(f"""v_mul_f32 v{lo}, v{lo}, v{vM+16*ks+8+2*i}
v_mul_f32 v{hi}, v{hi}, v{vM+16*ks+8+2*i+1}
v_cvt_pk_bf16_f32 v{s}, v{lo}, v{hi}""")
            unpack(a, lo, hi, s)
            a(f"""v_add_f32 v{lo}, v{lo}, v{vM+16*ks+2*i}
v_add_f32 v{hi}, v{hi}, v{vM+16*ks+2*i+1}
v_cvt_pk_bf16_f32 v{s}, v{lo}, v{hi}""")
        if q == 2:
            a(f"s_add_u32 s{sOff}, s{sOff}, {72*1024}")
        a(f"buffer_store_dwordx4 {vr(vX+4*q,4)}, v{vL16}, {WS}, s{sOff} offen offset:{ks*1024} sc1")
    stamp(a, 6)
    a(f"""s_lshl_b32 s{sOff}, s{sO}, 7
s_add_u32 s{sOff}, s{sOff}, {F_H}""")
    set_flag(a, f"s{sOff}")
    stamp(a, 7)
    a("L_o_pref:")
    srd(a, R_B, S_WO, SZ_WO)
    a(f"""s_and_b32 s{sOff}, s{S_G}, 3
s_mul_i32 s{sOff}, s{sOff}, 18
s_lshl_b32 s{sDiff}, s{sJ}, 2
s_add_u32 s{sOff}, s{sOff}, s{sDiff}
s_add_u32 s{sOff}, s{sOff}, 1
s_lshr_b32 s{sOff}, s{sOff}, 2
s_lshl_b32 s{sOff}, s{sOff}, 7
v_lshlrev_b32 v{vT1}, 4, v{vCH}
v_mul_u32_u24 v{vT0}, 2304, v{vR8}
v_add3_u32 v{vT1}, v{vT1}, v{vT0}, s{sOff}""")
    dma_tile(a, RB, vT1, 2304, None, NT)
    a(f"""s_waitcnt vmcnt(0)
s_barrier""")
    stamp(a, 11)
    a(f"""s_cmp_ge_u32 s{sO}, 18
s_cbranch_scc1 L_fin
s_lshl_b32 s{sColA}, s{sO}, 7
s_add_u32 s{sColA}, s{sColA}, 4608
s_movk_i32 s{sDiff}, 64""")
    gemv_dma(a, sColA, sDiff, vD)
    for s in range(9):
        wf = vWF + 8*(s & 1); sf = vSF + 4*(s & 1)
        a(f"s_waitcnt vmcnt({18-2*(s+1)})")
        a(f"ds_read_b128 {vr(sf,4)}, v{vSil} offset:{s*32}")
        trreads(a, wf, vA0, vA1, s*2048)
        a("s_waitcnt lgkmcnt(2)")
        mfma(a, vAcc, wf, sf, s == 0)
        a("s_waitcnt lgkmcnt(0)")
        mfma(a, vAcc+16, wf+4, sf, s == 0)
    gemv_red_write(a, vAcc)
    a("s_waitcnt lgkmcnt(0)\ns_barrier")
    gemv_red_read(a, vAcc)
    lsk = a.label("gsk")
    a(f"""s_and_b32 s{sOff}, s{S_W}, 3
s_cmp_lg_u32 s{sOff}, 0
s_cbranch_scc1 {lsk}
s_lshr_b32 s{T+9}, s{S_W}, 2
s_mul_i32 s{sOff}, s{T+9}, 4608
s_lshl_b32 s{sColA}, s{sO}, 8
s_add_u32 s{sOff}, s{sOff}, s{sColA}
s_add_u32 s{sOff}, s{sOff}, {WS_GATE}
buffer_store_dword v{vAcc}, v{vT0}, {WS}, s{sOff} offen sc1
{lsk}:
s_lshl_b32 s{sOff}, s{sO}, 7
s_add_u32 s{sOff}, s{sOff}, {F_G}""")
    set_flag(a, f"s{sOff}")
    stamp(a, 12)
    a("s_branch L_fin")

def wave_sum(a, v, sdst):
    for m in ("quad_perm:[1,0,3,2]", "quad_perm:[2,3,0,1]", "row_half_mirror", "row_mirror"):
        a(f"s_nop 1\nv_add_f32_dpp v{v}, v{v}, v{v} {m} row_mask:0xf bank_mask:0xf")
    a(f"s_nop 1\nv_add_f32_dpp v{v}, v{v}, v{v} row_bcast:15 row_mask:0xa bank_mask:0xf")
    a(f"s_nop 1\nv_add_f32_dpp v{v}, v{v}, v{v} row_bcast:31 row_mask:0xc bank_mask:0xf")
    a(f"s_nop 1\nv_readlane_b32 s{sdst}, v{v}, 63\ns_nop 1")

def stats_compute(a, vRW, vRF, sGrp):
    for i in range(12):
        unpack(a, vRF+2*i, vRF+2*i+1, vRW+i)
    acc, acc2, mean = vRW, vRW+1, vRW+2
    a(f"v_add_f32 v{acc}, v{vRF}, v{vRF+1}\nv_add_f32 v{acc2}, v{vRF+2}, v{vRF+3}")
    for i in range(4, 16, 2):
        a(f"v_add_f32 v{acc}, v{acc}, v{vRF+i}\nv_add_f32 v{acc2}, v{acc2}, v{vRF+i+1}")
    a("s_mov_b64 exec, 0xffff")
    for i in range(16, 24, 2):
        a(f"v_add_f32 v{acc}, v{acc}, v{vRF+i}\nv_add_f32 v{acc2}, v{acc2}, v{vRF+i+1}")
    a(f"s_mov_b64 exec, -1\nv_add_f32 v{acc}, v{acc}, v{acc2}")
    wave_sum(a, acc, T+12)
    a(f"""v_mov_b32 v{vT2}, 0x3a638e39
v_mul_f32 v{mean}, s{T+12}, v{vT2}""")
    for i in range(24):
        a(f"v_sub_f32 v{vRF+i}, v{vRF+i}, v{mean}")
    a(f"v_mul_f32 v{acc}, v{vRF}, v{vRF}\nv_mul_f32 v{acc2}, v{vRF+1}, v{vRF+1}")
    for i in range(2, 16, 2):
        a(f"v_fmac_f32 v{acc}, v{vRF+i}, v{vRF+i}\nv_fmac_f32 v{acc2}, v{vRF+i+1}, v{vRF+i+1}")
    a("s_mov_b64 exec, 0xffff")
    for i in range(16, 24, 2):
        a(f"v_fmac_f32 v{acc}, v{vRF+i}, v{vRF+i}\nv_fmac_f32 v{acc2}, v{vRF+i+1}, v{vRF+i+1}")
    a(f"s_mov_b64 exec, -1\nv_add_f32 v{acc}, v{acc}, v{acc2}")
    wave_sum(a, acc, T+12)
    g = vRW+4
    a(f"v_mul_f32 v{g+1}, s{T+12}, v{vT2}\nv_mov_b32 v{g}, v{mean}")
    round_bf16(a, g+1)
    a(f"v_add_f32 v{g+1}, 0x3727c5ac, v{g+1}")
    round_bf16(a, g+1)
    a(f"v_sqrt_f32 v{g+1}, v{g+1}\ns_nop 0")
    round_bf16(a, g+1)
    a(f"v_rcp_f32 v{g+1}, v{g+1}")
    round_bf16(a, g)
    lsk = a.label("stsk")
    a(f"""v_mov_b32 v{g+2}, v{vTAG}
v_mov_b32 v{g+3}, v{vTAG}
s_lshl_b32 s{T+12}, s{S_W}, 4
s_add_u32 s{T+12}, s{T+12}, {L_MISC}
v_mov_b32 v{vT0}, s{T+12}
s_mov_b64 exec, 1
ds_write_b128 v{vT0}, {vr(g,4)}
s_mov_b64 exec, -1
s_waitcnt lgkmcnt(0)
s_barrier
s_cmp_lg_u32 s{S_W}, 0
s_cbranch_scc1 {lsk}
s_lshl_b32 s{T+12}, s{sGrp}, 7
s_add_u32 s{T+12}, s{T+12}, {F_STAT}
v_add_u32 v{vT0}, {L_MISC}, v{vL16}
s_mov_b64 exec, 0xff
ds_read_b128 {vr(g,4)}, v{vT0}
s_waitcnt lgkmcnt(0)
buffer_store_dwordx4 {vr(g,4)}, v{vL16}, {WS}, s{T+12} offen sc1
s_mov_b64 exec, -1
{lsk}:""")

def silu_to_lds(a, vC, vM, vCs, vSil):
    sRow0, sOff = T+2, T+3
    for i in range(4):
        unpack(a, vM+2*i, vM+2*i+1, vC+i)
    for i in range(8):
        a(f"v_mul_f32 v{vM+8+i}, 0xbfb8aa3b, v{vM+i}")
    for i in range(8):
        a(f"v_exp_f32 v{vM+8+i}, v{vM+8+i}")
    for i in range(8):
        a(f"v_add_f32 v{vM+8+i}, 1.0, v{vM+8+i}")
    for i in range(8):
        a(f"v_rcp_f32 v{vM+8+i}, v{vM+8+i}")
    for i in range(8):
        a(f"v_mul_f32 v{vM+i}, v{vM+i}, v{vM+8+i}")
    for i in range(4):
        a(f"v_cvt_pk_bf16_f32 v{vC+i}, v{vM+2*i}, v{vM+2*i+1}")
    a(f"""s_lshl_b32 s{sOff}, s{sRow0}, 1
s_add_u32 s{sOff}, s{sOff}, {L_SIL}
v_add_u32 v{vCs}, s{sOff}, v{vCs}
ds_write_b128 v{vCs}, {vr(vC,4)}
v_and_b32 v{vT0}, 1, v0
v_mul_u32_u24 v{vT0}, 2304, v{vT0}
v_lshl_add_u32 v{vT0}, v{vHF}, 4, v{vT0}
v_add_u32 v{vSil}, s{sOff}, v{vT0}
s_waitcnt lgkmcnt(0)""")

def phase_ab_gemm(a):
    sCt, sTb, sKh, sRt, sOff, sHs, sHe, sLo, sLe, sLs = T, T+1, T+2, T+3, T+4, T+5, T+6, T+7, T+8, T+9
    vD, vA0, vA1 = V0, V0+1, V0+2
    vAcc = 20
    vWF = 52
    vH = 84
    srd(a, R_A, S_WQKV, SZ_WQKV)
    srd(a, R_B, S_WMOD, SZ_WMOD)
    srd(a, R_C, S_X, SZ_X)
    vRW, vRF = 128, 144
    lns = a.label("nost")
    a(f"""s_cmp_ge_u32 s{S_SLOT}, 8
s_cbranch_scc1 {lns}
s_lshl_b32 s{sOff}, s2, 3
s_add_u32 s{sOff}, s{sOff}, s{S_W}
s_mul_i32 s{sOff}, s{sOff}, 2304
buffer_load_dwordx4 {vr(vRW,4)}, v{vL16}, {RC}, s{sOff} offen {NT}
buffer_load_dwordx4 {vr(vRW+4,4)}, v{vL16}, {RC}, s{sOff} offen offset:1024 {NT}
s_mov_b64 exec, 0xffff
buffer_load_dwordx4 {vr(vRW+8,4)}, v{vL16}, {RC}, s{sOff} offen offset:2048 {NT}
s_mov_b64 exec, -1
{lns}:""")
    a(f"""s_lshl_b32 s{sOff}, s{S_SLOT}, 3
s_add_u32 s{sOff}, s{sOff}, s{S_W}
v_and_b32 v{vT0}, 15, v0
v_lshlrev_b32 v{vT0}, 4, v{vT0}
v_lshrrev_b32 v{vT3}, 4, v0
v_mul_u32_u24 v{vT3}, 2304, v{vT3}
v_add_u32 v{vT3}, v{vT3}, v{vT0}
v_bfe_u32 v{vT1}, v0, 4, 1
v_mul_u32_u24 v{vT1}, 2304, v{vT1}
v_mul_u32_u24 v{vT2}, 13824, v{vHF}
v_add3_u32 v{vT0}, v{vT0}, v{vT1}, v{vT2}
s_lshl_b32 s{sHe}, s{S_G}, 8""")
    if 'nohelp' not in OPT:
        for n in range(3):
            a(f"""s_add_u32 s{sHs}, s{sOff}, {216*n}
s_min_u32 s{sHs}, s{sHs}, 575
s_mul_i32 s{sHs}, s{sHs}, {2*13824}
s_add_u32 s{sHs}, s{sHs}, s{sHe}
buffer_load_dwordx4 {vr(vH+4*n,4)}, v{vT0}, {RB}, s{sHs} offen {NT}""")
        a(f"""s_sub_u32 s{sHs}, 215, s{sOff}
s_min_u32 s{sHs}, s{sHs}, 127
s_mul_i32 s{sHs}, s{sHs}, {4*2304}
s_add_u32 s{sHs}, s{sHs}, s{sHe}
buffer_load_dwordx4 {vr(vH+20,4)}, v{vT3}, {RC}, s{sHs} offen {NT}""")
        lx = a.label("nox")
        a(f"""s_cmp_ge_u32 s{S_G}, 4
s_cbranch_scc1 {lx}
v_and_b32 v{vT0}, 7, v0
v_lshlrev_b32 v{vT0}, 4, v{vT0}
v_bfe_u32 v{vT1}, v0, 3, 1
v_mul_u32_u24 v{vT1}, 2304, v{vT1}
v_lshrrev_b32 v{vT2}, 4, v0
v_mul_u32_u24 v{vT2}, 13824, v{vT2}
v_add3_u32 v{vT0}, v{vT0}, v{vT1}, v{vT2}
s_lshr_b32 s{sHe}, s{S_G}, 1
s_lshl_b32 s{sHe}, s{sHe}, 7
s_add_u32 s{sHe}, s{sHe}, 2048""")
        for n in range(2):
            a(f"""s_add_u32 s{sHs}, s{sOff}, {216*n}
s_min_u32 s{sHs}, s{sHs}, 287
s_mul_i32 s{sHs}, s{sHs}, {4*13824}
s_add_u32 s{sHs}, s{sHs}, s{sHe}
buffer_load_dwordx4 {vr(vH+12+4*n,4)}, v{vT0}, {RB}, s{sHs} offen {NT}""")
        a(f"""v_and_b32 v{vT0}, 7, v0
v_lshlrev_b32 v{vT0}, 4, v{vT0}
v_mul_u32_u24 v{vT1}, 2304, v{vR8}
v_add_u32 v{vT0}, v{vT0}, v{vT1}
s_sub_u32 s{sHs}, 215, s{sOff}
s_min_u32 s{sHs}, s{sHs}, 63
s_mul_i32 s{sHs}, s{sHs}, {8*2304}
s_add_u32 s{sHs}, s{sHs}, s{sHe}
buffer_load_dwordx4 {vr(vH+24,4)}, v{vT0}, {RC}, s{sHs} offen {NT}""")
        a(f"{lx}:")
    get_tag(a)
    lns2 = a.label("nost2")
    a(f"""s_cmp_ge_u32 s{S_SLOT}, 8
s_cbranch_scc1 {lns2}
s_waitcnt vmcnt(4)""")
    stats_compute(a, vRW, vRF, 2)
    stamp(a, 8)
    a(f"{lns2}:")
    a(f"""s_mul_i32 s{sOff}, s{S_G}, 27
s_add_u32 s{sOff}, s{sOff}, s{S_SLOT}
s_lshr_b32 s{sCt}, s{sOff}, 2
s_and_b32 s{sRt}, s{sOff}, 3
s_lshl_b32 s{sTb}, s{sRt}, 2
s_and_b32 s{sOff}, s{S_W}, 3
s_add_u32 s{sTb}, s{sTb}, s{sOff}
s_lshr_b32 s{sKh}, s{S_W}, 2
v_lshlrev_b32 v{vD}, 4, v{vCH}
v_mul_u32_u24 v{vT0}, 6912, v{vR8}
s_lshl_b32 s{sOff}, s{sCt}, 7
v_add3_u32 v{vD}, v{vD}, v{vT0}, s{sOff}
s_mul_i32 s{sRt}, s{sRt}, 9
s_lshr_b32 s{sRt}, s{sRt}, 1""")
    dma_tile(a, RA, vD, 6912, sRt, NT)
    stamp(a, 1)
    a(f"""s_mul_i32 s{sOff}, s{sCt}, 57
s_lshr_b32 s{sOff}, s{sOff}, 9
s_mul_i32 s{sOff}, s{sOff}, 9
s_sub_u32 s{sRt}, s{sCt}, s{sOff}
s_mul_i32 s{sHs}, s{sTb}, {72*1024}
s_mul_i32 s{sOff}, s{sKh}, {36*1024}
s_add_u32 s{sHs}, s{sHs}, s{sOff}
s_add_u32 s{sHs}, s{sHs}, {WS_H}
s_add_u32 s{sHe}, s{sHs}, {36*1024}
s_lshl_b32 s{sOff}, s{sRt}, 12
s_add_u32 s{T+12}, s{sHs}, s{sOff}
s_mul_i32 s{sLs}, s{sKh}, {576*128}
s_add_u32 s{sLe}, s{sLs}, {576*128}
s_lshl_b32 s{sOff}, s{sRt}, 13
s_add_u32 s{sLo}, s{sLs}, s{sOff}
v_min_u32 v{vT0}, 35, v0
v_lshlrev_b32 v{vT0}, 7, v{vT0}
s_movk_i32 s{sOff}, {F_H}
s_waitcnt vmcnt(0)""")
    stamp(a, 2)
    poll(a, vT0, f"s{sOff}", vT1)
    stamp(a, 3)
    sH = T+12
    LA = int(OPT['la'])*4
    def hload(s):
        a(f"buffer_load_dwordx4 {vr(vH+4*s,4)}, v{vL16}, {WS}, s{sH} offen offset:{(s&3)*1024} sc1")
        if (s & 3) == 3 and s < 35:
            wrap_add(a, sH, 4096, sHe, sHs)
    def wread(s):
        if (s & 3) == 0:
            a(f"v_add_u32 v{vA0}, s{sLo}, v{vB0}\nv_add_u32 v{vA1}, s{sLo}, v{vB1}")
            wrap_add(a, sLo, 8192, sLe, sLs)
        trreads(a, vWF + 8*(s & 3), vA0, vA1, (s & 3)*2048)
    for s in range(LA):
        hload(s)
    wread(0); wread(1)
    for s in range(36):
        if s + 2 < 36:
            wread(s + 2)
        lg = 4*min(2, 35 - s)
        issued = min(36, s + LA)
        a(f"s_waitcnt vmcnt({issued - s - 1}) lgkmcnt({lg})")
        if s == 0: stamp(a, 4)
        mfma(a, vAcc, vWF+8*(s & 3), vH+4*s, s == 0)
        mfma(a, vAcc+16, vWF+8*(s & 3)+4, vH+4*s, s == 0)
        if s + LA < 36:
            hload(s + LA)
    stamp(a, 5)
    XB = 131072
    lk1 = a.label("kh1"); lj = a.label("j")
    a(f"""s_lshl_b32 s{sOff}, s{S_W}, 12
s_add_u32 s{sOff}, s{sOff}, {XB}
v_add_u32 v{vT0}, s{sOff}, v{vL16}
v_xor_b32 v{vT1}, {4*4096}, v{vT0}
s_nop 8
s_barrier
s_cmp_lg_u32 s{sKh}, 0
s_cbranch_scc1 {lk1}""")
    for q in range(4):
        a(f"ds_write_b128 v{vT0}, {vr(vAcc+16+4*q,4)} offset:{q*1024}")
    a(f"s_branch {lj}\n{lk1}:")
    for q in range(4):
        a(f"ds_write_b128 v{vT0}, {vr(vAcc+4*q,4)} offset:{q*1024}")
    for r in range(16):
        a(f"v_mov_b32 v{vAcc+r}, v{vAcc+16+r}")
    a(f"{lj}:\ns_waitcnt lgkmcnt(0)\ns_barrier")
    for q in range(4):
        a(f"ds_read_b128 {vr(vWF+4*q,4)}, v{vT1} offset:{q*1024}")
    a(f"""s_mul_i32 s{sHs}, s{sTb}, {216*1024}
s_lshl_b32 s{sOff}, s{sCt}, 12
s_add_u32 s{sHs}, s{sHs}, s{sOff}
s_lshl_b32 s{sOff}, s{sKh}, 11
s_add_u32 s{sHs}, s{sHs}, s{sOff}
s_add_u32 s{sHs}, s{sHs}, {WS_QKV}
s_waitcnt lgkmcnt(0)""")
    for r in range(16):
        a(f"v_add_f32 v{vAcc+r}, v{vAcc+r}, v{vWF+r}")
    for r in range(8):
        a(f"v_cvt_pk_bf16_f32 v{vWF+16+r}, v{vAcc+2*r}, v{vAcc+2*r+1}")
    a(f"""buffer_store_dwordx4 {vr(vWF+16,4)}, v{vL16}, {WS}, s{sHs} offen sc1
buffer_store_dwordx4 {vr(vWF+20,4)}, v{vL16}, {WS}, s{sHs} offen offset:1024 sc1""")
    stamp(a, 6)
    a(f"""s_lshr_b32 s{sHs}, s{sTb}, 2
s_mul_i32 s{sHs}, s{sHs}, 54
s_add_u32 s{sHs}, s{sHs}, s{sCt}
s_lshl_b32 s{sHs}, s{sHs}, 7
s_add_u32 s{sHs}, s{sHs}, {F_QKV}""")
    set_flag(a, f"s{sHs}")
    stamp(a, 7)

def phase_c(a):
    vD, vA0, vA1 = V0, V0+1, V0+2
    vAcc = 20
    vWF = 52
    vR = 84
    vH = 92
    sCt, sTb, sKq, sJ, sOff, sHs, sHe, sLo, sLe, sLs = T, T+1, T+2, T+3, T+4, T+5, T+6, T+7, T+8, T+9
    sH = T+12
    a(f"""s_mov_b32 s{sJ}, s{S_SLOT}
s_lshr_b32 s{sKq}, s{S_W}, 1
s_cmp_ge_u32 s{sJ}, 26
s_cbranch_scc1 L_c_done
s_cmp_ge_u32 s{sJ}, 18
s_cbranch_scc1 L_c_s""")
    srd(a, R_A, S_WO, SZ_WO)
    a(f"""s_and_b32 s{sOff}, s{S_G}, 3
s_mul_i32 s{sOff}, s{sOff}, 18
s_add_u32 s{sOff}, s{sOff}, s{sJ}
s_lshr_b32 s{sCt}, s{sOff}, 2
s_and_b32 s{sJ}, s{sOff}, 3
s_lshr_b32 s{sTb}, s{S_G}, 2
s_lshl_b32 s{sTb}, s{sTb}, 2
s_add_u32 s{sTb}, s{sTb}, s{sJ}
s_lshl_b32 s{sTb}, s{sTb}, 1
s_and_b32 s{sOff}, s{S_W}, 1
s_add_u32 s{sTb}, s{sTb}, s{sOff}
v_lshlrev_b32 v{vD}, 4, v{vCH}
v_mul_u32_u24 v{vT0}, 2304, v{vR8}
s_lshl_b32 s{sOff}, s{sCt}, 7
v_add3_u32 v{vD}, v{vD}, v{vT0}, s{sOff}
s_mul_i32 s{sJ}, s{sJ}, 9
s_lshr_b32 s{sJ}, s{sJ}, 1""")
    dma_tile(a, RA, vD, 2304, sJ, NT)
    a(f"""s_lshl_b32 s{sJ}, s{sCt}, 1
s_mul_i32 s{sOff}, s{sJ}, 57
s_lshr_b32 s{sOff}, s{sOff}, 9
s_mul_i32 s{sOff}, s{sOff}, 9
s_sub_u32 s{sJ}, s{sJ}, s{sOff}
s_mul_i32 s{sHs}, s{sTb}, {216*1024}
s_mul_i32 s{sOff}, s{sKq}, {18*1024}
s_add_u32 s{sHs}, s{sHs}, s{sOff}
s_add_u32 s{sHs}, s{sHs}, {WS_QKV + 144*1024}
s_add_u32 s{sHe}, s{sHs}, {18*1024}
s_lshl_b32 s{sOff}, s{sJ}, 11
s_add_u32 s{sH}, s{sHs}, s{sOff}
s_mul_i32 s{sLs}, s{sKq}, {288*128}
s_add_u32 s{sLe}, s{sLs}, {288*128}
s_lshl_b32 s{sOff}, s{sJ}, 12
s_add_u32 s{sLo}, s{sLs}, s{sOff}
v_min_u32 v{vT0}, 17, v0
v_lshlrev_b32 v{vT0}, 7, v{vT0}
s_lshr_b32 s{sOff}, s{sTb}, 2
s_mul_i32 s{sOff}, s{sOff}, {54*128}
s_add_u32 s{sOff}, s{sOff}, {F_QKV + 36*128}
s_waitcnt vmcnt(0)""")
    stamp(a, 11)
    poll(a, vT0, f"s{sOff}", vT1)
    stamp(a, 12)
    LA = int(OPT.get('lau', 12))
    def vload(s):
        a(f"buffer_load_dwordx4 {vr(vH+4*s,4)}, v{vP16}, {WS}, s{sH} offen offset:{(s&1)*1024} sc1")
        if (s & 1) == 1 and s < 17:
            wrap_add(a, sH, 2048, sHe, sHs)
    def wread(s):
        if (s & 1) == 0:
            a(f"v_add_u32 v{vA0}, s{sLo}, v{vB0}\nv_add_u32 v{vA1}, s{sLo}, v{vB1}")
            wrap_add(a, sLo, 4096, sLe, sLs)
        trreads(a, vWF + 8*(s & 3), vA0, vA1, (s & 1)*2048)
    for s in range(LA):
        vload(s)
    wread(0); wread(1)
    for s in range(18):
        if s + 2 < 18:
            wread(s + 2)
        lg = 4*min(2, 17 - s)
        issued = min(18, s + LA)
        a(f"s_waitcnt vmcnt({issued - s - 1}) lgkmcnt({lg})")
        mfma(a, vAcc, vH+4*s, vWF+8*(s & 3), s == 0)
        mfma(a, vAcc+16, vH+4*s, vWF+8*(s & 3)+4, s == 0)
        if s + LA < 18:
            vload(s + LA)
    stamp(a, 13)
    a(f"""s_lshl_b32 s{sOff}, s{S_W}, 13
v_add_u32 v{vT0}, s{sOff}, v{vL16}
s_nop 8
s_barrier""")
    for q in range(8):
        a(f"ds_write_b128 v{vT0}, {vr(vAcc+4*q,4)} offset:{q*1024}")
    a(f"""s_and_b32 s{sOff}, s{S_W}, 1
s_lshl_b32 s{sOff}, s{sOff}, 13
s_lshl_b32 s{sJ}, s{sKq}, 11
s_add_u32 s{sOff}, s{sOff}, s{sJ}
v_add_u32 v{vT1}, s{sOff}, v{vL16}
s_waitcnt lgkmcnt(0)
s_barrier""")
    for j in range(4):
        a(f"""ds_read_b128 {vr(vAcc+8*j,4)}, v{vT1} offset:{j*16384}
ds_read_b128 {vr(vAcc+8*j+4,4)}, v{vT1} offset:{j*16384+1024}""")
    a(f"""s_lshr_b32 s{sJ}, s{sTb}, 3
s_mul_i32 s{sJ}, s{sJ}, 36
s_lshl_b32 s{sOff}, s{sCt}, 1
s_add_u32 s{sJ}, s{sJ}, s{sOff}
s_lshr_b32 s{sOff}, s{sKq}, 1
s_add_u32 s{sJ}, s{sJ}, s{sOff}
s_lshl_b32 s{sJ}, s{sJ}, 4
s_and_b32 s{sOff}, s{sTb}, 7
s_lshl_b32 s{sOff}, s{sOff}, 1
s_add_u32 s{sJ}, s{sJ}, s{sOff}
s_and_b32 s{sOff}, s{sKq}, 1
s_add_u32 s{sJ}, s{sJ}, s{sOff}
s_lshl_b32 s{sOff}, s{sJ}, 10
s_add_u32 s{sOff}, s{sOff}, {WS_U}
s_lshr_b32 s{sJ}, s{sTb}, 3
s_mul_i32 s{sJ}, s{sJ}, 18
s_add_u32 s{sJ}, s{sJ}, s{sCt}
s_lshl_b32 s{sJ}, s{sJ}, 2
s_bfe_u32 s{sHs}, s{sTb}, 0x20001
s_add_u32 s{sJ}, s{sJ}, s{sHs}
s_lshl_b32 s{sJ}, s{sJ}, 7
s_add_u32 s{sJ}, s{sJ}, {F_U}
s_waitcnt lgkmcnt(0)""")
    for r in range(8):
        a(f"""v_add_f32 v{vAcc+r}, v{vAcc+r}, v{vAcc+8+r}
v_add_f32 v{vAcc+16+r}, v{vAcc+16+r}, v{vAcc+24+r}""")
    for r in range(8):
        a(f"v_add_f32 v{vAcc+r}, v{vAcc+r}, v{vAcc+16+r}")
    for r in range(4):
        a(f"v_cvt_pk_bf16_f32 v{vR+r}, v{vAcc+2*r}, v{vAcc+2*r+1}")
    a(f"""buffer_store_dwordx4 {vr(vR,4)}, v{vL16}, {WS}, s{sOff} offen sc1""")
    set_flag(a, f"s{sJ}")
    a("s_branch L_c_done")
    a("L_c_s:")
    sQb, sKb, sK, sQ, sKs, sQs, sKt = T, T+1, T+5, T+6, T+7, T+8, T+9
    vS = 56
    RING = 15
    a(f"""s_sub_u32 s{sJ}, s{sJ}, 18
s_and_b32 s{sKq}, s{S_W}, 3
s_and_b32 s{sQb}, s{S_G}, 1
s_lshl_b32 s{sQb}, s{sQb}, 2
s_and_b32 s{sOff}, s{sJ}, 3
s_add_u32 s{sQb}, s{sQb}, s{sOff}
s_and_b32 s{sKt}, s{S_G}, 2
s_lshr_b32 s{sOff}, s{sJ}, 2
s_add_u32 s{sKt}, s{sKt}, s{sOff}
s_lshl_b32 s{sKb}, s{sKt}, 1
s_lshr_b32 s{sOff}, s{S_G}, 2
s_lshl_b32 s{sOff}, s{sOff}, 3
s_add_u32 s{sQb}, s{sQb}, s{sOff}
s_add_u32 s{sKb}, s{sKb}, s{sOff}
s_mul_i32 s{sKs}, s{sKb}, {216*1024}
s_mul_i32 s{sQs}, s{sQb}, {216*1024}
s_mul_i32 s{sOff}, s{sKq}, {18*1024}
s_add_u32 s{sKs}, s{sKs}, s{sOff}
s_add_u32 s{sQs}, s{sQs}, s{sOff}
s_add_u32 s{sKs}, s{sKs}, {WS_QKV + 72*1024}
s_add_u32 s{sQs}, s{sQs}, {WS_QKV}
s_lshl_b32 s{sH}, s{sJ}, 11
v_min_u32 v{vT0}, 17, v{vTok}
v_lshlrev_b32 v{vT0}, 7, v{vT0}
s_lshr_b32 s{sOff}, s{sKb}, 2
s_mul_i32 s{sOff}, s{sOff}, {54*128}
s_add_u32 s{sOff}, s{sOff}, {18*128}
s_lshr_b32 s{T+13}, s{sQb}, 2
s_mul_i32 s{T+13}, s{T+13}, {54*128}
s_sub_u32 s{sOff}, s{sOff}, s{T+13}
v_mul_lo_u32 v{vT1}, v{vHF}, s{sOff}
v_add_u32 v{vT0}, v{vT0}, v{vT1}
v_add_u32 v{vT0}, s{T+13}, v{vT0}
v_add_u32 v{vT2}, {216*1024}, v{vP16}
s_mov_b32 s{sOff}, {F_QKV}""")
    stamp(a, 11)
    poll(a, vT0, f"s{sOff}", vT1)
    stamp(a, 12)
    lsi = a.label("sidle"); lsj = a.label("sjoin")
    a(f"s_cmp_ge_u32 s{S_W}, 4\ns_cbranch_scc1 {lsi}")
    LA = int(OPT.get('las', 8))
    assert LA < RING
    a(f"s_movk_i32 s{T+13}, 0\ns_movk_i32 s{T+14}, {18*1024}")
    def sload(s):
        r = vS + 12*(s % RING)
        if (s & 1) == 0:
            a(f"s_add_u32 s{sK}, s{sKs}, s{sH}\ns_add_u32 s{sQ}, s{sQs}, s{sH}")
            wrap_add(a, sH, 2048, T+14, T+13)
        a(f"""buffer_load_dwordx4 {vr(r,4)}, v{vL16}, {WS}, s{sQ} offen offset:{(s&1)*1024} sc1
buffer_load_dwordx4 {vr(r+4,4)}, v{vP16}, {WS}, s{sK} offen offset:{(s&1)*1024} sc1
buffer_load_dwordx4 {vr(r+8,4)}, v{vT2}, {WS}, s{sK} offen offset:{(s&1)*1024} sc1""")
    for s in range(LA):
        sload(s)
    for s in range(18):
        issued = min(18, s + LA)
        r = vS + 12*(s % RING)
        a(f"s_waitcnt vmcnt({3*(issued - s - 1) + 1})")
        mfma(a, vAcc, r+4, r, s == 0)
        a(f"s_waitcnt vmcnt({3*(issued - s - 1)})")
        mfma(a, vAcc+16, r+8, r, s == 0)
        if s + LA < 18:
            sload(s + LA)
    stamp(a, 13)
    a(f"""s_lshl_b32 s{sOff}, s{S_W}, 13
v_add_u32 v{vT0}, s{sOff}, v{vL16}
s_nop 12""")
    for q in range(8):
        a(f"ds_write_b128 v{vT0}, {vr(vAcc+4*q,4)} offset:{q*1024}")
    a(f"""{lsi}:
s_lshl_b32 s{sOff}, s{S_W}, 10
v_add_u32 v{vT1}, s{sOff}, v{vL16}
s_waitcnt lgkmcnt(0)
s_barrier""")
    for j in range(4):
        a(f"ds_read_b128 {vr(vAcc+4*j,4)}, v{vT1} offset:{j*8192}")
    a(f"""s_lshl_b32 s{sJ}, s{sQb}, 4
s_and_b32 s{sOff}, s{sKb}, 7
s_lshl_b32 s{sOff}, s{sOff}, 1
s_add_u32 s{sJ}, s{sJ}, s{sOff}
s_lshr_b32 s{sOff}, s{S_W}, 1
s_add_u32 s{sJ}, s{sJ}, s{sOff}
s_lshl_b32 s{sJ}, s{sJ}, 10
s_and_b32 s{sOff}, s{S_W}, 1
s_lshl_b32 s{sOff}, s{sOff}, 3
s_add_u32 s{sJ}, s{sJ}, s{sOff}
s_add_u32 s{sJ}, s{sJ}, {WS_L}
s_lshl_b32 s{sK}, s{sQb}, 2
s_add_u32 s{sK}, s{sK}, s{sKt}
s_lshl_b32 s{sK}, s{sK}, 7
s_add_u32 s{sK}, s{sK}, {F_L}
s_waitcnt lgkmcnt(0)""")
    for r in range(4):
        a(f"""v_add_f32 v{vAcc+r}, v{vAcc+r}, v{vAcc+4+r}
v_add_f32 v{vAcc+8+r}, v{vAcc+8+r}, v{vAcc+12+r}""")
    for r in range(4):
        a(f"v_add_f32 v{vAcc+r}, v{vAcc+r}, v{vAcc+8+r}")
    sc = struct.unpack('<I', struct.pack('<f', D ** -0.5))[0]
    vR2 = 52
    for r in range(2):
        a(f"v_cvt_pk_bf16_f32 v{vR2+r}, v{vAcc+2*r}, v{vAcc+2*r+1}")
        unpack(a, vAcc+2*r, vAcc+2*r+1, vR2+r)
        a(f"""v_mul_f32 v{vAcc+2*r}, {hex(sc)}, v{vAcc+2*r}
v_mul_f32 v{vAcc+2*r+1}, {hex(sc)}, v{vAcc+2*r+1}
v_cvt_pk_bf16_f32 v{vR2+r}, v{vAcc+2*r}, v{vAcc+2*r+1}""")
    a(f"""buffer_store_dwordx2 {vr(vR2,2)}, v{vL16}, {WS}, s{sJ} offen sc1""")
    set_flag(a, f"s{sK}")
    a("L_c_done:")
    stamp(a, 14)

def phase_d(a):
    sQt, sCt, sCb, sKh, sOff, sXo, sJ, sU, sB, sCol = T, T+1, T+2, T+3, T+4, T+5, T+6, T+7, T+8, T+9
    vXo, vMx, vS, vLa, vPa = V0, V0+1, V0+2, V0+3, V0+4
    vLd = 24
    vX = 32
    vG = 36
    vF = 44
    vR = 60
    vAcc = 68
    vU = 84
    vP = 116
    L_P, L_EX = 0, 16384
    srd(a, R_A, S_X, SZ_X)
    srd(a, R_B, S_OUT, SZ_X)
    a(f"""s_sub_u32 s{sJ}, 26, s{S_SLOT}
s_cmp_ge_u32 s{sJ}, 18
s_cbranch_scc1 L_d_idle
s_and_b32 s{sOff}, s{S_G}, 3
s_mul_i32 s{sOff}, s{sOff}, 18
s_add_u32 s{sOff}, s{sOff}, s{sJ}
s_lshr_b32 s{sCt}, s{sOff}, 3
s_and_b32 s{sJ}, s{sOff}, 7
s_lshr_b32 s{sB}, s{S_G}, 2
s_lshl_b32 s{sQt}, s{sB}, 3
s_add_u32 s{sQt}, s{sQt}, s{sJ}
s_and_b32 s{sCb}, s{S_W}, 3
s_lshr_b32 s{sKh}, s{S_W}, 2
s_lshl_b32 s{sCol}, s{sCt}, 7
s_lshl_b32 s{sOff}, s{sCb}, 5
s_add_u32 s{sCol}, s{sCol}, s{sOff}
s_lshl_b32 s{sOff}, s{sKh}, 4
s_add_u32 s{sCol}, s{sCol}, s{sOff}
s_mul_i32 s{sXo}, s{sQt}, {32*2304}
s_lshl_b32 s{sOff}, s{sCol}, 1
s_add_u32 s{sXo}, s{sXo}, s{sOff}
v_mul_u32_u24 v{vXo}, 2304, v{vTok}
v_lshl_add_u32 v{vXo}, v{vHF}, 4, v{vXo}
buffer_load_dwordx4 {vr(vX,4)}, v{vXo}, {RA}, s{sXo} offen
s_mul_i32 s{sU}, s{sB}, 36
s_lshl_b32 s{sOff}, s{sCt}, 2
s_add_u32 s{sU}, s{sU}, s{sOff}
s_add_u32 s{sU}, s{sU}, s{sCb}
s_lshl_b32 s{sU}, s{sU}, 4
s_lshl_b32 s{sOff}, s{sKh}, 3
s_add_u32 s{sU}, s{sU}, s{sOff}""")
    a(f"""v_lshlrev_b32 v{vT0}, 7, v0
s_lshl_b32 s{sOff}, s{sQt}, 9
s_add_u32 s{sOff}, s{sOff}, {F_L}
v_add_u32 v{vT1}, s{sOff}, v{vT0}
s_mul_i32 s{sOff}, s{sB}, 18
s_lshl_b32 s{T+10}, s{sCt}, 1
s_add_u32 s{sOff}, s{sOff}, s{T+10}
s_lshl_b32 s{sOff}, s{sOff}, 9
s_add_u32 s{sOff}, s{sOff}, {F_U - 512}
v_add_u32 v{vT2}, s{sOff}, v{vT0}
v_cmp_lt_u32 vcc, 3, v0
s_lshl_b32 s{sOff}, s{sCt}, 8
s_add_u32 s{sOff}, s{sOff}, {F_G}
v_cndmask_b32 v{vT1}, v{vT1}, v{vT2}, vcc
v_and_b32 v{vT2}, 128, v{vT0}
v_add_u32 v{vT2}, s{sOff}, v{vT2}
v_cmp_lt_u32 vcc, 11, v0
s_lshl_b32 s{sU}, s{sU}, 10
s_add_u32 s{sU}, s{sU}, {WS_U}
v_cndmask_b32 v{vT1}, v{vT1}, v{vT2}, vcc
v_and_b32 v{vLa}, 15, v0
v_lshlrev_b32 v{vLa}, 10, v{vLa}
v_lshrrev_b32 v{vT0}, 4, v0
v_lshl_add_u32 v{vLa}, v{vT0}, 4, v{vLa}
s_lshl_b32 s{sOff}, s{S_W}, 6
v_add_u32 v{vLa}, s{sOff}, v{vLa}""")
    poll(a, vT1, "0", vT2)
    stamp(a, 8)
    a(f"""s_lshl_b32 s{sOff}, s{sQt}, 14
s_add_u32 s{sOff}, s{sOff}, {WS_L}
buffer_load_dwordx4 {vr(vLd,4)}, v{vLa}, {WS}, s{sOff} offen sc1
buffer_load_dwordx4 {vr(vLd+4,4)}, v{vLa}, {WS}, s{sOff} offen offset:512 sc1
s_barrier""")
    for s in range(8):
        a(f"""s_add_u32 s{T+10}, s{sJ}, {s}
s_and_b32 s{T+10}, s{T+10}, 7
s_lshl_b32 s{T+10}, s{T+10}, 10
s_add_u32 s{T+10}, s{T+10}, s{sU}
buffer_load_dwordx4 {vr(vU+4*s,4)}, v{vL16}, {WS}, s{T+10} offen sc1""")
    a(f"""s_mul_i32 s{sOff}, s{sB}, 4608
s_lshl_b32 s{T+10}, s{sCol}, 2
s_add_u32 s{sOff}, s{sOff}, s{T+10}
s_add_u32 s{sOff}, s{sOff}, {WS_GATE}
v_lshlrev_b32 v{vT0}, 5, v{vHF}
buffer_load_dwordx4 {vr(vG,4)}, v{vT0}, {WS}, s{sOff} offen sc1
buffer_load_dwordx4 {vr(vG+4,4)}, v{vT0}, {WS}, s{sOff} offen offset:16 sc1
s_waitcnt vmcnt(10)""")
    stamp(a, 9)
    for i in range(8):
        unpack(a, vF+2*i, vF+2*i+1, vLd+i)
    a(f"v_max3_f32 v{vMx}, v{vF}, v{vF+1}, v{vF+2}")
    for i in range(3, 15, 2):
        a(f"v_max3_f32 v{vMx}, v{vMx}, v{vF+i}, v{vF+i+1}")
    a(f"v_max_f32 v{vMx}, v{vMx}, v{vF+15}")
    for m in ("quad_perm:[1,0,3,2]", "quad_perm:[2,3,0,1]", "row_half_mirror", "row_mirror"):
        a(f"s_nop 1\nv_max_f32_dpp v{vMx}, v{vMx}, v{vMx} {m} row_mask:0xf bank_mask:0xf")
    for i in range(16):
        a(f"v_sub_f32 v{vF+i}, v{vF+i}, v{vMx}")
    for i in range(16):
        a(f"v_mul_f32 v{vF+i}, {hex(LOG2E)}, v{vF+i}")
    for i in range(16):
        a(f"v_exp_f32 v{vF+i}, v{vF+i}")
    a(f"s_nop 0\nv_add_f32 v{vS}, v{vF}, v{vF+1}")
    for i in range(2, 16):
        a(f"v_add_f32 v{vS}, v{vS}, v{vF+i}")
    for m in ("quad_perm:[1,0,3,2]", "quad_perm:[2,3,0,1]", "row_half_mirror", "row_mirror"):
        a(f"s_nop 1\nv_add_f32_dpp v{vS}, v{vS}, v{vS} {m} row_mask:0xf bank_mask:0xf")
    a(f"v_rcp_f32 v{vS}, v{vS}\ns_nop 0")
    for i in range(16):
        a(f"v_mul_f32 v{vF+i}, v{vF+i}, v{vS}")
    for i in range(8):
        a(f"v_cvt_pk_bf16_f32 v{vLd+i}, v{vF+2*i}, v{vF+2*i+1}")
    a(f"""ds_write_b128 v{vLa}, {vr(vLd,4)} offset:{L_P}
ds_write_b128 v{vLa}, {vr(vLd+4,4)} offset:{L_P+512}
s_lshl_b32 s{sOff}, s{sKh}, 13
v_add_u32 v{vPa}, s{sOff}, v{vL16}
s_waitcnt lgkmcnt(0)
s_barrier""")
    for s in range(8):
        a(f"""s_add_u32 s{T+10}, s{sJ}, {s}
s_and_b32 s{T+10}, s{T+10}, 7
s_lshl_b32 s{T+10}, s{T+10}, 10
v_add_u32 v{vT0}, s{T+10}, v{vPa}
ds_read_b128 {vr(vP+4*s,4)}, v{vT0} offset:{L_P}""")
    for s in range(8):
        a(f"s_waitcnt vmcnt({2+7-s}) lgkmcnt({7-s})")
        mfma(a, vAcc, vU+4*s, vP+4*s, s == 0)
    stamp(a, 10)
    lk1 = a.label("kh1"); lj = a.label("j")
    a(f"""s_lshl_b32 s{sOff}, s{S_W}, 11
v_add_u32 v{vT0}, s{sOff}, v{vL16}
v_xor_b32 v{vT1}, {4*2048}, v{vT0}
s_nop 10
s_cmp_lg_u32 s{sKh}, 0
s_cbranch_scc1 {lk1}
ds_write_b128 v{vT0}, {vr(vAcc+8,4)} offset:{L_EX}
ds_write_b128 v{vT0}, {vr(vAcc+12,4)} offset:{L_EX+1024}
s_branch {lj}
{lk1}:
ds_write_b128 v{vT0}, {vr(vAcc,4)} offset:{L_EX}
ds_write_b128 v{vT0}, {vr(vAcc+4,4)} offset:{L_EX+1024}""")
    for r in range(8):
        a(f"v_mov_b32 v{vAcc+r}, v{vAcc+8+r}")
    a(f"""{lj}:
s_waitcnt lgkmcnt(0)
s_barrier
ds_read_b128 {vr(vR,4)}, v{vT1} offset:{L_EX}
ds_read_b128 {vr(vR+4,4)}, v{vT1} offset:{L_EX+1024}
s_waitcnt vmcnt(0) lgkmcnt(0)""")
    for r in range(8):
        a(f"v_add_f32 v{vAcc+r}, v{vAcc+r}, v{vR+r}")
    for i in range(4):
        lo, hi = vAcc+2*i, vAcc+2*i+1
        a(f"v_cvt_pk_bf16_f32 v{vR+i}, v{lo}, v{hi}")
        unpack(a, lo, hi, vR+i)
        a(f"""v_mul_f32 v{lo}, v{lo}, v{vG+2*i}
v_mul_f32 v{hi}, v{hi}, v{vG+2*i+1}
v_cvt_pk_bf16_f32 v{vR+i}, v{lo}, v{hi}""")
        unpack(a, lo, hi, vR+i)
        unpack(a, vF, vF+1, vX+i)
        a(f"""v_add_f32 v{lo}, v{lo}, v{vF}
v_add_f32 v{hi}, v{hi}, v{vF+1}
v_cvt_pk_bf16_f32 v{vR+i}, v{lo}, v{hi}""")
    a(f"""buffer_store_dwordx4 {vr(vR,4)}, v{vXo}, {RB}, s{sXo} offen
s_branch L_fin
L_d_idle:
s_cmp_lg_u32 s2, 0
s_cbranch_scc1 L_fin""")
    lp = a.label("ep"); ld = a.label("epd")
    a(f"""s_lshl_b32 s{sOff}, s{S_W}, 6
v_add_u32 v{vT0}, s{sOff}, v0
v_min_u32 v{vT0}, 225, v{vT0}
v_lshlrev_b32 v{vT0}, 7, v{vT0}
s_movk_i32 s{sOff}, {F_L}
{lp}:
s_sleep 8
buffer_load_dword v{vLd}, v{vT0}, {WS}, s{sOff} offen sc1
s_waitcnt vmcnt(0)
v_cmp_ne_u32 vcc, s{S_TAG}, v{vLd}
s_cbranch_vccz {ld}
s_sub_u32 s{S_TO}, s{S_TO}, 1
s_cmp_lg_u32 s{S_TO}, 0
s_cbranch_scc1 {lp}
{ld}:
s_mov_b32 s{sOff}, {EPOCH}""")
    set_flag(a, f"s{sOff}")
    a("L_fin:")

def epilogue(a):
    if STAMP:
        a(f"""s_waitcnt vmcnt(0) lgkmcnt(0)
s_cmp_lg_u32 s{S_W}, {OPT.get('stw', 0)}
s_cbranch_scc1 L_end
s_memrealtime s[{S_ST+30}:{S_ST+31}]
s_memtime s[98:99]
s_waitcnt lgkmcnt(0)
s_sub_u32 s98, s98, s96""")
        for i in range(16):
            a(f"v_mov_b32 v{16+i}, s{S_ST+2*i}")
        a(f"""v_mov_b32 v32, s98
s_lshl_b32 s{T}, s2, 7
s_add_u32 s{T}, s{T}, {WS_STAMP}
v_mov_b32 v1, 0
s_mov_b64 exec, 1""")
        for i in range(4):
            a(f"buffer_store_dwordx4 v[{16+4*i}:{19+4*i}], v1, {WS}, s{T} offen offset:{16*i}")
        a(f"buffer_store_dword v32, v1, {WS}, s{T} offen offset:64")
    a("L_end:\ns_endpgm")

def main():
    a = Asm()
    a.raw("; @launch grid=(256,1,1) block=(512,1,1) lds=163840")
    a.raw('.amdgcn_target "amdgcn-amd-amdhsa--gfx950"\n.text')
    prologue(a)
    a(f"s_cmp_ge_u32 s{S_SLOT}, 27\ns_cbranch_scc1 L_owner")
    phase_ab_gemm(a)
    phase_c(a)
    phase_d(a)
    epilogue(a)
    a("L_owner:")
    phase_a_owner(a)
    out = a.text() + kd(NAME, 244, 102)
    path = [x for x in sys.argv[1:] if not x.startswith('--')][0]
    open(path, 'w').write(out)
main()
```

```python
import sys, struct
from asmlib import *

OPT = dict(la='3', nt='nt')
for a_ in sys.argv[1:]:
    if a_.startswith('--'):
        k, _, v = a_[2:].partition('=')
        OPT[k] = v
STAMP = 'stamp' in OPT
NT = OPT['nt']

NAME = "standalone__dit_adaln_block__diffusion_kernel"
D = 1152
SZ_X = 512*D*2; SZ_C = 2*D*2; SZ_WQKV = D*3*D*2; SZ_WO = D*D*2; SZ_WMOD = D*6*D*2
SZ_WS = 1 << 28
F_STAT = 0x0
F_H = 0x2000
F_L = 0x4000
F_U = F_L + 64*128
F_G = F_U + 144*128
F_QKV = 0xC000
EPOCH = 0x13000
WS_GATE = 0x14000
WS_H = 0x20000
WS_QKV = 0x140000
WS_L = 0x4A0000
WS_U = 0x500000
WS_STAMP = 0x700000
LOG2E = 0x3fb8aa3b

S_W, S_TAG, S_G, S_SLOT, S_TO = 3, 4, 5, 6, 7
S_X, S_C, S_WQKV, S_WO, S_WMOD, S_OUT, S_DBG, S_WS = 16, 18, 20, 22, 24, 26, 28, 30
R_A, R_B, R_C, R_WS = 32, 36, 40, 44
T = 48
S_ST = 64
WS = f"s[{R_WS}:{R_WS+3}]"
RA = f"s[{R_A}:{R_A+3}]"; RB = f"s[{R_B}:{R_B+3}]"; RC = f"s[{R_C}:{R_C+3}]"
vL16, vP16, vB0, vB1, vCH, vR8, vHF, vTok = 1, 2, 3, 4, 5, 6, 7, 8
vT0, vT1, vT2, vT3 = 9, 10, 11, 12
vTAG = 13
V0 = 16

L_MISC = 147456
L_SIL = L_MISC
L_RED = L_SIL + 4608
L_FIN = L_RED + 4096

def srd(a, r, ptr, size):
    a(f"""s_mov_b32 s{r}, s{ptr}
s_and_b32 s{r+1}, s{ptr+1}, 0xffff
s_mov_b32 s{r+2}, {hex(size)}
s_mov_b32 s{r+3}, 0x20000""")

def stamp(a, i):
    if STAMP:
        a(f"s_memrealtime s[{S_ST+2*i}:{S_ST+2*i+1}]")

def unpack(a, lo, hi, src):
    a(f"v_lshlrev_b32 v{lo}, 16, v{src}\nv_and_b32 v{hi}, 0xffff0000, v{src}")

def wave_sum2(a, v, w, sdst, sdst2):
    for m in ("quad_perm:[1,0,3,2]", "quad_perm:[2,3,0,1]", "row_half_mirror", "row_mirror"):
        a(f"s_nop 0\nv_add_f32_dpp v{v}, v{v}, v{v} {m} row_mask:0xf bank_mask:0xf\nv_add_f32_dpp v{w}, v{w}, v{w} {m} row_mask:0xf bank_mask:0xf")
    for m in ("row_bcast:15 row_mask:0xa", "row_bcast:31 row_mask:0xc"):
        a(f"s_nop 0\nv_add_f32_dpp v{v}, v{v}, v{v} {m} bank_mask:0xf\nv_add_f32_dpp v{w}, v{w}, v{w} {m} bank_mask:0xf")
    a(f"s_nop 1\nv_readlane_b32 s{sdst}, v{v}, 63\nv_readlane_b32 s{sdst2}, v{w}, 63\ns_nop 1")

def round_bf16(a, v):
    a(f"v_cvt_pk_bf16_f32 v{v}, v{v}, v{v}\nv_lshlrev_b32 v{v}, 16, v{v}")

def mfma(a, acc, A, B, first=False):
    c = "0" if first else vr(acc, 16)
    a(f"v_mfma_f32_32x32x16_bf16 {vr(acc,16)}, {vr(A,4)}, {vr(B,4)}, {c}")

def wrap_add(a, s, step, s_end, s_start):
    a(f"""s_add_u32 s{s}, s{s}, {step}
s_cmp_eq_u32 s{s}, s{s_end}
s_cselect_b32 s{s}, s{s_start}, s{s}""")

def poll(a, vaddr, soff, vtmp):
    l = a.label("poll"); d = a.label("polld")
    a(f"""s_cmp_lg_u32 s{S_W}, 0
s_cbranch_scc1 {d}
{l}:
buffer_load_dword v{vtmp}, v{vaddr}, {WS}, {soff} offen sc1
s_waitcnt vmcnt(0)
v_cmp_ne_u32 vcc, s{S_TAG}, v{vtmp}
s_cbranch_vccz {d}
s_sleep {OPT.get('sleep', 2)}
s_sub_u32 s{S_TO}, s{S_TO}, 1
s_cmp_lg_u32 s{S_TO}, 0
s_cbranch_scc1 {l}
s_mov_b32 s{S_TO}, 1
{d}:
s_barrier""")

def raw_flag(a, soff):
    a(f"""v_mov_b32 v{vT3}, 0
s_mov_b64 exec, 1
buffer_store_dword v{vTAG}, v{vT3}, {WS}, {soff} offen sc1
s_mov_b64 exec, -1""")

def set_flag(a, soff):
    d = a.label("fl")
    a(f"""s_waitcnt vmcnt(0)
s_barrier
s_cmp_lg_u32 s{S_W}, 0
s_cbranch_scc1 {d}""")
    raw_flag(a, soff)
    a(f"{d}:")

def trreads(a, wf, b0, b1, off):
    a(f"""ds_read_b64_tr_b16 {vr(wf,2)}, v{b0} offset:{off}
ds_read_b64_tr_b16 {vr(wf+2,2)}, v{b0} offset:{off+512}
ds_read_b64_tr_b16 {vr(wf+4,2)}, v{b1} offset:{off}
ds_read_b64_tr_b16 {vr(wf+6,2)}, v{b1} offset:{off+512}""")

def dma_tile(a, srdname, vD, pitch, s_rot, flags, n0=0, n1=18):
    sN, sO = T+10, T+11
    if s_rot is None:
        a(f"s_add_u32 s{sN}, s{S_W}, {8*n0}")
    else:
        a(f"s_lshl_b32 s{sN}, s{s_rot}, 3\ns_add_u32 s{sN}, s{sN}, s{S_W}")
    for n in range(n0, n1):
        a(f"""s_lshl_b32 m0, s{sN}, 10
s_mul_i32 s{sO}, s{sN}, {8*pitch}
buffer_load_dwordx4 v{vD}, {srdname}, s{sO} offen {flags} lds""")
        if n < n1-1:
            a(f"s_add_u32 s{sN}, s{sN}, 8")
            if s_rot is not None:
                a(f"""s_sub_u32 s{sO}, s{sN}, 144
s_cmp_ge_u32 s{sN}, 144
s_cselect_b32 s{sN}, s{sO}, s{sN}""")

def prologue(a):
    a.raw(f".globl {NAME}\n.p2align 8\n.type {NAME},@function\n{NAME}:")
    a(f"""s_cmp_ge_u32 s2, 256
s_cbranch_scc1 L_end
s_load_dwordx16 s[16:31], s[0:1], 0""")
    if STAMP:
        a(f"s_memrealtime s[{S_ST}:{S_ST+1}]\ns_memtime s[96:97]")
        for i in range(1, 16):
            a(f"s_mov_b32 s{S_ST+2*i}, 0")
    a(f"""v_lshrrev_b32 v1, 6, v0
v_and_b32 v0, 63, v0
s_and_b32 s{S_G}, s2, 7
v_readfirstlane_b32 s{S_W}, v1
s_lshr_b32 s{S_SLOT}, s2, 3
s_mov_b32 s{S_TO}, 0x40000
v_lshlrev_b32 v{vL16}, 4, v0
v_lshrrev_b32 v{vHF}, 5, v0
v_and_b32 v{vTok}, 31, v0
v_lshrrev_b32 v{vR8}, 3, v0
v_and_b32 v{vP16}, 0x33, v0
v_and_b32 v{vT0}, 4, v0
v_lshl_or_b32 v{vP16}, v{vT0}, 1, v{vP16}
v_and_b32 v{vT0}, 8, v0
v_lshrrev_b32 v{vT0}, 1, v{vT0}
v_or_b32 v{vP16}, v{vP16}, v{vT0}
v_lshlrev_b32 v{vP16}, 4, v{vP16}
v_lshrrev_b32 v{vT0}, 2, v0
v_and_b32 v{vT0}, 4, v{vT0}
v_and_b32 v{vCH}, 7, v0
v_xor_b32 v{vCH}, v{vCH}, v{vT0}
v_lshlrev_b32 v{vB0}, 10, v{vHF}
v_and_b32 v{vT0}, 12, v0
v_lshl_or_b32 v{vB0}, v{vT0}, 5, v{vB0}
v_and_b32 v{vT0}, 8, v0
v_lshl_or_b32 v{vB0}, v{vT0}, 3, v{vB0}
v_and_b32 v{vT0}, 16, v0
v_lshl_or_b32 v{vB0}, v{vT0}, 1, v{vB0}
v_and_b32 v{vT0}, 1, v0
v_lshl_or_b32 v{vB0}, v{vT0}, 4, v{vB0}
v_and_b32 v{vT0}, 2, v0
v_lshl_or_b32 v{vB0}, v{vT0}, 2, v{vB0}
v_xor_b32 v{vB1}, 64, v{vB0}
s_waitcnt lgkmcnt(0)
s_load_dword s{S_TAG}, s[{S_WS}:{S_WS+1}], {EPOCH}""")
    srd(a, R_WS, S_WS, SZ_WS)

def get_tag(a):
    a(f"""s_waitcnt lgkmcnt(0)
s_mul_i32 s{S_TAG}, s{S_TAG}, 1664525
s_add_u32 s{S_TAG}, s{S_TAG}, 1013904223
v_mov_b32 v{vTAG}, s{S_TAG}""")

def gemv_dma(a, sColA, sDiff, vD):
    sRow0, sOff = T+2, T+3
    a(f"""v_lshrrev_b32 v{vT1}, 2, v{vCH}
v_mul_lo_u32 v{vT1}, v{vT1}, s{sDiff}
v_and_b32 v{vT0}, 3, v{vCH}
v_lshl_add_u32 v{vD}, v{vT0}, 4, v{vT1}
v_mul_u32_u24 v{vT0}, 13824, v{vR8}
v_add3_u32 v{vD}, v{vD}, v{vT0}, s{sColA}
s_mul_i32 s{sOff}, s{sRow0}, 13824
s_lshl_b32 m0, s{sRow0}, 7""")
    for t in range(18):
        a(f"""s_nop 0
buffer_load_dwordx4 v{vD}, {RA}, s{sOff} offen {NT} lds""")
        if t < 17:
            a(f"s_add_u32 s{sOff}, s{sOff}, {8*13824}\ns_add_u32 m0, m0, 1024")

def gemv_loop(a, vA0, vA1, vSil, vAcc, vWF, vSF, extra_after=None, mid=None):
    for s in range(9):
        wf = vWF + 8*(s & 1); sf = vSF + 4*(s & 1)
        n_extra = extra_after if (mid is not None and s > mid[0]) else 0
        a(f"s_waitcnt vmcnt({18-2*(s+1)+n_extra})")
        a(f"ds_read_b128 {vr(sf,4)}, v{vSil} offset:{s*32}")
        trreads(a, wf, vA0, vA1, s*2048)
        if mid is not None and s == mid[0]:
            mid[1]()
        a("s_waitcnt lgkmcnt(2)")
        mfma(a, vAcc, wf, sf, s == 0)
        a("s_waitcnt lgkmcnt(0)")
        mfma(a, vAcc+16, wf+4, sf, s == 0)

def gemv_red_write(a, vAcc):
    sOff = T+3
    a(f"""v_and_b32 v{vT0}, 1, v0
v_lshlrev_b32 v{vT0}, 8, v{vT0}
v_lshl_add_u32 v{vT0}, v{vHF}, 5, v{vT0}
s_lshl_b32 s{sOff}, s{S_W}, 9
s_add_u32 s{sOff}, s{sOff}, {L_RED}
v_add_u32 v{vT0}, s{sOff}, v{vT0}
s_mov_b32 exec_lo, 3
s_mov_b32 exec_hi, 3
s_nop 8""")
    for cb in range(2):
        for q, off in enumerate((0, 16, 64, 80)):
            a(f"ds_write_b128 v{vT0}, {vr(vAcc+16*cb+4*q,4)} offset:{cb*128+off}")
    a("s_mov_b64 exec, -1")

def gemv_red_read(a, vAcc):
    sOff = T+3
    a(f"""s_lshr_b32 s{sOff}, s{S_W}, 2
s_lshl_b32 s{sOff}, s{sOff}, 8
s_add_u32 s{sOff}, s{sOff}, {L_RED}
v_lshlrev_b32 v{vT0}, 2, v0
v_add_u32 v{vT1}, s{sOff}, v{vT0}""")
    for w in range(8):
        a(f"ds_read_b32 v{vAcc+w}, v{vT1} offset:{w*512}")
    a("s_waitcnt lgkmcnt(0)")
    for w in range(1, 8):
        a(f"v_add_f32 v{vAcc}, v{vAcc}, v{vAcc+w}")
    round_bf16(a, vAcc)

def phase_a_owner(a):
    sColA, sDiff, sRow0, sOff, sO, sJ = T, T+1, T+2, T+3, T+4, T+5
    vD, vA0, vA1, vSil, vCs = V0, V0+1, V0+2, V0+3, V0+4
    vC = 24
    vST = 28
    vX = 36
    vXN = 52
    vAcc = 84
    vWF = 116
    vSF = 132
    vM = 140
    srd(a, R_A, S_WMOD, SZ_WMOD)
    srd(a, R_B, S_X, SZ_X)
    srd(a, R_C, S_C, SZ_C)
    a(f"""s_sub_u32 s{sJ}, s{S_SLOT}, 27
s_lshl_b32 s{sO}, s{S_G}, 2
s_add_u32 s{sO}, s{sO}, s{sJ}
s_add_u32 s{sOff}, s{S_G}, 32
s_cmp_eq_u32 s{sJ}, 4
s_cselect_b32 s{sO}, s{sOff}, s{sO}
s_cmp_ge_u32 s{sO}, 36
s_cbranch_scc1 L_o_pref
s_mul_i32 s{sRow0}, s{S_W}, 144
v_min_u32 v{vT0}, 17, v{vTok}
v_lshlrev_b32 v{vT0}, 4, v{vT0}
v_mul_u32_u24 v{vT1}, 2304, v{vHF}
v_add_u32 v{vCs}, v{vT0}, v{vT1}
s_lshl_b32 s{sOff}, s{sRow0}, 1
buffer_load_dwordx4 {vr(vC,4)}, v{vCs}, {RC}, s{sOff} offen
s_lshl_b32 s{sColA}, s{sO}, 6
s_movk_i32 s{sDiff}, 2304""")
    get_tag(a)
    a(f"""s_lshl_b32 s{sOff}, s{sRow0}, 7
v_add_u32 v{vA0}, s{sOff}, v{vB0}
v_add_u32 v{vA1}, s{sOff}, v{vB1}
s_waitcnt vmcnt(0)""")
    stamp(a, 1)
    gemv_dma(a, sColA, sDiff, vD)
    a(f"""v_mul_u32_u24 v{vT0}, 2304, v{vTok}
v_lshl_add_u32 v{vT0}, v{vHF}, 4, v{vT0}
s_mul_i32 s{sOff}, s{S_W}, {64*2304}
s_add_u32 s{sOff}, s{sOff}, s{sColA}
buffer_load_dwordx4 {vr(vX,4)}, v{vT0}, {RB}, s{sOff} offen {NT}
buffer_load_dwordx4 {vr(vX+4,4)}, v{vT0}, {RB}, s{sOff} offen offset:32 {NT}
s_add_u32 s{sOff}, s{sOff}, {32*2304}
buffer_load_dwordx4 {vr(vX+8,4)}, v{vT0}, {RB}, s{sOff} offen {NT}
buffer_load_dwordx4 {vr(vX+12,4)}, v{vT0}, {RB}, s{sOff} offen offset:32 {NT}""")
    def statload():
        a(f"""v_lshlrev_b32 v{vT2}, 4, v{vTok}
s_lshl_b32 s{T+9}, s{S_W}, 10
s_add_u32 s{T+9}, s{T+9}, {F_STAT}
buffer_load_dwordx4 {vr(vST,4)}, v{vT2}, {WS}, s{T+9} offen sc1
buffer_load_dwordx4 {vr(vST+4,4)}, v{vT2}, {WS}, s{T+9} offen offset:512 sc1""")
    statload()
    stamp(a, 2)
    silu_to_lds(a, vC, vM, vCs, vSil)
    for s in range(9):
        wf = vWF + 8*(s & 1); sf = vSF + 4*(s & 1)
        a(f"s_waitcnt vmcnt({18-2*(s+1)+6})")
        if s == 0: stamp(a, 3)
        a(f"ds_read_b128 {vr(sf,4)}, v{vSil} offset:{s*32}")
        trreads(a, wf, vA0, vA1, s*2048)
        a("s_waitcnt lgkmcnt(2)")
        mfma(a, vAcc, wf, sf, s == 0)
        a("s_waitcnt lgkmcnt(0)")
        mfma(a, vAcc+16, wf+4, sf, s == 0)
    stamp(a, 4)
    gemv_red_write(a, vAcc)
    lp = a.label("stp"); ld = a.label("std")
    a(f"""{lp}:
s_waitcnt vmcnt(0)
v_cmp_ne_u32 vcc, s{S_TAG}, v{vST+2}
v_cmp_ne_u32 s[{T+12}:{T+13}], s{S_TAG}, v{vST+6}
s_or_b64 vcc, vcc, s[{T+12}:{T+13}]
s_cbranch_vccz {ld}
s_sub_u32 s{S_TO}, s{S_TO}, 1
s_cmp_eq_u32 s{S_TO}, 0
s_cbranch_scc1 {ld}
s_sleep 2""")
    statload()
    a(f"s_branch {lp}\n{ld}:")
    a(f"s_max_u32 s{S_TO}, s{S_TO}, 1")
    stamp(a, 5)
    for q in range(4):
        m, rd = vST + 4*(q >> 1), vST + 4*(q >> 1) + 1
        for i in range(4):
            lo, hi = vXN+8*q+2*i, vXN+8*q+2*i+1
            s = vX+4*q+i
            unpack(a, lo, hi, s)
            a(f"""v_sub_f32 v{lo}, v{lo}, v{m}
v_sub_f32 v{hi}, v{hi}, v{m}
v_cvt_pk_bf16_f32 v{s}, v{lo}, v{hi}""")
            unpack(a, lo, hi, s)
            a(f"""v_mul_f32 v{lo}, v{lo}, v{rd}
v_mul_f32 v{hi}, v{hi}, v{rd}
v_cvt_pk_bf16_f32 v{s}, v{lo}, v{hi}""")
            unpack(a, lo, hi, s)
    a("s_waitcnt lgkmcnt(0)\ns_barrier")
    gemv_red_read(a, vAcc)
    a(f"v_add_f32 v{vAcc+1}, 1.0, v{vAcc}")
    round_bf16(a, vAcc+1)
    a(f"""v_cmp_lt_u32 vcc, 31, v0
s_lshl_b32 s{sOff}, s{S_W}, 8
s_add_u32 s{sOff}, s{sOff}, {L_FIN}
v_cndmask_b32 v{vAcc}, v{vAcc}, v{vAcc+1}, vcc
v_add_u32 v{vT0}, s{sOff}, v{vT0}
ds_write_b32 v{vT0}, v{vAcc}
v_lshlrev_b32 v{vT1}, 5, v{vHF}
v_add_u32 v{vT1}, s{sOff}, v{vT1}
s_waitcnt lgkmcnt(0)""")
    for ks in range(2):
        a(f"""ds_read_b128 {vr(vM+16*ks,4)}, v{vT1} offset:{ks*64}
ds_read_b128 {vr(vM+16*ks+4,4)}, v{vT1} offset:{ks*64+16}
ds_read_b128 {vr(vM+16*ks+8,4)}, v{vT1} offset:{128+ks*64}
ds_read_b128 {vr(vM+16*ks+12,4)}, v{vT1} offset:{128+ks*64+16}""")
    a(f"""s_mul_i32 s{sOff}, s{S_W}, {2*72*1024}
s_lshl_b32 s{sDiff}, s{sO}, 11
s_add_u32 s{sOff}, s{sOff}, s{sDiff}
s_add_u32 s{sOff}, s{sOff}, {WS_H}
s_waitcnt lgkmcnt(0)""")
    for q in range(4):
        ks = q & 1
        for i in range(4):
            lo, hi = vXN+8*q+2*i, vXN+8*q+2*i+1
            s = vX+4*q+i
            a(f"""v_mul_f32 v{lo}, v{lo}, v{vM+16*ks+8+2*i}
v_mul_f32 v{hi}, v{hi}, v{vM+16*ks+8+2*i+1}
v_cvt_pk_bf16_f32 v{s}, v{lo}, v{hi}""")
            unpack(a, lo, hi, s)
            a(f"""v_add_f32 v{lo}, v{lo}, v{vM+16*ks+2*i}
v_add_f32 v{hi}, v{hi}, v{vM+16*ks+2*i+1}
v_cvt_pk_bf16_f32 v{s}, v{lo}, v{hi}""")
        if q == 2:
            a(f"s_add_u32 s{sOff}, s{sOff}, {72*1024}")
        a(f"buffer_store_dwordx4 {vr(vX+4*q,4)}, v{vL16}, {WS}, s{sOff} offen offset:{ks*1024} sc1")
    stamp(a, 6)
    a(f"""s_lshl_b32 s{sOff}, s{sO}, 7
s_add_u32 s{sOff}, s{sOff}, {F_H}""")
    set_flag(a, f"s{sOff}")
    stamp(a, 7)
    a("L_o_pref:")
    srd(a, R_B, S_WO, SZ_WO)
    a(f"""s_and_b32 s{sOff}, s{S_G}, 3
s_mul_i32 s{sOff}, s{sOff}, 18
s_lshl_b32 s{sDiff}, s{sJ}, 2
s_add_u32 s{sOff}, s{sOff}, s{sDiff}
s_add_u32 s{sOff}, s{sOff}, 1
s_lshr_b32 s{sOff}, s{sOff}, 2
s_lshl_b32 s{sOff}, s{sOff}, 7
v_lshlrev_b32 v{vT1}, 4, v{vCH}
v_mul_u32_u24 v{vT0}, 2304, v{vR8}
v_add3_u32 v{vT1}, v{vT1}, v{vT0}, s{sOff}""")
    dma_tile(a, RB, vT1, 2304, None, NT)
    a(f"""s_waitcnt vmcnt(0)
s_barrier""")
    stamp(a, 11)
    a(f"""s_cmp_ge_u32 s{sO}, 18
s_cbranch_scc1 L_fin
s_lshl_b32 s{sColA}, s{sO}, 7
s_add_u32 s{sColA}, s{sColA}, 4608
s_movk_i32 s{sDiff}, 64""")
    gemv_dma(a, sColA, sDiff, vD)
    for s in range(9):
        wf = vWF + 8*(s & 1); sf = vSF + 4*(s & 1)
        a(f"s_waitcnt vmcnt({18-2*(s+1)})")
        a(f"ds_read_b128 {vr(sf,4)}, v{vSil} offset:{s*32}")
        trreads(a, wf, vA0, vA1, s*2048)
        a("s_waitcnt lgkmcnt(2)")
        mfma(a, vAcc, wf, sf, s == 0)
        a("s_waitcnt lgkmcnt(0)")
        mfma(a, vAcc+16, wf+4, sf, s == 0)
    gemv_red_write(a, vAcc)
    a("s_waitcnt lgkmcnt(0)\ns_barrier")
    gemv_red_read(a, vAcc)
    lsk = a.label("gsk")
    a(f"""s_and_b32 s{sOff}, s{S_W}, 3
s_cmp_lg_u32 s{sOff}, 0
s_cbranch_scc1 {lsk}
s_lshr_b32 s{T+9}, s{S_W}, 2
s_mul_i32 s{sOff}, s{T+9}, 4608
s_lshl_b32 s{sColA}, s{sO}, 8
s_add_u32 s{sOff}, s{sOff}, s{sColA}
s_add_u32 s{sOff}, s{sOff}, {WS_GATE}
buffer_store_dword v{vAcc}, v{vT0}, {WS}, s{sOff} offen sc1
{lsk}:
s_lshl_b32 s{sOff}, s{sO}, 7
s_add_u32 s{sOff}, s{sOff}, {F_G}""")
    set_flag(a, f"s{sOff}")
    stamp(a, 12)
    a("s_branch L_fin")

def wave_sum(a, v, sdst):
    for m in ("quad_perm:[1,0,3,2]", "quad_perm:[2,3,0,1]", "row_half_mirror", "row_mirror"):
        a(f"s_nop 1\nv_add_f32_dpp v{v}, v{v}, v{v} {m} row_mask:0xf bank_mask:0xf")
    a(f"s_nop 1\nv_add_f32_dpp v{v}, v{v}, v{v} row_bcast:15 row_mask:0xa bank_mask:0xf")
    a(f"s_nop 1\nv_add_f32_dpp v{v}, v{v}, v{v} row_bcast:31 row_mask:0xc bank_mask:0xf")
    a(f"s_nop 1\nv_readlane_b32 s{sdst}, v{v}, 63\ns_nop 1")

def stats_compute(a, vRW, vRF, sGrp):
    for i in range(12):
        unpack(a, vRF+2*i, vRF+2*i+1, vRW+i)
    acc, acc2, mean = vRW, vRW+1, vRW+2
    a(f"v_add_f32 v{acc}, v{vRF}, v{vRF+1}\nv_add_f32 v{acc2}, v{vRF+2}, v{vRF+3}")
    for i in range(4, 16, 2):
        a(f"v_add_f32 v{acc}, v{acc}, v{vRF+i}\nv_add_f32 v{acc2}, v{acc2}, v{vRF+i+1}")
    a("s_mov_b64 exec, 0xffff")
    for i in range(16, 24, 2):
        a(f"v_add_f32 v{acc}, v{acc}, v{vRF+i}\nv_add_f32 v{acc2}, v{acc2}, v{vRF+i+1}")
    a(f"s_mov_b64 exec, -1\nv_add_f32 v{acc}, v{acc}, v{acc2}")
    wave_sum(a, acc, T+12)
    a(f"""v_mov_b32 v{vT2}, 0x3a638e39
v_mul_f32 v{mean}, s{T+12}, v{vT2}""")
    for i in range(24):
        a(f"v_sub_f32 v{vRF+i}, v{vRF+i}, v{mean}")
    a(f"v_mul_f32 v{acc}, v{vRF}, v{vRF}\nv_mul_f32 v{acc2}, v{vRF+1}, v{vRF+1}")
    for i in range(2, 16, 2):
        a(f"v_fmac_f32 v{acc}, v{vRF+i}, v{vRF+i}\nv_fmac_f32 v{acc2}, v{vRF+i+1}, v{vRF+i+1}")
    a("s_mov_b64 exec, 0xffff")
    for i in range(16, 24, 2):
        a(f"v_fmac_f32 v{acc}, v{vRF+i}, v{vRF+i}\nv_fmac_f32 v{acc2}, v{vRF+i+1}, v{vRF+i+1}")
    a(f"s_mov_b64 exec, -1\nv_add_f32 v{acc}, v{acc}, v{acc2}")
    wave_sum(a, acc, T+12)
    g = vRW+4
    a(f"v_mul_f32 v{g+1}, s{T+12}, v{vT2}\nv_mov_b32 v{g}, v{mean}")
    round_bf16(a, g+1)
    a(f"v_add_f32 v{g+1}, 0x3727c5ac, v{g+1}")
    round_bf16(a, g+1)
    a(f"v_sqrt_f32 v{g+1}, v{g+1}\ns_nop 0")
    round_bf16(a, g+1)
    a(f"v_rcp_f32 v{g+1}, v{g+1}")
    round_bf16(a, g)
    lsk = a.label("stsk")
    a(f"""v_mov_b32 v{g+2}, v{vTAG}
v_mov_b32 v{g+3}, v{vTAG}
s_lshl_b32 s{T+12}, s{S_W}, 4
s_add_u32 s{T+12}, s{T+12}, {L_MISC}
v_mov_b32 v{vT0}, s{T+12}
s_mov_b64 exec, 1
ds_write_b128 v{vT0}, {vr(g,4)}
s_mov_b64 exec, -1
s_waitcnt lgkmcnt(0)
s_barrier
s_cmp_lg_u32 s{S_W}, 0
s_cbranch_scc1 {lsk}
s_lshl_b32 s{T+12}, s{sGrp}, 7
s_add_u32 s{T+12}, s{T+12}, {F_STAT}
v_add_u32 v{vT0}, {L_MISC}, v{vL16}
s_mov_b64 exec, 0xff
ds_read_b128 {vr(g,4)}, v{vT0}
s_waitcnt lgkmcnt(0)
buffer_store_dwordx4 {vr(g,4)}, v{vL16}, {WS}, s{T+12} offen sc1
s_mov_b64 exec, -1
{lsk}:""")

def silu_to_lds(a, vC, vM, vCs, vSil):
    sRow0, sOff = T+2, T+3
    for i in range(4):
        unpack(a, vM+2*i, vM+2*i+1, vC+i)
    for i in range(8):
        a(f"v_mul_f32 v{vM+8+i}, 0xbfb8aa3b, v{vM+i}")
    for i in range(8):
        a(f"v_exp_f32 v{vM+8+i}, v{vM+8+i}")
    for i in range(8):
        a(f"v_add_f32 v{vM+8+i}, 1.0, v{vM+8+i}")
    for i in range(8):
        a(f"v_rcp_f32 v{vM+8+i}, v{vM+8+i}")
    for i in range(8):
        a(f"v_mul_f32 v{vM+i}, v{vM+i}, v{vM+8+i}")
    for i in range(4):
        a(f"v_cvt_pk_bf16_f32 v{vC+i}, v{vM+2*i}, v{vM+2*i+1}")
    a(f"""s_lshl_b32 s{sOff}, s{sRow0}, 1
s_add_u32 s{sOff}, s{sOff}, {L_SIL}
v_add_u32 v{vCs}, s{sOff}, v{vCs}
ds_write_b128 v{vCs}, {vr(vC,4)}
v_and_b32 v{vT0}, 1, v0
v_mul_u32_u24 v{vT0}, 2304, v{vT0}
v_lshl_add_u32 v{vT0}, v{vHF}, 4, v{vT0}
v_add_u32 v{vSil}, s{sOff}, v{vT0}
s_waitcnt lgkmcnt(0)""")

def phase_ab_gemm(a):
    sCt, sTb, sKh, sRt, sOff, sHs, sHe, sLo, sLe, sLs = T, T+1, T+2, T+3, T+4, T+5, T+6, T+7, T+8, T+9
    vD, vA0, vA1 = V0, V0+1, V0+2
    vAcc = 20
    vWF = 52
    vH = 84
    srd(a, R_A, S_WQKV, SZ_WQKV)
    srd(a, R_B, S_WMOD, SZ_WMOD)
    srd(a, R_C, S_X, SZ_X)
    vRW, vRF = 128, 144
    lns = a.label("nost")
    a(f"""s_cmp_ge_u32 s{S_SLOT}, 8
s_cbranch_scc1 {lns}
s_lshl_b32 s{sOff}, s2, 3
s_add_u32 s{sOff}, s{sOff}, s{S_W}
s_mul_i32 s{sOff}, s{sOff}, 2304
buffer_load_dwordx4 {vr(vRW,4)}, v{vL16}, {RC}, s{sOff} offen {NT}
buffer_load_dwordx4 {vr(vRW+4,4)}, v{vL16}, {RC}, s{sOff} offen offset:1024 {NT}
s_mov_b64 exec, 0xffff
buffer_load_dwordx4 {vr(vRW+8,4)}, v{vL16}, {RC}, s{sOff} offen offset:2048 {NT}
s_mov_b64 exec, -1
{lns}:""")
    a(f"""s_lshl_b32 s{sOff}, s{S_SLOT}, 3
s_add_u32 s{sOff}, s{sOff}, s{S_W}
v_and_b32 v{vT0}, 15, v0
v_lshlrev_b32 v{vT0}, 4, v{vT0}
v_lshrrev_b32 v{vT3}, 4, v0
v_mul_u32_u24 v{vT3}, 2304, v{vT3}
v_add_u32 v{vT3}, v{vT3}, v{vT0}
v_bfe_u32 v{vT1}, v0, 4, 1
v_mul_u32_u24 v{vT1}, 2304, v{vT1}
v_mul_u32_u24 v{vT2}, 13824, v{vHF}
v_add3_u32 v{vT0}, v{vT0}, v{vT1}, v{vT2}
s_lshl_b32 s{sHe}, s{S_G}, 8""")
    if 'nohelp' not in OPT:
        for n in range(3):
            a(f"""s_add_u32 s{sHs}, s{sOff}, {216*n}
s_min_u32 s{sHs}, s{sHs}, 575
s_mul_i32 s{sHs}, s{sHs}, {2*13824}
s_add_u32 s{sHs}, s{sHs}, s{sHe}
buffer_load_dwordx4 {vr(vH+4*n,4)}, v{vT0}, {RB}, s{sHs} offen {NT}""")
        a(f"""s_sub_u32 s{sHs}, 215, s{sOff}
s_min_u32 s{sHs}, s{sHs}, 127
s_mul_i32 s{sHs}, s{sHs}, {4*2304}
s_add_u32 s{sHs}, s{sHs}, s{sHe}
buffer_load_dwordx4 {vr(vH+20,4)}, v{vT3}, {RC}, s{sHs} offen {NT}""")
        lx = a.label("nox")
        a(f"""s_cmp_ge_u32 s{S_G}, 4
s_cbranch_scc1 {lx}
v_and_b32 v{vT0}, 7, v0
v_lshlrev_b32 v{vT0}, 4, v{vT0}
v_bfe_u32 v{vT1}, v0, 3, 1
v_mul_u32_u24 v{vT1}, 2304, v{vT1}
v_lshrrev_b32 v{vT2}, 4, v0
v_mul_u32_u24 v{vT2}, 13824, v{vT2}
v_add3_u32 v{vT0}, v{vT0}, v{vT1}, v{vT2}
s_lshr_b32 s{sHe}, s{S_G}, 1
s_lshl_b32 s{sHe}, s{sHe}, 7
s_add_u32 s{sHe}, s{sHe}, 2048""")
        for n in range(2):
            a(f"""s_add_u32 s{sHs}, s{sOff}, {216*n}
s_min_u32 s{sHs}, s{sHs}, 287
s_mul_i32 s{sHs}, s{sHs}, {4*13824}
s_add_u32 s{sHs}, s{sHs}, s{sHe}
buffer_load_dwordx4 {vr(vH+12+4*n,4)}, v{vT0}, {RB}, s{sHs} offen {NT}""")
        a(f"""v_and_b32 v{vT0}, 7, v0
v_lshlrev_b32 v{vT0}, 4, v{vT0}
v_mul_u32_u24 v{vT1}, 2304, v{vR8}
v_add_u32 v{vT0}, v{vT0}, v{vT1}
s_sub_u32 s{sHs}, 215, s{sOff}
s_min_u32 s{sHs}, s{sHs}, 63
s_mul_i32 s{sHs}, s{sHs}, {8*2304}
s_add_u32 s{sHs}, s{sHs}, s{sHe}
buffer_load_dwordx4 {vr(vH+24,4)}, v{vT0}, {RC}, s{sHs} offen {NT}""")
        a(f"{lx}:")
    get_tag(a)
    lns2 = a.label("nost2")
    a(f"""s_cmp_ge_u32 s{S_SLOT}, 8
s_cbranch_scc1 {lns2}
s_waitcnt vmcnt(4)""")
    stats_compute(a, vRW, vRF, 2)
    stamp(a, 8)
    a(f"{lns2}:")
    a(f"""s_mul_i32 s{sOff}, s{S_G}, 27
s_add_u32 s{sOff}, s{sOff}, s{S_SLOT}
s_lshr_b32 s{sCt}, s{sOff}, 2
s_and_b32 s{sRt}, s{sOff}, 3
s_lshl_b32 s{sTb}, s{sRt}, 2
s_and_b32 s{sOff}, s{S_W}, 3
s_add_u32 s{sTb}, s{sTb}, s{sOff}
s_lshr_b32 s{sKh}, s{S_W}, 2
v_lshlrev_b32 v{vD}, 4, v{vCH}
v_mul_u32_u24 v{vT0}, 6912, v{vR8}
s_lshl_b32 s{sOff}, s{sCt}, 7
v_add3_u32 v{vD}, v{vD}, v{vT0}, s{sOff}
s_mul_i32 s{sRt}, s{sRt}, 9
s_lshr_b32 s{sRt}, s{sRt}, 1""")
    dma_tile(a, RA, vD, 6912, sRt, NT)
    stamp(a, 1)
    a(f"""s_mul_i32 s{sOff}, s{sCt}, 57
s_lshr_b32 s{sOff}, s{sOff}, 9
s_mul_i32 s{sOff}, s{sOff}, 9
s_sub_u32 s{sRt}, s{sCt}, s{sOff}
s_mul_i32 s{sHs}, s{sTb}, {72*1024}
s_mul_i32 s{sOff}, s{sKh}, {36*1024}
s_add_u32 s{sHs}, s{sHs}, s{sOff}
s_add_u32 s{sHs}, s{sHs}, {WS_H}
s_add_u32 s{sHe}, s{sHs}, {36*1024}
s_lshl_b32 s{sOff}, s{sRt}, 12
s_add_u32 s{T+12}, s{sHs}, s{sOff}
s_mul_i32 s{sLs}, s{sKh}, {576*128}
s_add_u32 s{sLe}, s{sLs}, {576*128}
s_lshl_b32 s{sOff}, s{sRt}, 13
s_add_u32 s{sLo}, s{sLs}, s{sOff}
v_min_u32 v{vT0}, 35, v0
v_lshlrev_b32 v{vT0}, 7, v{vT0}
s_movk_i32 s{sOff}, {F_H}
s_waitcnt vmcnt(0)""")
    stamp(a, 2)
    poll(a, vT0, f"s{sOff}", vT1)
    stamp(a, 3)
    sH = T+12
    LA = int(OPT['la'])*4
    def hload(s):
        a(f"buffer_load_dwordx4 {vr(vH+4*s,4)}, v{vL16}, {WS}, s{sH} offen offset:{(s&3)*1024} {OPT.get('hflag','sc1')}")
        if (s & 3) == 3 and s < 35:
            wrap_add(a, sH, 4096, sHe, sHs)
    def wread(s):
        if (s & 3) == 0:
            a(f"v_add_u32 v{vA0}, s{sLo}, v{vB0}\nv_add_u32 v{vA1}, s{sLo}, v{vB1}")
            wrap_add(a, sLo, 8192, sLe, sLs)
        trreads(a, vWF + 8*(s & 3), vA0, vA1, (s & 3)*2048)
    if 'prio' in OPT:
        lpr = a.label("prio")
        a(f"s_cmp_lt_u32 s{S_W}, 4\ns_cbranch_scc1 {lpr}\ns_setprio 1\n{lpr}:")
    for s in range(LA):
        hload(s)
    if 'prio' in OPT:
        a("s_setprio 0")
    if 'bar' in OPT:
        a("s_barrier")
    wread(0); wread(1)
    for s in range(36):
        if s + 2 < 36:
            wread(s + 2)
        lg = 4*min(2, 35 - s)
        issued = min(36, s + LA)
        a(f"s_waitcnt vmcnt({issued - s - 1}) lgkmcnt({lg})")
        if s == 0: stamp(a, 4)
        if 'nomfma' not in OPT or s in (0, 35):
            mfma(a, vAcc, vWF+8*(s & 3), vH+4*s, s == 0)
            mfma(a, vAcc+16, vWF+8*(s & 3)+4, vH+4*s, s == 0)
        if s + LA < 36:
            hload(s + LA)
        if 'bar' in OPT and (s & 3) == 3 and s < 35:
            a("s_barrier")
    stamp(a, 5)
    XB = 131072
    lk1 = a.label("kh1"); lj = a.label("j")
    a(f"""s_lshl_b32 s{sOff}, s{S_W}, 12
s_add_u32 s{sOff}, s{sOff}, {XB}
v_add_u32 v{vT0}, s{sOff}, v{vL16}
v_xor_b32 v{vT1}, {4*4096}, v{vT0}
s_nop 8
s_barrier
s_cmp_lg_u32 s{sKh}, 0
s_cbranch_scc1 {lk1}""")
    for q in range(4):
        a(f"ds_write_b128 v{vT0}, {vr(vAcc+16+4*q,4)} offset:{q*1024}")
    a(f"s_branch {lj}\n{lk1}:")
    for q in range(4):
        a(f"ds_write_b128 v{vT0}, {vr(vAcc+4*q,4)} offset:{q*1024}")
    for r in range(16):
        a(f"v_mov_b32 v{vAcc+r}, v{vAcc+16+r}")
    a(f"{lj}:\ns_waitcnt lgkmcnt(0)\ns_barrier")
    for q in range(4):
        a(f"ds_read_b128 {vr(vWF+4*q,4)}, v{vT1} offset:{q*1024}")
    a(f"""s_mul_i32 s{sHs}, s{sTb}, {216*1024}
s_lshl_b32 s{sOff}, s{sCt}, 12
s_add_u32 s{sHs}, s{sHs}, s{sOff}
s_lshl_b32 s{sOff}, s{sKh}, 11
s_add_u32 s{sHs}, s{sHs}, s{sOff}
s_add_u32 s{sHs}, s{sHs}, {WS_QKV}
s_waitcnt lgkmcnt(0)""")
    for r in range(16):
        a(f"v_add_f32 v{vAcc+r}, v{vAcc+r}, v{vWF+r}")
    for r in range(8):
        a(f"v_cvt_pk_bf16_f32 v{vWF+16+r}, v{vAcc+2*r}, v{vAcc+2*r+1}")
    a(f"""buffer_store_dwordx4 {vr(vWF+16,4)}, v{vL16}, {WS}, s{sHs} offen sc1
buffer_store_dwordx4 {vr(vWF+20,4)}, v{vL16}, {WS}, s{sHs} offen offset:1024 sc1""")
    stamp(a, 6)
    a(f"""s_lshr_b32 s{sHs}, s{sTb}, 2
s_mul_i32 s{sHs}, s{sHs}, 54
s_add_u32 s{sHs}, s{sHs}, s{sCt}
s_lshl_b32 s{sHs}, s{sHs}, 7
s_add_u32 s{sHs}, s{sHs}, {F_QKV}""")
    set_flag(a, f"s{sHs}")
    stamp(a, 7)

def phase_c(a):
    vD, vA0, vA1 = V0, V0+1, V0+2
    vAcc = 20
    vWF = 52
    vR = 84
    vH = 92
    sCt, sTb, sKq, sJ, sOff, sHs, sHe, sLo, sLe, sLs = T, T+1, T+2, T+3, T+4, T+5, T+6, T+7, T+8, T+9
    sH = T+12
    a(f"""s_mov_b32 s{sJ}, s{S_SLOT}
s_lshr_b32 s{sKq}, s{S_W}, 1
s_cmp_ge_u32 s{sJ}, 26
s_cbranch_scc1 L_c_done
s_cmp_ge_u32 s{sJ}, 18
s_cbranch_scc1 L_c_s""")
    srd(a, R_A, S_WO, SZ_WO)
    a(f"""s_and_b32 s{sOff}, s{S_G}, 3
s_mul_i32 s{sOff}, s{sOff}, 18
s_add_u32 s{sOff}, s{sOff}, s{sJ}
s_lshr_b32 s{sCt}, s{sOff}, 2
s_and_b32 s{sJ}, s{sOff}, 3
s_lshr_b32 s{sTb}, s{S_G}, 2
s_lshl_b32 s{sTb}, s{sTb}, 2
s_add_u32 s{sTb}, s{sTb}, s{sJ}
s_lshl_b32 s{sTb}, s{sTb}, 1
s_and_b32 s{sOff}, s{S_W}, 1
s_add_u32 s{sTb}, s{sTb}, s{sOff}
v_lshlrev_b32 v{vD}, 4, v{vCH}
v_mul_u32_u24 v{vT0}, 2304, v{vR8}
s_lshl_b32 s{sOff}, s{sCt}, 7
v_add3_u32 v{vD}, v{vD}, v{vT0}, s{sOff}
s_mul_i32 s{sJ}, s{sJ}, 9
s_lshr_b32 s{sJ}, s{sJ}, 1""")
    dma_tile(a, RA, vD, 2304, sJ, NT)
    a(f"""s_lshl_b32 s{sJ}, s{sCt}, 1
s_mul_i32 s{sOff}, s{sJ}, 57
s_lshr_b32 s{sOff}, s{sOff}, 9
s_mul_i32 s{sOff}, s{sOff}, 9
s_sub_u32 s{sJ}, s{sJ}, s{sOff}
s_mul_i32 s{sHs}, s{sTb}, {216*1024}
s_mul_i32 s{sOff}, s{sKq}, {18*1024}
s_add_u32 s{sHs}, s{sHs}, s{sOff}
s_add_u32 s{sHs}, s{sHs}, {WS_QKV + 144*1024}
s_add_u32 s{sHe}, s{sHs}, {18*1024}
s_lshl_b32 s{sOff}, s{sJ}, 11
s_add_u32 s{sH}, s{sHs}, s{sOff}
s_mul_i32 s{sLs}, s{sKq}, {288*128}
s_add_u32 s{sLe}, s{sLs}, {288*128}
s_lshl_b32 s{sOff}, s{sJ}, 12
s_add_u32 s{sLo}, s{sLs}, s{sOff}
v_min_u32 v{vT0}, 17, v0
v_lshlrev_b32 v{vT0}, 7, v{vT0}
s_lshr_b32 s{sOff}, s{sTb}, 2
s_mul_i32 s{sOff}, s{sOff}, {54*128}
s_add_u32 s{sOff}, s{sOff}, {F_QKV + 36*128}
s_waitcnt vmcnt(0)""")
    stamp(a, 11)
    poll(a, vT0, f"s{sOff}", vT1)
    stamp(a, 12)
    LA = int(OPT.get('lau', 12))
    def vload(s):
        a(f"buffer_load_dwordx4 {vr(vH+4*s,4)}, v{vP16}, {WS}, s{sH} offen offset:{(s&1)*1024} sc1")
        if (s & 1) == 1 and s < 17:
            wrap_add(a, sH, 2048, sHe, sHs)
    def wread(s):
        if (s & 1) == 0:
            a(f"v_add_u32 v{vA0}, s{sLo}, v{vB0}\nv_add_u32 v{vA1}, s{sLo}, v{vB1}")
            wrap_add(a, sLo, 4096, sLe, sLs)
        trreads(a, vWF + 8*(s & 3), vA0, vA1, (s & 1)*2048)
    for s in range(LA):
        vload(s)
    wread(0); wread(1)
    for s in range(18):
        if s + 2 < 18:
            wread(s + 2)
        lg = 4*min(2, 17 - s)
        issued = min(18, s + LA)
        a(f"s_waitcnt vmcnt({issued - s - 1}) lgkmcnt({lg})")
        mfma(a, vAcc, vH+4*s, vWF+8*(s & 3), s == 0)
        mfma(a, vAcc+16, vH+4*s, vWF+8*(s & 3)+4, s == 0)
        if s + LA < 18:
            vload(s + LA)
    stamp(a, 13)
    a(f"""s_lshl_b32 s{sOff}, s{S_W}, 13
v_add_u32 v{vT0}, s{sOff}, v{vL16}
s_nop 8
s_barrier""")
    for q in range(8):
        a(f"ds_write_b128 v{vT0}, {vr(vAcc+4*q,4)} offset:{q*1024}")
    a(f"""s_and_b32 s{sOff}, s{S_W}, 1
s_lshl_b32 s{sOff}, s{sOff}, 13
s_lshl_b32 s{sJ}, s{sKq}, 11
s_add_u32 s{sOff}, s{sOff}, s{sJ}
v_add_u32 v{vT1}, s{sOff}, v{vL16}
s_waitcnt lgkmcnt(0)
s_barrier""")
    for j in range(4):
        a(f"""ds_read_b128 {vr(vAcc+8*j,4)}, v{vT1} offset:{j*16384}
ds_read_b128 {vr(vAcc+8*j+4,4)}, v{vT1} offset:{j*16384+1024}""")
    a(f"""s_lshr_b32 s{sJ}, s{sTb}, 3
s_mul_i32 s{sJ}, s{sJ}, 36
s_lshl_b32 s{sOff}, s{sCt}, 1
s_add_u32 s{sJ}, s{sJ}, s{sOff}
s_lshr_b32 s{sOff}, s{sKq}, 1
s_add_u32 s{sJ}, s{sJ}, s{sOff}
s_lshl_b32 s{sJ}, s{sJ}, 4
s_and_b32 s{sOff}, s{sTb}, 7
s_lshl_b32 s{sOff}, s{sOff}, 1
s_add_u32 s{sJ}, s{sJ}, s{sOff}
s_and_b32 s{sOff}, s{sKq}, 1
s_add_u32 s{sJ}, s{sJ}, s{sOff}
s_lshl_b32 s{sOff}, s{sJ}, 10
s_add_u32 s{sOff}, s{sOff}, {WS_U}
s_lshr_b32 s{sJ}, s{sTb}, 3
s_mul_i32 s{sJ}, s{sJ}, 18
s_add_u32 s{sJ}, s{sJ}, s{sCt}
s_lshl_b32 s{sJ}, s{sJ}, 2
s_bfe_u32 s{sHs}, s{sTb}, 0x20001
s_add_u32 s{sJ}, s{sJ}, s{sHs}
s_lshl_b32 s{sJ}, s{sJ}, 7
s_add_u32 s{sJ}, s{sJ}, {F_U}
s_waitcnt lgkmcnt(0)""")
    for r in range(8):
        a(f"""v_add_f32 v{vAcc+r}, v{vAcc+r}, v{vAcc+8+r}
v_add_f32 v{vAcc+16+r}, v{vAcc+16+r}, v{vAcc+24+r}""")
    for r in range(8):
        a(f"v_add_f32 v{vAcc+r}, v{vAcc+r}, v{vAcc+16+r}")
    for r in range(4):
        a(f"v_cvt_pk_bf16_f32 v{vR+r}, v{vAcc+2*r}, v{vAcc+2*r+1}")
    a(f"""buffer_store_dwordx4 {vr(vR,4)}, v{vL16}, {WS}, s{sOff} offen sc1""")
    set_flag(a, f"s{sJ}")
    a("s_branch L_c_done")
    a("L_c_s:")
    sQb, sKb, sK, sQ, sKs, sQs, sKt = T, T+1, T+5, T+6, T+7, T+8, T+9
    vS = 56
    RING = 15
    a(f"""s_sub_u32 s{sJ}, s{sJ}, 18
s_and_b32 s{sKq}, s{S_W}, 3
s_and_b32 s{sQb}, s{S_G}, 1
s_lshl_b32 s{sQb}, s{sQb}, 2
s_and_b32 s{sOff}, s{sJ}, 3
s_add_u32 s{sQb}, s{sQb}, s{sOff}
s_and_b32 s{sKt}, s{S_G}, 2
s_lshr_b32 s{sOff}, s{sJ}, 2
s_add_u32 s{sKt}, s{sKt}, s{sOff}
s_lshl_b32 s{sKb}, s{sKt}, 1
s_lshr_b32 s{sOff}, s{S_G}, 2
s_lshl_b32 s{sOff}, s{sOff}, 3
s_add_u32 s{sQb}, s{sQb}, s{sOff}
s_add_u32 s{sKb}, s{sKb}, s{sOff}
s_mul_i32 s{sKs}, s{sKb}, {216*1024}
s_mul_i32 s{sQs}, s{sQb}, {216*1024}
s_mul_i32 s{sOff}, s{sKq}, {18*1024}
s_add_u32 s{sKs}, s{sKs}, s{sOff}
s_add_u32 s{sQs}, s{sQs}, s{sOff}
s_add_u32 s{sKs}, s{sKs}, {WS_QKV + 72*1024}
s_add_u32 s{sQs}, s{sQs}, {WS_QKV}
s_lshl_b32 s{sH}, s{sJ}, 11
v_min_u32 v{vT0}, 17, v{vTok}
v_lshlrev_b32 v{vT0}, 7, v{vT0}
s_lshr_b32 s{sOff}, s{sKb}, 2
s_mul_i32 s{sOff}, s{sOff}, {54*128}
s_add_u32 s{sOff}, s{sOff}, {18*128}
s_lshr_b32 s{T+13}, s{sQb}, 2
s_mul_i32 s{T+13}, s{T+13}, {54*128}
s_sub_u32 s{sOff}, s{sOff}, s{T+13}
v_mul_lo_u32 v{vT1}, v{vHF}, s{sOff}
v_add_u32 v{vT0}, v{vT0}, v{vT1}
v_add_u32 v{vT0}, s{T+13}, v{vT0}
v_add_u32 v{vT2}, {216*1024}, v{vP16}
s_mov_b32 s{sOff}, {F_QKV}""")
    stamp(a, 11)
    poll(a, vT0, f"s{sOff}", vT1)
    stamp(a, 12)
    lsi = a.label("sidle"); lsj = a.label("sjoin")
    a(f"s_cmp_ge_u32 s{S_W}, 4\ns_cbranch_scc1 {lsi}")
    LA = int(OPT.get('las', 8))
    assert LA < RING
    a(f"s_movk_i32 s{T+13}, 0\ns_movk_i32 s{T+14}, {18*1024}")
    def sload(s):
        r = vS + 12*(s % RING)
        if (s & 1) == 0:
            a(f"s_add_u32 s{sK}, s{sKs}, s{sH}\ns_add_u32 s{sQ}, s{sQs}, s{sH}")
            wrap_add(a, sH, 2048, T+14, T+13)
        a(f"""buffer_load_dwordx4 {vr(r,4)}, v{vL16}, {WS}, s{sQ} offen offset:{(s&1)*1024} sc1
buffer_load_dwordx4 {vr(r+4,4)}, v{vP16}, {WS}, s{sK} offen offset:{(s&1)*1024} sc1
buffer_load_dwordx4 {vr(r+8,4)}, v{vT2}, {WS}, s{sK} offen offset:{(s&1)*1024} sc1""")
    for s in range(LA):
        sload(s)
    for s in range(18):
        issued = min(18, s + LA)
        r = vS + 12*(s % RING)
        a(f"s_waitcnt vmcnt({3*(issued - s - 1) + 1})")
        mfma(a, vAcc, r+4, r, s == 0)
        a(f"s_waitcnt vmcnt({3*(issued - s - 1)})")
        mfma(a, vAcc+16, r+8, r, s == 0)
        if s + LA < 18:
            sload(s + LA)
    stamp(a, 13)
    a(f"""s_lshl_b32 s{sOff}, s{S_W}, 13
v_add_u32 v{vT0}, s{sOff}, v{vL16}
s_nop 12""")
    for q in range(8):
        a(f"ds_write_b128 v{vT0}, {vr(vAcc+4*q,4)} offset:{q*1024}")
    a(f"""{lsi}:
s_lshl_b32 s{sOff}, s{S_W}, 10
v_add_u32 v{vT1}, s{sOff}, v{vL16}
s_waitcnt lgkmcnt(0)
s_barrier""")
    for j in range(4):
        a(f"ds_read_b128 {vr(vAcc+4*j,4)}, v{vT1} offset:{j*8192}")
    a(f"""s_lshl_b32 s{sJ}, s{sQb}, 4
s_and_b32 s{sOff}, s{sKb}, 7
s_lshl_b32 s{sOff}, s{sOff}, 1
s_add_u32 s{sJ}, s{sJ}, s{sOff}
s_lshr_b32 s{sOff}, s{S_W}, 1
s_add_u32 s{sJ}, s{sJ}, s{sOff}
s_lshl_b32 s{sJ}, s{sJ}, 10
s_and_b32 s{sOff}, s{S_W}, 1
s_lshl_b32 s{sOff}, s{sOff}, 3
s_add_u32 s{sJ}, s{sJ}, s{sOff}
s_add_u32 s{sJ}, s{sJ}, {WS_L}
s_lshl_b32 s{sK}, s{sQb}, 2
s_add_u32 s{sK}, s{sK}, s{sKt}
s_lshl_b32 s{sK}, s{sK}, 7
s_add_u32 s{sK}, s{sK}, {F_L}
s_waitcnt lgkmcnt(0)""")
    for r in range(4):
        a(f"""v_add_f32 v{vAcc+r}, v{vAcc+r}, v{vAcc+4+r}
v_add_f32 v{vAcc+8+r}, v{vAcc+8+r}, v{vAcc+12+r}""")
    for r in range(4):
        a(f"v_add_f32 v{vAcc+r}, v{vAcc+r}, v{vAcc+8+r}")
    sc = struct.unpack('<I', struct.pack('<f', D ** -0.5))[0]
    vR2 = 52
    for r in range(2):
        a(f"v_cvt_pk_bf16_f32 v{vR2+r}, v{vAcc+2*r}, v{vAcc+2*r+1}")
        unpack(a, vAcc+2*r, vAcc+2*r+1, vR2+r)
        a(f"""v_mul_f32 v{vAcc+2*r}, {hex(sc)}, v{vAcc+2*r}
v_mul_f32 v{vAcc+2*r+1}, {hex(sc)}, v{vAcc+2*r+1}
v_cvt_pk_bf16_f32 v{vR2+r}, v{vAcc+2*r}, v{vAcc+2*r+1}""")
    a(f"""buffer_store_dwordx2 {vr(vR2,2)}, v{vL16}, {WS}, s{sJ} offen sc1""")
    set_flag(a, f"s{sK}")
    a("L_c_done:")
    stamp(a, 14)

def phase_d(a):
    sQt, sCt, sCb, sKh, sOff, sXo, sJ, sU, sB, sCol = T, T+1, T+2, T+3, T+4, T+5, T+6, T+7, T+8, T+9
    vXo, vMx, vS, vLa, vPa = V0, V0+1, V0+2, V0+3, V0+4
    vLd = 24
    vX = 32
    vG = 36
    vF = 44
    vR = 60
    vAcc = 68
    vU = 84
    vP = 116
    L_P, L_EX = 0, 16384
    srd(a, R_A, S_X, SZ_X)
    srd(a, R_B, S_OUT, SZ_X)
    a(f"""s_sub_u32 s{sJ}, 26, s{S_SLOT}
s_cmp_ge_u32 s{sJ}, 18
s_cbranch_scc1 L_d_idle
s_and_b32 s{sOff}, s{S_G}, 3
s_mul_i32 s{sOff}, s{sOff}, 18
s_add_u32 s{sOff}, s{sOff}, s{sJ}
s_lshr_b32 s{sCt}, s{sOff}, 3
s_and_b32 s{sJ}, s{sOff}, 7
s_lshr_b32 s{sB}, s{S_G}, 2
s_lshl_b32 s{sQt}, s{sB}, 3
s_add_u32 s{sQt}, s{sQt}, s{sJ}
s_and_b32 s{sCb}, s{S_W}, 3
s_lshr_b32 s{sKh}, s{S_W}, 2
s_lshl_b32 s{sCol}, s{sCt}, 7
s_lshl_b32 s{sOff}, s{sCb}, 5
s_add_u32 s{sCol}, s{sCol}, s{sOff}
s_lshl_b32 s{sOff}, s{sKh}, 4
s_add_u32 s{sCol}, s{sCol}, s{sOff}
s_mul_i32 s{sXo}, s{sQt}, {32*2304}
s_lshl_b32 s{sOff}, s{sCol}, 1
s_add_u32 s{sXo}, s{sXo}, s{sOff}
v_mul_u32_u24 v{vXo}, 2304, v{vTok}
v_lshl_add_u32 v{vXo}, v{vHF}, 4, v{vXo}
buffer_load_dwordx4 {vr(vX,4)}, v{vXo}, {RA}, s{sXo} offen
s_mul_i32 s{sU}, s{sB}, 36
s_lshl_b32 s{sOff}, s{sCt}, 2
s_add_u32 s{sU}, s{sU}, s{sOff}
s_add_u32 s{sU}, s{sU}, s{sCb}
s_lshl_b32 s{sU}, s{sU}, 4
s_lshl_b32 s{sOff}, s{sKh}, 3
s_add_u32 s{sU}, s{sU}, s{sOff}""")
    a(f"""v_lshlrev_b32 v{vT0}, 7, v0
s_lshl_b32 s{sOff}, s{sQt}, 9
s_add_u32 s{sOff}, s{sOff}, {F_L}
v_add_u32 v{vT1}, s{sOff}, v{vT0}
s_mul_i32 s{sOff}, s{sB}, 18
s_lshl_b32 s{T+10}, s{sCt}, 1
s_add_u32 s{sOff}, s{sOff}, s{T+10}
s_lshl_b32 s{sOff}, s{sOff}, 9
s_add_u32 s{sOff}, s{sOff}, {F_U - 512}
v_add_u32 v{vT2}, s{sOff}, v{vT0}
v_cmp_lt_u32 vcc, 3, v0
s_lshl_b32 s{sOff}, s{sCt}, 8
s_add_u32 s{sOff}, s{sOff}, {F_G}
v_cndmask_b32 v{vT1}, v{vT1}, v{vT2}, vcc
v_and_b32 v{vT2}, 128, v{vT0}
v_add_u32 v{vT2}, s{sOff}, v{vT2}
v_cmp_lt_u32 vcc, 11, v0
s_lshl_b32 s{sU}, s{sU}, 10
s_add_u32 s{sU}, s{sU}, {WS_U}
v_cndmask_b32 v{vT1}, v{vT1}, v{vT2}, vcc
v_and_b32 v{vLa}, 15, v0
v_lshlrev_b32 v{vLa}, 10, v{vLa}
v_lshrrev_b32 v{vT0}, 4, v0
v_lshl_add_u32 v{vLa}, v{vT0}, 4, v{vLa}
s_lshl_b32 s{sOff}, s{S_W}, 6
v_add_u32 v{vLa}, s{sOff}, v{vLa}""")
    poll(a, vT1, "0", vT2)
    stamp(a, 8)
    a(f"""s_lshl_b32 s{sOff}, s{sQt}, 14
s_add_u32 s{sOff}, s{sOff}, {WS_L}
buffer_load_dwordx4 {vr(vLd,4)}, v{vLa}, {WS}, s{sOff} offen sc1
buffer_load_dwordx4 {vr(vLd+4,4)}, v{vLa}, {WS}, s{sOff} offen offset:512 sc1
s_barrier""")
    for s in range(8):
        a(f"""s_add_u32 s{T+10}, s{sJ}, {s}
s_and_b32 s{T+10}, s{T+10}, 7
s_lshl_b32 s{T+10}, s{T+10}, 10
s_add_u32 s{T+10}, s{T+10}, s{sU}
buffer_load_dwordx4 {vr(vU+4*s,4)}, v{vL16}, {WS}, s{T+10} offen sc1""")
    a(f"""s_mul_i32 s{sOff}, s{sB}, 4608
s_lshl_b32 s{T+10}, s{sCol}, 2
s_add_u32 s{sOff}, s{sOff}, s{T+10}
s_add_u32 s{sOff}, s{sOff}, {WS_GATE}
v_lshlrev_b32 v{vT0}, 5, v{vHF}
buffer_load_dwordx4 {vr(vG,4)}, v{vT0}, {WS}, s{sOff} offen sc1
buffer_load_dwordx4 {vr(vG+4,4)}, v{vT0}, {WS}, s{sOff} offen offset:16 sc1
s_waitcnt vmcnt(10)""")
    stamp(a, 9)
    for i in range(8):
        unpack(a, vF+2*i, vF+2*i+1, vLd+i)
    a(f"v_max3_f32 v{vMx}, v{vF}, v{vF+1}, v{vF+2}")
    for i in range(3, 15, 2):
        a(f"v_max3_f32 v{vMx}, v{vMx}, v{vF+i}, v{vF+i+1}")
    a(f"v_max_f32 v{vMx}, v{vMx}, v{vF+15}")
    for m in ("quad_perm:[1,0,3,2]", "quad_perm:[2,3,0,1]", "row_half_mirror", "row_mirror"):
        a(f"s_nop 1\nv_max_f32_dpp v{vMx}, v{vMx}, v{vMx} {m} row_mask:0xf bank_mask:0xf")
    for i in range(16):
        a(f"v_sub_f32 v{vF+i}, v{vF+i}, v{vMx}")
    for i in range(16):
        a(f"v_mul_f32 v{vF+i}, {hex(LOG2E)}, v{vF+i}")
    for i in range(16):
        a(f"v_exp_f32 v{vF+i}, v{vF+i}")
    a(f"s_nop 0\nv_add_f32 v{vS}, v{vF}, v{vF+1}")
    for i in range(2, 16):
        a(f"v_add_f32 v{vS}, v{vS}, v{vF+i}")
    for m in ("quad_perm:[1,0,3,2]", "quad_perm:[2,3,0,1]", "row_half_mirror", "row_mirror"):
        a(f"s_nop 1\nv_add_f32_dpp v{vS}, v{vS}, v{vS} {m} row_mask:0xf bank_mask:0xf")
    a(f"v_rcp_f32 v{vS}, v{vS}\ns_nop 0")
    for i in range(16):
        a(f"v_mul_f32 v{vF+i}, v{vF+i}, v{vS}")
    for i in range(8):
        a(f"v_cvt_pk_bf16_f32 v{vLd+i}, v{vF+2*i}, v{vF+2*i+1}")
    a(f"""ds_write_b128 v{vLa}, {vr(vLd,4)} offset:{L_P}
ds_write_b128 v{vLa}, {vr(vLd+4,4)} offset:{L_P+512}
s_lshl_b32 s{sOff}, s{sKh}, 13
v_add_u32 v{vPa}, s{sOff}, v{vL16}
s_waitcnt lgkmcnt(0)
s_barrier""")
    for s in range(8):
        a(f"""s_add_u32 s{T+10}, s{sJ}, {s}
s_and_b32 s{T+10}, s{T+10}, 7
s_lshl_b32 s{T+10}, s{T+10}, 10
v_add_u32 v{vT0}, s{T+10}, v{vPa}
ds_read_b128 {vr(vP+4*s,4)}, v{vT0} offset:{L_P}""")
    for s in range(8):
        a(f"s_waitcnt vmcnt({2+7-s}) lgkmcnt({7-s})")
        mfma(a, vAcc, vU+4*s, vP+4*s, s == 0)
    stamp(a, 10)
    lk1 = a.label("kh1"); lj = a.label("j")
    a(f"""s_lshl_b32 s{sOff}, s{S_W}, 11
v_add_u32 v{vT0}, s{sOff}, v{vL16}
v_xor_b32 v{vT1}, {4*2048}, v{vT0}
s_nop 10
s_cmp_lg_u32 s{sKh}, 0
s_cbranch_scc1 {lk1}
ds_write_b128 v{vT0}, {vr(vAcc+8,4)} offset:{L_EX}
ds_write_b128 v{vT0}, {vr(vAcc+12,4)} offset:{L_EX+1024}
s_branch {lj}
{lk1}:
ds_write_b128 v{vT0}, {vr(vAcc,4)} offset:{L_EX}
ds_write_b128 v{vT0}, {vr(vAcc+4,4)} offset:{L_EX+1024}""")
    for r in range(8):
        a(f"v_mov_b32 v{vAcc+r}, v{vAcc+8+r}")
    a(f"""{lj}:
s_waitcnt lgkmcnt(0)
s_barrier
ds_read_b128 {vr(vR,4)}, v{vT1} offset:{L_EX}
ds_read_b128 {vr(vR+4,4)}, v{vT1} offset:{L_EX+1024}
s_waitcnt vmcnt(0) lgkmcnt(0)""")
    for r in range(8):
        a(f"v_add_f32 v{vAcc+r}, v{vAcc+r}, v{vR+r}")
    for i in range(4):
        lo, hi = vAcc+2*i, vAcc+2*i+1
        a(f"v_cvt_pk_bf16_f32 v{vR+i}, v{lo}, v{hi}")
        unpack(a, lo, hi, vR+i)
        a(f"""v_mul_f32 v{lo}, v{lo}, v{vG+2*i}
v_mul_f32 v{hi}, v{hi}, v{vG+2*i+1}
v_cvt_pk_bf16_f32 v{vR+i}, v{lo}, v{hi}""")
        unpack(a, lo, hi, vR+i)
        unpack(a, vF, vF+1, vX+i)
        a(f"""v_add_f32 v{lo}, v{lo}, v{vF}
v_add_f32 v{hi}, v{hi}, v{vF+1}
v_cvt_pk_bf16_f32 v{vR+i}, v{lo}, v{hi}""")
    a(f"""buffer_store_dwordx4 {vr(vR,4)}, v{vXo}, {RB}, s{sXo} offen
s_branch L_fin
L_d_idle:
s_cmp_lg_u32 s2, 0
s_cbranch_scc1 L_fin""")
    lp = a.label("ep"); ld = a.label("epd")
    a(f"""s_lshl_b32 s{sOff}, s{S_W}, 6
v_add_u32 v{vT0}, s{sOff}, v0
v_min_u32 v{vT0}, 225, v{vT0}
v_lshlrev_b32 v{vT0}, 7, v{vT0}
s_movk_i32 s{sOff}, {F_L}
{lp}:
s_sleep 8
buffer_load_dword v{vLd}, v{vT0}, {WS}, s{sOff} offen sc1
s_waitcnt vmcnt(0)
v_cmp_ne_u32 vcc, s{S_TAG}, v{vLd}
s_cbranch_vccz {ld}
s_sub_u32 s{S_TO}, s{S_TO}, 1
s_cmp_lg_u32 s{S_TO}, 0
s_cbranch_scc1 {lp}
{ld}:
s_mov_b32 s{sOff}, {EPOCH}""")
    set_flag(a, f"s{sOff}")
    a("L_fin:")

def epilogue(a):
    if STAMP and 'dbg' in OPT:
        a(f"""s_waitcnt vmcnt(0) lgkmcnt(0)
s_cmp_lg_u32 s{S_W}, {OPT.get('stw', 0)}
s_cbranch_scc1 L_end
s_cmp_ge_u32 s{S_SLOT}, 27
s_cbranch_scc1 L_end
s_memrealtime s[{S_ST+30}:{S_ST+31}]
s_memtime s[98:99]
s_waitcnt lgkmcnt(0)
s_not_b32 s{S_ST}, s{S_ST}
s_sub_u32 s{S_ST+2}, s98, s96""")
        srd(a, R_A, S_DBG, 256)
        a("v_mov_b32 v1, 0\ns_mov_b64 exec, 1")
        for i in range(16):
            a(f"v_mov_b32 v{16+i}, s{S_ST+2*i}")
        for i in range(16):
            a(f"buffer_atomic_umax v{16+i}, v1, {RA}, 0 offen offset:{4*i}")
    elif STAMP:
        a(f"""s_waitcnt vmcnt(0) lgkmcnt(0)
s_cmp_lg_u32 s{S_W}, {OPT.get('stw', 0)}
s_cbranch_scc1 L_end
s_memrealtime s[{S_ST+30}:{S_ST+31}]
s_memtime s[98:99]
s_waitcnt lgkmcnt(0)
s_sub_u32 s98, s98, s96""")
        for i in range(16):
            a(f"v_mov_b32 v{16+i}, s{S_ST+2*i}")
        a(f"""v_mov_b32 v32, s98
s_lshl_b32 s{T}, s2, 7
s_add_u32 s{T}, s{T}, {WS_STAMP}
v_mov_b32 v1, 0
s_mov_b64 exec, 1""")
        for i in range(4):
            a(f"buffer_store_dwordx4 v[{16+4*i}:{19+4*i}], v1, {WS}, s{T} offen offset:{16*i}")
        a(f"buffer_store_dword v32, v1, {WS}, s{T} offen offset:64")
    a("L_end:\ns_endpgm")

def main():
    a = Asm()
    a.raw("; @launch grid=(256,1,1) block=(512,1,1) lds=163840")
    a.raw('.amdgcn_target "amdgcn-amd-amdhsa--gfx950"\n.text')
    prologue(a)
    a(f"s_cmp_ge_u32 s{S_SLOT}, 27\ns_cbranch_scc1 L_owner")
    phase_ab_gemm(a)
    phase_c(a)
    phase_d(a)
    epilogue(a)
    a("L_owner:")
    phase_a_owner(a)
    out = a.text() + kd(NAME, 244, 102)
    path = [x for x in sys.argv[1:] if not x.startswith('--')][0]
    open(path, 'w').write(out)
main()
```

```python
import sys, struct
from asmlib import *

OPT = dict(la='3', nt='nt', map='all', rot='1')
for a_ in sys.argv[1:]:
    if a_.startswith('--'):
        k, _, v = a_[2:].partition('=')
        OPT[k] = v
STAMP = 'stamp' in OPT
NT = OPT['nt']
CLK = "s_memtime" if 'cyc' in OPT else "s_memrealtime"

NAME = "standalone__dit_adaln_block__diffusion_kernel"
D = 1152
SZ_X = 512*D*2; SZ_C = 2*D*2; SZ_WQKV = D*3*D*2; SZ_WO = D*D*2; SZ_WMOD = D*6*D*2
SZ_WS = 1 << 28
F_STAT = 0x0
F_H = 0x2000
F_L = 0x4000
F_U = F_L + 64*128
F_G = F_U + 144*128
F_QKV = 0xC000
EPOCH = 0x13000
WS_GATE = 0x14000
WS_H = 0x20000
WS_QKV = 0x140000
WS_L = 0x4A0000
WS_U = 0x500000
WS_PART = 0x620000
WS_STAMP = 0x700000
LOG2E = 0x3fb8aa3b

S_W, S_TAG, S_G, S_SLOT, S_TO, S_TK = 3, 4, 5, 6, 7, 8
S_X, S_C, S_WQKV, S_WO, S_WMOD, S_OUT, S_DBG, S_WS = 16, 18, 20, 22, 24, 26, 28, 30
R_A, R_B, R_C, R_WS = 32, 36, 40, 44
T = 48
S_ST = 64
WS = f"s[{R_WS}:{R_WS+3}]"
RA = f"s[{R_A}:{R_A+3}]"; RB = f"s[{R_B}:{R_B+3}]"; RC = f"s[{R_C}:{R_C+3}]"
vL16, vP16, vB0, vB1, vCH, vR8, vHF, vTok = 1, 2, 3, 4, 5, 6, 7, 8
vT0, vT1, vT2, vT3 = 9, 10, 11, 12
vTAG = 13
V0 = 16

L_MISC = 147456
L_SIL = L_MISC
L_RED = L_SIL + 4608
L_FIN = L_RED + 4096
L_ROLE = L_FIN + 4096
L_STC = L_ROLE + 16
NO = 5

def srd(a, r, ptr, size):
    a(f"""s_mov_b32 s{r}, s{ptr}
s_and_b32 s{r+1}, s{ptr+1}, 0xffff
s_mov_b32 s{r+2}, {hex(size)}
s_mov_b32 s{r+3}, 0x20000""")

def stamp(a, i):
    if STAMP:
        a(f"{CLK} s[{S_ST+2*i}:{S_ST+2*i+1}]")

def unpack(a, lo, hi, src):
    a(f"v_lshlrev_b32 v{lo}, 16, v{src}\nv_and_b32 v{hi}, 0xffff0000, v{src}")

def round_bf16(a, v):
    a(f"v_cvt_pk_bf16_f32 v{v}, v{v}, v{v}\nv_lshlrev_b32 v{v}, 16, v{v}")

def mfma(a, acc, A, B, first=False):
    c = "0" if first else vr(acc, 16)
    a(f"v_mfma_f32_32x32x16_bf16 {vr(acc,16)}, {vr(A,4)}, {vr(B,4)}, {c}")

def wrap_add(a, s, step, s_end, s_start):
    a(f"""s_add_u32 s{s}, s{s}, {step}
s_cmp_eq_u32 s{s}, s{s_end}
s_cselect_b32 s{s}, s{s_start}, s{s}""")

def mod9(a, dst, src, tmp):
    a(f"""s_mul_i32 s{tmp}, s{src}, 57
s_lshr_b32 s{tmp}, s{tmp}, 9
s_mul_i32 s{tmp}, s{tmp}, 9
s_sub_u32 s{dst}, s{src}, s{tmp}""")

def poll(a, vaddr, soff, vtmp):
    l = a.label("poll"); d = a.label("polld")
    a(f"""s_cmp_lg_u32 s{S_W}, 0
s_cbranch_scc1 {d}
{l}:
buffer_load_dword v{vtmp}, v{vaddr}, {WS}, {soff} offen sc1
s_waitcnt vmcnt(0)
v_cmp_ne_u32 vcc, s{S_TAG}, v{vtmp}
s_cbranch_vccz {d}
s_sleep {OPT.get('sleep', 2)}
s_sub_u32 s{S_TO}, s{S_TO}, 1
s_cmp_lg_u32 s{S_TO}, 0
s_cbranch_scc1 {l}
s_mov_b32 s{S_TO}, 1
{d}:
s_barrier""")

def gpoll(a, loads, tagregs):
    l = a.label("gp"); d = a.label("gpd")
    a(f"{l}:")
    loads()
    a(f"s_waitcnt vmcnt(0)\nv_cmp_ne_u32 vcc, s{S_TAG}, v{tagregs[0]}")
    for r in tagregs[1:]:
        a(f"v_cmp_ne_u32 s[{T+14}:{T+15}], s{S_TAG}, v{r}\ns_or_b64 vcc, vcc, s[{T+14}:{T+15}]")
    a(f"""s_cbranch_vccz {d}
s_sleep {OPT.get('gsleep', 2)}
s_sub_u32 s{S_TO}, s{S_TO}, 1
s_cmp_lg_u32 s{S_TO}, 0
s_cbranch_scc1 {l}
s_mov_b32 s{S_TO}, 1
{d}:""")

def raw_flag(a, soff):
    a(f"""v_mov_b32 v{vT3}, 0
s_mov_b64 exec, 1
buffer_store_dword v{vTAG}, v{vT3}, {WS}, {soff} offen sc1
s_mov_b64 exec, -1""")

def set_flag(a, soff, younger=0):
    d = a.label("fl")
    a(f"""s_waitcnt vmcnt({younger})
s_barrier
s_cmp_lg_u32 s{S_W}, 0
s_cbranch_scc1 {d}""")
    raw_flag(a, soff)
    a(f"{d}:")

def trreads(a, wf, b0, b1, off):
    a(f"""ds_read_b64_tr_b16 {vr(wf,2)}, v{b0} offset:{off}
ds_read_b64_tr_b16 {vr(wf+2,2)}, v{b0} offset:{off+512}
ds_read_b64_tr_b16 {vr(wf+4,2)}, v{b1} offset:{off}
ds_read_b64_tr_b16 {vr(wf+6,2)}, v{b1} offset:{off+512}""")

def dma_tile(a, srdname, vD, pitch, s_rot, flags, n0=0, n1=18):
    sN, sO = T+10, T+11
    if s_rot is None:
        a(f"s_add_u32 s{sN}, s{S_W}, {8*n0}")
    else:
        a(f"s_lshl_b32 s{sN}, s{s_rot}, 3\ns_add_u32 s{sN}, s{sN}, s{S_W}")
    for n in range(n0, n1):
        a(f"""s_lshl_b32 m0, s{sN}, 10
s_mul_i32 s{sO}, s{sN}, {8*pitch}
buffer_load_dwordx4 v{vD}, {srdname}, s{sO} offen {flags} lds""")
        if n < n1-1:
            a(f"s_add_u32 s{sN}, s{sN}, 8")
            if s_rot is not None:
                a(f"""s_sub_u32 s{sO}, s{sN}, 144
s_cmp_ge_u32 s{sN}, 144
s_cselect_b32 s{sN}, s{sO}, s{sN}""")

def wave_sum(a, v, sdst):
    for m in ("quad_perm:[1,0,3,2]", "quad_perm:[2,3,0,1]", "row_half_mirror", "row_mirror"):
        a(f"s_nop 1\nv_add_f32_dpp v{v}, v{v}, v{v} {m} row_mask:0xf bank_mask:0xf")
    a(f"s_nop 1\nv_add_f32_dpp v{v}, v{v}, v{v} row_bcast:15 row_mask:0xa bank_mask:0xf")
    a(f"s_nop 1\nv_add_f32_dpp v{v}, v{v}, v{v} row_bcast:31 row_mask:0xc bank_mask:0xf")
    a(f"s_nop 1\nv_readlane_b32 s{sdst}, v{v}, 63\ns_nop 1")

def silu8(a, f, t):
    for i in range(8):
        a(f"v_mul_f32 v{t+i}, 0xbfb8aa3b, v{f+i}")
    for i in range(8):
        a(f"v_exp_f32 v{t+i}, v{t+i}")
    for i in range(8):
        a(f"v_add_f32 v{t+i}, 1.0, v{t+i}")
    for i in range(8):
        a(f"v_rcp_f32 v{t+i}, v{t+i}")
    for i in range(8):
        a(f"v_mul_f32 v{f+i}, v{f+i}, v{t+i}")

def lane_consts(a):
    a(f"""v_lshrrev_b32 v{vR8}, 3, v0
v_and_b32 v{vP16}, 0x33, v0
v_and_b32 v{vT0}, 4, v0
v_lshl_or_b32 v{vP16}, v{vT0}, 1, v{vP16}
v_and_b32 v{vT0}, 8, v0
v_lshrrev_b32 v{vT0}, 1, v{vT0}
v_or_b32 v{vP16}, v{vP16}, v{vT0}
v_lshlrev_b32 v{vP16}, 4, v{vP16}
v_lshrrev_b32 v{vT0}, 2, v0
v_and_b32 v{vT0}, 4, v{vT0}
v_and_b32 v{vCH}, 7, v0
v_xor_b32 v{vCH}, v{vCH}, v{vT0}
v_lshlrev_b32 v{vB0}, 10, v{vHF}
v_and_b32 v{vT0}, 12, v0
v_lshl_or_b32 v{vB0}, v{vT0}, 5, v{vB0}
v_and_b32 v{vT0}, 8, v0
v_lshl_or_b32 v{vB0}, v{vT0}, 3, v{vB0}
v_and_b32 v{vT0}, 16, v0
v_lshl_or_b32 v{vB0}, v{vT0}, 1, v{vB0}
v_and_b32 v{vT0}, 1, v0
v_lshl_or_b32 v{vB0}, v{vT0}, 4, v{vB0}
v_and_b32 v{vT0}, 2, v0
v_lshl_or_b32 v{vB0}, v{vT0}, 2, v{vB0}
v_xor_b32 v{vB1}, 64, v{vB0}""")

vTK = 15
def get_tag(a):
    a(f"""s_waitcnt lgkmcnt(0)
s_mul_i32 s{S_TAG}, s{S_TAG}, 1664525
s_add_u32 s{S_TAG}, s{S_TAG}, 1013904223
v_mov_b32 v{vTAG}, s{S_TAG}""")

def ticket_issue(a, base, scalar=False):
    d = a.label("tki")
    if scalar:
        a(f"""s_cmp_lg_u32 s{S_W}, 7
s_cbranch_scc1 {d}
s_mul_i32 s{T+15}, s{S_G}, 0x88
s_and_b32 s{T+15}, s{T+15}, 0xb0
s_add_u32 s{T+15}, s{T+15}, {base}
s_mov_b32 s{S_TK}, 1
s_atomic_add s{S_TK}, s[{S_DBG}:{S_DBG+1}], s{T+15} glc
{d}:""")
        return
    srd(a, R_B, S_DBG, 256)
    a(f"""s_cmp_lg_u32 s{S_W}, 7
s_cbranch_scc1 {d}
s_mul_i32 s{T+15}, s{S_G}, 0x88
s_and_b32 s{T+15}, s{T+15}, 0xb0
v_mov_b32 v{vTK}, 1
v_mov_b32 v{vT3}, 0
s_mov_b64 exec, 1
buffer_atomic_add v{vTK}, v{vT3}, {RB}, s{T+15} offen offset:{base} sc0
s_mov_b64 exec, -1
{d}:""")

def role_write(a, base, cap, first, scalar=False):
    d = a.label("rw"); l = a.label("tk"); ok = a.label("tkok")
    a(f"""s_cmp_lg_u32 s{S_W}, 7
s_cbranch_scc1 {d}""")
    if not scalar:
        a(f"""s_waitcnt vmcnt(0)
v_readfirstlane_b32 s{S_TK}, v{vTK}
s_nop 3""")
    a(f"""{l}:
s_waitcnt lgkmcnt(0)
s_cmp_lt_u32 s{S_TK}, {cap}
s_cbranch_scc1 {ok}
s_add_u32 s{S_G}, s{S_G}, 1
s_and_b32 s{S_G}, s{S_G}, 7
s_mul_i32 s{T+15}, s{S_G}, 0x88
s_and_b32 s{T+15}, s{T+15}, 0xb0
s_add_u32 s{T+15}, s{T+15}, {base}
s_mov_b32 s{S_TK}, 1
s_atomic_add s{S_TK}, s[{S_DBG}:{S_DBG+1}], s{T+15} glc
s_sub_u32 s{S_TO}, s{S_TO}, 1
s_cmp_lg_u32 s{S_TO}, 0
s_cbranch_scc1 {l}
s_waitcnt lgkmcnt(0)
s_mov_b32 s{S_TO}, 1
s_mov_b32 s{S_TK}, 0
{ok}:
s_add_u32 s{S_TK}, s{S_TK}, {first}
s_lshl_b32 s{S_TK}, s{S_TK}, 3
s_or_b32 s{S_TK}, s{S_TK}, s{S_G}
v_mov_b32 v{vT0}, s{S_TK}
v_mov_b32 v{vT1}, {L_ROLE}
ds_write_b32 v{vT1}, v{vT0}
s_waitcnt lgkmcnt(0)
{d}:""")

def role_read(a):
    a(f"""v_mov_b32 v{vT1}, {L_ROLE}
ds_read_b32 v{vT0}, v{vT1}
s_waitcnt lgkmcnt(0)
v_readfirstlane_b32 s{S_TK}, v{vT0}
s_nop 3
s_and_b32 s{S_TK}, s{S_TK}, 255
s_and_b32 s{S_G}, s{S_TK}, 7
s_lshr_b32 s{S_SLOT}, s{S_TK}, 3""")

NPF = 5
def w_prefetch(a, vdst, ndummy):
    if 'nopf' in OPT:
        return 0
    srd(a, R_A, S_WQKV, SZ_WQKV)
    a(f"""s_getreg_b32 s{T+12}, hwreg(HW_REG_HW_ID, 13, 2)
s_getreg_b32 s{T+13}, hwreg(HW_REG_HW_ID, 8, 3)
s_lshl_b32 s{T+12}, s{T+12}, 3
s_or_b32 s{T+12}, s{T+12}, s{T+13}
s_mul_i32 s{T+12}, s{T+12}, 36
s_add_u32 s{T+12}, s{T+12}, s{S_W}
s_mul_i32 s{T+12}, s{T+12}, 6912
s_mul_i32 s{T+13}, s{S_G}, 27
s_lshr_b32 s{T+13}, s{T+13}, 2
s_min_u32 s{T+13}, s{T+13}, 46
s_lshl_b32 s{T+13}, s{T+13}, 7
s_add_u32 s{T+12}, s{T+12}, s{T+13}""")
    lsk = a.label("pfsk")
    a(f"s_cmp_eq_u32 s{S_W}, 7\ns_cbranch_scc1 {lsk}")
    for n in range(NPF):
        a(f"buffer_load_dwordx4 {vr(vdst+4*n,4)}, v{vL16}, {RA}, s{T+12} offen {NT}")
        if n < NPF-1:
            a(f"s_add_u32 s{T+12}, s{T+12}, {7*6912}")
    lj = a.label("pfj")
    a(f"s_branch {lj}\n{lsk}:\ns_mov_b32 s{T+12}, {EPOCH}\nv_mov_b32 v{vT3}, 0")
    for n in range(ndummy):
        a(f"buffer_load_dword v{vdst+n}, v{vT3}, {WS}, s{T+12} offen")
    a(f"{lj}:")
    return NPF

def prologue(a):
    a.raw(f".globl {NAME}\n.p2align 8\n.type {NAME},@function\n{NAME}:")
    a(f"""s_cmp_ge_u32 s2, 256
s_cbranch_scc1 L_end
s_load_dwordx16 s[16:31], s[0:1], 0""")
    if STAMP:
        a(f"{CLK} s[{S_ST}:{S_ST+1}]\ns_memtime s[96:97]")
        for i in range(1, 16):
            a(f"s_mov_b32 s{S_ST+2*i}, 0")
    a(f"""v_lshrrev_b32 v1, 6, v0
v_and_b32 v0, 63, v0
s_getreg_b32 s{S_G}, hwreg(HW_REG_XCC_ID, 0, 3)
v_readfirstlane_b32 s{S_W}, v1
s_mov_b32 s{S_TO}, 0x40000
v_lshlrev_b32 v{vL16}, 4, v0
v_lshrrev_b32 v{vHF}, 5, v0
v_and_b32 v{vTok}, 31, v0
s_waitcnt lgkmcnt(0)
s_load_dword s{S_TAG}, s[{S_WS}:{S_WS+1}], {EPOCH}""")
    srd(a, R_WS, S_WS, SZ_WS)
    a(f"""s_cmp_lt_u32 s2, 64
s_cbranch_scc1 L_s0_stats
s_cmp_lt_u32 s2, 94
s_cbranch_scc1 L_s0_none""")
    sP, sCg, sKs, sOff, sRow = T, T+1, T+2, T+3, T+4
    vW = 16
    vC = 32
    vSc = 36
    vTm = 44
    vAc = 52
    srd(a, R_A, S_WMOD, SZ_WMOD)
    srd(a, R_C, S_C, SZ_C)
    a(f"""s_sub_u32 s{sP}, s2, 94
s_mul_i32 s{sKs}, s{sP}, 57
s_lshr_b32 s{sKs}, s{sKs}, 9
s_mul_i32 s{sCg}, s{sKs}, 9
s_sub_u32 s{sCg}, s{sP}, s{sCg}
s_lshl_b32 s{sRow}, s{sKs}, 3
s_add_u32 s{sRow}, s{sRow}, s{S_W}
s_lshl_b32 s{sRow}, s{sRow}, 3
v_and_b32 v{vT0}, 15, v0
v_lshlrev_b32 v{vT0}, 4, v{vT0}
v_bfe_u32 v{vT1}, v0, 4, 1
v_mul_u32_u24 v{vT1}, 2304, v{vT1}
v_mul_u32_u24 v{vT2}, {4*13824}, v{vHF}
v_add3_u32 v{vT0}, v{vT0}, v{vT1}, v{vT2}
v_lshlrev_b32 v{vT1}, 3, v{vHF}
s_lshl_b32 s{sOff}, s{sRow}, 1
buffer_load_dwordx2 {vr(vC,2)}, v{vT1}, {RC}, s{sOff} offen
buffer_load_dwordx2 {vr(vC+2,2)}, v{vT1}, {RC}, s{sOff} offen offset:2304
s_mul_i32 s{sOff}, s{sRow}, 13824
s_lshl_b32 s{sRow}, s{sCg}, 8
s_add_u32 s{sOff}, s{sOff}, s{sRow}""")
    for n in range(4):
        a(f"buffer_load_dwordx4 {vr(vW+4*n,4)}, v{vT0}, {RA}, s{sOff} offen {NT}")
        if n < 3:
            a(f"s_add_u32 s{sOff}, s{sOff}, 13824")
    ticket_issue(a, 64)
    lane_consts(a)
    if 'nopf' not in OPT:
        a("s_barrier")
    npf = w_prefetch(a, 72, NPF-1)
    a(f"s_waitcnt vmcnt({4+npf})")
    for i in range(4):
        unpack(a, vSc+2*i, vSc+2*i+1, vC+i)
    silu8(a, vSc, vTm)
    for i in range(4):
        a(f"v_cvt_pk_bf16_f32 v{vC+i}, v{vSc+2*i}, v{vSc+2*i+1}")
    for i in range(4):
        unpack(a, vSc+2*i, vSc+2*i+1, vC+i)
    for n in range(4):
        a(f"s_waitcnt vmcnt({3-n+npf})")
        if n == 3: stamp(a, 8)
        for i in range(4):
            unpack(a, vTm+2*i, vTm+2*i+1, vW+4*n+i)
        for b in range(2):
            for j in range(8):
                op = "v_mul_f32" if n == 0 else "v_fmac_f32"
                a(f"{op} v{vAc+8*b+j}, v{vTm+j}, v{vSc+4*b+n}")
    a("s_nop 1")
    for j in range(8):
        a(f"v_permlane32_swap_b32 v{vAc+j}, v{vAc+8+j}")
    a("s_nop 1")
    for j in range(8):
        a(f"v_add_f32 v{vAc+j}, v{vAc+j}, v{vAc+8+j}")
    a(f"""s_lshl_b32 s{sOff}, s{S_W}, 11
v_lshlrev_b32 v{vT2}, 5, v0
v_add_u32 v{vT2}, s{sOff}, v{vT2}""")
    get_tag(a)
    a(f"""ds_write_b128 v{vT2}, {vr(vAc,4)}
ds_write_b128 v{vT2}, {vr(vAc+4,4)} offset:16
s_waitcnt lgkmcnt(0)
s_barrier""")
    lsk = a.label("pubsk")
    a(f"""s_cmp_ge_u32 s{S_W}, 4
s_cbranch_scc1 {lsk}
s_lshr_b32 s{sOff}, s{S_W}, 1
s_lshl_b32 s{sOff}, s{sOff}, 10
s_and_b32 s{sRow}, s{S_W}, 1
s_lshl_b32 s{sP}, s{sRow}, 8
s_add_u32 s{sOff}, s{sOff}, s{sP}
v_lshlrev_b32 v{vT2}, 3, v{vTok}
v_lshl_add_u32 v{vT2}, v{vHF}, 9, v{vT2}
v_add_u32 v{vT2}, s{sOff}, v{vT2}""")
    for w in range(8):
        a(f"ds_read_b64 {vr(vW+2*w,2)}, v{vT2} offset:{w*2048}")
    a(f"""s_lshl_b32 s{sP}, s{sCg}, 1
s_add_u32 s{sP}, s{sP}, s{sRow}
s_lshl_b32 s{sP}, s{sP}, 1
s_lshr_b32 s{sOff}, s{S_W}, 1
s_add_u32 s{sP}, s{sP}, s{sOff}
s_mul_i32 s{sP}, s{sP}, 18
s_add_u32 s{sP}, s{sP}, s{sKs}
s_lshl_b32 s{sP}, s{sP}, 10
s_add_u32 s{sP}, s{sP}, {WS_PART}
v_mov_b32 v{vAc+1}, v{vTAG}
v_mov_b32 v{vAc+3}, v{vTAG}
s_waitcnt lgkmcnt(0)
v_add_f32 v{vAc}, v{vW}, v{vW+2}
v_add_f32 v{vAc+2}, v{vW+1}, v{vW+3}""")
    for w in range(2, 8):
        a(f"v_add_f32 v{vAc}, v{vAc}, v{vW+2*w}\nv_add_f32 v{vAc+2}, v{vAc+2}, v{vW+2*w+1}")
    a(f"""buffer_store_dwordx4 {vr(vAc,4)}, v{vL16}, {WS}, s{sP} offen sc1
{lsk}:""")
    stamp(a, 9)
    a("s_branch L_s0_roleb")
    a("L_s0_stats:")
    vRW, vRF = 16, 32
    srd(a, R_C, S_X, SZ_X)
    ticket_issue(a, 0, True)
    a(f"""s_lshl_b32 s{sOff}, s2, 3
s_add_u32 s{sOff}, s{sOff}, s{S_W}
s_mul_i32 s{sOff}, s{sOff}, 2304
buffer_load_dwordx4 {vr(vRW,4)}, v{vL16}, {RC}, s{sOff} offen {NT}
buffer_load_dwordx4 {vr(vRW+4,4)}, v{vL16}, {RC}, s{sOff} offen offset:1024 {NT}
s_mov_b64 exec, 0xffff
buffer_load_dwordx4 {vr(vRW+8,4)}, v{vL16}, {RC}, s{sOff} offen offset:2048 {NT}
s_mov_b64 exec, -1""")
    lane_consts(a)
    get_tag(a)
    role_write(a, 0, 8, 0, True)
    a("s_barrier")
    role_read(a)
    stamp(a, 10)
    lg = a.label("notown"); lj = a.label("stj")
    a(f"""s_cmp_ge_u32 s{S_TK}, 36
s_cbranch_scc1 {lg}""")
    owner_xloads(a)
    a("s_waitcnt vmcnt(4)")
    a(f"s_branch {lj}\n{lg}:")
    npf = w_prefetch(a, 72, NPF)
    a(f"s_waitcnt vmcnt({npf})\n{lj}:")
    stamp(a, 8)
    for i in range(12):
        unpack(a, vRF+2*i, vRF+2*i+1, vRW+i)
    acc, acc2, mean = vRW, vRW+1, vRW+2
    a(f"v_add_f32 v{acc}, v{vRF}, v{vRF+1}\nv_add_f32 v{acc2}, v{vRF+2}, v{vRF+3}")
    for i in range(4, 16, 2):
        a(f"v_add_f32 v{acc}, v{acc}, v{vRF+i}\nv_add_f32 v{acc2}, v{acc2}, v{vRF+i+1}")
    a("s_mov_b64 exec, 0xffff")
    for i in range(16, 24, 2):
        a(f"v_add_f32 v{acc}, v{acc}, v{vRF+i}\nv_add_f32 v{acc2}, v{acc2}, v{vRF+i+1}")
    a(f"s_mov_b64 exec, -1\nv_add_f32 v{acc}, v{acc}, v{acc2}")
    wave_sum(a, acc, T+12)
    a(f"""v_mov_b32 v{vT2}, 0x3a638e39
v_mul_f32 v{mean}, s{T+12}, v{vT2}""")
    for i in range(24):
        a(f"v_sub_f32 v{vRF+i}, v{vRF+i}, v{mean}")
    a(f"v_mul_f32 v{acc}, v{vRF}, v{vRF}\nv_mul_f32 v{acc2}, v{vRF+1}, v{vRF+1}")
    for i in range(2, 16, 2):
        a(f"v_fmac_f32 v{acc}, v{vRF+i}, v{vRF+i}\nv_fmac_f32 v{acc2}, v{vRF+i+1}, v{vRF+i+1}")
    a("s_mov_b64 exec, 0xffff")
    for i in range(16, 24, 2):
        a(f"v_fmac_f32 v{acc}, v{vRF+i}, v{vRF+i}\nv_fmac_f32 v{acc2}, v{vRF+i+1}, v{vRF+i+1}")
    a(f"s_mov_b64 exec, -1\nv_add_f32 v{acc}, v{acc}, v{acc2}")
    wave_sum(a, acc, T+12)
    g = vRW+4
    a(f"v_mul_f32 v{g+1}, s{T+12}, v{vT2}\nv_mov_b32 v{g}, v{mean}")
    round_bf16(a, g+1)
    a(f"v_add_f32 v{g+1}, 0x3727c5ac, v{g+1}")
    round_bf16(a, g+1)
    a(f"v_sqrt_f32 v{g+1}, v{g+1}\ns_nop 0")
    round_bf16(a, g+1)
    a(f"v_rcp_f32 v{g+1}, v{g+1}")
    round_bf16(a, g)
    lsk = a.label("stsk")
    a(f"""v_mov_b32 v{g+2}, v{vTAG}
v_mov_b32 v{g+3}, v{vTAG}
s_lshl_b32 s{T+12}, s{S_W}, 4
s_add_u32 s{T+12}, s{T+12}, {L_STC}
v_mov_b32 v{vT0}, s{T+12}
s_mov_b64 exec, 1
ds_write_b128 v{vT0}, {vr(g,4)}
s_mov_b64 exec, -1
s_waitcnt lgkmcnt(0)
s_barrier
s_cmp_lg_u32 s{S_W}, 0
s_cbranch_scc1 {lsk}
s_lshl_b32 s{T+12}, s2, 7
s_add_u32 s{T+12}, s{T+12}, {F_STAT}
v_add_u32 v{vT0}, {L_STC}, v{vL16}
s_mov_b64 exec, 0xff
ds_read_b128 {vr(g,4)}, v{vT0}
s_waitcnt lgkmcnt(0)
buffer_store_dwordx4 {vr(g,4)}, v{vL16}, {WS}, s{T+12} offen sc1
s_mov_b64 exec, -1
{lsk}:""")
    stamp(a, 9)
    a("s_branch L_s0_end")
    a("L_s0_none:")
    ticket_issue(a, 64)
    w_prefetch(a, 72, 0)
    lane_consts(a)
    get_tag(a)
    a("L_s0_roleb:")
    role_write(a, 64, 24, 8)
    a("s_barrier")
    role_read(a)
    stamp(a, 10)
    a(f"L_s0_end:\ns_mov_b32 s2, s{S_TK}")

VOX = 96
def owner_xloads(a):
    a(f"""s_lshr_b32 s{T+12}, s{S_TK}, 1
s_and_b32 s{T+13}, s{S_TK}, 1
s_lshl_b32 s{T+13}, s{T+13}, 3
s_add_u32 s{T+13}, s{T+13}, s{S_W}
v_mul_u32_u24 v{vT0}, 2304, v{vR8}
v_and_b32 v{vT1}, 7, v0
v_lshl_add_u32 v{vT0}, v{vT1}, 4, v{vT0}
s_mul_i32 s{T+13}, s{T+13}, {32*2304}
s_lshl_b32 s{T+12}, s{T+12}, 7
s_add_u32 s{T+13}, s{T+13}, s{T+12}""")
    a(f"s_lshl_b32 m0, s{S_W}, 12")
    for q in range(4):
        a(f"s_nop 0\nbuffer_load_dwordx4 v{vT0}, {RC}, s{T+13} offen {NT} lds")
        if q < 3:
            a(f"s_add_u32 s{T+13}, s{T+13}, {8*2304}\ns_add_u32 m0, m0, 1024")

def gemv_dma(a, sColA, vD):
    sRow0, sOff = T+2, T+3
    a(f"""v_lshlrev_b32 v{vD}, 4, v{vCH}
v_mul_u32_u24 v{vT0}, 13824, v{vR8}
v_add3_u32 v{vD}, v{vD}, v{vT0}, s{sColA}
s_mul_i32 s{sOff}, s{sRow0}, 13824
s_lshl_b32 m0, s{sRow0}, 7""")
    for t in range(18):
        a(f"""s_nop 0
buffer_load_dwordx4 v{vD}, {RA}, s{sOff} offen {NT} lds""")
        if t < 17:
            a(f"s_add_u32 s{sOff}, s{sOff}, {8*13824}\ns_add_u32 m0, m0, 1024")

def phase_owner(a):
    sColA, sB, sRow0, sOff, sO, sCs, sTb = T, T+1, T+2, T+3, T+4, T+5, T+6
    vD, vA0, vA1, vSil, vCs = V0, V0+1, V0+2, V0+3, V0+4
    vC = 24
    vST = 28
    vX = VOX
    vXN = 48
    vPt = 80
    vAcc = 112
    vWF = 144
    vSF = 160
    vM = 184
    a(f"""s_mov_b32 s{sO}, s2
s_cmp_ge_u32 s{sO}, 36
s_cbranch_scc1 L_o_pref
s_lshr_b32 s{sCs}, s{sO}, 1
s_and_b32 s{sB}, s{sO}, 1
s_lshl_b32 s{sTb}, s{sB}, 3
s_add_u32 s{sTb}, s{sTb}, s{S_W}""")
    vST = 32
    a(f"""v_and_b32 v{vT3}, 7, v0
v_lshlrev_b32 v{vT2}, 4, v{vT3}
v_lshlrev_b32 v{vT0}, 7, v{vT3}
v_lshl_add_u32 v{vT0}, v{vR8}, 4, v{vT0}
s_lshl_b32 s{T+9}, s{S_W}, 12
v_add_u32 v{vT0}, s{T+9}, v{vT0}
s_lshl_b32 s{T+9}, s{sTb}, 9
s_add_u32 s{T+9}, s{T+9}, {F_STAT}""")
    def stl():
        for q in range(4):
            a(f"buffer_load_dwordx4 {vr(vST+4*q,4)}, v{vT2}, {WS}, s{T+9} offen offset:{128*q} sc1")
    gpoll(a, stl, [vST+2, vST+6, vST+10, vST+14])
    stamp(a, 1)
    for q in range(4):
        a(f"ds_read_b128 {vr(vX+4*q,4)}, v{vT0} offset:{q*1024}")
    vPt = 112
    def pl():
        a(f"s_mov_b32 s{T+10}, s{T+9}")
        for n in range(18):
            a(f"buffer_load_dwordx4 {vr(vPt+4*n,4)}, v{vL16}, {WS}, s{T+10} offen offset:{(n&3)*1024} sc1")
            if (n & 3) == 3:
                a(f"s_add_u32 s{T+10}, s{T+10}, 4096")
    lw0 = a.label("w0a")
    a(f"""s_mul_i32 s{T+9}, s{sO}, {18*1024}
s_add_u32 s{T+9}, s{T+9}, {WS_PART}
s_cmp_lg_u32 s{S_W}, 0
s_cbranch_scc1 {lw0}""")
    pl()
    a(f"{lw0}:")
    P = [(q, i) for q in range(4) for i in range(4)]
    lo = lambda q, i: vXN+8*q+2*i
    hi = lambda q, i: vXN+8*q+2*i+1
    xs = lambda q, i: vX+4*q+i
    def st_unpack():
        for q, i in P: unpack(a, lo(q,i), hi(q,i), xs(q,i))
    def st_cvt():
        for q, i in P: a(f"v_cvt_pk_bf16_f32 v{xs(q,i)}, v{lo(q,i)}, v{hi(q,i)}")
    def st_op(op, f):
        for q, i in P:
            a(f"{op} v{lo(q,i)}, v{lo(q,i)}, v{f(q,2*i)}\n{op} v{hi(q,i)}, v{hi(q,i)}, v{f(q,2*i+1)}")
    a("s_waitcnt lgkmcnt(0)")
    st_unpack(); st_op("v_sub_f32", lambda q, j: vST+4*q); st_cvt()
    st_unpack(); st_op("v_mul_f32", lambda q, j: vST+4*q+1); st_cvt()
    st_unpack()
    a(f"""v_lshlrev_b32 v{vT1}, 5, v{vR8}
v_add_u32 v{vT1}, {L_FIN}, v{vT1}
v_lshl_add_u32 v{vCs}, v{vR8}, 9, v{vT2}
s_mul_i32 s{sOff}, s{sTb}, {72*1024}
s_lshl_b32 s{T+11}, s{sCs}, 12
s_add_u32 s{sOff}, s{sOff}, s{T+11}
s_add_u32 s{sOff}, s{sOff}, {WS_H}""")
    stamp(a, 2)
    lw1 = a.label("w0b"); lp = a.label("pp"); ld = a.label("ppd")
    a(f"""s_cmp_lg_u32 s{S_W}, 0
s_cbranch_scc1 {lw1}
v_lshlrev_b32 v{vT0}, 3, v0
v_add_u32 v{vT0}, {L_FIN}, v{vT0}
v_cvt_f32_u32 v{vT2}, v{vHF}
{lp}:
s_waitcnt vmcnt(0)
v_and_b32 v{vM}, v{vPt+1}, v{vPt+3}
v_or_b32 v{vM+1}, v{vPt+1}, v{vPt+3}""")
    for n in range(1, 18):
        a(f"""v_and_b32 v{vM}, v{vM}, v{vPt+4*n+1}
v_or3_b32 v{vM+1}, v{vM+1}, v{vPt+4*n+1}, v{vPt+4*n+3}
v_and_b32 v{vM}, v{vM}, v{vPt+4*n+3}""")
    a(f"""v_cmp_ne_u32 vcc, s{S_TAG}, v{vM}
v_cmp_ne_u32 s[{T+14}:{T+15}], s{S_TAG}, v{vM+1}
s_or_b64 vcc, vcc, s[{T+14}:{T+15}]
s_cbranch_vccz {ld}
s_sub_u32 s{S_TO}, s{S_TO}, 1
s_cmp_eq_u32 s{S_TO}, 0
s_cbranch_scc1 {ld}""")
    pl()
    a(f"s_branch {lp}\n{ld}:\ns_max_u32 s{S_TO}, s{S_TO}, 1")
    for n in range(2, 18, 2):
        a(f"""v_add_f32 v{vPt}, v{vPt}, v{vPt+4*n}
v_add_f32 v{vPt+2}, v{vPt+2}, v{vPt+4*n+2}
v_add_f32 v{vPt+4}, v{vPt+4}, v{vPt+4*n+4}
v_add_f32 v{vPt+6}, v{vPt+6}, v{vPt+4*n+6}""")
    a(f"""v_add_f32 v{vPt}, v{vPt}, v{vPt+4}
v_add_f32 v{vPt+1}, v{vPt+2}, v{vPt+6}
v_cvt_pk_bf16_f32 v{vPt+2}, v{vPt}, v{vPt+1}""")
    unpack(a, vPt, vPt+1, vPt+2)
    a(f"""v_add_f32 v{vPt}, v{vPt}, v{vT2}
v_add_f32 v{vPt+1}, v{vPt+1}, v{vT2}
v_cvt_pk_bf16_f32 v{vPt+2}, v{vPt}, v{vPt+1}""")
    unpack(a, vPt, vPt+1, vPt+2)
    a(f"""ds_write_b64 v{vT0}, {vr(vPt,2)}
s_waitcnt lgkmcnt(0)
{lw1}:
s_barrier""")
    stamp(a, 3)
    a(f"""ds_read_b128 {vr(vM+8,4)}, v{vT1} offset:256
ds_read_b128 {vr(vM+12,4)}, v{vT1} offset:272
ds_read_b128 {vr(vM,4)}, v{vT1}
ds_read_b128 {vr(vM+4,4)}, v{vT1} offset:16
s_waitcnt lgkmcnt(2)""")
    st_op("v_mul_f32", lambda q, j: vM+8+j); st_cvt(); st_unpack()
    a("s_waitcnt lgkmcnt(0)")
    for q in range(4):
        for i in range(4):
            a(f"v_add_f32 v{lo(q,i)}, v{lo(q,i)}, v{vM+2*i}\nv_add_f32 v{hi(q,i)}, v{hi(q,i)}, v{vM+2*i+1}")
        for i in range(4):
            a(f"v_cvt_pk_bf16_f32 v{xs(q,i)}, v{lo(q,i)}, v{hi(q,i)}")
        a(f"buffer_store_dwordx4 {vr(vX+4*q,4)}, v{vCs}, {WS}, s{sOff} offen offset:{q*128} sc1")
    stamp(a, 4)
    a(f"""s_mul_i32 s{sOff}, s{sB}, 18
s_add_u32 s{sOff}, s{sOff}, s{sCs}
s_lshl_b32 s{sOff}, s{sOff}, 7
s_add_u32 s{sOff}, s{sOff}, {F_H}""")
    set_flag(a, f"s{sOff}")
    stamp(a, 5)
    a("L_o_pref:")
    srd(a, R_B, S_WO, SZ_WO)
    a(f"""s_and_b32 s{sOff}, s{S_G}, 3
s_mul_i32 s{sOff}, s{sOff}, 18
s_lshl_b32 s{T+9}, s{S_SLOT}, 2
s_add_u32 s{sOff}, s{sOff}, s{T+9}
s_add_u32 s{sOff}, s{sOff}, 1
s_lshr_b32 s{sOff}, s{sOff}, 2
s_lshl_b32 s{sOff}, s{sOff}, 7
v_lshlrev_b32 v{vT1}, 4, v{vCH}
v_mul_u32_u24 v{vT0}, 2304, v{vR8}
v_add3_u32 v{vT1}, v{vT1}, v{vT0}, s{sOff}""")
    dma_tile(a, RB, vT1, 2304, None, NT)
    a(f"""s_waitcnt vmcnt(0)
s_barrier""")
    stamp(a, 6)
    srd(a, R_A, S_WMOD, SZ_WMOD)
    srd(a, R_C, S_C, SZ_C)
    a(f"""s_cmp_ge_u32 s{sO}, 18
s_cbranch_scc1 L_fin
s_mul_i32 s{sRow0}, s{S_W}, 144
v_min_u32 v{vT0}, 17, v{vTok}
v_lshlrev_b32 v{vT0}, 4, v{vT0}
v_mul_u32_u24 v{vT1}, 2304, v{vHF}
v_add_u32 v{vCs}, v{vT0}, v{vT1}
s_lshl_b32 s{sOff}, s{sRow0}, 1
buffer_load_dwordx4 {vr(vC,4)}, v{vCs}, {RC}, s{sOff} offen
s_lshl_b32 s{sColA}, s{sO}, 7
s_add_u32 s{sColA}, s{sColA}, 4608""")
    gemv_dma(a, sColA, vD)
    a(f"""s_lshl_b32 s{sOff}, s{sRow0}, 7
v_add_u32 v{vA0}, s{sOff}, v{vB0}
v_add_u32 v{vA1}, s{sOff}, v{vB1}
s_waitcnt vmcnt(18)""")
    for i in range(4):
        unpack(a, vM+2*i, vM+2*i+1, vC+i)
    silu8(a, vM, vM+8)
    for i in range(4):
        a(f"v_cvt_pk_bf16_f32 v{vC+i}, v{vM+2*i}, v{vM+2*i+1}")
    a(f"""s_lshl_b32 s{sOff}, s{sRow0}, 1
s_add_u32 s{sOff}, s{sOff}, {L_SIL}
v_add_u32 v{vCs}, s{sOff}, v{vCs}
ds_write_b128 v{vCs}, {vr(vC,4)}
v_and_b32 v{vT0}, 1, v0
v_mul_u32_u24 v{vT0}, 2304, v{vT0}
v_lshl_add_u32 v{vT0}, v{vHF}, 4, v{vT0}
v_add_u32 v{vSil}, s{sOff}, v{vT0}
s_waitcnt lgkmcnt(0)""")
    for s in range(9):
        wf = vWF + 8*(s & 1); sf = vSF + 4*(s & 1)
        a(f"s_waitcnt vmcnt({18-2*(s+1)})")
        a(f"ds_read_b128 {vr(sf,4)}, v{vSil} offset:{s*32}")
        trreads(a, wf, vA0, vA1, s*2048)
        a("s_waitcnt lgkmcnt(2)")
        mfma(a, vAcc, wf, sf, s == 0)
        a("s_waitcnt lgkmcnt(0)")
        mfma(a, vAcc+16, wf+4, sf, s == 0)
    a(f"""v_and_b32 v{vT0}, 1, v0
v_lshlrev_b32 v{vT0}, 8, v{vT0}
v_lshl_add_u32 v{vT0}, v{vHF}, 5, v{vT0}
s_lshl_b32 s{sOff}, s{S_W}, 9
s_add_u32 s{sOff}, s{sOff}, {L_RED}
v_add_u32 v{vT0}, s{sOff}, v{vT0}
s_mov_b32 exec_lo, 3
s_mov_b32 exec_hi, 3
s_nop 8""")
    for cb in range(2):
        for q, off in enumerate((0, 16, 64, 80)):
            a(f"ds_write_b128 v{vT0}, {vr(vAcc+16*cb+4*q,4)} offset:{cb*128+off}")
    a(f"""s_mov_b64 exec, -1
s_waitcnt lgkmcnt(0)
s_barrier
s_lshr_b32 s{sOff}, s{S_W}, 2
s_lshl_b32 s{sOff}, s{sOff}, 8
s_add_u32 s{sOff}, s{sOff}, {L_RED}
v_lshlrev_b32 v{vT0}, 2, v0
v_add_u32 v{vT1}, s{sOff}, v{vT0}""")
    for w in range(8):
        a(f"ds_read_b32 v{vAcc+w}, v{vT1} offset:{w*512}")
    a("s_waitcnt lgkmcnt(0)")
    for w in range(1, 8):
        a(f"v_add_f32 v{vAcc}, v{vAcc}, v{vAcc+w}")
    round_bf16(a, vAcc)
    lsk = a.label("gsk")
    a(f"""s_and_b32 s{sOff}, s{S_W}, 3
s_cmp_lg_u32 s{sOff}, 0
s_cbranch_scc1 {lsk}
s_lshr_b32 s{T+9}, s{S_W}, 2
s_mul_i32 s{sOff}, s{T+9}, 4608
s_lshl_b32 s{sColA}, s{sO}, 8
s_add_u32 s{sOff}, s{sOff}, s{sColA}
s_add_u32 s{sOff}, s{sOff}, {WS_GATE}
buffer_store_dword v{vAcc}, v{vT0}, {WS}, s{sOff} offen sc1
{lsk}:
s_lshl_b32 s{sOff}, s{sO}, 7
s_add_u32 s{sOff}, s{sOff}, {F_G}""")
    set_flag(a, f"s{sOff}")
    stamp(a, 7)
    a("s_branch L_fin")

S_UCT, S_UTB = 9, 10
vDU = 14
def u_setup(a):
    srd(a, R_B, S_WO, SZ_WO)
    a(f"""s_and_b32 s{T+14}, s{S_G}, 3
s_mul_i32 s{T+14}, s{T+14}, 18
s_add_u32 s{T+14}, s{T+14}, s{S_SLOT}
s_lshr_b32 s{S_UCT}, s{T+14}, 2
s_and_b32 s{T+14}, s{T+14}, 3
s_lshr_b32 s{S_UTB}, s{S_G}, 2
s_lshl_b32 s{S_UTB}, s{S_UTB}, 2
s_add_u32 s{S_UTB}, s{S_UTB}, s{T+14}
s_lshl_b32 s{S_UTB}, s{S_UTB}, 1
s_and_b32 s{T+14}, s{S_W}, 1
s_add_u32 s{S_UTB}, s{S_UTB}, s{T+14}
v_lshlrev_b32 v{vDU}, 4, v{vCH}
v_mul_u32_u24 v{vT0}, 2304, v{vR8}
s_lshl_b32 s{T+14}, s{S_UCT}, 7
v_add3_u32 v{vDU}, v{vDU}, v{vT0}, s{T+14}""")

KE = int(OPT.get('ke', 6))
def phase_b(a):
    sCt, sTb, sKh, sRt, sOff, sHs, sHe, sLo, sLe, sLs = T, T+1, T+2, T+3, T+4, T+5, T+6, T+7, T+8, T+9
    vD, vA0, vA1 = V0, V0+1, V0+2
    vAcc = 20
    vWF = 52
    vH = 84
    srd(a, R_A, S_WQKV, SZ_WQKV)
    a(f"s_sub_u32 s{S_SLOT}, s{S_SLOT}, {NO}")
    if OPT['map'] == 'all':
        a(f"""s_mul_i32 s{sOff}, s{S_G}, 27
s_add_u32 s{sOff}, s{sOff}, s{S_SLOT}
s_lshr_b32 s{sCt}, s{sOff}, 2
s_and_b32 s{sRt}, s{sOff}, 3
s_lshl_b32 s{sTb}, s{sRt}, 2
s_mul_i32 s{sRt}, s{sRt}, 9
s_lshr_b32 s{sRt}, s{sRt}, 1""")
    else:
        a(f"""s_and_b32 s{sOff}, s{S_G}, 3
s_mul_i32 s{sOff}, s{sOff}, 27
s_add_u32 s{sOff}, s{sOff}, s{S_SLOT}
s_lshr_b32 s{sCt}, s{sOff}, 1
s_and_b32 s{sRt}, s{sOff}, 1
s_lshr_b32 s{sTb}, s{S_G}, 2
s_lshl_b32 s{sTb}, s{sTb}, 1
s_add_u32 s{sTb}, s{sTb}, s{sRt}
s_lshl_b32 s{sTb}, s{sTb}, 2
s_mul_i32 s{sRt}, s{sRt}, 9""")
    a(f"""s_and_b32 s{sOff}, s{S_W}, 3
s_add_u32 s{sTb}, s{sTb}, s{sOff}
s_lshr_b32 s{sKh}, s{S_W}, 2
v_lshlrev_b32 v{vD}, 4, v{vCH}
v_mul_u32_u24 v{vT0}, 6912, v{vR8}
s_lshl_b32 s{sOff}, s{sCt}, 7
v_add3_u32 v{vD}, v{vD}, v{vT0}, s{sOff}""")
    dma_tile(a, RA, vD, 6912, sRt, NT)
    stamp(a, 1)
    u_setup(a)
    if OPT['rot'] == '1':
        mod9(a, sRt, sCt, sOff)
    elif OPT['rot'] == '0':
        a(f"s_mov_b32 s{sRt}, 0")
    else:
        a(f"s_and_b32 s{sRt}, s{sCt}, {int(OPT['rot'])-1}")
    a(f"""s_mul_i32 s{sHs}, s{sTb}, {72*1024}
s_mul_i32 s{sOff}, s{sKh}, {36*1024}
s_add_u32 s{sHs}, s{sHs}, s{sOff}
s_add_u32 s{sHs}, s{sHs}, {WS_H}
s_add_u32 s{sHe}, s{sHs}, {36*1024}
s_lshl_b32 s{sOff}, s{sRt}, 12
s_add_u32 s{T+12}, s{sHs}, s{sOff}
s_mul_i32 s{sLs}, s{sKh}, {576*128}
s_add_u32 s{sLe}, s{sLs}, {576*128}
s_lshl_b32 s{sOff}, s{sRt}, 13
s_add_u32 s{sLo}, s{sLs}, s{sOff}
v_min_u32 v{vT0}, 17, v0
v_lshlrev_b32 v{vT0}, 7, v{vT0}
s_lshr_b32 s{sOff}, s{sTb}, 3
s_mul_i32 s{sOff}, s{sOff}, {18*128}
s_add_u32 s{sOff}, s{sOff}, {F_H}
s_waitcnt vmcnt(0)""")
    stamp(a, 2)
    poll(a, vT0, f"s{sOff}", vT1)
    stamp(a, 3)
    sH = T+12
    LA = int(float(OPT['la'])*4)
    WA = int(OPT.get('wa', 2))
    def hload(s):
        a(f"buffer_load_dwordx4 {vr(vH+4*s,4)}, v{vL16}, {WS}, s{sH} offen offset:{(s&3)*1024} sc1")
        if (s & 3) == 3 and s < 35:
            wrap_add(a, sH, 4096, sHe, sHs)
    def wread(s):
        if (s & 3) == 0:
            a(f"v_add_u32 v{vA0}, s{sLo}, v{vB0}\nv_add_u32 v{vA1}, s{sLo}, v{vB1}")
            wrap_add(a, sLo, 8192, sLe, sLs)
        trreads(a, vWF + 8*(s & 3), vA0, vA1, (s & 3)*2048)
    for s in range(LA):
        hload(s)
    for s in range(WA):
        wread(s)
    for s in range(36):
        lg = 4*min(WA-1, 35 - s)
        issued = min(36, s + LA)
        a(f"s_waitcnt vmcnt({issued - s - 1}) lgkmcnt({lg})")
        if s == 0: stamp(a, 4)
        mfma(a, vAcc, vWF+8*(s & 3), vH+4*s, s == 0)
        if s + WA < 36:
            wread(s + WA)
        mfma(a, vAcc+16, vWF+8*(s & 3)+4, vH+4*s, s == 0)
        if s + LA < 36:
            hload(s + LA)
    stamp(a, 5)
    XB = 131072
    lk1 = a.label("kh1"); lj = a.label("j")
    a(f"""s_lshl_b32 s{sOff}, s{S_W}, 12
s_add_u32 s{sOff}, s{sOff}, {XB}
v_add_u32 v{vT0}, s{sOff}, v{vL16}
v_xor_b32 v{vT1}, {4*4096}, v{vT0}
s_nop 8
s_barrier
s_cmp_lg_u32 s{sKh}, 0
s_cbranch_scc1 {lk1}""")
    for q in range(4):
        a(f"ds_write_b128 v{vT0}, {vr(vAcc+16+4*q,4)} offset:{q*1024}")
    a(f"s_branch {lj}\n{lk1}:")
    for q in range(4):
        a(f"ds_write_b128 v{vT0}, {vr(vAcc+4*q,4)} offset:{q*1024}")
    for r in range(16):
        a(f"v_mov_b32 v{vAcc+r}, v{vAcc+16+r}")
    a(f"{lj}:\ns_waitcnt lgkmcnt(0)\ns_barrier")
    for q in range(4):
        a(f"ds_read_b128 {vr(vWF+4*q,4)}, v{vT1} offset:{q*1024}")
    a(f"""s_mul_i32 s{sHs}, s{sTb}, {216*1024}
s_lshl_b32 s{sOff}, s{sCt}, 12
s_add_u32 s{sHs}, s{sHs}, s{sOff}
s_lshl_b32 s{sOff}, s{sKh}, 11
s_add_u32 s{sHs}, s{sHs}, s{sOff}
s_add_u32 s{sHs}, s{sHs}, {WS_QKV}""")
    for u in range(2):
        a(f"s_waitcnt lgkmcnt({2-2*u})")
        for r in range(8*u, 8*u+8):
            a(f"v_add_f32 v{vAcc+r}, v{vAcc+r}, v{vWF+r}")
        for r in range(4*u, 4*u+4):
            a(f"v_cvt_pk_bf16_f32 v{vWF+16+r}, v{vAcc+2*r}, v{vAcc+2*r+1}")
        a(f"buffer_store_dwordx4 {vr(vWF+16+4*u,4)}, v{vL16}, {WS}, s{sHs} offen offset:{1024*u} sc1")
    stamp(a, 6)
    a(f"""s_lshr_b32 s{sHs}, s{sTb}, 2
s_mul_i32 s{sHs}, s{sHs}, 54
s_add_u32 s{sHs}, s{sHs}, s{sCt}
s_lshl_b32 s{sHs}, s{sHs}, 7
s_add_u32 s{sHs}, s{sHs}, {F_QKV}
s_cmp_ge_u32 s{S_SLOT}, 18
s_cbranch_scc1 L_c_notu""")
    if KE:
        dma_tile(a, RB, vDU, 2304, None, NT, 0, KE)
    set_flag(a, f"s{sHs}", KE)
    stamp(a, 7)

def phase_c(a):
    vA0, vA1 = V0+1, V0+2
    vAcc = 20
    vWF = 52
    vR = 84
    vH = 92
    sKq, sJ, sOff, sHs, sHe, sLo, sLe, sLs = T+2, T+3, T+4, T+5, T+6, T+7, T+8, T+9
    sCt, sTb = S_UCT, S_UTB
    sH = T+12
    dma_tile(a, RB, vDU, 2304, None, NT, KE, 18)
    a(f"s_lshr_b32 s{sKq}, s{S_W}, 1\ns_lshl_b32 s{sJ}, s{sCt}, 1")
    mod9(a, sJ, sJ, sOff)
    a(f"""s_mul_i32 s{sHs}, s{sTb}, {216*1024}
s_mul_i32 s{sOff}, s{sKq}, {18*1024}
s_add_u32 s{sHs}, s{sHs}, s{sOff}
s_add_u32 s{sHs}, s{sHs}, {WS_QKV + 144*1024}
s_add_u32 s{sHe}, s{sHs}, {18*1024}
s_lshl_b32 s{sOff}, s{sJ}, 11
s_add_u32 s{sH}, s{sHs}, s{sOff}
s_mul_i32 s{sLs}, s{sKq}, {288*128}
s_add_u32 s{sLe}, s{sLs}, {288*128}
s_lshl_b32 s{sOff}, s{sJ}, 12
s_add_u32 s{sLo}, s{sLs}, s{sOff}
v_min_u32 v{vT0}, 17, v0
v_lshlrev_b32 v{vT0}, 7, v{vT0}
s_lshr_b32 s{sOff}, s{sTb}, 2
s_mul_i32 s{sOff}, s{sOff}, {54*128}
s_add_u32 s{sOff}, s{sOff}, {F_QKV + 36*128}""")
    stamp(a, 11)
    poll(a, vT0, f"s{sOff}", vT1)
    stamp(a, 12)
    LA = int(OPT.get('lau', 8))
    def vload(s):
        a(f"buffer_load_dwordx4 {vr(vH+4*s,4)}, v{vP16}, {WS}, s{sH} offen offset:{(s&1)*1024} sc1")
        if (s & 1) == 1 and s < 17:
            wrap_add(a, sH, 2048, sHe, sHs)
    def wread(s):
        if (s & 1) == 0:
            a(f"v_add_u32 v{vA0}, s{sLo}, v{vB0}\nv_add_u32 v{vA1}, s{sLo}, v{vB1}")
            wrap_add(a, sLo, 4096, sLe, sLs)
        trreads(a, vWF + 8*(s & 3), vA0, vA1, (s & 1)*2048)
    for s in range(LA):
        vload(s)
    a(f"s_waitcnt vmcnt({LA})\ns_barrier")
    wread(0); wread(1)
    for s in range(18):
        lg = 4*min(1, 17 - s)
        issued = min(18, s + LA)
        a(f"s_waitcnt vmcnt({issued - s - 1}) lgkmcnt({lg})")
        mfma(a, vAcc, vH+4*s, vWF+8*(s & 3), s == 0)
        if s + 2 < 18:
            wread(s + 2)
        mfma(a, vAcc+16, vH+4*s, vWF+8*(s & 3)+4, s == 0)
        if s + LA < 18:
            vload(s + LA)
    stamp(a, 13)
    a(f"""s_lshl_b32 s{sOff}, s{S_W}, 13
v_add_u32 v{vT0}, s{sOff}, v{vL16}
s_nop 8
s_barrier""")
    for q in range(8):
        a(f"ds_write_b128 v{vT0}, {vr(vAcc+4*q,4)} offset:{q*1024}")
    a(f"""s_and_b32 s{sOff}, s{S_W}, 1
s_lshl_b32 s{sOff}, s{sOff}, 13
s_lshl_b32 s{sJ}, s{sKq}, 11
s_add_u32 s{sOff}, s{sOff}, s{sJ}
v_add_u32 v{vT1}, s{sOff}, v{vL16}
s_waitcnt lgkmcnt(0)
s_barrier""")
    for j in range(4):
        a(f"""ds_read_b128 {vr(vAcc+8*j,4)}, v{vT1} offset:{j*16384}
ds_read_b128 {vr(vAcc+8*j+4,4)}, v{vT1} offset:{j*16384+1024}""")
    a(f"""s_lshr_b32 s{sJ}, s{sTb}, 3
s_mul_i32 s{sJ}, s{sJ}, 36
s_lshl_b32 s{sOff}, s{sCt}, 1
s_add_u32 s{sJ}, s{sJ}, s{sOff}
s_lshr_b32 s{sOff}, s{sKq}, 1
s_add_u32 s{sJ}, s{sJ}, s{sOff}
s_lshl_b32 s{sJ}, s{sJ}, 4
s_and_b32 s{sOff}, s{sTb}, 7
s_lshl_b32 s{sOff}, s{sOff}, 1
s_add_u32 s{sJ}, s{sJ}, s{sOff}
s_and_b32 s{sOff}, s{sKq}, 1
s_add_u32 s{sJ}, s{sJ}, s{sOff}
s_lshl_b32 s{sOff}, s{sJ}, 10
s_add_u32 s{sOff}, s{sOff}, {WS_U}
s_lshr_b32 s{sJ}, s{sTb}, 3
s_mul_i32 s{sJ}, s{sJ}, 18
s_add_u32 s{sJ}, s{sJ}, s{sCt}
s_lshl_b32 s{sJ}, s{sJ}, 2
s_bfe_u32 s{sHs}, s{sTb}, 0x20001
s_add_u32 s{sJ}, s{sJ}, s{sHs}
s_lshl_b32 s{sJ}, s{sJ}, 7
s_add_u32 s{sJ}, s{sJ}, {F_U}
s_waitcnt lgkmcnt(0)""")
    for r in range(8):
        a(f"""v_add_f32 v{vAcc+r}, v{vAcc+r}, v{vAcc+8+r}
v_add_f32 v{vAcc+16+r}, v{vAcc+16+r}, v{vAcc+24+r}""")
    for r in range(8):
        a(f"v_add_f32 v{vAcc+r}, v{vAcc+r}, v{vAcc+16+r}")
    for r in range(4):
        a(f"v_cvt_pk_bf16_f32 v{vR+r}, v{vAcc+2*r}, v{vAcc+2*r+1}")
    a(f"buffer_store_dwordx4 {vr(vR,4)}, v{vL16}, {WS}, s{sOff} offen sc1")
    set_flag(a, f"s{sJ}")
    a("s_branch L_c_done")
    a("L_c_notu:")
    set_flag(a, f"s{sHs}")
    stamp(a, 7)
    a(f"s_cmp_ge_u32 s{S_SLOT}, 26\ns_cbranch_scc1 L_c_done")
    sQb, sKb, sK, sQ, sKs, sQs, sKt = T, T+1, T+5, T+6, T+7, T+8, T+9
    vS = 56
    RING = 15
    a(f"""s_sub_u32 s{sJ}, s{S_SLOT}, 18
s_and_b32 s{sKq}, s{S_W}, 3
s_and_b32 s{sQb}, s{S_G}, 1
s_lshl_b32 s{sQb}, s{sQb}, 2
s_and_b32 s{sOff}, s{sJ}, 3
s_add_u32 s{sQb}, s{sQb}, s{sOff}
s_and_b32 s{sKt}, s{S_G}, 2
s_lshr_b32 s{sOff}, s{sJ}, 2
s_add_u32 s{sKt}, s{sKt}, s{sOff}
s_lshl_b32 s{sKb}, s{sKt}, 1
s_lshr_b32 s{sOff}, s{S_G}, 2
s_lshl_b32 s{sOff}, s{sOff}, 3
s_add_u32 s{sQb}, s{sQb}, s{sOff}
s_add_u32 s{sKb}, s{sKb}, s{sOff}
s_mul_i32 s{sKs}, s{sKb}, {216*1024}
s_mul_i32 s{sQs}, s{sQb}, {216*1024}
s_mul_i32 s{sOff}, s{sKq}, {18*1024}
s_add_u32 s{sKs}, s{sKs}, s{sOff}
s_add_u32 s{sQs}, s{sQs}, s{sOff}
s_add_u32 s{sKs}, s{sKs}, {WS_QKV + 72*1024}
s_add_u32 s{sQs}, s{sQs}, {WS_QKV}
s_lshl_b32 s{sH}, s{sJ}, 11
v_min_u32 v{vT0}, 17, v{vTok}
v_lshlrev_b32 v{vT0}, 7, v{vT0}
s_lshr_b32 s{sOff}, s{sKb}, 2
s_mul_i32 s{sOff}, s{sOff}, {54*128}
s_add_u32 s{sOff}, s{sOff}, {18*128}
s_lshr_b32 s{T+13}, s{sQb}, 2
s_mul_i32 s{T+13}, s{T+13}, {54*128}
s_sub_u32 s{sOff}, s{sOff}, s{T+13}
v_mul_lo_u32 v{vT1}, v{vHF}, s{sOff}
v_add_u32 v{vT0}, v{vT0}, v{vT1}
v_add_u32 v{vT0}, s{T+13}, v{vT0}
v_add_u32 v{vT2}, {216*1024}, v{vP16}
s_mov_b32 s{sOff}, {F_QKV}""")
    stamp(a, 11)
    poll(a, vT0, f"s{sOff}", vT1)
    stamp(a, 12)
    lsi = a.label("sidle")
    a(f"s_cmp_ge_u32 s{S_W}, 4\ns_cbranch_scc1 {lsi}")
    LA = int(OPT.get('las', 8))
    assert LA < RING
    a(f"s_movk_i32 s{T+13}, 0\ns_movk_i32 s{T+14}, {18*1024}")
    def sload(s):
        r = vS + 12*(s % RING)
        if (s & 1) == 0:
            a(f"s_add_u32 s{sK}, s{sKs}, s{sH}\ns_add_u32 s{sQ}, s{sQs}, s{sH}")
            wrap_add(a, sH, 2048, T+14, T+13)
        a(f"""buffer_load_dwordx4 {vr(r,4)}, v{vL16}, {WS}, s{sQ} offen offset:{(s&1)*1024} sc1
buffer_load_dwordx4 {vr(r+4,4)}, v{vP16}, {WS}, s{sK} offen offset:{(s&1)*1024} sc1
buffer_load_dwordx4 {vr(r+8,4)}, v{vT2}, {WS}, s{sK} offen offset:{(s&1)*1024} sc1""")
    for s in range(LA):
        sload(s)
    for s in range(18):
        issued = min(18, s + LA)
        r = vS + 12*(s % RING)
        a(f"s_waitcnt vmcnt({3*(issued - s - 1) + 1})")
        mfma(a, vAcc, r+4, r, s == 0)
        a(f"s_waitcnt vmcnt({3*(issued - s - 1)})")
        mfma(a, vAcc+16, r+8, r, s == 0)
        if s + LA < 18:
            sload(s + LA)
    stamp(a, 13)
    QS, HS, PSZ = 1056, 528, 8448
    a(f"""s_mul_i32 s{sOff}, s{S_W}, {PSZ}
v_lshl_add_u32 v{vT0}, v{vHF}, 4, v{vL16}
v_add_u32 v{vT0}, s{sOff}, v{vT0}
s_nop 11""")
    for q in range(8):
        a(f"ds_write_b128 v{vT0}, {vr(vAcc+4*q,4)} offset:{q*QS}")
    a(f"""{lsi}:
v_bfe_u32 v{vT1}, v0, 2, 2
v_and_b32 v{vT2}, 1, v0
v_lshl_add_u32 v{vT1}, v{vT1}, 1, v{vT2}
v_mul_u32_u24 v{vT1}, {QS}, v{vT1}
v_bfe_u32 v{vT2}, v0, 1, 1
v_mul_u32_u24 v{vT2}, {HS}, v{vT2}
v_lshrrev_b32 v{vT0}, 4, v0
s_lshl_b32 s{sOff}, s{S_W}, 2
v_add_u32 v{vT0}, s{sOff}, v{vT0}
v_lshl_add_u32 v{vT1}, v{vT0}, 4, v{vT1}
v_add_u32 v{vT1}, v{vT1}, v{vT2}
v_and_b32 v{vT2}, 15, v0
v_lshlrev_b32 v{vT2}, 3, v{vT2}
v_lshl_add_u32 v{vT2}, v{vT0}, 9, v{vT2}
s_waitcnt lgkmcnt(0)
s_barrier""")
    for j in range(4):
        a(f"ds_read_b128 {vr(vAcc+4*j,4)}, v{vT1} offset:{j*PSZ}")
    a(f"""s_lshl_b32 s{sJ}, s{sQb}, 14
s_lshl_b32 s{sOff}, s{sKt}, 7
s_add_u32 s{sJ}, s{sJ}, s{sOff}
s_add_u32 s{sJ}, s{sJ}, {WS_L}
s_lshl_b32 s{sK}, s{sQb}, 2
s_add_u32 s{sK}, s{sK}, s{sKt}
s_lshl_b32 s{sK}, s{sK}, 7
s_add_u32 s{sK}, s{sK}, {F_L}
s_waitcnt lgkmcnt(0)""")
    for r in range(4):
        a(f"""v_add_f32 v{vAcc+r}, v{vAcc+r}, v{vAcc+4+r}
v_add_f32 v{vAcc+8+r}, v{vAcc+8+r}, v{vAcc+12+r}""")
    for r in range(4):
        a(f"v_add_f32 v{vAcc+r}, v{vAcc+r}, v{vAcc+8+r}")
    sc = struct.unpack('<I', struct.pack('<f', D ** -0.5))[0]
    vR2 = 52
    for r in range(2):
        a(f"v_cvt_pk_bf16_f32 v{vR2+r}, v{vAcc+2*r}, v{vAcc+2*r+1}")
        unpack(a, vAcc+2*r, vAcc+2*r+1, vR2+r)
        a(f"""v_mul_f32 v{vAcc+2*r}, {hex(sc)}, v{vAcc+2*r}
v_mul_f32 v{vAcc+2*r+1}, {hex(sc)}, v{vAcc+2*r+1}
v_cvt_pk_bf16_f32 v{vR2+r}, v{vAcc+2*r}, v{vAcc+2*r+1}""")
    a(f"buffer_store_dwordx2 {vr(vR2,2)}, v{vT2}, {WS}, s{sJ} offen sc1")
    set_flag(a, f"s{sK}")
    a("L_c_done:")
    stamp(a, 14)

def phase_d(a):
    sQt, sCt, sCb, sKh, sOff, sXo, sJ, sU, sB, sCol = T, T+1, T+2, T+3, T+4, T+5, T+6, T+7, T+8, T+9
    vXo, vMx, vS, vLa, vPa, vLw = V0, V0+1, V0+2, V0+3, V0+4, V0+5
    vLd = 24
    vX = 32
    vG = 36
    vF = 44
    vR = 60
    vAcc = 68
    vU = 84
    vP = 116
    PS = 1056
    L_P, L_EX = 0, 20480
    srd(a, R_A, S_X, SZ_X)
    srd(a, R_B, S_OUT, SZ_X)
    a(f"""s_sub_u32 s{sJ}, 26, s{S_SLOT}
s_cmp_ge_u32 s{sJ}, 18
s_cbranch_scc1 L_d_idle
s_and_b32 s{sOff}, s{S_G}, 3
s_mul_i32 s{sOff}, s{sOff}, 18
s_add_u32 s{sOff}, s{sOff}, s{sJ}
s_lshr_b32 s{sCt}, s{sOff}, 3
s_and_b32 s{sJ}, s{sOff}, 7
s_lshr_b32 s{sB}, s{S_G}, 2
s_lshl_b32 s{sQt}, s{sB}, 3
s_add_u32 s{sQt}, s{sQt}, s{sJ}
s_and_b32 s{sCb}, s{S_W}, 3
s_lshr_b32 s{sKh}, s{S_W}, 2
s_lshl_b32 s{sCol}, s{sCt}, 7
s_lshl_b32 s{sOff}, s{sCb}, 5
s_add_u32 s{sCol}, s{sCol}, s{sOff}
s_lshl_b32 s{sOff}, s{sKh}, 4
s_add_u32 s{sCol}, s{sCol}, s{sOff}
s_mul_i32 s{sXo}, s{sQt}, {32*2304}
s_lshl_b32 s{sOff}, s{sCol}, 1
s_add_u32 s{sXo}, s{sXo}, s{sOff}
v_mul_u32_u24 v{vXo}, 2304, v{vTok}
v_lshl_add_u32 v{vXo}, v{vHF}, 4, v{vXo}
buffer_load_dwordx4 {vr(vX,4)}, v{vXo}, {RA}, s{sXo} offen
s_mul_i32 s{sU}, s{sB}, 36
s_lshl_b32 s{sOff}, s{sCt}, 2
s_add_u32 s{sU}, s{sU}, s{sOff}
s_add_u32 s{sU}, s{sU}, s{sCb}
s_lshl_b32 s{sU}, s{sU}, 4
s_lshl_b32 s{sOff}, s{sKh}, 3
s_add_u32 s{sU}, s{sU}, s{sOff}
v_lshlrev_b32 v{vT0}, 7, v0
s_lshl_b32 s{sOff}, s{sQt}, 9
s_add_u32 s{sOff}, s{sOff}, {F_L}
v_add_u32 v{vT1}, s{sOff}, v{vT0}
s_mul_i32 s{sOff}, s{sB}, 18
s_lshl_b32 s{T+10}, s{sCt}, 1
s_add_u32 s{sOff}, s{sOff}, s{T+10}
s_lshl_b32 s{sOff}, s{sOff}, 9
s_add_u32 s{sOff}, s{sOff}, {F_U - 512}
v_add_u32 v{vT2}, s{sOff}, v{vT0}
v_cmp_lt_u32 vcc, 3, v0
s_lshl_b32 s{sOff}, s{sCt}, 8
s_add_u32 s{sOff}, s{sOff}, {F_G}
v_cndmask_b32 v{vT1}, v{vT1}, v{vT2}, vcc
v_and_b32 v{vT2}, 128, v{vT0}
v_add_u32 v{vT2}, s{sOff}, v{vT2}
v_cmp_lt_u32 vcc, 11, v0
s_lshl_b32 s{sU}, s{sU}, 10
s_add_u32 s{sU}, s{sU}, {WS_U}
v_cndmask_b32 v{vT1}, v{vT1}, v{vT2}, vcc
v_and_b32 v{vT2}, 15, v0
v_lshrrev_b32 v{vT0}, 4, v0
s_lshl_b32 s{sOff}, s{S_W}, 2
v_add_u32 v{vT0}, s{sOff}, v{vT0}
v_lshlrev_b32 v{vLa}, 9, v{vT0}
v_lshl_add_u32 v{vLa}, v{vT2}, 4, v{vLa}
v_mul_u32_u24 v{vLw}, {PS//2}, v{vT2}
v_lshl_add_u32 v{vLw}, v{vT0}, 4, v{vLw}
v_lshl_add_u32 v{vPa}, v{vHF}, 4, v{vL16}""")
    poll(a, vT1, "0", vT2)
    stamp(a, 8)
    a(f"""s_lshl_b32 s{sOff}, s{sQt}, 14
s_add_u32 s{sOff}, s{sOff}, {WS_L}
buffer_load_dwordx4 {vr(vLd,4)}, v{vLa}, {WS}, s{sOff} offen sc1
buffer_load_dwordx4 {vr(vLd+4,4)}, v{vLa}, {WS}, s{sOff} offen offset:256 sc1
s_barrier""")
    for s in range(8):
        a(f"""s_add_u32 s{T+10}, s{sJ}, {s}
s_and_b32 s{T+10}, s{T+10}, 7
s_lshl_b32 s{T+10}, s{T+10}, 10
s_add_u32 s{T+10}, s{T+10}, s{sU}
buffer_load_dwordx4 {vr(vU+4*s,4)}, v{vL16}, {WS}, s{T+10} offen sc1""")
    a(f"""s_mul_i32 s{sOff}, s{sB}, 4608
s_lshl_b32 s{T+10}, s{sCol}, 2
s_add_u32 s{sOff}, s{sOff}, s{T+10}
s_add_u32 s{sOff}, s{sOff}, {WS_GATE}
v_lshlrev_b32 v{vT0}, 5, v{vHF}
buffer_load_dwordx4 {vr(vG,4)}, v{vT0}, {WS}, s{sOff} offen sc1
buffer_load_dwordx4 {vr(vG+4,4)}, v{vT0}, {WS}, s{sOff} offen offset:16 sc1
s_waitcnt vmcnt(10)""")
    stamp(a, 9)
    for i in range(8):
        unpack(a, vF+2*i, vF+2*i+1, vLd+i)
    a(f"v_max3_f32 v{vMx}, v{vF}, v{vF+1}, v{vF+2}")
    for i in range(3, 15, 2):
        a(f"v_max3_f32 v{vMx}, v{vMx}, v{vF+i}, v{vF+i+1}")
    a(f"v_max_f32 v{vMx}, v{vMx}, v{vF+15}")
    for m in ("quad_perm:[1,0,3,2]", "quad_perm:[2,3,0,1]", "row_half_mirror", "row_mirror"):
        a(f"s_nop 1\nv_max_f32_dpp v{vMx}, v{vMx}, v{vMx} {m} row_mask:0xf bank_mask:0xf")
    for i in range(16):
        a(f"v_sub_f32 v{vF+i}, v{vF+i}, v{vMx}")
    for i in range(16):
        a(f"v_mul_f32 v{vF+i}, {hex(LOG2E)}, v{vF+i}")
    for i in range(16):
        a(f"v_exp_f32 v{vF+i}, v{vF+i}")
    a(f"s_nop 0\nv_add_f32 v{vS}, v{vF}, v{vF+1}")
    for i in range(2, 16):
        a(f"v_add_f32 v{vS}, v{vS}, v{vF+i}")
    for m in ("quad_perm:[1,0,3,2]", "quad_perm:[2,3,0,1]", "row_half_mirror", "row_mirror"):
        a(f"s_nop 1\nv_add_f32_dpp v{vS}, v{vS}, v{vS} {m} row_mask:0xf bank_mask:0xf")
    a(f"v_rcp_f32 v{vS}, v{vS}\ns_nop 0")
    for i in range(16):
        a(f"v_mul_f32 v{vF+i}, v{vF+i}, v{vS}")
    for i in range(8):
        a(f"v_cvt_pk_bf16_f32 v{vLd+i}, v{vF+2*i}, v{vF+2*i+1}")
    a(f"""ds_write_b128 v{vLw}, {vr(vLd,4)} offset:{L_P}
ds_write_b128 v{vLw}, {vr(vLd+4,4)} offset:{L_P+8*PS}
s_mul_i32 s{sOff}, s{sKh}, {8*PS}
v_add_u32 v{vPa}, s{sOff}, v{vPa}
s_waitcnt lgkmcnt(0)
s_barrier""")
    for s in range(8):
        a(f"""s_add_u32 s{T+10}, s{sJ}, {s}
s_and_b32 s{T+10}, s{T+10}, 7
s_mul_i32 s{T+10}, s{T+10}, {PS}
v_add_u32 v{vT0}, s{T+10}, v{vPa}
ds_read_b128 {vr(vP+4*s,4)}, v{vT0} offset:{L_P}""")
    for s in range(8):
        a(f"s_waitcnt vmcnt({2+7-s}) lgkmcnt({7-s})")
        mfma(a, vAcc, vU+4*s, vP+4*s, s == 0)
    stamp(a, 10)
    lk1 = a.label("kh1"); lj = a.label("j")
    a(f"""s_lshl_b32 s{sOff}, s{S_W}, 11
v_add_u32 v{vT0}, s{sOff}, v{vL16}
v_xor_b32 v{vT1}, {4*2048}, v{vT0}
s_nop 10
s_cmp_lg_u32 s{sKh}, 0
s_cbranch_scc1 {lk1}
ds_write_b128 v{vT0}, {vr(vAcc+8,4)} offset:{L_EX}
ds_write_b128 v{vT0}, {vr(vAcc+12,4)} offset:{L_EX+1024}
s_branch {lj}
{lk1}:
ds_write_b128 v{vT0}, {vr(vAcc,4)} offset:{L_EX}
ds_write_b128 v{vT0}, {vr(vAcc+4,4)} offset:{L_EX+1024}""")
    for r in range(8):
        a(f"v_mov_b32 v{vAcc+r}, v{vAcc+8+r}")
    a(f"""{lj}:
s_waitcnt lgkmcnt(0)
s_barrier
ds_read_b128 {vr(vR,4)}, v{vT1} offset:{L_EX}
ds_read_b128 {vr(vR+4,4)}, v{vT1} offset:{L_EX+1024}
s_waitcnt vmcnt(0) lgkmcnt(0)""")
    for r in range(8):
        a(f"v_add_f32 v{vAcc+r}, v{vAcc+r}, v{vR+r}")
    for i in range(4):
        lo, hi = vAcc+2*i, vAcc+2*i+1
        a(f"v_cvt_pk_bf16_f32 v{vR+i}, v{lo}, v{hi}")
        unpack(a, lo, hi, vR+i)
        a(f"""v_mul_f32 v{lo}, v{lo}, v{vG+2*i}
v_mul_f32 v{hi}, v{hi}, v{vG+2*i+1}
v_cvt_pk_bf16_f32 v{vR+i}, v{lo}, v{hi}""")
        unpack(a, lo, hi, vR+i)
        unpack(a, vF, vF+1, vX+i)
        a(f"""v_add_f32 v{lo}, v{lo}, v{vF}
v_add_f32 v{hi}, v{hi}, v{vF+1}
v_cvt_pk_bf16_f32 v{vR+i}, v{lo}, v{hi}""")
    a(f"""buffer_store_dwordx4 {vr(vR,4)}, v{vXo}, {RB}, s{sXo} offen
s_branch L_fin
L_d_idle:
s_cmp_lg_u32 s2, {NO*8}
s_cbranch_scc1 L_fin""")
    lp = a.label("ep"); ld = a.label("epd")
    a(f"""s_lshl_b32 s{sOff}, s{S_W}, 6
v_add_u32 v{vT0}, s{sOff}, v0
v_min_u32 v{vT0}, 225, v{vT0}
v_lshlrev_b32 v{vT0}, 7, v{vT0}
s_movk_i32 s{sOff}, {F_L}
{lp}:
s_sleep 8
buffer_load_dword v{vLd}, v{vT0}, {WS}, s{sOff} offen sc1
s_waitcnt vmcnt(0)
v_cmp_ne_u32 vcc, s{S_TAG}, v{vLd}
s_cbranch_vccz {ld}
s_sub_u32 s{S_TO}, s{S_TO}, 1
s_cmp_lg_u32 s{S_TO}, 0
s_cbranch_scc1 {lp}
{ld}:
s_mov_b32 s{sOff}, {EPOCH}""")
    set_flag(a, f"s{sOff}")
    a("L_fin:")

def epilogue(a):
    if STAMP:
        a(f"""s_waitcnt vmcnt(0) lgkmcnt(0)
s_cmp_lg_u32 s{S_W}, {OPT.get('stw', 0)}
s_cbranch_scc1 L_end
{CLK} s[{S_ST+30}:{S_ST+31}]
s_memtime s[98:99]
s_waitcnt lgkmcnt(0)
s_sub_u32 s98, s98, s96""")
        for i in range(16):
            a(f"v_mov_b32 v{16+i}, s{S_ST+2*i}")
        a(f"""v_mov_b32 v32, s98
s_lshl_b32 s{T}, s2, 7
s_add_u32 s{T}, s{T}, {WS_STAMP}
v_mov_b32 v1, 0
s_mov_b64 exec, 1""")
        for i in range(4):
            a(f"buffer_store_dwordx4 v[{16+4*i}:{19+4*i}], v1, {WS}, s{T} offen offset:{16*i}")
        a(f"buffer_store_dword v32, v1, {WS}, s{T} offen offset:64")
    a("L_end:\ns_endpgm")

def main():
    a = Asm()
    a.raw("; @launch grid=(256,1,1) block=(512,1,1) lds=163840")
    a.raw('.amdgcn_target "amdgcn-amd-amdhsa--gfx950"\n.text')
    prologue(a)
    a(f"s_cmp_lt_u32 s{S_SLOT}, {NO}\ns_cbranch_scc1 L_owner")
    phase_b(a)
    phase_c(a)
    phase_d(a)
    epilogue(a)
    a("L_owner:")
    phase_owner(a)
    out = a.text() + kd(NAME, 244, 102)
    path = [x for x in sys.argv[1:] if not x.startswith('--')][0]
    open(path, 'w').write(out)
main()
```

```python
import sys, struct
from asmlib import *

OPT = dict(la='3', nt='nt', map='all', rot='1')
for a_ in sys.argv[1:]:
    if a_.startswith('--'):
        k, _, v = a_[2:].partition('=')
        OPT[k] = v
STAMP = 'stamp' in OPT
NT = OPT['nt']
CLK = "s_memtime" if 'cyc' in OPT else "s_memrealtime"

NAME = "standalone__dit_adaln_block__diffusion_kernel"
D = 1152
SZ_X = 512*D*2; SZ_C = 2*D*2; SZ_WQKV = D*3*D*2; SZ_WO = D*D*2; SZ_WMOD = D*6*D*2
SZ_WS = 1 << 28
F_STAT = 0x0
F_H = 0x2000
F_L = 0x4000
F_U = F_L + 64*128
F_G = F_U + 144*128
F_QKV = 0xC000
EPOCH = 0x13000
WS_GATE = 0x14000
WS_H = 0x20000
WS_QKV = 0x140000
WS_L = 0x4A0000
WS_U = 0x500000
WS_PART = 0x620000
WS_STAMP = 0x700000
LOG2E = 0x3fb8aa3b

S_W, S_TAG, S_G, S_SLOT, S_TO, S_TK = 3, 4, 5, 6, 7, 8
S_X, S_C, S_WQKV, S_WO, S_WMOD, S_OUT, S_DBG, S_WS = 16, 18, 20, 22, 24, 26, 28, 30
R_A, R_B, R_C, R_WS = 32, 36, 40, 44
T = 48
S_ST = 64
WS = f"s[{R_WS}:{R_WS+3}]"
RA = f"s[{R_A}:{R_A+3}]"; RB = f"s[{R_B}:{R_B+3}]"; RC = f"s[{R_C}:{R_C+3}]"
vL16, vP16, vB0, vB1, vCH, vR8, vHF, vTok = 1, 2, 3, 4, 5, 6, 7, 8
vT0, vT1, vT2, vT3 = 9, 10, 11, 12
vTAG = 13
V0 = 16

L_MISC = 147456
L_SIL = L_MISC
L_RED = L_SIL + 4608
L_FIN = L_RED + 4096
L_ROLE = L_FIN + 4096
L_STC = L_ROLE + 16
NO = 5

def srd(a, r, ptr, size):
    a(f"""s_mov_b32 s{r}, s{ptr}
s_and_b32 s{r+1}, s{ptr+1}, 0xffff
s_mov_b32 s{r+2}, {hex(size)}
s_mov_b32 s{r+3}, 0x20000""")

def stamp(a, i):
    if STAMP:
        a(f"{CLK} s[{S_ST+2*i}:{S_ST+2*i+1}]")

def unpack(a, lo, hi, src):
    a(f"v_lshlrev_b32 v{lo}, 16, v{src}\nv_and_b32 v{hi}, 0xffff0000, v{src}")

def round_bf16(a, v):
    a(f"v_cvt_pk_bf16_f32 v{v}, v{v}, v{v}\nv_lshlrev_b32 v{v}, 16, v{v}")

def mfma(a, acc, A, B, first=False):
    c = "0" if first else vr(acc, 16)
    a(f"v_mfma_f32_32x32x16_bf16 {vr(acc,16)}, {vr(A,4)}, {vr(B,4)}, {c}")

def wrap_add(a, s, step, s_end, s_start):
    a(f"""s_add_u32 s{s}, s{s}, {step}
s_cmp_eq_u32 s{s}, s{s_end}
s_cselect_b32 s{s}, s{s_start}, s{s}""")

def mod9(a, dst, src, tmp):
    a(f"""s_mul_i32 s{tmp}, s{src}, 57
s_lshr_b32 s{tmp}, s{tmp}, 9
s_mul_i32 s{tmp}, s{tmp}, 9
s_sub_u32 s{dst}, s{src}, s{tmp}""")

def poll(a, vaddr, soff, vtmp):
    l = a.label("poll"); d = a.label("polld")
    a(f"""s_cmp_lg_u32 s{S_W}, 0
s_cbranch_scc1 {d}
{l}:
buffer_load_dword v{vtmp}, v{vaddr}, {WS}, {soff} offen sc1
s_waitcnt vmcnt(0)
v_cmp_ne_u32 vcc, s{S_TAG}, v{vtmp}
s_cbranch_vccz {d}
s_sleep {OPT.get('sleep', 2)}
s_sub_u32 s{S_TO}, s{S_TO}, 1
s_cmp_lg_u32 s{S_TO}, 0
s_cbranch_scc1 {l}
s_mov_b32 s{S_TO}, 1
{d}:
s_barrier""")

def gpoll(a, loads, tagregs):
    l = a.label("gp"); d = a.label("gpd")
    a(f"{l}:")
    loads()
    a(f"s_waitcnt vmcnt(0)\nv_cmp_ne_u32 vcc, s{S_TAG}, v{tagregs[0]}")
    for r in tagregs[1:]:
        a(f"v_cmp_ne_u32 s[{T+14}:{T+15}], s{S_TAG}, v{r}\ns_or_b64 vcc, vcc, s[{T+14}:{T+15}]")
    a(f"""s_cbranch_vccz {d}
s_sleep {OPT.get('gsleep', 2)}
s_sub_u32 s{S_TO}, s{S_TO}, 1
s_cmp_lg_u32 s{S_TO}, 0
s_cbranch_scc1 {l}
s_mov_b32 s{S_TO}, 1
{d}:""")

def raw_flag(a, soff):
    a(f"""v_mov_b32 v{vT3}, 0
s_mov_b64 exec, 1
buffer_store_dword v{vTAG}, v{vT3}, {WS}, {soff} offen sc1
s_mov_b64 exec, -1""")

def set_flag(a, soff, younger=0):
    d = a.label("fl")
    a(f"""s_waitcnt vmcnt({younger})
s_barrier
s_cmp_lg_u32 s{S_W}, 0
s_cbranch_scc1 {d}""")
    raw_flag(a, soff)
    a(f"{d}:")

def trreads(a, wf, b0, b1, off):
    a(f"""ds_read_b64_tr_b16 {vr(wf,2)}, v{b0} offset:{off}
ds_read_b64_tr_b16 {vr(wf+2,2)}, v{b0} offset:{off+512}
ds_read_b64_tr_b16 {vr(wf+4,2)}, v{b1} offset:{off}
ds_read_b64_tr_b16 {vr(wf+6,2)}, v{b1} offset:{off+512}""")

def dma_tile(a, srdname, vD, pitch, s_rot, flags, n0=0, n1=18):
    sN, sO = T+10, T+11
    if s_rot is None:
        a(f"s_add_u32 s{sN}, s{S_W}, {8*n0}")
    else:
        a(f"s_lshl_b32 s{sN}, s{s_rot}, 3\ns_add_u32 s{sN}, s{sN}, s{S_W}")
    for n in range(n0, n1):
        a(f"""s_lshl_b32 m0, s{sN}, 10
s_mul_i32 s{sO}, s{sN}, {8*pitch}
buffer_load_dwordx4 v{vD}, {srdname}, s{sO} offen {flags} lds""")
        if n < n1-1:
            a(f"s_add_u32 s{sN}, s{sN}, 8")
            if s_rot is not None:
                a(f"""s_sub_u32 s{sO}, s{sN}, 144
s_cmp_ge_u32 s{sN}, 144
s_cselect_b32 s{sN}, s{sO}, s{sN}""")

def wave_sum(a, v, sdst):
    for m in ("quad_perm:[1,0,3,2]", "quad_perm:[2,3,0,1]", "row_half_mirror", "row_mirror"):
        a(f"s_nop 1\nv_add_f32_dpp v{v}, v{v}, v{v} {m} row_mask:0xf bank_mask:0xf")
    a(f"s_nop 1\nv_add_f32_dpp v{v}, v{v}, v{v} row_bcast:15 row_mask:0xa bank_mask:0xf")
    a(f"s_nop 1\nv_add_f32_dpp v{v}, v{v}, v{v} row_bcast:31 row_mask:0xc bank_mask:0xf")
    a(f"s_nop 1\nv_readlane_b32 s{sdst}, v{v}, 63\ns_nop 1")

def silu8(a, f, t):
    for i in range(8):
        a(f"v_mul_f32 v{t+i}, 0xbfb8aa3b, v{f+i}")
    for i in range(8):
        a(f"v_exp_f32 v{t+i}, v{t+i}")
    for i in range(8):
        a(f"v_add_f32 v{t+i}, 1.0, v{t+i}")
    for i in range(8):
        a(f"v_rcp_f32 v{t+i}, v{t+i}")
    for i in range(8):
        a(f"v_mul_f32 v{f+i}, v{f+i}, v{t+i}")

def lane_consts(a):
    a(f"""v_lshrrev_b32 v{vR8}, 3, v0
v_and_b32 v{vP16}, 0x33, v0
v_and_b32 v{vT0}, 4, v0
v_lshl_or_b32 v{vP16}, v{vT0}, 1, v{vP16}
v_and_b32 v{vT0}, 8, v0
v_lshrrev_b32 v{vT0}, 1, v{vT0}
v_or_b32 v{vP16}, v{vP16}, v{vT0}
v_lshlrev_b32 v{vP16}, 4, v{vP16}
v_lshrrev_b32 v{vT0}, 2, v0
v_and_b32 v{vT0}, 4, v{vT0}
v_and_b32 v{vCH}, 7, v0
v_xor_b32 v{vCH}, v{vCH}, v{vT0}
v_lshlrev_b32 v{vB0}, 10, v{vHF}
v_and_b32 v{vT0}, 12, v0
v_lshl_or_b32 v{vB0}, v{vT0}, 5, v{vB0}
v_and_b32 v{vT0}, 8, v0
v_lshl_or_b32 v{vB0}, v{vT0}, 3, v{vB0}
v_and_b32 v{vT0}, 16, v0
v_lshl_or_b32 v{vB0}, v{vT0}, 1, v{vB0}
v_and_b32 v{vT0}, 1, v0
v_lshl_or_b32 v{vB0}, v{vT0}, 4, v{vB0}
v_and_b32 v{vT0}, 2, v0
v_lshl_or_b32 v{vB0}, v{vT0}, 2, v{vB0}
v_xor_b32 v{vB1}, 64, v{vB0}""")

vTK = 15
def get_tag(a):
    a(f"""s_waitcnt lgkmcnt(0)
s_mul_i32 s{S_TAG}, s{S_TAG}, 1664525
s_add_u32 s{S_TAG}, s{S_TAG}, 1013904223
v_mov_b32 v{vTAG}, s{S_TAG}""")

def ticket_issue(a, base, scalar=False):
    d = a.label("tki")
    if scalar:
        a(f"""s_cmp_lg_u32 s{S_W}, 7
s_cbranch_scc1 {d}
s_mul_i32 s{T+15}, s{S_G}, 0x88
s_and_b32 s{T+15}, s{T+15}, 0xb0
s_add_u32 s{T+15}, s{T+15}, {base}
s_mov_b32 s{S_TK}, 1
s_atomic_add s{S_TK}, s[{S_DBG}:{S_DBG+1}], s{T+15} glc
{d}:""")
        return
    srd(a, R_B, S_DBG, 256)
    a(f"""s_cmp_lg_u32 s{S_W}, 7
s_cbranch_scc1 {d}
s_mul_i32 s{T+15}, s{S_G}, 0x88
s_and_b32 s{T+15}, s{T+15}, 0xb0
v_mov_b32 v{vTK}, 1
v_mov_b32 v{vT3}, 0
s_mov_b64 exec, 1
buffer_atomic_add v{vTK}, v{vT3}, {RB}, s{T+15} offen offset:{base} sc0
s_mov_b64 exec, -1
{d}:""")

def role_write(a, base, cap, first, scalar=False):
    d = a.label("rw"); l = a.label("tk"); ok = a.label("tkok")
    a(f"""s_cmp_lg_u32 s{S_W}, 7
s_cbranch_scc1 {d}""")
    if not scalar:
        a(f"""s_waitcnt vmcnt(0)
v_readfirstlane_b32 s{S_TK}, v{vTK}
s_nop 3""")
    a(f"""{l}:
s_waitcnt lgkmcnt(0)
s_cmp_lt_u32 s{S_TK}, {cap}
s_cbranch_scc1 {ok}
s_add_u32 s{S_G}, s{S_G}, 1
s_and_b32 s{S_G}, s{S_G}, 7
s_mul_i32 s{T+15}, s{S_G}, 0x88
s_and_b32 s{T+15}, s{T+15}, 0xb0
s_add_u32 s{T+15}, s{T+15}, {base}
s_mov_b32 s{S_TK}, 1
s_atomic_add s{S_TK}, s[{S_DBG}:{S_DBG+1}], s{T+15} glc
s_sub_u32 s{S_TO}, s{S_TO}, 1
s_cmp_lg_u32 s{S_TO}, 0
s_cbranch_scc1 {l}
s_waitcnt lgkmcnt(0)
s_mov_b32 s{S_TO}, 1
s_mov_b32 s{S_TK}, 0
{ok}:
s_add_u32 s{S_TK}, s{S_TK}, {first}
s_lshl_b32 s{S_TK}, s{S_TK}, 3
s_or_b32 s{S_TK}, s{S_TK}, s{S_G}
v_mov_b32 v{vT0}, s{S_TK}
v_mov_b32 v{vT1}, {L_ROLE}
ds_write_b32 v{vT1}, v{vT0}
s_waitcnt lgkmcnt(0)
{d}:""")

def role_read(a):
    a(f"""v_mov_b32 v{vT1}, {L_ROLE}
ds_read_b32 v{vT0}, v{vT1}
s_waitcnt lgkmcnt(0)
v_readfirstlane_b32 s{S_TK}, v{vT0}
s_nop 3
s_and_b32 s{S_TK}, s{S_TK}, 255
s_and_b32 s{S_G}, s{S_TK}, 7
s_lshr_b32 s{S_SLOT}, s{S_TK}, 3""")

NPF = 5
def w_prefetch(a, vdst, ndummy):
    if 'nopf' in OPT:
        return 0
    srd(a, R_A, S_WQKV, SZ_WQKV)
    a(f"""s_getreg_b32 s{T+12}, hwreg(HW_REG_HW_ID, 13, 2)
s_getreg_b32 s{T+13}, hwreg(HW_REG_HW_ID, 8, 3)
s_lshl_b32 s{T+12}, s{T+12}, 3
s_or_b32 s{T+12}, s{T+12}, s{T+13}
s_mul_i32 s{T+12}, s{T+12}, 36
s_add_u32 s{T+12}, s{T+12}, s{S_W}
s_mul_i32 s{T+12}, s{T+12}, 6912
s_mul_i32 s{T+13}, s{S_G}, 27
s_lshr_b32 s{T+13}, s{T+13}, 2
s_min_u32 s{T+13}, s{T+13}, 46
s_lshl_b32 s{T+13}, s{T+13}, 7
s_add_u32 s{T+12}, s{T+12}, s{T+13}""")
    lsk = a.label("pfsk")
    a(f"s_cmp_eq_u32 s{S_W}, 7\ns_cbranch_scc1 {lsk}")
    for n in range(NPF):
        a(f"buffer_load_dwordx4 {vr(vdst+4*n,4)}, v{vL16}, {RA}, s{T+12} offen {NT}")
        if n < NPF-1:
            a(f"s_add_u32 s{T+12}, s{T+12}, {7*6912}")
    lj = a.label("pfj")
    a(f"s_branch {lj}\n{lsk}:\ns_mov_b32 s{T+12}, {EPOCH}\nv_mov_b32 v{vT3}, 0")
    for n in range(ndummy):
        a(f"buffer_load_dword v{vdst+n}, v{vT3}, {WS}, s{T+12} offen")
    a(f"{lj}:")
    return NPF

def prologue(a):
    a.raw(f".globl {NAME}\n.p2align 8\n.type {NAME},@function\n{NAME}:")
    a(f"""s_cmp_ge_u32 s2, 256
s_cbranch_scc1 L_end
s_load_dwordx16 s[16:31], s[0:1], 0""")
    if STAMP:
        a(f"{CLK} s[{S_ST}:{S_ST+1}]\ns_memtime s[96:97]")
        for i in range(1, 16):
            a(f"s_mov_b32 s{S_ST+2*i}, 0")
    a(f"""v_lshrrev_b32 v1, 6, v0
v_and_b32 v0, 63, v0
s_getreg_b32 s{S_G}, hwreg(HW_REG_XCC_ID, 0, 3)
v_readfirstlane_b32 s{S_W}, v1
s_mov_b32 s{S_TO}, 0x40000
v_lshlrev_b32 v{vL16}, 4, v0
v_lshrrev_b32 v{vHF}, 5, v0
v_and_b32 v{vTok}, 31, v0
s_waitcnt lgkmcnt(0)
s_load_dword s{S_TAG}, s[{S_WS}:{S_WS+1}], {EPOCH}""")
    srd(a, R_WS, S_WS, SZ_WS)
    if 'tlb' in OPT:
        sh = int(OPT['tlb'] or 16)
        lt = a.label("tlb")
        a(f"s_cmp_lg_u32 s{S_W}, 6\ns_cbranch_scc1 {lt}\nv_lshlrev_b32 v{vT0}, {sh}, v0")
        regs = [(S_WS, 0x700000), (S_OUT, SZ_X), (S_WO, SZ_WO), (S_X, SZ_X), (S_WQKV, SZ_WQKV), (S_WMOD, SZ_WMOD)]
        k = 0
        for ptr, size in regs:
            srd(a, R_A, ptr, size)
            for off in range(0, size, 64 << sh):
                a(f"v_add_u32 v{vT1}, {off}, v{vT0}\nbuffer_load_dword v{200+k}, v{vT1}, {RA}, 0 offen sc1")
                k += 1
        a(f"{lt}:")
    a(f"""s_cmp_lt_u32 s2, 64
s_cbranch_scc1 L_s0_stats
s_cmp_lt_u32 s2, 94
s_cbranch_scc1 L_s0_none""")
    sP, sCg, sKs, sOff, sRow = T, T+1, T+2, T+3, T+4
    vW = 16
    vC = 32
    vSc = 36
    vTm = 44
    vAc = 52
    srd(a, R_A, S_WMOD, SZ_WMOD)
    srd(a, R_C, S_C, SZ_C)
    a(f"""s_sub_u32 s{sP}, s2, 94
s_mul_i32 s{sKs}, s{sP}, 57
s_lshr_b32 s{sKs}, s{sKs}, 9
s_mul_i32 s{sCg}, s{sKs}, 9
s_sub_u32 s{sCg}, s{sP}, s{sCg}
s_lshl_b32 s{sRow}, s{sKs}, 3
s_add_u32 s{sRow}, s{sRow}, s{S_W}
s_lshl_b32 s{sRow}, s{sRow}, 3
v_and_b32 v{vT0}, 15, v0
v_lshlrev_b32 v{vT0}, 4, v{vT0}
v_bfe_u32 v{vT1}, v0, 4, 1
v_mul_u32_u24 v{vT1}, 2304, v{vT1}
v_mul_u32_u24 v{vT2}, {4*13824}, v{vHF}
v_add3_u32 v{vT0}, v{vT0}, v{vT1}, v{vT2}
v_lshlrev_b32 v{vT1}, 3, v{vHF}
s_lshl_b32 s{sOff}, s{sRow}, 1
buffer_load_dwordx2 {vr(vC,2)}, v{vT1}, {RC}, s{sOff} offen
buffer_load_dwordx2 {vr(vC+2,2)}, v{vT1}, {RC}, s{sOff} offen offset:2304
s_mul_i32 s{sOff}, s{sRow}, 13824
s_lshl_b32 s{sRow}, s{sCg}, 8
s_add_u32 s{sOff}, s{sOff}, s{sRow}""")
    for n in range(4):
        a(f"buffer_load_dwordx4 {vr(vW+4*n,4)}, v{vT0}, {RA}, s{sOff} offen {NT}")
        if n < 3:
            a(f"s_add_u32 s{sOff}, s{sOff}, 13824")
    ticket_issue(a, 64)
    lane_consts(a)
    if 'nopf' not in OPT:
        a("s_barrier")
    npf = w_prefetch(a, 72, NPF-1)
    a(f"s_waitcnt vmcnt({4+npf})")
    for i in range(4):
        unpack(a, vSc+2*i, vSc+2*i+1, vC+i)
    silu8(a, vSc, vTm)
    for i in range(4):
        a(f"v_cvt_pk_bf16_f32 v{vC+i}, v{vSc+2*i}, v{vSc+2*i+1}")
    for i in range(4):
        unpack(a, vSc+2*i, vSc+2*i+1, vC+i)
    for n in range(4):
        a(f"s_waitcnt vmcnt({3-n+npf})")
        if n == 3: stamp(a, 8)
        for i in range(4):
            unpack(a, vTm+2*i, vTm+2*i+1, vW+4*n+i)
        for b in range(2):
            for j in range(8):
                op = "v_mul_f32" if n == 0 else "v_fmac_f32"
                a(f"{op} v{vAc+8*b+j}, v{vTm+j}, v{vSc+4*b+n}")
    a("s_nop 1")
    for j in range(8):
        a(f"v_permlane32_swap_b32 v{vAc+j}, v{vAc+8+j}")
    a("s_nop 1")
    for j in range(8):
        a(f"v_add_f32 v{vAc+j}, v{vAc+j}, v{vAc+8+j}")
    a(f"""s_lshl_b32 s{sOff}, s{S_W}, 11
v_lshlrev_b32 v{vT2}, 5, v0
v_add_u32 v{vT2}, s{sOff}, v{vT2}""")
    get_tag(a)
    a(f"""ds_write_b128 v{vT2}, {vr(vAc,4)}
ds_write_b128 v{vT2}, {vr(vAc+4,4)} offset:16
s_waitcnt lgkmcnt(0)
s_barrier""")
    lsk = a.label("pubsk")
    a(f"""s_cmp_ge_u32 s{S_W}, 4
s_cbranch_scc1 {lsk}
s_lshr_b32 s{sOff}, s{S_W}, 1
s_lshl_b32 s{sOff}, s{sOff}, 10
s_and_b32 s{sRow}, s{S_W}, 1
s_lshl_b32 s{sP}, s{sRow}, 8
s_add_u32 s{sOff}, s{sOff}, s{sP}
v_lshlrev_b32 v{vT2}, 3, v{vTok}
v_lshl_add_u32 v{vT2}, v{vHF}, 9, v{vT2}
v_add_u32 v{vT2}, s{sOff}, v{vT2}""")
    for w in range(8):
        a(f"ds_read_b64 {vr(vW+2*w,2)}, v{vT2} offset:{w*2048}")
    a(f"""s_lshl_b32 s{sP}, s{sCg}, 1
s_add_u32 s{sP}, s{sP}, s{sRow}
s_lshl_b32 s{sP}, s{sP}, 1
s_lshr_b32 s{sOff}, s{S_W}, 1
s_add_u32 s{sP}, s{sP}, s{sOff}
s_mul_i32 s{sP}, s{sP}, 18
s_add_u32 s{sP}, s{sP}, s{sKs}
s_lshl_b32 s{sP}, s{sP}, 10
s_add_u32 s{sP}, s{sP}, {WS_PART}
v_mov_b32 v{vAc+1}, v{vTAG}
v_mov_b32 v{vAc+3}, v{vTAG}
s_waitcnt lgkmcnt(0)
v_add_f32 v{vAc}, v{vW}, v{vW+2}
v_add_f32 v{vAc+2}, v{vW+1}, v{vW+3}""")
    for w in range(2, 8):
        a(f"v_add_f32 v{vAc}, v{vAc}, v{vW+2*w}\nv_add_f32 v{vAc+2}, v{vAc+2}, v{vW+2*w+1}")
    a(f"""buffer_store_dwordx4 {vr(vAc,4)}, v{vL16}, {WS}, s{sP} offen sc1
{lsk}:""")
    stamp(a, 9)
    a("s_branch L_s0_roleb")
    a("L_s0_stats:")
    vRW, vRF = 16, 32
    srd(a, R_C, S_X, SZ_X)
    ticket_issue(a, 0, True)
    a(f"""s_lshl_b32 s{sOff}, s2, 3
s_add_u32 s{sOff}, s{sOff}, s{S_W}
s_mul_i32 s{sOff}, s{sOff}, 2304
buffer_load_dwordx4 {vr(vRW,4)}, v{vL16}, {RC}, s{sOff} offen {NT}
buffer_load_dwordx4 {vr(vRW+4,4)}, v{vL16}, {RC}, s{sOff} offen offset:1024 {NT}
s_mov_b64 exec, 0xffff
buffer_load_dwordx4 {vr(vRW+8,4)}, v{vL16}, {RC}, s{sOff} offen offset:2048 {NT}
s_mov_b64 exec, -1""")
    lane_consts(a)
    get_tag(a)
    role_write(a, 0, 8, 0, True)
    a("s_barrier")
    role_read(a)
    stamp(a, 10)
    lg = a.label("notown"); lj = a.label("stj")
    a(f"""s_cmp_ge_u32 s{S_TK}, 36
s_cbranch_scc1 {lg}""")
    owner_xloads(a)
    a("s_waitcnt vmcnt(4)")
    a(f"s_branch {lj}\n{lg}:")
    npf = w_prefetch(a, 72, NPF)
    a(f"s_waitcnt vmcnt({npf})\n{lj}:")
    stamp(a, 8)
    for i in range(12):
        unpack(a, vRF+2*i, vRF+2*i+1, vRW+i)
    acc, acc2, mean = vRW, vRW+1, vRW+2
    a(f"v_add_f32 v{acc}, v{vRF}, v{vRF+1}\nv_add_f32 v{acc2}, v{vRF+2}, v{vRF+3}")
    for i in range(4, 16, 2):
        a(f"v_add_f32 v{acc}, v{acc}, v{vRF+i}\nv_add_f32 v{acc2}, v{acc2}, v{vRF+i+1}")
    a("s_mov_b64 exec, 0xffff")
    for i in range(16, 24, 2):
        a(f"v_add_f32 v{acc}, v{acc}, v{vRF+i}\nv_add_f32 v{acc2}, v{acc2}, v{vRF+i+1}")
    a(f"s_mov_b64 exec, -1\nv_add_f32 v{acc}, v{acc}, v{acc2}")
    wave_sum(a, acc, T+12)
    a(f"""v_mov_b32 v{vT2}, 0x3a638e39
v_mul_f32 v{mean}, s{T+12}, v{vT2}""")
    for i in range(24):
        a(f"v_sub_f32 v{vRF+i}, v{vRF+i}, v{mean}")
    a(f"v_mul_f32 v{acc}, v{vRF}, v{vRF}\nv_mul_f32 v{acc2}, v{vRF+1}, v{vRF+1}")
    for i in range(2, 16, 2):
        a(f"v_fmac_f32 v{acc}, v{vRF+i}, v{vRF+i}\nv_fmac_f32 v{acc2}, v{vRF+i+1}, v{vRF+i+1}")
    a("s_mov_b64 exec, 0xffff")
    for i in range(16, 24, 2):
        a(f"v_fmac_f32 v{acc}, v{vRF+i}, v{vRF+i}\nv_fmac_f32 v{acc2}, v{vRF+i+1}, v{vRF+i+1}")
    a(f"s_mov_b64 exec, -1\nv_add_f32 v{acc}, v{acc}, v{acc2}")
    wave_sum(a, acc, T+12)
    g = vRW+4
    a(f"v_mul_f32 v{g+1}, s{T+12}, v{vT2}\nv_mov_b32 v{g}, v{mean}")
    round_bf16(a, g+1)
    a(f"v_add_f32 v{g+1}, 0x3727c5ac, v{g+1}")
    round_bf16(a, g+1)
    a(f"v_sqrt_f32 v{g+1}, v{g+1}\ns_nop 0")
    round_bf16(a, g+1)
    a(f"v_rcp_f32 v{g+1}, v{g+1}")
    round_bf16(a, g)
    lsk = a.label("stsk")
    a(f"""v_mov_b32 v{g+2}, v{vTAG}
v_mov_b32 v{g+3}, v{vTAG}
s_lshl_b32 s{T+12}, s{S_W}, 4
s_add_u32 s{T+12}, s{T+12}, {L_STC}
v_mov_b32 v{vT0}, s{T+12}
s_mov_b64 exec, 1
ds_write_b128 v{vT0}, {vr(g,4)}
s_mov_b64 exec, -1
s_waitcnt lgkmcnt(0)
s_barrier
s_cmp_lg_u32 s{S_W}, 0
s_cbranch_scc1 {lsk}
s_lshl_b32 s{T+12}, s2, 7
s_add_u32 s{T+12}, s{T+12}, {F_STAT}
v_add_u32 v{vT0}, {L_STC}, v{vL16}
s_mov_b64 exec, 0xff
ds_read_b128 {vr(g,4)}, v{vT0}
s_waitcnt lgkmcnt(0)
buffer_store_dwordx4 {vr(g,4)}, v{vL16}, {WS}, s{T+12} offen sc1
s_mov_b64 exec, -1
{lsk}:""")
    stamp(a, 9)
    a("s_branch L_s0_end")
    a("L_s0_none:")
    ticket_issue(a, 64)
    w_prefetch(a, 72, 0)
    lane_consts(a)
    get_tag(a)
    a("L_s0_roleb:")
    role_write(a, 64, 24, 8)
    a("s_barrier")
    role_read(a)
    stamp(a, 10)
    a(f"L_s0_end:\ns_mov_b32 s2, s{S_TK}")

VOX = 96
def owner_xloads(a):
    a(f"""s_lshr_b32 s{T+12}, s{S_TK}, 1
s_and_b32 s{T+13}, s{S_TK}, 1
s_lshl_b32 s{T+13}, s{T+13}, 3
s_add_u32 s{T+13}, s{T+13}, s{S_W}
v_mul_u32_u24 v{vT0}, 2304, v{vR8}
v_and_b32 v{vT1}, 7, v0
v_lshl_add_u32 v{vT0}, v{vT1}, 4, v{vT0}
s_mul_i32 s{T+13}, s{T+13}, {32*2304}
s_lshl_b32 s{T+12}, s{T+12}, 7
s_add_u32 s{T+13}, s{T+13}, s{T+12}""")
    a(f"s_lshl_b32 m0, s{S_W}, 12")
    for q in range(4):
        a(f"s_nop 0\nbuffer_load_dwordx4 v{vT0}, {RC}, s{T+13} offen {NT} lds")
        if q < 3:
            a(f"s_add_u32 s{T+13}, s{T+13}, {8*2304}\ns_add_u32 m0, m0, 1024")

def gemv_dma(a, sColA, vD):
    sRow0, sOff = T+2, T+3
    a(f"""v_lshlrev_b32 v{vD}, 4, v{vCH}
v_mul_u32_u24 v{vT0}, 13824, v{vR8}
v_add3_u32 v{vD}, v{vD}, v{vT0}, s{sColA}
s_mul_i32 s{sOff}, s{sRow0}, 13824
s_lshl_b32 m0, s{sRow0}, 7""")
    for t in range(18):
        a(f"""s_nop 0
buffer_load_dwordx4 v{vD}, {RA}, s{sOff} offen {NT} lds""")
        if t < 17:
            a(f"s_add_u32 s{sOff}, s{sOff}, {8*13824}\ns_add_u32 m0, m0, 1024")

def phase_owner(a):
    sColA, sB, sRow0, sOff, sO, sCs, sTb = T, T+1, T+2, T+3, T+4, T+5, T+6
    vD, vA0, vA1, vSil, vCs = V0, V0+1, V0+2, V0+3, V0+4
    vC = 24
    vST = 28
    vX = VOX
    vXN = 48
    vPt = 80
    vAcc = 112
    vWF = 144
    vSF = 160
    vM = 184
    a(f"""s_mov_b32 s{sO}, s2
s_cmp_ge_u32 s{sO}, 36
s_cbranch_scc1 L_o_pref
s_lshr_b32 s{sCs}, s{sO}, 1
s_and_b32 s{sB}, s{sO}, 1
s_lshl_b32 s{sTb}, s{sB}, 3
s_add_u32 s{sTb}, s{sTb}, s{S_W}""")
    vST = 32
    a(f"""v_and_b32 v{vT3}, 7, v0
v_lshlrev_b32 v{vT2}, 4, v{vT3}
v_lshlrev_b32 v{vT0}, 7, v{vT3}
v_lshl_add_u32 v{vT0}, v{vR8}, 4, v{vT0}
s_lshl_b32 s{T+9}, s{S_W}, 12
v_add_u32 v{vT0}, s{T+9}, v{vT0}
s_lshl_b32 s{T+9}, s{sTb}, 9
s_add_u32 s{T+9}, s{T+9}, {F_STAT}""")
    def stl():
        for q in range(4):
            a(f"buffer_load_dwordx4 {vr(vST+4*q,4)}, v{vT2}, {WS}, s{T+9} offen offset:{128*q} sc1")
    gpoll(a, stl, [vST+2, vST+6, vST+10, vST+14])
    stamp(a, 1)
    for q in range(4):
        a(f"ds_read_b128 {vr(vX+4*q,4)}, v{vT0} offset:{q*1024}")
    vPt = 112
    def pl():
        a(f"s_mov_b32 s{T+10}, s{T+9}")
        for n in range(18):
            a(f"buffer_load_dwordx4 {vr(vPt+4*n,4)}, v{vL16}, {WS}, s{T+10} offen offset:{(n&3)*1024} sc1")
            if (n & 3) == 3:
                a(f"s_add_u32 s{T+10}, s{T+10}, 4096")
    lw0 = a.label("w0a")
    a(f"""s_mul_i32 s{T+9}, s{sO}, {18*1024}
s_add_u32 s{T+9}, s{T+9}, {WS_PART}
s_cmp_lg_u32 s{S_W}, 0
s_cbranch_scc1 {lw0}""")
    pl()
    a(f"{lw0}:")
    P = [(q, i) for q in range(4) for i in range(4)]
    lo = lambda q, i: vXN+8*q+2*i
    hi = lambda q, i: vXN+8*q+2*i+1
    xs = lambda q, i: vX+4*q+i
    def st_unpack():
        for q, i in P: unpack(a, lo(q,i), hi(q,i), xs(q,i))
    def st_cvt():
        for q, i in P: a(f"v_cvt_pk_bf16_f32 v{xs(q,i)}, v{lo(q,i)}, v{hi(q,i)}")
    def st_op(op, f):
        for q, i in P:
            a(f"{op} v{lo(q,i)}, v{lo(q,i)}, v{f(q,2*i)}\n{op} v{hi(q,i)}, v{hi(q,i)}, v{f(q,2*i+1)}")
    a("s_waitcnt lgkmcnt(0)")
    st_unpack(); st_op("v_sub_f32", lambda q, j: vST+4*q); st_cvt()
    st_unpack(); st_op("v_mul_f32", lambda q, j: vST+4*q+1); st_cvt()
    st_unpack()
    a(f"""v_lshlrev_b32 v{vT1}, 5, v{vR8}
v_add_u32 v{vT1}, {L_FIN}, v{vT1}
v_lshl_add_u32 v{vCs}, v{vR8}, 9, v{vT2}
s_mul_i32 s{sOff}, s{sTb}, {72*1024}
s_lshl_b32 s{T+11}, s{sCs}, 12
s_add_u32 s{sOff}, s{sOff}, s{T+11}
s_add_u32 s{sOff}, s{sOff}, {WS_H}""")
    stamp(a, 2)
    lw1 = a.label("w0b"); lp = a.label("pp"); ld = a.label("ppd")
    a(f"""s_cmp_lg_u32 s{S_W}, 0
s_cbranch_scc1 {lw1}
v_lshlrev_b32 v{vT0}, 3, v0
v_add_u32 v{vT0}, {L_FIN}, v{vT0}
v_cvt_f32_u32 v{vT2}, v{vHF}
{lp}:
s_waitcnt vmcnt(0)
v_and_b32 v{vM}, v{vPt+1}, v{vPt+3}
v_or_b32 v{vM+1}, v{vPt+1}, v{vPt+3}""")
    for n in range(1, 18):
        a(f"""v_and_b32 v{vM}, v{vM}, v{vPt+4*n+1}
v_or3_b32 v{vM+1}, v{vM+1}, v{vPt+4*n+1}, v{vPt+4*n+3}
v_and_b32 v{vM}, v{vM}, v{vPt+4*n+3}""")
    a(f"""v_cmp_ne_u32 vcc, s{S_TAG}, v{vM}
v_cmp_ne_u32 s[{T+14}:{T+15}], s{S_TAG}, v{vM+1}
s_or_b64 vcc, vcc, s[{T+14}:{T+15}]
s_cbranch_vccz {ld}
s_sub_u32 s{S_TO}, s{S_TO}, 1
s_cmp_eq_u32 s{S_TO}, 0
s_cbranch_scc1 {ld}""")
    pl()
    a(f"s_branch {lp}\n{ld}:\ns_max_u32 s{S_TO}, s{S_TO}, 1")
    for n in range(2, 18, 2):
        a(f"""v_add_f32 v{vPt}, v{vPt}, v{vPt+4*n}
v_add_f32 v{vPt+2}, v{vPt+2}, v{vPt+4*n+2}
v_add_f32 v{vPt+4}, v{vPt+4}, v{vPt+4*n+4}
v_add_f32 v{vPt+6}, v{vPt+6}, v{vPt+4*n+6}""")
    a(f"""v_add_f32 v{vPt}, v{vPt}, v{vPt+4}
v_add_f32 v{vPt+1}, v{vPt+2}, v{vPt+6}
v_cvt_pk_bf16_f32 v{vPt+2}, v{vPt}, v{vPt+1}""")
    unpack(a, vPt, vPt+1, vPt+2)
    a(f"""v_add_f32 v{vPt}, v{vPt}, v{vT2}
v_add_f32 v{vPt+1}, v{vPt+1}, v{vT2}
v_cvt_pk_bf16_f32 v{vPt+2}, v{vPt}, v{vPt+1}""")
    unpack(a, vPt, vPt+1, vPt+2)
    a(f"""ds_write_b64 v{vT0}, {vr(vPt,2)}
s_waitcnt lgkmcnt(0)
{lw1}:
s_barrier""")
    stamp(a, 3)
    a(f"""ds_read_b128 {vr(vM+8,4)}, v{vT1} offset:256
ds_read_b128 {vr(vM+12,4)}, v{vT1} offset:272
ds_read_b128 {vr(vM,4)}, v{vT1}
ds_read_b128 {vr(vM+4,4)}, v{vT1} offset:16
s_waitcnt lgkmcnt(2)""")
    st_op("v_mul_f32", lambda q, j: vM+8+j); st_cvt(); st_unpack()
    a("s_waitcnt lgkmcnt(0)")
    for q in range(4):
        for i in range(4):
            a(f"v_add_f32 v{lo(q,i)}, v{lo(q,i)}, v{vM+2*i}\nv_add_f32 v{hi(q,i)}, v{hi(q,i)}, v{vM+2*i+1}")
        for i in range(4):
            a(f"v_cvt_pk_bf16_f32 v{xs(q,i)}, v{lo(q,i)}, v{hi(q,i)}")
        a(f"buffer_store_dwordx4 {vr(vX+4*q,4)}, v{vCs}, {WS}, s{sOff} offen offset:{q*128} sc1")
    stamp(a, 4)
    a(f"""s_mul_i32 s{sOff}, s{sB}, 18
s_add_u32 s{sOff}, s{sOff}, s{sCs}
s_lshl_b32 s{sOff}, s{sOff}, 7
s_add_u32 s{sOff}, s{sOff}, {F_H}""")
    set_flag(a, f"s{sOff}")
    stamp(a, 5)
    a("L_o_pref:")
    srd(a, R_B, S_WO, SZ_WO)
    a(f"""s_and_b32 s{sOff}, s{S_G}, 3
s_mul_i32 s{sOff}, s{sOff}, 18
s_lshl_b32 s{T+9}, s{S_SLOT}, 2
s_add_u32 s{sOff}, s{sOff}, s{T+9}
s_add_u32 s{sOff}, s{sOff}, 1
s_lshr_b32 s{sOff}, s{sOff}, 2
s_lshl_b32 s{sOff}, s{sOff}, 7
v_lshlrev_b32 v{vT1}, 4, v{vCH}
v_mul_u32_u24 v{vT0}, 2304, v{vR8}
v_add3_u32 v{vT1}, v{vT1}, v{vT0}, s{sOff}""")
    dma_tile(a, RB, vT1, 2304, None, NT)
    a(f"""s_waitcnt vmcnt(0)
s_barrier""")
    stamp(a, 6)
    srd(a, R_A, S_WMOD, SZ_WMOD)
    srd(a, R_C, S_C, SZ_C)
    a(f"""s_cmp_ge_u32 s{sO}, 18
s_cbranch_scc1 L_fin
s_mul_i32 s{sRow0}, s{S_W}, 144
v_min_u32 v{vT0}, 17, v{vTok}
v_lshlrev_b32 v{vT0}, 4, v{vT0}
v_mul_u32_u24 v{vT1}, 2304, v{vHF}
v_add_u32 v{vCs}, v{vT0}, v{vT1}
s_lshl_b32 s{sOff}, s{sRow0}, 1
buffer_load_dwordx4 {vr(vC,4)}, v{vCs}, {RC}, s{sOff} offen
s_lshl_b32 s{sColA}, s{sO}, 7
s_add_u32 s{sColA}, s{sColA}, 4608""")
    gemv_dma(a, sColA, vD)
    a(f"""s_lshl_b32 s{sOff}, s{sRow0}, 7
v_add_u32 v{vA0}, s{sOff}, v{vB0}
v_add_u32 v{vA1}, s{sOff}, v{vB1}
s_waitcnt vmcnt(18)""")
    for i in range(4):
        unpack(a, vM+2*i, vM+2*i+1, vC+i)
    silu8(a, vM, vM+8)
    for i in range(4):
        a(f"v_cvt_pk_bf16_f32 v{vC+i}, v{vM+2*i}, v{vM+2*i+1}")
    a(f"""s_lshl_b32 s{sOff}, s{sRow0}, 1
s_add_u32 s{sOff}, s{sOff}, {L_SIL}
v_add_u32 v{vCs}, s{sOff}, v{vCs}
ds_write_b128 v{vCs}, {vr(vC,4)}
v_and_b32 v{vT0}, 1, v0
v_mul_u32_u24 v{vT0}, 2304, v{vT0}
v_lshl_add_u32 v{vT0}, v{vHF}, 4, v{vT0}
v_add_u32 v{vSil}, s{sOff}, v{vT0}
s_waitcnt lgkmcnt(0)""")
    for s in range(9):
        wf = vWF + 8*(s & 1); sf = vSF + 4*(s & 1)
        a(f"s_waitcnt vmcnt({18-2*(s+1)})")
        a(f"ds_read_b128 {vr(sf,4)}, v{vSil} offset:{s*32}")
        trreads(a, wf, vA0, vA1, s*2048)
        a("s_waitcnt lgkmcnt(2)")
        mfma(a, vAcc, wf, sf, s == 0)
        a("s_waitcnt lgkmcnt(0)")
        mfma(a, vAcc+16, wf+4, sf, s == 0)
    a(f"""v_and_b32 v{vT0}, 1, v0
v_lshlrev_b32 v{vT0}, 8, v{vT0}
v_lshl_add_u32 v{vT0}, v{vHF}, 5, v{vT0}
s_lshl_b32 s{sOff}, s{S_W}, 9
s_add_u32 s{sOff}, s{sOff}, {L_RED}
v_add_u32 v{vT0}, s{sOff}, v{vT0}
s_mov_b32 exec_lo, 3
s_mov_b32 exec_hi, 3
s_nop 8""")
    for cb in range(2):
        for q, off in enumerate((0, 16, 64, 80)):
            a(f"ds_write_b128 v{vT0}, {vr(vAcc+16*cb+4*q,4)} offset:{cb*128+off}")
    a(f"""s_mov_b64 exec, -1
s_waitcnt lgkmcnt(0)
s_barrier
s_lshr_b32 s{sOff}, s{S_W}, 2
s_lshl_b32 s{sOff}, s{sOff}, 8
s_add_u32 s{sOff}, s{sOff}, {L_RED}
v_lshlrev_b32 v{vT0}, 2, v0
v_add_u32 v{vT1}, s{sOff}, v{vT0}""")
    for w in range(8):
        a(f"ds_read_b32 v{vAcc+w}, v{vT1} offset:{w*512}")
    a("s_waitcnt lgkmcnt(0)")
    for w in range(1, 8):
        a(f"v_add_f32 v{vAcc}, v{vAcc}, v{vAcc+w}")
    round_bf16(a, vAcc)
    lsk = a.label("gsk")
    a(f"""s_and_b32 s{sOff}, s{S_W}, 3
s_cmp_lg_u32 s{sOff}, 0
s_cbranch_scc1 {lsk}
s_lshr_b32 s{T+9}, s{S_W}, 2
s_mul_i32 s{sOff}, s{T+9}, 4608
s_lshl_b32 s{sColA}, s{sO}, 8
s_add_u32 s{sOff}, s{sOff}, s{sColA}
s_add_u32 s{sOff}, s{sOff}, {WS_GATE}
buffer_store_dword v{vAcc}, v{vT0}, {WS}, s{sOff} offen sc1
{lsk}:
s_lshl_b32 s{sOff}, s{sO}, 7
s_add_u32 s{sOff}, s{sOff}, {F_G}""")
    set_flag(a, f"s{sOff}")
    stamp(a, 7)
    a("s_branch L_fin")

S_UCT, S_UTB = 9, 10
vDU = 14
def u_setup(a):
    srd(a, R_B, S_WO, SZ_WO)
    a(f"""s_and_b32 s{T+14}, s{S_G}, 3
s_mul_i32 s{T+14}, s{T+14}, 18
s_add_u32 s{T+14}, s{T+14}, s{S_SLOT}
s_lshr_b32 s{S_UCT}, s{T+14}, 2
s_and_b32 s{T+14}, s{T+14}, 3
s_lshr_b32 s{S_UTB}, s{S_G}, 2
s_lshl_b32 s{S_UTB}, s{S_UTB}, 2
s_add_u32 s{S_UTB}, s{S_UTB}, s{T+14}
s_lshl_b32 s{S_UTB}, s{S_UTB}, 1
s_and_b32 s{T+14}, s{S_W}, 1
s_add_u32 s{S_UTB}, s{S_UTB}, s{T+14}
v_lshlrev_b32 v{vDU}, 4, v{vCH}
v_mul_u32_u24 v{vT0}, 2304, v{vR8}
s_lshl_b32 s{T+14}, s{S_UCT}, 7
v_add3_u32 v{vDU}, v{vDU}, v{vT0}, s{T+14}""")

KE = int(OPT.get('ke', 6))
def phase_b(a):
    sCt, sTb, sKh, sRt, sOff, sHs, sHe, sLo, sLe, sLs = T, T+1, T+2, T+3, T+4, T+5, T+6, T+7, T+8, T+9
    vD, vA0, vA1 = V0, V0+1, V0+2
    vAcc = 20
    vWF = 52
    vH = 84
    srd(a, R_A, S_WQKV, SZ_WQKV)
    a(f"s_sub_u32 s{S_SLOT}, s{S_SLOT}, {NO}")
    if OPT['map'] == 'all':
        a(f"""s_mul_i32 s{sOff}, s{S_G}, 27
s_add_u32 s{sOff}, s{sOff}, s{S_SLOT}
s_lshr_b32 s{sCt}, s{sOff}, 2
s_and_b32 s{sRt}, s{sOff}, 3
s_lshl_b32 s{sTb}, s{sRt}, 2
s_mul_i32 s{sRt}, s{sRt}, 9
s_lshr_b32 s{sRt}, s{sRt}, 1""")
    else:
        a(f"""s_and_b32 s{sOff}, s{S_G}, 3
s_mul_i32 s{sOff}, s{sOff}, 27
s_add_u32 s{sOff}, s{sOff}, s{S_SLOT}
s_lshr_b32 s{sCt}, s{sOff}, 1
s_and_b32 s{sRt}, s{sOff}, 1
s_lshr_b32 s{sTb}, s{S_G}, 2
s_lshl_b32 s{sTb}, s{sTb}, 1
s_add_u32 s{sTb}, s{sTb}, s{sRt}
s_lshl_b32 s{sTb}, s{sTb}, 2
s_mul_i32 s{sRt}, s{sRt}, 9""")
    a(f"""s_and_b32 s{sOff}, s{S_W}, 3
s_add_u32 s{sTb}, s{sTb}, s{sOff}
s_lshr_b32 s{sKh}, s{S_W}, 2
v_lshlrev_b32 v{vD}, 4, v{vCH}
v_mul_u32_u24 v{vT0}, 6912, v{vR8}
s_lshl_b32 s{sOff}, s{sCt}, 7
v_add3_u32 v{vD}, v{vD}, v{vT0}, s{sOff}""")
    dma_tile(a, RA, vD, 6912, sRt, NT)
    stamp(a, 1)
    u_setup(a)
    if OPT['rot'] == '1':
        mod9(a, sRt, sCt, sOff)
    elif OPT['rot'] == '0':
        a(f"s_mov_b32 s{sRt}, 0")
    else:
        a(f"s_and_b32 s{sRt}, s{sCt}, {int(OPT['rot'])-1}")
    a(f"""s_mul_i32 s{sHs}, s{sTb}, {72*1024}
s_mul_i32 s{sOff}, s{sKh}, {36*1024}
s_add_u32 s{sHs}, s{sHs}, s{sOff}
s_add_u32 s{sHs}, s{sHs}, {WS_H}
s_add_u32 s{sHe}, s{sHs}, {36*1024}
s_lshl_b32 s{sOff}, s{sRt}, 12
s_add_u32 s{T+12}, s{sHs}, s{sOff}
s_mul_i32 s{sLs}, s{sKh}, {576*128}
s_add_u32 s{sLe}, s{sLs}, {576*128}
s_lshl_b32 s{sOff}, s{sRt}, 13
s_add_u32 s{sLo}, s{sLs}, s{sOff}
v_min_u32 v{vT0}, 17, v0
v_lshlrev_b32 v{vT0}, 7, v{vT0}
s_lshr_b32 s{sOff}, s{sTb}, 3
s_mul_i32 s{sOff}, s{sOff}, {18*128}
s_add_u32 s{sOff}, s{sOff}, {F_H}
s_waitcnt vmcnt(0)""")
    stamp(a, 2)
    poll(a, vT0, f"s{sOff}", vT1)
    stamp(a, 3)
    sH = T+12
    LA = int(float(OPT['la'])*4)
    WA = int(OPT.get('wa', 2))
    def hload(s):
        a(f"buffer_load_dwordx4 {vr(vH+4*s,4)}, v{vL16}, {WS}, s{sH} offen offset:{(s&3)*1024} sc1")
        if (s & 3) == 3 and s < 35:
            wrap_add(a, sH, 4096, sHe, sHs)
    def wread(s):
        if (s & 3) == 0:
            a(f"v_add_u32 v{vA0}, s{sLo}, v{vB0}\nv_add_u32 v{vA1}, s{sLo}, v{vB1}")
            wrap_add(a, sLo, 8192, sLe, sLs)
        trreads(a, vWF + 8*(s & 3), vA0, vA1, (s & 3)*2048)
    for s in range(LA):
        hload(s)
    for s in range(WA):
        wread(s)
    for s in range(36):
        lg = 4*min(WA-1, 35 - s)
        issued = min(36, s + LA)
        a(f"s_waitcnt vmcnt({issued - s - 1}) lgkmcnt({lg})")
        if s == 0: stamp(a, 4)
        mfma(a, vAcc, vWF+8*(s & 3), vH+4*s, s == 0)
        if s + WA < 36:
            wread(s + WA)
        mfma(a, vAcc+16, vWF+8*(s & 3)+4, vH+4*s, s == 0)
        if s + LA < 36:
            hload(s + LA)
    stamp(a, 5)
    XB = 131072
    lk1 = a.label("kh1"); lj = a.label("j")
    a(f"""s_lshl_b32 s{sOff}, s{S_W}, 12
s_add_u32 s{sOff}, s{sOff}, {XB}
v_add_u32 v{vT0}, s{sOff}, v{vL16}
v_xor_b32 v{vT1}, {4*4096}, v{vT0}
s_nop 8
s_barrier
s_cmp_lg_u32 s{sKh}, 0
s_cbranch_scc1 {lk1}""")
    for q in range(4):
        a(f"ds_write_b128 v{vT0}, {vr(vAcc+16+4*q,4)} offset:{q*1024}")
    a(f"s_branch {lj}\n{lk1}:")
    for q in range(4):
        a(f"ds_write_b128 v{vT0}, {vr(vAcc+4*q,4)} offset:{q*1024}")
    for r in range(16):
        a(f"v_mov_b32 v{vAcc+r}, v{vAcc+16+r}")
    a(f"{lj}:\ns_waitcnt lgkmcnt(0)\ns_barrier")
    for q in range(4):
        a(f"ds_read_b128 {vr(vWF+4*q,4)}, v{vT1} offset:{q*1024}")
    a(f"""s_mul_i32 s{sHs}, s{sTb}, {216*1024}
s_lshl_b32 s{sOff}, s{sCt}, 12
s_add_u32 s{sHs}, s{sHs}, s{sOff}
s_lshl_b32 s{sOff}, s{sKh}, 11
s_add_u32 s{sHs}, s{sHs}, s{sOff}
s_add_u32 s{sHs}, s{sHs}, {WS_QKV}""")
    for u in range(2):
        a(f"s_waitcnt lgkmcnt({2-2*u})")
        for r in range(8*u, 8*u+8):
            a(f"v_add_f32 v{vAcc+r}, v{vAcc+r}, v{vWF+r}")
        for r in range(4*u, 4*u+4):
            a(f"v_cvt_pk_bf16_f32 v{vWF+16+r}, v{vAcc+2*r}, v{vAcc+2*r+1}")
        a(f"buffer_store_dwordx4 {vr(vWF+16+4*u,4)}, v{vL16}, {WS}, s{sHs} offen offset:{1024*u} sc1")
    stamp(a, 6)
    a(f"""s_lshr_b32 s{sHs}, s{sTb}, 2
s_mul_i32 s{sHs}, s{sHs}, 54
s_add_u32 s{sHs}, s{sHs}, s{sCt}
s_lshl_b32 s{sHs}, s{sHs}, 7
s_add_u32 s{sHs}, s{sHs}, {F_QKV}
s_cmp_ge_u32 s{S_SLOT}, 18
s_cbranch_scc1 L_c_notu""")
    if KE:
        dma_tile(a, RB, vDU, 2304, None, NT, 0, KE)
    set_flag(a, f"s{sHs}", KE)
    stamp(a, 7)

def phase_c(a):
    vA0, vA1 = V0+1, V0+2
    vAcc = 20
    vWF = 52
    vR = 84
    vH = 92
    sKq, sJ, sOff, sHs, sHe, sLo, sLe, sLs = T+2, T+3, T+4, T+5, T+6, T+7, T+8, T+9
    sCt, sTb = S_UCT, S_UTB
    sH = T+12
    dma_tile(a, RB, vDU, 2304, None, NT, KE, 18)
    a(f"s_lshr_b32 s{sKq}, s{S_W}, 1\ns_lshl_b32 s{sJ}, s{sCt}, 1")
    mod9(a, sJ, sJ, sOff)
    a(f"""s_mul_i32 s{sHs}, s{sTb}, {216*1024}
s_mul_i32 s{sOff}, s{sKq}, {18*1024}
s_add_u32 s{sHs}, s{sHs}, s{sOff}
s_add_u32 s{sHs}, s{sHs}, {WS_QKV + 144*1024}
s_add_u32 s{sHe}, s{sHs}, {18*1024}
s_lshl_b32 s{sOff}, s{sJ}, 11
s_add_u32 s{sH}, s{sHs}, s{sOff}
s_mul_i32 s{sLs}, s{sKq}, {288*128}
s_add_u32 s{sLe}, s{sLs}, {288*128}
s_lshl_b32 s{sOff}, s{sJ}, 12
s_add_u32 s{sLo}, s{sLs}, s{sOff}
v_min_u32 v{vT0}, 17, v0
v_lshlrev_b32 v{vT0}, 7, v{vT0}
s_lshr_b32 s{sOff}, s{sTb}, 2
s_mul_i32 s{sOff}, s{sOff}, {54*128}
s_add_u32 s{sOff}, s{sOff}, {F_QKV + 36*128}""")
    stamp(a, 11)
    poll(a, vT0, f"s{sOff}", vT1)
    stamp(a, 12)
    LA = int(OPT.get('lau', 8))
    def vload(s):
        a(f"buffer_load_dwordx4 {vr(vH+4*s,4)}, v{vP16}, {WS}, s{sH} offen offset:{(s&1)*1024} sc1")
        if (s & 1) == 1 and s < 17:
            wrap_add(a, sH, 2048, sHe, sHs)
    def wread(s):
        if (s & 1) == 0:
            a(f"v_add_u32 v{vA0}, s{sLo}, v{vB0}\nv_add_u32 v{vA1}, s{sLo}, v{vB1}")
            wrap_add(a, sLo, 4096, sLe, sLs)
        trreads(a, vWF + 8*(s & 3), vA0, vA1, (s & 1)*2048)
    for s in range(LA):
        vload(s)
    a(f"s_waitcnt vmcnt({LA})\ns_barrier")
    wread(0); wread(1)
    for s in range(18):
        lg = 4*min(1, 17 - s)
        issued = min(18, s + LA)
        a(f"s_waitcnt vmcnt({issued - s - 1}) lgkmcnt({lg})")
        mfma(a, vAcc, vH+4*s, vWF+8*(s & 3), s == 0)
        if s + 2 < 18:
            wread(s + 2)
        mfma(a, vAcc+16, vH+4*s, vWF+8*(s & 3)+4, s == 0)
        if s + LA < 18:
            vload(s + LA)
    stamp(a, 13)
    a(f"""s_lshl_b32 s{sOff}, s{S_W}, 13
v_add_u32 v{vT0}, s{sOff}, v{vL16}
s_nop 8
s_barrier""")
    for q in range(8):
        a(f"ds_write_b128 v{vT0}, {vr(vAcc+4*q,4)} offset:{q*1024}")
    a(f"""s_and_b32 s{sOff}, s{S_W}, 1
s_lshl_b32 s{sOff}, s{sOff}, 13
s_lshl_b32 s{sJ}, s{sKq}, 11
s_add_u32 s{sOff}, s{sOff}, s{sJ}
v_add_u32 v{vT1}, s{sOff}, v{vL16}
s_waitcnt lgkmcnt(0)
s_barrier""")
    for j in range(4):
        a(f"""ds_read_b128 {vr(vAcc+8*j,4)}, v{vT1} offset:{j*16384}
ds_read_b128 {vr(vAcc+8*j+4,4)}, v{vT1} offset:{j*16384+1024}""")
    a(f"""s_lshr_b32 s{sJ}, s{sTb}, 3
s_mul_i32 s{sJ}, s{sJ}, 36
s_lshl_b32 s{sOff}, s{sCt}, 1
s_add_u32 s{sJ}, s{sJ}, s{sOff}
s_lshr_b32 s{sOff}, s{sKq}, 1
s_add_u32 s{sJ}, s{sJ}, s{sOff}
s_lshl_b32 s{sJ}, s{sJ}, 4
s_and_b32 s{sOff}, s{sTb}, 7
s_lshl_b32 s{sOff}, s{sOff}, 1
s_add_u32 s{sJ}, s{sJ}, s{sOff}
s_and_b32 s{sOff}, s{sKq}, 1
s_add_u32 s{sJ}, s{sJ}, s{sOff}
s_lshl_b32 s{sOff}, s{sJ}, 10
s_add_u32 s{sOff}, s{sOff}, {WS_U}
s_lshr_b32 s{sJ}, s{sTb}, 3
s_mul_i32 s{sJ}, s{sJ}, 18
s_add_u32 s{sJ}, s{sJ}, s{sCt}
s_lshl_b32 s{sJ}, s{sJ}, 2
s_bfe_u32 s{sHs}, s{sTb}, 0x20001
s_add_u32 s{sJ}, s{sJ}, s{sHs}
s_lshl_b32 s{sJ}, s{sJ}, 7
s_add_u32 s{sJ}, s{sJ}, {F_U}
s_waitcnt lgkmcnt(0)""")
    for r in range(8):
        a(f"""v_add_f32 v{vAcc+r}, v{vAcc+r}, v{vAcc+8+r}
v_add_f32 v{vAcc+16+r}, v{vAcc+16+r}, v{vAcc+24+r}""")
    for r in range(8):
        a(f"v_add_f32 v{vAcc+r}, v{vAcc+r}, v{vAcc+16+r}")
    for r in range(4):
        a(f"v_cvt_pk_bf16_f32 v{vR+r}, v{vAcc+2*r}, v{vAcc+2*r+1}")
    a(f"buffer_store_dwordx4 {vr(vR,4)}, v{vL16}, {WS}, s{sOff} offen sc1")
    set_flag(a, f"s{sJ}")
    a("s_branch L_c_done")
    a("L_c_notu:")
    set_flag(a, f"s{sHs}")
    stamp(a, 7)
    a(f"s_cmp_ge_u32 s{S_SLOT}, 26\ns_cbranch_scc1 L_c_done")
    sQb, sKb, sK, sQ, sKs, sQs, sKt = T, T+1, T+5, T+6, T+7, T+8, T+9
    vS = 56
    RING = 15
    a(f"""s_sub_u32 s{sJ}, s{S_SLOT}, 18
s_and_b32 s{sKq}, s{S_W}, 3
s_and_b32 s{sQb}, s{S_G}, 1
s_lshl_b32 s{sQb}, s{sQb}, 2
s_and_b32 s{sOff}, s{sJ}, 3
s_add_u32 s{sQb}, s{sQb}, s{sOff}
s_and_b32 s{sKt}, s{S_G}, 2
s_lshr_b32 s{sOff}, s{sJ}, 2
s_add_u32 s{sKt}, s{sKt}, s{sOff}
s_lshl_b32 s{sKb}, s{sKt}, 1
s_lshr_b32 s{sOff}, s{S_G}, 2
s_lshl_b32 s{sOff}, s{sOff}, 3
s_add_u32 s{sQb}, s{sQb}, s{sOff}
s_add_u32 s{sKb}, s{sKb}, s{sOff}
s_mul_i32 s{sKs}, s{sKb}, {216*1024}
s_mul_i32 s{sQs}, s{sQb}, {216*1024}
s_mul_i32 s{sOff}, s{sKq}, {18*1024}
s_add_u32 s{sKs}, s{sKs}, s{sOff}
s_add_u32 s{sQs}, s{sQs}, s{sOff}
s_add_u32 s{sKs}, s{sKs}, {WS_QKV + 72*1024}
s_add_u32 s{sQs}, s{sQs}, {WS_QKV}
s_lshl_b32 s{sH}, s{sJ}, 11
v_min_u32 v{vT0}, 17, v{vTok}
v_lshlrev_b32 v{vT0}, 7, v{vT0}
s_lshr_b32 s{sOff}, s{sKb}, 2
s_mul_i32 s{sOff}, s{sOff}, {54*128}
s_add_u32 s{sOff}, s{sOff}, {18*128}
s_lshr_b32 s{T+13}, s{sQb}, 2
s_mul_i32 s{T+13}, s{T+13}, {54*128}
s_sub_u32 s{sOff}, s{sOff}, s{T+13}
v_mul_lo_u32 v{vT1}, v{vHF}, s{sOff}
v_add_u32 v{vT0}, v{vT0}, v{vT1}
v_add_u32 v{vT0}, s{T+13}, v{vT0}
v_add_u32 v{vT2}, {216*1024}, v{vP16}
s_mov_b32 s{sOff}, {F_QKV}""")
    stamp(a, 11)
    poll(a, vT0, f"s{sOff}", vT1)
    stamp(a, 12)
    lsi = a.label("sidle")
    a(f"s_cmp_ge_u32 s{S_W}, 4\ns_cbranch_scc1 {lsi}")
    LA = int(OPT.get('las', 8))
    assert LA < RING
    a(f"s_movk_i32 s{T+13}, 0\ns_movk_i32 s{T+14}, {18*1024}")
    def sload(s):
        r = vS + 12*(s % RING)
        if (s & 1) == 0:
            a(f"s_add_u32 s{sK}, s{sKs}, s{sH}\ns_add_u32 s{sQ}, s{sQs}, s{sH}")
            wrap_add(a, sH, 2048, T+14, T+13)
        a(f"""buffer_load_dwordx4 {vr(r,4)}, v{vL16}, {WS}, s{sQ} offen offset:{(s&1)*1024} sc1
buffer_load_dwordx4 {vr(r+4,4)}, v{vP16}, {WS}, s{sK} offen offset:{(s&1)*1024} sc1
buffer_load_dwordx4 {vr(r+8,4)}, v{vT2}, {WS}, s{sK} offen offset:{(s&1)*1024} sc1""")
    for s in range(LA):
        sload(s)
    for s in range(18):
        issued = min(18, s + LA)
        r = vS + 12*(s % RING)
        a(f"s_waitcnt vmcnt({3*(issued - s - 1) + 1})")
        mfma(a, vAcc, r+4, r, s == 0)
        a(f"s_waitcnt vmcnt({3*(issued - s - 1)})")
        mfma(a, vAcc+16, r+8, r, s == 0)
        if s + LA < 18:
            sload(s + LA)
    stamp(a, 13)
    QS, HS, PSZ = 1056, 528, 8448
    a(f"""s_mul_i32 s{sOff}, s{S_W}, {PSZ}
v_lshl_add_u32 v{vT0}, v{vHF}, 4, v{vL16}
v_add_u32 v{vT0}, s{sOff}, v{vT0}
s_nop 11""")
    for q in range(8):
        a(f"ds_write_b128 v{vT0}, {vr(vAcc+4*q,4)} offset:{q*QS}")
    a(f"""{lsi}:
v_bfe_u32 v{vT1}, v0, 2, 2
v_and_b32 v{vT2}, 1, v0
v_lshl_add_u32 v{vT1}, v{vT1}, 1, v{vT2}
v_mul_u32_u24 v{vT1}, {QS}, v{vT1}
v_bfe_u32 v{vT2}, v0, 1, 1
v_mul_u32_u24 v{vT2}, {HS}, v{vT2}
v_lshrrev_b32 v{vT0}, 4, v0
s_lshl_b32 s{sOff}, s{S_W}, 2
v_add_u32 v{vT0}, s{sOff}, v{vT0}
v_lshl_add_u32 v{vT1}, v{vT0}, 4, v{vT1}
v_add_u32 v{vT1}, v{vT1}, v{vT2}
v_and_b32 v{vT2}, 15, v0
v_lshlrev_b32 v{vT2}, 3, v{vT2}
v_lshl_add_u32 v{vT2}, v{vT0}, 9, v{vT2}
s_waitcnt lgkmcnt(0)
s_barrier""")
    for j in range(4):
        a(f"ds_read_b128 {vr(vAcc+4*j,4)}, v{vT1} offset:{j*PSZ}")
    a(f"""s_lshl_b32 s{sJ}, s{sQb}, 14
s_lshl_b32 s{sOff}, s{sKt}, 7
s_add_u32 s{sJ}, s{sJ}, s{sOff}
s_add_u32 s{sJ}, s{sJ}, {WS_L}
s_lshl_b32 s{sK}, s{sQb}, 2
s_add_u32 s{sK}, s{sK}, s{sKt}
s_lshl_b32 s{sK}, s{sK}, 7
s_add_u32 s{sK}, s{sK}, {F_L}
s_waitcnt lgkmcnt(0)""")
    for r in range(4):
        a(f"""v_add_f32 v{vAcc+r}, v{vAcc+r}, v{vAcc+4+r}
v_add_f32 v{vAcc+8+r}, v{vAcc+8+r}, v{vAcc+12+r}""")
    for r in range(4):
        a(f"v_add_f32 v{vAcc+r}, v{vAcc+r}, v{vAcc+8+r}")
    sc = struct.unpack('<I', struct.pack('<f', D ** -0.5))[0]
    vR2 = 52
    for r in range(2):
        a(f"v_cvt_pk_bf16_f32 v{vR2+r}, v{vAcc+2*r}, v{vAcc+2*r+1}")
        unpack(a, vAcc+2*r, vAcc+2*r+1, vR2+r)
        a(f"""v_mul_f32 v{vAcc+2*r}, {hex(sc)}, v{vAcc+2*r}
v_mul_f32 v{vAcc+2*r+1}, {hex(sc)}, v{vAcc+2*r+1}
v_cvt_pk_bf16_f32 v{vR2+r}, v{vAcc+2*r}, v{vAcc+2*r+1}""")
    a(f"buffer_store_dwordx2 {vr(vR2,2)}, v{vT2}, {WS}, s{sJ} offen sc1")
    set_flag(a, f"s{sK}")
    a("L_c_done:")
    stamp(a, 14)

def phase_d(a):
    sQt, sCt, sCb, sKh, sOff, sXo, sJ, sU, sB, sCol = T, T+1, T+2, T+3, T+4, T+5, T+6, T+7, T+8, T+9
    vXo, vMx, vS, vLa, vPa, vLw = V0, V0+1, V0+2, V0+3, V0+4, V0+5
    vLd = 24
    vX = 32
    vG = 36
    vF = 44
    vR = 60
    vAcc = 68
    vU = 84
    vP = 116
    PS = 1056
    L_P, L_EX = 0, 20480
    srd(a, R_A, S_X, SZ_X)
    srd(a, R_B, S_OUT, SZ_X)
    a(f"""s_sub_u32 s{sJ}, 26, s{S_SLOT}
s_cmp_ge_u32 s{sJ}, 18
s_cbranch_scc1 L_d_idle
s_and_b32 s{sOff}, s{S_G}, 3
s_mul_i32 s{sOff}, s{sOff}, 18
s_add_u32 s{sOff}, s{sOff}, s{sJ}
s_lshr_b32 s{sCt}, s{sOff}, 3
s_and_b32 s{sJ}, s{sOff}, 7
s_lshr_b32 s{sB}, s{S_G}, 2
s_lshl_b32 s{sQt}, s{sB}, 3
s_add_u32 s{sQt}, s{sQt}, s{sJ}
s_and_b32 s{sCb}, s{S_W}, 3
s_lshr_b32 s{sKh}, s{S_W}, 2
s_lshl_b32 s{sCol}, s{sCt}, 7
s_lshl_b32 s{sOff}, s{sCb}, 5
s_add_u32 s{sCol}, s{sCol}, s{sOff}
s_lshl_b32 s{sOff}, s{sKh}, 4
s_add_u32 s{sCol}, s{sCol}, s{sOff}
s_mul_i32 s{sXo}, s{sQt}, {32*2304}
s_lshl_b32 s{sOff}, s{sCol}, 1
s_add_u32 s{sXo}, s{sXo}, s{sOff}
v_mul_u32_u24 v{vXo}, 2304, v{vTok}
v_lshl_add_u32 v{vXo}, v{vHF}, 4, v{vXo}
buffer_load_dwordx4 {vr(vX,4)}, v{vXo}, {RA}, s{sXo} offen
s_mul_i32 s{sU}, s{sB}, 36
s_lshl_b32 s{sOff}, s{sCt}, 2
s_add_u32 s{sU}, s{sU}, s{sOff}
s_add_u32 s{sU}, s{sU}, s{sCb}
s_lshl_b32 s{sU}, s{sU}, 4
s_lshl_b32 s{sOff}, s{sKh}, 3
s_add_u32 s{sU}, s{sU}, s{sOff}
v_lshlrev_b32 v{vT0}, 7, v0
s_lshl_b32 s{sOff}, s{sQt}, 9
s_add_u32 s{sOff}, s{sOff}, {F_L}
v_add_u32 v{vT1}, s{sOff}, v{vT0}
s_mul_i32 s{sOff}, s{sB}, 18
s_lshl_b32 s{T+10}, s{sCt}, 1
s_add_u32 s{sOff}, s{sOff}, s{T+10}
s_lshl_b32 s{sOff}, s{sOff}, 9
s_add_u32 s{sOff}, s{sOff}, {F_U - 512}
v_add_u32 v{vT2}, s{sOff}, v{vT0}
v_cmp_lt_u32 vcc, 3, v0
s_lshl_b32 s{sOff}, s{sCt}, 8
s_add_u32 s{sOff}, s{sOff}, {F_G}
v_cndmask_b32 v{vT1}, v{vT1}, v{vT2}, vcc
v_and_b32 v{vT2}, 128, v{vT0}
v_add_u32 v{vT2}, s{sOff}, v{vT2}
v_cmp_lt_u32 vcc, 11, v0
s_lshl_b32 s{sU}, s{sU}, 10
s_add_u32 s{sU}, s{sU}, {WS_U}
v_cndmask_b32 v{vT1}, v{vT1}, v{vT2}, vcc
v_and_b32 v{vT2}, 15, v0
v_lshrrev_b32 v{vT0}, 4, v0
s_lshl_b32 s{sOff}, s{S_W}, 2
v_add_u32 v{vT0}, s{sOff}, v{vT0}
v_lshlrev_b32 v{vLa}, 9, v{vT0}
v_lshl_add_u32 v{vLa}, v{vT2}, 4, v{vLa}
v_mul_u32_u24 v{vLw}, {PS//2}, v{vT2}
v_lshl_add_u32 v{vLw}, v{vT0}, 4, v{vLw}
v_lshl_add_u32 v{vPa}, v{vHF}, 4, v{vL16}""")
    poll(a, vT1, "0", vT2)
    stamp(a, 8)
    a(f"""s_lshl_b32 s{sOff}, s{sQt}, 14
s_add_u32 s{sOff}, s{sOff}, {WS_L}
buffer_load_dwordx4 {vr(vLd,4)}, v{vLa}, {WS}, s{sOff} offen sc1
buffer_load_dwordx4 {vr(vLd+4,4)}, v{vLa}, {WS}, s{sOff} offen offset:256 sc1
s_barrier""")
    for s in range(8):
        a(f"""s_add_u32 s{T+10}, s{sJ}, {s}
s_and_b32 s{T+10}, s{T+10}, 7
s_lshl_b32 s{T+10}, s{T+10}, 10
s_add_u32 s{T+10}, s{T+10}, s{sU}
buffer_load_dwordx4 {vr(vU+4*s,4)}, v{vL16}, {WS}, s{T+10} offen sc1""")
    a(f"""s_mul_i32 s{sOff}, s{sB}, 4608
s_lshl_b32 s{T+10}, s{sCol}, 2
s_add_u32 s{sOff}, s{sOff}, s{T+10}
s_add_u32 s{sOff}, s{sOff}, {WS_GATE}
v_lshlrev_b32 v{vT0}, 5, v{vHF}
buffer_load_dwordx4 {vr(vG,4)}, v{vT0}, {WS}, s{sOff} offen sc1
buffer_load_dwordx4 {vr(vG+4,4)}, v{vT0}, {WS}, s{sOff} offen offset:16 sc1
s_waitcnt vmcnt(10)""")
    stamp(a, 9)
    for i in range(8):
        unpack(a, vF+2*i, vF+2*i+1, vLd+i)
    a(f"v_max3_f32 v{vMx}, v{vF}, v{vF+1}, v{vF+2}")
    for i in range(3, 15, 2):
        a(f"v_max3_f32 v{vMx}, v{vMx}, v{vF+i}, v{vF+i+1}")
    a(f"v_max_f32 v{vMx}, v{vMx}, v{vF+15}")
    for m in ("quad_perm:[1,0,3,2]", "quad_perm:[2,3,0,1]", "row_half_mirror", "row_mirror"):
        a(f"s_nop 1\nv_max_f32_dpp v{vMx}, v{vMx}, v{vMx} {m} row_mask:0xf bank_mask:0xf")
    for i in range(16):
        a(f"v_sub_f32 v{vF+i}, v{vF+i}, v{vMx}")
    for i in range(16):
        a(f"v_mul_f32 v{vF+i}, {hex(LOG2E)}, v{vF+i}")
    for i in range(16):
        a(f"v_exp_f32 v{vF+i}, v{vF+i}")
    a(f"s_nop 0\nv_add_f32 v{vS}, v{vF}, v{vF+1}")
    for i in range(2, 16):
        a(f"v_add_f32 v{vS}, v{vS}, v{vF+i}")
    for m in ("quad_perm:[1,0,3,2]", "quad_perm:[2,3,0,1]", "row_half_mirror", "row_mirror"):
        a(f"s_nop 1\nv_add_f32_dpp v{vS}, v{vS}, v{vS} {m} row_mask:0xf bank_mask:0xf")
    a(f"v_rcp_f32 v{vS}, v{vS}\ns_nop 0")
    for i in range(16):
        a(f"v_mul_f32 v{vF+i}, v{vF+i}, v{vS}")
    for i in range(8):
        a(f"v_cvt_pk_bf16_f32 v{vLd+i}, v{vF+2*i}, v{vF+2*i+1}")
    a(f"""ds_write_b128 v{vLw}, {vr(vLd,4)} offset:{L_P}
ds_write_b128 v{vLw}, {vr(vLd+4,4)} offset:{L_P+8*PS}
s_mul_i32 s{sOff}, s{sKh}, {8*PS}
v_add_u32 v{vPa}, s{sOff}, v{vPa}
s_waitcnt lgkmcnt(0)
s_barrier""")
    for s in range(8):
        a(f"""s_add_u32 s{T+10}, s{sJ}, {s}
s_and_b32 s{T+10}, s{T+10}, 7
s_mul_i32 s{T+10}, s{T+10}, {PS}
v_add_u32 v{vT0}, s{T+10}, v{vPa}
ds_read_b128 {vr(vP+4*s,4)}, v{vT0} offset:{L_P}""")
    for s in range(8):
        a(f"s_waitcnt vmcnt({2+7-s}) lgkmcnt({7-s})")
        mfma(a, vAcc, vU+4*s, vP+4*s, s == 0)
    stamp(a, 10)
    lk1 = a.label("kh1"); lj = a.label("j")
    a(f"""s_lshl_b32 s{sOff}, s{S_W}, 11
v_add_u32 v{vT0}, s{sOff}, v{vL16}
v_xor_b32 v{vT1}, {4*2048}, v{vT0}
s_nop 10
s_cmp_lg_u32 s{sKh}, 0
s_cbranch_scc1 {lk1}
ds_write_b128 v{vT0}, {vr(vAcc+8,4)} offset:{L_EX}
ds_write_b128 v{vT0}, {vr(vAcc+12,4)} offset:{L_EX+1024}
s_branch {lj}
{lk1}:
ds_write_b128 v{vT0}, {vr(vAcc,4)} offset:{L_EX}
ds_write_b128 v{vT0}, {vr(vAcc+4,4)} offset:{L_EX+1024}""")
    for r in range(8):
        a(f"v_mov_b32 v{vAcc+r}, v{vAcc+8+r}")
    a(f"""{lj}:
s_waitcnt lgkmcnt(0)
s_barrier
ds_read_b128 {vr(vR,4)}, v{vT1} offset:{L_EX}
ds_read_b128 {vr(vR+4,4)}, v{vT1} offset:{L_EX+1024}
s_waitcnt vmcnt(0) lgkmcnt(0)""")
    for r in range(8):
        a(f"v_add_f32 v{vAcc+r}, v{vAcc+r}, v{vR+r}")
    for i in range(4):
        lo, hi = vAcc+2*i, vAcc+2*i+1
        a(f"v_cvt_pk_bf16_f32 v{vR+i}, v{lo}, v{hi}")
        unpack(a, lo, hi, vR+i)
        a(f"""v_mul_f32 v{lo}, v{lo}, v{vG+2*i}
v_mul_f32 v{hi}, v{hi}, v{vG+2*i+1}
v_cvt_pk_bf16_f32 v{vR+i}, v{lo}, v{hi}""")
        unpack(a, lo, hi, vR+i)
        unpack(a, vF, vF+1, vX+i)
        a(f"""v_add_f32 v{lo}, v{lo}, v{vF}
v_add_f32 v{hi}, v{hi}, v{vF+1}
v_cvt_pk_bf16_f32 v{vR+i}, v{lo}, v{hi}""")
    a(f"""buffer_store_dwordx4 {vr(vR,4)}, v{vXo}, {RB}, s{sXo} offen
s_branch L_fin
L_d_idle:
s_cmp_lg_u32 s2, {NO*8}
s_cbranch_scc1 L_fin""")
    lp = a.label("ep"); ld = a.label("epd")
    a(f"""s_lshl_b32 s{sOff}, s{S_W}, 6
v_add_u32 v{vT0}, s{sOff}, v0
v_min_u32 v{vT0}, 225, v{vT0}
v_lshlrev_b32 v{vT0}, 7, v{vT0}
s_movk_i32 s{sOff}, {F_L}
{lp}:
s_sleep 8
buffer_load_dword v{vLd}, v{vT0}, {WS}, s{sOff} offen sc1
s_waitcnt vmcnt(0)
v_cmp_ne_u32 vcc, s{S_TAG}, v{vLd}
s_cbranch_vccz {ld}
s_sub_u32 s{S_TO}, s{S_TO}, 1
s_cmp_lg_u32 s{S_TO}, 0
s_cbranch_scc1 {lp}
{ld}:
s_mov_b32 s{sOff}, {EPOCH}""")
    set_flag(a, f"s{sOff}")
    srd(a, R_A, S_DBG, 256)
    a(f"""s_cmp_lg_u32 s{S_W}, 0
s_cbranch_scc1 L_fin
v_lshlrev_b32 v{vT0}, 2, v0
v_mov_b32 v{vT1}, 0
buffer_store_dword v{vT1}, v{vT0}, {RA}, 0 offen sc1""")
    a("L_fin:")

def epilogue(a):
    if STAMP:
        a(f"""s_waitcnt vmcnt(0) lgkmcnt(0)
s_cmp_lg_u32 s{S_W}, {OPT.get('stw', 0)}
s_cbranch_scc1 L_end
{CLK} s[{S_ST+30}:{S_ST+31}]
s_memtime s[98:99]
s_waitcnt lgkmcnt(0)
s_sub_u32 s98, s98, s96""")
        for i in range(16):
            a(f"v_mov_b32 v{16+i}, s{S_ST+2*i}")
        a(f"""v_mov_b32 v32, s98
s_lshl_b32 s{T}, s2, 7
s_add_u32 s{T}, s{T}, {WS_STAMP}
v_mov_b32 v1, 0
s_mov_b64 exec, 1""")
        for i in range(4):
            a(f"buffer_store_dwordx4 v[{16+4*i}:{19+4*i}], v1, {WS}, s{T} offen offset:{16*i}")
        a(f"buffer_store_dword v32, v1, {WS}, s{T} offen offset:64")
    a("L_end:\ns_endpgm")

def main():
    a = Asm()
    a.raw("; @launch grid=(256,1,1) block=(512,1,1) lds=163840")
    a.raw('.amdgcn_target "amdgcn-amd-amdhsa--gfx950"\n.text')
    prologue(a)
    a(f"s_cmp_lt_u32 s{S_SLOT}, {NO}\ns_cbranch_scc1 L_owner")
    phase_b(a)
    phase_c(a)
    phase_d(a)
    epilogue(a)
    a("L_owner:")
    phase_owner(a)
    out = a.text() + kd(NAME, 244, 102)
    path = [x for x in sys.argv[1:] if not x.startswith('--')][0]
    open(path, 'w').write(out)
main()
```

```python
import sys, struct
from asmlib import *

OPT = dict(la='3', nt='nt', map='all', rot='1')
for a_ in sys.argv[1:]:
    if a_.startswith('--'):
        k, _, v = a_[2:].partition('=')
        OPT[k] = v
STAMP = 'stamp' in OPT
NT = OPT['nt']
CLK = "s_memtime" if 'cyc' in OPT else "s_memrealtime"

NAME = "standalone__dit_adaln_block__diffusion_kernel"
D = 1152
SZ_X = 512*D*2; SZ_C = 2*D*2; SZ_WQKV = D*3*D*2; SZ_WO = D*D*2; SZ_WMOD = D*6*D*2
SZ_WS = 1 << 28
F_STAT = 0x0
F_H = 0x2000
F_L = 0x4000
F_U = F_L + 64*128
F_G = F_U + 144*128
F_QKV = 0xC000
EPOCH = 0x13000
WS_GATE = 0x14000
WS_H = 0x20000
WS_QKV = 0x140000
WS_L = 0x4A0000
WS_U = 0x500000
WS_PART = 0x620000
WS_STAMP = 0x700000
LOG2E = 0x3fb8aa3b

S_W, S_TAG, S_G, S_SLOT, S_TO, S_TK = 3, 4, 5, 6, 7, 8
S_X, S_C, S_WQKV, S_WO, S_WMOD, S_OUT, S_DBG, S_WS = 16, 18, 20, 22, 24, 26, 28, 30
R_A, R_B, R_C, R_WS = 32, 36, 40, 44
T = 48
S_ST = 64
WS = f"s[{R_WS}:{R_WS+3}]"
RA = f"s[{R_A}:{R_A+3}]"; RB = f"s[{R_B}:{R_B+3}]"; RC = f"s[{R_C}:{R_C+3}]"
vL16, vP16, vB0, vB1, vCH, vR8, vHF, vTok = 1, 2, 3, 4, 5, 6, 7, 8
vT0, vT1, vT2, vT3 = 9, 10, 11, 12
vTAG = 13
V0 = 16

L_MISC = 147456
L_SIL = L_MISC
L_RED = L_SIL + 4608
L_FIN = L_RED + 4096
L_ROLE = L_FIN + 4096
L_STC = L_ROLE + 16
NO = 5

def srd(a, r, ptr, size):
    a(f"""s_mov_b32 s{r}, s{ptr}
s_and_b32 s{r+1}, s{ptr+1}, 0xffff
s_mov_b32 s{r+2}, {hex(size)}
s_mov_b32 s{r+3}, 0x20000""")

def stamp(a, i):
    if STAMP:
        a(f"{CLK} s[{S_ST+2*i}:{S_ST+2*i+1}]")

def unpack(a, lo, hi, src):
    a(f"v_lshlrev_b32 v{lo}, 16, v{src}\nv_and_b32 v{hi}, 0xffff0000, v{src}")

def round_bf16(a, v):
    a(f"v_cvt_pk_bf16_f32 v{v}, v{v}, v{v}\nv_lshlrev_b32 v{v}, 16, v{v}")

def mfma(a, acc, A, B, first=False):
    c = "0" if first else vr(acc, 16)
    a(f"v_mfma_f32_32x32x16_bf16 {vr(acc,16)}, {vr(A,4)}, {vr(B,4)}, {c}")

def wrap_add(a, s, step, s_end, s_start):
    a(f"""s_add_u32 s{s}, s{s}, {step}
s_cmp_eq_u32 s{s}, s{s_end}
s_cselect_b32 s{s}, s{s_start}, s{s}""")

def mod9(a, dst, src, tmp):
    a(f"""s_mul_i32 s{tmp}, s{src}, 57
s_lshr_b32 s{tmp}, s{tmp}, 9
s_mul_i32 s{tmp}, s{tmp}, 9
s_sub_u32 s{dst}, s{src}, s{tmp}""")

def poll(a, vaddr, soff, vtmp):
    l = a.label("poll"); d = a.label("polld")
    a(f"""s_cmp_lg_u32 s{S_W}, 0
s_cbranch_scc1 {d}
{l}:
buffer_load_dword v{vtmp}, v{vaddr}, {WS}, {soff} offen sc1
s_waitcnt vmcnt(0)
v_cmp_ne_u32 vcc, s{S_TAG}, v{vtmp}
s_cbranch_vccz {d}
s_sleep {OPT.get('sleep', 2)}
s_sub_u32 s{S_TO}, s{S_TO}, 1
s_cmp_lg_u32 s{S_TO}, 0
s_cbranch_scc1 {l}
s_mov_b32 s{S_TO}, 1
{d}:
s_barrier""")

def gpoll(a, loads, tagregs):
    l = a.label("gp"); d = a.label("gpd")
    a(f"{l}:")
    loads()
    a(f"s_waitcnt vmcnt(0)\nv_cmp_ne_u32 vcc, s{S_TAG}, v{tagregs[0]}")
    for r in tagregs[1:]:
        a(f"v_cmp_ne_u32 s[{T+14}:{T+15}], s{S_TAG}, v{r}\ns_or_b64 vcc, vcc, s[{T+14}:{T+15}]")
    a(f"""s_cbranch_vccz {d}
s_sleep {OPT.get('gsleep', 2)}
s_sub_u32 s{S_TO}, s{S_TO}, 1
s_cmp_lg_u32 s{S_TO}, 0
s_cbranch_scc1 {l}
s_mov_b32 s{S_TO}, 1
{d}:""")

def raw_flag(a, soff):
    a(f"""v_mov_b32 v{vT3}, 0
s_mov_b64 exec, 1
buffer_store_dword v{vTAG}, v{vT3}, {WS}, {soff} offen sc1
s_mov_b64 exec, -1""")

def set_flag(a, soff, younger=0):
    d = a.label("fl")
    a(f"""s_waitcnt vmcnt({younger})
s_barrier
s_cmp_lg_u32 s{S_W}, 0
s_cbranch_scc1 {d}""")
    raw_flag(a, soff)
    a(f"{d}:")

def trreads(a, wf, b0, b1, off):
    a(f"""ds_read_b64_tr_b16 {vr(wf,2)}, v{b0} offset:{off}
ds_read_b64_tr_b16 {vr(wf+2,2)}, v{b0} offset:{off+512}
ds_read_b64_tr_b16 {vr(wf+4,2)}, v{b1} offset:{off}
ds_read_b64_tr_b16 {vr(wf+6,2)}, v{b1} offset:{off+512}""")

def dma_tile(a, srdname, vD, pitch, s_rot, flags, n0=0, n1=18):
    sN, sO = T+10, T+11
    if s_rot is None:
        a(f"s_add_u32 s{sN}, s{S_W}, {8*n0}")
    else:
        a(f"s_lshl_b32 s{sN}, s{s_rot}, 3\ns_add_u32 s{sN}, s{sN}, s{S_W}")
    for n in range(n0, n1):
        a(f"""s_lshl_b32 m0, s{sN}, 10
s_mul_i32 s{sO}, s{sN}, {8*pitch}
buffer_load_dwordx4 v{vD}, {srdname}, s{sO} offen {flags} lds""")
        if n < n1-1:
            a(f"s_add_u32 s{sN}, s{sN}, 8")
            if s_rot is not None:
                a(f"""s_sub_u32 s{sO}, s{sN}, 144
s_cmp_ge_u32 s{sN}, 144
s_cselect_b32 s{sN}, s{sO}, s{sN}""")

def wave_sum(a, v, sdst):
    for m in ("quad_perm:[1,0,3,2]", "quad_perm:[2,3,0,1]", "row_half_mirror", "row_mirror"):
        a(f"s_nop 1\nv_add_f32_dpp v{v}, v{v}, v{v} {m} row_mask:0xf bank_mask:0xf")
    a(f"s_nop 1\nv_add_f32_dpp v{v}, v{v}, v{v} row_bcast:15 row_mask:0xa bank_mask:0xf")
    a(f"s_nop 1\nv_add_f32_dpp v{v}, v{v}, v{v} row_bcast:31 row_mask:0xc bank_mask:0xf")
    a(f"s_nop 1\nv_readlane_b32 s{sdst}, v{v}, 63\ns_nop 1")

def silu8(a, f, t):
    for i in range(8):
        a(f"v_mul_f32 v{t+i}, 0xbfb8aa3b, v{f+i}")
    for i in range(8):
        a(f"v_exp_f32 v{t+i}, v{t+i}")
    for i in range(8):
        a(f"v_add_f32 v{t+i}, 1.0, v{t+i}")
    for i in range(8):
        a(f"v_rcp_f32 v{t+i}, v{t+i}")
    for i in range(8):
        a(f"v_mul_f32 v{f+i}, v{f+i}, v{t+i}")

def lane_consts(a):
    a(f"""v_lshrrev_b32 v{vR8}, 3, v0
v_and_b32 v{vP16}, 0x33, v0
v_and_b32 v{vT0}, 4, v0
v_lshl_or_b32 v{vP16}, v{vT0}, 1, v{vP16}
v_and_b32 v{vT0}, 8, v0
v_lshrrev_b32 v{vT0}, 1, v{vT0}
v_or_b32 v{vP16}, v{vP16}, v{vT0}
v_lshlrev_b32 v{vP16}, 4, v{vP16}
v_lshrrev_b32 v{vT0}, 2, v0
v_and_b32 v{vT0}, 4, v{vT0}
v_and_b32 v{vCH}, 7, v0
v_xor_b32 v{vCH}, v{vCH}, v{vT0}
v_lshlrev_b32 v{vB0}, 10, v{vHF}
v_and_b32 v{vT0}, 12, v0
v_lshl_or_b32 v{vB0}, v{vT0}, 5, v{vB0}
v_and_b32 v{vT0}, 8, v0
v_lshl_or_b32 v{vB0}, v{vT0}, 3, v{vB0}
v_and_b32 v{vT0}, 16, v0
v_lshl_or_b32 v{vB0}, v{vT0}, 1, v{vB0}
v_and_b32 v{vT0}, 1, v0
v_lshl_or_b32 v{vB0}, v{vT0}, 4, v{vB0}
v_and_b32 v{vT0}, 2, v0
v_lshl_or_b32 v{vB0}, v{vT0}, 2, v{vB0}
v_xor_b32 v{vB1}, 64, v{vB0}""")

vTK = 15
def get_tag(a):
    a(f"""s_waitcnt lgkmcnt(0)
s_mul_i32 s{S_TAG}, s{S_TAG}, 1664525
s_add_u32 s{S_TAG}, s{S_TAG}, 1013904223
v_mov_b32 v{vTAG}, s{S_TAG}""")

def ticket_issue(a, base, scalar=False):
    d = a.label("tki")
    if scalar:
        a(f"""s_cmp_lg_u32 s{S_W}, 7
s_cbranch_scc1 {d}
s_mul_i32 s{T+15}, s{S_G}, 0x88
s_and_b32 s{T+15}, s{T+15}, 0xb0
s_add_u32 s{T+15}, s{T+15}, {base}
s_mov_b32 s{S_TK}, 1
s_atomic_add s{S_TK}, s[{S_DBG}:{S_DBG+1}], s{T+15} glc
{d}:""")
        return
    srd(a, R_B, S_DBG, 256)
    a(f"""s_cmp_lg_u32 s{S_W}, 7
s_cbranch_scc1 {d}
s_mul_i32 s{T+15}, s{S_G}, 0x88
s_and_b32 s{T+15}, s{T+15}, 0xb0
v_mov_b32 v{vTK}, 1
v_mov_b32 v{vT3}, 0
s_mov_b64 exec, 1
buffer_atomic_add v{vTK}, v{vT3}, {RB}, s{T+15} offen offset:{base} sc0
s_mov_b64 exec, -1
{d}:""")

def role_write(a, base, cap, first, scalar=False):
    d = a.label("rw"); l = a.label("tk"); ok = a.label("tkok")
    a(f"""s_cmp_lg_u32 s{S_W}, 7
s_cbranch_scc1 {d}""")
    if not scalar:
        a(f"""s_waitcnt vmcnt(0)
v_readfirstlane_b32 s{S_TK}, v{vTK}
s_nop 3""")
    a(f"""{l}:
s_waitcnt lgkmcnt(0)
s_cmp_lt_u32 s{S_TK}, {cap}
s_cbranch_scc1 {ok}
s_add_u32 s{S_G}, s{S_G}, 1
s_and_b32 s{S_G}, s{S_G}, 7
s_mul_i32 s{T+15}, s{S_G}, 0x88
s_and_b32 s{T+15}, s{T+15}, 0xb0
s_add_u32 s{T+15}, s{T+15}, {base}
s_mov_b32 s{S_TK}, 1
s_atomic_add s{S_TK}, s[{S_DBG}:{S_DBG+1}], s{T+15} glc
s_sub_u32 s{S_TO}, s{S_TO}, 1
s_cmp_lg_u32 s{S_TO}, 0
s_cbranch_scc1 {l}
s_waitcnt lgkmcnt(0)
s_mov_b32 s{S_TO}, 1
s_mov_b32 s{S_TK}, 0
{ok}:
s_add_u32 s{S_TK}, s{S_TK}, {first}
s_lshl_b32 s{S_TK}, s{S_TK}, 3
s_or_b32 s{S_TK}, s{S_TK}, s{S_G}
v_mov_b32 v{vT0}, s{S_TK}
v_mov_b32 v{vT1}, {L_ROLE}
ds_write_b32 v{vT1}, v{vT0}
s_waitcnt lgkmcnt(0)
{d}:""")

def role_read(a):
    a(f"""v_mov_b32 v{vT1}, {L_ROLE}
ds_read_b32 v{vT0}, v{vT1}
s_waitcnt lgkmcnt(0)
v_readfirstlane_b32 s{S_TK}, v{vT0}
s_nop 3
s_and_b32 s{S_TK}, s{S_TK}, 255
s_and_b32 s{S_G}, s{S_TK}, 7
s_lshr_b32 s{S_SLOT}, s{S_TK}, 3""")

NPF = 5
def w_prefetch(a, vdst, ndummy):
    if 'nopf' in OPT:
        return 0
    srd(a, R_A, S_WQKV, SZ_WQKV)
    a(f"""s_getreg_b32 s{T+12}, hwreg(HW_REG_HW_ID, 13, 2)
s_getreg_b32 s{T+13}, hwreg(HW_REG_HW_ID, 8, 3)
s_lshl_b32 s{T+12}, s{T+12}, 3
s_or_b32 s{T+12}, s{T+12}, s{T+13}
s_mul_i32 s{T+12}, s{T+12}, 36
s_add_u32 s{T+12}, s{T+12}, s{S_W}
s_mul_i32 s{T+12}, s{T+12}, 6912
s_mul_i32 s{T+13}, s{S_G}, 27
s_lshr_b32 s{T+13}, s{T+13}, 2
s_min_u32 s{T+13}, s{T+13}, 46
s_lshl_b32 s{T+13}, s{T+13}, 7
s_add_u32 s{T+12}, s{T+12}, s{T+13}""")
    lsk = a.label("pfsk")
    a(f"s_cmp_eq_u32 s{S_W}, 7\ns_cbranch_scc1 {lsk}")
    for n in range(NPF):
        a(f"buffer_load_dwordx4 {vr(vdst+4*n,4)}, v{vL16}, {RA}, s{T+12} offen {NT}")
        if n < NPF-1:
            a(f"s_add_u32 s{T+12}, s{T+12}, {7*6912}")
    lj = a.label("pfj")
    a(f"s_branch {lj}\n{lsk}:\ns_mov_b32 s{T+12}, {EPOCH}\nv_mov_b32 v{vT3}, 0")
    for n in range(ndummy):
        a(f"buffer_load_dword v{vdst+n}, v{vT3}, {WS}, s{T+12} offen")
    a(f"{lj}:")
    return NPF

def prologue(a):
    a.raw(f".globl {NAME}\n.p2align 8\n.type {NAME},@function\n{NAME}:")
    a(f"""s_cmp_ge_u32 s2, 256
s_cbranch_scc1 L_end
s_load_dwordx16 s[16:31], s[0:1], 0""")
    if STAMP:
        a(f"{CLK} s[{S_ST}:{S_ST+1}]\ns_memtime s[96:97]")
        for i in range(1, 16):
            a(f"s_mov_b32 s{S_ST+2*i}, 0")
    a(f"""v_lshrrev_b32 v1, 6, v0
v_and_b32 v0, 63, v0
s_getreg_b32 s{S_G}, hwreg(HW_REG_XCC_ID, 0, 3)
v_readfirstlane_b32 s{S_W}, v1
s_mov_b32 s{S_TO}, 0x40000
v_lshlrev_b32 v{vL16}, 4, v0
v_lshrrev_b32 v{vHF}, 5, v0
v_and_b32 v{vTok}, 31, v0
s_waitcnt lgkmcnt(0)
s_load_dword s{S_TAG}, s[{S_WS}:{S_WS+1}], {EPOCH}""")
    srd(a, R_WS, S_WS, SZ_WS)
    if 'tlb' in OPT:
        sh = int(OPT['tlb'] or 16)
        lt = a.label("tlb")
        a(f"s_cmp_lg_u32 s{S_W}, 6\ns_cbranch_scc1 {lt}\nv_lshlrev_b32 v{vT0}, {sh}, v0")
        regs = [(S_WS, 0x700000), (S_OUT, SZ_X), (S_WO, SZ_WO), (S_X, SZ_X), (S_WQKV, SZ_WQKV), (S_WMOD, SZ_WMOD)]
        k = 0
        for ptr, size in regs:
            srd(a, R_A, ptr, size)
            for off in range(0, size, 64 << sh):
                a(f"v_add_u32 v{vT1}, {off}, v{vT0}\nbuffer_load_dword v{200+k}, v{vT1}, {RA}, 0 offen sc1")
                k += 1
        a(f"{lt}:")
    a(f"""s_cmp_lt_u32 s2, 64
s_cbranch_scc1 L_s0_stats
s_cmp_lt_u32 s2, 94
s_cbranch_scc1 L_s0_none""")
    sP, sCg, sKs, sOff, sRow = T, T+1, T+2, T+3, T+4
    vW = 16
    vC = 32
    vSc = 36
    vTm = 44
    vAc = 52
    srd(a, R_A, S_WMOD, SZ_WMOD)
    srd(a, R_C, S_C, SZ_C)
    a(f"""s_sub_u32 s{sP}, s2, 94
s_mul_i32 s{sKs}, s{sP}, 57
s_lshr_b32 s{sKs}, s{sKs}, 9
s_mul_i32 s{sCg}, s{sKs}, 9
s_sub_u32 s{sCg}, s{sP}, s{sCg}
s_lshl_b32 s{sRow}, s{sKs}, 3
s_add_u32 s{sRow}, s{sRow}, s{S_W}
s_lshl_b32 s{sRow}, s{sRow}, 3
v_and_b32 v{vT0}, 15, v0
v_lshlrev_b32 v{vT0}, 4, v{vT0}
v_bfe_u32 v{vT1}, v0, 4, 1
v_mul_u32_u24 v{vT1}, 2304, v{vT1}
v_mul_u32_u24 v{vT2}, {4*13824}, v{vHF}
v_add3_u32 v{vT0}, v{vT0}, v{vT1}, v{vT2}
v_lshlrev_b32 v{vT1}, 3, v{vHF}
s_lshl_b32 s{sOff}, s{sRow}, 1
buffer_load_dwordx2 {vr(vC,2)}, v{vT1}, {RC}, s{sOff} offen
buffer_load_dwordx2 {vr(vC+2,2)}, v{vT1}, {RC}, s{sOff} offen offset:2304
s_mul_i32 s{sOff}, s{sRow}, 13824
s_lshl_b32 s{sRow}, s{sCg}, 8
s_add_u32 s{sOff}, s{sOff}, s{sRow}""")
    for n in range(4):
        a(f"buffer_load_dwordx4 {vr(vW+4*n,4)}, v{vT0}, {RA}, s{sOff} offen {NT}")
        if n < 3:
            a(f"s_add_u32 s{sOff}, s{sOff}, 13824")
    ticket_issue(a, 64)
    lane_consts(a)
    if 'nopf' not in OPT:
        a("s_barrier")
    npf = w_prefetch(a, 72, NPF-1)
    a(f"s_waitcnt vmcnt({4+npf})")
    for i in range(4):
        unpack(a, vSc+2*i, vSc+2*i+1, vC+i)
    silu8(a, vSc, vTm)
    for i in range(4):
        a(f"v_cvt_pk_bf16_f32 v{vC+i}, v{vSc+2*i}, v{vSc+2*i+1}")
    for i in range(4):
        unpack(a, vSc+2*i, vSc+2*i+1, vC+i)
    for n in range(4):
        a(f"s_waitcnt vmcnt({3-n+npf})")
        if n == 3: stamp(a, 8)
        for i in range(4):
            unpack(a, vTm+2*i, vTm+2*i+1, vW+4*n+i)
        for b in range(2):
            for j in range(8):
                op = "v_mul_f32" if n == 0 else "v_fmac_f32"
                a(f"{op} v{vAc+8*b+j}, v{vTm+j}, v{vSc+4*b+n}")
    a("s_nop 1")
    for j in range(8):
        a(f"v_permlane32_swap_b32 v{vAc+j}, v{vAc+8+j}")
    a("s_nop 1")
    for j in range(8):
        a(f"v_add_f32 v{vAc+j}, v{vAc+j}, v{vAc+8+j}")
    a(f"""s_lshl_b32 s{sOff}, s{S_W}, 11
v_lshlrev_b32 v{vT2}, 5, v0
v_add_u32 v{vT2}, s{sOff}, v{vT2}""")
    get_tag(a)
    a(f"""ds_write_b128 v{vT2}, {vr(vAc,4)}
ds_write_b128 v{vT2}, {vr(vAc+4,4)} offset:16
s_waitcnt lgkmcnt(0)
s_barrier""")
    lsk = a.label("pubsk")
    a(f"""s_cmp_ge_u32 s{S_W}, 4
s_cbranch_scc1 {lsk}
s_lshr_b32 s{sOff}, s{S_W}, 1
s_lshl_b32 s{sOff}, s{sOff}, 10
s_and_b32 s{sRow}, s{S_W}, 1
s_lshl_b32 s{sP}, s{sRow}, 8
s_add_u32 s{sOff}, s{sOff}, s{sP}
v_lshlrev_b32 v{vT2}, 3, v{vTok}
v_lshl_add_u32 v{vT2}, v{vHF}, 9, v{vT2}
v_add_u32 v{vT2}, s{sOff}, v{vT2}""")
    for w in range(8):
        a(f"ds_read_b64 {vr(vW+2*w,2)}, v{vT2} offset:{w*2048}")
    a(f"""s_lshl_b32 s{sP}, s{sCg}, 1
s_add_u32 s{sP}, s{sP}, s{sRow}
s_lshl_b32 s{sP}, s{sP}, 1
s_lshr_b32 s{sOff}, s{S_W}, 1
s_add_u32 s{sP}, s{sP}, s{sOff}
s_mul_i32 s{sP}, s{sP}, 18
s_add_u32 s{sP}, s{sP}, s{sKs}
s_lshl_b32 s{sP}, s{sP}, 10
s_add_u32 s{sP}, s{sP}, {WS_PART}
v_mov_b32 v{vAc+1}, v{vTAG}
v_mov_b32 v{vAc+3}, v{vTAG}
s_waitcnt lgkmcnt(0)
v_add_f32 v{vAc}, v{vW}, v{vW+2}
v_add_f32 v{vAc+2}, v{vW+1}, v{vW+3}""")
    for w in range(2, 8):
        a(f"v_add_f32 v{vAc}, v{vAc}, v{vW+2*w}\nv_add_f32 v{vAc+2}, v{vAc+2}, v{vW+2*w+1}")
    a(f"""buffer_store_dwordx4 {vr(vAc,4)}, v{vL16}, {WS}, s{sP} offen sc1
{lsk}:""")
    stamp(a, 9)
    a("s_branch L_s0_roleb")
    a("L_s0_stats:")
    vRW, vRF = 16, 32
    srd(a, R_C, S_X, SZ_X)
    ticket_issue(a, 0, True)
    a(f"""s_lshl_b32 s{sOff}, s2, 3
s_add_u32 s{sOff}, s{sOff}, s{S_W}
s_mul_i32 s{sOff}, s{sOff}, 2304
buffer_load_dwordx4 {vr(vRW,4)}, v{vL16}, {RC}, s{sOff} offen {NT}
buffer_load_dwordx4 {vr(vRW+4,4)}, v{vL16}, {RC}, s{sOff} offen offset:1024 {NT}
s_mov_b64 exec, 0xffff
buffer_load_dwordx4 {vr(vRW+8,4)}, v{vL16}, {RC}, s{sOff} offen offset:2048 {NT}
s_mov_b64 exec, -1""")
    lane_consts(a)
    get_tag(a)
    role_write(a, 0, 8, 0, True)
    a("s_barrier")
    role_read(a)
    stamp(a, 10)
    lg = a.label("notown"); lj = a.label("stj")
    a(f"""s_cmp_ge_u32 s{S_TK}, 36
s_cbranch_scc1 {lg}""")
    owner_xloads(a)
    a("s_waitcnt vmcnt(4)")
    a(f"s_branch {lj}\n{lg}:")
    npf = w_prefetch(a, 72, NPF)
    a(f"s_waitcnt vmcnt({npf})\n{lj}:")
    stamp(a, 8)
    for i in range(12):
        unpack(a, vRF+2*i, vRF+2*i+1, vRW+i)
    acc, acc2, mean = vRW, vRW+1, vRW+2
    a(f"v_add_f32 v{acc}, v{vRF}, v{vRF+1}\nv_add_f32 v{acc2}, v{vRF+2}, v{vRF+3}")
    for i in range(4, 16, 2):
        a(f"v_add_f32 v{acc}, v{acc}, v{vRF+i}\nv_add_f32 v{acc2}, v{acc2}, v{vRF+i+1}")
    a("s_mov_b64 exec, 0xffff")
    for i in range(16, 24, 2):
        a(f"v_add_f32 v{acc}, v{acc}, v{vRF+i}\nv_add_f32 v{acc2}, v{acc2}, v{vRF+i+1}")
    a(f"s_mov_b64 exec, -1\nv_add_f32 v{acc}, v{acc}, v{acc2}")
    wave_sum(a, acc, T+12)
    a(f"""v_mov_b32 v{vT2}, 0x3a638e39
v_mul_f32 v{mean}, s{T+12}, v{vT2}""")
    for i in range(24):
        a(f"v_sub_f32 v{vRF+i}, v{vRF+i}, v{mean}")
    a(f"v_mul_f32 v{acc}, v{vRF}, v{vRF}\nv_mul_f32 v{acc2}, v{vRF+1}, v{vRF+1}")
    for i in range(2, 16, 2):
        a(f"v_fmac_f32 v{acc}, v{vRF+i}, v{vRF+i}\nv_fmac_f32 v{acc2}, v{vRF+i+1}, v{vRF+i+1}")
    a("s_mov_b64 exec, 0xffff")
    for i in range(16, 24, 2):
        a(f"v_fmac_f32 v{acc}, v{vRF+i}, v{vRF+i}\nv_fmac_f32 v{acc2}, v{vRF+i+1}, v{vRF+i+1}")
    a(f"s_mov_b64 exec, -1\nv_add_f32 v{acc}, v{acc}, v{acc2}")
    wave_sum(a, acc, T+12)
    g = vRW+4
    a(f"v_mul_f32 v{g+1}, s{T+12}, v{vT2}\nv_mov_b32 v{g}, v{mean}")
    round_bf16(a, g+1)
    a(f"v_add_f32 v{g+1}, 0x3727c5ac, v{g+1}")
    round_bf16(a, g+1)
    a(f"v_sqrt_f32 v{g+1}, v{g+1}\ns_nop 0")
    round_bf16(a, g+1)
    a(f"v_rcp_f32 v{g+1}, v{g+1}")
    round_bf16(a, g)
    lsk = a.label("stsk")
    a(f"""v_mov_b32 v{g+2}, v{vTAG}
v_mov_b32 v{g+3}, v{vTAG}
s_lshl_b32 s{T+12}, s{S_W}, 4
s_add_u32 s{T+12}, s{T+12}, {L_STC}
v_mov_b32 v{vT0}, s{T+12}
s_mov_b64 exec, 1
ds_write_b128 v{vT0}, {vr(g,4)}
s_mov_b64 exec, -1
s_waitcnt lgkmcnt(0)
s_barrier
s_cmp_lg_u32 s{S_W}, 0
s_cbranch_scc1 {lsk}
s_lshl_b32 s{T+12}, s2, 7
s_add_u32 s{T+12}, s{T+12}, {F_STAT}
v_add_u32 v{vT0}, {L_STC}, v{vL16}
s_mov_b64 exec, 0xff
ds_read_b128 {vr(g,4)}, v{vT0}
s_waitcnt lgkmcnt(0)
buffer_store_dwordx4 {vr(g,4)}, v{vL16}, {WS}, s{T+12} offen sc1
s_mov_b64 exec, -1
{lsk}:""")
    stamp(a, 9)
    a("s_branch L_s0_end")
    a("L_s0_none:")
    ticket_issue(a, 64)
    w_prefetch(a, 72, 0)
    lane_consts(a)
    get_tag(a)
    a("L_s0_roleb:")
    role_write(a, 64, 24, 8)
    a("s_barrier")
    role_read(a)
    stamp(a, 10)
    a(f"L_s0_end:\ns_mov_b32 s2, s{S_TK}")

VOX = 96
def owner_xloads(a):
    a(f"""s_lshr_b32 s{T+12}, s{S_TK}, 1
s_and_b32 s{T+13}, s{S_TK}, 1
s_lshl_b32 s{T+13}, s{T+13}, 3
s_add_u32 s{T+13}, s{T+13}, s{S_W}
v_mul_u32_u24 v{vT0}, 2304, v{vR8}
v_and_b32 v{vT1}, 7, v0
v_lshl_add_u32 v{vT0}, v{vT1}, 4, v{vT0}
s_mul_i32 s{T+13}, s{T+13}, {32*2304}
s_lshl_b32 s{T+12}, s{T+12}, 7
s_add_u32 s{T+13}, s{T+13}, s{T+12}""")
    a(f"s_lshl_b32 m0, s{S_W}, 12")
    for q in range(4):
        a(f"s_nop 0\nbuffer_load_dwordx4 v{vT0}, {RC}, s{T+13} offen {NT} lds")
        if q < 3:
            a(f"s_add_u32 s{T+13}, s{T+13}, {8*2304}\ns_add_u32 m0, m0, 1024")

def gemv_dma(a, sColA, vD):
    sRow0, sOff = T+2, T+3
    a(f"""v_lshlrev_b32 v{vD}, 4, v{vCH}
v_mul_u32_u24 v{vT0}, 13824, v{vR8}
v_add3_u32 v{vD}, v{vD}, v{vT0}, s{sColA}
s_mul_i32 s{sOff}, s{sRow0}, 13824
s_lshl_b32 m0, s{sRow0}, 7""")
    for t in range(18):
        a(f"""s_nop 0
buffer_load_dwordx4 v{vD}, {RA}, s{sOff} offen {NT} lds""")
        if t < 17:
            a(f"s_add_u32 s{sOff}, s{sOff}, {8*13824}\ns_add_u32 m0, m0, 1024")

def phase_owner(a):
    sColA, sB, sRow0, sOff, sO, sCs, sTb = T, T+1, T+2, T+3, T+4, T+5, T+6
    vD, vA0, vA1, vSil, vCs = V0, V0+1, V0+2, V0+3, V0+4
    vC = 24
    vST = 28
    vX = VOX
    vXN = 48
    vPt = 80
    vAcc = 112
    vWF = 144
    vSF = 160
    vM = 184
    a(f"""s_mov_b32 s{sO}, s2
s_cmp_ge_u32 s{sO}, 36
s_cbranch_scc1 L_o_pref
s_lshr_b32 s{sCs}, s{sO}, 1
s_and_b32 s{sB}, s{sO}, 1
s_lshl_b32 s{sTb}, s{sB}, 3
s_add_u32 s{sTb}, s{sTb}, s{S_W}""")
    vST = 32
    a(f"""v_and_b32 v{vT3}, 7, v0
v_lshlrev_b32 v{vT2}, 4, v{vT3}
v_lshlrev_b32 v{vT0}, 7, v{vT3}
v_lshl_add_u32 v{vT0}, v{vR8}, 4, v{vT0}
s_lshl_b32 s{T+9}, s{S_W}, 12
v_add_u32 v{vT0}, s{T+9}, v{vT0}
s_lshl_b32 s{T+9}, s{sTb}, 9
s_add_u32 s{T+9}, s{T+9}, {F_STAT}""")
    def stl():
        for q in range(4):
            a(f"buffer_load_dwordx4 {vr(vST+4*q,4)}, v{vT2}, {WS}, s{T+9} offen offset:{128*q} sc1")
    gpoll(a, stl, [vST+2, vST+6, vST+10, vST+14])
    stamp(a, 1)
    for q in range(4):
        a(f"ds_read_b128 {vr(vX+4*q,4)}, v{vT0} offset:{q*1024}")
    vPt = 112
    def pl():
        a(f"s_mov_b32 s{T+10}, s{T+9}")
        for n in range(18):
            a(f"buffer_load_dwordx4 {vr(vPt+4*n,4)}, v{vL16}, {WS}, s{T+10} offen offset:{(n&3)*1024} sc1")
            if (n & 3) == 3:
                a(f"s_add_u32 s{T+10}, s{T+10}, 4096")
    lw0 = a.label("w0a")
    a(f"""s_mul_i32 s{T+9}, s{sO}, {18*1024}
s_add_u32 s{T+9}, s{T+9}, {WS_PART}
s_cmp_lg_u32 s{S_W}, 0
s_cbranch_scc1 {lw0}""")
    pl()
    a(f"{lw0}:")
    P = [(q, i) for q in range(4) for i in range(4)]
    lo = lambda q, i: vXN+8*q+2*i
    hi = lambda q, i: vXN+8*q+2*i+1
    xs = lambda q, i: vX+4*q+i
    def st_unpack():
        for q, i in P: unpack(a, lo(q,i), hi(q,i), xs(q,i))
    def st_cvt():
        for q, i in P: a(f"v_cvt_pk_bf16_f32 v{xs(q,i)}, v{lo(q,i)}, v{hi(q,i)}")
    def st_op(op, f):
        for q, i in P:
            a(f"{op} v{lo(q,i)}, v{lo(q,i)}, v{f(q,2*i)}\n{op} v{hi(q,i)}, v{hi(q,i)}, v{f(q,2*i+1)}")
    a("s_waitcnt lgkmcnt(0)")
    st_unpack(); st_op("v_sub_f32", lambda q, j: vST+4*q); st_cvt()
    st_unpack(); st_op("v_mul_f32", lambda q, j: vST+4*q+1); st_cvt()
    st_unpack()
    a(f"""v_lshlrev_b32 v{vT1}, 5, v{vR8}
v_add_u32 v{vT1}, {L_FIN}, v{vT1}
v_lshl_add_u32 v{vCs}, v{vR8}, 9, v{vT2}
s_mul_i32 s{sOff}, s{sTb}, {72*1024}
s_lshl_b32 s{T+11}, s{sCs}, 12
s_add_u32 s{sOff}, s{sOff}, s{T+11}
s_add_u32 s{sOff}, s{sOff}, {WS_H}""")
    stamp(a, 2)
    lw1 = a.label("w0b"); lp = a.label("pp"); ld = a.label("ppd")
    a(f"""s_cmp_lg_u32 s{S_W}, 0
s_cbranch_scc1 {lw1}
v_lshlrev_b32 v{vT0}, 3, v0
v_add_u32 v{vT0}, {L_FIN}, v{vT0}
v_cvt_f32_u32 v{vT2}, v{vHF}
{lp}:
s_waitcnt vmcnt(0)
v_and_b32 v{vM}, v{vPt+1}, v{vPt+3}
v_or_b32 v{vM+1}, v{vPt+1}, v{vPt+3}""")
    for n in range(1, 18):
        a(f"""v_and_b32 v{vM}, v{vM}, v{vPt+4*n+1}
v_or3_b32 v{vM+1}, v{vM+1}, v{vPt+4*n+1}, v{vPt+4*n+3}
v_and_b32 v{vM}, v{vM}, v{vPt+4*n+3}""")
    a(f"""v_cmp_ne_u32 vcc, s{S_TAG}, v{vM}
v_cmp_ne_u32 s[{T+14}:{T+15}], s{S_TAG}, v{vM+1}
s_or_b64 vcc, vcc, s[{T+14}:{T+15}]
s_cbranch_vccz {ld}
s_sub_u32 s{S_TO}, s{S_TO}, 1
s_cmp_eq_u32 s{S_TO}, 0
s_cbranch_scc1 {ld}""")
    pl()
    a(f"s_branch {lp}\n{ld}:\ns_max_u32 s{S_TO}, s{S_TO}, 1")
    for n in range(2, 18, 2):
        a(f"""v_add_f32 v{vPt}, v{vPt}, v{vPt+4*n}
v_add_f32 v{vPt+2}, v{vPt+2}, v{vPt+4*n+2}
v_add_f32 v{vPt+4}, v{vPt+4}, v{vPt+4*n+4}
v_add_f32 v{vPt+6}, v{vPt+6}, v{vPt+4*n+6}""")
    a(f"""v_add_f32 v{vPt}, v{vPt}, v{vPt+4}
v_add_f32 v{vPt+1}, v{vPt+2}, v{vPt+6}
v_cvt_pk_bf16_f32 v{vPt+2}, v{vPt}, v{vPt+1}""")
    unpack(a, vPt, vPt+1, vPt+2)
    a(f"""v_add_f32 v{vPt}, v{vPt}, v{vT2}
v_add_f32 v{vPt+1}, v{vPt+1}, v{vT2}
v_cvt_pk_bf16_f32 v{vPt+2}, v{vPt}, v{vPt+1}""")
    unpack(a, vPt, vPt+1, vPt+2)
    a(f"""ds_write_b64 v{vT0}, {vr(vPt,2)}
s_waitcnt lgkmcnt(0)
{lw1}:
s_barrier""")
    stamp(a, 3)
    a(f"""ds_read_b128 {vr(vM+8,4)}, v{vT1} offset:256
ds_read_b128 {vr(vM+12,4)}, v{vT1} offset:272
ds_read_b128 {vr(vM,4)}, v{vT1}
ds_read_b128 {vr(vM+4,4)}, v{vT1} offset:16
s_waitcnt lgkmcnt(2)""")
    st_op("v_mul_f32", lambda q, j: vM+8+j); st_cvt(); st_unpack()
    a("s_waitcnt lgkmcnt(0)")
    for q in range(4):
        for i in range(4):
            a(f"v_add_f32 v{lo(q,i)}, v{lo(q,i)}, v{vM+2*i}\nv_add_f32 v{hi(q,i)}, v{hi(q,i)}, v{vM+2*i+1}")
        for i in range(4):
            a(f"v_cvt_pk_bf16_f32 v{xs(q,i)}, v{lo(q,i)}, v{hi(q,i)}")
        a(f"buffer_store_dwordx4 {vr(vX+4*q,4)}, v{vCs}, {WS}, s{sOff} offen offset:{q*128} sc1")
    stamp(a, 4)
    a(f"""s_mul_i32 s{sOff}, s{sB}, 18
s_add_u32 s{sOff}, s{sOff}, s{sCs}
s_lshl_b32 s{sOff}, s{sOff}, 7
s_add_u32 s{sOff}, s{sOff}, {F_H}""")
    set_flag(a, f"s{sOff}")
    stamp(a, 5)
    a("L_o_pref:")
    srd(a, R_B, S_WO, SZ_WO)
    a(f"""s_and_b32 s{sOff}, s{S_G}, 3
s_mul_i32 s{sOff}, s{sOff}, 18
s_lshl_b32 s{T+9}, s{S_SLOT}, 2
s_add_u32 s{sOff}, s{sOff}, s{T+9}
s_add_u32 s{sOff}, s{sOff}, 1
s_lshr_b32 s{sOff}, s{sOff}, 2
s_lshl_b32 s{sOff}, s{sOff}, 7
v_lshlrev_b32 v{vT1}, 4, v{vCH}
v_mul_u32_u24 v{vT0}, 2304, v{vR8}
v_add3_u32 v{vT1}, v{vT1}, v{vT0}, s{sOff}""")
    dma_tile(a, RB, vT1, 2304, None, NT)
    a(f"""s_waitcnt vmcnt(0)
s_barrier""")
    stamp(a, 6)
    srd(a, R_A, S_WMOD, SZ_WMOD)
    srd(a, R_C, S_C, SZ_C)
    a(f"""s_cmp_ge_u32 s{sO}, 18
s_cbranch_scc1 L_fin
s_mul_i32 s{sRow0}, s{S_W}, 144
v_min_u32 v{vT0}, 17, v{vTok}
v_lshlrev_b32 v{vT0}, 4, v{vT0}
v_mul_u32_u24 v{vT1}, 2304, v{vHF}
v_add_u32 v{vCs}, v{vT0}, v{vT1}
s_lshl_b32 s{sOff}, s{sRow0}, 1
buffer_load_dwordx4 {vr(vC,4)}, v{vCs}, {RC}, s{sOff} offen
s_lshl_b32 s{sColA}, s{sO}, 7
s_add_u32 s{sColA}, s{sColA}, 4608""")
    gemv_dma(a, sColA, vD)
    a(f"""s_lshl_b32 s{sOff}, s{sRow0}, 7
v_add_u32 v{vA0}, s{sOff}, v{vB0}
v_add_u32 v{vA1}, s{sOff}, v{vB1}
s_waitcnt vmcnt(18)""")
    for i in range(4):
        unpack(a, vM+2*i, vM+2*i+1, vC+i)
    silu8(a, vM, vM+8)
    for i in range(4):
        a(f"v_cvt_pk_bf16_f32 v{vC+i}, v{vM+2*i}, v{vM+2*i+1}")
    a(f"""s_lshl_b32 s{sOff}, s{sRow0}, 1
s_add_u32 s{sOff}, s{sOff}, {L_SIL}
v_add_u32 v{vCs}, s{sOff}, v{vCs}
ds_write_b128 v{vCs}, {vr(vC,4)}
v_and_b32 v{vT0}, 1, v0
v_mul_u32_u24 v{vT0}, 2304, v{vT0}
v_lshl_add_u32 v{vT0}, v{vHF}, 4, v{vT0}
v_add_u32 v{vSil}, s{sOff}, v{vT0}
s_waitcnt lgkmcnt(0)""")
    for s in range(9):
        wf = vWF + 8*(s & 1); sf = vSF + 4*(s & 1)
        a(f"s_waitcnt vmcnt({18-2*(s+1)})")
        a(f"ds_read_b128 {vr(sf,4)}, v{vSil} offset:{s*32}")
        trreads(a, wf, vA0, vA1, s*2048)
        a("s_waitcnt lgkmcnt(2)")
        mfma(a, vAcc, wf, sf, s == 0)
        a("s_waitcnt lgkmcnt(0)")
        mfma(a, vAcc+16, wf+4, sf, s == 0)
    a(f"""v_and_b32 v{vT0}, 1, v0
v_lshlrev_b32 v{vT0}, 8, v{vT0}
v_lshl_add_u32 v{vT0}, v{vHF}, 5, v{vT0}
s_lshl_b32 s{sOff}, s{S_W}, 9
s_add_u32 s{sOff}, s{sOff}, {L_RED}
v_add_u32 v{vT0}, s{sOff}, v{vT0}
s_mov_b32 exec_lo, 3
s_mov_b32 exec_hi, 3
s_nop 8""")
    for cb in range(2):
        for q, off in enumerate((0, 16, 64, 80)):
            a(f"ds_write_b128 v{vT0}, {vr(vAcc+16*cb+4*q,4)} offset:{cb*128+off}")
    a(f"""s_mov_b64 exec, -1
s_waitcnt lgkmcnt(0)
s_barrier
s_lshr_b32 s{sOff}, s{S_W}, 2
s_lshl_b32 s{sOff}, s{sOff}, 8
s_add_u32 s{sOff}, s{sOff}, {L_RED}
v_lshlrev_b32 v{vT0}, 2, v0
v_add_u32 v{vT1}, s{sOff}, v{vT0}""")
    for w in range(8):
        a(f"ds_read_b32 v{vAcc+w}, v{vT1} offset:{w*512}")
    a("s_waitcnt lgkmcnt(0)")
    for w in range(1, 8):
        a(f"v_add_f32 v{vAcc}, v{vAcc}, v{vAcc+w}")
    round_bf16(a, vAcc)
    lsk = a.label("gsk")
    a(f"""s_and_b32 s{sOff}, s{S_W}, 3
s_cmp_lg_u32 s{sOff}, 0
s_cbranch_scc1 {lsk}
s_lshr_b32 s{T+9}, s{S_W}, 2
s_mul_i32 s{sOff}, s{T+9}, 4608
s_lshl_b32 s{sColA}, s{sO}, 8
s_add_u32 s{sOff}, s{sOff}, s{sColA}
s_add_u32 s{sOff}, s{sOff}, {WS_GATE}
buffer_store_dword v{vAcc}, v{vT0}, {WS}, s{sOff} offen sc1
{lsk}:
s_lshl_b32 s{sOff}, s{sO}, 7
s_add_u32 s{sOff}, s{sOff}, {F_G}""")
    set_flag(a, f"s{sOff}")
    stamp(a, 7)
    a("s_branch L_fin")

S_UCT, S_UTB = 9, 10
vDU = 14
def u_setup(a):
    srd(a, R_B, S_WO, SZ_WO)
    a(f"""s_and_b32 s{T+14}, s{S_G}, 3
s_mul_i32 s{T+14}, s{T+14}, 18
s_add_u32 s{T+14}, s{T+14}, s{S_SLOT}
s_lshr_b32 s{S_UCT}, s{T+14}, 2
s_and_b32 s{T+14}, s{T+14}, 3
s_lshr_b32 s{S_UTB}, s{S_G}, 2
s_lshl_b32 s{S_UTB}, s{S_UTB}, 2
s_add_u32 s{S_UTB}, s{S_UTB}, s{T+14}
s_lshl_b32 s{S_UTB}, s{S_UTB}, 1
s_and_b32 s{T+14}, s{S_W}, 1
s_add_u32 s{S_UTB}, s{S_UTB}, s{T+14}
v_lshlrev_b32 v{vDU}, 4, v{vCH}
v_mul_u32_u24 v{vT0}, 2304, v{vR8}
s_lshl_b32 s{T+14}, s{S_UCT}, 7
v_add3_u32 v{vDU}, v{vDU}, v{vT0}, s{T+14}""")

KE = int(OPT.get('ke', 6))
def phase_b(a):
    sCt, sTb, sKh, sRt, sOff, sHs, sHe, sLo, sLe, sLs = T, T+1, T+2, T+3, T+4, T+5, T+6, T+7, T+8, T+9
    vD, vA0, vA1 = V0, V0+1, V0+2
    vAcc = 20
    vWF = 52
    vH = 84
    srd(a, R_A, S_WQKV, SZ_WQKV)
    a(f"s_sub_u32 s{S_SLOT}, s{S_SLOT}, {NO}")
    if OPT['map'] == 'all':
        a(f"""s_mul_i32 s{sOff}, s{S_G}, 27
s_add_u32 s{sOff}, s{sOff}, s{S_SLOT}
s_lshr_b32 s{sCt}, s{sOff}, 2
s_and_b32 s{sRt}, s{sOff}, 3
s_lshl_b32 s{sTb}, s{sRt}, 2
s_mul_i32 s{sRt}, s{sRt}, 9
s_lshr_b32 s{sRt}, s{sRt}, 1""")
    else:
        a(f"""s_and_b32 s{sOff}, s{S_G}, 3
s_mul_i32 s{sOff}, s{sOff}, 27
s_add_u32 s{sOff}, s{sOff}, s{S_SLOT}
s_lshr_b32 s{sCt}, s{sOff}, 1
s_and_b32 s{sRt}, s{sOff}, 1
s_lshr_b32 s{sTb}, s{S_G}, 2
s_lshl_b32 s{sTb}, s{sTb}, 1
s_add_u32 s{sTb}, s{sTb}, s{sRt}
s_lshl_b32 s{sTb}, s{sTb}, 2
s_mul_i32 s{sRt}, s{sRt}, 9""")
    a(f"""s_and_b32 s{sOff}, s{S_W}, 3
s_add_u32 s{sTb}, s{sTb}, s{sOff}
s_lshr_b32 s{sKh}, s{S_W}, 2
v_lshlrev_b32 v{vD}, 4, v{vCH}
v_mul_u32_u24 v{vT0}, 6912, v{vR8}
s_lshl_b32 s{sOff}, s{sCt}, 7
v_add3_u32 v{vD}, v{vD}, v{vT0}, s{sOff}""")
    dma_tile(a, RA, vD, 6912, sRt, NT)
    stamp(a, 1)
    u_setup(a)
    if OPT['rot'] == '1':
        mod9(a, sRt, sCt, sOff)
    elif OPT['rot'] == '0':
        a(f"s_mov_b32 s{sRt}, 0")
    else:
        a(f"s_and_b32 s{sRt}, s{sCt}, {int(OPT['rot'])-1}")
    a(f"""s_mul_i32 s{sHs}, s{sTb}, {72*1024}
s_mul_i32 s{sOff}, s{sKh}, {36*1024}
s_add_u32 s{sHs}, s{sHs}, s{sOff}
s_add_u32 s{sHs}, s{sHs}, {WS_H}
s_add_u32 s{sHe}, s{sHs}, {36*1024}
s_lshl_b32 s{sOff}, s{sRt}, 12
s_add_u32 s{T+12}, s{sHs}, s{sOff}
s_mul_i32 s{sLs}, s{sKh}, {576*128}
s_add_u32 s{sLe}, s{sLs}, {576*128}
s_lshl_b32 s{sOff}, s{sRt}, 13
s_add_u32 s{sLo}, s{sLs}, s{sOff}
v_min_u32 v{vT0}, 17, v0
v_lshlrev_b32 v{vT0}, 7, v{vT0}
s_lshr_b32 s{sOff}, s{sTb}, 3
s_mul_i32 s{sOff}, s{sOff}, {18*128}
s_add_u32 s{sOff}, s{sOff}, {F_H}
s_waitcnt vmcnt(0)""")
    stamp(a, 2)
    poll(a, vT0, f"s{sOff}", vT1)
    stamp(a, 3)
    sH = T+12
    LA = int(float(OPT['la'])*4)
    WA = int(OPT.get('wa', 2))
    def hload(s):
        a(f"buffer_load_dwordx4 {vr(vH+4*s,4)}, v{vL16}, {WS}, s{sH} offen offset:{(s&3)*1024} sc1")
        if (s & 3) == 3 and s < 35:
            wrap_add(a, sH, 4096, sHe, sHs)
    def wread(s):
        if (s & 3) == 0:
            a(f"v_add_u32 v{vA0}, s{sLo}, v{vB0}\nv_add_u32 v{vA1}, s{sLo}, v{vB1}")
            wrap_add(a, sLo, 8192, sLe, sLs)
        trreads(a, vWF + 8*(s & 3), vA0, vA1, (s & 3)*2048)
    for s in range(LA):
        hload(s)
    for s in range(WA):
        wread(s)
    for s in range(36):
        lg = 4*min(WA-1, 35 - s)
        issued = min(36, s + LA)
        a(f"s_waitcnt vmcnt({issued - s - 1}) lgkmcnt({lg})")
        if s == 0: stamp(a, 4)
        mfma(a, vAcc, vWF+8*(s & 3), vH+4*s, s == 0)
        if s + WA < 36:
            wread(s + WA)
        mfma(a, vAcc+16, vWF+8*(s & 3)+4, vH+4*s, s == 0)
        if s + LA < 36:
            hload(s + LA)
    stamp(a, 5)
    XB = 131072
    lk1 = a.label("kh1"); lj = a.label("j")
    a(f"""s_lshl_b32 s{sOff}, s{S_W}, 12
s_add_u32 s{sOff}, s{sOff}, {XB}
v_add_u32 v{vT0}, s{sOff}, v{vL16}
v_xor_b32 v{vT1}, {4*4096}, v{vT0}
s_nop 8
s_barrier
s_cmp_lg_u32 s{sKh}, 0
s_cbranch_scc1 {lk1}""")
    for q in range(4):
        a(f"ds_write_b128 v{vT0}, {vr(vAcc+16+4*q,4)} offset:{q*1024}")
    a(f"s_branch {lj}\n{lk1}:")
    for q in range(4):
        a(f"ds_write_b128 v{vT0}, {vr(vAcc+4*q,4)} offset:{q*1024}")
    for r in range(16):
        a(f"v_mov_b32 v{vAcc+r}, v{vAcc+16+r}")
    a(f"{lj}:\ns_waitcnt lgkmcnt(0)\ns_barrier")
    for q in range(4):
        a(f"ds_read_b128 {vr(vWF+4*q,4)}, v{vT1} offset:{q*1024}")
    a(f"""s_mul_i32 s{sHs}, s{sTb}, {216*1024}
s_lshl_b32 s{sOff}, s{sCt}, 12
s_add_u32 s{sHs}, s{sHs}, s{sOff}
s_lshl_b32 s{sOff}, s{sKh}, 11
s_add_u32 s{sHs}, s{sHs}, s{sOff}
s_add_u32 s{sHs}, s{sHs}, {WS_QKV}""")
    for u in range(2):
        a(f"s_waitcnt lgkmcnt({2-2*u})")
        for r in range(8*u, 8*u+8):
            a(f"v_add_f32 v{vAcc+r}, v{vAcc+r}, v{vWF+r}")
        for r in range(4*u, 4*u+4):
            a(f"v_cvt_pk_bf16_f32 v{vWF+16+r}, v{vAcc+2*r}, v{vAcc+2*r+1}")
        a(f"buffer_store_dwordx4 {vr(vWF+16+4*u,4)}, v{vL16}, {WS}, s{sHs} offen offset:{1024*u} sc1")
    stamp(a, 6)
    a(f"""s_lshr_b32 s{sHs}, s{sTb}, 2
s_mul_i32 s{sHs}, s{sHs}, 54
s_add_u32 s{sHs}, s{sHs}, s{sCt}
s_lshl_b32 s{sHs}, s{sHs}, 7
s_add_u32 s{sHs}, s{sHs}, {F_QKV}
s_cmp_ge_u32 s{S_SLOT}, 18
s_cbranch_scc1 L_c_notu""")
    if KE:
        dma_tile(a, RB, vDU, 2304, None, NT, 0, KE)
    set_flag(a, f"s{sHs}", KE)
    stamp(a, 7)

def phase_c(a):
    vA0, vA1 = V0+1, V0+2
    vAcc = 20
    vWF = 52
    vR = 84
    vH = 92
    sKq, sJ, sOff, sHs, sHe, sLo, sLe, sLs = T+2, T+3, T+4, T+5, T+6, T+7, T+8, T+9
    sCt, sTb = S_UCT, S_UTB
    sH = T+12
    dma_tile(a, RB, vDU, 2304, None, NT, KE, 18)
    a(f"s_lshr_b32 s{sKq}, s{S_W}, 1\ns_lshl_b32 s{sJ}, s{sCt}, 1")
    mod9(a, sJ, sJ, sOff)
    a(f"""s_mul_i32 s{sHs}, s{sTb}, {216*1024}
s_mul_i32 s{sOff}, s{sKq}, {18*1024}
s_add_u32 s{sHs}, s{sHs}, s{sOff}
s_add_u32 s{sHs}, s{sHs}, {WS_QKV + 144*1024}
s_add_u32 s{sHe}, s{sHs}, {18*1024}
s_lshl_b32 s{sOff}, s{sJ}, 11
s_add_u32 s{sH}, s{sHs}, s{sOff}
s_mul_i32 s{sLs}, s{sKq}, {288*128}
s_add_u32 s{sLe}, s{sLs}, {288*128}
s_lshl_b32 s{sOff}, s{sJ}, 12
s_add_u32 s{sLo}, s{sLs}, s{sOff}
v_min_u32 v{vT0}, 17, v0
v_lshlrev_b32 v{vT0}, 7, v{vT0}
s_lshr_b32 s{sOff}, s{sTb}, 2
s_mul_i32 s{sOff}, s{sOff}, {54*128}
s_add_u32 s{sOff}, s{sOff}, {F_QKV + 36*128}""")
    stamp(a, 11)
    poll(a, vT0, f"s{sOff}", vT1)
    stamp(a, 12)
    LA = int(OPT.get('lau', 8))
    def vload(s):
        a(f"buffer_load_dwordx4 {vr(vH+4*s,4)}, v{vP16}, {WS}, s{sH} offen offset:{(s&1)*1024} sc1")
        if (s & 1) == 1 and s < 17:
            wrap_add(a, sH, 2048, sHe, sHs)
    def wread(s):
        if (s & 1) == 0:
            a(f"v_add_u32 v{vA0}, s{sLo}, v{vB0}\nv_add_u32 v{vA1}, s{sLo}, v{vB1}")
            wrap_add(a, sLo, 4096, sLe, sLs)
        trreads(a, vWF + 8*(s & 3), vA0, vA1, (s & 1)*2048)
    for s in range(LA):
        vload(s)
    a(f"s_waitcnt vmcnt({LA})\ns_barrier")
    wread(0); wread(1)
    for s in range(18):
        lg = 4*min(1, 17 - s)
        issued = min(18, s + LA)
        a(f"s_waitcnt vmcnt({issued - s - 1}) lgkmcnt({lg})")
        mfma(a, vAcc, vH+4*s, vWF+8*(s & 3), s == 0)
        if s + 2 < 18:
            wread(s + 2)
        mfma(a, vAcc+16, vH+4*s, vWF+8*(s & 3)+4, s == 0)
        if s + LA < 18:
            vload(s + LA)
    stamp(a, 13)
    a(f"""s_lshl_b32 s{sOff}, s{S_W}, 13
v_add_u32 v{vT0}, s{sOff}, v{vL16}
s_nop 8
s_barrier""")
    for q in range(8):
        a(f"ds_write_b128 v{vT0}, {vr(vAcc+4*q,4)} offset:{q*1024}")
    a(f"""s_and_b32 s{sOff}, s{S_W}, 1
s_lshl_b32 s{sOff}, s{sOff}, 13
s_lshl_b32 s{sJ}, s{sKq}, 11
s_add_u32 s{sOff}, s{sOff}, s{sJ}
v_add_u32 v{vT1}, s{sOff}, v{vL16}
s_waitcnt lgkmcnt(0)
s_barrier""")
    for j in range(4):
        a(f"""ds_read_b128 {vr(vAcc+8*j,4)}, v{vT1} offset:{j*16384}
ds_read_b128 {vr(vAcc+8*j+4,4)}, v{vT1} offset:{j*16384+1024}""")
    a(f"""s_lshr_b32 s{sJ}, s{sTb}, 3
s_mul_i32 s{sJ}, s{sJ}, 36
s_lshl_b32 s{sOff}, s{sCt}, 1
s_add_u32 s{sJ}, s{sJ}, s{sOff}
s_lshr_b32 s{sOff}, s{sKq}, 1
s_add_u32 s{sJ}, s{sJ}, s{sOff}
s_lshl_b32 s{sJ}, s{sJ}, 4
s_and_b32 s{sOff}, s{sTb}, 7
s_lshl_b32 s{sOff}, s{sOff}, 1
s_add_u32 s{sJ}, s{sJ}, s{sOff}
s_and_b32 s{sOff}, s{sKq}, 1
s_add_u32 s{sJ}, s{sJ}, s{sOff}
s_lshl_b32 s{sOff}, s{sJ}, 10
s_add_u32 s{sOff}, s{sOff}, {WS_U}
s_lshr_b32 s{sJ}, s{sTb}, 3
s_mul_i32 s{sJ}, s{sJ}, 18
s_add_u32 s{sJ}, s{sJ}, s{sCt}
s_lshl_b32 s{sJ}, s{sJ}, 2
s_bfe_u32 s{sHs}, s{sTb}, 0x20001
s_add_u32 s{sJ}, s{sJ}, s{sHs}
s_lshl_b32 s{sJ}, s{sJ}, 7
s_add_u32 s{sJ}, s{sJ}, {F_U}
s_waitcnt lgkmcnt(0)""")
    for r in range(8):
        a(f"""v_add_f32 v{vAcc+r}, v{vAcc+r}, v{vAcc+8+r}
v_add_f32 v{vAcc+16+r}, v{vAcc+16+r}, v{vAcc+24+r}""")
    for r in range(8):
        a(f"v_add_f32 v{vAcc+r}, v{vAcc+r}, v{vAcc+16+r}")
    for r in range(4):
        a(f"v_cvt_pk_bf16_f32 v{vR+r}, v{vAcc+2*r}, v{vAcc+2*r+1}")
    a(f"buffer_store_dwordx4 {vr(vR,4)}, v{vL16}, {WS}, s{sOff} offen sc1")
    set_flag(a, f"s{sJ}")
    a("s_branch L_c_done")
    a("L_c_notu:")
    set_flag(a, f"s{sHs}")
    stamp(a, 7)
    a(f"s_cmp_ge_u32 s{S_SLOT}, 26\ns_cbranch_scc1 L_c_done")
    sQb, sKb, sK, sQ, sKs, sQs, sKt = T, T+1, T+5, T+6, T+7, T+8, T+9
    vS = 56
    RING = 15
    a(f"""s_sub_u32 s{sJ}, s{S_SLOT}, 18
s_and_b32 s{sKq}, s{S_W}, 3
s_and_b32 s{sQb}, s{S_G}, 1
s_lshl_b32 s{sQb}, s{sQb}, 2
s_and_b32 s{sOff}, s{sJ}, 3
s_add_u32 s{sQb}, s{sQb}, s{sOff}
s_and_b32 s{sKt}, s{S_G}, 2
s_lshr_b32 s{sOff}, s{sJ}, 2
s_add_u32 s{sKt}, s{sKt}, s{sOff}
s_lshl_b32 s{sKb}, s{sKt}, 1
s_lshr_b32 s{sOff}, s{S_G}, 2
s_lshl_b32 s{sOff}, s{sOff}, 3
s_add_u32 s{sQb}, s{sQb}, s{sOff}
s_add_u32 s{sKb}, s{sKb}, s{sOff}
s_mul_i32 s{sKs}, s{sKb}, {216*1024}
s_mul_i32 s{sQs}, s{sQb}, {216*1024}
s_mul_i32 s{sOff}, s{sKq}, {18*1024}
s_add_u32 s{sKs}, s{sKs}, s{sOff}
s_add_u32 s{sQs}, s{sQs}, s{sOff}
s_add_u32 s{sKs}, s{sKs}, {WS_QKV + 72*1024}
s_add_u32 s{sQs}, s{sQs}, {WS_QKV}
s_lshl_b32 s{sH}, s{sJ}, 11
v_min_u32 v{vT0}, 17, v{vTok}
v_lshlrev_b32 v{vT0}, 7, v{vT0}
s_lshr_b32 s{sOff}, s{sKb}, 2
s_mul_i32 s{sOff}, s{sOff}, {54*128}
s_add_u32 s{sOff}, s{sOff}, {18*128}
s_lshr_b32 s{T+13}, s{sQb}, 2
s_mul_i32 s{T+13}, s{T+13}, {54*128}
s_sub_u32 s{sOff}, s{sOff}, s{T+13}
v_mul_lo_u32 v{vT1}, v{vHF}, s{sOff}
v_add_u32 v{vT0}, v{vT0}, v{vT1}
v_add_u32 v{vT0}, s{T+13}, v{vT0}
v_add_u32 v{vT2}, {216*1024}, v{vP16}
s_mov_b32 s{sOff}, {F_QKV}""")
    stamp(a, 11)
    poll(a, vT0, f"s{sOff}", vT1)
    stamp(a, 12)
    lsi = a.label("sidle")
    a(f"s_cmp_ge_u32 s{S_W}, 4\ns_cbranch_scc1 {lsi}")
    LA = int(OPT.get('las', 8))
    assert LA < RING
    a(f"s_movk_i32 s{T+13}, 0\ns_movk_i32 s{T+14}, {18*1024}")
    def sload(s):
        r = vS + 12*(s % RING)
        if (s & 1) == 0:
            a(f"s_add_u32 s{sK}, s{sKs}, s{sH}\ns_add_u32 s{sQ}, s{sQs}, s{sH}")
            wrap_add(a, sH, 2048, T+14, T+13)
        a(f"""buffer_load_dwordx4 {vr(r,4)}, v{vL16}, {WS}, s{sQ} offen offset:{(s&1)*1024} sc1
buffer_load_dwordx4 {vr(r+4,4)}, v{vP16}, {WS}, s{sK} offen offset:{(s&1)*1024} sc1
buffer_load_dwordx4 {vr(r+8,4)}, v{vT2}, {WS}, s{sK} offen offset:{(s&1)*1024} sc1""")
    for s in range(LA):
        sload(s)
    for s in range(18):
        issued = min(18, s + LA)
        r = vS + 12*(s % RING)
        a(f"s_waitcnt vmcnt({3*(issued - s - 1) + 1})")
        mfma(a, vAcc, r+4, r, s == 0)
        a(f"s_waitcnt vmcnt({3*(issued - s - 1)})")
        mfma(a, vAcc+16, r+8, r, s == 0)
        if s + LA < 18:
            sload(s + LA)
    stamp(a, 13)
    QS, HS, PSZ = 1056, 528, 8448
    a(f"""s_mul_i32 s{sOff}, s{S_W}, {PSZ}
v_lshl_add_u32 v{vT0}, v{vHF}, 4, v{vL16}
v_add_u32 v{vT0}, s{sOff}, v{vT0}
s_nop 11""")
    for q in range(8):
        a(f"ds_write_b128 v{vT0}, {vr(vAcc+4*q,4)} offset:{q*QS}")
    a(f"""{lsi}:
v_bfe_u32 v{vT1}, v0, 2, 2
v_and_b32 v{vT2}, 1, v0
v_lshl_add_u32 v{vT1}, v{vT1}, 1, v{vT2}
v_mul_u32_u24 v{vT1}, {QS}, v{vT1}
v_bfe_u32 v{vT2}, v0, 1, 1
v_mul_u32_u24 v{vT2}, {HS}, v{vT2}
v_lshrrev_b32 v{vT0}, 4, v0
s_lshl_b32 s{sOff}, s{S_W}, 2
v_add_u32 v{vT0}, s{sOff}, v{vT0}
v_lshl_add_u32 v{vT1}, v{vT0}, 4, v{vT1}
v_add_u32 v{vT1}, v{vT1}, v{vT2}
v_and_b32 v{vT2}, 15, v0
v_lshlrev_b32 v{vT2}, 3, v{vT2}
v_lshl_add_u32 v{vT2}, v{vT0}, 9, v{vT2}
s_waitcnt lgkmcnt(0)
s_barrier""")
    for j in range(4):
        a(f"ds_read_b128 {vr(vAcc+4*j,4)}, v{vT1} offset:{j*PSZ}")
    a(f"""s_lshl_b32 s{sJ}, s{sQb}, 14
s_lshl_b32 s{sOff}, s{sKt}, 7
s_add_u32 s{sJ}, s{sJ}, s{sOff}
s_add_u32 s{sJ}, s{sJ}, {WS_L}
s_lshl_b32 s{sK}, s{sQb}, 2
s_add_u32 s{sK}, s{sK}, s{sKt}
s_lshl_b32 s{sK}, s{sK}, 7
s_add_u32 s{sK}, s{sK}, {F_L}
s_waitcnt lgkmcnt(0)""")
    for r in range(4):
        a(f"""v_add_f32 v{vAcc+r}, v{vAcc+r}, v{vAcc+4+r}
v_add_f32 v{vAcc+8+r}, v{vAcc+8+r}, v{vAcc+12+r}""")
    for r in range(4):
        a(f"v_add_f32 v{vAcc+r}, v{vAcc+r}, v{vAcc+8+r}")
    sc = struct.unpack('<I', struct.pack('<f', D ** -0.5))[0]
    vR2 = 52
    for r in range(2):
        a(f"v_cvt_pk_bf16_f32 v{vR2+r}, v{vAcc+2*r}, v{vAcc+2*r+1}")
        unpack(a, vAcc+2*r, vAcc+2*r+1, vR2+r)
        a(f"""v_mul_f32 v{vAcc+2*r}, {hex(sc)}, v{vAcc+2*r}
v_mul_f32 v{vAcc+2*r+1}, {hex(sc)}, v{vAcc+2*r+1}
v_cvt_pk_bf16_f32 v{vR2+r}, v{vAcc+2*r}, v{vAcc+2*r+1}""")
    a(f"buffer_store_dwordx2 {vr(vR2,2)}, v{vT2}, {WS}, s{sJ} offen sc1")
    set_flag(a, f"s{sK}")
    a("L_c_done:")
    stamp(a, 14)

def phase_d(a):
    sQt, sCt, sCb, sKh, sOff, sXo, sJ, sU, sB, sCol = T, T+1, T+2, T+3, T+4, T+5, T+6, T+7, T+8, T+9
    vXo, vMx, vS, vLa, vPa, vLw = V0, V0+1, V0+2, V0+3, V0+4, V0+5
    vLd = 24
    vX = 32
    vG = 36
    vF = 44
    vR = 60
    vAcc = 68
    vU = 84
    vP = 116
    PS = 1056
    L_P, L_EX = 0, 20480
    srd(a, R_A, S_X, SZ_X)
    srd(a, R_B, S_OUT, SZ_X)
    a(f"""s_sub_u32 s{sJ}, 26, s{S_SLOT}
s_cmp_ge_u32 s{sJ}, 18
s_cbranch_scc1 L_d_idle
s_and_b32 s{sOff}, s{S_G}, 3
s_mul_i32 s{sOff}, s{sOff}, 18
s_add_u32 s{sOff}, s{sOff}, s{sJ}
s_lshr_b32 s{sCt}, s{sOff}, 3
s_and_b32 s{sJ}, s{sOff}, 7
s_lshr_b32 s{sB}, s{S_G}, 2
s_lshl_b32 s{sQt}, s{sB}, 3
s_add_u32 s{sQt}, s{sQt}, s{sJ}
s_and_b32 s{sCb}, s{S_W}, 3
s_lshr_b32 s{sKh}, s{S_W}, 2
s_lshl_b32 s{sCol}, s{sCt}, 7
s_lshl_b32 s{sOff}, s{sCb}, 5
s_add_u32 s{sCol}, s{sCol}, s{sOff}
s_lshl_b32 s{sOff}, s{sKh}, 4
s_add_u32 s{sCol}, s{sCol}, s{sOff}
s_mul_i32 s{sXo}, s{sQt}, {32*2304}
s_lshl_b32 s{sOff}, s{sCol}, 1
s_add_u32 s{sXo}, s{sXo}, s{sOff}
v_mul_u32_u24 v{vXo}, 2304, v{vTok}
v_lshl_add_u32 v{vXo}, v{vHF}, 4, v{vXo}
buffer_load_dwordx4 {vr(vX,4)}, v{vXo}, {RA}, s{sXo} offen
s_mul_i32 s{sU}, s{sB}, 36
s_lshl_b32 s{sOff}, s{sCt}, 2
s_add_u32 s{sU}, s{sU}, s{sOff}
s_add_u32 s{sU}, s{sU}, s{sCb}
s_lshl_b32 s{sU}, s{sU}, 4
s_lshl_b32 s{sOff}, s{sKh}, 3
s_add_u32 s{sU}, s{sU}, s{sOff}
v_lshlrev_b32 v{vT0}, 7, v0
s_lshl_b32 s{sOff}, s{sQt}, 9
s_add_u32 s{sOff}, s{sOff}, {F_L}
v_add_u32 v{vT1}, s{sOff}, v{vT0}
s_mul_i32 s{sOff}, s{sB}, 18
s_lshl_b32 s{T+10}, s{sCt}, 1
s_add_u32 s{sOff}, s{sOff}, s{T+10}
s_lshl_b32 s{sOff}, s{sOff}, 9
s_add_u32 s{sOff}, s{sOff}, {F_U - 512}
v_add_u32 v{vT2}, s{sOff}, v{vT0}
v_cmp_lt_u32 vcc, 3, v0
s_lshl_b32 s{sOff}, s{sCt}, 8
s_add_u32 s{sOff}, s{sOff}, {F_G}
v_cndmask_b32 v{vT1}, v{vT1}, v{vT2}, vcc
v_and_b32 v{vT2}, 128, v{vT0}
v_add_u32 v{vT2}, s{sOff}, v{vT2}
v_cmp_lt_u32 vcc, 11, v0
s_lshl_b32 s{sU}, s{sU}, 10
s_add_u32 s{sU}, s{sU}, {WS_U}
v_cndmask_b32 v{vT1}, v{vT1}, v{vT2}, vcc
v_and_b32 v{vT2}, 15, v0
v_lshrrev_b32 v{vT0}, 4, v0
s_lshl_b32 s{sOff}, s{S_W}, 2
v_add_u32 v{vT0}, s{sOff}, v{vT0}
v_lshlrev_b32 v{vLa}, 9, v{vT0}
v_lshl_add_u32 v{vLa}, v{vT2}, 4, v{vLa}
v_mul_u32_u24 v{vLw}, {PS//2}, v{vT2}
v_lshl_add_u32 v{vLw}, v{vT0}, 4, v{vLw}
v_lshl_add_u32 v{vPa}, v{vHF}, 4, v{vL16}""")
    poll(a, vT1, "0", vT2)
    stamp(a, 8)
    a(f"""s_lshl_b32 s{sOff}, s{sQt}, 14
s_add_u32 s{sOff}, s{sOff}, {WS_L}
buffer_load_dwordx4 {vr(vLd,4)}, v{vLa}, {WS}, s{sOff} offen sc1
buffer_load_dwordx4 {vr(vLd+4,4)}, v{vLa}, {WS}, s{sOff} offen offset:256 sc1
s_barrier""")
    for s in range(8):
        a(f"""s_add_u32 s{T+10}, s{sJ}, {s}
s_and_b32 s{T+10}, s{T+10}, 7
s_lshl_b32 s{T+10}, s{T+10}, 10
s_add_u32 s{T+10}, s{T+10}, s{sU}
buffer_load_dwordx4 {vr(vU+4*s,4)}, v{vL16}, {WS}, s{T+10} offen sc1""")
    a(f"""s_mul_i32 s{sOff}, s{sB}, 4608
s_lshl_b32 s{T+10}, s{sCol}, 2
s_add_u32 s{sOff}, s{sOff}, s{T+10}
s_add_u32 s{sOff}, s{sOff}, {WS_GATE}
v_lshlrev_b32 v{vT0}, 5, v{vHF}
buffer_load_dwordx4 {vr(vG,4)}, v{vT0}, {WS}, s{sOff} offen sc1
buffer_load_dwordx4 {vr(vG+4,4)}, v{vT0}, {WS}, s{sOff} offen offset:16 sc1
s_waitcnt vmcnt(10)""")
    stamp(a, 9)
    for i in range(8):
        unpack(a, vF+2*i, vF+2*i+1, vLd+i)
    a(f"v_max3_f32 v{vMx}, v{vF}, v{vF+1}, v{vF+2}")
    for i in range(3, 15, 2):
        a(f"v_max3_f32 v{vMx}, v{vMx}, v{vF+i}, v{vF+i+1}")
    a(f"v_max_f32 v{vMx}, v{vMx}, v{vF+15}")
    for m in ("quad_perm:[1,0,3,2]", "quad_perm:[2,3,0,1]", "row_half_mirror", "row_mirror"):
        a(f"s_nop 1\nv_max_f32_dpp v{vMx}, v{vMx}, v{vMx} {m} row_mask:0xf bank_mask:0xf")
    for i in range(16):
        a(f"v_sub_f32 v{vF+i}, v{vF+i}, v{vMx}")
    for i in range(16):
        a(f"v_mul_f32 v{vF+i}, {hex(LOG2E)}, v{vF+i}")
    for i in range(16):
        a(f"v_exp_f32 v{vF+i}, v{vF+i}")
    a(f"s_nop 0\nv_add_f32 v{vS}, v{vF}, v{vF+1}")
    for i in range(2, 16):
        a(f"v_add_f32 v{vS}, v{vS}, v{vF+i}")
    for m in ("quad_perm:[1,0,3,2]", "quad_perm:[2,3,0,1]", "row_half_mirror", "row_mirror"):
        a(f"s_nop 1\nv_add_f32_dpp v{vS}, v{vS}, v{vS} {m} row_mask:0xf bank_mask:0xf")
    a(f"v_rcp_f32 v{vS}, v{vS}\ns_nop 0")
    for i in range(16):
        a(f"v_mul_f32 v{vF+i}, v{vF+i}, v{vS}")
    for i in range(8):
        a(f"v_cvt_pk_bf16_f32 v{vLd+i}, v{vF+2*i}, v{vF+2*i+1}")
    a(f"""ds_write_b128 v{vLw}, {vr(vLd,4)} offset:{L_P}
ds_write_b128 v{vLw}, {vr(vLd+4,4)} offset:{L_P+8*PS}
s_mul_i32 s{sOff}, s{sKh}, {8*PS}
v_add_u32 v{vPa}, s{sOff}, v{vPa}
s_waitcnt lgkmcnt(0)
s_barrier""")
    for s in range(8):
        a(f"""s_add_u32 s{T+10}, s{sJ}, {s}
s_and_b32 s{T+10}, s{T+10}, 7
s_mul_i32 s{T+10}, s{T+10}, {PS}
v_add_u32 v{vT0}, s{T+10}, v{vPa}
ds_read_b128 {vr(vP+4*s,4)}, v{vT0} offset:{L_P}""")
    for s in range(8):
        a(f"s_waitcnt vmcnt({2+7-s}) lgkmcnt({7-s})")
        mfma(a, vAcc, vU+4*s, vP+4*s, s == 0)
    stamp(a, 10)
    lk1 = a.label("kh1"); lj = a.label("j")
    a(f"""s_lshl_b32 s{sOff}, s{S_W}, 11
v_add_u32 v{vT0}, s{sOff}, v{vL16}
v_xor_b32 v{vT1}, {4*2048}, v{vT0}
s_nop 10
s_cmp_lg_u32 s{sKh}, 0
s_cbranch_scc1 {lk1}
ds_write_b128 v{vT0}, {vr(vAcc+8,4)} offset:{L_EX}
ds_write_b128 v{vT0}, {vr(vAcc+12,4)} offset:{L_EX+1024}
s_branch {lj}
{lk1}:
ds_write_b128 v{vT0}, {vr(vAcc,4)} offset:{L_EX}
ds_write_b128 v{vT0}, {vr(vAcc+4,4)} offset:{L_EX+1024}""")
    for r in range(8):
        a(f"v_mov_b32 v{vAcc+r}, v{vAcc+8+r}")
    a(f"""{lj}:
s_waitcnt lgkmcnt(0)
s_barrier
ds_read_b128 {vr(vR,4)}, v{vT1} offset:{L_EX}
ds_read_b128 {vr(vR+4,4)}, v{vT1} offset:{L_EX+1024}
s_waitcnt vmcnt(0) lgkmcnt(0)""")
    for r in range(8):
        a(f"v_add_f32 v{vAcc+r}, v{vAcc+r}, v{vR+r}")
    for i in range(4):
        lo, hi = vAcc+2*i, vAcc+2*i+1
        a(f"v_cvt_pk_bf16_f32 v{vR+i}, v{lo}, v{hi}")
        unpack(a, lo, hi, vR+i)
        a(f"""v_mul_f32 v{lo}, v{lo}, v{vG+2*i}
v_mul_f32 v{hi}, v{hi}, v{vG+2*i+1}
v_cvt_pk_bf16_f32 v{vR+i}, v{lo}, v{hi}""")
        unpack(a, lo, hi, vR+i)
        unpack(a, vF, vF+1, vX+i)
        a(f"""v_add_f32 v{lo}, v{lo}, v{vF}
v_add_f32 v{hi}, v{hi}, v{vF+1}
v_cvt_pk_bf16_f32 v{vR+i}, v{lo}, v{hi}""")
    a(f"""buffer_store_dwordx4 {vr(vR,4)}, v{vXo}, {RB}, s{sXo} offen
s_branch L_fin
L_d_idle:
s_cmp_lg_u32 s2, {NO*8}
s_cbranch_scc1 L_fin""")
    lp = a.label("ep"); ld = a.label("epd")
    a(f"""s_lshl_b32 s{sOff}, s{S_W}, 6
v_add_u32 v{vT0}, s{sOff}, v0
v_min_u32 v{vT0}, 225, v{vT0}
v_lshlrev_b32 v{vT0}, 7, v{vT0}
s_movk_i32 s{sOff}, {F_L}
{lp}:
s_sleep 8
buffer_load_dword v{vLd}, v{vT0}, {WS}, s{sOff} offen sc1
s_waitcnt vmcnt(0)
v_cmp_ne_u32 vcc, s{S_TAG}, v{vLd}
s_cbranch_vccz {ld}
s_sub_u32 s{S_TO}, s{S_TO}, 1
s_cmp_lg_u32 s{S_TO}, 0
s_cbranch_scc1 {lp}
{ld}:
s_mov_b32 s{sOff}, {EPOCH}""")
    set_flag(a, f"s{sOff}")
    srd(a, R_A, S_DBG, 256)
    a(f"""s_cmp_lg_u32 s{S_W}, 0
s_cbranch_scc1 L_fin
v_lshlrev_b32 v{vT0}, 2, v0
v_mov_b32 v{vT1}, 0
buffer_store_dword v{vT1}, v{vT0}, {RA}, 0 offen sc1""")
    a("L_fin:")

def epilogue(a):
    if STAMP and 'probe' in OPT:
        i = int(OPT['probe']); lo, hi = [int(x) for x in OPT.get('prole', '0:256').split(':')]
        a(f"""s_waitcnt vmcnt(0) lgkmcnt(0)
s_cmp_lg_u32 s{S_W}, {OPT.get('stw', 0)}
s_cbranch_scc1 L_end
s_memrealtime s[{S_ST+30}:{S_ST+31}]
s_waitcnt lgkmcnt(0)
s_sub_u32 s{T}, s{S_ST+2*i}, s{S_ST}
s_cmp_eq_u32 s{S_ST+2*i}, 0
s_cselect_b32 s{T}, 0, s{T}
s_cmp_lt_u32 s2, {lo}
s_cselect_b32 s{T}, 0, s{T}
s_cmp_ge_u32 s2, {hi}
s_cselect_b32 s{T}, 0, s{T}
s_lshl_b32 s{T}, s{T}, 2
s_add_u32 s{T}, s{T}, 5000
L_spin:
s_memrealtime s[{T+2}:{T+3}]
s_waitcnt lgkmcnt(0)
s_sub_u32 s{T+2}, s{T+2}, s{S_ST}
s_cmp_lt_u32 s{T+2}, s{T}
s_cbranch_scc1 L_spin""")
    elif STAMP:
        a(f"""s_waitcnt vmcnt(0) lgkmcnt(0)
s_cmp_lg_u32 s{S_W}, {OPT.get('stw', 0)}
s_cbranch_scc1 L_end
{CLK} s[{S_ST+30}:{S_ST+31}]
s_memtime s[98:99]
s_waitcnt lgkmcnt(0)
s_sub_u32 s98, s98, s96""")
        for i in range(16):
            a(f"v_mov_b32 v{16+i}, s{S_ST+2*i}")
        a(f"""v_mov_b32 v32, s98
s_lshl_b32 s{T}, s2, 7
s_add_u32 s{T}, s{T}, {WS_STAMP}
v_mov_b32 v1, 0
s_mov_b64 exec, 1""")
        for i in range(4):
            a(f"buffer_store_dwordx4 v[{16+4*i}:{19+4*i}], v1, {WS}, s{T} offen offset:{16*i}")
        a(f"buffer_store_dword v32, v1, {WS}, s{T} offen offset:64")
    a("L_end:\ns_endpgm")

def main():
    a = Asm()
    a.raw("; @launch grid=(256,1,1) block=(512,1,1) lds=163840")
    a.raw('.amdgcn_target "amdgcn-amd-amdhsa--gfx950"\n.text')
    prologue(a)
    a(f"s_cmp_lt_u32 s{S_SLOT}, {NO}\ns_cbranch_scc1 L_owner")
    phase_b(a)
    phase_c(a)
    phase_d(a)
    epilogue(a)
    a("L_owner:")
    phase_owner(a)
    out = a.text() + kd(NAME, 244, 102)
    path = [x for x in sys.argv[1:] if not x.startswith('--')][0]
    open(path, 'w').write(out)
main()
```

```python
import sys, struct
from asmlib import *

OPT = dict(la='3', nt='', map='all', rot='1')
for a_ in sys.argv[1:]:
    if a_.startswith('--'):
        k, _, v = a_[2:].partition('=')
        OPT[k] = v
STAMP = 'stamp' in OPT
NT = OPT['nt']
CLK = "s_memtime" if 'cyc' in OPT else "s_memrealtime"

NAME = "standalone__dit_adaln_block__diffusion_kernel"
D = 1152
SZ_X = 512*D*2; SZ_C = 2*D*2; SZ_WQKV = D*3*D*2; SZ_WO = D*D*2; SZ_WMOD = D*6*D*2
SZ_WS = 1 << 28
F_STAT = 0x0
F_H = 0x2000
F_L = 0x4000
F_U = F_L + 64*128
F_G = F_U + 144*128
F_QKV = 0xC000
EPOCH = 0x13000
WS_GATE = 0x14000
WS_H = 0x20000
WS_QKV = 0x140000
WS_L = 0x4A0000
WS_U = 0x500000
WS_PART = 0x620000
WS_STAMP = 0x700000
LOG2E = 0x3fb8aa3b

S_W, S_TAG, S_G, S_SLOT, S_TO, S_TK = 3, 4, 5, 6, 7, 8
S_X, S_C, S_WQKV, S_WO, S_WMOD, S_OUT, S_DBG, S_WS = 16, 18, 20, 22, 24, 26, 28, 30
R_A, R_B, R_C, R_WS = 32, 36, 40, 44
T = 48
S_ST = 64
WS = f"s[{R_WS}:{R_WS+3}]"
RA = f"s[{R_A}:{R_A+3}]"; RB = f"s[{R_B}:{R_B+3}]"; RC = f"s[{R_C}:{R_C+3}]"
vL16, vP16, vB0, vB1, vCH, vR8, vHF, vTok = 1, 2, 3, 4, 5, 6, 7, 8
vT0, vT1, vT2, vT3 = 9, 10, 11, 12
vTAG = 13
V0 = 16

L_MISC = 147456
L_SIL = L_MISC
L_RED = L_SIL + 4608
L_FIN = L_RED + 4096
L_ROLE = L_FIN + 4096
L_STC = L_ROLE + 16
NO = 5

def srd(a, r, ptr, size):
    a(f"""s_mov_b32 s{r}, s{ptr}
s_and_b32 s{r+1}, s{ptr+1}, 0xffff
s_mov_b32 s{r+2}, {hex(size)}
s_mov_b32 s{r+3}, 0x20000""")

def stamp(a, i):
    if STAMP:
        a(f"{CLK} s[{S_ST+2*i}:{S_ST+2*i+1}]")

def unpack(a, lo, hi, src):
    a(f"v_lshlrev_b32 v{lo}, 16, v{src}\nv_and_b32 v{hi}, 0xffff0000, v{src}")

def round_bf16(a, v):
    a(f"v_cvt_pk_bf16_f32 v{v}, v{v}, v{v}\nv_lshlrev_b32 v{v}, 16, v{v}")

def mfma(a, acc, A, B, first=False):
    c = "0" if first else vr(acc, 16)
    a(f"v_mfma_f32_32x32x16_bf16 {vr(acc,16)}, {vr(A,4)}, {vr(B,4)}, {c}")

def wrap_add(a, s, step, s_end, s_start):
    a(f"""s_add_u32 s{s}, s{s}, {step}
s_cmp_eq_u32 s{s}, s{s_end}
s_cselect_b32 s{s}, s{s_start}, s{s}""")

def mod9(a, dst, src, tmp):
    a(f"""s_mul_i32 s{tmp}, s{src}, 57
s_lshr_b32 s{tmp}, s{tmp}, 9
s_mul_i32 s{tmp}, s{tmp}, 9
s_sub_u32 s{dst}, s{src}, s{tmp}""")

def poll(a, vaddr, soff, vtmp):
    l = a.label("poll"); d = a.label("polld")
    a(f"""s_cmp_lg_u32 s{S_W}, 0
s_cbranch_scc1 {d}
{l}:
buffer_load_dword v{vtmp}, v{vaddr}, {WS}, {soff} offen sc1
s_waitcnt vmcnt(0)
v_cmp_ne_u32 vcc, s{S_TAG}, v{vtmp}
s_cbranch_vccz {d}
s_sleep {OPT.get('sleep', 2)}
s_sub_u32 s{S_TO}, s{S_TO}, 1
s_cmp_lg_u32 s{S_TO}, 0
s_cbranch_scc1 {l}
s_mov_b32 s{S_TO}, 1
{d}:
s_barrier""")

def gpoll(a, loads, tagregs):
    l = a.label("gp"); d = a.label("gpd")
    a(f"{l}:")
    loads()
    a(f"s_waitcnt vmcnt(0)\nv_cmp_ne_u32 vcc, s{S_TAG}, v{tagregs[0]}")
    for r in tagregs[1:]:
        a(f"v_cmp_ne_u32 s[{T+14}:{T+15}], s{S_TAG}, v{r}\ns_or_b64 vcc, vcc, s[{T+14}:{T+15}]")
    a(f"""s_cbranch_vccz {d}
s_sleep {OPT.get('gsleep', 2)}
s_sub_u32 s{S_TO}, s{S_TO}, 1
s_cmp_lg_u32 s{S_TO}, 0
s_cbranch_scc1 {l}
s_mov_b32 s{S_TO}, 1
{d}:""")

def raw_flag(a, soff):
    a(f"""v_mov_b32 v{vT3}, 0
s_mov_b64 exec, 1
buffer_store_dword v{vTAG}, v{vT3}, {WS}, {soff} offen sc1
s_mov_b64 exec, -1""")

def set_flag(a, soff, younger=0):
    d = a.label("fl")
    a(f"""s_waitcnt vmcnt({younger})
s_barrier
s_cmp_lg_u32 s{S_W}, 0
s_cbranch_scc1 {d}""")
    raw_flag(a, soff)
    a(f"{d}:")

def trreads(a, wf, b0, b1, off):
    a(f"""ds_read_b64_tr_b16 {vr(wf,2)}, v{b0} offset:{off}
ds_read_b64_tr_b16 {vr(wf+2,2)}, v{b0} offset:{off+512}
ds_read_b64_tr_b16 {vr(wf+4,2)}, v{b1} offset:{off}
ds_read_b64_tr_b16 {vr(wf+6,2)}, v{b1} offset:{off+512}""")

def dma_tile(a, srdname, vD, pitch, s_rot, flags, n0=0, n1=18):
    sN, sO = T+10, T+11
    if s_rot is None:
        a(f"s_add_u32 s{sN}, s{S_W}, {8*n0}")
    else:
        a(f"s_lshl_b32 s{sN}, s{s_rot}, 3\ns_add_u32 s{sN}, s{sN}, s{S_W}")
    for n in range(n0, n1):
        a(f"""s_lshl_b32 m0, s{sN}, 10
s_mul_i32 s{sO}, s{sN}, {8*pitch}
buffer_load_dwordx4 v{vD}, {srdname}, s{sO} offen {flags} lds""")
        if n < n1-1:
            a(f"s_add_u32 s{sN}, s{sN}, 8")
            if s_rot is not None:
                a(f"""s_sub_u32 s{sO}, s{sN}, 144
s_cmp_ge_u32 s{sN}, 144
s_cselect_b32 s{sN}, s{sO}, s{sN}""")

def wave_sum(a, v, sdst):
    for m in ("quad_perm:[1,0,3,2]", "quad_perm:[2,3,0,1]", "row_half_mirror", "row_mirror"):
        a(f"s_nop 1\nv_add_f32_dpp v{v}, v{v}, v{v} {m} row_mask:0xf bank_mask:0xf")
    a(f"s_nop 1\nv_add_f32_dpp v{v}, v{v}, v{v} row_bcast:15 row_mask:0xa bank_mask:0xf")
    a(f"s_nop 1\nv_add_f32_dpp v{v}, v{v}, v{v} row_bcast:31 row_mask:0xc bank_mask:0xf")
    a(f"s_nop 1\nv_readlane_b32 s{sdst}, v{v}, 63\ns_nop 1")

def silu8(a, f, t):
    for i in range(8):
        a(f"v_mul_f32 v{t+i}, 0xbfb8aa3b, v{f+i}")
    for i in range(8):
        a(f"v_exp_f32 v{t+i}, v{t+i}")
    for i in range(8):
        a(f"v_add_f32 v{t+i}, 1.0, v{t+i}")
    for i in range(8):
        a(f"v_rcp_f32 v{t+i}, v{t+i}")
    for i in range(8):
        a(f"v_mul_f32 v{f+i}, v{f+i}, v{t+i}")

def lane_consts(a):
    a(f"""v_lshrrev_b32 v{vR8}, 3, v0
v_and_b32 v{vP16}, 0x33, v0
v_and_b32 v{vT0}, 4, v0
v_lshl_or_b32 v{vP16}, v{vT0}, 1, v{vP16}
v_and_b32 v{vT0}, 8, v0
v_lshrrev_b32 v{vT0}, 1, v{vT0}
v_or_b32 v{vP16}, v{vP16}, v{vT0}
v_lshlrev_b32 v{vP16}, 4, v{vP16}
v_lshrrev_b32 v{vT0}, 2, v0
v_and_b32 v{vT0}, 4, v{vT0}
v_and_b32 v{vCH}, 7, v0
v_xor_b32 v{vCH}, v{vCH}, v{vT0}
v_lshlrev_b32 v{vB0}, 10, v{vHF}
v_and_b32 v{vT0}, 12, v0
v_lshl_or_b32 v{vB0}, v{vT0}, 5, v{vB0}
v_and_b32 v{vT0}, 8, v0
v_lshl_or_b32 v{vB0}, v{vT0}, 3, v{vB0}
v_and_b32 v{vT0}, 16, v0
v_lshl_or_b32 v{vB0}, v{vT0}, 1, v{vB0}
v_and_b32 v{vT0}, 1, v0
v_lshl_or_b32 v{vB0}, v{vT0}, 4, v{vB0}
v_and_b32 v{vT0}, 2, v0
v_lshl_or_b32 v{vB0}, v{vT0}, 2, v{vB0}
v_xor_b32 v{vB1}, 64, v{vB0}""")

vTK = 15
def get_tag(a):
    a(f"""s_waitcnt lgkmcnt(0)
s_mul_i32 s{S_TAG}, s{S_TAG}, 1664525
s_add_u32 s{S_TAG}, s{S_TAG}, 1013904223
v_mov_b32 v{vTAG}, s{S_TAG}""")

STATIC = 'static' in OPT
def ticket_issue(a, base, scalar=False):
    if STATIC:
        return
    d = a.label("tki")
    if scalar:
        a(f"""s_cmp_lg_u32 s{S_W}, 7
s_cbranch_scc1 {d}
s_mul_i32 s{T+15}, s{S_G}, 0x88
s_and_b32 s{T+15}, s{T+15}, 0xb0
s_add_u32 s{T+15}, s{T+15}, {base}
s_mov_b32 s{S_TK}, 1
s_atomic_add s{S_TK}, s[{S_DBG}:{S_DBG+1}], s{T+15} glc
{d}:""")
        return
    srd(a, R_B, S_DBG, 256)
    a(f"""s_cmp_lg_u32 s{S_W}, 7
s_cbranch_scc1 {d}
s_mul_i32 s{T+15}, s{S_G}, 0x88
s_and_b32 s{T+15}, s{T+15}, 0xb0
v_mov_b32 v{vTK}, 1
v_mov_b32 v{vT3}, 0
s_mov_b64 exec, 1
buffer_atomic_add v{vTK}, v{vT3}, {RB}, s{T+15} offen offset:{base} sc0
s_mov_b64 exec, -1
{d}:""")

def role_write(a, base, cap, first, scalar=False):
    if STATIC:
        return
    d = a.label("rw"); l = a.label("tk"); ok = a.label("tkok")
    a(f"""s_cmp_lg_u32 s{S_W}, 7
s_cbranch_scc1 {d}""")
    if not scalar:
        a(f"""s_waitcnt vmcnt(0)
v_readfirstlane_b32 s{S_TK}, v{vTK}
s_nop 3""")
    a(f"""{l}:
s_waitcnt lgkmcnt(0)
s_cmp_lt_u32 s{S_TK}, {cap}
s_cbranch_scc1 {ok}
s_add_u32 s{S_G}, s{S_G}, 1
s_and_b32 s{S_G}, s{S_G}, 7
s_mul_i32 s{T+15}, s{S_G}, 0x88
s_and_b32 s{T+15}, s{T+15}, 0xb0
s_add_u32 s{T+15}, s{T+15}, {base}
s_mov_b32 s{S_TK}, 1
s_atomic_add s{S_TK}, s[{S_DBG}:{S_DBG+1}], s{T+15} glc
s_sub_u32 s{S_TO}, s{S_TO}, 1
s_cmp_lg_u32 s{S_TO}, 0
s_cbranch_scc1 {l}
s_waitcnt lgkmcnt(0)
s_mov_b32 s{S_TO}, 1
s_mov_b32 s{S_TK}, 0
{ok}:
s_add_u32 s{S_TK}, s{S_TK}, {first}
s_lshl_b32 s{S_TK}, s{S_TK}, 3
s_or_b32 s{S_TK}, s{S_TK}, s{S_G}
v_mov_b32 v{vT0}, s{S_TK}
v_mov_b32 v{vT1}, {L_ROLE}
ds_write_b32 v{vT1}, v{vT0}
s_waitcnt lgkmcnt(0)
{d}:""")

def role_read(a):
    if STATIC:
        a(f"s_mov_b32 s{S_TK}, s2\ns_and_b32 s{S_G}, s2, 7\ns_lshr_b32 s{S_SLOT}, s2, 3")
        return
    a(f"""v_mov_b32 v{vT1}, {L_ROLE}
ds_read_b32 v{vT0}, v{vT1}
s_waitcnt lgkmcnt(0)
v_readfirstlane_b32 s{S_TK}, v{vT0}
s_nop 3
s_and_b32 s{S_TK}, s{S_TK}, 255
s_and_b32 s{S_G}, s{S_TK}, 7
s_lshr_b32 s{S_SLOT}, s{S_TK}, 3""")

NPF = 5
def w_prefetch(a, vdst, ndummy):
    if 'nopf' in OPT:
        return 0
    srd(a, R_A, S_WQKV, SZ_WQKV)
    a(f"""s_getreg_b32 s{T+12}, hwreg(HW_REG_HW_ID, 13, 2)
s_getreg_b32 s{T+13}, hwreg(HW_REG_HW_ID, 8, 3)
s_lshl_b32 s{T+12}, s{T+12}, 3
s_or_b32 s{T+12}, s{T+12}, s{T+13}
s_mul_i32 s{T+12}, s{T+12}, 36
s_add_u32 s{T+12}, s{T+12}, s{S_W}
s_mul_i32 s{T+12}, s{T+12}, 6912
s_mul_i32 s{T+13}, s{S_G}, 27
s_lshr_b32 s{T+13}, s{T+13}, 2
s_min_u32 s{T+13}, s{T+13}, 46
s_lshl_b32 s{T+13}, s{T+13}, 7
s_add_u32 s{T+12}, s{T+12}, s{T+13}""")
    lsk = a.label("pfsk")
    a(f"s_cmp_eq_u32 s{S_W}, 7\ns_cbranch_scc1 {lsk}")
    for n in range(NPF):
        a(f"buffer_load_dwordx4 {vr(vdst+4*n,4)}, v{vL16}, {RA}, s{T+12} offen {NT}")
        if n < NPF-1:
            a(f"s_add_u32 s{T+12}, s{T+12}, {7*6912}")
    lj = a.label("pfj")
    a(f"s_branch {lj}\n{lsk}:\ns_mov_b32 s{T+12}, {EPOCH}\nv_mov_b32 v{vT3}, 0")
    for n in range(ndummy):
        a(f"buffer_load_dword v{vdst+n}, v{vT3}, {WS}, s{T+12} offen")
    a(f"{lj}:")
    return NPF

def prologue(a):
    a.raw(f".globl {NAME}\n.p2align 8\n.type {NAME},@function\n{NAME}:")
    a(f"""s_cmp_ge_u32 s2, 256
s_cbranch_scc1 L_end
s_load_dwordx16 s[16:31], s[0:1], 0""")
    if STAMP:
        a(f"{CLK} s[{S_ST}:{S_ST+1}]\ns_memtime s[96:97]")
        for i in range(1, 16):
            a(f"s_mov_b32 s{S_ST+2*i}, 0")
    a(f"""v_lshrrev_b32 v1, 6, v0
v_and_b32 v0, 63, v0
s_getreg_b32 s{S_G}, hwreg(HW_REG_XCC_ID, 0, 3)
v_readfirstlane_b32 s{S_W}, v1
s_mov_b32 s{S_TO}, 0x40000
v_lshlrev_b32 v{vL16}, 4, v0
v_lshrrev_b32 v{vHF}, 5, v0
v_and_b32 v{vTok}, 31, v0
s_waitcnt lgkmcnt(0)
s_load_dword s{S_TAG}, s[{S_WS}:{S_WS+1}], {EPOCH}""")
    srd(a, R_WS, S_WS, SZ_WS)
    if 'tlb' in OPT:
        sh = int(OPT['tlb'] or 16)
        lt = a.label("tlb")
        a(f"s_cmp_lg_u32 s{S_W}, 6\ns_cbranch_scc1 {lt}\nv_lshlrev_b32 v{vT0}, {sh}, v0")
        regs = [(S_WS, 0x700000), (S_OUT, SZ_X), (S_WO, SZ_WO), (S_X, SZ_X), (S_WQKV, SZ_WQKV), (S_WMOD, SZ_WMOD)]
        k = 0
        for ptr, size in regs:
            srd(a, R_A, ptr, size)
            for off in range(0, size, 64 << sh):
                a(f"v_add_u32 v{vT1}, {off}, v{vT0}\nbuffer_load_dword v{200+k}, v{vT1}, {RA}, 0 offen sc1")
                k += 1
        a(f"{lt}:")
    a(f"""s_cmp_lt_u32 s2, 64
s_cbranch_scc1 L_s0_stats
s_cmp_lt_u32 s2, 94
s_cbranch_scc1 L_s0_none""")
    sP, sCg, sKs, sOff, sRow = T, T+1, T+2, T+3, T+4
    vW = 16
    vC = 32
    vSc = 36
    vTm = 44
    vAc = 52
    srd(a, R_A, S_WMOD, SZ_WMOD)
    srd(a, R_C, S_C, SZ_C)
    a(f"""s_sub_u32 s{sP}, s2, 94
s_mul_i32 s{sKs}, s{sP}, 57
s_lshr_b32 s{sKs}, s{sKs}, 9
s_mul_i32 s{sCg}, s{sKs}, 9
s_sub_u32 s{sCg}, s{sP}, s{sCg}
s_lshl_b32 s{sRow}, s{sKs}, 3
s_add_u32 s{sRow}, s{sRow}, s{S_W}
s_lshl_b32 s{sRow}, s{sRow}, 3
v_and_b32 v{vT0}, 15, v0
v_lshlrev_b32 v{vT0}, 4, v{vT0}
v_bfe_u32 v{vT1}, v0, 4, 1
v_mul_u32_u24 v{vT1}, 2304, v{vT1}
v_mul_u32_u24 v{vT2}, {4*13824}, v{vHF}
v_add3_u32 v{vT0}, v{vT0}, v{vT1}, v{vT2}
v_lshlrev_b32 v{vT1}, 3, v{vHF}
s_lshl_b32 s{sOff}, s{sRow}, 1
buffer_load_dwordx2 {vr(vC,2)}, v{vT1}, {RC}, s{sOff} offen
buffer_load_dwordx2 {vr(vC+2,2)}, v{vT1}, {RC}, s{sOff} offen offset:2304
s_mul_i32 s{sOff}, s{sRow}, 13824
s_lshl_b32 s{sRow}, s{sCg}, 8
s_add_u32 s{sOff}, s{sOff}, s{sRow}""")
    for n in range(4):
        a(f"buffer_load_dwordx4 {vr(vW+4*n,4)}, v{vT0}, {RA}, s{sOff} offen {NT}")
        if n < 3:
            a(f"s_add_u32 s{sOff}, s{sOff}, 13824")
    ticket_issue(a, 64)
    lane_consts(a)
    if 'nopf' not in OPT:
        a("s_barrier")
    npf = w_prefetch(a, 72, NPF if STATIC else NPF-1)
    a(f"s_waitcnt vmcnt({4+npf})")
    for i in range(4):
        unpack(a, vSc+2*i, vSc+2*i+1, vC+i)
    silu8(a, vSc, vTm)
    for i in range(4):
        a(f"v_cvt_pk_bf16_f32 v{vC+i}, v{vSc+2*i}, v{vSc+2*i+1}")
    for i in range(4):
        unpack(a, vSc+2*i, vSc+2*i+1, vC+i)
    for n in range(4):
        a(f"s_waitcnt vmcnt({3-n+npf})")
        if n == 3: stamp(a, 8)
        for i in range(4):
            unpack(a, vTm+2*i, vTm+2*i+1, vW+4*n+i)
        for b in range(2):
            for j in range(8):
                op = "v_mul_f32" if n == 0 else "v_fmac_f32"
                a(f"{op} v{vAc+8*b+j}, v{vTm+j}, v{vSc+4*b+n}")
    a("s_nop 1")
    for j in range(8):
        a(f"v_permlane32_swap_b32 v{vAc+j}, v{vAc+8+j}")
    a("s_nop 1")
    for j in range(8):
        a(f"v_add_f32 v{vAc+j}, v{vAc+j}, v{vAc+8+j}")
    a(f"""s_lshl_b32 s{sOff}, s{S_W}, 11
v_lshlrev_b32 v{vT2}, 5, v0
v_add_u32 v{vT2}, s{sOff}, v{vT2}""")
    get_tag(a)
    a(f"""ds_write_b128 v{vT2}, {vr(vAc,4)}
ds_write_b128 v{vT2}, {vr(vAc+4,4)} offset:16
s_waitcnt lgkmcnt(0)
s_barrier""")
    lsk = a.label("pubsk")
    a(f"""s_cmp_ge_u32 s{S_W}, 4
s_cbranch_scc1 {lsk}
s_lshr_b32 s{sOff}, s{S_W}, 1
s_lshl_b32 s{sOff}, s{sOff}, 10
s_and_b32 s{sRow}, s{S_W}, 1
s_lshl_b32 s{sP}, s{sRow}, 8
s_add_u32 s{sOff}, s{sOff}, s{sP}
v_lshlrev_b32 v{vT2}, 3, v{vTok}
v_lshl_add_u32 v{vT2}, v{vHF}, 9, v{vT2}
v_add_u32 v{vT2}, s{sOff}, v{vT2}""")
    for w in range(8):
        a(f"ds_read_b64 {vr(vW+2*w,2)}, v{vT2} offset:{w*2048}")
    a(f"""s_lshl_b32 s{sP}, s{sCg}, 1
s_add_u32 s{sP}, s{sP}, s{sRow}
s_lshl_b32 s{sP}, s{sP}, 1
s_lshr_b32 s{sOff}, s{S_W}, 1
s_add_u32 s{sP}, s{sP}, s{sOff}
s_mul_i32 s{sP}, s{sP}, 18
s_add_u32 s{sP}, s{sP}, s{sKs}
s_lshl_b32 s{sP}, s{sP}, 10
s_add_u32 s{sP}, s{sP}, {WS_PART}
v_mov_b32 v{vAc+1}, v{vTAG}
v_mov_b32 v{vAc+3}, v{vTAG}
s_waitcnt lgkmcnt(0)
v_add_f32 v{vAc}, v{vW}, v{vW+2}
v_add_f32 v{vAc+2}, v{vW+1}, v{vW+3}""")
    for w in range(2, 8):
        a(f"v_add_f32 v{vAc}, v{vAc}, v{vW+2*w}\nv_add_f32 v{vAc+2}, v{vAc+2}, v{vW+2*w+1}")
    a(f"""buffer_store_dwordx4 {vr(vAc,4)}, v{vL16}, {WS}, s{sP} offen sc1
{lsk}:""")
    stamp(a, 9)
    a("s_branch L_s0_roleb")
    a("L_s0_stats:")
    vRW, vRF = 16, 32
    srd(a, R_C, S_X, SZ_X)
    ticket_issue(a, 0, True)
    a(f"""s_lshl_b32 s{sOff}, s2, 3
s_add_u32 s{sOff}, s{sOff}, s{S_W}
s_mul_i32 s{sOff}, s{sOff}, 2304
buffer_load_dwordx4 {vr(vRW,4)}, v{vL16}, {RC}, s{sOff} offen {NT}
buffer_load_dwordx4 {vr(vRW+4,4)}, v{vL16}, {RC}, s{sOff} offen offset:1024 {NT}
s_mov_b64 exec, 0xffff
buffer_load_dwordx4 {vr(vRW+8,4)}, v{vL16}, {RC}, s{sOff} offen offset:2048 {NT}
s_mov_b64 exec, -1""")
    lane_consts(a)
    get_tag(a)
    role_write(a, 0, 8, 0, True)
    a("s_barrier")
    role_read(a)
    stamp(a, 10)
    lg = a.label("notown"); lj = a.label("stj")
    a(f"""s_cmp_ge_u32 s{S_TK}, 36
s_cbranch_scc1 {lg}""")
    owner_xloads(a)
    a("s_waitcnt vmcnt(4)")
    a(f"s_branch {lj}\n{lg}:")
    npf = w_prefetch(a, 72, NPF)
    a(f"s_waitcnt vmcnt({npf})\n{lj}:")
    stamp(a, 8)
    for i in range(12):
        unpack(a, vRF+2*i, vRF+2*i+1, vRW+i)
    acc, acc2, mean = vRW, vRW+1, vRW+2
    a(f"v_add_f32 v{acc}, v{vRF}, v{vRF+1}\nv_add_f32 v{acc2}, v{vRF+2}, v{vRF+3}")
    for i in range(4, 16, 2):
        a(f"v_add_f32 v{acc}, v{acc}, v{vRF+i}\nv_add_f32 v{acc2}, v{acc2}, v{vRF+i+1}")
    a("s_mov_b64 exec, 0xffff")
    for i in range(16, 24, 2):
        a(f"v_add_f32 v{acc}, v{acc}, v{vRF+i}\nv_add_f32 v{acc2}, v{acc2}, v{vRF+i+1}")
    a(f"s_mov_b64 exec, -1\nv_add_f32 v{acc}, v{acc}, v{acc2}")
    wave_sum(a, acc, T+12)
    a(f"""v_mov_b32 v{vT2}, 0x3a638e39
v_mul_f32 v{mean}, s{T+12}, v{vT2}""")
    for i in range(24):
        a(f"v_sub_f32 v{vRF+i}, v{vRF+i}, v{mean}")
    a(f"v_mul_f32 v{acc}, v{vRF}, v{vRF}\nv_mul_f32 v{acc2}, v{vRF+1}, v{vRF+1}")
    for i in range(2, 16, 2):
        a(f"v_fmac_f32 v{acc}, v{vRF+i}, v{vRF+i}\nv_fmac_f32 v{acc2}, v{vRF+i+1}, v{vRF+i+1}")
    a("s_mov_b64 exec, 0xffff")
    for i in range(16, 24, 2):
        a(f"v_fmac_f32 v{acc}, v{vRF+i}, v{vRF+i}\nv_fmac_f32 v{acc2}, v{vRF+i+1}, v{vRF+i+1}")
    a(f"s_mov_b64 exec, -1\nv_add_f32 v{acc}, v{acc}, v{acc2}")
    wave_sum(a, acc, T+12)
    g = vRW+4
    a(f"v_mul_f32 v{g+1}, s{T+12}, v{vT2}\nv_mov_b32 v{g}, v{mean}")
    round_bf16(a, g+1)
    a(f"v_add_f32 v{g+1}, 0x3727c5ac, v{g+1}")
    round_bf16(a, g+1)
    a(f"v_sqrt_f32 v{g+1}, v{g+1}\ns_nop 0")
    round_bf16(a, g+1)
    a(f"v_rcp_f32 v{g+1}, v{g+1}")
    round_bf16(a, g)
    lsk = a.label("stsk")
    a(f"""v_mov_b32 v{g+2}, v{vTAG}
v_mov_b32 v{g+3}, v{vTAG}
s_lshl_b32 s{T+12}, s{S_W}, 4
s_add_u32 s{T+12}, s{T+12}, {L_STC}
v_mov_b32 v{vT0}, s{T+12}
s_mov_b64 exec, 1
ds_write_b128 v{vT0}, {vr(g,4)}
s_mov_b64 exec, -1
s_waitcnt lgkmcnt(0)
s_barrier
s_cmp_lg_u32 s{S_W}, 0
s_cbranch_scc1 {lsk}
s_lshl_b32 s{T+12}, s2, 7
s_add_u32 s{T+12}, s{T+12}, {F_STAT}
v_add_u32 v{vT0}, {L_STC}, v{vL16}
s_mov_b64 exec, 0xff
ds_read_b128 {vr(g,4)}, v{vT0}
s_waitcnt lgkmcnt(0)
buffer_store_dwordx4 {vr(g,4)}, v{vL16}, {WS}, s{T+12} offen sc1
s_mov_b64 exec, -1
{lsk}:""")
    stamp(a, 9)
    a("s_branch L_s0_end")
    a("L_s0_none:")
    ticket_issue(a, 64)
    w_prefetch(a, 72, 0)
    lane_consts(a)
    get_tag(a)
    a("L_s0_roleb:")
    role_write(a, 64, 24, 8)
    a("s_barrier")
    role_read(a)
    stamp(a, 10)
    a(f"L_s0_end:\ns_mov_b32 s2, s{S_TK}")

VOX = 96
def owner_xloads(a):
    a(f"""s_lshr_b32 s{T+12}, s{S_TK}, 1
s_and_b32 s{T+13}, s{S_TK}, 1
s_lshl_b32 s{T+13}, s{T+13}, 3
s_add_u32 s{T+13}, s{T+13}, s{S_W}
v_mul_u32_u24 v{vT0}, 2304, v{vR8}
v_and_b32 v{vT1}, 7, v0
v_lshl_add_u32 v{vT0}, v{vT1}, 4, v{vT0}
s_mul_i32 s{T+13}, s{T+13}, {32*2304}
s_lshl_b32 s{T+12}, s{T+12}, 7
s_add_u32 s{T+13}, s{T+13}, s{T+12}""")
    a(f"s_lshl_b32 m0, s{S_W}, 12")
    for q in range(4):
        a(f"s_nop 0\nbuffer_load_dwordx4 v{vT0}, {RC}, s{T+13} offen {NT} lds")
        if q < 3:
            a(f"s_add_u32 s{T+13}, s{T+13}, {8*2304}\ns_add_u32 m0, m0, 1024")

def gemv_dma(a, sColA, vD):
    sRow0, sOff = T+2, T+3
    a(f"""v_lshlrev_b32 v{vD}, 4, v{vCH}
v_mul_u32_u24 v{vT0}, 13824, v{vR8}
v_add3_u32 v{vD}, v{vD}, v{vT0}, s{sColA}
s_mul_i32 s{sOff}, s{sRow0}, 13824
s_lshl_b32 m0, s{sRow0}, 7""")
    for t in range(18):
        a(f"""s_nop 0
buffer_load_dwordx4 v{vD}, {RA}, s{sOff} offen {NT} lds""")
        if t < 17:
            a(f"s_add_u32 s{sOff}, s{sOff}, {8*13824}\ns_add_u32 m0, m0, 1024")

def phase_owner(a):
    sColA, sB, sRow0, sOff, sO, sCs, sTb = T, T+1, T+2, T+3, T+4, T+5, T+6
    vD, vA0, vA1, vSil, vCs = V0, V0+1, V0+2, V0+3, V0+4
    vC = 24
    vST = 28
    vX = VOX
    vXN = 48
    vPt = 80
    vAcc = 112
    vWF = 144
    vSF = 160
    vM = 184
    a(f"""s_mov_b32 s{sO}, s2
s_cmp_ge_u32 s{sO}, 36
s_cbranch_scc1 L_o_pref
s_lshr_b32 s{sCs}, s{sO}, 1
s_and_b32 s{sB}, s{sO}, 1
s_lshl_b32 s{sTb}, s{sB}, 3
s_add_u32 s{sTb}, s{sTb}, s{S_W}""")
    vST = 32
    a(f"""v_and_b32 v{vT3}, 7, v0
v_lshlrev_b32 v{vT2}, 4, v{vT3}
v_lshlrev_b32 v{vT0}, 7, v{vT3}
v_lshl_add_u32 v{vT0}, v{vR8}, 4, v{vT0}
s_lshl_b32 s{T+9}, s{S_W}, 12
v_add_u32 v{vT0}, s{T+9}, v{vT0}
s_lshl_b32 s{T+9}, s{sTb}, 9
s_add_u32 s{T+9}, s{T+9}, {F_STAT}""")
    def stl():
        for q in range(4):
            a(f"buffer_load_dwordx4 {vr(vST+4*q,4)}, v{vT2}, {WS}, s{T+9} offen offset:{128*q} sc1")
    gpoll(a, stl, [vST+2, vST+6, vST+10, vST+14])
    stamp(a, 1)
    for q in range(4):
        a(f"ds_read_b128 {vr(vX+4*q,4)}, v{vT0} offset:{q*1024}")
    vPt = 112
    def pl():
        a(f"s_mov_b32 s{T+10}, s{T+9}")
        for n in range(18):
            a(f"buffer_load_dwordx4 {vr(vPt+4*n,4)}, v{vL16}, {WS}, s{T+10} offen offset:{(n&3)*1024} sc1")
            if (n & 3) == 3:
                a(f"s_add_u32 s{T+10}, s{T+10}, 4096")
    lw0 = a.label("w0a")
    a(f"""s_mul_i32 s{T+9}, s{sO}, {18*1024}
s_add_u32 s{T+9}, s{T+9}, {WS_PART}
s_cmp_lg_u32 s{S_W}, 0
s_cbranch_scc1 {lw0}""")
    pl()
    a(f"{lw0}:")
    P = [(q, i) for q in range(4) for i in range(4)]
    lo = lambda q, i: vXN+8*q+2*i
    hi = lambda q, i: vXN+8*q+2*i+1
    xs = lambda q, i: vX+4*q+i
    def st_unpack():
        for q, i in P: unpack(a, lo(q,i), hi(q,i), xs(q,i))
    def st_cvt():
        for q, i in P: a(f"v_cvt_pk_bf16_f32 v{xs(q,i)}, v{lo(q,i)}, v{hi(q,i)}")
    def st_op(op, f):
        for q, i in P:
            a(f"{op} v{lo(q,i)}, v{lo(q,i)}, v{f(q,2*i)}\n{op} v{hi(q,i)}, v{hi(q,i)}, v{f(q,2*i+1)}")
    a("s_waitcnt lgkmcnt(0)")
    st_unpack(); st_op("v_sub_f32", lambda q, j: vST+4*q); st_cvt()
    st_unpack(); st_op("v_mul_f32", lambda q, j: vST+4*q+1); st_cvt()
    st_unpack()
    a(f"""v_lshlrev_b32 v{vT1}, 5, v{vR8}
v_add_u32 v{vT1}, {L_FIN}, v{vT1}
v_lshl_add_u32 v{vCs}, v{vR8}, 9, v{vT2}
s_mul_i32 s{sOff}, s{sTb}, {72*1024}
s_lshl_b32 s{T+11}, s{sCs}, 12
s_add_u32 s{sOff}, s{sOff}, s{T+11}
s_add_u32 s{sOff}, s{sOff}, {WS_H}""")
    stamp(a, 2)
    lw1 = a.label("w0b"); lp = a.label("pp"); ld = a.label("ppd")
    a(f"""s_cmp_lg_u32 s{S_W}, 0
s_cbranch_scc1 {lw1}
v_lshlrev_b32 v{vT0}, 3, v0
v_add_u32 v{vT0}, {L_FIN}, v{vT0}
v_cvt_f32_u32 v{vT2}, v{vHF}
{lp}:
s_waitcnt vmcnt(0)
v_and_b32 v{vM}, v{vPt+1}, v{vPt+3}
v_or_b32 v{vM+1}, v{vPt+1}, v{vPt+3}""")
    for n in range(1, 18):
        a(f"""v_and_b32 v{vM}, v{vM}, v{vPt+4*n+1}
v_or3_b32 v{vM+1}, v{vM+1}, v{vPt+4*n+1}, v{vPt+4*n+3}
v_and_b32 v{vM}, v{vM}, v{vPt+4*n+3}""")
    a(f"""v_cmp_ne_u32 vcc, s{S_TAG}, v{vM}
v_cmp_ne_u32 s[{T+14}:{T+15}], s{S_TAG}, v{vM+1}
s_or_b64 vcc, vcc, s[{T+14}:{T+15}]
s_cbranch_vccz {ld}
s_sub_u32 s{S_TO}, s{S_TO}, 1
s_cmp_eq_u32 s{S_TO}, 0
s_cbranch_scc1 {ld}""")
    pl()
    a(f"s_branch {lp}\n{ld}:\ns_max_u32 s{S_TO}, s{S_TO}, 1")
    for n in range(2, 18, 2):
        a(f"""v_add_f32 v{vPt}, v{vPt}, v{vPt+4*n}
v_add_f32 v{vPt+2}, v{vPt+2}, v{vPt+4*n+2}
v_add_f32 v{vPt+4}, v{vPt+4}, v{vPt+4*n+4}
v_add_f32 v{vPt+6}, v{vPt+6}, v{vPt+4*n+6}""")
    a(f"""v_add_f32 v{vPt}, v{vPt}, v{vPt+4}
v_add_f32 v{vPt+1}, v{vPt+2}, v{vPt+6}
v_cvt_pk_bf16_f32 v{vPt+2}, v{vPt}, v{vPt+1}""")
    unpack(a, vPt, vPt+1, vPt+2)
    a(f"""v_add_f32 v{vPt}, v{vPt}, v{vT2}
v_add_f32 v{vPt+1}, v{vPt+1}, v{vT2}
v_cvt_pk_bf16_f32 v{vPt+2}, v{vPt}, v{vPt+1}""")
    unpack(a, vPt, vPt+1, vPt+2)
    a(f"""ds_write_b64 v{vT0}, {vr(vPt,2)}
s_waitcnt lgkmcnt(0)
{lw1}:
s_barrier""")
    stamp(a, 3)
    a(f"""ds_read_b128 {vr(vM+8,4)}, v{vT1} offset:256
ds_read_b128 {vr(vM+12,4)}, v{vT1} offset:272
ds_read_b128 {vr(vM,4)}, v{vT1}
ds_read_b128 {vr(vM+4,4)}, v{vT1} offset:16
s_waitcnt lgkmcnt(2)""")
    st_op("v_mul_f32", lambda q, j: vM+8+j); st_cvt(); st_unpack()
    a("s_waitcnt lgkmcnt(0)")
    for q in range(4):
        for i in range(4):
            a(f"v_add_f32 v{lo(q,i)}, v{lo(q,i)}, v{vM+2*i}\nv_add_f32 v{hi(q,i)}, v{hi(q,i)}, v{vM+2*i+1}")
        for i in range(4):
            a(f"v_cvt_pk_bf16_f32 v{xs(q,i)}, v{lo(q,i)}, v{hi(q,i)}")
        a(f"buffer_store_dwordx4 {vr(vX+4*q,4)}, v{vCs}, {WS}, s{sOff} offen offset:{q*128} sc1")
    stamp(a, 4)
    a(f"""s_mul_i32 s{sOff}, s{sB}, 18
s_add_u32 s{sOff}, s{sOff}, s{sCs}
s_lshl_b32 s{sOff}, s{sOff}, 7
s_add_u32 s{sOff}, s{sOff}, {F_H}""")
    set_flag(a, f"s{sOff}")
    stamp(a, 5)
    a("L_o_pref:")
    srd(a, R_B, S_WO, SZ_WO)
    a(f"""s_and_b32 s{sOff}, s{S_G}, 3
s_mul_i32 s{sOff}, s{sOff}, 18
s_lshl_b32 s{T+9}, s{S_SLOT}, 2
s_add_u32 s{sOff}, s{sOff}, s{T+9}
s_add_u32 s{sOff}, s{sOff}, 1
s_lshr_b32 s{sOff}, s{sOff}, 2
s_lshl_b32 s{sOff}, s{sOff}, 7
v_lshlrev_b32 v{vT1}, 4, v{vCH}
v_mul_u32_u24 v{vT0}, 2304, v{vR8}
v_add3_u32 v{vT1}, v{vT1}, v{vT0}, s{sOff}""")
    dma_tile(a, RB, vT1, 2304, None, NT)
    a(f"""s_waitcnt vmcnt(0)
s_barrier""")
    stamp(a, 6)
    srd(a, R_A, S_WMOD, SZ_WMOD)
    srd(a, R_C, S_C, SZ_C)
    a(f"""s_cmp_ge_u32 s{sO}, 18
s_cbranch_scc1 L_fin
s_mul_i32 s{sRow0}, s{S_W}, 144
v_min_u32 v{vT0}, 17, v{vTok}
v_lshlrev_b32 v{vT0}, 4, v{vT0}
v_mul_u32_u24 v{vT1}, 2304, v{vHF}
v_add_u32 v{vCs}, v{vT0}, v{vT1}
s_lshl_b32 s{sOff}, s{sRow0}, 1
buffer_load_dwordx4 {vr(vC,4)}, v{vCs}, {RC}, s{sOff} offen
s_lshl_b32 s{sColA}, s{sO}, 7
s_add_u32 s{sColA}, s{sColA}, 4608""")
    gemv_dma(a, sColA, vD)
    a(f"""s_lshl_b32 s{sOff}, s{sRow0}, 7
v_add_u32 v{vA0}, s{sOff}, v{vB0}
v_add_u32 v{vA1}, s{sOff}, v{vB1}
s_waitcnt vmcnt(18)""")
    for i in range(4):
        unpack(a, vM+2*i, vM+2*i+1, vC+i)
    silu8(a, vM, vM+8)
    for i in range(4):
        a(f"v_cvt_pk_bf16_f32 v{vC+i}, v{vM+2*i}, v{vM+2*i+1}")
    a(f"""s_lshl_b32 s{sOff}, s{sRow0}, 1
s_add_u32 s{sOff}, s{sOff}, {L_SIL}
v_add_u32 v{vCs}, s{sOff}, v{vCs}
ds_write_b128 v{vCs}, {vr(vC,4)}
v_and_b32 v{vT0}, 1, v0
v_mul_u32_u24 v{vT0}, 2304, v{vT0}
v_lshl_add_u32 v{vT0}, v{vHF}, 4, v{vT0}
v_add_u32 v{vSil}, s{sOff}, v{vT0}
s_waitcnt lgkmcnt(0)""")
    for s in range(9):
        wf = vWF + 8*(s & 1); sf = vSF + 4*(s & 1)
        a(f"s_waitcnt vmcnt({18-2*(s+1)})")
        a(f"ds_read_b128 {vr(sf,4)}, v{vSil} offset:{s*32}")
        trreads(a, wf, vA0, vA1, s*2048)
        a("s_waitcnt lgkmcnt(2)")
        mfma(a, vAcc, wf, sf, s == 0)
        a("s_waitcnt lgkmcnt(0)")
        mfma(a, vAcc+16, wf+4, sf, s == 0)
    a(f"""v_and_b32 v{vT0}, 1, v0
v_lshlrev_b32 v{vT0}, 8, v{vT0}
v_lshl_add_u32 v{vT0}, v{vHF}, 5, v{vT0}
s_lshl_b32 s{sOff}, s{S_W}, 9
s_add_u32 s{sOff}, s{sOff}, {L_RED}
v_add_u32 v{vT0}, s{sOff}, v{vT0}
s_mov_b32 exec_lo, 3
s_mov_b32 exec_hi, 3
s_nop 8""")
    for cb in range(2):
        for q, off in enumerate((0, 16, 64, 80)):
            a(f"ds_write_b128 v{vT0}, {vr(vAcc+16*cb+4*q,4)} offset:{cb*128+off}")
    a(f"""s_mov_b64 exec, -1
s_waitcnt lgkmcnt(0)
s_barrier
s_lshr_b32 s{sOff}, s{S_W}, 2
s_lshl_b32 s{sOff}, s{sOff}, 8
s_add_u32 s{sOff}, s{sOff}, {L_RED}
v_lshlrev_b32 v{vT0}, 2, v0
v_add_u32 v{vT1}, s{sOff}, v{vT0}""")
    for w in range(8):
        a(f"ds_read_b32 v{vAcc+w}, v{vT1} offset:{w*512}")
    a("s_waitcnt lgkmcnt(0)")
    for w in range(1, 8):
        a(f"v_add_f32 v{vAcc}, v{vAcc}, v{vAcc+w}")
    round_bf16(a, vAcc)
    lsk = a.label("gsk")
    a(f"""s_and_b32 s{sOff}, s{S_W}, 3
s_cmp_lg_u32 s{sOff}, 0
s_cbranch_scc1 {lsk}
s_lshr_b32 s{T+9}, s{S_W}, 2
s_mul_i32 s{sOff}, s{T+9}, 4608
s_lshl_b32 s{sColA}, s{sO}, 8
s_add_u32 s{sOff}, s{sOff}, s{sColA}
s_add_u32 s{sOff}, s{sOff}, {WS_GATE}
buffer_store_dword v{vAcc}, v{vT0}, {WS}, s{sOff} offen sc1
{lsk}:
s_lshl_b32 s{sOff}, s{sO}, 7
s_add_u32 s{sOff}, s{sOff}, {F_G}""")
    set_flag(a, f"s{sOff}")
    stamp(a, 7)
    a("s_branch L_fin")

S_UCT, S_UTB = 9, 10
vDU = 14
def u_setup(a):
    srd(a, R_B, S_WO, SZ_WO)
    a(f"""s_and_b32 s{T+14}, s{S_G}, 3
s_mul_i32 s{T+14}, s{T+14}, 18
s_add_u32 s{T+14}, s{T+14}, s{S_SLOT}
s_lshr_b32 s{S_UCT}, s{T+14}, 2
s_and_b32 s{T+14}, s{T+14}, 3
s_lshr_b32 s{S_UTB}, s{S_G}, 2
s_lshl_b32 s{S_UTB}, s{S_UTB}, 2
s_add_u32 s{S_UTB}, s{S_UTB}, s{T+14}
s_lshl_b32 s{S_UTB}, s{S_UTB}, 1
s_and_b32 s{T+14}, s{S_W}, 1
s_add_u32 s{S_UTB}, s{S_UTB}, s{T+14}
v_lshlrev_b32 v{vDU}, 4, v{vCH}
v_mul_u32_u24 v{vT0}, 2304, v{vR8}
s_lshl_b32 s{T+14}, s{S_UCT}, 7
v_add3_u32 v{vDU}, v{vDU}, v{vT0}, s{T+14}""")

def phase_b8_body(a, sCt, sTb, sKh, sRt, sOff, sHs, sHe, sLo, sLe, sLs, vA0, vA1, vAcc, vWF, vH):
    if OPT['rot'] == '1':
        mod9(a, sRt, sCt, sOff)
    elif OPT['rot'] == '0':
        a(f"s_mov_b32 s{sRt}, 0")
    else:
        a(f"s_and_b32 s{sRt}, s{sCt}, {int(OPT['rot'])-1}")
    a(f"""s_mul_i32 s{sHs}, s{sTb}, {72*1024}
s_mul_i32 s{sOff}, s{sKh}, {36*1024}
s_add_u32 s{sHs}, s{sHs}, s{sOff}
s_add_u32 s{sHs}, s{sHs}, {WS_H}
s_add_u32 s{sHe}, s{sHs}, {36*1024}
s_lshl_b32 s{sOff}, s{sRt}, 12
s_add_u32 s{T+12}, s{sHs}, s{sOff}
s_mul_i32 s{sLs}, s{sKh}, {576*128}
s_add_u32 s{sLe}, s{sLs}, {576*128}
s_lshl_b32 s{sOff}, s{sRt}, 13
s_add_u32 s{sLo}, s{sLs}, s{sOff}
v_min_u32 v{vT0}, 17, v0
v_lshlrev_b32 v{vT0}, 7, v{vT0}
s_lshr_b32 s{sOff}, s{sTb}, 3
s_mul_i32 s{sOff}, s{sOff}, {18*128}
s_add_u32 s{sOff}, s{sOff}, {F_H}
s_waitcnt vmcnt(0)""")
    stamp(a, 2)
    poll(a, vT0, f"s{sOff}", vT1)
    stamp(a, 3)
    sH = T+12
    LA = int(float(OPT['la'])*4)
    WA = int(OPT.get('wa', 2))
    def hload(s):
        a(f"buffer_load_dwordx4 {vr(vH+4*s,4)}, v{vL16}, {WS}, s{sH} offen offset:{(s&3)*1024} sc1")
        if (s & 3) == 3 and s < 35:
            wrap_add(a, sH, 4096, sHe, sHs)
    def wread(s):
        if (s & 3) == 0:
            a(f"v_add_u32 v{vA0}, s{sLo}, v{vB0}\nv_add_u32 v{vA1}, s{sLo}, v{vB1}")
            wrap_add(a, sLo, 8192, sLe, sLs)
        trreads(a, vWF + 8*(s & 3), vA0, vA1, (s & 3)*2048)
    for s in range(LA):
        hload(s)
    for s in range(WA):
        wread(s)
    for s in range(36):
        lg = 4*min(WA-1, 35 - s)
        issued = min(36, s + LA)
        a(f"s_waitcnt vmcnt({issued - s - 1}) lgkmcnt({lg})")
        if s == 0: stamp(a, 4)
        mfma(a, vAcc, vWF+8*(s & 3), vH+4*s, s == 0)
        if s + WA < 36:
            wread(s + WA)
        mfma(a, vAcc+16, vWF+8*(s & 3)+4, vH+4*s, s == 0)
        if s + LA < 36:
            hload(s + LA)
    stamp(a, 5)
    XB = 131072
    lk1 = a.label("kh1"); lj = a.label("j")
    a(f"""s_lshl_b32 s{sOff}, s{S_W}, 12
s_add_u32 s{sOff}, s{sOff}, {XB}
v_add_u32 v{vT0}, s{sOff}, v{vL16}
v_xor_b32 v{vT1}, {4*4096}, v{vT0}
s_nop 8
s_barrier
s_cmp_lg_u32 s{sKh}, 0
s_cbranch_scc1 {lk1}""")
    for q in range(4):
        a(f"ds_write_b128 v{vT0}, {vr(vAcc+16+4*q,4)} offset:{q*1024}")
    a(f"s_branch {lj}\n{lk1}:")
    for q in range(4):
        a(f"ds_write_b128 v{vT0}, {vr(vAcc+4*q,4)} offset:{q*1024}")
    for r in range(16):
        a(f"v_mov_b32 v{vAcc+r}, v{vAcc+16+r}")
    a(f"{lj}:\ns_waitcnt lgkmcnt(0)\ns_barrier")
    for q in range(4):
        a(f"ds_read_b128 {vr(vWF+4*q,4)}, v{vT1} offset:{q*1024}")
    a(f"""s_mul_i32 s{sHs}, s{sTb}, {216*1024}
s_lshl_b32 s{sOff}, s{sCt}, 12
s_add_u32 s{sHs}, s{sHs}, s{sOff}
s_lshl_b32 s{sOff}, s{sKh}, 11
s_add_u32 s{sHs}, s{sHs}, s{sOff}
s_add_u32 s{sHs}, s{sHs}, {WS_QKV}""")
    for u in range(2):
        a(f"s_waitcnt lgkmcnt({2-2*u})")
        for r in range(8*u, 8*u+8):
            a(f"v_add_f32 v{vAcc+r}, v{vAcc+r}, v{vWF+r}")
        for r in range(4*u, 4*u+4):
            a(f"v_cvt_pk_bf16_f32 v{vWF+16+r}, v{vAcc+2*r}, v{vAcc+2*r+1}")
        a(f"buffer_store_dwordx4 {vr(vWF+16+4*u,4)}, v{vL16}, {WS}, s{sHs} offen offset:{1024*u} sc1")

def phase_b4_body(a, sCt, sTb, sRt, sOff, sHs, sHe, sLo, sLe, sLs, vA0, vA1):
    vAcc = 20
    vWF = 52
    vH = 84
    LA = int(float(OPT['la'])*4)
    RING = min(40, LA + 4)
    WA = int(OPT.get('wa', 2))
    rot = OPT['rot']
    if rot == '1':
        mod9(a, sRt, sCt, sOff)
        a(f"s_lshl_b32 s{sRt}, s{sRt}, 1")
    elif rot == '0':
        a(f"s_mov_b32 s{sRt}, 0")
    else:
        m, k = [int(x) for x in rot.split('x')]
        a(f"s_and_b32 s{sRt}, s{sCt}, {m-1}\ns_mul_i32 s{sRt}, s{sRt}, {k}")
    a(f"""s_mul_i32 s{sHs}, s{sTb}, {72*1024}
s_add_u32 s{sHs}, s{sHs}, {WS_H}
s_add_u32 s{sHe}, s{sHs}, {72*1024}
s_lshl_b32 s{sOff}, s{sRt}, 12
s_add_u32 s{T+12}, s{sHs}, s{sOff}
s_mov_b32 s{sLs}, 0
s_mov_b32 s{sLe}, {1152*128}
s_lshl_b32 s{sLo}, s{sRt}, 13
v_min_u32 v{vT0}, 17, v0
v_lshlrev_b32 v{vT0}, 7, v{vT0}
s_lshr_b32 s{sOff}, s{sTb}, 3
s_mul_i32 s{sOff}, s{sOff}, {18*128}
s_add_u32 s{sOff}, s{sOff}, {F_H}
s_waitcnt vmcnt(0)""")
    stamp(a, 2)
    poll(a, vT0, f"s{sOff}", vT1)
    stamp(a, 3)
    lend = a.label("b4end")
    a(f"s_cmp_ge_u32 s{S_W}, 4\ns_cbranch_scc1 {lend}")
    sH = T+12
    def hload(s):
        a(f"buffer_load_dwordx4 {vr(vH+4*(s % RING),4)}, v{vL16}, {WS}, s{sH} offen offset:{(s&3)*1024} sc1")
        if (s & 3) == 3 and s < 71:
            wrap_add(a, sH, 4096, sHe, sHs)
    def wread(s):
        if (s & 3) == 0:
            a(f"v_add_u32 v{vA0}, s{sLo}, v{vB0}\nv_add_u32 v{vA1}, s{sLo}, v{vB1}")
            wrap_add(a, sLo, 8192, sLe, sLs)
        trreads(a, vWF + 8*(s & 3), vA0, vA1, (s & 3)*2048)
    LA0 = int(OPT.get('la0', LA))
    issued = 0
    for s in range(WA):
        wread(s)
    for s in range(LA0):
        hload(s); issued += 1
    for s in range(72):
        lg = 4*min(WA-1, 71 - s)
        a(f"s_waitcnt vmcnt({issued - s - 1}) lgkmcnt({lg})")
        if s == 0: stamp(a, 4)
        mfma(a, vAcc, vWF+8*(s & 3), vH+4*(s % RING), s == 0)
        if s + WA < 72 and 'nolds' not in OPT:
            wread(s + WA)
        mfma(a, vAcc+16, vWF+8*(s & 3)+4, vH+4*(s % RING), s == 0)
        for rep in range(2):
            if issued < 72 and issued <= s + LA:
                hload(issued); issued += 1
    stamp(a, 5)
    a(f"""s_mul_i32 s{sHs}, s{sTb}, {216*1024}
s_lshl_b32 s{sOff}, s{sCt}, 12
s_add_u32 s{sHs}, s{sHs}, s{sOff}
s_add_u32 s{sHs}, s{sHs}, {WS_QKV}
s_nop 7""")
    for u in range(4):
        if u == 2:
            a("s_nop 1")
        for r in range(4*u, 4*u+4):
            a(f"v_cvt_pk_bf16_f32 v{vWF+r}, v{vAcc+2*r}, v{vAcc+2*r+1}")
        a(f"buffer_store_dwordx4 {vr(vWF+4*u,4)}, v{vL16}, {WS}, s{sHs} offen offset:{1024*u} sc1")
    a(f"{lend}:\ns_barrier")

KE = int(OPT.get('ke', 6))
def phase_b(a):
    sCt, sTb, sKh, sRt, sOff, sHs, sHe, sLo, sLe, sLs = T, T+1, T+2, T+3, T+4, T+5, T+6, T+7, T+8, T+9
    vD, vA0, vA1 = V0, V0+1, V0+2
    vAcc = 20
    vWF = 52
    vH = 84
    srd(a, R_A, S_WQKV, SZ_WQKV)
    a(f"s_sub_u32 s{S_SLOT}, s{S_SLOT}, {NO}")
    if OPT['map'] == 'all':
        a(f"""s_mul_i32 s{sOff}, s{S_G}, 27
s_add_u32 s{sOff}, s{sOff}, s{S_SLOT}
s_lshr_b32 s{sCt}, s{sOff}, 2
s_and_b32 s{sRt}, s{sOff}, 3
s_lshl_b32 s{sTb}, s{sRt}, 2
s_mul_i32 s{sRt}, s{sRt}, 9
s_lshr_b32 s{sRt}, s{sRt}, 1""")
    else:
        a(f"""s_and_b32 s{sOff}, s{S_G}, 3
s_mul_i32 s{sOff}, s{sOff}, 27
s_add_u32 s{sOff}, s{sOff}, s{S_SLOT}
s_lshr_b32 s{sCt}, s{sOff}, 1
s_and_b32 s{sRt}, s{sOff}, 1
s_lshr_b32 s{sTb}, s{S_G}, 2
s_lshl_b32 s{sTb}, s{sTb}, 1
s_add_u32 s{sTb}, s{sTb}, s{sRt}
s_lshl_b32 s{sTb}, s{sTb}, 2
s_mul_i32 s{sRt}, s{sRt}, 9""")
    a(f"""s_and_b32 s{sOff}, s{S_W}, 3
s_add_u32 s{sTb}, s{sTb}, s{sOff}
s_lshr_b32 s{sKh}, s{S_W}, 2
v_lshlrev_b32 v{vD}, 4, v{vCH}
v_mul_u32_u24 v{vT0}, 6912, v{vR8}
s_lshl_b32 s{sOff}, s{sCt}, 7
v_add3_u32 v{vD}, v{vD}, v{vT0}, s{sOff}""")
    dma_tile(a, RA, vD, 6912, sRt, NT)
    stamp(a, 1)
    u_setup(a)
    if 'b4' in OPT:
        phase_b4_body(a, sCt, sTb, sRt, sOff, sHs, sHe, sLo, sLe, sLs, vA0, vA1)
    else:
        phase_b8_body(a, sCt, sTb, sKh, sRt, sOff, sHs, sHe, sLo, sLe, sLs, vA0, vA1, vAcc, vWF, vH)
    stamp(a, 6)
    a(f"""s_lshr_b32 s{sHs}, s{sTb}, 2
s_mul_i32 s{sHs}, s{sHs}, 54
s_add_u32 s{sHs}, s{sHs}, s{sCt}
s_lshl_b32 s{sHs}, s{sHs}, 7
s_add_u32 s{sHs}, s{sHs}, {F_QKV}
s_cmp_ge_u32 s{S_SLOT}, 18
s_cbranch_scc1 L_c_notu""")
    if KE:
        dma_tile(a, RB, vDU, 2304, None, NT, 0, KE)
    set_flag(a, f"s{sHs}", KE)
    stamp(a, 7)

def phase_c(a):
    vA0, vA1 = V0+1, V0+2
    vAcc = 20
    vWF = 52
    vR = 84
    vH = 92
    sKq, sJ, sOff, sHs, sHe, sLo, sLe, sLs = T+2, T+3, T+4, T+5, T+6, T+7, T+8, T+9
    sCt, sTb = S_UCT, S_UTB
    sH = T+12
    dma_tile(a, RB, vDU, 2304, None, NT, KE, 18)
    a(f"s_lshr_b32 s{sKq}, s{S_W}, 1\ns_lshl_b32 s{sJ}, s{sCt}, 1")
    mod9(a, sJ, sJ, sOff)
    a(f"""s_mul_i32 s{sHs}, s{sTb}, {216*1024}
s_mul_i32 s{sOff}, s{sKq}, {18*1024}
s_add_u32 s{sHs}, s{sHs}, s{sOff}
s_add_u32 s{sHs}, s{sHs}, {WS_QKV + 144*1024}
s_add_u32 s{sHe}, s{sHs}, {18*1024}
s_lshl_b32 s{sOff}, s{sJ}, 11
s_add_u32 s{sH}, s{sHs}, s{sOff}
s_mul_i32 s{sLs}, s{sKq}, {288*128}
s_add_u32 s{sLe}, s{sLs}, {288*128}
s_lshl_b32 s{sOff}, s{sJ}, 12
s_add_u32 s{sLo}, s{sLs}, s{sOff}
v_min_u32 v{vT0}, 17, v0
v_lshlrev_b32 v{vT0}, 7, v{vT0}
s_lshr_b32 s{sOff}, s{sTb}, 2
s_mul_i32 s{sOff}, s{sOff}, {54*128}
s_add_u32 s{sOff}, s{sOff}, {F_QKV + 36*128}""")
    stamp(a, 11)
    poll(a, vT0, f"s{sOff}", vT1)
    stamp(a, 12)
    LA = int(OPT.get('lau', 8))
    def vload(s):
        a(f"buffer_load_dwordx4 {vr(vH+4*s,4)}, v{vP16}, {WS}, s{sH} offen offset:{(s&1)*1024} sc1")
        if (s & 1) == 1 and s < 17:
            wrap_add(a, sH, 2048, sHe, sHs)
    def wread(s):
        if (s & 1) == 0:
            a(f"v_add_u32 v{vA0}, s{sLo}, v{vB0}\nv_add_u32 v{vA1}, s{sLo}, v{vB1}")
            wrap_add(a, sLo, 4096, sLe, sLs)
        trreads(a, vWF + 8*(s & 3), vA0, vA1, (s & 1)*2048)
    for s in range(LA):
        vload(s)
    a(f"s_waitcnt vmcnt({LA})\ns_barrier")
    wread(0); wread(1)
    for s in range(18):
        lg = 4*min(1, 17 - s)
        issued = min(18, s + LA)
        a(f"s_waitcnt vmcnt({issued - s - 1}) lgkmcnt({lg})")
        mfma(a, vAcc, vH+4*s, vWF+8*(s & 3), s == 0)
        if s + 2 < 18:
            wread(s + 2)
        mfma(a, vAcc+16, vH+4*s, vWF+8*(s & 3)+4, s == 0)
        if s + LA < 18:
            vload(s + LA)
    stamp(a, 13)
    a(f"""s_lshl_b32 s{sOff}, s{S_W}, 13
v_add_u32 v{vT0}, s{sOff}, v{vL16}
s_nop 8
s_barrier""")
    for q in range(8):
        a(f"ds_write_b128 v{vT0}, {vr(vAcc+4*q,4)} offset:{q*1024}")
    a(f"""s_and_b32 s{sOff}, s{S_W}, 1
s_lshl_b32 s{sOff}, s{sOff}, 13
s_lshl_b32 s{sJ}, s{sKq}, 11
s_add_u32 s{sOff}, s{sOff}, s{sJ}
v_add_u32 v{vT1}, s{sOff}, v{vL16}
s_waitcnt lgkmcnt(0)
s_barrier""")
    for j in range(4):
        a(f"""ds_read_b128 {vr(vAcc+8*j,4)}, v{vT1} offset:{j*16384}
ds_read_b128 {vr(vAcc+8*j+4,4)}, v{vT1} offset:{j*16384+1024}""")
    a(f"""s_lshr_b32 s{sJ}, s{sTb}, 3
s_mul_i32 s{sJ}, s{sJ}, 36
s_lshl_b32 s{sOff}, s{sCt}, 1
s_add_u32 s{sJ}, s{sJ}, s{sOff}
s_lshr_b32 s{sOff}, s{sKq}, 1
s_add_u32 s{sJ}, s{sJ}, s{sOff}
s_lshl_b32 s{sJ}, s{sJ}, 4
s_and_b32 s{sOff}, s{sTb}, 7
s_lshl_b32 s{sOff}, s{sOff}, 1
s_add_u32 s{sJ}, s{sJ}, s{sOff}
s_and_b32 s{sOff}, s{sKq}, 1
s_add_u32 s{sJ}, s{sJ}, s{sOff}
s_lshl_b32 s{sOff}, s{sJ}, 10
s_add_u32 s{sOff}, s{sOff}, {WS_U}
s_lshr_b32 s{sJ}, s{sTb}, 3
s_mul_i32 s{sJ}, s{sJ}, 18
s_add_u32 s{sJ}, s{sJ}, s{sCt}
s_lshl_b32 s{sJ}, s{sJ}, 2
s_bfe_u32 s{sHs}, s{sTb}, 0x20001
s_add_u32 s{sJ}, s{sJ}, s{sHs}
s_lshl_b32 s{sJ}, s{sJ}, 7
s_add_u32 s{sJ}, s{sJ}, {F_U}
s_waitcnt lgkmcnt(0)""")
    for r in range(8):
        a(f"""v_add_f32 v{vAcc+r}, v{vAcc+r}, v{vAcc+8+r}
v_add_f32 v{vAcc+16+r}, v{vAcc+16+r}, v{vAcc+24+r}""")
    for r in range(8):
        a(f"v_add_f32 v{vAcc+r}, v{vAcc+r}, v{vAcc+16+r}")
    for r in range(4):
        a(f"v_cvt_pk_bf16_f32 v{vR+r}, v{vAcc+2*r}, v{vAcc+2*r+1}")
    a(f"buffer_store_dwordx4 {vr(vR,4)}, v{vL16}, {WS}, s{sOff} offen sc1")
    set_flag(a, f"s{sJ}")
    a("s_branch L_c_done")
    a("L_c_notu:")
    set_flag(a, f"s{sHs}")
    stamp(a, 7)
    a(f"s_cmp_ge_u32 s{S_SLOT}, 26\ns_cbranch_scc1 L_c_done")
    sQb, sKb, sK, sQ, sKs, sQs, sKt = T, T+1, T+5, T+6, T+7, T+8, T+9
    vS = 56
    RING = 15
    a(f"""s_sub_u32 s{sJ}, s{S_SLOT}, 18
s_and_b32 s{sKq}, s{S_W}, 3
s_and_b32 s{sQb}, s{S_G}, 1
s_lshl_b32 s{sQb}, s{sQb}, 2
s_and_b32 s{sOff}, s{sJ}, 3
s_add_u32 s{sQb}, s{sQb}, s{sOff}
s_and_b32 s{sKt}, s{S_G}, 2
s_lshr_b32 s{sOff}, s{sJ}, 2
s_add_u32 s{sKt}, s{sKt}, s{sOff}
s_lshl_b32 s{sKb}, s{sKt}, 1
s_lshr_b32 s{sOff}, s{S_G}, 2
s_lshl_b32 s{sOff}, s{sOff}, 3
s_add_u32 s{sQb}, s{sQb}, s{sOff}
s_add_u32 s{sKb}, s{sKb}, s{sOff}
s_mul_i32 s{sKs}, s{sKb}, {216*1024}
s_mul_i32 s{sQs}, s{sQb}, {216*1024}
s_mul_i32 s{sOff}, s{sKq}, {18*1024}
s_add_u32 s{sKs}, s{sKs}, s{sOff}
s_add_u32 s{sQs}, s{sQs}, s{sOff}
s_add_u32 s{sKs}, s{sKs}, {WS_QKV + 72*1024}
s_add_u32 s{sQs}, s{sQs}, {WS_QKV}
s_lshl_b32 s{sH}, s{sJ}, 11
v_min_u32 v{vT0}, 17, v{vTok}
v_lshlrev_b32 v{vT0}, 7, v{vT0}
s_lshr_b32 s{sOff}, s{sKb}, 2
s_mul_i32 s{sOff}, s{sOff}, {54*128}
s_add_u32 s{sOff}, s{sOff}, {18*128}
s_lshr_b32 s{T+13}, s{sQb}, 2
s_mul_i32 s{T+13}, s{T+13}, {54*128}
s_sub_u32 s{sOff}, s{sOff}, s{T+13}
v_mul_lo_u32 v{vT1}, v{vHF}, s{sOff}
v_add_u32 v{vT0}, v{vT0}, v{vT1}
v_add_u32 v{vT0}, s{T+13}, v{vT0}
v_add_u32 v{vT2}, {216*1024}, v{vP16}
s_mov_b32 s{sOff}, {F_QKV}""")
    stamp(a, 11)
    poll(a, vT0, f"s{sOff}", vT1)
    stamp(a, 12)
    lsi = a.label("sidle")
    a(f"s_cmp_ge_u32 s{S_W}, 4\ns_cbranch_scc1 {lsi}")
    LA = int(OPT.get('las', 8))
    assert LA < RING
    a(f"s_movk_i32 s{T+13}, 0\ns_movk_i32 s{T+14}, {18*1024}")
    def sload(s):
        r = vS + 12*(s % RING)
        if (s & 1) == 0:
            a(f"s_add_u32 s{sK}, s{sKs}, s{sH}\ns_add_u32 s{sQ}, s{sQs}, s{sH}")
            wrap_add(a, sH, 2048, T+14, T+13)
        a(f"""buffer_load_dwordx4 {vr(r,4)}, v{vL16}, {WS}, s{sQ} offen offset:{(s&1)*1024} sc1
buffer_load_dwordx4 {vr(r+4,4)}, v{vP16}, {WS}, s{sK} offen offset:{(s&1)*1024} sc1
buffer_load_dwordx4 {vr(r+8,4)}, v{vT2}, {WS}, s{sK} offen offset:{(s&1)*1024} sc1""")
    for s in range(LA):
        sload(s)
    for s in range(18):
        issued = min(18, s + LA)
        r = vS + 12*(s % RING)
        a(f"s_waitcnt vmcnt({3*(issued - s - 1) + 1})")
        mfma(a, vAcc, r+4, r, s == 0)
        a(f"s_waitcnt vmcnt({3*(issued - s - 1)})")
        mfma(a, vAcc+16, r+8, r, s == 0)
        if s + LA < 18:
            sload(s + LA)
    stamp(a, 13)
    QS, HS, PSZ = 1056, 528, 8448
    a(f"""s_mul_i32 s{sOff}, s{S_W}, {PSZ}
v_lshl_add_u32 v{vT0}, v{vHF}, 4, v{vL16}
v_add_u32 v{vT0}, s{sOff}, v{vT0}
s_nop 11""")
    for q in range(8):
        a(f"ds_write_b128 v{vT0}, {vr(vAcc+4*q,4)} offset:{q*QS}")
    a(f"""{lsi}:
v_bfe_u32 v{vT1}, v0, 2, 2
v_and_b32 v{vT2}, 1, v0
v_lshl_add_u32 v{vT1}, v{vT1}, 1, v{vT2}
v_mul_u32_u24 v{vT1}, {QS}, v{vT1}
v_bfe_u32 v{vT2}, v0, 1, 1
v_mul_u32_u24 v{vT2}, {HS}, v{vT2}
v_lshrrev_b32 v{vT0}, 4, v0
s_lshl_b32 s{sOff}, s{S_W}, 2
v_add_u32 v{vT0}, s{sOff}, v{vT0}
v_lshl_add_u32 v{vT1}, v{vT0}, 4, v{vT1}
v_add_u32 v{vT1}, v{vT1}, v{vT2}
v_and_b32 v{vT2}, 15, v0
v_lshlrev_b32 v{vT2}, 3, v{vT2}
v_lshl_add_u32 v{vT2}, v{vT0}, 9, v{vT2}
s_waitcnt lgkmcnt(0)
s_barrier""")
    for j in range(4):
        a(f"ds_read_b128 {vr(vAcc+4*j,4)}, v{vT1} offset:{j*PSZ}")
    a(f"""s_lshl_b32 s{sJ}, s{sQb}, 14
s_lshl_b32 s{sOff}, s{sKt}, 7
s_add_u32 s{sJ}, s{sJ}, s{sOff}
s_add_u32 s{sJ}, s{sJ}, {WS_L}
s_lshl_b32 s{sK}, s{sQb}, 2
s_add_u32 s{sK}, s{sK}, s{sKt}
s_lshl_b32 s{sK}, s{sK}, 7
s_add_u32 s{sK}, s{sK}, {F_L}
s_waitcnt lgkmcnt(0)""")
    for r in range(4):
        a(f"""v_add_f32 v{vAcc+r}, v{vAcc+r}, v{vAcc+4+r}
v_add_f32 v{vAcc+8+r}, v{vAcc+8+r}, v{vAcc+12+r}""")
    for r in range(4):
        a(f"v_add_f32 v{vAcc+r}, v{vAcc+r}, v{vAcc+8+r}")
    sc = struct.unpack('<I', struct.pack('<f', D ** -0.5))[0]
    vR2 = 52
    for r in range(2):
        a(f"v_cvt_pk_bf16_f32 v{vR2+r}, v{vAcc+2*r}, v{vAcc+2*r+1}")
        unpack(a, vAcc+2*r, vAcc+2*r+1, vR2+r)
        a(f"""v_mul_f32 v{vAcc+2*r}, {hex(sc)}, v{vAcc+2*r}
v_mul_f32 v{vAcc+2*r+1}, {hex(sc)}, v{vAcc+2*r+1}
v_cvt_pk_bf16_f32 v{vR2+r}, v{vAcc+2*r}, v{vAcc+2*r+1}""")
    a(f"buffer_store_dwordx2 {vr(vR2,2)}, v{vT2}, {WS}, s{sJ} offen sc1")
    set_flag(a, f"s{sK}")
    a("L_c_done:")
    stamp(a, 14)

def phase_d(a):
    sQt, sCt, sCb, sKh, sOff, sXo, sJ, sU, sB, sCol = T, T+1, T+2, T+3, T+4, T+5, T+6, T+7, T+8, T+9
    vXo, vMx, vS, vLa, vPa, vLw = V0, V0+1, V0+2, V0+3, V0+4, V0+5
    vLd = 24
    vX = 32
    vG = 36
    vF = 44
    vR = 60
    vAcc = 68
    vU = 84
    vP = 116
    PS = 1056
    L_P, L_EX = 0, 20480
    srd(a, R_A, S_X, SZ_X)
    srd(a, R_B, S_OUT, SZ_X)
    a(f"""s_sub_u32 s{sJ}, 26, s{S_SLOT}
s_cmp_ge_u32 s{sJ}, 18
s_cbranch_scc1 L_d_idle
s_and_b32 s{sOff}, s{S_G}, 3
s_mul_i32 s{sOff}, s{sOff}, 18
s_add_u32 s{sOff}, s{sOff}, s{sJ}
s_lshr_b32 s{sCt}, s{sOff}, 3
s_and_b32 s{sJ}, s{sOff}, 7
s_lshr_b32 s{sB}, s{S_G}, 2
s_lshl_b32 s{sQt}, s{sB}, 3
s_add_u32 s{sQt}, s{sQt}, s{sJ}
s_and_b32 s{sCb}, s{S_W}, 3
s_lshr_b32 s{sKh}, s{S_W}, 2
s_lshl_b32 s{sCol}, s{sCt}, 7
s_lshl_b32 s{sOff}, s{sCb}, 5
s_add_u32 s{sCol}, s{sCol}, s{sOff}
s_lshl_b32 s{sOff}, s{sKh}, 4
s_add_u32 s{sCol}, s{sCol}, s{sOff}
s_mul_i32 s{sXo}, s{sQt}, {32*2304}
s_lshl_b32 s{sOff}, s{sCol}, 1
s_add_u32 s{sXo}, s{sXo}, s{sOff}
v_mul_u32_u24 v{vXo}, 2304, v{vTok}
v_lshl_add_u32 v{vXo}, v{vHF}, 4, v{vXo}
buffer_load_dwordx4 {vr(vX,4)}, v{vXo}, {RA}, s{sXo} offen
s_mul_i32 s{sU}, s{sB}, 36
s_lshl_b32 s{sOff}, s{sCt}, 2
s_add_u32 s{sU}, s{sU}, s{sOff}
s_add_u32 s{sU}, s{sU}, s{sCb}
s_lshl_b32 s{sU}, s{sU}, 4
s_lshl_b32 s{sOff}, s{sKh}, 3
s_add_u32 s{sU}, s{sU}, s{sOff}
v_lshlrev_b32 v{vT0}, 7, v0
s_lshl_b32 s{sOff}, s{sQt}, 9
s_add_u32 s{sOff}, s{sOff}, {F_L}
v_add_u32 v{vT1}, s{sOff}, v{vT0}
s_mul_i32 s{sOff}, s{sB}, 18
s_lshl_b32 s{T+10}, s{sCt}, 1
s_add_u32 s{sOff}, s{sOff}, s{T+10}
s_lshl_b32 s{sOff}, s{sOff}, 9
s_add_u32 s{sOff}, s{sOff}, {F_U - 512}
v_add_u32 v{vT2}, s{sOff}, v{vT0}
v_cmp_lt_u32 vcc, 3, v0
s_lshl_b32 s{sOff}, s{sCt}, 8
s_add_u32 s{sOff}, s{sOff}, {F_G}
v_cndmask_b32 v{vT1}, v{vT1}, v{vT2}, vcc
v_and_b32 v{vT2}, 128, v{vT0}
v_add_u32 v{vT2}, s{sOff}, v{vT2}
v_cmp_lt_u32 vcc, 11, v0
s_lshl_b32 s{sU}, s{sU}, 10
s_add_u32 s{sU}, s{sU}, {WS_U}
v_cndmask_b32 v{vT1}, v{vT1}, v{vT2}, vcc
v_and_b32 v{vT2}, 15, v0
v_lshrrev_b32 v{vT0}, 4, v0
s_lshl_b32 s{sOff}, s{S_W}, 2
v_add_u32 v{vT0}, s{sOff}, v{vT0}
v_lshlrev_b32 v{vLa}, 9, v{vT0}
v_lshl_add_u32 v{vLa}, v{vT2}, 4, v{vLa}
v_mul_u32_u24 v{vLw}, {PS//2}, v{vT2}
v_lshl_add_u32 v{vLw}, v{vT0}, 4, v{vLw}
v_lshl_add_u32 v{vPa}, v{vHF}, 4, v{vL16}""")
    poll(a, vT1, "0", vT2)
    stamp(a, 8)
    a(f"""s_lshl_b32 s{sOff}, s{sQt}, 14
s_add_u32 s{sOff}, s{sOff}, {WS_L}
buffer_load_dwordx4 {vr(vLd,4)}, v{vLa}, {WS}, s{sOff} offen sc1
buffer_load_dwordx4 {vr(vLd+4,4)}, v{vLa}, {WS}, s{sOff} offen offset:256 sc1
s_barrier""")
    for s in range(8):
        a(f"""s_add_u32 s{T+10}, s{sJ}, {s}
s_and_b32 s{T+10}, s{T+10}, 7
s_lshl_b32 s{T+10}, s{T+10}, 10
s_add_u32 s{T+10}, s{T+10}, s{sU}
buffer_load_dwordx4 {vr(vU+4*s,4)}, v{vL16}, {WS}, s{T+10} offen sc1""")
    a(f"""s_mul_i32 s{sOff}, s{sB}, 4608
s_lshl_b32 s{T+10}, s{sCol}, 2
s_add_u32 s{sOff}, s{sOff}, s{T+10}
s_add_u32 s{sOff}, s{sOff}, {WS_GATE}
v_lshlrev_b32 v{vT0}, 5, v{vHF}
buffer_load_dwordx4 {vr(vG,4)}, v{vT0}, {WS}, s{sOff} offen sc1
buffer_load_dwordx4 {vr(vG+4,4)}, v{vT0}, {WS}, s{sOff} offen offset:16 sc1
s_waitcnt vmcnt(10)""")
    stamp(a, 9)
    for i in range(8):
        unpack(a, vF+2*i, vF+2*i+1, vLd+i)
    a(f"v_max3_f32 v{vMx}, v{vF}, v{vF+1}, v{vF+2}")
    for i in range(3, 15, 2):
        a(f"v_max3_f32 v{vMx}, v{vMx}, v{vF+i}, v{vF+i+1}")
    a(f"v_max_f32 v{vMx}, v{vMx}, v{vF+15}")
    for m in ("quad_perm:[1,0,3,2]", "quad_perm:[2,3,0,1]", "row_half_mirror", "row_mirror"):
        a(f"s_nop 1\nv_max_f32_dpp v{vMx}, v{vMx}, v{vMx} {m} row_mask:0xf bank_mask:0xf")
    for i in range(16):
        a(f"v_sub_f32 v{vF+i}, v{vF+i}, v{vMx}")
    for i in range(16):
        a(f"v_mul_f32 v{vF+i}, {hex(LOG2E)}, v{vF+i}")
    for i in range(16):
        a(f"v_exp_f32 v{vF+i}, v{vF+i}")
    a(f"s_nop 0\nv_add_f32 v{vS}, v{vF}, v{vF+1}")
    for i in range(2, 16):
        a(f"v_add_f32 v{vS}, v{vS}, v{vF+i}")
    for m in ("quad_perm:[1,0,3,2]", "quad_perm:[2,3,0,1]", "row_half_mirror", "row_mirror"):
        a(f"s_nop 1\nv_add_f32_dpp v{vS}, v{vS}, v{vS} {m} row_mask:0xf bank_mask:0xf")
    a(f"v_rcp_f32 v{vS}, v{vS}\ns_nop 0")
    for i in range(16):
        a(f"v_mul_f32 v{vF+i}, v{vF+i}, v{vS}")
    for i in range(8):
        a(f"v_cvt_pk_bf16_f32 v{vLd+i}, v{vF+2*i}, v{vF+2*i+1}")
    a(f"""ds_write_b128 v{vLw}, {vr(vLd,4)} offset:{L_P}
ds_write_b128 v{vLw}, {vr(vLd+4,4)} offset:{L_P+8*PS}
s_mul_i32 s{sOff}, s{sKh}, {8*PS}
v_add_u32 v{vPa}, s{sOff}, v{vPa}
s_waitcnt lgkmcnt(0)
s_barrier""")
    for s in range(8):
        a(f"""s_add_u32 s{T+10}, s{sJ}, {s}
s_and_b32 s{T+10}, s{T+10}, 7
s_mul_i32 s{T+10}, s{T+10}, {PS}
v_add_u32 v{vT0}, s{T+10}, v{vPa}
ds_read_b128 {vr(vP+4*s,4)}, v{vT0} offset:{L_P}""")
    for s in range(8):
        a(f"s_waitcnt vmcnt({2+7-s}) lgkmcnt({7-s})")
        mfma(a, vAcc, vU+4*s, vP+4*s, s == 0)
    stamp(a, 10)
    lk1 = a.label("kh1"); lj = a.label("j")
    a(f"""s_lshl_b32 s{sOff}, s{S_W}, 11
v_add_u32 v{vT0}, s{sOff}, v{vL16}
v_xor_b32 v{vT1}, {4*2048}, v{vT0}
s_nop 10
s_cmp_lg_u32 s{sKh}, 0
s_cbranch_scc1 {lk1}
ds_write_b128 v{vT0}, {vr(vAcc+8,4)} offset:{L_EX}
ds_write_b128 v{vT0}, {vr(vAcc+12,4)} offset:{L_EX+1024}
s_branch {lj}
{lk1}:
ds_write_b128 v{vT0}, {vr(vAcc,4)} offset:{L_EX}
ds_write_b128 v{vT0}, {vr(vAcc+4,4)} offset:{L_EX+1024}""")
    for r in range(8):
        a(f"v_mov_b32 v{vAcc+r}, v{vAcc+8+r}")
    a(f"""{lj}:
s_waitcnt lgkmcnt(0)
s_barrier
ds_read_b128 {vr(vR,4)}, v{vT1} offset:{L_EX}
ds_read_b128 {vr(vR+4,4)}, v{vT1} offset:{L_EX+1024}
s_waitcnt vmcnt(0) lgkmcnt(0)""")
    for r in range(8):
        a(f"v_add_f32 v{vAcc+r}, v{vAcc+r}, v{vR+r}")
    for i in range(4):
        lo, hi = vAcc+2*i, vAcc+2*i+1
        a(f"v_cvt_pk_bf16_f32 v{vR+i}, v{lo}, v{hi}")
        unpack(a, lo, hi, vR+i)
        a(f"""v_mul_f32 v{lo}, v{lo}, v{vG+2*i}
v_mul_f32 v{hi}, v{hi}, v{vG+2*i+1}
v_cvt_pk_bf16_f32 v{vR+i}, v{lo}, v{hi}""")
        unpack(a, lo, hi, vR+i)
        unpack(a, vF, vF+1, vX+i)
        a(f"""v_add_f32 v{lo}, v{lo}, v{vF}
v_add_f32 v{hi}, v{hi}, v{vF+1}
v_cvt_pk_bf16_f32 v{vR+i}, v{lo}, v{hi}""")
    a(f"""buffer_store_dwordx4 {vr(vR,4)}, v{vXo}, {RB}, s{sXo} offen
s_branch L_fin
L_d_idle:
s_cmp_lg_u32 s2, {NO*8}
s_cbranch_scc1 L_fin""")
    lp = a.label("ep"); ld = a.label("epd")
    a(f"""s_lshl_b32 s{sOff}, s{S_W}, 6
v_add_u32 v{vT0}, s{sOff}, v0
v_min_u32 v{vT0}, 225, v{vT0}
v_lshlrev_b32 v{vT0}, 7, v{vT0}
s_movk_i32 s{sOff}, {F_L}
{lp}:
s_sleep 8
buffer_load_dword v{vLd}, v{vT0}, {WS}, s{sOff} offen sc1
s_waitcnt vmcnt(0)
v_cmp_ne_u32 vcc, s{S_TAG}, v{vLd}
s_cbranch_vccz {ld}
s_sub_u32 s{S_TO}, s{S_TO}, 1
s_cmp_lg_u32 s{S_TO}, 0
s_cbranch_scc1 {lp}
{ld}:
s_mov_b32 s{sOff}, {EPOCH}""")
    set_flag(a, f"s{sOff}")
    srd(a, R_A, S_DBG, 256)
    a(f"""s_cmp_lg_u32 s{S_W}, 0
s_cbranch_scc1 L_fin
v_lshlrev_b32 v{vT0}, 2, v0
v_mov_b32 v{vT1}, 0
buffer_store_dword v{vT1}, v{vT0}, {RA}, 0 offen sc1""")
    a("L_fin:")

def epilogue(a):
    if STAMP and 'probe' in OPT:
        i = int(OPT['probe']); lo, hi = [int(x) for x in OPT.get('prole', '0:256').split(':')]
        a(f"""s_waitcnt vmcnt(0) lgkmcnt(0)
s_cmp_lg_u32 s{S_W}, {OPT.get('stw', 0)}
s_cbranch_scc1 L_end
s_memrealtime s[{S_ST+30}:{S_ST+31}]
s_waitcnt lgkmcnt(0)
s_sub_u32 s{T}, s{S_ST+2*i}, s{S_ST}
s_cmp_eq_u32 s{S_ST+2*i}, 0
s_cselect_b32 s{T}, 0, s{T}
s_cmp_lt_u32 s2, {lo}
s_cselect_b32 s{T}, 0, s{T}
s_cmp_ge_u32 s2, {hi}
s_cselect_b32 s{T}, 0, s{T}
s_lshl_b32 s{T}, s{T}, 2
s_add_u32 s{T}, s{T}, 5000
L_spin:
s_memrealtime s[{T+2}:{T+3}]
s_waitcnt lgkmcnt(0)
s_sub_u32 s{T+2}, s{T+2}, s{S_ST}
s_cmp_lt_u32 s{T+2}, s{T}
s_cbranch_scc1 L_spin""")
    elif STAMP:
        a(f"""s_waitcnt vmcnt(0) lgkmcnt(0)
s_cmp_lg_u32 s{S_W}, {OPT.get('stw', 0)}
s_cbranch_scc1 L_end
{CLK} s[{S_ST+30}:{S_ST+31}]
s_memtime s[98:99]
s_waitcnt lgkmcnt(0)
s_sub_u32 s98, s98, s96""")
        for i in range(16):
            a(f"v_mov_b32 v{16+i}, s{S_ST+2*i}")
        a(f"""v_mov_b32 v32, s98
s_lshl_b32 s{T}, s2, 7
s_add_u32 s{T}, s{T}, {WS_STAMP}
v_mov_b32 v1, 0
s_mov_b64 exec, 1""")
        for i in range(4):
            a(f"buffer_store_dwordx4 v[{16+4*i}:{19+4*i}], v1, {WS}, s{T} offen offset:{16*i}")
        a(f"buffer_store_dword v32, v1, {WS}, s{T} offen offset:64")
    a("L_end:\ns_endpgm")

def main():
    a = Asm()
    a.raw("; @launch grid=(256,1,1) block=(512,1,1) lds=163840")
    a.raw('.amdgcn_target "amdgcn-amd-amdhsa--gfx950"\n.text')
    prologue(a)
    a(f"s_cmp_lt_u32 s{S_SLOT}, {NO}\ns_cbranch_scc1 L_owner")
    phase_b(a)
    phase_c(a)
    phase_d(a)
    epilogue(a)
    a("L_owner:")
    phase_owner(a)
    out = a.text() + kd(NAME, 244, 102)
    path = [x for x in sys.argv[1:] if not x.startswith('--')][0]
    open(path, 'w').write(out)
main()
```

```python
import sys, struct
from asmlib import *

OPT = dict(la='12', nt='')
for a_ in sys.argv[1:]:
    if a_.startswith('--'):
        k, _, v = a_[2:].partition('=')
        OPT[k] = v
STAMP = 'stamp' in OPT
NT = OPT['nt']
CLK = "s_memtime" if 'cyc' in OPT else "s_memrealtime"

NAME = "standalone__dit_adaln_block__diffusion_kernel"
D = 1152
SZ_X = 512*D*2; SZ_C = 2*D*2; SZ_WQKV = D*3*D*2; SZ_WO = D*D*2; SZ_WMOD = D*6*D*2
SZ_WS = 1 << 28
F_STAT = 0x0
F_H = 0x2000
F_L = 0x4000
F_U = F_L + 64*128
F_G = F_U + 144*128
F_QKV = 0xC000
EPOCH = 0x13000
WS_GATE = 0x14000
WS_H = 0x20000
WS_QKV = 0x140000
WS_L = 0x680000
WS_U = 0x550000
WS_PART = 0x4A0000
WS_STAMP = 0x700000
LOG2E = 0x3fb8aa3b

S_W, S_TAG, S_G, S_SLOT, S_TO, S_TK = 3, 4, 5, 6, 7, 8
S_X, S_C, S_WQKV, S_WO, S_WMOD, S_OUT, S_DBG, S_WS = 16, 18, 20, 22, 24, 26, 28, 30
R_A, R_B, R_C, R_WS = 32, 36, 40, 44
T = 48
S_ST = 64
WS = f"s[{R_WS}:{R_WS+3}]"
RA = f"s[{R_A}:{R_A+3}]"; RB = f"s[{R_B}:{R_B+3}]"; RC = f"s[{R_C}:{R_C+3}]"
vL16, vP16, vB0, vB1, vCH, vR8, vHF, vTok = 1, 2, 3, 4, 5, 6, 7, 8
vT0, vT1, vT2, vT3 = 9, 10, 11, 12
vTAG = 13
V0 = 16

L_MISC = 147456
L_SIL = L_MISC
L_RED = L_SIL + 4608
L_FIN = L_RED + 4096
L_ROLE = L_FIN + 4096
L_STC = L_ROLE + 16
NO = 5

def srd(a, r, ptr, size):
    a(f"""s_mov_b32 s{r}, s{ptr}
s_and_b32 s{r+1}, s{ptr+1}, 0xffff
s_mov_b32 s{r+2}, {hex(size)}
s_mov_b32 s{r+3}, 0x20000""")

def stamp(a, i):
    if STAMP:
        a(f"{CLK} s[{S_ST+2*i}:{S_ST+2*i+1}]")

def unpack(a, lo, hi, src):
    a(f"v_lshlrev_b32 v{lo}, 16, v{src}\nv_and_b32 v{hi}, 0xffff0000, v{src}")

def round_bf16(a, v):
    a(f"v_cvt_pk_bf16_f32 v{v}, v{v}, v{v}\nv_lshlrev_b32 v{v}, 16, v{v}")

def mfma(a, acc, A, B, first=False):
    c = "0" if first else vr(acc, 16)
    a(f"v_mfma_f32_32x32x16_bf16 {vr(acc,16)}, {vr(A,4)}, {vr(B,4)}, {c}")

def wrap_add(a, s, step, s_end, s_start):
    a(f"""s_add_u32 s{s}, s{s}, {step}
s_cmp_eq_u32 s{s}, s{s_end}
s_cselect_b32 s{s}, s{s_start}, s{s}""")

def mod9(a, dst, src, tmp):
    a(f"""s_mul_i32 s{tmp}, s{src}, 57
s_lshr_b32 s{tmp}, s{tmp}, 9
s_mul_i32 s{tmp}, s{tmp}, 9
s_sub_u32 s{dst}, s{src}, s{tmp}""")

def poll(a, vaddr, soff, vtmp):
    l = a.label("poll"); d = a.label("polld")
    a(f"""s_cmp_lg_u32 s{S_W}, 0
s_cbranch_scc1 {d}
{l}:
buffer_load_dword v{vtmp}, v{vaddr}, {WS}, {soff} offen sc1
s_waitcnt vmcnt(0)
v_cmp_ne_u32 vcc, s{S_TAG}, v{vtmp}
s_cbranch_vccz {d}
s_sleep {OPT.get('sleep', 2)}
s_sub_u32 s{S_TO}, s{S_TO}, 1
s_cmp_lg_u32 s{S_TO}, 0
s_cbranch_scc1 {l}
s_mov_b32 s{S_TO}, 1
{d}:
s_barrier""")

def gpoll(a, loads, tagregs):
    l = a.label("gp"); d = a.label("gpd")
    a(f"{l}:")
    loads()
    a(f"s_waitcnt vmcnt(0)\nv_cmp_ne_u32 vcc, s{S_TAG}, v{tagregs[0]}")
    for r in tagregs[1:]:
        a(f"v_cmp_ne_u32 s[{T+14}:{T+15}], s{S_TAG}, v{r}\ns_or_b64 vcc, vcc, s[{T+14}:{T+15}]")
    a(f"""s_cbranch_vccz {d}
s_sleep {OPT.get('gsleep', 2)}
s_sub_u32 s{S_TO}, s{S_TO}, 1
s_cmp_lg_u32 s{S_TO}, 0
s_cbranch_scc1 {l}
s_mov_b32 s{S_TO}, 1
{d}:""")

def raw_flag(a, soff):
    a(f"""v_mov_b32 v{vT3}, 0
s_mov_b64 exec, 1
buffer_store_dword v{vTAG}, v{vT3}, {WS}, {soff} offen sc1
s_mov_b64 exec, -1""")

def set_flag(a, soff, younger=0):
    d = a.label("fl")
    a(f"""s_waitcnt vmcnt({younger})
s_barrier
s_cmp_lg_u32 s{S_W}, 0
s_cbranch_scc1 {d}""")
    raw_flag(a, soff)
    a(f"{d}:")

def trreads(a, wf, b0, b1, off):
    a(f"""ds_read_b64_tr_b16 {vr(wf,2)}, v{b0} offset:{off}
ds_read_b64_tr_b16 {vr(wf+2,2)}, v{b0} offset:{off+512}
ds_read_b64_tr_b16 {vr(wf+4,2)}, v{b1} offset:{off}
ds_read_b64_tr_b16 {vr(wf+6,2)}, v{b1} offset:{off+512}""")

def dma_tile(a, srdname, vD, pitch, s_rot, flags, n0=0, n1=18):
    sN, sO = T+10, T+11
    if s_rot is None:
        a(f"s_add_u32 s{sN}, s{S_W}, {8*n0}")
    else:
        a(f"s_lshl_b32 s{sN}, s{s_rot}, 3\ns_add_u32 s{sN}, s{sN}, s{S_W}")
    for n in range(n0, n1):
        a(f"""s_lshl_b32 m0, s{sN}, 10
s_mul_i32 s{sO}, s{sN}, {8*pitch}
buffer_load_dwordx4 v{vD}, {srdname}, s{sO} offen {flags} lds""")
        if n < n1-1:
            a(f"s_add_u32 s{sN}, s{sN}, 8")
            if s_rot is not None:
                a(f"""s_sub_u32 s{sO}, s{sN}, 144
s_cmp_ge_u32 s{sN}, 144
s_cselect_b32 s{sN}, s{sO}, s{sN}""")

def wave_sum(a, v, sdst):
    for m in ("quad_perm:[1,0,3,2]", "quad_perm:[2,3,0,1]", "row_half_mirror", "row_mirror"):
        a(f"s_nop 1\nv_add_f32_dpp v{v}, v{v}, v{v} {m} row_mask:0xf bank_mask:0xf")
    a(f"s_nop 1\nv_add_f32_dpp v{v}, v{v}, v{v} row_bcast:15 row_mask:0xa bank_mask:0xf")
    a(f"s_nop 1\nv_add_f32_dpp v{v}, v{v}, v{v} row_bcast:31 row_mask:0xc bank_mask:0xf")
    a(f"s_nop 1\nv_readlane_b32 s{sdst}, v{v}, 63\ns_nop 1")

def silu8(a, f, t):
    for i in range(8):
        a(f"v_mul_f32 v{t+i}, 0xbfb8aa3b, v{f+i}")
    for i in range(8):
        a(f"v_exp_f32 v{t+i}, v{t+i}")
    for i in range(8):
        a(f"v_add_f32 v{t+i}, 1.0, v{t+i}")
    for i in range(8):
        a(f"v_rcp_f32 v{t+i}, v{t+i}")
    for i in range(8):
        a(f"v_mul_f32 v{f+i}, v{f+i}, v{t+i}")

def lane_consts(a):
    a(f"""v_lshrrev_b32 v{vR8}, 3, v0
v_and_b32 v{vP16}, 0x33, v0
v_and_b32 v{vT0}, 4, v0
v_lshl_or_b32 v{vP16}, v{vT0}, 1, v{vP16}
v_and_b32 v{vT0}, 8, v0
v_lshrrev_b32 v{vT0}, 1, v{vT0}
v_or_b32 v{vP16}, v{vP16}, v{vT0}
v_lshlrev_b32 v{vP16}, 4, v{vP16}
v_lshrrev_b32 v{vT0}, 2, v0
v_and_b32 v{vT0}, 4, v{vT0}
v_and_b32 v{vCH}, 7, v0
v_xor_b32 v{vCH}, v{vCH}, v{vT0}
v_lshlrev_b32 v{vB0}, 10, v{vHF}
v_and_b32 v{vT0}, 12, v0
v_lshl_or_b32 v{vB0}, v{vT0}, 5, v{vB0}
v_and_b32 v{vT0}, 8, v0
v_lshl_or_b32 v{vB0}, v{vT0}, 3, v{vB0}
v_and_b32 v{vT0}, 16, v0
v_lshl_or_b32 v{vB0}, v{vT0}, 1, v{vB0}
v_and_b32 v{vT0}, 1, v0
v_lshl_or_b32 v{vB0}, v{vT0}, 4, v{vB0}
v_and_b32 v{vT0}, 2, v0
v_lshl_or_b32 v{vB0}, v{vT0}, 2, v{vB0}
v_xor_b32 v{vB1}, 64, v{vB0}""")

def get_tag(a):
    a(f"""s_waitcnt lgkmcnt(0)
s_mul_i32 s{S_TAG}, s{S_TAG}, 1664525
s_add_u32 s{S_TAG}, s{S_TAG}, 1013904223
v_mov_b32 v{vTAG}, s{S_TAG}""")

def wpoll(a, vaddr, soff, vtmp):
    gpoll(a, lambda: a(f"buffer_load_dword v{vtmp}, v{vaddr}, {WS}, {soff} offen sc1"), [vtmp])

S_BCT, S_BRT = 11, 12
vDW = 15
def b_setup(a):
    srd(a, R_B, S_WQKV, SZ_WQKV)
    a(f"""s_mul_i32 s{S_BCT}, s{S_G}, 27
s_add_u32 s{S_BCT}, s{S_BCT}, s{S_SLOT}
s_sub_u32 s{S_BCT}, s{S_BCT}, {NO}
s_and_b32 s{S_BRT}, s{S_BCT}, 3
s_lshr_b32 s{S_BCT}, s{S_BCT}, 2
s_mul_i32 s13, s{S_BRT}, 36
s_add_u32 s13, s13, s{S_W}
v_lshlrev_b32 v{vDW}, 4, v{vCH}
v_mul_u32_u24 v{vT0}, 6912, v{vR8}
s_lshl_b32 s{T+14}, s{S_BCT}, 7
v_add3_u32 v{vDW}, v{vDW}, v{vT0}, s{T+14}""")

def w_dma(a, n):
    for i in range(n):
        a(f"""s_lshl_b32 m0, s13, 10
s_mul_i32 s{T+14}, s13, {8*6912}
buffer_load_dwordx4 v{vDW}, {RB}, s{T+14} offen lds
s_add_u32 s13, s13, 8
s_sub_u32 s{T+14}, s13, 144
s_cmp_ge_u32 s13, 144
s_cselect_b32 s13, s{T+14}, s13""")

EW = int(OPT.get('ew', 0))
def prologue(a):
    a.raw(f".globl {NAME}\n.p2align 8\n.type {NAME},@function\n{NAME}:")
    a(f"""s_cmp_ge_u32 s2, 256
s_cbranch_scc1 L_end
s_load_dwordx16 s[16:31], s[0:1], 0""")
    if STAMP:
        a(f"{CLK} s[{S_ST}:{S_ST+1}]\ns_memtime s[96:97]")
        for i in range(1, 16):
            a(f"s_mov_b32 s{S_ST+2*i}, 0")
    a(f"""v_lshrrev_b32 v1, 6, v0
v_and_b32 v0, 63, v0
s_and_b32 s{S_G}, s2, 7
v_readfirstlane_b32 s{S_W}, v1
s_lshr_b32 s{S_SLOT}, s2, 3
s_mov_b32 s{S_TO}, 0x40000
v_lshlrev_b32 v{vL16}, 4, v0
v_lshrrev_b32 v{vHF}, 5, v0
v_and_b32 v{vTok}, 31, v0
s_cmp_lt_u32 s2, 64
s_cbranch_scc1 L_s0_stats
s_cmp_lt_u32 s2, 94
s_cbranch_scc1 L_s0_none""")
    sP, sCg, sKs, sOff, sRow = T, T+1, T+2, T+3, T+4
    vW = 16
    vC = 32
    vSc = 36
    vTm = 44
    vAc = 52
    a(f"""s_sub_u32 s{sP}, s2, 94
s_mul_i32 s{sKs}, s{sP}, 57
s_lshr_b32 s{sKs}, s{sKs}, 9
s_mul_i32 s{sCg}, s{sKs}, 9
s_sub_u32 s{sCg}, s{sP}, s{sCg}
s_lshl_b32 s{sRow}, s{sKs}, 3
s_add_u32 s{sRow}, s{sRow}, s{S_W}
s_lshl_b32 s{sRow}, s{sRow}, 3
v_and_b32 v{vT0}, 15, v0
v_lshlrev_b32 v{vT0}, 4, v{vT0}
v_bfe_u32 v{vT1}, v0, 4, 1
v_mul_u32_u24 v{vT1}, 2304, v{vT1}
v_mul_u32_u24 v{vT2}, {4*13824}, v{vHF}
v_add3_u32 v{vT0}, v{vT0}, v{vT1}, v{vT2}
v_lshlrev_b32 v{vT1}, 3, v{vHF}
s_lshl_b32 s{T+5}, s{sRow}, 1
s_mul_i32 s{sOff}, s{sRow}, 13824
s_lshl_b32 s{sRow}, s{sCg}, 8
s_add_u32 s{sOff}, s{sOff}, s{sRow}
s_waitcnt lgkmcnt(0)""")
    srd(a, R_A, S_WMOD, SZ_WMOD)
    srd(a, R_C, S_C, SZ_C)
    a(f"""buffer_load_dwordx2 {vr(vC,2)}, v{vT1}, {RC}, s{T+5} offen
buffer_load_dwordx2 {vr(vC+2,2)}, v{vT1}, {RC}, s{T+5} offen offset:2304""")
    for n in range(4):
        a(f"buffer_load_dwordx4 {vr(vW+4*n,4)}, v{vT0}, {RA}, s{sOff} offen")
        if n < 3:
            a(f"s_add_u32 s{sOff}, s{sOff}, 13824")
    a(f"s_load_dword s{S_TAG}, s[{S_WS}:{S_WS+1}], {EPOCH}")
    srd(a, R_WS, S_WS, SZ_WS)
    lane_consts(a)
    b_setup(a)
    if EW:
        a("s_barrier")
        w_dma(a, EW)
    a(f"s_waitcnt vmcnt({4+EW})")
    for i in range(4):
        unpack(a, vSc+2*i, vSc+2*i+1, vC+i)
    silu8(a, vSc, vTm)
    for i in range(4):
        a(f"v_cvt_pk_bf16_f32 v{vC+i}, v{vSc+2*i}, v{vSc+2*i+1}")
    for i in range(4):
        unpack(a, vSc+2*i, vSc+2*i+1, vC+i)
    a(f"""s_lshl_b32 s{sOff}, s{S_W}, 11
s_add_u32 s{sOff}, s{sOff}, {L_MISC}
v_lshlrev_b32 v{vT2}, 5, v0
v_add_u32 v{vT2}, s{sOff}, v{vT2}
s_lshr_b32 s{sOff}, s{S_W}, 1
s_lshl_b32 s{sOff}, s{sOff}, 10
s_and_b32 s{sRow}, s{S_W}, 1
s_lshl_b32 s{sP}, s{sRow}, 8
s_add_u32 s{sOff}, s{sOff}, s{sP}
s_add_u32 s{sOff}, s{sOff}, {L_MISC}
v_lshlrev_b32 v{vT3}, 3, v{vTok}
v_lshl_add_u32 v{vT3}, v{vHF}, 9, v{vT3}
v_add_u32 v{vT3}, s{sOff}, v{vT3}
s_lshl_b32 s{sP}, s{sCg}, 1
s_add_u32 s{sP}, s{sP}, s{sRow}
s_lshl_b32 s{sP}, s{sP}, 1
s_lshr_b32 s{sOff}, s{S_W}, 1
s_add_u32 s{sP}, s{sP}, s{sOff}
s_mul_i32 s{sP}, s{sP}, 18
s_add_u32 s{sP}, s{sP}, s{sKs}
s_lshl_b32 s{sP}, s{sP}, 10
s_add_u32 s{sP}, s{sP}, {WS_PART}""")
    get_tag(a)
    for n in range(4):
        a(f"s_waitcnt vmcnt({3-n+EW})")
        if n == 3: stamp(a, 8)
        for i in range(4):
            unpack(a, vTm+2*i, vTm+2*i+1, vW+4*n+i)
        for b in range(2):
            for j in range(8):
                op = "v_mul_f32" if n == 0 else "v_fmac_f32"
                a(f"{op} v{vAc+8*b+j}, v{vTm+j}, v{vSc+4*b+n}")
    a("s_nop 1")
    for j in range(8):
        a(f"v_permlane32_swap_b32 v{vAc+j}, v{vAc+8+j}")
    for j in range(8):
        a(f"v_add_f32 v{vAc+j}, v{vAc+j}, v{vAc+8+j}")
    lsk = a.label("pubsk")
    a(f"""ds_write_b128 v{vT2}, {vr(vAc,4)}
ds_write_b128 v{vT2}, {vr(vAc+4,4)} offset:16
s_waitcnt lgkmcnt(0)
s_barrier
s_cmp_ge_u32 s{S_W}, 4
s_cbranch_scc1 {lsk}""")
    for w in range(8):
        a(f"ds_read_b64 {vr(vW+2*w,2)}, v{vT3} offset:{w*2048}")
    a(f"""v_mov_b32 v{vAc+1}, v{vTAG}
v_mov_b32 v{vAc+3}, v{vTAG}
s_waitcnt lgkmcnt(4)
v_add_f32 v{vW}, v{vW}, v{vW+2}
v_add_f32 v{vW+1}, v{vW+1}, v{vW+3}
v_add_f32 v{vW+4}, v{vW+4}, v{vW+6}
v_add_f32 v{vW+5}, v{vW+5}, v{vW+7}
s_waitcnt lgkmcnt(0)
v_add_f32 v{vW+8}, v{vW+8}, v{vW+10}
v_add_f32 v{vW+9}, v{vW+9}, v{vW+11}
v_add_f32 v{vW+12}, v{vW+12}, v{vW+14}
v_add_f32 v{vW+13}, v{vW+13}, v{vW+15}
v_add_f32 v{vW}, v{vW}, v{vW+4}
v_add_f32 v{vW+1}, v{vW+1}, v{vW+5}
v_add_f32 v{vW+8}, v{vW+8}, v{vW+12}
v_add_f32 v{vW+9}, v{vW+9}, v{vW+13}
v_add_f32 v{vAc}, v{vW}, v{vW+8}
v_add_f32 v{vAc+2}, v{vW+1}, v{vW+9}
buffer_store_dwordx4 {vr(vAc,4)}, v{vL16}, {WS}, s{sP} offen sc1
{lsk}:""")
    stamp(a, 9)
    w_dma(a, 18-EW)
    a("s_branch L_b")
    a("L_s0_stats:")
    vRW = 16
    a(f"""s_lshl_b32 s{sOff}, s2, 3
s_add_u32 s{sOff}, s{sOff}, s{S_W}
s_mul_i32 s{sOff}, s{sOff}, 2304
v_mov_b32 v{vRW+8}, 0
v_mov_b32 v{vRW+9}, 0
v_mov_b32 v{vRW+10}, 0
v_mov_b32 v{vRW+11}, 0
s_waitcnt lgkmcnt(0)""")
    srd(a, R_C, S_X, SZ_X)
    a(f"""buffer_load_dwordx4 {vr(vRW,4)}, v{vL16}, {RC}, s{sOff} offen
buffer_load_dwordx4 {vr(vRW+4,4)}, v{vL16}, {RC}, s{sOff} offen offset:1024
s_mov_b64 exec, 0xffff
buffer_load_dwordx4 {vr(vRW+8,4)}, v{vL16}, {RC}, s{sOff} offen offset:2048
s_mov_b64 exec, -1
s_load_dword s{S_TAG}, s[{S_WS}:{S_WS+1}], {EPOCH}""")
    srd(a, R_WS, S_WS, SZ_WS)
    lane_consts(a)
    a(f"""s_barrier
s_min_u32 s{T+12}, s2, 35
s_and_b32 s{T+13}, s{T+12}, 1
s_lshr_b32 s{T+12}, s{T+12}, 1
s_lshl_b32 s{T+13}, s{T+13}, 3
s_add_u32 s{T+13}, s{T+13}, s{S_W}
v_mul_u32_u24 v{vT0}, 2304, v{vR8}
v_and_b32 v{vT1}, 7, v0
v_lshl_add_u32 v{vT0}, v{vT1}, 4, v{vT0}
s_mul_i32 s{T+13}, s{T+13}, {32*2304}
s_lshl_b32 s{T+12}, s{T+12}, 7
s_add_u32 s{T+13}, s{T+13}, s{T+12}
s_lshl_b32 m0, s{S_W}, 12""")
    lnx = a.label("nox"); ljx = a.label("jx")
    a(f"s_cmp_ge_u32 s2, 36\ns_cbranch_scc1 {lnx}")
    for q in range(4):
        a(f"buffer_load_dwordx4 v{vT0}, {RC}, s{T+13} offen lds")
        if q < 3:
            a(f"s_add_u32 s{T+13}, s{T+13}, {8*2304}\ns_add_u32 m0, m0, 1024\ns_nop 0")
    get_tag(a)
    a(f"s_waitcnt vmcnt(4)\ns_branch {ljx}\n{lnx}:")
    get_tag(a)
    a(f"s_waitcnt vmcnt(0)\n{ljx}:")
    stamp(a, 8)
    s1, s2_, q1, q2 = 32, 33, 34, 35
    a(f"s_mov_b32 s{T+12}, 0x3f803f80")
    for i in range(0, 12, 2):
        c = lambda r: "0" if i == 0 else f"v{r}"
        a(f"""v_dot2_f32_bf16 v{s1}, v{vRW+i}, s{T+12}, {c(s1)}
v_dot2_f32_bf16 v{q1}, v{vRW+i}, v{vRW+i}, {c(q1)}
v_dot2_f32_bf16 v{s2_}, v{vRW+i+1}, s{T+12}, {c(s2_)}
v_dot2_f32_bf16 v{q2}, v{vRW+i+1}, v{vRW+i+1}, {c(q2)}""")
    a(f"""s_nop 2
v_add_f32 v{s1}, v{s1}, v{s2_}
v_add_f32 v{q1}, v{q1}, v{q2}""")
    for m in ("quad_perm:[1,0,3,2] row_mask:0xf", "quad_perm:[2,3,0,1] row_mask:0xf", "row_half_mirror row_mask:0xf", "row_mirror row_mask:0xf", "row_bcast:15 row_mask:0xa", "row_bcast:31 row_mask:0xc"):
        a(f"s_nop 0\nv_add_f32_dpp v{s1}, v{s1}, v{s1} {m} bank_mask:0xf\nv_add_f32_dpp v{q1}, v{q1}, v{q1} {m} bank_mask:0xf")
    g = 36
    a(f"""v_mul_f32 v{g}, 0x3a638e39, v{s1}
v_mul_f32 v{g+2}, 0x3a638e39, v{q1}
v_fma_f32 v{g+2}, -v{g}, v{g}, v{g+2}
v_max_f32 v{g+2}, 0, v{g+2}""")
    round_bf16(a, g+2)
    a(f"v_add_f32 v{g+2}, 0x3727c5ac, v{g+2}")
    round_bf16(a, g+2)
    a(f"v_sqrt_f32 v{g+2}, v{g+2}")
    round_bf16(a, g)
    round_bf16(a, g+2)
    lsk = a.label("stsk")
    a(f"""v_rcp_f32 v{g+2}, v{g+2}
v_mov_b32 v{g+1}, v{vTAG}
v_mov_b32 v{g+3}, v{vTAG}
s_lshl_b32 s{T+12}, s{S_W}, 4
s_add_u32 s{T+12}, s{T+12}, {L_STC}
v_mov_b32 v{vT0}, s{T+12}
s_mov_b32 exec_lo, 0
s_brev_b32 exec_hi, 1
ds_write_b128 v{vT0}, {vr(g,4)}
s_mov_b64 exec, -1
s_lshl_b32 s{T+12}, s2, 7
s_add_u32 s{T+12}, s{T+12}, {F_STAT}
v_add_u32 v{vT0}, {L_STC}, v{vL16}
s_waitcnt lgkmcnt(0)
s_barrier
s_cmp_lg_u32 s{S_W}, 0
s_cbranch_scc1 {lsk}
s_mov_b64 exec, 0xff
ds_read_b128 {vr(g,4)}, v{vT0}
s_waitcnt lgkmcnt(0)
buffer_store_dwordx4 {vr(g,4)}, v{vL16}, {WS}, s{T+12} offen sc1
s_mov_b64 exec, -1
{lsk}:""")
    stamp(a, 9)
    a(f"s_cmp_lt_u32 s{S_SLOT}, {NO}\ns_cbranch_scc1 L_owner\ns_branch L_s0_w")
    a(f"L_s0_none:\ns_waitcnt lgkmcnt(0)\ns_load_dword s{S_TAG}, s[{S_WS}:{S_WS+1}], {EPOCH}")
    srd(a, R_WS, S_WS, SZ_WS)
    lane_consts(a)
    get_tag(a)
    a("L_s0_w:")
    b_setup(a)
    w_dma(a, 18)

VOX = 96

S_UCT, S_UTB = 9, 10
vDU = 14
KE = int(OPT.get('ke', 12))
def wo_dma(a, n0, n1):
    a(f"s_add_u32 s{T+10}, s{S_W}, {4*n0-4}")
    for n in range(n0, n1):
        a(f"""s_lshl_b32 m0, s{T+10}, 10
s_mul_i32 s{T+11}, s{T+10}, {8*2304}
buffer_load_dwordx4 v{vDU}, {RB}, s{T+11} offen lds""")
        if n < n1-1:
            a(f"s_add_u32 s{T+10}, s{T+10}, 4")

def gemm_loop(a, nsteps, LA, RING, vAcc, vWF, vH, vA0, vA1, vaddr, sH, lds_first, w_is_a, pre=None, rot=None):
    WA = 2
    state = dict(issued=0)
    if rot:
        sR, sHs, sHe, sLo, sZ, sLe, vC0, vC1 = rot
        a(f"""s_mov_b32 s{sHs}, s{sH}
s_add_u32 s{sHe}, s{sH}, {nsteps*1024}
s_lshl_b32 s{sLo}, s{sR}, 12
s_add_u32 s{sH}, s{sH}, s{sLo}
s_lshl_b32 s{sLo}, s{sR}, 13
s_mov_b32 s{sZ}, 0
s_mov_b32 s{sLe}, {nsteps*2048}""")
    def hload():
        s = state['issued']
        a(f"buffer_load_dwordx4 {vr(vH+4*(s % RING),4)}, v{vaddr}, {WS}, s{sH} offen offset:{(s&3)*1024} sc1")
        if (s & 3) == 3 and s < nsteps-1:
            if rot: wrap_add(a, sH, 4096, sHe, sHs)
            else: a(f"s_add_u32 s{sH}, s{sH}, 4096")
        state['issued'] += 1
    def wread(s):
        if rot:
            if (s & 3) == 0:
                a(f"v_add_u32 v{vC0}, s{sLo}, v{vA0}\nv_add_u32 v{vC1}, s{sLo}, v{vA1}")
                wrap_add(a, sLo, 8192, sLe, sZ)
            trreads(a, vWF + 8*(s & 3), vC0, vC1, (s & 3)*2048)
            return
        if s and (s & 31) == 0:
            a(f"v_add_u32 v{vA0}, 0x10000, v{vA0}\nv_add_u32 v{vA1}, 0x10000, v{vA1}")
        trreads(a, vWF + 8*(s & 3), vA0, vA1, (s & 31)*2048)
    if lds_first:
        for s in range(WA): wread(s)
    for s in range(LA): hload()
    if pre: pre()
    if not lds_first:
        for s in range(WA): wread(s)
    for s in range(nsteps):
        lg = 4*min(WA-1, nsteps-1 - s)
        a(f"s_waitcnt vmcnt({state['issued'] - s - 1}) lgkmcnt({lg})")
        if s == 0 and lds_first: stamp(a, 4)
        h = vH+4*(s % RING); w0 = vWF+8*(s & 3)
        mfma(a, vAcc, *((w0, h) if w_is_a else (h, w0)), s == 0)
        if s + WA < nsteps:
            wread(s + WA)
        mfma(a, vAcc+16, *((w0+4, h) if w_is_a else (h, w0+4)), s == 0)
        if state['issued'] < nsteps:
            hload()

UM = int(OPT.get('umap', 2)); UML = UM.bit_length()-1
def phase_bc(a):
    sTb, sOff, sH, sF = T+1, T+4, T+5, T+6
    vA0, vA1 = V0+1, V0+2
    vAcc = 20
    vWF = 52
    vH = 84
    a("L_b:")
    stamp(a, 1)
    srd(a, R_B, S_WO, SZ_WO)
    a(f"""s_sub_u32 s{S_SLOT}, s{S_SLOT}, {NO}
s_and_b32 s{T+14}, s{S_G}, {UM-1}
s_mul_i32 s{T+14}, s{T+14}, 18
s_add_u32 s{T+14}, s{T+14}, s{S_SLOT}
s_lshr_b32 s{S_UCT}, s{T+14}, {UML}
s_and_b32 s{T+14}, s{T+14}, {UM-1}
s_lshr_b32 s{S_UTB}, s{S_G}, {UML}
s_lshl_b32 s{S_UTB}, s{S_UTB}, {UML}
s_add_u32 s{S_UTB}, s{S_UTB}, s{T+14}
s_lshl_b32 s{S_UTB}, s{S_UTB}, 1
s_and_b32 s{T+14}, s{S_W}, 1
s_add_u32 s{S_UTB}, s{S_UTB}, s{T+14}
v_lshlrev_b32 v{vDU}, 4, v{vCH}
v_mul_u32_u24 v{vT0}, 2304, v{vR8}
s_lshl_b32 s{T+14}, s{S_UCT}, 7
v_add3_u32 v{vDU}, v{vDU}, v{vT0}, s{T+14}
s_lshl_b32 s{sTb}, s{S_BRT}, 2
s_and_b32 s{sOff}, s{S_W}, 3
s_add_u32 s{sTb}, s{sTb}, s{sOff}
s_mul_i32 s{sH}, s{sTb}, {72*1024}
s_add_u32 s{sH}, s{sH}, {WS_H}
v_mov_b32 v{vA0}, v{vB0}
v_mov_b32 v{vA1}, v{vB1}
v_min_u32 v{vT0}, 17, v0
v_lshlrev_b32 v{vT0}, 7, v{vT0}
s_lshr_b32 s{sOff}, s{S_BRT}, 1
s_mul_i32 s{sOff}, s{sOff}, {18*128}
s_add_u32 s{sOff}, s{sOff}, {F_H}
s_mul_i32 s{sF}, s{S_BRT}, 54
s_add_u32 s{sF}, s{sF}, s{S_BCT}
s_lshl_b32 s{sF}, s{sF}, 7
s_add_u32 s{sF}, s{sF}, {F_QKV}
s_waitcnt vmcnt(0)""")
    a("s_barrier")
    stamp(a, 2)
    a(f"s_cmp_ge_u32 s{S_W}, 4\ns_cbranch_scc1 L_ld")
    wpoll(a, vT0, f"s{sOff}", vT1)
    stamp(a, 3)
    LA = int(OPT['la'])
    gemm_loop(a, 72, LA, LA+4, vAcc, vWF, vH, vA0, vA1, vL16, sH, True, True)
    stamp(a, 5)
    a(f"""s_mul_i32 s{sH}, s{sTb}, {216*1024}
s_lshl_b32 s{sOff}, s{S_BCT}, 12
s_add_u32 s{sH}, s{sH}, s{sOff}
s_add_u32 s{sH}, s{sH}, {WS_QKV}
s_nop 7""")
    for u in range(4):
        if u == 2:
            a("s_nop 1")
        for r in range(4*u, 4*u+4):
            a(f"v_cvt_pk_bf16_f32 v{vWF+r}, v{vAcc+2*r}, v{vAcc+2*r+1}")
        a(f"buffer_store_dwordx4 {vr(vWF+4*u,4)}, v{vL16}, {WS}, s{sH} offen offset:{1024*u} sc1")
    a("s_barrier")
    stamp(a, 6)
    sKh = T+2
    a(f"""s_lshr_b32 s{sKh}, s{S_W}, 1
s_mul_i32 s{sH}, s{S_UTB}, {216*1024}
s_mul_i32 s{sOff}, s{sKh}, {36*1024}
s_add_u32 s{sH}, s{sH}, s{sOff}
s_add_u32 s{sH}, s{sH}, {WS_QKV + 144*1024}
s_mul_i32 s{sOff}, s{sKh}, {576*128}
v_add_u32 v{vA0}, s{sOff}, v{vB0}
v_add_u32 v{vA1}, s{sOff}, v{vB1}
v_min_u32 v{vT0}, 8, v0
v_lshlrev_b32 v{vT0}, 7, v{vT0}
s_lshr_b32 s{T+7}, s{S_UTB}, 2
s_mul_i32 s{T+7}, s{T+7}, {54*128}
s_mul_i32 s{sOff}, s{sKh}, {9*128}
s_add_u32 s{T+7}, s{T+7}, s{sOff}
s_add_u32 s{T+7}, s{T+7}, {F_QKV + 36*128}""")
    set_flag(a, f"s{sF}")
    stamp(a, 7)
    a(f"s_cmp_ge_u32 s{S_SLOT}, 18\ns_cbranch_scc1 L_c_notu")
    UROT = int(OPT.get('urot', 0))
    if UROT:
        a(f"s_mul_i32 s{T+8}, s{S_UCT}, {UROT}")
        mod9(a, T+8, T+8, T+9)
    wpoll(a, vT0, f"s{T+7}", vT1)
    stamp(a, 12)
    LA = int(OPT.get('lau', 12))
    gemm_loop(a, 36, LA, min(36, LA+4), vAcc, vWF, vH, vA0, vA1, vP16, sH, False, False, pre=lambda: (a("s_barrier"), stamp(a, 11)),
              rot=(T+8, T+9, T+10, T+11, T+12, T+13, V0, V0+3) if UROT else None)
    stamp(a, 13)
    lk1 = a.label("kh1"); lj = a.label("j")
    a(f"""s_lshl_b32 s{sOff}, s{S_W}, 12
s_add_u32 s{sOff}, s{sOff}, {L_MISC}
v_add_u32 v{vT0}, s{sOff}, v{vL16}
v_xor_b32 v{vT1}, {2*4096}, v{vT0}
s_lshr_b32 s{sH}, s{S_UTB}, 3
s_mul_i32 s{sF}, s{sH}, 18
s_add_u32 s{sF}, s{sF}, s{S_UCT}
s_lshl_b32 s{sH}, s{sF}, 1
s_add_u32 s{sH}, s{sH}, s{sKh}
s_lshl_b32 s{sH}, s{sH}, 3
s_and_b32 s{sOff}, s{S_UTB}, 7
s_add_u32 s{sH}, s{sH}, s{sOff}
s_lshl_b32 s{sH}, s{sH}, 11
s_add_u32 s{sH}, s{sH}, {WS_U}
s_lshl_b32 s{sF}, s{sF}, 2
s_bfe_u32 s{sOff}, s{S_UTB}, 0x20001
s_add_u32 s{sF}, s{sF}, s{sOff}
s_lshl_b32 s{sF}, s{sF}, 7
s_add_u32 s{sF}, s{sF}, {F_U}
s_cmp_lg_u32 s{sKh}, 0
s_cbranch_scc1 {lk1}""")
    for q in range(4):
        a(f"ds_write_b128 v{vT0}, {vr(vAcc+16+4*q,4)} offset:{q*1024}")
    a(f"s_branch {lj}\n{lk1}:")
    for q in range(4):
        a(f"ds_write_b128 v{vT0}, {vr(vAcc+4*q,4)} offset:{q*1024}")
    for r in range(16):
        a(f"v_mov_b32 v{vAcc+r}, v{vAcc+16+r}")
    a(f"{lj}:\ns_waitcnt lgkmcnt(0)\ns_barrier")
    for q in range(4):
        a(f"ds_read_b128 {vr(vWF+4*q,4)}, v{vT1} offset:{q*1024}")
    for u in range(2):
        a(f"s_waitcnt lgkmcnt({2-2*u})")
        for r in range(8*u, 8*u+8):
            a(f"v_add_f32 v{vAcc+r}, v{vAcc+r}, v{vWF+r}")
        for r in range(4*u, 4*u+4):
            a(f"v_cvt_pk_bf16_f32 v{vWF+16+r}, v{vAcc+2*r}, v{vAcc+2*r+1}")
        a(f"buffer_store_dwordx4 {vr(vWF+16+4*u,4)}, v{vL16}, {WS}, s{sH} offen offset:{1024*u} sc1")
    set_flag(a, f"s{sF}")
    a("s_branch L_c_done")
    lnu = a.label("ldnu")
    vWo = 20
    a(f"""L_ld:
s_cmp_ge_u32 s{S_SLOT}, 18
s_cbranch_scc1 {lnu}
s_sub_u32 s{T+10}, s{S_W}, 4
s_lshl_b32 s{T+11}, s{T+10}, 10
v_add_u32 v{vT0}, s{T+11}, v{vL16}
s_bfe_u32 s{T+12}, s{S_UTB}, 0x20001
s_mul_i32 s{T+12}, s{T+12}, 36
s_add_u32 s{T+10}, s{T+10}, s{T+12}
s_lshl_b32 s{T+12}, s{T+12}, 10""")
    for n in range(36):
        a(f"""s_mul_i32 s{T+11}, s{T+10}, {8*2304}
buffer_load_dwordx4 {vr(vWo+4*n,4)}, v{vDU}, {RB}, s{T+11} offen""")
        if n < 35:
            a(f"s_add_u32 s{T+10}, s{T+10}, 4")
            if n % 9 == 8:
                a(f"""s_sub_u32 s{T+11}, s{T+10}, 144
s_cmp_ge_u32 s{T+10}, 144
s_cselect_b32 s{T+10}, s{T+11}, s{T+10}""")
    stamp(a, 4)
    a("s_waitcnt vmcnt(0)")
    stamp(a, 5)
    a("s_barrier")
    for n in range(36):
        if n % 9 == 0:
            a(f"v_add_u32 v{vT1}, s{T+12}, v{vT0}")
            if n < 27:
                a(f"""s_add_u32 s{T+12}, s{T+12}, {36*1024}
s_cmp_ge_u32 s{T+12}, {144*1024}
s_cselect_b32 s{T+12}, 0, s{T+12}""")
        a(f"ds_write_b128 v{vT1}, {vr(vWo+4*n,4)} offset:{(n % 9)*4096}")
        if n == int(OPT.get('wsplit', 11)):
            a("s_barrier")
    a(f"""s_waitcnt lgkmcnt(0)""")
    stamp(a, 11)
    a(f"""s_barrier
s_barrier
s_barrier
s_branch L_c_done
{lnu}:
s_barrier
s_barrier""")
    a("L_c_notu:")
    a(f"s_cmp_ge_u32 s{S_SLOT}, 26\ns_cbranch_scc1 L_c_done")
    sQb, sKb, sKq, sJ, sK, sQ, sKt = T, T+1, T+2, T+3, T+5, T+6, T+9
    vS = 56
    RING = 15
    a(f"""s_sub_u32 s{sJ}, s{S_SLOT}, 18
s_and_b32 s{sKq}, s{S_W}, 3
s_and_b32 s{sQb}, s{S_G}, 1
s_lshl_b32 s{sQb}, s{sQb}, 2
s_and_b32 s{sOff}, s{sJ}, 3
s_add_u32 s{sQb}, s{sQb}, s{sOff}
s_and_b32 s{sKt}, s{S_G}, 2
s_lshr_b32 s{sOff}, s{sJ}, 2
s_add_u32 s{sKt}, s{sKt}, s{sOff}
s_lshl_b32 s{sKb}, s{sKt}, 1
s_lshr_b32 s{sOff}, s{S_G}, 2
s_lshl_b32 s{sOff}, s{sOff}, 3
s_add_u32 s{sQb}, s{sQb}, s{sOff}
s_add_u32 s{sKb}, s{sKb}, s{sOff}
s_mul_i32 s{sK}, s{sKb}, {216*1024}
s_mul_i32 s{sQ}, s{sQb}, {216*1024}
s_mul_i32 s{sOff}, s{sKq}, {18*1024}
s_add_u32 s{sK}, s{sK}, s{sOff}
s_add_u32 s{sQ}, s{sQ}, s{sOff}
s_add_u32 s{sK}, s{sK}, {WS_QKV + 72*1024}
s_add_u32 s{sQ}, s{sQ}, {WS_QKV}
v_min_u32 v{vT0}, 17, v{vTok}
v_lshlrev_b32 v{vT0}, 7, v{vT0}
s_lshr_b32 s{sOff}, s{sKb}, 2
s_mul_i32 s{sOff}, s{sOff}, {54*128}
s_add_u32 s{sOff}, s{sOff}, {18*128}
s_lshr_b32 s{T+13}, s{sQb}, 2
s_mul_i32 s{T+13}, s{T+13}, {54*128}
s_sub_u32 s{sOff}, s{sOff}, s{T+13}
v_mul_lo_u32 v{vT1}, v{vHF}, s{sOff}
v_add_u32 v{vT0}, v{vT0}, v{vT1}
v_add_u32 v{vT0}, s{T+13}, v{vT0}
v_add_u32 v{vT2}, {216*1024}, v{vP16}
s_mov_b32 s{sOff}, {F_QKV}""")
    poll(a, vT0, f"s{sOff}", vT1)
    stamp(a, 12)
    lsi = a.label("sidle")
    a(f"s_cmp_ge_u32 s{S_W}, 4\ns_cbranch_scc1 {lsi}")
    LA = int(OPT.get('las', 8))
    assert LA < RING
    SROT = int(OPT.get('srot', 1))
    sKs, sQs, sR = T+7, T+8, T+12
    a(f"""s_mov_b32 s{sKs}, s{sK}
s_mov_b32 s{sQs}, s{sQ}
s_mul_i32 s{sR}, s{sJ}, {2048*SROT}
s_movk_i32 s{T+13}, 0
s_movk_i32 s{T+14}, {18*1024}""")
    def sload(s):
        r = vS + 12*(s % RING)
        if (s & 1) == 0:
            a(f"s_add_u32 s{sK}, s{sKs}, s{sR}\ns_add_u32 s{sQ}, s{sQs}, s{sR}")
            wrap_add(a, sR, 2048, T+14, T+13)
        a(f"""buffer_load_dwordx4 {vr(r,4)}, v{vL16}, {WS}, s{sQ} offen offset:{(s&1)*1024} sc1
buffer_load_dwordx4 {vr(r+4,4)}, v{vP16}, {WS}, s{sK} offen offset:{(s&1)*1024} sc1
buffer_load_dwordx4 {vr(r+8,4)}, v{vT2}, {WS}, s{sK} offen offset:{(s&1)*1024} sc1""")
    for s in range(LA):
        sload(s)
    for s in range(18):
        issued = min(18, s + LA)
        r = vS + 12*(s % RING)
        a(f"s_waitcnt vmcnt({3*(issued - s - 1) + 1})")
        mfma(a, vAcc, r+4, r, s == 0)
        a(f"s_waitcnt vmcnt({3*(issued - s - 1)})")
        mfma(a, vAcc+16, r+8, r, s == 0)
        if s + LA < 18:
            sload(s + LA)
    stamp(a, 13)
    QS, HS, PSZ = 1056, 528, 8448
    a(f"""s_mul_i32 s{sOff}, s{S_W}, {PSZ}
v_lshl_add_u32 v{vT0}, v{vHF}, 4, v{vL16}
v_add_u32 v{vT0}, s{sOff}, v{vT0}
s_nop 8""")
    for q in range(8):
        a(f"ds_write_b128 v{vT0}, {vr(vAcc+4*q,4)} offset:{q*QS}")
    a(f"""{lsi}:
v_bfe_u32 v{vT1}, v0, 2, 2
v_and_b32 v{vT2}, 1, v0
v_lshl_add_u32 v{vT1}, v{vT1}, 1, v{vT2}
v_mul_u32_u24 v{vT1}, {QS}, v{vT1}
v_bfe_u32 v{vT2}, v0, 1, 1
v_mul_u32_u24 v{vT2}, {HS}, v{vT2}
v_lshrrev_b32 v{vT0}, 4, v0
s_lshl_b32 s{sOff}, s{S_W}, 2
v_add_u32 v{vT0}, s{sOff}, v{vT0}
v_lshl_add_u32 v{vT1}, v{vT0}, 4, v{vT1}
v_add_u32 v{vT1}, v{vT1}, v{vT2}
v_and_b32 v{vT2}, 15, v0
v_lshlrev_b32 v{vT2}, 4, v{vT2}
v_lshl_add_u32 v{vT2}, v{vT0}, 10, v{vT2}
s_lshl_b32 s{sJ}, s{sQb}, 15
s_lshl_b32 s{sOff}, s{sKt}, 8
s_add_u32 s{sJ}, s{sJ}, s{sOff}
s_add_u32 s{sJ}, s{sJ}, {WS_L}
v_mov_b32 v53, v{vTAG}
v_mov_b32 v55, v{vTAG}
s_waitcnt lgkmcnt(0)
s_barrier""")
    for j in range(4):
        a(f"ds_read_b128 {vr(vAcc+4*j,4)}, v{vT1} offset:{j*PSZ}")
    a("s_waitcnt lgkmcnt(2)")
    for r in range(4):
        a(f"v_add_f32 v{vAcc+r}, v{vAcc+r}, v{vAcc+4+r}")
    a("s_waitcnt lgkmcnt(0)")
    for r in range(4):
        a(f"v_add_f32 v{vAcc+8+r}, v{vAcc+8+r}, v{vAcc+12+r}")
    for r in range(4):
        a(f"v_add_f32 v{vAcc+r}, v{vAcc+r}, v{vAcc+8+r}")
    sc = struct.unpack('<I', struct.pack('<f', D ** -0.5))[0]
    for r in range(2):
        a(f"v_cvt_pk_bf16_f32 v{52+2*r}, v{vAcc+2*r}, v{vAcc+2*r+1}")
    for r in range(2):
        unpack(a, vAcc+2*r, vAcc+2*r+1, 52+2*r)
    for r in range(4):
        a(f"v_mul_f32 v{vAcc+r}, {hex(sc)}, v{vAcc+r}")
    for r in range(2):
        a(f"v_cvt_pk_bf16_f32 v{52+2*r}, v{vAcc+2*r}, v{vAcc+2*r+1}")
    a(f"buffer_store_dwordx4 v[52:55], v{vT2}, {WS}, s{sJ} offen sc1")
    a("L_c_done:")
    stamp(a, 14)

def phase_d(a):
    sQt, sCt, sCb, sKh, sOff, sXo, sJ, sU, sB, sCol = T, T+1, T+2, T+3, T+4, T+5, T+6, T+7, T+8, T+9
    vXo, vMx, vS, vLa, vPa, vLw = V0, V0+1, V0+2, V0+3, V0+4, V0+5
    vLd = 24
    vX = 40
    vG = 44
    vF = 56
    vR = 72
    vAcc = 80
    vU = 96
    vP = 128
    PS = 1056
    L_P, L_EX = 40960, 65536
    srd(a, R_A, S_X, SZ_X)
    srd(a, R_B, S_OUT, SZ_X)
    a(f"""s_sub_u32 s{sJ}, 26, s{S_SLOT}
s_cmp_ge_u32 s{sJ}, 18
s_cbranch_scc1 L_fin
s_and_b32 s{sOff}, s{S_G}, 3
s_mul_i32 s{sOff}, s{sOff}, 18
s_add_u32 s{sOff}, s{sOff}, s{sJ}
s_lshr_b32 s{sCt}, s{sOff}, 3
s_and_b32 s{sJ}, s{sOff}, 7
s_lshr_b32 s{sB}, s{S_G}, 2
s_lshl_b32 s{sQt}, s{sB}, 3
s_add_u32 s{sQt}, s{sQt}, s{sJ}
s_and_b32 s{sCb}, s{S_W}, 3
s_lshr_b32 s{sKh}, s{S_W}, 2
s_lshl_b32 s{sCol}, s{sCt}, 7
s_lshl_b32 s{sOff}, s{sCb}, 5
s_add_u32 s{sCol}, s{sCol}, s{sOff}
s_lshl_b32 s{sOff}, s{sKh}, 4
s_add_u32 s{sCol}, s{sCol}, s{sOff}
s_mul_i32 s{sXo}, s{sQt}, {32*2304}
s_lshl_b32 s{sOff}, s{sCol}, 1
s_add_u32 s{sXo}, s{sXo}, s{sOff}
v_mul_u32_u24 v{vXo}, 2304, v{vTok}
v_lshl_add_u32 v{vXo}, v{vHF}, 4, v{vXo}
buffer_load_dwordx4 {vr(vX,4)}, v{vXo}, {RA}, s{sXo} offen
s_mul_i32 s{sU}, s{sB}, 36
s_lshl_b32 s{sOff}, s{sCt}, 2
s_add_u32 s{sU}, s{sU}, s{sOff}
s_add_u32 s{sU}, s{sU}, s{sCb}
s_lshr_b32 s{T+10}, s{sU}, 1
s_lshl_b32 s{sU}, s{sU}, 4
s_lshl_b32 s{sOff}, s{sKh}, 3
s_add_u32 s{sU}, s{sU}, s{sOff}
s_lshl_b32 s{sU}, s{sU}, 10
s_add_u32 s{sU}, s{sU}, {WS_U}
s_lshl_b32 s{T+10}, s{T+10}, 1
s_add_u32 s{T+10}, s{T+10}, s{sKh}
s_lshl_b32 s{T+10}, s{T+10}, 8
s_add_u32 s{T+10}, s{T+10}, {F_U}
v_and_b32 v{vT0}, 1, v0
v_lshlrev_b32 v{vT0}, 7, v{vT0}
v_add_u32 v{vT1}, s{T+10}, v{vT0}
s_lshr_b32 s{sOff}, s{sCol}, 6
s_lshl_b32 s{sOff}, s{sOff}, 7
s_add_u32 s{sOff}, s{sOff}, {F_G}
v_mov_b32 v{vT2}, s{sOff}
v_cmp_lt_u32 vcc, 5, v0
s_lshl_b32 s{sOff}, s{sQt}, 15
s_lshl_b32 s{T+10}, s{S_W}, 12
v_cndmask_b32 v{vT1}, v{vT1}, v{vT2}, vcc
s_add_u32 s{sOff}, s{sOff}, s{T+10}
s_add_u32 s{sOff}, s{sOff}, {WS_L + 3*1024 + 252}
v_lshlrev_b32 v{vT2}, 8, v0
v_add_u32 v{vT2}, s{sOff}, v{vT2}
v_cmp_gt_u32 vcc, 4, v0
v_and_b32 v{vT3}, 15, v0
v_lshrrev_b32 v{vT0}, 4, v0
v_cndmask_b32 v{vT1}, v{vT1}, v{vT2}, vcc
s_lshl_b32 s{sOff}, s{S_W}, 2
v_add_u32 v{vT0}, s{sOff}, v{vT0}
v_lshlrev_b32 v{vLa}, 10, v{vT0}
v_lshl_add_u32 v{vLa}, v{vT3}, 4, v{vLa}
v_lshrrev_b32 v{vT2}, 1, v{vT3}
v_mul_u32_u24 v{vLw}, {PS//2}, v{vT2}
v_lshl_add_u32 v{vLw}, v{vT0}, 4, v{vLw}
v_and_b32 v{vT2}, 1, v0
v_lshl_add_u32 v{vLw}, v{vT2}, 3, v{vLw}
v_lshl_add_u32 v{vPa}, v{vHF}, 4, v{vL16}
s_mul_i32 s{sOff}, s{sKh}, {8*PS}
v_add_u32 v{vPa}, s{sOff}, v{vPa}
s_mul_i32 s{T+11}, s{sB}, 4608
s_lshl_b32 s{T+10}, s{sCol}, 2
s_add_u32 s{T+11}, s{T+11}, s{T+10}
s_add_u32 s{T+11}, s{T+11}, {WS_GATE}
v_lshlrev_b32 v{vT0}, 5, v{vHF}
s_lshl_b32 s{sOff}, s{sQt}, 15
s_add_u32 s{sOff}, s{sOff}, {WS_L}""")
    vFa, vFl = 22, 23
    sUd = T+12
    def uloads():
        for s in range(8):
            a(f"buffer_load_dwordx4 {vr(vU+4*s,4)}, v{vL16}, {WS}, s{sU} offen offset:{(s&3)*1024} sc1")
            if s == 3:
                a(f"s_add_u32 s{sU}, s{sU}, 4096")
        a(f"""buffer_load_dwordx4 {vr(vG,4)}, v{vT0}, {WS}, s{T+11} offen sc1
buffer_load_dwordx4 {vr(vG+4,4)}, v{vT0}, {WS}, s{T+11} offen offset:16 sc1
s_mov_b32 s{sUd}, 1""")
        stamp(a, 8)
    l = a.label("lp"); d = a.label("lpd"); nu = a.label("nu"); l3 = a.label("lv"); d3 = a.label("lvd"); nu2 = a.label("nu2")
    def lloads():
        for n in range(4):
            a(f"buffer_load_dwordx4 {vr(vLd+4*n,4)}, v{vLa}, {WS}, s{sOff} offen offset:{256*n} sc1")
    a(f"""v_mov_b32 v{vFa}, v{vT1}
s_mov_b32 s{sUd}, 0
{l}:
buffer_load_dword v{vFl}, v{vFa}, {WS}, 0 offen sc1
s_waitcnt vmcnt(0)
v_cmp_ne_u32 vcc, s{S_TAG}, v{vFl}
s_and_b32 s{T+13}, vcc_lo, 15
s_cbranch_scc0 {d}
s_lshr_b32 s{T+13}, vcc_lo, 4
s_or_b32 s{T+13}, s{T+13}, s{sUd}
s_cbranch_scc1 {nu}""")
    uloads()
    a(f"""{nu}:
s_sleep {OPT.get('lsleep', 1)}
s_sub_u32 s{S_TO}, s{S_TO}, 1
s_cmp_lg_u32 s{S_TO}, 0
s_cbranch_scc1 {l}
s_mov_b32 s{S_TO}, 1
{d}:""")
    lloads()
    a(f"""s_lshr_b32 s{T+13}, vcc_lo, 4
s_or_b32 s{T+13}, s{T+13}, s{sUd}
s_cbranch_scc1 {nu2}""")
    uloads()
    a(f"""s_waitcnt vmcnt(10)
s_branch {l3}_c
{nu2}:
buffer_load_dword v{vFl}, v{vFa}, {WS}, 0 offen sc1
s_waitcnt vmcnt(1)
s_branch {l3}_c
{l3}:""")
    lloads()
    a(f"""s_waitcnt vmcnt(0)
{l3}_c:
v_min_u32 v{vT1}, v{vLd+1}, v{vLd+3}
v_max_u32 v{vT2}, v{vLd+1}, v{vLd+3}""")
    for n in range(1, 4):
        a(f"v_min3_u32 v{vT1}, v{vT1}, v{vLd+4*n+1}, v{vLd+4*n+3}\nv_max3_u32 v{vT2}, v{vT2}, v{vLd+4*n+1}, v{vLd+4*n+3}")
    a(f"""v_cmp_ne_u32 vcc, s{S_TAG}, v{vT1}
v_cmp_ne_u32 s[{T+14}:{T+15}], s{S_TAG}, v{vT2}
s_or_b64 vcc, vcc, s[{T+14}:{T+15}]
s_cbranch_vccz {d3}
s_sub_u32 s{S_TO}, s{S_TO}, 1
s_cmp_lg_u32 s{S_TO}, 0
s_cbranch_scc1 {l3}
s_mov_b32 s{S_TO}, 1
{d3}:""")
    stamp(a, 9)
    for i in range(8):
        unpack(a, vF+2*i, vF+2*i+1, vLd+2*i)
    a(f"""v_max3_f32 v{vMx}, v{vF}, v{vF+1}, v{vF+2}
v_max3_f32 v{vS}, v{vF+3}, v{vF+4}, v{vF+5}
v_max3_f32 v{vMx}, v{vMx}, v{vF+6}, v{vF+7}
v_max3_f32 v{vS}, v{vS}, v{vF+8}, v{vF+9}
v_max3_f32 v{vMx}, v{vMx}, v{vF+10}, v{vF+11}
v_max3_f32 v{vS}, v{vS}, v{vF+12}, v{vF+13}
v_max3_f32 v{vMx}, v{vMx}, v{vF+14}, v{vF+15}
v_max_f32 v{vMx}, v{vMx}, v{vS}""")
    for m in ("quad_perm:[1,0,3,2]", "quad_perm:[2,3,0,1]", "row_half_mirror", "row_mirror"):
        a(f"s_nop 1\nv_max_f32_dpp v{vMx}, v{vMx}, v{vMx} {m} row_mask:0xf bank_mask:0xf")
    a(f"s_mov_b32 s{T+10}, {hex(LOG2E)}\nv_mul_f32 v{vMx}, s{T+10}, v{vMx}")
    for i in range(16):
        a(f"v_fma_f32 v{vF+i}, v{vF+i}, s{T+10}, -v{vMx}")
    for i in range(16):
        a(f"v_exp_f32 v{vF+i}, v{vF+i}")
    a(f"v_add_f32 v{vS}, v{vF}, v{vF+1}\nv_add_f32 v{vMx}, v{vF+2}, v{vF+3}")
    for i in range(4, 16, 2):
        a(f"v_add_f32 v{vS}, v{vS}, v{vF+i}\nv_add_f32 v{vMx}, v{vMx}, v{vF+i+1}")
    a(f"v_add_f32 v{vS}, v{vS}, v{vMx}")
    for m in ("quad_perm:[1,0,3,2]", "quad_perm:[2,3,0,1]", "row_half_mirror", "row_mirror"):
        a(f"s_nop 1\nv_add_f32_dpp v{vS}, v{vS}, v{vS} {m} row_mask:0xf bank_mask:0xf")
    a(f"v_rcp_f32 v{vS}, v{vS}\ns_nop 0")
    for i in range(16):
        a(f"v_mul_f32 v{vF+i}, v{vF+i}, v{vS}")
    for i in range(8):
        a(f"v_cvt_pk_bf16_f32 v{vLd+i}, v{vF+2*i}, v{vF+2*i+1}")
    for n in range(4):
        a(f"ds_write_b64 v{vLw}, {vr(vLd+2*n,2)} offset:{L_P+4*n*PS}")
    hu = a.label("hu"); l2 = a.label("up"); d2 = a.label("upd")
    a(f"""s_cmp_lg_u32 s{sUd}, 0
s_cbranch_scc1 {hu}
{l2}:
s_waitcnt vmcnt(0)
v_cmp_ne_u32 vcc, s{S_TAG}, v{vFl}
s_cbranch_vccz {d2}
buffer_load_dword v{vFl}, v{vFa}, {WS}, 0 offen sc1
s_sub_u32 s{S_TO}, s{S_TO}, 1
s_cmp_lg_u32 s{S_TO}, 0
s_cbranch_scc1 {l2}
s_mov_b32 s{S_TO}, 1
{d2}:""")
    uloads()
    a(f"{hu}:\ns_waitcnt lgkmcnt(0)\ns_barrier")
    for s in range(8):
        a(f"ds_read_b128 {vr(vP+4*s,4)}, v{vPa} offset:{L_P+s*PS}")
    a(f"""s_lshl_b32 s{sOff}, s{S_W}, 11
s_add_u32 s{sOff}, s{sOff}, {L_EX}
v_add_u32 v{vT0}, s{sOff}, v{vL16}
v_xor_b32 v{vT1}, {4*2048}, v{vT0}""")
    for s in range(8):
        a(f"s_waitcnt vmcnt({2+7-s}) lgkmcnt({7-s})")
        mfma(a, vAcc, vU+4*s, vP+4*s, s == 0)
    for i in range(4):
        unpack(a, vF+2*i, vF+2*i+1, vX+i)
    stamp(a, 10)
    lk1 = a.label("kh1"); lj = a.label("j")
    a(f"""s_nop 3
s_cmp_lg_u32 s{sKh}, 0
s_cbranch_scc1 {lk1}
ds_write_b128 v{vT0}, {vr(vAcc+8,4)}
ds_write_b128 v{vT0}, {vr(vAcc+12,4)} offset:1024
s_branch {lj}
{lk1}:
ds_write_b128 v{vT0}, {vr(vAcc,4)}
ds_write_b128 v{vT0}, {vr(vAcc+4,4)} offset:1024""")
    for r in range(8):
        a(f"v_mov_b32 v{vAcc+r}, v{vAcc+8+r}")
    a(f"""{lj}:
s_waitcnt lgkmcnt(0)
s_barrier
ds_read_b128 {vr(vR,4)}, v{vT1}
ds_read_b128 {vr(vR+4,4)}, v{vT1} offset:1024
s_waitcnt vmcnt(0) lgkmcnt(0)""")
    for r in range(8):
        a(f"v_add_f32 v{vAcc+r}, v{vAcc+r}, v{vR+r}")
    def cv():
        for i in range(4):
            a(f"v_cvt_pk_bf16_f32 v{vR+i}, v{vAcc+2*i}, v{vAcc+2*i+1}")
    def up():
        for i in range(4):
            unpack(a, vAcc+2*i, vAcc+2*i+1, vR+i)
    cv(); up()
    for r in range(8):
        a(f"v_mul_f32 v{vAcc+r}, v{vAcc+r}, v{vG+r}")
    cv(); up()
    for r in range(8):
        a(f"v_add_f32 v{vAcc+r}, v{vAcc+r}, v{vF+r}")
    cv()
    a(f"buffer_store_dwordx4 {vr(vR,4)}, v{vXo}, {RB}, s{sXo} offen {OPT.get('oflag', '').replace('+', ' ')}")
    a("L_fin:")

def gemv_dma(a, sColA, vD):
    sRow0, sOff = T+2, T+3
    a(f"""v_lshlrev_b32 v{vD}, 4, v{vCH}
v_mul_u32_u24 v{vT0}, 13824, v{vR8}
v_add3_u32 v{vD}, v{vD}, v{vT0}, s{sColA}
s_mul_i32 s{sOff}, s{sRow0}, 13824
s_lshl_b32 m0, s{sRow0}, 7""")
    for t in range(18):
        a(f"""s_nop 0
buffer_load_dwordx4 v{vD}, {RA}, s{sOff} offen {NT} lds""")
        if t < 17:
            a(f"s_add_u32 s{sOff}, s{sOff}, {8*13824}\ns_add_u32 m0, m0, 1024")

def phase_owner(a):
    sColA, sB, sRow0, sOff, sO, sCs, sTb = T, T+1, T+2, T+3, T+4, T+5, T+6
    vD, vA0, vA1, vSil, vCs = V0, V0+1, V0+2, V0+3, V0+4
    vC = 24
    vST = 28
    vX = VOX
    vXN = 48
    vPt = 80
    vAcc = 112
    vWF = 144
    vSF = 160
    vM = 184
    a(f"""s_mov_b32 s{sO}, s2
s_cmp_ge_u32 s{sO}, 36
s_cbranch_scc1 L_o_pref
s_lshr_b32 s{sCs}, s{sO}, 1
s_and_b32 s{sB}, s{sO}, 1
s_lshl_b32 s{sTb}, s{sB}, 3
s_add_u32 s{sTb}, s{sTb}, s{S_W}""")
    vST = 32
    a(f"""v_and_b32 v{vT3}, 7, v0
v_lshlrev_b32 v{vT2}, 4, v{vT3}
v_lshlrev_b32 v{vT0}, 7, v{vT3}
v_lshl_add_u32 v{vT0}, v{vR8}, 4, v{vT0}
s_lshl_b32 s{T+9}, s{S_W}, 12
v_add_u32 v{vT0}, s{T+9}, v{vT0}
s_lshl_b32 s{T+9}, s{sTb}, 9
s_add_u32 s{T+9}, s{T+9}, {F_STAT}""")
    def stl():
        for q in range(4):
            a(f"buffer_load_dwordx4 {vr(vST+4*q,4)}, v{vT2}, {WS}, s{T+9} offen offset:{128*q} sc1")
    a("s_waitcnt vmcnt(0)")
    for q in range(4):
        a(f"ds_read_b128 {vr(vX+4*q,4)}, v{vT0} offset:{q*1024}")
    a("s_waitcnt lgkmcnt(0)")
    for q in range(4):
        for i in range(4):
            unpack(a, vXN+8*q+2*i, vXN+8*q+2*i+1, vX+4*q+i)
    gpoll(a, stl, [vST+4*q+j for q in range(4) for j in (1, 3)])
    stamp(a, 1)
    vPt = 112
    def pl():
        a(f"s_mov_b32 s{T+10}, s{T+9}")
        for n in range(18):
            a(f"buffer_load_dwordx4 {vr(vPt+4*n,4)}, v{vL16}, {WS}, s{T+10} offen offset:{(n&3)*1024} sc1")
            if (n & 3) == 3:
                a(f"s_add_u32 s{T+10}, s{T+10}, 4096")
    lw0 = a.label("w0a")
    a(f"""s_mul_i32 s{T+9}, s{sO}, {18*1024}
s_add_u32 s{T+9}, s{T+9}, {WS_PART}
s_cmp_lg_u32 s{S_W}, 0
s_cbranch_scc1 {lw0}""")
    pl()
    a(f"{lw0}:")
    P = [(q, i) for q in range(4) for i in range(4)]
    lo = lambda q, i: vXN+8*q+2*i
    hi = lambda q, i: vXN+8*q+2*i+1
    xs = lambda q, i: vX+4*q+i
    def st_unpack():
        for q, i in P: unpack(a, lo(q,i), hi(q,i), xs(q,i))
    def st_cvt():
        for q, i in P: a(f"v_cvt_pk_bf16_f32 v{xs(q,i)}, v{lo(q,i)}, v{hi(q,i)}")
    def st_op(op, f):
        for q, i in P:
            a(f"{op} v{lo(q,i)}, v{lo(q,i)}, v{f(q,2*i)}\n{op} v{hi(q,i)}, v{hi(q,i)}, v{f(q,2*i+1)}")
    st_op("v_sub_f32", lambda q, j: vST+4*q); st_cvt()
    st_unpack(); st_op("v_mul_f32", lambda q, j: vST+4*q+2); st_cvt()
    st_unpack()
    a(f"""v_lshlrev_b32 v{vT1}, 5, v{vR8}
v_add_u32 v{vT1}, {L_FIN}, v{vT1}
v_lshl_add_u32 v{vCs}, v{vR8}, 9, v{vT2}
s_mul_i32 s{sOff}, s{sTb}, {72*1024}
s_lshl_b32 s{T+11}, s{sCs}, 12
s_add_u32 s{sOff}, s{sOff}, s{T+11}
s_add_u32 s{sOff}, s{sOff}, {WS_H}""")
    stamp(a, 2)
    lw1 = a.label("w0b"); lp = a.label("pp"); ld = a.label("ppd")
    a(f"""s_cmp_lg_u32 s{S_W}, 0
s_cbranch_scc1 {lw1}
v_lshlrev_b32 v{vT0}, 3, v0
v_add_u32 v{vT0}, {L_FIN}, v{vT0}
v_cvt_f32_u32 v{vT2}, v{vHF}
{lp}:
s_waitcnt vmcnt(0)
v_min_u32 v{vM}, v{vPt+1}, v{vPt+3}
v_max_u32 v{vM+1}, v{vPt+1}, v{vPt+3}""")
    for n in range(1, 18):
        a(f"""v_min3_u32 v{vM}, v{vM}, v{vPt+4*n+1}, v{vPt+4*n+3}
v_max3_u32 v{vM+1}, v{vM+1}, v{vPt+4*n+1}, v{vPt+4*n+3}""")
    a(f"""v_cmp_ne_u32 vcc, s{S_TAG}, v{vM}
v_cmp_ne_u32 s[{T+14}:{T+15}], s{S_TAG}, v{vM+1}
s_or_b64 vcc, vcc, s[{T+14}:{T+15}]
s_cbranch_vccz {ld}
s_sub_u32 s{S_TO}, s{S_TO}, 1
s_cmp_eq_u32 s{S_TO}, 0
s_cbranch_scc1 {ld}""")
    pl()
    a(f"s_branch {lp}\n{ld}:\ns_max_u32 s{S_TO}, s{S_TO}, 1")
    for n in range(2, 18, 2):
        a(f"""v_add_f32 v{vPt}, v{vPt}, v{vPt+4*n}
v_add_f32 v{vPt+2}, v{vPt+2}, v{vPt+4*n+2}
v_add_f32 v{vPt+4}, v{vPt+4}, v{vPt+4*n+4}
v_add_f32 v{vPt+6}, v{vPt+6}, v{vPt+4*n+6}""")
    a(f"""v_add_f32 v{vPt}, v{vPt}, v{vPt+4}
v_add_f32 v{vPt+1}, v{vPt+2}, v{vPt+6}
v_cvt_pk_bf16_f32 v{vPt+2}, v{vPt}, v{vPt+1}""")
    unpack(a, vPt, vPt+1, vPt+2)
    a(f"""v_add_f32 v{vPt}, v{vPt}, v{vT2}
v_add_f32 v{vPt+1}, v{vPt+1}, v{vT2}
v_cvt_pk_bf16_f32 v{vPt+2}, v{vPt}, v{vPt+1}""")
    unpack(a, vPt, vPt+1, vPt+2)
    a(f"""ds_write_b64 v{vT0}, {vr(vPt,2)}
s_waitcnt lgkmcnt(0)
{lw1}:
s_barrier""")
    stamp(a, 3)
    a(f"""ds_read_b128 {vr(vM+8,4)}, v{vT1} offset:256
ds_read_b128 {vr(vM+12,4)}, v{vT1} offset:272
ds_read_b128 {vr(vM,4)}, v{vT1}
ds_read_b128 {vr(vM+4,4)}, v{vT1} offset:16
s_waitcnt lgkmcnt(2)""")
    st_op("v_mul_f32", lambda q, j: vM+8+j); st_cvt(); st_unpack()
    a("s_waitcnt lgkmcnt(0)")
    for q in range(4):
        for i in range(4):
            a(f"v_add_f32 v{lo(q,i)}, v{lo(q,i)}, v{vM+2*i}\nv_add_f32 v{hi(q,i)}, v{hi(q,i)}, v{vM+2*i+1}")
        for i in range(4):
            a(f"v_cvt_pk_bf16_f32 v{xs(q,i)}, v{lo(q,i)}, v{hi(q,i)}")
        a(f"buffer_store_dwordx4 {vr(vX+4*q,4)}, v{vCs}, {WS}, s{sOff} offen offset:{q*128} sc1")
    stamp(a, 4)
    a(f"""s_mul_i32 s{sOff}, s{sB}, 18
s_add_u32 s{sOff}, s{sOff}, s{sCs}
s_lshl_b32 s{sOff}, s{sOff}, 7
s_add_u32 s{sOff}, s{sOff}, {F_H}""")
    set_flag(a, f"s{sOff}")
    stamp(a, 5)
    a("L_o_pref:")
    srd(a, R_A, S_WMOD, SZ_WMOD)
    srd(a, R_C, S_C, SZ_C)
    a(f"""s_cmp_ge_u32 s{sO}, 18
s_cbranch_scc1 L_o_upd
s_mul_i32 s{sRow0}, s{S_W}, 144
v_min_u32 v{vT0}, 17, v{vTok}
v_lshlrev_b32 v{vT0}, 4, v{vT0}
v_mul_u32_u24 v{vT1}, 2304, v{vHF}
v_add_u32 v{vCs}, v{vT0}, v{vT1}
s_lshl_b32 s{sOff}, s{sRow0}, 1
buffer_load_dwordx4 {vr(vC,4)}, v{vCs}, {RC}, s{sOff} offen
s_lshl_b32 s{sColA}, s{sO}, 7
s_add_u32 s{sColA}, s{sColA}, 4608""")
    gemv_dma(a, sColA, vD)
    a(f"""s_lshl_b32 s{sOff}, s{sRow0}, 7
v_add_u32 v{vA0}, s{sOff}, v{vB0}
v_add_u32 v{vA1}, s{sOff}, v{vB1}
s_waitcnt vmcnt(18)""")
    for i in range(4):
        unpack(a, vM+2*i, vM+2*i+1, vC+i)
    silu8(a, vM, vM+8)
    for i in range(4):
        a(f"v_cvt_pk_bf16_f32 v{vC+i}, v{vM+2*i}, v{vM+2*i+1}")
    a(f"""s_lshl_b32 s{sOff}, s{sRow0}, 1
s_add_u32 s{sOff}, s{sOff}, {L_SIL}
v_add_u32 v{vCs}, s{sOff}, v{vCs}
ds_write_b128 v{vCs}, {vr(vC,4)}
v_and_b32 v{vT0}, 1, v0
v_mul_u32_u24 v{vT0}, 2304, v{vT0}
v_lshl_add_u32 v{vT0}, v{vHF}, 4, v{vT0}
v_add_u32 v{vSil}, s{sOff}, v{vT0}
s_waitcnt lgkmcnt(0)""")
    for s in range(9):
        wf = vWF + 8*(s & 1); sf = vSF + 4*(s & 1)
        a(f"s_waitcnt vmcnt({18-2*(s+1)})")
        a(f"ds_read_b128 {vr(sf,4)}, v{vSil} offset:{s*32}")
        trreads(a, wf, vA0, vA1, s*2048)
        a("s_waitcnt lgkmcnt(2)")
        mfma(a, vAcc, wf, sf, s == 0)
        a("s_waitcnt lgkmcnt(0)")
        mfma(a, vAcc+16, wf+4, sf, s == 0)
    a(f"""v_and_b32 v{vT0}, 1, v0
v_lshlrev_b32 v{vT0}, 8, v{vT0}
v_lshl_add_u32 v{vT0}, v{vHF}, 5, v{vT0}
s_lshl_b32 s{sOff}, s{S_W}, 9
s_add_u32 s{sOff}, s{sOff}, {L_RED}
v_add_u32 v{vT0}, s{sOff}, v{vT0}
s_mov_b32 exec_lo, 3
s_mov_b32 exec_hi, 3
s_nop 8""")
    for cb in range(2):
        for q, off in enumerate((0, 16, 64, 80)):
            a(f"ds_write_b128 v{vT0}, {vr(vAcc+16*cb+4*q,4)} offset:{cb*128+off}")
    a(f"""s_mov_b64 exec, -1
s_waitcnt lgkmcnt(0)
s_barrier
s_lshr_b32 s{sOff}, s{S_W}, 2
s_lshl_b32 s{sOff}, s{sOff}, 8
s_add_u32 s{sOff}, s{sOff}, {L_RED}
v_lshlrev_b32 v{vT0}, 2, v0
v_add_u32 v{vT1}, s{sOff}, v{vT0}""")
    for w in range(8):
        a(f"ds_read_b32 v{vAcc+w}, v{vT1} offset:{w*512}")
    a("s_waitcnt lgkmcnt(0)")
    for w in range(1, 8):
        a(f"v_add_f32 v{vAcc}, v{vAcc}, v{vAcc+w}")
    round_bf16(a, vAcc)
    lsk = a.label("gsk")
    a(f"""s_and_b32 s{sOff}, s{S_W}, 3
s_cmp_lg_u32 s{sOff}, 0
s_cbranch_scc1 {lsk}
s_lshr_b32 s{T+9}, s{S_W}, 2
s_mul_i32 s{sOff}, s{T+9}, 4608
s_lshl_b32 s{sColA}, s{sO}, 8
s_add_u32 s{sOff}, s{sOff}, s{sColA}
s_add_u32 s{sOff}, s{sOff}, {WS_GATE}
buffer_store_dword v{vAcc}, v{vT0}, {WS}, s{sOff} offen sc1
{lsk}:
s_lshl_b32 s{sOff}, s{sO}, 7
s_add_u32 s{sOff}, s{sOff}, {F_G}""")
    set_flag(a, f"s{sOff}")
    stamp(a, 7)
    a("s_branch L_fin")
    lp = a.label("ep"); ld = a.label("epd")
    a(f"""L_o_upd:
s_cmp_lg_u32 s2, 39
s_cbranch_scc1 L_fin
s_lshl_b32 s{sOff}, s{S_W}, 6
v_add_u32 v{vT0}, s{sOff}, v0
v_min_u32 v{vT0}, 215, v{vT0}
v_lshlrev_b32 v{vT0}, 7, v{vT0}
s_mov_b32 s{sOff}, {F_QKV}
{lp}:
s_sleep 16
buffer_load_dword v{vT1}, v{vT0}, {WS}, s{sOff} offen sc1
s_waitcnt vmcnt(0)
v_cmp_ne_u32 vcc, s{S_TAG}, v{vT1}
s_cbranch_vccz {ld}
s_sub_u32 s{S_TO}, s{S_TO}, 1
s_cmp_lg_u32 s{S_TO}, 0
s_cbranch_scc1 {lp}
{ld}:
s_mov_b32 s{sOff}, {EPOCH}""")
    set_flag(a, f"s{sOff}")
    a("s_branch L_fin")

def epilogue(a):
    if STAMP and 'probe' in OPT:
        i = int(OPT['probe']); lo, hi = [int(x) for x in OPT.get('prole', '0:256').split(':')]
        a(f"""s_waitcnt vmcnt(0) lgkmcnt(0)
s_cmp_lg_u32 s{S_W}, {OPT.get('stw', 0)}
s_cbranch_scc1 L_end
s_memrealtime s[{S_ST+30}:{S_ST+31}]
s_waitcnt lgkmcnt(0)
s_sub_u32 s{T}, s{S_ST+2*i}, s{S_ST}
s_cmp_eq_u32 s{S_ST+2*i}, 0
s_cselect_b32 s{T}, 0, s{T}
s_cmp_lt_u32 s2, {lo}
s_cselect_b32 s{T}, 0, s{T}
s_cmp_ge_u32 s2, {hi}
s_cselect_b32 s{T}, 0, s{T}
s_lshl_b32 s{T}, s{T}, 2
s_add_u32 s{T}, s{T}, 5000
L_spin:
s_memrealtime s[{T+2}:{T+3}]
s_waitcnt lgkmcnt(0)
s_sub_u32 s{T+2}, s{T+2}, s{S_ST}
s_cmp_lt_u32 s{T+2}, s{T}
s_cbranch_scc1 L_spin""")
    elif STAMP:
        a(f"""s_waitcnt vmcnt(0) lgkmcnt(0)
s_cmp_lg_u32 s{S_W}, {OPT.get('stw', 0)}
s_cbranch_scc1 L_end
{CLK} s[{S_ST+30}:{S_ST+31}]
s_memtime s[98:99]
s_waitcnt lgkmcnt(0)
s_sub_u32 s98, s98, s96""")
        for i in range(16):
            a(f"v_mov_b32 v{16+i}, s{S_ST+2*i}")
        a(f"""v_mov_b32 v32, s98
s_lshl_b32 s{T}, s2, 7
s_add_u32 s{T}, s{T}, {WS_STAMP}
v_mov_b32 v1, 0
s_mov_b64 exec, 1""")
        for i in range(4):
            a(f"buffer_store_dwordx4 v[{16+4*i}:{19+4*i}], v1, {WS}, s{T} offen offset:{16*i}")
        a(f"buffer_store_dword v32, v1, {WS}, s{T} offen offset:64")
    a("L_end:\ns_endpgm")

def main():
    a = Asm()
    a.raw("; @launch grid=(256,1,1) block=(512,1,1) lds=163840")
    a.raw('.amdgcn_target "amdgcn-amd-amdhsa--gfx950"\n.text')
    prologue(a)
    phase_bc(a)
    phase_d(a)
    epilogue(a)
    a("L_owner:")
    phase_owner(a)
    out = a.text() + kd(NAME, 244, 102)
    path = [x for x in sys.argv[1:] if not x.startswith('--')][0]
    open(path, 'w').write(out)
main()
```

```python
import sys, struct
from asmlib import *

OPT = dict(la='12', nt='')
for a_ in sys.argv[1:]:
    if a_.startswith('--'):
        k, _, v = a_[2:].partition('=')
        OPT[k] = v
STAMP = 'stamp' in OPT
NT = OPT['nt']
CLK = "s_memtime" if 'cyc' in OPT else "s_memrealtime"

NAME = "standalone__dit_adaln_block__diffusion_kernel"
D = 1152
SZ_X = 512*D*2; SZ_C = 2*D*2; SZ_WQKV = D*3*D*2; SZ_WO = D*D*2; SZ_WMOD = D*6*D*2
SZ_WS = 1 << 28
F_STAT = 0x0
F_H = 0x2000
F_L = 0x4000
F_U = F_L + 64*128
F_G = F_U + 144*128
F_QKV = 0xC000
EPOCH = 0x13000
WS_GATE = 0x14000
WS_H = 0x20000
WS_QKV = 0x140000
WS_L = 0x680000
WS_U = 0x550000
WS_PART = 0x4A0000
WS_STAMP = 0x700000
LOG2E = 0x3fb8aa3b

S_W, S_TAG, S_G, S_SLOT, S_TO, S_TK = 3, 4, 5, 6, 7, 8
S_X, S_C, S_WQKV, S_WO, S_WMOD, S_OUT, S_DBG, S_WS = 16, 18, 20, 22, 24, 26, 28, 30
R_A, R_B, R_C, R_WS = 32, 36, 40, 44
T = 48
S_ST = 64
WS = f"s[{R_WS}:{R_WS+3}]"
RA = f"s[{R_A}:{R_A+3}]"; RB = f"s[{R_B}:{R_B+3}]"; RC = f"s[{R_C}:{R_C+3}]"
vL16, vP16, vB0, vB1, vCH, vR8, vHF, vTok = 1, 2, 3, 4, 5, 6, 7, 8
vT0, vT1, vT2, vT3 = 9, 10, 11, 12
vTAG = 13
V0 = 16

L_MISC = 147456
L_SIL = L_MISC
L_RED = L_SIL + 4608
L_FIN = L_RED + 4096
L_ROLE = L_FIN + 4096
L_STC = L_ROLE + 16
NO = 5

def srd(a, r, ptr, size):
    a(f"""s_mov_b32 s{r}, s{ptr}
s_and_b32 s{r+1}, s{ptr+1}, 0xffff
s_mov_b32 s{r+2}, {hex(size)}
s_mov_b32 s{r+3}, 0x20000""")

def stamp(a, i):
    if STAMP:
        a(f"{CLK} s[{S_ST+2*i}:{S_ST+2*i+1}]")

def unpack(a, lo, hi, src):
    a(f"v_lshlrev_b32 v{lo}, 16, v{src}\nv_and_b32 v{hi}, 0xffff0000, v{src}")

def round_bf16(a, v):
    a(f"v_cvt_pk_bf16_f32 v{v}, v{v}, v{v}\nv_lshlrev_b32 v{v}, 16, v{v}")

def mfma(a, acc, A, B, first=False):
    c = "0" if first else vr(acc, 16)
    a(f"v_mfma_f32_32x32x16_bf16 {vr(acc,16)}, {vr(A,4)}, {vr(B,4)}, {c}")

def wrap_add(a, s, step, s_end, s_start):
    a(f"""s_add_u32 s{s}, s{s}, {step}
s_cmp_eq_u32 s{s}, s{s_end}
s_cselect_b32 s{s}, s{s_start}, s{s}""")

def mod9(a, dst, src, tmp):
    a(f"""s_mul_i32 s{tmp}, s{src}, 57
s_lshr_b32 s{tmp}, s{tmp}, 9
s_mul_i32 s{tmp}, s{tmp}, 9
s_sub_u32 s{dst}, s{src}, s{tmp}""")

def poll(a, vaddr, soff, vtmp):
    l = a.label("poll"); d = a.label("polld")
    a(f"""s_cmp_lg_u32 s{S_W}, 0
s_cbranch_scc1 {d}
{l}:
buffer_load_dword v{vtmp}, v{vaddr}, {WS}, {soff} offen sc1
s_waitcnt vmcnt(0)
v_cmp_ne_u32 vcc, s{S_TAG}, v{vtmp}
s_cbranch_vccz {d}
s_sleep {OPT.get('sleep', 2)}
s_sub_u32 s{S_TO}, s{S_TO}, 1
s_cmp_lg_u32 s{S_TO}, 0
s_cbranch_scc1 {l}
s_mov_b32 s{S_TO}, 1
{d}:
s_barrier""")

def gpoll(a, loads, tagregs):
    l = a.label("gp"); d = a.label("gpd")
    a(f"{l}:")
    loads()
    a(f"s_waitcnt vmcnt(0)\nv_cmp_ne_u32 vcc, s{S_TAG}, v{tagregs[0]}")
    for r in tagregs[1:]:
        a(f"v_cmp_ne_u32 s[{T+14}:{T+15}], s{S_TAG}, v{r}\ns_or_b64 vcc, vcc, s[{T+14}:{T+15}]")
    a(f"""s_cbranch_vccz {d}
s_sleep {OPT.get('gsleep', 2)}
s_sub_u32 s{S_TO}, s{S_TO}, 1
s_cmp_lg_u32 s{S_TO}, 0
s_cbranch_scc1 {l}
s_mov_b32 s{S_TO}, 1
{d}:""")

def raw_flag(a, soff):
    a(f"""v_mov_b32 v{vT3}, 0
s_mov_b64 exec, 1
buffer_store_dword v{vTAG}, v{vT3}, {WS}, {soff} offen sc1
s_mov_b64 exec, -1""")

def set_flag(a, soff, younger=0):
    d = a.label("fl")
    a(f"""s_waitcnt vmcnt({younger})
s_barrier
s_cmp_lg_u32 s{S_W}, 0
s_cbranch_scc1 {d}""")
    raw_flag(a, soff)
    a(f"{d}:")

def trreads(a, wf, b0, b1, off):
    a(f"""ds_read_b64_tr_b16 {vr(wf,2)}, v{b0} offset:{off}
ds_read_b64_tr_b16 {vr(wf+2,2)}, v{b0} offset:{off+512}
ds_read_b64_tr_b16 {vr(wf+4,2)}, v{b1} offset:{off}
ds_read_b64_tr_b16 {vr(wf+6,2)}, v{b1} offset:{off+512}""")

def dma_tile(a, srdname, vD, pitch, s_rot, flags, n0=0, n1=18):
    sN, sO = T+10, T+11
    if s_rot is None:
        a(f"s_add_u32 s{sN}, s{S_W}, {8*n0}")
    else:
        a(f"s_lshl_b32 s{sN}, s{s_rot}, 3\ns_add_u32 s{sN}, s{sN}, s{S_W}")
    for n in range(n0, n1):
        a(f"""s_lshl_b32 m0, s{sN}, 10
s_mul_i32 s{sO}, s{sN}, {8*pitch}
buffer_load_dwordx4 v{vD}, {srdname}, s{sO} offen {flags} lds""")
        if n < n1-1:
            a(f"s_add_u32 s{sN}, s{sN}, 8")
            if s_rot is not None:
                a(f"""s_sub_u32 s{sO}, s{sN}, 144
s_cmp_ge_u32 s{sN}, 144
s_cselect_b32 s{sN}, s{sO}, s{sN}""")

def wave_sum(a, v, sdst):
    for m in ("quad_perm:[1,0,3,2]", "quad_perm:[2,3,0,1]", "row_half_mirror", "row_mirror"):
        a(f"s_nop 1\nv_add_f32_dpp v{v}, v{v}, v{v} {m} row_mask:0xf bank_mask:0xf")
    a(f"s_nop 1\nv_add_f32_dpp v{v}, v{v}, v{v} row_bcast:15 row_mask:0xa bank_mask:0xf")
    a(f"s_nop 1\nv_add_f32_dpp v{v}, v{v}, v{v} row_bcast:31 row_mask:0xc bank_mask:0xf")
    a(f"s_nop 1\nv_readlane_b32 s{sdst}, v{v}, 63\ns_nop 1")

def silu8(a, f, t):
    for i in range(8):
        a(f"v_mul_f32 v{t+i}, 0xbfb8aa3b, v{f+i}")
    for i in range(8):
        a(f"v_exp_f32 v{t+i}, v{t+i}")
    for i in range(8):
        a(f"v_add_f32 v{t+i}, 1.0, v{t+i}")
    for i in range(8):
        a(f"v_rcp_f32 v{t+i}, v{t+i}")
    for i in range(8):
        a(f"v_mul_f32 v{f+i}, v{f+i}, v{t+i}")

def lane_consts(a):
    a(f"""v_lshrrev_b32 v{vR8}, 3, v0
v_and_b32 v{vP16}, 0x33, v0
v_and_b32 v{vT0}, 4, v0
v_lshl_or_b32 v{vP16}, v{vT0}, 1, v{vP16}
v_and_b32 v{vT0}, 8, v0
v_lshrrev_b32 v{vT0}, 1, v{vT0}
v_or_b32 v{vP16}, v{vP16}, v{vT0}
v_lshlrev_b32 v{vP16}, 4, v{vP16}
v_lshrrev_b32 v{vT0}, 2, v0
v_and_b32 v{vT0}, 4, v{vT0}
v_and_b32 v{vCH}, 7, v0
v_xor_b32 v{vCH}, v{vCH}, v{vT0}
v_lshlrev_b32 v{vB0}, 10, v{vHF}
v_and_b32 v{vT0}, 12, v0
v_lshl_or_b32 v{vB0}, v{vT0}, 5, v{vB0}
v_and_b32 v{vT0}, 8, v0
v_lshl_or_b32 v{vB0}, v{vT0}, 3, v{vB0}
v_and_b32 v{vT0}, 16, v0
v_lshl_or_b32 v{vB0}, v{vT0}, 1, v{vB0}
v_and_b32 v{vT0}, 1, v0
v_lshl_or_b32 v{vB0}, v{vT0}, 4, v{vB0}
v_and_b32 v{vT0}, 2, v0
v_lshl_or_b32 v{vB0}, v{vT0}, 2, v{vB0}
v_xor_b32 v{vB1}, 64, v{vB0}""")

def get_tag(a):
    a(f"""s_waitcnt lgkmcnt(0)
s_mul_i32 s{S_TAG}, s{S_TAG}, 1664525
s_add_u32 s{S_TAG}, s{S_TAG}, 1013904223
v_mov_b32 v{vTAG}, s{S_TAG}""")

def wpoll(a, vaddr, soff, vtmp):
    gpoll(a, lambda: a(f"buffer_load_dword v{vtmp}, v{vaddr}, {WS}, {soff} offen sc1"), [vtmp])

S_BCT, S_BRT = 11, 12
vDW = 15
def b_setup(a):
    srd(a, R_B, S_WQKV, SZ_WQKV)
    a(f"""s_mul_i32 s{S_BCT}, s{S_G}, 27
s_add_u32 s{S_BCT}, s{S_BCT}, s{S_SLOT}
s_sub_u32 s{S_BCT}, s{S_BCT}, {NO}
s_and_b32 s{S_BRT}, s{S_BCT}, 3
s_lshr_b32 s{S_BCT}, s{S_BCT}, 2
s_mul_i32 s13, s{S_BRT}, 36
s_add_u32 s13, s13, s{S_W}
v_lshlrev_b32 v{vDW}, 4, v{vCH}
v_mul_u32_u24 v{vT0}, 6912, v{vR8}
s_lshl_b32 s{T+14}, s{S_BCT}, 7
v_add3_u32 v{vDW}, v{vDW}, v{vT0}, s{T+14}""")

def w_dma(a, n):
    for i in range(n):
        a(f"""s_lshl_b32 m0, s13, 10
s_mul_i32 s{T+14}, s13, {8*6912}
buffer_load_dwordx4 v{vDW}, {RB}, s{T+14} offen lds
s_add_u32 s13, s13, 8
s_sub_u32 s{T+14}, s13, 144
s_cmp_ge_u32 s13, 144
s_cselect_b32 s13, s{T+14}, s13""")

EW = int(OPT.get('ew', 0))
def prologue(a):
    a.raw(f".globl {NAME}\n.p2align 8\n.type {NAME},@function\n{NAME}:")
    a(f"""s_cmp_ge_u32 s2, 256
s_cbranch_scc1 L_end
s_load_dwordx16 s[16:31], s[0:1], 0""")
    if STAMP:
        a(f"{CLK} s[{S_ST}:{S_ST+1}]\ns_memtime s[96:97]")
        for i in range(1, 16):
            a(f"s_mov_b32 s{S_ST+2*i}, 0")
    a(f"""v_lshrrev_b32 v1, 6, v0
v_and_b32 v0, 63, v0
s_and_b32 s{S_G}, s2, 7
v_readfirstlane_b32 s{S_W}, v1
s_lshr_b32 s{S_SLOT}, s2, 3
s_mov_b32 s{S_TO}, 0x40000
v_lshlrev_b32 v{vL16}, 4, v0
v_lshrrev_b32 v{vHF}, 5, v0
v_and_b32 v{vTok}, 31, v0
s_cmp_lt_u32 s2, 64
s_cbranch_scc1 L_s0_stats
s_cmp_lt_u32 s2, 94
s_cbranch_scc1 L_s0_none""")
    sP, sCg, sKs, sOff, sRow = T, T+1, T+2, T+3, T+4
    vW = 16
    vC = 32
    vSc = 36
    vTm = 44
    vAc = 52
    a(f"""s_sub_u32 s{sP}, s2, 94
s_mul_i32 s{sKs}, s{sP}, 57
s_lshr_b32 s{sKs}, s{sKs}, 9
s_mul_i32 s{sCg}, s{sKs}, 9
s_sub_u32 s{sCg}, s{sP}, s{sCg}
s_lshl_b32 s{sRow}, s{sKs}, 3
s_add_u32 s{sRow}, s{sRow}, s{S_W}
s_lshl_b32 s{sRow}, s{sRow}, 3
v_and_b32 v{vT0}, 15, v0
v_lshlrev_b32 v{vT0}, 4, v{vT0}
v_bfe_u32 v{vT1}, v0, 4, 1
v_mul_u32_u24 v{vT1}, 2304, v{vT1}
v_mul_u32_u24 v{vT2}, {4*13824}, v{vHF}
v_add3_u32 v{vT0}, v{vT0}, v{vT1}, v{vT2}
v_lshlrev_b32 v{vT1}, 3, v{vHF}
s_lshl_b32 s{T+5}, s{sRow}, 1
s_mul_i32 s{sOff}, s{sRow}, 13824
s_lshl_b32 s{sRow}, s{sCg}, 8
s_add_u32 s{sOff}, s{sOff}, s{sRow}
s_waitcnt lgkmcnt(0)""")
    srd(a, R_A, S_WMOD, SZ_WMOD)
    srd(a, R_C, S_C, SZ_C)
    a(f"""buffer_load_dwordx2 {vr(vC,2)}, v{vT1}, {RC}, s{T+5} offen
buffer_load_dwordx2 {vr(vC+2,2)}, v{vT1}, {RC}, s{T+5} offen offset:2304""")
    for n in range(4):
        a(f"buffer_load_dwordx4 {vr(vW+4*n,4)}, v{vT0}, {RA}, s{sOff} offen")
        if n < 3:
            a(f"s_add_u32 s{sOff}, s{sOff}, 13824")
    a(f"s_load_dword s{S_TAG}, s[{S_WS}:{S_WS+1}], {EPOCH}")
    srd(a, R_WS, S_WS, SZ_WS)
    lane_consts(a)
    b_setup(a)
    if EW:
        a("s_barrier")
        w_dma(a, EW)
    a(f"s_waitcnt vmcnt({4+EW})")
    for i in range(4):
        unpack(a, vSc+2*i, vSc+2*i+1, vC+i)
    silu8(a, vSc, vTm)
    for i in range(4):
        a(f"v_cvt_pk_bf16_f32 v{vC+i}, v{vSc+2*i}, v{vSc+2*i+1}")
    for i in range(4):
        unpack(a, vSc+2*i, vSc+2*i+1, vC+i)
    a(f"""s_lshl_b32 s{sOff}, s{S_W}, 11
s_add_u32 s{sOff}, s{sOff}, {L_MISC}
v_lshlrev_b32 v{vT2}, 5, v0
v_add_u32 v{vT2}, s{sOff}, v{vT2}
s_lshr_b32 s{sOff}, s{S_W}, 1
s_lshl_b32 s{sOff}, s{sOff}, 10
s_and_b32 s{sRow}, s{S_W}, 1
s_lshl_b32 s{sP}, s{sRow}, 8
s_add_u32 s{sOff}, s{sOff}, s{sP}
s_add_u32 s{sOff}, s{sOff}, {L_MISC}
v_lshlrev_b32 v{vT3}, 3, v{vTok}
v_lshl_add_u32 v{vT3}, v{vHF}, 9, v{vT3}
v_add_u32 v{vT3}, s{sOff}, v{vT3}
s_lshl_b32 s{sP}, s{sCg}, 1
s_add_u32 s{sP}, s{sP}, s{sRow}
s_lshl_b32 s{sP}, s{sP}, 1
s_lshr_b32 s{sOff}, s{S_W}, 1
s_add_u32 s{sP}, s{sP}, s{sOff}
s_mul_i32 s{sP}, s{sP}, 18
s_add_u32 s{sP}, s{sP}, s{sKs}
s_lshl_b32 s{sP}, s{sP}, 10
s_add_u32 s{sP}, s{sP}, {WS_PART}""")
    get_tag(a)
    for n in range(4):
        a(f"s_waitcnt vmcnt({3-n+EW})")
        if n == 3: stamp(a, 8)
        for i in range(4):
            unpack(a, vTm+2*i, vTm+2*i+1, vW+4*n+i)
        for b in range(2):
            for j in range(8):
                op = "v_mul_f32" if n == 0 else "v_fmac_f32"
                a(f"{op} v{vAc+8*b+j}, v{vTm+j}, v{vSc+4*b+n}")
    a("s_nop 1")
    for j in range(8):
        a(f"v_permlane32_swap_b32 v{vAc+j}, v{vAc+8+j}")
    for j in range(8):
        a(f"v_add_f32 v{vAc+j}, v{vAc+j}, v{vAc+8+j}")
    lsk = a.label("pubsk")
    a(f"""ds_write_b128 v{vT2}, {vr(vAc,4)}
ds_write_b128 v{vT2}, {vr(vAc+4,4)} offset:16
s_waitcnt lgkmcnt(0)
s_barrier
s_cmp_ge_u32 s{S_W}, 4
s_cbranch_scc1 {lsk}""")
    for w in range(8):
        a(f"ds_read_b64 {vr(vW+2*w,2)}, v{vT3} offset:{w*2048}")
    a(f"""v_mov_b32 v{vAc+1}, v{vTAG}
v_mov_b32 v{vAc+3}, v{vTAG}
s_waitcnt lgkmcnt(4)
v_add_f32 v{vW}, v{vW}, v{vW+2}
v_add_f32 v{vW+1}, v{vW+1}, v{vW+3}
v_add_f32 v{vW+4}, v{vW+4}, v{vW+6}
v_add_f32 v{vW+5}, v{vW+5}, v{vW+7}
s_waitcnt lgkmcnt(0)
v_add_f32 v{vW+8}, v{vW+8}, v{vW+10}
v_add_f32 v{vW+9}, v{vW+9}, v{vW+11}
v_add_f32 v{vW+12}, v{vW+12}, v{vW+14}
v_add_f32 v{vW+13}, v{vW+13}, v{vW+15}
v_add_f32 v{vW}, v{vW}, v{vW+4}
v_add_f32 v{vW+1}, v{vW+1}, v{vW+5}
v_add_f32 v{vW+8}, v{vW+8}, v{vW+12}
v_add_f32 v{vW+9}, v{vW+9}, v{vW+13}
v_add_f32 v{vAc}, v{vW}, v{vW+8}
v_add_f32 v{vAc+2}, v{vW+1}, v{vW+9}
buffer_store_dwordx4 {vr(vAc,4)}, v{vL16}, {WS}, s{sP} offen sc1
{lsk}:""")
    stamp(a, 9)
    w_dma(a, 18-EW)
    a("s_branch L_b")
    a("L_s0_stats:")
    vRW = 16
    a(f"""s_lshl_b32 s{sOff}, s2, 3
s_add_u32 s{sOff}, s{sOff}, s{S_W}
s_mul_i32 s{sOff}, s{sOff}, 2304
v_mov_b32 v{vRW+8}, 0
v_mov_b32 v{vRW+9}, 0
v_mov_b32 v{vRW+10}, 0
v_mov_b32 v{vRW+11}, 0
s_waitcnt lgkmcnt(0)""")
    srd(a, R_C, S_X, SZ_X)
    a(f"""buffer_load_dwordx4 {vr(vRW,4)}, v{vL16}, {RC}, s{sOff} offen
buffer_load_dwordx4 {vr(vRW+4,4)}, v{vL16}, {RC}, s{sOff} offen offset:1024
s_mov_b64 exec, 0xffff
buffer_load_dwordx4 {vr(vRW+8,4)}, v{vL16}, {RC}, s{sOff} offen offset:2048
s_mov_b64 exec, -1
s_load_dword s{S_TAG}, s[{S_WS}:{S_WS+1}], {EPOCH}""")
    srd(a, R_WS, S_WS, SZ_WS)
    lane_consts(a)
    a(f"""s_barrier
s_min_u32 s{T+12}, s2, 35
s_and_b32 s{T+13}, s{T+12}, 1
s_lshr_b32 s{T+12}, s{T+12}, 1
s_lshl_b32 s{T+13}, s{T+13}, 3
s_add_u32 s{T+13}, s{T+13}, s{S_W}
v_mul_u32_u24 v{vT0}, 2304, v{vR8}
v_and_b32 v{vT1}, 7, v0
v_lshl_add_u32 v{vT0}, v{vT1}, 4, v{vT0}
s_mul_i32 s{T+13}, s{T+13}, {32*2304}
s_lshl_b32 s{T+12}, s{T+12}, 7
s_add_u32 s{T+13}, s{T+13}, s{T+12}
s_lshl_b32 m0, s{S_W}, 12""")
    lnx = a.label("nox"); ljx = a.label("jx")
    a(f"s_cmp_ge_u32 s2, 36\ns_cbranch_scc1 {lnx}")
    for q in range(4):
        a(f"buffer_load_dwordx4 v{vT0}, {RC}, s{T+13} offen lds")
        if q < 3:
            a(f"s_add_u32 s{T+13}, s{T+13}, {8*2304}\ns_add_u32 m0, m0, 1024\ns_nop 0")
    get_tag(a)
    a(f"s_waitcnt vmcnt(4)\ns_branch {ljx}\n{lnx}:")
    get_tag(a)
    a(f"s_waitcnt vmcnt(0)\n{ljx}:")
    stamp(a, 8)
    s1, s2_, q1, q2 = 32, 33, 34, 35
    a(f"s_mov_b32 s{T+12}, 0x3f803f80")
    for i in range(0, 12, 2):
        c = lambda r: "0" if i == 0 else f"v{r}"
        a(f"""v_dot2_f32_bf16 v{s1}, v{vRW+i}, s{T+12}, {c(s1)}
v_dot2_f32_bf16 v{q1}, v{vRW+i}, v{vRW+i}, {c(q1)}
v_dot2_f32_bf16 v{s2_}, v{vRW+i+1}, s{T+12}, {c(s2_)}
v_dot2_f32_bf16 v{q2}, v{vRW+i+1}, v{vRW+i+1}, {c(q2)}""")
    a(f"""s_nop 2
v_add_f32 v{s1}, v{s1}, v{s2_}
v_add_f32 v{q1}, v{q1}, v{q2}""")
    for m in ("quad_perm:[1,0,3,2] row_mask:0xf", "quad_perm:[2,3,0,1] row_mask:0xf", "row_half_mirror row_mask:0xf", "row_mirror row_mask:0xf", "row_bcast:15 row_mask:0xa", "row_bcast:31 row_mask:0xc"):
        a(f"s_nop 0\nv_add_f32_dpp v{s1}, v{s1}, v{s1} {m} bank_mask:0xf\nv_add_f32_dpp v{q1}, v{q1}, v{q1} {m} bank_mask:0xf")
    g = 36
    a(f"""v_mul_f32 v{g}, 0x3a638e39, v{s1}
v_mul_f32 v{g+2}, 0x3a638e39, v{q1}
v_fma_f32 v{g+2}, -v{g}, v{g}, v{g+2}
v_max_f32 v{g+2}, 0, v{g+2}""")
    round_bf16(a, g+2)
    a(f"v_add_f32 v{g+2}, 0x3727c5ac, v{g+2}")
    round_bf16(a, g+2)
    a(f"v_sqrt_f32 v{g+2}, v{g+2}")
    round_bf16(a, g)
    round_bf16(a, g+2)
    lsk = a.label("stsk")
    a(f"""v_rcp_f32 v{g+2}, v{g+2}
v_mov_b32 v{g+1}, v{vTAG}
v_mov_b32 v{g+3}, v{vTAG}
s_lshl_b32 s{T+12}, s{S_W}, 4
s_add_u32 s{T+12}, s{T+12}, {L_STC}
v_mov_b32 v{vT0}, s{T+12}
s_mov_b32 exec_lo, 0
s_brev_b32 exec_hi, 1
ds_write_b128 v{vT0}, {vr(g,4)}
s_mov_b64 exec, -1
s_lshl_b32 s{T+12}, s2, 7
s_add_u32 s{T+12}, s{T+12}, {F_STAT}
v_add_u32 v{vT0}, {L_STC}, v{vL16}
s_waitcnt lgkmcnt(0)
s_barrier
s_cmp_lg_u32 s{S_W}, 0
s_cbranch_scc1 {lsk}
s_mov_b64 exec, 0xff
ds_read_b128 {vr(g,4)}, v{vT0}
s_waitcnt lgkmcnt(0)
buffer_store_dwordx4 {vr(g,4)}, v{vL16}, {WS}, s{T+12} offen sc1
s_mov_b64 exec, -1
{lsk}:""")
    stamp(a, 9)
    a(f"s_cmp_lt_u32 s{S_SLOT}, {NO}\ns_cbranch_scc1 L_owner\ns_branch L_s0_w")
    a(f"L_s0_none:\ns_waitcnt lgkmcnt(0)\ns_load_dword s{S_TAG}, s[{S_WS}:{S_WS+1}], {EPOCH}")
    srd(a, R_WS, S_WS, SZ_WS)
    lane_consts(a)
    get_tag(a)
    a("L_s0_w:")
    b_setup(a)
    w_dma(a, 18)

VOX = 96

S_UCT, S_UTB = 9, 10
vDU = 14
KE = int(OPT.get('ke', 12))
def wo_dma(a, n0, n1):
    a(f"s_add_u32 s{T+10}, s{S_W}, {4*n0-4}")
    for n in range(n0, n1):
        a(f"""s_lshl_b32 m0, s{T+10}, 10
s_mul_i32 s{T+11}, s{T+10}, {8*2304}
buffer_load_dwordx4 v{vDU}, {RB}, s{T+11} offen lds""")
        if n < n1-1:
            a(f"s_add_u32 s{T+10}, s{T+10}, 4")

def gemm_loop(a, nsteps, LA, RING, vAcc, vWF, vH, vA0, vA1, vaddr, sH, lds_first, w_is_a, pre=None, rot=None):
    WA = 2
    state = dict(issued=0)
    if rot:
        sR, sHs, sHe, sLo, sZ, sLe, vC0, vC1 = rot
        a(f"""s_mov_b32 s{sHs}, s{sH}
s_add_u32 s{sHe}, s{sH}, {nsteps*1024}
s_lshl_b32 s{sLo}, s{sR}, 12
s_add_u32 s{sH}, s{sH}, s{sLo}
s_lshl_b32 s{sLo}, s{sR}, 13
s_mov_b32 s{sZ}, 0
s_mov_b32 s{sLe}, {nsteps*2048}""")
    def hload():
        s = state['issued']
        a(f"buffer_load_dwordx4 {vr(vH+4*(s % RING),4)}, v{vaddr}, {WS}, s{sH} offen offset:{(s&3)*1024} sc1")
        if (s & 3) == 3 and s < nsteps-1:
            if rot: wrap_add(a, sH, 4096, sHe, sHs)
            else: a(f"s_add_u32 s{sH}, s{sH}, 4096")
        state['issued'] += 1
    def wread(s):
        if rot:
            if (s & 3) == 0:
                a(f"v_add_u32 v{vC0}, s{sLo}, v{vA0}\nv_add_u32 v{vC1}, s{sLo}, v{vA1}")
                wrap_add(a, sLo, 8192, sLe, sZ)
            trreads(a, vWF + 8*(s & 3), vC0, vC1, (s & 3)*2048)
            return
        if s and (s & 31) == 0:
            a(f"v_add_u32 v{vA0}, 0x10000, v{vA0}\nv_add_u32 v{vA1}, 0x10000, v{vA1}")
        trreads(a, vWF + 8*(s & 3), vA0, vA1, (s & 31)*2048)
    if lds_first:
        for s in range(WA): wread(s)
    for s in range(LA): hload()
    if pre: pre()
    if not lds_first:
        for s in range(WA): wread(s)
    for s in range(nsteps):
        lg = 4*min(WA-1, nsteps-1 - s)
        a(f"s_waitcnt vmcnt({state['issued'] - s - 1}) lgkmcnt({lg})")
        if s == 0 and lds_first: stamp(a, 4)
        h = vH+4*(s % RING); w0 = vWF+8*(s & 3)
        mfma(a, vAcc, *((w0, h) if w_is_a else (h, w0)), s == 0)
        if s + WA < nsteps:
            wread(s + WA)
        mfma(a, vAcc+16, *((w0+4, h) if w_is_a else (h, w0+4)), s == 0)
        if state['issued'] < nsteps:
            hload()

UM = int(OPT.get('umap', 2)); UML = UM.bit_length()-1
def phase_bc(a):
    sTb, sOff, sH, sF = T+1, T+4, T+5, T+6
    vA0, vA1 = V0+1, V0+2
    vAcc = 20
    vWF = 52
    vH = 84
    a("L_b:")
    stamp(a, 1)
    srd(a, R_B, S_WO, SZ_WO)
    a(f"""s_sub_u32 s{S_SLOT}, s{S_SLOT}, {NO}
s_and_b32 s{T+14}, s{S_G}, {UM-1}
s_mul_i32 s{T+14}, s{T+14}, 18
s_add_u32 s{T+14}, s{T+14}, s{S_SLOT}
s_lshr_b32 s{S_UCT}, s{T+14}, {UML}
s_and_b32 s{T+14}, s{T+14}, {UM-1}
s_lshr_b32 s{S_UTB}, s{S_G}, {UML}
s_lshl_b32 s{S_UTB}, s{S_UTB}, {UML}
s_add_u32 s{S_UTB}, s{S_UTB}, s{T+14}
s_lshl_b32 s{S_UTB}, s{S_UTB}, 1
s_and_b32 s{T+14}, s{S_W}, 1
s_add_u32 s{S_UTB}, s{S_UTB}, s{T+14}
v_lshlrev_b32 v{vDU}, 4, v{vCH}
v_mul_u32_u24 v{vT0}, 2304, v{vR8}
s_lshl_b32 s{T+14}, s{S_UCT}, 7
v_add3_u32 v{vDU}, v{vDU}, v{vT0}, s{T+14}
s_lshl_b32 s{sTb}, s{S_BRT}, 2
s_and_b32 s{sOff}, s{S_W}, 3
s_add_u32 s{sTb}, s{sTb}, s{sOff}
s_mul_i32 s{sH}, s{sTb}, {72*1024}
s_add_u32 s{sH}, s{sH}, {WS_H}
v_mov_b32 v{vA0}, v{vB0}
v_mov_b32 v{vA1}, v{vB1}
v_min_u32 v{vT0}, 17, v0
v_lshlrev_b32 v{vT0}, 7, v{vT0}
s_lshr_b32 s{sOff}, s{S_BRT}, 1
s_mul_i32 s{sOff}, s{sOff}, {18*128}
s_add_u32 s{sOff}, s{sOff}, {F_H}
s_mul_i32 s{sF}, s{S_BRT}, 54
s_add_u32 s{sF}, s{sF}, s{S_BCT}
s_lshl_b32 s{sF}, s{sF}, 7
s_add_u32 s{sF}, s{sF}, {F_QKV}
s_waitcnt vmcnt(0)""")
    a("s_barrier")
    stamp(a, 2)
    a(f"s_cmp_ge_u32 s{S_W}, 4\ns_cbranch_scc1 L_ld")
    wpoll(a, vT0, f"s{sOff}", vT1)
    stamp(a, 3)
    LA = int(OPT['la'])
    gemm_loop(a, 72, LA, LA+4, vAcc, vWF, vH, vA0, vA1, vL16, sH, True, True)
    stamp(a, 5)
    a(f"""s_mul_i32 s{sH}, s{sTb}, {216*1024}
s_lshl_b32 s{sOff}, s{S_BCT}, 12
s_add_u32 s{sH}, s{sH}, s{sOff}
s_add_u32 s{sH}, s{sH}, {WS_QKV}
s_nop 7""")
    for u in range(4):
        if u == 2:
            a("s_nop 1")
        for r in range(4*u, 4*u+4):
            a(f"v_cvt_pk_bf16_f32 v{vWF+r}, v{vAcc+2*r}, v{vAcc+2*r+1}")
        a(f"buffer_store_dwordx4 {vr(vWF+4*u,4)}, v{vL16}, {WS}, s{sH} offen offset:{1024*u} sc1")
    a("s_barrier")
    stamp(a, 6)
    sKh = T+2
    a(f"""s_lshr_b32 s{sKh}, s{S_W}, 1
s_mul_i32 s{sH}, s{S_UTB}, {216*1024}
s_mul_i32 s{sOff}, s{sKh}, {36*1024}
s_add_u32 s{sH}, s{sH}, s{sOff}
s_add_u32 s{sH}, s{sH}, {WS_QKV + 144*1024}
s_mul_i32 s{sOff}, s{sKh}, {576*128}
v_add_u32 v{vA0}, s{sOff}, v{vB0}
v_add_u32 v{vA1}, s{sOff}, v{vB1}
v_min_u32 v{vT0}, 8, v0
v_lshlrev_b32 v{vT0}, 7, v{vT0}
s_lshr_b32 s{T+7}, s{S_UTB}, 2
s_mul_i32 s{T+7}, s{T+7}, {54*128}
s_mul_i32 s{sOff}, s{sKh}, {9*128}
s_add_u32 s{T+7}, s{T+7}, s{sOff}
s_add_u32 s{T+7}, s{T+7}, {F_QKV + 36*128}""")
    set_flag(a, f"s{sF}")
    stamp(a, 7)
    a(f"s_cmp_ge_u32 s{S_SLOT}, 18\ns_cbranch_scc1 L_c_notu")
    UROT = int(OPT.get('urot', 0))
    if UROT:
        a(f"s_mul_i32 s{T+8}, s{S_UCT}, {UROT}")
        mod9(a, T+8, T+8, T+9)
    wpoll(a, vT0, f"s{T+7}", vT1)
    stamp(a, 12)
    LA = int(OPT.get('lau', 12))
    gemm_loop(a, 36, LA, min(36, LA+4), vAcc, vWF, vH, vA0, vA1, vP16, sH, False, False, pre=lambda: (a("s_barrier"), stamp(a, 11)),
              rot=(T+8, T+9, T+10, T+11, T+12, T+13, V0, V0+3) if UROT else None)
    stamp(a, 13)
    lk1 = a.label("kh1"); lj = a.label("j")
    a(f"""s_lshl_b32 s{sOff}, s{S_W}, 12
s_add_u32 s{sOff}, s{sOff}, {L_MISC}
v_add_u32 v{vT0}, s{sOff}, v{vL16}
v_xor_b32 v{vT1}, {2*4096}, v{vT0}
s_lshr_b32 s{sH}, s{S_UTB}, 3
s_mul_i32 s{sF}, s{sH}, 18
s_add_u32 s{sF}, s{sF}, s{S_UCT}
s_lshl_b32 s{sH}, s{sF}, 1
s_add_u32 s{sH}, s{sH}, s{sKh}
s_lshl_b32 s{sH}, s{sH}, 3
s_and_b32 s{sOff}, s{S_UTB}, 7
s_add_u32 s{sH}, s{sH}, s{sOff}
s_lshl_b32 s{sH}, s{sH}, 11
s_add_u32 s{sH}, s{sH}, {WS_U}
s_lshl_b32 s{sF}, s{sF}, 2
s_bfe_u32 s{sOff}, s{S_UTB}, 0x20001
s_add_u32 s{sF}, s{sF}, s{sOff}
s_lshl_b32 s{sF}, s{sF}, 7
s_add_u32 s{sF}, s{sF}, {F_U}
s_cmp_lg_u32 s{sKh}, 0
s_cbranch_scc1 {lk1}""")
    for q in range(4):
        a(f"ds_write_b128 v{vT0}, {vr(vAcc+16+4*q,4)} offset:{q*1024}")
    a(f"s_branch {lj}\n{lk1}:")
    for q in range(4):
        a(f"ds_write_b128 v{vT0}, {vr(vAcc+4*q,4)} offset:{q*1024}")
    for r in range(16):
        a(f"v_mov_b32 v{vAcc+r}, v{vAcc+16+r}")
    a(f"{lj}:\ns_waitcnt lgkmcnt(0)\ns_barrier")
    for q in range(4):
        a(f"ds_read_b128 {vr(vWF+4*q,4)}, v{vT1} offset:{q*1024}")
    for u in range(2):
        a(f"s_waitcnt lgkmcnt({2-2*u})")
        for r in range(8*u, 8*u+8):
            a(f"v_add_f32 v{vAcc+r}, v{vAcc+r}, v{vWF+r}")
        for r in range(4*u, 4*u+4):
            a(f"v_cvt_pk_bf16_f32 v{vWF+16+r}, v{vAcc+2*r}, v{vAcc+2*r+1}")
        a(f"buffer_store_dwordx4 {vr(vWF+16+4*u,4)}, v{vL16}, {WS}, s{sH} offen offset:{1024*u} sc1")
    set_flag(a, f"s{sF}")
    a("s_branch L_c_done")
    lnu = a.label("ldnu")
    vWo = 20
    NE = int(OPT.get('ne', 18))
    a(f"""L_ld:
s_cmp_ge_u32 s{S_SLOT}, 18
s_cbranch_scc1 {lnu}
s_sub_u32 s{T+10}, s{S_W}, 4
s_lshl_b32 s{T+11}, s{T+10}, 10
v_add_u32 v{vT0}, s{T+11}, v{vL16}
s_lshr_b32 s{T+12}, s{S_UTB}, 1
s_and_b32 s{T+12}, s{T+12}, {UM-1}
s_mul_i32 s{T+12}, s{T+12}, {144//UM}
s_add_u32 s{T+10}, s{T+10}, s{T+12}
s_lshl_b32 s{T+12}, s{T+12}, 10""")
    def nxt(n):
        if n < 35:
            a(f"s_add_u32 s{T+10}, s{T+10}, 4")
            if n % 9 == 8:
                a(f"""s_sub_u32 s{T+11}, s{T+10}, 144
s_cmp_ge_u32 s{T+10}, 144
s_cselect_b32 s{T+10}, s{T+11}, s{T+10}""")
    for n in range(NE):
        a(f"""s_mul_i32 s{T+11}, s{T+10}, {8*2304}
buffer_load_dwordx4 {vr(vWo+4*n,4)}, v{vDU}, {RB}, s{T+11} offen""")
        nxt(n)
    stamp(a, 4)
    a("s_waitcnt vmcnt(0)")
    stamp(a, 5)
    a("s_barrier")
    WS_ = min(NE, int(OPT.get('wsplit', 12)))
    def wr(n):
        if n % 9 == 0:
            a(f"v_add_u32 v{vT1}, s{T+12}, v{vT0}")
            a(f"""s_add_u32 s{T+12}, s{T+12}, {36*1024}
s_cmp_ge_u32 s{T+12}, {144*1024}
s_cselect_b32 s{T+12}, 0, s{T+12}""")
        a(f"ds_write_b128 v{vT1}, {vr(vWo+4*n,4)} offset:{(n % 9)*4096}")
    for n in range(WS_): wr(n)
    a("s_barrier")
    for n in range(WS_, NE): wr(n)
    for n in range(NE, 36):
        a(f"""s_lshl_b32 m0, s{T+10}, 10
s_mul_i32 s{T+11}, s{T+10}, {8*2304}
buffer_load_dwordx4 v{vDU}, {RB}, s{T+11} offen lds""")
        nxt(n)
    a(f"""s_waitcnt vmcnt(0) lgkmcnt(0)""")
    stamp(a, 11)
    a(f"""s_barrier
s_barrier
s_barrier
s_branch L_c_done
{lnu}:
s_barrier
s_barrier""")
    a("L_c_notu:")
    a(f"s_cmp_ge_u32 s{S_SLOT}, 26\ns_cbranch_scc1 L_c_done")
    sQb, sKb, sKq, sJ, sK, sQ, sKt = T, T+1, T+2, T+3, T+5, T+6, T+9
    vS = 56
    RING = 15
    a(f"""s_sub_u32 s{sJ}, s{S_SLOT}, 18
s_and_b32 s{sKq}, s{S_W}, 3
s_and_b32 s{sQb}, s{S_G}, 1
s_lshl_b32 s{sQb}, s{sQb}, 2
s_and_b32 s{sOff}, s{sJ}, 3
s_add_u32 s{sQb}, s{sQb}, s{sOff}
s_and_b32 s{sKt}, s{S_G}, 2
s_lshr_b32 s{sOff}, s{sJ}, 2
s_add_u32 s{sKt}, s{sKt}, s{sOff}
s_lshl_b32 s{sKb}, s{sKt}, 1
s_lshr_b32 s{sOff}, s{S_G}, 2
s_lshl_b32 s{sOff}, s{sOff}, 3
s_add_u32 s{sQb}, s{sQb}, s{sOff}
s_add_u32 s{sKb}, s{sKb}, s{sOff}
s_mul_i32 s{sK}, s{sKb}, {216*1024}
s_mul_i32 s{sQ}, s{sQb}, {216*1024}
s_mul_i32 s{sOff}, s{sKq}, {18*1024}
s_add_u32 s{sK}, s{sK}, s{sOff}
s_add_u32 s{sQ}, s{sQ}, s{sOff}
s_add_u32 s{sK}, s{sK}, {WS_QKV + 72*1024}
s_add_u32 s{sQ}, s{sQ}, {WS_QKV}
v_min_u32 v{vT0}, 17, v{vTok}
v_lshlrev_b32 v{vT0}, 7, v{vT0}
s_lshr_b32 s{sOff}, s{sKb}, 2
s_mul_i32 s{sOff}, s{sOff}, {54*128}
s_add_u32 s{sOff}, s{sOff}, {18*128}
s_lshr_b32 s{T+13}, s{sQb}, 2
s_mul_i32 s{T+13}, s{T+13}, {54*128}
s_sub_u32 s{sOff}, s{sOff}, s{T+13}
v_mul_lo_u32 v{vT1}, v{vHF}, s{sOff}
v_add_u32 v{vT0}, v{vT0}, v{vT1}
v_add_u32 v{vT0}, s{T+13}, v{vT0}
v_add_u32 v{vT2}, {216*1024}, v{vP16}
s_mov_b32 s{sOff}, {F_QKV}""")
    poll(a, vT0, f"s{sOff}", vT1)
    stamp(a, 12)
    lsi = a.label("sidle")
    a(f"s_cmp_ge_u32 s{S_W}, 4\ns_cbranch_scc1 {lsi}")
    LA = int(OPT.get('las', 8))
    assert LA < RING
    SROT = int(OPT.get('srot', 1))
    sKs, sQs, sR = T+7, T+8, T+12
    a(f"""s_mov_b32 s{sKs}, s{sK}
s_mov_b32 s{sQs}, s{sQ}
s_mul_i32 s{sR}, s{sJ}, {2048*SROT}
s_movk_i32 s{T+13}, 0
s_movk_i32 s{T+14}, {18*1024}""")
    def sload(s):
        r = vS + 12*(s % RING)
        if (s & 1) == 0:
            a(f"s_add_u32 s{sK}, s{sKs}, s{sR}\ns_add_u32 s{sQ}, s{sQs}, s{sR}")
            wrap_add(a, sR, 2048, T+14, T+13)
        a(f"""buffer_load_dwordx4 {vr(r,4)}, v{vL16}, {WS}, s{sQ} offen offset:{(s&1)*1024} sc1
buffer_load_dwordx4 {vr(r+4,4)}, v{vP16}, {WS}, s{sK} offen offset:{(s&1)*1024} sc1
buffer_load_dwordx4 {vr(r+8,4)}, v{vT2}, {WS}, s{sK} offen offset:{(s&1)*1024} sc1""")
    for s in range(LA):
        sload(s)
    for s in range(18):
        issued = min(18, s + LA)
        r = vS + 12*(s % RING)
        a(f"s_waitcnt vmcnt({3*(issued - s - 1) + 1})")
        mfma(a, vAcc, r+4, r, s == 0)
        a(f"s_waitcnt vmcnt({3*(issued - s - 1)})")
        mfma(a, vAcc+16, r+8, r, s == 0)
        if s + LA < 18:
            sload(s + LA)
    stamp(a, 13)
    QS, HS, PSZ = 1056, 528, 8448
    a(f"""s_mul_i32 s{sOff}, s{S_W}, {PSZ}
v_lshl_add_u32 v{vT0}, v{vHF}, 4, v{vL16}
v_add_u32 v{vT0}, s{sOff}, v{vT0}
s_nop 8""")
    for q in range(8):
        a(f"ds_write_b128 v{vT0}, {vr(vAcc+4*q,4)} offset:{q*QS}")
    a(f"""{lsi}:
v_bfe_u32 v{vT1}, v0, 2, 2
v_and_b32 v{vT2}, 1, v0
v_lshl_add_u32 v{vT1}, v{vT1}, 1, v{vT2}
v_mul_u32_u24 v{vT1}, {QS}, v{vT1}
v_bfe_u32 v{vT2}, v0, 1, 1
v_mul_u32_u24 v{vT2}, {HS}, v{vT2}
v_lshrrev_b32 v{vT0}, 4, v0
s_lshl_b32 s{sOff}, s{S_W}, 2
v_add_u32 v{vT0}, s{sOff}, v{vT0}
v_lshl_add_u32 v{vT1}, v{vT0}, 4, v{vT1}
v_add_u32 v{vT1}, v{vT1}, v{vT2}
v_and_b32 v{vT2}, 15, v0
v_lshlrev_b32 v{vT2}, 4, v{vT2}
v_lshl_add_u32 v{vT2}, v{vT0}, 10, v{vT2}
s_lshl_b32 s{sJ}, s{sQb}, 15
s_lshl_b32 s{sOff}, s{sKt}, 8
s_add_u32 s{sJ}, s{sJ}, s{sOff}
s_add_u32 s{sJ}, s{sJ}, {WS_L}
v_mov_b32 v53, v{vTAG}
v_mov_b32 v55, v{vTAG}
s_waitcnt lgkmcnt(0)
s_barrier""")
    for j in range(4):
        a(f"ds_read_b128 {vr(vAcc+4*j,4)}, v{vT1} offset:{j*PSZ}")
    a("s_waitcnt lgkmcnt(2)")
    for r in range(4):
        a(f"v_add_f32 v{vAcc+r}, v{vAcc+r}, v{vAcc+4+r}")
    a("s_waitcnt lgkmcnt(0)")
    for r in range(4):
        a(f"v_add_f32 v{vAcc+8+r}, v{vAcc+8+r}, v{vAcc+12+r}")
    for r in range(4):
        a(f"v_add_f32 v{vAcc+r}, v{vAcc+r}, v{vAcc+8+r}")
    sc = struct.unpack('<I', struct.pack('<f', D ** -0.5))[0]
    for r in range(2):
        a(f"v_cvt_pk_bf16_f32 v{52+2*r}, v{vAcc+2*r}, v{vAcc+2*r+1}")
    for r in range(2):
        unpack(a, vAcc+2*r, vAcc+2*r+1, 52+2*r)
    for r in range(4):
        a(f"v_mul_f32 v{vAcc+r}, {hex(sc)}, v{vAcc+r}")
    for r in range(2):
        a(f"v_cvt_pk_bf16_f32 v{52+2*r}, v{vAcc+2*r}, v{vAcc+2*r+1}")
    a(f"buffer_store_dwordx4 v[52:55], v{vT2}, {WS}, s{sJ} offen sc1")
    a("L_c_done:")
    stamp(a, 14)

def phase_d(a):
    sQt, sCt, sCb, sKh, sOff, sXo, sJ, sU, sB, sCol = T, T+1, T+2, T+3, T+4, T+5, T+6, T+7, T+8, T+9
    vXo, vMx, vS, vLa, vPa, vLw = V0, V0+1, V0+2, V0+3, V0+4, V0+5
    vLd = 24
    vX = 40
    vG = 44
    vF = 56
    vR = 72
    vAcc = 80
    vU = 96
    vP = 128
    PS = 1056
    L_P, L_EX = 40960, 65536
    srd(a, R_A, S_X, SZ_X)
    srd(a, R_B, S_OUT, SZ_X)
    a(f"""s_sub_u32 s{sJ}, 26, s{S_SLOT}
s_cmp_ge_u32 s{sJ}, 18
s_cbranch_scc1 L_fin
s_and_b32 s{sOff}, s{S_G}, 3
s_mul_i32 s{sOff}, s{sOff}, 18
s_add_u32 s{sOff}, s{sOff}, s{sJ}
s_lshr_b32 s{sCt}, s{sOff}, 3
s_and_b32 s{sJ}, s{sOff}, 7
s_lshr_b32 s{sB}, s{S_G}, 2
s_lshl_b32 s{sQt}, s{sB}, 3
s_add_u32 s{sQt}, s{sQt}, s{sJ}
s_and_b32 s{sCb}, s{S_W}, 3
s_lshr_b32 s{sKh}, s{S_W}, 2
s_lshl_b32 s{sCol}, s{sCt}, 7
s_lshl_b32 s{sOff}, s{sCb}, 5
s_add_u32 s{sCol}, s{sCol}, s{sOff}
s_lshl_b32 s{sOff}, s{sKh}, 4
s_add_u32 s{sCol}, s{sCol}, s{sOff}
s_mul_i32 s{sXo}, s{sQt}, {32*2304}
s_lshl_b32 s{sOff}, s{sCol}, 1
s_add_u32 s{sXo}, s{sXo}, s{sOff}
v_mul_u32_u24 v{vXo}, 2304, v{vTok}
v_lshl_add_u32 v{vXo}, v{vHF}, 4, v{vXo}
buffer_load_dwordx4 {vr(vX,4)}, v{vXo}, {RA}, s{sXo} offen
s_mul_i32 s{sU}, s{sB}, 36
s_lshl_b32 s{sOff}, s{sCt}, 2
s_add_u32 s{sU}, s{sU}, s{sOff}
s_add_u32 s{sU}, s{sU}, s{sCb}
s_lshr_b32 s{T+10}, s{sU}, 1
s_lshl_b32 s{sU}, s{sU}, 4
s_lshl_b32 s{sOff}, s{sKh}, 3
s_add_u32 s{sU}, s{sU}, s{sOff}
s_lshl_b32 s{sU}, s{sU}, 10
s_add_u32 s{sU}, s{sU}, {WS_U}
s_lshl_b32 s{T+10}, s{T+10}, 1
s_add_u32 s{T+10}, s{T+10}, s{sKh}
s_lshl_b32 s{T+10}, s{T+10}, 8
s_add_u32 s{T+10}, s{T+10}, {F_U}
v_and_b32 v{vT0}, 1, v0
v_lshlrev_b32 v{vT0}, 7, v{vT0}
v_add_u32 v{vT1}, s{T+10}, v{vT0}
s_lshr_b32 s{sOff}, s{sCol}, 6
s_lshl_b32 s{sOff}, s{sOff}, 7
s_add_u32 s{sOff}, s{sOff}, {F_G}
v_mov_b32 v{vT2}, s{sOff}
v_cmp_lt_u32 vcc, 5, v0
s_lshl_b32 s{sOff}, s{sQt}, 15
s_lshl_b32 s{T+10}, s{S_W}, 12
v_cndmask_b32 v{vT1}, v{vT1}, v{vT2}, vcc
s_add_u32 s{sOff}, s{sOff}, s{T+10}
s_add_u32 s{sOff}, s{sOff}, {WS_L + 3*1024 + 252}
v_lshlrev_b32 v{vT2}, 8, v0
v_add_u32 v{vT2}, s{sOff}, v{vT2}
v_cmp_gt_u32 vcc, 4, v0
v_and_b32 v{vT3}, 15, v0
v_lshrrev_b32 v{vT0}, 4, v0
v_cndmask_b32 v{vT1}, v{vT1}, v{vT2}, vcc
s_lshl_b32 s{sOff}, s{S_W}, 2
v_add_u32 v{vT0}, s{sOff}, v{vT0}
v_lshlrev_b32 v{vLa}, 10, v{vT0}
v_lshl_add_u32 v{vLa}, v{vT3}, 4, v{vLa}
v_lshrrev_b32 v{vT2}, 1, v{vT3}
v_mul_u32_u24 v{vLw}, {PS//2}, v{vT2}
v_lshl_add_u32 v{vLw}, v{vT0}, 4, v{vLw}
v_and_b32 v{vT2}, 1, v0
v_lshl_add_u32 v{vLw}, v{vT2}, 3, v{vLw}
v_lshl_add_u32 v{vPa}, v{vHF}, 4, v{vL16}
s_mul_i32 s{sOff}, s{sKh}, {8*PS}
v_add_u32 v{vPa}, s{sOff}, v{vPa}
s_mul_i32 s{T+11}, s{sB}, 4608
s_lshl_b32 s{T+10}, s{sCol}, 2
s_add_u32 s{T+11}, s{T+11}, s{T+10}
s_add_u32 s{T+11}, s{T+11}, {WS_GATE}
v_lshlrev_b32 v{vT0}, 5, v{vHF}
s_lshl_b32 s{sOff}, s{sQt}, 15
s_add_u32 s{sOff}, s{sOff}, {WS_L}""")
    vFa, vFl = 22, 23
    sUd = T+12
    def uloads():
        for s in range(8):
            a(f"buffer_load_dwordx4 {vr(vU+4*s,4)}, v{vL16}, {WS}, s{sU} offen offset:{(s&3)*1024} sc1")
            if s == 3:
                a(f"s_add_u32 s{sU}, s{sU}, 4096")
        a(f"""buffer_load_dwordx4 {vr(vG,4)}, v{vT0}, {WS}, s{T+11} offen sc1
buffer_load_dwordx4 {vr(vG+4,4)}, v{vT0}, {WS}, s{T+11} offen offset:16 sc1
s_mov_b32 s{sUd}, 1""")
        stamp(a, 8)
    l = a.label("lp"); d = a.label("lpd"); nu = a.label("nu"); l3 = a.label("lv"); d3 = a.label("lvd"); nu2 = a.label("nu2")
    def lloads():
        for n in range(4):
            a(f"buffer_load_dwordx4 {vr(vLd+4*n,4)}, v{vLa}, {WS}, s{sOff} offen offset:{256*n} sc1")
    a(f"""v_mov_b32 v{vFa}, v{vT1}
s_mov_b32 s{sUd}, 0
{l}:
buffer_load_dword v{vFl}, v{vFa}, {WS}, 0 offen sc1
s_waitcnt vmcnt(0)
v_cmp_ne_u32 vcc, s{S_TAG}, v{vFl}
s_and_b32 s{T+13}, vcc_lo, 15
s_cbranch_scc0 {d}
s_lshr_b32 s{T+13}, vcc_lo, 4
s_or_b32 s{T+13}, s{T+13}, s{sUd}
s_cbranch_scc1 {nu}""")
    uloads()
    a(f"""{nu}:
s_sleep {OPT.get('lsleep', 1)}
s_sub_u32 s{S_TO}, s{S_TO}, 1
s_cmp_lg_u32 s{S_TO}, 0
s_cbranch_scc1 {l}
s_mov_b32 s{S_TO}, 1
{d}:""")
    lloads()
    a(f"""s_lshr_b32 s{T+13}, vcc_lo, 4
s_or_b32 s{T+13}, s{T+13}, s{sUd}
s_cbranch_scc1 {nu2}""")
    uloads()
    a(f"""s_waitcnt vmcnt(10)
s_branch {l3}_c
{nu2}:
buffer_load_dword v{vFl}, v{vFa}, {WS}, 0 offen sc1
s_waitcnt vmcnt(1)
s_branch {l3}_c
{l3}:""")
    lloads()
    a(f"""s_waitcnt vmcnt(0)
{l3}_c:
v_min_u32 v{vT1}, v{vLd+1}, v{vLd+3}
v_max_u32 v{vT2}, v{vLd+1}, v{vLd+3}""")
    for n in range(1, 4):
        a(f"v_min3_u32 v{vT1}, v{vT1}, v{vLd+4*n+1}, v{vLd+4*n+3}\nv_max3_u32 v{vT2}, v{vT2}, v{vLd+4*n+1}, v{vLd+4*n+3}")
    a(f"""v_cmp_ne_u32 vcc, s{S_TAG}, v{vT1}
v_cmp_ne_u32 s[{T+14}:{T+15}], s{S_TAG}, v{vT2}
s_or_b64 vcc, vcc, s[{T+14}:{T+15}]
s_cbranch_vccz {d3}
s_sub_u32 s{S_TO}, s{S_TO}, 1
s_cmp_lg_u32 s{S_TO}, 0
s_cbranch_scc1 {l3}
s_mov_b32 s{S_TO}, 1
{d3}:""")
    stamp(a, 9)
    for i in range(8):
        unpack(a, vF+2*i, vF+2*i+1, vLd+2*i)
    a(f"""v_max3_f32 v{vMx}, v{vF}, v{vF+1}, v{vF+2}
v_max3_f32 v{vS}, v{vF+3}, v{vF+4}, v{vF+5}
v_max3_f32 v{vMx}, v{vMx}, v{vF+6}, v{vF+7}
v_max3_f32 v{vS}, v{vS}, v{vF+8}, v{vF+9}
v_max3_f32 v{vMx}, v{vMx}, v{vF+10}, v{vF+11}
v_max3_f32 v{vS}, v{vS}, v{vF+12}, v{vF+13}
v_max3_f32 v{vMx}, v{vMx}, v{vF+14}, v{vF+15}
v_max_f32 v{vMx}, v{vMx}, v{vS}""")
    for m in ("quad_perm:[1,0,3,2]", "quad_perm:[2,3,0,1]", "row_half_mirror", "row_mirror"):
        a(f"s_nop 1\nv_max_f32_dpp v{vMx}, v{vMx}, v{vMx} {m} row_mask:0xf bank_mask:0xf")
    a(f"s_mov_b32 s{T+10}, {hex(LOG2E)}\nv_mul_f32 v{vMx}, s{T+10}, v{vMx}")
    for i in range(16):
        a(f"v_fma_f32 v{vF+i}, v{vF+i}, s{T+10}, -v{vMx}")
    for i in range(16):
        a(f"v_exp_f32 v{vF+i}, v{vF+i}")
    a(f"v_add_f32 v{vS}, v{vF}, v{vF+1}\nv_add_f32 v{vMx}, v{vF+2}, v{vF+3}")
    for i in range(4, 16, 2):
        a(f"v_add_f32 v{vS}, v{vS}, v{vF+i}\nv_add_f32 v{vMx}, v{vMx}, v{vF+i+1}")
    a(f"v_add_f32 v{vS}, v{vS}, v{vMx}")
    for m in ("quad_perm:[1,0,3,2]", "quad_perm:[2,3,0,1]", "row_half_mirror", "row_mirror"):
        a(f"s_nop 1\nv_add_f32_dpp v{vS}, v{vS}, v{vS} {m} row_mask:0xf bank_mask:0xf")
    a(f"v_rcp_f32 v{vS}, v{vS}\ns_nop 0")
    for i in range(16):
        a(f"v_mul_f32 v{vF+i}, v{vF+i}, v{vS}")
    for i in range(8):
        a(f"v_cvt_pk_bf16_f32 v{vLd+i}, v{vF+2*i}, v{vF+2*i+1}")
    for n in range(4):
        a(f"ds_write_b64 v{vLw}, {vr(vLd+2*n,2)} offset:{L_P+4*n*PS}")
    hu = a.label("hu"); l2 = a.label("up"); d2 = a.label("upd")
    a(f"""s_cmp_lg_u32 s{sUd}, 0
s_cbranch_scc1 {hu}
{l2}:
s_waitcnt vmcnt(0)
v_cmp_ne_u32 vcc, s{S_TAG}, v{vFl}
s_cbranch_vccz {d2}
buffer_load_dword v{vFl}, v{vFa}, {WS}, 0 offen sc1
s_sub_u32 s{S_TO}, s{S_TO}, 1
s_cmp_lg_u32 s{S_TO}, 0
s_cbranch_scc1 {l2}
s_mov_b32 s{S_TO}, 1
{d2}:""")
    uloads()
    a(f"{hu}:\ns_waitcnt lgkmcnt(0)\ns_barrier")
    for s in range(8):
        a(f"ds_read_b128 {vr(vP+4*s,4)}, v{vPa} offset:{L_P+s*PS}")
    a(f"""s_lshl_b32 s{sOff}, s{S_W}, 11
s_add_u32 s{sOff}, s{sOff}, {L_EX}
v_add_u32 v{vT0}, s{sOff}, v{vL16}
v_xor_b32 v{vT1}, {4*2048}, v{vT0}""")
    for s in range(8):
        a(f"s_waitcnt vmcnt({2+7-s}) lgkmcnt({7-s})")
        mfma(a, vAcc, vU+4*s, vP+4*s, s == 0)
    for i in range(4):
        unpack(a, vF+2*i, vF+2*i+1, vX+i)
    stamp(a, 10)
    lk1 = a.label("kh1"); lj = a.label("j")
    a(f"""s_nop 3
s_cmp_lg_u32 s{sKh}, 0
s_cbranch_scc1 {lk1}
ds_write_b128 v{vT0}, {vr(vAcc+8,4)}
ds_write_b128 v{vT0}, {vr(vAcc+12,4)} offset:1024
s_branch {lj}
{lk1}:
ds_write_b128 v{vT0}, {vr(vAcc,4)}
ds_write_b128 v{vT0}, {vr(vAcc+4,4)} offset:1024""")
    for r in range(8):
        a(f"v_mov_b32 v{vAcc+r}, v{vAcc+8+r}")
    a(f"""{lj}:
s_waitcnt lgkmcnt(0)
s_barrier
ds_read_b128 {vr(vR,4)}, v{vT1}
ds_read_b128 {vr(vR+4,4)}, v{vT1} offset:1024
s_waitcnt vmcnt(0) lgkmcnt(0)""")
    for r in range(8):
        a(f"v_add_f32 v{vAcc+r}, v{vAcc+r}, v{vR+r}")
    def cv():
        for i in range(4):
            a(f"v_cvt_pk_bf16_f32 v{vR+i}, v{vAcc+2*i}, v{vAcc+2*i+1}")
    def up():
        for i in range(4):
            unpack(a, vAcc+2*i, vAcc+2*i+1, vR+i)
    cv(); up()
    for r in range(8):
        a(f"v_mul_f32 v{vAcc+r}, v{vAcc+r}, v{vG+r}")
    cv(); up()
    for r in range(8):
        a(f"v_add_f32 v{vAcc+r}, v{vAcc+r}, v{vF+r}")
    cv()
    a(f"buffer_store_dwordx4 {vr(vR,4)}, v{vXo}, {RB}, s{sXo} offen {OPT.get('oflag', '').replace('+', ' ')}")
    a("L_fin:")

def gemv_dma(a, sColA, vD):
    sRow0, sOff = T+2, T+3
    a(f"""v_lshlrev_b32 v{vD}, 4, v{vCH}
v_mul_u32_u24 v{vT0}, 13824, v{vR8}
v_add3_u32 v{vD}, v{vD}, v{vT0}, s{sColA}
s_mul_i32 s{sOff}, s{sRow0}, 13824
s_lshl_b32 m0, s{sRow0}, 7""")
    for t in range(18):
        a(f"""s_nop 0
buffer_load_dwordx4 v{vD}, {RA}, s{sOff} offen {NT} lds""")
        if t < 17:
            a(f"s_add_u32 s{sOff}, s{sOff}, {8*13824}\ns_add_u32 m0, m0, 1024")

def phase_owner(a):
    sColA, sB, sRow0, sOff, sO, sCs, sTb = T, T+1, T+2, T+3, T+4, T+5, T+6
    vD, vA0, vA1, vSil, vCs = V0, V0+1, V0+2, V0+3, V0+4
    vC = 24
    vST = 28
    vX = VOX
    vXN = 48
    vPt = 80
    vAcc = 112
    vWF = 144
    vSF = 160
    vM = 184
    a(f"""s_mov_b32 s{sO}, s2
s_cmp_ge_u32 s{sO}, 36
s_cbranch_scc1 L_o_pref
s_lshr_b32 s{sCs}, s{sO}, 1
s_and_b32 s{sB}, s{sO}, 1
s_lshl_b32 s{sTb}, s{sB}, 3
s_add_u32 s{sTb}, s{sTb}, s{S_W}""")
    vST = 32
    a(f"""v_and_b32 v{vT3}, 7, v0
v_lshlrev_b32 v{vT2}, 4, v{vT3}
v_lshlrev_b32 v{vT0}, 7, v{vT3}
v_lshl_add_u32 v{vT0}, v{vR8}, 4, v{vT0}
s_lshl_b32 s{T+9}, s{S_W}, 12
v_add_u32 v{vT0}, s{T+9}, v{vT0}
s_lshl_b32 s{T+9}, s{sTb}, 9
s_add_u32 s{T+9}, s{T+9}, {F_STAT}""")
    def stl():
        for q in range(4):
            a(f"buffer_load_dwordx4 {vr(vST+4*q,4)}, v{vT2}, {WS}, s{T+9} offen offset:{128*q} sc1")
    a("s_waitcnt vmcnt(0)")
    for q in range(4):
        a(f"ds_read_b128 {vr(vX+4*q,4)}, v{vT0} offset:{q*1024}")
    a("s_waitcnt lgkmcnt(0)")
    for q in range(4):
        for i in range(4):
            unpack(a, vXN+8*q+2*i, vXN+8*q+2*i+1, vX+4*q+i)
    gpoll(a, stl, [vST+4*q+j for q in range(4) for j in (1, 3)])
    stamp(a, 1)
    vPt = 112
    def pl():
        a(f"s_mov_b32 s{T+10}, s{T+9}")
        for n in range(18):
            a(f"buffer_load_dwordx4 {vr(vPt+4*n,4)}, v{vL16}, {WS}, s{T+10} offen offset:{(n&3)*1024} sc1")
            if (n & 3) == 3:
                a(f"s_add_u32 s{T+10}, s{T+10}, 4096")
    lw0 = a.label("w0a")
    a(f"""s_mul_i32 s{T+9}, s{sO}, {18*1024}
s_add_u32 s{T+9}, s{T+9}, {WS_PART}
s_cmp_lg_u32 s{S_W}, 0
s_cbranch_scc1 {lw0}""")
    pl()
    a(f"{lw0}:")
    P = [(q, i) for q in range(4) for i in range(4)]
    lo = lambda q, i: vXN+8*q+2*i
    hi = lambda q, i: vXN+8*q+2*i+1
    xs = lambda q, i: vX+4*q+i
    def st_unpack():
        for q, i in P: unpack(a, lo(q,i), hi(q,i), xs(q,i))
    def st_cvt():
        for q, i in P: a(f"v_cvt_pk_bf16_f32 v{xs(q,i)}, v{lo(q,i)}, v{hi(q,i)}")
    def st_op(op, f):
        for q, i in P:
            a(f"{op} v{lo(q,i)}, v{lo(q,i)}, v{f(q,2*i)}\n{op} v{hi(q,i)}, v{hi(q,i)}, v{f(q,2*i+1)}")
    st_op("v_sub_f32", lambda q, j: vST+4*q); st_cvt()
    st_unpack(); st_op("v_mul_f32", lambda q, j: vST+4*q+2); st_cvt()
    st_unpack()
    a(f"""v_lshlrev_b32 v{vT1}, 5, v{vR8}
v_add_u32 v{vT1}, {L_FIN}, v{vT1}
v_lshl_add_u32 v{vCs}, v{vR8}, 9, v{vT2}
s_mul_i32 s{sOff}, s{sTb}, {72*1024}
s_lshl_b32 s{T+11}, s{sCs}, 12
s_add_u32 s{sOff}, s{sOff}, s{T+11}
s_add_u32 s{sOff}, s{sOff}, {WS_H}""")
    stamp(a, 2)
    lw1 = a.label("w0b"); lp = a.label("pp"); ld = a.label("ppd")
    a(f"""s_cmp_lg_u32 s{S_W}, 0
s_cbranch_scc1 {lw1}
v_lshlrev_b32 v{vT0}, 3, v0
v_add_u32 v{vT0}, {L_FIN}, v{vT0}
v_cvt_f32_u32 v{vT2}, v{vHF}
{lp}:
s_waitcnt vmcnt(0)
v_min_u32 v{vM}, v{vPt+1}, v{vPt+3}
v_max_u32 v{vM+1}, v{vPt+1}, v{vPt+3}""")
    for n in range(1, 18):
        a(f"""v_min3_u32 v{vM}, v{vM}, v{vPt+4*n+1}, v{vPt+4*n+3}
v_max3_u32 v{vM+1}, v{vM+1}, v{vPt+4*n+1}, v{vPt+4*n+3}""")
    a(f"""v_cmp_ne_u32 vcc, s{S_TAG}, v{vM}
v_cmp_ne_u32 s[{T+14}:{T+15}], s{S_TAG}, v{vM+1}
s_or_b64 vcc, vcc, s[{T+14}:{T+15}]
s_cbranch_vccz {ld}
s_sub_u32 s{S_TO}, s{S_TO}, 1
s_cmp_eq_u32 s{S_TO}, 0
s_cbranch_scc1 {ld}""")
    pl()
    a(f"s_branch {lp}\n{ld}:\ns_max_u32 s{S_TO}, s{S_TO}, 1")
    for n in range(2, 18, 2):
        a(f"""v_add_f32 v{vPt}, v{vPt}, v{vPt+4*n}
v_add_f32 v{vPt+2}, v{vPt+2}, v{vPt+4*n+2}
v_add_f32 v{vPt+4}, v{vPt+4}, v{vPt+4*n+4}
v_add_f32 v{vPt+6}, v{vPt+6}, v{vPt+4*n+6}""")
    a(f"""v_add_f32 v{vPt}, v{vPt}, v{vPt+4}
v_add_f32 v{vPt+1}, v{vPt+2}, v{vPt+6}
v_cvt_pk_bf16_f32 v{vPt+2}, v{vPt}, v{vPt+1}""")
    unpack(a, vPt, vPt+1, vPt+2)
    a(f"""v_add_f32 v{vPt}, v{vPt}, v{vT2}
v_add_f32 v{vPt+1}, v{vPt+1}, v{vT2}
v_cvt_pk_bf16_f32 v{vPt+2}, v{vPt}, v{vPt+1}""")
    unpack(a, vPt, vPt+1, vPt+2)
    a(f"""ds_write_b64 v{vT0}, {vr(vPt,2)}
s_waitcnt lgkmcnt(0)
{lw1}:
s_barrier""")
    stamp(a, 3)
    a(f"""ds_read_b128 {vr(vM+8,4)}, v{vT1} offset:256
ds_read_b128 {vr(vM+12,4)}, v{vT1} offset:272
ds_read_b128 {vr(vM,4)}, v{vT1}
ds_read_b128 {vr(vM+4,4)}, v{vT1} offset:16
s_waitcnt lgkmcnt(2)""")
    st_op("v_mul_f32", lambda q, j: vM+8+j); st_cvt(); st_unpack()
    a("s_waitcnt lgkmcnt(0)")
    for q in range(4):
        for i in range(4):
            a(f"v_add_f32 v{lo(q,i)}, v{lo(q,i)}, v{vM+2*i}\nv_add_f32 v{hi(q,i)}, v{hi(q,i)}, v{vM+2*i+1}")
        for i in range(4):
            a(f"v_cvt_pk_bf16_f32 v{xs(q,i)}, v{lo(q,i)}, v{hi(q,i)}")
        a(f"buffer_store_dwordx4 {vr(vX+4*q,4)}, v{vCs}, {WS}, s{sOff} offen offset:{q*128} sc1")
    stamp(a, 4)
    a(f"""s_mul_i32 s{sOff}, s{sB}, 18
s_add_u32 s{sOff}, s{sOff}, s{sCs}
s_lshl_b32 s{sOff}, s{sOff}, 7
s_add_u32 s{sOff}, s{sOff}, {F_H}""")
    set_flag(a, f"s{sOff}")
    stamp(a, 5)
    a("L_o_pref:")
    srd(a, R_A, S_WMOD, SZ_WMOD)
    srd(a, R_C, S_C, SZ_C)
    a(f"""s_cmp_ge_u32 s{sO}, 18
s_cbranch_scc1 L_o_upd
s_mul_i32 s{sRow0}, s{S_W}, 144
v_min_u32 v{vT0}, 17, v{vTok}
v_lshlrev_b32 v{vT0}, 4, v{vT0}
v_mul_u32_u24 v{vT1}, 2304, v{vHF}
v_add_u32 v{vCs}, v{vT0}, v{vT1}
s_lshl_b32 s{sOff}, s{sRow0}, 1
buffer_load_dwordx4 {vr(vC,4)}, v{vCs}, {RC}, s{sOff} offen
s_lshl_b32 s{sColA}, s{sO}, 7
s_add_u32 s{sColA}, s{sColA}, 4608""")
    gemv_dma(a, sColA, vD)
    a(f"""s_lshl_b32 s{sOff}, s{sRow0}, 7
v_add_u32 v{vA0}, s{sOff}, v{vB0}
v_add_u32 v{vA1}, s{sOff}, v{vB1}
s_waitcnt vmcnt(18)""")
    for i in range(4):
        unpack(a, vM+2*i, vM+2*i+1, vC+i)
    silu8(a, vM, vM+8)
    for i in range(4):
        a(f"v_cvt_pk_bf16_f32 v{vC+i}, v{vM+2*i}, v{vM+2*i+1}")
    a(f"""s_lshl_b32 s{sOff}, s{sRow0}, 1
s_add_u32 s{sOff}, s{sOff}, {L_SIL}
v_add_u32 v{vCs}, s{sOff}, v{vCs}
ds_write_b128 v{vCs}, {vr(vC,4)}
v_and_b32 v{vT0}, 1, v0
v_mul_u32_u24 v{vT0}, 2304, v{vT0}
v_lshl_add_u32 v{vT0}, v{vHF}, 4, v{vT0}
v_add_u32 v{vSil}, s{sOff}, v{vT0}
s_waitcnt lgkmcnt(0)""")
    for s in range(9):
        wf = vWF + 8*(s & 1); sf = vSF + 4*(s & 1)
        a(f"s_waitcnt vmcnt({18-2*(s+1)})")
        a(f"ds_read_b128 {vr(sf,4)}, v{vSil} offset:{s*32}")
        trreads(a, wf, vA0, vA1, s*2048)
        a("s_waitcnt lgkmcnt(2)")
        mfma(a, vAcc, wf, sf, s == 0)
        a("s_waitcnt lgkmcnt(0)")
        mfma(a, vAcc+16, wf+4, sf, s == 0)
    a(f"""v_and_b32 v{vT0}, 1, v0
v_lshlrev_b32 v{vT0}, 8, v{vT0}
v_lshl_add_u32 v{vT0}, v{vHF}, 5, v{vT0}
s_lshl_b32 s{sOff}, s{S_W}, 9
s_add_u32 s{sOff}, s{sOff}, {L_RED}
v_add_u32 v{vT0}, s{sOff}, v{vT0}
s_mov_b32 exec_lo, 3
s_mov_b32 exec_hi, 3
s_nop 8""")
    for cb in range(2):
        for q, off in enumerate((0, 16, 64, 80)):
            a(f"ds_write_b128 v{vT0}, {vr(vAcc+16*cb+4*q,4)} offset:{cb*128+off}")
    a(f"""s_mov_b64 exec, -1
s_waitcnt lgkmcnt(0)
s_barrier
s_lshr_b32 s{sOff}, s{S_W}, 2
s_lshl_b32 s{sOff}, s{sOff}, 8
s_add_u32 s{sOff}, s{sOff}, {L_RED}
v_lshlrev_b32 v{vT0}, 2, v0
v_add_u32 v{vT1}, s{sOff}, v{vT0}""")
    for w in range(8):
        a(f"ds_read_b32 v{vAcc+w}, v{vT1} offset:{w*512}")
    a("s_waitcnt lgkmcnt(0)")
    for w in range(1, 8):
        a(f"v_add_f32 v{vAcc}, v{vAcc}, v{vAcc+w}")
    round_bf16(a, vAcc)
    lsk = a.label("gsk")
    a(f"""s_and_b32 s{sOff}, s{S_W}, 3
s_cmp_lg_u32 s{sOff}, 0
s_cbranch_scc1 {lsk}
s_lshr_b32 s{T+9}, s{S_W}, 2
s_mul_i32 s{sOff}, s{T+9}, 4608
s_lshl_b32 s{sColA}, s{sO}, 8
s_add_u32 s{sOff}, s{sOff}, s{sColA}
s_add_u32 s{sOff}, s{sOff}, {WS_GATE}
buffer_store_dword v{vAcc}, v{vT0}, {WS}, s{sOff} offen sc1
{lsk}:
s_lshl_b32 s{sOff}, s{sO}, 7
s_add_u32 s{sOff}, s{sOff}, {F_G}""")
    set_flag(a, f"s{sOff}")
    stamp(a, 7)
    a("s_branch L_fin")
    lp = a.label("ep"); ld = a.label("epd")
    a(f"""L_o_upd:
s_cmp_lg_u32 s2, 39
s_cbranch_scc1 L_fin
s_lshl_b32 s{sOff}, s{S_W}, 6
v_add_u32 v{vT0}, s{sOff}, v0
v_min_u32 v{vT0}, 215, v{vT0}
v_lshlrev_b32 v{vT0}, 7, v{vT0}
s_mov_b32 s{sOff}, {F_QKV}
{lp}:
s_sleep 16
buffer_load_dword v{vT1}, v{vT0}, {WS}, s{sOff} offen sc1
s_waitcnt vmcnt(0)
v_cmp_ne_u32 vcc, s{S_TAG}, v{vT1}
s_cbranch_vccz {ld}
s_sub_u32 s{S_TO}, s{S_TO}, 1
s_cmp_lg_u32 s{S_TO}, 0
s_cbranch_scc1 {lp}
{ld}:
s_mov_b32 s{sOff}, {EPOCH}""")
    set_flag(a, f"s{sOff}")
    a("s_branch L_fin")

def epilogue(a):
    if STAMP and 'probe' in OPT:
        i = int(OPT['probe']); lo, hi = [int(x) for x in OPT.get('prole', '0:256').split(':')]
        a(f"""s_waitcnt vmcnt(0) lgkmcnt(0)
s_cmp_lg_u32 s{S_W}, {OPT.get('stw', 0)}
s_cbranch_scc1 L_end
s_memrealtime s[{S_ST+30}:{S_ST+31}]
s_waitcnt lgkmcnt(0)
s_sub_u32 s{T}, s{S_ST+2*i}, s{S_ST}
s_cmp_eq_u32 s{S_ST+2*i}, 0
s_cselect_b32 s{T}, 0, s{T}
s_cmp_lt_u32 s2, {lo}
s_cselect_b32 s{T}, 0, s{T}
s_cmp_ge_u32 s2, {hi}
s_cselect_b32 s{T}, 0, s{T}
s_lshl_b32 s{T}, s{T}, 2
s_add_u32 s{T}, s{T}, 5000
L_spin:
s_memrealtime s[{T+2}:{T+3}]
s_waitcnt lgkmcnt(0)
s_sub_u32 s{T+2}, s{T+2}, s{S_ST}
s_cmp_lt_u32 s{T+2}, s{T}
s_cbranch_scc1 L_spin""")
    elif STAMP:
        a(f"""s_waitcnt vmcnt(0) lgkmcnt(0)
s_cmp_lg_u32 s{S_W}, {OPT.get('stw', 0)}
s_cbranch_scc1 L_end
{CLK} s[{S_ST+30}:{S_ST+31}]
s_memtime s[98:99]
s_waitcnt lgkmcnt(0)
s_sub_u32 s98, s98, s96""")
        for i in range(16):
            a(f"v_mov_b32 v{16+i}, s{S_ST+2*i}")
        a(f"""v_mov_b32 v32, s98
s_lshl_b32 s{T}, s2, 7
s_add_u32 s{T}, s{T}, {WS_STAMP}
v_mov_b32 v1, 0
s_mov_b64 exec, 1""")
        for i in range(4):
            a(f"buffer_store_dwordx4 v[{16+4*i}:{19+4*i}], v1, {WS}, s{T} offen offset:{16*i}")
        a(f"buffer_store_dword v32, v1, {WS}, s{T} offen offset:64")
    a("L_end:\ns_endpgm")

def main():
    a = Asm()
    a.raw("; @launch grid=(256,1,1) block=(512,1,1) lds=163840")
    a.raw('.amdgcn_target "amdgcn-amd-amdhsa--gfx950"\n.text')
    prologue(a)
    phase_bc(a)
    phase_d(a)
    epilogue(a)
    a("L_owner:")
    phase_owner(a)
    out = a.text() + kd(NAME, 244, 102)
    path = [x for x in sys.argv[1:] if not x.startswith('--')][0]
    open(path, 'w').write(out)
main()
```

```python
import sys, struct
from asmlib import *

OPT = dict(la='12', nt='')
for a_ in sys.argv[1:]:
    if a_.startswith('--'):
        k, _, v = a_[2:].partition('=')
        OPT[k] = v
STAMP = 'stamp' in OPT
NT = OPT['nt']
CLK = "s_memtime" if 'cyc' in OPT else "s_memrealtime"

NAME = "standalone__dit_adaln_block__diffusion_kernel"
D = 1152
SZ_X = 512*D*2; SZ_C = 2*D*2; SZ_WQKV = D*3*D*2; SZ_WO = D*D*2; SZ_WMOD = D*6*D*2
SZ_WS = 1 << 28
F_STAT = 0x0
F_H = 0x2000
F_L = 0x4000
F_U = F_L + 64*128
F_G = F_U + 144*128
F_QKV = 0xC000
EPOCH = 0x13000
WS_GATE = 0x14000
WS_H = 0x20000
WS_QKV = 0x140000
WS_L = 0x680000
WS_U = 0x550000
WS_PART = 0x4A0000
WS_STAMP = 0x700000
LOG2E = 0x3fb8aa3b

S_W, S_TAG, S_G, S_SLOT, S_TO, S_TK = 3, 4, 5, 6, 7, 8
S_X, S_C, S_WQKV, S_WO, S_WMOD, S_OUT, S_DBG, S_WS = 16, 18, 20, 22, 24, 26, 28, 30
R_A, R_B, R_C, R_WS = 32, 36, 40, 44
T = 48
S_ST = 64
WS = f"s[{R_WS}:{R_WS+3}]"
RA = f"s[{R_A}:{R_A+3}]"; RB = f"s[{R_B}:{R_B+3}]"; RC = f"s[{R_C}:{R_C+3}]"
vL16, vP16, vB0, vB1, vCH, vR8, vHF, vTok = 1, 2, 3, 4, 5, 6, 7, 8
vT0, vT1, vT2, vT3 = 9, 10, 11, 12
vTAG = 13
V0 = 16

L_MISC = 147456
L_SIL = L_MISC
L_RED = L_SIL + 4608
L_FIN = L_RED + 4096
L_ROLE = L_FIN + 4096
L_STC = L_ROLE + 16
NO = 5

def srd(a, r, ptr, size):
    a(f"""s_mov_b32 s{r}, s{ptr}
s_and_b32 s{r+1}, s{ptr+1}, 0xffff
s_mov_b32 s{r+2}, {hex(size)}
s_mov_b32 s{r+3}, 0x20000""")

def stamp(a, i):
    if STAMP:
        a(f"{CLK} s[{S_ST+2*i}:{S_ST+2*i+1}]")

def unpack(a, lo, hi, src):
    a(f"v_lshlrev_b32 v{lo}, 16, v{src}\nv_and_b32 v{hi}, 0xffff0000, v{src}")

def round_bf16(a, v):
    a(f"v_cvt_pk_bf16_f32 v{v}, v{v}, v{v}\nv_lshlrev_b32 v{v}, 16, v{v}")

def mfma(a, acc, A, B, first=False):
    c = "0" if first else vr(acc, 16)
    a(f"v_mfma_f32_32x32x16_bf16 {vr(acc,16)}, {vr(A,4)}, {vr(B,4)}, {c}")

def wrap_add(a, s, step, s_end, s_start):
    a(f"""s_add_u32 s{s}, s{s}, {step}
s_cmp_eq_u32 s{s}, s{s_end}
s_cselect_b32 s{s}, s{s_start}, s{s}""")

def mod9(a, dst, src, tmp):
    a(f"""s_mul_i32 s{tmp}, s{src}, 57
s_lshr_b32 s{tmp}, s{tmp}, 9
s_mul_i32 s{tmp}, s{tmp}, 9
s_sub_u32 s{dst}, s{src}, s{tmp}""")

def poll(a, vaddr, soff, vtmp):
    l = a.label("poll"); d = a.label("polld")
    a(f"""s_cmp_lg_u32 s{S_W}, 0
s_cbranch_scc1 {d}
{l}:
buffer_load_dword v{vtmp}, v{vaddr}, {WS}, {soff} offen sc1
s_waitcnt vmcnt(0)
v_cmp_ne_u32 vcc, s{S_TAG}, v{vtmp}
s_cbranch_vccz {d}
s_sleep {OPT.get('sleep', 2)}
s_sub_u32 s{S_TO}, s{S_TO}, 1
s_cmp_lg_u32 s{S_TO}, 0
s_cbranch_scc1 {l}
s_mov_b32 s{S_TO}, 1
{d}:
s_barrier""")

def gpoll(a, loads, tagregs):
    l = a.label("gp"); d = a.label("gpd")
    a(f"{l}:")
    loads()
    a(f"s_waitcnt vmcnt(0)\nv_cmp_ne_u32 vcc, s{S_TAG}, v{tagregs[0]}")
    for r in tagregs[1:]:
        a(f"v_cmp_ne_u32 s[{T+14}:{T+15}], s{S_TAG}, v{r}\ns_or_b64 vcc, vcc, s[{T+14}:{T+15}]")
    a(f"""s_cbranch_vccz {d}
s_sleep {OPT.get('gsleep', 2)}
s_sub_u32 s{S_TO}, s{S_TO}, 1
s_cmp_lg_u32 s{S_TO}, 0
s_cbranch_scc1 {l}
s_mov_b32 s{S_TO}, 1
{d}:""")

def raw_flag(a, soff):
    a(f"""v_mov_b32 v{vT3}, 0
s_mov_b64 exec, 1
buffer_store_dword v{vTAG}, v{vT3}, {WS}, {soff} offen sc1
s_mov_b64 exec, -1""")

def set_flag(a, soff, younger=0):
    d = a.label("fl")
    a(f"""s_waitcnt vmcnt({younger})
s_barrier
s_cmp_lg_u32 s{S_W}, 0
s_cbranch_scc1 {d}""")
    raw_flag(a, soff)
    a(f"{d}:")

def trreads(a, wf, b0, b1, off):
    a(f"""ds_read_b64_tr_b16 {vr(wf,2)}, v{b0} offset:{off}
ds_read_b64_tr_b16 {vr(wf+2,2)}, v{b0} offset:{off+512}
ds_read_b64_tr_b16 {vr(wf+4,2)}, v{b1} offset:{off}
ds_read_b64_tr_b16 {vr(wf+6,2)}, v{b1} offset:{off+512}""")

def dma_tile(a, srdname, vD, pitch, s_rot, flags, n0=0, n1=18):
    sN, sO = T+10, T+11
    if s_rot is None:
        a(f"s_add_u32 s{sN}, s{S_W}, {8*n0}")
    else:
        a(f"s_lshl_b32 s{sN}, s{s_rot}, 3\ns_add_u32 s{sN}, s{sN}, s{S_W}")
    for n in range(n0, n1):
        a(f"""s_lshl_b32 m0, s{sN}, 10
s_mul_i32 s{sO}, s{sN}, {8*pitch}
buffer_load_dwordx4 v{vD}, {srdname}, s{sO} offen {flags} lds""")
        if n < n1-1:
            a(f"s_add_u32 s{sN}, s{sN}, 8")
            if s_rot is not None:
                a(f"""s_sub_u32 s{sO}, s{sN}, 144
s_cmp_ge_u32 s{sN}, 144
s_cselect_b32 s{sN}, s{sO}, s{sN}""")

def wave_sum(a, v, sdst):
    for m in ("quad_perm:[1,0,3,2]", "quad_perm:[2,3,0,1]", "row_half_mirror", "row_mirror"):
        a(f"s_nop 1\nv_add_f32_dpp v{v}, v{v}, v{v} {m} row_mask:0xf bank_mask:0xf")
    a(f"s_nop 1\nv_add_f32_dpp v{v}, v{v}, v{v} row_bcast:15 row_mask:0xa bank_mask:0xf")
    a(f"s_nop 1\nv_add_f32_dpp v{v}, v{v}, v{v} row_bcast:31 row_mask:0xc bank_mask:0xf")
    a(f"s_nop 1\nv_readlane_b32 s{sdst}, v{v}, 63\ns_nop 1")

def silu8(a, f, t):
    for i in range(8):
        a(f"v_mul_f32 v{t+i}, 0xbfb8aa3b, v{f+i}")
    for i in range(8):
        a(f"v_exp_f32 v{t+i}, v{t+i}")
    for i in range(8):
        a(f"v_add_f32 v{t+i}, 1.0, v{t+i}")
    for i in range(8):
        a(f"v_rcp_f32 v{t+i}, v{t+i}")
    for i in range(8):
        a(f"v_mul_f32 v{f+i}, v{f+i}, v{t+i}")

def lane_consts(a):
    a(f"""v_lshrrev_b32 v{vR8}, 3, v0
v_and_b32 v{vP16}, 0x33, v0
v_and_b32 v{vT0}, 4, v0
v_lshl_or_b32 v{vP16}, v{vT0}, 1, v{vP16}
v_and_b32 v{vT0}, 8, v0
v_lshrrev_b32 v{vT0}, 1, v{vT0}
v_or_b32 v{vP16}, v{vP16}, v{vT0}
v_lshlrev_b32 v{vP16}, 4, v{vP16}
v_lshrrev_b32 v{vT0}, 2, v0
v_and_b32 v{vT0}, 4, v{vT0}
v_and_b32 v{vCH}, 7, v0
v_xor_b32 v{vCH}, v{vCH}, v{vT0}
v_lshlrev_b32 v{vB0}, 10, v{vHF}
v_and_b32 v{vT0}, 12, v0
v_lshl_or_b32 v{vB0}, v{vT0}, 5, v{vB0}
v_and_b32 v{vT0}, 8, v0
v_lshl_or_b32 v{vB0}, v{vT0}, 3, v{vB0}
v_and_b32 v{vT0}, 16, v0
v_lshl_or_b32 v{vB0}, v{vT0}, 1, v{vB0}
v_and_b32 v{vT0}, 1, v0
v_lshl_or_b32 v{vB0}, v{vT0}, 4, v{vB0}
v_and_b32 v{vT0}, 2, v0
v_lshl_or_b32 v{vB0}, v{vT0}, 2, v{vB0}
v_xor_b32 v{vB1}, 64, v{vB0}""")

def get_tag(a):
    a(f"""s_waitcnt lgkmcnt(0)
s_mul_i32 s{S_TAG}, s{S_TAG}, 1664525
s_add_u32 s{S_TAG}, s{S_TAG}, 1013904223
v_mov_b32 v{vTAG}, s{S_TAG}""")

def wpoll(a, vaddr, soff, vtmp):
    gpoll(a, lambda: a(f"buffer_load_dword v{vtmp}, v{vaddr}, {WS}, {soff} offen sc1"), [vtmp])

S_BCT, S_BRT = 11, 12
vDW = 15
def b_setup(a):
    srd(a, R_B, S_WQKV, SZ_WQKV)
    a(f"""s_mul_i32 s{S_BCT}, s{S_G}, 27
s_add_u32 s{S_BCT}, s{S_BCT}, s{S_SLOT}
s_sub_u32 s{S_BCT}, s{S_BCT}, {NO}
s_and_b32 s{S_BRT}, s{S_BCT}, 3
s_lshr_b32 s{S_BCT}, s{S_BCT}, 2
s_mul_i32 s13, s{S_BRT}, 36
s_add_u32 s13, s13, s{S_W}
v_lshlrev_b32 v{vDW}, 4, v{vCH}
v_mul_u32_u24 v{vT0}, 6912, v{vR8}
s_lshl_b32 s{T+14}, s{S_BCT}, 7
v_add3_u32 v{vDW}, v{vDW}, v{vT0}, s{T+14}""")

def w_dma(a, n):
    for i in range(n):
        a(f"""s_lshl_b32 m0, s13, 10
s_mul_i32 s{T+14}, s13, {8*6912}
buffer_load_dwordx4 v{vDW}, {RB}, s{T+14} offen lds
s_add_u32 s13, s13, 8
s_sub_u32 s{T+14}, s13, 144
s_cmp_ge_u32 s13, 144
s_cselect_b32 s13, s{T+14}, s13""")

EW = int(OPT.get('ew', 0))
def prologue(a):
    a.raw(f".globl {NAME}\n.p2align 8\n.type {NAME},@function\n{NAME}:")
    a(f"""s_cmp_ge_u32 s2, 256
s_cbranch_scc1 L_end
s_load_dwordx16 s[16:31], s[0:1], 0""")
    if STAMP:
        a(f"{CLK} s[{S_ST}:{S_ST+1}]\ns_memtime s[96:97]")
        for i in range(1, 16):
            a(f"s_mov_b32 s{S_ST+2*i}, 0")
    a(f"""v_lshrrev_b32 v1, 6, v0
v_and_b32 v0, 63, v0
s_and_b32 s{S_G}, s2, 7
v_readfirstlane_b32 s{S_W}, v1
s_lshr_b32 s{S_SLOT}, s2, 3
s_mov_b32 s{S_TO}, 0x40000
v_lshlrev_b32 v{vL16}, 4, v0
v_lshrrev_b32 v{vHF}, 5, v0
v_and_b32 v{vTok}, 31, v0
s_cmp_lt_u32 s2, 64
s_cbranch_scc1 L_s0_stats
s_cmp_lt_u32 s2, 94
s_cbranch_scc1 L_s0_none""")
    sP, sCg, sKs, sOff, sRow = T, T+1, T+2, T+3, T+4
    vW = 16
    vC = 32
    vSc = 36
    vTm = 44
    vAc = 52
    a(f"""s_sub_u32 s{sP}, s2, 94
s_mul_i32 s{sKs}, s{sP}, 57
s_lshr_b32 s{sKs}, s{sKs}, 9
s_mul_i32 s{sCg}, s{sKs}, 9
s_sub_u32 s{sCg}, s{sP}, s{sCg}
s_lshl_b32 s{sRow}, s{sKs}, 3
s_add_u32 s{sRow}, s{sRow}, s{S_W}
s_lshl_b32 s{sRow}, s{sRow}, 3
v_and_b32 v{vT0}, 15, v0
v_lshlrev_b32 v{vT0}, 4, v{vT0}
v_bfe_u32 v{vT1}, v0, 4, 1
v_mul_u32_u24 v{vT1}, 2304, v{vT1}
v_mul_u32_u24 v{vT2}, {4*13824}, v{vHF}
v_add3_u32 v{vT0}, v{vT0}, v{vT1}, v{vT2}
v_lshlrev_b32 v{vT1}, 3, v{vHF}
s_lshl_b32 s{T+5}, s{sRow}, 1
s_mul_i32 s{sOff}, s{sRow}, 13824
s_lshl_b32 s{sRow}, s{sCg}, 8
s_add_u32 s{sOff}, s{sOff}, s{sRow}
s_waitcnt lgkmcnt(0)""")
    srd(a, R_A, S_WMOD, SZ_WMOD)
    srd(a, R_C, S_C, SZ_C)
    a(f"""buffer_load_dwordx2 {vr(vC,2)}, v{vT1}, {RC}, s{T+5} offen
buffer_load_dwordx2 {vr(vC+2,2)}, v{vT1}, {RC}, s{T+5} offen offset:2304""")
    for n in range(4):
        a(f"buffer_load_dwordx4 {vr(vW+4*n,4)}, v{vT0}, {RA}, s{sOff} offen")
        if n < 3:
            a(f"s_add_u32 s{sOff}, s{sOff}, 13824")
    a(f"s_load_dword s{S_TAG}, s[{S_WS}:{S_WS+1}], {EPOCH}")
    srd(a, R_WS, S_WS, SZ_WS)
    lane_consts(a)
    b_setup(a)
    if EW:
        a("s_barrier")
        w_dma(a, EW)
    a(f"s_waitcnt vmcnt({4+EW})")
    for i in range(4):
        unpack(a, vSc+2*i, vSc+2*i+1, vC+i)
    silu8(a, vSc, vTm)
    for i in range(4):
        a(f"v_cvt_pk_bf16_f32 v{vC+i}, v{vSc+2*i}, v{vSc+2*i+1}")
    for i in range(4):
        unpack(a, vSc+2*i, vSc+2*i+1, vC+i)
    a(f"""s_lshl_b32 s{sOff}, s{S_W}, 11
s_add_u32 s{sOff}, s{sOff}, {L_MISC}
v_lshlrev_b32 v{vT2}, 5, v0
v_add_u32 v{vT2}, s{sOff}, v{vT2}
s_lshr_b32 s{sOff}, s{S_W}, 1
s_lshl_b32 s{sOff}, s{sOff}, 10
s_and_b32 s{sRow}, s{S_W}, 1
s_lshl_b32 s{sP}, s{sRow}, 8
s_add_u32 s{sOff}, s{sOff}, s{sP}
s_add_u32 s{sOff}, s{sOff}, {L_MISC}
v_lshlrev_b32 v{vT3}, 3, v{vTok}
v_lshl_add_u32 v{vT3}, v{vHF}, 9, v{vT3}
v_add_u32 v{vT3}, s{sOff}, v{vT3}
s_lshl_b32 s{sP}, s{sCg}, 1
s_add_u32 s{sP}, s{sP}, s{sRow}
s_lshl_b32 s{sP}, s{sP}, 1
s_lshr_b32 s{sOff}, s{S_W}, 1
s_add_u32 s{sP}, s{sP}, s{sOff}
s_mul_i32 s{sP}, s{sP}, 18
s_add_u32 s{sP}, s{sP}, s{sKs}
s_lshl_b32 s{sP}, s{sP}, 10
s_add_u32 s{sP}, s{sP}, {WS_PART}""")
    get_tag(a)
    for n in range(4):
        a(f"s_waitcnt vmcnt({3-n+EW})")
        if n == 3: stamp(a, 8)
        for i in range(4):
            unpack(a, vTm+2*i, vTm+2*i+1, vW+4*n+i)
        for b in range(2):
            for j in range(8):
                op = "v_mul_f32" if n == 0 else "v_fmac_f32"
                a(f"{op} v{vAc+8*b+j}, v{vTm+j}, v{vSc+4*b+n}")
    a("s_nop 1")
    for j in range(8):
        a(f"v_permlane32_swap_b32 v{vAc+j}, v{vAc+8+j}")
    for j in range(8):
        a(f"v_add_f32 v{vAc+j}, v{vAc+j}, v{vAc+8+j}")
    lsk = a.label("pubsk")
    a(f"""ds_write_b128 v{vT2}, {vr(vAc,4)}
ds_write_b128 v{vT2}, {vr(vAc+4,4)} offset:16
s_waitcnt lgkmcnt(0)
s_barrier
s_cmp_ge_u32 s{S_W}, 4
s_cbranch_scc1 {lsk}""")
    for w in range(8):
        a(f"ds_read_b64 {vr(vW+2*w,2)}, v{vT3} offset:{w*2048}")
    a(f"""v_mov_b32 v{vAc+1}, v{vTAG}
v_mov_b32 v{vAc+3}, v{vTAG}
s_waitcnt lgkmcnt(4)
v_add_f32 v{vW}, v{vW}, v{vW+2}
v_add_f32 v{vW+1}, v{vW+1}, v{vW+3}
v_add_f32 v{vW+4}, v{vW+4}, v{vW+6}
v_add_f32 v{vW+5}, v{vW+5}, v{vW+7}
s_waitcnt lgkmcnt(0)
v_add_f32 v{vW+8}, v{vW+8}, v{vW+10}
v_add_f32 v{vW+9}, v{vW+9}, v{vW+11}
v_add_f32 v{vW+12}, v{vW+12}, v{vW+14}
v_add_f32 v{vW+13}, v{vW+13}, v{vW+15}
v_add_f32 v{vW}, v{vW}, v{vW+4}
v_add_f32 v{vW+1}, v{vW+1}, v{vW+5}
v_add_f32 v{vW+8}, v{vW+8}, v{vW+12}
v_add_f32 v{vW+9}, v{vW+9}, v{vW+13}
v_add_f32 v{vAc}, v{vW}, v{vW+8}
v_add_f32 v{vAc+2}, v{vW+1}, v{vW+9}
buffer_store_dwordx4 {vr(vAc,4)}, v{vL16}, {WS}, s{sP} offen sc1
{lsk}:""")
    stamp(a, 9)
    if 'nopb' not in OPT:
        a("s_barrier")
    w_dma(a, 18-EW)
    a("s_branch L_b")
    a("L_s0_stats:")
    vRW = 16
    a(f"""s_lshl_b32 s{sOff}, s2, 3
s_add_u32 s{sOff}, s{sOff}, s{S_W}
s_mul_i32 s{sOff}, s{sOff}, 2304
v_mov_b32 v{vRW+8}, 0
v_mov_b32 v{vRW+9}, 0
v_mov_b32 v{vRW+10}, 0
v_mov_b32 v{vRW+11}, 0
s_waitcnt lgkmcnt(0)""")
    srd(a, R_C, S_X, SZ_X)
    a(f"""buffer_load_dwordx4 {vr(vRW,4)}, v{vL16}, {RC}, s{sOff} offen
buffer_load_dwordx4 {vr(vRW+4,4)}, v{vL16}, {RC}, s{sOff} offen offset:1024
s_mov_b64 exec, 0xffff
buffer_load_dwordx4 {vr(vRW+8,4)}, v{vL16}, {RC}, s{sOff} offen offset:2048
s_mov_b64 exec, -1
s_load_dword s{S_TAG}, s[{S_WS}:{S_WS+1}], {EPOCH}""")
    srd(a, R_WS, S_WS, SZ_WS)
    lane_consts(a)
    a(f"""s_barrier
s_min_u32 s{T+12}, s2, 35
s_and_b32 s{T+13}, s{T+12}, 1
s_lshr_b32 s{T+12}, s{T+12}, 1
s_lshl_b32 s{T+13}, s{T+13}, 3
s_add_u32 s{T+13}, s{T+13}, s{S_W}
v_mul_u32_u24 v{vT0}, 2304, v{vR8}
v_and_b32 v{vT1}, 7, v0
v_lshl_add_u32 v{vT0}, v{vT1}, 4, v{vT0}
s_mul_i32 s{T+13}, s{T+13}, {32*2304}
s_lshl_b32 s{T+12}, s{T+12}, 7
s_add_u32 s{T+13}, s{T+13}, s{T+12}
s_lshl_b32 m0, s{S_W}, 12""")
    lnx = a.label("nox"); ljx = a.label("jx")
    a(f"s_cmp_ge_u32 s2, 36\ns_cbranch_scc1 {lnx}")
    for q in range(4):
        a(f"buffer_load_dwordx4 v{vT0}, {RC}, s{T+13} offen lds")
        if q < 3:
            a(f"s_add_u32 s{T+13}, s{T+13}, {8*2304}\ns_add_u32 m0, m0, 1024\ns_nop 0")
    get_tag(a)
    a(f"s_waitcnt vmcnt(4)\ns_branch {ljx}\n{lnx}:")
    get_tag(a)
    a(f"s_waitcnt vmcnt(0)\n{ljx}:")
    stamp(a, 8)
    s1, s2_, q1, q2 = 32, 33, 34, 35
    a(f"s_mov_b32 s{T+12}, 0x3f803f80")
    for i in range(0, 12, 2):
        c = lambda r: "0" if i == 0 else f"v{r}"
        a(f"""v_dot2_f32_bf16 v{s1}, v{vRW+i}, s{T+12}, {c(s1)}
v_dot2_f32_bf16 v{q1}, v{vRW+i}, v{vRW+i}, {c(q1)}
v_dot2_f32_bf16 v{s2_}, v{vRW+i+1}, s{T+12}, {c(s2_)}
v_dot2_f32_bf16 v{q2}, v{vRW+i+1}, v{vRW+i+1}, {c(q2)}""")
    a(f"""s_nop 2
v_add_f32 v{s1}, v{s1}, v{s2_}
v_add_f32 v{q1}, v{q1}, v{q2}""")
    for m in ("quad_perm:[1,0,3,2] row_mask:0xf", "quad_perm:[2,3,0,1] row_mask:0xf", "row_half_mirror row_mask:0xf", "row_mirror row_mask:0xf", "row_bcast:15 row_mask:0xa", "row_bcast:31 row_mask:0xc"):
        a(f"s_nop 0\nv_add_f32_dpp v{s1}, v{s1}, v{s1} {m} bank_mask:0xf\nv_add_f32_dpp v{q1}, v{q1}, v{q1} {m} bank_mask:0xf")
    g = 36
    a(f"""v_mul_f32 v{g}, 0x3a638e39, v{s1}
v_mul_f32 v{g+2}, 0x3a638e39, v{q1}
v_fma_f32 v{g+2}, -v{g}, v{g}, v{g+2}
v_max_f32 v{g+2}, 0, v{g+2}""")
    round_bf16(a, g+2)
    a(f"v_add_f32 v{g+2}, 0x3727c5ac, v{g+2}")
    round_bf16(a, g+2)
    a(f"v_sqrt_f32 v{g+2}, v{g+2}")
    round_bf16(a, g)
    round_bf16(a, g+2)
    lsk = a.label("stsk")
    a(f"""v_rcp_f32 v{g+2}, v{g+2}
v_mov_b32 v{g+1}, v{vTAG}
v_mov_b32 v{g+3}, v{vTAG}
s_lshl_b32 s{T+12}, s{S_W}, 4
s_add_u32 s{T+12}, s{T+12}, {L_STC}
v_mov_b32 v{vT0}, s{T+12}
s_mov_b32 exec_lo, 0
s_brev_b32 exec_hi, 1
ds_write_b128 v{vT0}, {vr(g,4)}
s_mov_b64 exec, -1
s_lshl_b32 s{T+12}, s2, 7
s_add_u32 s{T+12}, s{T+12}, {F_STAT}
v_add_u32 v{vT0}, {L_STC}, v{vL16}
s_waitcnt lgkmcnt(0)
s_barrier
s_cmp_lg_u32 s{S_W}, 0
s_cbranch_scc1 {lsk}
s_mov_b64 exec, 0xff
ds_read_b128 {vr(g,4)}, v{vT0}
s_waitcnt lgkmcnt(0)
buffer_store_dwordx4 {vr(g,4)}, v{vL16}, {WS}, s{T+12} offen sc1
s_mov_b64 exec, -1
{lsk}:""")
    stamp(a, 9)
    a(f"s_cmp_lt_u32 s{S_SLOT}, {NO}\ns_cbranch_scc1 L_owner")
    if 'nopb' not in OPT:
        a("s_barrier")
    a("s_branch L_s0_w")
    a("L_s0_none:")
    if 'cpf' in OPT:
        a(f"""s_getpc_b64 s[{T}:{T+1}]
L_pc:
s_sub_u32 s{T}, s{T}, L_pc-{NAME}
s_subb_u32 s{T+1}, s{T+1}, 0
s_lshl_b32 s{T+2}, s{S_W}, 10
v_add_u32 v{vT0}, s{T+2}, v{vL16}""")
        for n in range(3):
            a(f"global_load_dwordx4 v[{100+4*n}:{103+4*n}], v{vT0}, s[{T}:{T+1}]\nv_add_u32 v{vT0}, 0x2000, v{vT0}\nv_min_u32 v{vT0}, L_codeend-{NAME}-16, v{vT0}")
    a(f"s_waitcnt lgkmcnt(0)\ns_load_dword s{S_TAG}, s[{S_WS}:{S_WS+1}], {EPOCH}")
    srd(a, R_WS, S_WS, SZ_WS)
    lane_consts(a)
    get_tag(a)
    a("L_s0_w:")
    b_setup(a)
    w_dma(a, 18)

VOX = 96

S_UCT, S_UTB = 9, 10
vDU = 14
KE = int(OPT.get('ke', 12))
def wo_dma(a, n0, n1):
    a(f"s_add_u32 s{T+10}, s{S_W}, {4*n0-4}")
    for n in range(n0, n1):
        a(f"""s_lshl_b32 m0, s{T+10}, 10
s_mul_i32 s{T+11}, s{T+10}, {8*2304}
buffer_load_dwordx4 v{vDU}, {RB}, s{T+11} offen lds""")
        if n < n1-1:
            a(f"s_add_u32 s{T+10}, s{T+10}, 4")

def gemm_loop(a, nsteps, LA, RING, vAcc, vWF, vH, vA0, vA1, vaddr, sH, lds_first, w_is_a, pre=None, rot=None, bar_at=None):
    WA = 2
    state = dict(issued=0)
    if rot:
        sR, sHs, sHe, sLo, sZ, sLe, vC0, vC1 = rot
        a(f"""s_mov_b32 s{sHs}, s{sH}
s_add_u32 s{sHe}, s{sH}, {nsteps*1024}
s_lshl_b32 s{sLo}, s{sR}, 12
s_add_u32 s{sH}, s{sH}, s{sLo}
s_lshl_b32 s{sLo}, s{sR}, 13
s_mov_b32 s{sZ}, 0
s_mov_b32 s{sLe}, {nsteps*2048}""")
    def hload():
        s = state['issued']
        a(f"buffer_load_dwordx4 {vr(vH+4*(s % RING),4)}, v{vaddr}, {WS}, s{sH} offen offset:{(s&3)*1024} sc1")
        if (s & 3) == 3 and s < nsteps-1:
            if rot: wrap_add(a, sH, 4096, sHe, sHs)
            else: a(f"s_add_u32 s{sH}, s{sH}, 4096")
        state['issued'] += 1
    def wread(s):
        if rot:
            if (s & 3) == 0:
                a(f"v_add_u32 v{vC0}, s{sLo}, v{vA0}\nv_add_u32 v{vC1}, s{sLo}, v{vA1}")
                wrap_add(a, sLo, 8192, sLe, sZ)
            trreads(a, vWF + 8*(s & 3), vC0, vC1, (s & 3)*2048)
            return
        if s and (s & 31) == 0:
            a(f"v_add_u32 v{vA0}, 0x10000, v{vA0}\nv_add_u32 v{vA1}, 0x10000, v{vA1}")
        trreads(a, vWF + 8*(s & 3), vA0, vA1, (s & 31)*2048)
    if lds_first:
        for s in range(WA): wread(s)
    for s in range(LA): hload()
    if pre: pre()
    if not lds_first:
        for s in range(WA): wread(s)
    for s in range(nsteps):
        lg = 4*min(WA-1, nsteps-1 - s)
        a(f"s_waitcnt vmcnt({state['issued'] - s - 1}) lgkmcnt({lg})")
        if s == 0 and lds_first: stamp(a, 4)
        h = vH+4*(s % RING); w0 = vWF+8*(s & 3)
        mfma(a, vAcc, *((w0, h) if w_is_a else (h, w0)), s == 0)
        if s + WA < nsteps:
            wread(s + WA)
        mfma(a, vAcc+16, *((w0+4, h) if w_is_a else (h, w0+4)), s == 0)
        if state['issued'] < nsteps:
            hload()
        if bar_at is not None and s == bar_at:
            a("s_barrier")

SZ = int(OPT['sz']) if 'sz' in OPT else None
UM = int(OPT.get('umap', 2)); UML = UM.bit_length()-1
def phase_bc(a):
    sTb, sOff, sH, sF = T+1, T+4, T+5, T+6
    vA0, vA1 = V0+1, V0+2
    vAcc = 20
    vWF = 52
    vH = 84
    a("L_b:")
    stamp(a, 1)
    srd(a, R_B, S_WO, SZ_WO)
    a(f"""s_sub_u32 s{S_SLOT}, s{S_SLOT}, {NO}
s_and_b32 s{T+14}, s{S_G}, {UM-1}
s_mul_i32 s{T+14}, s{T+14}, 18
s_add_u32 s{T+14}, s{T+14}, s{S_SLOT}
s_lshr_b32 s{S_UCT}, s{T+14}, {UML}
s_and_b32 s{T+14}, s{T+14}, {UM-1}
s_lshr_b32 s{S_UTB}, s{S_G}, {UML}
s_lshl_b32 s{S_UTB}, s{S_UTB}, {UML}
s_add_u32 s{S_UTB}, s{S_UTB}, s{T+14}
s_lshl_b32 s{S_UTB}, s{S_UTB}, 1
s_and_b32 s{T+14}, s{S_W}, 1
s_add_u32 s{S_UTB}, s{S_UTB}, s{T+14}
v_lshlrev_b32 v{vDU}, 4, v{vCH}
v_mul_u32_u24 v{vT0}, 2304, v{vR8}
s_lshl_b32 s{T+14}, s{S_UCT}, 7
v_add3_u32 v{vDU}, v{vDU}, v{vT0}, s{T+14}
s_lshl_b32 s{sTb}, s{S_BRT}, 2
s_and_b32 s{sOff}, s{S_W}, 3
s_add_u32 s{sTb}, s{sTb}, s{sOff}
s_mul_i32 s{sH}, s{sTb}, {72*1024}
s_add_u32 s{sH}, s{sH}, {WS_H}
v_mov_b32 v{vA0}, v{vB0}
v_mov_b32 v{vA1}, v{vB1}
v_min_u32 v{vT0}, 17, v0
v_lshlrev_b32 v{vT0}, 7, v{vT0}
s_lshr_b32 s{sOff}, s{S_BRT}, 1
s_mul_i32 s{sOff}, s{sOff}, {18*128}
s_add_u32 s{sOff}, s{sOff}, {F_H}
s_mul_i32 s{sF}, s{S_BRT}, 54
s_add_u32 s{sF}, s{sF}, s{S_BCT}
s_lshl_b32 s{sF}, s{sF}, 7
s_add_u32 s{sF}, s{sF}, {F_QKV}
s_waitcnt vmcnt(0)""")
    a("s_barrier")
    stamp(a, 2)
    a(f"s_cmp_ge_u32 s{S_W}, 4\ns_cbranch_scc1 L_ld")
    HPWG = OPT.get('hp', 'wg') == 'wg'
    if HPWG:
        poll(a, vT0, f"s{sOff}", vT1)
    else:
        wpoll(a, vT0, f"s{sOff}", vT1)
    stamp(a, 3)
    LA = int(OPT['la'])
    gemm_loop(a, 72, LA, LA+4, vAcc, vWF, vH, vA0, vA1, vL16, sH, True, True, bar_at=SZ)
    stamp(a, 5)
    a(f"""s_mul_i32 s{sH}, s{sTb}, {216*1024}
s_lshl_b32 s{sOff}, s{S_BCT}, 12
s_add_u32 s{sH}, s{sH}, s{sOff}
s_add_u32 s{sH}, s{sH}, {WS_QKV}
s_nop 7""")
    for u in range(4):
        if u == 2:
            a("s_nop 1")
        for r in range(4*u, 4*u+4):
            a(f"v_cvt_pk_bf16_f32 v{vWF+r}, v{vAcc+2*r}, v{vAcc+2*r+1}")
        a(f"buffer_store_dwordx4 {vr(vWF+4*u,4)}, v{vL16}, {WS}, s{sH} offen offset:{1024*u} sc1")
    a("s_barrier")
    stamp(a, 6)
    sKh = T+2
    a(f"""s_lshr_b32 s{sKh}, s{S_W}, 1
s_mul_i32 s{sH}, s{S_UTB}, {216*1024}
s_mul_i32 s{sOff}, s{sKh}, {36*1024}
s_add_u32 s{sH}, s{sH}, s{sOff}
s_add_u32 s{sH}, s{sH}, {WS_QKV + 144*1024}
s_mul_i32 s{sOff}, s{sKh}, {576*128}
v_add_u32 v{vA0}, s{sOff}, v{vB0}
v_add_u32 v{vA1}, s{sOff}, v{vB1}
v_min_u32 v{vT0}, 8, v0
v_lshlrev_b32 v{vT0}, 7, v{vT0}
s_lshr_b32 s{T+7}, s{S_UTB}, 2
s_mul_i32 s{T+7}, s{T+7}, {54*128}
s_mul_i32 s{sOff}, s{sKh}, {9*128}
s_add_u32 s{T+7}, s{T+7}, s{sOff}
s_add_u32 s{T+7}, s{T+7}, {F_QKV + 36*128}""")
    set_flag(a, f"s{sF}")
    stamp(a, 7)
    a(f"s_cmp_ge_u32 s{S_SLOT}, 18\ns_cbranch_scc1 L_c_notu")
    UROT = int(OPT.get('urot', 0))
    if UROT:
        a(f"s_mul_i32 s{T+8}, s{S_UCT}, {UROT}")
        mod9(a, T+8, T+8, T+9)
    wpoll(a, vT0, f"s{T+7}", vT1)
    stamp(a, 12)
    LA = int(OPT.get('lau', 12))
    gemm_loop(a, 36, LA, min(36, LA+4), vAcc, vWF, vH, vA0, vA1, vP16, sH, False, False, pre=lambda: (a("s_barrier"), stamp(a, 11)),
              rot=(T+8, T+9, T+10, T+11, T+12, T+13, V0, V0+3) if UROT else None)
    stamp(a, 13)
    lk1 = a.label("kh1"); lj = a.label("j")
    a(f"""s_lshl_b32 s{sOff}, s{S_W}, 12
s_add_u32 s{sOff}, s{sOff}, {L_MISC}
v_add_u32 v{vT0}, s{sOff}, v{vL16}
v_xor_b32 v{vT1}, {2*4096}, v{vT0}
s_lshr_b32 s{sH}, s{S_UTB}, 3
s_mul_i32 s{sF}, s{sH}, 18
s_add_u32 s{sF}, s{sF}, s{S_UCT}
s_lshl_b32 s{sH}, s{sF}, 1
s_add_u32 s{sH}, s{sH}, s{sKh}
s_lshl_b32 s{sH}, s{sH}, 3
s_and_b32 s{sOff}, s{S_UTB}, 7
s_add_u32 s{sH}, s{sH}, s{sOff}
s_lshl_b32 s{sH}, s{sH}, 11
s_add_u32 s{sH}, s{sH}, {WS_U}
s_lshl_b32 s{sF}, s{sF}, 2
s_bfe_u32 s{sOff}, s{S_UTB}, 0x20001
s_add_u32 s{sF}, s{sF}, s{sOff}
s_lshl_b32 s{sF}, s{sF}, 7
s_add_u32 s{sF}, s{sF}, {F_U}
s_cmp_lg_u32 s{sKh}, 0
s_cbranch_scc1 {lk1}""")
    for q in range(4):
        a(f"ds_write_b128 v{vT0}, {vr(vAcc+16+4*q,4)} offset:{q*1024}")
    a(f"s_branch {lj}\n{lk1}:")
    for q in range(4):
        a(f"ds_write_b128 v{vT0}, {vr(vAcc+4*q,4)} offset:{q*1024}")
    for r in range(16):
        a(f"v_mov_b32 v{vAcc+r}, v{vAcc+16+r}")
    a(f"{lj}:\ns_waitcnt lgkmcnt(0)\ns_barrier")
    for q in range(4):
        a(f"ds_read_b128 {vr(vWF+4*q,4)}, v{vT1} offset:{q*1024}")
    for u in range(2):
        a(f"s_waitcnt lgkmcnt({2-2*u})")
        for r in range(8*u, 8*u+8):
            a(f"v_add_f32 v{vAcc+r}, v{vAcc+r}, v{vWF+r}")
        for r in range(4*u, 4*u+4):
            a(f"v_cvt_pk_bf16_f32 v{vWF+16+r}, v{vAcc+2*r}, v{vAcc+2*r+1}")
        a(f"buffer_store_dwordx4 {vr(vWF+16+4*u,4)}, v{vL16}, {WS}, s{sH} offen offset:{1024*u} sc1")
    set_flag(a, f"s{sF}")
    a("s_branch L_c_done")
    lnu = a.label("ldnu")
    vWo = 20
    NE = int(OPT.get('ne', 18))
    a("L_ld:")
    if SZ is not None:
        a("s_barrier")
    a(f"""s_cmp_ge_u32 s{S_SLOT}, 18
s_cbranch_scc1 {lnu}
s_sub_u32 s{T+10}, s{S_W}, 4
s_lshl_b32 s{T+11}, s{T+10}, 10
v_add_u32 v{vT0}, s{T+11}, v{vL16}
s_lshr_b32 s{T+12}, s{S_UTB}, 1
s_and_b32 s{T+12}, s{T+12}, {UM-1}
s_mul_i32 s{T+12}, s{T+12}, {144//UM}
s_add_u32 s{T+10}, s{T+10}, s{T+12}
s_lshl_b32 s{T+12}, s{T+12}, 10""")
    def nxt(n):
        if n < 35:
            a(f"s_add_u32 s{T+10}, s{T+10}, 4")
            if n % 9 == 8:
                a(f"""s_sub_u32 s{T+11}, s{T+10}, 144
s_cmp_ge_u32 s{T+10}, 144
s_cselect_b32 s{T+10}, s{T+11}, s{T+10}""")
    for n in range(NE):
        a(f"""s_mul_i32 s{T+11}, s{T+10}, {8*2304}
buffer_load_dwordx4 {vr(vWo+4*n,4)}, v{vDU}, {RB}, s{T+11} offen""")
        nxt(n)
    stamp(a, 4)
    if HPWG:
        a("s_barrier")
    a("s_barrier")
    stamp(a, 5)
    WS_ = min(NE, int(OPT.get('wsplit', 12)))
    def wr(n):
        if n % 9 == 0:
            a(f"v_add_u32 v{vT1}, s{T+12}, v{vT0}")
            a(f"""s_add_u32 s{T+12}, s{T+12}, {36*1024}
s_cmp_ge_u32 s{T+12}, {144*1024}
s_cselect_b32 s{T+12}, 0, s{T+12}""")
        a(f"s_waitcnt vmcnt({NE-1-n})\nds_write_b128 v{vT1}, {vr(vWo+4*n,4)} offset:{(n % 9)*4096}")
    for n in range(WS_): wr(n)
    a("s_barrier")
    for n in range(WS_, NE): wr(n)
    for n in range(NE, 36):
        a(f"""s_lshl_b32 m0, s{T+10}, 10
s_mul_i32 s{T+11}, s{T+10}, {8*2304}
buffer_load_dwordx4 v{vDU}, {RB}, s{T+11} offen lds""")
        nxt(n)
    a(f"""s_waitcnt vmcnt(0) lgkmcnt(0)""")
    stamp(a, 11)
    a(f"""s_barrier
s_barrier
s_barrier
s_branch L_c_done
{lnu}:
s_barrier
s_barrier""")
    if HPWG:
        a("s_barrier")
    a("L_c_notu:")
    a(f"s_cmp_ge_u32 s{S_SLOT}, 26\ns_cbranch_scc1 L_c_done")
    sQb, sKb, sKq, sJ, sK, sQ, sKt = T, T+1, T+2, T+3, T+5, T+6, T+9
    vS = 56
    RING = 15
    a(f"""s_sub_u32 s{sJ}, s{S_SLOT}, 18
s_and_b32 s{sKq}, s{S_W}, 3
s_and_b32 s{sQb}, s{S_G}, 1
s_lshl_b32 s{sQb}, s{sQb}, 2
s_and_b32 s{sOff}, s{sJ}, 3
s_add_u32 s{sQb}, s{sQb}, s{sOff}
s_and_b32 s{sKt}, s{S_G}, 2
s_lshr_b32 s{sOff}, s{sJ}, 2
s_add_u32 s{sKt}, s{sKt}, s{sOff}
s_lshl_b32 s{sKb}, s{sKt}, 1
s_lshr_b32 s{sOff}, s{S_G}, 2
s_lshl_b32 s{sOff}, s{sOff}, 3
s_add_u32 s{sQb}, s{sQb}, s{sOff}
s_add_u32 s{sKb}, s{sKb}, s{sOff}
s_mul_i32 s{sK}, s{sKb}, {216*1024}
s_mul_i32 s{sQ}, s{sQb}, {216*1024}
s_mul_i32 s{sOff}, s{sKq}, {18*1024}
s_add_u32 s{sK}, s{sK}, s{sOff}
s_add_u32 s{sQ}, s{sQ}, s{sOff}
s_add_u32 s{sK}, s{sK}, {WS_QKV + 72*1024}
s_add_u32 s{sQ}, s{sQ}, {WS_QKV}
v_min_u32 v{vT0}, 17, v{vTok}
v_lshlrev_b32 v{vT0}, 7, v{vT0}
s_lshr_b32 s{sOff}, s{sKb}, 2
s_mul_i32 s{sOff}, s{sOff}, {54*128}
s_add_u32 s{sOff}, s{sOff}, {18*128}
s_lshr_b32 s{T+13}, s{sQb}, 2
s_mul_i32 s{T+13}, s{T+13}, {54*128}
s_sub_u32 s{sOff}, s{sOff}, s{T+13}
v_mul_lo_u32 v{vT1}, v{vHF}, s{sOff}
v_add_u32 v{vT0}, v{vT0}, v{vT1}
v_add_u32 v{vT0}, s{T+13}, v{vT0}
v_add_u32 v{vT2}, {216*1024}, v{vP16}
s_mov_b32 s{sOff}, {F_QKV}""")
    poll(a, vT0, f"s{sOff}", vT1)
    stamp(a, 12)
    lsi = a.label("sidle")
    a(f"s_cmp_ge_u32 s{S_W}, 4\ns_cbranch_scc1 {lsi}")
    LA = int(OPT.get('las', 8))
    assert LA < RING
    SROT = int(OPT.get('srot', 1))
    sKs, sQs, sR = T+7, T+8, T+12
    a(f"""s_mov_b32 s{sKs}, s{sK}
s_mov_b32 s{sQs}, s{sQ}
s_mul_i32 s{sR}, s{sJ}, {2048*SROT}
s_movk_i32 s{T+13}, 0
s_movk_i32 s{T+14}, {18*1024}""")
    def sload(s):
        r = vS + 12*(s % RING)
        if (s & 1) == 0:
            a(f"s_add_u32 s{sK}, s{sKs}, s{sR}\ns_add_u32 s{sQ}, s{sQs}, s{sR}")
            wrap_add(a, sR, 2048, T+14, T+13)
        a(f"""buffer_load_dwordx4 {vr(r,4)}, v{vL16}, {WS}, s{sQ} offen offset:{(s&1)*1024} sc1
buffer_load_dwordx4 {vr(r+4,4)}, v{vP16}, {WS}, s{sK} offen offset:{(s&1)*1024} sc1
buffer_load_dwordx4 {vr(r+8,4)}, v{vT2}, {WS}, s{sK} offen offset:{(s&1)*1024} sc1""")
    for s in range(LA):
        sload(s)
    for s in range(18):
        issued = min(18, s + LA)
        r = vS + 12*(s % RING)
        a(f"s_waitcnt vmcnt({3*(issued - s - 1) + 1})")
        mfma(a, vAcc, r+4, r, s == 0)
        a(f"s_waitcnt vmcnt({3*(issued - s - 1)})")
        mfma(a, vAcc+16, r+8, r, s == 0)
        if s + LA < 18:
            sload(s + LA)
    stamp(a, 13)
    QS, HS, PSZ = 1056, 528, 8448
    a(f"""s_mul_i32 s{sOff}, s{S_W}, {PSZ}
v_lshl_add_u32 v{vT0}, v{vHF}, 4, v{vL16}
v_add_u32 v{vT0}, s{sOff}, v{vT0}
s_nop 8""")
    for q in range(8):
        a(f"ds_write_b128 v{vT0}, {vr(vAcc+4*q,4)} offset:{q*QS}")
    a(f"""{lsi}:
v_bfe_u32 v{vT1}, v0, 2, 2
v_and_b32 v{vT2}, 1, v0
v_lshl_add_u32 v{vT1}, v{vT1}, 1, v{vT2}
v_mul_u32_u24 v{vT1}, {QS}, v{vT1}
v_bfe_u32 v{vT2}, v0, 1, 1
v_mul_u32_u24 v{vT2}, {HS}, v{vT2}
v_lshrrev_b32 v{vT0}, 4, v0
s_lshl_b32 s{sOff}, s{S_W}, 2
v_add_u32 v{vT0}, s{sOff}, v{vT0}
v_lshl_add_u32 v{vT1}, v{vT0}, 4, v{vT1}
v_add_u32 v{vT1}, v{vT1}, v{vT2}
v_and_b32 v{vT2}, 15, v0
v_lshlrev_b32 v{vT2}, 4, v{vT2}
v_lshl_add_u32 v{vT2}, v{vT0}, 10, v{vT2}
s_lshl_b32 s{sJ}, s{sQb}, 15
s_lshl_b32 s{sOff}, s{sKt}, 8
s_add_u32 s{sJ}, s{sJ}, s{sOff}
s_add_u32 s{sJ}, s{sJ}, {WS_L}
v_mov_b32 v53, v{vTAG}
v_mov_b32 v55, v{vTAG}
s_waitcnt lgkmcnt(0)
s_barrier""")
    for j in range(4):
        a(f"ds_read_b128 {vr(vAcc+4*j,4)}, v{vT1} offset:{j*PSZ}")
    a("s_waitcnt lgkmcnt(2)")
    for r in range(4):
        a(f"v_add_f32 v{vAcc+r}, v{vAcc+r}, v{vAcc+4+r}")
    a("s_waitcnt lgkmcnt(0)")
    for r in range(4):
        a(f"v_add_f32 v{vAcc+8+r}, v{vAcc+8+r}, v{vAcc+12+r}")
    for r in range(4):
        a(f"v_add_f32 v{vAcc+r}, v{vAcc+r}, v{vAcc+8+r}")
    sc = struct.unpack('<I', struct.pack('<f', D ** -0.5))[0]
    for r in range(2):
        a(f"v_cvt_pk_bf16_f32 v{52+2*r}, v{vAcc+2*r}, v{vAcc+2*r+1}")
    for r in range(2):
        unpack(a, vAcc+2*r, vAcc+2*r+1, 52+2*r)
    for r in range(4):
        a(f"v_mul_f32 v{vAcc+r}, {hex(sc)}, v{vAcc+r}")
    for r in range(2):
        a(f"v_cvt_pk_bf16_f32 v{52+2*r}, v{vAcc+2*r}, v{vAcc+2*r+1}")
    a(f"buffer_store_dwordx4 v[52:55], v{vT2}, {WS}, s{sJ} offen sc1")
    a("L_c_done:")
    stamp(a, 14)

def phase_d(a):
    sQt, sCt, sCb, sKh, sOff, sXo, sJ, sU, sB, sCol = T, T+1, T+2, T+3, T+4, T+5, T+6, T+7, T+8, T+9
    vXo, vMx, vS, vLa, vPa, vLw = V0, V0+1, V0+2, V0+3, V0+4, V0+5
    vLd = 24
    vX = 40
    vG = 44
    vF = 56
    vR = 72
    vAcc = 80
    vU = 96
    vP = 128
    PS = 1056
    L_P, L_EX = 40960, 65536
    srd(a, R_A, S_X, SZ_X)
    srd(a, R_B, S_OUT, SZ_X)
    a(f"""s_sub_u32 s{sJ}, 26, s{S_SLOT}
s_cmp_ge_u32 s{sJ}, 18
s_cbranch_scc1 L_fin
s_and_b32 s{sOff}, s{S_G}, 3
s_mul_i32 s{sOff}, s{sOff}, 18
s_add_u32 s{sOff}, s{sOff}, s{sJ}
s_lshr_b32 s{sCt}, s{sOff}, 3
s_and_b32 s{sJ}, s{sOff}, 7
s_lshr_b32 s{sB}, s{S_G}, 2
s_lshl_b32 s{sQt}, s{sB}, 3
s_add_u32 s{sQt}, s{sQt}, s{sJ}
s_and_b32 s{sCb}, s{S_W}, 3
s_lshr_b32 s{sKh}, s{S_W}, 2
s_lshl_b32 s{sCol}, s{sCt}, 7
s_lshl_b32 s{sOff}, s{sCb}, 5
s_add_u32 s{sCol}, s{sCol}, s{sOff}
s_lshl_b32 s{sOff}, s{sKh}, 4
s_add_u32 s{sCol}, s{sCol}, s{sOff}
s_mul_i32 s{sXo}, s{sQt}, {32*2304}
s_lshl_b32 s{sOff}, s{sCol}, 1
s_add_u32 s{sXo}, s{sXo}, s{sOff}
v_mul_u32_u24 v{vXo}, 2304, v{vTok}
v_lshl_add_u32 v{vXo}, v{vHF}, 4, v{vXo}
buffer_load_dwordx4 {vr(vX,4)}, v{vXo}, {RA}, s{sXo} offen
s_mul_i32 s{sU}, s{sB}, 36
s_lshl_b32 s{sOff}, s{sCt}, 2
s_add_u32 s{sU}, s{sU}, s{sOff}
s_add_u32 s{sU}, s{sU}, s{sCb}
s_lshr_b32 s{T+10}, s{sU}, 1
s_lshl_b32 s{sU}, s{sU}, 4
s_lshl_b32 s{sOff}, s{sKh}, 3
s_add_u32 s{sU}, s{sU}, s{sOff}
s_lshl_b32 s{sU}, s{sU}, 10
s_add_u32 s{sU}, s{sU}, {WS_U}
s_lshl_b32 s{T+10}, s{T+10}, 1
s_add_u32 s{T+10}, s{T+10}, s{sKh}
s_lshl_b32 s{T+10}, s{T+10}, 8
s_add_u32 s{T+10}, s{T+10}, {F_U}
v_and_b32 v{vT0}, 1, v0
v_lshlrev_b32 v{vT0}, 7, v{vT0}
v_add_u32 v{vT1}, s{T+10}, v{vT0}
s_lshr_b32 s{sOff}, s{sCol}, 6
s_lshl_b32 s{sOff}, s{sOff}, 7
s_add_u32 s{sOff}, s{sOff}, {F_G}
v_mov_b32 v{vT2}, s{sOff}
v_cmp_lt_u32 vcc, 5, v0
s_lshl_b32 s{sOff}, s{sQt}, 15
s_lshl_b32 s{T+10}, s{S_W}, 12
v_cndmask_b32 v{vT1}, v{vT1}, v{vT2}, vcc
s_add_u32 s{sOff}, s{sOff}, s{T+10}
s_add_u32 s{sOff}, s{sOff}, {WS_L + 3*1024 + 252}
v_lshlrev_b32 v{vT2}, 8, v0
v_add_u32 v{vT2}, s{sOff}, v{vT2}
v_cmp_gt_u32 vcc, 4, v0
v_and_b32 v{vT3}, 15, v0
v_lshrrev_b32 v{vT0}, 4, v0
v_cndmask_b32 v{vT1}, v{vT1}, v{vT2}, vcc
s_lshl_b32 s{sOff}, s{S_W}, 2
v_add_u32 v{vT0}, s{sOff}, v{vT0}
v_lshlrev_b32 v{vLa}, 10, v{vT0}
v_lshl_add_u32 v{vLa}, v{vT3}, 4, v{vLa}
v_lshrrev_b32 v{vT2}, 1, v{vT3}
v_mul_u32_u24 v{vLw}, {PS//2}, v{vT2}
v_lshl_add_u32 v{vLw}, v{vT0}, 4, v{vLw}
v_and_b32 v{vT2}, 1, v0
v_lshl_add_u32 v{vLw}, v{vT2}, 3, v{vLw}
v_lshl_add_u32 v{vPa}, v{vHF}, 4, v{vL16}
s_mul_i32 s{sOff}, s{sKh}, {8*PS}
v_add_u32 v{vPa}, s{sOff}, v{vPa}
s_mul_i32 s{T+11}, s{sB}, 4608
s_lshl_b32 s{T+10}, s{sCol}, 2
s_add_u32 s{T+11}, s{T+11}, s{T+10}
s_add_u32 s{T+11}, s{T+11}, {WS_GATE}
v_lshlrev_b32 v{vT0}, 5, v{vHF}
s_lshl_b32 s{sOff}, s{sQt}, 15
s_add_u32 s{sOff}, s{sOff}, {WS_L}""")
    vFa, vFl = 22, 23
    sUd = T+12
    def uloads():
        for s in range(8):
            a(f"buffer_load_dwordx4 {vr(vU+4*s,4)}, v{vL16}, {WS}, s{sU} offen offset:{(s&3)*1024} sc1")
            if s == 3:
                a(f"s_add_u32 s{sU}, s{sU}, 4096")
        a(f"""buffer_load_dwordx4 {vr(vG,4)}, v{vT0}, {WS}, s{T+11} offen sc1
buffer_load_dwordx4 {vr(vG+4,4)}, v{vT0}, {WS}, s{T+11} offen offset:16 sc1
s_mov_b32 s{sUd}, 1""")
        stamp(a, 8)
    l = a.label("lp"); d = a.label("lpd"); nu = a.label("nu"); l3 = a.label("lv"); d3 = a.label("lvd"); nu2 = a.label("nu2")
    def lloads():
        for n in range(4):
            a(f"buffer_load_dwordx4 {vr(vLd+4*n,4)}, v{vLa}, {WS}, s{sOff} offen offset:{256*n} sc1")
    a(f"""v_mov_b32 v{vFa}, v{vT1}
s_mov_b32 s{sUd}, 0
{l}:
buffer_load_dword v{vFl}, v{vFa}, {WS}, 0 offen sc1
s_waitcnt vmcnt(0)
v_cmp_ne_u32 vcc, s{S_TAG}, v{vFl}
s_and_b32 s{T+13}, vcc_lo, 15
s_cbranch_scc0 {d}
s_lshr_b32 s{T+13}, vcc_lo, 4
s_or_b32 s{T+13}, s{T+13}, s{sUd}
s_cbranch_scc1 {nu}""")
    uloads()
    a(f"""{nu}:
s_sleep {OPT.get('lsleep', 1)}
s_sub_u32 s{S_TO}, s{S_TO}, 1
s_cmp_lg_u32 s{S_TO}, 0
s_cbranch_scc1 {l}
s_mov_b32 s{S_TO}, 1
{d}:""")
    lloads()
    a(f"""s_lshr_b32 s{T+13}, vcc_lo, 4
s_or_b32 s{T+13}, s{T+13}, s{sUd}
s_cbranch_scc1 {nu2}""")
    uloads()
    a(f"""s_waitcnt vmcnt(10)
s_branch {l3}_c
{nu2}:
buffer_load_dword v{vFl}, v{vFa}, {WS}, 0 offen sc1
s_waitcnt vmcnt(1)
s_branch {l3}_c
{l3}:""")
    lloads()
    a(f"""s_waitcnt vmcnt(0)
{l3}_c:
v_min_u32 v{vT1}, v{vLd+1}, v{vLd+3}
v_max_u32 v{vT2}, v{vLd+1}, v{vLd+3}""")
    for n in range(1, 4):
        a(f"v_min3_u32 v{vT1}, v{vT1}, v{vLd+4*n+1}, v{vLd+4*n+3}\nv_max3_u32 v{vT2}, v{vT2}, v{vLd+4*n+1}, v{vLd+4*n+3}")
    a(f"""v_cmp_ne_u32 vcc, s{S_TAG}, v{vT1}
v_cmp_ne_u32 s[{T+14}:{T+15}], s{S_TAG}, v{vT2}
s_or_b64 vcc, vcc, s[{T+14}:{T+15}]
s_cbranch_vccz {d3}
s_sub_u32 s{S_TO}, s{S_TO}, 1
s_cmp_lg_u32 s{S_TO}, 0
s_cbranch_scc1 {l3}
s_mov_b32 s{S_TO}, 1
{d3}:""")
    stamp(a, 9)
    for i in range(8):
        unpack(a, vF+2*i, vF+2*i+1, vLd+2*i)
    a(f"""v_max3_f32 v{vMx}, v{vF}, v{vF+1}, v{vF+2}
v_max3_f32 v{vS}, v{vF+3}, v{vF+4}, v{vF+5}
v_max3_f32 v{vMx}, v{vMx}, v{vF+6}, v{vF+7}
v_max3_f32 v{vS}, v{vS}, v{vF+8}, v{vF+9}
v_max3_f32 v{vMx}, v{vMx}, v{vF+10}, v{vF+11}
v_max3_f32 v{vS}, v{vS}, v{vF+12}, v{vF+13}
v_max3_f32 v{vMx}, v{vMx}, v{vF+14}, v{vF+15}
v_max_f32 v{vMx}, v{vMx}, v{vS}""")
    for m in ("quad_perm:[1,0,3,2]", "quad_perm:[2,3,0,1]", "row_half_mirror", "row_mirror"):
        a(f"s_nop 1\nv_max_f32_dpp v{vMx}, v{vMx}, v{vMx} {m} row_mask:0xf bank_mask:0xf")
    a(f"s_mov_b32 s{T+10}, {hex(LOG2E)}\nv_mul_f32 v{vMx}, s{T+10}, v{vMx}")
    for i in range(16):
        a(f"v_fma_f32 v{vF+i}, v{vF+i}, s{T+10}, -v{vMx}")
    for i in range(16):
        a(f"v_exp_f32 v{vF+i}, v{vF+i}")
    a(f"v_add_f32 v{vS}, v{vF}, v{vF+1}\nv_add_f32 v{vMx}, v{vF+2}, v{vF+3}")
    for i in range(4, 16, 2):
        a(f"v_add_f32 v{vS}, v{vS}, v{vF+i}\nv_add_f32 v{vMx}, v{vMx}, v{vF+i+1}")
    a(f"v_add_f32 v{vS}, v{vS}, v{vMx}")
    for m in ("quad_perm:[1,0,3,2]", "quad_perm:[2,3,0,1]", "row_half_mirror", "row_mirror"):
        a(f"s_nop 1\nv_add_f32_dpp v{vS}, v{vS}, v{vS} {m} row_mask:0xf bank_mask:0xf")
    a(f"v_rcp_f32 v{vS}, v{vS}\ns_nop 0")
    for i in range(16):
        a(f"v_mul_f32 v{vF+i}, v{vF+i}, v{vS}")
    for i in range(8):
        a(f"v_cvt_pk_bf16_f32 v{vLd+i}, v{vF+2*i}, v{vF+2*i+1}")
    for n in range(4):
        a(f"ds_write_b64 v{vLw}, {vr(vLd+2*n,2)} offset:{L_P+4*n*PS}")
    hu = a.label("hu"); l2 = a.label("up"); d2 = a.label("upd")
    a(f"""s_cmp_lg_u32 s{sUd}, 0
s_cbranch_scc1 {hu}
{l2}:
s_waitcnt vmcnt(0)
v_cmp_ne_u32 vcc, s{S_TAG}, v{vFl}
s_cbranch_vccz {d2}
buffer_load_dword v{vFl}, v{vFa}, {WS}, 0 offen sc1
s_sub_u32 s{S_TO}, s{S_TO}, 1
s_cmp_lg_u32 s{S_TO}, 0
s_cbranch_scc1 {l2}
s_mov_b32 s{S_TO}, 1
{d2}:""")
    uloads()
    a(f"{hu}:\ns_waitcnt lgkmcnt(0)\ns_barrier")
    for s in range(8):
        a(f"ds_read_b128 {vr(vP+4*s,4)}, v{vPa} offset:{L_P+s*PS}")
    a(f"""s_lshl_b32 s{sOff}, s{S_W}, 11
s_add_u32 s{sOff}, s{sOff}, {L_EX}
v_add_u32 v{vT0}, s{sOff}, v{vL16}
v_xor_b32 v{vT1}, {4*2048}, v{vT0}""")
    for s in range(8):
        a(f"s_waitcnt vmcnt({2+7-s}) lgkmcnt({7-s})")
        mfma(a, vAcc, vU+4*s, vP+4*s, s == 0)
    for i in range(4):
        unpack(a, vF+2*i, vF+2*i+1, vX+i)
    stamp(a, 10)
    lk1 = a.label("kh1"); lj = a.label("j")
    a(f"""s_nop 3
s_cmp_lg_u32 s{sKh}, 0
s_cbranch_scc1 {lk1}
ds_write_b128 v{vT0}, {vr(vAcc+8,4)}
ds_write_b128 v{vT0}, {vr(vAcc+12,4)} offset:1024
s_branch {lj}
{lk1}:
ds_write_b128 v{vT0}, {vr(vAcc,4)}
ds_write_b128 v{vT0}, {vr(vAcc+4,4)} offset:1024""")
    for r in range(8):
        a(f"v_mov_b32 v{vAcc+r}, v{vAcc+8+r}")
    a(f"""{lj}:
s_waitcnt lgkmcnt(0)
s_barrier
ds_read_b128 {vr(vR,4)}, v{vT1}
ds_read_b128 {vr(vR+4,4)}, v{vT1} offset:1024
s_waitcnt vmcnt(0) lgkmcnt(0)""")
    for r in range(8):
        a(f"v_add_f32 v{vAcc+r}, v{vAcc+r}, v{vR+r}")
    def cv():
        for i in range(4):
            a(f"v_cvt_pk_bf16_f32 v{vR+i}, v{vAcc+2*i}, v{vAcc+2*i+1}")
    def up():
        for i in range(4):
            unpack(a, vAcc+2*i, vAcc+2*i+1, vR+i)
    cv(); up()
    for r in range(8):
        a(f"v_mul_f32 v{vAcc+r}, v{vAcc+r}, v{vG+r}")
    cv(); up()
    for r in range(8):
        a(f"v_add_f32 v{vAcc+r}, v{vAcc+r}, v{vF+r}")
    cv()
    a(f"buffer_store_dwordx4 {vr(vR,4)}, v{vXo}, {RB}, s{sXo} offen {OPT.get('oflag', '').replace('+', ' ')}")
    a("L_fin:")

def gemv_dma(a, sColA, vD):
    sRow0, sOff = T+2, T+3
    a(f"""v_lshlrev_b32 v{vD}, 4, v{vCH}
v_mul_u32_u24 v{vT0}, 13824, v{vR8}
v_add3_u32 v{vD}, v{vD}, v{vT0}, s{sColA}
s_mul_i32 s{sOff}, s{sRow0}, 13824
s_lshl_b32 m0, s{sRow0}, 7""")
    for t in range(18):
        a(f"""s_nop 0
buffer_load_dwordx4 v{vD}, {RA}, s{sOff} offen {NT} lds""")
        if t < 17:
            a(f"s_add_u32 s{sOff}, s{sOff}, {8*13824}\ns_add_u32 m0, m0, 1024")

def phase_owner(a):
    sColA, sB, sRow0, sOff, sO, sCs, sTb = T, T+1, T+2, T+3, T+4, T+5, T+6
    vD, vA0, vA1, vSil, vCs = V0, V0+1, V0+2, V0+3, V0+4
    vC = 24
    vST = 28
    vX = VOX
    vXN = 48
    vPt = 80
    vAcc = 112
    vWF = 144
    vSF = 160
    vM = 184
    a(f"""s_mov_b32 s{sO}, s2
s_cmp_ge_u32 s{sO}, 36
s_cbranch_scc1 L_o_pref
s_lshr_b32 s{sCs}, s{sO}, 1
s_and_b32 s{sB}, s{sO}, 1
s_lshl_b32 s{sTb}, s{sB}, 3
s_add_u32 s{sTb}, s{sTb}, s{S_W}""")
    vST = 32
    a(f"""v_and_b32 v{vT3}, 7, v0
v_lshlrev_b32 v{vT2}, 4, v{vT3}
v_lshlrev_b32 v{vT0}, 7, v{vT3}
v_lshl_add_u32 v{vT0}, v{vR8}, 4, v{vT0}
s_lshl_b32 s{T+9}, s{S_W}, 12
v_add_u32 v{vT0}, s{T+9}, v{vT0}
s_lshl_b32 s{T+9}, s{sTb}, 9
s_add_u32 s{T+9}, s{T+9}, {F_STAT}""")
    def stl():
        for q in range(4):
            a(f"buffer_load_dwordx4 {vr(vST+4*q,4)}, v{vT2}, {WS}, s{T+9} offen offset:{128*q} sc1")
    a("s_waitcnt vmcnt(0)")
    for q in range(4):
        a(f"ds_read_b128 {vr(vX+4*q,4)}, v{vT0} offset:{q*1024}")
    a("s_waitcnt lgkmcnt(0)")
    for q in range(4):
        for i in range(4):
            unpack(a, vXN+8*q+2*i, vXN+8*q+2*i+1, vX+4*q+i)
    gpoll(a, stl, [vST+4*q+j for q in range(4) for j in (1, 3)])
    stamp(a, 1)
    vPt = 112
    def pl():
        a(f"s_mov_b32 s{T+10}, s{T+9}")
        for n in range(18):
            a(f"buffer_load_dwordx4 {vr(vPt+4*n,4)}, v{vL16}, {WS}, s{T+10} offen offset:{(n&3)*1024} sc1")
            if (n & 3) == 3:
                a(f"s_add_u32 s{T+10}, s{T+10}, 4096")
    lw0 = a.label("w0a")
    a(f"""s_mul_i32 s{T+9}, s{sO}, {18*1024}
s_add_u32 s{T+9}, s{T+9}, {WS_PART}
s_cmp_lg_u32 s{S_W}, 0
s_cbranch_scc1 {lw0}""")
    pl()
    a(f"{lw0}:")
    P = [(q, i) for q in range(4) for i in range(4)]
    lo = lambda q, i: vXN+8*q+2*i
    hi = lambda q, i: vXN+8*q+2*i+1
    xs = lambda q, i: vX+4*q+i
    def st_unpack():
        for q, i in P: unpack(a, lo(q,i), hi(q,i), xs(q,i))
    def st_cvt():
        for q, i in P: a(f"v_cvt_pk_bf16_f32 v{xs(q,i)}, v{lo(q,i)}, v{hi(q,i)}")
    def st_op(op, f):
        for q, i in P:
            a(f"{op} v{lo(q,i)}, v{lo(q,i)}, v{f(q,2*i)}\n{op} v{hi(q,i)}, v{hi(q,i)}, v{f(q,2*i+1)}")
    st_op("v_sub_f32", lambda q, j: vST+4*q); st_cvt()
    st_unpack(); st_op("v_mul_f32", lambda q, j: vST+4*q+2); st_cvt()
    st_unpack()
    a(f"""v_lshlrev_b32 v{vT1}, 5, v{vR8}
v_add_u32 v{vT1}, {L_FIN}, v{vT1}
v_lshl_add_u32 v{vCs}, v{vR8}, 9, v{vT2}
s_mul_i32 s{sOff}, s{sTb}, {72*1024}
s_lshl_b32 s{T+11}, s{sCs}, 12
s_add_u32 s{sOff}, s{sOff}, s{T+11}
s_add_u32 s{sOff}, s{sOff}, {WS_H}""")
    stamp(a, 2)
    lw1 = a.label("w0b"); lp = a.label("pp"); ld = a.label("ppd")
    a(f"""s_cmp_lg_u32 s{S_W}, 0
s_cbranch_scc1 {lw1}
v_lshlrev_b32 v{vT0}, 3, v0
v_add_u32 v{vT0}, {L_FIN}, v{vT0}
v_cvt_f32_u32 v{vT2}, v{vHF}
{lp}:
s_waitcnt vmcnt(0)
v_min_u32 v{vM}, v{vPt+1}, v{vPt+3}
v_max_u32 v{vM+1}, v{vPt+1}, v{vPt+3}""")
    for n in range(1, 18):
        a(f"""v_min3_u32 v{vM}, v{vM}, v{vPt+4*n+1}, v{vPt+4*n+3}
v_max3_u32 v{vM+1}, v{vM+1}, v{vPt+4*n+1}, v{vPt+4*n+3}""")
    a(f"""v_cmp_ne_u32 vcc, s{S_TAG}, v{vM}
v_cmp_ne_u32 s[{T+14}:{T+15}], s{S_TAG}, v{vM+1}
s_or_b64 vcc, vcc, s[{T+14}:{T+15}]
s_cbranch_vccz {ld}
s_sub_u32 s{S_TO}, s{S_TO}, 1
s_cmp_eq_u32 s{S_TO}, 0
s_cbranch_scc1 {ld}""")
    pl()
    a(f"s_branch {lp}\n{ld}:\ns_max_u32 s{S_TO}, s{S_TO}, 1")
    for n in range(2, 18, 2):
        a(f"""v_add_f32 v{vPt}, v{vPt}, v{vPt+4*n}
v_add_f32 v{vPt+2}, v{vPt+2}, v{vPt+4*n+2}
v_add_f32 v{vPt+4}, v{vPt+4}, v{vPt+4*n+4}
v_add_f32 v{vPt+6}, v{vPt+6}, v{vPt+4*n+6}""")
    a(f"""v_add_f32 v{vPt}, v{vPt}, v{vPt+4}
v_add_f32 v{vPt+1}, v{vPt+2}, v{vPt+6}
v_cvt_pk_bf16_f32 v{vPt+2}, v{vPt}, v{vPt+1}""")
    unpack(a, vPt, vPt+1, vPt+2)
    a(f"""v_add_f32 v{vPt}, v{vPt}, v{vT2}
v_add_f32 v{vPt+1}, v{vPt+1}, v{vT2}
v_cvt_pk_bf16_f32 v{vPt+2}, v{vPt}, v{vPt+1}""")
    unpack(a, vPt, vPt+1, vPt+2)
    a(f"""ds_write_b64 v{vT0}, {vr(vPt,2)}
s_waitcnt lgkmcnt(0)
{lw1}:
s_barrier""")
    stamp(a, 3)
    a(f"""ds_read_b128 {vr(vM+8,4)}, v{vT1} offset:256
ds_read_b128 {vr(vM+12,4)}, v{vT1} offset:272
ds_read_b128 {vr(vM,4)}, v{vT1}
ds_read_b128 {vr(vM+4,4)}, v{vT1} offset:16
s_waitcnt lgkmcnt(2)""")
    st_op("v_mul_f32", lambda q, j: vM+8+j); st_cvt(); st_unpack()
    a("s_waitcnt lgkmcnt(0)")
    for q in range(4):
        for i in range(4):
            a(f"v_add_f32 v{lo(q,i)}, v{lo(q,i)}, v{vM+2*i}\nv_add_f32 v{hi(q,i)}, v{hi(q,i)}, v{vM+2*i+1}")
        for i in range(4):
            a(f"v_cvt_pk_bf16_f32 v{xs(q,i)}, v{lo(q,i)}, v{hi(q,i)}")
        a(f"buffer_store_dwordx4 {vr(vX+4*q,4)}, v{vCs}, {WS}, s{sOff} offen offset:{q*128} sc1")
    stamp(a, 4)
    a(f"""s_mul_i32 s{sOff}, s{sB}, 18
s_add_u32 s{sOff}, s{sOff}, s{sCs}
s_lshl_b32 s{sOff}, s{sOff}, 7
s_add_u32 s{sOff}, s{sOff}, {F_H}""")
    set_flag(a, f"s{sOff}")
    stamp(a, 5)
    if 'ob' in OPT:
        a("s_waitcnt vmcnt(0)\ns_barrier")
    a("L_o_pref:")
    srd(a, R_A, S_WMOD, SZ_WMOD)
    srd(a, R_C, S_C, SZ_C)
    a(f"""s_cmp_ge_u32 s{sO}, 18
s_cbranch_scc1 L_o_upd
s_mul_i32 s{sRow0}, s{S_W}, 144
v_min_u32 v{vT0}, 17, v{vTok}
v_lshlrev_b32 v{vT0}, 4, v{vT0}
v_mul_u32_u24 v{vT1}, 2304, v{vHF}
v_add_u32 v{vCs}, v{vT0}, v{vT1}
s_lshl_b32 s{sOff}, s{sRow0}, 1
buffer_load_dwordx4 {vr(vC,4)}, v{vCs}, {RC}, s{sOff} offen
s_lshl_b32 s{sColA}, s{sO}, 7
s_add_u32 s{sColA}, s{sColA}, 4608""")
    gemv_dma(a, sColA, vD)
    a(f"""s_lshl_b32 s{sOff}, s{sRow0}, 7
v_add_u32 v{vA0}, s{sOff}, v{vB0}
v_add_u32 v{vA1}, s{sOff}, v{vB1}
s_waitcnt vmcnt(18)""")
    for i in range(4):
        unpack(a, vM+2*i, vM+2*i+1, vC+i)
    silu8(a, vM, vM+8)
    for i in range(4):
        a(f"v_cvt_pk_bf16_f32 v{vC+i}, v{vM+2*i}, v{vM+2*i+1}")
    a(f"""s_lshl_b32 s{sOff}, s{sRow0}, 1
s_add_u32 s{sOff}, s{sOff}, {L_SIL}
v_add_u32 v{vCs}, s{sOff}, v{vCs}
ds_write_b128 v{vCs}, {vr(vC,4)}
v_and_b32 v{vT0}, 1, v0
v_mul_u32_u24 v{vT0}, 2304, v{vT0}
v_lshl_add_u32 v{vT0}, v{vHF}, 4, v{vT0}
v_add_u32 v{vSil}, s{sOff}, v{vT0}
s_waitcnt lgkmcnt(0)""")
    for s in range(9):
        wf = vWF + 8*(s & 1); sf = vSF + 4*(s & 1)
        a(f"s_waitcnt vmcnt({18-2*(s+1)})")
        a(f"ds_read_b128 {vr(sf,4)}, v{vSil} offset:{s*32}")
        trreads(a, wf, vA0, vA1, s*2048)
        a("s_waitcnt lgkmcnt(2)")
        mfma(a, vAcc, wf, sf, s == 0)
        a("s_waitcnt lgkmcnt(0)")
        mfma(a, vAcc+16, wf+4, sf, s == 0)
    a(f"""v_and_b32 v{vT0}, 1, v0
v_lshlrev_b32 v{vT0}, 8, v{vT0}
v_lshl_add_u32 v{vT0}, v{vHF}, 5, v{vT0}
s_lshl_b32 s{sOff}, s{S_W}, 9
s_add_u32 s{sOff}, s{sOff}, {L_RED}
v_add_u32 v{vT0}, s{sOff}, v{vT0}
s_mov_b32 exec_lo, 3
s_mov_b32 exec_hi, 3
s_nop 8""")
    for cb in range(2):
        for q, off in enumerate((0, 16, 64, 80)):
            a(f"ds_write_b128 v{vT0}, {vr(vAcc+16*cb+4*q,4)} offset:{cb*128+off}")
    a(f"""s_mov_b64 exec, -1
s_waitcnt lgkmcnt(0)
s_barrier
s_lshr_b32 s{sOff}, s{S_W}, 2
s_lshl_b32 s{sOff}, s{sOff}, 8
s_add_u32 s{sOff}, s{sOff}, {L_RED}
v_lshlrev_b32 v{vT0}, 2, v0
v_add_u32 v{vT1}, s{sOff}, v{vT0}""")
    for w in range(8):
        a(f"ds_read_b32 v{vAcc+w}, v{vT1} offset:{w*512}")
    a("s_waitcnt lgkmcnt(0)")
    for w in range(1, 8):
        a(f"v_add_f32 v{vAcc}, v{vAcc}, v{vAcc+w}")
    round_bf16(a, vAcc)
    lsk = a.label("gsk")
    a(f"""s_and_b32 s{sOff}, s{S_W}, 3
s_cmp_lg_u32 s{sOff}, 0
s_cbranch_scc1 {lsk}
s_lshr_b32 s{T+9}, s{S_W}, 2
s_mul_i32 s{sOff}, s{T+9}, 4608
s_lshl_b32 s{sColA}, s{sO}, 8
s_add_u32 s{sOff}, s{sOff}, s{sColA}
s_add_u32 s{sOff}, s{sOff}, {WS_GATE}
buffer_store_dword v{vAcc}, v{vT0}, {WS}, s{sOff} offen sc1
{lsk}:
s_lshl_b32 s{sOff}, s{sO}, 7
s_add_u32 s{sOff}, s{sOff}, {F_G}""")
    set_flag(a, f"s{sOff}")
    stamp(a, 7)
    a("s_branch L_fin")
    lp = a.label("ep"); ld = a.label("epd")
    a(f"""L_o_upd:
s_cmp_lg_u32 s2, 39
s_cbranch_scc1 L_fin
s_lshl_b32 s{sOff}, s{S_W}, 6
v_add_u32 v{vT0}, s{sOff}, v0
v_min_u32 v{vT0}, 215, v{vT0}
v_lshlrev_b32 v{vT0}, 7, v{vT0}
s_mov_b32 s{sOff}, {F_QKV}
{lp}:
s_sleep 16
buffer_load_dword v{vT1}, v{vT0}, {WS}, s{sOff} offen sc1
s_waitcnt vmcnt(0)
v_cmp_ne_u32 vcc, s{S_TAG}, v{vT1}
s_cbranch_vccz {ld}
s_sub_u32 s{S_TO}, s{S_TO}, 1
s_cmp_lg_u32 s{S_TO}, 0
s_cbranch_scc1 {lp}
{ld}:
s_mov_b32 s{sOff}, {EPOCH}""")
    set_flag(a, f"s{sOff}")
    a("s_branch L_fin")

def epilogue(a):
    if STAMP and 'probe' in OPT:
        i = int(OPT['probe']); lo, hi = [int(x) for x in OPT.get('prole', '0:256').split(':')]
        a(f"""s_waitcnt vmcnt(0) lgkmcnt(0)
s_cmp_lg_u32 s{S_W}, {OPT.get('stw', 0)}
s_cbranch_scc1 L_end
s_memrealtime s[{S_ST+30}:{S_ST+31}]
s_waitcnt lgkmcnt(0)
s_sub_u32 s{T}, s{S_ST+2*i}, s{S_ST}
s_cmp_eq_u32 s{S_ST+2*i}, 0
s_cselect_b32 s{T}, 0, s{T}
s_cmp_lt_u32 s2, {lo}
s_cselect_b32 s{T}, 0, s{T}
s_cmp_ge_u32 s2, {hi}
s_cselect_b32 s{T}, 0, s{T}
s_lshl_b32 s{T}, s{T}, 2
s_add_u32 s{T}, s{T}, 5000
L_spin:
s_memrealtime s[{T+2}:{T+3}]
s_waitcnt lgkmcnt(0)
s_sub_u32 s{T+2}, s{T+2}, s{S_ST}
s_cmp_lt_u32 s{T+2}, s{T}
s_cbranch_scc1 L_spin""")
    elif STAMP:
        a(f"""s_waitcnt vmcnt(0) lgkmcnt(0)
s_cmp_lg_u32 s{S_W}, {OPT.get('stw', 0)}
s_cbranch_scc1 L_end
{CLK} s[{S_ST+30}:{S_ST+31}]
s_memtime s[98:99]
s_waitcnt lgkmcnt(0)
s_sub_u32 s98, s98, s96""")
        for i in range(16):
            a(f"v_mov_b32 v{16+i}, s{S_ST+2*i}")
        a(f"""v_mov_b32 v32, s98
s_lshl_b32 s{T}, s2, 7
s_add_u32 s{T}, s{T}, {WS_STAMP}
v_mov_b32 v1, 0
s_mov_b64 exec, 1""")
        for i in range(4):
            a(f"buffer_store_dwordx4 v[{16+4*i}:{19+4*i}], v1, {WS}, s{T} offen offset:{16*i}")
        a(f"buffer_store_dword v32, v1, {WS}, s{T} offen offset:64")
    a("L_end:\ns_endpgm")

def main():
    a = Asm()
    a.raw("; @launch grid=(256,1,1) block=(512,1,1) lds=163840")
    a.raw('.amdgcn_target "amdgcn-amd-amdhsa--gfx950"\n.text')
    prologue(a)
    phase_bc(a)
    phase_d(a)
    epilogue(a)
    a("L_owner:")
    phase_owner(a)
    a.raw(".p2align 4\nL_codeend:")
    out = a.text() + kd(NAME, 244, 102)
    path = [x for x in sys.argv[1:] if not x.startswith('--')][0]
    open(path, 'w').write(out)
main()
```

```python
import sys, struct
from asmlib import *

OPT = dict(la='12', nt='', cpf='1', umap='4', lfull='1', pack='1')
for a_ in sys.argv[1:]:
    if a_.startswith('--'):
        k, _, v = a_[2:].partition('=')
        OPT[k] = v
STAMP = 'stamp' in OPT
NT = OPT['nt']
CLK = "s_memtime" if 'cyc' in OPT else "s_memrealtime"

NAME = "standalone__dit_adaln_block__diffusion_kernel"
D = 1152
SZ_X = 512*D*2; SZ_C = 2*D*2; SZ_WQKV = D*3*D*2; SZ_WO = D*D*2; SZ_WMOD = D*6*D*2
SZ_WS = 1 << 28
F_STAT = 0x0
F_H = 0x2000
F_L = 0x4000
F_U = F_L + 64*128
F_G = F_U + 144*128
F_QKV = 0xC000
EPOCH = 0x13000
WS_GATE = 0x14000
WS_H = 0x20000
WS_QKV = 0x140000
WS_L = 0x680000
WS_U = 0x550000
WS_PART = 0x4A0000
WS_STAMP = 0x700000
LOG2E = 0x3fb8aa3b

S_W, S_TAG, S_G, S_SLOT, S_TO, S_TK = 3, 4, 5, 6, 7, 8
S_X, S_C, S_WQKV, S_WO, S_WMOD, S_OUT, S_DBG, S_WS = 16, 18, 20, 22, 24, 26, 28, 30
R_A, R_B, R_C, R_WS = 32, 36, 40, 44
T = 48
S_ST = 64
WS = f"s[{R_WS}:{R_WS+3}]"
RA = f"s[{R_A}:{R_A+3}]"; RB = f"s[{R_B}:{R_B+3}]"; RC = f"s[{R_C}:{R_C+3}]"
vL16, vP16, vB0, vB1, vCH, vR8, vHF, vTok = 1, 2, 3, 4, 5, 6, 7, 8
vT0, vT1, vT2, vT3 = 9, 10, 11, 12
vTAG = 13
V0 = 16

L_MISC = 147456
L_SIL = L_MISC
L_RED = L_SIL + 4608
L_FIN = L_RED + 4096
L_ROLE = L_FIN + 4096
L_STC = L_ROLE + 16
NO = 5

def srd(a, r, ptr, size):
    a(f"""s_mov_b32 s{r}, s{ptr}
s_and_b32 s{r+1}, s{ptr+1}, 0xffff
s_mov_b32 s{r+2}, {hex(size)}
s_mov_b32 s{r+3}, 0x20000""")

def stamp(a, i):
    if STAMP:
        a(f"{CLK} s[{S_ST+2*i}:{S_ST+2*i+1}]")

def unpack(a, lo, hi, src):
    a(f"v_lshlrev_b32 v{lo}, 16, v{src}\nv_and_b32 v{hi}, 0xffff0000, v{src}")

def round_bf16(a, v):
    a(f"v_cvt_pk_bf16_f32 v{v}, v{v}, v{v}\nv_lshlrev_b32 v{v}, 16, v{v}")

HACK = [0]
def mfma(a, acc, A, B, first=False):
    if 'hack16' in OPT and not first:
        HACK[0] += 1
        o = 8*((HACK[0] >> 1) & 1)
        for j in range(2):
            a(f"v_mfma_f32_16x16x32_bf16 {vr(acc+o+4*j,4)}, {vr(A,4)}, {vr(B,4)}, {vr(acc+o+4*j,4)}")
        return
    c = "0" if first else vr(acc, 16)
    a(f"v_mfma_f32_32x32x16_bf16 {vr(acc,16)}, {vr(A,4)}, {vr(B,4)}, {c}")

def wrap_add(a, s, step, s_end, s_start):
    a(f"""s_add_u32 s{s}, s{s}, {step}
s_cmp_eq_u32 s{s}, s{s_end}
s_cselect_b32 s{s}, s{s_start}, s{s}""")

def mod9(a, dst, src, tmp):
    a(f"""s_mul_i32 s{tmp}, s{src}, 57
s_lshr_b32 s{tmp}, s{tmp}, 9
s_mul_i32 s{tmp}, s{tmp}, 9
s_sub_u32 s{dst}, s{src}, s{tmp}""")

def poll(a, vaddr, soff, vtmp):
    l = a.label("poll"); d = a.label("polld")
    a(f"""s_cmp_lg_u32 s{S_W}, 0
s_cbranch_scc1 {d}
{l}:
buffer_load_dword v{vtmp}, v{vaddr}, {WS}, {soff} offen sc1
s_waitcnt vmcnt(0)
v_cmp_ne_u32 vcc, s{S_TAG}, v{vtmp}
s_cbranch_vccz {d}
s_sleep {OPT.get('sleep', 2)}
s_sub_u32 s{S_TO}, s{S_TO}, 1
s_cmp_lg_u32 s{S_TO}, 0
s_cbranch_scc1 {l}
s_mov_b32 s{S_TO}, 1
{d}:
s_barrier""")

def gpoll(a, loads, tagregs):
    l = a.label("gp"); d = a.label("gpd")
    a(f"{l}:")
    loads()
    a(f"s_waitcnt vmcnt(0)\nv_cmp_ne_u32 vcc, s{S_TAG}, v{tagregs[0]}")
    for r in tagregs[1:]:
        a(f"v_cmp_ne_u32 s[{T+14}:{T+15}], s{S_TAG}, v{r}\ns_or_b64 vcc, vcc, s[{T+14}:{T+15}]")
    a(f"""s_cbranch_vccz {d}
s_sleep {OPT.get('gsleep', 2)}
s_sub_u32 s{S_TO}, s{S_TO}, 1
s_cmp_lg_u32 s{S_TO}, 0
s_cbranch_scc1 {l}
s_mov_b32 s{S_TO}, 1
{d}:""")

def raw_flag(a, soff):
    a(f"""v_mov_b32 v{vT3}, 0
s_mov_b64 exec, 1
buffer_store_dword v{vTAG}, v{vT3}, {WS}, {soff} offen sc1
s_mov_b64 exec, -1""")

def set_flag(a, soff, younger=0):
    d = a.label("fl")
    a(f"""s_waitcnt vmcnt({younger})
s_barrier
s_cmp_lg_u32 s{S_W}, 0
s_cbranch_scc1 {d}""")
    raw_flag(a, soff)
    a(f"{d}:")

def trreads(a, wf, b0, b1, off):
    a(f"""ds_read_b64_tr_b16 {vr(wf,2)}, v{b0} offset:{off}
ds_read_b64_tr_b16 {vr(wf+2,2)}, v{b0} offset:{off+512}
ds_read_b64_tr_b16 {vr(wf+4,2)}, v{b1} offset:{off}
ds_read_b64_tr_b16 {vr(wf+6,2)}, v{b1} offset:{off+512}""")

def dma_tile(a, srdname, vD, pitch, s_rot, flags, n0=0, n1=18):
    sN, sO = T+10, T+11
    if s_rot is None:
        a(f"s_add_u32 s{sN}, s{S_W}, {8*n0}")
    else:
        a(f"s_lshl_b32 s{sN}, s{s_rot}, 3\ns_add_u32 s{sN}, s{sN}, s{S_W}")
    for n in range(n0, n1):
        a(f"""s_lshl_b32 m0, s{sN}, 10
s_mul_i32 s{sO}, s{sN}, {8*pitch}
buffer_load_dwordx4 v{vD}, {srdname}, s{sO} offen {flags} lds""")
        if n < n1-1:
            a(f"s_add_u32 s{sN}, s{sN}, 8")
            if s_rot is not None:
                a(f"""s_sub_u32 s{sO}, s{sN}, 144
s_cmp_ge_u32 s{sN}, 144
s_cselect_b32 s{sN}, s{sO}, s{sN}""")

def wave_sum(a, v, sdst):
    for m in ("quad_perm:[1,0,3,2]", "quad_perm:[2,3,0,1]", "row_half_mirror", "row_mirror"):
        a(f"s_nop 1\nv_add_f32_dpp v{v}, v{v}, v{v} {m} row_mask:0xf bank_mask:0xf")
    a(f"s_nop 1\nv_add_f32_dpp v{v}, v{v}, v{v} row_bcast:15 row_mask:0xa bank_mask:0xf")
    a(f"s_nop 1\nv_add_f32_dpp v{v}, v{v}, v{v} row_bcast:31 row_mask:0xc bank_mask:0xf")
    a(f"s_nop 1\nv_readlane_b32 s{sdst}, v{v}, 63\ns_nop 1")

def silu8(a, f, t):
    for i in range(8):
        a(f"v_mul_f32 v{t+i}, 0xbfb8aa3b, v{f+i}")
    for i in range(8):
        a(f"v_exp_f32 v{t+i}, v{t+i}")
    for i in range(8):
        a(f"v_add_f32 v{t+i}, 1.0, v{t+i}")
    for i in range(8):
        a(f"v_rcp_f32 v{t+i}, v{t+i}")
    for i in range(8):
        a(f"v_mul_f32 v{f+i}, v{f+i}, v{t+i}")

def lane_consts(a):
    a(f"""v_lshrrev_b32 v{vR8}, 3, v0
v_and_b32 v{vP16}, 0x33, v0
v_and_b32 v{vT0}, 4, v0
v_lshl_or_b32 v{vP16}, v{vT0}, 1, v{vP16}
v_and_b32 v{vT0}, 8, v0
v_lshrrev_b32 v{vT0}, 1, v{vT0}
v_or_b32 v{vP16}, v{vP16}, v{vT0}
v_lshlrev_b32 v{vP16}, 4, v{vP16}
v_lshrrev_b32 v{vT0}, 2, v0
v_and_b32 v{vT0}, 4, v{vT0}
v_and_b32 v{vCH}, 7, v0
v_xor_b32 v{vCH}, v{vCH}, v{vT0}
v_lshlrev_b32 v{vB0}, 10, v{vHF}
v_and_b32 v{vT0}, 12, v0
v_lshl_or_b32 v{vB0}, v{vT0}, 5, v{vB0}
v_and_b32 v{vT0}, 8, v0
v_lshl_or_b32 v{vB0}, v{vT0}, 3, v{vB0}
v_and_b32 v{vT0}, 16, v0
v_lshl_or_b32 v{vB0}, v{vT0}, 1, v{vB0}
v_and_b32 v{vT0}, 1, v0
v_lshl_or_b32 v{vB0}, v{vT0}, 4, v{vB0}
v_and_b32 v{vT0}, 2, v0
v_lshl_or_b32 v{vB0}, v{vT0}, 2, v{vB0}
v_xor_b32 v{vB1}, 64, v{vB0}""")

def get_tag(a):
    a(f"""s_waitcnt lgkmcnt(0)
s_mul_i32 s{S_TAG}, s{S_TAG}, 1664525
s_add_u32 s{S_TAG}, s{S_TAG}, 1013904223
v_mov_b32 v{vTAG}, s{S_TAG}""")

def wpoll(a, vaddr, soff, vtmp):
    gpoll(a, lambda: a(f"buffer_load_dword v{vtmp}, v{vaddr}, {WS}, {soff} offen sc1"), [vtmp])

S_BCT, S_BRT = 11, 12
vDW = 15
def b_setup(a):
    srd(a, R_B, S_WQKV, SZ_WQKV)
    a(f"""s_mul_i32 s{S_BCT}, s{S_G}, 27
s_add_u32 s{S_BCT}, s{S_BCT}, s{S_SLOT}
s_sub_u32 s{S_BCT}, s{S_BCT}, {NO}
s_and_b32 s{S_BRT}, s{S_BCT}, 3
s_lshr_b32 s{S_BCT}, s{S_BCT}, 2
s_mul_i32 s13, s{S_BRT}, 36
s_add_u32 s13, s13, s{S_W}
v_lshlrev_b32 v{vDW}, 4, v{vCH}
v_mul_u32_u24 v{vT0}, 6912, v{vR8}
s_lshl_b32 s{T+14}, s{S_BCT}, 7
v_add3_u32 v{vDW}, v{vDW}, v{vT0}, s{T+14}""")

THR = f"s_waitcnt vmcnt({OPT['thr']})" if 'thr' in OPT else ''
THRO = f"s_waitcnt vmcnt({OPT['thro']})" if 'thro' in OPT else ''
def w_dma(a, n):
    for i in range(n):
        a(f"""s_lshl_b32 m0, s13, 10
s_mul_i32 s{T+14}, s13, {8*6912}
buffer_load_dwordx4 v{vDW}, {RB}, s{T+14} offen lds
{THR}
s_add_u32 s13, s13, 8
s_sub_u32 s{T+14}, s13, 144
s_cmp_ge_u32 s13, 144
s_cselect_b32 s13, s{T+14}, s13""")

EW = int(OPT.get('ew', 0))
def prologue(a):
    a.raw(f".globl {NAME}\n.p2align 8\n.type {NAME},@function\n{NAME}:")
    a(f"""s_cmp_ge_u32 s2, 256
s_cbranch_scc1 L_end
s_load_dwordx16 s[16:31], s[0:1], 0""")
    if STAMP:
        a(f"{CLK} s[{S_ST}:{S_ST+1}]\ns_memtime s[96:97]")
        for i in range(1, 16):
            a(f"s_mov_b32 s{S_ST+2*i}, 0")
    a(f"""v_lshrrev_b32 v1, 6, v0
v_and_b32 v0, 63, v0
s_and_b32 s{S_G}, s2, 7
v_readfirstlane_b32 s{S_W}, v1
s_lshr_b32 s{S_SLOT}, s2, 3
s_mov_b32 s{S_TO}, 0x40000
v_lshlrev_b32 v{vL16}, 4, v0
v_lshrrev_b32 v{vHF}, 5, v0
v_and_b32 v{vTok}, 31, v0
s_cmp_lt_u32 s2, 64
s_cbranch_scc1 L_s0_stats
s_cmp_lt_u32 s2, 94
s_cbranch_scc1 L_s0_none""")
    sP, sCg, sKs, sOff, sRow = T, T+1, T+2, T+3, T+4
    vW = 16
    vC = 32
    vSc = 36
    vTm = 44
    vAc = 52
    a(f"""s_sub_u32 s{sP}, s2, 94
s_mul_i32 s{sKs}, s{sP}, 57
s_lshr_b32 s{sKs}, s{sKs}, 9
s_mul_i32 s{sCg}, s{sKs}, 9
s_sub_u32 s{sCg}, s{sP}, s{sCg}
s_lshl_b32 s{sRow}, s{sKs}, 3
s_add_u32 s{sRow}, s{sRow}, s{S_W}
s_lshl_b32 s{sRow}, s{sRow}, 3
v_and_b32 v{vT0}, 15, v0
v_lshlrev_b32 v{vT0}, 4, v{vT0}
v_bfe_u32 v{vT1}, v0, 4, 1
v_mul_u32_u24 v{vT1}, 2304, v{vT1}
v_mul_u32_u24 v{vT2}, {4*13824}, v{vHF}
v_add3_u32 v{vT0}, v{vT0}, v{vT1}, v{vT2}
v_lshlrev_b32 v{vT1}, 3, v{vHF}
s_lshl_b32 s{T+5}, s{sRow}, 1
s_mul_i32 s{sOff}, s{sRow}, 13824
s_lshl_b32 s{sRow}, s{sCg}, 8
s_add_u32 s{sOff}, s{sOff}, s{sRow}
s_waitcnt lgkmcnt(0)""")
    srd(a, R_A, S_WMOD, SZ_WMOD)
    srd(a, R_C, S_C, SZ_C)
    a(f"""buffer_load_dwordx2 {vr(vC,2)}, v{vT1}, {RC}, s{T+5} offen
buffer_load_dwordx2 {vr(vC+2,2)}, v{vT1}, {RC}, s{T+5} offen offset:2304""")
    for n in range(4):
        a(f"buffer_load_dwordx4 {vr(vW+4*n,4)}, v{vT0}, {RA}, s{sOff} offen")
        if n < 3:
            a(f"s_add_u32 s{sOff}, s{sOff}, 13824")
    a(f"s_load_dword s{S_TAG}, s[{S_WS}:{S_WS+1}], {EPOCH}")
    srd(a, R_WS, S_WS, SZ_WS)
    lane_consts(a)
    b_setup(a)
    if EW:
        a("s_barrier")
        w_dma(a, EW)
    a(f"s_waitcnt vmcnt({4+EW})")
    for i in range(4):
        unpack(a, vSc+2*i, vSc+2*i+1, vC+i)
    silu8(a, vSc, vTm)
    for i in range(4):
        a(f"v_cvt_pk_bf16_f32 v{vC+i}, v{vSc+2*i}, v{vSc+2*i+1}")
    for i in range(4):
        unpack(a, vSc+2*i, vSc+2*i+1, vC+i)
    a(f"""s_lshl_b32 s{sOff}, s{S_W}, 11
s_add_u32 s{sOff}, s{sOff}, {L_MISC}
v_lshlrev_b32 v{vT2}, 5, v0
v_add_u32 v{vT2}, s{sOff}, v{vT2}
s_lshr_b32 s{sOff}, s{S_W}, 1
s_lshl_b32 s{sOff}, s{sOff}, 10
s_and_b32 s{sRow}, s{S_W}, 1
s_lshl_b32 s{sP}, s{sRow}, 8
s_add_u32 s{sOff}, s{sOff}, s{sP}
s_add_u32 s{sOff}, s{sOff}, {L_MISC}
v_lshlrev_b32 v{vT3}, 3, v{vTok}
v_lshl_add_u32 v{vT3}, v{vHF}, 9, v{vT3}
v_add_u32 v{vT3}, s{sOff}, v{vT3}
s_lshl_b32 s{sP}, s{sCg}, 1
s_add_u32 s{sP}, s{sP}, s{sRow}
s_lshl_b32 s{sP}, s{sP}, 1
s_lshr_b32 s{sOff}, s{S_W}, 1
s_add_u32 s{sP}, s{sP}, s{sOff}
s_mul_i32 s{sP}, s{sP}, 18
s_add_u32 s{sP}, s{sP}, s{sKs}
s_lshl_b32 s{sP}, s{sP}, 10
s_add_u32 s{sP}, s{sP}, {WS_PART}""")
    get_tag(a)
    for n in range(4):
        a(f"s_waitcnt vmcnt({3-n+EW})")
        if n == 3: stamp(a, 8)
        for i in range(4):
            unpack(a, vTm+2*i, vTm+2*i+1, vW+4*n+i)
        for b in range(2):
            for j in range(8):
                op = "v_mul_f32" if n == 0 else "v_fmac_f32"
                a(f"{op} v{vAc+8*b+j}, v{vTm+j}, v{vSc+4*b+n}")
    a("s_nop 1")
    for j in range(8):
        a(f"v_permlane32_swap_b32 v{vAc+j}, v{vAc+8+j}")
    for j in range(8):
        a(f"v_add_f32 v{vAc+j}, v{vAc+j}, v{vAc+8+j}")
    lsk = a.label("pubsk")
    a(f"""ds_write_b128 v{vT2}, {vr(vAc,4)}
ds_write_b128 v{vT2}, {vr(vAc+4,4)} offset:16
s_waitcnt lgkmcnt(0)
s_barrier
s_cmp_ge_u32 s{S_W}, 4
s_cbranch_scc1 {lsk}""")
    for w in range(8):
        a(f"ds_read_b64 {vr(vW+2*w,2)}, v{vT3} offset:{w*2048}")
    a(f"""v_mov_b32 v{vAc+1}, v{vTAG}
v_mov_b32 v{vAc+3}, v{vTAG}
s_waitcnt lgkmcnt(4)
v_add_f32 v{vW}, v{vW}, v{vW+2}
v_add_f32 v{vW+1}, v{vW+1}, v{vW+3}
v_add_f32 v{vW+4}, v{vW+4}, v{vW+6}
v_add_f32 v{vW+5}, v{vW+5}, v{vW+7}
s_waitcnt lgkmcnt(0)
v_add_f32 v{vW+8}, v{vW+8}, v{vW+10}
v_add_f32 v{vW+9}, v{vW+9}, v{vW+11}
v_add_f32 v{vW+12}, v{vW+12}, v{vW+14}
v_add_f32 v{vW+13}, v{vW+13}, v{vW+15}
v_add_f32 v{vW}, v{vW}, v{vW+4}
v_add_f32 v{vW+1}, v{vW+1}, v{vW+5}
v_add_f32 v{vW+8}, v{vW+8}, v{vW+12}
v_add_f32 v{vW+9}, v{vW+9}, v{vW+13}
v_add_f32 v{vAc}, v{vW}, v{vW+8}
v_add_f32 v{vAc+2}, v{vW+1}, v{vW+9}
buffer_store_dwordx4 {vr(vAc,4)}, v{vL16}, {WS}, s{sP} offen sc1
{lsk}:""")
    stamp(a, 9)
    if 'pack' in OPT:
        a("s_waitcnt vmcnt(0)")
    if 'nopb' not in OPT:
        a("s_barrier")
    w_dma(a, 18-EW)
    a("s_branch L_b")
    a("L_s0_stats:")
    vRW = 16
    a(f"""s_lshl_b32 s{sOff}, s2, 3
s_add_u32 s{sOff}, s{sOff}, s{S_W}
s_mul_i32 s{sOff}, s{sOff}, 2304
v_mov_b32 v{vRW+8}, 0
v_mov_b32 v{vRW+9}, 0
v_mov_b32 v{vRW+10}, 0
v_mov_b32 v{vRW+11}, 0
s_waitcnt lgkmcnt(0)""")
    srd(a, R_C, S_X, SZ_X)
    a(f"""buffer_load_dwordx4 {vr(vRW,4)}, v{vL16}, {RC}, s{sOff} offen
buffer_load_dwordx4 {vr(vRW+4,4)}, v{vL16}, {RC}, s{sOff} offen offset:1024
s_mov_b64 exec, 0xffff
buffer_load_dwordx4 {vr(vRW+8,4)}, v{vL16}, {RC}, s{sOff} offen offset:2048
s_mov_b64 exec, -1
s_load_dword s{S_TAG}, s[{S_WS}:{S_WS+1}], {EPOCH}""")
    srd(a, R_WS, S_WS, SZ_WS)
    lane_consts(a)
    a(f"""s_barrier
s_min_u32 s{T+12}, s2, 35
s_and_b32 s{T+13}, s{T+12}, 1
s_lshr_b32 s{T+12}, s{T+12}, 1
s_lshl_b32 s{T+13}, s{T+13}, 3
s_add_u32 s{T+13}, s{T+13}, s{S_W}
v_mul_u32_u24 v{vT0}, 2304, v{vR8}
v_and_b32 v{vT1}, 7, v0
v_lshl_add_u32 v{vT0}, v{vT1}, 4, v{vT0}
s_mul_i32 s{T+13}, s{T+13}, {32*2304}
s_lshl_b32 s{T+12}, s{T+12}, 7
s_add_u32 s{T+13}, s{T+13}, s{T+12}
s_lshl_b32 m0, s{S_W}, 12""")
    lnx = a.label("nox"); ljx = a.label("jx")
    a(f"s_cmp_ge_u32 s2, 36\ns_cbranch_scc1 {lnx}")
    for q in range(4):
        a(f"buffer_load_dwordx4 v{vT0}, {RC}, s{T+13} offen lds")
        if q < 3:
            a(f"s_add_u32 s{T+13}, s{T+13}, {8*2304}\ns_add_u32 m0, m0, 1024\ns_nop 0")
    get_tag(a)
    a(f"s_waitcnt vmcnt(4)\ns_branch {ljx}\n{lnx}:")
    get_tag(a)
    a(f"s_waitcnt vmcnt(0)\n{ljx}:")
    stamp(a, 8)
    s1, s2_, q1, q2 = 32, 33, 34, 35
    a(f"s_mov_b32 s{T+12}, 0x3f803f80")
    for i in range(0, 12, 2):
        c = lambda r: "0" if i == 0 else f"v{r}"
        a(f"""v_dot2_f32_bf16 v{s1}, v{vRW+i}, s{T+12}, {c(s1)}
v_dot2_f32_bf16 v{q1}, v{vRW+i}, v{vRW+i}, {c(q1)}
v_dot2_f32_bf16 v{s2_}, v{vRW+i+1}, s{T+12}, {c(s2_)}
v_dot2_f32_bf16 v{q2}, v{vRW+i+1}, v{vRW+i+1}, {c(q2)}""")
    a(f"""s_nop 2
v_add_f32 v{s1}, v{s1}, v{s2_}
v_add_f32 v{q1}, v{q1}, v{q2}""")
    for m in ("quad_perm:[1,0,3,2] row_mask:0xf", "quad_perm:[2,3,0,1] row_mask:0xf", "row_half_mirror row_mask:0xf", "row_mirror row_mask:0xf", "row_bcast:15 row_mask:0xa", "row_bcast:31 row_mask:0xc"):
        a(f"s_nop 0\nv_add_f32_dpp v{s1}, v{s1}, v{s1} {m} bank_mask:0xf\nv_add_f32_dpp v{q1}, v{q1}, v{q1} {m} bank_mask:0xf")
    g = 36
    a(f"""v_mul_f32 v{g}, 0x3a638e39, v{s1}
v_mul_f32 v{g+2}, 0x3a638e39, v{q1}
v_fma_f32 v{g+2}, -v{g}, v{g}, v{g+2}
v_max_f32 v{g+2}, 0, v{g+2}""")
    round_bf16(a, g+2)
    a(f"v_add_f32 v{g+2}, 0x3727c5ac, v{g+2}")
    round_bf16(a, g+2)
    a(f"v_sqrt_f32 v{g+2}, v{g+2}")
    round_bf16(a, g)
    round_bf16(a, g+2)
    lsk = a.label("stsk")
    a(f"""v_rcp_f32 v{g+2}, v{g+2}
v_mov_b32 v{g+1}, v{vTAG}
v_mov_b32 v{g+3}, v{vTAG}
s_lshl_b32 s{T+12}, s{S_W}, 4
s_add_u32 s{T+12}, s{T+12}, {L_STC}
v_mov_b32 v{vT0}, s{T+12}
s_mov_b32 exec_lo, 0
s_brev_b32 exec_hi, 1
ds_write_b128 v{vT0}, {vr(g,4)}
s_mov_b64 exec, -1
s_lshl_b32 s{T+12}, s2, 7
s_add_u32 s{T+12}, s{T+12}, {F_STAT}
v_add_u32 v{vT0}, {L_STC}, v{vL16}
s_waitcnt lgkmcnt(0)
s_barrier
s_cmp_lg_u32 s{S_W}, 0
s_cbranch_scc1 {lsk}
s_mov_b64 exec, 0xff
ds_read_b128 {vr(g,4)}, v{vT0}
s_waitcnt lgkmcnt(0)
buffer_store_dwordx4 {vr(g,4)}, v{vL16}, {WS}, s{T+12} offen sc1
s_mov_b64 exec, -1
{lsk}:""")
    stamp(a, 9)
    a(f"s_cmp_lt_u32 s{S_SLOT}, {NO}\ns_cbranch_scc1 L_owner")
    if 'nopb' not in OPT:
        a("s_barrier")
    a("s_branch L_s0_w")
    a("L_s0_none:")
    if 'cpf' in OPT:
        a(f"""s_getpc_b64 s[{T}:{T+1}]
L_pc:
s_sub_u32 s{T}, s{T}, L_pc-{NAME}
s_subb_u32 s{T+1}, s{T+1}, 0
s_lshl_b32 s{T+2}, s{S_W}, 10
v_add_u32 v{vT0}, s{T+2}, v{vL16}""")
        for n in range(3):
            a(f"global_load_dwordx4 v[{100+4*n}:{103+4*n}], v{vT0}, s[{T}:{T+1}]\nv_add_u32 v{vT0}, 0x2000, v{vT0}\nv_min_u32 v{vT0}, L_codeend-{NAME}-16, v{vT0}")
    a(f"s_waitcnt lgkmcnt(0)\ns_load_dword s{S_TAG}, s[{S_WS}:{S_WS+1}], {EPOCH}")
    srd(a, R_WS, S_WS, SZ_WS)
    lane_consts(a)
    get_tag(a)
    a("L_s0_w:")
    b_setup(a)
    w_dma(a, 18)

VOX = 96

S_UCT, S_UTB = 9, 10
vDU = 14
KE = int(OPT.get('ke', 12))
def wo_dma(a, n0, n1):
    a(f"s_add_u32 s{T+10}, s{S_W}, {4*n0-4}")
    for n in range(n0, n1):
        a(f"""s_lshl_b32 m0, s{T+10}, 10
s_mul_i32 s{T+11}, s{T+10}, {8*2304}
buffer_load_dwordx4 v{vDU}, {RB}, s{T+11} offen lds""")
        if n < n1-1:
            a(f"s_add_u32 s{T+10}, s{T+10}, 4")

def gemm_loop(a, nsteps, LA, RING, vAcc, vWF, vH, vA0, vA1, vaddr, sH, lds_first, w_is_a, pre=None, rot=None, bar_at=None):
    WA = 2
    state = dict(issued=0)
    if rot:
        sR, sHs, sHe, sLo, sZ, sLe, vC0, vC1 = rot
        a(f"""s_mov_b32 s{sHs}, s{sH}
s_add_u32 s{sHe}, s{sH}, {nsteps*1024}
s_lshl_b32 s{sLo}, s{sR}, 12
s_add_u32 s{sH}, s{sH}, s{sLo}
s_lshl_b32 s{sLo}, s{sR}, 13
s_mov_b32 s{sZ}, 0
s_mov_b32 s{sLe}, {nsteps*2048}""")
    def hload():
        s = state['issued']
        a(f"buffer_load_dwordx4 {vr(vH+4*(s % RING),4)}, v{vaddr}, {WS}, s{sH} offen offset:{(s&3)*1024} sc1")
        if (s & 3) == 3 and s < nsteps-1:
            if rot: wrap_add(a, sH, 4096, sHe, sHs)
            else: a(f"s_add_u32 s{sH}, s{sH}, 4096")
        state['issued'] += 1
    def wread(s):
        if rot:
            if (s & 3) == 0:
                a(f"v_add_u32 v{vC0}, s{sLo}, v{vA0}\nv_add_u32 v{vC1}, s{sLo}, v{vA1}")
                wrap_add(a, sLo, 8192, sLe, sZ)
            trreads(a, vWF + 8*(s & 3), vC0, vC1, (s & 3)*2048)
            return
        if s and (s & 31) == 0:
            a(f"v_add_u32 v{vA0}, 0x10000, v{vA0}\nv_add_u32 v{vA1}, 0x10000, v{vA1}")
        trreads(a, vWF + 8*(s & 3), vA0, vA1, (s & 31)*2048)
    if lds_first:
        for s in range(WA): wread(s)
    for s in range(LA): hload()
    if pre: pre()
    if not lds_first:
        for s in range(WA): wread(s)
    for s in range(nsteps):
        lg = 4*min(WA-1, nsteps-1 - s)
        a(f"s_waitcnt vmcnt({state['issued'] - s - 1}) lgkmcnt({lg})")
        if s == 0 and lds_first: stamp(a, 4)
        h = vH+4*(s % RING); w0 = vWF+8*(s & 3)
        mfma(a, vAcc, *((w0, h) if w_is_a else (h, w0)), s == 0)
        if s + WA < nsteps:
            wread(s + WA)
        mfma(a, vAcc+16, *((w0+4, h) if w_is_a else (h, w0+4)), s == 0)
        if state['issued'] < nsteps:
            hload()
        if bar_at is not None and s == bar_at:
            a("s_barrier")

SZ = int(OPT['sz']) if 'sz' in OPT else None
UM = int(OPT.get('umap', 2)); UML = UM.bit_length()-1
def phase_bc(a):
    sTb, sOff, sH, sF = T+1, T+4, T+5, T+6
    vA0, vA1 = V0+1, V0+2
    vAcc = 20
    vWF = 52
    vH = 84
    a("L_b:")
    stamp(a, 1)
    srd(a, R_B, S_WO, SZ_WO)
    a(f"""s_sub_u32 s{S_SLOT}, s{S_SLOT}, {NO}
s_and_b32 s{T+14}, s{S_G}, {UM-1}
s_mul_i32 s{T+14}, s{T+14}, 18
s_add_u32 s{T+14}, s{T+14}, s{S_SLOT}
s_lshr_b32 s{S_UCT}, s{T+14}, {UML}
s_and_b32 s{T+14}, s{T+14}, {UM-1}
s_lshr_b32 s{S_UTB}, s{S_G}, {UML}
s_lshl_b32 s{S_UTB}, s{S_UTB}, {UML}
s_add_u32 s{S_UTB}, s{S_UTB}, s{T+14}
s_lshl_b32 s{S_UTB}, s{S_UTB}, 1
s_and_b32 s{T+14}, s{S_W}, 1
s_add_u32 s{S_UTB}, s{S_UTB}, s{T+14}
v_lshlrev_b32 v{vDU}, 4, v{vCH}
v_mul_u32_u24 v{vT0}, 2304, v{vR8}
s_lshl_b32 s{T+14}, s{S_UCT}, 7
v_add3_u32 v{vDU}, v{vDU}, v{vT0}, s{T+14}
s_lshl_b32 s{sTb}, s{S_BRT}, 2
s_and_b32 s{sOff}, s{S_W}, 3
s_add_u32 s{sTb}, s{sTb}, s{sOff}
s_mul_i32 s{sH}, s{sTb}, {72*1024}
s_add_u32 s{sH}, s{sH}, {WS_H}
v_mov_b32 v{vA0}, v{vB0}
v_mov_b32 v{vA1}, v{vB1}
v_min_u32 v{vT0}, 17, v0
v_lshlrev_b32 v{vT0}, 7, v{vT0}
s_lshr_b32 s{sOff}, s{S_BRT}, 1
s_mul_i32 s{sOff}, s{sOff}, {18*128}
s_add_u32 s{sOff}, s{sOff}, {F_H}
s_mul_i32 s{sF}, s{S_BRT}, 54
s_add_u32 s{sF}, s{sF}, s{S_BCT}
s_lshl_b32 s{sF}, s{sF}, 7
s_add_u32 s{sF}, s{sF}, {F_QKV}
s_waitcnt vmcnt(0)""")
    a("s_barrier")
    stamp(a, 2)
    a(f"s_cmp_ge_u32 s{S_W}, 4\ns_cbranch_scc1 L_ld")
    HPWG = OPT.get('hp', 'wg') == 'wg'
    if HPWG:
        poll(a, vT0, f"s{sOff}", vT1)
    else:
        wpoll(a, vT0, f"s{sOff}", vT1)
    stamp(a, 3)
    LA = int(OPT['la'])
    gemm_loop(a, 72, LA, LA+4, vAcc, vWF, vH, vA0, vA1, vL16, sH, True, True, bar_at=SZ)
    stamp(a, 5)
    a(f"""s_mul_i32 s{sH}, s{sTb}, {216*1024}
s_lshl_b32 s{sOff}, s{S_BCT}, 12
s_add_u32 s{sH}, s{sH}, s{sOff}
s_add_u32 s{sH}, s{sH}, {WS_QKV}
s_nop 7""")
    for u in range(4):
        if u == 2:
            a("s_nop 1")
        for r in range(4*u, 4*u+4):
            a(f"v_cvt_pk_bf16_f32 v{vWF+r}, v{vAcc+2*r}, v{vAcc+2*r+1}")
        a(f"buffer_store_dwordx4 {vr(vWF+4*u,4)}, v{vL16}, {WS}, s{sH} offen offset:{1024*u} sc1")
    a("s_barrier")
    stamp(a, 6)
    sKh = T+2
    a(f"""s_lshr_b32 s{sKh}, s{S_W}, 1
s_mul_i32 s{sH}, s{S_UTB}, {216*1024}
s_mul_i32 s{sOff}, s{sKh}, {36*1024}
s_add_u32 s{sH}, s{sH}, s{sOff}
s_add_u32 s{sH}, s{sH}, {WS_QKV + 144*1024}
s_mul_i32 s{sOff}, s{sKh}, {576*128}
v_add_u32 v{vA0}, s{sOff}, v{vB0}
v_add_u32 v{vA1}, s{sOff}, v{vB1}
v_min_u32 v{vT0}, 8, v0
v_lshlrev_b32 v{vT0}, 7, v{vT0}
s_lshr_b32 s{T+7}, s{S_UTB}, 2
s_mul_i32 s{T+7}, s{T+7}, {54*128}
s_mul_i32 s{sOff}, s{sKh}, {9*128}
s_add_u32 s{T+7}, s{T+7}, s{sOff}
s_add_u32 s{T+7}, s{T+7}, {F_QKV + 36*128}""")
    set_flag(a, f"s{sF}")
    stamp(a, 7)
    a(f"s_cmp_ge_u32 s{S_SLOT}, 18\ns_cbranch_scc1 L_c_notu")
    UROT = int(OPT.get('urot', 0))
    if UROT:
        a(f"s_mul_i32 s{T+8}, s{S_UCT}, {UROT}")
        mod9(a, T+8, T+8, T+9)
    wpoll(a, vT0, f"s{T+7}", vT1)
    stamp(a, 12)
    LA = int(OPT.get('lau', 12))
    gemm_loop(a, 36, LA, min(36, LA+4), vAcc, vWF, vH, vA0, vA1, vP16, sH, False, False, pre=lambda: (a("s_barrier"), stamp(a, 11)),
              rot=(T+8, T+9, T+10, T+11, T+12, T+13, V0, V0+3) if UROT else None)
    stamp(a, 13)
    lk1 = a.label("kh1"); lj = a.label("j")
    a(f"""s_lshl_b32 s{sOff}, s{S_W}, 12
s_add_u32 s{sOff}, s{sOff}, {L_MISC}
v_add_u32 v{vT0}, s{sOff}, v{vL16}
v_xor_b32 v{vT1}, {2*4096}, v{vT0}
s_lshr_b32 s{sH}, s{S_UTB}, 3
s_mul_i32 s{sF}, s{sH}, 18
s_add_u32 s{sF}, s{sF}, s{S_UCT}
s_lshl_b32 s{sH}, s{sF}, 1
s_add_u32 s{sH}, s{sH}, s{sKh}
s_lshl_b32 s{sH}, s{sH}, 3
s_and_b32 s{sOff}, s{S_UTB}, 7
s_add_u32 s{sH}, s{sH}, s{sOff}
s_lshl_b32 s{sH}, s{sH}, 11
s_add_u32 s{sH}, s{sH}, {WS_U}
s_lshl_b32 s{sF}, s{sF}, 2
s_bfe_u32 s{sOff}, s{S_UTB}, 0x20001
s_add_u32 s{sF}, s{sF}, s{sOff}
s_lshl_b32 s{sF}, s{sF}, 7
s_add_u32 s{sF}, s{sF}, {F_U}
s_cmp_lg_u32 s{sKh}, 0
s_cbranch_scc1 {lk1}""")
    for q in range(4):
        a(f"ds_write_b128 v{vT0}, {vr(vAcc+16+4*q,4)} offset:{q*1024}")
    a(f"s_branch {lj}\n{lk1}:")
    for q in range(4):
        a(f"ds_write_b128 v{vT0}, {vr(vAcc+4*q,4)} offset:{q*1024}")
    for r in range(16):
        a(f"v_mov_b32 v{vAcc+r}, v{vAcc+16+r}")
    a(f"{lj}:\ns_waitcnt lgkmcnt(0)\ns_barrier")
    for q in range(4):
        a(f"ds_read_b128 {vr(vWF+4*q,4)}, v{vT1} offset:{q*1024}")
    for u in range(2):
        a(f"s_waitcnt lgkmcnt({2-2*u})")
        for r in range(8*u, 8*u+8):
            a(f"v_add_f32 v{vAcc+r}, v{vAcc+r}, v{vWF+r}")
        for r in range(4*u, 4*u+4):
            a(f"v_cvt_pk_bf16_f32 v{vWF+16+r}, v{vAcc+2*r}, v{vAcc+2*r+1}")
        a(f"buffer_store_dwordx4 {vr(vWF+16+4*u,4)}, v{vL16}, {WS}, s{sH} offen offset:{1024*u} sc1")
    set_flag(a, f"s{sF}")
    a("s_branch L_c_done")
    lnu = a.label("ldnu")
    vWo = 20
    NE = int(OPT.get('ne', 18))
    a("L_ld:")
    if SZ is not None:
        a("s_barrier")
    a(f"""s_cmp_ge_u32 s{S_SLOT}, 18
s_cbranch_scc1 {lnu}
s_sub_u32 s{T+10}, s{S_W}, 4
s_lshl_b32 s{T+11}, s{T+10}, 10
v_add_u32 v{vT0}, s{T+11}, v{vL16}
s_lshr_b32 s{T+12}, s{S_UTB}, 1
s_and_b32 s{T+12}, s{T+12}, {UM-1}
s_mul_i32 s{T+12}, s{T+12}, {144//UM}
s_add_u32 s{T+10}, s{T+10}, s{T+12}
s_lshl_b32 s{T+12}, s{T+12}, 10""")
    def nxt(n):
        if n < 35:
            a(f"s_add_u32 s{T+10}, s{T+10}, 4")
            if n % 9 == 8:
                a(f"""s_sub_u32 s{T+11}, s{T+10}, 144
s_cmp_ge_u32 s{T+10}, 144
s_cselect_b32 s{T+10}, s{T+11}, s{T+10}""")
    for n in range(NE):
        a(f"""s_mul_i32 s{T+11}, s{T+10}, {8*2304}
buffer_load_dwordx4 {vr(vWo+4*n,4)}, v{vDU}, {RB}, s{T+11} offen
{THRO}""")
        nxt(n)
    stamp(a, 4)
    if HPWG:
        a("s_barrier")
    a("s_barrier")
    stamp(a, 5)
    WS_ = min(NE, int(OPT.get('wsplit', 12)))
    def wr(n):
        if n % 9 == 0:
            a(f"v_add_u32 v{vT1}, s{T+12}, v{vT0}")
            a(f"""s_add_u32 s{T+12}, s{T+12}, {36*1024}
s_cmp_ge_u32 s{T+12}, {144*1024}
s_cselect_b32 s{T+12}, 0, s{T+12}""")
        a(f"s_waitcnt vmcnt({NE-1-n})\nds_write_b128 v{vT1}, {vr(vWo+4*n,4)} offset:{(n % 9)*4096}")
    for n in range(WS_): wr(n)
    a("s_barrier")
    for n in range(WS_, NE): wr(n)
    for n in range(NE, 36):
        a(f"""s_lshl_b32 m0, s{T+10}, 10
s_mul_i32 s{T+11}, s{T+10}, {8*2304}
buffer_load_dwordx4 v{vDU}, {RB}, s{T+11} offen lds""")
        nxt(n)
    a(f"""s_waitcnt vmcnt(0) lgkmcnt(0)""")
    stamp(a, 11)
    a(f"""s_barrier
s_barrier
s_barrier
s_branch L_c_done
{lnu}:
s_barrier
s_barrier""")
    if HPWG:
        a("s_barrier")
    a("L_c_notu:")
    a(f"s_cmp_ge_u32 s{S_SLOT}, 26\ns_cbranch_scc1 L_c_done")
    sQb, sKb, sKq, sJ, sK, sQ, sKt = T, T+1, T+2, T+3, T+5, T+6, T+9
    vS = 56
    RING = 15
    a(f"""s_sub_u32 s{sJ}, s{S_SLOT}, 18
s_and_b32 s{sKq}, s{S_W}, 3
s_and_b32 s{sQb}, s{S_G}, 1
s_lshl_b32 s{sQb}, s{sQb}, 2
s_and_b32 s{sOff}, s{sJ}, 3
s_add_u32 s{sQb}, s{sQb}, s{sOff}
s_and_b32 s{sKt}, s{S_G}, 2
s_lshr_b32 s{sOff}, s{sJ}, 2
s_add_u32 s{sKt}, s{sKt}, s{sOff}
s_lshl_b32 s{sKb}, s{sKt}, 1
s_lshr_b32 s{sOff}, s{S_G}, 2
s_lshl_b32 s{sOff}, s{sOff}, 3
s_add_u32 s{sQb}, s{sQb}, s{sOff}
s_add_u32 s{sKb}, s{sKb}, s{sOff}
s_mul_i32 s{sK}, s{sKb}, {216*1024}
s_mul_i32 s{sQ}, s{sQb}, {216*1024}
s_mul_i32 s{sOff}, s{sKq}, {18*1024}
s_add_u32 s{sK}, s{sK}, s{sOff}
s_add_u32 s{sQ}, s{sQ}, s{sOff}
s_add_u32 s{sK}, s{sK}, {WS_QKV + 72*1024}
s_add_u32 s{sQ}, s{sQ}, {WS_QKV}
v_min_u32 v{vT0}, 17, v{vTok}
v_lshlrev_b32 v{vT0}, 7, v{vT0}
s_lshr_b32 s{sOff}, s{sKb}, 2
s_mul_i32 s{sOff}, s{sOff}, {54*128}
s_add_u32 s{sOff}, s{sOff}, {18*128}
s_lshr_b32 s{T+13}, s{sQb}, 2
s_mul_i32 s{T+13}, s{T+13}, {54*128}
s_sub_u32 s{sOff}, s{sOff}, s{T+13}
v_mul_lo_u32 v{vT1}, v{vHF}, s{sOff}
v_add_u32 v{vT0}, v{vT0}, v{vT1}
v_add_u32 v{vT0}, s{T+13}, v{vT0}
v_add_u32 v{vT2}, {216*1024}, v{vP16}
s_mov_b32 s{sOff}, {F_QKV}""")
    poll(a, vT0, f"s{sOff}", vT1)
    stamp(a, 12)
    lsi = a.label("sidle")
    a(f"s_cmp_ge_u32 s{S_W}, 4\ns_cbranch_scc1 {lsi}")
    LA = int(OPT.get('las', 8))
    assert LA < RING
    SROT = int(OPT.get('srot', 1))
    sKs, sQs, sR = T+7, T+8, T+12
    a(f"""s_mov_b32 s{sKs}, s{sK}
s_mov_b32 s{sQs}, s{sQ}
s_mul_i32 s{sR}, s{sJ}, {2048*SROT}
s_movk_i32 s{T+13}, 0
s_movk_i32 s{T+14}, {18*1024}""")
    def sload(s):
        r = vS + 12*(s % RING)
        if (s & 1) == 0:
            a(f"s_add_u32 s{sK}, s{sKs}, s{sR}\ns_add_u32 s{sQ}, s{sQs}, s{sR}")
            wrap_add(a, sR, 2048, T+14, T+13)
        a(f"""buffer_load_dwordx4 {vr(r,4)}, v{vL16}, {WS}, s{sQ} offen offset:{(s&1)*1024} sc1
buffer_load_dwordx4 {vr(r+4,4)}, v{vP16}, {WS}, s{sK} offen offset:{(s&1)*1024} sc1
buffer_load_dwordx4 {vr(r+8,4)}, v{vT2}, {WS}, s{sK} offen offset:{(s&1)*1024} sc1""")
    for s in range(LA):
        sload(s)
    for s in range(18):
        issued = min(18, s + LA)
        r = vS + 12*(s % RING)
        a(f"s_waitcnt vmcnt({3*(issued - s - 1) + 1})")
        mfma(a, vAcc, r+4, r, s == 0)
        a(f"s_waitcnt vmcnt({3*(issued - s - 1)})")
        mfma(a, vAcc+16, r+8, r, s == 0)
        if s + LA < 18:
            sload(s + LA)
    stamp(a, 13)
    QS, HS, PSZ = 1056, 528, 8448
    a(f"""s_mul_i32 s{sOff}, s{S_W}, {PSZ}
v_lshl_add_u32 v{vT0}, v{vHF}, 4, v{vL16}
v_add_u32 v{vT0}, s{sOff}, v{vT0}
s_nop 8""")
    for q in range(8):
        a(f"ds_write_b128 v{vT0}, {vr(vAcc+4*q,4)} offset:{q*QS}")
    a(f"""{lsi}:
v_bfe_u32 v{vT1}, v0, 2, 2
v_and_b32 v{vT2}, 1, v0
v_lshl_add_u32 v{vT1}, v{vT1}, 1, v{vT2}
v_mul_u32_u24 v{vT1}, {QS}, v{vT1}
v_bfe_u32 v{vT2}, v0, 1, 1
v_mul_u32_u24 v{vT2}, {HS}, v{vT2}
v_lshrrev_b32 v{vT0}, 4, v0
s_lshl_b32 s{sOff}, s{S_W}, 2
v_add_u32 v{vT0}, s{sOff}, v{vT0}
v_lshl_add_u32 v{vT1}, v{vT0}, 4, v{vT1}
v_add_u32 v{vT1}, v{vT1}, v{vT2}
v_and_b32 v{vT2}, 15, v0
v_lshlrev_b32 v{vT2}, 4, v{vT2}
v_lshl_add_u32 v{vT2}, v{vT0}, 10, v{vT2}
s_lshl_b32 s{sJ}, s{sQb}, 15
s_lshl_b32 s{sOff}, s{sKt}, 8
s_add_u32 s{sJ}, s{sJ}, s{sOff}
s_add_u32 s{sJ}, s{sJ}, {WS_L}
v_mov_b32 v53, v{vTAG}
v_mov_b32 v55, v{vTAG}
s_waitcnt lgkmcnt(0)
s_barrier""")
    for j in range(4):
        a(f"ds_read_b128 {vr(vAcc+4*j,4)}, v{vT1} offset:{j*PSZ}")
    a("s_waitcnt lgkmcnt(2)")
    for r in range(4):
        a(f"v_add_f32 v{vAcc+r}, v{vAcc+r}, v{vAcc+4+r}")
    a("s_waitcnt lgkmcnt(0)")
    for r in range(4):
        a(f"v_add_f32 v{vAcc+8+r}, v{vAcc+8+r}, v{vAcc+12+r}")
    for r in range(4):
        a(f"v_add_f32 v{vAcc+r}, v{vAcc+r}, v{vAcc+8+r}")
    sc = struct.unpack('<I', struct.pack('<f', D ** -0.5))[0]
    for r in range(2):
        a(f"v_cvt_pk_bf16_f32 v{52+2*r}, v{vAcc+2*r}, v{vAcc+2*r+1}")
    for r in range(2):
        unpack(a, vAcc+2*r, vAcc+2*r+1, 52+2*r)
    for r in range(4):
        a(f"v_mul_f32 v{vAcc+r}, {hex(sc)}, v{vAcc+r}")
    for r in range(2):
        a(f"v_cvt_pk_bf16_f32 v{52+2*r}, v{vAcc+2*r}, v{vAcc+2*r+1}")
    a(f"buffer_store_dwordx4 v[52:55], v{vT2}, {WS}, s{sJ} offen sc1")
    a("L_c_done:")
    stamp(a, 14)

def phase_d(a):
    sQt, sCt, sCb, sKh, sOff, sXo, sJ, sU, sB, sCol = T, T+1, T+2, T+3, T+4, T+5, T+6, T+7, T+8, T+9
    vXo, vMx, vS, vLa, vPa, vLw = V0, V0+1, V0+2, V0+3, V0+4, V0+5
    vLd = 24
    vX = 40
    vG = 44
    vF = 56
    vR = 72
    vAcc = 80
    vU = 96
    vP = 128
    PS = 1056
    L_P, L_EX = 40960, 65536
    srd(a, R_A, S_X, SZ_X)
    srd(a, R_B, S_OUT, SZ_X)
    a(f"""s_sub_u32 s{sJ}, 26, s{S_SLOT}
s_cmp_ge_u32 s{sJ}, 18
s_cbranch_scc1 L_fin
s_and_b32 s{sOff}, s{S_G}, 3
s_mul_i32 s{sOff}, s{sOff}, 18
s_add_u32 s{sOff}, s{sOff}, s{sJ}
s_lshr_b32 s{sCt}, s{sOff}, 3
s_and_b32 s{sJ}, s{sOff}, 7
s_lshr_b32 s{sB}, s{S_G}, 2
s_lshl_b32 s{sQt}, s{sB}, 3
s_add_u32 s{sQt}, s{sQt}, s{sJ}
s_and_b32 s{sCb}, s{S_W}, 3
s_lshr_b32 s{sKh}, s{S_W}, 2
s_lshl_b32 s{sCol}, s{sCt}, 7
s_lshl_b32 s{sOff}, s{sCb}, 5
s_add_u32 s{sCol}, s{sCol}, s{sOff}
s_lshl_b32 s{sOff}, s{sKh}, 4
s_add_u32 s{sCol}, s{sCol}, s{sOff}
s_mul_i32 s{sXo}, s{sQt}, {32*2304}
s_lshl_b32 s{sOff}, s{sCol}, 1
s_add_u32 s{sXo}, s{sXo}, s{sOff}
v_mul_u32_u24 v{vXo}, 2304, v{vTok}
v_lshl_add_u32 v{vXo}, v{vHF}, 4, v{vXo}
buffer_load_dwordx4 {vr(vX,4)}, v{vXo}, {RA}, s{sXo} offen
s_mul_i32 s{sU}, s{sB}, 36
s_lshl_b32 s{sOff}, s{sCt}, 2
s_add_u32 s{sU}, s{sU}, s{sOff}
s_add_u32 s{sU}, s{sU}, s{sCb}
s_lshr_b32 s{T+10}, s{sU}, 1
s_lshl_b32 s{sU}, s{sU}, 4
s_lshl_b32 s{sOff}, s{sKh}, 3
s_add_u32 s{sU}, s{sU}, s{sOff}
s_lshl_b32 s{sU}, s{sU}, 10
s_add_u32 s{sU}, s{sU}, {WS_U}
s_lshl_b32 s{T+10}, s{T+10}, 1
s_add_u32 s{T+10}, s{T+10}, s{sKh}
s_lshl_b32 s{T+10}, s{T+10}, 8
s_add_u32 s{T+10}, s{T+10}, {F_U}
v_and_b32 v{vT0}, 1, v0
v_lshlrev_b32 v{vT0}, 7, v{vT0}
v_add_u32 v{vT1}, s{T+10}, v{vT0}
s_lshr_b32 s{sOff}, s{sCol}, 6
s_lshl_b32 s{sOff}, s{sOff}, 7
s_add_u32 s{sOff}, s{sOff}, {F_G}
v_mov_b32 v{vT2}, s{sOff}
v_cmp_lt_u32 vcc, 5, v0
s_lshl_b32 s{sOff}, s{sQt}, 15
s_lshl_b32 s{T+10}, s{S_W}, 12
v_cndmask_b32 v{vT1}, v{vT1}, v{vT2}, vcc
s_add_u32 s{sOff}, s{sOff}, s{T+10}
s_add_u32 s{sOff}, s{sOff}, {WS_L + 3*1024 + 252}
v_lshlrev_b32 v{vT2}, 8, v0
v_add_u32 v{vT2}, s{sOff}, v{vT2}
v_cmp_gt_u32 vcc, 4, v0
v_and_b32 v{vT3}, 15, v0
v_lshrrev_b32 v{vT0}, 4, v0
v_cndmask_b32 v{vT1}, v{vT1}, v{vT2}, vcc
s_lshl_b32 s{sOff}, s{S_W}, 2
v_add_u32 v{vT0}, s{sOff}, v{vT0}
v_lshlrev_b32 v{vLa}, 10, v{vT0}
v_lshl_add_u32 v{vLa}, v{vT3}, 4, v{vLa}
v_lshrrev_b32 v{vT2}, 1, v{vT3}
v_mul_u32_u24 v{vLw}, {PS//2}, v{vT2}
v_lshl_add_u32 v{vLw}, v{vT0}, 4, v{vLw}
v_and_b32 v{vT2}, 1, v0
v_lshl_add_u32 v{vLw}, v{vT2}, 3, v{vLw}
v_lshl_add_u32 v{vPa}, v{vHF}, 4, v{vL16}
s_mul_i32 s{sOff}, s{sKh}, {8*PS}
v_add_u32 v{vPa}, s{sOff}, v{vPa}
s_mul_i32 s{T+11}, s{sB}, 4608
s_lshl_b32 s{T+10}, s{sCol}, 2
s_add_u32 s{T+11}, s{T+11}, s{T+10}
s_add_u32 s{T+11}, s{T+11}, {WS_GATE}
v_lshlrev_b32 v{vT0}, 5, v{vHF}
s_lshl_b32 s{sOff}, s{sQt}, 15
s_add_u32 s{sOff}, s{sOff}, {WS_L}""")
    vFa, vFl = 22, 23
    sUd = T+12
    def uloads():
        for s in range(8):
            a(f"buffer_load_dwordx4 {vr(vU+4*s,4)}, v{vL16}, {WS}, s{sU} offen offset:{(s&3)*1024} sc1")
            if s == 3:
                a(f"s_add_u32 s{sU}, s{sU}, 4096")
        a(f"""buffer_load_dwordx4 {vr(vG,4)}, v{vT0}, {WS}, s{T+11} offen sc1
buffer_load_dwordx4 {vr(vG+4,4)}, v{vT0}, {WS}, s{T+11} offen offset:16 sc1
s_mov_b32 s{sUd}, 1""")
        stamp(a, 8)
    l = a.label("lp"); d = a.label("lpd"); nu = a.label("nu"); l3 = a.label("lv"); d3 = a.label("lvd"); nu2 = a.label("nu2")
    def lloads():
        for n in range(4):
            a(f"buffer_load_dwordx4 {vr(vLd+4*n,4)}, v{vLa}, {WS}, s{sOff} offen offset:{256*n} sc1")
    a(f"""v_mov_b32 v{vFa}, v{vT1}
s_mov_b32 s{sUd}, 0
{l}:
buffer_load_dword v{vFl}, v{vFa}, {WS}, 0 offen sc1
s_waitcnt vmcnt(0)
v_cmp_ne_u32 vcc, s{S_TAG}, v{vFl}
s_and_b32 s{T+13}, vcc_lo, 15
s_cbranch_scc0 {d}
s_lshr_b32 s{T+13}, vcc_lo, 4
s_or_b32 s{T+13}, s{T+13}, s{sUd}
s_cbranch_scc1 {nu}""")
    uloads()
    if 'lfull' in OPT:
        a(f"s_branch {l3}")
    a(f"""{nu}:
s_sleep {OPT.get('lsleep', 1)}
s_sub_u32 s{S_TO}, s{S_TO}, 1
s_cmp_lg_u32 s{S_TO}, 0
s_cbranch_scc1 {l}
s_mov_b32 s{S_TO}, 1
{d}:""")
    lloads()
    a(f"""s_lshr_b32 s{T+13}, vcc_lo, 4
s_or_b32 s{T+13}, s{T+13}, s{sUd}
s_cbranch_scc1 {nu2}""")
    uloads()
    a(f"""s_waitcnt vmcnt(10)
s_branch {l3}_c
{nu2}:
buffer_load_dword v{vFl}, v{vFa}, {WS}, 0 offen sc1
s_waitcnt vmcnt(1)
s_branch {l3}_c
{l3}:""")
    lloads()
    a(f"""s_waitcnt vmcnt(0)
{l3}_c:
v_min_u32 v{vT1}, v{vLd+1}, v{vLd+3}
v_max_u32 v{vT2}, v{vLd+1}, v{vLd+3}""")
    for n in range(1, 4):
        a(f"v_min3_u32 v{vT1}, v{vT1}, v{vLd+4*n+1}, v{vLd+4*n+3}\nv_max3_u32 v{vT2}, v{vT2}, v{vLd+4*n+1}, v{vLd+4*n+3}")
    a(f"""v_cmp_ne_u32 vcc, s{S_TAG}, v{vT1}
v_cmp_ne_u32 s[{T+14}:{T+15}], s{S_TAG}, v{vT2}
s_or_b64 vcc, vcc, s[{T+14}:{T+15}]
s_cbranch_vccz {d3}
s_sub_u32 s{S_TO}, s{S_TO}, 1
s_cmp_lg_u32 s{S_TO}, 0
s_cbranch_scc1 {l3}
s_mov_b32 s{S_TO}, 1
{d3}:""")
    stamp(a, 9)
    for i in range(8):
        unpack(a, vF+2*i, vF+2*i+1, vLd+2*i)
    a(f"""v_max3_f32 v{vMx}, v{vF}, v{vF+1}, v{vF+2}
v_max3_f32 v{vS}, v{vF+3}, v{vF+4}, v{vF+5}
v_max3_f32 v{vMx}, v{vMx}, v{vF+6}, v{vF+7}
v_max3_f32 v{vS}, v{vS}, v{vF+8}, v{vF+9}
v_max3_f32 v{vMx}, v{vMx}, v{vF+10}, v{vF+11}
v_max3_f32 v{vS}, v{vS}, v{vF+12}, v{vF+13}
v_max3_f32 v{vMx}, v{vMx}, v{vF+14}, v{vF+15}
v_max_f32 v{vMx}, v{vMx}, v{vS}""")
    for m in ("quad_perm:[1,0,3,2]", "quad_perm:[2,3,0,1]", "row_half_mirror", "row_mirror"):
        a(f"s_nop 1\nv_max_f32_dpp v{vMx}, v{vMx}, v{vMx} {m} row_mask:0xf bank_mask:0xf")
    a(f"s_mov_b32 s{T+10}, {hex(LOG2E)}\nv_mul_f32 v{vMx}, s{T+10}, v{vMx}")
    for i in range(16):
        a(f"v_fma_f32 v{vF+i}, v{vF+i}, s{T+10}, -v{vMx}")
    for i in range(16):
        a(f"v_exp_f32 v{vF+i}, v{vF+i}")
    a(f"v_add_f32 v{vS}, v{vF}, v{vF+1}\nv_add_f32 v{vMx}, v{vF+2}, v{vF+3}")
    for i in range(4, 16, 2):
        a(f"v_add_f32 v{vS}, v{vS}, v{vF+i}\nv_add_f32 v{vMx}, v{vMx}, v{vF+i+1}")
    a(f"v_add_f32 v{vS}, v{vS}, v{vMx}")
    for m in ("quad_perm:[1,0,3,2]", "quad_perm:[2,3,0,1]", "row_half_mirror", "row_mirror"):
        a(f"s_nop 1\nv_add_f32_dpp v{vS}, v{vS}, v{vS} {m} row_mask:0xf bank_mask:0xf")
    a(f"v_rcp_f32 v{vS}, v{vS}\ns_nop 0")
    for i in range(16):
        a(f"v_mul_f32 v{vF+i}, v{vF+i}, v{vS}")
    for i in range(8):
        a(f"v_cvt_pk_bf16_f32 v{vLd+i}, v{vF+2*i}, v{vF+2*i+1}")
    for n in range(4):
        a(f"ds_write_b64 v{vLw}, {vr(vLd+2*n,2)} offset:{L_P+4*n*PS}")
    hu = a.label("hu"); l2 = a.label("up"); d2 = a.label("upd")
    a(f"""s_cmp_lg_u32 s{sUd}, 0
s_cbranch_scc1 {hu}
{l2}:
s_waitcnt vmcnt(0)
v_cmp_ne_u32 vcc, s{S_TAG}, v{vFl}
s_cbranch_vccz {d2}
buffer_load_dword v{vFl}, v{vFa}, {WS}, 0 offen sc1
s_sub_u32 s{S_TO}, s{S_TO}, 1
s_cmp_lg_u32 s{S_TO}, 0
s_cbranch_scc1 {l2}
s_mov_b32 s{S_TO}, 1
{d2}:""")
    uloads()
    a(f"{hu}:\ns_waitcnt lgkmcnt(0)\ns_barrier")
    for s in range(8):
        a(f"ds_read_b128 {vr(vP+4*s,4)}, v{vPa} offset:{L_P+s*PS}")
    a(f"""s_lshl_b32 s{sOff}, s{S_W}, 11
s_add_u32 s{sOff}, s{sOff}, {L_EX}
v_add_u32 v{vT0}, s{sOff}, v{vL16}
v_xor_b32 v{vT1}, {4*2048}, v{vT0}""")
    for s in range(8):
        a(f"s_waitcnt vmcnt({2+7-s}) lgkmcnt({7-s})")
        mfma(a, vAcc, vU+4*s, vP+4*s, s == 0)
    for i in range(4):
        unpack(a, vF+2*i, vF+2*i+1, vX+i)
    stamp(a, 10)
    lk1 = a.label("kh1"); lj = a.label("j")
    a(f"""s_nop 3
s_cmp_lg_u32 s{sKh}, 0
s_cbranch_scc1 {lk1}
ds_write_b128 v{vT0}, {vr(vAcc+8,4)}
ds_write_b128 v{vT0}, {vr(vAcc+12,4)} offset:1024
s_branch {lj}
{lk1}:
ds_write_b128 v{vT0}, {vr(vAcc,4)}
ds_write_b128 v{vT0}, {vr(vAcc+4,4)} offset:1024""")
    for r in range(8):
        a(f"v_mov_b32 v{vAcc+r}, v{vAcc+8+r}")
    a(f"""{lj}:
s_waitcnt lgkmcnt(0)
s_barrier
ds_read_b128 {vr(vR,4)}, v{vT1}
ds_read_b128 {vr(vR+4,4)}, v{vT1} offset:1024
s_waitcnt vmcnt(0) lgkmcnt(0)""")
    for r in range(8):
        a(f"v_add_f32 v{vAcc+r}, v{vAcc+r}, v{vR+r}")
    def cv():
        for i in range(4):
            a(f"v_cvt_pk_bf16_f32 v{vR+i}, v{vAcc+2*i}, v{vAcc+2*i+1}")
    def up():
        for i in range(4):
            unpack(a, vAcc+2*i, vAcc+2*i+1, vR+i)
    cv(); up()
    for r in range(8):
        a(f"v_mul_f32 v{vAcc+r}, v{vAcc+r}, v{vG+r}")
    cv(); up()
    for r in range(8):
        a(f"v_add_f32 v{vAcc+r}, v{vAcc+r}, v{vF+r}")
    cv()
    a(f"buffer_store_dwordx4 {vr(vR,4)}, v{vXo}, {RB}, s{sXo} offen {OPT.get('oflag', '').replace('+', ' ')}")
    a("L_fin:")

def gemv_dma(a, sColA, vD):
    sRow0, sOff = T+2, T+3
    a(f"""v_lshlrev_b32 v{vD}, 4, v{vCH}
v_mul_u32_u24 v{vT0}, 13824, v{vR8}
v_add3_u32 v{vD}, v{vD}, v{vT0}, s{sColA}
s_mul_i32 s{sOff}, s{sRow0}, 13824
s_lshl_b32 m0, s{sRow0}, 7""")
    for t in range(18):
        a(f"""s_nop 0
buffer_load_dwordx4 v{vD}, {RA}, s{sOff} offen {NT} lds""")
        if t < 17:
            a(f"s_add_u32 s{sOff}, s{sOff}, {8*13824}\ns_add_u32 m0, m0, 1024")

def phase_owner(a):
    sColA, sB, sRow0, sOff, sO, sCs, sTb = T, T+1, T+2, T+3, T+4, T+5, T+6
    vD, vA0, vA1, vSil, vCs = V0, V0+1, V0+2, V0+3, V0+4
    vC = 24
    vST = 28
    vX = VOX
    vXN = 48
    vPt = 80
    vAcc = 112
    vWF = 144
    vSF = 160
    vM = 184
    a(f"""s_mov_b32 s{sO}, s2
s_cmp_ge_u32 s{sO}, 36
s_cbranch_scc1 L_o_pref
s_lshr_b32 s{sCs}, s{sO}, 1
s_and_b32 s{sB}, s{sO}, 1
s_lshl_b32 s{sTb}, s{sB}, 3
s_add_u32 s{sTb}, s{sTb}, s{S_W}""")
    vST = 32
    a(f"""v_and_b32 v{vT3}, 7, v0
v_lshlrev_b32 v{vT2}, 4, v{vT3}
v_lshlrev_b32 v{vT0}, 7, v{vT3}
v_lshl_add_u32 v{vT0}, v{vR8}, 4, v{vT0}
s_lshl_b32 s{T+9}, s{S_W}, 12
v_add_u32 v{vT0}, s{T+9}, v{vT0}
s_lshl_b32 s{T+9}, s{sTb}, 9
s_add_u32 s{T+9}, s{T+9}, {F_STAT}""")
    def stl():
        for q in range(4):
            a(f"buffer_load_dwordx4 {vr(vST+4*q,4)}, v{vT2}, {WS}, s{T+9} offen offset:{128*q} sc1")
    a("s_waitcnt vmcnt(0)")
    for q in range(4):
        a(f"ds_read_b128 {vr(vX+4*q,4)}, v{vT0} offset:{q*1024}")
    a("s_waitcnt lgkmcnt(0)")
    for q in range(4):
        for i in range(4):
            unpack(a, vXN+8*q+2*i, vXN+8*q+2*i+1, vX+4*q+i)
    gpoll(a, stl, [vST+4*q+j for q in range(4) for j in (1, 3)])
    stamp(a, 1)
    vPt = 112
    def pl():
        a(f"s_mov_b32 s{T+10}, s{T+9}")
        for n in range(18):
            a(f"buffer_load_dwordx4 {vr(vPt+4*n,4)}, v{vL16}, {WS}, s{T+10} offen offset:{(n&3)*1024} sc1")
            if (n & 3) == 3:
                a(f"s_add_u32 s{T+10}, s{T+10}, 4096")
    lw0 = a.label("w0a")
    a(f"""s_mul_i32 s{T+9}, s{sO}, {18*1024}
s_add_u32 s{T+9}, s{T+9}, {WS_PART}
s_cmp_lg_u32 s{S_W}, 0
s_cbranch_scc1 {lw0}""")
    pl()
    a(f"{lw0}:")
    P = [(q, i) for q in range(4) for i in range(4)]
    lo = lambda q, i: vXN+8*q+2*i
    hi = lambda q, i: vXN+8*q+2*i+1
    xs = lambda q, i: vX+4*q+i
    def st_unpack():
        for q, i in P: unpack(a, lo(q,i), hi(q,i), xs(q,i))
    def st_cvt():
        for q, i in P: a(f"v_cvt_pk_bf16_f32 v{xs(q,i)}, v{lo(q,i)}, v{hi(q,i)}")
    def st_op(op, f):
        for q, i in P:
            a(f"{op} v{lo(q,i)}, v{lo(q,i)}, v{f(q,2*i)}\n{op} v{hi(q,i)}, v{hi(q,i)}, v{f(q,2*i+1)}")
    st_op("v_sub_f32", lambda q, j: vST+4*q); st_cvt()
    st_unpack(); st_op("v_mul_f32", lambda q, j: vST+4*q+2); st_cvt()
    st_unpack()
    a(f"""v_lshlrev_b32 v{vT1}, 5, v{vR8}
v_add_u32 v{vT1}, {L_FIN}, v{vT1}
v_lshl_add_u32 v{vCs}, v{vR8}, 9, v{vT2}
s_mul_i32 s{sOff}, s{sTb}, {72*1024}
s_lshl_b32 s{T+11}, s{sCs}, 12
s_add_u32 s{sOff}, s{sOff}, s{T+11}
s_add_u32 s{sOff}, s{sOff}, {WS_H}""")
    stamp(a, 2)
    lw1 = a.label("w0b"); lp = a.label("pp"); ld = a.label("ppd")
    a(f"""s_cmp_lg_u32 s{S_W}, 0
s_cbranch_scc1 {lw1}
v_lshlrev_b32 v{vT0}, 3, v0
v_add_u32 v{vT0}, {L_FIN}, v{vT0}
v_cvt_f32_u32 v{vT2}, v{vHF}
{lp}:
s_waitcnt vmcnt(0)
v_min_u32 v{vM}, v{vPt+1}, v{vPt+3}
v_max_u32 v{vM+1}, v{vPt+1}, v{vPt+3}""")
    for n in range(1, 18):
        a(f"""v_min3_u32 v{vM}, v{vM}, v{vPt+4*n+1}, v{vPt+4*n+3}
v_max3_u32 v{vM+1}, v{vM+1}, v{vPt+4*n+1}, v{vPt+4*n+3}""")
    a(f"""v_cmp_ne_u32 vcc, s{S_TAG}, v{vM}
v_cmp_ne_u32 s[{T+14}:{T+15}], s{S_TAG}, v{vM+1}
s_or_b64 vcc, vcc, s[{T+14}:{T+15}]
s_cbranch_vccz {ld}
s_sub_u32 s{S_TO}, s{S_TO}, 1
s_cmp_eq_u32 s{S_TO}, 0
s_cbranch_scc1 {ld}""")
    pl()
    a(f"s_branch {lp}\n{ld}:\ns_max_u32 s{S_TO}, s{S_TO}, 1")
    for n in range(2, 18, 2):
        a(f"""v_add_f32 v{vPt}, v{vPt}, v{vPt+4*n}
v_add_f32 v{vPt+2}, v{vPt+2}, v{vPt+4*n+2}
v_add_f32 v{vPt+4}, v{vPt+4}, v{vPt+4*n+4}
v_add_f32 v{vPt+6}, v{vPt+6}, v{vPt+4*n+6}""")
    a(f"""v_add_f32 v{vPt}, v{vPt}, v{vPt+4}
v_add_f32 v{vPt+1}, v{vPt+2}, v{vPt+6}
v_cvt_pk_bf16_f32 v{vPt+2}, v{vPt}, v{vPt+1}""")
    unpack(a, vPt, vPt+1, vPt+2)
    a(f"""v_add_f32 v{vPt}, v{vPt}, v{vT2}
v_add_f32 v{vPt+1}, v{vPt+1}, v{vT2}
v_cvt_pk_bf16_f32 v{vPt+2}, v{vPt}, v{vPt+1}""")
    unpack(a, vPt, vPt+1, vPt+2)
    a(f"""ds_write_b64 v{vT0}, {vr(vPt,2)}
s_waitcnt lgkmcnt(0)
{lw1}:
s_barrier""")
    stamp(a, 3)
    a(f"""ds_read_b128 {vr(vM+8,4)}, v{vT1} offset:256
ds_read_b128 {vr(vM+12,4)}, v{vT1} offset:272
ds_read_b128 {vr(vM,4)}, v{vT1}
ds_read_b128 {vr(vM+4,4)}, v{vT1} offset:16
s_waitcnt lgkmcnt(2)""")
    st_op("v_mul_f32", lambda q, j: vM+8+j); st_cvt(); st_unpack()
    a("s_waitcnt lgkmcnt(0)")
    for q in range(4):
        for i in range(4):
            a(f"v_add_f32 v{lo(q,i)}, v{lo(q,i)}, v{vM+2*i}\nv_add_f32 v{hi(q,i)}, v{hi(q,i)}, v{vM+2*i+1}")
        for i in range(4):
            a(f"v_cvt_pk_bf16_f32 v{xs(q,i)}, v{lo(q,i)}, v{hi(q,i)}")
        a(f"buffer_store_dwordx4 {vr(vX+4*q,4)}, v{vCs}, {WS}, s{sOff} offen offset:{q*128} sc1")
    stamp(a, 4)
    a(f"""s_mul_i32 s{sOff}, s{sB}, 18
s_add_u32 s{sOff}, s{sOff}, s{sCs}
s_lshl_b32 s{sOff}, s{sOff}, 7
s_add_u32 s{sOff}, s{sOff}, {F_H}""")
    set_flag(a, f"s{sOff}")
    stamp(a, 5)
    if 'ob' in OPT:
        a("s_waitcnt vmcnt(0)\ns_barrier")
    a("L_o_pref:")
    srd(a, R_A, S_WMOD, SZ_WMOD)
    srd(a, R_C, S_C, SZ_C)
    a(f"""s_cmp_ge_u32 s{sO}, 18
s_cbranch_scc1 L_o_upd
s_mul_i32 s{sRow0}, s{S_W}, 144
v_min_u32 v{vT0}, 17, v{vTok}
v_lshlrev_b32 v{vT0}, 4, v{vT0}
v_mul_u32_u24 v{vT1}, 2304, v{vHF}
v_add_u32 v{vCs}, v{vT0}, v{vT1}
s_lshl_b32 s{sOff}, s{sRow0}, 1
buffer_load_dwordx4 {vr(vC,4)}, v{vCs}, {RC}, s{sOff} offen
s_lshl_b32 s{sColA}, s{sO}, 7
s_add_u32 s{sColA}, s{sColA}, 4608""")
    gemv_dma(a, sColA, vD)
    a(f"""s_lshl_b32 s{sOff}, s{sRow0}, 7
v_add_u32 v{vA0}, s{sOff}, v{vB0}
v_add_u32 v{vA1}, s{sOff}, v{vB1}
s_waitcnt vmcnt(18)""")
    for i in range(4):
        unpack(a, vM+2*i, vM+2*i+1, vC+i)
    silu8(a, vM, vM+8)
    for i in range(4):
        a(f"v_cvt_pk_bf16_f32 v{vC+i}, v{vM+2*i}, v{vM+2*i+1}")
    a(f"""s_lshl_b32 s{sOff}, s{sRow0}, 1
s_add_u32 s{sOff}, s{sOff}, {L_SIL}
v_add_u32 v{vCs}, s{sOff}, v{vCs}
ds_write_b128 v{vCs}, {vr(vC,4)}
v_and_b32 v{vT0}, 1, v0
v_mul_u32_u24 v{vT0}, 2304, v{vT0}
v_lshl_add_u32 v{vT0}, v{vHF}, 4, v{vT0}
v_add_u32 v{vSil}, s{sOff}, v{vT0}
s_waitcnt lgkmcnt(0)""")
    for s in range(9):
        wf = vWF + 8*(s & 1); sf = vSF + 4*(s & 1)
        a(f"s_waitcnt vmcnt({18-2*(s+1)})")
        a(f"ds_read_b128 {vr(sf,4)}, v{vSil} offset:{s*32}")
        trreads(a, wf, vA0, vA1, s*2048)
        a("s_waitcnt lgkmcnt(2)")
        mfma(a, vAcc, wf, sf, s == 0)
        a("s_waitcnt lgkmcnt(0)")
        mfma(a, vAcc+16, wf+4, sf, s == 0)
    a(f"""v_and_b32 v{vT0}, 1, v0
v_lshlrev_b32 v{vT0}, 8, v{vT0}
v_lshl_add_u32 v{vT0}, v{vHF}, 5, v{vT0}
s_lshl_b32 s{sOff}, s{S_W}, 9
s_add_u32 s{sOff}, s{sOff}, {L_RED}
v_add_u32 v{vT0}, s{sOff}, v{vT0}
s_mov_b32 exec_lo, 3
s_mov_b32 exec_hi, 3
s_nop 8""")
    for cb in range(2):
        for q, off in enumerate((0, 16, 64, 80)):
            a(f"ds_write_b128 v{vT0}, {vr(vAcc+16*cb+4*q,4)} offset:{cb*128+off}")
    a(f"""s_mov_b64 exec, -1
s_waitcnt lgkmcnt(0)
s_barrier
s_lshr_b32 s{sOff}, s{S_W}, 2
s_lshl_b32 s{sOff}, s{sOff}, 8
s_add_u32 s{sOff}, s{sOff}, {L_RED}
v_lshlrev_b32 v{vT0}, 2, v0
v_add_u32 v{vT1}, s{sOff}, v{vT0}""")
    for w in range(8):
        a(f"ds_read_b32 v{vAcc+w}, v{vT1} offset:{w*512}")
    a("s_waitcnt lgkmcnt(0)")
    for w in range(1, 8):
        a(f"v_add_f32 v{vAcc}, v{vAcc}, v{vAcc+w}")
    round_bf16(a, vAcc)
    lsk = a.label("gsk")
    a(f"""s_and_b32 s{sOff}, s{S_W}, 3
s_cmp_lg_u32 s{sOff}, 0
s_cbranch_scc1 {lsk}
s_lshr_b32 s{T+9}, s{S_W}, 2
s_mul_i32 s{sOff}, s{T+9}, 4608
s_lshl_b32 s{sColA}, s{sO}, 8
s_add_u32 s{sOff}, s{sOff}, s{sColA}
s_add_u32 s{sOff}, s{sOff}, {WS_GATE}
buffer_store_dword v{vAcc}, v{vT0}, {WS}, s{sOff} offen sc1
{lsk}:
s_lshl_b32 s{sOff}, s{sO}, 7
s_add_u32 s{sOff}, s{sOff}, {F_G}""")
    set_flag(a, f"s{sOff}")
    stamp(a, 7)
    a("s_branch L_fin")
    lp = a.label("ep"); ld = a.label("epd")
    a(f"""L_o_upd:
s_cmp_lg_u32 s2, 39
s_cbranch_scc1 L_fin
s_lshl_b32 s{sOff}, s{S_W}, 6
v_add_u32 v{vT0}, s{sOff}, v0
v_min_u32 v{vT0}, 215, v{vT0}
v_lshlrev_b32 v{vT0}, 7, v{vT0}
s_mov_b32 s{sOff}, {F_QKV}
{lp}:
s_sleep 16
buffer_load_dword v{vT1}, v{vT0}, {WS}, s{sOff} offen sc1
s_waitcnt vmcnt(0)
v_cmp_ne_u32 vcc, s{S_TAG}, v{vT1}
s_cbranch_vccz {ld}
s_sub_u32 s{S_TO}, s{S_TO}, 1
s_cmp_lg_u32 s{S_TO}, 0
s_cbranch_scc1 {lp}
{ld}:
s_mov_b32 s{sOff}, {EPOCH}""")
    set_flag(a, f"s{sOff}")
    a("s_branch L_fin")

def epilogue(a):
    if STAMP and 'probe' in OPT:
        i = int(OPT['probe']); lo, hi = [int(x) for x in OPT.get('prole', '0:256').split(':')]
        a(f"""s_waitcnt vmcnt(0) lgkmcnt(0)
s_cmp_lg_u32 s{S_W}, {OPT.get('stw', 0)}
s_cbranch_scc1 L_end
s_memrealtime s[{S_ST+30}:{S_ST+31}]
s_waitcnt lgkmcnt(0)
s_sub_u32 s{T}, s{S_ST+2*i}, s{S_ST}
s_cmp_eq_u32 s{S_ST+2*i}, 0
s_cselect_b32 s{T}, 0, s{T}
s_cmp_lt_u32 s2, {lo}
s_cselect_b32 s{T}, 0, s{T}
s_cmp_ge_u32 s2, {hi}
s_cselect_b32 s{T}, 0, s{T}
s_lshl_b32 s{T}, s{T}, 2
s_add_u32 s{T}, s{T}, 5000
L_spin:
s_memrealtime s[{T+2}:{T+3}]
s_waitcnt lgkmcnt(0)
s_sub_u32 s{T+2}, s{T+2}, s{S_ST}
s_cmp_lt_u32 s{T+2}, s{T}
s_cbranch_scc1 L_spin""")
    elif STAMP:
        a(f"""s_waitcnt vmcnt(0) lgkmcnt(0)
s_cmp_lg_u32 s{S_W}, {OPT.get('stw', 0)}
s_cbranch_scc1 L_end
{CLK} s[{S_ST+30}:{S_ST+31}]
s_memtime s[98:99]
s_waitcnt lgkmcnt(0)
s_sub_u32 s98, s98, s96""")
        for i in range(16):
            a(f"v_mov_b32 v{16+i}, s{S_ST+2*i}")
        a(f"""v_mov_b32 v32, s98
s_lshl_b32 s{T}, s2, 7
s_add_u32 s{T}, s{T}, {WS_STAMP}
v_mov_b32 v1, 0
s_mov_b64 exec, 1""")
        for i in range(4):
            a(f"buffer_store_dwordx4 v[{16+4*i}:{19+4*i}], v1, {WS}, s{T} offen offset:{16*i}")
        a(f"buffer_store_dword v32, v1, {WS}, s{T} offen offset:64")
    a("L_end:\ns_endpgm")

def main():
    a = Asm()
    a.raw("; @launch grid=(256,1,1) block=(512,1,1) lds=163840")
    a.raw('.amdgcn_target "amdgcn-amd-amdhsa--gfx950"\n.text')
    prologue(a)
    phase_bc(a)
    phase_d(a)
    epilogue(a)
    a("L_owner:")
    phase_owner(a)
    a.raw(".p2align 4\nL_codeend:")
    out = a.text() + kd(NAME, 244, 102)
    path = [x for x in sys.argv[1:] if not x.startswith('--')][0]
    open(path, 'w').write(out)
main()
```

```python
import sys, struct
from asmlib import *

OPT = dict(la='12', nt='', cpf='1', umap='4', lfull='1', pack='1')
for a_ in sys.argv[1:]:
    if a_.startswith('--'):
        k, _, v = a_[2:].partition('=')
        OPT[k] = v
STAMP = 'stamp' in OPT
NT = OPT['nt']
CLK = "s_memtime" if 'cyc' in OPT else "s_memrealtime"

NAME = "standalone__dit_adaln_block__diffusion_kernel"
D = 1152
SZ_X = 512*D*2; SZ_C = 2*D*2; SZ_WQKV = D*3*D*2; SZ_WO = D*D*2; SZ_WMOD = D*6*D*2
SZ_WS = 1 << 28
F_STAT = 0x0
F_H = 0x2000
F_L = 0x4000
F_U = F_L + 64*128
F_G = F_U + 144*128
F_QKV = 0xC000
EPOCH = 0x13000
WS_GATE = 0x14000
WS_H = 0x20000
WS_QKV = 0x140000
WS_L = 0x680000
WS_U = 0x550000
WS_PART = 0x4A0000
WS_STAMP = 0x700000
LOG2E = 0x3fb8aa3b

S_W, S_TAG, S_G, S_SLOT, S_TO, S_TK = 3, 4, 5, 6, 7, 8
S_X, S_C, S_WQKV, S_WO, S_WMOD, S_OUT, S_DBG, S_WS = 16, 18, 20, 22, 24, 26, 28, 30
R_A, R_B, R_C, R_WS = 32, 36, 40, 44
T = 48
S_ST = 64
WS = f"s[{R_WS}:{R_WS+3}]"
RA = f"s[{R_A}:{R_A+3}]"; RB = f"s[{R_B}:{R_B+3}]"; RC = f"s[{R_C}:{R_C+3}]"
vL16, vP16, vB0, vB1, vCH, vR8, vHF, vTok = 1, 2, 3, 4, 5, 6, 7, 8
vT0, vT1, vT2, vT3 = 9, 10, 11, 12
vTAG = 13
V0 = 16

L_MISC = 147456
L_SIL = L_MISC
L_RED = L_SIL + 4608
L_FIN = L_RED + 4096
L_ROLE = L_FIN + 4096
L_STC = L_ROLE + 16
NO = 5

def srd(a, r, ptr, size):
    a(f"""s_mov_b32 s{r}, s{ptr}
s_and_b32 s{r+1}, s{ptr+1}, 0xffff
s_mov_b32 s{r+2}, {hex(size)}
s_mov_b32 s{r+3}, 0x20000""")

def stamp(a, i):
    if STAMP:
        a(f"{CLK} s[{S_ST+2*i}:{S_ST+2*i+1}]")

def unpack(a, lo, hi, src):
    a(f"v_lshlrev_b32 v{lo}, 16, v{src}\nv_and_b32 v{hi}, 0xffff0000, v{src}")

def round_bf16(a, v):
    a(f"v_cvt_pk_bf16_f32 v{v}, v{v}, v{v}\nv_lshlrev_b32 v{v}, 16, v{v}")

HACK = [0]
def mfma(a, acc, A, B, first=False):
    if 'hack16' in OPT and not first:
        HACK[0] += 1
        o = 8*((HACK[0] >> 1) & 1)
        for j in range(2):
            a(f"v_mfma_f32_16x16x32_bf16 {vr(acc+o+4*j,4)}, {vr(A,4)}, {vr(B,4)}, {vr(acc+o+4*j,4)}")
        return
    c = "0" if first else vr(acc, 16)
    a(f"v_mfma_f32_32x32x16_bf16 {vr(acc,16)}, {vr(A,4)}, {vr(B,4)}, {c}")

def wrap_add(a, s, step, s_end, s_start):
    a(f"""s_add_u32 s{s}, s{s}, {step}
s_cmp_eq_u32 s{s}, s{s_end}
s_cselect_b32 s{s}, s{s_start}, s{s}""")

def mod9(a, dst, src, tmp):
    a(f"""s_mul_i32 s{tmp}, s{src}, 57
s_lshr_b32 s{tmp}, s{tmp}, 9
s_mul_i32 s{tmp}, s{tmp}, 9
s_sub_u32 s{dst}, s{src}, s{tmp}""")

def poll(a, vaddr, soff, vtmp):
    l = a.label("poll"); d = a.label("polld")
    a(f"""s_cmp_lg_u32 s{S_W}, 0
s_cbranch_scc1 {d}
{l}:
buffer_load_dword v{vtmp}, v{vaddr}, {WS}, {soff} offen sc1
s_waitcnt vmcnt(0)
v_cmp_ne_u32 vcc, s{S_TAG}, v{vtmp}
s_cbranch_vccz {d}
s_sleep {OPT.get('sleep', 2)}
s_sub_u32 s{S_TO}, s{S_TO}, 1
s_cmp_lg_u32 s{S_TO}, 0
s_cbranch_scc1 {l}
s_mov_b32 s{S_TO}, 1
{d}:
s_barrier""")

def gpoll(a, loads, tagregs):
    l = a.label("gp"); d = a.label("gpd")
    a(f"{l}:")
    loads()
    a(f"s_waitcnt vmcnt(0)\nv_cmp_ne_u32 vcc, s{S_TAG}, v{tagregs[0]}")
    for r in tagregs[1:]:
        a(f"v_cmp_ne_u32 s[{T+14}:{T+15}], s{S_TAG}, v{r}\ns_or_b64 vcc, vcc, s[{T+14}:{T+15}]")
    a(f"""s_cbranch_vccz {d}
s_sleep {OPT.get('gsleep', 2)}
s_sub_u32 s{S_TO}, s{S_TO}, 1
s_cmp_lg_u32 s{S_TO}, 0
s_cbranch_scc1 {l}
s_mov_b32 s{S_TO}, 1
{d}:""")

def raw_flag(a, soff):
    a(f"""v_mov_b32 v{vT3}, 0
s_mov_b64 exec, 1
buffer_store_dword v{vTAG}, v{vT3}, {WS}, {soff} offen sc1
s_mov_b64 exec, -1""")

def set_flag(a, soff, younger=0):
    d = a.label("fl")
    a(f"""s_waitcnt vmcnt({younger})
s_barrier
s_cmp_lg_u32 s{S_W}, 0
s_cbranch_scc1 {d}""")
    raw_flag(a, soff)
    a(f"{d}:")

def trreads(a, wf, b0, b1, off):
    a(f"""ds_read_b64_tr_b16 {vr(wf,2)}, v{b0} offset:{off}
ds_read_b64_tr_b16 {vr(wf+2,2)}, v{b0} offset:{off+512}
ds_read_b64_tr_b16 {vr(wf+4,2)}, v{b1} offset:{off}
ds_read_b64_tr_b16 {vr(wf+6,2)}, v{b1} offset:{off+512}""")

def dma_tile(a, srdname, vD, pitch, s_rot, flags, n0=0, n1=18):
    sN, sO = T+10, T+11
    if s_rot is None:
        a(f"s_add_u32 s{sN}, s{S_W}, {8*n0}")
    else:
        a(f"s_lshl_b32 s{sN}, s{s_rot}, 3\ns_add_u32 s{sN}, s{sN}, s{S_W}")
    for n in range(n0, n1):
        a(f"""s_lshl_b32 m0, s{sN}, 10
s_mul_i32 s{sO}, s{sN}, {8*pitch}
buffer_load_dwordx4 v{vD}, {srdname}, s{sO} offen {flags} lds""")
        if n < n1-1:
            a(f"s_add_u32 s{sN}, s{sN}, 8")
            if s_rot is not None:
                a(f"""s_sub_u32 s{sO}, s{sN}, 144
s_cmp_ge_u32 s{sN}, 144
s_cselect_b32 s{sN}, s{sO}, s{sN}""")

def wave_sum(a, v, sdst):
    for m in ("quad_perm:[1,0,3,2]", "quad_perm:[2,3,0,1]", "row_half_mirror", "row_mirror"):
        a(f"s_nop 1\nv_add_f32_dpp v{v}, v{v}, v{v} {m} row_mask:0xf bank_mask:0xf")
    a(f"s_nop 1\nv_add_f32_dpp v{v}, v{v}, v{v} row_bcast:15 row_mask:0xa bank_mask:0xf")
    a(f"s_nop 1\nv_add_f32_dpp v{v}, v{v}, v{v} row_bcast:31 row_mask:0xc bank_mask:0xf")
    a(f"s_nop 1\nv_readlane_b32 s{sdst}, v{v}, 63\ns_nop 1")

def silu8(a, f, t):
    for i in range(8):
        a(f"v_mul_f32 v{t+i}, 0xbfb8aa3b, v{f+i}")
    for i in range(8):
        a(f"v_exp_f32 v{t+i}, v{t+i}")
    for i in range(8):
        a(f"v_add_f32 v{t+i}, 1.0, v{t+i}")
    for i in range(8):
        a(f"v_rcp_f32 v{t+i}, v{t+i}")
    for i in range(8):
        a(f"v_mul_f32 v{f+i}, v{f+i}, v{t+i}")

def lane_consts(a):
    a(f"""v_lshrrev_b32 v{vR8}, 3, v0
v_and_b32 v{vP16}, 0x33, v0
v_and_b32 v{vT0}, 4, v0
v_lshl_or_b32 v{vP16}, v{vT0}, 1, v{vP16}
v_and_b32 v{vT0}, 8, v0
v_lshrrev_b32 v{vT0}, 1, v{vT0}
v_or_b32 v{vP16}, v{vP16}, v{vT0}
v_lshlrev_b32 v{vP16}, 4, v{vP16}
v_lshrrev_b32 v{vT0}, 2, v0
v_and_b32 v{vT0}, 4, v{vT0}
v_and_b32 v{vCH}, 7, v0
v_xor_b32 v{vCH}, v{vCH}, v{vT0}
v_lshlrev_b32 v{vB0}, 10, v{vHF}
v_and_b32 v{vT0}, 12, v0
v_lshl_or_b32 v{vB0}, v{vT0}, 5, v{vB0}
v_and_b32 v{vT0}, 8, v0
v_lshl_or_b32 v{vB0}, v{vT0}, 3, v{vB0}
v_and_b32 v{vT0}, 16, v0
v_lshl_or_b32 v{vB0}, v{vT0}, 1, v{vB0}
v_and_b32 v{vT0}, 1, v0
v_lshl_or_b32 v{vB0}, v{vT0}, 4, v{vB0}
v_and_b32 v{vT0}, 2, v0
v_lshl_or_b32 v{vB0}, v{vT0}, 2, v{vB0}
v_xor_b32 v{vB1}, 64, v{vB0}""")

def get_tag(a):
    a(f"""s_waitcnt lgkmcnt(0)
s_mul_i32 s{S_TAG}, s{S_TAG}, 1664525
s_add_u32 s{S_TAG}, s{S_TAG}, 1013904223
v_mov_b32 v{vTAG}, s{S_TAG}""")

def wpoll(a, vaddr, soff, vtmp):
    gpoll(a, lambda: a(f"buffer_load_dword v{vtmp}, v{vaddr}, {WS}, {soff} offen sc1"), [vtmp])

S_BCT, S_BRT = 11, 12
vDW = 15
def b_setup(a):
    srd(a, R_B, S_WQKV, SZ_WQKV)
    a(f"""s_mul_i32 s{S_BCT}, s{S_G}, 27
s_add_u32 s{S_BCT}, s{S_BCT}, s{S_SLOT}
s_sub_u32 s{S_BCT}, s{S_BCT}, {NO}
s_and_b32 s{S_BRT}, s{S_BCT}, 3
s_lshr_b32 s{S_BCT}, s{S_BCT}, 2
s_mul_i32 s13, s{S_BRT}, 36
s_add_u32 s13, s13, s{S_W}
v_lshlrev_b32 v{vDW}, 4, v{vCH}
v_mul_u32_u24 v{vT0}, 6912, v{vR8}
s_lshl_b32 s{T+14}, s{S_BCT}, 7
v_add3_u32 v{vDW}, v{vDW}, v{vT0}, s{T+14}""")

THR = f"s_waitcnt vmcnt({OPT['thr']})" if 'thr' in OPT else ''
THRO = f"s_waitcnt vmcnt({OPT['thro']})" if 'thro' in OPT else ''
def w_dma(a, n):
    for i in range(n):
        a(f"""s_lshl_b32 m0, s13, 10
s_mul_i32 s{T+14}, s13, {8*6912}
buffer_load_dwordx4 v{vDW}, {RB}, s{T+14} offen lds
{THR}
s_add_u32 s13, s13, 8
s_sub_u32 s{T+14}, s13, 144
s_cmp_ge_u32 s13, 144
s_cselect_b32 s13, s{T+14}, s13""")

EW = int(OPT.get('ew', 0))
def prologue(a):
    a.raw(f".globl {NAME}\n.p2align 8\n.type {NAME},@function\n{NAME}:")
    a(f"""s_cmp_ge_u32 s2, 256
s_cbranch_scc1 L_end
s_load_dwordx16 s[16:31], s[0:1], 0""")
    if STAMP:
        a(f"{CLK} s[{S_ST}:{S_ST+1}]\ns_memtime s[96:97]")
        for i in range(1, 16):
            a(f"s_mov_b32 s{S_ST+2*i}, 0")
    a(f"""v_lshrrev_b32 v1, 6, v0
v_and_b32 v0, 63, v0
s_and_b32 s{S_G}, s2, 7
v_readfirstlane_b32 s{S_W}, v1
s_lshr_b32 s{S_SLOT}, s2, 3
s_mov_b32 s{S_TO}, 0x40000
v_lshlrev_b32 v{vL16}, 4, v0
v_lshrrev_b32 v{vHF}, 5, v0
v_and_b32 v{vTok}, 31, v0
s_cmp_lt_u32 s2, 64
s_cbranch_scc1 L_s0_stats
s_cmp_lt_u32 s2, 94
s_cbranch_scc1 L_s0_none""")
    sP, sCg, sKs, sOff, sRow = T, T+1, T+2, T+3, T+4
    vW = 16
    vC = 32
    vSc = 36
    vTm = 44
    vAc = 52
    a(f"""s_sub_u32 s{sP}, s2, 94
s_mul_i32 s{sKs}, s{sP}, 57
s_lshr_b32 s{sKs}, s{sKs}, 9
s_mul_i32 s{sCg}, s{sKs}, 9
s_sub_u32 s{sCg}, s{sP}, s{sCg}
s_lshl_b32 s{sRow}, s{sKs}, 3
s_add_u32 s{sRow}, s{sRow}, s{S_W}
s_lshl_b32 s{sRow}, s{sRow}, 3
v_and_b32 v{vT0}, 15, v0
v_lshlrev_b32 v{vT0}, 4, v{vT0}
v_bfe_u32 v{vT1}, v0, 4, 1
v_mul_u32_u24 v{vT1}, 2304, v{vT1}
v_mul_u32_u24 v{vT2}, {4*13824}, v{vHF}
v_add3_u32 v{vT0}, v{vT0}, v{vT1}, v{vT2}
v_lshlrev_b32 v{vT1}, 3, v{vHF}
s_lshl_b32 s{T+5}, s{sRow}, 1
s_mul_i32 s{sOff}, s{sRow}, 13824
s_lshl_b32 s{sRow}, s{sCg}, 8
s_add_u32 s{sOff}, s{sOff}, s{sRow}
s_waitcnt lgkmcnt(0)""")
    srd(a, R_A, S_WMOD, SZ_WMOD)
    srd(a, R_C, S_C, SZ_C)
    a(f"""buffer_load_dwordx2 {vr(vC,2)}, v{vT1}, {RC}, s{T+5} offen
buffer_load_dwordx2 {vr(vC+2,2)}, v{vT1}, {RC}, s{T+5} offen offset:2304""")
    for n in range(4):
        a(f"buffer_load_dwordx4 {vr(vW+4*n,4)}, v{vT0}, {RA}, s{sOff} offen")
        if n < 3:
            a(f"s_add_u32 s{sOff}, s{sOff}, 13824")
    a(f"s_load_dword s{S_TAG}, s[{S_WS}:{S_WS+1}], {EPOCH}")
    srd(a, R_WS, S_WS, SZ_WS)
    lane_consts(a)
    b_setup(a)
    if EW:
        a("s_barrier")
        w_dma(a, EW)
    a(f"s_waitcnt vmcnt({4+EW})")
    for i in range(4):
        unpack(a, vSc+2*i, vSc+2*i+1, vC+i)
    silu8(a, vSc, vTm)
    for i in range(4):
        a(f"v_cvt_pk_bf16_f32 v{vC+i}, v{vSc+2*i}, v{vSc+2*i+1}")
    for i in range(4):
        unpack(a, vSc+2*i, vSc+2*i+1, vC+i)
    a(f"""s_lshl_b32 s{sOff}, s{S_W}, 11
s_add_u32 s{sOff}, s{sOff}, {L_MISC}
v_lshlrev_b32 v{vT2}, 5, v0
v_add_u32 v{vT2}, s{sOff}, v{vT2}
s_lshr_b32 s{sOff}, s{S_W}, 1
s_lshl_b32 s{sOff}, s{sOff}, 10
s_and_b32 s{sRow}, s{S_W}, 1
s_lshl_b32 s{sP}, s{sRow}, 8
s_add_u32 s{sOff}, s{sOff}, s{sP}
s_add_u32 s{sOff}, s{sOff}, {L_MISC}
v_lshlrev_b32 v{vT3}, 3, v{vTok}
v_lshl_add_u32 v{vT3}, v{vHF}, 9, v{vT3}
v_add_u32 v{vT3}, s{sOff}, v{vT3}
s_lshl_b32 s{sP}, s{sCg}, 1
s_add_u32 s{sP}, s{sP}, s{sRow}
s_lshl_b32 s{sP}, s{sP}, 1
s_lshr_b32 s{sOff}, s{S_W}, 1
s_add_u32 s{sP}, s{sP}, s{sOff}
s_mul_i32 s{sP}, s{sP}, 18
s_add_u32 s{sP}, s{sP}, s{sKs}
s_lshl_b32 s{sP}, s{sP}, 10
s_add_u32 s{sP}, s{sP}, {WS_PART}
v_and_b32 v{vT0}, 28, v0
v_lshlrev_b32 v{vT0}, 5, v{vT0}
v_lshl_add_u32 v{vT0}, v{vHF}, 6, v{vT0}
v_and_b32 v{vT1}, 3, v0
v_lshl_add_u32 v{vT0}, v{vT1}, 4, v{vT0}""")
    get_tag(a)
    for n in range(4):
        a(f"s_waitcnt vmcnt({3-n+EW})")
        if n == 3: stamp(a, 8)
        for i in range(4):
            unpack(a, vTm+2*i, vTm+2*i+1, vW+4*n+i)
        for b in range(2):
            for j in range(8):
                op = "v_mul_f32" if n == 0 else "v_fmac_f32"
                a(f"{op} v{vAc+8*b+j}, v{vTm+j}, v{vSc+4*b+n}")
    a("s_nop 1")
    for j in range(8):
        a(f"v_permlane32_swap_b32 v{vAc+j}, v{vAc+8+j}")
    for j in range(8):
        a(f"v_add_f32 v{vAc+j}, v{vAc+j}, v{vAc+8+j}")
    lsk = a.label("pubsk")
    a(f"""ds_write_b128 v{vT2}, {vr(vAc,4)}
ds_write_b128 v{vT2}, {vr(vAc+4,4)} offset:16
s_waitcnt lgkmcnt(0)
s_barrier
s_cmp_ge_u32 s{S_W}, 4
s_cbranch_scc1 {lsk}""")
    for w in range(8):
        a(f"ds_read_b64 {vr(vW+2*w,2)}, v{vT3} offset:{w*2048}")
    a(f"""v_mov_b32 v{vAc+1}, v{vTAG}
v_mov_b32 v{vAc+3}, v{vTAG}
s_waitcnt lgkmcnt(4)
v_add_f32 v{vW}, v{vW}, v{vW+2}
v_add_f32 v{vW+1}, v{vW+1}, v{vW+3}
v_add_f32 v{vW+4}, v{vW+4}, v{vW+6}
v_add_f32 v{vW+5}, v{vW+5}, v{vW+7}
s_waitcnt lgkmcnt(0)
v_add_f32 v{vW+8}, v{vW+8}, v{vW+10}
v_add_f32 v{vW+9}, v{vW+9}, v{vW+11}
v_add_f32 v{vW+12}, v{vW+12}, v{vW+14}
v_add_f32 v{vW+13}, v{vW+13}, v{vW+15}
v_add_f32 v{vW}, v{vW}, v{vW+4}
v_add_f32 v{vW+1}, v{vW+1}, v{vW+5}
v_add_f32 v{vW+8}, v{vW+8}, v{vW+12}
v_add_f32 v{vW+9}, v{vW+9}, v{vW+13}
v_add_f32 v{vAc}, v{vW}, v{vW+8}
v_add_f32 v{vAc+2}, v{vW+1}, v{vW+9}
buffer_store_dwordx4 {vr(vAc,4)}, v{vT0}, {WS}, s{sP} offen sc1
{lsk}:""")
    stamp(a, 9)
    if OPT.get('pack') == '1':
        a("s_waitcnt vmcnt(0)")
    if 'nopb' not in OPT:
        a("s_barrier")
    w_dma(a, 18-EW)
    a("s_branch L_b")
    a("L_s0_stats:")
    vRW = 16
    a(f"""s_lshl_b32 s{sOff}, s2, 3
s_add_u32 s{sOff}, s{sOff}, s{S_W}
s_mul_i32 s{sOff}, s{sOff}, 2304
v_mov_b32 v{vRW+8}, 0
v_mov_b32 v{vRW+9}, 0
v_mov_b32 v{vRW+10}, 0
v_mov_b32 v{vRW+11}, 0
s_waitcnt lgkmcnt(0)""")
    srd(a, R_C, S_X, SZ_X)
    a(f"""buffer_load_dwordx4 {vr(vRW,4)}, v{vL16}, {RC}, s{sOff} offen
buffer_load_dwordx4 {vr(vRW+4,4)}, v{vL16}, {RC}, s{sOff} offen offset:1024
s_mov_b64 exec, 0xffff
buffer_load_dwordx4 {vr(vRW+8,4)}, v{vL16}, {RC}, s{sOff} offen offset:2048
s_mov_b64 exec, -1
s_load_dword s{S_TAG}, s[{S_WS}:{S_WS+1}], {EPOCH}""")
    srd(a, R_WS, S_WS, SZ_WS)
    lane_consts(a)
    a(f"""s_barrier
s_min_u32 s{T+12}, s2, 35
s_and_b32 s{T+13}, s{T+12}, 1
s_lshr_b32 s{T+12}, s{T+12}, 1
s_lshl_b32 s{T+13}, s{T+13}, 3
s_add_u32 s{T+13}, s{T+13}, s{S_W}
v_mul_u32_u24 v{vT0}, 2304, v{vR8}
v_and_b32 v{vT1}, 7, v0
v_xor_b32 v{vT1}, v{vT1}, v{vR8}
v_lshl_add_u32 v{vT0}, v{vT1}, 4, v{vT0}
s_mul_i32 s{T+13}, s{T+13}, {32*2304}
s_lshl_b32 s{T+12}, s{T+12}, 7
s_add_u32 s{T+13}, s{T+13}, s{T+12}
s_lshl_b32 m0, s{S_W}, 12""")
    lnx = a.label("nox"); ljx = a.label("jx")
    a(f"s_cmp_ge_u32 s2, 36\ns_cbranch_scc1 {lnx}")
    for q in range(4):
        a(f"buffer_load_dwordx4 v{vT0}, {RC}, s{T+13} offen lds")
        if q < 3:
            a(f"s_add_u32 s{T+13}, s{T+13}, {8*2304}\ns_add_u32 m0, m0, 1024\ns_nop 0")
    get_tag(a)
    a(f"s_waitcnt vmcnt(4)\ns_branch {ljx}\n{lnx}:")
    get_tag(a)
    a(f"s_waitcnt vmcnt(0)\n{ljx}:")
    stamp(a, 8)
    s1, s2_, q1, q2 = 32, 33, 34, 35
    a(f"s_mov_b32 s{T+12}, 0x3f803f80")
    for i in range(0, 12, 2):
        c = lambda r: "0" if i == 0 else f"v{r}"
        a(f"""v_dot2_f32_bf16 v{s1}, v{vRW+i}, s{T+12}, {c(s1)}
v_dot2_f32_bf16 v{q1}, v{vRW+i}, v{vRW+i}, {c(q1)}
v_dot2_f32_bf16 v{s2_}, v{vRW+i+1}, s{T+12}, {c(s2_)}
v_dot2_f32_bf16 v{q2}, v{vRW+i+1}, v{vRW+i+1}, {c(q2)}""")
    a(f"""s_nop 2
v_add_f32 v{s1}, v{s1}, v{s2_}
v_add_f32 v{q1}, v{q1}, v{q2}""")
    for m in ("quad_perm:[1,0,3,2] row_mask:0xf", "quad_perm:[2,3,0,1] row_mask:0xf", "row_half_mirror row_mask:0xf", "row_mirror row_mask:0xf", "row_bcast:15 row_mask:0xa", "row_bcast:31 row_mask:0xc"):
        a(f"s_nop 0\nv_add_f32_dpp v{s1}, v{s1}, v{s1} {m} bank_mask:0xf\nv_add_f32_dpp v{q1}, v{q1}, v{q1} {m} bank_mask:0xf")
    g = 36
    a(f"""v_mul_f32 v{g}, 0x3a638e39, v{s1}
v_mul_f32 v{g+2}, 0x3a638e39, v{q1}
v_fma_f32 v{g+2}, -v{g}, v{g}, v{g+2}
v_max_f32 v{g+2}, 0, v{g+2}""")
    round_bf16(a, g+2)
    a(f"v_add_f32 v{g+2}, 0x3727c5ac, v{g+2}")
    round_bf16(a, g+2)
    a(f"v_sqrt_f32 v{g+2}, v{g+2}")
    round_bf16(a, g)
    round_bf16(a, g+2)
    lsk = a.label("stsk")
    a(f"""v_rcp_f32 v{g+2}, v{g+2}
v_mov_b32 v{g+1}, v{vTAG}
v_mov_b32 v{g+3}, v{vTAG}
s_lshl_b32 s{T+12}, s{S_W}, 4
s_add_u32 s{T+12}, s{T+12}, {L_STC}
v_mov_b32 v{vT0}, s{T+12}
s_mov_b32 exec_lo, 0
s_brev_b32 exec_hi, 1
ds_write_b128 v{vT0}, {vr(g,4)}
s_mov_b64 exec, -1
s_lshl_b32 s{T+12}, s2, 7
s_add_u32 s{T+12}, s{T+12}, {F_STAT}
v_add_u32 v{vT0}, {L_STC}, v{vL16}
s_waitcnt lgkmcnt(0)
s_barrier
s_cmp_lg_u32 s{S_W}, 0
s_cbranch_scc1 {lsk}
s_mov_b64 exec, 0xff
ds_read_b128 {vr(g,4)}, v{vT0}
s_waitcnt lgkmcnt(0)
buffer_store_dwordx4 {vr(g,4)}, v{vL16}, {WS}, s{T+12} offen sc1
s_mov_b64 exec, -1
{lsk}:""")
    stamp(a, 9)
    a(f"s_cmp_lt_u32 s{S_SLOT}, {NO}\ns_cbranch_scc1 L_owner")
    if 'nopb' not in OPT:
        a("s_barrier")
    a("s_branch L_s0_w")
    a("L_s0_none:")
    if 'cpf' in OPT:
        a(f"""s_getpc_b64 s[{T}:{T+1}]
L_pc:
s_sub_u32 s{T}, s{T}, L_pc-{NAME}
s_subb_u32 s{T+1}, s{T+1}, 0
s_lshl_b32 s{T+2}, s{S_W}, 10
v_add_u32 v{vT0}, s{T+2}, v{vL16}""")
        for n in range(3):
            a(f"global_load_dwordx4 v[{100+4*n}:{103+4*n}], v{vT0}, s[{T}:{T+1}]\nv_add_u32 v{vT0}, 0x2000, v{vT0}\nv_min_u32 v{vT0}, L_codeend-{NAME}-16, v{vT0}")
    a(f"s_waitcnt lgkmcnt(0)\ns_load_dword s{S_TAG}, s[{S_WS}:{S_WS+1}], {EPOCH}")
    srd(a, R_WS, S_WS, SZ_WS)
    lane_consts(a)
    get_tag(a)
    a("L_s0_w:")
    b_setup(a)
    w_dma(a, 18)

VOX = 96

S_UCT, S_UTB = 9, 10
vDU = 14
KE = int(OPT.get('ke', 12))
def wo_dma(a, n0, n1):
    a(f"s_add_u32 s{T+10}, s{S_W}, {4*n0-4}")
    for n in range(n0, n1):
        a(f"""s_lshl_b32 m0, s{T+10}, 10
s_mul_i32 s{T+11}, s{T+10}, {8*2304}
buffer_load_dwordx4 v{vDU}, {RB}, s{T+11} offen lds""")
        if n < n1-1:
            a(f"s_add_u32 s{T+10}, s{T+10}, 4")

def gemm_loop(a, nsteps, LA, RING, vAcc, vWF, vH, vA0, vA1, vaddr, sH, lds_first, w_is_a, pre=None, rot=None, bar_at=None):
    WA = 2
    state = dict(issued=0)
    if rot:
        sR, sHs, sHe, sLo, sZ, sLe, vC0, vC1 = rot
        a(f"""s_mov_b32 s{sHs}, s{sH}
s_add_u32 s{sHe}, s{sH}, {nsteps*1024}
s_lshl_b32 s{sLo}, s{sR}, 12
s_add_u32 s{sH}, s{sH}, s{sLo}
s_lshl_b32 s{sLo}, s{sR}, 13
s_mov_b32 s{sZ}, 0
s_mov_b32 s{sLe}, {nsteps*2048}""")
    def hload():
        s = state['issued']
        a(f"buffer_load_dwordx4 {vr(vH+4*(s % RING),4)}, v{vaddr}, {WS}, s{sH} offen offset:{(s&3)*1024} sc1")
        if (s & 3) == 3 and s < nsteps-1:
            if rot: wrap_add(a, sH, 4096, sHe, sHs)
            else: a(f"s_add_u32 s{sH}, s{sH}, 4096")
        state['issued'] += 1
    def wread(s):
        if rot:
            if (s & 3) == 0:
                a(f"v_add_u32 v{vC0}, s{sLo}, v{vA0}\nv_add_u32 v{vC1}, s{sLo}, v{vA1}")
                wrap_add(a, sLo, 8192, sLe, sZ)
            trreads(a, vWF + 8*(s & 3), vC0, vC1, (s & 3)*2048)
            return
        if s and (s & 31) == 0:
            a(f"v_add_u32 v{vA0}, 0x10000, v{vA0}\nv_add_u32 v{vA1}, 0x10000, v{vA1}")
        trreads(a, vWF + 8*(s & 3), vA0, vA1, (s & 31)*2048)
    if lds_first:
        for s in range(WA): wread(s)
    for s in range(LA): hload()
    if pre: pre()
    if not lds_first:
        for s in range(WA): wread(s)
    for s in range(nsteps):
        lg = 4*min(WA-1, nsteps-1 - s)
        a(f"s_waitcnt vmcnt({state['issued'] - s - 1}) lgkmcnt({lg})")
        if s == 0 and lds_first: stamp(a, 4)
        h = vH+4*(s % RING); w0 = vWF+8*(s & 3)
        mfma(a, vAcc, *((w0, h) if w_is_a else (h, w0)), s == 0)
        if s + WA < nsteps:
            wread(s + WA)
        mfma(a, vAcc+16, *((w0+4, h) if w_is_a else (h, w0+4)), s == 0)
        if state['issued'] < nsteps:
            hload()
        if bar_at is not None and s == bar_at:
            a("s_barrier")

SZ = int(OPT['sz']) if 'sz' in OPT else None
UM = int(OPT.get('umap', 2)); UML = UM.bit_length()-1
def phase_bc(a):
    sTb, sOff, sH, sF = T+1, T+4, T+5, T+6
    vA0, vA1 = V0+1, V0+2
    vAcc = 20
    vWF = 52
    vH = 84
    a("L_b:")
    stamp(a, 1)
    srd(a, R_B, S_WO, SZ_WO)
    a(f"""s_sub_u32 s{S_SLOT}, s{S_SLOT}, {NO}
s_and_b32 s{T+14}, s{S_G}, {UM-1}
s_mul_i32 s{T+14}, s{T+14}, 18
s_add_u32 s{T+14}, s{T+14}, s{S_SLOT}
s_lshr_b32 s{S_UCT}, s{T+14}, {UML}
s_and_b32 s{T+14}, s{T+14}, {UM-1}
s_lshr_b32 s{S_UTB}, s{S_G}, {UML}
s_lshl_b32 s{S_UTB}, s{S_UTB}, {UML}
s_add_u32 s{S_UTB}, s{S_UTB}, s{T+14}
s_lshl_b32 s{S_UTB}, s{S_UTB}, 1
s_and_b32 s{T+14}, s{S_W}, 1
s_add_u32 s{S_UTB}, s{S_UTB}, s{T+14}
v_lshlrev_b32 v{vDU}, 4, v{vCH}
v_mul_u32_u24 v{vT0}, 2304, v{vR8}
s_lshl_b32 s{T+14}, s{S_UCT}, 7
v_add3_u32 v{vDU}, v{vDU}, v{vT0}, s{T+14}
s_lshl_b32 s{sTb}, s{S_BRT}, 2
s_and_b32 s{sOff}, s{S_W}, 3
s_add_u32 s{sTb}, s{sTb}, s{sOff}
s_mul_i32 s{sH}, s{sTb}, {72*1024}
s_add_u32 s{sH}, s{sH}, {WS_H}
v_mov_b32 v{vA0}, v{vB0}
v_mov_b32 v{vA1}, v{vB1}
v_min_u32 v{vT0}, 17, v0
v_lshlrev_b32 v{vT0}, 7, v{vT0}
s_lshr_b32 s{sOff}, s{S_BRT}, 1
s_mul_i32 s{sOff}, s{sOff}, {18*128}
s_add_u32 s{sOff}, s{sOff}, {F_H}
s_mul_i32 s{sF}, s{S_BRT}, 54
s_add_u32 s{sF}, s{sF}, s{S_BCT}
s_lshl_b32 s{sF}, s{sF}, 7
s_add_u32 s{sF}, s{sF}, {F_QKV}
s_waitcnt vmcnt(0)""")
    a("s_barrier")
    stamp(a, 2)
    a(f"s_cmp_ge_u32 s{S_W}, 4\ns_cbranch_scc1 L_ld")
    HPWG = OPT.get('hp', 'w') == 'wg'
    if HPWG:
        poll(a, vT0, f"s{sOff}", vT1)
    else:
        wpoll(a, vT0, f"s{sOff}", vT1)
    stamp(a, 3)
    LA = int(OPT['la'])
    gemm_loop(a, 72, LA, LA+4, vAcc, vWF, vH, vA0, vA1, vL16, sH, True, True, bar_at=SZ)
    stamp(a, 5)
    a(f"""s_mul_i32 s{sH}, s{sTb}, {216*1024}
s_lshl_b32 s{sOff}, s{S_BCT}, 12
s_add_u32 s{sH}, s{sH}, s{sOff}
s_add_u32 s{sH}, s{sH}, {WS_QKV}
s_nop 7""")
    for u in range(4):
        if u == 2:
            a("s_nop 1")
        for r in range(4*u, 4*u+4):
            a(f"v_cvt_pk_bf16_f32 v{vWF+r}, v{vAcc+2*r}, v{vAcc+2*r+1}")
        a(f"buffer_store_dwordx4 {vr(vWF+4*u,4)}, v{vL16}, {WS}, s{sH} offen offset:{1024*u} sc1")
    a("s_barrier")
    stamp(a, 6)
    sKh = T+2
    a(f"""s_lshr_b32 s{sKh}, s{S_W}, 1
s_mul_i32 s{sH}, s{S_UTB}, {216*1024}
s_mul_i32 s{sOff}, s{sKh}, {36*1024}
s_add_u32 s{sH}, s{sH}, s{sOff}
s_add_u32 s{sH}, s{sH}, {WS_QKV + 144*1024}
s_mul_i32 s{sOff}, s{sKh}, {576*128}
v_add_u32 v{vA0}, s{sOff}, v{vB0}
v_add_u32 v{vA1}, s{sOff}, v{vB1}
v_min_u32 v{vT0}, 8, v0
v_lshlrev_b32 v{vT0}, 7, v{vT0}
s_lshr_b32 s{T+7}, s{S_UTB}, 2
s_mul_i32 s{T+7}, s{T+7}, {54*128}
s_mul_i32 s{sOff}, s{sKh}, {9*128}
s_add_u32 s{T+7}, s{T+7}, s{sOff}
s_add_u32 s{T+7}, s{T+7}, {F_QKV + 36*128}""")
    set_flag(a, f"s{sF}")
    stamp(a, 7)
    a(f"s_cmp_ge_u32 s{S_SLOT}, 18\ns_cbranch_scc1 L_c_notu")
    if 'udelay' in OPT:
        a(f"s_sleep {OPT['udelay']}")
    UROT = int(OPT.get('urot', 0))
    if UROT:
        a(f"s_mul_i32 s{T+8}, s{S_UCT}, {UROT}")
        mod9(a, T+8, T+8, T+9)
    wpoll(a, vT0, f"s{T+7}", vT1)
    stamp(a, 12)
    LA = int(OPT.get('lau', 12))
    gemm_loop(a, 36, LA, min(36, LA+4), vAcc, vWF, vH, vA0, vA1, vP16, sH, False, False, pre=lambda: (a("s_barrier"), stamp(a, 11)),
              rot=(T+8, T+9, T+10, T+11, T+12, T+13, V0, V0+3) if UROT else None)
    stamp(a, 13)
    lk1 = a.label("kh1"); lj = a.label("j")
    a(f"""s_lshl_b32 s{sOff}, s{S_W}, 12
s_add_u32 s{sOff}, s{sOff}, {L_MISC}
v_add_u32 v{vT0}, s{sOff}, v{vL16}
v_xor_b32 v{vT1}, {2*4096}, v{vT0}
s_lshr_b32 s{sH}, s{S_UTB}, 3
s_mul_i32 s{sF}, s{sH}, 18
s_add_u32 s{sF}, s{sF}, s{S_UCT}
s_lshl_b32 s{sH}, s{sF}, 1
s_add_u32 s{sH}, s{sH}, s{sKh}
s_lshl_b32 s{sH}, s{sH}, 3
s_and_b32 s{sOff}, s{S_UTB}, 7
s_add_u32 s{sH}, s{sH}, s{sOff}
s_lshl_b32 s{sH}, s{sH}, 11
s_add_u32 s{sH}, s{sH}, {WS_U}
s_lshl_b32 s{sF}, s{sF}, 2
s_bfe_u32 s{sOff}, s{S_UTB}, 0x20001
s_add_u32 s{sF}, s{sF}, s{sOff}
s_lshl_b32 s{sF}, s{sF}, 7
s_add_u32 s{sF}, s{sF}, {F_U}
s_cmp_lg_u32 s{sKh}, 0
s_cbranch_scc1 {lk1}""")
    for q in range(4):
        a(f"ds_write_b128 v{vT0}, {vr(vAcc+16+4*q,4)} offset:{q*1024}")
    a(f"s_branch {lj}\n{lk1}:")
    for q in range(4):
        a(f"ds_write_b128 v{vT0}, {vr(vAcc+4*q,4)} offset:{q*1024}")
    for r in range(16):
        a(f"v_mov_b32 v{vAcc+r}, v{vAcc+16+r}")
    a(f"{lj}:\ns_waitcnt lgkmcnt(0)\ns_barrier")
    for q in range(4):
        a(f"ds_read_b128 {vr(vWF+4*q,4)}, v{vT1} offset:{q*1024}")
    for u in range(2):
        a(f"s_waitcnt lgkmcnt({2-2*u})")
        for r in range(8*u, 8*u+8):
            a(f"v_add_f32 v{vAcc+r}, v{vAcc+r}, v{vWF+r}")
        for r in range(4*u, 4*u+4):
            a(f"v_cvt_pk_bf16_f32 v{vWF+16+r}, v{vAcc+2*r}, v{vAcc+2*r+1}")
        a(f"buffer_store_dwordx4 {vr(vWF+16+4*u,4)}, v{vL16}, {WS}, s{sH} offen offset:{1024*u} sc1")
    set_flag(a, f"s{sF}")
    a("s_branch L_c_done")
    lnu = a.label("ldnu")
    vWo = 20
    NE = int(OPT.get('ne', 18))
    a("L_ld:")
    if SZ is not None:
        a("s_barrier")
    a(f"""s_cmp_ge_u32 s{S_SLOT}, 18
s_cbranch_scc1 {lnu}
s_sub_u32 s{T+10}, s{S_W}, 4
s_lshl_b32 s{T+11}, s{T+10}, 10
v_add_u32 v{vT0}, s{T+11}, v{vL16}
s_lshr_b32 s{T+12}, s{S_UTB}, 1
s_and_b32 s{T+12}, s{T+12}, {UM-1}
s_mul_i32 s{T+12}, s{T+12}, {144//UM}
s_add_u32 s{T+10}, s{T+10}, s{T+12}
s_lshl_b32 s{T+12}, s{T+12}, 10""")
    def nxt(n):
        if n < 35:
            a(f"s_add_u32 s{T+10}, s{T+10}, 4")
            if n % 9 == 8:
                a(f"""s_sub_u32 s{T+11}, s{T+10}, 144
s_cmp_ge_u32 s{T+10}, 144
s_cselect_b32 s{T+10}, s{T+11}, s{T+10}""")
    for n in range(NE):
        a(f"""s_mul_i32 s{T+11}, s{T+10}, {8*2304}
buffer_load_dwordx4 {vr(vWo+4*n,4)}, v{vDU}, {RB}, s{T+11} offen
{THRO}""")
        nxt(n)
    stamp(a, 4)
    if HPWG:
        a("s_barrier")
    a("s_barrier")
    stamp(a, 5)
    WS_ = min(NE, int(OPT.get('wsplit', 12)))
    def wr(n):
        if n % 9 == 0:
            a(f"v_add_u32 v{vT1}, s{T+12}, v{vT0}")
            a(f"""s_add_u32 s{T+12}, s{T+12}, {36*1024}
s_cmp_ge_u32 s{T+12}, {144*1024}
s_cselect_b32 s{T+12}, 0, s{T+12}""")
        a(f"s_waitcnt vmcnt({NE-1-n})\nds_write_b128 v{vT1}, {vr(vWo+4*n,4)} offset:{(n % 9)*4096}")
    for n in range(WS_): wr(n)
    a("s_barrier")
    for n in range(WS_, NE): wr(n)
    for n in range(NE, 36):
        a(f"""s_lshl_b32 m0, s{T+10}, 10
s_mul_i32 s{T+11}, s{T+10}, {8*2304}
buffer_load_dwordx4 v{vDU}, {RB}, s{T+11} offen lds""")
        nxt(n)
    a(f"""s_waitcnt vmcnt(0) lgkmcnt(0)""")
    stamp(a, 11)
    a(f"""s_barrier
s_barrier
s_barrier
s_branch L_c_done
{lnu}:
s_barrier
s_barrier""")
    if HPWG:
        a("s_barrier")
    a("L_c_notu:")
    sQb, sKb, sKq, sJ, sK, sQ, sTy = T, T+1, T+2, T+3, T+5, T+6, T+9
    sM = T+10
    sK1 = T+12
    vS = 56
    RING = 15
    a(f"""s_sub_u32 s{sJ}, s{S_SLOT}, 18
s_lshr_b32 s{sTy}, s{sJ}, 2
s_and_b32 s{sKq}, s{S_W}, 3
s_and_b32 s{sQb}, s{S_G}, 1
s_lshl_b32 s{sQb}, s{sQb}, 2
s_and_b32 s{sOff}, s{sJ}, 3
s_add_u32 s{sQb}, s{sQb}, s{sOff}
s_and_b32 s{sKb}, s{S_G}, 2
s_lshl_b32 s{sKb}, s{sKb}, 1
s_lshr_b32 s{sOff}, s{S_G}, 2
s_lshl_b32 s{sOff}, s{sOff}, 3
s_add_u32 s{sQb}, s{sQb}, s{sOff}
s_add_u32 s{sKb}, s{sKb}, s{sOff}
s_min_u32 s{sK1}, s{sTy}, 1
s_add_u32 s{sK1}, s{sK1}, s{sTy}
s_mul_i32 s{sK}, s{sKb}, {216*1024}
s_mul_i32 s{sQ}, s{sQb}, {216*1024}
s_mul_i32 s{sOff}, s{sKq}, {18*1024}
s_add_u32 s{sK}, s{sK}, s{sOff}
s_add_u32 s{sQ}, s{sQ}, s{sOff}
s_add_u32 s{sK}, s{sK}, {WS_QKV + 72*1024}
s_add_u32 s{sQ}, s{sQ}, {WS_QKV}
v_min_u32 v{vT0}, 17, v{vTok}
v_lshlrev_b32 v{vT0}, 7, v{vT0}
s_lshr_b32 s{sOff}, s{sKb}, 2
s_mul_i32 s{sOff}, s{sOff}, {54*128}
s_add_u32 s{sOff}, s{sOff}, {18*128}
s_lshr_b32 s{T+13}, s{sQb}, 2
s_mul_i32 s{T+13}, s{T+13}, {54*128}
s_sub_u32 s{sOff}, s{sOff}, s{T+13}
v_mul_lo_u32 v{vT1}, v{vHF}, s{sOff}
v_add_u32 v{vT0}, v{vT0}, v{vT1}
v_add_u32 v{vT0}, s{T+13}, v{vT0}
v_and_b32 v{vT2}, 0x2ff, v{vP16}
v_and_b32 v{vT1}, 16, v0
v_lshl_add_u32 v{vT2}, v{vT1}, 6, v{vT2}
s_and_b32 s{sOff}, s{sTy}, 1
s_lshl_b32 s{sOff}, s{sOff}, 8
s_add_u32 s{sOff}, s{sOff}, {216*1024}
v_add_u32 v{vT2}, s{sOff}, v{vT2}
s_mul_i32 s{sOff}, s{sK1}, {216*1024}
v_add_u32 v{V0}, s{sOff}, v{vP16}
s_mov_b32 s{sOff}, {F_QKV}""")
    poll(a, vT0, f"s{sOff}", vT1)
    stamp(a, 12)
    lsi = a.label("sidle")
    a(f"s_cmp_ge_u32 s{S_W}, 4\ns_cbranch_scc1 {lsi}")
    LA = int(OPT.get('las', 4))
    vS = 72; RING = 8
    vAc3 = 56
    assert LA < RING
    def sload(p):
        r = vS + 20*(p % RING)
        o = (p & 1)*2048
        a(f"""buffer_load_dwordx4 {vr(r,4)}, v{vL16}, {WS}, s{sQ} offen offset:{o} sc1
buffer_load_dwordx4 {vr(r+4,4)}, v{V0}, {WS}, s{sK} offen offset:{o} sc1
buffer_load_dwordx4 {vr(r+8,4)}, v{vT2}, {WS}, s{sK} offen offset:{o} sc1
buffer_load_dwordx4 {vr(r+12,4)}, v{vL16}, {WS}, s{sQ} offen offset:{o+1024} sc1
buffer_load_dwordx4 {vr(r+16,4)}, v{V0}, {WS}, s{sK} offen offset:{o+1024} sc1""")
        if p & 1:
            a(f"s_add_u32 s{sK}, s{sK}, 4096\ns_add_u32 s{sQ}, s{sQ}, 4096")
    for p in range(LA):
        sload(p)
    for p in range(9):
        y = 5*(min(9, p + LA) - p - 1)
        r = vS + 20*(p % RING)
        a(f"s_waitcnt vmcnt({y+3})")
        mfma(a, vAcc, r+4, r, p == 0)
        a(f"s_waitcnt vmcnt({y+2})")
        mfma(a, vAcc+16, r+8, r, p == 0)
        a(f"s_waitcnt vmcnt({y+1})")
        mfma(a, vAc3, r+8, r+12, p == 0)
        a(f"s_waitcnt vmcnt({y})")
        mfma(a, vAcc, r+16, r+12)
        if p + LA < 9:
            sload(p + LA)
    stamp(a, 13)
    QS, HS, PSZ = 1056, 528, 8448
    a(f"""s_mul_i32 s{sOff}, s{S_W}, {PSZ}
v_lshl_add_u32 v{vT0}, v{vHF}, 4, v{vL16}
v_add_u32 v{vT0}, s{sOff}, v{vT0}
s_nop 7""")
    for r in range(8):
        a(f"v_add_f32 v{vAcc+16+r}, v{vAcc+16+r}, v{vAc3+8+r}")
    for q in (4, 5, 0, 1, 2, 3):
        a(f"ds_write_b128 v{vT0}, {vr(vAcc+4*q,4)} offset:{q*QS}")
    a(f"""{lsi}:
v_bfe_u32 v{vT1}, v0, 2, 2
v_and_b32 v{vT2}, 1, v0
v_lshl_add_u32 v{vT1}, v{vT1}, 1, v{vT2}
v_mul_u32_u24 v{vT1}, {QS}, v{vT1}
v_bfe_u32 v{vT2}, v0, 1, 1
v_mul_u32_u24 v{vT2}, {HS}, v{vT2}
v_lshrrev_b32 v{vT0}, 4, v0
s_lshl_b32 s{sOff}, s{S_W}, 2
v_add_u32 v{vT0}, s{sOff}, v{vT0}
v_lshl_add_u32 v{vT1}, v{vT0}, 4, v{vT1}
v_add_u32 v{vT1}, v{vT1}, v{vT2}
v_and_b32 v{vT2}, 7, v0
v_lshlrev_b32 v{vT2}, 4, v{vT2}
v_lshl_add_u32 v{vT2}, v{vT0}, 10, v{vT2}
s_lshl_b32 s{sOff}, s{sK1}, 7
v_mov_b32 v{vT0}, s{sOff}
v_and_b32 v{vT3}, 8, v0
v_cmp_ne_u32 vcc, 0, v{vT3}
s_and_b32 s{sOff}, s{sTy}, 1
s_lshl_b32 s{sOff}, s{sOff}, 6
s_add_u32 s{sOff}, s{sOff}, 128
v_mov_b32 v{vT3}, s{sOff}
s_lshl_b32 s{sJ}, s{sQb}, 15
v_cndmask_b32 v{vT0}, v{vT0}, v{vT3}, vcc
v_add_u32 v{vT2}, v{vT2}, v{vT0}
s_and_b32 s{sOff}, s{sKb}, 7
s_lshl_b32 s{sOff}, s{sOff}, 7
s_add_u32 s{sJ}, s{sJ}, s{sOff}
s_add_u32 s{sJ}, s{sJ}, {WS_L}
s_mov_b32 s{sM}, 0x0fff0fff
s_cmp_eq_u32 s{sTy}, 2
s_cselect_b32 s{sM}, 0x00ff00ff, s{sM}
s_mov_b32 s{sM+1}, s{sM}
v_mov_b32 v53, v{vTAG}
v_mov_b32 v55, v{vTAG}
s_waitcnt lgkmcnt(0)
s_barrier""")
    for j in range(4):
        a(f"ds_read_b128 {vr(vAcc+4*j,4)}, v{vT1} offset:{j*PSZ}")
    a("s_waitcnt lgkmcnt(2)")
    for r in range(4):
        a(f"v_add_f32 v{vAcc+r}, v{vAcc+r}, v{vAcc+4+r}")
    a("s_waitcnt lgkmcnt(0)")
    for r in range(4):
        a(f"v_add_f32 v{vAcc+8+r}, v{vAcc+8+r}, v{vAcc+12+r}")
    for r in range(4):
        a(f"v_add_f32 v{vAcc+r}, v{vAcc+r}, v{vAcc+8+r}")
    sc = struct.unpack('<I', struct.pack('<f', D ** -0.5))[0]
    for r in range(2):
        a(f"v_cvt_pk_bf16_f32 v{52+2*r}, v{vAcc+2*r}, v{vAcc+2*r+1}")
    for r in range(2):
        unpack(a, vAcc+2*r, vAcc+2*r+1, 52+2*r)
    for r in range(4):
        a(f"v_mul_f32 v{vAcc+r}, {hex(sc)}, v{vAcc+r}")
    for r in range(2):
        a(f"v_cvt_pk_bf16_f32 v{52+2*r}, v{vAcc+2*r}, v{vAcc+2*r+1}")
    a(f"s_mov_b64 exec, s[{sM}:{sM+1}]\nbuffer_store_dwordx4 v[52:55], v{vT2}, {WS}, s{sJ} offen sc1\ns_mov_b64 exec, -1")
    a("L_c_done:")
    stamp(a, 14)

def phase_d(a):
    sQt, sCt, sCb, sKh, sOff, sXo, sJ, sU, sB, sCol = T, T+1, T+2, T+3, T+4, T+5, T+6, T+7, T+8, T+9
    vXo, vMx, vS, vLa, vPa, vLw = V0, V0+1, V0+2, V0+3, V0+4, V0+5
    vLd = 24
    vX = 40
    vG = 44
    vF = 56
    vR = 72
    vAcc = 80
    vU = 96
    vP = 128
    PS = 1056
    L_P, L_EX = 40960, 65536
    srd(a, R_A, S_X, SZ_X)
    srd(a, R_B, S_OUT, SZ_X)
    a(f"s_sub_u32 s{sJ}, 26, s{S_SLOT}" if 'dold' in OPT else f"s_mov_b32 s{sJ}, s{S_SLOT}")
    a(f"""s_cmp_ge_u32 s{sJ}, 18
s_cbranch_scc1 L_fin
s_and_b32 s{sOff}, s{S_G}, 3
s_mul_i32 s{sOff}, s{sOff}, 18
s_add_u32 s{sOff}, s{sOff}, s{sJ}
s_lshr_b32 s{sCt}, s{sOff}, 3
s_and_b32 s{sJ}, s{sOff}, 7
s_lshr_b32 s{sB}, s{S_G}, 2
s_lshl_b32 s{sQt}, s{sB}, 3
s_add_u32 s{sQt}, s{sQt}, s{sJ}
s_and_b32 s{sCb}, s{S_W}, 3
s_lshr_b32 s{sKh}, s{S_W}, 2
s_lshl_b32 s{sCol}, s{sCt}, 7
s_lshl_b32 s{sOff}, s{sCb}, 5
s_add_u32 s{sCol}, s{sCol}, s{sOff}
s_lshl_b32 s{sOff}, s{sKh}, 4
s_add_u32 s{sCol}, s{sCol}, s{sOff}
s_mul_i32 s{sXo}, s{sQt}, {32*2304}
s_lshl_b32 s{sOff}, s{sCol}, 1
s_add_u32 s{sXo}, s{sXo}, s{sOff}
v_mul_u32_u24 v{vXo}, 2304, v{vTok}
v_lshl_add_u32 v{vXo}, v{vHF}, 4, v{vXo}
buffer_load_dwordx4 {vr(vX,4)}, v{vXo}, {RA}, s{sXo} offen
s_mul_i32 s{sU}, s{sB}, 36
s_lshl_b32 s{sOff}, s{sCt}, 2
s_add_u32 s{sU}, s{sU}, s{sOff}
s_add_u32 s{sU}, s{sU}, s{sCb}
s_lshr_b32 s{T+10}, s{sU}, 1
s_lshl_b32 s{sU}, s{sU}, 4
s_lshl_b32 s{sOff}, s{sKh}, 3
s_add_u32 s{sU}, s{sU}, s{sOff}
s_lshl_b32 s{sU}, s{sU}, 10
s_add_u32 s{sU}, s{sU}, {WS_U}
s_lshl_b32 s{T+10}, s{T+10}, 1
s_add_u32 s{T+10}, s{T+10}, s{sKh}
s_lshl_b32 s{T+10}, s{T+10}, 8
s_add_u32 s{T+10}, s{T+10}, {F_U}
v_and_b32 v{vT0}, 1, v0
v_lshlrev_b32 v{vT0}, 7, v{vT0}
v_add_u32 v{vT1}, s{T+10}, v{vT0}
s_lshr_b32 s{sOff}, s{sCol}, 6
s_lshl_b32 s{sOff}, s{sOff}, 7
s_add_u32 s{sOff}, s{sOff}, {F_G}
v_mov_b32 v{vT2}, s{sOff}
v_cmp_lt_u32 vcc, 9, v0
s_lshl_b32 s{sOff}, s{sQt}, 15
s_lshl_b32 s{T+10}, s{S_W}, 12
v_cndmask_b32 v{vT1}, v{vT1}, v{vT2}, vcc
s_add_u32 s{sOff}, s{sOff}, s{T+10}
s_add_u32 s{sOff}, s{sOff}, {WS_L + 3*1024 + 124}
v_lshlrev_b32 v{vT2}, 7, v0
v_add_u32 v{vT2}, s{sOff}, v{vT2}
v_cmp_gt_u32 vcc, 8, v0
v_and_b32 v{vT3}, 15, v0
v_lshrrev_b32 v{vT0}, 4, v0
v_cndmask_b32 v{vT1}, v{vT1}, v{vT2}, vcc
s_lshl_b32 s{sOff}, s{S_W}, 2
v_add_u32 v{vT0}, s{sOff}, v{vT0}
v_lshlrev_b32 v{vLa}, 10, v{vT0}
v_lshl_add_u32 v{vLa}, v{vT3}, 4, v{vLa}
v_lshrrev_b32 v{vT2}, 1, v{vT3}
v_mul_u32_u24 v{vLw}, {PS//2}, v{vT2}
v_lshl_add_u32 v{vLw}, v{vT0}, 4, v{vLw}
v_and_b32 v{vT2}, 1, v0
v_lshl_add_u32 v{vLw}, v{vT2}, 3, v{vLw}
v_lshl_add_u32 v{vPa}, v{vHF}, 4, v{vL16}
s_mul_i32 s{sOff}, s{sKh}, {8*PS}
v_add_u32 v{vPa}, s{sOff}, v{vPa}
s_mul_i32 s{T+11}, s{sB}, 4608
s_lshl_b32 s{T+10}, s{sCol}, 2
s_add_u32 s{T+11}, s{T+11}, s{T+10}
s_add_u32 s{T+11}, s{T+11}, {WS_GATE}
v_lshlrev_b32 v{vT0}, 5, v{vHF}
s_lshl_b32 s{sOff}, s{sQt}, 15
s_add_u32 s{sOff}, s{sOff}, {WS_L}""")
    vFa, vFl = 22, 23
    sUd = T+12
    def uloads():
        for s in range(8):
            a(f"buffer_load_dwordx4 {vr(vU+4*s,4)}, v{vL16}, {WS}, s{sU} offen offset:{(s&3)*1024} sc1")
            if s == 3:
                a(f"s_add_u32 s{sU}, s{sU}, 4096")
        a(f"""buffer_load_dwordx4 {vr(vG,4)}, v{vT0}, {WS}, s{T+11} offen sc1
buffer_load_dwordx4 {vr(vG+4,4)}, v{vT0}, {WS}, s{T+11} offen offset:16 sc1
s_mov_b32 s{sUd}, 1""")
        stamp(a, 8)
    l = a.label("lp"); d = a.label("lpd"); nu = a.label("nu"); l3 = a.label("lv"); d3 = a.label("lvd"); nu2 = a.label("nu2")
    def lloads():
        for n in range(4):
            a(f"buffer_load_dwordx4 {vr(vLd+4*n,4)}, v{vLa}, {WS}, s{sOff} offen offset:{256*n} sc1")
    a(f"""v_mov_b32 v{vFa}, v{vT1}
s_mov_b32 s{sUd}, 0
{l}:
buffer_load_dword v{vFl}, v{vFa}, {WS}, 0 offen sc1
s_waitcnt vmcnt(0)
v_cmp_ne_u32 vcc, s{S_TAG}, v{vFl}
s_and_b32 s{T+13}, vcc_lo, 255
s_cbranch_scc0 {d}
s_lshr_b32 s{T+13}, vcc_lo, 8
s_cbranch_scc0 {d}
s_sleep {OPT.get('lsleep', 1)}
s_sub_u32 s{S_TO}, s{S_TO}, 1
s_cmp_lg_u32 s{S_TO}, 0
s_cbranch_scc1 {l}
s_mov_b32 s{S_TO}, 1
{d}:""")
    lloads()
    a(f"""s_lshr_b32 s{T+13}, vcc_lo, 8
s_or_b32 s{T+13}, s{T+13}, s{sUd}
s_cbranch_scc1 {nu2}""")
    uloads()
    a(f"""s_waitcnt vmcnt(10)
s_branch {l3}_c
{nu2}:
buffer_load_dword v{vFl}, v{vFa}, {WS}, 0 offen sc1
s_waitcnt vmcnt(1)
s_branch {l3}_c
{l3}:""")
    lloads()
    a(f"""s_waitcnt vmcnt(0)
{l3}_c:
v_min_u32 v{vT1}, v{vLd+1}, v{vLd+3}
v_max_u32 v{vT2}, v{vLd+1}, v{vLd+3}""")
    for n in range(1, 4):
        a(f"v_min3_u32 v{vT1}, v{vT1}, v{vLd+4*n+1}, v{vLd+4*n+3}\nv_max3_u32 v{vT2}, v{vT2}, v{vLd+4*n+1}, v{vLd+4*n+3}")
    a(f"""v_cmp_ne_u32 vcc, s{S_TAG}, v{vT1}
v_cmp_ne_u32 s[{T+14}:{T+15}], s{S_TAG}, v{vT2}
s_or_b64 vcc, vcc, s[{T+14}:{T+15}]
s_cbranch_vccz {d3}
s_sub_u32 s{S_TO}, s{S_TO}, 1
s_cmp_lg_u32 s{S_TO}, 0
s_cbranch_scc1 {l3}
s_mov_b32 s{S_TO}, 1
{d3}:""")
    stamp(a, 9)
    for i in range(8):
        unpack(a, vF+2*i, vF+2*i+1, vLd+2*i)
    a(f"""v_max3_f32 v{vMx}, v{vF}, v{vF+1}, v{vF+2}
v_max3_f32 v{vS}, v{vF+3}, v{vF+4}, v{vF+5}
v_max3_f32 v{vMx}, v{vMx}, v{vF+6}, v{vF+7}
v_max3_f32 v{vS}, v{vS}, v{vF+8}, v{vF+9}
v_max3_f32 v{vMx}, v{vMx}, v{vF+10}, v{vF+11}
v_max3_f32 v{vS}, v{vS}, v{vF+12}, v{vF+13}
v_max3_f32 v{vMx}, v{vMx}, v{vF+14}, v{vF+15}
v_max_f32 v{vMx}, v{vMx}, v{vS}""")
    for m in ("quad_perm:[1,0,3,2]", "quad_perm:[2,3,0,1]", "row_half_mirror", "row_mirror"):
        a(f"s_nop 1\nv_max_f32_dpp v{vMx}, v{vMx}, v{vMx} {m} row_mask:0xf bank_mask:0xf")
    a(f"s_mov_b32 s{T+10}, {hex(LOG2E)}\nv_mul_f32 v{vMx}, s{T+10}, v{vMx}")
    for i in range(16):
        a(f"v_fma_f32 v{vF+i}, v{vF+i}, s{T+10}, -v{vMx}")
    for i in range(16):
        a(f"v_exp_f32 v{vF+i}, v{vF+i}")
    a(f"v_add_f32 v{vS}, v{vF}, v{vF+1}\nv_add_f32 v{vMx}, v{vF+2}, v{vF+3}")
    for i in range(4, 16, 2):
        a(f"v_add_f32 v{vS}, v{vS}, v{vF+i}\nv_add_f32 v{vMx}, v{vMx}, v{vF+i+1}")
    a(f"v_add_f32 v{vS}, v{vS}, v{vMx}")
    for m in ("quad_perm:[1,0,3,2]", "quad_perm:[2,3,0,1]", "row_half_mirror", "row_mirror"):
        a(f"s_nop 1\nv_add_f32_dpp v{vS}, v{vS}, v{vS} {m} row_mask:0xf bank_mask:0xf")
    a(f"v_rcp_f32 v{vS}, v{vS}\ns_nop 0")
    for i in range(16):
        a(f"v_mul_f32 v{vF+i}, v{vF+i}, v{vS}")
    for i in range(8):
        a(f"v_cvt_pk_bf16_f32 v{vLd+i}, v{vF+2*i}, v{vF+2*i+1}")
    for n in range(4):
        a(f"ds_write_b64 v{vLw}, {vr(vLd+2*n,2)} offset:{L_P+4*n*PS}")
    hu = a.label("hu"); l2 = a.label("up"); d2 = a.label("upd")
    a(f"""s_cmp_lg_u32 s{sUd}, 0
s_cbranch_scc1 {hu}
{l2}:
s_waitcnt vmcnt(0)
v_cmp_ne_u32 vcc, s{S_TAG}, v{vFl}
s_cbranch_vccz {d2}
buffer_load_dword v{vFl}, v{vFa}, {WS}, 0 offen sc1
s_sub_u32 s{S_TO}, s{S_TO}, 1
s_cmp_lg_u32 s{S_TO}, 0
s_cbranch_scc1 {l2}
s_mov_b32 s{S_TO}, 1
{d2}:""")
    uloads()
    a(f"{hu}:\ns_waitcnt lgkmcnt(0)\ns_barrier")
    for s in range(8):
        a(f"ds_read_b128 {vr(vP+4*s,4)}, v{vPa} offset:{L_P+s*PS}")
    a(f"""s_lshl_b32 s{sOff}, s{S_W}, 11
s_add_u32 s{sOff}, s{sOff}, {L_EX}
v_add_u32 v{vT0}, s{sOff}, v{vL16}
v_xor_b32 v{vT1}, {4*2048}, v{vT0}""")
    for s in range(8):
        a(f"s_waitcnt vmcnt({2+7-s}) lgkmcnt({7-s})")
        mfma(a, vAcc, vU+4*s, vP+4*s, s == 0)
    for i in range(4):
        unpack(a, vF+2*i, vF+2*i+1, vX+i)
    stamp(a, 10)
    lk1 = a.label("kh1"); lj = a.label("j")
    a(f"""s_nop 3
s_cmp_lg_u32 s{sKh}, 0
s_cbranch_scc1 {lk1}
ds_write_b128 v{vT0}, {vr(vAcc+8,4)}
ds_write_b128 v{vT0}, {vr(vAcc+12,4)} offset:1024
s_branch {lj}
{lk1}:
ds_write_b128 v{vT0}, {vr(vAcc,4)}
ds_write_b128 v{vT0}, {vr(vAcc+4,4)} offset:1024""")
    for r in range(8):
        a(f"v_mov_b32 v{vAcc+r}, v{vAcc+8+r}")
    a(f"""{lj}:
s_waitcnt lgkmcnt(0)
s_barrier
ds_read_b128 {vr(vR,4)}, v{vT1}
ds_read_b128 {vr(vR+4,4)}, v{vT1} offset:1024
s_waitcnt vmcnt(0) lgkmcnt(0)""")
    for r in range(8):
        a(f"v_add_f32 v{vAcc+r}, v{vAcc+r}, v{vR+r}")
    def cv():
        for i in range(4):
            a(f"v_cvt_pk_bf16_f32 v{vR+i}, v{vAcc+2*i}, v{vAcc+2*i+1}")
    def up():
        for i in range(4):
            unpack(a, vAcc+2*i, vAcc+2*i+1, vR+i)
    cv(); up()
    for r in range(8):
        a(f"v_mul_f32 v{vAcc+r}, v{vAcc+r}, v{vG+r}")
    cv(); up()
    for r in range(8):
        a(f"v_add_f32 v{vAcc+r}, v{vAcc+r}, v{vF+r}")
    cv()
    a(f"buffer_store_dwordx4 {vr(vR,4)}, v{vXo}, {RB}, s{sXo} offen {OPT.get('oflag', '').replace('+', ' ')}")
    a("L_fin:")

def gemv_dma(a, sColA, vD):
    sRow0, sOff = T+2, T+3
    a(f"""v_lshlrev_b32 v{vD}, 4, v{vCH}
v_mul_u32_u24 v{vT0}, 13824, v{vR8}
v_add3_u32 v{vD}, v{vD}, v{vT0}, s{sColA}
s_mul_i32 s{sOff}, s{sRow0}, 13824
s_lshl_b32 m0, s{sRow0}, 7""")
    for t in range(18):
        a(f"""s_nop 0
buffer_load_dwordx4 v{vD}, {RA}, s{sOff} offen {NT} lds""")
        if t < 17:
            a(f"s_add_u32 s{sOff}, s{sOff}, {8*13824}\ns_add_u32 m0, m0, 1024")

def phase_owner(a):
    sColA, sB, sRow0, sOff, sO, sCs, sTb = T, T+1, T+2, T+3, T+4, T+5, T+6
    vD, vA0, vA1, vSil, vCs = V0, V0+1, V0+2, V0+3, V0+4
    vC = 24
    vST = 28
    vX = VOX
    vXN = 48
    vPt = 80
    vAcc = 112
    vWF = 144
    vSF = 160
    vM = 184
    a(f"""s_mov_b32 s{sO}, s2
s_cmp_ge_u32 s{sO}, 36
s_cbranch_scc1 L_o_pref
s_lshr_b32 s{sCs}, s{sO}, 1
s_and_b32 s{sB}, s{sO}, 1
s_waitcnt vmcnt(0)
s_barrier""")
    vST = 32
    vPt = 112
    SM = [32, 33, 34, 35, 36, 37, 38, 39, 40, 41, 42, 43, 9, 10, 11, 12]
    a(f"""v_and_b32 v{vT3}, 7, v0
v_xor_b32 v{vT0}, s{S_W}, v{vT3}
v_lshlrev_b32 v{vT0}, 4, v{vT0}
v_lshl_add_u32 v{vT0}, v0, 7, v{vT0}""")
    for q in range(4):
        a(f"ds_read_b128 {vr(vX+4*q,4)}, v{vT0} offset:{q*8192}")
    a(f"""s_lshl_b32 s{T+9}, s{sB}, 12
s_add_u32 s{T+9}, s{T+9}, {F_STAT}
s_mul_i32 s{T+10}, s{sO}, {18*1024}
s_lshl_b32 s{sOff}, s{S_W}, 7
s_add_u32 s{T+10}, s{T+10}, s{sOff}
s_add_u32 s{T+10}, s{T+10}, {WS_PART}
s_add_u32 s{T+11}, s{T+10}, 8192
v_lshlrev_b32 v{vT1}, 4, v{vT3}
v_min_u32 v{vT2}, 1, v{vR8}
v_lshl_add_u32 v{vT2}, v{vT2}, 10, v{vT1}
v_add_u32 v{vT2}, 16384, v{vT2}
v_lshl_add_u32 v{vT1}, v{vR8}, 10, v{vT1}
v_cmp_gt_u32 vcc, 16, v0
v_mul_u32_u24 v{vCs}, {72*1024}, v{vHF}
v_lshl_add_u32 v{vCs}, v{vTok}, 4, v{vCs}
v_cndmask_b32 v{vA0}, 0, 1.0, vcc
v_bfe_u32 v{vA1}, v0, 2, 1
v_cvt_f32_u32 v{vA1}, v{vA1}
s_mul_i32 s{sOff}, s{sB}, {8*72*1024}
s_lshl_b32 s{T+12}, s{sCs}, 12
s_add_u32 s{sOff}, s{sOff}, s{T+12}
s_lshl_b32 s{T+12}, s{S_W}, 9
s_add_u32 s{sOff}, s{sOff}, s{T+12}
s_add_u32 s{sOff}, s{sOff}, {WS_H}
s_waitcnt lgkmcnt(0)""")
    def stl():
        for q in range(4):
            a(f"buffer_load_dwordx4 {vr(vST+4*q,4)}, v{vL16}, {WS}, s{T+9} offen offset:{1024*q} sc1")
    def pl():
        a(f"""buffer_load_dwordx4 {vr(vPt,4)}, v{vT1}, {WS}, s{T+10} offen sc1
buffer_load_dwordx4 {vr(vPt+4,4)}, v{vT1}, {WS}, s{T+11} offen sc1
buffer_load_dwordx4 {vr(vPt+8,4)}, v{vT2}, {WS}, s{T+10} offen sc1""")
    P = [(q, i) for q in range(4) for i in range(4)]
    lo = lambda q, i: vXN+8*q+2*i
    hi = lambda q, i: vXN+8*q+2*i+1
    xs = lambda q, i: vX+4*q+i
    def st_unpack():
        for q, i in P: unpack(a, lo(q,i), hi(q,i), xs(q,i))
    def st_cvt():
        for q, i in P: a(f"v_cvt_pk_bf16_f32 v{xs(q,i)}, v{lo(q,i)}, v{hi(q,i)}")
    def st_op(op, f):
        for q, i in P:
            a(f"{op} v{lo(q,i)}, v{lo(q,i)}, v{f(q,2*i)}\n{op} v{hi(q,i)}, v{hi(q,i)}, v{f(q,2*i+1)}")
    st_unpack()
    gpoll(a, stl, [vST+4*q+j for q in range(4) for j in (1, 3)])
    stamp(a, 1)
    st_op("v_sub_f32", lambda q, j: vST+4*q); st_cvt()
    st_unpack()
    pl()
    st_op("v_mul_f32", lambda q, j: vST+4*q+2); st_cvt()
    st_unpack()
    stamp(a, 2)
    lp = a.label("pp"); ld = a.label("ppd")
    a(f"""{lp}:
s_waitcnt vmcnt(0)
v_min3_u32 v{vM}, v{vPt+1}, v{vPt+3}, v{vPt+5}
v_max3_u32 v{vM+1}, v{vPt+1}, v{vPt+3}, v{vPt+5}
v_min3_u32 v{vM}, v{vM}, v{vPt+7}, v{vPt+9}
v_max3_u32 v{vM+1}, v{vM+1}, v{vPt+7}, v{vPt+9}
v_min_u32 v{vM}, v{vM}, v{vPt+11}
v_max_u32 v{vM+1}, v{vM+1}, v{vPt+11}
v_cmp_ne_u32 vcc, s{S_TAG}, v{vM}
v_cmp_ne_u32 s[{T+14}:{T+15}], s{S_TAG}, v{vM+1}
s_or_b64 vcc, vcc, s[{T+14}:{T+15}]
s_cbranch_vccz {ld}
s_sub_u32 s{S_TO}, s{S_TO}, 1
s_cmp_eq_u32 s{S_TO}, 0
s_cbranch_scc1 {ld}""")
    pl()
    a(f"""s_branch {lp}
{ld}:
s_max_u32 s{S_TO}, s{S_TO}, 1
v_add_f32 v{vPt}, v{vPt}, v{vPt+4}
v_add_f32 v{vPt+2}, v{vPt+2}, v{vPt+6}
v_fmac_f32 v{vPt}, v{vA0}, v{vPt+8}
v_fmac_f32 v{vPt+2}, v{vA0}, v{vPt+10}
s_nop 1
v_permlane32_swap_b32 v{vPt}, v{vPt+2}
s_nop 0
v_add_f32 v{vPt}, v{vPt}, v{vPt+2}
v_mov_b32 v{vPt+2}, v{vPt}
s_nop 1
v_permlane16_swap_b32 v{vPt}, v{vPt+2}
s_nop 0
v_add_f32 v{vPt}, v{vPt}, v{vPt+2}
s_nop 1
v_add_f32_dpp v{vPt}, v{vPt}, v{vPt} row_ror:8 row_mask:0xf bank_mask:0xf""")
    round_bf16(a, vPt)
    a(f"v_add_f32 v{vPt}, v{vPt}, v{vA1}")
    round_bf16(a, vPt)
    a("s_nop 0")
    for u in (4, 5, 6, 7, 0, 1, 2, 3):
        a(f"v_readlane_b32 s{SM[2*u]}, v{vPt}, {u}\nv_readlane_b32 s{SM[2*u+1]}, v{vPt}, {32+u}")
    stamp(a, 3)
    for q, i in P:
        a(f"v_mul_f32 v{lo(q,i)}, s{SM[8+2*i]}, v{lo(q,i)}\nv_mul_f32 v{hi(q,i)}, s{SM[8+2*i+1]}, v{hi(q,i)}")
    st_cvt(); st_unpack()
    for q in range(4):
        for i in range(4):
            a(f"v_add_f32 v{lo(q,i)}, s{SM[2*i]}, v{lo(q,i)}\nv_add_f32 v{hi(q,i)}, s{SM[2*i+1]}, v{hi(q,i)}")
        for i in range(4):
            a(f"v_cvt_pk_bf16_f32 v{xs(q,i)}, v{lo(q,i)}, v{hi(q,i)}")
        a(f"buffer_store_dwordx4 {vr(vX+4*q,4)}, v{vCs}, {WS}, s{sOff} offen sc1")
        if q < 3:
            a(f"s_add_u32 s{sOff}, s{sOff}, {2*72*1024}")
    stamp(a, 4)
    a(f"""s_mul_i32 s{sOff}, s{sB}, 18
s_add_u32 s{sOff}, s{sOff}, s{sCs}
s_lshl_b32 s{sOff}, s{sOff}, 7
s_add_u32 s{sOff}, s{sOff}, {F_H}""")
    set_flag(a, f"s{sOff}")
    stamp(a, 5)
    if 'ob' in OPT:
        a("s_waitcnt vmcnt(0)\ns_barrier")
    a("L_o_pref:")
    srd(a, R_A, S_WMOD, SZ_WMOD)
    srd(a, R_C, S_C, SZ_C)
    a(f"""s_cmp_ge_u32 s{sO}, 18
s_cbranch_scc1 L_o_upd
s_mul_i32 s{sRow0}, s{S_W}, 144
v_min_u32 v{vT0}, 17, v{vTok}
v_lshlrev_b32 v{vT0}, 4, v{vT0}
v_mul_u32_u24 v{vT1}, 2304, v{vHF}
v_add_u32 v{vCs}, v{vT0}, v{vT1}
s_lshl_b32 s{sOff}, s{sRow0}, 1
buffer_load_dwordx4 {vr(vC,4)}, v{vCs}, {RC}, s{sOff} offen
s_lshl_b32 s{sColA}, s{sO}, 7
s_add_u32 s{sColA}, s{sColA}, 4608""")
    gemv_dma(a, sColA, vD)
    a(f"""s_lshl_b32 s{sOff}, s{sRow0}, 7
v_add_u32 v{vA0}, s{sOff}, v{vB0}
v_add_u32 v{vA1}, s{sOff}, v{vB1}
s_waitcnt vmcnt(18)""")
    for i in range(4):
        unpack(a, vM+2*i, vM+2*i+1, vC+i)
    silu8(a, vM, vM+8)
    for i in range(4):
        a(f"v_cvt_pk_bf16_f32 v{vC+i}, v{vM+2*i}, v{vM+2*i+1}")
    a(f"""s_lshl_b32 s{sOff}, s{sRow0}, 1
s_add_u32 s{sOff}, s{sOff}, {L_SIL}
v_add_u32 v{vCs}, s{sOff}, v{vCs}
ds_write_b128 v{vCs}, {vr(vC,4)}
v_and_b32 v{vT0}, 1, v0
v_mul_u32_u24 v{vT0}, 2304, v{vT0}
v_lshl_add_u32 v{vT0}, v{vHF}, 4, v{vT0}
v_add_u32 v{vSil}, s{sOff}, v{vT0}
s_waitcnt lgkmcnt(0)""")
    for s in range(9):
        wf = vWF + 8*(s & 1); sf = vSF + 4*(s & 1)
        a(f"s_waitcnt vmcnt({18-2*(s+1)})")
        a(f"ds_read_b128 {vr(sf,4)}, v{vSil} offset:{s*32}")
        trreads(a, wf, vA0, vA1, s*2048)
        a("s_waitcnt lgkmcnt(2)")
        mfma(a, vAcc, wf, sf, s == 0)
        a("s_waitcnt lgkmcnt(0)")
        mfma(a, vAcc+16, wf+4, sf, s == 0)
    a(f"""v_and_b32 v{vT0}, 1, v0
v_lshlrev_b32 v{vT0}, 8, v{vT0}
v_lshl_add_u32 v{vT0}, v{vHF}, 5, v{vT0}
s_lshl_b32 s{sOff}, s{S_W}, 9
s_add_u32 s{sOff}, s{sOff}, {L_RED}
v_add_u32 v{vT0}, s{sOff}, v{vT0}
s_mov_b32 exec_lo, 3
s_mov_b32 exec_hi, 3
s_nop 8""")
    for cb in range(2):
        for q, off in enumerate((0, 16, 64, 80)):
            a(f"ds_write_b128 v{vT0}, {vr(vAcc+16*cb+4*q,4)} offset:{cb*128+off}")
    a(f"""s_mov_b64 exec, -1
s_waitcnt lgkmcnt(0)
s_barrier
s_lshr_b32 s{sOff}, s{S_W}, 2
s_lshl_b32 s{sOff}, s{sOff}, 8
s_add_u32 s{sOff}, s{sOff}, {L_RED}
v_lshlrev_b32 v{vT0}, 2, v0
v_add_u32 v{vT1}, s{sOff}, v{vT0}""")
    for w in range(8):
        a(f"ds_read_b32 v{vAcc+w}, v{vT1} offset:{w*512}")
    a("s_waitcnt lgkmcnt(0)")
    for w in range(1, 8):
        a(f"v_add_f32 v{vAcc}, v{vAcc}, v{vAcc+w}")
    round_bf16(a, vAcc)
    lsk = a.label("gsk")
    a(f"""s_and_b32 s{sOff}, s{S_W}, 3
s_cmp_lg_u32 s{sOff}, 0
s_cbranch_scc1 {lsk}
s_lshr_b32 s{T+9}, s{S_W}, 2
s_mul_i32 s{sOff}, s{T+9}, 4608
s_lshl_b32 s{sColA}, s{sO}, 8
s_add_u32 s{sOff}, s{sOff}, s{sColA}
s_add_u32 s{sOff}, s{sOff}, {WS_GATE}
buffer_store_dword v{vAcc}, v{vT0}, {WS}, s{sOff} offen sc1
{lsk}:
s_lshl_b32 s{sOff}, s{sO}, 7
s_add_u32 s{sOff}, s{sOff}, {F_G}""")
    set_flag(a, f"s{sOff}")
    stamp(a, 7)
    lp = a.label("ep"); ld = a.label("epd")
    a(f"""L_o_upd:
s_add_u32 s{S_SLOT}, s{S_SLOT}, 25
s_cmp_ge_u32 s{S_SLOT}, 27
s_cbranch_scc1 L_c_notu
s_cmp_lg_u32 s2, 0
s_cbranch_scc1 L_fin
s_lshl_b32 s{sOff}, s{S_W}, 6
v_add_u32 v{vT0}, s{sOff}, v0
v_min_u32 v{vT0}, 215, v{vT0}
v_lshlrev_b32 v{vT0}, 7, v{vT0}
s_mov_b32 s{sOff}, {F_QKV}
{lp}:
s_sleep 16
buffer_load_dword v{vT1}, v{vT0}, {WS}, s{sOff} offen sc1
s_waitcnt vmcnt(0)
v_cmp_ne_u32 vcc, s{S_TAG}, v{vT1}
s_cbranch_vccz {ld}
s_sub_u32 s{S_TO}, s{S_TO}, 1
s_cmp_lg_u32 s{S_TO}, 0
s_cbranch_scc1 {lp}
{ld}:
s_mov_b32 s{sOff}, {EPOCH}""")
    set_flag(a, f"s{sOff}")
    a("s_branch L_fin")

def epilogue(a):
    if STAMP and 'probe' in OPT:
        i = int(OPT['probe']); lo, hi = [int(x) for x in OPT.get('prole', '0:256').split(':')]
        a(f"""s_waitcnt vmcnt(0) lgkmcnt(0)
s_cmp_lg_u32 s{S_W}, {OPT.get('stw', 0)}
s_cbranch_scc1 L_end
s_memrealtime s[{S_ST+30}:{S_ST+31}]
s_waitcnt lgkmcnt(0)
s_sub_u32 s{T}, s{S_ST+2*i}, s{S_ST}
s_cmp_eq_u32 s{S_ST+2*i}, 0
s_cselect_b32 s{T}, 0, s{T}
s_cmp_lt_u32 s2, {lo}
s_cselect_b32 s{T}, 0, s{T}
s_cmp_ge_u32 s2, {hi}
s_cselect_b32 s{T}, 0, s{T}
s_lshl_b32 s{T}, s{T}, 2
s_add_u32 s{T}, s{T}, 5000
L_spin:
s_memrealtime s[{T+2}:{T+3}]
s_waitcnt lgkmcnt(0)
s_sub_u32 s{T+2}, s{T+2}, s{S_ST}
s_cmp_lt_u32 s{T+2}, s{T}
s_cbranch_scc1 L_spin""")
    elif STAMP:
        a(f"""s_waitcnt vmcnt(0) lgkmcnt(0)
s_cmp_lg_u32 s{S_W}, {OPT.get('stw', 0)}
s_cbranch_scc1 L_end
{CLK} s[{S_ST+30}:{S_ST+31}]
s_memtime s[98:99]
s_waitcnt lgkmcnt(0)
s_sub_u32 s98, s98, s96""")
        for i in range(16):
            a(f"v_mov_b32 v{16+i}, s{S_ST+2*i}")
        a(f"""v_mov_b32 v32, s98
s_lshl_b32 s{T}, s2, 7
s_add_u32 s{T}, s{T}, {WS_STAMP}
v_mov_b32 v1, 0
s_mov_b64 exec, 1""")
        for i in range(4):
            a(f"buffer_store_dwordx4 v[{16+4*i}:{19+4*i}], v1, {WS}, s{T} offen offset:{16*i}")
        a(f"buffer_store_dword v32, v1, {WS}, s{T} offen offset:64")
    a("L_end:\ns_endpgm")

def main():
    a = Asm()
    a.raw("; @launch grid=(256,1,1) block=(512,1,1) lds=163840")
    a.raw('.amdgcn_target "amdgcn-amd-amdhsa--gfx950"\n.text')
    prologue(a)
    phase_bc(a)
    phase_d(a)
    epilogue(a)
    a("L_owner:")
    phase_owner(a)
    a.raw(".p2align 4\nL_codeend:")
    out = a.text() + kd(NAME, 244, 102)
    path = [x for x in sys.argv[1:] if not x.startswith('--')][0]
    open(path, 'w').write(out)
main()
```

```python
import sys, struct
from asmlib import *

OPT = dict(la='12', nt='', cpf='1', umap='4', lfull='1', pack='1')
for a_ in sys.argv[1:]:
    if a_.startswith('--'):
        k, _, v = a_[2:].partition('=')
        OPT[k] = v
STAMP = 'stamp' in OPT
NT = OPT['nt']
CLK = "s_memtime" if 'cyc' in OPT else "s_memrealtime"

NAME = "standalone__dit_adaln_block__diffusion_kernel"
D = 1152
SZ_X = 512*D*2; SZ_C = 2*D*2; SZ_WQKV = D*3*D*2; SZ_WO = D*D*2; SZ_WMOD = D*6*D*2
SZ_WS = 1 << 28
F_STAT = 0x0
F_H = 0x2000
F_L = 0x4000
F_U = F_L + 64*128
F_G = F_U + 144*128
F_QKV = 0xC000
EPOCH = 0x13000
WS_GATE = 0x14000
WS_H = 0x20000
WS_QKV = 0x140000
WS_L = 0x680000
WS_U = 0x550000
WS_PART = 0x4A0000
WS_STAMP = 0x700000
LOG2E = 0x3fb8aa3b

S_W, S_TAG, S_G, S_SLOT, S_TO, S_TK = 3, 4, 5, 6, 7, 8
S_X, S_C, S_WQKV, S_WO, S_WMOD, S_OUT, S_DBG, S_WS = 16, 18, 20, 22, 24, 26, 28, 30
R_A, R_B, R_C, R_WS = 32, 36, 40, 44
T = 48
S_ST = 64
WS = f"s[{R_WS}:{R_WS+3}]"
RA = f"s[{R_A}:{R_A+3}]"; RB = f"s[{R_B}:{R_B+3}]"; RC = f"s[{R_C}:{R_C+3}]"
vL16, vP16, vB0, vB1, vCH, vR8, vHF, vTok = 1, 2, 3, 4, 5, 6, 7, 8
vT0, vT1, vT2, vT3 = 9, 10, 11, 12
vTAG = 13
V0 = 16

L_MISC = 147456
L_SIL = L_MISC
L_RED = L_SIL + 4608
L_FIN = L_RED + 4096
L_ROLE = L_FIN + 4096
L_STC = L_ROLE + 16
NO = 5

def srd(a, r, ptr, size):
    a(f"""s_mov_b32 s{r}, s{ptr}
s_and_b32 s{r+1}, s{ptr+1}, 0xffff
s_mov_b32 s{r+2}, {hex(size)}
s_mov_b32 s{r+3}, 0x20000""")

def stamp(a, i):
    if STAMP:
        a(f"{CLK} s[{S_ST+2*i}:{S_ST+2*i+1}]")

def unpack(a, lo, hi, src):
    a(f"v_lshlrev_b32 v{lo}, 16, v{src}\nv_and_b32 v{hi}, 0xffff0000, v{src}")

def round_bf16(a, v):
    a(f"v_cvt_pk_bf16_f32 v{v}, v{v}, v{v}\nv_lshlrev_b32 v{v}, 16, v{v}")

HACK = [0]
def mfma(a, acc, A, B, first=False):
    if 'hack16' in OPT and not first:
        HACK[0] += 1
        o = 8*((HACK[0] >> 1) & 1)
        for j in range(2):
            a(f"v_mfma_f32_16x16x32_bf16 {vr(acc+o+4*j,4)}, {vr(A,4)}, {vr(B,4)}, {vr(acc+o+4*j,4)}")
        return
    c = "0" if first else vr(acc, 16)
    a(f"v_mfma_f32_32x32x16_bf16 {vr(acc,16)}, {vr(A,4)}, {vr(B,4)}, {c}")

def wrap_add(a, s, step, s_end, s_start):
    a(f"""s_add_u32 s{s}, s{s}, {step}
s_cmp_eq_u32 s{s}, s{s_end}
s_cselect_b32 s{s}, s{s_start}, s{s}""")

def mod9(a, dst, src, tmp):
    a(f"""s_mul_i32 s{tmp}, s{src}, 57
s_lshr_b32 s{tmp}, s{tmp}, 9
s_mul_i32 s{tmp}, s{tmp}, 9
s_sub_u32 s{dst}, s{src}, s{tmp}""")

def poll(a, vaddr, soff, vtmp):
    l = a.label("poll"); d = a.label("polld")
    a(f"""s_cmp_lg_u32 s{S_W}, 0
s_cbranch_scc1 {d}
{l}:
buffer_load_dword v{vtmp}, v{vaddr}, {WS}, {soff} offen sc1
s_waitcnt vmcnt(0)
v_cmp_ne_u32 vcc, s{S_TAG}, v{vtmp}
s_cbranch_vccz {d}
s_sleep {OPT.get('sleep', 2)}
s_sub_u32 s{S_TO}, s{S_TO}, 1
s_cmp_lg_u32 s{S_TO}, 0
s_cbranch_scc1 {l}
s_mov_b32 s{S_TO}, 1
{d}:
s_barrier""")

def gpoll(a, loads, tagregs):
    l = a.label("gp"); d = a.label("gpd")
    a(f"{l}:")
    loads()
    a(f"s_waitcnt vmcnt(0)\nv_cmp_ne_u32 vcc, s{S_TAG}, v{tagregs[0]}")
    for r in tagregs[1:]:
        a(f"v_cmp_ne_u32 s[{T+14}:{T+15}], s{S_TAG}, v{r}\ns_or_b64 vcc, vcc, s[{T+14}:{T+15}]")
    a(f"""s_cbranch_vccz {d}
s_sleep {OPT.get('gsleep', 2)}
s_sub_u32 s{S_TO}, s{S_TO}, 1
s_cmp_lg_u32 s{S_TO}, 0
s_cbranch_scc1 {l}
s_mov_b32 s{S_TO}, 1
{d}:""")

def raw_flag(a, soff):
    a(f"""v_mov_b32 v{vT3}, 0
s_mov_b64 exec, 1
buffer_store_dword v{vTAG}, v{vT3}, {WS}, {soff} offen sc1
s_mov_b64 exec, -1""")

def set_flag(a, soff, younger=0):
    d = a.label("fl")
    a(f"""s_waitcnt vmcnt({younger})
s_barrier
s_cmp_lg_u32 s{S_W}, 0
s_cbranch_scc1 {d}""")
    raw_flag(a, soff)
    a(f"{d}:")

def trreads(a, wf, b0, b1, off):
    a(f"""ds_read_b64_tr_b16 {vr(wf,2)}, v{b0} offset:{off}
ds_read_b64_tr_b16 {vr(wf+2,2)}, v{b0} offset:{off+512}
ds_read_b64_tr_b16 {vr(wf+4,2)}, v{b1} offset:{off}
ds_read_b64_tr_b16 {vr(wf+6,2)}, v{b1} offset:{off+512}""")

def dma_tile(a, srdname, vD, pitch, s_rot, flags, n0=0, n1=18):
    sN, sO = T+10, T+11
    if s_rot is None:
        a(f"s_add_u32 s{sN}, s{S_W}, {8*n0}")
    else:
        a(f"s_lshl_b32 s{sN}, s{s_rot}, 3\ns_add_u32 s{sN}, s{sN}, s{S_W}")
    for n in range(n0, n1):
        a(f"""s_lshl_b32 m0, s{sN}, 10
s_mul_i32 s{sO}, s{sN}, {8*pitch}
buffer_load_dwordx4 v{vD}, {srdname}, s{sO} offen {flags} lds""")
        if n < n1-1:
            a(f"s_add_u32 s{sN}, s{sN}, 8")
            if s_rot is not None:
                a(f"""s_sub_u32 s{sO}, s{sN}, 144
s_cmp_ge_u32 s{sN}, 144
s_cselect_b32 s{sN}, s{sO}, s{sN}""")

def wave_sum(a, v, sdst):
    for m in ("quad_perm:[1,0,3,2]", "quad_perm:[2,3,0,1]", "row_half_mirror", "row_mirror"):
        a(f"s_nop 1\nv_add_f32_dpp v{v}, v{v}, v{v} {m} row_mask:0xf bank_mask:0xf")
    a(f"s_nop 1\nv_add_f32_dpp v{v}, v{v}, v{v} row_bcast:15 row_mask:0xa bank_mask:0xf")
    a(f"s_nop 1\nv_add_f32_dpp v{v}, v{v}, v{v} row_bcast:31 row_mask:0xc bank_mask:0xf")
    a(f"s_nop 1\nv_readlane_b32 s{sdst}, v{v}, 63\ns_nop 1")

def silu8(a, f, t):
    for i in range(8):
        a(f"v_mul_f32 v{t+i}, 0xbfb8aa3b, v{f+i}")
    for i in range(8):
        a(f"v_exp_f32 v{t+i}, v{t+i}")
    for i in range(8):
        a(f"v_add_f32 v{t+i}, 1.0, v{t+i}")
    for i in range(8):
        a(f"v_rcp_f32 v{t+i}, v{t+i}")
    for i in range(8):
        a(f"v_mul_f32 v{f+i}, v{f+i}, v{t+i}")

def lane_consts(a):
    a(f"""v_lshrrev_b32 v{vR8}, 3, v0
v_and_b32 v{vP16}, 0x33, v0
v_and_b32 v{vT0}, 4, v0
v_lshl_or_b32 v{vP16}, v{vT0}, 1, v{vP16}
v_and_b32 v{vT0}, 8, v0
v_lshrrev_b32 v{vT0}, 1, v{vT0}
v_or_b32 v{vP16}, v{vP16}, v{vT0}
v_lshlrev_b32 v{vP16}, 4, v{vP16}
v_lshrrev_b32 v{vT0}, 2, v0
v_and_b32 v{vT0}, 4, v{vT0}
v_and_b32 v{vCH}, 7, v0
v_xor_b32 v{vCH}, v{vCH}, v{vT0}
v_lshlrev_b32 v{vB0}, 10, v{vHF}
v_and_b32 v{vT0}, 12, v0
v_lshl_or_b32 v{vB0}, v{vT0}, 5, v{vB0}
v_and_b32 v{vT0}, 8, v0
v_lshl_or_b32 v{vB0}, v{vT0}, 3, v{vB0}
v_and_b32 v{vT0}, 16, v0
v_lshl_or_b32 v{vB0}, v{vT0}, 1, v{vB0}
v_and_b32 v{vT0}, 1, v0
v_lshl_or_b32 v{vB0}, v{vT0}, 4, v{vB0}
v_and_b32 v{vT0}, 2, v0
v_lshl_or_b32 v{vB0}, v{vT0}, 2, v{vB0}
v_xor_b32 v{vB1}, 64, v{vB0}""")

def get_tag(a):
    a(f"""s_waitcnt lgkmcnt(0)
s_mul_i32 s{S_TAG}, s{S_TAG}, 1664525
s_add_u32 s{S_TAG}, s{S_TAG}, 1013904223
v_mov_b32 v{vTAG}, s{S_TAG}""")

def wpoll(a, vaddr, soff, vtmp):
    gpoll(a, lambda: a(f"buffer_load_dword v{vtmp}, v{vaddr}, {WS}, {soff} offen sc1"), [vtmp])

S_BCT, S_BRT = 11, 12
vDW = 15
def b_setup(a):
    srd(a, R_B, S_WQKV, SZ_WQKV)
    a(f"""s_mul_i32 s{S_BCT}, s{S_G}, 27
s_add_u32 s{S_BCT}, s{S_BCT}, s{S_SLOT}
s_sub_u32 s{S_BCT}, s{S_BCT}, {NO}
s_and_b32 s{S_BRT}, s{S_BCT}, 3
s_lshr_b32 s{S_BCT}, s{S_BCT}, 2
s_mul_i32 s13, s{S_BRT}, 36
s_add_u32 s13, s13, s{S_W}
v_lshlrev_b32 v{vDW}, 4, v{vCH}
v_mul_u32_u24 v{vT0}, 6912, v{vR8}
s_lshl_b32 s{T+14}, s{S_BCT}, 7
v_add3_u32 v{vDW}, v{vDW}, v{vT0}, s{T+14}""")

THR = f"s_waitcnt vmcnt({OPT['thr']})" if 'thr' in OPT else ''
THRO = f"s_waitcnt vmcnt({OPT['thro']})" if 'thro' in OPT else ''
def w_dma(a, n):
    for i in range(n):
        a(f"""s_lshl_b32 m0, s13, 10
s_mul_i32 s{T+14}, s13, {8*6912}
buffer_load_dwordx4 v{vDW}, {RB}, s{T+14} offen lds
{THR}
s_add_u32 s13, s13, 8
s_sub_u32 s{T+14}, s13, 144
s_cmp_ge_u32 s13, 144
s_cselect_b32 s13, s{T+14}, s13""")

EW = int(OPT.get('ew', 0))
def prologue(a):
    a.raw(f".globl {NAME}\n.p2align 8\n.type {NAME},@function\n{NAME}:")
    a(f"""s_cmp_ge_u32 s2, 256
s_cbranch_scc1 L_end
s_load_dwordx16 s[16:31], s[0:1], 0""")
    if STAMP:
        a(f"{CLK} s[{S_ST}:{S_ST+1}]\ns_memtime s[96:97]")
        for i in range(1, 16):
            a(f"s_mov_b32 s{S_ST+2*i}, 0")
    a(f"""v_lshrrev_b32 v1, 6, v0
v_and_b32 v0, 63, v0
s_and_b32 s{S_G}, s2, 7
v_readfirstlane_b32 s{S_W}, v1
s_lshr_b32 s{S_SLOT}, s2, 3
s_mov_b32 s{S_TO}, 0x40000
v_lshlrev_b32 v{vL16}, 4, v0
v_lshrrev_b32 v{vHF}, 5, v0
v_and_b32 v{vTok}, 31, v0
s_cmp_lt_u32 s2, 64
s_cbranch_scc1 L_s0_stats
s_cmp_lt_u32 s2, 94
s_cbranch_scc1 L_s0_none""")
    sP, sCg, sKs, sOff, sRow = T, T+1, T+2, T+3, T+4
    vW = 16
    vC = 32
    vSc = 36
    vTm = 44
    vAc = 52
    a(f"""s_sub_u32 s{sP}, s2, 94
s_mul_i32 s{sKs}, s{sP}, 57
s_lshr_b32 s{sKs}, s{sKs}, 9
s_mul_i32 s{sCg}, s{sKs}, 9
s_sub_u32 s{sCg}, s{sP}, s{sCg}
s_lshl_b32 s{sRow}, s{sKs}, 3
s_add_u32 s{sRow}, s{sRow}, s{S_W}
s_lshl_b32 s{sRow}, s{sRow}, 3
v_and_b32 v{vT0}, 15, v0
v_lshlrev_b32 v{vT0}, 4, v{vT0}
v_bfe_u32 v{vT1}, v0, 4, 1
v_mul_u32_u24 v{vT1}, 2304, v{vT1}
v_mul_u32_u24 v{vT2}, {4*13824}, v{vHF}
v_add3_u32 v{vT0}, v{vT0}, v{vT1}, v{vT2}
v_lshlrev_b32 v{vT1}, 3, v{vHF}
s_lshl_b32 s{T+5}, s{sRow}, 1
s_mul_i32 s{sOff}, s{sRow}, 13824
s_lshl_b32 s{sRow}, s{sCg}, 8
s_add_u32 s{sOff}, s{sOff}, s{sRow}
s_waitcnt lgkmcnt(0)""")
    srd(a, R_A, S_WMOD, SZ_WMOD)
    srd(a, R_C, S_C, SZ_C)
    a(f"""buffer_load_dwordx2 {vr(vC,2)}, v{vT1}, {RC}, s{T+5} offen
buffer_load_dwordx2 {vr(vC+2,2)}, v{vT1}, {RC}, s{T+5} offen offset:2304""")
    for n in range(4):
        a(f"buffer_load_dwordx4 {vr(vW+4*n,4)}, v{vT0}, {RA}, s{sOff} offen")
        if n < 3:
            a(f"s_add_u32 s{sOff}, s{sOff}, 13824")
    a(f"s_load_dword s{S_TAG}, s[{S_WS}:{S_WS+1}], {EPOCH}")
    srd(a, R_WS, S_WS, SZ_WS)
    lane_consts(a)
    b_setup(a)
    if EW:
        a("s_barrier")
        w_dma(a, EW)
    a(f"s_waitcnt vmcnt({4+EW})")
    for i in range(4):
        unpack(a, vSc+2*i, vSc+2*i+1, vC+i)
    silu8(a, vSc, vTm)
    for i in range(4):
        a(f"v_cvt_pk_bf16_f32 v{vC+i}, v{vSc+2*i}, v{vSc+2*i+1}")
    for i in range(4):
        unpack(a, vSc+2*i, vSc+2*i+1, vC+i)
    a(f"""s_lshl_b32 s{sOff}, s{S_W}, 11
s_add_u32 s{sOff}, s{sOff}, {L_MISC}
v_lshlrev_b32 v{vT2}, 5, v0
v_add_u32 v{vT2}, s{sOff}, v{vT2}
s_lshr_b32 s{sOff}, s{S_W}, 1
s_lshl_b32 s{sOff}, s{sOff}, 10
s_and_b32 s{sRow}, s{S_W}, 1
s_lshl_b32 s{sP}, s{sRow}, 8
s_add_u32 s{sOff}, s{sOff}, s{sP}
s_add_u32 s{sOff}, s{sOff}, {L_MISC}
v_lshlrev_b32 v{vT3}, 3, v{vTok}
v_lshl_add_u32 v{vT3}, v{vHF}, 9, v{vT3}
v_add_u32 v{vT3}, s{sOff}, v{vT3}
s_lshl_b32 s{sP}, s{sCg}, 1
s_add_u32 s{sP}, s{sP}, s{sRow}
s_lshl_b32 s{sP}, s{sP}, 1
s_lshr_b32 s{sOff}, s{S_W}, 1
s_add_u32 s{sP}, s{sP}, s{sOff}
s_mul_i32 s{sP}, s{sP}, 18
s_add_u32 s{sP}, s{sP}, s{sKs}
s_lshl_b32 s{sP}, s{sP}, 10
s_add_u32 s{sP}, s{sP}, {WS_PART}
v_and_b32 v{vT0}, 28, v0
v_lshlrev_b32 v{vT0}, 5, v{vT0}
v_lshl_add_u32 v{vT0}, v{vHF}, 6, v{vT0}
v_and_b32 v{vT1}, 3, v0
v_lshl_add_u32 v{vT0}, v{vT1}, 4, v{vT0}""")
    get_tag(a)
    for n in range(4):
        a(f"s_waitcnt vmcnt({3-n+EW})")
        if n == 3: stamp(a, 8)
        for i in range(4):
            unpack(a, vTm+2*i, vTm+2*i+1, vW+4*n+i)
        for b in range(2):
            for j in range(8):
                op = "v_mul_f32" if n == 0 else "v_fmac_f32"
                a(f"{op} v{vAc+8*b+j}, v{vTm+j}, v{vSc+4*b+n}")
    a("s_nop 1")
    for j in range(8):
        a(f"v_permlane32_swap_b32 v{vAc+j}, v{vAc+8+j}")
    for j in range(8):
        a(f"v_add_f32 v{vAc+j}, v{vAc+j}, v{vAc+8+j}")
    lsk = a.label("pubsk")
    a(f"""ds_write_b128 v{vT2}, {vr(vAc,4)}
ds_write_b128 v{vT2}, {vr(vAc+4,4)} offset:16
s_waitcnt lgkmcnt(0)
s_barrier
s_cmp_ge_u32 s{S_W}, 4
s_cbranch_scc1 {lsk}""")
    for w in range(8):
        a(f"ds_read_b64 {vr(vW+2*w,2)}, v{vT3} offset:{w*2048}")
    a(f"""v_mov_b32 v{vAc+1}, v{vTAG}
v_mov_b32 v{vAc+3}, v{vTAG}
s_waitcnt lgkmcnt(4)
v_add_f32 v{vW}, v{vW}, v{vW+2}
v_add_f32 v{vW+1}, v{vW+1}, v{vW+3}
v_add_f32 v{vW+4}, v{vW+4}, v{vW+6}
v_add_f32 v{vW+5}, v{vW+5}, v{vW+7}
s_waitcnt lgkmcnt(0)
v_add_f32 v{vW+8}, v{vW+8}, v{vW+10}
v_add_f32 v{vW+9}, v{vW+9}, v{vW+11}
v_add_f32 v{vW+12}, v{vW+12}, v{vW+14}
v_add_f32 v{vW+13}, v{vW+13}, v{vW+15}
v_add_f32 v{vW}, v{vW}, v{vW+4}
v_add_f32 v{vW+1}, v{vW+1}, v{vW+5}
v_add_f32 v{vW+8}, v{vW+8}, v{vW+12}
v_add_f32 v{vW+9}, v{vW+9}, v{vW+13}
v_add_f32 v{vAc}, v{vW}, v{vW+8}
v_add_f32 v{vAc+2}, v{vW+1}, v{vW+9}
buffer_store_dwordx4 {vr(vAc,4)}, v{vT0}, {WS}, s{sP} offen sc1
{lsk}:""")
    stamp(a, 9)
    if OPT.get('pack') == '1':
        a("s_waitcnt vmcnt(0)")
    if 'nopb' not in OPT:
        a("s_barrier")
    w_dma(a, 18-EW)
    a("s_branch L_b")
    a("L_s0_stats:")
    vRW = 16
    a(f"""s_lshl_b32 s{sOff}, s2, 3
s_add_u32 s{sOff}, s{sOff}, s{S_W}
s_mul_i32 s{sOff}, s{sOff}, 2304
v_mov_b32 v{vRW+8}, 0
v_mov_b32 v{vRW+9}, 0
v_mov_b32 v{vRW+10}, 0
v_mov_b32 v{vRW+11}, 0
s_waitcnt lgkmcnt(0)""")
    srd(a, R_C, S_X, SZ_X)
    a(f"""buffer_load_dwordx4 {vr(vRW,4)}, v{vL16}, {RC}, s{sOff} offen
buffer_load_dwordx4 {vr(vRW+4,4)}, v{vL16}, {RC}, s{sOff} offen offset:1024
s_mov_b64 exec, 0xffff
buffer_load_dwordx4 {vr(vRW+8,4)}, v{vL16}, {RC}, s{sOff} offen offset:2048
s_mov_b64 exec, -1
s_load_dword s{S_TAG}, s[{S_WS}:{S_WS+1}], {EPOCH}""")
    srd(a, R_WS, S_WS, SZ_WS)
    lane_consts(a)
    a(f"""s_barrier
s_min_u32 s{T+12}, s2, 35
s_and_b32 s{T+13}, s{T+12}, 1
s_lshr_b32 s{T+12}, s{T+12}, 1
s_lshl_b32 s{T+13}, s{T+13}, 3
s_add_u32 s{T+13}, s{T+13}, s{S_W}
v_mul_u32_u24 v{vT0}, 2304, v{vR8}
v_and_b32 v{vT1}, 7, v0
v_xor_b32 v{vT1}, v{vT1}, v{vR8}
v_lshl_add_u32 v{vT0}, v{vT1}, 4, v{vT0}
s_mul_i32 s{T+13}, s{T+13}, {32*2304}
s_lshl_b32 s{T+12}, s{T+12}, 7
s_add_u32 s{T+13}, s{T+13}, s{T+12}
s_lshl_b32 m0, s{S_W}, 12""")
    lnx = a.label("nox"); ljx = a.label("jx")
    a(f"s_cmp_ge_u32 s2, 36\ns_cbranch_scc1 {lnx}")
    for q in range(4):
        a(f"buffer_load_dwordx4 v{vT0}, {RC}, s{T+13} offen lds")
        if q < 3:
            a(f"s_add_u32 s{T+13}, s{T+13}, {8*2304}\ns_add_u32 m0, m0, 1024\ns_nop 0")
    get_tag(a)
    a(f"s_waitcnt vmcnt(4)\ns_branch {ljx}\n{lnx}:")
    get_tag(a)
    a(f"s_waitcnt vmcnt(0)\n{ljx}:")
    stamp(a, 8)
    s1, s2_, q1, q2 = 32, 33, 34, 35
    a(f"s_mov_b32 s{T+12}, 0x3f803f80")
    for i in range(0, 12, 2):
        c = lambda r: "0" if i == 0 else f"v{r}"
        a(f"""v_dot2_f32_bf16 v{s1}, v{vRW+i}, s{T+12}, {c(s1)}
v_dot2_f32_bf16 v{q1}, v{vRW+i}, v{vRW+i}, {c(q1)}
v_dot2_f32_bf16 v{s2_}, v{vRW+i+1}, s{T+12}, {c(s2_)}
v_dot2_f32_bf16 v{q2}, v{vRW+i+1}, v{vRW+i+1}, {c(q2)}""")
    a(f"""s_nop 2
v_add_f32 v{s1}, v{s1}, v{s2_}
v_add_f32 v{q1}, v{q1}, v{q2}""")
    for m in ("quad_perm:[1,0,3,2] row_mask:0xf", "quad_perm:[2,3,0,1] row_mask:0xf", "row_half_mirror row_mask:0xf", "row_mirror row_mask:0xf", "row_bcast:15 row_mask:0xa", "row_bcast:31 row_mask:0xc"):
        a(f"s_nop 0\nv_add_f32_dpp v{s1}, v{s1}, v{s1} {m} bank_mask:0xf\nv_add_f32_dpp v{q1}, v{q1}, v{q1} {m} bank_mask:0xf")
    g = 36
    a(f"""v_mul_f32 v{g}, 0x3a638e39, v{s1}
v_mul_f32 v{g+2}, 0x3a638e39, v{q1}
v_fma_f32 v{g+2}, -v{g}, v{g}, v{g+2}
v_max_f32 v{g+2}, 0, v{g+2}""")
    round_bf16(a, g+2)
    a(f"v_add_f32 v{g+2}, 0x3727c5ac, v{g+2}")
    round_bf16(a, g+2)
    a(f"v_sqrt_f32 v{g+2}, v{g+2}")
    round_bf16(a, g)
    round_bf16(a, g+2)
    lsk = a.label("stsk")
    a(f"""v_rcp_f32 v{g+2}, v{g+2}
v_mov_b32 v{g+1}, v{vTAG}
v_mov_b32 v{g+3}, v{vTAG}
s_lshl_b32 s{T+12}, s{S_W}, 4
s_add_u32 s{T+12}, s{T+12}, {L_STC}
v_mov_b32 v{vT0}, s{T+12}
s_mov_b32 exec_lo, 0
s_brev_b32 exec_hi, 1
ds_write_b128 v{vT0}, {vr(g,4)}
s_mov_b64 exec, -1
s_lshl_b32 s{T+12}, s2, 7
s_add_u32 s{T+12}, s{T+12}, {F_STAT}
v_add_u32 v{vT0}, {L_STC}, v{vL16}
s_waitcnt lgkmcnt(0)
s_barrier
s_cmp_lg_u32 s{S_W}, 0
s_cbranch_scc1 {lsk}
s_mov_b64 exec, 0xff
ds_read_b128 {vr(g,4)}, v{vT0}
s_waitcnt lgkmcnt(0)
buffer_store_dwordx4 {vr(g,4)}, v{vL16}, {WS}, s{T+12} offen sc1
s_mov_b64 exec, -1
{lsk}:""")
    stamp(a, 9)
    a(f"s_cmp_lt_u32 s{S_SLOT}, {NO}\ns_cbranch_scc1 L_owner")
    if 'nopb' not in OPT:
        a("s_barrier")
    a("s_branch L_s0_w")
    a("L_s0_none:")
    if 'cpf' in OPT:
        a(f"""s_getpc_b64 s[{T}:{T+1}]
L_pc:
s_sub_u32 s{T}, s{T}, L_pc-{NAME}
s_subb_u32 s{T+1}, s{T+1}, 0
s_lshl_b32 s{T+2}, s{S_W}, 10
v_add_u32 v{vT0}, s{T+2}, v{vL16}""")
        for n in range(3):
            a(f"global_load_dwordx4 v[{100+4*n}:{103+4*n}], v{vT0}, s[{T}:{T+1}]\nv_add_u32 v{vT0}, 0x2000, v{vT0}\nv_min_u32 v{vT0}, L_codeend-{NAME}-16, v{vT0}")
    a(f"s_waitcnt lgkmcnt(0)\ns_load_dword s{S_TAG}, s[{S_WS}:{S_WS+1}], {EPOCH}")
    srd(a, R_WS, S_WS, SZ_WS)
    lane_consts(a)
    get_tag(a)
    a("L_s0_w:")
    b_setup(a)
    w_dma(a, 18)

VOX = 96

S_UCT, S_UTB = 9, 10
vDU = 14
KE = int(OPT.get('ke', 12))
def wo_dma(a, n0, n1):
    a(f"s_add_u32 s{T+10}, s{S_W}, {4*n0-4}")
    for n in range(n0, n1):
        a(f"""s_lshl_b32 m0, s{T+10}, 10
s_mul_i32 s{T+11}, s{T+10}, {8*2304}
buffer_load_dwordx4 v{vDU}, {RB}, s{T+11} offen lds""")
        if n < n1-1:
            a(f"s_add_u32 s{T+10}, s{T+10}, 4")

def gemm_loop(a, nsteps, LA, RING, vAcc, vWF, vH, vA0, vA1, vaddr, sH, lds_first, w_is_a, pre=None, rot=None, bar_at=None):
    WA = 2
    state = dict(issued=0)
    if rot:
        sR, sHs, sHe, sLo, sZ, sLe, vC0, vC1 = rot
        a(f"""s_mov_b32 s{sHs}, s{sH}
s_add_u32 s{sHe}, s{sH}, {nsteps*1024}
s_lshl_b32 s{sLo}, s{sR}, 12
s_add_u32 s{sH}, s{sH}, s{sLo}
s_lshl_b32 s{sLo}, s{sR}, 13
s_mov_b32 s{sZ}, 0
s_mov_b32 s{sLe}, {nsteps*2048}""")
    def hload():
        s = state['issued']
        a(f"buffer_load_dwordx4 {vr(vH+4*(s % RING),4)}, v{vaddr}, {WS}, s{sH} offen offset:{(s&3)*1024} sc1")
        if (s & 3) == 3 and s < nsteps-1:
            if rot: wrap_add(a, sH, 4096, sHe, sHs)
            else: a(f"s_add_u32 s{sH}, s{sH}, 4096")
        state['issued'] += 1
    def wread(s):
        if rot:
            if (s & 3) == 0:
                a(f"v_add_u32 v{vC0}, s{sLo}, v{vA0}\nv_add_u32 v{vC1}, s{sLo}, v{vA1}")
                wrap_add(a, sLo, 8192, sLe, sZ)
            trreads(a, vWF + 8*(s & 3), vC0, vC1, (s & 3)*2048)
            return
        if s and (s & 31) == 0:
            a(f"v_add_u32 v{vA0}, 0x10000, v{vA0}\nv_add_u32 v{vA1}, 0x10000, v{vA1}")
        trreads(a, vWF + 8*(s & 3), vA0, vA1, (s & 31)*2048)
    if lds_first:
        for s in range(WA): wread(s)
    for s in range(LA): hload()
    if pre: pre()
    if not lds_first:
        for s in range(WA): wread(s)
    for s in range(nsteps):
        lg = 4*min(WA-1, nsteps-1 - s)
        a(f"s_waitcnt vmcnt({state['issued'] - s - 1}) lgkmcnt({lg})")
        if s == 0 and lds_first: stamp(a, 4)
        h = vH+4*(s % RING); w0 = vWF+8*(s & 3)
        mfma(a, vAcc, *((w0, h) if w_is_a else (h, w0)), s == 0)
        if s + WA < nsteps:
            wread(s + WA)
        mfma(a, vAcc+16, *((w0+4, h) if w_is_a else (h, w0+4)), s == 0)
        if state['issued'] < nsteps:
            hload()
        if bar_at is not None and s == bar_at:
            a("s_barrier")

SZ = int(OPT['sz']) if 'sz' in OPT else None
UM = int(OPT.get('umap', 2)); UML = UM.bit_length()-1
def phase_bc(a):
    sTb, sOff, sH, sF = T+1, T+4, T+5, T+6
    vA0, vA1 = V0+1, V0+2
    vAcc = 20
    vWF = 52
    vH = 84
    a("L_b:")
    stamp(a, 1)
    srd(a, R_B, S_WO, SZ_WO)
    a(f"""s_sub_u32 s{S_SLOT}, s{S_SLOT}, {NO}
s_and_b32 s{T+14}, s{S_G}, {UM-1}
s_mul_i32 s{T+14}, s{T+14}, 18
s_add_u32 s{T+14}, s{T+14}, s{S_SLOT}
s_lshr_b32 s{S_UCT}, s{T+14}, {UML}
s_and_b32 s{T+14}, s{T+14}, {UM-1}
s_lshr_b32 s{S_UTB}, s{S_G}, {UML}
s_lshl_b32 s{S_UTB}, s{S_UTB}, {UML}
s_add_u32 s{S_UTB}, s{S_UTB}, s{T+14}
s_lshl_b32 s{S_UTB}, s{S_UTB}, 1
s_and_b32 s{T+14}, s{S_W}, 1
s_add_u32 s{S_UTB}, s{S_UTB}, s{T+14}
v_lshlrev_b32 v{vDU}, 4, v{vCH}
v_mul_u32_u24 v{vT0}, 2304, v{vR8}
s_lshl_b32 s{T+14}, s{S_UCT}, 7
v_add3_u32 v{vDU}, v{vDU}, v{vT0}, s{T+14}
s_lshl_b32 s{sTb}, s{S_BRT}, 2
s_and_b32 s{sOff}, s{S_W}, 3
s_add_u32 s{sTb}, s{sTb}, s{sOff}
s_mul_i32 s{sH}, s{sTb}, {72*1024}
s_add_u32 s{sH}, s{sH}, {WS_H}
v_mov_b32 v{vA0}, v{vB0}
v_mov_b32 v{vA1}, v{vB1}
v_min_u32 v{vT0}, 17, v0
v_lshlrev_b32 v{vT0}, 7, v{vT0}
s_lshr_b32 s{sOff}, s{S_BRT}, 1
s_mul_i32 s{sOff}, s{sOff}, {18*128}
s_add_u32 s{sOff}, s{sOff}, {F_H}
s_mul_i32 s{sF}, s{S_BRT}, 54
s_add_u32 s{sF}, s{sF}, s{S_BCT}
s_lshl_b32 s{sF}, s{sF}, 7
s_add_u32 s{sF}, s{sF}, {F_QKV}
s_waitcnt vmcnt(0)""")
    a("s_barrier")
    stamp(a, 2)
    a(f"s_cmp_ge_u32 s{S_W}, 4\ns_cbranch_scc1 L_ld")
    HPWG = OPT.get('hp', 'w') == 'wg'
    if HPWG:
        poll(a, vT0, f"s{sOff}", vT1)
    else:
        wpoll(a, vT0, f"s{sOff}", vT1)
    stamp(a, 3)
    LA = int(OPT['la'])
    gemm_loop(a, 72, LA, LA+4, vAcc, vWF, vH, vA0, vA1, vL16, sH, True, True, bar_at=SZ)
    stamp(a, 5)
    a(f"""s_mul_i32 s{sH}, s{sTb}, {216*1024}
s_lshl_b32 s{sOff}, s{S_BCT}, 12
s_add_u32 s{sH}, s{sH}, s{sOff}
s_add_u32 s{sH}, s{sH}, {WS_QKV}
s_nop 7""")
    for u in range(4):
        if u == 2:
            a("s_nop 1")
        for r in range(4*u, 4*u+4):
            a(f"v_cvt_pk_bf16_f32 v{vWF+r}, v{vAcc+2*r}, v{vAcc+2*r+1}")
        a(f"buffer_store_dwordx4 {vr(vWF+4*u,4)}, v{vL16}, {WS}, s{sH} offen offset:{1024*u} sc1")
    a("s_barrier")
    stamp(a, 6)
    sKh = T+2
    a(f"""s_lshr_b32 s{sKh}, s{S_W}, 1
s_mul_i32 s{sH}, s{S_UTB}, {216*1024}
s_mul_i32 s{sOff}, s{sKh}, {36*1024}
s_add_u32 s{sH}, s{sH}, s{sOff}
s_add_u32 s{sH}, s{sH}, {WS_QKV + 144*1024}
s_mul_i32 s{sOff}, s{sKh}, {576*128}
v_add_u32 v{vA0}, s{sOff}, v{vB0}
v_add_u32 v{vA1}, s{sOff}, v{vB1}
v_min_u32 v{vT0}, 8, v0
v_lshlrev_b32 v{vT0}, 7, v{vT0}
s_lshr_b32 s{T+7}, s{S_UTB}, 2
s_mul_i32 s{T+7}, s{T+7}, {54*128}
s_mul_i32 s{sOff}, s{sKh}, {9*128}
s_add_u32 s{T+7}, s{T+7}, s{sOff}
s_add_u32 s{T+7}, s{T+7}, {F_QKV + 36*128}""")
    set_flag(a, f"s{sF}")
    stamp(a, 7)
    a(f"s_cmp_ge_u32 s{S_SLOT}, 18\ns_cbranch_scc1 L_c_notu")
    if 'udelay' in OPT:
        a(f"s_sleep {OPT['udelay']}")
    UROT = int(OPT.get('urot', 0))
    if UROT:
        a(f"s_mul_i32 s{T+8}, s{S_UCT}, {UROT}")
        mod9(a, T+8, T+8, T+9)
    wpoll(a, vT0, f"s{T+7}", vT1)
    stamp(a, 12)
    LA = int(OPT.get('lau', 12))
    gemm_loop(a, 36, LA, min(36, LA+4), vAcc, vWF, vH, vA0, vA1, vP16, sH, False, False, pre=lambda: (a("s_barrier"), stamp(a, 11)),
              rot=(T+8, T+9, T+10, T+11, T+12, T+13, V0, V0+3) if UROT else None)
    stamp(a, 13)
    lk1 = a.label("kh1"); lj = a.label("j")
    a(f"""s_lshl_b32 s{sOff}, s{S_W}, 12
s_add_u32 s{sOff}, s{sOff}, {L_MISC}
v_add_u32 v{vT0}, s{sOff}, v{vL16}
v_xor_b32 v{vT1}, {2*4096}, v{vT0}
s_lshr_b32 s{sH}, s{S_UTB}, 3
s_mul_i32 s{sF}, s{sH}, 18
s_add_u32 s{sF}, s{sF}, s{S_UCT}
s_lshl_b32 s{sH}, s{sF}, 1
s_add_u32 s{sH}, s{sH}, s{sKh}
s_lshl_b32 s{sH}, s{sH}, 3
s_and_b32 s{sOff}, s{S_UTB}, 7
s_add_u32 s{sH}, s{sH}, s{sOff}
s_lshl_b32 s{sH}, s{sH}, 11
s_add_u32 s{sH}, s{sH}, {WS_U}
s_lshl_b32 s{sF}, s{sF}, 2
s_bfe_u32 s{sOff}, s{S_UTB}, 0x20001
s_add_u32 s{sF}, s{sF}, s{sOff}
s_lshl_b32 s{sF}, s{sF}, 7
s_add_u32 s{sF}, s{sF}, {F_U}
s_cmp_lg_u32 s{sKh}, 0
s_cbranch_scc1 {lk1}""")
    for q in range(4):
        a(f"ds_write_b128 v{vT0}, {vr(vAcc+16+4*q,4)} offset:{q*1024}")
    a(f"s_branch {lj}\n{lk1}:")
    for q in range(4):
        a(f"ds_write_b128 v{vT0}, {vr(vAcc+4*q,4)} offset:{q*1024}")
    for r in range(16):
        a(f"v_mov_b32 v{vAcc+r}, v{vAcc+16+r}")
    a(f"{lj}:\ns_waitcnt lgkmcnt(0)\ns_barrier")
    for q in range(4):
        a(f"ds_read_b128 {vr(vWF+4*q,4)}, v{vT1} offset:{q*1024}")
    for u in range(2):
        a(f"s_waitcnt lgkmcnt({2-2*u})")
        for r in range(8*u, 8*u+8):
            a(f"v_add_f32 v{vAcc+r}, v{vAcc+r}, v{vWF+r}")
        for r in range(4*u, 4*u+4):
            a(f"v_cvt_pk_bf16_f32 v{vWF+16+r}, v{vAcc+2*r}, v{vAcc+2*r+1}")
        a(f"buffer_store_dwordx4 {vr(vWF+16+4*u,4)}, v{vL16}, {WS}, s{sH} offen offset:{1024*u} sc1")
    set_flag(a, f"s{sF}")
    a("s_branch L_c_done")
    lnu = a.label("ldnu")
    vWo = 20
    NE = int(OPT.get('ne', 18))
    a("L_ld:")
    if 'tlb' in OPT:
        sh = int(OPT['tlb'])
        lt = a.label("tlb")
        srd(a, R_A, S_OUT, SZ_X)
        srd(a, R_C, S_WS, 0x700000)
        a(f"s_cmp_lg_u32 s{S_W}, 7\ns_cbranch_scc1 {lt}\nv_lshlrev_b32 v{vT2}, {sh}, v0\nv_add_u32 v{vT2}, {(1<<sh)-128}, v{vT2}")
        a(f"buffer_load_dword v236, v{vT2}, {RA}, 0 offen")
        for off in range(0, 0x700000, 64 << sh):
            a(f"v_add_u32 v{vT1}, {off}, v{vT2}\nbuffer_load_dword v237, v{vT1}, {RC}, 0 offen sc1")
        a(f"{lt}:")
    if SZ is not None:
        a("s_barrier")
    a(f"""s_cmp_ge_u32 s{S_SLOT}, 18
s_cbranch_scc1 {lnu}
s_sub_u32 s{T+10}, s{S_W}, 4
s_lshl_b32 s{T+11}, s{T+10}, 10
v_add_u32 v{vT0}, s{T+11}, v{vL16}
s_lshr_b32 s{T+12}, s{S_UTB}, 1
s_and_b32 s{T+12}, s{T+12}, {UM-1}
s_mul_i32 s{T+12}, s{T+12}, {144//UM}
s_add_u32 s{T+10}, s{T+10}, s{T+12}
s_lshl_b32 s{T+12}, s{T+12}, 10""")
    def nxt(n):
        if n < 35:
            a(f"s_add_u32 s{T+10}, s{T+10}, 4")
            if n % 9 == 8:
                a(f"""s_sub_u32 s{T+11}, s{T+10}, 144
s_cmp_ge_u32 s{T+10}, 144
s_cselect_b32 s{T+10}, s{T+11}, s{T+10}""")
    for n in range(NE):
        a(f"""s_mul_i32 s{T+11}, s{T+10}, {8*2304}
buffer_load_dwordx4 {vr(vWo+4*n,4)}, v{vDU}, {RB}, s{T+11} offen
{THRO}""")
        nxt(n)
    stamp(a, 4)
    if HPWG:
        a("s_barrier")
    a("s_barrier")
    stamp(a, 5)
    WS_ = min(NE, int(OPT.get('wsplit', 12)))
    def wr(n):
        if n % 9 == 0:
            a(f"v_add_u32 v{vT1}, s{T+12}, v{vT0}")
            a(f"""s_add_u32 s{T+12}, s{T+12}, {36*1024}
s_cmp_ge_u32 s{T+12}, {144*1024}
s_cselect_b32 s{T+12}, 0, s{T+12}""")
        a(f"s_waitcnt vmcnt({NE-1-n})\nds_write_b128 v{vT1}, {vr(vWo+4*n,4)} offset:{(n % 9)*4096}")
    for n in range(WS_): wr(n)
    a("s_barrier")
    for n in range(WS_, NE): wr(n)
    for n in range(NE, 36):
        a(f"""s_lshl_b32 m0, s{T+10}, 10
s_mul_i32 s{T+11}, s{T+10}, {8*2304}
buffer_load_dwordx4 v{vDU}, {RB}, s{T+11} offen lds""")
        nxt(n)
    a(f"""s_waitcnt vmcnt(0) lgkmcnt(0)""")
    stamp(a, 11)
    a(f"""s_barrier
s_barrier
s_barrier
s_branch L_c_done
{lnu}:
s_barrier
s_barrier""")
    if HPWG:
        a("s_barrier")
    a("L_c_notu:")
    sQb, sKb, sKq, sJ, sK, sQ, sTy = T, T+1, T+2, T+3, T+5, T+6, T+9
    sM = T+10
    sK1 = T+12
    vS = 56
    RING = 15
    a(f"""s_sub_u32 s{sJ}, s{S_SLOT}, 18
s_lshr_b32 s{sTy}, s{sJ}, 2
s_and_b32 s{sKq}, s{S_W}, 3
s_and_b32 s{sQb}, s{S_G}, 1
s_lshl_b32 s{sQb}, s{sQb}, 2
s_and_b32 s{sOff}, s{sJ}, 3
s_add_u32 s{sQb}, s{sQb}, s{sOff}
s_and_b32 s{sKb}, s{S_G}, 2
s_lshl_b32 s{sKb}, s{sKb}, 1
s_lshr_b32 s{sOff}, s{S_G}, 2
s_lshl_b32 s{sOff}, s{sOff}, 3
s_add_u32 s{sQb}, s{sQb}, s{sOff}
s_add_u32 s{sKb}, s{sKb}, s{sOff}
s_min_u32 s{sK1}, s{sTy}, 1
s_add_u32 s{sK1}, s{sK1}, s{sTy}
s_mul_i32 s{sK}, s{sKb}, {216*1024}
s_mul_i32 s{sQ}, s{sQb}, {216*1024}
s_mul_i32 s{sOff}, s{sKq}, {18*1024}
s_add_u32 s{sK}, s{sK}, s{sOff}
s_add_u32 s{sQ}, s{sQ}, s{sOff}
s_add_u32 s{sK}, s{sK}, {WS_QKV + 72*1024}
s_add_u32 s{sQ}, s{sQ}, {WS_QKV}
v_min_u32 v{vT0}, 17, v{vTok}
v_lshlrev_b32 v{vT0}, 7, v{vT0}
s_lshr_b32 s{sOff}, s{sKb}, 2
s_mul_i32 s{sOff}, s{sOff}, {54*128}
s_add_u32 s{sOff}, s{sOff}, {18*128}
s_lshr_b32 s{T+13}, s{sQb}, 2
s_mul_i32 s{T+13}, s{T+13}, {54*128}
s_sub_u32 s{sOff}, s{sOff}, s{T+13}
v_mul_lo_u32 v{vT1}, v{vHF}, s{sOff}
v_add_u32 v{vT0}, v{vT0}, v{vT1}
v_add_u32 v{vT0}, s{T+13}, v{vT0}
v_and_b32 v{vT2}, 0x2ff, v{vP16}
v_and_b32 v{vT1}, 16, v0
v_lshl_add_u32 v{vT2}, v{vT1}, 6, v{vT2}
s_and_b32 s{sOff}, s{sTy}, 1
s_lshl_b32 s{sOff}, s{sOff}, 8
s_add_u32 s{sOff}, s{sOff}, {216*1024}
v_add_u32 v{vT2}, s{sOff}, v{vT2}
s_mul_i32 s{sOff}, s{sK1}, {216*1024}
v_add_u32 v{V0}, s{sOff}, v{vP16}
s_mov_b32 s{sOff}, {F_QKV}""")
    poll(a, vT0, f"s{sOff}", vT1)
    stamp(a, 12)
    lsi = a.label("sidle")
    a(f"s_cmp_ge_u32 s{S_W}, 4\ns_cbranch_scc1 {lsi}")
    LA = int(OPT.get('las', 4))
    vS = 72; RING = 8
    vAc3 = 56
    assert LA < RING
    def sload(p):
        r = vS + 20*(p % RING)
        o = (p & 1)*2048
        a(f"""buffer_load_dwordx4 {vr(r,4)}, v{vL16}, {WS}, s{sQ} offen offset:{o} sc1
buffer_load_dwordx4 {vr(r+4,4)}, v{V0}, {WS}, s{sK} offen offset:{o} sc1
buffer_load_dwordx4 {vr(r+8,4)}, v{vT2}, {WS}, s{sK} offen offset:{o} sc1
buffer_load_dwordx4 {vr(r+12,4)}, v{vL16}, {WS}, s{sQ} offen offset:{o+1024} sc1
buffer_load_dwordx4 {vr(r+16,4)}, v{V0}, {WS}, s{sK} offen offset:{o+1024} sc1""")
        if p & 1:
            a(f"s_add_u32 s{sK}, s{sK}, 4096\ns_add_u32 s{sQ}, s{sQ}, 4096")
    for p in range(LA):
        sload(p)
    for p in range(9):
        y = 5*(min(9, p + LA) - p - 1)
        r = vS + 20*(p % RING)
        a(f"s_waitcnt vmcnt({y+3})")
        mfma(a, vAcc, r+4, r, p == 0)
        a(f"s_waitcnt vmcnt({y+2})")
        mfma(a, vAcc+16, r+8, r, p == 0)
        a(f"s_waitcnt vmcnt({y+1})")
        mfma(a, vAc3, r+8, r+12, p == 0)
        a(f"s_waitcnt vmcnt({y})")
        mfma(a, vAcc, r+16, r+12)
        if p + LA < 9:
            sload(p + LA)
    stamp(a, 13)
    QS, HS, PSZ = 1056, 528, 8448
    a(f"""s_mul_i32 s{sOff}, s{S_W}, {PSZ}
v_lshl_add_u32 v{vT0}, v{vHF}, 4, v{vL16}
v_add_u32 v{vT0}, s{sOff}, v{vT0}
s_nop 7""")
    for r in range(8):
        a(f"v_add_f32 v{vAcc+16+r}, v{vAcc+16+r}, v{vAc3+8+r}")
    for q in (4, 5, 0, 1, 2, 3):
        a(f"ds_write_b128 v{vT0}, {vr(vAcc+4*q,4)} offset:{q*QS}")
    a(f"""{lsi}:
v_bfe_u32 v{vT1}, v0, 2, 2
v_and_b32 v{vT2}, 1, v0
v_lshl_add_u32 v{vT1}, v{vT1}, 1, v{vT2}
v_mul_u32_u24 v{vT1}, {QS}, v{vT1}
v_bfe_u32 v{vT2}, v0, 1, 1
v_mul_u32_u24 v{vT2}, {HS}, v{vT2}
v_lshrrev_b32 v{vT0}, 4, v0
s_lshl_b32 s{sOff}, s{S_W}, 2
v_add_u32 v{vT0}, s{sOff}, v{vT0}
v_lshl_add_u32 v{vT1}, v{vT0}, 4, v{vT1}
v_add_u32 v{vT1}, v{vT1}, v{vT2}
v_and_b32 v{vT2}, 7, v0
v_lshlrev_b32 v{vT2}, 4, v{vT2}
v_lshl_add_u32 v{vT2}, v{vT0}, 10, v{vT2}
s_lshl_b32 s{sOff}, s{sK1}, 7
v_mov_b32 v{vT0}, s{sOff}
v_and_b32 v{vT3}, 8, v0
v_cmp_ne_u32 vcc, 0, v{vT3}
s_and_b32 s{sOff}, s{sTy}, 1
s_lshl_b32 s{sOff}, s{sOff}, 6
s_add_u32 s{sOff}, s{sOff}, 128
v_mov_b32 v{vT3}, s{sOff}
s_lshl_b32 s{sJ}, s{sQb}, 15
v_cndmask_b32 v{vT0}, v{vT0}, v{vT3}, vcc
v_add_u32 v{vT2}, v{vT2}, v{vT0}
s_and_b32 s{sOff}, s{sKb}, 7
s_lshl_b32 s{sOff}, s{sOff}, 7
s_add_u32 s{sJ}, s{sJ}, s{sOff}
s_add_u32 s{sJ}, s{sJ}, {WS_L}
s_mov_b32 s{sM}, 0x0fff0fff
s_cmp_eq_u32 s{sTy}, 2
s_cselect_b32 s{sM}, 0x00ff00ff, s{sM}
s_mov_b32 s{sM+1}, s{sM}
v_mov_b32 v53, v{vTAG}
v_mov_b32 v55, v{vTAG}
s_waitcnt lgkmcnt(0)
s_barrier""")
    for j in range(4):
        a(f"ds_read_b128 {vr(vAcc+4*j,4)}, v{vT1} offset:{j*PSZ}")
    a("s_waitcnt lgkmcnt(2)")
    for r in range(4):
        a(f"v_add_f32 v{vAcc+r}, v{vAcc+r}, v{vAcc+4+r}")
    a("s_waitcnt lgkmcnt(0)")
    for r in range(4):
        a(f"v_add_f32 v{vAcc+8+r}, v{vAcc+8+r}, v{vAcc+12+r}")
    for r in range(4):
        a(f"v_add_f32 v{vAcc+r}, v{vAcc+r}, v{vAcc+8+r}")
    sc = struct.unpack('<I', struct.pack('<f', D ** -0.5))[0]
    for r in range(2):
        a(f"v_cvt_pk_bf16_f32 v{52+2*r}, v{vAcc+2*r}, v{vAcc+2*r+1}")
    for r in range(2):
        unpack(a, vAcc+2*r, vAcc+2*r+1, 52+2*r)
    for r in range(4):
        a(f"v_mul_f32 v{vAcc+r}, {hex(sc)}, v{vAcc+r}")
    for r in range(2):
        a(f"v_cvt_pk_bf16_f32 v{52+2*r}, v{vAcc+2*r}, v{vAcc+2*r+1}")
    a(f"s_mov_b64 exec, s[{sM}:{sM+1}]\nbuffer_store_dwordx4 v[52:55], v{vT2}, {WS}, s{sJ} offen sc1\ns_mov_b64 exec, -1")
    a("L_c_done:")
    stamp(a, 14)

def phase_d(a):
    sQt, sCt, sCb, sKh, sOff, sXo, sJ, sU, sB, sCol = T, T+1, T+2, T+3, T+4, T+5, T+6, T+7, T+8, T+9
    vXo, vMx, vS, vLa, vPa, vLw = V0, V0+1, V0+2, V0+3, V0+4, V0+5
    vLd = 24
    vX = 40
    vG = 44
    vF = 56
    vR = 72
    vAcc = 80
    vU = 96
    vP = 128
    PS = 1056
    L_P, L_EX = 40960, 65536
    srd(a, R_A, S_X, SZ_X)
    srd(a, R_B, S_OUT, SZ_X)
    a(f"s_sub_u32 s{sJ}, 26, s{S_SLOT}" if 'dold' in OPT else f"s_mov_b32 s{sJ}, s{S_SLOT}")
    a(f"""s_cmp_ge_u32 s{sJ}, 18
s_cbranch_scc1 L_fin
s_and_b32 s{sOff}, s{S_G}, 3
s_mul_i32 s{sOff}, s{sOff}, 18
s_add_u32 s{sOff}, s{sOff}, s{sJ}
s_lshr_b32 s{sCt}, s{sOff}, 3
s_and_b32 s{sJ}, s{sOff}, 7
s_lshr_b32 s{sB}, s{S_G}, 2
s_lshl_b32 s{sQt}, s{sB}, 3
s_add_u32 s{sQt}, s{sQt}, s{sJ}
s_and_b32 s{sCb}, s{S_W}, 3
s_lshr_b32 s{sKh}, s{S_W}, 2
s_lshl_b32 s{sCol}, s{sCt}, 7
s_lshl_b32 s{sOff}, s{sCb}, 5
s_add_u32 s{sCol}, s{sCol}, s{sOff}
s_lshl_b32 s{sOff}, s{sKh}, 4
s_add_u32 s{sCol}, s{sCol}, s{sOff}
s_mul_i32 s{sXo}, s{sQt}, {32*2304}
s_lshl_b32 s{sOff}, s{sCol}, 1
s_add_u32 s{sXo}, s{sXo}, s{sOff}
v_mul_u32_u24 v{vXo}, 2304, v{vTok}
v_lshl_add_u32 v{vXo}, v{vHF}, 4, v{vXo}
buffer_load_dwordx4 {vr(vX,4)}, v{vXo}, {RA}, s{sXo} offen
s_mul_i32 s{sU}, s{sB}, 36
s_lshl_b32 s{sOff}, s{sCt}, 2
s_add_u32 s{sU}, s{sU}, s{sOff}
s_add_u32 s{sU}, s{sU}, s{sCb}
s_lshr_b32 s{T+10}, s{sU}, 1
s_lshl_b32 s{sU}, s{sU}, 4
s_lshl_b32 s{sOff}, s{sKh}, 3
s_add_u32 s{sU}, s{sU}, s{sOff}
s_lshl_b32 s{sU}, s{sU}, 10
s_add_u32 s{sU}, s{sU}, {WS_U}
s_lshl_b32 s{T+10}, s{T+10}, 1
s_add_u32 s{T+10}, s{T+10}, s{sKh}
s_lshl_b32 s{T+10}, s{T+10}, 8
s_add_u32 s{T+10}, s{T+10}, {F_U}
v_and_b32 v{vT0}, 1, v0
v_lshlrev_b32 v{vT0}, 7, v{vT0}
v_add_u32 v{vT1}, s{T+10}, v{vT0}
s_lshr_b32 s{sOff}, s{sCol}, 6
s_lshl_b32 s{sOff}, s{sOff}, 7
s_add_u32 s{sOff}, s{sOff}, {F_G}
v_mov_b32 v{vT2}, s{sOff}
v_cmp_lt_u32 vcc, 9, v0
s_lshl_b32 s{sOff}, s{sQt}, 15
s_lshl_b32 s{T+10}, s{S_W}, 12
v_cndmask_b32 v{vT1}, v{vT1}, v{vT2}, vcc
s_add_u32 s{sOff}, s{sOff}, s{T+10}
s_add_u32 s{sOff}, s{sOff}, {WS_L + 3*1024 + 124}
v_lshlrev_b32 v{vT2}, 7, v0
v_add_u32 v{vT2}, s{sOff}, v{vT2}
v_cmp_gt_u32 vcc, 8, v0
v_and_b32 v{vT3}, 15, v0
v_lshrrev_b32 v{vT0}, 4, v0
v_cndmask_b32 v{vT1}, v{vT1}, v{vT2}, vcc
s_lshl_b32 s{sOff}, s{S_W}, 2
v_add_u32 v{vT0}, s{sOff}, v{vT0}
v_lshlrev_b32 v{vLa}, 10, v{vT0}
v_lshl_add_u32 v{vLa}, v{vT3}, 4, v{vLa}
v_lshrrev_b32 v{vT2}, 1, v{vT3}
v_mul_u32_u24 v{vLw}, {PS//2}, v{vT2}
v_lshl_add_u32 v{vLw}, v{vT0}, 4, v{vLw}
v_and_b32 v{vT2}, 1, v0
v_lshl_add_u32 v{vLw}, v{vT2}, 3, v{vLw}
v_lshl_add_u32 v{vPa}, v{vHF}, 4, v{vL16}
s_mul_i32 s{sOff}, s{sKh}, {8*PS}
v_add_u32 v{vPa}, s{sOff}, v{vPa}
s_mul_i32 s{T+11}, s{sB}, 4608
s_lshl_b32 s{T+10}, s{sCol}, 2
s_add_u32 s{T+11}, s{T+11}, s{T+10}
s_add_u32 s{T+11}, s{T+11}, {WS_GATE}
v_lshlrev_b32 v{vT0}, 5, v{vHF}
s_lshl_b32 s{sOff}, s{sQt}, 15
s_add_u32 s{sOff}, s{sOff}, {WS_L}""")
    vFa, vFl = 22, 23
    sUd = T+12
    def uloads():
        for s in range(8):
            a(f"buffer_load_dwordx4 {vr(vU+4*s,4)}, v{vL16}, {WS}, s{sU} offen offset:{(s&3)*1024} sc1")
            if s == 3:
                a(f"s_add_u32 s{sU}, s{sU}, 4096")
        a(f"""buffer_load_dwordx4 {vr(vG,4)}, v{vT0}, {WS}, s{T+11} offen sc1
buffer_load_dwordx4 {vr(vG+4,4)}, v{vT0}, {WS}, s{T+11} offen offset:16 sc1
s_mov_b32 s{sUd}, 1""")
        stamp(a, 8)
    l = a.label("lp"); d = a.label("lpd"); nu = a.label("nu"); l3 = a.label("lv"); d3 = a.label("lvd"); nu2 = a.label("nu2")
    def lloads():
        for n in range(4):
            a(f"buffer_load_dwordx4 {vr(vLd+4*n,4)}, v{vLa}, {WS}, s{sOff} offen offset:{256*n} sc1")
    a(f"""v_mov_b32 v{vFa}, v{vT1}
s_mov_b32 s{sUd}, 0
{l}:
buffer_load_dword v{vFl}, v{vFa}, {WS}, 0 offen sc1
s_waitcnt vmcnt(0)
v_cmp_ne_u32 vcc, s{S_TAG}, v{vFl}
s_and_b32 s{T+13}, vcc_lo, 255
s_cbranch_scc0 {d}
s_lshr_b32 s{T+13}, vcc_lo, 8
s_cbranch_scc0 {d}
s_sleep {OPT.get('lsleep', 1)}
s_sub_u32 s{S_TO}, s{S_TO}, 1
s_cmp_lg_u32 s{S_TO}, 0
s_cbranch_scc1 {l}
s_mov_b32 s{S_TO}, 1
{d}:""")
    lloads()
    a(f"""s_lshr_b32 s{T+13}, vcc_lo, 8
s_or_b32 s{T+13}, s{T+13}, s{sUd}
s_cbranch_scc1 {nu2}""")
    uloads()
    a(f"""s_waitcnt vmcnt(10)
s_branch {l3}_c
{nu2}:
buffer_load_dword v{vFl}, v{vFa}, {WS}, 0 offen sc1
s_waitcnt vmcnt(1)
s_branch {l3}_c
{l3}:""")
    lloads()
    a(f"""s_waitcnt vmcnt(0)
{l3}_c:
v_min_u32 v{vT1}, v{vLd+1}, v{vLd+3}
v_max_u32 v{vT2}, v{vLd+1}, v{vLd+3}""")
    for n in range(1, 4):
        a(f"v_min3_u32 v{vT1}, v{vT1}, v{vLd+4*n+1}, v{vLd+4*n+3}\nv_max3_u32 v{vT2}, v{vT2}, v{vLd+4*n+1}, v{vLd+4*n+3}")
    a(f"""v_cmp_ne_u32 vcc, s{S_TAG}, v{vT1}
v_cmp_ne_u32 s[{T+14}:{T+15}], s{S_TAG}, v{vT2}
s_or_b64 vcc, vcc, s[{T+14}:{T+15}]
s_cbranch_vccz {d3}
s_sub_u32 s{S_TO}, s{S_TO}, 1
s_cmp_lg_u32 s{S_TO}, 0
s_cbranch_scc1 {l3}
s_mov_b32 s{S_TO}, 1
{d3}:""")
    stamp(a, 9)
    for i in range(8):
        unpack(a, vF+2*i, vF+2*i+1, vLd+2*i)
    a(f"""v_max3_f32 v{vMx}, v{vF}, v{vF+1}, v{vF+2}
v_max3_f32 v{vS}, v{vF+3}, v{vF+4}, v{vF+5}
v_max3_f32 v{vMx}, v{vMx}, v{vF+6}, v{vF+7}
v_max3_f32 v{vS}, v{vS}, v{vF+8}, v{vF+9}
v_max3_f32 v{vMx}, v{vMx}, v{vF+10}, v{vF+11}
v_max3_f32 v{vS}, v{vS}, v{vF+12}, v{vF+13}
v_max3_f32 v{vMx}, v{vMx}, v{vF+14}, v{vF+15}
v_max_f32 v{vMx}, v{vMx}, v{vS}""")
    for m in ("quad_perm:[1,0,3,2]", "quad_perm:[2,3,0,1]", "row_half_mirror", "row_mirror"):
        a(f"s_nop 1\nv_max_f32_dpp v{vMx}, v{vMx}, v{vMx} {m} row_mask:0xf bank_mask:0xf")
    a(f"s_mov_b32 s{T+10}, {hex(LOG2E)}\nv_mul_f32 v{vMx}, s{T+10}, v{vMx}")
    for i in range(16):
        a(f"v_fma_f32 v{vF+i}, v{vF+i}, s{T+10}, -v{vMx}")
    for i in range(16):
        a(f"v_exp_f32 v{vF+i}, v{vF+i}")
    a(f"v_add_f32 v{vS}, v{vF}, v{vF+1}\nv_add_f32 v{vMx}, v{vF+2}, v{vF+3}")
    for i in range(4, 16, 2):
        a(f"v_add_f32 v{vS}, v{vS}, v{vF+i}\nv_add_f32 v{vMx}, v{vMx}, v{vF+i+1}")
    a(f"v_add_f32 v{vS}, v{vS}, v{vMx}")
    for m in ("quad_perm:[1,0,3,2]", "quad_perm:[2,3,0,1]", "row_half_mirror", "row_mirror"):
        a(f"s_nop 1\nv_add_f32_dpp v{vS}, v{vS}, v{vS} {m} row_mask:0xf bank_mask:0xf")
    a(f"v_rcp_f32 v{vS}, v{vS}\ns_nop 0")
    for i in range(16):
        a(f"v_mul_f32 v{vF+i}, v{vF+i}, v{vS}")
    for i in range(8):
        a(f"v_cvt_pk_bf16_f32 v{vLd+i}, v{vF+2*i}, v{vF+2*i+1}")
    for n in range(4):
        a(f"ds_write_b64 v{vLw}, {vr(vLd+2*n,2)} offset:{L_P+4*n*PS}")
    hu = a.label("hu"); l2 = a.label("up"); d2 = a.label("upd")
    a(f"""s_cmp_lg_u32 s{sUd}, 0
s_cbranch_scc1 {hu}
{l2}:
s_waitcnt vmcnt(0)
v_cmp_ne_u32 vcc, s{S_TAG}, v{vFl}
s_cbranch_vccz {d2}
buffer_load_dword v{vFl}, v{vFa}, {WS}, 0 offen sc1
s_sub_u32 s{S_TO}, s{S_TO}, 1
s_cmp_lg_u32 s{S_TO}, 0
s_cbranch_scc1 {l2}
s_mov_b32 s{S_TO}, 1
{d2}:""")
    uloads()
    a(f"{hu}:\ns_waitcnt lgkmcnt(0)\ns_barrier")
    for s in range(8):
        a(f"ds_read_b128 {vr(vP+4*s,4)}, v{vPa} offset:{L_P+s*PS}")
    a(f"""s_lshl_b32 s{sOff}, s{S_W}, 11
s_add_u32 s{sOff}, s{sOff}, {L_EX}
v_add_u32 v{vT0}, s{sOff}, v{vL16}
v_xor_b32 v{vT1}, {4*2048}, v{vT0}""")
    for s in range(8):
        a(f"s_waitcnt vmcnt({2+7-s}) lgkmcnt({7-s})")
        mfma(a, vAcc, vU+4*s, vP+4*s, s == 0)
    for i in range(4):
        unpack(a, vF+2*i, vF+2*i+1, vX+i)
    stamp(a, 10)
    lk1 = a.label("kh1"); lj = a.label("j")
    a(f"""s_nop 3
s_cmp_lg_u32 s{sKh}, 0
s_cbranch_scc1 {lk1}
ds_write_b128 v{vT0}, {vr(vAcc+8,4)}
ds_write_b128 v{vT0}, {vr(vAcc+12,4)} offset:1024
s_branch {lj}
{lk1}:
ds_write_b128 v{vT0}, {vr(vAcc,4)}
ds_write_b128 v{vT0}, {vr(vAcc+4,4)} offset:1024""")
    for r in range(8):
        a(f"v_mov_b32 v{vAcc+r}, v{vAcc+8+r}")
    a(f"""{lj}:
s_waitcnt lgkmcnt(0)
s_barrier
ds_read_b128 {vr(vR,4)}, v{vT1}
ds_read_b128 {vr(vR+4,4)}, v{vT1} offset:1024
s_waitcnt vmcnt(0) lgkmcnt(0)""")
    for r in range(8):
        a(f"v_add_f32 v{vAcc+r}, v{vAcc+r}, v{vR+r}")
    def cv():
        for i in range(4):
            a(f"v_cvt_pk_bf16_f32 v{vR+i}, v{vAcc+2*i}, v{vAcc+2*i+1}")
    def up():
        for i in range(4):
            unpack(a, vAcc+2*i, vAcc+2*i+1, vR+i)
    cv(); up()
    for r in range(8):
        a(f"v_mul_f32 v{vAcc+r}, v{vAcc+r}, v{vG+r}")
    cv(); up()
    for r in range(8):
        a(f"v_add_f32 v{vAcc+r}, v{vAcc+r}, v{vF+r}")
    cv()
    a(f"buffer_store_dwordx4 {vr(vR,4)}, v{vXo}, {RB}, s{sXo} offen {OPT.get('oflag', '').replace('+', ' ')}")
    a("L_fin:")

def gemv_dma(a, sColA, vD):
    sRow0, sOff = T+2, T+3
    a(f"""v_lshlrev_b32 v{vD}, 4, v{vCH}
v_mul_u32_u24 v{vT0}, 13824, v{vR8}
v_add3_u32 v{vD}, v{vD}, v{vT0}, s{sColA}
s_mul_i32 s{sOff}, s{sRow0}, 13824
s_lshl_b32 m0, s{sRow0}, 7""")
    for t in range(18):
        a(f"""s_nop 0
buffer_load_dwordx4 v{vD}, {RA}, s{sOff} offen {NT} lds""")
        if t < 17:
            a(f"s_add_u32 s{sOff}, s{sOff}, {8*13824}\ns_add_u32 m0, m0, 1024")

def phase_owner(a):
    sColA, sB, sRow0, sOff, sO, sCs, sTb = T, T+1, T+2, T+3, T+4, T+5, T+6
    vD, vA0, vA1, vSil, vCs = V0, V0+1, V0+2, V0+3, V0+4
    vC = 24
    vST = 28
    vX = VOX
    vXN = 48
    vPt = 80
    vAcc = 112
    vWF = 144
    vSF = 160
    vM = 184
    a(f"""s_mov_b32 s{sO}, s2
s_cmp_ge_u32 s{sO}, 36
s_cbranch_scc1 L_o_pref
s_lshr_b32 s{sCs}, s{sO}, 1
s_and_b32 s{sB}, s{sO}, 1
s_waitcnt vmcnt(0)
s_barrier""")
    vST = 32
    vPt = 112
    SM = [32, 33, 34, 35, 36, 37, 38, 39, 40, 41, 42, 43, 9, 10, 11, 12]
    a(f"""v_and_b32 v{vT3}, 7, v0
v_xor_b32 v{vT0}, s{S_W}, v{vT3}
v_lshlrev_b32 v{vT0}, 4, v{vT0}
v_lshl_add_u32 v{vT0}, v0, 7, v{vT0}""")
    for q in range(4):
        a(f"ds_read_b128 {vr(vX+4*q,4)}, v{vT0} offset:{q*8192}")
    a(f"""s_lshl_b32 s{T+9}, s{sB}, 12
s_add_u32 s{T+9}, s{T+9}, {F_STAT}
s_mul_i32 s{T+10}, s{sO}, {18*1024}
s_lshl_b32 s{sOff}, s{S_W}, 7
s_add_u32 s{T+10}, s{T+10}, s{sOff}
s_add_u32 s{T+10}, s{T+10}, {WS_PART}
s_add_u32 s{T+11}, s{T+10}, 8192
v_lshlrev_b32 v{vT1}, 4, v{vT3}
v_min_u32 v{vT2}, 1, v{vR8}
v_lshl_add_u32 v{vT2}, v{vT2}, 10, v{vT1}
v_add_u32 v{vT2}, 16384, v{vT2}
v_lshl_add_u32 v{vT1}, v{vR8}, 10, v{vT1}
v_cmp_gt_u32 vcc, 16, v0
v_mul_u32_u24 v{vCs}, {72*1024}, v{vHF}
v_lshl_add_u32 v{vCs}, v{vTok}, 4, v{vCs}
v_cndmask_b32 v{vA0}, 0, 1.0, vcc
v_bfe_u32 v{vA1}, v0, 2, 1
v_cvt_f32_u32 v{vA1}, v{vA1}
s_mul_i32 s{sOff}, s{sB}, {8*72*1024}
s_lshl_b32 s{T+12}, s{sCs}, 12
s_add_u32 s{sOff}, s{sOff}, s{T+12}
s_lshl_b32 s{T+12}, s{S_W}, 9
s_add_u32 s{sOff}, s{sOff}, s{T+12}
s_add_u32 s{sOff}, s{sOff}, {WS_H}
s_waitcnt lgkmcnt(0)""")
    def stl():
        for q in range(4):
            a(f"buffer_load_dwordx4 {vr(vST+4*q,4)}, v{vL16}, {WS}, s{T+9} offen offset:{1024*q} sc1")
    def pl():
        a(f"""buffer_load_dwordx4 {vr(vPt,4)}, v{vT1}, {WS}, s{T+10} offen sc1
buffer_load_dwordx4 {vr(vPt+4,4)}, v{vT1}, {WS}, s{T+11} offen sc1
buffer_load_dwordx4 {vr(vPt+8,4)}, v{vT2}, {WS}, s{T+10} offen sc1""")
    P = [(q, i) for q in range(4) for i in range(4)]
    lo = lambda q, i: vXN+8*q+2*i
    hi = lambda q, i: vXN+8*q+2*i+1
    xs = lambda q, i: vX+4*q+i
    def st_unpack():
        for q, i in P: unpack(a, lo(q,i), hi(q,i), xs(q,i))
    def st_cvt():
        for q, i in P: a(f"v_cvt_pk_bf16_f32 v{xs(q,i)}, v{lo(q,i)}, v{hi(q,i)}")
    def st_op(op, f):
        for q, i in P:
            a(f"{op} v{lo(q,i)}, v{lo(q,i)}, v{f(q,2*i)}\n{op} v{hi(q,i)}, v{hi(q,i)}, v{f(q,2*i+1)}")
    st_unpack()
    gpoll(a, stl, [vST+4*q+j for q in range(4) for j in (1, 3)])
    stamp(a, 1)
    st_op("v_sub_f32", lambda q, j: vST+4*q); st_cvt()
    st_unpack()
    pl()
    st_op("v_mul_f32", lambda q, j: vST+4*q+2); st_cvt()
    st_unpack()
    stamp(a, 2)
    lp = a.label("pp"); ld = a.label("ppd")
    a(f"""{lp}:
s_waitcnt vmcnt(0)
v_min3_u32 v{vM}, v{vPt+1}, v{vPt+3}, v{vPt+5}
v_max3_u32 v{vM+1}, v{vPt+1}, v{vPt+3}, v{vPt+5}
v_min3_u32 v{vM}, v{vM}, v{vPt+7}, v{vPt+9}
v_max3_u32 v{vM+1}, v{vM+1}, v{vPt+7}, v{vPt+9}
v_min_u32 v{vM}, v{vM}, v{vPt+11}
v_max_u32 v{vM+1}, v{vM+1}, v{vPt+11}
v_cmp_ne_u32 vcc, s{S_TAG}, v{vM}
v_cmp_ne_u32 s[{T+14}:{T+15}], s{S_TAG}, v{vM+1}
s_or_b64 vcc, vcc, s[{T+14}:{T+15}]
s_cbranch_vccz {ld}
s_sub_u32 s{S_TO}, s{S_TO}, 1
s_cmp_eq_u32 s{S_TO}, 0
s_cbranch_scc1 {ld}""")
    pl()
    a(f"""s_branch {lp}
{ld}:
s_max_u32 s{S_TO}, s{S_TO}, 1
v_add_f32 v{vPt}, v{vPt}, v{vPt+4}
v_add_f32 v{vPt+2}, v{vPt+2}, v{vPt+6}
v_fmac_f32 v{vPt}, v{vA0}, v{vPt+8}
v_fmac_f32 v{vPt+2}, v{vA0}, v{vPt+10}
s_nop 1
v_permlane32_swap_b32 v{vPt}, v{vPt+2}
s_nop 0
v_add_f32 v{vPt}, v{vPt}, v{vPt+2}
v_mov_b32 v{vPt+2}, v{vPt}
s_nop 1
v_permlane16_swap_b32 v{vPt}, v{vPt+2}
s_nop 0
v_add_f32 v{vPt}, v{vPt}, v{vPt+2}
s_nop 1
v_add_f32_dpp v{vPt}, v{vPt}, v{vPt} row_ror:8 row_mask:0xf bank_mask:0xf""")
    round_bf16(a, vPt)
    a(f"v_add_f32 v{vPt}, v{vPt}, v{vA1}")
    round_bf16(a, vPt)
    a("s_nop 0")
    for u in (4, 5, 6, 7, 0, 1, 2, 3):
        a(f"v_readlane_b32 s{SM[2*u]}, v{vPt}, {u}\nv_readlane_b32 s{SM[2*u+1]}, v{vPt}, {32+u}")
    stamp(a, 3)
    for q, i in P:
        a(f"v_mul_f32 v{lo(q,i)}, s{SM[8+2*i]}, v{lo(q,i)}\nv_mul_f32 v{hi(q,i)}, s{SM[8+2*i+1]}, v{hi(q,i)}")
    st_cvt(); st_unpack()
    for q in range(4):
        for i in range(4):
            a(f"v_add_f32 v{lo(q,i)}, s{SM[2*i]}, v{lo(q,i)}\nv_add_f32 v{hi(q,i)}, s{SM[2*i+1]}, v{hi(q,i)}")
        for i in range(4):
            a(f"v_cvt_pk_bf16_f32 v{xs(q,i)}, v{lo(q,i)}, v{hi(q,i)}")
        a(f"buffer_store_dwordx4 {vr(vX+4*q,4)}, v{vCs}, {WS}, s{sOff} offen sc1")
        if q < 3:
            a(f"s_add_u32 s{sOff}, s{sOff}, {2*72*1024}")
    stamp(a, 4)
    a(f"""s_mul_i32 s{sOff}, s{sB}, 18
s_add_u32 s{sOff}, s{sOff}, s{sCs}
s_lshl_b32 s{sOff}, s{sOff}, 7
s_add_u32 s{sOff}, s{sOff}, {F_H}""")
    set_flag(a, f"s{sOff}")
    stamp(a, 5)
    if 'ob' in OPT:
        a("s_waitcnt vmcnt(0)\ns_barrier")
    a("L_o_pref:")
    srd(a, R_A, S_WMOD, SZ_WMOD)
    srd(a, R_C, S_C, SZ_C)
    a(f"""s_cmp_ge_u32 s{sO}, 18
s_cbranch_scc1 L_o_upd
s_mul_i32 s{sRow0}, s{S_W}, 144
v_min_u32 v{vT0}, 17, v{vTok}
v_lshlrev_b32 v{vT0}, 4, v{vT0}
v_mul_u32_u24 v{vT1}, 2304, v{vHF}
v_add_u32 v{vCs}, v{vT0}, v{vT1}
s_lshl_b32 s{sOff}, s{sRow0}, 1
buffer_load_dwordx4 {vr(vC,4)}, v{vCs}, {RC}, s{sOff} offen
s_lshl_b32 s{sColA}, s{sO}, 7
s_add_u32 s{sColA}, s{sColA}, 4608""")
    gemv_dma(a, sColA, vD)
    a(f"""s_lshl_b32 s{sOff}, s{sRow0}, 7
v_add_u32 v{vA0}, s{sOff}, v{vB0}
v_add_u32 v{vA1}, s{sOff}, v{vB1}
s_waitcnt vmcnt(18)""")
    for i in range(4):
        unpack(a, vM+2*i, vM+2*i+1, vC+i)
    silu8(a, vM, vM+8)
    for i in range(4):
        a(f"v_cvt_pk_bf16_f32 v{vC+i}, v{vM+2*i}, v{vM+2*i+1}")
    a(f"""s_lshl_b32 s{sOff}, s{sRow0}, 1
s_add_u32 s{sOff}, s{sOff}, {L_SIL}
v_add_u32 v{vCs}, s{sOff}, v{vCs}
ds_write_b128 v{vCs}, {vr(vC,4)}
v_and_b32 v{vT0}, 1, v0
v_mul_u32_u24 v{vT0}, 2304, v{vT0}
v_lshl_add_u32 v{vT0}, v{vHF}, 4, v{vT0}
v_add_u32 v{vSil}, s{sOff}, v{vT0}
s_waitcnt lgkmcnt(0)""")
    for s in range(9):
        wf = vWF + 8*(s & 1); sf = vSF + 4*(s & 1)
        a(f"s_waitcnt vmcnt({18-2*(s+1)})")
        a(f"ds_read_b128 {vr(sf,4)}, v{vSil} offset:{s*32}")
        trreads(a, wf, vA0, vA1, s*2048)
        a("s_waitcnt lgkmcnt(2)")
        mfma(a, vAcc, wf, sf, s == 0)
        a("s_waitcnt lgkmcnt(0)")
        mfma(a, vAcc+16, wf+4, sf, s == 0)
    a(f"""v_and_b32 v{vT0}, 1, v0
v_lshlrev_b32 v{vT0}, 8, v{vT0}
v_lshl_add_u32 v{vT0}, v{vHF}, 5, v{vT0}
s_lshl_b32 s{sOff}, s{S_W}, 9
s_add_u32 s{sOff}, s{sOff}, {L_RED}
v_add_u32 v{vT0}, s{sOff}, v{vT0}
s_mov_b32 exec_lo, 3
s_mov_b32 exec_hi, 3
s_nop 8""")
    for cb in range(2):
        for q, off in enumerate((0, 16, 64, 80)):
            a(f"ds_write_b128 v{vT0}, {vr(vAcc+16*cb+4*q,4)} offset:{cb*128+off}")
    a(f"""s_mov_b64 exec, -1
s_waitcnt lgkmcnt(0)
s_barrier
s_lshr_b32 s{sOff}, s{S_W}, 2
s_lshl_b32 s{sOff}, s{sOff}, 8
s_add_u32 s{sOff}, s{sOff}, {L_RED}
v_lshlrev_b32 v{vT0}, 2, v0
v_add_u32 v{vT1}, s{sOff}, v{vT0}""")
    for w in range(8):
        a(f"ds_read_b32 v{vAcc+w}, v{vT1} offset:{w*512}")
    a("s_waitcnt lgkmcnt(0)")
    for w in range(1, 8):
        a(f"v_add_f32 v{vAcc}, v{vAcc}, v{vAcc+w}")
    round_bf16(a, vAcc)
    lsk = a.label("gsk")
    a(f"""s_and_b32 s{sOff}, s{S_W}, 3
s_cmp_lg_u32 s{sOff}, 0
s_cbranch_scc1 {lsk}
s_lshr_b32 s{T+9}, s{S_W}, 2
s_mul_i32 s{sOff}, s{T+9}, 4608
s_lshl_b32 s{sColA}, s{sO}, 8
s_add_u32 s{sOff}, s{sOff}, s{sColA}
s_add_u32 s{sOff}, s{sOff}, {WS_GATE}
buffer_store_dword v{vAcc}, v{vT0}, {WS}, s{sOff} offen sc1
{lsk}:
s_lshl_b32 s{sOff}, s{sO}, 7
s_add_u32 s{sOff}, s{sOff}, {F_G}""")
    set_flag(a, f"s{sOff}")
    stamp(a, 7)
    lp = a.label("ep"); ld = a.label("epd")
    a(f"""L_o_upd:
s_add_u32 s{S_SLOT}, s{S_SLOT}, 25
s_cmp_ge_u32 s{S_SLOT}, 27
s_cbranch_scc1 L_c_notu
s_cmp_lg_u32 s2, 0
s_cbranch_scc1 L_fin
s_lshl_b32 s{sOff}, s{S_W}, 6
v_add_u32 v{vT0}, s{sOff}, v0
v_min_u32 v{vT0}, 215, v{vT0}
v_lshlrev_b32 v{vT0}, 7, v{vT0}
s_mov_b32 s{sOff}, {F_QKV}
{lp}:
s_sleep 16
buffer_load_dword v{vT1}, v{vT0}, {WS}, s{sOff} offen sc1
s_waitcnt vmcnt(0)
v_cmp_ne_u32 vcc, s{S_TAG}, v{vT1}
s_cbranch_vccz {ld}
s_sub_u32 s{S_TO}, s{S_TO}, 1
s_cmp_lg_u32 s{S_TO}, 0
s_cbranch_scc1 {lp}
{ld}:
s_mov_b32 s{sOff}, {EPOCH}""")
    set_flag(a, f"s{sOff}")
    a("s_branch L_fin")

def epilogue(a):
    if STAMP and 'probe' in OPT:
        i = int(OPT['probe']); lo, hi = [int(x) for x in OPT.get('prole', '0:256').split(':')]
        a(f"""s_waitcnt vmcnt(0) lgkmcnt(0)
s_cmp_lg_u32 s{S_W}, {OPT.get('stw', 0)}
s_cbranch_scc1 L_end
s_memrealtime s[{S_ST+30}:{S_ST+31}]
s_waitcnt lgkmcnt(0)
s_sub_u32 s{T}, s{S_ST+2*i}, s{S_ST}
s_cmp_eq_u32 s{S_ST+2*i}, 0
s_cselect_b32 s{T}, 0, s{T}
s_cmp_lt_u32 s2, {lo}
s_cselect_b32 s{T}, 0, s{T}
s_cmp_ge_u32 s2, {hi}
s_cselect_b32 s{T}, 0, s{T}
s_lshl_b32 s{T}, s{T}, 2
s_add_u32 s{T}, s{T}, 5000
L_spin:
s_memrealtime s[{T+2}:{T+3}]
s_waitcnt lgkmcnt(0)
s_sub_u32 s{T+2}, s{T+2}, s{S_ST}
s_cmp_lt_u32 s{T+2}, s{T}
s_cbranch_scc1 L_spin""")
    elif STAMP:
        a(f"""s_waitcnt vmcnt(0) lgkmcnt(0)
s_cmp_lg_u32 s{S_W}, {OPT.get('stw', 0)}
s_cbranch_scc1 L_end
{CLK} s[{S_ST+30}:{S_ST+31}]
s_memtime s[98:99]
s_waitcnt lgkmcnt(0)
s_sub_u32 s98, s98, s96""")
        for i in range(16):
            a(f"v_mov_b32 v{16+i}, s{S_ST+2*i}")
        a(f"""v_mov_b32 v32, s98
s_lshl_b32 s{T}, s2, 7
s_add_u32 s{T}, s{T}, {WS_STAMP}
v_mov_b32 v1, 0
s_mov_b64 exec, 1""")
        for i in range(4):
            a(f"buffer_store_dwordx4 v[{16+4*i}:{19+4*i}], v1, {WS}, s{T} offen offset:{16*i}")
        a(f"buffer_store_dword v32, v1, {WS}, s{T} offen offset:64")
    a("L_end:\ns_endpgm")

def main():
    a = Asm()
    a.raw("; @launch grid=(256,1,1) block=(512,1,1) lds=163840")
    a.raw('.amdgcn_target "amdgcn-amd-amdhsa--gfx950"\n.text')
    prologue(a)
    phase_bc(a)
    phase_d(a)
    epilogue(a)
    a("L_owner:")
    phase_owner(a)
    a.raw(".p2align 4\nL_codeend:")
    out = a.text() + kd(NAME, 244, 102)
    path = [x for x in sys.argv[1:] if not x.startswith('--')][0]
    open(path, 'w').write(out)
main()
```

```python
import sys, struct
from asmlib import *

OPT = dict(la='12', nt='', cpf='1', umap='4', lfull='1', pack='1')
for a_ in sys.argv[1:]:
    if a_.startswith('--'):
        k, _, v = a_[2:].partition('=')
        OPT[k] = v
STAMP = 'stamp' in OPT
NT = OPT['nt']
CLK = "s_memtime" if 'cyc' in OPT else "s_memrealtime"

NAME = "standalone__dit_adaln_block__diffusion_kernel"
D = 1152
SZ_X = 512*D*2; SZ_C = 2*D*2; SZ_WQKV = D*3*D*2; SZ_WO = D*D*2; SZ_WMOD = D*6*D*2
SZ_WS = 1 << 28
F_STAT = 0x0
F_H = 0x2000
F_L = 0x4000
F_U = F_L + 64*128
F_G = F_U + 144*128
F_QKV = 0xC000
EPOCH = 0x13000
WS_GATE = 0x14000
WS_H = 0x20000
WS_QKV = 0x140000
WS_L = 0x680000
WS_U = 0x550000
WS_PART = 0x4A0000
WS_STAMP = 0x700000
LOG2E = 0x3fb8aa3b

S_W, S_TAG, S_G, S_SLOT, S_TO, S_TK = 3, 4, 5, 6, 7, 8
S_X, S_C, S_WQKV, S_WO, S_WMOD, S_OUT, S_DBG, S_WS = 16, 18, 20, 22, 24, 26, 28, 30
R_A, R_B, R_C, R_WS = 32, 36, 40, 44
T = 48
S_ST = 64
WS = f"s[{R_WS}:{R_WS+3}]"
RA = f"s[{R_A}:{R_A+3}]"; RB = f"s[{R_B}:{R_B+3}]"; RC = f"s[{R_C}:{R_C+3}]"
vL16, vP16, vB0, vB1, vCH, vR8, vHF, vTok = 1, 2, 3, 4, 5, 6, 7, 8
vT0, vT1, vT2, vT3 = 9, 10, 11, 12
vTAG = 13
V0 = 16

L_MISC = 147456
L_SIL = L_MISC
L_RED = L_SIL + 4608
L_FIN = L_RED + 4096
L_ROLE = L_FIN + 4096
L_STC = L_ROLE + 16
NO = 5

def srd(a, r, ptr, size):
    a(f"""s_mov_b32 s{r}, s{ptr}
s_and_b32 s{r+1}, s{ptr+1}, 0xffff
s_mov_b32 s{r+2}, {hex(size)}
s_mov_b32 s{r+3}, 0x20000""")

def stamp(a, i):
    if STAMP:
        a(f"{CLK} s[{S_ST+2*i}:{S_ST+2*i+1}]")

def unpack(a, lo, hi, src):
    a(f"v_lshlrev_b32 v{lo}, 16, v{src}\nv_and_b32 v{hi}, 0xffff0000, v{src}")

def round_bf16(a, v):
    a(f"v_cvt_pk_bf16_f32 v{v}, v{v}, v{v}\nv_lshlrev_b32 v{v}, 16, v{v}")

HACK = [0]
def mfma(a, acc, A, B, first=False):
    if 'hack16' in OPT and not first:
        HACK[0] += 1
        o = 8*((HACK[0] >> 1) & 1)
        for j in range(2):
            a(f"v_mfma_f32_16x16x32_bf16 {vr(acc+o+4*j,4)}, {vr(A,4)}, {vr(B,4)}, {vr(acc+o+4*j,4)}")
        return
    c = "0" if first else vr(acc, 16)
    a(f"v_mfma_f32_32x32x16_bf16 {vr(acc,16)}, {vr(A,4)}, {vr(B,4)}, {c}")

def wrap_add(a, s, step, s_end, s_start):
    a(f"""s_add_u32 s{s}, s{s}, {step}
s_cmp_eq_u32 s{s}, s{s_end}
s_cselect_b32 s{s}, s{s_start}, s{s}""")

def mod9(a, dst, src, tmp):
    a(f"""s_mul_i32 s{tmp}, s{src}, 57
s_lshr_b32 s{tmp}, s{tmp}, 9
s_mul_i32 s{tmp}, s{tmp}, 9
s_sub_u32 s{dst}, s{src}, s{tmp}""")

def poll(a, vaddr, soff, vtmp):
    l = a.label("poll"); d = a.label("polld")
    a(f"""s_cmp_lg_u32 s{S_W}, 0
s_cbranch_scc1 {d}
{l}:
buffer_load_dword v{vtmp}, v{vaddr}, {WS}, {soff} offen sc1
s_waitcnt vmcnt(0)
v_cmp_ne_u32 vcc, s{S_TAG}, v{vtmp}
s_cbranch_vccz {d}
s_sleep {OPT.get('sleep', 2)}
s_sub_u32 s{S_TO}, s{S_TO}, 1
s_cmp_lg_u32 s{S_TO}, 0
s_cbranch_scc1 {l}
s_mov_b32 s{S_TO}, 1
{d}:
s_barrier""")

def gpoll(a, loads, tagregs):
    l = a.label("gp"); d = a.label("gpd")
    a(f"{l}:")
    loads()
    a(f"s_waitcnt vmcnt(0)\nv_cmp_ne_u32 vcc, s{S_TAG}, v{tagregs[0]}")
    for r in tagregs[1:]:
        a(f"v_cmp_ne_u32 s[{T+14}:{T+15}], s{S_TAG}, v{r}\ns_or_b64 vcc, vcc, s[{T+14}:{T+15}]")
    a(f"""s_cbranch_vccz {d}
s_sleep {OPT.get('gsleep', 2)}
s_sub_u32 s{S_TO}, s{S_TO}, 1
s_cmp_lg_u32 s{S_TO}, 0
s_cbranch_scc1 {l}
s_mov_b32 s{S_TO}, 1
{d}:""")

def raw_flag(a, soff):
    a(f"""v_mov_b32 v{vT3}, 0
s_mov_b64 exec, 1
buffer_store_dword v{vTAG}, v{vT3}, {WS}, {soff} offen sc1
s_mov_b64 exec, -1""")

def set_flag(a, soff, younger=0):
    d = a.label("fl")
    a(f"""s_waitcnt vmcnt({younger})
s_barrier
s_cmp_lg_u32 s{S_W}, 0
s_cbranch_scc1 {d}""")
    raw_flag(a, soff)
    a(f"{d}:")

def trreads(a, wf, b0, b1, off):
    a(f"""ds_read_b64_tr_b16 {vr(wf,2)}, v{b0} offset:{off}
ds_read_b64_tr_b16 {vr(wf+2,2)}, v{b0} offset:{off+512}
ds_read_b64_tr_b16 {vr(wf+4,2)}, v{b1} offset:{off}
ds_read_b64_tr_b16 {vr(wf+6,2)}, v{b1} offset:{off+512}""")

def dma_tile(a, srdname, vD, pitch, s_rot, flags, n0=0, n1=18):
    sN, sO = T+10, T+11
    if s_rot is None:
        a(f"s_add_u32 s{sN}, s{S_W}, {8*n0}")
    else:
        a(f"s_lshl_b32 s{sN}, s{s_rot}, 3\ns_add_u32 s{sN}, s{sN}, s{S_W}")
    for n in range(n0, n1):
        a(f"""s_lshl_b32 m0, s{sN}, 10
s_mul_i32 s{sO}, s{sN}, {8*pitch}
buffer_load_dwordx4 v{vD}, {srdname}, s{sO} offen {flags} lds""")
        if n < n1-1:
            a(f"s_add_u32 s{sN}, s{sN}, 8")
            if s_rot is not None:
                a(f"""s_sub_u32 s{sO}, s{sN}, 144
s_cmp_ge_u32 s{sN}, 144
s_cselect_b32 s{sN}, s{sO}, s{sN}""")

def wave_sum(a, v, sdst):
    for m in ("quad_perm:[1,0,3,2]", "quad_perm:[2,3,0,1]", "row_half_mirror", "row_mirror"):
        a(f"s_nop 1\nv_add_f32_dpp v{v}, v{v}, v{v} {m} row_mask:0xf bank_mask:0xf")
    a(f"s_nop 1\nv_add_f32_dpp v{v}, v{v}, v{v} row_bcast:15 row_mask:0xa bank_mask:0xf")
    a(f"s_nop 1\nv_add_f32_dpp v{v}, v{v}, v{v} row_bcast:31 row_mask:0xc bank_mask:0xf")
    a(f"s_nop 1\nv_readlane_b32 s{sdst}, v{v}, 63\ns_nop 1")

def silu8(a, f, t):
    for i in range(8):
        a(f"v_mul_f32 v{t+i}, 0xbfb8aa3b, v{f+i}")
    for i in range(8):
        a(f"v_exp_f32 v{t+i}, v{t+i}")
    for i in range(8):
        a(f"v_add_f32 v{t+i}, 1.0, v{t+i}")
    for i in range(8):
        a(f"v_rcp_f32 v{t+i}, v{t+i}")
    for i in range(8):
        a(f"v_mul_f32 v{f+i}, v{f+i}, v{t+i}")

def lane_consts(a):
    a(f"""v_lshrrev_b32 v{vR8}, 3, v0
v_and_b32 v{vP16}, 0x33, v0
v_and_b32 v{vT0}, 4, v0
v_lshl_or_b32 v{vP16}, v{vT0}, 1, v{vP16}
v_and_b32 v{vT0}, 8, v0
v_lshrrev_b32 v{vT0}, 1, v{vT0}
v_or_b32 v{vP16}, v{vP16}, v{vT0}
v_lshlrev_b32 v{vP16}, 4, v{vP16}
v_lshrrev_b32 v{vT0}, 2, v0
v_and_b32 v{vT0}, 4, v{vT0}
v_and_b32 v{vCH}, 7, v0
v_xor_b32 v{vCH}, v{vCH}, v{vT0}
v_lshlrev_b32 v{vB0}, 10, v{vHF}
v_and_b32 v{vT0}, 12, v0
v_lshl_or_b32 v{vB0}, v{vT0}, 5, v{vB0}
v_and_b32 v{vT0}, 8, v0
v_lshl_or_b32 v{vB0}, v{vT0}, 3, v{vB0}
v_and_b32 v{vT0}, 16, v0
v_lshl_or_b32 v{vB0}, v{vT0}, 1, v{vB0}
v_and_b32 v{vT0}, 1, v0
v_lshl_or_b32 v{vB0}, v{vT0}, 4, v{vB0}
v_and_b32 v{vT0}, 2, v0
v_lshl_or_b32 v{vB0}, v{vT0}, 2, v{vB0}
v_xor_b32 v{vB1}, 64, v{vB0}""")

def get_tag(a):
    a(f"""s_waitcnt lgkmcnt(0)
s_mul_i32 s{S_TAG}, s{S_TAG}, 1664525
s_add_u32 s{S_TAG}, s{S_TAG}, 1013904223
v_mov_b32 v{vTAG}, s{S_TAG}""")

def wpoll(a, vaddr, soff, vtmp):
    gpoll(a, lambda: a(f"buffer_load_dword v{vtmp}, v{vaddr}, {WS}, {soff} offen sc1"), [vtmp])

S_BCT, S_BRT = 11, 12
vDW = 15
R0, R1 = [int(x) for x in OPT.get('wrot', '36,28').split(',')]
assert R0 + 3*R1 + 7 < 144
def b_setup(a):
    srd(a, R_B, S_WQKV, SZ_WQKV)
    a(f"""s_mul_i32 s{S_BCT}, s{S_G}, 27
s_add_u32 s{S_BCT}, s{S_BCT}, s{S_SLOT}
s_sub_u32 s{S_BCT}, s{S_BCT}, {NO}
s_and_b32 s{S_BRT}, s{S_BCT}, 3
s_lshr_b32 s{S_BCT}, s{S_BCT}, 2
s_mul_i32 s13, s{S_BRT}, {R1}
s_add_u32 s{T+14}, s13, {R0}
s_cmp_lg_u32 s{S_BRT}, 0
s_cselect_b32 s13, s{T+14}, s13
s_add_u32 s13, s13, s{S_W}
v_lshlrev_b32 v{vDW}, 4, v{vCH}
v_mul_u32_u24 v{vT0}, 6912, v{vR8}
s_lshl_b32 s{T+14}, s{S_BCT}, 7
v_add3_u32 v{vDW}, v{vDW}, v{vT0}, s{T+14}""")

THR = f"s_waitcnt vmcnt({OPT['thr']})" if 'thr' in OPT else ''
THRO = f"s_waitcnt vmcnt({OPT['thro']})" if 'thro' in OPT else ''
def w_dma(a, n):
    for i in range(n):
        a(f"""s_lshl_b32 m0, s13, 10
s_mul_i32 s{T+14}, s13, {8*6912}
buffer_load_dwordx4 v{vDW}, {RB}, s{T+14} offen lds
{THR}
s_add_u32 s13, s13, 8
s_sub_u32 s{T+14}, s13, 144
s_cmp_ge_u32 s13, 144
s_cselect_b32 s13, s{T+14}, s13""")

EW = int(OPT.get('ew', 0))
def prologue(a):
    a.raw(f".globl {NAME}\n.p2align 8\n.type {NAME},@function\n{NAME}:")
    a(f"""s_cmp_ge_u32 s2, 256
s_cbranch_scc1 L_end
s_load_dwordx16 s[16:31], s[0:1], 0""")
    if STAMP:
        a(f"{CLK} s[{S_ST}:{S_ST+1}]\ns_memtime s[96:97]")
        for i in range(1, 16):
            a(f"s_mov_b32 s{S_ST+2*i}, 0")
    a(f"""v_lshrrev_b32 v1, 6, v0
v_and_b32 v0, 63, v0
s_and_b32 s{S_G}, s2, 7
v_readfirstlane_b32 s{S_W}, v1
s_lshr_b32 s{S_SLOT}, s2, 3
s_mov_b32 s{S_TO}, 0x40000
v_lshlrev_b32 v{vL16}, 4, v0
v_lshrrev_b32 v{vHF}, 5, v0
v_and_b32 v{vTok}, 31, v0
s_mov_b32 s{S_TK}, s2""")
    if OPT.get('lead', '1') == '1':
        a(f"""s_mul_i32 s{T}, s{S_G}, 27
s_add_u32 s{T}, s{T}, s{S_SLOT}
s_sub_u32 s{T}, s{T}, {NO}
s_lshr_b32 s{T+1}, s{T}, 2
s_sub_u32 s{T+2}, s{T}, s{T+1}
s_add_u32 s{T+2}, s{T+2}, 93
s_add_u32 s{T+1}, s{T+1}, 40
s_and_b32 s{T}, s{T}, 3
s_cselect_b32 s{T+1}, s{T+2}, s{T+1}
s_cmp_ge_u32 s2, 40
s_cselect_b32 s{S_TK}, s{T+1}, s2""")
    a(f"""s_cmp_lt_u32 s{S_TK}, 64
s_cbranch_scc1 L_s0_stats
s_cmp_lt_u32 s{S_TK}, 94
s_cbranch_scc1 L_s0_none""")
    sP, sCg, sKs, sOff, sRow = T, T+1, T+2, T+3, T+4
    vW = 16
    vC = 32
    vSc = 36
    vTm = 44
    vAc = 52
    a(f"""s_sub_u32 s{sP}, s{S_TK}, 94
s_mul_i32 s{sKs}, s{sP}, 57
s_lshr_b32 s{sKs}, s{sKs}, 9
s_mul_i32 s{sCg}, s{sKs}, 9
s_sub_u32 s{sCg}, s{sP}, s{sCg}
s_lshl_b32 s{sRow}, s{sKs}, 3
s_add_u32 s{sRow}, s{sRow}, s{S_W}
s_lshl_b32 s{sRow}, s{sRow}, 3
v_and_b32 v{vT0}, 15, v0
v_lshlrev_b32 v{vT0}, 4, v{vT0}
v_bfe_u32 v{vT1}, v0, 4, 1
v_mul_u32_u24 v{vT1}, 2304, v{vT1}
v_mul_u32_u24 v{vT2}, {4*13824}, v{vHF}
v_add3_u32 v{vT0}, v{vT0}, v{vT1}, v{vT2}
v_lshlrev_b32 v{vT1}, 3, v{vHF}
s_lshl_b32 s{T+5}, s{sRow}, 1
s_mul_i32 s{sOff}, s{sRow}, 13824
s_lshl_b32 s{sRow}, s{sCg}, 8
s_add_u32 s{sOff}, s{sOff}, s{sRow}
s_waitcnt lgkmcnt(0)""")
    srd(a, R_A, S_WMOD, SZ_WMOD)
    srd(a, R_C, S_C, SZ_C)
    a(f"""buffer_load_dwordx2 {vr(vC,2)}, v{vT1}, {RC}, s{T+5} offen
buffer_load_dwordx2 {vr(vC+2,2)}, v{vT1}, {RC}, s{T+5} offen offset:2304""")
    for n in range(4):
        a(f"buffer_load_dwordx4 {vr(vW+4*n,4)}, v{vT0}, {RA}, s{sOff} offen")
        if n < 3:
            a(f"s_add_u32 s{sOff}, s{sOff}, 13824")
    a(f"s_load_dword s{S_TAG}, s[{S_WS}:{S_WS+1}], {EPOCH}")
    srd(a, R_WS, S_WS, SZ_WS)
    lane_consts(a)
    b_setup(a)
    if EW:
        a("s_barrier")
        w_dma(a, EW)
    a(f"s_waitcnt vmcnt({4+EW})")
    for i in range(4):
        unpack(a, vSc+2*i, vSc+2*i+1, vC+i)
    silu8(a, vSc, vTm)
    for i in range(4):
        a(f"v_cvt_pk_bf16_f32 v{vC+i}, v{vSc+2*i}, v{vSc+2*i+1}")
    for i in range(4):
        unpack(a, vSc+2*i, vSc+2*i+1, vC+i)
    a(f"""s_lshl_b32 s{sOff}, s{S_W}, 11
s_add_u32 s{sOff}, s{sOff}, {L_MISC}
v_lshlrev_b32 v{vT2}, 5, v0
v_add_u32 v{vT2}, s{sOff}, v{vT2}
s_lshr_b32 s{sOff}, s{S_W}, 1
s_lshl_b32 s{sOff}, s{sOff}, 10
s_and_b32 s{sRow}, s{S_W}, 1
s_lshl_b32 s{sP}, s{sRow}, 8
s_add_u32 s{sOff}, s{sOff}, s{sP}
s_add_u32 s{sOff}, s{sOff}, {L_MISC}
v_lshlrev_b32 v{vT3}, 3, v{vTok}
v_lshl_add_u32 v{vT3}, v{vHF}, 9, v{vT3}
v_add_u32 v{vT3}, s{sOff}, v{vT3}
s_lshl_b32 s{sP}, s{sCg}, 1
s_add_u32 s{sP}, s{sP}, s{sRow}
s_lshl_b32 s{sP}, s{sP}, 1
s_lshr_b32 s{sOff}, s{S_W}, 1
s_add_u32 s{sP}, s{sP}, s{sOff}
s_mul_i32 s{sP}, s{sP}, 18
s_add_u32 s{sP}, s{sP}, s{sKs}
s_lshl_b32 s{sP}, s{sP}, 10
s_add_u32 s{sP}, s{sP}, {WS_PART}
v_and_b32 v{vT0}, 28, v0
v_lshlrev_b32 v{vT0}, 5, v{vT0}
v_lshl_add_u32 v{vT0}, v{vHF}, 6, v{vT0}
v_and_b32 v{vT1}, 3, v0
v_lshl_add_u32 v{vT0}, v{vT1}, 4, v{vT0}""")
    get_tag(a)
    for n in range(4):
        a(f"s_waitcnt vmcnt({3-n+EW})")
        if n == 3: stamp(a, 8)
        for i in range(4):
            unpack(a, vTm+2*i, vTm+2*i+1, vW+4*n+i)
        for b in range(2):
            for j in range(8):
                op = "v_mul_f32" if n == 0 else "v_fmac_f32"
                a(f"{op} v{vAc+8*b+j}, v{vTm+j}, v{vSc+4*b+n}")
    a("s_nop 1")
    for j in range(8):
        a(f"v_permlane32_swap_b32 v{vAc+j}, v{vAc+8+j}")
    for j in range(8):
        a(f"v_add_f32 v{vAc+j}, v{vAc+j}, v{vAc+8+j}")
    lsk = a.label("pubsk")
    a(f"""ds_write_b128 v{vT2}, {vr(vAc,4)}
ds_write_b128 v{vT2}, {vr(vAc+4,4)} offset:16
s_waitcnt lgkmcnt(0)
s_barrier
s_cmp_ge_u32 s{S_W}, 4
s_cbranch_scc1 {lsk}""")
    for w in range(8):
        a(f"ds_read_b64 {vr(vW+2*w,2)}, v{vT3} offset:{w*2048}")
    a(f"""v_mov_b32 v{vAc+1}, v{vTAG}
v_mov_b32 v{vAc+3}, v{vTAG}
s_waitcnt lgkmcnt(4)
v_add_f32 v{vW}, v{vW}, v{vW+2}
v_add_f32 v{vW+1}, v{vW+1}, v{vW+3}
v_add_f32 v{vW+4}, v{vW+4}, v{vW+6}
v_add_f32 v{vW+5}, v{vW+5}, v{vW+7}
s_waitcnt lgkmcnt(0)
v_add_f32 v{vW+8}, v{vW+8}, v{vW+10}
v_add_f32 v{vW+9}, v{vW+9}, v{vW+11}
v_add_f32 v{vW+12}, v{vW+12}, v{vW+14}
v_add_f32 v{vW+13}, v{vW+13}, v{vW+15}
v_add_f32 v{vW}, v{vW}, v{vW+4}
v_add_f32 v{vW+1}, v{vW+1}, v{vW+5}
v_add_f32 v{vW+8}, v{vW+8}, v{vW+12}
v_add_f32 v{vW+9}, v{vW+9}, v{vW+13}
v_add_f32 v{vAc}, v{vW}, v{vW+8}
v_add_f32 v{vAc+2}, v{vW+1}, v{vW+9}
buffer_store_dwordx4 {vr(vAc,4)}, v{vT0}, {WS}, s{sP} offen sc1
{lsk}:""")
    stamp(a, 9)
    if OPT.get('pack') == '1':
        a("s_waitcnt vmcnt(0)")
    if 'nopb' not in OPT:
        a("s_barrier")
    w_dma(a, 18-EW)
    a("s_branch L_b")
    a("L_s0_stats:")
    vRW = 16
    a(f"""s_lshl_b32 s{sOff}, s{S_TK}, 3
s_add_u32 s{sOff}, s{sOff}, s{S_W}
s_mul_i32 s{sOff}, s{sOff}, 2304
v_mov_b32 v{vRW+8}, 0
v_mov_b32 v{vRW+9}, 0
v_mov_b32 v{vRW+10}, 0
v_mov_b32 v{vRW+11}, 0
s_waitcnt lgkmcnt(0)""")
    srd(a, R_C, S_X, SZ_X)
    a(f"""buffer_load_dwordx4 {vr(vRW,4)}, v{vL16}, {RC}, s{sOff} offen
buffer_load_dwordx4 {vr(vRW+4,4)}, v{vL16}, {RC}, s{sOff} offen offset:1024
s_mov_b64 exec, 0xffff
buffer_load_dwordx4 {vr(vRW+8,4)}, v{vL16}, {RC}, s{sOff} offen offset:2048
s_mov_b64 exec, -1
s_load_dword s{S_TAG}, s[{S_WS}:{S_WS+1}], {EPOCH}""")
    srd(a, R_WS, S_WS, SZ_WS)
    lane_consts(a)
    a(f"""s_barrier
s_min_u32 s{T+12}, s2, 35
s_and_b32 s{T+13}, s{T+12}, 1
s_lshr_b32 s{T+12}, s{T+12}, 1
s_lshl_b32 s{T+13}, s{T+13}, 3
s_add_u32 s{T+13}, s{T+13}, s{S_W}
v_mul_u32_u24 v{vT0}, 2304, v{vR8}
v_and_b32 v{vT1}, 7, v0
v_xor_b32 v{vT1}, v{vT1}, v{vR8}
v_lshl_add_u32 v{vT0}, v{vT1}, 4, v{vT0}
s_mul_i32 s{T+13}, s{T+13}, {32*2304}
s_lshl_b32 s{T+12}, s{T+12}, 7
s_add_u32 s{T+13}, s{T+13}, s{T+12}
s_lshl_b32 m0, s{S_W}, 12""")
    lnx = a.label("nox"); ljx = a.label("jx")
    a(f"s_cmp_ge_u32 s2, 36\ns_cbranch_scc1 {lnx}")
    for q in range(4):
        a(f"buffer_load_dwordx4 v{vT0}, {RC}, s{T+13} offen lds")
        if q < 3:
            a(f"s_add_u32 s{T+13}, s{T+13}, {8*2304}\ns_add_u32 m0, m0, 1024\ns_nop 0")
    get_tag(a)
    a(f"s_waitcnt vmcnt(4)\ns_branch {ljx}\n{lnx}:")
    get_tag(a)
    a(f"s_waitcnt vmcnt(0)\n{ljx}:")
    stamp(a, 8)
    s1, s2_, q1, q2 = 32, 33, 34, 35
    a(f"s_mov_b32 s{T+12}, 0x3f803f80")
    for i in range(0, 12, 2):
        c = lambda r: "0" if i == 0 else f"v{r}"
        a(f"""v_dot2_f32_bf16 v{s1}, v{vRW+i}, s{T+12}, {c(s1)}
v_dot2_f32_bf16 v{q1}, v{vRW+i}, v{vRW+i}, {c(q1)}
v_dot2_f32_bf16 v{s2_}, v{vRW+i+1}, s{T+12}, {c(s2_)}
v_dot2_f32_bf16 v{q2}, v{vRW+i+1}, v{vRW+i+1}, {c(q2)}""")
    a(f"""s_nop 2
v_add_f32 v{s1}, v{s1}, v{s2_}
v_add_f32 v{q1}, v{q1}, v{q2}""")
    for m in ("quad_perm:[1,0,3,2] row_mask:0xf", "quad_perm:[2,3,0,1] row_mask:0xf", "row_half_mirror row_mask:0xf", "row_mirror row_mask:0xf", "row_bcast:15 row_mask:0xa", "row_bcast:31 row_mask:0xc"):
        a(f"s_nop 0\nv_add_f32_dpp v{s1}, v{s1}, v{s1} {m} bank_mask:0xf\nv_add_f32_dpp v{q1}, v{q1}, v{q1} {m} bank_mask:0xf")
    g = 36
    a(f"""v_mul_f32 v{g}, 0x3a638e39, v{s1}
v_mul_f32 v{g+2}, 0x3a638e39, v{q1}
v_fma_f32 v{g+2}, -v{g}, v{g}, v{g+2}
v_max_f32 v{g+2}, 0, v{g+2}""")
    round_bf16(a, g+2)
    a(f"v_add_f32 v{g+2}, 0x3727c5ac, v{g+2}")
    round_bf16(a, g+2)
    a(f"v_sqrt_f32 v{g+2}, v{g+2}")
    round_bf16(a, g)
    round_bf16(a, g+2)
    lsk = a.label("stsk")
    a(f"""v_rcp_f32 v{g+2}, v{g+2}
v_mov_b32 v{g+1}, v{vTAG}
v_mov_b32 v{g+3}, v{vTAG}
s_lshl_b32 s{T+12}, s{S_W}, 4
s_add_u32 s{T+12}, s{T+12}, {L_STC}
v_mov_b32 v{vT0}, s{T+12}
s_mov_b32 exec_lo, 0
s_brev_b32 exec_hi, 1
ds_write_b128 v{vT0}, {vr(g,4)}
s_mov_b64 exec, -1
s_lshl_b32 s{T+12}, s{S_TK}, 7
s_add_u32 s{T+12}, s{T+12}, {F_STAT}
v_add_u32 v{vT0}, {L_STC}, v{vL16}
s_waitcnt lgkmcnt(0)
s_barrier
s_cmp_lg_u32 s{S_W}, 0
s_cbranch_scc1 {lsk}
s_mov_b64 exec, 0xff
ds_read_b128 {vr(g,4)}, v{vT0}
s_waitcnt lgkmcnt(0)
buffer_store_dwordx4 {vr(g,4)}, v{vL16}, {WS}, s{T+12} offen sc1
s_mov_b64 exec, -1
{lsk}:""")
    stamp(a, 9)
    a(f"s_cmp_lt_u32 s{S_SLOT}, {NO}\ns_cbranch_scc1 L_owner")
    if 'nopb' not in OPT:
        a("s_barrier")
    a("s_branch L_s0_w")
    a("L_s0_none:")
    if 'cpf' in OPT:
        a(f"""s_getpc_b64 s[{T}:{T+1}]
L_pc:
s_sub_u32 s{T}, s{T}, L_pc-{NAME}
s_subb_u32 s{T+1}, s{T+1}, 0
s_lshl_b32 s{T+2}, s{S_W}, 10
v_add_u32 v{vT0}, s{T+2}, v{vL16}""")
        for n in range(3):
            a(f"global_load_dwordx4 v[{100+4*n}:{103+4*n}], v{vT0}, s[{T}:{T+1}]\nv_add_u32 v{vT0}, 0x2000, v{vT0}\nv_min_u32 v{vT0}, L_codeend-{NAME}-16, v{vT0}")
    a(f"s_waitcnt lgkmcnt(0)\ns_load_dword s{S_TAG}, s[{S_WS}:{S_WS+1}], {EPOCH}")
    srd(a, R_WS, S_WS, SZ_WS)
    lane_consts(a)
    get_tag(a)
    if 'cw' in OPT:
        a("s_waitcnt vmcnt(0)")
    a("L_s0_w:")
    b_setup(a)
    w_dma(a, 18)

VOX = 96

S_UCT, S_UTB = 9, 10
vDU = 14
KE = int(OPT.get('ke', 12))
def wo_dma(a, n0, n1):
    a(f"s_add_u32 s{T+10}, s{S_W}, {4*n0-4}")
    for n in range(n0, n1):
        a(f"""s_lshl_b32 m0, s{T+10}, 10
s_mul_i32 s{T+11}, s{T+10}, {8*2304}
buffer_load_dwordx4 v{vDU}, {RB}, s{T+11} offen lds""")
        if n < n1-1:
            a(f"s_add_u32 s{T+10}, s{T+10}, 4")

def gemm_loop(a, nsteps, LA, RING, vAcc, vWF, vH, vA0, vA1, vaddr, sH, lds_first, w_is_a, pre=None, rot=None, bar_at=None):
    WA = 2
    state = dict(issued=0)
    if rot:
        sR, sHs, sHe, sLo, sZ, sLe, vC0, vC1 = rot
        a(f"""s_mov_b32 s{sHs}, s{sH}
s_add_u32 s{sHe}, s{sH}, {nsteps*1024}
s_lshl_b32 s{sLo}, s{sR}, 12
s_add_u32 s{sH}, s{sH}, s{sLo}
s_lshl_b32 s{sLo}, s{sR}, 13
s_mov_b32 s{sZ}, 0
s_mov_b32 s{sLe}, {nsteps*2048}""")
    def hload():
        s = state['issued']
        a(f"buffer_load_dwordx4 {vr(vH+4*(s % RING),4)}, v{vaddr}, {WS}, s{sH} offen offset:{(s&3)*1024} sc1")
        if (s & 3) == 3 and s < nsteps-1:
            if rot: wrap_add(a, sH, 4096, sHe, sHs)
            else: a(f"s_add_u32 s{sH}, s{sH}, 4096")
        state['issued'] += 1
    def wread(s):
        if rot:
            if (s & 3) == 0:
                a(f"v_add_u32 v{vC0}, s{sLo}, v{vA0}\nv_add_u32 v{vC1}, s{sLo}, v{vA1}")
                wrap_add(a, sLo, 8192, sLe, sZ)
            trreads(a, vWF + 8*(s & 3), vC0, vC1, (s & 3)*2048)
            return
        if s and (s & 31) == 0:
            a(f"v_add_u32 v{vA0}, 0x10000, v{vA0}\nv_add_u32 v{vA1}, 0x10000, v{vA1}")
        trreads(a, vWF + 8*(s & 3), vA0, vA1, (s & 31)*2048)
    if lds_first:
        for s in range(WA): wread(s)
    for s in range(LA): hload()
    if pre: pre()
    if not lds_first:
        for s in range(WA): wread(s)
    for s in range(nsteps):
        lg = 4*min(WA-1, nsteps-1 - s)
        a(f"s_waitcnt vmcnt({state['issued'] - s - 1}) lgkmcnt({lg})")
        if s == 0 and lds_first: stamp(a, 4)
        h = vH+4*(s % RING); w0 = vWF+8*(s & 3)
        mfma(a, vAcc, *((w0, h) if w_is_a else (h, w0)), s == 0)
        if s + WA < nsteps:
            wread(s + WA)
        mfma(a, vAcc+16, *((w0+4, h) if w_is_a else (h, w0+4)), s == 0)
        if state['issued'] < nsteps:
            hload()
        if bar_at is not None and s == bar_at:
            a("s_barrier")

SZ = int(OPT['sz']) if 'sz' in OPT else None
UM = int(OPT.get('umap', 2)); UML = UM.bit_length()-1
def phase_bc(a):
    sTb, sOff, sH, sF = T+1, T+4, T+5, T+6
    vA0, vA1 = V0+1, V0+2
    vAcc = 20
    vWF = 52
    vH = 84
    a("L_b:")
    stamp(a, 1)
    srd(a, R_B, S_WO, SZ_WO)
    a(f"""s_sub_u32 s{S_SLOT}, s{S_SLOT}, {NO}
s_and_b32 s{T+14}, s{S_G}, {UM-1}
s_mul_i32 s{T+14}, s{T+14}, 18
s_add_u32 s{T+14}, s{T+14}, s{S_SLOT}
s_lshr_b32 s{S_UCT}, s{T+14}, {UML}
s_and_b32 s{T+14}, s{T+14}, {UM-1}
s_lshr_b32 s{S_UTB}, s{S_G}, {UML}
s_lshl_b32 s{S_UTB}, s{S_UTB}, {UML}
s_add_u32 s{S_UTB}, s{S_UTB}, s{T+14}
s_lshl_b32 s{S_UTB}, s{S_UTB}, 1
s_and_b32 s{T+14}, s{S_W}, 1
s_add_u32 s{S_UTB}, s{S_UTB}, s{T+14}
v_lshlrev_b32 v{vDU}, 4, v{vCH}
v_mul_u32_u24 v{vT0}, 2304, v{vR8}
s_lshl_b32 s{T+14}, s{S_UCT}, 7
v_add3_u32 v{vDU}, v{vDU}, v{vT0}, s{T+14}
s_lshl_b32 s{sTb}, s{S_BRT}, 2
s_and_b32 s{sOff}, s{S_W}, 3
s_add_u32 s{sTb}, s{sTb}, s{sOff}
s_mul_i32 s{sH}, s{sTb}, {72*1024}
s_add_u32 s{sH}, s{sH}, {WS_H}
v_mov_b32 v{vA0}, v{vB0}
v_mov_b32 v{vA1}, v{vB1}
v_min_u32 v{vT0}, 17, v0
v_lshlrev_b32 v{vT0}, 7, v{vT0}
s_lshr_b32 s{sOff}, s{S_BRT}, 1
s_mul_i32 s{sOff}, s{sOff}, {18*128}
s_add_u32 s{sOff}, s{sOff}, {F_H}
s_mul_i32 s{sF}, s{S_BRT}, 54
s_add_u32 s{sF}, s{sF}, s{S_BCT}
s_lshl_b32 s{sF}, s{sF}, 7
s_add_u32 s{sF}, s{sF}, {F_QKV}
s_waitcnt vmcnt(0)""")
    a("s_barrier")
    stamp(a, 2)
    a(f"s_cmp_ge_u32 s{S_W}, 4\ns_cbranch_scc1 L_ld")
    HPWG = OPT.get('hp', 'w') == 'wg'
    if HPWG:
        poll(a, vT0, f"s{sOff}", vT1)
    else:
        wpoll(a, vT0, f"s{sOff}", vT1)
    stamp(a, 3)
    LA = int(OPT['la'])
    gemm_loop(a, 72, LA, LA+4, vAcc, vWF, vH, vA0, vA1, vL16, sH, True, True, bar_at=SZ)
    stamp(a, 5)
    a(f"""s_mul_i32 s{sH}, s{sTb}, {216*1024}
s_lshl_b32 s{sOff}, s{S_BCT}, 12
s_add_u32 s{sH}, s{sH}, s{sOff}
s_add_u32 s{sH}, s{sH}, {WS_QKV}
s_nop 7""")
    for u in range(4):
        if u == 2:
            a("s_nop 1")
        for r in range(4*u, 4*u+4):
            a(f"v_cvt_pk_bf16_f32 v{vWF+r}, v{vAcc+2*r}, v{vAcc+2*r+1}")
        a(f"buffer_store_dwordx4 {vr(vWF+4*u,4)}, v{vL16}, {WS}, s{sH} offen offset:{1024*u} sc1")
    a("s_barrier")
    stamp(a, 6)
    sKh = T+2
    a(f"""s_lshr_b32 s{sKh}, s{S_W}, 1
s_mul_i32 s{sH}, s{S_UTB}, {216*1024}
s_mul_i32 s{sOff}, s{sKh}, {36*1024}
s_add_u32 s{sH}, s{sH}, s{sOff}
s_add_u32 s{sH}, s{sH}, {WS_QKV + 144*1024}
s_mul_i32 s{sOff}, s{sKh}, {576*128}
v_add_u32 v{vA0}, s{sOff}, v{vB0}
v_add_u32 v{vA1}, s{sOff}, v{vB1}
v_min_u32 v{vT0}, 8, v0
v_lshlrev_b32 v{vT0}, 7, v{vT0}
s_lshr_b32 s{T+7}, s{S_UTB}, 2
s_mul_i32 s{T+7}, s{T+7}, {54*128}
s_mul_i32 s{sOff}, s{sKh}, {9*128}
s_add_u32 s{T+7}, s{T+7}, s{sOff}
s_add_u32 s{T+7}, s{T+7}, {F_QKV + 36*128}""")
    set_flag(a, f"s{sF}")
    stamp(a, 7)
    a(f"s_cmp_ge_u32 s{S_SLOT}, 18\ns_cbranch_scc1 L_c_notu")
    if 'udelay' in OPT:
        a(f"s_sleep {OPT['udelay']}")
    UROT = int(OPT.get('urot', 0))
    if UROT:
        a(f"s_mul_i32 s{T+8}, s{S_UCT}, {UROT}")
        mod9(a, T+8, T+8, T+9)
    wpoll(a, vT0, f"s{T+7}", vT1)
    stamp(a, 12)
    LA = int(OPT.get('lau', 12))
    gemm_loop(a, 36, LA, min(36, LA+4), vAcc, vWF, vH, vA0, vA1, vP16, sH, False, False, pre=lambda: (a("s_barrier"), stamp(a, 11)),
              rot=(T+8, T+9, T+10, T+11, T+12, T+13, V0, V0+3) if UROT else None)
    stamp(a, 13)
    lk1 = a.label("kh1"); lj = a.label("j")
    a(f"""s_lshl_b32 s{sOff}, s{S_W}, 12
s_add_u32 s{sOff}, s{sOff}, {L_MISC}
v_add_u32 v{vT0}, s{sOff}, v{vL16}
v_xor_b32 v{vT1}, {2*4096}, v{vT0}
s_lshr_b32 s{sH}, s{S_UTB}, 3
s_mul_i32 s{sF}, s{sH}, 18
s_add_u32 s{sF}, s{sF}, s{S_UCT}
s_lshl_b32 s{sH}, s{sF}, 1
s_add_u32 s{sH}, s{sH}, s{sKh}
s_lshl_b32 s{sH}, s{sH}, 3
s_and_b32 s{sOff}, s{S_UTB}, 7
s_add_u32 s{sH}, s{sH}, s{sOff}
s_lshl_b32 s{sH}, s{sH}, 11
s_add_u32 s{sH}, s{sH}, {WS_U}
s_lshl_b32 s{sF}, s{sF}, 2
s_bfe_u32 s{sOff}, s{S_UTB}, 0x20001
s_add_u32 s{sF}, s{sF}, s{sOff}
s_lshl_b32 s{sF}, s{sF}, 7
s_add_u32 s{sF}, s{sF}, {F_U}
s_cmp_lg_u32 s{sKh}, 0
s_cbranch_scc1 {lk1}""")
    for q in range(4):
        a(f"ds_write_b128 v{vT0}, {vr(vAcc+16+4*q,4)} offset:{q*1024}")
    a(f"s_branch {lj}\n{lk1}:")
    for q in range(4):
        a(f"ds_write_b128 v{vT0}, {vr(vAcc+4*q,4)} offset:{q*1024}")
    for r in range(16):
        a(f"v_mov_b32 v{vAcc+r}, v{vAcc+16+r}")
    a(f"{lj}:\ns_waitcnt lgkmcnt(0)\ns_barrier")
    for q in range(4):
        a(f"ds_read_b128 {vr(vWF+4*q,4)}, v{vT1} offset:{q*1024}")
    for u in range(2):
        a(f"s_waitcnt lgkmcnt({2-2*u})")
        for r in range(8*u, 8*u+8):
            a(f"v_add_f32 v{vAcc+r}, v{vAcc+r}, v{vWF+r}")
        for r in range(4*u, 4*u+4):
            a(f"v_cvt_pk_bf16_f32 v{vWF+16+r}, v{vAcc+2*r}, v{vAcc+2*r+1}")
        a(f"buffer_store_dwordx4 {vr(vWF+16+4*u,4)}, v{vL16}, {WS}, s{sH} offen offset:{1024*u} sc1")
    set_flag(a, f"s{sF}")
    a("s_branch L_c_done")
    lnu = a.label("ldnu")
    vWo = 20
    NE = int(OPT.get('ne', 18))
    a("L_ld:")
    if 'tlb' in OPT:
        sh = int(OPT['tlb'])
        lt = a.label("tlb")
        srd(a, R_A, S_OUT, SZ_X)
        srd(a, R_C, S_WS, 0x700000)
        a(f"s_cmp_lg_u32 s{S_W}, 7\ns_cbranch_scc1 {lt}\nv_lshlrev_b32 v{vT2}, {sh}, v0\nv_add_u32 v{vT2}, {(1<<sh)-128}, v{vT2}")
        a(f"buffer_load_dword v236, v{vT2}, {RA}, 0 offen")
        for off in range(0, 0x700000, 64 << sh):
            a(f"v_add_u32 v{vT1}, {off}, v{vT2}\nbuffer_load_dword v237, v{vT1}, {RC}, 0 offen sc1")
        a(f"{lt}:")
    if SZ is not None:
        a("s_barrier")
    a(f"""s_cmp_ge_u32 s{S_SLOT}, 18
s_cbranch_scc1 {lnu}
s_sub_u32 s{T+10}, s{S_W}, 4
s_lshl_b32 s{T+11}, s{T+10}, 10
v_add_u32 v{vT0}, s{T+11}, v{vL16}
s_lshr_b32 s{T+12}, s{S_UTB}, 1
s_and_b32 s{T+12}, s{T+12}, {UM-1}
s_mul_i32 s{T+12}, s{T+12}, {144//UM}
s_add_u32 s{T+10}, s{T+10}, s{T+12}
s_lshl_b32 s{T+12}, s{T+12}, 10""")
    def nxt(n):
        if n < 35:
            a(f"s_add_u32 s{T+10}, s{T+10}, 4")
            if n % 9 == 8:
                a(f"""s_sub_u32 s{T+11}, s{T+10}, 144
s_cmp_ge_u32 s{T+10}, 144
s_cselect_b32 s{T+10}, s{T+11}, s{T+10}""")
    for n in range(NE):
        a(f"""s_mul_i32 s{T+11}, s{T+10}, {8*2304}
buffer_load_dwordx4 {vr(vWo+4*n,4)}, v{vDU}, {RB}, s{T+11} offen
{THRO}""")
        nxt(n)
    stamp(a, 4)
    if HPWG:
        a("s_barrier")
    a("s_barrier")
    stamp(a, 5)
    WS_ = min(NE, int(OPT.get('wsplit', 12)))
    def wr(n):
        if n % 9 == 0:
            a(f"v_add_u32 v{vT1}, s{T+12}, v{vT0}")
            a(f"""s_add_u32 s{T+12}, s{T+12}, {36*1024}
s_cmp_ge_u32 s{T+12}, {144*1024}
s_cselect_b32 s{T+12}, 0, s{T+12}""")
        a(f"s_waitcnt vmcnt({NE-1-n})\nds_write_b128 v{vT1}, {vr(vWo+4*n,4)} offset:{(n % 9)*4096}")
    for n in range(WS_): wr(n)
    a("s_barrier")
    for n in range(WS_, NE): wr(n)
    for n in range(NE, 36):
        a(f"""s_lshl_b32 m0, s{T+10}, 10
s_mul_i32 s{T+11}, s{T+10}, {8*2304}
buffer_load_dwordx4 v{vDU}, {RB}, s{T+11} offen lds""")
        nxt(n)
    a(f"""s_waitcnt vmcnt(0) lgkmcnt(0)""")
    stamp(a, 11)
    a(f"""s_barrier
s_barrier
s_barrier
s_branch L_c_done
{lnu}:
s_barrier
s_barrier""")
    if HPWG:
        a("s_barrier")
    a("L_c_notu:")
    sQb, sKb, sKq, sJ, sK, sQ, sTy = T, T+1, T+2, T+3, T+5, T+6, T+9
    sM = T+10
    sK1 = T+12
    vS = 56
    RING = 15
    a(f"""s_sub_u32 s{sJ}, s{S_SLOT}, 18
s_lshr_b32 s{sTy}, s{sJ}, 2
s_and_b32 s{sKq}, s{S_W}, 3
s_and_b32 s{sQb}, s{S_G}, 1
s_lshl_b32 s{sQb}, s{sQb}, 2
s_and_b32 s{sOff}, s{sJ}, 3
s_add_u32 s{sQb}, s{sQb}, s{sOff}
s_and_b32 s{sKb}, s{S_G}, 2
s_lshl_b32 s{sKb}, s{sKb}, 1
s_lshr_b32 s{sOff}, s{S_G}, 2
s_lshl_b32 s{sOff}, s{sOff}, 3
s_add_u32 s{sQb}, s{sQb}, s{sOff}
s_add_u32 s{sKb}, s{sKb}, s{sOff}
s_min_u32 s{sK1}, s{sTy}, 1
s_add_u32 s{sK1}, s{sK1}, s{sTy}
s_mul_i32 s{sK}, s{sKb}, {216*1024}
s_mul_i32 s{sQ}, s{sQb}, {216*1024}
s_mul_i32 s{sOff}, s{sKq}, {18*1024}
s_add_u32 s{sK}, s{sK}, s{sOff}
s_add_u32 s{sQ}, s{sQ}, s{sOff}
s_add_u32 s{sK}, s{sK}, {WS_QKV + 72*1024}
s_add_u32 s{sQ}, s{sQ}, {WS_QKV}
v_min_u32 v{vT0}, 17, v{vTok}
v_lshlrev_b32 v{vT0}, 7, v{vT0}
s_lshr_b32 s{sOff}, s{sKb}, 2
s_mul_i32 s{sOff}, s{sOff}, {54*128}
s_add_u32 s{sOff}, s{sOff}, {18*128}
s_lshr_b32 s{T+13}, s{sQb}, 2
s_mul_i32 s{T+13}, s{T+13}, {54*128}
s_sub_u32 s{sOff}, s{sOff}, s{T+13}
v_mul_lo_u32 v{vT1}, v{vHF}, s{sOff}
v_add_u32 v{vT0}, v{vT0}, v{vT1}
v_add_u32 v{vT0}, s{T+13}, v{vT0}
v_and_b32 v{vT2}, 0x2ff, v{vP16}
v_and_b32 v{vT1}, 16, v0
v_lshl_add_u32 v{vT2}, v{vT1}, 6, v{vT2}
s_and_b32 s{sOff}, s{sTy}, 1
s_lshl_b32 s{sOff}, s{sOff}, 8
s_add_u32 s{sOff}, s{sOff}, {216*1024}
v_add_u32 v{vT2}, s{sOff}, v{vT2}
s_mul_i32 s{sOff}, s{sK1}, {216*1024}
v_add_u32 v{V0}, s{sOff}, v{vP16}
s_mov_b32 s{sOff}, {F_QKV}""")
    poll(a, vT0, f"s{sOff}", vT1)
    stamp(a, 12)
    lsi = a.label("sidle")
    a(f"s_cmp_ge_u32 s{S_W}, 4\ns_cbranch_scc1 {lsi}")
    LA = int(OPT.get('las', 4))
    vS = 72; RING = 8
    vAc3 = 56
    assert LA < RING
    def sload(p):
        r = vS + 20*(p % RING)
        o = (p & 1)*2048
        a(f"""buffer_load_dwordx4 {vr(r,4)}, v{vL16}, {WS}, s{sQ} offen offset:{o} sc1
buffer_load_dwordx4 {vr(r+4,4)}, v{V0}, {WS}, s{sK} offen offset:{o} sc1
buffer_load_dwordx4 {vr(r+8,4)}, v{vT2}, {WS}, s{sK} offen offset:{o} sc1
buffer_load_dwordx4 {vr(r+12,4)}, v{vL16}, {WS}, s{sQ} offen offset:{o+1024} sc1
buffer_load_dwordx4 {vr(r+16,4)}, v{V0}, {WS}, s{sK} offen offset:{o+1024} sc1""")
        if p & 1:
            a(f"s_add_u32 s{sK}, s{sK}, 4096\ns_add_u32 s{sQ}, s{sQ}, 4096")
    for p in range(LA):
        sload(p)
    for p in range(9):
        y = 5*(min(9, p + LA) - p - 1)
        r = vS + 20*(p % RING)
        a(f"s_waitcnt vmcnt({y+3})")
        mfma(a, vAcc, r+4, r, p == 0)
        a(f"s_waitcnt vmcnt({y+2})")
        mfma(a, vAcc+16, r+8, r, p == 0)
        a(f"s_waitcnt vmcnt({y+1})")
        mfma(a, vAc3, r+8, r+12, p == 0)
        a(f"s_waitcnt vmcnt({y})")
        mfma(a, vAcc, r+16, r+12)
        if p + LA < 9:
            sload(p + LA)
    stamp(a, 13)
    QS, HS, PSZ = 1056, 528, 8448
    a(f"""s_mul_i32 s{sOff}, s{S_W}, {PSZ}
v_lshl_add_u32 v{vT0}, v{vHF}, 4, v{vL16}
v_add_u32 v{vT0}, s{sOff}, v{vT0}
s_nop 7""")
    for r in range(8):
        a(f"v_add_f32 v{vAcc+16+r}, v{vAcc+16+r}, v{vAc3+8+r}")
    for q in (4, 5, 0, 1, 2, 3):
        a(f"ds_write_b128 v{vT0}, {vr(vAcc+4*q,4)} offset:{q*QS}")
    a(f"""{lsi}:
v_bfe_u32 v{vT1}, v0, 2, 2
v_and_b32 v{vT2}, 1, v0
v_lshl_add_u32 v{vT1}, v{vT1}, 1, v{vT2}
v_mul_u32_u24 v{vT1}, {QS}, v{vT1}
v_bfe_u32 v{vT2}, v0, 1, 1
v_mul_u32_u24 v{vT2}, {HS}, v{vT2}
v_lshrrev_b32 v{vT0}, 4, v0
s_lshl_b32 s{sOff}, s{S_W}, 2
v_add_u32 v{vT0}, s{sOff}, v{vT0}
v_lshl_add_u32 v{vT1}, v{vT0}, 4, v{vT1}
v_add_u32 v{vT1}, v{vT1}, v{vT2}
v_and_b32 v{vT2}, 7, v0
v_lshlrev_b32 v{vT2}, 4, v{vT2}
v_lshl_add_u32 v{vT2}, v{vT0}, 10, v{vT2}
s_lshl_b32 s{sOff}, s{sK1}, 7
v_mov_b32 v{vT0}, s{sOff}
v_and_b32 v{vT3}, 8, v0
v_cmp_ne_u32 vcc, 0, v{vT3}
s_and_b32 s{sOff}, s{sTy}, 1
s_lshl_b32 s{sOff}, s{sOff}, 6
s_add_u32 s{sOff}, s{sOff}, 128
v_mov_b32 v{vT3}, s{sOff}
s_lshl_b32 s{sJ}, s{sQb}, 15
v_cndmask_b32 v{vT0}, v{vT0}, v{vT3}, vcc
v_add_u32 v{vT2}, v{vT2}, v{vT0}
s_and_b32 s{sOff}, s{sKb}, 7
s_lshl_b32 s{sOff}, s{sOff}, 7
s_add_u32 s{sJ}, s{sJ}, s{sOff}
s_add_u32 s{sJ}, s{sJ}, {WS_L}
s_mov_b32 s{sM}, 0x0fff0fff
s_cmp_eq_u32 s{sTy}, 2
s_cselect_b32 s{sM}, 0x00ff00ff, s{sM}
s_mov_b32 s{sM+1}, s{sM}
v_mov_b32 v53, v{vTAG}
v_mov_b32 v55, v{vTAG}
s_waitcnt lgkmcnt(0)
s_barrier""")
    for j in range(4):
        a(f"ds_read_b128 {vr(vAcc+4*j,4)}, v{vT1} offset:{j*PSZ}")
    a("s_waitcnt lgkmcnt(2)")
    for r in range(4):
        a(f"v_add_f32 v{vAcc+r}, v{vAcc+r}, v{vAcc+4+r}")
    a("s_waitcnt lgkmcnt(0)")
    for r in range(4):
        a(f"v_add_f32 v{vAcc+8+r}, v{vAcc+8+r}, v{vAcc+12+r}")
    for r in range(4):
        a(f"v_add_f32 v{vAcc+r}, v{vAcc+r}, v{vAcc+8+r}")
    sc = struct.unpack('<I', struct.pack('<f', D ** -0.5))[0]
    for r in range(2):
        a(f"v_cvt_pk_bf16_f32 v{52+2*r}, v{vAcc+2*r}, v{vAcc+2*r+1}")
    for r in range(2):
        unpack(a, vAcc+2*r, vAcc+2*r+1, 52+2*r)
    for r in range(4):
        a(f"v_mul_f32 v{vAcc+r}, {hex(sc)}, v{vAcc+r}")
    for r in range(2):
        a(f"v_cvt_pk_bf16_f32 v{52+2*r}, v{vAcc+2*r}, v{vAcc+2*r+1}")
    a(f"s_mov_b64 exec, s[{sM}:{sM+1}]\nbuffer_store_dwordx4 v[52:55], v{vT2}, {WS}, s{sJ} offen sc1\ns_mov_b64 exec, -1")
    a("L_c_done:")
    stamp(a, 14)

def phase_d(a):
    sQt, sCt, sCb, sKh, sOff, sXo, sJ, sU, sB, sCol = T, T+1, T+2, T+3, T+4, T+5, T+6, T+7, T+8, T+9
    vXo, vMx, vS, vLa, vPa, vLw = V0, V0+1, V0+2, V0+3, V0+4, V0+5
    vLd = 24
    vX = 40
    vG = 44
    vF = 56
    vR = 72
    vAcc = 80
    vU = 96
    vP = 128
    PS = 1056
    L_P, L_EX = 40960, 65536
    srd(a, R_A, S_X, SZ_X)
    srd(a, R_B, S_OUT, SZ_X)
    a(f"s_sub_u32 s{sJ}, 26, s{S_SLOT}" if 'dold' in OPT else f"s_mov_b32 s{sJ}, s{S_SLOT}")
    a(f"""s_cmp_ge_u32 s{sJ}, 18
s_cbranch_scc1 L_fin
s_and_b32 s{sOff}, s{S_G}, 3
s_mul_i32 s{sOff}, s{sOff}, 18
s_add_u32 s{sOff}, s{sOff}, s{sJ}
s_lshr_b32 s{sCt}, s{sOff}, 3
s_and_b32 s{sJ}, s{sOff}, 7
s_lshr_b32 s{sB}, s{S_G}, 2
s_lshl_b32 s{sQt}, s{sB}, 3
s_add_u32 s{sQt}, s{sQt}, s{sJ}
s_and_b32 s{sCb}, s{S_W}, 3
s_lshr_b32 s{sKh}, s{S_W}, 2
s_lshl_b32 s{sCol}, s{sCt}, 7
s_lshl_b32 s{sOff}, s{sCb}, 5
s_add_u32 s{sCol}, s{sCol}, s{sOff}
s_lshl_b32 s{sOff}, s{sKh}, 4
s_add_u32 s{sCol}, s{sCol}, s{sOff}
s_mul_i32 s{sXo}, s{sQt}, {32*2304}
s_lshl_b32 s{sOff}, s{sCol}, 1
s_add_u32 s{sXo}, s{sXo}, s{sOff}
v_mul_u32_u24 v{vXo}, 2304, v{vTok}
v_lshl_add_u32 v{vXo}, v{vHF}, 4, v{vXo}
buffer_load_dwordx4 {vr(vX,4)}, v{vXo}, {RA}, s{sXo} offen
s_mul_i32 s{sU}, s{sB}, 36
s_lshl_b32 s{sOff}, s{sCt}, 2
s_add_u32 s{sU}, s{sU}, s{sOff}
s_add_u32 s{sU}, s{sU}, s{sCb}
s_lshr_b32 s{T+10}, s{sU}, 1
s_lshl_b32 s{sU}, s{sU}, 4
s_lshl_b32 s{sOff}, s{sKh}, 3
s_add_u32 s{sU}, s{sU}, s{sOff}
s_lshl_b32 s{sU}, s{sU}, 10
s_add_u32 s{sU}, s{sU}, {WS_U}
s_lshl_b32 s{T+10}, s{T+10}, 1
s_add_u32 s{T+10}, s{T+10}, s{sKh}
s_lshl_b32 s{T+10}, s{T+10}, 8
s_add_u32 s{T+10}, s{T+10}, {F_U}
v_and_b32 v{vT0}, 1, v0
v_lshlrev_b32 v{vT0}, 7, v{vT0}
v_add_u32 v{vT1}, s{T+10}, v{vT0}
s_lshr_b32 s{sOff}, s{sCol}, 6
s_lshl_b32 s{sOff}, s{sOff}, 7
s_add_u32 s{sOff}, s{sOff}, {F_G}
v_mov_b32 v{vT2}, s{sOff}
v_cmp_lt_u32 vcc, 9, v0
s_lshl_b32 s{sOff}, s{sQt}, 15
s_lshl_b32 s{T+10}, s{S_W}, 12
v_cndmask_b32 v{vT1}, v{vT1}, v{vT2}, vcc
s_add_u32 s{sOff}, s{sOff}, s{T+10}
s_add_u32 s{sOff}, s{sOff}, {WS_L + 3*1024 + 124}
v_lshlrev_b32 v{vT2}, 7, v0
v_add_u32 v{vT2}, s{sOff}, v{vT2}
v_cmp_gt_u32 vcc, 8, v0
v_and_b32 v{vT3}, 15, v0
v_lshrrev_b32 v{vT0}, 4, v0
v_cndmask_b32 v{vT1}, v{vT1}, v{vT2}, vcc
s_lshl_b32 s{sOff}, s{S_W}, 2
v_add_u32 v{vT0}, s{sOff}, v{vT0}
v_lshlrev_b32 v{vLa}, 10, v{vT0}
v_lshl_add_u32 v{vLa}, v{vT3}, 4, v{vLa}
v_lshrrev_b32 v{vT2}, 1, v{vT3}
v_mul_u32_u24 v{vLw}, {PS//2}, v{vT2}
v_lshl_add_u32 v{vLw}, v{vT0}, 4, v{vLw}
v_and_b32 v{vT2}, 1, v0
v_lshl_add_u32 v{vLw}, v{vT2}, 3, v{vLw}
v_lshl_add_u32 v{vPa}, v{vHF}, 4, v{vL16}
s_mul_i32 s{sOff}, s{sKh}, {8*PS}
v_add_u32 v{vPa}, s{sOff}, v{vPa}
s_mul_i32 s{T+11}, s{sB}, 4608
s_lshl_b32 s{T+10}, s{sCol}, 2
s_add_u32 s{T+11}, s{T+11}, s{T+10}
s_add_u32 s{T+11}, s{T+11}, {WS_GATE}
v_lshlrev_b32 v{vT0}, 5, v{vHF}
s_lshl_b32 s{sOff}, s{sQt}, 15
s_add_u32 s{sOff}, s{sOff}, {WS_L}""")
    vFa, vFl = 22, 23
    sUd = T+12
    def uloads():
        for s in range(8):
            a(f"buffer_load_dwordx4 {vr(vU+4*s,4)}, v{vL16}, {WS}, s{sU} offen offset:{(s&3)*1024} sc1")
            if s == 3:
                a(f"s_add_u32 s{sU}, s{sU}, 4096")
        a(f"""buffer_load_dwordx4 {vr(vG,4)}, v{vT0}, {WS}, s{T+11} offen sc1
buffer_load_dwordx4 {vr(vG+4,4)}, v{vT0}, {WS}, s{T+11} offen offset:16 sc1
s_mov_b32 s{sUd}, 1""")
        stamp(a, 8)
    l = a.label("lp"); d = a.label("lpd"); nu = a.label("nu"); l3 = a.label("lv"); d3 = a.label("lvd"); nu2 = a.label("nu2")
    def lloads():
        for n in range(4):
            a(f"buffer_load_dwordx4 {vr(vLd+4*n,4)}, v{vLa}, {WS}, s{sOff} offen offset:{256*n} sc1")
    a(f"""v_mov_b32 v{vFa}, v{vT1}
s_mov_b32 s{sUd}, 0
{l}:
buffer_load_dword v{vFl}, v{vFa}, {WS}, 0 offen sc1
s_waitcnt vmcnt(0)
v_cmp_ne_u32 vcc, s{S_TAG}, v{vFl}
s_and_b32 s{T+13}, vcc_lo, 255
s_cbranch_scc0 {d}
s_lshr_b32 s{T+13}, vcc_lo, 8
s_cbranch_scc0 {d}
s_sleep {OPT.get('lsleep', 1)}
s_sub_u32 s{S_TO}, s{S_TO}, 1
s_cmp_lg_u32 s{S_TO}, 0
s_cbranch_scc1 {l}
s_mov_b32 s{S_TO}, 1
{d}:""")
    lloads()
    a(f"""s_lshr_b32 s{T+13}, vcc_lo, 8
s_or_b32 s{T+13}, s{T+13}, s{sUd}
s_cbranch_scc1 {nu2}""")
    uloads()
    a(f"""s_waitcnt vmcnt(10)
s_branch {l3}_c
{nu2}:
buffer_load_dword v{vFl}, v{vFa}, {WS}, 0 offen sc1
s_waitcnt vmcnt(1)
s_branch {l3}_c
{l3}:""")
    lloads()
    a(f"""s_waitcnt vmcnt(0)
{l3}_c:
v_min_u32 v{vT1}, v{vLd+1}, v{vLd+3}
v_max_u32 v{vT2}, v{vLd+1}, v{vLd+3}""")
    for n in range(1, 4):
        a(f"v_min3_u32 v{vT1}, v{vT1}, v{vLd+4*n+1}, v{vLd+4*n+3}\nv_max3_u32 v{vT2}, v{vT2}, v{vLd+4*n+1}, v{vLd+4*n+3}")
    a(f"""v_cmp_ne_u32 vcc, s{S_TAG}, v{vT1}
v_cmp_ne_u32 s[{T+14}:{T+15}], s{S_TAG}, v{vT2}
s_or_b64 vcc, vcc, s[{T+14}:{T+15}]
s_cbranch_vccz {d3}
s_sub_u32 s{S_TO}, s{S_TO}, 1
s_cmp_lg_u32 s{S_TO}, 0
s_cbranch_scc1 {l3}
s_mov_b32 s{S_TO}, 1
{d3}:""")
    stamp(a, 9)
    for i in range(8):
        unpack(a, vF+2*i, vF+2*i+1, vLd+2*i)
    a(f"""v_max3_f32 v{vMx}, v{vF}, v{vF+1}, v{vF+2}
v_max3_f32 v{vS}, v{vF+3}, v{vF+4}, v{vF+5}
v_max3_f32 v{vMx}, v{vMx}, v{vF+6}, v{vF+7}
v_max3_f32 v{vS}, v{vS}, v{vF+8}, v{vF+9}
v_max3_f32 v{vMx}, v{vMx}, v{vF+10}, v{vF+11}
v_max3_f32 v{vS}, v{vS}, v{vF+12}, v{vF+13}
v_max3_f32 v{vMx}, v{vMx}, v{vF+14}, v{vF+15}
v_max_f32 v{vMx}, v{vMx}, v{vS}""")
    for m in ("quad_perm:[1,0,3,2]", "quad_perm:[2,3,0,1]", "row_half_mirror", "row_mirror"):
        a(f"s_nop 1\nv_max_f32_dpp v{vMx}, v{vMx}, v{vMx} {m} row_mask:0xf bank_mask:0xf")
    a(f"s_mov_b32 s{T+10}, {hex(LOG2E)}\nv_mul_f32 v{vMx}, s{T+10}, v{vMx}")
    for i in range(16):
        a(f"v_fma_f32 v{vF+i}, v{vF+i}, s{T+10}, -v{vMx}")
    for i in range(16):
        a(f"v_exp_f32 v{vF+i}, v{vF+i}")
    a(f"v_add_f32 v{vS}, v{vF}, v{vF+1}\nv_add_f32 v{vMx}, v{vF+2}, v{vF+3}")
    for i in range(4, 16, 2):
        a(f"v_add_f32 v{vS}, v{vS}, v{vF+i}\nv_add_f32 v{vMx}, v{vMx}, v{vF+i+1}")
    a(f"v_add_f32 v{vS}, v{vS}, v{vMx}")
    for m in ("quad_perm:[1,0,3,2]", "quad_perm:[2,3,0,1]", "row_half_mirror", "row_mirror"):
        a(f"s_nop 1\nv_add_f32_dpp v{vS}, v{vS}, v{vS} {m} row_mask:0xf bank_mask:0xf")
    a(f"v_rcp_f32 v{vS}, v{vS}\ns_nop 0")
    for i in range(16):
        a(f"v_mul_f32 v{vF+i}, v{vF+i}, v{vS}")
    for i in range(8):
        a(f"v_cvt_pk_bf16_f32 v{vLd+i}, v{vF+2*i}, v{vF+2*i+1}")
    for n in range(4):
        a(f"ds_write_b64 v{vLw}, {vr(vLd+2*n,2)} offset:{L_P+4*n*PS}")
    hu = a.label("hu"); l2 = a.label("up"); d2 = a.label("upd")
    a(f"""s_cmp_lg_u32 s{sUd}, 0
s_cbranch_scc1 {hu}
{l2}:
s_waitcnt vmcnt(0)
v_cmp_ne_u32 vcc, s{S_TAG}, v{vFl}
s_cbranch_vccz {d2}
buffer_load_dword v{vFl}, v{vFa}, {WS}, 0 offen sc1
s_sub_u32 s{S_TO}, s{S_TO}, 1
s_cmp_lg_u32 s{S_TO}, 0
s_cbranch_scc1 {l2}
s_mov_b32 s{S_TO}, 1
{d2}:""")
    uloads()
    a(f"{hu}:\ns_waitcnt lgkmcnt(0)\ns_barrier")
    for s in range(8):
        a(f"ds_read_b128 {vr(vP+4*s,4)}, v{vPa} offset:{L_P+s*PS}")
    a(f"""s_lshl_b32 s{sOff}, s{S_W}, 11
s_add_u32 s{sOff}, s{sOff}, {L_EX}
v_add_u32 v{vT0}, s{sOff}, v{vL16}
v_xor_b32 v{vT1}, {4*2048}, v{vT0}""")
    for s in range(8):
        a(f"s_waitcnt vmcnt({2+7-s}) lgkmcnt({7-s})")
        mfma(a, vAcc, vU+4*s, vP+4*s, s == 0)
    for i in range(4):
        unpack(a, vF+2*i, vF+2*i+1, vX+i)
    stamp(a, 10)
    lk1 = a.label("kh1"); lj = a.label("j")
    a(f"""s_nop 3
s_cmp_lg_u32 s{sKh}, 0
s_cbranch_scc1 {lk1}
ds_write_b128 v{vT0}, {vr(vAcc+8,4)}
ds_write_b128 v{vT0}, {vr(vAcc+12,4)} offset:1024
s_branch {lj}
{lk1}:
ds_write_b128 v{vT0}, {vr(vAcc,4)}
ds_write_b128 v{vT0}, {vr(vAcc+4,4)} offset:1024""")
    for r in range(8):
        a(f"v_mov_b32 v{vAcc+r}, v{vAcc+8+r}")
    a(f"""{lj}:
s_waitcnt lgkmcnt(0)
s_barrier
ds_read_b128 {vr(vR,4)}, v{vT1}
ds_read_b128 {vr(vR+4,4)}, v{vT1} offset:1024
s_waitcnt vmcnt(0) lgkmcnt(0)""")
    for r in range(8):
        a(f"v_add_f32 v{vAcc+r}, v{vAcc+r}, v{vR+r}")
    def cv():
        for i in range(4):
            a(f"v_cvt_pk_bf16_f32 v{vR+i}, v{vAcc+2*i}, v{vAcc+2*i+1}")
    def up():
        for i in range(4):
            unpack(a, vAcc+2*i, vAcc+2*i+1, vR+i)
    cv(); up()
    for r in range(8):
        a(f"v_mul_f32 v{vAcc+r}, v{vAcc+r}, v{vG+r}")
    cv(); up()
    for r in range(8):
        a(f"v_add_f32 v{vAcc+r}, v{vAcc+r}, v{vF+r}")
    cv()
    a(f"buffer_store_dwordx4 {vr(vR,4)}, v{vXo}, {RB}, s{sXo} offen {OPT.get('oflag', '').replace('+', ' ')}")
    a("L_fin:")

def gemv_dma(a, sColA, vD):
    sRow0, sOff = T+2, T+3
    a(f"""v_lshlrev_b32 v{vD}, 4, v{vCH}
v_mul_u32_u24 v{vT0}, 13824, v{vR8}
v_add3_u32 v{vD}, v{vD}, v{vT0}, s{sColA}
s_mul_i32 s{sOff}, s{sRow0}, 13824
s_lshl_b32 m0, s{sRow0}, 7""")
    for t in range(18):
        a(f"""s_nop 0
buffer_load_dwordx4 v{vD}, {RA}, s{sOff} offen {NT} lds""")
        if t < 17:
            a(f"s_add_u32 s{sOff}, s{sOff}, {8*13824}\ns_add_u32 m0, m0, 1024")

def phase_owner(a):
    sColA, sB, sRow0, sOff, sO, sCs, sTb = T, T+1, T+2, T+3, T+4, T+5, T+6
    vD, vA0, vA1, vSil, vCs = V0, V0+1, V0+2, V0+3, V0+4
    vC = 24
    vST = 28
    vX = VOX
    vXN = 48
    vPt = 80
    vAcc = 112
    vWF = 144
    vSF = 160
    vM = 184
    a(f"""s_mov_b32 s{sO}, s2
s_cmp_ge_u32 s{sO}, 36
s_cbranch_scc1 L_o_pref
s_lshr_b32 s{sCs}, s{sO}, 1
s_and_b32 s{sB}, s{sO}, 1
s_waitcnt vmcnt(0)
s_barrier""")
    vST = 32
    vPt = 112
    SM = [32, 33, 34, 35, 36, 37, 38, 39, 40, 41, 42, 43, 9, 10, 11, 12]
    a(f"""v_and_b32 v{vT3}, 7, v0
v_xor_b32 v{vT0}, s{S_W}, v{vT3}
v_lshlrev_b32 v{vT0}, 4, v{vT0}
v_lshl_add_u32 v{vT0}, v0, 7, v{vT0}""")
    for q in range(4):
        a(f"ds_read_b128 {vr(vX+4*q,4)}, v{vT0} offset:{q*8192}")
    a(f"""s_lshl_b32 s{T+9}, s{sB}, 12
s_add_u32 s{T+9}, s{T+9}, {F_STAT}
s_mul_i32 s{T+10}, s{sO}, {18*1024}
s_lshl_b32 s{sOff}, s{S_W}, 7
s_add_u32 s{T+10}, s{T+10}, s{sOff}
s_add_u32 s{T+10}, s{T+10}, {WS_PART}
s_add_u32 s{T+11}, s{T+10}, 8192
v_lshlrev_b32 v{vT1}, 4, v{vT3}
v_min_u32 v{vT2}, 1, v{vR8}
v_lshl_add_u32 v{vT2}, v{vT2}, 10, v{vT1}
v_add_u32 v{vT2}, 16384, v{vT2}
v_lshl_add_u32 v{vT1}, v{vR8}, 10, v{vT1}
v_cmp_gt_u32 vcc, 16, v0
v_mul_u32_u24 v{vCs}, {72*1024}, v{vHF}
v_lshl_add_u32 v{vCs}, v{vTok}, 4, v{vCs}
v_cndmask_b32 v{vA0}, 0, 1.0, vcc
v_bfe_u32 v{vA1}, v0, 2, 1
v_cvt_f32_u32 v{vA1}, v{vA1}
s_mul_i32 s{sOff}, s{sB}, {8*72*1024}
s_lshl_b32 s{T+12}, s{sCs}, 12
s_add_u32 s{sOff}, s{sOff}, s{T+12}
s_lshl_b32 s{T+12}, s{S_W}, 9
s_add_u32 s{sOff}, s{sOff}, s{T+12}
s_add_u32 s{sOff}, s{sOff}, {WS_H}
s_waitcnt lgkmcnt(0)""")
    def stl():
        for q in range(4):
            a(f"buffer_load_dwordx4 {vr(vST+4*q,4)}, v{vL16}, {WS}, s{T+9} offen offset:{1024*q} sc1")
    def pl():
        a(f"""buffer_load_dwordx4 {vr(vPt,4)}, v{vT1}, {WS}, s{T+10} offen sc1
buffer_load_dwordx4 {vr(vPt+4,4)}, v{vT1}, {WS}, s{T+11} offen sc1
buffer_load_dwordx4 {vr(vPt+8,4)}, v{vT2}, {WS}, s{T+10} offen sc1""")
    P = [(q, i) for q in range(4) for i in range(4)]
    lo = lambda q, i: vXN+8*q+2*i
    hi = lambda q, i: vXN+8*q+2*i+1
    xs = lambda q, i: vX+4*q+i
    def st_unpack():
        for q, i in P: unpack(a, lo(q,i), hi(q,i), xs(q,i))
    def st_cvt():
        for q, i in P: a(f"v_cvt_pk_bf16_f32 v{xs(q,i)}, v{lo(q,i)}, v{hi(q,i)}")
    def st_op(op, f):
        for q, i in P:
            a(f"{op} v{lo(q,i)}, v{lo(q,i)}, v{f(q,2*i)}\n{op} v{hi(q,i)}, v{hi(q,i)}, v{f(q,2*i+1)}")
    st_unpack()
    gpoll(a, stl, [vST+4*q+j for q in range(4) for j in (1, 3)])
    stamp(a, 1)
    st_op("v_sub_f32", lambda q, j: vST+4*q); st_cvt()
    st_unpack()
    pl()
    st_op("v_mul_f32", lambda q, j: vST+4*q+2); st_cvt()
    st_unpack()
    stamp(a, 2)
    lp = a.label("pp"); ld = a.label("ppd")
    a(f"""{lp}:
s_waitcnt vmcnt(0)
v_min3_u32 v{vM}, v{vPt+1}, v{vPt+3}, v{vPt+5}
v_max3_u32 v{vM+1}, v{vPt+1}, v{vPt+3}, v{vPt+5}
v_min3_u32 v{vM}, v{vM}, v{vPt+7}, v{vPt+9}
v_max3_u32 v{vM+1}, v{vM+1}, v{vPt+7}, v{vPt+9}
v_min_u32 v{vM}, v{vM}, v{vPt+11}
v_max_u32 v{vM+1}, v{vM+1}, v{vPt+11}
v_cmp_ne_u32 vcc, s{S_TAG}, v{vM}
v_cmp_ne_u32 s[{T+14}:{T+15}], s{S_TAG}, v{vM+1}
s_or_b64 vcc, vcc, s[{T+14}:{T+15}]
s_cbranch_vccz {ld}
s_sub_u32 s{S_TO}, s{S_TO}, 1
s_cmp_eq_u32 s{S_TO}, 0
s_cbranch_scc1 {ld}""")
    pl()
    a(f"""s_branch {lp}
{ld}:
s_max_u32 s{S_TO}, s{S_TO}, 1
v_add_f32 v{vPt}, v{vPt}, v{vPt+4}
v_add_f32 v{vPt+2}, v{vPt+2}, v{vPt+6}
v_fmac_f32 v{vPt}, v{vA0}, v{vPt+8}
v_fmac_f32 v{vPt+2}, v{vA0}, v{vPt+10}
s_nop 1
v_permlane32_swap_b32 v{vPt}, v{vPt+2}
s_nop 0
v_add_f32 v{vPt}, v{vPt}, v{vPt+2}
v_mov_b32 v{vPt+2}, v{vPt}
s_nop 1
v_permlane16_swap_b32 v{vPt}, v{vPt+2}
s_nop 0
v_add_f32 v{vPt}, v{vPt}, v{vPt+2}
s_nop 1
v_add_f32_dpp v{vPt}, v{vPt}, v{vPt} row_ror:8 row_mask:0xf bank_mask:0xf""")
    round_bf16(a, vPt)
    a(f"v_add_f32 v{vPt}, v{vPt}, v{vA1}")
    round_bf16(a, vPt)
    a("s_nop 0")
    for u in (4, 5, 6, 7, 0, 1, 2, 3):
        a(f"v_readlane_b32 s{SM[2*u]}, v{vPt}, {u}\nv_readlane_b32 s{SM[2*u+1]}, v{vPt}, {32+u}")
    stamp(a, 3)
    for q, i in P:
        a(f"v_mul_f32 v{lo(q,i)}, s{SM[8+2*i]}, v{lo(q,i)}\nv_mul_f32 v{hi(q,i)}, s{SM[8+2*i+1]}, v{hi(q,i)}")
    st_cvt(); st_unpack()
    for q in range(4):
        for i in range(4):
            a(f"v_add_f32 v{lo(q,i)}, s{SM[2*i]}, v{lo(q,i)}\nv_add_f32 v{hi(q,i)}, s{SM[2*i+1]}, v{hi(q,i)}")
        for i in range(4):
            a(f"v_cvt_pk_bf16_f32 v{xs(q,i)}, v{lo(q,i)}, v{hi(q,i)}")
        a(f"buffer_store_dwordx4 {vr(vX+4*q,4)}, v{vCs}, {WS}, s{sOff} offen sc1")
        if q < 3:
            a(f"s_add_u32 s{sOff}, s{sOff}, {2*72*1024}")
    stamp(a, 4)
    a(f"""s_mul_i32 s{sOff}, s{sB}, 18
s_add_u32 s{sOff}, s{sOff}, s{sCs}
s_lshl_b32 s{sOff}, s{sOff}, 7
s_add_u32 s{sOff}, s{sOff}, {F_H}""")
    set_flag(a, f"s{sOff}")
    stamp(a, 5)
    if 'ob' in OPT:
        a("s_waitcnt vmcnt(0)\ns_barrier")
    a("L_o_pref:")
    srd(a, R_A, S_WMOD, SZ_WMOD)
    srd(a, R_C, S_C, SZ_C)
    a(f"""s_cmp_ge_u32 s{sO}, 18
s_cbranch_scc1 L_o_upd""")
    if 'gd' in OPT:
        a(f"v_min_u32 v{vT0}, 35, v0\nv_lshlrev_b32 v{vT0}, 7, v{vT0}\ns_movk_i32 s{sOff}, {F_H}")
        poll(a, vT0, f"s{sOff}", vT1)
    a(f"""s_mul_i32 s{sRow0}, s{S_W}, 144
v_min_u32 v{vT0}, 17, v{vTok}
v_lshlrev_b32 v{vT0}, 4, v{vT0}
v_mul_u32_u24 v{vT1}, 2304, v{vHF}
v_add_u32 v{vCs}, v{vT0}, v{vT1}
s_lshl_b32 s{sOff}, s{sRow0}, 1
buffer_load_dwordx4 {vr(vC,4)}, v{vCs}, {RC}, s{sOff} offen
s_lshl_b32 s{sColA}, s{sO}, 7
s_add_u32 s{sColA}, s{sColA}, 4608""")
    gemv_dma(a, sColA, vD)
    a(f"""s_lshl_b32 s{sOff}, s{sRow0}, 7
v_add_u32 v{vA0}, s{sOff}, v{vB0}
v_add_u32 v{vA1}, s{sOff}, v{vB1}
s_waitcnt vmcnt(18)""")
    for i in range(4):
        unpack(a, vM+2*i, vM+2*i+1, vC+i)
    silu8(a, vM, vM+8)
    for i in range(4):
        a(f"v_cvt_pk_bf16_f32 v{vC+i}, v{vM+2*i}, v{vM+2*i+1}")
    a(f"""s_lshl_b32 s{sOff}, s{sRow0}, 1
s_add_u32 s{sOff}, s{sOff}, {L_SIL}
v_add_u32 v{vCs}, s{sOff}, v{vCs}
ds_write_b128 v{vCs}, {vr(vC,4)}
v_and_b32 v{vT0}, 1, v0
v_mul_u32_u24 v{vT0}, 2304, v{vT0}
v_lshl_add_u32 v{vT0}, v{vHF}, 4, v{vT0}
v_add_u32 v{vSil}, s{sOff}, v{vT0}
s_waitcnt lgkmcnt(0)""")
    for s in range(9):
        wf = vWF + 8*(s & 1); sf = vSF + 4*(s & 1)
        a(f"s_waitcnt vmcnt({18-2*(s+1)})")
        a(f"ds_read_b128 {vr(sf,4)}, v{vSil} offset:{s*32}")
        trreads(a, wf, vA0, vA1, s*2048)
        a("s_waitcnt lgkmcnt(2)")
        mfma(a, vAcc, wf, sf, s == 0)
        a("s_waitcnt lgkmcnt(0)")
        mfma(a, vAcc+16, wf+4, sf, s == 0)
    a(f"""v_and_b32 v{vT0}, 1, v0
v_lshlrev_b32 v{vT0}, 8, v{vT0}
v_lshl_add_u32 v{vT0}, v{vHF}, 5, v{vT0}
s_lshl_b32 s{sOff}, s{S_W}, 9
s_add_u32 s{sOff}, s{sOff}, {L_RED}
v_add_u32 v{vT0}, s{sOff}, v{vT0}
s_mov_b32 exec_lo, 3
s_mov_b32 exec_hi, 3
s_nop 8""")
    for cb in range(2):
        for q, off in enumerate((0, 16, 64, 80)):
            a(f"ds_write_b128 v{vT0}, {vr(vAcc+16*cb+4*q,4)} offset:{cb*128+off}")
    a(f"""s_mov_b64 exec, -1
s_waitcnt lgkmcnt(0)
s_barrier
s_lshr_b32 s{sOff}, s{S_W}, 2
s_lshl_b32 s{sOff}, s{sOff}, 8
s_add_u32 s{sOff}, s{sOff}, {L_RED}
v_lshlrev_b32 v{vT0}, 2, v0
v_add_u32 v{vT1}, s{sOff}, v{vT0}""")
    for w in range(8):
        a(f"ds_read_b32 v{vAcc+w}, v{vT1} offset:{w*512}")
    a("s_waitcnt lgkmcnt(0)")
    for w in range(1, 8):
        a(f"v_add_f32 v{vAcc}, v{vAcc}, v{vAcc+w}")
    round_bf16(a, vAcc)
    lsk = a.label("gsk")
    a(f"""s_and_b32 s{sOff}, s{S_W}, 3
s_cmp_lg_u32 s{sOff}, 0
s_cbranch_scc1 {lsk}
s_lshr_b32 s{T+9}, s{S_W}, 2
s_mul_i32 s{sOff}, s{T+9}, 4608
s_lshl_b32 s{sColA}, s{sO}, 8
s_add_u32 s{sOff}, s{sOff}, s{sColA}
s_add_u32 s{sOff}, s{sOff}, {WS_GATE}
buffer_store_dword v{vAcc}, v{vT0}, {WS}, s{sOff} offen sc1
{lsk}:
s_lshl_b32 s{sOff}, s{sO}, 7
s_add_u32 s{sOff}, s{sOff}, {F_G}""")
    set_flag(a, f"s{sOff}")
    stamp(a, 7)
    lp = a.label("ep"); ld = a.label("epd")
    a(f"""L_o_upd:
s_add_u32 s{S_SLOT}, s{S_SLOT}, 25
s_cmp_ge_u32 s{S_SLOT}, 27
s_cbranch_scc1 L_c_notu
s_cmp_lg_u32 s2, 0
s_cbranch_scc1 L_fin
s_lshl_b32 s{sOff}, s{S_W}, 6
v_add_u32 v{vT0}, s{sOff}, v0
v_min_u32 v{vT0}, 215, v{vT0}
v_lshlrev_b32 v{vT0}, 7, v{vT0}
s_mov_b32 s{sOff}, {F_QKV}
{lp}:
s_sleep 16
buffer_load_dword v{vT1}, v{vT0}, {WS}, s{sOff} offen sc1
s_waitcnt vmcnt(0)
v_cmp_ne_u32 vcc, s{S_TAG}, v{vT1}
s_cbranch_vccz {ld}
s_sub_u32 s{S_TO}, s{S_TO}, 1
s_cmp_lg_u32 s{S_TO}, 0
s_cbranch_scc1 {lp}
{ld}:
s_mov_b32 s{sOff}, {EPOCH}""")
    set_flag(a, f"s{sOff}")
    a("s_branch L_fin")

def epilogue(a):
    if STAMP and 'probe' in OPT:
        i = int(OPT['probe']); lo, hi = [int(x) for x in OPT.get('prole', '0:256').split(':')]
        a(f"""s_waitcnt vmcnt(0) lgkmcnt(0)
s_cmp_lg_u32 s{S_W}, {OPT.get('stw', 0)}
s_cbranch_scc1 L_end
s_memrealtime s[{S_ST+30}:{S_ST+31}]
s_waitcnt lgkmcnt(0)
s_sub_u32 s{T}, s{S_ST+2*i}, s{S_ST}
s_cmp_eq_u32 s{S_ST+2*i}, 0
s_cselect_b32 s{T}, 0, s{T}
s_cmp_lt_u32 s2, {lo}
s_cselect_b32 s{T}, 0, s{T}
s_cmp_ge_u32 s2, {hi}
s_cselect_b32 s{T}, 0, s{T}
s_lshl_b32 s{T}, s{T}, 2
s_add_u32 s{T}, s{T}, 5000
L_spin:
s_memrealtime s[{T+2}:{T+3}]
s_waitcnt lgkmcnt(0)
s_sub_u32 s{T+2}, s{T+2}, s{S_ST}
s_cmp_lt_u32 s{T+2}, s{T}
s_cbranch_scc1 L_spin""")
    elif STAMP:
        a(f"""s_waitcnt vmcnt(0) lgkmcnt(0)
s_cmp_lg_u32 s{S_W}, {OPT.get('stw', 0)}
s_cbranch_scc1 L_end
{CLK} s[{S_ST+30}:{S_ST+31}]
s_memtime s[98:99]
s_waitcnt lgkmcnt(0)
s_sub_u32 s98, s98, s96""")
        for i in range(16):
            a(f"v_mov_b32 v{16+i}, s{S_ST+2*i}")
        a(f"""v_mov_b32 v32, s98
s_lshl_b32 s{T}, s2, 7
s_add_u32 s{T}, s{T}, {WS_STAMP}
v_mov_b32 v1, 0
s_mov_b64 exec, 1""")
        for i in range(4):
            a(f"buffer_store_dwordx4 v[{16+4*i}:{19+4*i}], v1, {WS}, s{T} offen offset:{16*i}")
        a(f"buffer_store_dword v32, v1, {WS}, s{T} offen offset:64")
    a("L_end:\ns_endpgm")

def main():
    a = Asm()
    a.raw("; @launch grid=(256,1,1) block=(512,1,1) lds=163840")
    a.raw('.amdgcn_target "amdgcn-amd-amdhsa--gfx950"\n.text')
    prologue(a)
    phase_bc(a)
    phase_d(a)
    epilogue(a)
    a("L_owner:")
    phase_owner(a)
    a.raw(".p2align 4\nL_codeend:")
    out = a.text() + kd(NAME, 244, 102)
    path = [x for x in sys.argv[1:] if not x.startswith('--')][0]
    open(path, 'w').write(out)
main()
```

```python
import sys, struct
from asmlib import *

OPT = dict(la='12', nt='', cpf='1', umap='4', lfull='1', pack='0', ew='3')
for a_ in sys.argv[1:]:
    if a_.startswith('--'):
        k, _, v = a_[2:].partition('=')
        OPT[k] = v
STAMP = 'stamp' in OPT
NT = OPT['nt']
CLK = "s_memtime" if 'cyc' in OPT else "s_memrealtime"

NAME = "standalone__dit_adaln_block__diffusion_kernel"
D = 1152
SZ_X = 512*D*2; SZ_C = 2*D*2; SZ_WQKV = D*3*D*2; SZ_WO = D*D*2; SZ_WMOD = D*6*D*2
SZ_WS = 1 << 28
F_STAT = 0x0
F_H = 0x2000
F_L = 0x4000
F_U = F_L + 64*128
F_G = F_U + 144*128
F_QKV = 0xC000
EPOCH = 0x13000
WS_GATE = 0x14000
WS_H = 0x20000
WS_QKV = 0x140000
WS_L = 0x680000
WS_U = 0x550000
WS_PART = 0x4A0000
WS_STAMP = 0x700000
LOG2E = 0x3fb8aa3b

S_W, S_TAG, S_G, S_SLOT, S_TO, S_TK = 3, 4, 5, 6, 7, 8
S_X, S_C, S_WQKV, S_WO, S_WMOD, S_OUT, S_DBG, S_WS = 16, 18, 20, 22, 24, 26, 28, 30
R_A, R_B, R_C, R_WS = 32, 36, 40, 44
T = 48
S_ST = 64
WS = f"s[{R_WS}:{R_WS+3}]"
RA = f"s[{R_A}:{R_A+3}]"; RB = f"s[{R_B}:{R_B+3}]"; RC = f"s[{R_C}:{R_C+3}]"
vL16, vP16, vB0, vB1, vCH, vR8, vHF, vTok = 1, 2, 3, 4, 5, 6, 7, 8
vT0, vT1, vT2, vT3 = 9, 10, 11, 12
vTAG = 13
V0 = 16

L_MISC = 147456
L_SIL = L_MISC
L_RED = L_SIL + 4608
L_FIN = L_RED + 4096
L_ROLE = L_FIN + 4096
L_STC = L_ROLE + 16
NO = 5

def srd(a, r, ptr, size):
    a(f"""s_mov_b32 s{r}, s{ptr}
s_and_b32 s{r+1}, s{ptr+1}, 0xffff
s_mov_b32 s{r+2}, {hex(size)}
s_mov_b32 s{r+3}, 0x20000""")

def stamp(a, i):
    if STAMP:
        a(f"{CLK} s[{S_ST+2*i}:{S_ST+2*i+1}]")

def unpack(a, lo, hi, src):
    a(f"v_lshlrev_b32 v{lo}, 16, v{src}\nv_and_b32 v{hi}, 0xffff0000, v{src}")

def round_bf16(a, v):
    a(f"v_cvt_pk_bf16_f32 v{v}, v{v}, v{v}\nv_lshlrev_b32 v{v}, 16, v{v}")

HACK = [0]
def mfma(a, acc, A, B, first=False):
    if 'hack16' in OPT and not first:
        HACK[0] += 1
        o = 8*((HACK[0] >> 1) & 1)
        for j in range(2):
            a(f"v_mfma_f32_16x16x32_bf16 {vr(acc+o+4*j,4)}, {vr(A,4)}, {vr(B,4)}, {vr(acc+o+4*j,4)}")
        return
    c = "0" if first else vr(acc, 16)
    a(f"v_mfma_f32_32x32x16_bf16 {vr(acc,16)}, {vr(A,4)}, {vr(B,4)}, {c}")

def wrap_add(a, s, step, s_end, s_start):
    a(f"""s_add_u32 s{s}, s{s}, {step}
s_cmp_eq_u32 s{s}, s{s_end}
s_cselect_b32 s{s}, s{s_start}, s{s}""")

def mod9(a, dst, src, tmp):
    a(f"""s_mul_i32 s{tmp}, s{src}, 57
s_lshr_b32 s{tmp}, s{tmp}, 9
s_mul_i32 s{tmp}, s{tmp}, 9
s_sub_u32 s{dst}, s{src}, s{tmp}""")

def poll(a, vaddr, soff, vtmp):
    l = a.label("poll"); d = a.label("polld")
    a(f"""s_cmp_lg_u32 s{S_W}, 0
s_cbranch_scc1 {d}
{l}:
buffer_load_dword v{vtmp}, v{vaddr}, {WS}, {soff} offen sc1
s_waitcnt vmcnt(0)
v_cmp_ne_u32 vcc, s{S_TAG}, v{vtmp}
s_cbranch_vccz {d}
s_sleep {OPT.get('sleep', 2)}
s_sub_u32 s{S_TO}, s{S_TO}, 1
s_cmp_lg_u32 s{S_TO}, 0
s_cbranch_scc1 {l}
s_mov_b32 s{S_TO}, 1
{d}:
s_barrier""")

def gpoll(a, loads, tagregs):
    l = a.label("gp"); d = a.label("gpd")
    a(f"{l}:")
    loads()
    a(f"s_waitcnt vmcnt(0)\nv_cmp_ne_u32 vcc, s{S_TAG}, v{tagregs[0]}")
    for r in tagregs[1:]:
        a(f"v_cmp_ne_u32 s[{T+14}:{T+15}], s{S_TAG}, v{r}\ns_or_b64 vcc, vcc, s[{T+14}:{T+15}]")
    a(f"""s_cbranch_vccz {d}
s_sleep {OPT.get('gsleep', 2)}
s_sub_u32 s{S_TO}, s{S_TO}, 1
s_cmp_lg_u32 s{S_TO}, 0
s_cbranch_scc1 {l}
s_mov_b32 s{S_TO}, 1
{d}:""")

def raw_flag(a, soff):
    a(f"""v_mov_b32 v{vT3}, 0
s_mov_b64 exec, 1
buffer_store_dword v{vTAG}, v{vT3}, {WS}, {soff} offen sc1
s_mov_b64 exec, -1""")

def set_flag(a, soff, younger=0):
    d = a.label("fl")
    a(f"""s_waitcnt vmcnt({younger})
s_barrier
s_cmp_lg_u32 s{S_W}, 0
s_cbranch_scc1 {d}""")
    raw_flag(a, soff)
    a(f"{d}:")

def trreads(a, wf, b0, b1, off):
    a(f"""ds_read_b64_tr_b16 {vr(wf,2)}, v{b0} offset:{off}
ds_read_b64_tr_b16 {vr(wf+2,2)}, v{b0} offset:{off+512}
ds_read_b64_tr_b16 {vr(wf+4,2)}, v{b1} offset:{off}
ds_read_b64_tr_b16 {vr(wf+6,2)}, v{b1} offset:{off+512}""")

def dma_tile(a, srdname, vD, pitch, s_rot, flags, n0=0, n1=18):
    sN, sO = T+10, T+11
    if s_rot is None:
        a(f"s_add_u32 s{sN}, s{S_W}, {8*n0}")
    else:
        a(f"s_lshl_b32 s{sN}, s{s_rot}, 3\ns_add_u32 s{sN}, s{sN}, s{S_W}")
    for n in range(n0, n1):
        a(f"""s_lshl_b32 m0, s{sN}, 10
s_mul_i32 s{sO}, s{sN}, {8*pitch}
buffer_load_dwordx4 v{vD}, {srdname}, s{sO} offen {flags} lds""")
        if n < n1-1:
            a(f"s_add_u32 s{sN}, s{sN}, 8")
            if s_rot is not None:
                a(f"""s_sub_u32 s{sO}, s{sN}, 144
s_cmp_ge_u32 s{sN}, 144
s_cselect_b32 s{sN}, s{sO}, s{sN}""")

def wave_sum(a, v, sdst):
    for m in ("quad_perm:[1,0,3,2]", "quad_perm:[2,3,0,1]", "row_half_mirror", "row_mirror"):
        a(f"s_nop 1\nv_add_f32_dpp v{v}, v{v}, v{v} {m} row_mask:0xf bank_mask:0xf")
    a(f"s_nop 1\nv_add_f32_dpp v{v}, v{v}, v{v} row_bcast:15 row_mask:0xa bank_mask:0xf")
    a(f"s_nop 1\nv_add_f32_dpp v{v}, v{v}, v{v} row_bcast:31 row_mask:0xc bank_mask:0xf")
    a(f"s_nop 1\nv_readlane_b32 s{sdst}, v{v}, 63\ns_nop 1")

def silu8(a, f, t):
    for i in range(8):
        a(f"v_mul_f32 v{t+i}, 0xbfb8aa3b, v{f+i}")
    for i in range(8):
        a(f"v_exp_f32 v{t+i}, v{t+i}")
    for i in range(8):
        a(f"v_add_f32 v{t+i}, 1.0, v{t+i}")
    for i in range(8):
        a(f"v_rcp_f32 v{t+i}, v{t+i}")
    for i in range(8):
        a(f"v_mul_f32 v{f+i}, v{f+i}, v{t+i}")

def lane_consts(a):
    a(f"""v_lshrrev_b32 v{vR8}, 3, v0
v_and_b32 v{vP16}, 0x33, v0
v_and_b32 v{vT0}, 4, v0
v_lshl_or_b32 v{vP16}, v{vT0}, 1, v{vP16}
v_and_b32 v{vT0}, 8, v0
v_lshrrev_b32 v{vT0}, 1, v{vT0}
v_or_b32 v{vP16}, v{vP16}, v{vT0}
v_lshlrev_b32 v{vP16}, 4, v{vP16}
v_lshrrev_b32 v{vT0}, 2, v0
v_and_b32 v{vT0}, 4, v{vT0}
v_and_b32 v{vCH}, 7, v0
v_xor_b32 v{vCH}, v{vCH}, v{vT0}
v_lshlrev_b32 v{vB0}, 10, v{vHF}
v_and_b32 v{vT0}, 12, v0
v_lshl_or_b32 v{vB0}, v{vT0}, 5, v{vB0}
v_and_b32 v{vT0}, 8, v0
v_lshl_or_b32 v{vB0}, v{vT0}, 3, v{vB0}
v_and_b32 v{vT0}, 16, v0
v_lshl_or_b32 v{vB0}, v{vT0}, 1, v{vB0}
v_and_b32 v{vT0}, 1, v0
v_lshl_or_b32 v{vB0}, v{vT0}, 4, v{vB0}
v_and_b32 v{vT0}, 2, v0
v_lshl_or_b32 v{vB0}, v{vT0}, 2, v{vB0}
v_xor_b32 v{vB1}, 64, v{vB0}""")

def get_tag(a):
    a(f"""s_waitcnt lgkmcnt(0)
s_mul_i32 s{S_TAG}, s{S_TAG}, 1664525
s_add_u32 s{S_TAG}, s{S_TAG}, 1013904223
v_mov_b32 v{vTAG}, s{S_TAG}""")

def wpoll(a, vaddr, soff, vtmp):
    gpoll(a, lambda: a(f"buffer_load_dword v{vtmp}, v{vaddr}, {WS}, {soff} offen sc1"), [vtmp])

S_BCT, S_BRT = 11, 12
vDW = 15
R0, R1 = [int(x) for x in OPT.get('wrot', '36,28').split(',')]
assert R0 + 3*R1 + 7 < 144
def b_setup(a):
    srd(a, R_B, S_WQKV, SZ_WQKV)
    a(f"""s_mul_i32 s{S_BCT}, s{S_G}, 27
s_add_u32 s{S_BCT}, s{S_BCT}, s{S_SLOT}
s_sub_u32 s{S_BCT}, s{S_BCT}, {NO}
s_and_b32 s{S_BRT}, s{S_BCT}, 3
s_lshr_b32 s{S_BCT}, s{S_BCT}, 2
s_mul_i32 s13, s{S_BRT}, {R1}
s_add_u32 s{T+14}, s13, {R0}
s_cmp_lg_u32 s{S_BRT}, 0
s_cselect_b32 s13, s{T+14}, s13
s_add_u32 s13, s13, s{S_W}
v_lshlrev_b32 v{vDW}, 4, v{vCH}
v_mul_u32_u24 v{vT0}, 6912, v{vR8}
s_lshl_b32 s{T+14}, s{S_BCT}, 7
v_add3_u32 v{vDW}, v{vDW}, v{vT0}, s{T+14}""")

THR = f"s_waitcnt vmcnt({OPT['thr']})" if 'thr' in OPT else ''
THRO = f"s_waitcnt vmcnt({OPT['thro']})" if 'thro' in OPT else ''
def w_dma(a, n):
    for i in range(n):
        a(f"""s_lshl_b32 m0, s13, 10
s_mul_i32 s{T+14}, s13, {8*6912}
buffer_load_dwordx4 v{vDW}, {RB}, s{T+14} offen lds
{THR}
s_add_u32 s13, s13, 8
s_sub_u32 s{T+14}, s13, 144
s_cmp_ge_u32 s13, 144
s_cselect_b32 s13, s{T+14}, s13""")

EW = int(OPT.get('ew', 0))
def prologue(a):
    a.raw(f".globl {NAME}\n.p2align 8\n.type {NAME},@function\n{NAME}:")
    a(f"""s_cmp_ge_u32 s2, 256
s_cbranch_scc1 L_end
s_load_dwordx16 s[16:31], s[0:1], 0""")
    if STAMP:
        a(f"{CLK} s[{S_ST}:{S_ST+1}]\ns_memtime s[96:97]")
        for i in range(1, 16):
            a(f"s_mov_b32 s{S_ST+2*i}, 0")
    a(f"""v_lshrrev_b32 v1, 6, v0
v_and_b32 v0, 63, v0
s_and_b32 s{S_G}, s2, 7
v_readfirstlane_b32 s{S_W}, v1
s_lshr_b32 s{S_SLOT}, s2, 3
s_mov_b32 s{S_TO}, 0x40000
v_lshlrev_b32 v{vL16}, 4, v0
v_lshrrev_b32 v{vHF}, 5, v0
v_and_b32 v{vTok}, 31, v0
s_mov_b32 s{S_TK}, s2""")
    if OPT.get('cpf') == '1':
        a(f"""s_cmp_lg_u32 s{S_W}, 7
s_cbranch_scc1 L_nocpf
s_getpc_b64 s[{T}:{T+1}]
L_pc:
s_sub_u32 s{T}, s{T}, L_pc-{NAME}
s_subb_u32 s{T+1}, s{T+1}, 0
s_lshl_b32 s{T+2}, s{S_SLOT}, 10
v_add_u32 v{vT0}, s{T+2}, v{vL16}
v_min_u32 v{vT0}, L_codeend-{NAME}-16, v{vT0}
global_load_dwordx4 v[240:243], v{vT0}, s[{T}:{T+1}]
L_nocpf:""")
    if OPT.get('lead', '1') == '1':
        a(f"""s_mul_i32 s{T}, s{S_G}, 27
s_add_u32 s{T}, s{T}, s{S_SLOT}
s_sub_u32 s{T}, s{T}, {NO}
s_lshr_b32 s{T+1}, s{T}, 2
s_sub_u32 s{T+2}, s{T}, s{T+1}
s_add_u32 s{T+2}, s{T+2}, 93
s_and_b32 s{T+3}, s{T+1}, 1
s_mul_i32 s{T+3}, s{T+3}, 27
s_lshr_b32 s{T+1}, s{T+1}, 1
s_add_u32 s{T+1}, s{T+1}, s{T+3}
s_add_u32 s{T+1}, s{T+1}, 40
s_and_b32 s{T}, s{T}, 3
s_cselect_b32 s{T+1}, s{T+2}, s{T+1}
s_cmp_ge_u32 s2, 40
s_cselect_b32 s{S_TK}, s{T+1}, s2""")
    sP, sCg, sKs, sOff, sRow = T, T+1, T+2, T+3, T+4
    a(f"""s_cmp_ge_u32 s{S_TK}, 64
s_cbranch_scc1 L_s0_nst""")
    vRW = 16
    a(f"""s_lshl_b32 s{sOff}, s{S_TK}, 3
s_add_u32 s{sOff}, s{sOff}, s{S_W}
s_mul_i32 s{sOff}, s{sOff}, 2304
v_mov_b32 v{vRW+8}, 0
v_mov_b32 v{vRW+9}, 0
v_mov_b32 v{vRW+10}, 0
v_mov_b32 v{vRW+11}, 0
s_waitcnt lgkmcnt(0)""")
    srd(a, R_C, S_X, SZ_X)
    a(f"""buffer_load_dwordx4 {vr(vRW,4)}, v{vL16}, {RC}, s{sOff} offen
buffer_load_dwordx4 {vr(vRW+4,4)}, v{vL16}, {RC}, s{sOff} offen offset:1024
s_mov_b64 exec, 0xffff
buffer_load_dwordx4 {vr(vRW+8,4)}, v{vL16}, {RC}, s{sOff} offen offset:2048
s_mov_b64 exec, -1
s_load_dword s{S_TAG}, s[{S_WS}:{S_WS+1}], {EPOCH}""")
    a(f"""s_branch L_s0_stats
L_s0_nst:
s_cmp_lt_u32 s{S_TK}, 94
s_cbranch_scc1 L_s0_none""")
    vW = 16
    vC = 32
    vSc = 36
    vTm = 44
    vAc = 52
    a(f"""s_sub_u32 s{sP}, s{S_TK}, 94
s_mul_i32 s{sKs}, s{sP}, 57
s_lshr_b32 s{sKs}, s{sKs}, 9
s_mul_i32 s{sCg}, s{sKs}, 9
s_sub_u32 s{sCg}, s{sP}, s{sCg}
s_lshl_b32 s{sRow}, s{sKs}, 3
s_add_u32 s{sRow}, s{sRow}, s{S_W}
s_lshl_b32 s{sRow}, s{sRow}, 3
v_and_b32 v{vT0}, 15, v0
v_lshlrev_b32 v{vT0}, 4, v{vT0}
v_bfe_u32 v{vT1}, v0, 4, 1
v_mul_u32_u24 v{vT1}, 2304, v{vT1}
v_mul_u32_u24 v{vT2}, {4*13824}, v{vHF}
v_add3_u32 v{vT0}, v{vT0}, v{vT1}, v{vT2}
v_lshlrev_b32 v{vT1}, 3, v{vHF}
s_lshl_b32 s{T+5}, s{sRow}, 1
s_mul_i32 s{sOff}, s{sRow}, 13824
s_lshl_b32 s{sRow}, s{sCg}, 8
s_add_u32 s{sOff}, s{sOff}, s{sRow}
s_waitcnt lgkmcnt(0)""")
    srd(a, R_A, S_WMOD, SZ_WMOD)
    srd(a, R_C, S_C, SZ_C)
    a(f"""buffer_load_dwordx2 {vr(vC,2)}, v{vT1}, {RC}, s{T+5} offen
buffer_load_dwordx2 {vr(vC+2,2)}, v{vT1}, {RC}, s{T+5} offen offset:2304""")
    for n in range(4):
        a(f"buffer_load_dwordx4 {vr(vW+4*n,4)}, v{vT0}, {RA}, s{sOff} offen")
        if n < 3:
            a(f"s_add_u32 s{sOff}, s{sOff}, 13824")
    a(f"s_load_dword s{S_TAG}, s[{S_WS}:{S_WS+1}], {EPOCH}")
    srd(a, R_WS, S_WS, SZ_WS)
    lane_consts(a)
    b_setup(a)
    if EW:
        a("s_barrier")
        w_dma(a, EW)
    a(f"s_waitcnt vmcnt({4+EW})")
    for i in range(4):
        unpack(a, vSc+2*i, vSc+2*i+1, vC+i)
    silu8(a, vSc, vTm)
    for i in range(4):
        a(f"v_cvt_pk_bf16_f32 v{vC+i}, v{vSc+2*i}, v{vSc+2*i+1}")
    for i in range(4):
        unpack(a, vSc+2*i, vSc+2*i+1, vC+i)
    a(f"""s_lshl_b32 s{sOff}, s{S_W}, 11
s_add_u32 s{sOff}, s{sOff}, {L_MISC}
v_lshlrev_b32 v{vT2}, 5, v0
v_add_u32 v{vT2}, s{sOff}, v{vT2}
s_lshr_b32 s{sOff}, s{S_W}, 1
s_lshl_b32 s{sOff}, s{sOff}, 10
s_and_b32 s{sRow}, s{S_W}, 1
s_lshl_b32 s{sP}, s{sRow}, 8
s_add_u32 s{sOff}, s{sOff}, s{sP}
s_add_u32 s{sOff}, s{sOff}, {L_MISC}
v_lshlrev_b32 v{vT3}, 3, v{vTok}
v_lshl_add_u32 v{vT3}, v{vHF}, 9, v{vT3}
v_add_u32 v{vT3}, s{sOff}, v{vT3}
s_lshl_b32 s{sP}, s{sCg}, 1
s_add_u32 s{sP}, s{sP}, s{sRow}
s_lshl_b32 s{sP}, s{sP}, 1
s_lshr_b32 s{sOff}, s{S_W}, 1
s_add_u32 s{sP}, s{sP}, s{sOff}
s_mul_i32 s{sP}, s{sP}, 18
s_add_u32 s{sP}, s{sP}, s{sKs}
s_lshl_b32 s{sP}, s{sP}, 10
s_add_u32 s{sP}, s{sP}, {WS_PART}
v_and_b32 v{vT0}, 28, v0
v_lshlrev_b32 v{vT0}, 5, v{vT0}
v_lshl_add_u32 v{vT0}, v{vHF}, 6, v{vT0}
v_and_b32 v{vT1}, 3, v0
v_lshl_add_u32 v{vT0}, v{vT1}, 4, v{vT0}""")
    get_tag(a)
    for n in range(4):
        a(f"s_waitcnt vmcnt({3-n+EW})")
        if n == 3: stamp(a, 8)
        for i in range(4):
            unpack(a, vTm+2*i, vTm+2*i+1, vW+4*n+i)
        for b in range(2):
            for j in range(8):
                op = "v_mul_f32" if n == 0 else "v_fmac_f32"
                a(f"{op} v{vAc+8*b+j}, v{vTm+j}, v{vSc+4*b+n}")
    a("s_nop 1")
    for j in range(8):
        a(f"v_permlane32_swap_b32 v{vAc+j}, v{vAc+8+j}")
    for j in range(8):
        a(f"v_add_f32 v{vAc+j}, v{vAc+j}, v{vAc+8+j}")
    lsk = a.label("pubsk")
    a(f"""ds_write_b128 v{vT2}, {vr(vAc,4)}
ds_write_b128 v{vT2}, {vr(vAc+4,4)} offset:16
s_waitcnt lgkmcnt(0)
s_barrier
s_cmp_ge_u32 s{S_W}, 4
s_cbranch_scc1 {lsk}""")
    for w in range(8):
        a(f"ds_read_b64 {vr(vW+2*w,2)}, v{vT3} offset:{w*2048}")
    a(f"""v_mov_b32 v{vAc+1}, v{vTAG}
v_mov_b32 v{vAc+3}, v{vTAG}
s_waitcnt lgkmcnt(4)
v_add_f32 v{vW}, v{vW}, v{vW+2}
v_add_f32 v{vW+1}, v{vW+1}, v{vW+3}
v_add_f32 v{vW+4}, v{vW+4}, v{vW+6}
v_add_f32 v{vW+5}, v{vW+5}, v{vW+7}
s_waitcnt lgkmcnt(0)
v_add_f32 v{vW+8}, v{vW+8}, v{vW+10}
v_add_f32 v{vW+9}, v{vW+9}, v{vW+11}
v_add_f32 v{vW+12}, v{vW+12}, v{vW+14}
v_add_f32 v{vW+13}, v{vW+13}, v{vW+15}
v_add_f32 v{vW}, v{vW}, v{vW+4}
v_add_f32 v{vW+1}, v{vW+1}, v{vW+5}
v_add_f32 v{vW+8}, v{vW+8}, v{vW+12}
v_add_f32 v{vW+9}, v{vW+9}, v{vW+13}
v_add_f32 v{vAc}, v{vW}, v{vW+8}
v_add_f32 v{vAc+2}, v{vW+1}, v{vW+9}
buffer_store_dwordx4 {vr(vAc,4)}, v{vT0}, {WS}, s{sP} offen sc1
{lsk}:""")
    stamp(a, 9)
    if OPT.get('pack') == '1':
        a("s_waitcnt vmcnt(0)")
    if 'nopb' not in OPT:
        a("s_barrier")
    w_dma(a, 18-EW)
    a("s_branch L_b")
    a("L_s0_stats:")
    srd(a, R_WS, S_WS, SZ_WS)
    lane_consts(a)
    a(f"""s_barrier
s_min_u32 s{T+12}, s2, 35
s_and_b32 s{T+13}, s{T+12}, 1
s_lshr_b32 s{T+12}, s{T+12}, 1
s_lshl_b32 s{T+13}, s{T+13}, 3
s_add_u32 s{T+13}, s{T+13}, s{S_W}
v_mul_u32_u24 v{vT0}, 2304, v{vR8}
v_and_b32 v{vT1}, 7, v0
v_xor_b32 v{vT1}, v{vT1}, v{vR8}
v_lshl_add_u32 v{vT0}, v{vT1}, 4, v{vT0}
s_mul_i32 s{T+13}, s{T+13}, {32*2304}
s_lshl_b32 s{T+12}, s{T+12}, 7
s_add_u32 s{T+13}, s{T+13}, s{T+12}
s_lshl_b32 m0, s{S_W}, 12""")
    lnx = a.label("nox"); ljx = a.label("jx")
    a(f"s_cmp_ge_u32 s2, 36\ns_cbranch_scc1 {lnx}")
    for q in range(4):
        a(f"buffer_load_dwordx4 v{vT0}, {RC}, s{T+13} offen lds")
        if q < 3:
            a(f"s_add_u32 s{T+13}, s{T+13}, {8*2304}\ns_add_u32 m0, m0, 1024\ns_nop 0")
    get_tag(a)
    a(f"s_waitcnt vmcnt(4)\ns_branch {ljx}\n{lnx}:")
    get_tag(a)
    a(f"s_waitcnt vmcnt(0)\n{ljx}:")
    stamp(a, 8)
    s1, s2_, q1, q2 = 32, 33, 34, 35
    a(f"s_mov_b32 s{T+12}, 0x3f803f80")
    for i in range(0, 12, 2):
        c = lambda r: "0" if i == 0 else f"v{r}"
        a(f"""v_dot2_f32_bf16 v{s1}, v{vRW+i}, s{T+12}, {c(s1)}
v_dot2_f32_bf16 v{q1}, v{vRW+i}, v{vRW+i}, {c(q1)}
v_dot2_f32_bf16 v{s2_}, v{vRW+i+1}, s{T+12}, {c(s2_)}
v_dot2_f32_bf16 v{q2}, v{vRW+i+1}, v{vRW+i+1}, {c(q2)}""")
    a(f"""s_nop 2
v_add_f32 v{s1}, v{s1}, v{s2_}
v_add_f32 v{q1}, v{q1}, v{q2}""")
    for m in ("quad_perm:[1,0,3,2] row_mask:0xf", "quad_perm:[2,3,0,1] row_mask:0xf", "row_half_mirror row_mask:0xf", "row_mirror row_mask:0xf", "row_bcast:15 row_mask:0xa", "row_bcast:31 row_mask:0xc"):
        a(f"s_nop 0\nv_add_f32_dpp v{s1}, v{s1}, v{s1} {m} bank_mask:0xf\nv_add_f32_dpp v{q1}, v{q1}, v{q1} {m} bank_mask:0xf")
    g = 36
    a(f"""v_mul_f32 v{g}, 0x3a638e39, v{s1}
v_mul_f32 v{g+2}, 0x3a638e39, v{q1}
v_fma_f32 v{g+2}, -v{g}, v{g}, v{g+2}
v_max_f32 v{g+2}, 0, v{g+2}""")
    round_bf16(a, g+2)
    a(f"v_add_f32 v{g+2}, 0x3727c5ac, v{g+2}")
    round_bf16(a, g+2)
    a(f"v_sqrt_f32 v{g+2}, v{g+2}")
    round_bf16(a, g)
    round_bf16(a, g+2)
    lsk = a.label("stsk")
    a(f"""v_rcp_f32 v{g+2}, v{g+2}
v_mov_b32 v{g+1}, v{vTAG}
v_mov_b32 v{g+3}, v{vTAG}
s_lshl_b32 s{T+12}, s{S_W}, 4
s_add_u32 s{T+12}, s{T+12}, {L_STC}
v_mov_b32 v{vT0}, s{T+12}
s_mov_b32 exec_lo, 0
s_brev_b32 exec_hi, 1
ds_write_b128 v{vT0}, {vr(g,4)}
s_mov_b64 exec, -1
s_lshl_b32 s{T+12}, s{S_TK}, 7
s_add_u32 s{T+12}, s{T+12}, {F_STAT}
v_add_u32 v{vT0}, {L_STC}, v{vL16}
s_waitcnt lgkmcnt(0)
s_barrier
s_cmp_lg_u32 s{S_W}, 0
s_cbranch_scc1 {lsk}
s_mov_b64 exec, 0xff
ds_read_b128 {vr(g,4)}, v{vT0}
s_waitcnt lgkmcnt(0)
buffer_store_dwordx4 {vr(g,4)}, v{vL16}, {WS}, s{T+12} offen sc1
s_mov_b64 exec, -1
{lsk}:""")
    stamp(a, 9)
    a(f"s_cmp_lt_u32 s{S_SLOT}, {NO}\ns_cbranch_scc1 L_owner")
    if 'nopb' not in OPT:
        a("s_barrier")
    a("s_branch L_s0_w")
    a("L_s0_none:")
    a(f"s_waitcnt lgkmcnt(0)\ns_load_dword s{S_TAG}, s[{S_WS}:{S_WS+1}], {EPOCH}")
    srd(a, R_WS, S_WS, SZ_WS)
    lane_consts(a)
    get_tag(a)
    if 'cw' in OPT:
        a("s_waitcnt vmcnt(0)")
    a("L_s0_w:")
    b_setup(a)
    w_dma(a, 18)

VOX = 96

S_UCT, S_UTB = 9, 10
vDU = 14
KE = int(OPT.get('ke', 12))
def wo_dma(a, n0, n1):
    a(f"s_add_u32 s{T+10}, s{S_W}, {4*n0-4}")
    for n in range(n0, n1):
        a(f"""s_lshl_b32 m0, s{T+10}, 10
s_mul_i32 s{T+11}, s{T+10}, {8*2304}
buffer_load_dwordx4 v{vDU}, {RB}, s{T+11} offen lds""")
        if n < n1-1:
            a(f"s_add_u32 s{T+10}, s{T+10}, 4")

def gemm_loop(a, nsteps, LA, RING, vAcc, vWF, vH, vA0, vA1, vaddr, sH, lds_first, w_is_a, pre=None, rot=None, bar_at=None):
    WA = 2
    state = dict(issued=0)
    if rot:
        sR, sHs, sHe, sLo, sZ, sLe, vC0, vC1 = rot
        a(f"""s_mov_b32 s{sHs}, s{sH}
s_add_u32 s{sHe}, s{sH}, {nsteps*1024}
s_lshl_b32 s{sLo}, s{sR}, 12
s_add_u32 s{sH}, s{sH}, s{sLo}
s_lshl_b32 s{sLo}, s{sR}, 13
s_mov_b32 s{sZ}, 0
s_mov_b32 s{sLe}, {nsteps*2048}""")
    def hload():
        s = state['issued']
        a(f"buffer_load_dwordx4 {vr(vH+4*(s % RING),4)}, v{vaddr}, {WS}, s{sH} offen offset:{(s&3)*1024} sc1")
        if (s & 3) == 3 and s < nsteps-1:
            if rot: wrap_add(a, sH, 4096, sHe, sHs)
            else: a(f"s_add_u32 s{sH}, s{sH}, 4096")
        state['issued'] += 1
    def wread(s):
        if rot:
            if (s & 3) == 0:
                a(f"v_add_u32 v{vC0}, s{sLo}, v{vA0}\nv_add_u32 v{vC1}, s{sLo}, v{vA1}")
                wrap_add(a, sLo, 8192, sLe, sZ)
            trreads(a, vWF + 8*(s & 3), vC0, vC1, (s & 3)*2048)
            return
        if s and (s & 31) == 0:
            a(f"v_add_u32 v{vA0}, 0x10000, v{vA0}\nv_add_u32 v{vA1}, 0x10000, v{vA1}")
        trreads(a, vWF + 8*(s & 3), vA0, vA1, (s & 31)*2048)
    if lds_first:
        for s in range(WA): wread(s)
    for s in range(LA): hload()
    if pre: pre()
    if not lds_first:
        for s in range(WA): wread(s)
    for s in range(nsteps):
        lg = 4*min(WA-1, nsteps-1 - s)
        a(f"s_waitcnt vmcnt({state['issued'] - s - 1}) lgkmcnt({lg})")
        if s == 0 and lds_first: stamp(a, 4)
        h = vH+4*(s % RING); w0 = vWF+8*(s & 3)
        mfma(a, vAcc, *((w0, h) if w_is_a else (h, w0)), s == 0)
        if s + WA < nsteps:
            wread(s + WA)
        mfma(a, vAcc+16, *((w0+4, h) if w_is_a else (h, w0+4)), s == 0)
        if state['issued'] < nsteps:
            hload()
        if bar_at is not None and s == bar_at:
            a("s_barrier")

SZ = int(OPT['sz']) if 'sz' in OPT else None
UM = int(OPT.get('umap', 2)); UML = UM.bit_length()-1
def phase_bc(a):
    sTb, sOff, sH, sF = T+1, T+4, T+5, T+6
    vA0, vA1 = V0+1, V0+2
    vAcc = 20
    vWF = 52
    vH = 84
    a("L_b:")
    stamp(a, 1)
    srd(a, R_B, S_WO, SZ_WO)
    a(f"""s_sub_u32 s{S_SLOT}, s{S_SLOT}, {NO}
s_and_b32 s{T+14}, s{S_G}, {UM-1}
s_mul_i32 s{T+14}, s{T+14}, 18
s_add_u32 s{T+14}, s{T+14}, s{S_SLOT}
s_lshr_b32 s{S_UCT}, s{T+14}, {UML}
s_and_b32 s{T+14}, s{T+14}, {UM-1}
s_lshr_b32 s{S_UTB}, s{S_G}, {UML}
s_lshl_b32 s{S_UTB}, s{S_UTB}, {UML}
s_add_u32 s{S_UTB}, s{S_UTB}, s{T+14}
s_lshl_b32 s{S_UTB}, s{S_UTB}, 1
s_and_b32 s{T+14}, s{S_W}, 1
s_add_u32 s{S_UTB}, s{S_UTB}, s{T+14}
v_lshlrev_b32 v{vDU}, 4, v{vCH}
v_mul_u32_u24 v{vT0}, 2304, v{vR8}
s_lshl_b32 s{T+14}, s{S_UCT}, 7
v_add3_u32 v{vDU}, v{vDU}, v{vT0}, s{T+14}
s_lshl_b32 s{sTb}, s{S_BRT}, 2
s_and_b32 s{sOff}, s{S_W}, 3
s_add_u32 s{sTb}, s{sTb}, s{sOff}
s_mul_i32 s{sH}, s{sTb}, {72*1024}
s_add_u32 s{sH}, s{sH}, {WS_H}
v_mov_b32 v{vA0}, v{vB0}
v_mov_b32 v{vA1}, v{vB1}
v_min_u32 v{vT0}, 17, v0
v_lshlrev_b32 v{vT0}, 7, v{vT0}
s_lshr_b32 s{sOff}, s{S_BRT}, 1
s_mul_i32 s{sOff}, s{sOff}, {18*128}
s_add_u32 s{sOff}, s{sOff}, {F_H}
s_mul_i32 s{sF}, s{S_BRT}, 54
s_add_u32 s{sF}, s{sF}, s{S_BCT}
s_lshl_b32 s{sF}, s{sF}, 7
s_add_u32 s{sF}, s{sF}, {F_QKV}
s_waitcnt vmcnt(0)""")
    a("s_barrier")
    stamp(a, 2)
    a(f"s_cmp_ge_u32 s{S_W}, 4\ns_cbranch_scc1 L_ld")
    HPWG = OPT.get('hp', 'w') == 'wg'
    if HPWG:
        poll(a, vT0, f"s{sOff}", vT1)
    else:
        wpoll(a, vT0, f"s{sOff}", vT1)
    stamp(a, 3)
    LA = int(OPT['la'])
    gemm_loop(a, 72, LA, LA+4, vAcc, vWF, vH, vA0, vA1, vL16, sH, True, True, bar_at=SZ)
    stamp(a, 5)
    a(f"""s_mul_i32 s{sH}, s{sTb}, {216*1024}
s_lshl_b32 s{sOff}, s{S_BCT}, 12
s_add_u32 s{sH}, s{sH}, s{sOff}
s_add_u32 s{sH}, s{sH}, {WS_QKV}
s_nop 7""")
    for u in range(4):
        if u == 2:
            a("s_nop 1")
        for r in range(4*u, 4*u+4):
            a(f"v_cvt_pk_bf16_f32 v{vWF+r}, v{vAcc+2*r}, v{vAcc+2*r+1}")
        a(f"buffer_store_dwordx4 {vr(vWF+4*u,4)}, v{vL16}, {WS}, s{sH} offen offset:{1024*u} sc1")
    a("s_barrier")
    stamp(a, 6)
    sKh = T+2
    a(f"""s_lshr_b32 s{sKh}, s{S_W}, 1
s_mul_i32 s{sH}, s{S_UTB}, {216*1024}
s_mul_i32 s{sOff}, s{sKh}, {36*1024}
s_add_u32 s{sH}, s{sH}, s{sOff}
s_add_u32 s{sH}, s{sH}, {WS_QKV + 144*1024}
s_mul_i32 s{sOff}, s{sKh}, {576*128}
v_add_u32 v{vA0}, s{sOff}, v{vB0}
v_add_u32 v{vA1}, s{sOff}, v{vB1}
v_min_u32 v{vT0}, 8, v0
v_lshlrev_b32 v{vT0}, 7, v{vT0}
s_lshr_b32 s{T+7}, s{S_UTB}, 2
s_mul_i32 s{T+7}, s{T+7}, {54*128}
s_mul_i32 s{sOff}, s{sKh}, {9*128}
s_add_u32 s{T+7}, s{T+7}, s{sOff}
s_add_u32 s{T+7}, s{T+7}, {F_QKV + 36*128}""")
    set_flag(a, f"s{sF}")
    stamp(a, 7)
    a(f"s_cmp_ge_u32 s{S_SLOT}, 18\ns_cbranch_scc1 L_c_notu")
    if 'udelay' in OPT:
        a(f"s_sleep {OPT['udelay']}")
    UROT = int(OPT.get('urot', 0))
    if UROT:
        a(f"s_mul_i32 s{T+8}, s{S_UCT}, {UROT}")
        mod9(a, T+8, T+8, T+9)
    wpoll(a, vT0, f"s{T+7}", vT1)
    stamp(a, 12)
    LA = int(OPT.get('lau', 12))
    gemm_loop(a, 36, LA, min(36, LA+4), vAcc, vWF, vH, vA0, vA1, vP16, sH, False, False, pre=lambda: (a("s_barrier"), stamp(a, 11)),
              rot=(T+8, T+9, T+10, T+11, T+12, T+13, V0, V0+3) if UROT else None)
    stamp(a, 13)
    lk1 = a.label("kh1"); lj = a.label("j")
    a(f"""s_lshl_b32 s{sOff}, s{S_W}, 12
s_add_u32 s{sOff}, s{sOff}, {L_MISC}
v_add_u32 v{vT0}, s{sOff}, v{vL16}
v_xor_b32 v{vT1}, {2*4096}, v{vT0}
s_lshr_b32 s{sH}, s{S_UTB}, 3
s_mul_i32 s{sF}, s{sH}, 18
s_add_u32 s{sF}, s{sF}, s{S_UCT}
s_lshl_b32 s{sH}, s{sF}, 1
s_add_u32 s{sH}, s{sH}, s{sKh}
s_lshl_b32 s{sH}, s{sH}, 3
s_and_b32 s{sOff}, s{S_UTB}, 7
s_add_u32 s{sH}, s{sH}, s{sOff}
s_lshl_b32 s{sH}, s{sH}, 11
s_add_u32 s{sH}, s{sH}, {WS_U}
s_lshl_b32 s{sF}, s{sF}, 2
s_bfe_u32 s{sOff}, s{S_UTB}, 0x20001
s_add_u32 s{sF}, s{sF}, s{sOff}
s_lshl_b32 s{sF}, s{sF}, 7
s_add_u32 s{sF}, s{sF}, {F_U}
s_cmp_lg_u32 s{sKh}, 0
s_cbranch_scc1 {lk1}""")
    for q in range(4):
        a(f"ds_write_b128 v{vT0}, {vr(vAcc+16+4*q,4)} offset:{q*1024}")
    a(f"s_branch {lj}\n{lk1}:")
    for q in range(4):
        a(f"ds_write_b128 v{vT0}, {vr(vAcc+4*q,4)} offset:{q*1024}")
    for r in range(16):
        a(f"v_mov_b32 v{vAcc+r}, v{vAcc+16+r}")
    a(f"{lj}:\ns_waitcnt lgkmcnt(0)\ns_barrier")
    for q in range(4):
        a(f"ds_read_b128 {vr(vWF+4*q,4)}, v{vT1} offset:{q*1024}")
    for u in range(2):
        a(f"s_waitcnt lgkmcnt({2-2*u})")
        for r in range(8*u, 8*u+8):
            a(f"v_add_f32 v{vAcc+r}, v{vAcc+r}, v{vWF+r}")
        for r in range(4*u, 4*u+4):
            a(f"v_cvt_pk_bf16_f32 v{vWF+16+r}, v{vAcc+2*r}, v{vAcc+2*r+1}")
        a(f"buffer_store_dwordx4 {vr(vWF+16+4*u,4)}, v{vL16}, {WS}, s{sH} offen offset:{1024*u} sc1")
    set_flag(a, f"s{sF}")
    a("s_branch L_c_done")
    lnu = a.label("ldnu")
    vWo = 20
    NE = int(OPT.get('ne', 18))
    a("L_ld:")
    if 'tlb' in OPT:
        sh = int(OPT['tlb'])
        lt = a.label("tlb")
        srd(a, R_A, S_OUT, SZ_X)
        srd(a, R_C, S_WS, 0x700000)
        a(f"s_cmp_lg_u32 s{S_W}, 7\ns_cbranch_scc1 {lt}\nv_lshlrev_b32 v{vT2}, {sh}, v0\nv_add_u32 v{vT2}, {(1<<sh)-128}, v{vT2}")
        a(f"buffer_load_dword v236, v{vT2}, {RA}, 0 offen")
        for off in range(0, 0x700000, 64 << sh):
            a(f"v_add_u32 v{vT1}, {off}, v{vT2}\nbuffer_load_dword v237, v{vT1}, {RC}, 0 offen sc1")
        a(f"{lt}:")
    if SZ is not None:
        a("s_barrier")
    a(f"""s_cmp_ge_u32 s{S_SLOT}, 18
s_cbranch_scc1 {lnu}
s_sub_u32 s{T+10}, s{S_W}, 4
s_lshl_b32 s{T+11}, s{T+10}, 10
v_add_u32 v{vT0}, s{T+11}, v{vL16}
s_lshr_b32 s{T+12}, s{S_UTB}, 1
s_and_b32 s{T+12}, s{T+12}, {UM-1}
s_mul_i32 s{T+12}, s{T+12}, {144//UM}
s_add_u32 s{T+10}, s{T+10}, s{T+12}
s_lshl_b32 s{T+12}, s{T+12}, 10""")
    def nxt(n):
        if n < 35:
            a(f"s_add_u32 s{T+10}, s{T+10}, 4")
            if n % 9 == 8:
                a(f"""s_sub_u32 s{T+11}, s{T+10}, 144
s_cmp_ge_u32 s{T+10}, 144
s_cselect_b32 s{T+10}, s{T+11}, s{T+10}""")
    for n in range(NE):
        a(f"""s_mul_i32 s{T+11}, s{T+10}, {8*2304}
buffer_load_dwordx4 {vr(vWo+4*n,4)}, v{vDU}, {RB}, s{T+11} offen
{THRO}""")
        nxt(n)
    stamp(a, 4)
    if HPWG:
        a("s_barrier")
    a("s_barrier")
    stamp(a, 5)
    WS_ = min(NE, int(OPT.get('wsplit', 12)))
    def wr(n):
        if n % 9 == 0:
            a(f"v_add_u32 v{vT1}, s{T+12}, v{vT0}")
            a(f"""s_add_u32 s{T+12}, s{T+12}, {36*1024}
s_cmp_ge_u32 s{T+12}, {144*1024}
s_cselect_b32 s{T+12}, 0, s{T+12}""")
        a(f"s_waitcnt vmcnt({NE-1-n})\nds_write_b128 v{vT1}, {vr(vWo+4*n,4)} offset:{(n % 9)*4096}")
    for n in range(WS_): wr(n)
    a("s_barrier")
    for n in range(WS_, NE): wr(n)
    for n in range(NE, 36):
        a(f"""s_lshl_b32 m0, s{T+10}, 10
s_mul_i32 s{T+11}, s{T+10}, {8*2304}
buffer_load_dwordx4 v{vDU}, {RB}, s{T+11} offen lds""")
        nxt(n)
    a(f"""s_waitcnt vmcnt(0) lgkmcnt(0)""")
    stamp(a, 11)
    a(f"""s_barrier
s_barrier
s_barrier
s_branch L_c_done
{lnu}:
s_barrier
s_barrier""")
    if HPWG:
        a("s_barrier")
    a("L_c_notu:")
    sQb, sKb, sKq, sJ, sK, sQ, sTy = T, T+1, T+2, T+3, T+5, T+6, T+9
    sM = T+10
    sK1 = T+12
    vS = 56
    RING = 15
    a(f"""s_sub_u32 s{sJ}, s{S_SLOT}, 18
s_lshr_b32 s{sTy}, s{sJ}, 2
s_and_b32 s{sKq}, s{S_W}, 3
s_and_b32 s{sQb}, s{S_G}, 1
s_lshl_b32 s{sQb}, s{sQb}, 2
s_and_b32 s{sOff}, s{sJ}, 3
s_add_u32 s{sQb}, s{sQb}, s{sOff}
s_and_b32 s{sKb}, s{S_G}, 2
s_lshl_b32 s{sKb}, s{sKb}, 1
s_lshr_b32 s{sOff}, s{S_G}, 2
s_lshl_b32 s{sOff}, s{sOff}, 3
s_add_u32 s{sQb}, s{sQb}, s{sOff}
s_add_u32 s{sKb}, s{sKb}, s{sOff}
s_min_u32 s{sK1}, s{sTy}, 1
s_add_u32 s{sK1}, s{sK1}, s{sTy}
s_mul_i32 s{sK}, s{sKb}, {216*1024}
s_mul_i32 s{sQ}, s{sQb}, {216*1024}
s_mul_i32 s{sOff}, s{sKq}, {18*1024}
s_add_u32 s{sK}, s{sK}, s{sOff}
s_add_u32 s{sQ}, s{sQ}, s{sOff}
s_add_u32 s{sK}, s{sK}, {WS_QKV + 72*1024}
s_add_u32 s{sQ}, s{sQ}, {WS_QKV}
v_min_u32 v{vT0}, 17, v{vTok}
v_lshlrev_b32 v{vT0}, 7, v{vT0}
s_lshr_b32 s{sOff}, s{sKb}, 2
s_mul_i32 s{sOff}, s{sOff}, {54*128}
s_add_u32 s{sOff}, s{sOff}, {18*128}
s_lshr_b32 s{T+13}, s{sQb}, 2
s_mul_i32 s{T+13}, s{T+13}, {54*128}
s_sub_u32 s{sOff}, s{sOff}, s{T+13}
v_mul_lo_u32 v{vT1}, v{vHF}, s{sOff}
v_add_u32 v{vT0}, v{vT0}, v{vT1}
v_add_u32 v{vT0}, s{T+13}, v{vT0}
v_and_b32 v{vT2}, 0x2ff, v{vP16}
v_and_b32 v{vT1}, 16, v0
v_lshl_add_u32 v{vT2}, v{vT1}, 6, v{vT2}
s_and_b32 s{sOff}, s{sTy}, 1
s_lshl_b32 s{sOff}, s{sOff}, 8
s_add_u32 s{sOff}, s{sOff}, {216*1024}
v_add_u32 v{vT2}, s{sOff}, v{vT2}
s_mul_i32 s{sOff}, s{sK1}, {216*1024}
v_add_u32 v{V0}, s{sOff}, v{vP16}
s_mov_b32 s{sOff}, {F_QKV}""")
    poll(a, vT0, f"s{sOff}", vT1)
    stamp(a, 12)
    lsi = a.label("sidle")
    a(f"s_cmp_ge_u32 s{S_W}, 4\ns_cbranch_scc1 {lsi}")
    LA = int(OPT.get('las', 4))
    vS = 72; RING = 8
    vAc3 = 56
    assert LA < RING
    def sload(p):
        r = vS + 20*(p % RING)
        o = (p & 1)*2048
        a(f"""buffer_load_dwordx4 {vr(r,4)}, v{vL16}, {WS}, s{sQ} offen offset:{o} sc1
buffer_load_dwordx4 {vr(r+4,4)}, v{V0}, {WS}, s{sK} offen offset:{o} sc1
buffer_load_dwordx4 {vr(r+8,4)}, v{vT2}, {WS}, s{sK} offen offset:{o} sc1
buffer_load_dwordx4 {vr(r+12,4)}, v{vL16}, {WS}, s{sQ} offen offset:{o+1024} sc1
buffer_load_dwordx4 {vr(r+16,4)}, v{V0}, {WS}, s{sK} offen offset:{o+1024} sc1""")
        if p & 1:
            a(f"s_add_u32 s{sK}, s{sK}, 4096\ns_add_u32 s{sQ}, s{sQ}, 4096")
    for p in range(LA):
        sload(p)
    for p in range(9):
        y = 5*(min(9, p + LA) - p - 1)
        r = vS + 20*(p % RING)
        a(f"s_waitcnt vmcnt({y+3})")
        mfma(a, vAcc, r+4, r, p == 0)
        a(f"s_waitcnt vmcnt({y+2})")
        mfma(a, vAcc+16, r+8, r, p == 0)
        a(f"s_waitcnt vmcnt({y+1})")
        mfma(a, vAc3, r+8, r+12, p == 0)
        a(f"s_waitcnt vmcnt({y})")
        mfma(a, vAcc, r+16, r+12)
        if p + LA < 9:
            sload(p + LA)
    stamp(a, 13)
    QS, HS, PSZ = 1056, 528, 8448
    a(f"""s_mul_i32 s{sOff}, s{S_W}, {PSZ}
v_lshl_add_u32 v{vT0}, v{vHF}, 4, v{vL16}
v_add_u32 v{vT0}, s{sOff}, v{vT0}
s_nop 7""")
    for r in range(8):
        a(f"v_add_f32 v{vAcc+16+r}, v{vAcc+16+r}, v{vAc3+8+r}")
    for q in (4, 5, 0, 1, 2, 3):
        a(f"ds_write_b128 v{vT0}, {vr(vAcc+4*q,4)} offset:{q*QS}")
    a(f"""{lsi}:
v_bfe_u32 v{vT1}, v0, 2, 2
v_and_b32 v{vT2}, 1, v0
v_lshl_add_u32 v{vT1}, v{vT1}, 1, v{vT2}
v_mul_u32_u24 v{vT1}, {QS}, v{vT1}
v_bfe_u32 v{vT2}, v0, 1, 1
v_mul_u32_u24 v{vT2}, {HS}, v{vT2}
v_lshrrev_b32 v{vT0}, 4, v0
s_lshl_b32 s{sOff}, s{S_W}, 2
v_add_u32 v{vT0}, s{sOff}, v{vT0}
v_lshl_add_u32 v{vT1}, v{vT0}, 4, v{vT1}
v_add_u32 v{vT1}, v{vT1}, v{vT2}
v_and_b32 v{vT2}, 7, v0
v_lshlrev_b32 v{vT2}, 4, v{vT2}
v_lshl_add_u32 v{vT2}, v{vT0}, 10, v{vT2}
s_lshl_b32 s{sOff}, s{sK1}, 7
v_mov_b32 v{vT0}, s{sOff}
v_and_b32 v{vT3}, 8, v0
v_cmp_ne_u32 vcc, 0, v{vT3}
s_and_b32 s{sOff}, s{sTy}, 1
s_lshl_b32 s{sOff}, s{sOff}, 6
s_add_u32 s{sOff}, s{sOff}, 128
v_mov_b32 v{vT3}, s{sOff}
s_lshl_b32 s{sJ}, s{sQb}, 15
v_cndmask_b32 v{vT0}, v{vT0}, v{vT3}, vcc
v_add_u32 v{vT2}, v{vT2}, v{vT0}
s_and_b32 s{sOff}, s{sKb}, 7
s_lshl_b32 s{sOff}, s{sOff}, 7
s_add_u32 s{sJ}, s{sJ}, s{sOff}
s_add_u32 s{sJ}, s{sJ}, {WS_L}
s_mov_b32 s{sM}, 0x0fff0fff
s_cmp_eq_u32 s{sTy}, 2
s_cselect_b32 s{sM}, 0x00ff00ff, s{sM}
s_mov_b32 s{sM+1}, s{sM}
v_mov_b32 v53, v{vTAG}
v_mov_b32 v55, v{vTAG}
s_waitcnt lgkmcnt(0)
s_barrier""")
    for j in range(4):
        a(f"ds_read_b128 {vr(vAcc+4*j,4)}, v{vT1} offset:{j*PSZ}")
    a("s_waitcnt lgkmcnt(2)")
    for r in range(4):
        a(f"v_add_f32 v{vAcc+r}, v{vAcc+r}, v{vAcc+4+r}")
    a("s_waitcnt lgkmcnt(0)")
    for r in range(4):
        a(f"v_add_f32 v{vAcc+8+r}, v{vAcc+8+r}, v{vAcc+12+r}")
    for r in range(4):
        a(f"v_add_f32 v{vAcc+r}, v{vAcc+r}, v{vAcc+8+r}")
    sc = struct.unpack('<I', struct.pack('<f', D ** -0.5))[0]
    for r in range(2):
        a(f"v_cvt_pk_bf16_f32 v{52+2*r}, v{vAcc+2*r}, v{vAcc+2*r+1}")
    for r in range(2):
        unpack(a, vAcc+2*r, vAcc+2*r+1, 52+2*r)
    for r in range(4):
        a(f"v_mul_f32 v{vAcc+r}, {hex(sc)}, v{vAcc+r}")
    for r in range(2):
        a(f"v_cvt_pk_bf16_f32 v{52+2*r}, v{vAcc+2*r}, v{vAcc+2*r+1}")
    a(f"s_mov_b64 exec, s[{sM}:{sM+1}]\nbuffer_store_dwordx4 v[52:55], v{vT2}, {WS}, s{sJ} offen sc1\ns_mov_b64 exec, -1")
    a("L_c_done:")
    stamp(a, 14)

def phase_d(a):
    sQt, sCt, sCb, sKh, sOff, sXo, sJ, sU, sB, sCol = T, T+1, T+2, T+3, T+4, T+5, T+6, T+7, T+8, T+9
    vXo, vMx, vS, vLa, vPa, vLw = V0, V0+1, V0+2, V0+3, V0+4, V0+5
    vLd = 24
    vX = 40
    vG = 44
    vF = 56
    vR = 72
    vAcc = 80
    vU = 96
    vP = 128
    PS = 1056
    L_P, L_EX = 40960, 65536
    srd(a, R_A, S_X, SZ_X)
    srd(a, R_B, S_OUT, SZ_X)
    a(f"s_sub_u32 s{sJ}, 26, s{S_SLOT}" if 'dold' in OPT else f"s_mov_b32 s{sJ}, s{S_SLOT}")
    a(f"""s_cmp_ge_u32 s{sJ}, 18
s_cbranch_scc1 L_fin
s_and_b32 s{sOff}, s{S_G}, 3
s_mul_i32 s{sOff}, s{sOff}, 18
s_add_u32 s{sOff}, s{sOff}, s{sJ}
s_lshr_b32 s{sCt}, s{sOff}, 3
s_and_b32 s{sJ}, s{sOff}, 7
s_lshr_b32 s{sB}, s{S_G}, 2
s_lshl_b32 s{sQt}, s{sB}, 3
s_add_u32 s{sQt}, s{sQt}, s{sJ}
s_and_b32 s{sCb}, s{S_W}, 3
s_lshr_b32 s{sKh}, s{S_W}, 2
s_lshl_b32 s{sCol}, s{sCt}, 7
s_lshl_b32 s{sOff}, s{sCb}, 5
s_add_u32 s{sCol}, s{sCol}, s{sOff}
s_lshl_b32 s{sOff}, s{sKh}, 4
s_add_u32 s{sCol}, s{sCol}, s{sOff}
s_mul_i32 s{sXo}, s{sQt}, {32*2304}
s_lshl_b32 s{sOff}, s{sCol}, 1
s_add_u32 s{sXo}, s{sXo}, s{sOff}
v_mul_u32_u24 v{vXo}, 2304, v{vTok}
v_lshl_add_u32 v{vXo}, v{vHF}, 4, v{vXo}
buffer_load_dwordx4 {vr(vX,4)}, v{vXo}, {RA}, s{sXo} offen
s_mul_i32 s{sU}, s{sB}, 36
s_lshl_b32 s{sOff}, s{sCt}, 2
s_add_u32 s{sU}, s{sU}, s{sOff}
s_add_u32 s{sU}, s{sU}, s{sCb}
s_lshr_b32 s{T+10}, s{sU}, 1
s_lshl_b32 s{sU}, s{sU}, 4
s_lshl_b32 s{sOff}, s{sKh}, 3
s_add_u32 s{sU}, s{sU}, s{sOff}
s_lshl_b32 s{sU}, s{sU}, 10
s_add_u32 s{sU}, s{sU}, {WS_U}
s_lshl_b32 s{T+10}, s{T+10}, 1
s_add_u32 s{T+10}, s{T+10}, s{sKh}
s_lshl_b32 s{T+10}, s{T+10}, 8
s_add_u32 s{T+10}, s{T+10}, {F_U}
v_and_b32 v{vT0}, 1, v0
v_lshlrev_b32 v{vT0}, 7, v{vT0}
v_add_u32 v{vT1}, s{T+10}, v{vT0}
s_lshr_b32 s{sOff}, s{sCol}, 6
s_lshl_b32 s{sOff}, s{sOff}, 7
s_add_u32 s{sOff}, s{sOff}, {F_G}
v_mov_b32 v{vT2}, s{sOff}
v_cmp_lt_u32 vcc, 9, v0
s_lshl_b32 s{sOff}, s{sQt}, 15
s_lshl_b32 s{T+10}, s{S_W}, 12
v_cndmask_b32 v{vT1}, v{vT1}, v{vT2}, vcc
s_add_u32 s{sOff}, s{sOff}, s{T+10}
s_add_u32 s{sOff}, s{sOff}, {WS_L + 3*1024 + 124}
v_lshlrev_b32 v{vT2}, 7, v0
v_add_u32 v{vT2}, s{sOff}, v{vT2}
v_cmp_gt_u32 vcc, 8, v0
v_and_b32 v{vT3}, 15, v0
v_lshrrev_b32 v{vT0}, 4, v0
v_cndmask_b32 v{vT1}, v{vT1}, v{vT2}, vcc
s_lshl_b32 s{sOff}, s{S_W}, 2
v_add_u32 v{vT0}, s{sOff}, v{vT0}
v_lshlrev_b32 v{vLa}, 10, v{vT0}
v_lshl_add_u32 v{vLa}, v{vT3}, 4, v{vLa}
v_lshrrev_b32 v{vT2}, 1, v{vT3}
v_mul_u32_u24 v{vLw}, {PS//2}, v{vT2}
v_lshl_add_u32 v{vLw}, v{vT0}, 4, v{vLw}
v_and_b32 v{vT2}, 1, v0
v_lshl_add_u32 v{vLw}, v{vT2}, 3, v{vLw}
v_lshl_add_u32 v{vPa}, v{vHF}, 4, v{vL16}
s_mul_i32 s{sOff}, s{sKh}, {8*PS}
v_add_u32 v{vPa}, s{sOff}, v{vPa}
s_mul_i32 s{T+11}, s{sB}, 4608
s_lshl_b32 s{T+10}, s{sCol}, 2
s_add_u32 s{T+11}, s{T+11}, s{T+10}
s_add_u32 s{T+11}, s{T+11}, {WS_GATE}
v_lshlrev_b32 v{vT0}, 5, v{vHF}
s_lshl_b32 s{sOff}, s{sQt}, 15
s_add_u32 s{sOff}, s{sOff}, {WS_L}""")
    vFa, vFl = 22, 23
    sUd = T+12
    def uloads():
        for s in range(8):
            a(f"buffer_load_dwordx4 {vr(vU+4*s,4)}, v{vL16}, {WS}, s{sU} offen offset:{(s&3)*1024} sc1")
            if s == 3:
                a(f"s_add_u32 s{sU}, s{sU}, 4096")
        a(f"""buffer_load_dwordx4 {vr(vG,4)}, v{vT0}, {WS}, s{T+11} offen sc1
buffer_load_dwordx4 {vr(vG+4,4)}, v{vT0}, {WS}, s{T+11} offen offset:16 sc1
s_mov_b32 s{sUd}, 1""")
        stamp(a, 8)
    l = a.label("lp"); d = a.label("lpd"); nu = a.label("nu"); l3 = a.label("lv"); d3 = a.label("lvd"); nu2 = a.label("nu2")
    def lloads():
        for n in range(4):
            a(f"buffer_load_dwordx4 {vr(vLd+4*n,4)}, v{vLa}, {WS}, s{sOff} offen offset:{256*n} sc1")
    a(f"""v_mov_b32 v{vFa}, v{vT1}
s_mov_b32 s{sUd}, 0
{l}:
buffer_load_dword v{vFl}, v{vFa}, {WS}, 0 offen sc1
s_waitcnt vmcnt(0)
v_cmp_ne_u32 vcc, s{S_TAG}, v{vFl}
s_and_b32 s{T+13}, vcc_lo, 255
s_cbranch_scc0 {d}
s_lshr_b32 s{T+13}, vcc_lo, 8
s_cbranch_scc0 {d}
s_sleep {OPT.get('lsleep', 1)}
s_sub_u32 s{S_TO}, s{S_TO}, 1
s_cmp_lg_u32 s{S_TO}, 0
s_cbranch_scc1 {l}
s_mov_b32 s{S_TO}, 1
{d}:""")
    lloads()
    a(f"""s_lshr_b32 s{T+13}, vcc_lo, 8
s_or_b32 s{T+13}, s{T+13}, s{sUd}
s_cbranch_scc1 {nu2}""")
    uloads()
    a(f"""s_waitcnt vmcnt(10)
s_branch {l3}_c
{nu2}:
buffer_load_dword v{vFl}, v{vFa}, {WS}, 0 offen sc1
s_waitcnt vmcnt(1)
s_branch {l3}_c
{l3}:""")
    lloads()
    a(f"""s_waitcnt vmcnt(0)
{l3}_c:
v_min_u32 v{vT1}, v{vLd+1}, v{vLd+3}
v_max_u32 v{vT2}, v{vLd+1}, v{vLd+3}""")
    for n in range(1, 4):
        a(f"v_min3_u32 v{vT1}, v{vT1}, v{vLd+4*n+1}, v{vLd+4*n+3}\nv_max3_u32 v{vT2}, v{vT2}, v{vLd+4*n+1}, v{vLd+4*n+3}")
    a(f"""v_cmp_ne_u32 vcc, s{S_TAG}, v{vT1}
v_cmp_ne_u32 s[{T+14}:{T+15}], s{S_TAG}, v{vT2}
s_or_b64 vcc, vcc, s[{T+14}:{T+15}]
s_cbranch_vccz {d3}
s_sub_u32 s{S_TO}, s{S_TO}, 1
s_cmp_lg_u32 s{S_TO}, 0
s_cbranch_scc1 {l3}
s_mov_b32 s{S_TO}, 1
{d3}:""")
    stamp(a, 9)
    for i in range(8):
        unpack(a, vF+2*i, vF+2*i+1, vLd+2*i)
    a(f"""v_max3_f32 v{vMx}, v{vF}, v{vF+1}, v{vF+2}
v_max3_f32 v{vS}, v{vF+3}, v{vF+4}, v{vF+5}
v_max3_f32 v{vMx}, v{vMx}, v{vF+6}, v{vF+7}
v_max3_f32 v{vS}, v{vS}, v{vF+8}, v{vF+9}
v_max3_f32 v{vMx}, v{vMx}, v{vF+10}, v{vF+11}
v_max3_f32 v{vS}, v{vS}, v{vF+12}, v{vF+13}
v_max3_f32 v{vMx}, v{vMx}, v{vF+14}, v{vF+15}
v_max_f32 v{vMx}, v{vMx}, v{vS}""")
    for m in ("quad_perm:[1,0,3,2]", "quad_perm:[2,3,0,1]", "row_half_mirror", "row_mirror"):
        a(f"s_nop 1\nv_max_f32_dpp v{vMx}, v{vMx}, v{vMx} {m} row_mask:0xf bank_mask:0xf")
    a(f"s_mov_b32 s{T+10}, {hex(LOG2E)}\nv_mul_f32 v{vMx}, s{T+10}, v{vMx}")
    for i in range(16):
        a(f"v_fma_f32 v{vF+i}, v{vF+i}, s{T+10}, -v{vMx}")
    for i in range(16):
        a(f"v_exp_f32 v{vF+i}, v{vF+i}")
    a(f"v_add_f32 v{vS}, v{vF}, v{vF+1}\nv_add_f32 v{vMx}, v{vF+2}, v{vF+3}")
    for i in range(4, 16, 2):
        a(f"v_add_f32 v{vS}, v{vS}, v{vF+i}\nv_add_f32 v{vMx}, v{vMx}, v{vF+i+1}")
    a(f"v_add_f32 v{vS}, v{vS}, v{vMx}")
    for m in ("quad_perm:[1,0,3,2]", "quad_perm:[2,3,0,1]", "row_half_mirror", "row_mirror"):
        a(f"s_nop 1\nv_add_f32_dpp v{vS}, v{vS}, v{vS} {m} row_mask:0xf bank_mask:0xf")
    a(f"v_rcp_f32 v{vS}, v{vS}\ns_nop 0")
    for i in range(16):
        a(f"v_mul_f32 v{vF+i}, v{vF+i}, v{vS}")
    for i in range(8):
        a(f"v_cvt_pk_bf16_f32 v{vLd+i}, v{vF+2*i}, v{vF+2*i+1}")
    for n in range(4):
        a(f"ds_write_b64 v{vLw}, {vr(vLd+2*n,2)} offset:{L_P+4*n*PS}")
    hu = a.label("hu"); l2 = a.label("up"); d2 = a.label("upd")
    a(f"""s_cmp_lg_u32 s{sUd}, 0
s_cbranch_scc1 {hu}
{l2}:
s_waitcnt vmcnt(0)
v_cmp_ne_u32 vcc, s{S_TAG}, v{vFl}
s_cbranch_vccz {d2}
buffer_load_dword v{vFl}, v{vFa}, {WS}, 0 offen sc1
s_sub_u32 s{S_TO}, s{S_TO}, 1
s_cmp_lg_u32 s{S_TO}, 0
s_cbranch_scc1 {l2}
s_mov_b32 s{S_TO}, 1
{d2}:""")
    uloads()
    a(f"{hu}:\ns_waitcnt lgkmcnt(0)\ns_barrier")
    for s in range(8):
        a(f"ds_read_b128 {vr(vP+4*s,4)}, v{vPa} offset:{L_P+s*PS}")
    a(f"""s_lshl_b32 s{sOff}, s{S_W}, 11
s_add_u32 s{sOff}, s{sOff}, {L_EX}
v_add_u32 v{vT0}, s{sOff}, v{vL16}
v_xor_b32 v{vT1}, {4*2048}, v{vT0}""")
    for s in range(8):
        a(f"s_waitcnt vmcnt({2+7-s}) lgkmcnt({7-s})")
        mfma(a, vAcc, vU+4*s, vP+4*s, s == 0)
    for i in range(4):
        unpack(a, vF+2*i, vF+2*i+1, vX+i)
    stamp(a, 10)
    lk1 = a.label("kh1"); lj = a.label("j")
    a(f"""s_nop 3
s_cmp_lg_u32 s{sKh}, 0
s_cbranch_scc1 {lk1}
ds_write_b128 v{vT0}, {vr(vAcc+8,4)}
ds_write_b128 v{vT0}, {vr(vAcc+12,4)} offset:1024
s_branch {lj}
{lk1}:
ds_write_b128 v{vT0}, {vr(vAcc,4)}
ds_write_b128 v{vT0}, {vr(vAcc+4,4)} offset:1024""")
    for r in range(8):
        a(f"v_mov_b32 v{vAcc+r}, v{vAcc+8+r}")
    a(f"""{lj}:
s_waitcnt lgkmcnt(0)
s_barrier
ds_read_b128 {vr(vR,4)}, v{vT1}
ds_read_b128 {vr(vR+4,4)}, v{vT1} offset:1024
s_waitcnt vmcnt(0) lgkmcnt(0)""")
    for r in range(8):
        a(f"v_add_f32 v{vAcc+r}, v{vAcc+r}, v{vR+r}")
    def cv():
        for i in range(4):
            a(f"v_cvt_pk_bf16_f32 v{vR+i}, v{vAcc+2*i}, v{vAcc+2*i+1}")
    def up():
        for i in range(4):
            unpack(a, vAcc+2*i, vAcc+2*i+1, vR+i)
    cv(); up()
    for r in range(8):
        a(f"v_mul_f32 v{vAcc+r}, v{vAcc+r}, v{vG+r}")
    cv(); up()
    for r in range(8):
        a(f"v_add_f32 v{vAcc+r}, v{vAcc+r}, v{vF+r}")
    cv()
    a(f"buffer_store_dwordx4 {vr(vR,4)}, v{vXo}, {RB}, s{sXo} offen {OPT.get('oflag', '').replace('+', ' ')}")
    a("L_fin:")

def gemv_dma(a, sColA, vD):
    sRow0, sOff = T+2, T+3
    a(f"""v_lshlrev_b32 v{vD}, 4, v{vCH}
v_mul_u32_u24 v{vT0}, 13824, v{vR8}
v_add3_u32 v{vD}, v{vD}, v{vT0}, s{sColA}
s_mul_i32 s{sOff}, s{sRow0}, 13824
s_lshl_b32 m0, s{sRow0}, 7""")
    for t in range(18):
        a(f"""s_nop 0
buffer_load_dwordx4 v{vD}, {RA}, s{sOff} offen {NT} lds""")
        if t < 17:
            a(f"s_add_u32 s{sOff}, s{sOff}, {8*13824}\ns_add_u32 m0, m0, 1024")

def phase_owner(a):
    sColA, sB, sRow0, sOff, sO, sCs, sTb = T, T+1, T+2, T+3, T+4, T+5, T+6
    vD, vA0, vA1, vSil, vCs = V0, V0+1, V0+2, V0+3, V0+4
    vC = 24
    vST = 28
    vX = VOX
    vXN = 48
    vPt = 80
    vAcc = 112
    vWF = 144
    vSF = 160
    vM = 184
    a(f"""s_mov_b32 s{sO}, s2
s_cmp_ge_u32 s{sO}, 36
s_cbranch_scc1 L_o_pref
s_lshr_b32 s{sCs}, s{sO}, 1
s_and_b32 s{sB}, s{sO}, 1
s_waitcnt vmcnt(0)
s_barrier""")
    vST = 32
    vPt = 112
    SM = [32, 33, 34, 35, 36, 37, 38, 39, 40, 41, 42, 43, 9, 10, 11, 12]
    a(f"""v_and_b32 v{vT3}, 7, v0
v_xor_b32 v{vT0}, s{S_W}, v{vT3}
v_lshlrev_b32 v{vT0}, 4, v{vT0}
v_lshl_add_u32 v{vT0}, v0, 7, v{vT0}""")
    for q in range(4):
        a(f"ds_read_b128 {vr(vX+4*q,4)}, v{vT0} offset:{q*8192}")
    a(f"""s_lshl_b32 s{T+9}, s{sB}, 12
s_add_u32 s{T+9}, s{T+9}, {F_STAT}
s_mul_i32 s{T+10}, s{sO}, {18*1024}
s_lshl_b32 s{sOff}, s{S_W}, 7
s_add_u32 s{T+10}, s{T+10}, s{sOff}
s_add_u32 s{T+10}, s{T+10}, {WS_PART}
s_add_u32 s{T+11}, s{T+10}, 8192
v_lshlrev_b32 v{vT1}, 4, v{vT3}
v_min_u32 v{vT2}, 1, v{vR8}
v_lshl_add_u32 v{vT2}, v{vT2}, 10, v{vT1}
v_add_u32 v{vT2}, 16384, v{vT2}
v_lshl_add_u32 v{vT1}, v{vR8}, 10, v{vT1}
v_cmp_gt_u32 vcc, 16, v0
v_mul_u32_u24 v{vCs}, {72*1024}, v{vHF}
v_lshl_add_u32 v{vCs}, v{vTok}, 4, v{vCs}
v_cndmask_b32 v{vA0}, 0, 1.0, vcc
v_bfe_u32 v{vA1}, v0, 2, 1
v_cvt_f32_u32 v{vA1}, v{vA1}
s_mul_i32 s{sOff}, s{sB}, {8*72*1024}
s_lshl_b32 s{T+12}, s{sCs}, 12
s_add_u32 s{sOff}, s{sOff}, s{T+12}
s_lshl_b32 s{T+12}, s{S_W}, 9
s_add_u32 s{sOff}, s{sOff}, s{T+12}
s_add_u32 s{sOff}, s{sOff}, {WS_H}
s_waitcnt lgkmcnt(0)""")
    def stl():
        for q in range(4):
            a(f"buffer_load_dwordx4 {vr(vST+4*q,4)}, v{vL16}, {WS}, s{T+9} offen offset:{1024*q} sc1")
    def pl():
        a(f"""buffer_load_dwordx4 {vr(vPt,4)}, v{vT1}, {WS}, s{T+10} offen sc1
buffer_load_dwordx4 {vr(vPt+4,4)}, v{vT1}, {WS}, s{T+11} offen sc1
buffer_load_dwordx4 {vr(vPt+8,4)}, v{vT2}, {WS}, s{T+10} offen sc1""")
    P = [(q, i) for q in range(4) for i in range(4)]
    lo = lambda q, i: vXN+8*q+2*i
    hi = lambda q, i: vXN+8*q+2*i+1
    xs = lambda q, i: vX+4*q+i
    def st_unpack():
        for q, i in P: unpack(a, lo(q,i), hi(q,i), xs(q,i))
    def st_cvt():
        for q, i in P: a(f"v_cvt_pk_bf16_f32 v{xs(q,i)}, v{lo(q,i)}, v{hi(q,i)}")
    def st_op(op, f):
        for q, i in P:
            a(f"{op} v{lo(q,i)}, v{lo(q,i)}, v{f(q,2*i)}\n{op} v{hi(q,i)}, v{hi(q,i)}, v{f(q,2*i+1)}")
    st_unpack()
    gpoll(a, stl, [vST+4*q+j for q in range(4) for j in (1, 3)])
    stamp(a, 1)
    st_op("v_sub_f32", lambda q, j: vST+4*q); st_cvt()
    st_unpack()
    pl()
    st_op("v_mul_f32", lambda q, j: vST+4*q+2); st_cvt()
    st_unpack()
    stamp(a, 2)
    lp = a.label("pp"); ld = a.label("ppd")
    a(f"""{lp}:
s_waitcnt vmcnt(0)
v_min3_u32 v{vM}, v{vPt+1}, v{vPt+3}, v{vPt+5}
v_max3_u32 v{vM+1}, v{vPt+1}, v{vPt+3}, v{vPt+5}
v_min3_u32 v{vM}, v{vM}, v{vPt+7}, v{vPt+9}
v_max3_u32 v{vM+1}, v{vM+1}, v{vPt+7}, v{vPt+9}
v_min_u32 v{vM}, v{vM}, v{vPt+11}
v_max_u32 v{vM+1}, v{vM+1}, v{vPt+11}
v_cmp_ne_u32 vcc, s{S_TAG}, v{vM}
v_cmp_ne_u32 s[{T+14}:{T+15}], s{S_TAG}, v{vM+1}
s_or_b64 vcc, vcc, s[{T+14}:{T+15}]
s_cbranch_vccz {ld}
s_sub_u32 s{S_TO}, s{S_TO}, 1
s_cmp_eq_u32 s{S_TO}, 0
s_cbranch_scc1 {ld}""")
    pl()
    a(f"""s_branch {lp}
{ld}:
s_max_u32 s{S_TO}, s{S_TO}, 1
v_add_f32 v{vPt}, v{vPt}, v{vPt+4}
v_add_f32 v{vPt+2}, v{vPt+2}, v{vPt+6}
v_fmac_f32 v{vPt}, v{vA0}, v{vPt+8}
v_fmac_f32 v{vPt+2}, v{vA0}, v{vPt+10}
s_nop 1
v_permlane32_swap_b32 v{vPt}, v{vPt+2}
s_nop 0
v_add_f32 v{vPt}, v{vPt}, v{vPt+2}
v_mov_b32 v{vPt+2}, v{vPt}
s_nop 1
v_permlane16_swap_b32 v{vPt}, v{vPt+2}
s_nop 0
v_add_f32 v{vPt}, v{vPt}, v{vPt+2}
s_nop 1
v_add_f32_dpp v{vPt}, v{vPt}, v{vPt} row_ror:8 row_mask:0xf bank_mask:0xf""")
    round_bf16(a, vPt)
    a(f"v_add_f32 v{vPt}, v{vPt}, v{vA1}")
    round_bf16(a, vPt)
    a("s_nop 0")
    for u in (4, 5, 6, 7, 0, 1, 2, 3):
        a(f"v_readlane_b32 s{SM[2*u]}, v{vPt}, {u}\nv_readlane_b32 s{SM[2*u+1]}, v{vPt}, {32+u}")
    stamp(a, 3)
    for q, i in P:
        a(f"v_mul_f32 v{lo(q,i)}, s{SM[8+2*i]}, v{lo(q,i)}\nv_mul_f32 v{hi(q,i)}, s{SM[8+2*i+1]}, v{hi(q,i)}")
    st_cvt(); st_unpack()
    for q in range(4):
        for i in range(4):
            a(f"v_add_f32 v{lo(q,i)}, s{SM[2*i]}, v{lo(q,i)}\nv_add_f32 v{hi(q,i)}, s{SM[2*i+1]}, v{hi(q,i)}")
        for i in range(4):
            a(f"v_cvt_pk_bf16_f32 v{xs(q,i)}, v{lo(q,i)}, v{hi(q,i)}")
        a(f"buffer_store_dwordx4 {vr(vX+4*q,4)}, v{vCs}, {WS}, s{sOff} offen sc1")
        if q < 3:
            a(f"s_add_u32 s{sOff}, s{sOff}, {2*72*1024}")
    stamp(a, 4)
    a(f"""s_mul_i32 s{sOff}, s{sB}, 18
s_add_u32 s{sOff}, s{sOff}, s{sCs}
s_lshl_b32 s{sOff}, s{sOff}, 7
s_add_u32 s{sOff}, s{sOff}, {F_H}""")
    set_flag(a, f"s{sOff}")
    stamp(a, 5)
    if 'ob' in OPT:
        a("s_waitcnt vmcnt(0)\ns_barrier")
    a("L_o_pref:")
    srd(a, R_A, S_WMOD, SZ_WMOD)
    srd(a, R_C, S_C, SZ_C)
    a(f"""s_cmp_ge_u32 s{sO}, 18
s_cbranch_scc1 L_o_upd""")
    if 'gd' in OPT:
        a(f"v_min_u32 v{vT0}, 35, v0\nv_lshlrev_b32 v{vT0}, 7, v{vT0}\ns_movk_i32 s{sOff}, {F_H}")
        poll(a, vT0, f"s{sOff}", vT1)
    a(f"""s_mul_i32 s{sRow0}, s{S_W}, 144
v_min_u32 v{vT0}, 17, v{vTok}
v_lshlrev_b32 v{vT0}, 4, v{vT0}
v_mul_u32_u24 v{vT1}, 2304, v{vHF}
v_add_u32 v{vCs}, v{vT0}, v{vT1}
s_lshl_b32 s{sOff}, s{sRow0}, 1
buffer_load_dwordx4 {vr(vC,4)}, v{vCs}, {RC}, s{sOff} offen
s_lshl_b32 s{sColA}, s{sO}, 7
s_add_u32 s{sColA}, s{sColA}, 4608""")
    gemv_dma(a, sColA, vD)
    a(f"""s_lshl_b32 s{sOff}, s{sRow0}, 7
v_add_u32 v{vA0}, s{sOff}, v{vB0}
v_add_u32 v{vA1}, s{sOff}, v{vB1}
s_waitcnt vmcnt(18)""")
    for i in range(4):
        unpack(a, vM+2*i, vM+2*i+1, vC+i)
    silu8(a, vM, vM+8)
    for i in range(4):
        a(f"v_cvt_pk_bf16_f32 v{vC+i}, v{vM+2*i}, v{vM+2*i+1}")
    a(f"""s_lshl_b32 s{sOff}, s{sRow0}, 1
s_add_u32 s{sOff}, s{sOff}, {L_SIL}
v_add_u32 v{vCs}, s{sOff}, v{vCs}
ds_write_b128 v{vCs}, {vr(vC,4)}
v_and_b32 v{vT0}, 1, v0
v_mul_u32_u24 v{vT0}, 2304, v{vT0}
v_lshl_add_u32 v{vT0}, v{vHF}, 4, v{vT0}
v_add_u32 v{vSil}, s{sOff}, v{vT0}
s_waitcnt lgkmcnt(0)""")
    for s in range(9):
        wf = vWF + 8*(s & 1); sf = vSF + 4*(s & 1)
        a(f"s_waitcnt vmcnt({18-2*(s+1)})")
        a(f"ds_read_b128 {vr(sf,4)}, v{vSil} offset:{s*32}")
        trreads(a, wf, vA0, vA1, s*2048)
        a("s_waitcnt lgkmcnt(2)")
        mfma(a, vAcc, wf, sf, s == 0)
        a("s_waitcnt lgkmcnt(0)")
        mfma(a, vAcc+16, wf+4, sf, s == 0)
    a(f"""v_and_b32 v{vT0}, 1, v0
v_lshlrev_b32 v{vT0}, 8, v{vT0}
v_lshl_add_u32 v{vT0}, v{vHF}, 5, v{vT0}
s_lshl_b32 s{sOff}, s{S_W}, 9
s_add_u32 s{sOff}, s{sOff}, {L_RED}
v_add_u32 v{vT0}, s{sOff}, v{vT0}
s_mov_b32 exec_lo, 3
s_mov_b32 exec_hi, 3
s_nop 8""")
    for cb in range(2):
        for q, off in enumerate((0, 16, 64, 80)):
            a(f"ds_write_b128 v{vT0}, {vr(vAcc+16*cb+4*q,4)} offset:{cb*128+off}")
    a(f"""s_mov_b64 exec, -1
s_waitcnt lgkmcnt(0)
s_barrier
s_lshr_b32 s{sOff}, s{S_W}, 2
s_lshl_b32 s{sOff}, s{sOff}, 8
s_add_u32 s{sOff}, s{sOff}, {L_RED}
v_lshlrev_b32 v{vT0}, 2, v0
v_add_u32 v{vT1}, s{sOff}, v{vT0}""")
    for w in range(8):
        a(f"ds_read_b32 v{vAcc+w}, v{vT1} offset:{w*512}")
    a("s_waitcnt lgkmcnt(0)")
    for w in range(1, 8):
        a(f"v_add_f32 v{vAcc}, v{vAcc}, v{vAcc+w}")
    round_bf16(a, vAcc)
    lsk = a.label("gsk")
    a(f"""s_and_b32 s{sOff}, s{S_W}, 3
s_cmp_lg_u32 s{sOff}, 0
s_cbranch_scc1 {lsk}
s_lshr_b32 s{T+9}, s{S_W}, 2
s_mul_i32 s{sOff}, s{T+9}, 4608
s_lshl_b32 s{sColA}, s{sO}, 8
s_add_u32 s{sOff}, s{sOff}, s{sColA}
s_add_u32 s{sOff}, s{sOff}, {WS_GATE}
buffer_store_dword v{vAcc}, v{vT0}, {WS}, s{sOff} offen sc1
{lsk}:
s_lshl_b32 s{sOff}, s{sO}, 7
s_add_u32 s{sOff}, s{sOff}, {F_G}""")
    set_flag(a, f"s{sOff}")
    stamp(a, 7)
    lp = a.label("ep"); ld = a.label("epd")
    a(f"""L_o_upd:
s_add_u32 s{S_SLOT}, s{S_SLOT}, 25
s_cmp_ge_u32 s{S_SLOT}, 27
s_cbranch_scc1 L_c_notu
s_cmp_lg_u32 s2, 0
s_cbranch_scc1 L_fin
s_lshl_b32 s{sOff}, s{S_W}, 6
v_add_u32 v{vT0}, s{sOff}, v0
v_min_u32 v{vT0}, 215, v{vT0}
v_lshlrev_b32 v{vT0}, 7, v{vT0}
s_mov_b32 s{sOff}, {F_QKV}
{lp}:
s_sleep 16
buffer_load_dword v{vT1}, v{vT0}, {WS}, s{sOff} offen sc1
s_waitcnt vmcnt(0)
v_cmp_ne_u32 vcc, s{S_TAG}, v{vT1}
s_cbranch_vccz {ld}
s_sub_u32 s{S_TO}, s{S_TO}, 1
s_cmp_lg_u32 s{S_TO}, 0
s_cbranch_scc1 {lp}
{ld}:
s_mov_b32 s{sOff}, {EPOCH}""")
    set_flag(a, f"s{sOff}")
    a("s_branch L_fin")

def epilogue(a):
    if STAMP and 'probe' in OPT:
        i = int(OPT['probe']); lo, hi = [int(x) for x in OPT.get('prole', '0:256').split(':')]
        a(f"""s_waitcnt vmcnt(0) lgkmcnt(0)
s_cmp_lg_u32 s{S_W}, {OPT.get('stw', 0)}
s_cbranch_scc1 L_end
s_memrealtime s[{S_ST+30}:{S_ST+31}]
s_waitcnt lgkmcnt(0)
s_sub_u32 s{T}, s{S_ST+2*i}, s{S_ST}
s_cmp_eq_u32 s{S_ST+2*i}, 0
s_cselect_b32 s{T}, 0, s{T}
s_cmp_lt_u32 s2, {lo}
s_cselect_b32 s{T}, 0, s{T}
s_cmp_ge_u32 s2, {hi}
s_cselect_b32 s{T}, 0, s{T}
s_lshl_b32 s{T}, s{T}, 2
s_add_u32 s{T}, s{T}, 5000
L_spin:
s_memrealtime s[{T+2}:{T+3}]
s_waitcnt lgkmcnt(0)
s_sub_u32 s{T+2}, s{T+2}, s{S_ST}
s_cmp_lt_u32 s{T+2}, s{T}
s_cbranch_scc1 L_spin""")
    elif STAMP:
        a(f"""s_waitcnt vmcnt(0) lgkmcnt(0)
s_cmp_lg_u32 s{S_W}, {OPT.get('stw', 0)}
s_cbranch_scc1 L_end
{CLK} s[{S_ST+30}:{S_ST+31}]
s_memtime s[98:99]
s_waitcnt lgkmcnt(0)
s_sub_u32 s98, s98, s96""")
        for i in range(16):
            a(f"v_mov_b32 v{16+i}, s{S_ST+2*i}")
        a(f"""v_mov_b32 v32, s98
s_lshl_b32 s{T}, s2, 7
s_add_u32 s{T}, s{T}, {WS_STAMP}
v_mov_b32 v1, 0
s_mov_b64 exec, 1""")
        for i in range(4):
            a(f"buffer_store_dwordx4 v[{16+4*i}:{19+4*i}], v1, {WS}, s{T} offen offset:{16*i}")
        a(f"buffer_store_dword v32, v1, {WS}, s{T} offen offset:64")
    a("L_end:\ns_endpgm")

def main():
    a = Asm()
    a.raw("; @launch grid=(256,1,1) block=(512,1,1) lds=163840")
    a.raw('.amdgcn_target "amdgcn-amd-amdhsa--gfx950"\n.text')
    prologue(a)
    phase_bc(a)
    phase_d(a)
    epilogue(a)
    a("L_owner:")
    phase_owner(a)
    a.raw(".p2align 4\nL_codeend:")
    out = a.text() + kd(NAME, 244, 102)
    path = [x for x in sys.argv[1:] if not x.startswith('--')][0]
    open(path, 'w').write(out)
main()
```

```python
import sys, struct
from asmlib import *

OPT = dict(la='12', nt='', cpf='1', umap='4', lfull='1', pack='0', ew='3')
for a_ in sys.argv[1:]:
    if a_.startswith('--'):
        k, _, v = a_[2:].partition('=')
        OPT[k] = v
STAMP = 'stamp' in OPT
NT = OPT['nt']
PF = OPT.get('pf', 'sc1').replace('+', ' ')
SF = OPT.get('sf', 'sc1').replace('+', ' ')
CLK = "s_memtime" if 'cyc' in OPT else "s_memrealtime"

NAME = "standalone__dit_adaln_block__diffusion_kernel"
D = 1152
SZ_X = 512*D*2; SZ_C = 2*D*2; SZ_WQKV = D*3*D*2; SZ_WO = D*D*2; SZ_WMOD = D*6*D*2
SZ_WS = 1 << 28
F_STAT = 0x0
F_H = 0x2000
F_L = 0x4000
F_U = F_L + 64*128
F_G = F_U + 144*128
F_QKV = 0xC000
EPOCH = 0x13000
WS_GATE = 0x14000
WS_H = 0x20000
WS_QKV = 0x140000
WS_L = 0x680000
WS_U = 0x550000
WS_PART = 0x4A0000
WS_STAMP = 0x700000
F_LH = 0x720000
LOG2E = 0x3fb8aa3b

S_W, S_TAG, S_G, S_SLOT, S_TO, S_TK = 3, 4, 5, 6, 7, 8
S_X, S_C, S_WQKV, S_WO, S_WMOD, S_OUT, S_DBG, S_WS = 16, 18, 20, 22, 24, 26, 28, 30
R_A, R_B, R_C, R_WS = 32, 36, 40, 44
T = 48
S_ST = 64
WS = f"s[{R_WS}:{R_WS+3}]"
RA = f"s[{R_A}:{R_A+3}]"; RB = f"s[{R_B}:{R_B+3}]"; RC = f"s[{R_C}:{R_C+3}]"
vL16, vP16, vB0, vB1, vCH, vR8, vHF, vTok = 1, 2, 3, 4, 5, 6, 7, 8
vT0, vT1, vT2, vT3 = 9, 10, 11, 12
vTAG = 13
V0 = 16

L_MISC = 147456
L_SIL = L_MISC
L_RED = L_SIL + 4608
L_FIN = L_RED + 4096
L_ROLE = L_FIN + 4096
L_STC = L_ROLE + 16
L_GATE = 36864
NO = 5

def srd(a, r, ptr, size):
    a(f"""s_mov_b32 s{r}, s{ptr}
s_and_b32 s{r+1}, s{ptr+1}, 0xffff
s_mov_b32 s{r+2}, {hex(size)}
s_mov_b32 s{r+3}, 0x20000""")

NOD = [False]
def stamp(a, i):
    if STAMP and not (NOD[0] and 'nod' in OPT):
        a(f"{CLK} s[{S_ST+2*i}:{S_ST+2*i+1}]")

def unpack(a, lo, hi, src):
    a(f"v_lshlrev_b32 v{lo}, 16, v{src}\nv_and_b32 v{hi}, 0xffff0000, v{src}")

def round_bf16(a, v):
    a(f"v_cvt_pk_bf16_f32 v{v}, v{v}, v{v}\nv_lshlrev_b32 v{v}, 16, v{v}")

HACK = [0]
def mfma(a, acc, A, B, first=False):
    if 'hack16' in OPT and not first:
        HACK[0] += 1
        o = 8*((HACK[0] >> 1) & 1)
        for j in range(2):
            a(f"v_mfma_f32_16x16x32_bf16 {vr(acc+o+4*j,4)}, {vr(A,4)}, {vr(B,4)}, {vr(acc+o+4*j,4)}")
        return
    c = "0" if first else vr(acc, 16)
    a(f"v_mfma_f32_32x32x16_bf16 {vr(acc,16)}, {vr(A,4)}, {vr(B,4)}, {c}")

def wrap_add(a, s, step, s_end, s_start):
    a(f"""s_add_u32 s{s}, s{s}, {step}
s_cmp_eq_u32 s{s}, s{s_end}
s_cselect_b32 s{s}, s{s_start}, s{s}""")

def mod9(a, dst, src, tmp):
    a(f"""s_mul_i32 s{tmp}, s{src}, 57
s_lshr_b32 s{tmp}, s{tmp}, 9
s_mul_i32 s{tmp}, s{tmp}, 9
s_sub_u32 s{dst}, s{src}, s{tmp}""")

def poll(a, vaddr, soff, vtmp):
    l = a.label("poll"); d = a.label("polld")
    a(f"""s_cmp_lg_u32 s{S_W}, 0
s_cbranch_scc1 {d}
{l}:
buffer_load_dword v{vtmp}, v{vaddr}, {WS}, {soff} offen {PF}
s_waitcnt vmcnt(0)
v_cmp_ne_u32 vcc, s{S_TAG}, v{vtmp}
s_cbranch_vccz {d}
s_sleep {OPT.get('sleep', 2)}
s_sub_u32 s{S_TO}, s{S_TO}, 1
s_cmp_lg_u32 s{S_TO}, 0
s_cbranch_scc1 {l}
s_mov_b32 s{S_TO}, 1
{d}:
s_barrier""")

def gpoll(a, loads, tagregs, slp=None):
    l = a.label("gp"); d = a.label("gpd")
    a(f"{l}:")
    loads()
    a(f"s_waitcnt vmcnt(0)\nv_cmp_ne_u32 vcc, s{S_TAG}, v{tagregs[0]}")
    for r in tagregs[1:]:
        a(f"v_cmp_ne_u32 s[{T+14}:{T+15}], s{S_TAG}, v{r}\ns_or_b64 vcc, vcc, s[{T+14}:{T+15}]")
    a(f"""s_cbranch_vccz {d}
s_sleep {slp if slp is not None else OPT.get('gsleep', 2)}
s_sub_u32 s{S_TO}, s{S_TO}, 1
s_cmp_lg_u32 s{S_TO}, 0
s_cbranch_scc1 {l}
s_mov_b32 s{S_TO}, 1
{d}:""")

def raw_flag(a, soff):
    a(f"""v_mov_b32 v{vT3}, 0
s_mov_b64 exec, 1
buffer_store_dword v{vTAG}, v{vT3}, {WS}, {soff} offen {SF}
s_mov_b64 exec, -1""")

def set_flag(a, soff, younger=0):
    d = a.label("fl")
    a(f"""s_waitcnt vmcnt({younger})
s_barrier
s_cmp_lg_u32 s{S_W}, 0
s_cbranch_scc1 {d}""")
    raw_flag(a, soff)
    a(f"{d}:")

def trreads(a, wf, b0, b1, off):
    a(f"""ds_read_b64_tr_b16 {vr(wf,2)}, v{b0} offset:{off}
ds_read_b64_tr_b16 {vr(wf+2,2)}, v{b0} offset:{off+512}
ds_read_b64_tr_b16 {vr(wf+4,2)}, v{b1} offset:{off}
ds_read_b64_tr_b16 {vr(wf+6,2)}, v{b1} offset:{off+512}""")

def dma_tile(a, srdname, vD, pitch, s_rot, flags, n0=0, n1=18):
    sN, sO = T+10, T+11
    if s_rot is None:
        a(f"s_add_u32 s{sN}, s{S_W}, {8*n0}")
    else:
        a(f"s_lshl_b32 s{sN}, s{s_rot}, 3\ns_add_u32 s{sN}, s{sN}, s{S_W}")
    for n in range(n0, n1):
        a(f"""s_lshl_b32 m0, s{sN}, 10
s_mul_i32 s{sO}, s{sN}, {8*pitch}
buffer_load_dwordx4 v{vD}, {srdname}, s{sO} offen {flags} lds""")
        if n < n1-1:
            a(f"s_add_u32 s{sN}, s{sN}, 8")
            if s_rot is not None:
                a(f"""s_sub_u32 s{sO}, s{sN}, 144
s_cmp_ge_u32 s{sN}, 144
s_cselect_b32 s{sN}, s{sO}, s{sN}""")

def wave_sum(a, v, sdst):
    for m in ("quad_perm:[1,0,3,2]", "quad_perm:[2,3,0,1]", "row_half_mirror", "row_mirror"):
        a(f"s_nop 1\nv_add_f32_dpp v{v}, v{v}, v{v} {m} row_mask:0xf bank_mask:0xf")
    a(f"s_nop 1\nv_add_f32_dpp v{v}, v{v}, v{v} row_bcast:15 row_mask:0xa bank_mask:0xf")
    a(f"s_nop 1\nv_add_f32_dpp v{v}, v{v}, v{v} row_bcast:31 row_mask:0xc bank_mask:0xf")
    a(f"s_nop 1\nv_readlane_b32 s{sdst}, v{v}, 63\ns_nop 1")

def silu8(a, f, t):
    for i in range(8):
        a(f"v_mul_f32 v{t+i}, 0xbfb8aa3b, v{f+i}")
    for i in range(8):
        a(f"v_exp_f32 v{t+i}, v{t+i}")
    for i in range(8):
        a(f"v_add_f32 v{t+i}, 1.0, v{t+i}")
    for i in range(8):
        a(f"v_rcp_f32 v{t+i}, v{t+i}")
    for i in range(8):
        a(f"v_mul_f32 v{f+i}, v{f+i}, v{t+i}")

def lane_consts(a):
    a(f"""v_lshrrev_b32 v{vR8}, 3, v0
v_and_b32 v{vP16}, 0x33, v0
v_and_b32 v{vT0}, 4, v0
v_lshl_or_b32 v{vP16}, v{vT0}, 1, v{vP16}
v_and_b32 v{vT0}, 8, v0
v_lshrrev_b32 v{vT0}, 1, v{vT0}
v_or_b32 v{vP16}, v{vP16}, v{vT0}
v_lshlrev_b32 v{vP16}, 4, v{vP16}
v_lshrrev_b32 v{vT0}, 2, v0
v_and_b32 v{vT0}, 4, v{vT0}
v_and_b32 v{vCH}, 7, v0
v_xor_b32 v{vCH}, v{vCH}, v{vT0}
v_lshlrev_b32 v{vB0}, 10, v{vHF}
v_and_b32 v{vT0}, 12, v0
v_lshl_or_b32 v{vB0}, v{vT0}, 5, v{vB0}
v_and_b32 v{vT0}, 8, v0
v_lshl_or_b32 v{vB0}, v{vT0}, 3, v{vB0}
v_and_b32 v{vT0}, 16, v0
v_lshl_or_b32 v{vB0}, v{vT0}, 1, v{vB0}
v_and_b32 v{vT0}, 1, v0
v_lshl_or_b32 v{vB0}, v{vT0}, 4, v{vB0}
v_and_b32 v{vT0}, 2, v0
v_lshl_or_b32 v{vB0}, v{vT0}, 2, v{vB0}
v_xor_b32 v{vB1}, 64, v{vB0}""")

def get_tag(a):
    a(f"""s_waitcnt lgkmcnt(0)
s_mul_i32 s{S_TAG}, s{S_TAG}, 1664525
s_add_u32 s{S_TAG}, s{S_TAG}, 1013904223
v_mov_b32 v{vTAG}, s{S_TAG}""")

def wpoll(a, vaddr, soff, vtmp):
    gpoll(a, lambda: a(f"buffer_load_dword v{vtmp}, v{vaddr}, {WS}, {soff} offen {PF}"), [vtmp])

S_BCT, S_BRT = 11, 12
vDW = 15
R0, R1 = [int(x) for x in OPT.get('wrot', '36,28').split(',')]
assert R0 + 3*R1 + 7 < 144
def b_setup(a):
    srd(a, R_B, S_WQKV, SZ_WQKV)
    a(f"""s_mul_i32 s{S_BCT}, s{S_G}, 27
s_add_u32 s{S_BCT}, s{S_BCT}, s{S_SLOT}
s_sub_u32 s{S_BCT}, s{S_BCT}, {NO}
s_and_b32 s{S_BRT}, s{S_BCT}, 3
s_lshr_b32 s{S_BCT}, s{S_BCT}, 2
s_mul_i32 s13, s{S_BRT}, {R1}
s_add_u32 s{T+14}, s13, {R0}
s_cmp_lg_u32 s{S_BRT}, 0
s_cselect_b32 s13, s{T+14}, s13
s_add_u32 s13, s13, s{S_W}
v_lshlrev_b32 v{vDW}, 4, v{vCH}
v_mul_u32_u24 v{vT0}, 6912, v{vR8}
s_lshl_b32 s{T+14}, s{S_BCT}, 7
v_add3_u32 v{vDW}, v{vDW}, v{vT0}, s{T+14}""")

THR = f"s_waitcnt vmcnt({OPT['thr']})" if 'thr' in OPT else ''
THRO = f"s_waitcnt vmcnt({OPT['thro']})" if 'thro' in OPT else ''
def w_dma(a, n):
    for i in range(n):
        a(f"""s_lshl_b32 m0, s13, 10
s_mul_i32 s{T+14}, s13, {8*6912}
buffer_load_dwordx4 v{vDW}, {RB}, s{T+14} offen lds
{THR}
s_add_u32 s13, s13, 8
s_sub_u32 s{T+14}, s13, 144
s_cmp_ge_u32 s13, 144
s_cselect_b32 s13, s{T+14}, s13""")

EW = int(OPT.get('ew', 0))
def prologue(a):
    a.raw(f".globl {NAME}\n.p2align 8\n.type {NAME},@function\n{NAME}:")
    a(f"""s_cmp_ge_u32 s2, 256
s_cbranch_scc1 L_end
s_load_dwordx16 s[16:31], s[0:1], 0""")
    if STAMP:
        a(f"{CLK} s[{S_ST}:{S_ST+1}]\ns_memtime s[96:97]")
        for i in range(1, 16):
            a(f"s_mov_b32 s{S_ST+2*i}, 0")
    a(f"""v_lshrrev_b32 v1, 6, v0
v_and_b32 v0, 63, v0
s_and_b32 s{S_G}, s2, 7
v_readfirstlane_b32 s{S_W}, v1
s_lshr_b32 s{S_SLOT}, s2, 3
s_mov_b32 s{S_TO}, 0x40000
v_lshlrev_b32 v{vL16}, 4, v0
v_lshrrev_b32 v{vHF}, 5, v0
v_and_b32 v{vTok}, 31, v0
s_mov_b32 s{S_TK}, s2""")
    if OPT.get('cpf') == '1':
        a(f"""s_cmp_lg_u32 s{S_W}, 7
s_cbranch_scc1 L_nocpf
s_getpc_b64 s[{T}:{T+1}]
L_pc:
s_sub_u32 s{T}, s{T}, L_pc-{NAME}
s_subb_u32 s{T+1}, s{T+1}, 0
s_lshl_b32 s{T+2}, s{S_SLOT}, 10
v_add_u32 v{vT0}, s{T+2}, v{vL16}
v_min_u32 v{vT0}, L_codeend-{NAME}-16, v{vT0}
global_load_dwordx4 v[240:243], v{vT0}, s[{T}:{T+1}]
L_nocpf:""")
    if OPT.get('lead', '1') == '1':
        a(f"""s_mul_i32 s{T}, s{S_G}, 27
s_add_u32 s{T}, s{T}, s{S_SLOT}
s_sub_u32 s{T}, s{T}, {NO}
s_lshr_b32 s{T+1}, s{T}, 2
s_sub_u32 s{T+2}, s{T}, s{T+1}
s_add_u32 s{T+2}, s{T+2}, 93
s_and_b32 s{T+3}, s{T+1}, 1
s_mul_i32 s{T+3}, s{T+3}, 27
s_lshr_b32 s{T+1}, s{T+1}, 1
s_add_u32 s{T+1}, s{T+1}, s{T+3}
s_add_u32 s{T+1}, s{T+1}, 40
s_and_b32 s{T}, s{T}, 3
s_cselect_b32 s{T+1}, s{T+2}, s{T+1}
s_cmp_ge_u32 s2, 40
s_cselect_b32 s{S_TK}, s{T+1}, s2""")
    sP, sCg, sKs, sOff, sRow = T, T+1, T+2, T+3, T+4
    a(f"""s_cmp_ge_u32 s{S_TK}, 64
s_cbranch_scc1 L_s0_nst""")
    vRW = 16
    a(f"""s_lshl_b32 s{sOff}, s{S_TK}, 3
s_add_u32 s{sOff}, s{sOff}, s{S_W}
s_mul_i32 s{sOff}, s{sOff}, 2304
v_mov_b32 v{vRW+8}, 0
v_mov_b32 v{vRW+9}, 0
v_mov_b32 v{vRW+10}, 0
v_mov_b32 v{vRW+11}, 0
s_waitcnt lgkmcnt(0)""")
    srd(a, R_C, S_X, SZ_X)
    a(f"""buffer_load_dwordx4 {vr(vRW,4)}, v{vL16}, {RC}, s{sOff} offen
buffer_load_dwordx4 {vr(vRW+4,4)}, v{vL16}, {RC}, s{sOff} offen offset:1024
s_mov_b64 exec, 0xffff
buffer_load_dwordx4 {vr(vRW+8,4)}, v{vL16}, {RC}, s{sOff} offen offset:2048
s_mov_b64 exec, -1
s_load_dword s{S_TAG}, s[{S_WS}:{S_WS+1}], {EPOCH}""")
    a(f"""s_branch L_s0_stats
L_s0_nst:
s_cmp_lt_u32 s{S_TK}, 94
s_cbranch_scc1 L_s0_none""")
    vW = 16
    vC = 32
    vSc = 36
    vTm = 44
    vAc = 52
    a(f"""s_sub_u32 s{sP}, s{S_TK}, 94
s_mul_i32 s{sKs}, s{sP}, 57
s_lshr_b32 s{sKs}, s{sKs}, 9
s_mul_i32 s{sCg}, s{sKs}, 9
s_sub_u32 s{sCg}, s{sP}, s{sCg}
s_lshl_b32 s{sRow}, s{sKs}, 3
s_add_u32 s{sRow}, s{sRow}, s{S_W}
s_lshl_b32 s{sRow}, s{sRow}, 3
v_and_b32 v{vT0}, 15, v0
v_lshlrev_b32 v{vT0}, 4, v{vT0}
v_bfe_u32 v{vT1}, v0, 4, 1
v_mul_u32_u24 v{vT1}, 2304, v{vT1}
v_mul_u32_u24 v{vT2}, {4*13824}, v{vHF}
v_add3_u32 v{vT0}, v{vT0}, v{vT1}, v{vT2}
v_lshlrev_b32 v{vT1}, 3, v{vHF}
s_lshl_b32 s{T+5}, s{sRow}, 1
s_mul_i32 s{sOff}, s{sRow}, 13824
s_lshl_b32 s{sRow}, s{sCg}, 8
s_add_u32 s{sOff}, s{sOff}, s{sRow}
s_waitcnt lgkmcnt(0)""")
    srd(a, R_A, S_WMOD, SZ_WMOD)
    srd(a, R_C, S_C, SZ_C)
    a(f"""buffer_load_dwordx2 {vr(vC,2)}, v{vT1}, {RC}, s{T+5} offen
buffer_load_dwordx2 {vr(vC+2,2)}, v{vT1}, {RC}, s{T+5} offen offset:2304""")
    for n in range(4):
        a(f"buffer_load_dwordx4 {vr(vW+4*n,4)}, v{vT0}, {RA}, s{sOff} offen")
        if n < 3:
            a(f"s_add_u32 s{sOff}, s{sOff}, 13824")
    a(f"s_load_dword s{S_TAG}, s[{S_WS}:{S_WS+1}], {EPOCH}")
    srd(a, R_WS, S_WS, SZ_WS)
    lane_consts(a)
    b_setup(a)
    if EW:
        a("s_barrier")
        w_dma(a, EW)
    a(f"s_waitcnt vmcnt({4+EW})")
    for i in range(4):
        unpack(a, vSc+2*i, vSc+2*i+1, vC+i)
    silu8(a, vSc, vTm)
    for i in range(4):
        a(f"v_cvt_pk_bf16_f32 v{vC+i}, v{vSc+2*i}, v{vSc+2*i+1}")
    for i in range(4):
        unpack(a, vSc+2*i, vSc+2*i+1, vC+i)
    a(f"""s_lshl_b32 s{sOff}, s{S_W}, 11
s_add_u32 s{sOff}, s{sOff}, {L_MISC}
v_lshlrev_b32 v{vT2}, 5, v0
v_add_u32 v{vT2}, s{sOff}, v{vT2}
s_lshr_b32 s{sOff}, s{S_W}, 1
s_lshl_b32 s{sOff}, s{sOff}, 10
s_and_b32 s{sRow}, s{S_W}, 1
s_lshl_b32 s{sP}, s{sRow}, 8
s_add_u32 s{sOff}, s{sOff}, s{sP}
s_add_u32 s{sOff}, s{sOff}, {L_MISC}
v_lshlrev_b32 v{vT3}, 3, v{vTok}
v_lshl_add_u32 v{vT3}, v{vHF}, 9, v{vT3}
v_add_u32 v{vT3}, s{sOff}, v{vT3}
s_lshl_b32 s{sP}, s{sCg}, 1
s_add_u32 s{sP}, s{sP}, s{sRow}
s_lshl_b32 s{sP}, s{sP}, 1
s_lshr_b32 s{sOff}, s{S_W}, 1
s_add_u32 s{sP}, s{sP}, s{sOff}
s_mul_i32 s{sP}, s{sP}, 18
s_add_u32 s{sP}, s{sP}, s{sKs}
s_lshl_b32 s{sP}, s{sP}, 10
s_add_u32 s{sP}, s{sP}, {WS_PART}
v_and_b32 v{vT0}, 28, v0
v_lshlrev_b32 v{vT0}, 5, v{vT0}
v_lshl_add_u32 v{vT0}, v{vHF}, 6, v{vT0}
v_and_b32 v{vT1}, 3, v0
v_lshl_add_u32 v{vT0}, v{vT1}, 4, v{vT0}""")
    get_tag(a)
    for n in range(4):
        a(f"s_waitcnt vmcnt({3-n+EW})")
        if n == 3: stamp(a, 8)
        for i in range(4):
            unpack(a, vTm+2*i, vTm+2*i+1, vW+4*n+i)
        for b in range(2):
            for j in range(8):
                op = "v_mul_f32" if n == 0 else "v_fmac_f32"
                a(f"{op} v{vAc+8*b+j}, v{vTm+j}, v{vSc+4*b+n}")
    a("s_nop 1")
    for j in range(8):
        a(f"v_permlane32_swap_b32 v{vAc+j}, v{vAc+8+j}")
    for j in range(8):
        a(f"v_add_f32 v{vAc+j}, v{vAc+j}, v{vAc+8+j}")
    lsk = a.label("pubsk")
    a(f"""ds_write_b128 v{vT2}, {vr(vAc,4)}
ds_write_b128 v{vT2}, {vr(vAc+4,4)} offset:16
s_waitcnt lgkmcnt(0)
s_barrier
s_cmp_ge_u32 s{S_W}, 4
s_cbranch_scc1 {lsk}""")
    for w in range(8):
        a(f"ds_read_b64 {vr(vW+2*w,2)}, v{vT3} offset:{w*2048}")
    a(f"""v_mov_b32 v{vAc+1}, v{vTAG}
v_mov_b32 v{vAc+3}, v{vTAG}
s_waitcnt lgkmcnt(4)
v_add_f32 v{vW}, v{vW}, v{vW+2}
v_add_f32 v{vW+1}, v{vW+1}, v{vW+3}
v_add_f32 v{vW+4}, v{vW+4}, v{vW+6}
v_add_f32 v{vW+5}, v{vW+5}, v{vW+7}
s_waitcnt lgkmcnt(0)
v_add_f32 v{vW+8}, v{vW+8}, v{vW+10}
v_add_f32 v{vW+9}, v{vW+9}, v{vW+11}
v_add_f32 v{vW+12}, v{vW+12}, v{vW+14}
v_add_f32 v{vW+13}, v{vW+13}, v{vW+15}
v_add_f32 v{vW}, v{vW}, v{vW+4}
v_add_f32 v{vW+1}, v{vW+1}, v{vW+5}
v_add_f32 v{vW+8}, v{vW+8}, v{vW+12}
v_add_f32 v{vW+9}, v{vW+9}, v{vW+13}
v_add_f32 v{vAc}, v{vW}, v{vW+8}
v_add_f32 v{vAc+2}, v{vW+1}, v{vW+9}
buffer_store_dwordx4 {vr(vAc,4)}, v{vT0}, {WS}, s{sP} offen sc1
{lsk}:""")
    stamp(a, 9)
    if OPT.get('pack') == '1':
        a("s_waitcnt vmcnt(0)")
    if 'nopb' not in OPT:
        a("s_barrier")
    w_dma(a, 18-EW)
    a("s_branch L_b")
    a("L_s0_stats:")
    srd(a, R_WS, S_WS, SZ_WS)
    lane_consts(a)
    a(f"""s_barrier
s_min_u32 s{T+12}, s2, 35
s_and_b32 s{T+13}, s{T+12}, 1
s_lshr_b32 s{T+12}, s{T+12}, 1
s_lshl_b32 s{T+13}, s{T+13}, 3
s_add_u32 s{T+13}, s{T+13}, s{S_W}
v_mul_u32_u24 v{vT0}, 2304, v{vR8}
v_and_b32 v{vT1}, 7, v0
v_xor_b32 v{vT1}, v{vT1}, v{vR8}
v_lshl_add_u32 v{vT0}, v{vT1}, 4, v{vT0}
s_mul_i32 s{T+13}, s{T+13}, {32*2304}
s_lshl_b32 s{T+12}, s{T+12}, 7
s_add_u32 s{T+13}, s{T+13}, s{T+12}
s_lshl_b32 m0, s{S_W}, 12""")
    lnx = a.label("nox"); ljx = a.label("jx")
    a(f"s_cmp_ge_u32 s2, 36\ns_cbranch_scc1 {lnx}")
    for q in range(4):
        a(f"buffer_load_dwordx4 v{vT0}, {RC}, s{T+13} offen lds")
        if q < 3:
            a(f"s_add_u32 s{T+13}, s{T+13}, {8*2304}\ns_add_u32 m0, m0, 1024\ns_nop 0")
    get_tag(a)
    a(f"s_waitcnt vmcnt(4)\ns_branch {ljx}\n{lnx}:")
    get_tag(a)
    a(f"s_waitcnt vmcnt(0)\n{ljx}:")
    stamp(a, 8)
    s1, s2_, q1, q2 = 32, 33, 34, 35
    a(f"s_mov_b32 s{T+12}, 0x3f803f80")
    for i in range(0, 12, 2):
        c = lambda r: "0" if i == 0 else f"v{r}"
        a(f"""v_dot2_f32_bf16 v{s1}, v{vRW+i}, s{T+12}, {c(s1)}
v_dot2_f32_bf16 v{q1}, v{vRW+i}, v{vRW+i}, {c(q1)}
v_dot2_f32_bf16 v{s2_}, v{vRW+i+1}, s{T+12}, {c(s2_)}
v_dot2_f32_bf16 v{q2}, v{vRW+i+1}, v{vRW+i+1}, {c(q2)}""")
    a(f"""s_nop 2
v_add_f32 v{s1}, v{s1}, v{s2_}
v_add_f32 v{q1}, v{q1}, v{q2}""")
    for m in ("quad_perm:[1,0,3,2] row_mask:0xf", "quad_perm:[2,3,0,1] row_mask:0xf", "row_half_mirror row_mask:0xf", "row_mirror row_mask:0xf", "row_bcast:15 row_mask:0xa", "row_bcast:31 row_mask:0xc"):
        a(f"s_nop 0\nv_add_f32_dpp v{s1}, v{s1}, v{s1} {m} bank_mask:0xf\nv_add_f32_dpp v{q1}, v{q1}, v{q1} {m} bank_mask:0xf")
    g = 36
    a(f"""v_mul_f32 v{g}, 0x3a638e39, v{s1}
v_mul_f32 v{g+2}, 0x3a638e39, v{q1}
v_fma_f32 v{g+2}, -v{g}, v{g}, v{g+2}
v_max_f32 v{g+2}, 0, v{g+2}""")
    round_bf16(a, g+2)
    a(f"v_add_f32 v{g+2}, 0x3727c5ac, v{g+2}")
    round_bf16(a, g+2)
    a(f"v_sqrt_f32 v{g+2}, v{g+2}")
    round_bf16(a, g)
    round_bf16(a, g+2)
    lsk = a.label("stsk")
    a(f"""v_rcp_f32 v{g+2}, v{g+2}
v_mov_b32 v{g+1}, v{vTAG}
v_mov_b32 v{g+3}, v{vTAG}
s_lshl_b32 s{T+12}, s{S_W}, 4
s_add_u32 s{T+12}, s{T+12}, {L_STC}
v_mov_b32 v{vT0}, s{T+12}
s_mov_b32 exec_lo, 0
s_brev_b32 exec_hi, 1
ds_write_b128 v{vT0}, {vr(g,4)}
s_mov_b64 exec, -1
s_lshl_b32 s{T+12}, s{S_TK}, 7
s_add_u32 s{T+12}, s{T+12}, {F_STAT}
v_add_u32 v{vT0}, {L_STC}, v{vL16}
s_waitcnt lgkmcnt(0)
s_barrier
s_cmp_lg_u32 s{S_W}, 0
s_cbranch_scc1 {lsk}
s_mov_b64 exec, 0xff
ds_read_b128 {vr(g,4)}, v{vT0}
s_waitcnt lgkmcnt(0)
buffer_store_dwordx4 {vr(g,4)}, v{vL16}, {WS}, s{T+12} offen sc1
s_mov_b64 exec, -1
{lsk}:""")
    stamp(a, 9)
    a(f"s_cmp_lt_u32 s{S_SLOT}, {NO}\ns_cbranch_scc1 L_owner")
    if 'nopb' not in OPT:
        a("s_barrier")
    a("s_branch L_s0_w")
    a("L_s0_none:")
    a(f"s_waitcnt lgkmcnt(0)\ns_load_dword s{S_TAG}, s[{S_WS}:{S_WS+1}], {EPOCH}")
    srd(a, R_WS, S_WS, SZ_WS)
    lane_consts(a)
    get_tag(a)
    if 'cw' in OPT:
        a("s_waitcnt vmcnt(0)")
    a("L_s0_w:")
    b_setup(a)
    w_dma(a, 18)

VOX = 96

S_UCT, S_UTB = 9, 10
vDU = 14
KE = int(OPT.get('ke', 12))
def wo_dma(a, n0, n1):
    a(f"s_add_u32 s{T+10}, s{S_W}, {4*n0-4}")
    for n in range(n0, n1):
        a(f"""s_lshl_b32 m0, s{T+10}, 10
s_mul_i32 s{T+11}, s{T+10}, {8*2304}
buffer_load_dwordx4 v{vDU}, {RB}, s{T+11} offen lds""")
        if n < n1-1:
            a(f"s_add_u32 s{T+10}, s{T+10}, 4")

def gemm_loop(a, nsteps, LA, RING, vAcc, vWF, vH, vA0, vA1, vaddr, sH, lds_first, w_is_a, pre=None, rot=None, bar_at=None):
    WA = 2
    state = dict(issued=0)
    if rot:
        sR, sHs, sHe, sLo, sZ, sLe, vC0, vC1 = rot
        a(f"""s_mov_b32 s{sHs}, s{sH}
s_add_u32 s{sHe}, s{sH}, {nsteps*1024}
s_lshl_b32 s{sLo}, s{sR}, 12
s_add_u32 s{sH}, s{sH}, s{sLo}
s_lshl_b32 s{sLo}, s{sR}, 13
s_mov_b32 s{sZ}, 0
s_mov_b32 s{sLe}, {nsteps*2048}""")
    def hload():
        s = state['issued']
        a(f"buffer_load_dwordx4 {vr(vH+4*(s % RING),4)}, v{vaddr}, {WS}, s{sH} offen offset:{(s&3)*1024} sc1")
        if (s & 3) == 3 and s < nsteps-1:
            if rot: wrap_add(a, sH, 4096, sHe, sHs)
            else: a(f"s_add_u32 s{sH}, s{sH}, 4096")
        state['issued'] += 1
    def wread(s):
        if rot:
            if (s & 3) == 0:
                a(f"v_add_u32 v{vC0}, s{sLo}, v{vA0}\nv_add_u32 v{vC1}, s{sLo}, v{vA1}")
                wrap_add(a, sLo, 8192, sLe, sZ)
            trreads(a, vWF + 8*(s & 3), vC0, vC1, (s & 3)*2048)
            return
        if s and (s & 31) == 0:
            a(f"v_add_u32 v{vA0}, 0x10000, v{vA0}\nv_add_u32 v{vA1}, 0x10000, v{vA1}")
        trreads(a, vWF + 8*(s & 3), vA0, vA1, (s & 31)*2048)
    if lds_first:
        for s in range(WA): wread(s)
    for s in range(LA): hload()
    if pre: pre()
    if not lds_first:
        for s in range(WA): wread(s)
    for s in range(nsteps):
        lg = 4*min(WA-1, nsteps-1 - s)
        a(f"s_waitcnt vmcnt({state['issued'] - s - 1}) lgkmcnt({lg})")
        if s == 0 and lds_first: stamp(a, 4)
        h = vH+4*(s % RING); w0 = vWF+8*(s & 3)
        mfma(a, vAcc, *((w0, h) if w_is_a else (h, w0)), s == 0)
        if s + WA < nsteps:
            wread(s + WA)
        mfma(a, vAcc+16, *((w0+4, h) if w_is_a else (h, w0+4)), s == 0)
        if state['issued'] < nsteps:
            hload()
        if bar_at is not None and s == bar_at:
            a("s_barrier")

SZ = int(OPT['sz']) if 'sz' in OPT else None
UM = int(OPT.get('umap', 2)); UML = UM.bit_length()-1
vDX, vDXO = 236, 235
def d_tile(a):
    sQt, sCt, sCb, sKh, sOff, sXo, sJ, sU, sB, sCol = T, T+1, T+2, T+3, T+4, T+5, T+6, T+7, T+8, T+9
    a(f"""s_and_b32 s{sOff}, s{S_G}, 3
s_mul_i32 s{sOff}, s{sOff}, 18
s_min_u32 s{sJ}, s{S_SLOT}, 17
s_add_u32 s{sOff}, s{sOff}, s{sJ}
s_lshr_b32 s{sCt}, s{sOff}, 3
s_and_b32 s{sJ}, s{sOff}, 7
s_lshr_b32 s{sB}, s{S_G}, 2
s_lshl_b32 s{sQt}, s{sB}, 3
s_add_u32 s{sQt}, s{sQt}, s{sJ}
s_and_b32 s{sCb}, s{S_W}, 3
s_lshr_b32 s{sKh}, s{S_W}, 2
s_lshl_b32 s{sCol}, s{sCt}, 7
s_lshl_b32 s{sXo}, s{sQt}, 3
s_add_u32 s{sXo}, s{sXo}, s{S_W}
s_mul_i32 s{sXo}, s{sXo}, {4*2304}
s_lshl_b32 s{sOff}, s{sCol}, 1
s_add_u32 s{sXo}, s{sXo}, s{sOff}
v_lshrrev_b32 v{vDXO}, 4, v0
v_mul_u32_u24 v{vDXO}, 2304, v{vDXO}
v_and_b32 v{vT3}, 15, v0
v_lshl_add_u32 v{vDXO}, v{vT3}, 4, v{vDXO}""")

def phase_bc(a):
    sTb, sOff, sH, sF = T+1, T+4, T+5, T+6
    vA0, vA1 = V0+1, V0+2
    vAcc = 20
    vWF = 52
    vH = 84
    a("L_b:")
    stamp(a, 1)
    srd(a, R_B, S_WO, SZ_WO)
    srd(a, R_A, S_X, SZ_X)
    a(f"s_sub_u32 s{S_SLOT}, s{S_SLOT}, {NO}")
    d_tile(a)
    a(f"""buffer_load_dwordx4 {vr(vDX,4)}, v{vDXO}, {RA}, s{T+5} offen
s_and_b32 s{T+14}, s{S_G}, {UM-1}
s_mul_i32 s{T+14}, s{T+14}, 18
s_add_u32 s{T+14}, s{T+14}, s{S_SLOT}
s_lshr_b32 s{S_UCT}, s{T+14}, {UML}
s_and_b32 s{T+14}, s{T+14}, {UM-1}
s_lshr_b32 s{S_UTB}, s{S_G}, {UML}
s_lshl_b32 s{S_UTB}, s{S_UTB}, {UML}
s_add_u32 s{S_UTB}, s{S_UTB}, s{T+14}
s_lshl_b32 s{S_UTB}, s{S_UTB}, 1
s_and_b32 s{T+14}, s{S_W}, 1
s_add_u32 s{S_UTB}, s{S_UTB}, s{T+14}
v_lshlrev_b32 v{vDU}, 4, v{vCH}
v_mul_u32_u24 v{vT0}, 2304, v{vR8}
s_lshl_b32 s{T+14}, s{S_UCT}, 7
v_add3_u32 v{vDU}, v{vDU}, v{vT0}, s{T+14}
s_lshl_b32 s{sTb}, s{S_BRT}, 2
s_and_b32 s{sOff}, s{S_W}, 3
s_add_u32 s{sTb}, s{sTb}, s{sOff}
s_mul_i32 s{sH}, s{sTb}, {72*1024}
s_add_u32 s{sH}, s{sH}, {WS_H}
v_mov_b32 v{vA0}, v{vB0}
v_mov_b32 v{vA1}, v{vB1}
v_min_u32 v{vT0}, 17, v0
v_lshlrev_b32 v{vT0}, 7, v{vT0}
s_lshr_b32 s{sOff}, s{S_BRT}, 1
s_mul_i32 s{sOff}, s{sOff}, {18*128}
s_add_u32 s{sOff}, s{sOff}, {F_H}
s_mul_i32 s{sF}, s{S_BRT}, 54
s_add_u32 s{sF}, s{sF}, s{S_BCT}
s_lshl_b32 s{sF}, s{sF}, 7
s_add_u32 s{sF}, s{sF}, {F_QKV}
s_waitcnt vmcnt(0)""")
    a("s_barrier")
    stamp(a, 2)
    a(f"s_cmp_ge_u32 s{S_W}, 4\ns_cbranch_scc1 L_ld")
    HPWG = OPT.get('hp', 'w') == 'wg'
    if HPWG:
        poll(a, vT0, f"s{sOff}", vT1)
    else:
        wpoll(a, vT0, f"s{sOff}", vT1)
    stamp(a, 3)
    LA = int(OPT['la'])
    BR = int(OPT.get('brot', 0))
    if BR:
        a(f"s_mul_i32 s{T+8}, s{S_G}, {BR}")
    gemm_loop(a, 72, LA, LA+4, vAcc, vWF, vH, vA0, vA1, vL16, sH, True, True, bar_at=SZ,
              rot=(T+8, T+9, T+10, T+11, T+12, T+13, V0, V0+3) if BR else None)
    stamp(a, 5)
    a(f"""s_mul_i32 s{sH}, s{sTb}, {216*1024}
s_lshl_b32 s{sOff}, s{S_BCT}, 12
s_add_u32 s{sH}, s{sH}, s{sOff}
s_add_u32 s{sH}, s{sH}, {WS_QKV}
s_nop 7""")
    for u in range(4):
        if u == 2:
            a("s_nop 1")
        for r in range(4*u, 4*u+4):
            a(f"v_cvt_pk_bf16_f32 v{vWF+r}, v{vAcc+2*r}, v{vAcc+2*r+1}")
        a(f"buffer_store_dwordx4 {vr(vWF+4*u,4)}, v{vL16}, {WS}, s{sH} offen offset:{1024*u} sc1")
    a("s_barrier")
    stamp(a, 6)
    sKh = T+2
    a(f"""s_lshr_b32 s{sKh}, s{S_W}, 1
s_mul_i32 s{sH}, s{S_UTB}, {216*1024}
s_mul_i32 s{sOff}, s{sKh}, {36*1024}
s_add_u32 s{sH}, s{sH}, s{sOff}
s_add_u32 s{sH}, s{sH}, {WS_QKV + 144*1024}
s_mul_i32 s{sOff}, s{sKh}, {576*128}
v_add_u32 v{vA0}, s{sOff}, v{vB0}
v_add_u32 v{vA1}, s{sOff}, v{vB1}
v_min_u32 v{vT0}, 8, v0
v_lshlrev_b32 v{vT0}, 7, v{vT0}
s_lshr_b32 s{T+7}, s{S_UTB}, 2
s_mul_i32 s{T+7}, s{T+7}, {54*128}
s_mul_i32 s{sOff}, s{sKh}, {9*128}
s_add_u32 s{T+7}, s{T+7}, s{sOff}
s_add_u32 s{T+7}, s{T+7}, {F_QKV + 36*128}""")
    set_flag(a, f"s{sF}")
    stamp(a, 7)
    a(f"s_cmp_ge_u32 s{S_SLOT}, 18\ns_cbranch_scc1 L_c_notu")
    if 'udelay' in OPT:
        a(f"s_sleep {OPT['udelay']}")
    UROT = int(OPT.get('urot', 0))
    if UROT:
        a(f"s_mul_i32 s{T+8}, s{S_G if 'urg' in OPT else S_UCT}, {UROT}")
        mod9(a, T+8, T+8, T+9)
    wpoll(a, vT0, f"s{T+7}", vT1)
    stamp(a, 12)
    LA = int(OPT.get('lau', 12))
    gemm_loop(a, 36, LA, min(36, LA+4), vAcc, vWF, vH, vA0, vA1, vP16, sH, False, False, pre=lambda: (a("s_barrier"), stamp(a, 11)),
              rot=(T+8, T+9, T+10, T+11, T+12, T+13, V0, V0+3) if UROT else None)
    stamp(a, 13)
    lk1 = a.label("kh1"); lj = a.label("j")
    a(f"""s_lshl_b32 s{sOff}, s{S_W}, 12
s_add_u32 s{sOff}, s{sOff}, {L_MISC}
v_add_u32 v{vT0}, s{sOff}, v{vL16}
v_xor_b32 v{vT1}, {2*4096}, v{vT0}
s_lshr_b32 s{sH}, s{S_UTB}, 3
s_mul_i32 s{sF}, s{sH}, 18
s_add_u32 s{sF}, s{sF}, s{S_UCT}
s_lshl_b32 s{sH}, s{sF}, 1
s_add_u32 s{sH}, s{sH}, s{sKh}
s_lshl_b32 s{sH}, s{sH}, 3
s_and_b32 s{sOff}, s{S_UTB}, 7
s_add_u32 s{sH}, s{sH}, s{sOff}
s_lshl_b32 s{sH}, s{sH}, 11
s_add_u32 s{sH}, s{sH}, {WS_U}
s_lshl_b32 s{sF}, s{sF}, 2
s_bfe_u32 s{sOff}, s{S_UTB}, 0x20001
s_add_u32 s{sF}, s{sF}, s{sOff}
s_lshl_b32 s{sF}, s{sF}, 7
s_add_u32 s{sF}, s{sF}, {F_U}
s_cmp_lg_u32 s{sKh}, 0
s_cbranch_scc1 {lk1}""")
    for q in range(4):
        a(f"ds_write_b128 v{vT0}, {vr(vAcc+16+4*q,4)} offset:{q*1024}")
    a(f"s_branch {lj}\n{lk1}:")
    for q in range(4):
        a(f"ds_write_b128 v{vT0}, {vr(vAcc+4*q,4)} offset:{q*1024}")
    for r in range(16):
        a(f"v_mov_b32 v{vAcc+r}, v{vAcc+16+r}")
    a(f"{lj}:\ns_waitcnt lgkmcnt(0)\ns_barrier")
    for q in range(4):
        a(f"ds_read_b128 {vr(vWF+4*q,4)}, v{vT1} offset:{q*1024}")
    for u in range(2):
        a(f"s_waitcnt lgkmcnt({2-2*u})")
        for r in range(8*u, 8*u+8):
            a(f"v_add_f32 v{vAcc+r}, v{vAcc+r}, v{vWF+r}")
        for r in range(4*u, 4*u+4):
            a(f"v_cvt_pk_bf16_f32 v{vWF+16+r}, v{vAcc+2*r}, v{vAcc+2*r+1}")
        a(f"buffer_store_dwordx4 {vr(vWF+16+4*u,4)}, v{vL16}, {WS}, s{sH} offen offset:{1024*u} sc1")
    set_flag(a, f"s{sF}")
    a("s_branch L_c_done")
    lnu = a.label("ldnu")
    vWo = 20
    NE = int(OPT.get('ne', 18))
    a("L_ld:")
    if 'tlb' in OPT:
        sh = int(OPT['tlb'])
        lt = a.label("tlb")
        srd(a, R_A, S_OUT, SZ_X)
        srd(a, R_C, S_WS, 0x700000)
        a(f"s_cmp_lg_u32 s{S_W}, 7\ns_cbranch_scc1 {lt}\nv_lshlrev_b32 v{vT2}, {sh}, v0\nv_add_u32 v{vT2}, {(1<<sh)-128}, v{vT2}")
        a(f"buffer_load_dword v236, v{vT2}, {RA}, 0 offen")
        for off in range(0, 0x700000, 64 << sh):
            a(f"v_add_u32 v{vT1}, {off}, v{vT2}\nbuffer_load_dword v237, v{vT1}, {RC}, 0 offen sc1")
        a(f"{lt}:")
    NA = int(OPT.get('na', 0))
    a(f"""s_cmp_ge_u32 s{S_SLOT}, 18
s_cbranch_scc1 {lnu}
s_sub_u32 s{T+10}, s{S_W}, 4
s_lshl_b32 s{T+11}, s{T+10}, 10
v_add_u32 v{vT0}, s{T+11}, v{vL16}
s_bfe_u32 s{T+12}, s{S_UTB}, 0x10001
s_mul_i32 s{T+12}, s{T+12}, 72
s_bfe_u32 s{T+11}, s{S_UTB}, 0x10002
s_mul_i32 s{T+11}, s{T+11}, {36 if UM > 2 else 0}
s_add_u32 s{T+12}, s{T+12}, s{T+11}
s_add_u32 s{T+10}, s{T+10}, s{T+12}
s_lshl_b32 s{T+12}, s{T+12}, 10""")
    def nxt(n):
        if n < 35:
            a(f"s_add_u32 s{T+10}, s{T+10}, 4")
            if n % 9 == 8:
                a(f"""s_sub_u32 s{T+11}, s{T+10}, 144
s_cmp_ge_u32 s{T+10}, 144
s_cselect_b32 s{T+10}, s{T+11}, s{T+10}""")
    for n in range(NE):
        if SZ is not None and n == NA:
            a("s_barrier")
        a(f"""s_mul_i32 s{T+11}, s{T+10}, {8*2304}
buffer_load_dwordx4 {vr(vWo+4*n,4)}, v{vDU}, {RB}, s{T+11} offen
{THRO}""")
        nxt(n)
    stamp(a, 4)
    if HPWG:
        a("s_barrier")
    a("s_barrier")
    stamp(a, 5)
    WS_ = min(NE, int(OPT.get('wsplit', 12)))
    def wr(n):
        if n % 9 == 0:
            a(f"v_add_u32 v{vT1}, s{T+12}, v{vT0}")
            a(f"""s_add_u32 s{T+12}, s{T+12}, {36*1024}
s_cmp_ge_u32 s{T+12}, {144*1024}
s_cselect_b32 s{T+12}, 0, s{T+12}""")
        a(f"ds_write_b128 v{vT1}, {vr(vWo+4*n,4)} offset:{(n % 9)*4096}")
    KD = min(36-NE, int(OPT.get('kd', 0)))
    def dm(n):
        a(f"""s_lshl_b32 m0, s{T+10}, 10
s_mul_i32 s{T+11}, s{T+10}, {8*2304}
buffer_load_dwordx4 v{vDU}, {RB}, s{T+11} offen lds""")
        nxt(n)
    a("s_waitcnt vmcnt(0)")
    for n in range(NE, NE+KD): dm(n)
    for n in range(WS_): wr(n)
    a("s_barrier")
    if 'dfirst' in OPT:
        a("s_nop 15")
        for n in range(NE+KD, 36): dm(n)
        for n in range(WS_, NE): wr(n)
    else:
        for n in range(WS_, NE): wr(n)
        for n in range(NE+KD, 36): dm(n)
    a(f"""s_waitcnt vmcnt(0) lgkmcnt(0)""")
    stamp(a, 11)
    lg4 = a.label("g4")
    a(f"""s_barrier
s_cmp_lg_u32 s{S_W}, 4
s_cbranch_scc1 {lg4}""")
    d_tile(a)
    a(f"""s_lshr_b32 s{T+10}, s{T+9}, 6
s_lshl_b32 s{T+10}, s{T+10}, 7
s_add_u32 s{T+10}, s{T+10}, {F_G}
v_and_b32 v{vT0}, 1, v0
v_lshlrev_b32 v{vT0}, 7, v{vT0}
s_mul_i32 s{T+11}, s{T+8}, 4608
s_lshl_b32 s{T+12}, s{T+9}, 2
s_add_u32 s{T+11}, s{T+11}, s{T+12}
s_add_u32 s{T+11}, s{T+11}, {WS_GATE}
v_lshlrev_b32 v{vT2}, 3, v0""")
    wpoll(a, vT0, f"s{T+10}", vT1)
    a(f"""buffer_load_dwordx2 v[20:21], v{vT2}, {WS}, s{T+11} offen sc1
s_waitcnt vmcnt(0)
s_barrier
ds_write_b64 v{vT2}, v[20:21] offset:{L_GATE}
s_waitcnt lgkmcnt(0)
s_barrier
s_branch L_c_done
{lg4}:
s_barrier
s_barrier
s_branch L_c_done
{lnu}:
s_barrier
s_barrier""")
    if SZ is not None:
        a("s_barrier")
    if HPWG:
        a("s_barrier")
    a("L_c_notu:")
    sQb, sKb, sKq, sJ, sK, sQ, sTy = T, T+1, T+2, T+3, T+5, T+6, T+9
    sM = T+10
    sK1 = T+12
    vS = 56
    RING = 15
    a(f"""s_sub_u32 s{sJ}, s{S_SLOT}, 18
s_lshr_b32 s{sTy}, s{sJ}, 2
s_and_b32 s{sKq}, s{S_W}, 3
s_and_b32 s{sQb}, s{S_G}, 1
s_lshl_b32 s{sQb}, s{sQb}, 2
s_and_b32 s{sOff}, s{sJ}, 3
s_add_u32 s{sQb}, s{sQb}, s{sOff}
s_and_b32 s{sKb}, s{S_G}, 2
s_lshl_b32 s{sKb}, s{sKb}, 1
s_lshr_b32 s{sOff}, s{S_G}, 2
s_lshl_b32 s{sOff}, s{sOff}, 3
s_add_u32 s{sQb}, s{sQb}, s{sOff}
s_add_u32 s{sKb}, s{sKb}, s{sOff}
s_min_u32 s{sK1}, s{sTy}, 1
s_add_u32 s{sK1}, s{sK1}, s{sTy}
s_mul_i32 s{sK}, s{sKb}, {216*1024}
s_mul_i32 s{sQ}, s{sQb}, {216*1024}
s_mul_i32 s{sOff}, s{sKq}, {18*1024}
s_add_u32 s{sK}, s{sK}, s{sOff}
s_add_u32 s{sQ}, s{sQ}, s{sOff}
s_add_u32 s{sK}, s{sK}, {WS_QKV + 72*1024}
s_add_u32 s{sQ}, s{sQ}, {WS_QKV}
v_min_u32 v{vT0}, 17, v{vTok}
v_lshlrev_b32 v{vT0}, 7, v{vT0}
s_lshr_b32 s{sOff}, s{sKb}, 2
s_mul_i32 s{sOff}, s{sOff}, {54*128}
s_add_u32 s{sOff}, s{sOff}, {18*128}
s_lshr_b32 s{T+13}, s{sQb}, 2
s_mul_i32 s{T+13}, s{T+13}, {54*128}
s_sub_u32 s{sOff}, s{sOff}, s{T+13}
v_mul_lo_u32 v{vT1}, v{vHF}, s{sOff}
v_add_u32 v{vT0}, v{vT0}, v{vT1}
v_add_u32 v{vT0}, s{T+13}, v{vT0}
v_and_b32 v{vT2}, 0x2ff, v{vP16}
v_and_b32 v{vT1}, 16, v0
v_lshl_add_u32 v{vT2}, v{vT1}, 6, v{vT2}
s_and_b32 s{sOff}, s{sTy}, 1
s_lshl_b32 s{sOff}, s{sOff}, 8
s_add_u32 s{sOff}, s{sOff}, {216*1024}
v_add_u32 v{vT2}, s{sOff}, v{vT2}
s_mul_i32 s{sOff}, s{sK1}, {216*1024}
v_add_u32 v{V0}, s{sOff}, v{vP16}
s_mov_b32 s{sOff}, {F_QKV}""")
    poll(a, vT0, f"s{sOff}", vT1)
    stamp(a, 12)
    lsi = a.label("sidle")
    a(f"s_cmp_ge_u32 s{S_W}, 4\ns_cbranch_scc1 {lsi}")
    LA = int(OPT.get('las', 4))
    vS = 72; RING = 8
    vAc3 = 56
    assert LA < RING
    def sload(p):
        r = vS + 20*(p % RING)
        o = (p & 1)*2048
        a(f"""buffer_load_dwordx4 {vr(r,4)}, v{vL16}, {WS}, s{sQ} offen offset:{o} sc1
buffer_load_dwordx4 {vr(r+4,4)}, v{V0}, {WS}, s{sK} offen offset:{o} sc1
buffer_load_dwordx4 {vr(r+8,4)}, v{vT2}, {WS}, s{sK} offen offset:{o} sc1
buffer_load_dwordx4 {vr(r+12,4)}, v{vL16}, {WS}, s{sQ} offen offset:{o+1024} sc1
buffer_load_dwordx4 {vr(r+16,4)}, v{V0}, {WS}, s{sK} offen offset:{o+1024} sc1""")
        if p & 1:
            a(f"s_add_u32 s{sK}, s{sK}, 4096\ns_add_u32 s{sQ}, s{sQ}, 4096")
    for p in range(LA):
        sload(p)
    for p in range(9):
        y = 5*(min(9, p + LA) - p - 1)
        r = vS + 20*(p % RING)
        a(f"s_waitcnt vmcnt({y+3})")
        mfma(a, vAcc, r+4, r, p == 0)
        a(f"s_waitcnt vmcnt({y+2})")
        mfma(a, vAcc+16, r+8, r, p == 0)
        a(f"s_waitcnt vmcnt({y+1})")
        mfma(a, vAc3, r+8, r+12, p == 0)
        a(f"s_waitcnt vmcnt({y})")
        mfma(a, vAcc, r+16, r+12)
        if p + LA < 9:
            sload(p + LA)
    stamp(a, 13)
    QS, HS, PSZ = 1056, 528, 8448
    a(f"""s_mul_i32 s{sOff}, s{S_W}, {PSZ}
v_lshl_add_u32 v{vT0}, v{vHF}, 4, v{vL16}
v_add_u32 v{vT0}, s{sOff}, v{vT0}
s_nop 7""")
    for r in range(8):
        a(f"v_add_f32 v{vAcc+16+r}, v{vAcc+16+r}, v{vAc3+8+r}")
    for q in (4, 5, 0, 1, 2, 3):
        a(f"ds_write_b128 v{vT0}, {vr(vAcc+4*q,4)} offset:{q*QS}")
    a(f"""{lsi}:
v_bfe_u32 v{vT1}, v0, 2, 2
v_and_b32 v{vT2}, 1, v0
v_lshl_add_u32 v{vT1}, v{vT1}, 1, v{vT2}
v_mul_u32_u24 v{vT1}, {QS}, v{vT1}
v_bfe_u32 v{vT2}, v0, 1, 1
v_mul_u32_u24 v{vT2}, {HS}, v{vT2}
v_lshrrev_b32 v{vT0}, 4, v0
s_lshl_b32 s{sOff}, s{S_W}, 2
v_add_u32 v{vT0}, s{sOff}, v{vT0}
v_lshl_add_u32 v{vT1}, v{vT0}, 4, v{vT1}
v_add_u32 v{vT1}, v{vT1}, v{vT2}
v_and_b32 v{vT2}, 7, v0
v_lshlrev_b32 v{vT2}, 4, v{vT2}
v_lshl_add_u32 v{vT2}, v{vT0}, 10, v{vT2}
s_lshl_b32 s{sOff}, s{sK1}, 7
v_mov_b32 v{vT0}, s{sOff}
v_and_b32 v{vT3}, 8, v0
v_cmp_ne_u32 vcc, 0, v{vT3}
s_and_b32 s{sOff}, s{sTy}, 1
s_lshl_b32 s{sOff}, s{sOff}, 6
s_add_u32 s{sOff}, s{sOff}, 128
v_mov_b32 v{vT3}, s{sOff}
s_lshl_b32 s{sJ}, s{sQb}, 15
v_cndmask_b32 v{vT0}, v{vT0}, v{vT3}, vcc
v_add_u32 v{vT2}, v{vT2}, v{vT0}
s_and_b32 s{sOff}, s{sKb}, 7
s_lshl_b32 s{sOff}, s{sOff}, 7
s_add_u32 s{sJ}, s{sJ}, s{sOff}
s_add_u32 s{sJ}, s{sJ}, {WS_L}
s_lshl_b32 s{sK}, s{sQb}, 3
s_add_u32 s{sK}, s{sK}, s{S_W}
s_mul_i32 s{sK}, s{sK}, 6
s_bfe_u32 s{sOff}, s{sKb}, 0x10002
s_mul_i32 s{sOff}, s{sOff}, 3
s_add_u32 s{sK}, s{sK}, s{sOff}
s_add_u32 s{sK}, s{sK}, s{sTy}
s_lshl_b32 s{sK}, s{sK}, 7
s_add_u32 s{sK}, s{sK}, {F_LH}
s_mov_b32 s{sM}, 0x0fff0fff
s_cmp_eq_u32 s{sTy}, 2
s_cselect_b32 s{sM}, 0x00ff00ff, s{sM}
s_mov_b32 s{sM+1}, s{sM}
v_mov_b32 v53, v{vTAG}
v_mov_b32 v55, v{vTAG}
s_waitcnt lgkmcnt(0)
s_barrier""")
    for j in range(4):
        a(f"ds_read_b128 {vr(vAcc+4*j,4)}, v{vT1} offset:{j*PSZ}")
    a("s_waitcnt lgkmcnt(2)")
    for r in range(4):
        a(f"v_add_f32 v{vAcc+r}, v{vAcc+r}, v{vAcc+4+r}")
    a("s_waitcnt lgkmcnt(0)")
    for r in range(4):
        a(f"v_add_f32 v{vAcc+8+r}, v{vAcc+8+r}, v{vAcc+12+r}")
    for r in range(4):
        a(f"v_add_f32 v{vAcc+r}, v{vAcc+r}, v{vAcc+8+r}")
    sc = struct.unpack('<I', struct.pack('<f', D ** -0.5))[0]
    for r in range(2):
        a(f"v_cvt_pk_bf16_f32 v{52+2*r}, v{vAcc+2*r}, v{vAcc+2*r+1}")
    for r in range(2):
        unpack(a, vAcc+2*r, vAcc+2*r+1, 52+2*r)
    for r in range(4):
        a(f"v_mul_f32 v{vAcc+r}, {hex(sc)}, v{vAcc+r}")
    for r in range(2):
        a(f"v_cvt_pk_bf16_f32 v{52+2*r}, v{vAcc+2*r}, v{vAcc+2*r+1}")
    a(f"s_mov_b64 exec, s[{sM}:{sM+1}]\nbuffer_store_dwordx4 v[52:55], v{vT2}, {WS}, s{sJ} offen sc1\ns_mov_b64 exec, -1")
    raw_flag(a, f"s{sK}")
    a("L_c_done:")
    stamp(a, 14)

def phase_d(a):
    sQt, sCt, sCb, sKh, sOff, sXo, sJ, sU, sB, sCol = T, T+1, T+2, T+3, T+4, T+5, T+6, T+7, T+8, T+9
    vXo, vMx, vS, vLa, vPa, vLw = vDXO, V0+1, V0+2, V0+3, V0+4, V0+5
    vLd = 24
    vX = vDX
    vG = 44
    vF = 56
    vR = 72
    vAcc = 80
    vU = 96
    vP = 128
    PS = 1056
    L_P, L_EX = 40960, 65536
    srd(a, R_B, S_OUT, SZ_X)
    a(f"s_cmp_ge_u32 s{S_SLOT}, 18\ns_cbranch_scc1 L_fin")
    d_tile(a)
    a(f"""s_mul_i32 s{sU}, s{sB}, 36
s_lshl_b32 s{sOff}, s{sCt}, 2
s_add_u32 s{sU}, s{sU}, s{sOff}
s_add_u32 s{sU}, s{sU}, s{sCb}
s_lshr_b32 s{T+10}, s{sU}, 1
s_lshl_b32 s{sU}, s{sU}, 4
s_lshl_b32 s{sOff}, s{sKh}, 3
s_add_u32 s{sU}, s{sU}, s{sOff}
s_lshl_b32 s{sU}, s{sU}, 10
s_add_u32 s{sU}, s{sU}, {WS_U}
s_lshl_b32 s{T+10}, s{T+10}, 1
s_add_u32 s{T+10}, s{T+10}, s{sKh}
s_lshl_b32 s{T+10}, s{T+10}, 8
s_add_u32 s{T+10}, s{T+10}, {F_U}
v_and_b32 v{vT0}, 1, v0
v_lshlrev_b32 v{vT0}, 7, v{vT0}
v_add_u32 v{vT1}, s{T+10}, v{vT0}
s_lshl_b32 s{sOff}, s{sQt}, 3
s_add_u32 s{sOff}, s{sOff}, s{S_W}
s_mul_i32 s{sOff}, s{sOff}, {6*128}
s_add_u32 s{sOff}, s{sOff}, {F_LH}
v_min_u32 v{vT2}, 5, v0
v_lshlrev_b32 v{vT2}, 7, v{vT2}
v_add_u32 v{vT2}, s{sOff}, v{vT2}
v_cmp_gt_u32 vcc, 8, v0
v_and_b32 v{vT3}, 15, v0
v_lshrrev_b32 v{vT0}, 4, v0
v_cndmask_b32 v{vT1}, v{vT1}, v{vT2}, vcc
s_lshl_b32 s{sOff}, s{S_W}, 2
v_add_u32 v{vT0}, s{sOff}, v{vT0}
v_lshlrev_b32 v{vLa}, 10, v{vT0}
v_lshl_add_u32 v{vLa}, v{vT3}, 4, v{vLa}
v_lshrrev_b32 v{vT2}, 1, v{vT3}
v_mul_u32_u24 v{vLw}, {PS//2}, v{vT2}
v_lshl_add_u32 v{vLw}, v{vT0}, 4, v{vLw}
v_and_b32 v{vT2}, 1, v0
v_lshl_add_u32 v{vLw}, v{vT2}, 3, v{vLw}
v_lshl_add_u32 v{vPa}, v{vHF}, 4, v{vL16}
s_mul_i32 s{sOff}, s{sKh}, {8*PS}
v_add_u32 v{vPa}, s{sOff}, v{vPa}
v_lshlrev_b32 v{vT0}, 5, v{vT3}
ds_read_b128 {vr(vG,4)}, v{vT0} offset:{L_GATE}
ds_read_b128 {vr(vG+4,4)}, v{vT0} offset:{L_GATE+16}
s_lshl_b32 s{sOff}, s{sQt}, 15
s_add_u32 s{sOff}, s{sOff}, {WS_L}""")
    vFa, vFl = 22, 23
    sUd = T+12
    def uloads():
        for s in range(8):
            a(f"buffer_load_dwordx4 {vr(vU+4*s,4)}, v{vL16}, {WS}, s{sU} offen offset:{(s&3)*1024} sc1")
            if s == 3:
                a(f"s_add_u32 s{sU}, s{sU}, 4096")
        a(f"s_mov_b32 s{sUd}, 1")
        stamp(a, 8)
    l = a.label("lp"); d = a.label("lpd"); nu = a.label("nu"); l3 = a.label("lv"); d3 = a.label("lvd"); nu2 = a.label("nu2")
    def lloads():
        for n in range(4):
            a(f"buffer_load_dwordx4 {vr(vLd+4*n,4)}, v{vLa}, {WS}, s{sOff} offen offset:{256*n} sc1")
    a(f"""v_mov_b32 v{vFa}, v{vT1}
s_mov_b32 s{sUd}, 0
{l}:
buffer_load_dword v{vFl}, v{vFa}, {WS}, 0 offen {PF}
s_waitcnt vmcnt(0)
v_cmp_ne_u32 vcc, s{S_TAG}, v{vFl}
s_and_b32 s{T+13}, vcc_lo, 255
s_cbranch_scc0 {d}
s_lshr_b32 s{T+13}, vcc_lo, 8
s_or_b32 s{T+13}, s{T+13}, s{sUd}
s_cbranch_scc1 {nu}""")
    uloads()
    a(f"""{nu}:
s_sleep {OPT.get('lsleep', 1)}
s_sub_u32 s{S_TO}, s{S_TO}, 1
s_cmp_lg_u32 s{S_TO}, 0
s_cbranch_scc1 {l}
s_mov_b32 s{S_TO}, 1
{d}:""")
    lloads()
    a(f"""s_lshr_b32 s{T+13}, vcc_lo, 8
s_or_b32 s{T+13}, s{T+13}, s{sUd}
s_cbranch_scc1 {nu2}""")
    if 'ul' in OPT:
        a(f"s_waitcnt vmcnt({OPT['ul']})")
    uloads()
    a(f"""s_waitcnt vmcnt(8)
s_branch {l3}_c
{nu2}:
buffer_load_dword v{vFl}, v{vFa}, {WS}, 0 offen {PF}
s_waitcnt vmcnt(1)
s_branch {l3}_c
{l3}:""")
    lloads()
    a(f"""s_waitcnt vmcnt(0)
{l3}_c:
v_min_u32 v{vT1}, v{vLd+1}, v{vLd+3}
v_max_u32 v{vT2}, v{vLd+1}, v{vLd+3}""")
    for n in range(1, 4):
        a(f"v_min3_u32 v{vT1}, v{vT1}, v{vLd+4*n+1}, v{vLd+4*n+3}\nv_max3_u32 v{vT2}, v{vT2}, v{vLd+4*n+1}, v{vLd+4*n+3}")
    a(f"""v_cmp_ne_u32 vcc, s{S_TAG}, v{vT1}
v_cmp_ne_u32 s[{T+14}:{T+15}], s{S_TAG}, v{vT2}
s_or_b64 vcc, vcc, s[{T+14}:{T+15}]
s_cbranch_vccz {d3}
s_sub_u32 s{S_TO}, s{S_TO}, 1
s_cmp_lg_u32 s{S_TO}, 0
s_cbranch_scc1 {l3}
s_mov_b32 s{S_TO}, 1
{d3}:""")
    stamp(a, 9)
    for i in range(8):
        unpack(a, vF+2*i, vF+2*i+1, vLd+2*i)
    a(f"""v_max3_f32 v{vMx}, v{vF}, v{vF+1}, v{vF+2}
v_max3_f32 v{vS}, v{vF+3}, v{vF+4}, v{vF+5}
v_max3_f32 v{vMx}, v{vMx}, v{vF+6}, v{vF+7}
v_max3_f32 v{vS}, v{vS}, v{vF+8}, v{vF+9}
v_max3_f32 v{vMx}, v{vMx}, v{vF+10}, v{vF+11}
v_max3_f32 v{vS}, v{vS}, v{vF+12}, v{vF+13}
v_max3_f32 v{vMx}, v{vMx}, v{vF+14}, v{vF+15}
v_max_f32 v{vMx}, v{vMx}, v{vS}""")
    for m in ("quad_perm:[1,0,3,2]", "quad_perm:[2,3,0,1]", "row_half_mirror", "row_mirror"):
        a(f"s_nop 1\nv_max_f32_dpp v{vMx}, v{vMx}, v{vMx} {m} row_mask:0xf bank_mask:0xf")
    a(f"s_mov_b32 s{T+10}, {hex(LOG2E)}\nv_mul_f32 v{vMx}, s{T+10}, v{vMx}")
    for i in range(16):
        a(f"v_fma_f32 v{vF+i}, v{vF+i}, s{T+10}, -v{vMx}")
    for i in range(16):
        a(f"v_exp_f32 v{vF+i}, v{vF+i}")
    a(f"v_add_f32 v{vS}, v{vF}, v{vF+1}\nv_add_f32 v{vMx}, v{vF+2}, v{vF+3}")
    for i in range(4, 16, 2):
        a(f"v_add_f32 v{vS}, v{vS}, v{vF+i}\nv_add_f32 v{vMx}, v{vMx}, v{vF+i+1}")
    a(f"v_add_f32 v{vS}, v{vS}, v{vMx}")
    for m in ("quad_perm:[1,0,3,2]", "quad_perm:[2,3,0,1]", "row_half_mirror", "row_mirror"):
        a(f"s_nop 1\nv_add_f32_dpp v{vS}, v{vS}, v{vS} {m} row_mask:0xf bank_mask:0xf")
    a(f"v_rcp_f32 v{vS}, v{vS}\ns_nop 0")
    for i in range(16):
        a(f"v_mul_f32 v{vF+i}, v{vF+i}, v{vS}")
    for i in range(8):
        a(f"v_cvt_pk_bf16_f32 v{vLd+i}, v{vF+2*i}, v{vF+2*i+1}")
    for n in range(4):
        a(f"ds_write_b64 v{vLw}, {vr(vLd+2*n,2)} offset:{L_P+4*n*PS}")
    hu = a.label("hu"); l2 = a.label("up"); d2 = a.label("upd")
    a(f"""s_cmp_lg_u32 s{sUd}, 0
s_cbranch_scc1 {hu}
{l2}:
s_waitcnt vmcnt(0)
v_cmp_ne_u32 vcc, s{S_TAG}, v{vFl}
s_cbranch_vccz {d2}
buffer_load_dword v{vFl}, v{vFa}, {WS}, 0 offen {PF}
s_sub_u32 s{S_TO}, s{S_TO}, 1
s_cmp_lg_u32 s{S_TO}, 0
s_cbranch_scc1 {l2}
s_mov_b32 s{S_TO}, 1
{d2}:""")
    uloads()
    a(f"{hu}:\ns_waitcnt lgkmcnt(0)\ns_barrier")
    for s in range(8):
        a(f"ds_read_b128 {vr(vP+4*s,4)}, v{vPa} offset:{L_P+s*PS}")
    ROW = 528; EXS = 32*ROW
    a(f"""s_mul_i32 s{sOff}, s{sKh}, {EXS}
s_lshl_b32 s{T+10}, s{sCb}, 7
s_add_u32 s{sOff}, s{sOff}, s{T+10}
s_add_u32 s{sOff}, s{sOff}, {L_EX}
v_mul_u32_u24 v{vT1}, {ROW}, v{vTok}
v_lshl_add_u32 v{vT1}, v{vHF}, 5, v{vT1}
v_add_u32 v{vT1}, s{sOff}, v{vT1}
v_lshrrev_b32 v{vT2}, 4, v0
v_mul_u32_u24 v{vT2}, {ROW}, v{vT2}
s_mul_i32 s{sOff}, s{S_W}, {4*ROW}
s_add_u32 s{sOff}, s{sOff}, {L_EX}
v_add3_u32 v{vT2}, v{vT2}, v{vT0}, s{sOff}""")
    for s in range(8):
        a(f"s_waitcnt vmcnt({7-s}) lgkmcnt({7-s})")
        mfma(a, vAcc, vU+4*s, vP+4*s, s == 0)
    for i in range(4):
        unpack(a, vF+2*i, vF+2*i+1, vX+i)
    stamp(a, 10)
    a("s_nop 3")
    for q in range(4):
        a(f"ds_write_b128 v{vT1}, {vr(vAcc+4*q,4)} offset:{64*(q>>1) + 16*(q&1)}")
    a(f"""s_waitcnt lgkmcnt(0)
s_barrier
ds_read_b128 {vr(vAcc,4)}, v{vT2}
ds_read_b128 {vr(vR,4)}, v{vT2} offset:{EXS}
ds_read_b128 {vr(vAcc+4,4)}, v{vT2} offset:16
ds_read_b128 {vr(vR+4,4)}, v{vT2} offset:{EXS+16}
s_waitcnt vmcnt(0) lgkmcnt(2)""")
    for r in range(8):
        if r == 4:
            a("s_waitcnt lgkmcnt(0)")
        a(f"v_add_f32 v{vAcc+r}, v{vAcc+r}, v{vR+r}")
    def cv():
        for i in range(4):
            a(f"v_cvt_pk_bf16_f32 v{vR+i}, v{vAcc+2*i}, v{vAcc+2*i+1}")
    def up():
        for i in range(4):
            unpack(a, vAcc+2*i, vAcc+2*i+1, vR+i)
    cv(); up()
    for r in range(8):
        a(f"v_mul_f32 v{vAcc+r}, v{vAcc+r}, v{vG+r}")
    cv(); up()
    for r in range(8):
        a(f"v_add_f32 v{vAcc+r}, v{vAcc+r}, v{vF+r}")
    cv()
    a(f"buffer_store_dwordx4 {vr(vR,4)}, v{vXo}, {RB}, s{sXo} offen {OPT.get('oflag', '').replace('+', ' ')}")
    a("L_fin:")

def gemv_dma(a, sColA, vD):
    sRow0, sOff = T+2, T+3
    a(f"""v_lshlrev_b32 v{vD}, 4, v{vCH}
v_mul_u32_u24 v{vT0}, 13824, v{vR8}
v_add3_u32 v{vD}, v{vD}, v{vT0}, s{sColA}
s_mul_i32 s{sOff}, s{sRow0}, 13824
s_lshl_b32 m0, s{sRow0}, 7""")
    for t in range(18):
        a(f"""s_nop 0
buffer_load_dwordx4 v{vD}, {RA}, s{sOff} offen {NT} lds""")
        if t < 17:
            a(f"s_add_u32 s{sOff}, s{sOff}, {8*13824}\ns_add_u32 m0, m0, 1024")

def phase_owner(a):
    sColA, sB, sRow0, sOff, sO, sCs, sTb = T, T+1, T+2, T+3, T+4, T+5, T+6
    vD, vA0, vA1, vSil, vCs = V0, V0+1, V0+2, V0+3, V0+4
    vC = 24
    vST = 28
    vX = VOX
    vXN = 48
    vPt = 80
    vAcc = 112
    vWF = 144
    vSF = 160
    vM = 184
    a(f"""s_mov_b32 s{sO}, s2
s_cmp_ge_u32 s{sO}, 36
s_cbranch_scc1 L_o_pref
s_lshr_b32 s{sCs}, s{sO}, 1
s_and_b32 s{sB}, s{sO}, 1
s_waitcnt vmcnt(0)
s_barrier""")
    vST = 32
    vPt = 112
    SM = [32, 33, 34, 35, 36, 37, 38, 39, 40, 41, 42, 43, 9, 10, 11, 12]
    a(f"""v_and_b32 v{vT3}, 7, v0
v_xor_b32 v{vT0}, s{S_W}, v{vT3}
v_lshlrev_b32 v{vT0}, 4, v{vT0}
v_lshl_add_u32 v{vT0}, v0, 7, v{vT0}""")
    for q in range(4):
        a(f"ds_read_b128 {vr(vX+4*q,4)}, v{vT0} offset:{q*8192}")
    a(f"""s_lshl_b32 s{T+9}, s{sB}, 12
s_add_u32 s{T+9}, s{T+9}, {F_STAT}
s_mul_i32 s{T+10}, s{sO}, {18*1024}
s_lshl_b32 s{sOff}, s{S_W}, 7
s_add_u32 s{T+10}, s{T+10}, s{sOff}
s_add_u32 s{T+10}, s{T+10}, {WS_PART}
s_add_u32 s{T+11}, s{T+10}, 8192
v_lshlrev_b32 v{vT1}, 4, v{vT3}
v_min_u32 v{vT2}, 1, v{vR8}
v_lshl_add_u32 v{vT2}, v{vT2}, 10, v{vT1}
v_add_u32 v{vT2}, 16384, v{vT2}
v_lshl_add_u32 v{vT1}, v{vR8}, 10, v{vT1}
v_cmp_gt_u32 vcc, 16, v0
v_mul_u32_u24 v{vCs}, {72*1024}, v{vHF}
v_lshl_add_u32 v{vCs}, v{vTok}, 4, v{vCs}
v_cndmask_b32 v{vA0}, 0, 1.0, vcc
v_bfe_u32 v{vA1}, v0, 2, 1
v_cvt_f32_u32 v{vA1}, v{vA1}
s_mul_i32 s{sOff}, s{sB}, {8*72*1024}
s_lshl_b32 s{T+12}, s{sCs}, 12
s_add_u32 s{sOff}, s{sOff}, s{T+12}
s_lshl_b32 s{T+12}, s{S_W}, 9
s_add_u32 s{sOff}, s{sOff}, s{T+12}
s_add_u32 s{sOff}, s{sOff}, {WS_H}
s_waitcnt lgkmcnt(0)""")
    def stl():
        for q in range(4):
            a(f"buffer_load_dwordx4 {vr(vST+4*q,4)}, v{vL16}, {WS}, s{T+9} offen offset:{1024*q} sc1")
    def pl():
        a(f"""buffer_load_dwordx4 {vr(vPt,4)}, v{vT1}, {WS}, s{T+10} offen sc1
buffer_load_dwordx4 {vr(vPt+4,4)}, v{vT1}, {WS}, s{T+11} offen sc1
buffer_load_dwordx4 {vr(vPt+8,4)}, v{vT2}, {WS}, s{T+10} offen sc1""")
    P = [(q, i) for q in range(4) for i in range(4)]
    lo = lambda q, i: vXN+8*q+2*i
    hi = lambda q, i: vXN+8*q+2*i+1
    xs = lambda q, i: vX+4*q+i
    def st_unpack():
        for q, i in P: unpack(a, lo(q,i), hi(q,i), xs(q,i))
    def st_cvt():
        for q, i in P: a(f"v_cvt_pk_bf16_f32 v{xs(q,i)}, v{lo(q,i)}, v{hi(q,i)}")
    def st_op(op, f):
        for q, i in P:
            a(f"{op} v{lo(q,i)}, v{lo(q,i)}, v{f(q,2*i)}\n{op} v{hi(q,i)}, v{hi(q,i)}, v{f(q,2*i+1)}")
    st_unpack()
    if 'st1' in OPT:
        a(f"v_and_b32 v{vM}, 3, v0\ns_lshl_b32 s{T+12}, s{S_W}, 9\nv_lshlrev_b32 v{vM}, 7, v{vM}\ns_add_u32 s{T+12}, s{T+12}, s{T+9}\nv_add_u32 v{vM}, 124, v{vM}")
        wpoll(a, vM, f"s{T+12}", vM+1)
        a("s_barrier")
    gpoll(a, stl, [vST+4*q+j for q in range(4) for j in (1, 3)], OPT.get('ssleep'))
    stamp(a, 1)
    st_op("v_sub_f32", lambda q, j: vST+4*q); st_cvt()
    st_unpack()
    pl()
    st_op("v_mul_f32", lambda q, j: vST+4*q+2); st_cvt()
    st_unpack()
    stamp(a, 2)
    lp = a.label("pp"); ld = a.label("ppd")
    a(f"""{lp}:
s_waitcnt vmcnt(0)
v_min3_u32 v{vM}, v{vPt+1}, v{vPt+3}, v{vPt+5}
v_max3_u32 v{vM+1}, v{vPt+1}, v{vPt+3}, v{vPt+5}
v_min3_u32 v{vM}, v{vM}, v{vPt+7}, v{vPt+9}
v_max3_u32 v{vM+1}, v{vM+1}, v{vPt+7}, v{vPt+9}
v_min_u32 v{vM}, v{vM}, v{vPt+11}
v_max_u32 v{vM+1}, v{vM+1}, v{vPt+11}
v_cmp_ne_u32 vcc, s{S_TAG}, v{vM}
v_cmp_ne_u32 s[{T+14}:{T+15}], s{S_TAG}, v{vM+1}
s_or_b64 vcc, vcc, s[{T+14}:{T+15}]
s_cbranch_vccz {ld}
s_sub_u32 s{S_TO}, s{S_TO}, 1
s_cmp_eq_u32 s{S_TO}, 0
s_cbranch_scc1 {ld}""")
    pl()
    a(f"""s_branch {lp}
{ld}:
s_max_u32 s{S_TO}, s{S_TO}, 1
v_add_f32 v{vPt}, v{vPt}, v{vPt+4}
v_add_f32 v{vPt+2}, v{vPt+2}, v{vPt+6}
v_fmac_f32 v{vPt}, v{vA0}, v{vPt+8}
v_fmac_f32 v{vPt+2}, v{vA0}, v{vPt+10}
s_nop 1
v_permlane32_swap_b32 v{vPt}, v{vPt+2}
s_nop 0
v_add_f32 v{vPt}, v{vPt}, v{vPt+2}
v_mov_b32 v{vPt+2}, v{vPt}
s_nop 1
v_permlane16_swap_b32 v{vPt}, v{vPt+2}
s_nop 0
v_add_f32 v{vPt}, v{vPt}, v{vPt+2}
s_nop 1
v_add_f32_dpp v{vPt}, v{vPt}, v{vPt} row_ror:8 row_mask:0xf bank_mask:0xf""")
    round_bf16(a, vPt)
    a(f"v_add_f32 v{vPt}, v{vPt}, v{vA1}")
    round_bf16(a, vPt)
    a("s_nop 0")
    for u in (4, 5, 6, 7, 0, 1, 2, 3):
        a(f"v_readlane_b32 s{SM[2*u]}, v{vPt}, {u}\nv_readlane_b32 s{SM[2*u+1]}, v{vPt}, {32+u}")
    stamp(a, 3)
    for q, i in P:
        a(f"v_mul_f32 v{lo(q,i)}, s{SM[8+2*i]}, v{lo(q,i)}\nv_mul_f32 v{hi(q,i)}, s{SM[8+2*i+1]}, v{hi(q,i)}")
    st_cvt(); st_unpack()
    for q in range(4):
        for i in range(4):
            a(f"v_add_f32 v{lo(q,i)}, s{SM[2*i]}, v{lo(q,i)}\nv_add_f32 v{hi(q,i)}, s{SM[2*i+1]}, v{hi(q,i)}")
        for i in range(4):
            a(f"v_cvt_pk_bf16_f32 v{xs(q,i)}, v{lo(q,i)}, v{hi(q,i)}")
        a(f"buffer_store_dwordx4 {vr(vX+4*q,4)}, v{vCs}, {WS}, s{sOff} offen sc1")
        if q < 3:
            a(f"s_add_u32 s{sOff}, s{sOff}, {2*72*1024}")
    stamp(a, 4)
    a(f"""s_mul_i32 s{sOff}, s{sB}, 18
s_add_u32 s{sOff}, s{sOff}, s{sCs}
s_lshl_b32 s{sOff}, s{sOff}, 7
s_add_u32 s{sOff}, s{sOff}, {F_H}""")
    set_flag(a, f"s{sOff}")
    stamp(a, 5)
    if 'ob' in OPT:
        a("s_waitcnt vmcnt(0)\ns_barrier")
    a("L_o_pref:")
    srd(a, R_A, S_WMOD, SZ_WMOD)
    srd(a, R_C, S_C, SZ_C)
    a(f"""s_cmp_ge_u32 s{sO}, 18
s_cbranch_scc1 L_o_upd""")
    if 'gd' in OPT:
        a(f"v_min_u32 v{vT0}, 35, v0\nv_lshlrev_b32 v{vT0}, 7, v{vT0}\ns_movk_i32 s{sOff}, {F_H}")
        poll(a, vT0, f"s{sOff}", vT1)
    a(f"""s_mul_i32 s{sRow0}, s{S_W}, 144
v_min_u32 v{vT0}, 17, v{vTok}
v_lshlrev_b32 v{vT0}, 4, v{vT0}
v_mul_u32_u24 v{vT1}, 2304, v{vHF}
v_add_u32 v{vCs}, v{vT0}, v{vT1}
s_lshl_b32 s{sOff}, s{sRow0}, 1
buffer_load_dwordx4 {vr(vC,4)}, v{vCs}, {RC}, s{sOff} offen
s_lshl_b32 s{sColA}, s{sO}, 7
s_add_u32 s{sColA}, s{sColA}, 4608""")
    gemv_dma(a, sColA, vD)
    a(f"""s_lshl_b32 s{sOff}, s{sRow0}, 7
v_add_u32 v{vA0}, s{sOff}, v{vB0}
v_add_u32 v{vA1}, s{sOff}, v{vB1}
s_waitcnt vmcnt(18)""")
    for i in range(4):
        unpack(a, vM+2*i, vM+2*i+1, vC+i)
    silu8(a, vM, vM+8)
    for i in range(4):
        a(f"v_cvt_pk_bf16_f32 v{vC+i}, v{vM+2*i}, v{vM+2*i+1}")
    a(f"""s_lshl_b32 s{sOff}, s{sRow0}, 1
s_add_u32 s{sOff}, s{sOff}, {L_SIL}
v_add_u32 v{vCs}, s{sOff}, v{vCs}
ds_write_b128 v{vCs}, {vr(vC,4)}
v_and_b32 v{vT0}, 1, v0
v_mul_u32_u24 v{vT0}, 2304, v{vT0}
v_lshl_add_u32 v{vT0}, v{vHF}, 4, v{vT0}
v_add_u32 v{vSil}, s{sOff}, v{vT0}
s_waitcnt lgkmcnt(0)""")
    for s in range(9):
        wf = vWF + 8*(s & 1); sf = vSF + 4*(s & 1)
        a(f"s_waitcnt vmcnt({18-2*(s+1)})")
        a(f"ds_read_b128 {vr(sf,4)}, v{vSil} offset:{s*32}")
        trreads(a, wf, vA0, vA1, s*2048)
        a("s_waitcnt lgkmcnt(2)")
        mfma(a, vAcc, wf, sf, s == 0)
        a("s_waitcnt lgkmcnt(0)")
        mfma(a, vAcc+16, wf+4, sf, s == 0)
    a(f"""v_and_b32 v{vT0}, 1, v0
v_lshlrev_b32 v{vT0}, 8, v{vT0}
v_lshl_add_u32 v{vT0}, v{vHF}, 5, v{vT0}
s_lshl_b32 s{sOff}, s{S_W}, 9
s_add_u32 s{sOff}, s{sOff}, {L_RED}
v_add_u32 v{vT0}, s{sOff}, v{vT0}
s_mov_b32 exec_lo, 3
s_mov_b32 exec_hi, 3
s_nop 8""")
    for cb in range(2):
        for q, off in enumerate((0, 16, 64, 80)):
            a(f"ds_write_b128 v{vT0}, {vr(vAcc+16*cb+4*q,4)} offset:{cb*128+off}")
    a(f"""s_mov_b64 exec, -1
s_waitcnt lgkmcnt(0)
s_barrier
s_lshr_b32 s{sOff}, s{S_W}, 2
s_lshl_b32 s{sOff}, s{sOff}, 8
s_add_u32 s{sOff}, s{sOff}, {L_RED}
v_lshlrev_b32 v{vT0}, 2, v0
v_add_u32 v{vT1}, s{sOff}, v{vT0}""")
    for w in range(8):
        a(f"ds_read_b32 v{vAcc+w}, v{vT1} offset:{w*512}")
    a("s_waitcnt lgkmcnt(0)")
    for w in range(1, 8):
        a(f"v_add_f32 v{vAcc}, v{vAcc}, v{vAcc+w}")
    round_bf16(a, vAcc)
    lsk = a.label("gsk")
    a(f"""s_and_b32 s{sOff}, s{S_W}, 3
s_cmp_lg_u32 s{sOff}, 0
s_cbranch_scc1 {lsk}
s_lshr_b32 s{T+9}, s{S_W}, 2
s_mul_i32 s{sOff}, s{T+9}, 4608
s_lshl_b32 s{sColA}, s{sO}, 8
s_add_u32 s{sOff}, s{sOff}, s{sColA}
s_add_u32 s{sOff}, s{sOff}, {WS_GATE}
buffer_store_dword v{vAcc}, v{vT0}, {WS}, s{sOff} offen sc1
{lsk}:
s_lshl_b32 s{sOff}, s{sO}, 7
s_add_u32 s{sOff}, s{sOff}, {F_G}""")
    set_flag(a, f"s{sOff}")
    stamp(a, 7)
    lp = a.label("ep"); ld = a.label("epd")
    a(f"""L_o_upd:
s_add_u32 s{S_SLOT}, s{S_SLOT}, 25
s_cmp_ge_u32 s{S_SLOT}, 27
s_cbranch_scc1 L_c_notu
s_cmp_lg_u32 s2, 0
s_cbranch_scc1 L_fin
s_lshl_b32 s{sOff}, s{S_W}, 6
v_add_u32 v{vT0}, s{sOff}, v0
v_min_u32 v{vT0}, 215, v{vT0}
v_lshlrev_b32 v{vT0}, 7, v{vT0}
s_mov_b32 s{sOff}, {F_QKV}
{lp}:
s_sleep 16
buffer_load_dword v{vT1}, v{vT0}, {WS}, s{sOff} offen sc1
s_waitcnt vmcnt(0)
v_cmp_ne_u32 vcc, s{S_TAG}, v{vT1}
s_cbranch_vccz {ld}
s_sub_u32 s{S_TO}, s{S_TO}, 1
s_cmp_lg_u32 s{S_TO}, 0
s_cbranch_scc1 {lp}
{ld}:
s_mov_b32 s{sOff}, {EPOCH}""")
    set_flag(a, f"s{sOff}")
    a("s_branch L_fin")

def epilogue(a):
    if STAMP and 'probe' in OPT:
        i = int(OPT['probe']); lo, hi = [int(x) for x in OPT.get('prole', '0:256').split(':')]
        a(f"""s_waitcnt vmcnt(0) lgkmcnt(0)
s_cmp_lg_u32 s{S_W}, {OPT.get('stw', 0)}
s_cbranch_scc1 L_end
s_memrealtime s[{S_ST+30}:{S_ST+31}]
s_waitcnt lgkmcnt(0)
s_sub_u32 s{T}, s{S_ST+2*i}, s{S_ST}
s_cmp_eq_u32 s{S_ST+2*i}, 0
s_cselect_b32 s{T}, 0, s{T}
s_cmp_lt_u32 s2, {lo}
s_cselect_b32 s{T}, 0, s{T}
s_cmp_ge_u32 s2, {hi}
s_cselect_b32 s{T}, 0, s{T}
s_lshl_b32 s{T}, s{T}, 2
s_add_u32 s{T}, s{T}, 5000
L_spin:
s_memrealtime s[{T+2}:{T+3}]
s_waitcnt lgkmcnt(0)
s_sub_u32 s{T+2}, s{T+2}, s{S_ST}
s_cmp_lt_u32 s{T+2}, s{T}
s_cbranch_scc1 L_spin""")
    elif STAMP:
        a(f"""s_waitcnt vmcnt(0) lgkmcnt(0)
s_cmp_lg_u32 s{S_W}, {OPT.get('stw', 0)}
s_cbranch_scc1 L_end
{CLK} s[{S_ST+30}:{S_ST+31}]
s_memtime s[98:99]
s_waitcnt lgkmcnt(0)
s_sub_u32 s98, s98, s96""")
        for i in range(16):
            a(f"v_mov_b32 v{16+i}, s{S_ST+2*i}")
        a(f"""v_mov_b32 v32, s98
s_lshl_b32 s{T}, s2, 7
s_add_u32 s{T}, s{T}, {WS_STAMP}
v_mov_b32 v1, 0
s_mov_b64 exec, 1""")
        for i in range(4):
            a(f"buffer_store_dwordx4 v[{16+4*i}:{19+4*i}], v1, {WS}, s{T} offen offset:{16*i}")
        a(f"buffer_store_dword v32, v1, {WS}, s{T} offen offset:64")
    a("L_end:\ns_endpgm")

def main():
    a = Asm()
    a.raw("; @launch grid=(256,1,1) block=(512,1,1) lds=163840")
    a.raw('.amdgcn_target "amdgcn-amd-amdhsa--gfx950"\n.text')
    prologue(a)
    phase_bc(a)
    NOD[0] = True
    phase_d(a)
    NOD[0] = False
    epilogue(a)
    a("L_owner:")
    phase_owner(a)
    a.raw(".p2align 4\nL_codeend:")
    out = a.text() + kd(NAME, 244, 102)
    path = [x for x in sys.argv[1:] if not x.startswith('--')][0]
    open(path, 'w').write(out)
main()
```

```python
import sys, struct
from asmlib import *

OPT = dict(la='12', nt='', cpf='1', umap='4', lfull='1', pack='0', ew='3')
for a_ in sys.argv[1:]:
    if a_.startswith('--'):
        k, _, v = a_[2:].partition('=')
        OPT[k] = v
STAMP = 'stamp' in OPT
NT = OPT['nt']
PF = OPT.get('pf', 'sc1').replace('+', ' ')
SF = OPT.get('sf', 'sc1').replace('+', ' ')
CLK = "s_memtime" if 'cyc' in OPT else "s_memrealtime"

NAME = "standalone__dit_adaln_block__diffusion_kernel"
D = 1152
SZ_X = 512*D*2; SZ_C = 2*D*2; SZ_WQKV = D*3*D*2; SZ_WO = D*D*2; SZ_WMOD = D*6*D*2
SZ_WS = 1 << 28
F_STAT = 0x0
F_H = 0x2000
F_L = 0x4000
F_U = 0x760000
F_G = 0x4000
F_QKV = 0x740000
EPOCH = 0x13000
WS_GATE = 0x14000
WS_H = 0x20000
WS_QKV = 0x140000
WS_L = 0x680000
WS_U = 0x550000
WS_PART = 0x4A0000
WS_STAMP = 0x700000
F_LH = 0x720000
LOG2E = 0x3fb8aa3b

S_W, S_TAG, S_G, S_SLOT, S_TO, S_TK = 3, 4, 5, 6, 7, 8
S_X, S_C, S_WQKV, S_WO, S_WMOD, S_OUT, S_DBG, S_WS = 16, 18, 20, 22, 24, 26, 28, 30
R_A, R_B, R_C, R_WS = 32, 36, 40, 44
T = 48
S_ST = 64
WS = f"s[{R_WS}:{R_WS+3}]"
RA = f"s[{R_A}:{R_A+3}]"; RB = f"s[{R_B}:{R_B+3}]"; RC = f"s[{R_C}:{R_C+3}]"
vL16, vP16, vB0, vB1, vCH, vR8, vHF, vTok = 1, 2, 3, 4, 5, 6, 7, 8
vT0, vT1, vT2, vT3 = 9, 10, 11, 12
vTAG = 13
V0 = 16

L_MISC = 147456
L_SIL = L_MISC
L_RED = L_SIL + 4608
L_FIN = L_RED + 4096
L_ROLE = L_FIN + 4096
L_STC = L_ROLE + 16
L_GATE = 36864
NO = 5

def srd(a, r, ptr, size):
    a(f"""s_mov_b32 s{r}, s{ptr}
s_and_b32 s{r+1}, s{ptr+1}, 0xffff
s_mov_b32 s{r+2}, {hex(size)}
s_mov_b32 s{r+3}, 0x20000""")

NOD = [False]
def stamp(a, i):
    if STAMP and not (NOD[0] and 'nod' in OPT):
        a(f"{CLK} s[{S_ST+2*i}:{S_ST+2*i+1}]")

def unpack(a, lo, hi, src):
    a(f"v_lshlrev_b32 v{lo}, 16, v{src}\nv_and_b32 v{hi}, 0xffff0000, v{src}")

def round_bf16(a, v):
    a(f"v_cvt_pk_bf16_f32 v{v}, v{v}, v{v}\nv_lshlrev_b32 v{v}, 16, v{v}")

HACK = [0]
def mfma(a, acc, A, B, first=False):
    if 'hack16' in OPT and not first:
        HACK[0] += 1
        o = 8*((HACK[0] >> 1) & 1)
        for j in range(2):
            a(f"v_mfma_f32_16x16x32_bf16 {vr(acc+o+4*j,4)}, {vr(A,4)}, {vr(B,4)}, {vr(acc+o+4*j,4)}")
        return
    c = "0" if first else vr(acc, 16)
    a(f"v_mfma_f32_32x32x16_bf16 {vr(acc,16)}, {vr(A,4)}, {vr(B,4)}, {c}")

def wrap_add(a, s, step, s_end, s_start):
    a(f"""s_add_u32 s{s}, s{s}, {step}
s_cmp_eq_u32 s{s}, s{s_end}
s_cselect_b32 s{s}, s{s_start}, s{s}""")

def mod9(a, dst, src, tmp):
    a(f"""s_mul_i32 s{tmp}, s{src}, 57
s_lshr_b32 s{tmp}, s{tmp}, 9
s_mul_i32 s{tmp}, s{tmp}, 9
s_sub_u32 s{dst}, s{src}, s{tmp}""")

def poll(a, vaddr, soff, vtmp):
    l = a.label("poll"); d = a.label("polld")
    a(f"""s_cmp_lg_u32 s{S_W}, 0
s_cbranch_scc1 {d}
{l}:
buffer_load_dword v{vtmp}, v{vaddr}, {WS}, {soff} offen {PF}
s_waitcnt vmcnt(0)
v_cmp_ne_u32 vcc, s{S_TAG}, v{vtmp}
s_cbranch_vccz {d}
s_sleep {OPT.get('sleep', 2)}
s_sub_u32 s{S_TO}, s{S_TO}, 1
s_cmp_lg_u32 s{S_TO}, 0
s_cbranch_scc1 {l}
s_mov_b32 s{S_TO}, 1
{d}:
s_barrier""")

def gpoll(a, loads, tagregs, slp=None):
    l = a.label("gp"); d = a.label("gpd")
    a(f"{l}:")
    loads()
    a(f"s_waitcnt vmcnt(0)\nv_cmp_ne_u32 vcc, s{S_TAG}, v{tagregs[0]}")
    for r in tagregs[1:]:
        a(f"v_cmp_ne_u32 s[{T+14}:{T+15}], s{S_TAG}, v{r}\ns_or_b64 vcc, vcc, s[{T+14}:{T+15}]")
    a(f"""s_cbranch_vccz {d}
s_sleep {slp if slp is not None else OPT.get('gsleep', 2)}
s_sub_u32 s{S_TO}, s{S_TO}, 1
s_cmp_lg_u32 s{S_TO}, 0
s_cbranch_scc1 {l}
s_mov_b32 s{S_TO}, 1
{d}:""")

def raw_flag(a, soff):
    a(f"""v_mov_b32 v{vT3}, 0
s_mov_b64 exec, 1
buffer_store_dword v{vTAG}, v{vT3}, {WS}, {soff} offen {SF}
s_mov_b64 exec, -1""")

def set_flag(a, soff, younger=0):
    d = a.label("fl")
    a(f"""s_waitcnt vmcnt({younger})
s_barrier
s_cmp_lg_u32 s{S_W}, 0
s_cbranch_scc1 {d}""")
    raw_flag(a, soff)
    a(f"{d}:")

def trreads(a, wf, b0, b1, off):
    a(f"""ds_read_b64_tr_b16 {vr(wf,2)}, v{b0} offset:{off}
ds_read_b64_tr_b16 {vr(wf+2,2)}, v{b0} offset:{off+512}
ds_read_b64_tr_b16 {vr(wf+4,2)}, v{b1} offset:{off}
ds_read_b64_tr_b16 {vr(wf+6,2)}, v{b1} offset:{off+512}""")

def dma_tile(a, srdname, vD, pitch, s_rot, flags, n0=0, n1=18):
    sN, sO = T+10, T+11
    if s_rot is None:
        a(f"s_add_u32 s{sN}, s{S_W}, {8*n0}")
    else:
        a(f"s_lshl_b32 s{sN}, s{s_rot}, 3\ns_add_u32 s{sN}, s{sN}, s{S_W}")
    for n in range(n0, n1):
        a(f"""s_lshl_b32 m0, s{sN}, 10
s_mul_i32 s{sO}, s{sN}, {8*pitch}
buffer_load_dwordx4 v{vD}, {srdname}, s{sO} offen {flags} lds""")
        if n < n1-1:
            a(f"s_add_u32 s{sN}, s{sN}, 8")
            if s_rot is not None:
                a(f"""s_sub_u32 s{sO}, s{sN}, 144
s_cmp_ge_u32 s{sN}, 144
s_cselect_b32 s{sN}, s{sO}, s{sN}""")

def wave_sum(a, v, sdst):
    for m in ("quad_perm:[1,0,3,2]", "quad_perm:[2,3,0,1]", "row_half_mirror", "row_mirror"):
        a(f"s_nop 1\nv_add_f32_dpp v{v}, v{v}, v{v} {m} row_mask:0xf bank_mask:0xf")
    a(f"s_nop 1\nv_add_f32_dpp v{v}, v{v}, v{v} row_bcast:15 row_mask:0xa bank_mask:0xf")
    a(f"s_nop 1\nv_add_f32_dpp v{v}, v{v}, v{v} row_bcast:31 row_mask:0xc bank_mask:0xf")
    a(f"s_nop 1\nv_readlane_b32 s{sdst}, v{v}, 63\ns_nop 1")

def silu8(a, f, t):
    for i in range(8):
        a(f"v_mul_f32 v{t+i}, 0xbfb8aa3b, v{f+i}")
    for i in range(8):
        a(f"v_exp_f32 v{t+i}, v{t+i}")
    for i in range(8):
        a(f"v_add_f32 v{t+i}, 1.0, v{t+i}")
    for i in range(8):
        a(f"v_rcp_f32 v{t+i}, v{t+i}")
    for i in range(8):
        a(f"v_mul_f32 v{f+i}, v{f+i}, v{t+i}")

def lane_consts(a):
    a(f"""v_lshrrev_b32 v{vR8}, 3, v0
v_and_b32 v{vP16}, 0x33, v0
v_and_b32 v{vT0}, 4, v0
v_lshl_or_b32 v{vP16}, v{vT0}, 1, v{vP16}
v_and_b32 v{vT0}, 8, v0
v_lshrrev_b32 v{vT0}, 1, v{vT0}
v_or_b32 v{vP16}, v{vP16}, v{vT0}
v_lshlrev_b32 v{vP16}, 4, v{vP16}
v_lshrrev_b32 v{vT0}, 2, v0
v_and_b32 v{vT0}, 4, v{vT0}
v_and_b32 v{vCH}, 7, v0
v_xor_b32 v{vCH}, v{vCH}, v{vT0}
v_lshlrev_b32 v{vB0}, 10, v{vHF}
v_and_b32 v{vT0}, 12, v0
v_lshl_or_b32 v{vB0}, v{vT0}, 5, v{vB0}
v_and_b32 v{vT0}, 8, v0
v_lshl_or_b32 v{vB0}, v{vT0}, 3, v{vB0}
v_and_b32 v{vT0}, 16, v0
v_lshl_or_b32 v{vB0}, v{vT0}, 1, v{vB0}
v_and_b32 v{vT0}, 1, v0
v_lshl_or_b32 v{vB0}, v{vT0}, 4, v{vB0}
v_and_b32 v{vT0}, 2, v0
v_lshl_or_b32 v{vB0}, v{vT0}, 2, v{vB0}
v_xor_b32 v{vB1}, 64, v{vB0}""")

def get_tag(a):
    a(f"""s_waitcnt lgkmcnt(0)
s_mul_i32 s{S_TAG}, s{S_TAG}, 1664525
s_add_u32 s{S_TAG}, s{S_TAG}, 1013904223
v_mov_b32 v{vTAG}, s{S_TAG}""")

def wpoll(a, vaddr, soff, vtmp):
    gpoll(a, lambda: a(f"buffer_load_dword v{vtmp}, v{vaddr}, {WS}, {soff} offen {PF}"), [vtmp])

S_BCT, S_BRT = 11, 12
vDW = 15
R0, R1 = [int(x) for x in OPT.get('wrot', '36,28').split(',')]
assert R0 + 3*R1 + 7 < 144
def b_setup(a):
    srd(a, R_B, S_WQKV, SZ_WQKV)
    a(f"""s_mul_i32 s{S_BCT}, s{S_G}, 27
s_add_u32 s{S_BCT}, s{S_BCT}, s{S_SLOT}
s_sub_u32 s{S_BCT}, s{S_BCT}, {NO}
s_and_b32 s{S_BRT}, s{S_BCT}, 3
s_lshr_b32 s{S_BCT}, s{S_BCT}, 2
s_mul_i32 s13, s{S_BRT}, {R1}
s_add_u32 s{T+14}, s13, {R0}
s_cmp_lg_u32 s{S_BRT}, 0
s_cselect_b32 s13, s{T+14}, s13
s_add_u32 s13, s13, s{S_W}
v_lshlrev_b32 v{vDW}, 4, v{vCH}
v_mul_u32_u24 v{vT0}, 6912, v{vR8}
s_lshl_b32 s{T+14}, s{S_BCT}, 7
v_add3_u32 v{vDW}, v{vDW}, v{vT0}, s{T+14}""")

THR = f"s_waitcnt vmcnt({OPT['thr']})" if 'thr' in OPT else ''
THRO = f"s_waitcnt vmcnt({OPT['thro']})" if 'thro' in OPT else ''
def w_dma(a, n):
    for i in range(n):
        a(f"""s_lshl_b32 m0, s13, 10
s_mul_i32 s{T+14}, s13, {8*6912}
buffer_load_dwordx4 v{vDW}, {RB}, s{T+14} offen lds
{THR}
s_add_u32 s13, s13, 8
s_sub_u32 s{T+14}, s13, 144
s_cmp_ge_u32 s13, 144
s_cselect_b32 s13, s{T+14}, s13""")

EW = int(OPT.get('ew', 0))
def prologue(a):
    a.raw(f".globl {NAME}\n.p2align 8\n.type {NAME},@function\n{NAME}:")
    a(f"""s_cmp_ge_u32 s2, 256
s_cbranch_scc1 L_end
s_load_dwordx16 s[16:31], s[0:1], 0""")
    if STAMP:
        a(f"{CLK} s[{S_ST}:{S_ST+1}]\ns_memtime s[96:97]")
        for i in range(1, 16):
            a(f"s_mov_b32 s{S_ST+2*i}, 0")
    a(f"""v_lshrrev_b32 v1, 6, v0
v_and_b32 v0, 63, v0
s_and_b32 s{S_G}, s2, 7
v_readfirstlane_b32 s{S_W}, v1
s_lshr_b32 s{S_SLOT}, s2, 3
s_mov_b32 s{S_TO}, 0x40000
v_lshlrev_b32 v{vL16}, 4, v0
v_lshrrev_b32 v{vHF}, 5, v0
v_and_b32 v{vTok}, 31, v0
s_mov_b32 s{S_TK}, s2""")
    if OPT.get('cpf') == '1':
        a(f"""s_cmp_lg_u32 s{S_W}, 7
s_cbranch_scc1 L_nocpf
s_getpc_b64 s[{T}:{T+1}]
L_pc:
s_sub_u32 s{T}, s{T}, L_pc-{NAME}
s_subb_u32 s{T+1}, s{T+1}, 0
s_lshl_b32 s{T+2}, s{S_SLOT}, 10
v_add_u32 v{vT0}, s{T+2}, v{vL16}
v_min_u32 v{vT0}, L_codeend-{NAME}-16, v{vT0}
global_load_dwordx4 v[240:243], v{vT0}, s[{T}:{T+1}]
L_nocpf:""")
    if OPT.get('lead', '1') == '1':
        a(f"""s_mul_i32 s{T}, s{S_G}, 27
s_add_u32 s{T}, s{T}, s{S_SLOT}
s_sub_u32 s{T}, s{T}, {NO}
s_lshr_b32 s{T+1}, s{T}, 2
s_sub_u32 s{T+2}, s{T}, s{T+1}
s_add_u32 s{T+2}, s{T+2}, 93
s_and_b32 s{T+3}, s{T+1}, 1
s_mul_i32 s{T+3}, s{T+3}, 27
s_lshr_b32 s{T+1}, s{T+1}, 1
s_add_u32 s{T+1}, s{T+1}, s{T+3}
s_add_u32 s{T+1}, s{T+1}, 40
s_and_b32 s{T}, s{T}, 3
s_cselect_b32 s{T+1}, s{T+2}, s{T+1}
s_cmp_ge_u32 s2, 40
s_cselect_b32 s{S_TK}, s{T+1}, s2""")
    sP, sCg, sKs, sOff, sRow = T, T+1, T+2, T+3, T+4
    a(f"""s_cmp_ge_u32 s{S_TK}, 64
s_cbranch_scc1 L_s0_nst""")
    vRW = 16
    a(f"""s_lshl_b32 s{sOff}, s{S_TK}, 3
s_add_u32 s{sOff}, s{sOff}, s{S_W}
s_mul_i32 s{sOff}, s{sOff}, 2304
v_mov_b32 v{vRW+8}, 0
v_mov_b32 v{vRW+9}, 0
v_mov_b32 v{vRW+10}, 0
v_mov_b32 v{vRW+11}, 0
s_waitcnt lgkmcnt(0)""")
    srd(a, R_C, S_X, SZ_X)
    a(f"""buffer_load_dwordx4 {vr(vRW,4)}, v{vL16}, {RC}, s{sOff} offen
buffer_load_dwordx4 {vr(vRW+4,4)}, v{vL16}, {RC}, s{sOff} offen offset:1024
s_mov_b64 exec, 0xffff
buffer_load_dwordx4 {vr(vRW+8,4)}, v{vL16}, {RC}, s{sOff} offen offset:2048
s_mov_b64 exec, -1
s_load_dword s{S_TAG}, s[{S_WS}:{S_WS+1}], {EPOCH}""")
    a(f"""s_branch L_s0_stats
L_s0_nst:
s_cmp_lt_u32 s{S_TK}, 94
s_cbranch_scc1 L_s0_none""")
    vW = 16
    vC = 32
    vSc = 36
    vTm = 44
    vAc = 52
    a(f"""s_sub_u32 s{sP}, s{S_TK}, 94
s_mul_i32 s{sKs}, s{sP}, 57
s_lshr_b32 s{sKs}, s{sKs}, 9
s_mul_i32 s{sCg}, s{sKs}, 9
s_sub_u32 s{sCg}, s{sP}, s{sCg}
s_lshl_b32 s{sRow}, s{sKs}, 3
s_add_u32 s{sRow}, s{sRow}, s{S_W}
s_lshl_b32 s{sRow}, s{sRow}, 3
v_and_b32 v{vT0}, 15, v0
v_lshlrev_b32 v{vT0}, 4, v{vT0}
v_bfe_u32 v{vT1}, v0, 4, 1
v_mul_u32_u24 v{vT1}, 2304, v{vT1}
v_mul_u32_u24 v{vT2}, {4*13824}, v{vHF}
v_add3_u32 v{vT0}, v{vT0}, v{vT1}, v{vT2}
v_lshlrev_b32 v{vT1}, 3, v{vHF}
s_lshl_b32 s{T+5}, s{sRow}, 1
s_mul_i32 s{sOff}, s{sRow}, 13824
s_lshl_b32 s{sRow}, s{sCg}, 8
s_add_u32 s{sOff}, s{sOff}, s{sRow}
s_waitcnt lgkmcnt(0)""")
    srd(a, R_A, S_WMOD, SZ_WMOD)
    srd(a, R_C, S_C, SZ_C)
    a(f"""buffer_load_dwordx2 {vr(vC,2)}, v{vT1}, {RC}, s{T+5} offen
buffer_load_dwordx2 {vr(vC+2,2)}, v{vT1}, {RC}, s{T+5} offen offset:2304""")
    for n in range(4):
        a(f"buffer_load_dwordx4 {vr(vW+4*n,4)}, v{vT0}, {RA}, s{sOff} offen")
        if n < 3:
            a(f"s_add_u32 s{sOff}, s{sOff}, 13824")
    a(f"s_load_dword s{S_TAG}, s[{S_WS}:{S_WS+1}], {EPOCH}")
    srd(a, R_WS, S_WS, SZ_WS)
    lane_consts(a)
    b_setup(a)
    if EW:
        a("s_barrier")
        w_dma(a, EW)
    a(f"s_waitcnt vmcnt({4+EW})")
    for i in range(4):
        unpack(a, vSc+2*i, vSc+2*i+1, vC+i)
    silu8(a, vSc, vTm)
    for i in range(4):
        a(f"v_cvt_pk_bf16_f32 v{vC+i}, v{vSc+2*i}, v{vSc+2*i+1}")
    for i in range(4):
        unpack(a, vSc+2*i, vSc+2*i+1, vC+i)
    a(f"""s_lshl_b32 s{sOff}, s{S_W}, 11
s_add_u32 s{sOff}, s{sOff}, {L_MISC}
v_lshlrev_b32 v{vT2}, 5, v0
v_add_u32 v{vT2}, s{sOff}, v{vT2}
s_lshr_b32 s{sOff}, s{S_W}, 1
s_lshl_b32 s{sOff}, s{sOff}, 10
s_and_b32 s{sRow}, s{S_W}, 1
s_lshl_b32 s{sP}, s{sRow}, 8
s_add_u32 s{sOff}, s{sOff}, s{sP}
s_add_u32 s{sOff}, s{sOff}, {L_MISC}
v_lshlrev_b32 v{vT3}, 3, v{vTok}
v_lshl_add_u32 v{vT3}, v{vHF}, 9, v{vT3}
v_add_u32 v{vT3}, s{sOff}, v{vT3}
s_lshl_b32 s{sP}, s{sCg}, 1
s_add_u32 s{sP}, s{sP}, s{sRow}
s_lshl_b32 s{sP}, s{sP}, 1
s_lshr_b32 s{sOff}, s{S_W}, 1
s_add_u32 s{sP}, s{sP}, s{sOff}
s_mul_i32 s{sP}, s{sP}, 18
s_add_u32 s{sP}, s{sP}, s{sKs}
s_lshl_b32 s{sP}, s{sP}, 10
s_add_u32 s{sP}, s{sP}, {WS_PART}
v_and_b32 v{vT0}, 28, v0
v_lshlrev_b32 v{vT0}, 5, v{vT0}
v_lshl_add_u32 v{vT0}, v{vHF}, 6, v{vT0}
v_and_b32 v{vT1}, 3, v0
v_lshl_add_u32 v{vT0}, v{vT1}, 4, v{vT0}""")
    get_tag(a)
    for n in range(4):
        a(f"s_waitcnt vmcnt({3-n+EW})")
        if n == 3: stamp(a, 8)
        for i in range(4):
            unpack(a, vTm+2*i, vTm+2*i+1, vW+4*n+i)
        for b in range(2):
            for j in range(8):
                op = "v_mul_f32" if n == 0 else "v_fmac_f32"
                a(f"{op} v{vAc+8*b+j}, v{vTm+j}, v{vSc+4*b+n}")
    a("s_nop 1")
    for j in range(8):
        a(f"v_permlane32_swap_b32 v{vAc+j}, v{vAc+8+j}")
    for j in range(8):
        a(f"v_add_f32 v{vAc+j}, v{vAc+j}, v{vAc+8+j}")
    lsk = a.label("pubsk")
    a(f"""ds_write_b128 v{vT2}, {vr(vAc,4)}
ds_write_b128 v{vT2}, {vr(vAc+4,4)} offset:16
s_waitcnt lgkmcnt(0)
s_barrier
s_cmp_ge_u32 s{S_W}, 4
s_cbranch_scc1 {lsk}""")
    for w in range(8):
        a(f"ds_read_b64 {vr(vW+2*w,2)}, v{vT3} offset:{w*2048}")
    a(f"""v_mov_b32 v{vAc+1}, v{vTAG}
v_mov_b32 v{vAc+3}, v{vTAG}
s_waitcnt lgkmcnt(4)
v_add_f32 v{vW}, v{vW}, v{vW+2}
v_add_f32 v{vW+1}, v{vW+1}, v{vW+3}
v_add_f32 v{vW+4}, v{vW+4}, v{vW+6}
v_add_f32 v{vW+5}, v{vW+5}, v{vW+7}
s_waitcnt lgkmcnt(0)
v_add_f32 v{vW+8}, v{vW+8}, v{vW+10}
v_add_f32 v{vW+9}, v{vW+9}, v{vW+11}
v_add_f32 v{vW+12}, v{vW+12}, v{vW+14}
v_add_f32 v{vW+13}, v{vW+13}, v{vW+15}
v_add_f32 v{vW}, v{vW}, v{vW+4}
v_add_f32 v{vW+1}, v{vW+1}, v{vW+5}
v_add_f32 v{vW+8}, v{vW+8}, v{vW+12}
v_add_f32 v{vW+9}, v{vW+9}, v{vW+13}
v_add_f32 v{vAc}, v{vW}, v{vW+8}
v_add_f32 v{vAc+2}, v{vW+1}, v{vW+9}
buffer_store_dwordx4 {vr(vAc,4)}, v{vT0}, {WS}, s{sP} offen sc1
{lsk}:""")
    stamp(a, 9)
    if OPT.get('pack') == '1':
        a("s_waitcnt vmcnt(0)")
    if 'nopb' not in OPT:
        a("s_barrier")
    w_dma(a, 18-EW)
    a("s_branch L_b")
    a("L_s0_stats:")
    srd(a, R_WS, S_WS, SZ_WS)
    lane_consts(a)
    a(f"""s_barrier
s_min_u32 s{T+12}, s2, 35
s_and_b32 s{T+13}, s{T+12}, 1
s_lshr_b32 s{T+12}, s{T+12}, 1
s_lshl_b32 s{T+13}, s{T+13}, 3
s_add_u32 s{T+13}, s{T+13}, s{S_W}
v_mul_u32_u24 v{vT0}, 2304, v{vR8}
v_and_b32 v{vT1}, 7, v0
v_xor_b32 v{vT1}, v{vT1}, v{vR8}
v_lshl_add_u32 v{vT0}, v{vT1}, 4, v{vT0}
s_mul_i32 s{T+13}, s{T+13}, {32*2304}
s_lshl_b32 s{T+12}, s{T+12}, 7
s_add_u32 s{T+13}, s{T+13}, s{T+12}
s_lshl_b32 m0, s{S_W}, 12""")
    lnx = a.label("nox"); ljx = a.label("jx")
    a(f"s_cmp_ge_u32 s2, 36\ns_cbranch_scc1 {lnx}")
    for q in range(4):
        a(f"buffer_load_dwordx4 v{vT0}, {RC}, s{T+13} offen lds")
        if q < 3:
            a(f"s_add_u32 s{T+13}, s{T+13}, {8*2304}\ns_add_u32 m0, m0, 1024\ns_nop 0")
    get_tag(a)
    a(f"s_waitcnt vmcnt(4)\ns_branch {ljx}\n{lnx}:")
    get_tag(a)
    a(f"s_waitcnt vmcnt(0)\n{ljx}:")
    stamp(a, 8)
    s1, s2_, q1, q2 = 32, 33, 34, 35
    a(f"s_mov_b32 s{T+12}, 0x3f803f80")
    for i in range(0, 12, 2):
        c = lambda r: "0" if i == 0 else f"v{r}"
        a(f"""v_dot2_f32_bf16 v{s1}, v{vRW+i}, s{T+12}, {c(s1)}
v_dot2_f32_bf16 v{q1}, v{vRW+i}, v{vRW+i}, {c(q1)}
v_dot2_f32_bf16 v{s2_}, v{vRW+i+1}, s{T+12}, {c(s2_)}
v_dot2_f32_bf16 v{q2}, v{vRW+i+1}, v{vRW+i+1}, {c(q2)}""")
    a(f"""s_nop 2
v_add_f32 v{s1}, v{s1}, v{s2_}
v_add_f32 v{q1}, v{q1}, v{q2}""")
    for m in ("quad_perm:[1,0,3,2] row_mask:0xf", "quad_perm:[2,3,0,1] row_mask:0xf", "row_half_mirror row_mask:0xf", "row_mirror row_mask:0xf", "row_bcast:15 row_mask:0xa", "row_bcast:31 row_mask:0xc"):
        a(f"s_nop 0\nv_add_f32_dpp v{s1}, v{s1}, v{s1} {m} bank_mask:0xf\nv_add_f32_dpp v{q1}, v{q1}, v{q1} {m} bank_mask:0xf")
    g = 36
    a(f"""v_mul_f32 v{g}, 0x3a638e39, v{s1}
v_mul_f32 v{g+2}, 0x3a638e39, v{q1}
v_fma_f32 v{g+2}, -v{g}, v{g}, v{g+2}
v_max_f32 v{g+2}, 0, v{g+2}""")
    round_bf16(a, g+2)
    a(f"v_add_f32 v{g+2}, 0x3727c5ac, v{g+2}")
    round_bf16(a, g+2)
    a(f"v_sqrt_f32 v{g+2}, v{g+2}")
    round_bf16(a, g)
    round_bf16(a, g+2)
    lsk = a.label("stsk")
    a(f"""v_rcp_f32 v{g+2}, v{g+2}
v_mov_b32 v{g+1}, v{vTAG}
v_mov_b32 v{g+3}, v{vTAG}
s_lshl_b32 s{T+12}, s{S_W}, 4
s_add_u32 s{T+12}, s{T+12}, {L_STC}
v_mov_b32 v{vT0}, s{T+12}
s_mov_b32 exec_lo, 0
s_brev_b32 exec_hi, 1
ds_write_b128 v{vT0}, {vr(g,4)}
s_mov_b64 exec, -1
s_lshl_b32 s{T+12}, s{S_TK}, 7
s_add_u32 s{T+12}, s{T+12}, {F_STAT}
v_add_u32 v{vT0}, {L_STC}, v{vL16}
s_waitcnt lgkmcnt(0)
s_barrier
s_cmp_lg_u32 s{S_W}, 0
s_cbranch_scc1 {lsk}
s_mov_b64 exec, 0xff
ds_read_b128 {vr(g,4)}, v{vT0}
s_waitcnt lgkmcnt(0)
buffer_store_dwordx4 {vr(g,4)}, v{vL16}, {WS}, s{T+12} offen sc1
s_mov_b64 exec, -1
{lsk}:""")
    stamp(a, 9)
    a(f"s_cmp_lt_u32 s{S_SLOT}, {NO}\ns_cbranch_scc1 L_owner")
    if 'nopb' not in OPT:
        a("s_barrier")
    a("s_branch L_s0_w")
    a("L_s0_none:")
    a(f"s_waitcnt lgkmcnt(0)\ns_load_dword s{S_TAG}, s[{S_WS}:{S_WS+1}], {EPOCH}")
    srd(a, R_WS, S_WS, SZ_WS)
    lane_consts(a)
    get_tag(a)
    if 'cw' in OPT:
        a("s_waitcnt vmcnt(0)")
    a("L_s0_w:")
    b_setup(a)
    w_dma(a, 18)

VOX = 96

S_UCT, S_UTB = 9, 10
vDU = 14
KE = int(OPT.get('ke', 12))
def wo_dma(a, n0, n1):
    a(f"s_add_u32 s{T+10}, s{S_W}, {4*n0-4}")
    for n in range(n0, n1):
        a(f"""s_lshl_b32 m0, s{T+10}, 10
s_mul_i32 s{T+11}, s{T+10}, {8*2304}
buffer_load_dwordx4 v{vDU}, {RB}, s{T+11} offen lds""")
        if n < n1-1:
            a(f"s_add_u32 s{T+10}, s{T+10}, 4")

def gemm_loop(a, nsteps, LA, RING, vAcc, vWF, vH, vA0, vA1, vaddr, sH, lds_first, w_is_a, pre=None, rot=None, bar_at=None):
    WA = 2
    state = dict(issued=0)
    if rot:
        sR, sHs, sHe, sLo, sZ, sLe, vC0, vC1 = rot
        a(f"""s_mov_b32 s{sHs}, s{sH}
s_add_u32 s{sHe}, s{sH}, {nsteps*1024}
s_lshl_b32 s{sLo}, s{sR}, 12
s_add_u32 s{sH}, s{sH}, s{sLo}
s_lshl_b32 s{sLo}, s{sR}, 13
s_mov_b32 s{sZ}, 0
s_mov_b32 s{sLe}, {nsteps*2048}""")
    def hload():
        s = state['issued']
        a(f"buffer_load_dwordx4 {vr(vH+4*(s % RING),4)}, v{vaddr}, {WS}, s{sH} offen offset:{(s&3)*1024} sc1")
        if (s & 3) == 3 and s < nsteps-1:
            if rot: wrap_add(a, sH, 4096, sHe, sHs)
            else: a(f"s_add_u32 s{sH}, s{sH}, 4096")
        state['issued'] += 1
    def wread(s):
        if rot:
            if (s & 3) == 0:
                a(f"v_add_u32 v{vC0}, s{sLo}, v{vA0}\nv_add_u32 v{vC1}, s{sLo}, v{vA1}")
                wrap_add(a, sLo, 8192, sLe, sZ)
            trreads(a, vWF + 8*(s & 3), vC0, vC1, (s & 3)*2048)
            return
        if s and (s & 31) == 0:
            a(f"v_add_u32 v{vA0}, 0x10000, v{vA0}\nv_add_u32 v{vA1}, 0x10000, v{vA1}")
        trreads(a, vWF + 8*(s & 3), vA0, vA1, (s & 31)*2048)
    if lds_first:
        for s in range(WA): wread(s)
    for s in range(LA): hload()
    if pre: pre()
    if not lds_first:
        for s in range(WA): wread(s)
    for s in range(nsteps):
        lg = 4*min(WA-1, nsteps-1 - s)
        a(f"s_waitcnt vmcnt({state['issued'] - s - 1}) lgkmcnt({lg})")
        if s == 0 and lds_first: stamp(a, 4)
        h = vH+4*(s % RING); w0 = vWF+8*(s & 3)
        mfma(a, vAcc, *((w0, h) if w_is_a else (h, w0)), s == 0)
        if s + WA < nsteps:
            wread(s + WA)
        mfma(a, vAcc+16, *((w0+4, h) if w_is_a else (h, w0+4)), s == 0)
        if state['issued'] < nsteps:
            hload()
        if bar_at is not None and s == bar_at:
            a("s_barrier")

SZ = int(OPT['sz']) if 'sz' in OPT else None
UM = int(OPT.get('umap', 2)); UML = UM.bit_length()-1
vDX, vDXO = 236, 235
def d_tile(a):
    sQt, sCt, sCb, sKh, sOff, sXo, sJ, sU, sB, sCol = T, T+1, T+2, T+3, T+4, T+5, T+6, T+7, T+8, T+9
    a(f"""s_and_b32 s{sOff}, s{S_G}, 3
s_mul_i32 s{sOff}, s{sOff}, 18
s_min_u32 s{sJ}, s{S_SLOT}, 17
s_add_u32 s{sOff}, s{sOff}, s{sJ}
s_lshr_b32 s{sCt}, s{sOff}, 3
s_and_b32 s{sJ}, s{sOff}, 7
s_lshr_b32 s{sB}, s{S_G}, 2
s_lshl_b32 s{sQt}, s{sB}, 3
s_add_u32 s{sQt}, s{sQt}, s{sJ}
s_and_b32 s{sCb}, s{S_W}, 3
s_lshr_b32 s{sKh}, s{S_W}, 2
s_lshl_b32 s{sCol}, s{sCt}, 7
s_lshl_b32 s{sXo}, s{sQt}, 3
s_add_u32 s{sXo}, s{sXo}, s{S_W}
s_mul_i32 s{sXo}, s{sXo}, {4*2304}
s_lshl_b32 s{sOff}, s{sCol}, 1
s_add_u32 s{sXo}, s{sXo}, s{sOff}
v_lshrrev_b32 v{vDXO}, 4, v0
v_mul_u32_u24 v{vDXO}, 2304, v{vDXO}
v_and_b32 v{vT3}, 15, v0
v_lshl_add_u32 v{vDXO}, v{vT3}, 4, v{vDXO}""")

def phase_bc(a):
    sTb, sOff, sH, sF = T+1, T+4, T+5, T+6
    vA0, vA1 = V0+1, V0+2
    vAcc = 20
    vWF = 52
    vH = 84
    a("L_b:")
    stamp(a, 1)
    srd(a, R_B, S_WO, SZ_WO)
    srd(a, R_A, S_X, SZ_X)
    a(f"s_sub_u32 s{S_SLOT}, s{S_SLOT}, {NO}")
    d_tile(a)
    a(f"""buffer_load_dwordx4 {vr(vDX,4)}, v{vDXO}, {RA}, s{T+5} offen
s_and_b32 s{T+14}, s{S_G}, {UM-1}
s_mul_i32 s{T+14}, s{T+14}, 18
s_add_u32 s{T+14}, s{T+14}, s{S_SLOT}
s_lshr_b32 s{S_UCT}, s{T+14}, {UML}
s_and_b32 s{T+14}, s{T+14}, {UM-1}
s_lshr_b32 s{S_UTB}, s{S_G}, {UML}
s_lshl_b32 s{S_UTB}, s{S_UTB}, {UML}
s_add_u32 s{S_UTB}, s{S_UTB}, s{T+14}
s_lshl_b32 s{S_UTB}, s{S_UTB}, 1
s_and_b32 s{T+14}, s{S_W}, 1
s_add_u32 s{S_UTB}, s{S_UTB}, s{T+14}
v_lshlrev_b32 v{vDU}, 4, v{vCH}
v_mul_u32_u24 v{vT0}, 2304, v{vR8}
s_lshl_b32 s{T+14}, s{S_UCT}, 7
v_add3_u32 v{vDU}, v{vDU}, v{vT0}, s{T+14}
s_lshl_b32 s{sTb}, s{S_BRT}, 2
s_and_b32 s{sOff}, s{S_W}, 3
s_add_u32 s{sTb}, s{sTb}, s{sOff}
s_mul_i32 s{sH}, s{sTb}, {72*1024}
s_add_u32 s{sH}, s{sH}, {WS_H}
v_mov_b32 v{vA0}, v{vB0}
v_mov_b32 v{vA1}, v{vB1}
v_min_u32 v{vT0}, 17, v0
v_lshlrev_b32 v{vT0}, 7, v{vT0}
s_lshr_b32 s{sOff}, s{S_BRT}, 1
s_mul_i32 s{sOff}, s{sOff}, {18*128}
s_add_u32 s{sOff}, s{sOff}, {F_H}
s_mul_i32 s{sF}, s{sTb}, 54
s_add_u32 s{sF}, s{sF}, s{S_BCT}
s_lshl_b32 s{sF}, s{sF}, 7
s_add_u32 s{sF}, s{sF}, {F_QKV}
s_waitcnt vmcnt(0)""")
    a("s_barrier")
    stamp(a, 2)
    a(f"s_cmp_ge_u32 s{S_W}, 4\ns_cbranch_scc1 L_ld")
    HPWG = OPT.get('hp', 'w') == 'wg'
    G1 = int(OPT.get('g1', 8))
    if G1:
        assert SZ is None and not HPWG
        a(f"v_min_u32 v{vT0}, {(G1-1)*128}, v{vT0}")
    if HPWG:
        poll(a, vT0, f"s{sOff}", vT1)
    else:
        wpoll(a, vT0, f"s{sOff}", vT1)
    stamp(a, 3)
    LA = int(OPT['la'])
    BR = int(OPT.get('brot', 0))
    if BR:
        a(f"s_mul_i32 s{T+8}, s{S_G}, {BR}")
    gemm_loop(a, 72, LA, LA+4, vAcc, vWF, vH, vA0, vA1, vL16, sH, True, True, bar_at=(4*G1 - int(OPT['la']) - 1 if G1 else SZ),
              rot=(T+8, T+9, T+10, T+11, T+12, T+13, V0, V0+3) if BR else None)
    stamp(a, 5)
    a(f"""s_mul_i32 s{sH}, s{sTb}, {216*1024}
s_lshl_b32 s{sOff}, s{S_BCT}, 12
s_add_u32 s{sH}, s{sH}, s{sOff}
s_add_u32 s{sH}, s{sH}, {WS_QKV}
s_nop 7""")
    for u in range(4):
        if u == 2:
            a("s_nop 1")
        for r in range(4*u, 4*u+4):
            a(f"v_cvt_pk_bf16_f32 v{vWF+r}, v{vAcc+2*r}, v{vAcc+2*r+1}")
        a(f"buffer_store_dwordx4 {vr(vWF+4*u,4)}, v{vL16}, {WS}, s{sH} offen offset:{1024*u} sc1")
    a("s_barrier")
    stamp(a, 6)
    sKh = T+2
    a(f"""s_lshr_b32 s{sKh}, s{S_W}, 1
s_mul_i32 s{sH}, s{S_UTB}, {216*1024}
s_mul_i32 s{sOff}, s{sKh}, {36*1024}
s_add_u32 s{sH}, s{sH}, s{sOff}
s_add_u32 s{sH}, s{sH}, {WS_QKV + 144*1024}
s_mul_i32 s{sOff}, s{sKh}, {576*128}
v_add_u32 v{vA0}, s{sOff}, v{vB0}
v_add_u32 v{vA1}, s{sOff}, v{vB1}
v_min_u32 v{vT0}, 8, v0
v_lshlrev_b32 v{vT0}, 7, v{vT0}
s_mul_i32 s{T+7}, s{S_UTB}, {54*128}
s_mul_i32 s{sOff}, s{sKh}, {9*128}
s_add_u32 s{T+7}, s{T+7}, s{sOff}
s_add_u32 s{T+7}, s{T+7}, {F_QKV + 36*128}
s_waitcnt vmcnt(0)""")
    raw_flag(a, f"s{sF}")
    a("s_barrier")
    stamp(a, 7)
    a(f"s_cmp_ge_u32 s{S_SLOT}, 18\ns_cbranch_scc1 L_c_notu")
    if 'udelay' in OPT:
        a(f"s_sleep {OPT['udelay']}")
    UROT = int(OPT.get('urot', 0))
    if UROT:
        a(f"s_mul_i32 s{T+8}, s{S_G if 'urg' in OPT else S_UCT}, {UROT}")
        mod9(a, T+8, T+8, T+9)
    wpoll(a, vT0, f"s{T+7}", vT1)
    stamp(a, 12)
    LA = int(OPT.get('lau', 12))
    gemm_loop(a, 36, LA, min(36, LA+4), vAcc, vWF, vH, vA0, vA1, vP16, sH, False, False, pre=lambda: (a("s_barrier"), stamp(a, 11)),
              rot=(T+8, T+9, T+10, T+11, T+12, T+13, V0, V0+3) if UROT else None)
    stamp(a, 13)
    lk1 = a.label("kh1"); lj = a.label("j")
    a(f"""s_lshl_b32 s{sOff}, s{S_W}, 12
s_add_u32 s{sOff}, s{sOff}, {L_MISC}
v_add_u32 v{vT0}, s{sOff}, v{vL16}
v_xor_b32 v{vT1}, {2*4096}, v{vT0}
s_lshr_b32 s{sH}, s{S_UTB}, 3
s_mul_i32 s{sF}, s{sH}, 18
s_add_u32 s{sF}, s{sF}, s{S_UCT}
s_lshl_b32 s{sH}, s{sF}, 1
s_add_u32 s{sH}, s{sH}, s{sKh}
s_lshl_b32 s{sH}, s{sH}, 3
s_and_b32 s{sOff}, s{S_UTB}, 7
s_add_u32 s{sH}, s{sH}, s{sOff}
s_lshl_b32 s{sF}, s{sH}, 7
s_add_u32 s{sF}, s{sF}, {F_U}
s_lshl_b32 s{sH}, s{sH}, 11
s_add_u32 s{sH}, s{sH}, {WS_U}
s_cmp_lg_u32 s{sKh}, 0
s_cbranch_scc1 {lk1}""")
    for q in range(4):
        a(f"ds_write_b128 v{vT0}, {vr(vAcc+16+4*q,4)} offset:{q*1024}")
    a(f"s_branch {lj}\n{lk1}:")
    for q in range(4):
        a(f"ds_write_b128 v{vT0}, {vr(vAcc+4*q,4)} offset:{q*1024}")
    for r in range(16):
        a(f"v_mov_b32 v{vAcc+r}, v{vAcc+16+r}")
    a(f"{lj}:\ns_waitcnt lgkmcnt(0)\ns_barrier")
    for q in range(4):
        a(f"ds_read_b128 {vr(vWF+4*q,4)}, v{vT1} offset:{q*1024}")
    for u in range(2):
        a(f"s_waitcnt lgkmcnt({2-2*u})")
        for r in range(8*u, 8*u+8):
            a(f"v_add_f32 v{vAcc+r}, v{vAcc+r}, v{vWF+r}")
        for r in range(4*u, 4*u+4):
            a(f"v_cvt_pk_bf16_f32 v{vWF+16+r}, v{vAcc+2*r}, v{vAcc+2*r+1}")
        a(f"buffer_store_dwordx4 {vr(vWF+16+4*u,4)}, v{vL16}, {WS}, s{sH} offen offset:{1024*u} sc1")
    if OPT.get('fb', '1') == '1':
        a("s_waitcnt vmcnt(0)")
        raw_flag(a, f"s{sF}")
        a("s_barrier")
    else:
        a("s_barrier\ns_waitcnt vmcnt(0)")
        raw_flag(a, f"s{sF}")
    a("s_branch L_c_done")
    lnu = a.label("ldnu")
    vWo = 20
    NE = int(OPT.get('ne', 18))
    a("L_ld:")
    if 'tlb' in OPT:
        sh = int(OPT['tlb'])
        lt = a.label("tlb")
        srd(a, R_A, S_OUT, SZ_X)
        srd(a, R_C, S_WS, 0x700000)
        a(f"s_cmp_lg_u32 s{S_W}, 7\ns_cbranch_scc1 {lt}\nv_lshlrev_b32 v{vT2}, {sh}, v0\nv_add_u32 v{vT2}, {(1<<sh)-128}, v{vT2}")
        a(f"buffer_load_dword v236, v{vT2}, {RA}, 0 offen")
        for off in range(0, 0x700000, 64 << sh):
            a(f"v_add_u32 v{vT1}, {off}, v{vT2}\nbuffer_load_dword v237, v{vT1}, {RC}, 0 offen sc1")
        a(f"{lt}:")
    NA = int(OPT.get('na', 0))
    a(f"""s_cmp_ge_u32 s{S_SLOT}, 18
s_cbranch_scc1 {lnu}
s_sub_u32 s{T+10}, s{S_W}, 4
s_lshl_b32 s{T+11}, s{T+10}, 10
v_add_u32 v{vT0}, s{T+11}, v{vL16}
s_bfe_u32 s{T+12}, s{S_UTB}, 0x10001
s_mul_i32 s{T+12}, s{T+12}, 72
s_bfe_u32 s{T+11}, s{S_UTB}, 0x10002
s_mul_i32 s{T+11}, s{T+11}, {36 if UM > 2 else 0}
s_add_u32 s{T+12}, s{T+12}, s{T+11}
s_add_u32 s{T+10}, s{T+10}, s{T+12}
s_lshl_b32 s{T+12}, s{T+12}, 10""")
    def nxt(n):
        if n < 35:
            a(f"s_add_u32 s{T+10}, s{T+10}, 4")
            if n % 9 == 8:
                a(f"""s_sub_u32 s{T+11}, s{T+10}, 144
s_cmp_ge_u32 s{T+10}, 144
s_cselect_b32 s{T+10}, s{T+11}, s{T+10}""")
    for n in range(NE):
        if SZ is not None and n == NA:
            a("s_barrier")
        a(f"""s_mul_i32 s{T+11}, s{T+10}, {8*2304}
buffer_load_dwordx4 {vr(vWo+4*n,4)}, v{vDU}, {RB}, s{T+11} offen
{THRO}""")
        nxt(n)
    stamp(a, 4)
    def hall():
        l7 = a.label("w7")
        a(f"""s_cmp_lg_u32 s{S_W}, 7
s_cbranch_scc1 {l7}
v_min_u32 v{vT2}, 17, v0
v_lshlrev_b32 v{vT2}, 7, v{vT2}""")
        wpoll(a, vT2, f"s{sOff}", vT1)
        a(f"{l7}:\ns_barrier")
    if G1:
        hall()
    if HPWG:
        a("s_barrier")
    a("s_barrier")
    stamp(a, 5)
    WS_ = min(NE, int(OPT.get('wsplit', 12)))
    def wr(n):
        if n % 9 == 0:
            a(f"v_add_u32 v{vT1}, s{T+12}, v{vT0}")
            a(f"""s_add_u32 s{T+12}, s{T+12}, {36*1024}
s_cmp_ge_u32 s{T+12}, {144*1024}
s_cselect_b32 s{T+12}, 0, s{T+12}""")
        a(f"ds_write_b128 v{vT1}, {vr(vWo+4*n,4)} offset:{(n % 9)*4096}")
    KD = min(36-NE, int(OPT.get('kd', 0)))
    def dm(n):
        a(f"""s_lshl_b32 m0, s{T+10}, 10
s_mul_i32 s{T+11}, s{T+10}, {8*2304}
buffer_load_dwordx4 v{vDU}, {RB}, s{T+11} offen lds""")
        nxt(n)
    a("s_waitcnt vmcnt(0)")
    for n in range(NE, NE+KD): dm(n)
    for n in range(WS_): wr(n)
    a("s_barrier")
    if 'dfirst' in OPT:
        a("s_nop 15")
        for n in range(NE+KD, 36): dm(n)
        for n in range(WS_, NE): wr(n)
    else:
        for n in range(WS_, NE): wr(n)
        for n in range(NE+KD, 36): dm(n)
    a(f"""s_waitcnt vmcnt(0) lgkmcnt(0)""")
    stamp(a, 11)
    lg4 = a.label("g4")
    a(f"""s_barrier
s_cmp_lg_u32 s{S_W}, 4
s_cbranch_scc1 {lg4}""")
    d_tile(a)
    a(f"""s_lshr_b32 s{T+10}, s{T+9}, 6
s_lshl_b32 s{T+10}, s{T+10}, 7
s_add_u32 s{T+10}, s{T+10}, {F_G}
v_and_b32 v{vT0}, 1, v0
v_lshlrev_b32 v{vT0}, 7, v{vT0}
s_mul_i32 s{T+11}, s{T+8}, 4608
s_lshl_b32 s{T+12}, s{T+9}, 2
s_add_u32 s{T+11}, s{T+11}, s{T+12}
s_add_u32 s{T+11}, s{T+11}, {WS_GATE}
v_lshlrev_b32 v{vT2}, 3, v0""")
    wpoll(a, vT0, f"s{T+10}", vT1)
    a(f"""buffer_load_dwordx2 v[20:21], v{vT2}, {WS}, s{T+11} offen sc1
s_waitcnt vmcnt(0)
s_barrier
ds_write_b64 v{vT2}, v[20:21] offset:{L_GATE}
s_waitcnt lgkmcnt(0)
s_barrier
s_branch L_c_done
{lg4}:
s_barrier
s_barrier
s_branch L_c_done
{lnu}:""")
    if G1:
        hall()
    a(f"""s_barrier
s_barrier""")
    if SZ is not None:
        a("s_barrier")
    if HPWG:
        a("s_barrier")
    a("L_c_notu:")
    sQb, sKb, sKq, sJ, sK, sQ, sTy = T, T+1, T+2, T+3, T+5, T+6, T+9
    sM = T+10
    sK1 = T+12
    vS = 56
    RING = 15
    SW = OPT.get('sw', '1') == '1'
    SPW = f"""s_mul_i32 s{sOff}, s{sKq}, 18
s_add_u32 s{T+13}, s{sOff}, 17
s_lshr_b32 s{sOff}, s{sOff}, 2
s_lshr_b32 s{T+13}, s{T+13}, 2
v_add_u32 v{vT0}, s{sOff}, v{vTok}
v_min_u32 v{vT0}, s{T+13}, v{vT0}""" if SW else f"v_min_u32 v{vT0}, 17, v{vTok}"
    a(f"""s_sub_u32 s{sJ}, s{S_SLOT}, 18
s_lshr_b32 s{sTy}, s{sJ}, 2
s_and_b32 s{sKq}, s{S_W}, 3
s_and_b32 s{sQb}, s{S_G}, 1
s_lshl_b32 s{sQb}, s{sQb}, 2
s_and_b32 s{sOff}, s{sJ}, 3
s_add_u32 s{sQb}, s{sQb}, s{sOff}
s_and_b32 s{sKb}, s{S_G}, 2
s_lshl_b32 s{sKb}, s{sKb}, 1
s_lshr_b32 s{sOff}, s{S_G}, 2
s_lshl_b32 s{sOff}, s{sOff}, 3
s_add_u32 s{sQb}, s{sQb}, s{sOff}
s_add_u32 s{sKb}, s{sKb}, s{sOff}
s_min_u32 s{sK1}, s{sTy}, 1
s_add_u32 s{sK1}, s{sK1}, s{sTy}
s_mul_i32 s{sK}, s{sKb}, {216*1024}
s_mul_i32 s{sQ}, s{sQb}, {216*1024}
s_mul_i32 s{sOff}, s{sKq}, {18*1024}
s_add_u32 s{sK}, s{sK}, s{sOff}
s_add_u32 s{sQ}, s{sQ}, s{sOff}
s_add_u32 s{sK}, s{sK}, {WS_QKV + 72*1024}
s_add_u32 s{sQ}, s{sQ}, {WS_QKV}
s_mul_i32 s{sOff}, s{sKq}, 18
s_add_u32 s{T+13}, s{sOff}, 17
s_lshr_b32 s{sOff}, s{sOff}, 2
s_lshr_b32 s{T+13}, s{T+13}, 2
v_and_b32 v{vT0}, 7, v0
v_add_u32 v{vT0}, s{sOff}, v{vT0}
v_min_u32 v{vT0}, s{T+13}, v{vT0}
s_mul_i32 s{sOff}, s{sQb}, 54
v_mov_b32 v{vT1}, s{sOff}
s_add_u32 s{sOff}, s{sKb}, s{sK1}
s_mul_i32 s{sOff}, s{sOff}, 54
s_add_u32 s{sOff}, s{sOff}, 18
v_mov_b32 v{vT2}, s{sOff}
v_cmp_lt_u32 vcc, 7, v0
s_mul_i32 s{sOff}, s{sKb}, 54
s_add_u32 s{sOff}, s{sOff}, {54+18}
v_cndmask_b32 v{vT1}, v{vT1}, v{vT2}, vcc
v_mov_b32 v{vT2}, s{sOff}
v_cmp_lt_u32 vcc, 15, v0
s_nop 1
v_cndmask_b32 v{vT1}, v{vT1}, v{vT2}, vcc
v_add_u32 v{vT0}, v{vT0}, v{vT1}
v_lshlrev_b32 v{vT0}, 7, v{vT0}
v_and_b32 v{vT2}, 0x2ff, v{vP16}
v_and_b32 v{vT1}, 16, v0
v_lshl_add_u32 v{vT2}, v{vT1}, 6, v{vT2}
s_and_b32 s{sOff}, s{sTy}, 1
s_lshl_b32 s{sOff}, s{sOff}, 8
s_add_u32 s{sOff}, s{sOff}, {216*1024}
v_add_u32 v{vT2}, s{sOff}, v{vT2}
s_mul_i32 s{sOff}, s{sK1}, {216*1024}
v_add_u32 v{V0}, s{sOff}, v{vP16}
s_mov_b32 s{sOff}, {F_QKV}""")
    lsi = a.label("sidle")
    if not SW:
        poll(a, vT0, f"s{sOff}", vT1)
    a(f"s_cmp_ge_u32 s{S_W}, 4\ns_cbranch_scc1 {lsi}")
    if SW:
        wpoll(a, vT0, f"s{sOff}", vT1)
    stamp(a, 12)
    LA = int(OPT.get('las', 4))
    vS = 72; RING = 8
    vAc3 = 56
    assert LA < RING
    def sload(p):
        r = vS + 20*(p % RING)
        o = (p & 1)*2048
        a(f"""buffer_load_dwordx4 {vr(r,4)}, v{vL16}, {WS}, s{sQ} offen offset:{o} sc1
buffer_load_dwordx4 {vr(r+4,4)}, v{V0}, {WS}, s{sK} offen offset:{o} sc1
buffer_load_dwordx4 {vr(r+8,4)}, v{vT2}, {WS}, s{sK} offen offset:{o} sc1
buffer_load_dwordx4 {vr(r+12,4)}, v{vL16}, {WS}, s{sQ} offen offset:{o+1024} sc1
buffer_load_dwordx4 {vr(r+16,4)}, v{V0}, {WS}, s{sK} offen offset:{o+1024} sc1""")
        if p & 1:
            a(f"s_add_u32 s{sK}, s{sK}, 4096\ns_add_u32 s{sQ}, s{sQ}, 4096")
    for p in range(LA):
        sload(p)
    for p in range(9):
        y = 5*(min(9, p + LA) - p - 1)
        r = vS + 20*(p % RING)
        a(f"s_waitcnt vmcnt({y+3})")
        mfma(a, vAcc, r+4, r, p == 0)
        a(f"s_waitcnt vmcnt({y+2})")
        mfma(a, vAcc+16, r+8, r, p == 0)
        a(f"s_waitcnt vmcnt({y+1})")
        mfma(a, vAc3, r+8, r+12, p == 0)
        a(f"s_waitcnt vmcnt({y})")
        mfma(a, vAcc, r+16, r+12)
        if p + LA < 9:
            sload(p + LA)
    stamp(a, 13)
    QS, HS, PSZ = 1056, 528, 8448
    a(f"""s_mul_i32 s{sOff}, s{S_W}, {PSZ}
v_lshl_add_u32 v{vT0}, v{vHF}, 4, v{vL16}
v_add_u32 v{vT0}, s{sOff}, v{vT0}
s_nop 7""")
    for r in range(8):
        a(f"v_add_f32 v{vAcc+16+r}, v{vAcc+16+r}, v{vAc3+8+r}")
    for q in (4, 5, 0, 1, 2, 3):
        a(f"ds_write_b128 v{vT0}, {vr(vAcc+4*q,4)} offset:{q*QS}")
    a(f"""{lsi}:
v_bfe_u32 v{vT1}, v0, 2, 2
v_and_b32 v{vT2}, 1, v0
v_lshl_add_u32 v{vT1}, v{vT1}, 1, v{vT2}
v_mul_u32_u24 v{vT1}, {QS}, v{vT1}
v_bfe_u32 v{vT2}, v0, 1, 1
v_mul_u32_u24 v{vT2}, {HS}, v{vT2}
v_lshrrev_b32 v{vT0}, 4, v0
s_lshl_b32 s{sOff}, s{S_W}, 2
v_add_u32 v{vT0}, s{sOff}, v{vT0}
v_lshl_add_u32 v{vT1}, v{vT0}, 4, v{vT1}
v_add_u32 v{vT1}, v{vT1}, v{vT2}
v_and_b32 v{vT2}, 7, v0
v_lshlrev_b32 v{vT2}, 4, v{vT2}
v_lshl_add_u32 v{vT2}, v{vT0}, 10, v{vT2}
s_lshl_b32 s{sOff}, s{sK1}, 7
v_mov_b32 v{vT0}, s{sOff}
v_and_b32 v{vT3}, 8, v0
v_cmp_ne_u32 vcc, 0, v{vT3}
s_and_b32 s{sOff}, s{sTy}, 1
s_lshl_b32 s{sOff}, s{sOff}, 6
s_add_u32 s{sOff}, s{sOff}, 128
v_mov_b32 v{vT3}, s{sOff}
s_lshl_b32 s{sJ}, s{sQb}, 15
v_cndmask_b32 v{vT0}, v{vT0}, v{vT3}, vcc
v_add_u32 v{vT2}, v{vT2}, v{vT0}
s_and_b32 s{sOff}, s{sKb}, 7
s_lshl_b32 s{sOff}, s{sOff}, 7
s_add_u32 s{sJ}, s{sJ}, s{sOff}
s_add_u32 s{sJ}, s{sJ}, {WS_L}
s_lshl_b32 s{sK}, s{sQb}, 3
s_add_u32 s{sK}, s{sK}, s{S_W}
s_mul_i32 s{sK}, s{sK}, 6
s_bfe_u32 s{sOff}, s{sKb}, 0x10002
s_mul_i32 s{sOff}, s{sOff}, 3
s_add_u32 s{sK}, s{sK}, s{sOff}
s_add_u32 s{sK}, s{sK}, s{sTy}
s_lshl_b32 s{sK}, s{sK}, 7
s_add_u32 s{sK}, s{sK}, {F_LH}
s_mov_b32 s{sM}, 0x0fff0fff
s_cmp_eq_u32 s{sTy}, 2
s_cselect_b32 s{sM}, 0x00ff00ff, s{sM}
s_mov_b32 s{sM+1}, s{sM}
v_mov_b32 v53, v{vTAG}
v_mov_b32 v55, v{vTAG}
s_waitcnt lgkmcnt(0)
s_barrier""")
    for j in range(4):
        a(f"ds_read_b128 {vr(vAcc+4*j,4)}, v{vT1} offset:{j*PSZ}")
    a("s_waitcnt lgkmcnt(2)")
    for r in range(4):
        a(f"v_add_f32 v{vAcc+r}, v{vAcc+r}, v{vAcc+4+r}")
    a("s_waitcnt lgkmcnt(0)")
    for r in range(4):
        a(f"v_add_f32 v{vAcc+8+r}, v{vAcc+8+r}, v{vAcc+12+r}")
    for r in range(4):
        a(f"v_add_f32 v{vAcc+r}, v{vAcc+r}, v{vAcc+8+r}")
    sc = struct.unpack('<I', struct.pack('<f', D ** -0.5))[0]
    for r in range(2):
        a(f"v_cvt_pk_bf16_f32 v{52+2*r}, v{vAcc+2*r}, v{vAcc+2*r+1}")
    for r in range(2):
        unpack(a, vAcc+2*r, vAcc+2*r+1, 52+2*r)
    for r in range(4):
        a(f"v_mul_f32 v{vAcc+r}, {hex(sc)}, v{vAcc+r}")
    for r in range(2):
        a(f"v_cvt_pk_bf16_f32 v{52+2*r}, v{vAcc+2*r}, v{vAcc+2*r+1}")
    a(f"s_mov_b64 exec, s[{sM}:{sM+1}]\nbuffer_store_dwordx4 v[52:55], v{vT2}, {WS}, s{sJ} offen sc1\ns_mov_b64 exec, -1")
    raw_flag(a, f"s{sK}")
    a("L_c_done:")
    stamp(a, 14)

def phase_d(a):
    sQt, sCt, sCb, sKh, sOff, sXo, sJ, sU, sB, sCol = T, T+1, T+2, T+3, T+4, T+5, T+6, T+7, T+8, T+9
    vXo, vMx, vS, vLa, vPa, vLw = vDXO, V0+1, V0+2, V0+3, V0+4, V0+5
    vLd = 24
    vX = vDX
    vG = 44
    vF = 56
    vR = 72
    vAcc = 80
    vU = 96
    vP = 128
    PS = 1056
    L_P, L_EX = 40960, 65536
    srd(a, R_B, S_OUT, SZ_X)
    a(f"s_cmp_ge_u32 s{S_SLOT}, 18\ns_cbranch_scc1 L_fin")
    d_tile(a)
    a(f"""s_mul_i32 s{sU}, s{sB}, 36
s_lshl_b32 s{sOff}, s{sCt}, 2
s_add_u32 s{sU}, s{sU}, s{sOff}
s_add_u32 s{sU}, s{sU}, s{sCb}
s_lshl_b32 s{sU}, s{sU}, 4
s_lshl_b32 s{sOff}, s{sKh}, 3
s_add_u32 s{sU}, s{sU}, s{sOff}
s_lshl_b32 s{T+10}, s{sU}, 6
s_add_u32 s{T+10}, s{T+10}, {F_U}
s_lshl_b32 s{sU}, s{sU}, 10
s_add_u32 s{sU}, s{sU}, {WS_U}
v_and_b32 v{vT0}, 3, v0
v_lshlrev_b32 v{vT0}, 7, v{vT0}
v_add_u32 v{vT1}, s{T+10}, v{vT0}
s_lshl_b32 s{sOff}, s{sQt}, 3
s_add_u32 s{sOff}, s{sOff}, s{S_W}
s_mul_i32 s{sOff}, s{sOff}, {6*128}
s_add_u32 s{sOff}, s{sOff}, {F_LH}
v_min_u32 v{vT2}, 5, v0
v_lshlrev_b32 v{vT2}, 7, v{vT2}
v_add_u32 v{vT2}, s{sOff}, v{vT2}
v_cmp_gt_u32 vcc, 8, v0
v_and_b32 v{vT3}, 15, v0
v_lshrrev_b32 v{vT0}, 4, v0
v_cndmask_b32 v{vT1}, v{vT1}, v{vT2}, vcc
s_lshl_b32 s{sOff}, s{S_W}, 2
v_add_u32 v{vT0}, s{sOff}, v{vT0}
v_lshlrev_b32 v{vLa}, 10, v{vT0}
v_lshl_add_u32 v{vLa}, v{vT3}, 4, v{vLa}
v_lshrrev_b32 v{vT2}, 1, v{vT3}
v_mul_u32_u24 v{vLw}, {PS//2}, v{vT2}
v_lshl_add_u32 v{vLw}, v{vT0}, 4, v{vLw}
v_and_b32 v{vT2}, 1, v0
v_lshl_add_u32 v{vLw}, v{vT2}, 3, v{vLw}
v_lshl_add_u32 v{vPa}, v{vHF}, 4, v{vL16}
s_mul_i32 s{sOff}, s{sKh}, {8*PS}
v_add_u32 v{vPa}, s{sOff}, v{vPa}
v_lshlrev_b32 v{vT0}, 5, v{vT3}
ds_read_b128 {vr(vG,4)}, v{vT0} offset:{L_GATE}
ds_read_b128 {vr(vG+4,4)}, v{vT0} offset:{L_GATE+16}
s_lshl_b32 s{sOff}, s{sQt}, 15
s_add_u32 s{sOff}, s{sOff}, {WS_L}""")
    vFa, vFl = 22, 23
    sUd = T+12
    def uloads():
        for s in range(8):
            a(f"buffer_load_dwordx4 {vr(vU+4*s,4)}, v{vL16}, {WS}, s{sU} offen offset:{(s&3)*1024} sc1")
            if s == 3:
                a(f"s_add_u32 s{sU}, s{sU}, 4096")
        a(f"s_mov_b32 s{sUd}, 1")
        stamp(a, 8)
    l = a.label("lp"); d = a.label("lpd"); nu = a.label("nu"); l3 = a.label("lv"); d3 = a.label("lvd"); nu2 = a.label("nu2")
    def lloads():
        for n in range(4):
            a(f"buffer_load_dwordx4 {vr(vLd+4*n,4)}, v{vLa}, {WS}, s{sOff} offen offset:{256*n} sc1")
    a(f"""v_mov_b32 v{vFa}, v{vT1}
s_mov_b32 s{sUd}, 0
{l}:
buffer_load_dword v{vFl}, v{vFa}, {WS}, 0 offen {PF}
s_waitcnt vmcnt(0)
v_cmp_ne_u32 vcc, s{S_TAG}, v{vFl}
s_and_b32 s{T+13}, vcc_lo, 255
s_cbranch_scc0 {d}
s_lshr_b32 s{T+13}, vcc_lo, 8
s_or_b32 s{T+13}, s{T+13}, s{sUd}
s_cbranch_scc1 {nu}""")
    uloads()
    a(f"""{nu}:
s_sleep {OPT.get('lsleep', 1)}
s_sub_u32 s{S_TO}, s{S_TO}, 1
s_cmp_lg_u32 s{S_TO}, 0
s_cbranch_scc1 {l}
s_mov_b32 s{S_TO}, 1
{d}:""")
    lloads()
    a(f"""s_lshr_b32 s{T+13}, vcc_lo, 8
s_or_b32 s{T+13}, s{T+13}, s{sUd}
s_cbranch_scc1 {nu2}""")
    if 'ul' in OPT:
        a(f"s_waitcnt vmcnt({OPT['ul']})")
    uloads()
    a(f"""s_waitcnt vmcnt(8)
s_branch {l3}_c
{nu2}:
buffer_load_dword v{vFl}, v{vFa}, {WS}, 0 offen {PF}
s_waitcnt vmcnt(1)
s_branch {l3}_c
{l3}:""")
    lloads()
    a(f"""s_waitcnt vmcnt(0)
{l3}_c:
v_min_u32 v{vT1}, v{vLd+1}, v{vLd+3}
v_max_u32 v{vT2}, v{vLd+1}, v{vLd+3}""")
    for n in range(1, 4):
        a(f"v_min3_u32 v{vT1}, v{vT1}, v{vLd+4*n+1}, v{vLd+4*n+3}\nv_max3_u32 v{vT2}, v{vT2}, v{vLd+4*n+1}, v{vLd+4*n+3}")
    a(f"""v_cmp_ne_u32 vcc, s{S_TAG}, v{vT1}
v_cmp_ne_u32 s[{T+14}:{T+15}], s{S_TAG}, v{vT2}
s_or_b64 vcc, vcc, s[{T+14}:{T+15}]
s_cbranch_vccz {d3}
s_sub_u32 s{S_TO}, s{S_TO}, 1
s_cmp_lg_u32 s{S_TO}, 0
s_cbranch_scc1 {l3}
s_mov_b32 s{S_TO}, 1
{d3}:""")
    stamp(a, 9)
    for i in range(8):
        unpack(a, vF+2*i, vF+2*i+1, vLd+2*i)
    a(f"""v_max3_f32 v{vMx}, v{vF}, v{vF+1}, v{vF+2}
v_max3_f32 v{vS}, v{vF+3}, v{vF+4}, v{vF+5}
v_max3_f32 v{vMx}, v{vMx}, v{vF+6}, v{vF+7}
v_max3_f32 v{vS}, v{vS}, v{vF+8}, v{vF+9}
v_max3_f32 v{vMx}, v{vMx}, v{vF+10}, v{vF+11}
v_max3_f32 v{vS}, v{vS}, v{vF+12}, v{vF+13}
v_max3_f32 v{vMx}, v{vMx}, v{vF+14}, v{vF+15}
v_max_f32 v{vMx}, v{vMx}, v{vS}""")
    for m in ("quad_perm:[1,0,3,2]", "quad_perm:[2,3,0,1]", "row_half_mirror", "row_mirror"):
        a(f"s_nop 1\nv_max_f32_dpp v{vMx}, v{vMx}, v{vMx} {m} row_mask:0xf bank_mask:0xf")
    a(f"s_mov_b32 s{T+10}, {hex(LOG2E)}\nv_mul_f32 v{vMx}, s{T+10}, v{vMx}")
    for i in range(16):
        a(f"v_fma_f32 v{vF+i}, v{vF+i}, s{T+10}, -v{vMx}")
    for i in range(16):
        a(f"v_exp_f32 v{vF+i}, v{vF+i}")
    a(f"v_add_f32 v{vS}, v{vF}, v{vF+1}\nv_add_f32 v{vMx}, v{vF+2}, v{vF+3}")
    for i in range(4, 16, 2):
        a(f"v_add_f32 v{vS}, v{vS}, v{vF+i}\nv_add_f32 v{vMx}, v{vMx}, v{vF+i+1}")
    a(f"v_add_f32 v{vS}, v{vS}, v{vMx}")
    for m in ("quad_perm:[1,0,3,2]", "quad_perm:[2,3,0,1]", "row_half_mirror", "row_mirror"):
        a(f"s_nop 1\nv_add_f32_dpp v{vS}, v{vS}, v{vS} {m} row_mask:0xf bank_mask:0xf")
    a(f"v_rcp_f32 v{vS}, v{vS}\ns_nop 0")
    for i in range(16):
        a(f"v_mul_f32 v{vF+i}, v{vF+i}, v{vS}")
    for i in range(8):
        a(f"v_cvt_pk_bf16_f32 v{vLd+i}, v{vF+2*i}, v{vF+2*i+1}")
    for n in range(4):
        a(f"ds_write_b64 v{vLw}, {vr(vLd+2*n,2)} offset:{L_P+4*n*PS}")
    hu = a.label("hu"); l2 = a.label("up"); d2 = a.label("upd")
    a(f"""s_cmp_lg_u32 s{sUd}, 0
s_cbranch_scc1 {hu}
{l2}:
s_waitcnt vmcnt(0)
v_cmp_ne_u32 vcc, s{S_TAG}, v{vFl}
s_cbranch_vccz {d2}
buffer_load_dword v{vFl}, v{vFa}, {WS}, 0 offen {PF}
s_sub_u32 s{S_TO}, s{S_TO}, 1
s_cmp_lg_u32 s{S_TO}, 0
s_cbranch_scc1 {l2}
s_mov_b32 s{S_TO}, 1
{d2}:""")
    uloads()
    a(f"{hu}:\ns_waitcnt lgkmcnt(0)\ns_barrier")
    for s in range(8):
        a(f"ds_read_b128 {vr(vP+4*s,4)}, v{vPa} offset:{L_P+s*PS}")
    ROW = 528; EXS = 32*ROW
    a(f"""s_mul_i32 s{sOff}, s{sKh}, {EXS}
s_lshl_b32 s{T+10}, s{sCb}, 7
s_add_u32 s{sOff}, s{sOff}, s{T+10}
s_add_u32 s{sOff}, s{sOff}, {L_EX}
v_mul_u32_u24 v{vT1}, {ROW}, v{vTok}
v_lshl_add_u32 v{vT1}, v{vHF}, 5, v{vT1}
v_add_u32 v{vT1}, s{sOff}, v{vT1}
v_lshrrev_b32 v{vT2}, 4, v0
v_mul_u32_u24 v{vT2}, {ROW}, v{vT2}
s_mul_i32 s{sOff}, s{S_W}, {4*ROW}
s_add_u32 s{sOff}, s{sOff}, {L_EX}
v_add3_u32 v{vT2}, v{vT2}, v{vT0}, s{sOff}""")
    for s in range(8):
        a(f"s_waitcnt vmcnt({7-s}) lgkmcnt({7-s})")
        mfma(a, vAcc, vU+4*s, vP+4*s, s == 0)
    for i in range(4):
        unpack(a, vF+2*i, vF+2*i+1, vX+i)
    stamp(a, 10)
    a("s_nop 3")
    for q in range(4):
        a(f"ds_write_b128 v{vT1}, {vr(vAcc+4*q,4)} offset:{64*(q>>1) + 16*(q&1)}")
    a(f"""s_waitcnt lgkmcnt(0)
s_barrier
ds_read_b128 {vr(vAcc,4)}, v{vT2}
ds_read_b128 {vr(vR,4)}, v{vT2} offset:{EXS}
ds_read_b128 {vr(vAcc+4,4)}, v{vT2} offset:16
ds_read_b128 {vr(vR+4,4)}, v{vT2} offset:{EXS+16}
s_waitcnt vmcnt(0) lgkmcnt(2)""")
    for r in range(8):
        if r == 4:
            a("s_waitcnt lgkmcnt(0)")
        a(f"v_add_f32 v{vAcc+r}, v{vAcc+r}, v{vR+r}")
    def cv():
        for i in range(4):
            a(f"v_cvt_pk_bf16_f32 v{vR+i}, v{vAcc+2*i}, v{vAcc+2*i+1}")
    def up():
        for i in range(4):
            unpack(a, vAcc+2*i, vAcc+2*i+1, vR+i)
    cv(); up()
    for r in range(8):
        a(f"v_mul_f32 v{vAcc+r}, v{vAcc+r}, v{vG+r}")
    cv(); up()
    for r in range(8):
        a(f"v_add_f32 v{vAcc+r}, v{vAcc+r}, v{vF+r}")
    cv()
    a(f"buffer_store_dwordx4 {vr(vR,4)}, v{vXo}, {RB}, s{sXo} offen {OPT.get('oflag', '').replace('+', ' ')}")
    a("L_fin:")

def gemv_dma(a, sColA, vD):
    sRow0, sOff = T+2, T+3
    a(f"""v_lshlrev_b32 v{vD}, 4, v{vCH}
v_mul_u32_u24 v{vT0}, 13824, v{vR8}
v_add3_u32 v{vD}, v{vD}, v{vT0}, s{sColA}
s_mul_i32 s{sOff}, s{sRow0}, 13824
s_lshl_b32 m0, s{sRow0}, 7""")
    for t in range(18):
        a(f"""s_nop 0
buffer_load_dwordx4 v{vD}, {RA}, s{sOff} offen {NT} lds""")
        if t < 17:
            a(f"s_add_u32 s{sOff}, s{sOff}, {8*13824}\ns_add_u32 m0, m0, 1024")

def phase_owner(a):
    sColA, sB, sRow0, sOff, sO, sCs, sTb = T, T+1, T+2, T+3, T+4, T+5, T+6
    vD, vA0, vA1, vSil, vCs = V0, V0+1, V0+2, V0+3, V0+4
    vC = 24
    vST = 28
    vX = VOX
    vXN = 48
    vPt = 80
    vAcc = 112
    vWF = 144
    vSF = 160
    vM = 184
    a(f"""s_mov_b32 s{sO}, s2
s_cmp_ge_u32 s{sO}, 36
s_cbranch_scc1 L_o_pref
s_lshr_b32 s{sCs}, s{sO}, 1
s_and_b32 s{sB}, s{sO}, 1
s_waitcnt vmcnt(0)
s_barrier""")
    vST = 32
    vPt = 112
    SM = [32, 33, 34, 35, 36, 37, 38, 39, 40, 41, 42, 43, 9, 10, 11, 12]
    a(f"""v_and_b32 v{vT3}, 7, v0
v_xor_b32 v{vT0}, s{S_W}, v{vT3}
v_lshlrev_b32 v{vT0}, 4, v{vT0}
v_lshl_add_u32 v{vT0}, v0, 7, v{vT0}""")
    for q in range(4):
        a(f"ds_read_b128 {vr(vX+4*q,4)}, v{vT0} offset:{q*8192}")
    a(f"""s_lshl_b32 s{T+9}, s{sB}, 12
s_add_u32 s{T+9}, s{T+9}, {F_STAT}
s_mul_i32 s{T+10}, s{sO}, {18*1024}
s_lshl_b32 s{sOff}, s{S_W}, 7
s_add_u32 s{T+10}, s{T+10}, s{sOff}
s_add_u32 s{T+10}, s{T+10}, {WS_PART}
s_add_u32 s{T+11}, s{T+10}, 8192
v_lshlrev_b32 v{vT1}, 4, v{vT3}
v_min_u32 v{vT2}, 1, v{vR8}
v_lshl_add_u32 v{vT2}, v{vT2}, 10, v{vT1}
v_add_u32 v{vT2}, 16384, v{vT2}
v_lshl_add_u32 v{vT1}, v{vR8}, 10, v{vT1}
v_cmp_gt_u32 vcc, 16, v0
v_mul_u32_u24 v{vCs}, {72*1024}, v{vHF}
v_lshl_add_u32 v{vCs}, v{vTok}, 4, v{vCs}
v_cndmask_b32 v{vA0}, 0, 1.0, vcc
v_bfe_u32 v{vA1}, v0, 2, 1
v_cvt_f32_u32 v{vA1}, v{vA1}
s_mul_i32 s{sOff}, s{sB}, {8*72*1024}
s_lshl_b32 s{T+12}, s{sCs}, 12
s_add_u32 s{sOff}, s{sOff}, s{T+12}
s_lshl_b32 s{T+12}, s{S_W}, 9
s_add_u32 s{sOff}, s{sOff}, s{T+12}
s_add_u32 s{sOff}, s{sOff}, {WS_H}
s_waitcnt lgkmcnt(0)""")
    def stl():
        for q in range(4):
            a(f"buffer_load_dwordx4 {vr(vST+4*q,4)}, v{vL16}, {WS}, s{T+9} offen offset:{1024*q} sc1")
    def pl():
        a(f"""buffer_load_dwordx4 {vr(vPt,4)}, v{vT1}, {WS}, s{T+10} offen sc1
buffer_load_dwordx4 {vr(vPt+4,4)}, v{vT1}, {WS}, s{T+11} offen sc1
buffer_load_dwordx4 {vr(vPt+8,4)}, v{vT2}, {WS}, s{T+10} offen sc1""")
    P = [(q, i) for q in range(4) for i in range(4)]
    lo = lambda q, i: vXN+8*q+2*i
    hi = lambda q, i: vXN+8*q+2*i+1
    xs = lambda q, i: vX+4*q+i
    def st_unpack():
        for q, i in P: unpack(a, lo(q,i), hi(q,i), xs(q,i))
    def st_cvt():
        for q, i in P: a(f"v_cvt_pk_bf16_f32 v{xs(q,i)}, v{lo(q,i)}, v{hi(q,i)}")
    def st_op(op, f):
        for q, i in P:
            a(f"{op} v{lo(q,i)}, v{lo(q,i)}, v{f(q,2*i)}\n{op} v{hi(q,i)}, v{hi(q,i)}, v{f(q,2*i+1)}")
    st_unpack()
    if 'st1' in OPT:
        a(f"v_and_b32 v{vM}, 3, v0\ns_lshl_b32 s{T+12}, s{S_W}, 9\nv_lshlrev_b32 v{vM}, 7, v{vM}\ns_add_u32 s{T+12}, s{T+12}, s{T+9}\nv_add_u32 v{vM}, 124, v{vM}")
        wpoll(a, vM, f"s{T+12}", vM+1)
        a("s_barrier")
    gpoll(a, stl, [vST+4*q+j for q in range(4) for j in (1, 3)], OPT.get('ssleep'))
    stamp(a, 1)
    st_op("v_sub_f32", lambda q, j: vST+4*q); st_cvt()
    st_unpack()
    pl()
    st_op("v_mul_f32", lambda q, j: vST+4*q+2); st_cvt()
    st_unpack()
    stamp(a, 2)
    lp = a.label("pp"); ld = a.label("ppd")
    a(f"""{lp}:
s_waitcnt vmcnt(0)
v_min3_u32 v{vM}, v{vPt+1}, v{vPt+3}, v{vPt+5}
v_max3_u32 v{vM+1}, v{vPt+1}, v{vPt+3}, v{vPt+5}
v_min3_u32 v{vM}, v{vM}, v{vPt+7}, v{vPt+9}
v_max3_u32 v{vM+1}, v{vM+1}, v{vPt+7}, v{vPt+9}
v_min_u32 v{vM}, v{vM}, v{vPt+11}
v_max_u32 v{vM+1}, v{vM+1}, v{vPt+11}
v_cmp_ne_u32 vcc, s{S_TAG}, v{vM}
v_cmp_ne_u32 s[{T+14}:{T+15}], s{S_TAG}, v{vM+1}
s_or_b64 vcc, vcc, s[{T+14}:{T+15}]
s_cbranch_vccz {ld}
s_sub_u32 s{S_TO}, s{S_TO}, 1
s_cmp_eq_u32 s{S_TO}, 0
s_cbranch_scc1 {ld}""")
    pl()
    a(f"""s_branch {lp}
{ld}:
s_max_u32 s{S_TO}, s{S_TO}, 1
v_add_f32 v{vPt}, v{vPt}, v{vPt+4}
v_add_f32 v{vPt+2}, v{vPt+2}, v{vPt+6}
v_fmac_f32 v{vPt}, v{vA0}, v{vPt+8}
v_fmac_f32 v{vPt+2}, v{vA0}, v{vPt+10}
s_nop 1
v_permlane32_swap_b32 v{vPt}, v{vPt+2}
s_nop 0
v_add_f32 v{vPt}, v{vPt}, v{vPt+2}
v_mov_b32 v{vPt+2}, v{vPt}
s_nop 1
v_permlane16_swap_b32 v{vPt}, v{vPt+2}
s_nop 0
v_add_f32 v{vPt}, v{vPt}, v{vPt+2}
s_nop 1
v_add_f32_dpp v{vPt}, v{vPt}, v{vPt} row_ror:8 row_mask:0xf bank_mask:0xf""")
    round_bf16(a, vPt)
    a(f"v_add_f32 v{vPt}, v{vPt}, v{vA1}")
    round_bf16(a, vPt)
    a("s_nop 0")
    for u in (4, 5, 6, 7, 0, 1, 2, 3):
        a(f"v_readlane_b32 s{SM[2*u]}, v{vPt}, {u}\nv_readlane_b32 s{SM[2*u+1]}, v{vPt}, {32+u}")
    stamp(a, 3)
    for q, i in P:
        a(f"v_mul_f32 v{lo(q,i)}, s{SM[8+2*i]}, v{lo(q,i)}\nv_mul_f32 v{hi(q,i)}, s{SM[8+2*i+1]}, v{hi(q,i)}")
    st_cvt(); st_unpack()
    for q in range(4):
        for i in range(4):
            a(f"v_add_f32 v{lo(q,i)}, s{SM[2*i]}, v{lo(q,i)}\nv_add_f32 v{hi(q,i)}, s{SM[2*i+1]}, v{hi(q,i)}")
        for i in range(4):
            a(f"v_cvt_pk_bf16_f32 v{xs(q,i)}, v{lo(q,i)}, v{hi(q,i)}")
        a(f"buffer_store_dwordx4 {vr(vX+4*q,4)}, v{vCs}, {WS}, s{sOff} offen sc1")
        if q < 3:
            a(f"s_add_u32 s{sOff}, s{sOff}, {2*72*1024}")
    stamp(a, 4)
    a(f"""s_mul_i32 s{sOff}, s{sB}, 18
s_add_u32 s{sOff}, s{sOff}, s{sCs}
s_lshl_b32 s{sOff}, s{sOff}, 7
s_add_u32 s{sOff}, s{sOff}, {F_H}""")
    set_flag(a, f"s{sOff}")
    stamp(a, 5)
    if 'ob' in OPT:
        a("s_waitcnt vmcnt(0)\ns_barrier")
    a("L_o_pref:")
    srd(a, R_A, S_WMOD, SZ_WMOD)
    srd(a, R_C, S_C, SZ_C)
    a(f"""s_cmp_ge_u32 s{sO}, 18
s_cbranch_scc1 L_o_upd""")
    if 'gd' in OPT:
        a(f"v_min_u32 v{vT0}, 35, v0\nv_lshlrev_b32 v{vT0}, 7, v{vT0}\ns_movk_i32 s{sOff}, {F_H}")
        poll(a, vT0, f"s{sOff}", vT1)
    a(f"""s_mul_i32 s{sRow0}, s{S_W}, 144
v_min_u32 v{vT0}, 17, v{vTok}
v_lshlrev_b32 v{vT0}, 4, v{vT0}
v_mul_u32_u24 v{vT1}, 2304, v{vHF}
v_add_u32 v{vCs}, v{vT0}, v{vT1}
s_lshl_b32 s{sOff}, s{sRow0}, 1
buffer_load_dwordx4 {vr(vC,4)}, v{vCs}, {RC}, s{sOff} offen
s_lshl_b32 s{sColA}, s{sO}, 7
s_add_u32 s{sColA}, s{sColA}, 4608""")
    gemv_dma(a, sColA, vD)
    a(f"""s_lshl_b32 s{sOff}, s{sRow0}, 7
v_add_u32 v{vA0}, s{sOff}, v{vB0}
v_add_u32 v{vA1}, s{sOff}, v{vB1}
s_waitcnt vmcnt(18)""")
    for i in range(4):
        unpack(a, vM+2*i, vM+2*i+1, vC+i)
    silu8(a, vM, vM+8)
    for i in range(4):
        a(f"v_cvt_pk_bf16_f32 v{vC+i}, v{vM+2*i}, v{vM+2*i+1}")
    a(f"""s_lshl_b32 s{sOff}, s{sRow0}, 1
s_add_u32 s{sOff}, s{sOff}, {L_SIL}
v_add_u32 v{vCs}, s{sOff}, v{vCs}
ds_write_b128 v{vCs}, {vr(vC,4)}
v_and_b32 v{vT0}, 1, v0
v_mul_u32_u24 v{vT0}, 2304, v{vT0}
v_lshl_add_u32 v{vT0}, v{vHF}, 4, v{vT0}
v_add_u32 v{vSil}, s{sOff}, v{vT0}
s_waitcnt lgkmcnt(0)""")
    for s in range(9):
        wf = vWF + 8*(s & 1); sf = vSF + 4*(s & 1)
        a(f"s_waitcnt vmcnt({18-2*(s+1)})")
        a(f"ds_read_b128 {vr(sf,4)}, v{vSil} offset:{s*32}")
        trreads(a, wf, vA0, vA1, s*2048)
        a("s_waitcnt lgkmcnt(2)")
        mfma(a, vAcc, wf, sf, s == 0)
        a("s_waitcnt lgkmcnt(0)")
        mfma(a, vAcc+16, wf+4, sf, s == 0)
    a(f"""v_and_b32 v{vT0}, 1, v0
v_lshlrev_b32 v{vT0}, 8, v{vT0}
v_lshl_add_u32 v{vT0}, v{vHF}, 5, v{vT0}
s_lshl_b32 s{sOff}, s{S_W}, 9
s_add_u32 s{sOff}, s{sOff}, {L_RED}
v_add_u32 v{vT0}, s{sOff}, v{vT0}
s_mov_b32 exec_lo, 3
s_mov_b32 exec_hi, 3
s_nop 8""")
    for cb in range(2):
        for q, off in enumerate((0, 16, 64, 80)):
            a(f"ds_write_b128 v{vT0}, {vr(vAcc+16*cb+4*q,4)} offset:{cb*128+off}")
    a(f"""s_mov_b64 exec, -1
s_waitcnt lgkmcnt(0)
s_barrier
s_lshr_b32 s{sOff}, s{S_W}, 2
s_lshl_b32 s{sOff}, s{sOff}, 8
s_add_u32 s{sOff}, s{sOff}, {L_RED}
v_lshlrev_b32 v{vT0}, 2, v0
v_add_u32 v{vT1}, s{sOff}, v{vT0}""")
    for w in range(8):
        a(f"ds_read_b32 v{vAcc+w}, v{vT1} offset:{w*512}")
    a("s_waitcnt lgkmcnt(0)")
    for w in range(1, 8):
        a(f"v_add_f32 v{vAcc}, v{vAcc}, v{vAcc+w}")
    round_bf16(a, vAcc)
    lsk = a.label("gsk")
    a(f"""s_and_b32 s{sOff}, s{S_W}, 3
s_cmp_lg_u32 s{sOff}, 0
s_cbranch_scc1 {lsk}
s_lshr_b32 s{T+9}, s{S_W}, 2
s_mul_i32 s{sOff}, s{T+9}, 4608
s_lshl_b32 s{sColA}, s{sO}, 8
s_add_u32 s{sOff}, s{sOff}, s{sColA}
s_add_u32 s{sOff}, s{sOff}, {WS_GATE}
buffer_store_dword v{vAcc}, v{vT0}, {WS}, s{sOff} offen sc1
{lsk}:
s_lshl_b32 s{sOff}, s{sO}, 7
s_add_u32 s{sOff}, s{sOff}, {F_G}""")
    set_flag(a, f"s{sOff}")
    stamp(a, 7)
    lp = a.label("ep"); ld = a.label("epd")
    a(f"""L_o_upd:
s_add_u32 s{S_SLOT}, s{S_SLOT}, 25
s_cmp_ge_u32 s{S_SLOT}, 27
s_cbranch_scc1 L_c_notu
s_cmp_lg_u32 s2, 0
s_cbranch_scc1 L_fin
s_lshl_b32 s{sOff}, s{S_W}, 6
v_add_u32 v{vT0}, s{sOff}, v0
v_min_u32 v{vT0}, 431, v{vT0}
v_lshlrev_b32 v{vT0}, 8, v{vT0}
s_mov_b32 s{sOff}, {F_QKV}
{lp}:
s_sleep 16
buffer_load_dword v{vT1}, v{vT0}, {WS}, s{sOff} offen sc1
buffer_load_dword v{vT2}, v{vT0}, {WS}, s{sOff} offen offset:128 sc1
s_waitcnt vmcnt(0)
v_cmp_ne_u32 vcc, s{S_TAG}, v{vT1}
v_cmp_ne_u32 s[{T+14}:{T+15}], s{S_TAG}, v{vT2}
s_or_b64 vcc, vcc, s[{T+14}:{T+15}]
s_cbranch_vccz {ld}
s_sub_u32 s{S_TO}, s{S_TO}, 1
s_cmp_lg_u32 s{S_TO}, 0
s_cbranch_scc1 {lp}
{ld}:
s_mov_b32 s{sOff}, {EPOCH}""")
    set_flag(a, f"s{sOff}")
    a("s_branch L_fin")

def epilogue(a):
    if STAMP and 'probe' in OPT:
        i = int(OPT['probe']); lo, hi = [int(x) for x in OPT.get('prole', '0:256').split(':')]
        a(f"""s_waitcnt vmcnt(0) lgkmcnt(0)
s_cmp_lg_u32 s{S_W}, {OPT.get('stw', 0)}
s_cbranch_scc1 L_end
s_memrealtime s[{S_ST+30}:{S_ST+31}]
s_waitcnt lgkmcnt(0)
s_sub_u32 s{T}, s{S_ST+2*i}, s{S_ST}
s_cmp_eq_u32 s{S_ST+2*i}, 0
s_cselect_b32 s{T}, 0, s{T}
s_cmp_lt_u32 s2, {lo}
s_cselect_b32 s{T}, 0, s{T}
s_cmp_ge_u32 s2, {hi}
s_cselect_b32 s{T}, 0, s{T}
s_lshl_b32 s{T}, s{T}, 2
s_add_u32 s{T}, s{T}, 5000
L_spin:
s_memrealtime s[{T+2}:{T+3}]
s_waitcnt lgkmcnt(0)
s_sub_u32 s{T+2}, s{T+2}, s{S_ST}
s_cmp_lt_u32 s{T+2}, s{T}
s_cbranch_scc1 L_spin""")
    elif STAMP:
        a(f"""s_waitcnt vmcnt(0) lgkmcnt(0)
s_cmp_lg_u32 s{S_W}, {OPT.get('stw', 0)}
s_cbranch_scc1 L_end
{CLK} s[{S_ST+30}:{S_ST+31}]
s_memtime s[98:99]
s_waitcnt lgkmcnt(0)
s_sub_u32 s98, s98, s96""")
        for i in range(16):
            a(f"v_mov_b32 v{16+i}, s{S_ST+2*i}")
        a(f"""v_mov_b32 v32, s98
s_lshl_b32 s{T}, s2, 7
s_add_u32 s{T}, s{T}, {WS_STAMP}
v_mov_b32 v1, 0
s_mov_b64 exec, 1""")
        for i in range(4):
            a(f"buffer_store_dwordx4 v[{16+4*i}:{19+4*i}], v1, {WS}, s{T} offen offset:{16*i}")
        a(f"buffer_store_dword v32, v1, {WS}, s{T} offen offset:64")
    a("L_end:\ns_endpgm")

def main():
    a = Asm()
    a.raw("""; DiT adaLN attention block (B=2, N=256, D=1152) as ONE persistent launch, 256 workgroups x 8 waves (one per CU).
; Written by a generator script of my own (hand-designed schedule, no compiler output).
;  stage 0 : 162 WGs: split-K pieces of silu(c) @ w_mod[:, :2D] -> tagged granules; 64 WGs: LayerNorm row statistics
; @launch grid=(256,1,1) block=(512,1,1) lds=163840""")
    a.raw('.amdgcn_target "amdgcn-amd-amdhsa--gfx950"\n.text')
    prologue(a)
    phase_bc(a)
    NOD[0] = True
    phase_d(a)
    NOD[0] = False
    epilogue(a)
    a("L_owner:")
    phase_owner(a)
    a.raw(".p2align 4\nL_codeend:")
    out = a.text() + kd(NAME, 244, 102)
    path = [x for x in sys.argv[1:] if not x.startswith('--')][0]
    open(path, 'w').write(out)
main()
```

```python
import sys, struct
from asmlib import *

OPT = dict(la='12', nt='', cpf='1', umap='4', lfull='1', pack='0', ew='3')
for a_ in sys.argv[1:]:
    if a_.startswith('--'):
        k, _, v = a_[2:].partition('=')
        OPT[k] = v
STAMP = 'stamp' in OPT
NT = OPT['nt']
PF = OPT.get('pf', 'sc1').replace('+', ' ')
SF = OPT.get('sf', 'sc1').replace('+', ' ')
CLK = "s_memtime" if 'cyc' in OPT else "s_memrealtime"

NAME = "standalone__dit_adaln_block__diffusion_kernel"
D = 1152
SZ_X = 512*D*2; SZ_C = 2*D*2; SZ_WQKV = D*3*D*2; SZ_WO = D*D*2; SZ_WMOD = D*6*D*2
SZ_WS = 1 << 28
F_STAT = 0x0
F_H = 0x2000
F_L = 0x4000
F_U = 0x760000
F_G = 0x4000
F_QKV = 0x740000
EPOCH = 0x13000
WS_GATE = 0x14000
WS_H = 0x20000
WS_QKV = 0x140000
WS_L = 0x680000
WS_U = 0x550000
WS_PART = 0x4A0000
WS_STAMP = 0x700000
F_LH = 0x720000
LOG2E = 0x3fb8aa3b

S_W, S_TAG, S_G, S_SLOT, S_TO, S_TK = 3, 4, 5, 6, 7, 8
S_X, S_C, S_WQKV, S_WO, S_WMOD, S_OUT, S_DBG, S_WS = 16, 18, 20, 22, 24, 26, 28, 30
R_A, R_B, R_C, R_WS = 32, 36, 40, 44
T = 48
S_ST = 64
WS = f"s[{R_WS}:{R_WS+3}]"
RA = f"s[{R_A}:{R_A+3}]"; RB = f"s[{R_B}:{R_B+3}]"; RC = f"s[{R_C}:{R_C+3}]"
vL16, vP16, vB0, vB1, vCH, vR8, vHF, vTok = 1, 2, 3, 4, 5, 6, 7, 8
vT0, vT1, vT2, vT3 = 9, 10, 11, 12
vTAG = 13
V0 = 16

L_MISC = 147456
L_SIL = L_MISC
L_RED = L_SIL + 4608
L_FIN = L_RED + 4096
L_ROLE = L_FIN + 4096
L_STC = L_ROLE + 16
L_GATE = 36864
NO = 5

def srd(a, r, ptr, size):
    a(f"""s_mov_b32 s{r}, s{ptr}
s_and_b32 s{r+1}, s{ptr+1}, 0xffff
s_mov_b32 s{r+2}, {hex(size)}
s_mov_b32 s{r+3}, 0x20000""")

NOD = [False]
def stamp(a, i):
    if STAMP and not (NOD[0] and 'nod' in OPT):
        a(f"{CLK} s[{S_ST+2*i}:{S_ST+2*i+1}]")

def unpack(a, lo, hi, src):
    a(f"v_lshlrev_b32 v{lo}, 16, v{src}\nv_and_b32 v{hi}, 0xffff0000, v{src}")

def round_bf16(a, v):
    a(f"v_cvt_pk_bf16_f32 v{v}, v{v}, v{v}\nv_lshlrev_b32 v{v}, 16, v{v}")

HACK = [0]
def mfma(a, acc, A, B, first=False):
    if 'hack16' in OPT and not first:
        HACK[0] += 1
        o = 8*((HACK[0] >> 1) & 1)
        for j in range(2):
            a(f"v_mfma_f32_16x16x32_bf16 {vr(acc+o+4*j,4)}, {vr(A,4)}, {vr(B,4)}, {vr(acc+o+4*j,4)}")
        return
    c = "0" if first else vr(acc, 16)
    a(f"v_mfma_f32_32x32x16_bf16 {vr(acc,16)}, {vr(A,4)}, {vr(B,4)}, {c}")

def wrap_add(a, s, step, s_end, s_start):
    a(f"""s_add_u32 s{s}, s{s}, {step}
s_cmp_eq_u32 s{s}, s{s_end}
s_cselect_b32 s{s}, s{s_start}, s{s}""")

def mod9(a, dst, src, tmp):
    a(f"""s_mul_i32 s{tmp}, s{src}, 57
s_lshr_b32 s{tmp}, s{tmp}, 9
s_mul_i32 s{tmp}, s{tmp}, 9
s_sub_u32 s{dst}, s{src}, s{tmp}""")

def poll(a, vaddr, soff, vtmp):
    l = a.label("poll"); d = a.label("polld")
    a(f"""s_cmp_lg_u32 s{S_W}, 0
s_cbranch_scc1 {d}
{l}:
buffer_load_dword v{vtmp}, v{vaddr}, {WS}, {soff} offen {PF}
s_waitcnt vmcnt(0)
v_cmp_ne_u32 vcc, s{S_TAG}, v{vtmp}
s_cbranch_vccz {d}
s_sleep {OPT.get('sleep', 2)}
s_sub_u32 s{S_TO}, s{S_TO}, 1
s_cmp_lg_u32 s{S_TO}, 0
s_cbranch_scc1 {l}
s_mov_b32 s{S_TO}, 1
{d}:
s_barrier""")

def gpoll(a, loads, tagregs, slp=None):
    l = a.label("gp"); d = a.label("gpd")
    a(f"{l}:")
    loads()
    a(f"s_waitcnt vmcnt(0)\nv_cmp_ne_u32 vcc, s{S_TAG}, v{tagregs[0]}")
    for r in tagregs[1:]:
        a(f"v_cmp_ne_u32 s[{T+14}:{T+15}], s{S_TAG}, v{r}\ns_or_b64 vcc, vcc, s[{T+14}:{T+15}]")
    a(f"""s_cbranch_vccz {d}
s_sleep {slp if slp is not None else OPT.get('gsleep', 2)}
s_sub_u32 s{S_TO}, s{S_TO}, 1
s_cmp_lg_u32 s{S_TO}, 0
s_cbranch_scc1 {l}
s_mov_b32 s{S_TO}, 1
{d}:""")

def raw_flag(a, soff):
    a(f"""v_mov_b32 v{vT3}, 0
s_mov_b64 exec, 1
buffer_store_dword v{vTAG}, v{vT3}, {WS}, {soff} offen {SF}
s_mov_b64 exec, -1""")

def set_flag(a, soff, younger=0):
    d = a.label("fl")
    a(f"""s_waitcnt vmcnt({younger})
s_barrier
s_cmp_lg_u32 s{S_W}, 0
s_cbranch_scc1 {d}""")
    raw_flag(a, soff)
    a(f"{d}:")

def trreads(a, wf, b0, b1, off):
    a(f"""ds_read_b64_tr_b16 {vr(wf,2)}, v{b0} offset:{off}
ds_read_b64_tr_b16 {vr(wf+2,2)}, v{b0} offset:{off+512}
ds_read_b64_tr_b16 {vr(wf+4,2)}, v{b1} offset:{off}
ds_read_b64_tr_b16 {vr(wf+6,2)}, v{b1} offset:{off+512}""")

def dma_tile(a, srdname, vD, pitch, s_rot, flags, n0=0, n1=18):
    sN, sO = T+10, T+11
    if s_rot is None:
        a(f"s_add_u32 s{sN}, s{S_W}, {8*n0}")
    else:
        a(f"s_lshl_b32 s{sN}, s{s_rot}, 3\ns_add_u32 s{sN}, s{sN}, s{S_W}")
    for n in range(n0, n1):
        a(f"""s_lshl_b32 m0, s{sN}, 10
s_mul_i32 s{sO}, s{sN}, {8*pitch}
buffer_load_dwordx4 v{vD}, {srdname}, s{sO} offen {flags} lds""")
        if n < n1-1:
            a(f"s_add_u32 s{sN}, s{sN}, 8")
            if s_rot is not None:
                a(f"""s_sub_u32 s{sO}, s{sN}, 144
s_cmp_ge_u32 s{sN}, 144
s_cselect_b32 s{sN}, s{sO}, s{sN}""")

def wave_sum(a, v, sdst):
    for m in ("quad_perm:[1,0,3,2]", "quad_perm:[2,3,0,1]", "row_half_mirror", "row_mirror"):
        a(f"s_nop 1\nv_add_f32_dpp v{v}, v{v}, v{v} {m} row_mask:0xf bank_mask:0xf")
    a(f"s_nop 1\nv_add_f32_dpp v{v}, v{v}, v{v} row_bcast:15 row_mask:0xa bank_mask:0xf")
    a(f"s_nop 1\nv_add_f32_dpp v{v}, v{v}, v{v} row_bcast:31 row_mask:0xc bank_mask:0xf")
    a(f"s_nop 1\nv_readlane_b32 s{sdst}, v{v}, 63\ns_nop 1")

def silu8(a, f, t):
    for i in range(8):
        a(f"v_mul_f32 v{t+i}, 0xbfb8aa3b, v{f+i}")
    for i in range(8):
        a(f"v_exp_f32 v{t+i}, v{t+i}")
    for i in range(8):
        a(f"v_add_f32 v{t+i}, 1.0, v{t+i}")
    for i in range(8):
        a(f"v_rcp_f32 v{t+i}, v{t+i}")
    for i in range(8):
        a(f"v_mul_f32 v{f+i}, v{f+i}, v{t+i}")

def lane_consts(a):
    a(f"""v_lshrrev_b32 v{vR8}, 3, v0
v_and_b32 v{vP16}, 0x33, v0
v_and_b32 v{vT0}, 4, v0
v_lshl_or_b32 v{vP16}, v{vT0}, 1, v{vP16}
v_and_b32 v{vT0}, 8, v0
v_lshrrev_b32 v{vT0}, 1, v{vT0}
v_or_b32 v{vP16}, v{vP16}, v{vT0}
v_lshlrev_b32 v{vP16}, 4, v{vP16}
v_lshrrev_b32 v{vT0}, 2, v0
v_and_b32 v{vT0}, 4, v{vT0}
v_and_b32 v{vCH}, 7, v0
v_xor_b32 v{vCH}, v{vCH}, v{vT0}
v_lshlrev_b32 v{vB0}, 10, v{vHF}
v_and_b32 v{vT0}, 12, v0
v_lshl_or_b32 v{vB0}, v{vT0}, 5, v{vB0}
v_and_b32 v{vT0}, 8, v0
v_lshl_or_b32 v{vB0}, v{vT0}, 3, v{vB0}
v_and_b32 v{vT0}, 16, v0
v_lshl_or_b32 v{vB0}, v{vT0}, 1, v{vB0}
v_and_b32 v{vT0}, 1, v0
v_lshl_or_b32 v{vB0}, v{vT0}, 4, v{vB0}
v_and_b32 v{vT0}, 2, v0
v_lshl_or_b32 v{vB0}, v{vT0}, 2, v{vB0}
v_xor_b32 v{vB1}, 64, v{vB0}""")

def get_tag(a):
    a(f"""s_waitcnt lgkmcnt(0)
s_mul_i32 s{S_TAG}, s{S_TAG}, 1664525
s_add_u32 s{S_TAG}, s{S_TAG}, 1013904223
v_mov_b32 v{vTAG}, s{S_TAG}""")

def wpoll(a, vaddr, soff, vtmp):
    gpoll(a, lambda: a(f"buffer_load_dword v{vtmp}, v{vaddr}, {WS}, {soff} offen {PF}"), [vtmp])

S_BCT, S_BRT = 11, 12
vDW = 15
R0, R1 = [int(x) for x in OPT.get('wrot', '36,28').split(',')]
assert R0 + 3*R1 + 7 < 144
def b_setup(a):
    srd(a, R_B, S_WQKV, SZ_WQKV)
    a(f"""s_mul_i32 s{S_BCT}, s{S_G}, 27
s_add_u32 s{S_BCT}, s{S_BCT}, s{S_SLOT}
s_sub_u32 s{S_BCT}, s{S_BCT}, {NO}
s_and_b32 s{S_BRT}, s{S_BCT}, 3
s_lshr_b32 s{S_BCT}, s{S_BCT}, 2
s_mul_i32 s13, s{S_BRT}, {R1}
s_add_u32 s{T+14}, s13, {R0}
s_cmp_lg_u32 s{S_BRT}, 0
s_cselect_b32 s13, s{T+14}, s13
s_add_u32 s13, s13, s{S_W}
v_lshlrev_b32 v{vDW}, 4, v{vCH}
v_mul_u32_u24 v{vT0}, 6912, v{vR8}
s_lshl_b32 s{T+14}, s{S_BCT}, 7
v_add3_u32 v{vDW}, v{vDW}, v{vT0}, s{T+14}""")

THR = f"s_waitcnt vmcnt({OPT['thr']})" if 'thr' in OPT else ''
THRO = f"s_waitcnt vmcnt({OPT['thro']})" if 'thro' in OPT else ''
def w_dma(a, n):
    for i in range(n):
        a(f"""s_lshl_b32 m0, s13, 10
s_mul_i32 s{T+14}, s13, {8*6912}
buffer_load_dwordx4 v{vDW}, {RB}, s{T+14} offen lds
{THR}
s_add_u32 s13, s13, 8
s_sub_u32 s{T+14}, s13, 144
s_cmp_ge_u32 s13, 144
s_cselect_b32 s13, s{T+14}, s13""")

EW = int(OPT.get('ew', 0))
def prologue(a):
    a.raw(f".globl {NAME}\n.p2align 8\n.type {NAME},@function\n{NAME}:")
    a(f"""s_cmp_ge_u32 s2, 256
s_cbranch_scc1 L_end
s_load_dwordx16 s[16:31], s[0:1], 0""")
    if STAMP:
        a(f"{CLK} s[{S_ST}:{S_ST+1}]\ns_memtime s[96:97]")
        for i in range(1, 16):
            a(f"s_mov_b32 s{S_ST+2*i}, 0")
    a(f"""v_lshrrev_b32 v1, 6, v0
v_and_b32 v0, 63, v0
s_and_b32 s{S_G}, s2, 7
v_readfirstlane_b32 s{S_W}, v1
s_lshr_b32 s{S_SLOT}, s2, 3
s_mov_b32 s{S_TO}, 0x40000
v_lshlrev_b32 v{vL16}, 4, v0
v_lshrrev_b32 v{vHF}, 5, v0
v_and_b32 v{vTok}, 31, v0
s_mov_b32 s{S_TK}, s2""")
    if OPT.get('cpf') == '1':
        a(f"""s_cmp_lg_u32 s{S_W}, 7
s_cbranch_scc1 L_nocpf
s_getpc_b64 s[{T}:{T+1}]
L_pc:
s_sub_u32 s{T}, s{T}, L_pc-{NAME}
s_subb_u32 s{T+1}, s{T+1}, 0
s_lshl_b32 s{T+2}, s{S_SLOT}, 10
v_add_u32 v{vT0}, s{T+2}, v{vL16}
v_min_u32 v{vT0}, L_codeend-{NAME}-16, v{vT0}
global_load_dwordx4 v[240:243], v{vT0}, s[{T}:{T+1}]
L_nocpf:""")
    if OPT.get('lead', '1') == '1':
        a(f"""s_mul_i32 s{T}, s{S_G}, 27
s_add_u32 s{T}, s{T}, s{S_SLOT}
s_sub_u32 s{T}, s{T}, {NO}
s_lshr_b32 s{T+1}, s{T}, 2
s_sub_u32 s{T+2}, s{T}, s{T+1}
s_add_u32 s{T+2}, s{T+2}, 93
s_and_b32 s{T+3}, s{T+1}, 1
s_mul_i32 s{T+3}, s{T+3}, 27
s_lshr_b32 s{T+1}, s{T+1}, 1
s_add_u32 s{T+1}, s{T+1}, s{T+3}
s_add_u32 s{T+1}, s{T+1}, 40
s_and_b32 s{T}, s{T}, 3
s_cselect_b32 s{T+1}, s{T+2}, s{T+1}
s_cmp_ge_u32 s2, 40
s_cselect_b32 s{S_TK}, s{T+1}, s2""")
    sP, sCg, sKs, sOff, sRow = T, T+1, T+2, T+3, T+4
    a(f"""s_cmp_ge_u32 s{S_TK}, 64
s_cbranch_scc1 L_s0_nst""")
    vRW = 16
    a(f"""s_lshl_b32 s{sOff}, s{S_TK}, 3
s_add_u32 s{sOff}, s{sOff}, s{S_W}
s_mul_i32 s{sOff}, s{sOff}, 2304
v_mov_b32 v{vRW+8}, 0
v_mov_b32 v{vRW+9}, 0
v_mov_b32 v{vRW+10}, 0
v_mov_b32 v{vRW+11}, 0
s_waitcnt lgkmcnt(0)""")
    srd(a, R_C, S_X, SZ_X)
    a(f"""buffer_load_dwordx4 {vr(vRW,4)}, v{vL16}, {RC}, s{sOff} offen
buffer_load_dwordx4 {vr(vRW+4,4)}, v{vL16}, {RC}, s{sOff} offen offset:1024
s_mov_b64 exec, 0xffff
buffer_load_dwordx4 {vr(vRW+8,4)}, v{vL16}, {RC}, s{sOff} offen offset:2048
s_mov_b64 exec, -1
s_load_dword s{S_TAG}, s[{S_WS}:{S_WS+1}], {EPOCH}""")
    a(f"""s_branch L_s0_stats
L_s0_nst:
s_cmp_lt_u32 s{S_TK}, 94
s_cbranch_scc1 L_s0_none""")
    vW = 16
    vC = 32
    vSc = 36
    vTm = 44
    vAc = 52
    a(f"""s_sub_u32 s{sP}, s{S_TK}, 94
s_mul_i32 s{sKs}, s{sP}, 57
s_lshr_b32 s{sKs}, s{sKs}, 9
s_mul_i32 s{sCg}, s{sKs}, 9
s_sub_u32 s{sCg}, s{sP}, s{sCg}
s_lshl_b32 s{sRow}, s{sKs}, 3
s_add_u32 s{sRow}, s{sRow}, s{S_W}
s_lshl_b32 s{sRow}, s{sRow}, 3
v_and_b32 v{vT0}, 15, v0
v_lshlrev_b32 v{vT0}, 4, v{vT0}
v_bfe_u32 v{vT1}, v0, 4, 1
v_mul_u32_u24 v{vT1}, 2304, v{vT1}
v_mul_u32_u24 v{vT2}, {4*13824}, v{vHF}
v_add3_u32 v{vT0}, v{vT0}, v{vT1}, v{vT2}
v_lshlrev_b32 v{vT1}, 3, v{vHF}
s_lshl_b32 s{T+5}, s{sRow}, 1
s_mul_i32 s{sOff}, s{sRow}, 13824
s_lshl_b32 s{sRow}, s{sCg}, 8
s_add_u32 s{sOff}, s{sOff}, s{sRow}
s_waitcnt lgkmcnt(0)""")
    srd(a, R_A, S_WMOD, SZ_WMOD)
    srd(a, R_C, S_C, SZ_C)
    a(f"""buffer_load_dwordx2 {vr(vC,2)}, v{vT1}, {RC}, s{T+5} offen
buffer_load_dwordx2 {vr(vC+2,2)}, v{vT1}, {RC}, s{T+5} offen offset:2304""")
    for n in range(4):
        a(f"buffer_load_dwordx4 {vr(vW+4*n,4)}, v{vT0}, {RA}, s{sOff} offen")
        if n < 3:
            a(f"s_add_u32 s{sOff}, s{sOff}, 13824")
    a(f"s_load_dword s{S_TAG}, s[{S_WS}:{S_WS+1}], {EPOCH}")
    srd(a, R_WS, S_WS, SZ_WS)
    lane_consts(a)
    b_setup(a)
    if EW:
        a("s_barrier")
        w_dma(a, EW)
    a(f"s_waitcnt vmcnt({4+EW})")
    for i in range(4):
        unpack(a, vSc+2*i, vSc+2*i+1, vC+i)
    silu8(a, vSc, vTm)
    for i in range(4):
        a(f"v_cvt_pk_bf16_f32 v{vC+i}, v{vSc+2*i}, v{vSc+2*i+1}")
    for i in range(4):
        unpack(a, vSc+2*i, vSc+2*i+1, vC+i)
    a(f"""s_lshl_b32 s{sOff}, s{S_W}, 11
s_add_u32 s{sOff}, s{sOff}, {L_MISC}
v_lshlrev_b32 v{vT2}, 5, v0
v_add_u32 v{vT2}, s{sOff}, v{vT2}
s_lshr_b32 s{sOff}, s{S_W}, 1
s_lshl_b32 s{sOff}, s{sOff}, 10
s_and_b32 s{sRow}, s{S_W}, 1
s_lshl_b32 s{sP}, s{sRow}, 8
s_add_u32 s{sOff}, s{sOff}, s{sP}
s_add_u32 s{sOff}, s{sOff}, {L_MISC}
v_lshlrev_b32 v{vT3}, 3, v{vTok}
v_lshl_add_u32 v{vT3}, v{vHF}, 9, v{vT3}
v_add_u32 v{vT3}, s{sOff}, v{vT3}
s_lshl_b32 s{sP}, s{sCg}, 1
s_add_u32 s{sP}, s{sP}, s{sRow}
s_lshl_b32 s{sP}, s{sP}, 1
s_lshr_b32 s{sOff}, s{S_W}, 1
s_add_u32 s{sP}, s{sP}, s{sOff}
s_mul_i32 s{sP}, s{sP}, 18
s_add_u32 s{sP}, s{sP}, s{sKs}
s_lshl_b32 s{sP}, s{sP}, 10
s_add_u32 s{sP}, s{sP}, {WS_PART}
v_and_b32 v{vT0}, 28, v0
v_lshlrev_b32 v{vT0}, 5, v{vT0}
v_lshl_add_u32 v{vT0}, v{vHF}, 6, v{vT0}
v_and_b32 v{vT1}, 3, v0
v_lshl_add_u32 v{vT0}, v{vT1}, 4, v{vT0}""")
    get_tag(a)
    E2 = int(OPT.get('ew2', 0)); E2AT = int(OPT.get('ew2at', 3))
    for n in range(4):
        a(f"s_waitcnt vmcnt({3-n+EW+(E2 if n > E2AT else 0)})")
        if n == E2AT and E2: w_dma(a, E2)
        if n == 3: stamp(a, 8)
        for i in range(4):
            unpack(a, vTm+2*i, vTm+2*i+1, vW+4*n+i)
        for b in range(2):
            for j in range(8):
                op = "v_mul_f32" if n == 0 else "v_fmac_f32"
                a(f"{op} v{vAc+8*b+j}, v{vTm+j}, v{vSc+4*b+n}")
    a("s_nop 1")
    for j in range(8):
        a(f"v_permlane32_swap_b32 v{vAc+j}, v{vAc+8+j}")
    for j in range(8):
        a(f"v_add_f32 v{vAc+j}, v{vAc+j}, v{vAc+8+j}")
    lsk = a.label("pubsk")
    a(f"""ds_write_b128 v{vT2}, {vr(vAc,4)}
ds_write_b128 v{vT2}, {vr(vAc+4,4)} offset:16
s_waitcnt lgkmcnt(0)
s_barrier
s_cmp_ge_u32 s{S_W}, 4
s_cbranch_scc1 {lsk}""")
    for w in range(8):
        a(f"ds_read_b64 {vr(vW+2*w,2)}, v{vT3} offset:{w*2048}")
    a(f"""v_mov_b32 v{vAc+1}, v{vTAG}
v_mov_b32 v{vAc+3}, v{vTAG}
s_waitcnt lgkmcnt(4)
v_add_f32 v{vW}, v{vW}, v{vW+2}
v_add_f32 v{vW+1}, v{vW+1}, v{vW+3}
v_add_f32 v{vW+4}, v{vW+4}, v{vW+6}
v_add_f32 v{vW+5}, v{vW+5}, v{vW+7}
s_waitcnt lgkmcnt(0)
v_add_f32 v{vW+8}, v{vW+8}, v{vW+10}
v_add_f32 v{vW+9}, v{vW+9}, v{vW+11}
v_add_f32 v{vW+12}, v{vW+12}, v{vW+14}
v_add_f32 v{vW+13}, v{vW+13}, v{vW+15}
v_add_f32 v{vW}, v{vW}, v{vW+4}
v_add_f32 v{vW+1}, v{vW+1}, v{vW+5}
v_add_f32 v{vW+8}, v{vW+8}, v{vW+12}
v_add_f32 v{vW+9}, v{vW+9}, v{vW+13}
v_add_f32 v{vAc}, v{vW}, v{vW+8}
v_add_f32 v{vAc+2}, v{vW+1}, v{vW+9}
buffer_store_dwordx4 {vr(vAc,4)}, v{vT0}, {WS}, s{sP} offen sc1
{lsk}:""")
    stamp(a, 9)
    if OPT.get('pack') == '1':
        a("s_waitcnt vmcnt(0)")
    if 'nopb' not in OPT:
        a("s_barrier")
    w_dma(a, 18-EW-E2)
    a("s_branch L_b")
    a("L_s0_stats:")
    srd(a, R_WS, S_WS, SZ_WS)
    lane_consts(a)
    a(f"""s_barrier
s_min_u32 s{T+12}, s2, 35
s_and_b32 s{T+13}, s{T+12}, 1
s_lshr_b32 s{T+12}, s{T+12}, 1
s_lshl_b32 s{T+13}, s{T+13}, 3
s_add_u32 s{T+13}, s{T+13}, s{S_W}
v_mul_u32_u24 v{vT0}, 2304, v{vR8}
v_and_b32 v{vT1}, 7, v0
v_xor_b32 v{vT1}, v{vT1}, v{vR8}
v_lshl_add_u32 v{vT0}, v{vT1}, 4, v{vT0}
s_mul_i32 s{T+13}, s{T+13}, {32*2304}
s_lshl_b32 s{T+12}, s{T+12}, 7
s_add_u32 s{T+13}, s{T+13}, s{T+12}
s_lshl_b32 m0, s{S_W}, 12""")
    lnx = a.label("nox"); ljx = a.label("jx")
    a(f"s_cmp_ge_u32 s2, 36\ns_cbranch_scc1 {lnx}")
    for q in range(4):
        a(f"buffer_load_dwordx4 v{vT0}, {RC}, s{T+13} offen lds")
        if q < 3:
            a(f"s_add_u32 s{T+13}, s{T+13}, {8*2304}\ns_add_u32 m0, m0, 1024\ns_nop 0")
    get_tag(a)
    a(f"s_waitcnt vmcnt(4)\ns_branch {ljx}\n{lnx}:")
    get_tag(a)
    a(f"s_waitcnt vmcnt(0)\n{ljx}:")
    stamp(a, 8)
    s1, s2_, q1, q2 = 32, 33, 34, 35
    a(f"s_mov_b32 s{T+12}, 0x3f803f80")
    for i in range(0, 12, 2):
        c = lambda r: "0" if i == 0 else f"v{r}"
        a(f"""v_dot2_f32_bf16 v{s1}, v{vRW+i}, s{T+12}, {c(s1)}
v_dot2_f32_bf16 v{q1}, v{vRW+i}, v{vRW+i}, {c(q1)}
v_dot2_f32_bf16 v{s2_}, v{vRW+i+1}, s{T+12}, {c(s2_)}
v_dot2_f32_bf16 v{q2}, v{vRW+i+1}, v{vRW+i+1}, {c(q2)}""")
    a(f"""s_nop 2
v_add_f32 v{s1}, v{s1}, v{s2_}
v_add_f32 v{q1}, v{q1}, v{q2}""")
    for m in ("quad_perm:[1,0,3,2] row_mask:0xf", "quad_perm:[2,3,0,1] row_mask:0xf", "row_half_mirror row_mask:0xf", "row_mirror row_mask:0xf", "row_bcast:15 row_mask:0xa", "row_bcast:31 row_mask:0xc"):
        a(f"s_nop 0\nv_add_f32_dpp v{s1}, v{s1}, v{s1} {m} bank_mask:0xf\nv_add_f32_dpp v{q1}, v{q1}, v{q1} {m} bank_mask:0xf")
    g = 36
    a(f"""v_mul_f32 v{g}, 0x3a638e39, v{s1}
v_mul_f32 v{g+2}, 0x3a638e39, v{q1}
v_fma_f32 v{g+2}, -v{g}, v{g}, v{g+2}
v_max_f32 v{g+2}, 0, v{g+2}""")
    round_bf16(a, g+2)
    a(f"v_add_f32 v{g+2}, 0x3727c5ac, v{g+2}")
    round_bf16(a, g+2)
    a(f"v_sqrt_f32 v{g+2}, v{g+2}")
    round_bf16(a, g)
    round_bf16(a, g+2)
    lsk = a.label("stsk")
    a(f"""v_rcp_f32 v{g+2}, v{g+2}
v_mov_b32 v{g+1}, v{vTAG}
v_mov_b32 v{g+3}, v{vTAG}
s_lshl_b32 s{T+12}, s{S_W}, 4
s_add_u32 s{T+12}, s{T+12}, {L_STC}
v_mov_b32 v{vT0}, s{T+12}
s_mov_b32 exec_lo, 0
s_brev_b32 exec_hi, 1
ds_write_b128 v{vT0}, {vr(g,4)}
s_mov_b64 exec, -1
s_lshl_b32 s{T+12}, s{S_TK}, 7
s_add_u32 s{T+12}, s{T+12}, {F_STAT}
v_add_u32 v{vT0}, {L_STC}, v{vL16}
s_waitcnt lgkmcnt(0)
s_barrier
s_cmp_lg_u32 s{S_W}, 0
s_cbranch_scc1 {lsk}
s_mov_b64 exec, 0xff
ds_read_b128 {vr(g,4)}, v{vT0}
s_waitcnt lgkmcnt(0)
buffer_store_dwordx4 {vr(g,4)}, v{vL16}, {WS}, s{T+12} offen sc1
s_mov_b64 exec, -1
{lsk}:""")
    stamp(a, 9)
    a(f"s_cmp_lt_u32 s{S_SLOT}, {NO}\ns_cbranch_scc1 L_owner")
    if 'nopb' not in OPT:
        a("s_barrier")
    a("s_branch L_s0_w")
    a("L_s0_none:")
    a(f"s_waitcnt lgkmcnt(0)\ns_load_dword s{S_TAG}, s[{S_WS}:{S_WS+1}], {EPOCH}")
    srd(a, R_WS, S_WS, SZ_WS)
    lane_consts(a)
    get_tag(a)
    if 'cw' in OPT:
        srd(a, R_C, S_C, SZ_C)
        a(f"buffer_load_dword v{vT1}, v{vL16}, {RC}, 0 offen\ns_waitcnt vmcnt(0)")
    a("L_s0_w:")
    b_setup(a)
    w_dma(a, 18)

VOX = 96

S_UCT, S_UTB = 9, 10
vDU = 14
KE = int(OPT.get('ke', 12))
def wo_dma(a, n0, n1):
    a(f"s_add_u32 s{T+10}, s{S_W}, {4*n0-4}")
    for n in range(n0, n1):
        a(f"""s_lshl_b32 m0, s{T+10}, 10
s_mul_i32 s{T+11}, s{T+10}, {8*2304}
buffer_load_dwordx4 v{vDU}, {RB}, s{T+11} offen lds""")
        if n < n1-1:
            a(f"s_add_u32 s{T+10}, s{T+10}, 4")

def gemm_loop(a, nsteps, LA, RING, vAcc, vWF, vH, vA0, vA1, vaddr, sH, lds_first, w_is_a, pre=None, rot=None, bar_at=None):
    WA = int(OPT.get('wa', 2))
    state = dict(issued=0)
    if rot:
        sR, sHs, sHe, sLo, sZ, sLe, vC0, vC1 = rot
        a(f"""s_mov_b32 s{sHs}, s{sH}
s_add_u32 s{sHe}, s{sH}, {nsteps*1024}
s_lshl_b32 s{sLo}, s{sR}, 12
s_add_u32 s{sH}, s{sH}, s{sLo}
s_lshl_b32 s{sLo}, s{sR}, 13
s_mov_b32 s{sZ}, 0
s_mov_b32 s{sLe}, {nsteps*2048}""")
    def hload():
        s = state['issued']
        a(f"buffer_load_dwordx4 {vr(vH+4*(s % RING),4)}, v{vaddr}, {WS}, s{sH} offen offset:{(s&3)*1024} sc1")
        if (s & 3) == 3 and s < nsteps-1:
            if rot: wrap_add(a, sH, 4096, sHe, sHs)
            else: a(f"s_add_u32 s{sH}, s{sH}, 4096")
        state['issued'] += 1
    def wread(s):
        if rot:
            if (s & 3) == 0:
                a(f"v_add_u32 v{vC0}, s{sLo}, v{vA0}\nv_add_u32 v{vC1}, s{sLo}, v{vA1}")
                wrap_add(a, sLo, 8192, sLe, sZ)
            trreads(a, vWF + 8*(s & 3), vC0, vC1, (s & 3)*2048)
            return
        if s and (s & 31) == 0:
            a(f"v_add_u32 v{vA0}, 0x10000, v{vA0}\nv_add_u32 v{vA1}, 0x10000, v{vA1}")
        trreads(a, vWF + 8*(s & 3), vA0, vA1, (s & 31)*2048)
    if lds_first:
        for s in range(WA): wread(s)
    for s in range(LA): hload()
    if pre: pre()
    if not lds_first:
        for s in range(WA): wread(s)
    for s in range(nsteps):
        lg = 4*min(WA-1, nsteps-1 - s)
        a(f"s_waitcnt vmcnt({state['issued'] - s - 1}) lgkmcnt({lg})")
        if s == 0 and lds_first: stamp(a, 4)
        h = vH+4*(s % RING); w0 = vWF+8*(s & 3)
        mfma(a, vAcc, *((w0, h) if w_is_a else (h, w0)), s == 0)
        if s + WA < nsteps:
            wread(s + WA)
        mfma(a, vAcc+16, *((w0+4, h) if w_is_a else (h, w0+4)), s == 0)
        if state['issued'] < nsteps:
            hload()
        if bar_at is not None and s == bar_at:
            a("s_barrier")

SZ = int(OPT['sz']) if 'sz' in OPT else None
UM = int(OPT.get('umap', 2)); UML = UM.bit_length()-1
vDX, vDXO = 236, 235
def d_tile(a):
    sQt, sCt, sCb, sKh, sOff, sXo, sJ, sU, sB, sCol = T, T+1, T+2, T+3, T+4, T+5, T+6, T+7, T+8, T+9
    a(f"""s_and_b32 s{sOff}, s{S_G}, 3
s_mul_i32 s{sOff}, s{sOff}, 18
s_min_u32 s{sJ}, s{S_SLOT}, 17
s_add_u32 s{sOff}, s{sOff}, s{sJ}
s_lshr_b32 s{sCt}, s{sOff}, 3
s_and_b32 s{sJ}, s{sOff}, 7
s_lshr_b32 s{sB}, s{S_G}, 2
s_lshl_b32 s{sQt}, s{sB}, 3
s_add_u32 s{sQt}, s{sQt}, s{sJ}
s_and_b32 s{sCb}, s{S_W}, 3
s_lshr_b32 s{sKh}, s{S_W}, 2
s_lshl_b32 s{sCol}, s{sCt}, 7
s_lshl_b32 s{sXo}, s{sQt}, 3
s_add_u32 s{sXo}, s{sXo}, s{S_W}
s_mul_i32 s{sXo}, s{sXo}, {4*2304}
s_lshl_b32 s{sOff}, s{sCol}, 1
s_add_u32 s{sXo}, s{sXo}, s{sOff}
v_lshrrev_b32 v{vDXO}, 4, v0
v_mul_u32_u24 v{vDXO}, 2304, v{vDXO}
v_and_b32 v{vT3}, 15, v0
v_lshl_add_u32 v{vDXO}, v{vT3}, 4, v{vDXO}""")

def phase_bc(a):
    sTb, sOff, sH, sF = T+1, T+4, T+5, T+6
    vA0, vA1 = V0+1, V0+2
    vAcc = 20
    vWF = 52
    vH = 84
    a("L_b:")
    stamp(a, 1)
    srd(a, R_B, S_WO, SZ_WO)
    srd(a, R_A, S_X, SZ_X)
    a(f"s_sub_u32 s{S_SLOT}, s{S_SLOT}, {NO}")
    d_tile(a)
    XL = OPT.get('xl', '1') == '1'
    xload = lambda: a(f"buffer_load_dwordx4 {vr(vDX,4)}, v{vDXO}, {RA}, s14 offen")
    a(f"s_mov_b32 s14, s{T+5}")
    if not XL:
        xload()
    a(f"""s_and_b32 s{T+14}, s{S_G}, {UM-1}
s_mul_i32 s{T+14}, s{T+14}, 18
s_add_u32 s{T+14}, s{T+14}, s{S_SLOT}
s_lshr_b32 s{S_UCT}, s{T+14}, {UML}
s_and_b32 s{T+14}, s{T+14}, {UM-1}
s_lshr_b32 s{S_UTB}, s{S_G}, {UML}
s_lshl_b32 s{S_UTB}, s{S_UTB}, {UML}
s_add_u32 s{S_UTB}, s{S_UTB}, s{T+14}
s_lshl_b32 s{S_UTB}, s{S_UTB}, 1
s_and_b32 s{T+14}, s{S_W}, 1
s_add_u32 s{S_UTB}, s{S_UTB}, s{T+14}
v_lshlrev_b32 v{vDU}, 4, v{vCH}
v_mul_u32_u24 v{vT0}, 2304, v{vR8}
s_lshl_b32 s{T+14}, s{S_UCT}, 7
v_add3_u32 v{vDU}, v{vDU}, v{vT0}, s{T+14}
s_lshl_b32 s{sTb}, s{S_BRT}, 2
s_and_b32 s{sOff}, s{S_W}, 3
s_add_u32 s{sTb}, s{sTb}, s{sOff}
s_mul_i32 s{sH}, s{sTb}, {72*1024}
s_add_u32 s{sH}, s{sH}, {WS_H}
v_mov_b32 v{vA0}, v{vB0}
v_mov_b32 v{vA1}, v{vB1}
v_min_u32 v{vT0}, 17, v0
v_lshlrev_b32 v{vT0}, 7, v{vT0}
s_lshr_b32 s{sOff}, s{S_BRT}, 1
s_mul_i32 s{sOff}, s{sOff}, {18*128}
s_add_u32 s{sOff}, s{sOff}, {F_H}
s_mul_i32 s{sF}, s{sTb}, 54
s_add_u32 s{sF}, s{sF}, s{S_BCT}
s_lshl_b32 s{sF}, s{sF}, 7
s_add_u32 s{sF}, s{sF}, {F_QKV}
s_waitcnt vmcnt(0)""")
    a("s_barrier")
    stamp(a, 2)
    a(f"s_cmp_ge_u32 s{S_W}, 4\ns_cbranch_scc1 L_ld")
    HPWG = OPT.get('hp', 'w') == 'wg'
    G1 = int(OPT.get('g1', 8))
    if G1:
        assert SZ is None and not HPWG
        a(f"v_min_u32 v{vT0}, {(G1-1)*128}, v{vT0}")
    if HPWG:
        poll(a, vT0, f"s{sOff}", vT1)
    else:
        wpoll(a, vT0, f"s{sOff}", vT1)
    stamp(a, 3)
    LA = int(OPT['la'])
    BR = int(OPT.get('brot', 0))
    if BR:
        a(f"s_mul_i32 s{T+8}, s{S_G}, {BR}")
    gemm_loop(a, 72, LA, LA+4, vAcc, vWF, vH, vA0, vA1, vL16, sH, True, True, bar_at=(4*G1 - int(OPT['la']) - 1 if G1 else SZ),
              rot=(T+8, T+9, T+10, T+11, T+12, T+13, V0, V0+3) if BR else None)
    stamp(a, 5)
    a(f"""s_mul_i32 s{sH}, s{sTb}, {216*1024}
s_lshl_b32 s{sOff}, s{S_BCT}, 12
s_add_u32 s{sH}, s{sH}, s{sOff}
s_add_u32 s{sH}, s{sH}, {WS_QKV}
s_nop 7""")
    for u in range(4):
        if u == 2:
            a("s_nop 1")
        for r in range(4*u, 4*u+4):
            a(f"v_cvt_pk_bf16_f32 v{vWF+r}, v{vAcc+2*r}, v{vAcc+2*r+1}")
        a(f"buffer_store_dwordx4 {vr(vWF+4*u,4)}, v{vL16}, {WS}, s{sH} offen offset:{1024*u} sc1")
    a("s_barrier")
    stamp(a, 6)
    sKh = T+2
    a(f"""s_lshr_b32 s{sKh}, s{S_W}, 1
s_mul_i32 s{sH}, s{S_UTB}, {216*1024}
s_mul_i32 s{sOff}, s{sKh}, {36*1024}
s_add_u32 s{sH}, s{sH}, s{sOff}
s_add_u32 s{sH}, s{sH}, {WS_QKV + 144*1024}
s_mul_i32 s{sOff}, s{sKh}, {576*128}
v_add_u32 v{vA0}, s{sOff}, v{vB0}
v_add_u32 v{vA1}, s{sOff}, v{vB1}
v_min_u32 v{vT0}, 8, v0
v_lshlrev_b32 v{vT0}, 7, v{vT0}
s_mul_i32 s{T+7}, s{S_UTB}, {54*128}
s_mul_i32 s{sOff}, s{sKh}, {9*128}
s_add_u32 s{T+7}, s{T+7}, s{sOff}
s_add_u32 s{T+7}, s{T+7}, {F_QKV + 36*128}
s_waitcnt vmcnt(0)""")
    raw_flag(a, f"s{sF}")
    a("s_barrier")
    stamp(a, 7)
    a(f"s_cmp_ge_u32 s{S_SLOT}, 18\ns_cbranch_scc1 L_c_notu")
    if XL:
        xload()
    if 'udelay' in OPT:
        a(f"s_sleep {OPT['udelay']}")
    UROT = int(OPT.get('urot', 0))
    if UROT:
        a(f"s_mul_i32 s{T+8}, s{S_G if 'urg' in OPT else S_UCT}, {UROT}")
        mod9(a, T+8, T+8, T+9)
    wpoll(a, vT0, f"s{T+7}", vT1)
    stamp(a, 12)
    LA = int(OPT.get('lau', 12))
    gemm_loop(a, 36, LA, min(36, LA+4), vAcc, vWF, vH, vA0, vA1, vP16, sH, False, False, pre=lambda: (a("s_barrier"), stamp(a, 11)),
              rot=(T+8, T+9, T+10, T+11, T+12, T+13, V0, V0+3) if UROT else None)
    stamp(a, 13)
    lk1 = a.label("kh1"); lj = a.label("j")
    a(f"""s_lshl_b32 s{sOff}, s{S_W}, 12
s_add_u32 s{sOff}, s{sOff}, {L_MISC}
v_add_u32 v{vT0}, s{sOff}, v{vL16}
v_xor_b32 v{vT1}, {2*4096}, v{vT0}
s_lshr_b32 s{sH}, s{S_UTB}, 3
s_mul_i32 s{sF}, s{sH}, 18
s_add_u32 s{sF}, s{sF}, s{S_UCT}
s_lshl_b32 s{sH}, s{sF}, 1
s_add_u32 s{sH}, s{sH}, s{sKh}
s_lshl_b32 s{sH}, s{sH}, 3
s_and_b32 s{sOff}, s{S_UTB}, 7
s_add_u32 s{sH}, s{sH}, s{sOff}
s_lshl_b32 s{sF}, s{sH}, 7
s_add_u32 s{sF}, s{sF}, {F_U}
s_lshl_b32 s{sH}, s{sH}, 11
s_add_u32 s{sH}, s{sH}, {WS_U}
s_cmp_lg_u32 s{sKh}, 0
s_cbranch_scc1 {lk1}""")
    for q in range(4):
        a(f"ds_write_b128 v{vT0}, {vr(vAcc+16+4*q,4)} offset:{q*1024}")
    a(f"s_branch {lj}\n{lk1}:")
    for q in range(4):
        a(f"ds_write_b128 v{vT0}, {vr(vAcc+4*q,4)} offset:{q*1024}")
    for r in range(16):
        a(f"v_mov_b32 v{vAcc+r}, v{vAcc+16+r}")
    a(f"{lj}:\ns_waitcnt lgkmcnt(0)\ns_barrier")
    for q in range(4):
        a(f"ds_read_b128 {vr(vWF+4*q,4)}, v{vT1} offset:{q*1024}")
    for u in range(2):
        a(f"s_waitcnt lgkmcnt({2-2*u})")
        for r in range(8*u, 8*u+8):
            a(f"v_add_f32 v{vAcc+r}, v{vAcc+r}, v{vWF+r}")
        for r in range(4*u, 4*u+4):
            a(f"v_cvt_pk_bf16_f32 v{vWF+16+r}, v{vAcc+2*r}, v{vAcc+2*r+1}")
        a(f"buffer_store_dwordx4 {vr(vWF+16+4*u,4)}, v{vL16}, {WS}, s{sH} offen offset:{1024*u} sc1")
    if OPT.get('fb', '1') == '1':
        a("s_waitcnt vmcnt(0)")
        raw_flag(a, f"s{sF}")
        a("s_barrier")
    else:
        a("s_barrier\ns_waitcnt vmcnt(0)")
        raw_flag(a, f"s{sF}")
    a("s_branch L_c_done")
    lnu = a.label("ldnu")
    vWo = 20
    NE = int(OPT.get('ne', 18))
    a("L_ld:")
    if 'tlb' in OPT:
        sh = int(OPT['tlb'])
        lt = a.label("tlb")
        srd(a, R_A, S_OUT, SZ_X)
        srd(a, R_C, S_WS, 0x700000)
        a(f"s_cmp_lg_u32 s{S_W}, 7\ns_cbranch_scc1 {lt}\nv_lshlrev_b32 v{vT2}, {sh}, v0\nv_add_u32 v{vT2}, {(1<<sh)-128}, v{vT2}")
        a(f"buffer_load_dword v236, v{vT2}, {RA}, 0 offen")
        for off in range(0, 0x700000, 64 << sh):
            a(f"v_add_u32 v{vT1}, {off}, v{vT2}\nbuffer_load_dword v237, v{vT1}, {RC}, 0 offen sc1")
        a(f"{lt}:")
    NA = int(OPT.get('na', 0))
    a(f"""s_cmp_ge_u32 s{S_SLOT}, 18
s_cbranch_scc1 {lnu}
s_sub_u32 s{T+10}, s{S_W}, 4
s_lshl_b32 s{T+11}, s{T+10}, 10
v_add_u32 v{vT0}, s{T+11}, v{vL16}
s_bfe_u32 s{T+12}, s{S_UTB}, 0x10001
s_mul_i32 s{T+12}, s{T+12}, 72
s_bfe_u32 s{T+11}, s{S_UTB}, 0x10002
s_mul_i32 s{T+11}, s{T+11}, {36 if UM > 2 else 0}
s_add_u32 s{T+12}, s{T+12}, s{T+11}
s_add_u32 s{T+10}, s{T+10}, s{T+12}
s_lshl_b32 s{T+12}, s{T+12}, 10""")
    def nxt(n):
        if n < 35:
            a(f"s_add_u32 s{T+10}, s{T+10}, 4")
            if n % 9 == 8:
                a(f"""s_sub_u32 s{T+11}, s{T+10}, 144
s_cmp_ge_u32 s{T+10}, 144
s_cselect_b32 s{T+10}, s{T+11}, s{T+10}""")
    for n in range(NE):
        if SZ is not None and n == NA:
            a("s_barrier")
        a(f"""s_mul_i32 s{T+11}, s{T+10}, {8*2304}
buffer_load_dwordx4 {vr(vWo+4*n,4)}, v{vDU}, {RB}, s{T+11} offen
{THRO}""")
        nxt(n)
    stamp(a, 4)
    def hall():
        l7 = a.label("w7")
        a(f"""s_cmp_lg_u32 s{S_W}, 7
s_cbranch_scc1 {l7}
v_min_u32 v{vT2}, 17, v0
v_lshlrev_b32 v{vT2}, 7, v{vT2}""")
        wpoll(a, vT2, f"s{sOff}", vT1)
        a(f"{l7}:\ns_barrier")
    if G1:
        hall()
    if HPWG:
        a("s_barrier")
    a("s_barrier")
    stamp(a, 5)
    WS_ = min(NE, int(OPT.get('wsplit', 12)))
    def wr(n):
        if n % 9 == 0:
            a(f"v_add_u32 v{vT1}, s{T+12}, v{vT0}")
            a(f"""s_add_u32 s{T+12}, s{T+12}, {36*1024}
s_cmp_ge_u32 s{T+12}, {144*1024}
s_cselect_b32 s{T+12}, 0, s{T+12}""")
        a(f"ds_write_b128 v{vT1}, {vr(vWo+4*n,4)} offset:{(n % 9)*4096}")
    KD = min(36-NE, int(OPT.get('kd', 0)))
    def dm(n):
        a(f"""s_lshl_b32 m0, s{T+10}, 10
s_mul_i32 s{T+11}, s{T+10}, {8*2304}
buffer_load_dwordx4 v{vDU}, {RB}, s{T+11} offen lds""")
        nxt(n)
    a("s_waitcnt vmcnt(0)")
    for n in range(NE, NE+KD): dm(n)
    for n in range(WS_): wr(n)
    a("s_barrier")
    if 'dfirst' in OPT:
        a("s_nop 15")
        for n in range(NE+KD, 36): dm(n)
        for n in range(WS_, NE): wr(n)
    else:
        for n in range(WS_, NE): wr(n)
        for n in range(NE+KD, 36): dm(n)
    a(f"""s_waitcnt vmcnt(0) lgkmcnt(0)""")
    stamp(a, 11)
    lg4 = a.label("g4")
    a("s_barrier")
    if XL:
        xload()
        a("s_waitcnt vmcnt(0)")
    a(f"""s_cmp_lg_u32 s{S_W}, 4
s_cbranch_scc1 {lg4}""")
    d_tile(a)
    a(f"""s_lshr_b32 s{T+10}, s{T+9}, 6
s_lshl_b32 s{T+10}, s{T+10}, 7
s_add_u32 s{T+10}, s{T+10}, {F_G}
v_and_b32 v{vT0}, 1, v0
v_lshlrev_b32 v{vT0}, 7, v{vT0}
s_mul_i32 s{T+11}, s{T+8}, 4608
s_lshl_b32 s{T+12}, s{T+9}, 2
s_add_u32 s{T+11}, s{T+11}, s{T+12}
s_add_u32 s{T+11}, s{T+11}, {WS_GATE}
v_lshlrev_b32 v{vT2}, 3, v0""")
    wpoll(a, vT0, f"s{T+10}", vT1)
    a(f"""buffer_load_dwordx2 v[20:21], v{vT2}, {WS}, s{T+11} offen sc1
s_waitcnt vmcnt(0)
s_barrier
ds_write_b64 v{vT2}, v[20:21] offset:{L_GATE}
s_waitcnt lgkmcnt(0)
s_barrier
s_branch L_c_done
{lg4}:
s_barrier
s_barrier
s_branch L_c_done
{lnu}:""")
    if G1:
        hall()
    a(f"""s_barrier
s_barrier""")
    if SZ is not None:
        a("s_barrier")
    if HPWG:
        a("s_barrier")
    a("L_c_notu:")
    sQb, sKb, sKq, sJ, sK, sQ, sTy = T, T+1, T+2, T+3, T+5, T+6, T+9
    sM = T+10
    sK1 = T+12
    vS = 56
    RING = 15
    SW = OPT.get('sw', '1') == '1'
    SPW = f"""s_mul_i32 s{sOff}, s{sKq}, 18
s_add_u32 s{T+13}, s{sOff}, 17
s_lshr_b32 s{sOff}, s{sOff}, 2
s_lshr_b32 s{T+13}, s{T+13}, 2
v_add_u32 v{vT0}, s{sOff}, v{vTok}
v_min_u32 v{vT0}, s{T+13}, v{vT0}""" if SW else f"v_min_u32 v{vT0}, 17, v{vTok}"
    a(f"""s_sub_u32 s{sJ}, s{S_SLOT}, 18
s_lshr_b32 s{sTy}, s{sJ}, 2
s_and_b32 s{sKq}, s{S_W}, 3
s_and_b32 s{sQb}, s{S_G}, 1
s_lshl_b32 s{sQb}, s{sQb}, 2
s_and_b32 s{sOff}, s{sJ}, 3
s_add_u32 s{sQb}, s{sQb}, s{sOff}
s_and_b32 s{sKb}, s{S_G}, 2
s_lshl_b32 s{sKb}, s{sKb}, 1
s_lshr_b32 s{sOff}, s{S_G}, 2
s_lshl_b32 s{sOff}, s{sOff}, 3
s_add_u32 s{sQb}, s{sQb}, s{sOff}
s_add_u32 s{sKb}, s{sKb}, s{sOff}
s_min_u32 s{sK1}, s{sTy}, 1
s_add_u32 s{sK1}, s{sK1}, s{sTy}
s_mul_i32 s{sK}, s{sKb}, {216*1024}
s_mul_i32 s{sQ}, s{sQb}, {216*1024}
s_mul_i32 s{sOff}, s{sKq}, {18*1024}
s_add_u32 s{sK}, s{sK}, s{sOff}
s_add_u32 s{sQ}, s{sQ}, s{sOff}
s_add_u32 s{sK}, s{sK}, {WS_QKV + 72*1024}
s_add_u32 s{sQ}, s{sQ}, {WS_QKV}
s_mul_i32 s{sOff}, s{sKq}, 18
s_add_u32 s{T+13}, s{sOff}, 17
s_lshr_b32 s{sOff}, s{sOff}, 2
s_lshr_b32 s{T+13}, s{T+13}, 2
v_and_b32 v{vT0}, 7, v0
v_add_u32 v{vT0}, s{sOff}, v{vT0}
v_min_u32 v{vT0}, s{T+13}, v{vT0}
s_mul_i32 s{sOff}, s{sQb}, 54
v_mov_b32 v{vT1}, s{sOff}
s_add_u32 s{sOff}, s{sKb}, s{sK1}
s_mul_i32 s{sOff}, s{sOff}, 54
s_add_u32 s{sOff}, s{sOff}, 18
v_mov_b32 v{vT2}, s{sOff}
v_cmp_lt_u32 vcc, 7, v0
s_mul_i32 s{sOff}, s{sKb}, 54
s_add_u32 s{sOff}, s{sOff}, {54+18}
v_cndmask_b32 v{vT1}, v{vT1}, v{vT2}, vcc
v_mov_b32 v{vT2}, s{sOff}
v_cmp_lt_u32 vcc, 15, v0
s_nop 1
v_cndmask_b32 v{vT1}, v{vT1}, v{vT2}, vcc
v_add_u32 v{vT0}, v{vT0}, v{vT1}
v_lshlrev_b32 v{vT0}, 7, v{vT0}
v_and_b32 v{vT2}, 0x2ff, v{vP16}
v_and_b32 v{vT1}, 16, v0
v_lshl_add_u32 v{vT2}, v{vT1}, 6, v{vT2}
s_and_b32 s{sOff}, s{sTy}, 1
s_lshl_b32 s{sOff}, s{sOff}, 8
s_add_u32 s{sOff}, s{sOff}, {216*1024}
v_add_u32 v{vT2}, s{sOff}, v{vT2}
s_mul_i32 s{sOff}, s{sK1}, {216*1024}
v_add_u32 v{V0}, s{sOff}, v{vP16}
s_mov_b32 s{sOff}, {F_QKV}""")
    lsi = a.label("sidle")
    if not SW:
        poll(a, vT0, f"s{sOff}", vT1)
    a(f"s_cmp_ge_u32 s{S_W}, 4\ns_cbranch_scc1 {lsi}")
    if SW:
        wpoll(a, vT0, f"s{sOff}", vT1)
    stamp(a, 12)
    LA = int(OPT.get('las', 4))
    vS = 72; RING = 8
    vAc3 = 56
    assert LA < RING
    def sload(p):
        r = vS + 20*(p % RING)
        o = (p & 1)*2048
        a(f"""buffer_load_dwordx4 {vr(r,4)}, v{vL16}, {WS}, s{sQ} offen offset:{o} sc1
buffer_load_dwordx4 {vr(r+4,4)}, v{V0}, {WS}, s{sK} offen offset:{o} sc1
buffer_load_dwordx4 {vr(r+8,4)}, v{vT2}, {WS}, s{sK} offen offset:{o} sc1
buffer_load_dwordx4 {vr(r+12,4)}, v{vL16}, {WS}, s{sQ} offen offset:{o+1024} sc1
buffer_load_dwordx4 {vr(r+16,4)}, v{V0}, {WS}, s{sK} offen offset:{o+1024} sc1""")
        if p & 1:
            a(f"s_add_u32 s{sK}, s{sK}, 4096\ns_add_u32 s{sQ}, s{sQ}, 4096")
    for p in range(LA):
        sload(p)
    for p in range(9):
        y = 5*(min(9, p + LA) - p - 1)
        r = vS + 20*(p % RING)
        a(f"s_waitcnt vmcnt({y+3})")
        mfma(a, vAcc, r+4, r, p == 0)
        a(f"s_waitcnt vmcnt({y+2})")
        mfma(a, vAcc+16, r+8, r, p == 0)
        a(f"s_waitcnt vmcnt({y+1})")
        mfma(a, vAc3, r+8, r+12, p == 0)
        a(f"s_waitcnt vmcnt({y})")
        mfma(a, vAcc, r+16, r+12)
        if p + LA < 9:
            sload(p + LA)
    stamp(a, 13)
    QS, HS, PSZ = 1056, 528, 8448
    a(f"""s_mul_i32 s{sOff}, s{S_W}, {PSZ}
v_lshl_add_u32 v{vT0}, v{vHF}, 4, v{vL16}
v_add_u32 v{vT0}, s{sOff}, v{vT0}
s_nop 7""")
    for r in range(8):
        a(f"v_add_f32 v{vAcc+16+r}, v{vAcc+16+r}, v{vAc3+8+r}")
    for q in (4, 5, 0, 1, 2, 3):
        a(f"ds_write_b128 v{vT0}, {vr(vAcc+4*q,4)} offset:{q*QS}")
    a(f"""{lsi}:
v_bfe_u32 v{vT1}, v0, 2, 2
v_and_b32 v{vT2}, 1, v0
v_lshl_add_u32 v{vT1}, v{vT1}, 1, v{vT2}
v_mul_u32_u24 v{vT1}, {QS}, v{vT1}
v_bfe_u32 v{vT2}, v0, 1, 1
v_mul_u32_u24 v{vT2}, {HS}, v{vT2}
v_lshrrev_b32 v{vT0}, 4, v0
s_lshl_b32 s{sOff}, s{S_W}, 2
v_add_u32 v{vT0}, s{sOff}, v{vT0}
v_lshl_add_u32 v{vT1}, v{vT0}, 4, v{vT1}
v_add_u32 v{vT1}, v{vT1}, v{vT2}
v_and_b32 v{vT2}, 7, v0
v_lshlrev_b32 v{vT2}, 4, v{vT2}
v_lshl_add_u32 v{vT2}, v{vT0}, 10, v{vT2}
s_lshl_b32 s{sOff}, s{sK1}, 7
v_mov_b32 v{vT0}, s{sOff}
v_and_b32 v{vT3}, 8, v0
v_cmp_ne_u32 vcc, 0, v{vT3}
s_and_b32 s{sOff}, s{sTy}, 1
s_lshl_b32 s{sOff}, s{sOff}, 6
s_add_u32 s{sOff}, s{sOff}, 128
v_mov_b32 v{vT3}, s{sOff}
s_lshl_b32 s{sJ}, s{sQb}, 15
v_cndmask_b32 v{vT0}, v{vT0}, v{vT3}, vcc
v_add_u32 v{vT2}, v{vT2}, v{vT0}
s_and_b32 s{sOff}, s{sKb}, 7
s_lshl_b32 s{sOff}, s{sOff}, 7
s_add_u32 s{sJ}, s{sJ}, s{sOff}
s_add_u32 s{sJ}, s{sJ}, {WS_L}
s_lshl_b32 s{sK}, s{sQb}, 3
s_add_u32 s{sK}, s{sK}, s{S_W}
s_mul_i32 s{sK}, s{sK}, 6
s_bfe_u32 s{sOff}, s{sKb}, 0x10002
s_mul_i32 s{sOff}, s{sOff}, 3
s_add_u32 s{sK}, s{sK}, s{sOff}
s_add_u32 s{sK}, s{sK}, s{sTy}
s_lshl_b32 s{sK}, s{sK}, 7
s_add_u32 s{sK}, s{sK}, {F_LH}
s_mov_b32 s{sM}, 0x0fff0fff
s_cmp_eq_u32 s{sTy}, 2
s_cselect_b32 s{sM}, 0x00ff00ff, s{sM}
s_mov_b32 s{sM+1}, s{sM}
v_mov_b32 v53, v{vTAG}
v_mov_b32 v55, v{vTAG}
s_waitcnt lgkmcnt(0)
s_barrier""")
    for j in range(4):
        a(f"ds_read_b128 {vr(vAcc+4*j,4)}, v{vT1} offset:{j*PSZ}")
    a("s_waitcnt lgkmcnt(2)")
    for r in range(4):
        a(f"v_add_f32 v{vAcc+r}, v{vAcc+r}, v{vAcc+4+r}")
    a("s_waitcnt lgkmcnt(0)")
    for r in range(4):
        a(f"v_add_f32 v{vAcc+8+r}, v{vAcc+8+r}, v{vAcc+12+r}")
    for r in range(4):
        a(f"v_add_f32 v{vAcc+r}, v{vAcc+r}, v{vAcc+8+r}")
    sc = struct.unpack('<I', struct.pack('<f', D ** -0.5))[0]
    for r in range(2):
        a(f"v_cvt_pk_bf16_f32 v{52+2*r}, v{vAcc+2*r}, v{vAcc+2*r+1}")
    for r in range(2):
        unpack(a, vAcc+2*r, vAcc+2*r+1, 52+2*r)
    for r in range(4):
        a(f"v_mul_f32 v{vAcc+r}, {hex(sc)}, v{vAcc+r}")
    for r in range(2):
        a(f"v_cvt_pk_bf16_f32 v{52+2*r}, v{vAcc+2*r}, v{vAcc+2*r+1}")
    a(f"s_mov_b64 exec, s[{sM}:{sM+1}]\nbuffer_store_dwordx4 v[52:55], v{vT2}, {WS}, s{sJ} offen sc1\ns_mov_b64 exec, -1")
    raw_flag(a, f"s{sK}")
    a("L_c_done:")
    stamp(a, 14)

def phase_d(a):
    sQt, sCt, sCb, sKh, sOff, sXo, sJ, sU, sB, sCol = T, T+1, T+2, T+3, T+4, T+5, T+6, T+7, T+8, T+9
    vXo, vMx, vS, vLa, vPa, vLw = vDXO, V0+1, V0+2, V0+3, V0+4, V0+5
    vLd = 24
    vX = vDX
    vG = 44
    vF = 56
    vR = 72
    vAcc = 80
    vU = 96
    vP = 128
    PS = 1056
    L_P, L_EX = 40960, 65536
    srd(a, R_B, S_OUT, SZ_X)
    a(f"s_cmp_ge_u32 s{S_SLOT}, 18\ns_cbranch_scc1 L_fin")
    d_tile(a)
    a(f"""s_mul_i32 s{sU}, s{sB}, 36
s_lshl_b32 s{sOff}, s{sCt}, 2
s_add_u32 s{sU}, s{sU}, s{sOff}
s_add_u32 s{sU}, s{sU}, s{sCb}
s_lshl_b32 s{sU}, s{sU}, 4
s_lshl_b32 s{sOff}, s{sKh}, 3
s_add_u32 s{sU}, s{sU}, s{sOff}
s_lshl_b32 s{T+10}, s{sU}, 6
s_add_u32 s{T+10}, s{T+10}, {F_U}
s_lshl_b32 s{sU}, s{sU}, 10
s_add_u32 s{sU}, s{sU}, {WS_U}
v_and_b32 v{vT0}, 3, v0
v_lshlrev_b32 v{vT0}, 7, v{vT0}
v_add_u32 v{vT1}, s{T+10}, v{vT0}
s_lshl_b32 s{sOff}, s{sQt}, 3
s_add_u32 s{sOff}, s{sOff}, s{S_W}
s_mul_i32 s{sOff}, s{sOff}, {6*128}
s_add_u32 s{sOff}, s{sOff}, {F_LH}
v_min_u32 v{vT2}, 5, v0
v_lshlrev_b32 v{vT2}, 7, v{vT2}
v_add_u32 v{vT2}, s{sOff}, v{vT2}
v_cmp_gt_u32 vcc, 8, v0
v_and_b32 v{vT3}, 15, v0
v_lshrrev_b32 v{vT0}, 4, v0
v_cndmask_b32 v{vT1}, v{vT1}, v{vT2}, vcc
s_lshl_b32 s{sOff}, s{S_W}, 2
v_add_u32 v{vT0}, s{sOff}, v{vT0}
v_lshlrev_b32 v{vLa}, 10, v{vT0}
v_lshl_add_u32 v{vLa}, v{vT3}, 4, v{vLa}
v_lshrrev_b32 v{vT2}, 1, v{vT3}
v_mul_u32_u24 v{vLw}, {PS//2}, v{vT2}
v_lshl_add_u32 v{vLw}, v{vT0}, 4, v{vLw}
v_and_b32 v{vT2}, 1, v0
v_lshl_add_u32 v{vLw}, v{vT2}, 3, v{vLw}
v_lshl_add_u32 v{vPa}, v{vHF}, 4, v{vL16}
s_mul_i32 s{sOff}, s{sKh}, {8*PS}
v_add_u32 v{vPa}, s{sOff}, v{vPa}
v_lshlrev_b32 v{vT0}, 5, v{vT3}
ds_read_b128 {vr(vG,4)}, v{vT0} offset:{L_GATE}
ds_read_b128 {vr(vG+4,4)}, v{vT0} offset:{L_GATE+16}
s_lshl_b32 s{sOff}, s{sQt}, 15
s_add_u32 s{sOff}, s{sOff}, {WS_L}""")
    vFa, vFl = 22, 23
    sUd = T+12
    def uloads():
        for s in range(8):
            a(f"buffer_load_dwordx4 {vr(vU+4*s,4)}, v{vL16}, {WS}, s{sU} offen offset:{(s&3)*1024} sc1")
            if s == 3:
                a(f"s_add_u32 s{sU}, s{sU}, 4096")
        a(f"s_mov_b32 s{sUd}, 1")
        stamp(a, 8)
    l = a.label("lp"); d = a.label("lpd"); nu = a.label("nu"); l3 = a.label("lv"); d3 = a.label("lvd"); nu2 = a.label("nu2")
    def lloads():
        for n in range(4):
            a(f"buffer_load_dwordx4 {vr(vLd+4*n,4)}, v{vLa}, {WS}, s{sOff} offen offset:{256*n} sc1")
    a(f"""v_mov_b32 v{vFa}, v{vT1}
s_mov_b32 s{sUd}, 0
{l}:
buffer_load_dword v{vFl}, v{vFa}, {WS}, 0 offen {PF}
s_waitcnt vmcnt(0)
v_cmp_ne_u32 vcc, s{S_TAG}, v{vFl}
s_and_b32 s{T+13}, vcc_lo, 255
s_cbranch_scc0 {d}
s_lshr_b32 s{T+13}, vcc_lo, 8
s_or_b32 s{T+13}, s{T+13}, s{sUd}
s_cbranch_scc1 {nu}""")
    uloads()
    a(f"""{nu}:
s_sleep {OPT.get('lsleep', 1)}
s_sub_u32 s{S_TO}, s{S_TO}, 1
s_cmp_lg_u32 s{S_TO}, 0
s_cbranch_scc1 {l}
s_mov_b32 s{S_TO}, 1
{d}:""")
    lloads()
    a(f"""s_lshr_b32 s{T+13}, vcc_lo, 8
s_or_b32 s{T+13}, s{T+13}, s{sUd}
s_cbranch_scc1 {nu2}""")
    if 'ul' in OPT:
        a(f"s_waitcnt vmcnt({OPT['ul']})")
    uloads()
    a(f"""s_waitcnt vmcnt(8)
s_branch {l3}_c
{nu2}:
buffer_load_dword v{vFl}, v{vFa}, {WS}, 0 offen {PF}
s_waitcnt vmcnt(1)
s_branch {l3}_c
{l3}:""")
    lloads()
    a(f"""s_waitcnt vmcnt(0)
{l3}_c:
v_min_u32 v{vT1}, v{vLd+1}, v{vLd+3}
v_max_u32 v{vT2}, v{vLd+1}, v{vLd+3}""")
    for n in range(1, 4):
        a(f"v_min3_u32 v{vT1}, v{vT1}, v{vLd+4*n+1}, v{vLd+4*n+3}\nv_max3_u32 v{vT2}, v{vT2}, v{vLd+4*n+1}, v{vLd+4*n+3}")
    a(f"""v_cmp_ne_u32 vcc, s{S_TAG}, v{vT1}
v_cmp_ne_u32 s[{T+14}:{T+15}], s{S_TAG}, v{vT2}
s_or_b64 vcc, vcc, s[{T+14}:{T+15}]
s_cbranch_vccz {d3}
s_sub_u32 s{S_TO}, s{S_TO}, 1
s_cmp_lg_u32 s{S_TO}, 0
s_cbranch_scc1 {l3}
s_mov_b32 s{S_TO}, 1
{d3}:""")
    stamp(a, 9)
    for i in range(8):
        unpack(a, vF+2*i, vF+2*i+1, vLd+2*i)
    a(f"""v_max3_f32 v{vMx}, v{vF}, v{vF+1}, v{vF+2}
v_max3_f32 v{vS}, v{vF+3}, v{vF+4}, v{vF+5}
v_max3_f32 v{vMx}, v{vMx}, v{vF+6}, v{vF+7}
v_max3_f32 v{vS}, v{vS}, v{vF+8}, v{vF+9}
v_max3_f32 v{vMx}, v{vMx}, v{vF+10}, v{vF+11}
v_max3_f32 v{vS}, v{vS}, v{vF+12}, v{vF+13}
v_max3_f32 v{vMx}, v{vMx}, v{vF+14}, v{vF+15}
v_max_f32 v{vMx}, v{vMx}, v{vS}""")
    for m in ("quad_perm:[1,0,3,2]", "quad_perm:[2,3,0,1]", "row_half_mirror", "row_mirror"):
        a(f"s_nop 1\nv_max_f32_dpp v{vMx}, v{vMx}, v{vMx} {m} row_mask:0xf bank_mask:0xf")
    a(f"s_mov_b32 s{T+10}, {hex(LOG2E)}\nv_mul_f32 v{vMx}, s{T+10}, v{vMx}")
    for i in range(16):
        a(f"v_fma_f32 v{vF+i}, v{vF+i}, s{T+10}, -v{vMx}")
    for i in range(16):
        a(f"v_exp_f32 v{vF+i}, v{vF+i}")
    a(f"v_add_f32 v{vS}, v{vF}, v{vF+1}\nv_add_f32 v{vMx}, v{vF+2}, v{vF+3}")
    for i in range(4, 16, 2):
        a(f"v_add_f32 v{vS}, v{vS}, v{vF+i}\nv_add_f32 v{vMx}, v{vMx}, v{vF+i+1}")
    a(f"v_add_f32 v{vS}, v{vS}, v{vMx}")
    for m in ("quad_perm:[1,0,3,2]", "quad_perm:[2,3,0,1]", "row_half_mirror", "row_mirror"):
        a(f"s_nop 1\nv_add_f32_dpp v{vS}, v{vS}, v{vS} {m} row_mask:0xf bank_mask:0xf")
    a(f"v_rcp_f32 v{vS}, v{vS}\ns_nop 0")
    for i in range(16):
        a(f"v_mul_f32 v{vF+i}, v{vF+i}, v{vS}")
    for i in range(8):
        a(f"v_cvt_pk_bf16_f32 v{vLd+i}, v{vF+2*i}, v{vF+2*i+1}")
    for n in range(4):
        a(f"ds_write_b64 v{vLw}, {vr(vLd+2*n,2)} offset:{L_P+4*n*PS}")
    hu = a.label("hu"); l2 = a.label("up"); d2 = a.label("upd")
    a(f"""s_cmp_lg_u32 s{sUd}, 0
s_cbranch_scc1 {hu}
{l2}:
s_waitcnt vmcnt(0)
v_cmp_ne_u32 vcc, s{S_TAG}, v{vFl}
s_cbranch_vccz {d2}
buffer_load_dword v{vFl}, v{vFa}, {WS}, 0 offen {PF}
s_sub_u32 s{S_TO}, s{S_TO}, 1
s_cmp_lg_u32 s{S_TO}, 0
s_cbranch_scc1 {l2}
s_mov_b32 s{S_TO}, 1
{d2}:""")
    uloads()
    a(f"{hu}:\ns_waitcnt lgkmcnt(0)\ns_barrier")
    for s in range(8):
        a(f"ds_read_b128 {vr(vP+4*s,4)}, v{vPa} offset:{L_P+s*PS}")
    ROW = 528; EXS = 32*ROW
    a(f"""s_mul_i32 s{sOff}, s{sKh}, {EXS}
s_lshl_b32 s{T+10}, s{sCb}, 7
s_add_u32 s{sOff}, s{sOff}, s{T+10}
s_add_u32 s{sOff}, s{sOff}, {L_EX}
v_mul_u32_u24 v{vT1}, {ROW}, v{vTok}
v_lshl_add_u32 v{vT1}, v{vHF}, 5, v{vT1}
v_add_u32 v{vT1}, s{sOff}, v{vT1}
v_lshrrev_b32 v{vT2}, 4, v0
v_mul_u32_u24 v{vT2}, {ROW}, v{vT2}
s_mul_i32 s{sOff}, s{S_W}, {4*ROW}
s_add_u32 s{sOff}, s{sOff}, {L_EX}
v_add3_u32 v{vT2}, v{vT2}, v{vT0}, s{sOff}""")
    for s in range(8):
        a(f"s_waitcnt vmcnt({7-s}) lgkmcnt({7-s})")
        mfma(a, vAcc, vU+4*s, vP+4*s, s == 0)
    for i in range(4):
        unpack(a, vF+2*i, vF+2*i+1, vX+i)
    stamp(a, 10)
    a("s_nop 3")
    for q in range(4):
        a(f"ds_write_b128 v{vT1}, {vr(vAcc+4*q,4)} offset:{64*(q>>1) + 16*(q&1)}")
    a(f"""s_waitcnt lgkmcnt(0)
s_barrier
ds_read_b128 {vr(vAcc,4)}, v{vT2}
ds_read_b128 {vr(vR,4)}, v{vT2} offset:{EXS}
ds_read_b128 {vr(vAcc+4,4)}, v{vT2} offset:16
ds_read_b128 {vr(vR+4,4)}, v{vT2} offset:{EXS+16}
s_waitcnt vmcnt(0) lgkmcnt(2)""")
    for r in range(8):
        if r == 4:
            a("s_waitcnt lgkmcnt(0)")
        a(f"v_add_f32 v{vAcc+r}, v{vAcc+r}, v{vR+r}")
    def cv():
        for i in range(4):
            a(f"v_cvt_pk_bf16_f32 v{vR+i}, v{vAcc+2*i}, v{vAcc+2*i+1}")
    def up():
        for i in range(4):
            unpack(a, vAcc+2*i, vAcc+2*i+1, vR+i)
    cv(); up()
    for r in range(8):
        a(f"v_mul_f32 v{vAcc+r}, v{vAcc+r}, v{vG+r}")
    cv(); up()
    for r in range(8):
        a(f"v_add_f32 v{vAcc+r}, v{vAcc+r}, v{vF+r}")
    cv()
    a(f"buffer_store_dwordx4 {vr(vR,4)}, v{vXo}, {RB}, s{sXo} offen {OPT.get('oflag', '').replace('+', ' ')}")
    a("L_fin:")

def gemv_dma(a, sColA, vD):
    sRow0, sOff = T+2, T+3
    a(f"""v_lshlrev_b32 v{vD}, 4, v{vCH}
v_mul_u32_u24 v{vT0}, 13824, v{vR8}
v_add3_u32 v{vD}, v{vD}, v{vT0}, s{sColA}
s_mul_i32 s{sOff}, s{sRow0}, 13824
s_lshl_b32 m0, s{sRow0}, 7""")
    for t in range(18):
        a(f"""s_nop 0
buffer_load_dwordx4 v{vD}, {RA}, s{sOff} offen {NT} lds""")
        if t < 17:
            a(f"s_add_u32 s{sOff}, s{sOff}, {8*13824}\ns_add_u32 m0, m0, 1024")

def phase_owner(a):
    sColA, sB, sRow0, sOff, sO, sCs, sTb = T, T+1, T+2, T+3, T+4, T+5, T+6
    vD, vA0, vA1, vSil, vCs = V0, V0+1, V0+2, V0+3, V0+4
    vC = 24
    vST = 28
    vX = VOX
    vXN = 48
    vPt = 80
    vAcc = 112
    vWF = 144
    vSF = 160
    vM = 184
    a(f"""s_mov_b32 s{sO}, s2
s_cmp_ge_u32 s{sO}, 36
s_cbranch_scc1 L_o_pref
s_lshr_b32 s{sCs}, s{sO}, 1
s_and_b32 s{sB}, s{sO}, 1
s_waitcnt vmcnt(0)
s_barrier""")
    vST = 32
    vPt = 112
    SM = [32, 33, 34, 35, 36, 37, 38, 39, 40, 41, 42, 43, 9, 10, 11, 12]
    a(f"""v_and_b32 v{vT3}, 7, v0
v_xor_b32 v{vT0}, s{S_W}, v{vT3}
v_lshlrev_b32 v{vT0}, 4, v{vT0}
v_lshl_add_u32 v{vT0}, v0, 7, v{vT0}""")
    for q in range(4):
        a(f"ds_read_b128 {vr(vX+4*q,4)}, v{vT0} offset:{q*8192}")
    a(f"""s_lshl_b32 s{T+9}, s{sB}, 12
s_add_u32 s{T+9}, s{T+9}, {F_STAT}
s_mul_i32 s{T+10}, s{sO}, {18*1024}
s_lshl_b32 s{sOff}, s{S_W}, 7
s_add_u32 s{T+10}, s{T+10}, s{sOff}
s_add_u32 s{T+10}, s{T+10}, {WS_PART}
s_add_u32 s{T+11}, s{T+10}, 8192
v_lshlrev_b32 v{vT1}, 4, v{vT3}
v_min_u32 v{vT2}, 1, v{vR8}
v_lshl_add_u32 v{vT2}, v{vT2}, 10, v{vT1}
v_add_u32 v{vT2}, 16384, v{vT2}
v_lshl_add_u32 v{vT1}, v{vR8}, 10, v{vT1}
v_cmp_gt_u32 vcc, 16, v0
v_mul_u32_u24 v{vCs}, {72*1024}, v{vHF}
v_lshl_add_u32 v{vCs}, v{vTok}, 4, v{vCs}
v_cndmask_b32 v{vA0}, 0, 1.0, vcc
v_bfe_u32 v{vA1}, v0, 2, 1
v_cvt_f32_u32 v{vA1}, v{vA1}
s_mul_i32 s{sOff}, s{sB}, {8*72*1024}
s_lshl_b32 s{T+12}, s{sCs}, 12
s_add_u32 s{sOff}, s{sOff}, s{T+12}
s_lshl_b32 s{T+12}, s{S_W}, 9
s_add_u32 s{sOff}, s{sOff}, s{T+12}
s_add_u32 s{sOff}, s{sOff}, {WS_H}
s_waitcnt lgkmcnt(0)""")
    def stl():
        for q in range(4):
            a(f"buffer_load_dwordx4 {vr(vST+4*q,4)}, v{vL16}, {WS}, s{T+9} offen offset:{1024*q} sc1")
    def pl():
        a(f"""buffer_load_dwordx4 {vr(vPt,4)}, v{vT1}, {WS}, s{T+10} offen sc1
buffer_load_dwordx4 {vr(vPt+4,4)}, v{vT1}, {WS}, s{T+11} offen sc1
buffer_load_dwordx4 {vr(vPt+8,4)}, v{vT2}, {WS}, s{T+10} offen sc1""")
    P = [(q, i) for q in range(4) for i in range(4)]
    lo = lambda q, i: vXN+8*q+2*i
    hi = lambda q, i: vXN+8*q+2*i+1
    xs = lambda q, i: vX+4*q+i
    def st_unpack():
        for q, i in P: unpack(a, lo(q,i), hi(q,i), xs(q,i))
    def st_cvt():
        for q, i in P: a(f"v_cvt_pk_bf16_f32 v{xs(q,i)}, v{lo(q,i)}, v{hi(q,i)}")
    def st_op(op, f):
        for q, i in P:
            a(f"{op} v{lo(q,i)}, v{lo(q,i)}, v{f(q,2*i)}\n{op} v{hi(q,i)}, v{hi(q,i)}, v{f(q,2*i+1)}")
    st_unpack()
    if 'st1' in OPT:
        a(f"v_and_b32 v{vM}, 3, v0\ns_lshl_b32 s{T+12}, s{S_W}, 9\nv_lshlrev_b32 v{vM}, 7, v{vM}\ns_add_u32 s{T+12}, s{T+12}, s{T+9}\nv_add_u32 v{vM}, 124, v{vM}")
        wpoll(a, vM, f"s{T+12}", vM+1)
        a("s_barrier")
    gpoll(a, stl, [vST+4*q+j for q in range(4) for j in (1, 3)], OPT.get('ssleep'))
    stamp(a, 1)
    st_op("v_sub_f32", lambda q, j: vST+4*q); st_cvt()
    st_unpack()
    pl()
    st_op("v_mul_f32", lambda q, j: vST+4*q+2); st_cvt()
    st_unpack()
    stamp(a, 2)
    lp = a.label("pp"); ld = a.label("ppd")
    a(f"""{lp}:
s_waitcnt vmcnt(0)
v_min3_u32 v{vM}, v{vPt+1}, v{vPt+3}, v{vPt+5}
v_max3_u32 v{vM+1}, v{vPt+1}, v{vPt+3}, v{vPt+5}
v_min3_u32 v{vM}, v{vM}, v{vPt+7}, v{vPt+9}
v_max3_u32 v{vM+1}, v{vM+1}, v{vPt+7}, v{vPt+9}
v_min_u32 v{vM}, v{vM}, v{vPt+11}
v_max_u32 v{vM+1}, v{vM+1}, v{vPt+11}
v_cmp_ne_u32 vcc, s{S_TAG}, v{vM}
v_cmp_ne_u32 s[{T+14}:{T+15}], s{S_TAG}, v{vM+1}
s_or_b64 vcc, vcc, s[{T+14}:{T+15}]
s_cbranch_vccz {ld}
s_sub_u32 s{S_TO}, s{S_TO}, 1
s_cmp_eq_u32 s{S_TO}, 0
s_cbranch_scc1 {ld}""")
    pl()
    a(f"""s_branch {lp}
{ld}:
s_max_u32 s{S_TO}, s{S_TO}, 1
v_add_f32 v{vPt}, v{vPt}, v{vPt+4}
v_add_f32 v{vPt+2}, v{vPt+2}, v{vPt+6}
v_fmac_f32 v{vPt}, v{vA0}, v{vPt+8}
v_fmac_f32 v{vPt+2}, v{vA0}, v{vPt+10}
s_nop 1
v_permlane32_swap_b32 v{vPt}, v{vPt+2}
s_nop 0
v_add_f32 v{vPt}, v{vPt}, v{vPt+2}
v_mov_b32 v{vPt+2}, v{vPt}
s_nop 1
v_permlane16_swap_b32 v{vPt}, v{vPt+2}
s_nop 0
v_add_f32 v{vPt}, v{vPt}, v{vPt+2}
s_nop 1
v_add_f32_dpp v{vPt}, v{vPt}, v{vPt} row_ror:8 row_mask:0xf bank_mask:0xf""")
    round_bf16(a, vPt)
    a(f"v_add_f32 v{vPt}, v{vPt}, v{vA1}")
    round_bf16(a, vPt)
    a("s_nop 0")
    for u in (4, 5, 6, 7, 0, 1, 2, 3):
        a(f"v_readlane_b32 s{SM[2*u]}, v{vPt}, {u}\nv_readlane_b32 s{SM[2*u+1]}, v{vPt}, {32+u}")
    stamp(a, 3)
    for q, i in P:
        a(f"v_mul_f32 v{lo(q,i)}, s{SM[8+2*i]}, v{lo(q,i)}\nv_mul_f32 v{hi(q,i)}, s{SM[8+2*i+1]}, v{hi(q,i)}")
    st_cvt(); st_unpack()
    for q in range(4):
        for i in range(4):
            a(f"v_add_f32 v{lo(q,i)}, s{SM[2*i]}, v{lo(q,i)}\nv_add_f32 v{hi(q,i)}, s{SM[2*i+1]}, v{hi(q,i)}")
        for i in range(4):
            a(f"v_cvt_pk_bf16_f32 v{xs(q,i)}, v{lo(q,i)}, v{hi(q,i)}")
        a(f"buffer_store_dwordx4 {vr(vX+4*q,4)}, v{vCs}, {WS}, s{sOff} offen sc1")
        if q < 3:
            a(f"s_add_u32 s{sOff}, s{sOff}, {2*72*1024}")
    stamp(a, 4)
    a(f"""s_mul_i32 s{sOff}, s{sB}, 18
s_add_u32 s{sOff}, s{sOff}, s{sCs}
s_lshl_b32 s{sOff}, s{sOff}, 7
s_add_u32 s{sOff}, s{sOff}, {F_H}""")
    set_flag(a, f"s{sOff}")
    stamp(a, 5)
    if 'ob' in OPT:
        a("s_waitcnt vmcnt(0)\ns_barrier")
    a("L_o_pref:")
    srd(a, R_A, S_WMOD, SZ_WMOD)
    srd(a, R_C, S_C, SZ_C)
    a(f"""s_cmp_ge_u32 s{sO}, 18
s_cbranch_scc1 L_o_upd""")
    if 'gd' in OPT:
        a(f"v_min_u32 v{vT0}, 35, v0\nv_lshlrev_b32 v{vT0}, 7, v{vT0}\ns_movk_i32 s{sOff}, {F_H}")
        poll(a, vT0, f"s{sOff}", vT1)
    a(f"""s_mul_i32 s{sRow0}, s{S_W}, 144
v_min_u32 v{vT0}, 17, v{vTok}
v_lshlrev_b32 v{vT0}, 4, v{vT0}
v_mul_u32_u24 v{vT1}, 2304, v{vHF}
v_add_u32 v{vCs}, v{vT0}, v{vT1}
s_lshl_b32 s{sOff}, s{sRow0}, 1
buffer_load_dwordx4 {vr(vC,4)}, v{vCs}, {RC}, s{sOff} offen
s_lshl_b32 s{sColA}, s{sO}, 7
s_add_u32 s{sColA}, s{sColA}, 4608""")
    gemv_dma(a, sColA, vD)
    a(f"""s_lshl_b32 s{sOff}, s{sRow0}, 7
v_add_u32 v{vA0}, s{sOff}, v{vB0}
v_add_u32 v{vA1}, s{sOff}, v{vB1}
s_waitcnt vmcnt(18)""")
    for i in range(4):
        unpack(a, vM+2*i, vM+2*i+1, vC+i)
    silu8(a, vM, vM+8)
    for i in range(4):
        a(f"v_cvt_pk_bf16_f32 v{vC+i}, v{vM+2*i}, v{vM+2*i+1}")
    a(f"""s_lshl_b32 s{sOff}, s{sRow0}, 1
s_add_u32 s{sOff}, s{sOff}, {L_SIL}
v_add_u32 v{vCs}, s{sOff}, v{vCs}
ds_write_b128 v{vCs}, {vr(vC,4)}
v_and_b32 v{vT0}, 1, v0
v_mul_u32_u24 v{vT0}, 2304, v{vT0}
v_lshl_add_u32 v{vT0}, v{vHF}, 4, v{vT0}
v_add_u32 v{vSil}, s{sOff}, v{vT0}
s_waitcnt lgkmcnt(0)""")
    for s in range(9):
        wf = vWF + 8*(s & 1); sf = vSF + 4*(s & 1)
        a(f"s_waitcnt vmcnt({18-2*(s+1)})")
        a(f"ds_read_b128 {vr(sf,4)}, v{vSil} offset:{s*32}")
        trreads(a, wf, vA0, vA1, s*2048)
        a("s_waitcnt lgkmcnt(2)")
        mfma(a, vAcc, wf, sf, s == 0)
        a("s_waitcnt lgkmcnt(0)")
        mfma(a, vAcc+16, wf+4, sf, s == 0)
    a(f"""v_and_b32 v{vT0}, 1, v0
v_lshlrev_b32 v{vT0}, 8, v{vT0}
v_lshl_add_u32 v{vT0}, v{vHF}, 5, v{vT0}
s_lshl_b32 s{sOff}, s{S_W}, 9
s_add_u32 s{sOff}, s{sOff}, {L_RED}
v_add_u32 v{vT0}, s{sOff}, v{vT0}
s_mov_b32 exec_lo, 3
s_mov_b32 exec_hi, 3
s_nop 8""")
    for cb in range(2):
        for q, off in enumerate((0, 16, 64, 80)):
            a(f"ds_write_b128 v{vT0}, {vr(vAcc+16*cb+4*q,4)} offset:{cb*128+off}")
    a(f"""s_mov_b64 exec, -1
s_waitcnt lgkmcnt(0)
s_barrier
s_lshr_b32 s{sOff}, s{S_W}, 2
s_lshl_b32 s{sOff}, s{sOff}, 8
s_add_u32 s{sOff}, s{sOff}, {L_RED}
v_lshlrev_b32 v{vT0}, 2, v0
v_add_u32 v{vT1}, s{sOff}, v{vT0}""")
    for w in range(8):
        a(f"ds_read_b32 v{vAcc+w}, v{vT1} offset:{w*512}")
    a("s_waitcnt lgkmcnt(0)")
    for w in range(1, 8):
        a(f"v_add_f32 v{vAcc}, v{vAcc}, v{vAcc+w}")
    round_bf16(a, vAcc)
    lsk = a.label("gsk")
    a(f"""s_and_b32 s{sOff}, s{S_W}, 3
s_cmp_lg_u32 s{sOff}, 0
s_cbranch_scc1 {lsk}
s_lshr_b32 s{T+9}, s{S_W}, 2
s_mul_i32 s{sOff}, s{T+9}, 4608
s_lshl_b32 s{sColA}, s{sO}, 8
s_add_u32 s{sOff}, s{sOff}, s{sColA}
s_add_u32 s{sOff}, s{sOff}, {WS_GATE}
buffer_store_dword v{vAcc}, v{vT0}, {WS}, s{sOff} offen sc1
{lsk}:
s_lshl_b32 s{sOff}, s{sO}, 7
s_add_u32 s{sOff}, s{sOff}, {F_G}""")
    set_flag(a, f"s{sOff}")
    stamp(a, 7)
    lp = a.label("ep"); ld = a.label("epd")
    a(f"""L_o_upd:
s_add_u32 s{S_SLOT}, s{S_SLOT}, 25
s_cmp_ge_u32 s{S_SLOT}, 27
s_cbranch_scc1 L_c_notu
s_cmp_lg_u32 s2, 0
s_cbranch_scc1 L_fin
s_lshl_b32 s{sOff}, s{S_W}, 6
v_add_u32 v{vT0}, s{sOff}, v0
v_min_u32 v{vT0}, 431, v{vT0}
v_lshlrev_b32 v{vT0}, 8, v{vT0}
s_mov_b32 s{sOff}, {F_QKV}
{lp}:
s_sleep 16
buffer_load_dword v{vT1}, v{vT0}, {WS}, s{sOff} offen sc1
buffer_load_dword v{vT2}, v{vT0}, {WS}, s{sOff} offen offset:128 sc1
s_waitcnt vmcnt(0)
v_cmp_ne_u32 vcc, s{S_TAG}, v{vT1}
v_cmp_ne_u32 s[{T+14}:{T+15}], s{S_TAG}, v{vT2}
s_or_b64 vcc, vcc, s[{T+14}:{T+15}]
s_cbranch_vccz {ld}
s_sub_u32 s{S_TO}, s{S_TO}, 1
s_cmp_lg_u32 s{S_TO}, 0
s_cbranch_scc1 {lp}
{ld}:
s_mov_b32 s{sOff}, {EPOCH}""")
    set_flag(a, f"s{sOff}")
    a("s_branch L_fin")

def epilogue(a):
    if STAMP and 'probe' in OPT:
        i = int(OPT['probe']); lo, hi = [int(x) for x in OPT.get('prole', '0:256').split(':')]
        a(f"""s_waitcnt vmcnt(0) lgkmcnt(0)
s_cmp_lg_u32 s{S_W}, {OPT.get('stw', 0)}
s_cbranch_scc1 L_end
s_memrealtime s[{S_ST+30}:{S_ST+31}]
s_waitcnt lgkmcnt(0)
s_sub_u32 s{T}, s{S_ST+2*i}, s{S_ST}
s_cmp_eq_u32 s{S_ST+2*i}, 0
s_cselect_b32 s{T}, 0, s{T}
s_cmp_lt_u32 s2, {lo}
s_cselect_b32 s{T}, 0, s{T}
s_cmp_ge_u32 s2, {hi}
s_cselect_b32 s{T}, 0, s{T}
s_lshl_b32 s{T}, s{T}, 2
s_add_u32 s{T}, s{T}, 5000
L_spin:
s_memrealtime s[{T+2}:{T+3}]
s_waitcnt lgkmcnt(0)
s_sub_u32 s{T+2}, s{T+2}, s{S_ST}
s_cmp_lt_u32 s{T+2}, s{T}
s_cbranch_scc1 L_spin""")
    elif STAMP:
        a(f"""s_waitcnt vmcnt(0) lgkmcnt(0)
s_cmp_lg_u32 s{S_W}, {OPT.get('stw', 0)}
s_cbranch_scc1 L_end
{CLK} s[{S_ST+30}:{S_ST+31}]
s_memtime s[98:99]
s_waitcnt lgkmcnt(0)
s_sub_u32 s98, s98, s96""")
        for i in range(16):
            a(f"v_mov_b32 v{16+i}, s{S_ST+2*i}")
        a(f"""v_mov_b32 v32, s98
s_lshl_b32 s{T}, s2, 7
s_add_u32 s{T}, s{T}, {WS_STAMP}
v_mov_b32 v1, 0
s_mov_b64 exec, 1""")
        for i in range(4):
            a(f"buffer_store_dwordx4 v[{16+4*i}:{19+4*i}], v1, {WS}, s{T} offen offset:{16*i}")
        a(f"buffer_store_dword v32, v1, {WS}, s{T} offen offset:64")
    a("L_end:\ns_endpgm")

def main():
    a = Asm()
    a.raw("""; DiT adaLN attention block (B=2, N=256, D=1152) as ONE persistent launch, 256 workgroups x 8 waves (one per CU).
; Written by a generator script of my own (hand-designed schedule, no compiler output).
;  stage 0 : 162 WGs: split-K pieces of silu(c) @ w_mod[:, :2D] -> tagged granules; 64 WGs: LayerNorm row statistics
; @launch grid=(256,1,1) block=(512,1,1) lds=163840""")
    a.raw('.amdgcn_target "amdgcn-amd-amdhsa--gfx950"\n.text')
    prologue(a)
    phase_bc(a)
    NOD[0] = True
    phase_d(a)
    NOD[0] = False
    epilogue(a)
    a("L_owner:")
    phase_owner(a)
    a.raw(".p2align 4\nL_codeend:")
    out = a.text() + kd(NAME, 244, 102)
    path = [x for x in sys.argv[1:] if not x.startswith('--')][0]
    open(path, 'w').write(out)
main()
```

```python
import sys, struct
from asmlib import *

OPT = dict(la='12', nt='', cpf='1', umap='4', lfull='1', pack='0', ew='3')
for a_ in sys.argv[1:]:
    if a_.startswith('--'):
        k, _, v = a_[2:].partition('=')
        OPT[k] = v
STAMP = 'stamp' in OPT
NT = OPT['nt']
PF = OPT.get('pf', 'sc1').replace('+', ' ')
SF = OPT.get('sf', 'sc1').replace('+', ' ')
CLK = "s_memtime" if 'cyc' in OPT else "s_memrealtime"

NAME = "standalone__dit_adaln_block__diffusion_kernel"
D = 1152
SZ_X = 512*D*2; SZ_C = 2*D*2; SZ_WQKV = D*3*D*2; SZ_WO = D*D*2; SZ_WMOD = D*6*D*2
SZ_WS = 1 << 28
F_STAT = 0x0
F_H = 0x2000
F_L = 0x4000
F_U = 0x760000
F_G = 0x4000
F_QKV = 0x740000
EPOCH = 0x13000
WS_GATE = 0x14000
WS_H = 0x20000
WS_QKV = 0x140000
WS_L = 0x680000
WS_U = 0x550000
WS_PART = 0x4A0000
WS_STAMP = 0x700000
F_LH = 0x720000
LOG2E = 0x3fb8aa3b

S_W, S_TAG, S_G, S_SLOT, S_TO, S_TK = 3, 4, 5, 6, 7, 8
S_X, S_C, S_WQKV, S_WO, S_WMOD, S_OUT, S_DBG, S_WS = 16, 18, 20, 22, 24, 26, 28, 30
R_A, R_B, R_C, R_WS = 32, 36, 40, 44
T = 48
S_ST = 64
WS = f"s[{R_WS}:{R_WS+3}]"
RA = f"s[{R_A}:{R_A+3}]"; RB = f"s[{R_B}:{R_B+3}]"; RC = f"s[{R_C}:{R_C+3}]"
vL16, vP16, vB0, vB1, vCH, vR8, vHF, vTok = 1, 2, 3, 4, 5, 6, 7, 8
vT0, vT1, vT2, vT3 = 9, 10, 11, 12
vTAG = 13
V0 = 16

L_MISC = 147456
L_SIL = L_MISC
L_RED = L_SIL + 4608
L_FIN = L_RED + 4096
L_ROLE = L_FIN + 4096
L_STC = L_ROLE + 16
L_GATE = 36864
NO = 5

def srd(a, r, ptr, size):
    a(f"""s_mov_b32 s{r}, s{ptr}
s_and_b32 s{r+1}, s{ptr+1}, 0xffff
s_mov_b32 s{r+2}, {hex(size)}
s_mov_b32 s{r+3}, 0x20000""")

NOD = [False]
def stamp(a, i):
    if STAMP and not (NOD[0] and 'nod' in OPT):
        a(f"{CLK} s[{S_ST+2*i}:{S_ST+2*i+1}]")

def unpack(a, lo, hi, src):
    a(f"v_lshlrev_b32 v{lo}, 16, v{src}\nv_and_b32 v{hi}, 0xffff0000, v{src}")

def round_bf16(a, v):
    a(f"v_cvt_pk_bf16_f32 v{v}, v{v}, v{v}\nv_lshlrev_b32 v{v}, 16, v{v}")

HACK = [0]
def mfma(a, acc, A, B, first=False):
    if 'hack16' in OPT and not first:
        HACK[0] += 1
        o = 8*((HACK[0] >> 1) & 1)
        for j in range(2):
            a(f"v_mfma_f32_16x16x32_bf16 {vr(acc+o+4*j,4)}, {vr(A,4)}, {vr(B,4)}, {vr(acc+o+4*j,4)}")
        return
    c = "0" if first else vr(acc, 16)
    a(f"v_mfma_f32_32x32x16_bf16 {vr(acc,16)}, {vr(A,4)}, {vr(B,4)}, {c}")

def wrap_add(a, s, step, s_end, s_start):
    a(f"""s_add_u32 s{s}, s{s}, {step}
s_cmp_eq_u32 s{s}, s{s_end}
s_cselect_b32 s{s}, s{s_start}, s{s}""")

def mod9(a, dst, src, tmp):
    a(f"""s_mul_i32 s{tmp}, s{src}, 57
s_lshr_b32 s{tmp}, s{tmp}, 9
s_mul_i32 s{tmp}, s{tmp}, 9
s_sub_u32 s{dst}, s{src}, s{tmp}""")

def poll(a, vaddr, soff, vtmp):
    l = a.label("poll"); d = a.label("polld")
    a(f"""s_cmp_lg_u32 s{S_W}, 0
s_cbranch_scc1 {d}
{l}:
buffer_load_dword v{vtmp}, v{vaddr}, {WS}, {soff} offen {PF}
s_waitcnt vmcnt(0)
v_cmp_ne_u32 vcc, s{S_TAG}, v{vtmp}
s_cbranch_vccz {d}
s_sleep {OPT.get('sleep', 2)}
s_sub_u32 s{S_TO}, s{S_TO}, 1
s_cmp_lg_u32 s{S_TO}, 0
s_cbranch_scc1 {l}
s_mov_b32 s{S_TO}, 1
{d}:
s_barrier""")

def gpoll(a, loads, tagregs, slp=None):
    l = a.label("gp"); d = a.label("gpd")
    a(f"{l}:")
    loads()
    a(f"s_waitcnt vmcnt(0)\nv_cmp_ne_u32 vcc, s{S_TAG}, v{tagregs[0]}")
    for r in tagregs[1:]:
        a(f"v_cmp_ne_u32 s[{T+14}:{T+15}], s{S_TAG}, v{r}\ns_or_b64 vcc, vcc, s[{T+14}:{T+15}]")
    a(f"""s_cbranch_vccz {d}
s_sleep {slp if slp is not None else OPT.get('gsleep', 2)}
s_sub_u32 s{S_TO}, s{S_TO}, 1
s_cmp_lg_u32 s{S_TO}, 0
s_cbranch_scc1 {l}
s_mov_b32 s{S_TO}, 1
{d}:""")

def raw_flag(a, soff):
    a(f"""v_mov_b32 v{vT3}, 0
s_mov_b64 exec, 1
buffer_store_dword v{vTAG}, v{vT3}, {WS}, {soff} offen {SF}
s_mov_b64 exec, -1""")

def set_flag(a, soff, younger=0):
    d = a.label("fl")
    a(f"""s_waitcnt vmcnt({younger})
s_barrier
s_cmp_lg_u32 s{S_W}, 0
s_cbranch_scc1 {d}""")
    raw_flag(a, soff)
    a(f"{d}:")

def trreads(a, wf, b0, b1, off):
    a(f"""ds_read_b64_tr_b16 {vr(wf,2)}, v{b0} offset:{off}
ds_read_b64_tr_b16 {vr(wf+2,2)}, v{b0} offset:{off+512}
ds_read_b64_tr_b16 {vr(wf+4,2)}, v{b1} offset:{off}
ds_read_b64_tr_b16 {vr(wf+6,2)}, v{b1} offset:{off+512}""")

def dma_tile(a, srdname, vD, pitch, s_rot, flags, n0=0, n1=18):
    sN, sO = T+10, T+11
    if s_rot is None:
        a(f"s_add_u32 s{sN}, s{S_W}, {8*n0}")
    else:
        a(f"s_lshl_b32 s{sN}, s{s_rot}, 3\ns_add_u32 s{sN}, s{sN}, s{S_W}")
    for n in range(n0, n1):
        a(f"""s_lshl_b32 m0, s{sN}, 10
s_mul_i32 s{sO}, s{sN}, {8*pitch}
buffer_load_dwordx4 v{vD}, {srdname}, s{sO} offen {flags} lds""")
        if n < n1-1:
            a(f"s_add_u32 s{sN}, s{sN}, 8")
            if s_rot is not None:
                a(f"""s_sub_u32 s{sO}, s{sN}, 144
s_cmp_ge_u32 s{sN}, 144
s_cselect_b32 s{sN}, s{sO}, s{sN}""")

def wave_sum(a, v, sdst):
    for m in ("quad_perm:[1,0,3,2]", "quad_perm:[2,3,0,1]", "row_half_mirror", "row_mirror"):
        a(f"s_nop 1\nv_add_f32_dpp v{v}, v{v}, v{v} {m} row_mask:0xf bank_mask:0xf")
    a(f"s_nop 1\nv_add_f32_dpp v{v}, v{v}, v{v} row_bcast:15 row_mask:0xa bank_mask:0xf")
    a(f"s_nop 1\nv_add_f32_dpp v{v}, v{v}, v{v} row_bcast:31 row_mask:0xc bank_mask:0xf")
    a(f"s_nop 1\nv_readlane_b32 s{sdst}, v{v}, 63\ns_nop 1")

def silu8(a, f, t):
    for i in range(8):
        a(f"v_mul_f32 v{t+i}, 0xbfb8aa3b, v{f+i}")
    for i in range(8):
        a(f"v_exp_f32 v{t+i}, v{t+i}")
    for i in range(8):
        a(f"v_add_f32 v{t+i}, 1.0, v{t+i}")
    for i in range(8):
        a(f"v_rcp_f32 v{t+i}, v{t+i}")
    for i in range(8):
        a(f"v_mul_f32 v{f+i}, v{f+i}, v{t+i}")

def lane_consts(a):
    a(f"""v_lshrrev_b32 v{vR8}, 3, v0
v_and_b32 v{vP16}, 0x33, v0
v_and_b32 v{vT0}, 4, v0
v_lshl_or_b32 v{vP16}, v{vT0}, 1, v{vP16}
v_and_b32 v{vT0}, 8, v0
v_lshrrev_b32 v{vT0}, 1, v{vT0}
v_or_b32 v{vP16}, v{vP16}, v{vT0}
v_lshlrev_b32 v{vP16}, 4, v{vP16}
v_lshrrev_b32 v{vT0}, 2, v0
v_and_b32 v{vT0}, 4, v{vT0}
v_and_b32 v{vCH}, 7, v0
v_xor_b32 v{vCH}, v{vCH}, v{vT0}
v_lshlrev_b32 v{vB0}, 10, v{vHF}
v_and_b32 v{vT0}, 12, v0
v_lshl_or_b32 v{vB0}, v{vT0}, 5, v{vB0}
v_and_b32 v{vT0}, 8, v0
v_lshl_or_b32 v{vB0}, v{vT0}, 3, v{vB0}
v_and_b32 v{vT0}, 16, v0
v_lshl_or_b32 v{vB0}, v{vT0}, 1, v{vB0}
v_and_b32 v{vT0}, 1, v0
v_lshl_or_b32 v{vB0}, v{vT0}, 4, v{vB0}
v_and_b32 v{vT0}, 2, v0
v_lshl_or_b32 v{vB0}, v{vT0}, 2, v{vB0}
v_xor_b32 v{vB1}, 64, v{vB0}""")

def get_tag(a):
    a(f"""s_waitcnt lgkmcnt(0)
s_mul_i32 s{S_TAG}, s{S_TAG}, 1664525
s_add_u32 s{S_TAG}, s{S_TAG}, 1013904223
v_mov_b32 v{vTAG}, s{S_TAG}""")

def wpoll(a, vaddr, soff, vtmp):
    gpoll(a, lambda: a(f"buffer_load_dword v{vtmp}, v{vaddr}, {WS}, {soff} offen {PF}"), [vtmp])

S_BCT, S_BRT = 11, 12
vDW = 15
R0, R1 = [int(x) for x in OPT.get('wrot', '36,28').split(',')]
assert R0 + 3*R1 + 7 < 144
def b_setup(a):
    srd(a, R_B, S_WQKV, SZ_WQKV)
    a(f"""s_mul_i32 s{S_BCT}, s{S_G}, 27
s_add_u32 s{S_BCT}, s{S_BCT}, s{S_SLOT}
s_sub_u32 s{S_BCT}, s{S_BCT}, {NO}
s_and_b32 s{S_BRT}, s{S_BCT}, 3
s_lshr_b32 s{S_BCT}, s{S_BCT}, 2
s_mul_i32 s13, s{S_BRT}, {R1}
s_add_u32 s{T+14}, s13, {R0}
s_cmp_lg_u32 s{S_BRT}, 0
s_cselect_b32 s13, s{T+14}, s13
s_add_u32 s13, s13, s{S_W}
v_lshlrev_b32 v{vDW}, 4, v{vCH}
v_mul_u32_u24 v{vT0}, 6912, v{vR8}
s_lshl_b32 s{T+14}, s{S_BCT}, 7
v_add3_u32 v{vDW}, v{vDW}, v{vT0}, s{T+14}""")

THR = f"s_waitcnt vmcnt({OPT['thr']})" if 'thr' in OPT else ''
THRO = f"s_waitcnt vmcnt({OPT['thro']})" if 'thro' in OPT else ''
def w_dma(a, n):
    for i in range(n):
        a(f"""s_lshl_b32 m0, s13, 10
s_mul_i32 s{T+14}, s13, {8*6912}
buffer_load_dwordx4 v{vDW}, {RB}, s{T+14} offen lds
{THR}
s_add_u32 s13, s13, 8
s_sub_u32 s{T+14}, s13, 144
s_cmp_ge_u32 s13, 144
s_cselect_b32 s13, s{T+14}, s13""")

EW = int(OPT.get('ew', 0))
def prologue(a):
    a.raw(f".globl {NAME}\n.p2align 8\n.type {NAME},@function\n{NAME}:")
    a(f"""s_cmp_ge_u32 s2, 256
s_cbranch_scc1 L_end
s_load_dwordx16 s[16:31], s[0:1], 0""")
    if STAMP:
        a(f"{CLK} s[{S_ST}:{S_ST+1}]\ns_memtime s[96:97]")
        for i in range(1, 16):
            a(f"s_mov_b32 s{S_ST+2*i}, 0")
    a(f"""v_lshrrev_b32 v1, 6, v0
v_and_b32 v0, 63, v0
s_and_b32 s{S_G}, s2, 7
v_readfirstlane_b32 s{S_W}, v1
s_lshr_b32 s{S_SLOT}, s2, 3
s_mov_b32 s{S_TO}, 0x40000
v_lshlrev_b32 v{vL16}, 4, v0
v_lshrrev_b32 v{vHF}, 5, v0
v_and_b32 v{vTok}, 31, v0
s_mov_b32 s{S_TK}, s2""")
    if OPT.get('cpf') == '1':
        a(f"""s_cmp_lg_u32 s{S_W}, 7
s_cbranch_scc1 L_nocpf
s_getpc_b64 s[{T}:{T+1}]
L_pc:
s_sub_u32 s{T}, s{T}, L_pc-{NAME}
s_subb_u32 s{T+1}, s{T+1}, 0
s_lshl_b32 s{T+2}, s{S_SLOT}, 10
v_add_u32 v{vT0}, s{T+2}, v{vL16}
v_min_u32 v{vT0}, L_codeend-{NAME}-16, v{vT0}
global_load_dwordx4 v[240:243], v{vT0}, s[{T}:{T+1}]
L_nocpf:""")
    if OPT.get('lead', '1') == '1':
        a(f"""s_mul_i32 s{T}, s{S_G}, 27
s_add_u32 s{T}, s{T}, s{S_SLOT}
s_sub_u32 s{T}, s{T}, {NO}
s_lshr_b32 s{T+1}, s{T}, 2
s_sub_u32 s{T+2}, s{T}, s{T+1}
s_add_u32 s{T+2}, s{T+2}, 93
s_and_b32 s{T+3}, s{T+1}, 1
s_mul_i32 s{T+3}, s{T+3}, 27
s_lshr_b32 s{T+1}, s{T+1}, 1
s_add_u32 s{T+1}, s{T+1}, s{T+3}
s_add_u32 s{T+1}, s{T+1}, 40
s_and_b32 s{T}, s{T}, 3
s_cselect_b32 s{T+1}, s{T+2}, s{T+1}
s_cmp_ge_u32 s2, 40
s_cselect_b32 s{S_TK}, s{T+1}, s2""")
    sP, sCg, sKs, sOff, sRow = T, T+1, T+2, T+3, T+4
    a(f"""s_cmp_ge_u32 s{S_TK}, 64
s_cbranch_scc1 L_s0_nst""")
    vRW = 16
    a(f"""s_lshl_b32 s{sOff}, s{S_TK}, 3
s_add_u32 s{sOff}, s{sOff}, s{S_W}
s_mul_i32 s{sOff}, s{sOff}, 2304
v_mov_b32 v{vRW+8}, 0
v_mov_b32 v{vRW+9}, 0
v_mov_b32 v{vRW+10}, 0
v_mov_b32 v{vRW+11}, 0
s_waitcnt lgkmcnt(0)""")
    srd(a, R_C, S_X, SZ_X)
    a(f"""buffer_load_dwordx4 {vr(vRW,4)}, v{vL16}, {RC}, s{sOff} offen
buffer_load_dwordx4 {vr(vRW+4,4)}, v{vL16}, {RC}, s{sOff} offen offset:1024
s_mov_b64 exec, 0xffff
buffer_load_dwordx4 {vr(vRW+8,4)}, v{vL16}, {RC}, s{sOff} offen offset:2048
s_mov_b64 exec, -1
s_load_dword s{S_TAG}, s[{S_WS}:{S_WS+1}], {EPOCH}""")
    a(f"""s_branch L_s0_stats
L_s0_nst:
s_cmp_lt_u32 s{S_TK}, 94
s_cbranch_scc1 L_s0_none""")
    vW = 16
    vC = 32
    vSc = 36
    vTm = 44
    vAc = 52
    a(f"""s_sub_u32 s{sP}, s{S_TK}, 94
s_mul_i32 s{sKs}, s{sP}, 57
s_lshr_b32 s{sKs}, s{sKs}, 9
s_mul_i32 s{sCg}, s{sKs}, 9
s_sub_u32 s{sCg}, s{sP}, s{sCg}
s_lshl_b32 s{sRow}, s{sKs}, 3
s_add_u32 s{sRow}, s{sRow}, s{S_W}
s_lshl_b32 s{sRow}, s{sRow}, 3
v_and_b32 v{vT0}, 15, v0
v_lshlrev_b32 v{vT0}, 4, v{vT0}
v_bfe_u32 v{vT1}, v0, 4, 1
v_mul_u32_u24 v{vT1}, 2304, v{vT1}
v_mul_u32_u24 v{vT2}, {4*13824}, v{vHF}
v_add3_u32 v{vT0}, v{vT0}, v{vT1}, v{vT2}
v_lshlrev_b32 v{vT1}, 3, v{vHF}
s_lshl_b32 s{T+5}, s{sRow}, 1
s_mul_i32 s{sOff}, s{sRow}, 13824
s_lshl_b32 s{sRow}, s{sCg}, 8
s_add_u32 s{sOff}, s{sOff}, s{sRow}
s_waitcnt lgkmcnt(0)""")
    srd(a, R_A, S_WMOD, SZ_WMOD)
    srd(a, R_C, S_C, SZ_C)
    a(f"""buffer_load_dwordx2 {vr(vC,2)}, v{vT1}, {RC}, s{T+5} offen
buffer_load_dwordx2 {vr(vC+2,2)}, v{vT1}, {RC}, s{T+5} offen offset:2304""")
    for n in range(4):
        a(f"buffer_load_dwordx4 {vr(vW+4*n,4)}, v{vT0}, {RA}, s{sOff} offen")
        if n < 3:
            a(f"s_add_u32 s{sOff}, s{sOff}, 13824")
    a(f"s_load_dword s{S_TAG}, s[{S_WS}:{S_WS+1}], {EPOCH}")
    srd(a, R_WS, S_WS, SZ_WS)
    lane_consts(a)
    b_setup(a)
    if EW:
        a("s_barrier")
        w_dma(a, EW)
    a(f"s_waitcnt vmcnt({4+EW})")
    for i in range(4):
        unpack(a, vSc+2*i, vSc+2*i+1, vC+i)
    silu8(a, vSc, vTm)
    for i in range(4):
        a(f"v_cvt_pk_bf16_f32 v{vC+i}, v{vSc+2*i}, v{vSc+2*i+1}")
    for i in range(4):
        unpack(a, vSc+2*i, vSc+2*i+1, vC+i)
    a(f"""s_lshl_b32 s{sOff}, s{S_W}, 11
s_add_u32 s{sOff}, s{sOff}, {L_MISC}
v_lshlrev_b32 v{vT2}, 5, v0
v_add_u32 v{vT2}, s{sOff}, v{vT2}
s_lshr_b32 s{sOff}, s{S_W}, 1
s_lshl_b32 s{sOff}, s{sOff}, 10
s_and_b32 s{sRow}, s{S_W}, 1
s_lshl_b32 s{sP}, s{sRow}, 8
s_add_u32 s{sOff}, s{sOff}, s{sP}
s_add_u32 s{sOff}, s{sOff}, {L_MISC}
v_lshlrev_b32 v{vT3}, 3, v{vTok}
v_lshl_add_u32 v{vT3}, v{vHF}, 9, v{vT3}
v_add_u32 v{vT3}, s{sOff}, v{vT3}
s_lshl_b32 s{sP}, s{sCg}, 1
s_add_u32 s{sP}, s{sP}, s{sRow}
s_lshl_b32 s{sP}, s{sP}, 1
s_lshr_b32 s{sOff}, s{S_W}, 1
s_add_u32 s{sP}, s{sP}, s{sOff}
s_mul_i32 s{sP}, s{sP}, 18
s_add_u32 s{sP}, s{sP}, s{sKs}
s_lshl_b32 s{sP}, s{sP}, 10
s_add_u32 s{sP}, s{sP}, {WS_PART}
v_and_b32 v{vT0}, 28, v0
v_lshlrev_b32 v{vT0}, 5, v{vT0}
v_lshl_add_u32 v{vT0}, v{vHF}, 6, v{vT0}
v_and_b32 v{vT1}, 3, v0
v_lshl_add_u32 v{vT0}, v{vT1}, 4, v{vT0}""")
    get_tag(a)
    E2 = int(OPT.get('ew2', 0)); E2AT = int(OPT.get('ew2at', 3))
    for n in range(4):
        a(f"s_waitcnt vmcnt({3-n+EW+(E2 if n > E2AT else 0)})")
        if n == E2AT and E2: w_dma(a, E2)
        if n == 3: stamp(a, 8)
        for i in range(4):
            unpack(a, vTm+2*i, vTm+2*i+1, vW+4*n+i)
        for b in range(2):
            for j in range(8):
                op = "v_mul_f32" if n == 0 else "v_fmac_f32"
                a(f"{op} v{vAc+8*b+j}, v{vTm+j}, v{vSc+4*b+n}")
    a("s_nop 1")
    for j in range(8):
        a(f"v_permlane32_swap_b32 v{vAc+j}, v{vAc+8+j}")
    for j in range(8):
        a(f"v_add_f32 v{vAc+j}, v{vAc+j}, v{vAc+8+j}")
    lsk = a.label("pubsk")
    a(f"""ds_write_b128 v{vT2}, {vr(vAc,4)}
ds_write_b128 v{vT2}, {vr(vAc+4,4)} offset:16
s_waitcnt lgkmcnt(0)
s_barrier
s_cmp_ge_u32 s{S_W}, 4
s_cbranch_scc1 {lsk}""")
    for w in range(8):
        a(f"ds_read_b64 {vr(vW+2*w,2)}, v{vT3} offset:{w*2048}")
    a(f"""v_mov_b32 v{vAc+1}, v{vTAG}
v_mov_b32 v{vAc+3}, v{vTAG}
s_waitcnt lgkmcnt(4)
v_add_f32 v{vW}, v{vW}, v{vW+2}
v_add_f32 v{vW+1}, v{vW+1}, v{vW+3}
v_add_f32 v{vW+4}, v{vW+4}, v{vW+6}
v_add_f32 v{vW+5}, v{vW+5}, v{vW+7}
s_waitcnt lgkmcnt(0)
v_add_f32 v{vW+8}, v{vW+8}, v{vW+10}
v_add_f32 v{vW+9}, v{vW+9}, v{vW+11}
v_add_f32 v{vW+12}, v{vW+12}, v{vW+14}
v_add_f32 v{vW+13}, v{vW+13}, v{vW+15}
v_add_f32 v{vW}, v{vW}, v{vW+4}
v_add_f32 v{vW+1}, v{vW+1}, v{vW+5}
v_add_f32 v{vW+8}, v{vW+8}, v{vW+12}
v_add_f32 v{vW+9}, v{vW+9}, v{vW+13}
v_add_f32 v{vAc}, v{vW}, v{vW+8}
v_add_f32 v{vAc+2}, v{vW+1}, v{vW+9}
buffer_store_dwordx4 {vr(vAc,4)}, v{vT0}, {WS}, s{sP} offen sc1
{lsk}:""")
    stamp(a, 9)
    if OPT.get('pack') == '1':
        a("s_waitcnt vmcnt(0)")
    if 'nopb' not in OPT:
        a("s_barrier")
    w_dma(a, 18-EW-E2)
    a("s_branch L_b")
    a("L_s0_stats:")
    srd(a, R_WS, S_WS, SZ_WS)
    lane_consts(a)
    a(f"""s_barrier
s_min_u32 s{T+12}, s2, 35
s_and_b32 s{T+13}, s{T+12}, 1
s_lshr_b32 s{T+12}, s{T+12}, 1
s_lshl_b32 s{T+13}, s{T+13}, 3
s_add_u32 s{T+13}, s{T+13}, s{S_W}
v_mul_u32_u24 v{vT0}, 2304, v{vR8}
v_and_b32 v{vT1}, 7, v0
v_xor_b32 v{vT1}, v{vT1}, v{vR8}
v_lshl_add_u32 v{vT0}, v{vT1}, 4, v{vT0}
s_mul_i32 s{T+13}, s{T+13}, {32*2304}
s_lshl_b32 s{T+12}, s{T+12}, 7
s_add_u32 s{T+13}, s{T+13}, s{T+12}
s_lshl_b32 m0, s{S_W}, 12""")
    lnx = a.label("nox"); ljx = a.label("jx")
    a(f"s_cmp_ge_u32 s2, 36\ns_cbranch_scc1 {lnx}")
    for q in range(4):
        a(f"buffer_load_dwordx4 v{vT0}, {RC}, s{T+13} offen lds")
        if q < 3:
            a(f"s_add_u32 s{T+13}, s{T+13}, {8*2304}\ns_add_u32 m0, m0, 1024\ns_nop 0")
    get_tag(a)
    a(f"s_waitcnt vmcnt(4)\ns_branch {ljx}\n{lnx}:")
    get_tag(a)
    a(f"s_waitcnt vmcnt(0)\n{ljx}:")
    stamp(a, 8)
    s1, s2_, q1, q2 = 32, 33, 34, 35
    a(f"s_mov_b32 s{T+12}, 0x3f803f80")
    for i in range(0, 12, 2):
        c = lambda r: "0" if i == 0 else f"v{r}"
        a(f"""v_dot2_f32_bf16 v{s1}, v{vRW+i}, s{T+12}, {c(s1)}
v_dot2_f32_bf16 v{q1}, v{vRW+i}, v{vRW+i}, {c(q1)}
v_dot2_f32_bf16 v{s2_}, v{vRW+i+1}, s{T+12}, {c(s2_)}
v_dot2_f32_bf16 v{q2}, v{vRW+i+1}, v{vRW+i+1}, {c(q2)}""")
    a(f"""s_nop 2
v_add_f32 v{s1}, v{s1}, v{s2_}
v_add_f32 v{q1}, v{q1}, v{q2}""")
    for m in ("quad_perm:[1,0,3,2] row_mask:0xf", "quad_perm:[2,3,0,1] row_mask:0xf", "row_half_mirror row_mask:0xf", "row_mirror row_mask:0xf", "row_bcast:15 row_mask:0xa", "row_bcast:31 row_mask:0xc"):
        a(f"s_nop 0\nv_add_f32_dpp v{s1}, v{s1}, v{s1} {m} bank_mask:0xf\nv_add_f32_dpp v{q1}, v{q1}, v{q1} {m} bank_mask:0xf")
    g = 36
    a(f"""v_mul_f32 v{g}, 0x3a638e39, v{s1}
v_mul_f32 v{g+2}, 0x3a638e39, v{q1}
v_fma_f32 v{g+2}, -v{g}, v{g}, v{g+2}
v_max_f32 v{g+2}, 0, v{g+2}""")
    round_bf16(a, g+2)
    a(f"v_add_f32 v{g+2}, 0x3727c5ac, v{g+2}")
    round_bf16(a, g+2)
    a(f"v_sqrt_f32 v{g+2}, v{g+2}")
    round_bf16(a, g)
    round_bf16(a, g+2)
    lsk = a.label("stsk")
    a(f"""v_rcp_f32 v{g+2}, v{g+2}
v_mov_b32 v{g+1}, v{vTAG}
v_mov_b32 v{g+3}, v{vTAG}
s_lshl_b32 s{T+12}, s{S_W}, 4
s_add_u32 s{T+12}, s{T+12}, {L_STC}
v_mov_b32 v{vT0}, s{T+12}
s_mov_b32 exec_lo, 0
s_brev_b32 exec_hi, 1
ds_write_b128 v{vT0}, {vr(g,4)}
s_mov_b64 exec, -1
s_lshl_b32 s{T+12}, s{S_TK}, 7
s_add_u32 s{T+12}, s{T+12}, {F_STAT}
v_add_u32 v{vT0}, {L_STC}, v{vL16}
s_waitcnt lgkmcnt(0)
s_barrier
s_cmp_lg_u32 s{S_W}, 0
s_cbranch_scc1 {lsk}
s_mov_b64 exec, 0xff
ds_read_b128 {vr(g,4)}, v{vT0}
s_waitcnt lgkmcnt(0)
buffer_store_dwordx4 {vr(g,4)}, v{vL16}, {WS}, s{T+12} offen sc1
s_mov_b64 exec, -1
{lsk}:""")
    stamp(a, 9)
    a(f"s_cmp_lt_u32 s{S_SLOT}, {NO}\ns_cbranch_scc1 L_owner")
    if 'nopb' not in OPT:
        a("s_barrier")
    a("s_branch L_s0_w")
    a("L_s0_none:")
    a(f"s_waitcnt lgkmcnt(0)\ns_load_dword s{S_TAG}, s[{S_WS}:{S_WS+1}], {EPOCH}")
    srd(a, R_WS, S_WS, SZ_WS)
    lane_consts(a)
    get_tag(a)
    if 'cw' in OPT:
        srd(a, R_C, S_C, SZ_C)
        a(f"buffer_load_dword v{vT1}, v{vL16}, {RC}, 0 offen\ns_waitcnt vmcnt(0)")
    a("L_s0_w:")
    b_setup(a)
    w_dma(a, 18)

VOX = 96

S_UCT, S_UTB = 9, 10
vDU = 14
KE = int(OPT.get('ke', 12))
def wo_dma(a, n0, n1):
    a(f"s_add_u32 s{T+10}, s{S_W}, {4*n0-4}")
    for n in range(n0, n1):
        a(f"""s_lshl_b32 m0, s{T+10}, 10
s_mul_i32 s{T+11}, s{T+10}, {8*2304}
buffer_load_dwordx4 v{vDU}, {RB}, s{T+11} offen lds""")
        if n < n1-1:
            a(f"s_add_u32 s{T+10}, s{T+10}, 4")

def gemm_loop(a, nsteps, LA, RING, vAcc, vWF, vH, vA0, vA1, vaddr, sH, lds_first, w_is_a, pre=None, rot=None, bar_at=None):
    WA = int(OPT.get('wa', 2))
    state = dict(issued=0)
    if rot:
        sR, sHs, sHe, sLo, sZ, sLe, vC0, vC1 = rot
        a(f"""s_mov_b32 s{sHs}, s{sH}
s_add_u32 s{sHe}, s{sH}, {nsteps*1024}
s_lshl_b32 s{sLo}, s{sR}, 12
s_add_u32 s{sH}, s{sH}, s{sLo}
s_lshl_b32 s{sLo}, s{sR}, 13
s_mov_b32 s{sZ}, 0
s_mov_b32 s{sLe}, {nsteps*2048}""")
    def hload():
        s = state['issued']
        a(f"buffer_load_dwordx4 {vr(vH+4*(s % RING),4)}, v{vaddr}, {WS}, s{sH} offen offset:{(s&3)*1024} sc1")
        if (s & 3) == 3 and s < nsteps-1:
            if rot: wrap_add(a, sH, 4096, sHe, sHs)
            else: a(f"s_add_u32 s{sH}, s{sH}, 4096")
        state['issued'] += 1
    def wread(s):
        if rot:
            if (s & 3) == 0:
                a(f"v_add_u32 v{vC0}, s{sLo}, v{vA0}\nv_add_u32 v{vC1}, s{sLo}, v{vA1}")
                wrap_add(a, sLo, 8192, sLe, sZ)
            trreads(a, vWF + 8*(s & 3), vC0, vC1, (s & 3)*2048)
            return
        if s and (s & 31) == 0:
            a(f"v_add_u32 v{vA0}, 0x10000, v{vA0}\nv_add_u32 v{vA1}, 0x10000, v{vA1}")
        trreads(a, vWF + 8*(s & 3), vA0, vA1, (s & 31)*2048)
    if lds_first:
        for s in range(WA): wread(s)
    for s in range(LA): hload()
    if pre: pre()
    if not lds_first:
        for s in range(WA): wread(s)
    for s in range(nsteps):
        lg = 4*min(WA-1, nsteps-1 - s)
        a(f"s_waitcnt vmcnt({state['issued'] - s - 1}) lgkmcnt({lg})")
        if s == 0 and lds_first: stamp(a, 4)
        h = vH+4*(s % RING); w0 = vWF+8*(s & 3)
        mfma(a, vAcc, *((w0, h) if w_is_a else (h, w0)), s == 0)
        if s + WA < nsteps:
            wread(s + WA)
        mfma(a, vAcc+16, *((w0+4, h) if w_is_a else (h, w0+4)), s == 0)
        if state['issued'] < nsteps:
            hload()
        if bar_at is not None and s == bar_at:
            a("s_barrier")

SZ = int(OPT['sz']) if 'sz' in OPT else None
UM = int(OPT.get('umap', 2)); UML = UM.bit_length()-1
vDX, vDXO = 236, 235
def d_tile(a):
    sQt, sCt, sCb, sKh, sOff, sXo, sJ, sU, sB, sCol = T, T+1, T+2, T+3, T+4, T+5, T+6, T+7, T+8, T+9
    a(f"""s_and_b32 s{sOff}, s{S_G}, 3
s_mul_i32 s{sOff}, s{sOff}, 18
s_min_u32 s{sJ}, s{S_SLOT}, 17
s_add_u32 s{sOff}, s{sOff}, s{sJ}
s_lshr_b32 s{sCt}, s{sOff}, 3
s_and_b32 s{sJ}, s{sOff}, 7
s_lshr_b32 s{sB}, s{S_G}, 2
s_lshl_b32 s{sQt}, s{sB}, 3
s_add_u32 s{sQt}, s{sQt}, s{sJ}
s_and_b32 s{sCb}, s{S_W}, 3
s_lshr_b32 s{sKh}, s{S_W}, 2
s_lshl_b32 s{sCol}, s{sCt}, 7
s_lshl_b32 s{sXo}, s{sQt}, 3
s_add_u32 s{sXo}, s{sXo}, s{S_W}
s_mul_i32 s{sXo}, s{sXo}, {4*2304}
s_lshl_b32 s{sOff}, s{sCol}, 1
s_add_u32 s{sXo}, s{sXo}, s{sOff}
v_lshrrev_b32 v{vDXO}, 4, v0
v_mul_u32_u24 v{vDXO}, 2304, v{vDXO}
v_and_b32 v{vT3}, 15, v0
v_lshl_add_u32 v{vDXO}, v{vT3}, 4, v{vDXO}""")

def phase_bc(a):
    sTb, sOff, sH, sF = T+1, T+4, T+5, T+6
    vA0, vA1 = V0+1, V0+2
    vAcc = 20
    vWF = 52
    vH = 84
    a("L_b:")
    stamp(a, 1)
    srd(a, R_B, S_WO, SZ_WO)
    srd(a, R_A, S_X, SZ_X)
    a(f"s_sub_u32 s{S_SLOT}, s{S_SLOT}, {NO}")
    d_tile(a)
    XL = OPT.get('xl', '1') == '1'
    xload = lambda: a(f"buffer_load_dwordx4 {vr(vDX,4)}, v{vDXO}, {RA}, s14 offen")
    a(f"s_mov_b32 s14, s{T+5}")
    if not XL:
        xload()
    a(f"""s_and_b32 s{T+14}, s{S_G}, {UM-1}
s_mul_i32 s{T+14}, s{T+14}, 18
s_add_u32 s{T+14}, s{T+14}, s{S_SLOT}
s_lshr_b32 s{S_UCT}, s{T+14}, {UML}
s_and_b32 s{T+14}, s{T+14}, {UM-1}
s_lshr_b32 s{S_UTB}, s{S_G}, {UML}
s_lshl_b32 s{S_UTB}, s{S_UTB}, {UML}
s_add_u32 s{S_UTB}, s{S_UTB}, s{T+14}
s_lshl_b32 s{S_UTB}, s{S_UTB}, 1
s_and_b32 s{T+14}, s{S_W}, 1
s_add_u32 s{S_UTB}, s{S_UTB}, s{T+14}
v_lshlrev_b32 v{vDU}, 4, v{vCH}
v_mul_u32_u24 v{vT0}, 2304, v{vR8}
s_lshl_b32 s{T+14}, s{S_UCT}, 7
v_add3_u32 v{vDU}, v{vDU}, v{vT0}, s{T+14}
s_lshl_b32 s{sTb}, s{S_BRT}, 2
s_and_b32 s{sOff}, s{S_W}, 3
s_add_u32 s{sTb}, s{sTb}, s{sOff}
s_mul_i32 s{sH}, s{sTb}, {72*1024}
s_add_u32 s{sH}, s{sH}, {WS_H}
v_mov_b32 v{vA0}, v{vB0}
v_mov_b32 v{vA1}, v{vB1}
v_min_u32 v{vT0}, 17, v0
v_lshlrev_b32 v{vT0}, 7, v{vT0}
s_lshr_b32 s{sOff}, s{S_BRT}, 1
s_mul_i32 s{sOff}, s{sOff}, {18*128}
s_add_u32 s{sOff}, s{sOff}, {F_H}
s_mul_i32 s{sF}, s{sTb}, 54
s_add_u32 s{sF}, s{sF}, s{S_BCT}
s_lshl_b32 s{sF}, s{sF}, 7
s_add_u32 s{sF}, s{sF}, {F_QKV}
s_waitcnt vmcnt(0)""")
    a("s_barrier")
    stamp(a, 2)
    a(f"s_cmp_ge_u32 s{S_W}, 4\ns_cbranch_scc1 L_ld")
    HPWG = OPT.get('hp', 'w') == 'wg'
    G1 = int(OPT.get('g1', 8))
    if G1:
        assert SZ is None and not HPWG
        a(f"v_min_u32 v{vT0}, {(G1-1)*128}, v{vT0}")
    if HPWG:
        poll(a, vT0, f"s{sOff}", vT1)
    else:
        wpoll(a, vT0, f"s{sOff}", vT1)
    stamp(a, 3)
    LA = int(OPT['la'])
    BR = int(OPT.get('brot', 0))
    if BR:
        a(f"s_mul_i32 s{T+8}, s{S_G}, {BR}")
    gemm_loop(a, 72, LA, LA+4, vAcc, vWF, vH, vA0, vA1, vL16, sH, True, True, bar_at=(4*G1 - int(OPT['la']) - 1 if G1 else SZ),
              rot=(T+8, T+9, T+10, T+11, T+12, T+13, V0, V0+3) if BR else None)
    stamp(a, 5)
    a(f"""s_mul_i32 s{sH}, s{sTb}, {216*1024}
s_lshl_b32 s{sOff}, s{S_BCT}, 12
s_add_u32 s{sH}, s{sH}, s{sOff}
s_add_u32 s{sH}, s{sH}, {WS_QKV}
s_nop 7""")
    for u in range(4):
        if u == 2:
            a("s_nop 1")
        for r in range(4*u, 4*u+4):
            a(f"v_cvt_pk_bf16_f32 v{vWF+r}, v{vAcc+2*r}, v{vAcc+2*r+1}")
        a(f"buffer_store_dwordx4 {vr(vWF+4*u,4)}, v{vL16}, {WS}, s{sH} offen offset:{1024*u} sc1")
    a("s_barrier")
    stamp(a, 6)
    sKh = T+2
    a(f"""s_lshr_b32 s{sKh}, s{S_W}, 1
s_mul_i32 s{sH}, s{S_UTB}, {216*1024}
s_mul_i32 s{sOff}, s{sKh}, {36*1024}
s_add_u32 s{sH}, s{sH}, s{sOff}
s_add_u32 s{sH}, s{sH}, {WS_QKV + 144*1024}
s_mul_i32 s{sOff}, s{sKh}, {576*128}
v_add_u32 v{vA0}, s{sOff}, v{vB0}
v_add_u32 v{vA1}, s{sOff}, v{vB1}
v_min_u32 v{vT0}, 8, v0
v_lshlrev_b32 v{vT0}, 7, v{vT0}
s_mul_i32 s{T+7}, s{S_UTB}, {54*128}
s_mul_i32 s{sOff}, s{sKh}, {9*128}
s_add_u32 s{T+7}, s{T+7}, s{sOff}
s_add_u32 s{T+7}, s{T+7}, {F_QKV + 36*128}
s_waitcnt vmcnt(0)""")
    raw_flag(a, f"s{sF}")
    a("s_barrier")
    stamp(a, 7)
    a(f"s_cmp_ge_u32 s{S_SLOT}, 18\ns_cbranch_scc1 L_c_notu")
    if XL:
        xload()
    if 'udelay' in OPT:
        a(f"s_sleep {OPT['udelay']}")
    UROT = int(OPT.get('urot', 0))
    if UROT:
        a(f"s_mul_i32 s{T+8}, s{S_G if 'urg' in OPT else S_UCT}, {UROT}")
        mod9(a, T+8, T+8, T+9)
    wpoll(a, vT0, f"s{T+7}", vT1)
    stamp(a, 12)
    LA = int(OPT.get('lau', 12))
    gemm_loop(a, 36, LA, min(36, LA+4), vAcc, vWF, vH, vA0, vA1, vP16, sH, False, False, pre=lambda: (a("s_barrier"), stamp(a, 11)),
              rot=(T+8, T+9, T+10, T+11, T+12, T+13, V0, V0+3) if UROT else None)
    stamp(a, 13)
    lk1 = a.label("kh1"); lj = a.label("j")
    a(f"""s_lshl_b32 s{sOff}, s{S_W}, 12
s_add_u32 s{sOff}, s{sOff}, {L_MISC}
v_add_u32 v{vT0}, s{sOff}, v{vL16}
v_xor_b32 v{vT1}, {2*4096}, v{vT0}
s_lshr_b32 s{sH}, s{S_UTB}, 3
s_mul_i32 s{sF}, s{sH}, 18
s_add_u32 s{sF}, s{sF}, s{S_UCT}
s_lshl_b32 s{sH}, s{sF}, 1
s_add_u32 s{sH}, s{sH}, s{sKh}
s_lshl_b32 s{sH}, s{sH}, 3
s_and_b32 s{sOff}, s{S_UTB}, 7
s_add_u32 s{sH}, s{sH}, s{sOff}
s_lshl_b32 s{sF}, s{sH}, 7
s_add_u32 s{sF}, s{sF}, {F_U}
s_lshl_b32 s{sH}, s{sH}, 11
s_add_u32 s{sH}, s{sH}, {WS_U}
s_cmp_lg_u32 s{sKh}, 0
s_cbranch_scc1 {lk1}""")
    for q in range(4):
        a(f"ds_write_b128 v{vT0}, {vr(vAcc+16+4*q,4)} offset:{q*1024}")
    a(f"s_branch {lj}\n{lk1}:")
    for q in range(4):
        a(f"ds_write_b128 v{vT0}, {vr(vAcc+4*q,4)} offset:{q*1024}")
    for r in range(16):
        a(f"v_mov_b32 v{vAcc+r}, v{vAcc+16+r}")
    a(f"{lj}:\ns_waitcnt lgkmcnt(0)\ns_barrier")
    for q in range(4):
        a(f"ds_read_b128 {vr(vWF+4*q,4)}, v{vT1} offset:{q*1024}")
    for u in range(2):
        a(f"s_waitcnt lgkmcnt({2-2*u})")
        for r in range(8*u, 8*u+8):
            a(f"v_add_f32 v{vAcc+r}, v{vAcc+r}, v{vWF+r}")
        for r in range(4*u, 4*u+4):
            a(f"v_cvt_pk_bf16_f32 v{vWF+16+r}, v{vAcc+2*r}, v{vAcc+2*r+1}")
        a(f"buffer_store_dwordx4 {vr(vWF+16+4*u,4)}, v{vL16}, {WS}, s{sH} offen offset:{1024*u} sc1")
    if OPT.get('fb', '1') == '1':
        a("s_waitcnt vmcnt(0)")
        raw_flag(a, f"s{sF}")
        a("s_barrier")
    else:
        a("s_barrier\ns_waitcnt vmcnt(0)")
        raw_flag(a, f"s{sF}")
    a("s_branch L_c_done")
    lnu = a.label("ldnu")
    vWo = 20
    NE = int(OPT.get('ne', 18))
    a("L_ld:")
    if 'tlb' in OPT:
        sh = int(OPT['tlb'])
        lt = a.label("tlb")
        srd(a, R_A, S_OUT, SZ_X)
        srd(a, R_C, S_WS, 0x700000)
        a(f"s_cmp_lg_u32 s{S_W}, 7\ns_cbranch_scc1 {lt}\nv_lshlrev_b32 v{vT2}, {sh}, v0\nv_add_u32 v{vT2}, {(1<<sh)-128}, v{vT2}")
        a(f"buffer_load_dword v236, v{vT2}, {RA}, 0 offen")
        for off in range(0, 0x700000, 64 << sh):
            a(f"v_add_u32 v{vT1}, {off}, v{vT2}\nbuffer_load_dword v237, v{vT1}, {RC}, 0 offen sc1")
        a(f"{lt}:")
    NA = int(OPT.get('na', 0))
    a(f"""s_cmp_ge_u32 s{S_SLOT}, 18
s_cbranch_scc1 {lnu}
s_sub_u32 s{T+10}, s{S_W}, 4
s_lshl_b32 s{T+11}, s{T+10}, 10
v_add_u32 v{vT0}, s{T+11}, v{vL16}
s_bfe_u32 s{T+12}, s{S_UTB}, 0x10001
s_mul_i32 s{T+12}, s{T+12}, 72
s_bfe_u32 s{T+11}, s{S_UTB}, 0x10002
s_mul_i32 s{T+11}, s{T+11}, {36 if UM > 2 else 0}
s_add_u32 s{T+12}, s{T+12}, s{T+11}
s_add_u32 s{T+10}, s{T+10}, s{T+12}
s_lshl_b32 s{T+12}, s{T+12}, 10""")
    def nxt(n):
        if n < 35:
            a(f"s_add_u32 s{T+10}, s{T+10}, 4")
            if n % 9 == 8:
                a(f"""s_sub_u32 s{T+11}, s{T+10}, 144
s_cmp_ge_u32 s{T+10}, 144
s_cselect_b32 s{T+10}, s{T+11}, s{T+10}""")
    for n in range(NE):
        if SZ is not None and n == NA:
            a("s_barrier")
        a(f"""s_mul_i32 s{T+11}, s{T+10}, {8*2304}
buffer_load_dwordx4 {vr(vWo+4*n,4)}, v{vDU}, {RB}, s{T+11} offen
{THRO}""")
        nxt(n)
    stamp(a, 4)
    def hall():
        l7 = a.label("w7")
        a(f"""s_cmp_lg_u32 s{S_W}, 7
s_cbranch_scc1 {l7}
v_min_u32 v{vT2}, 17, v0
v_lshlrev_b32 v{vT2}, 7, v{vT2}""")
        wpoll(a, vT2, f"s{sOff}", vT1)
        a(f"{l7}:\ns_barrier")
    if G1:
        hall()
    if HPWG:
        a("s_barrier")
    a("s_barrier")
    stamp(a, 5)
    WS_ = min(NE, int(OPT.get('wsplit', 12)))
    def wr(n):
        if n % 9 == 0:
            a(f"v_add_u32 v{vT1}, s{T+12}, v{vT0}")
            a(f"""s_add_u32 s{T+12}, s{T+12}, {36*1024}
s_cmp_ge_u32 s{T+12}, {144*1024}
s_cselect_b32 s{T+12}, 0, s{T+12}""")
        a(f"ds_write_b128 v{vT1}, {vr(vWo+4*n,4)} offset:{(n % 9)*4096}")
    KD = min(36-NE, int(OPT.get('kd', 0)))
    def dm(n):
        a(f"""s_lshl_b32 m0, s{T+10}, 10
s_mul_i32 s{T+11}, s{T+10}, {8*2304}
buffer_load_dwordx4 v{vDU}, {RB}, s{T+11} offen lds""")
        nxt(n)
    a("s_waitcnt vmcnt(0)")
    for n in range(NE, NE+KD): dm(n)
    for n in range(WS_): wr(n)
    a("s_barrier")
    if 'dfirst' in OPT:
        a("s_nop 15")
        for n in range(NE+KD, 36): dm(n)
        for n in range(WS_, NE): wr(n)
    else:
        for n in range(WS_, NE): wr(n)
        for n in range(NE+KD, 36): dm(n)
    a(f"""s_waitcnt vmcnt(0) lgkmcnt(0)""")
    stamp(a, 11)
    lg4 = a.label("g4")
    a("s_barrier")
    if XL:
        xload()
        a("s_waitcnt vmcnt(0)")
    a(f"""s_cmp_lg_u32 s{S_W}, 4
s_cbranch_scc1 {lg4}""")
    d_tile(a)
    a(f"""s_lshr_b32 s{T+10}, s{T+9}, 6
s_lshl_b32 s{T+10}, s{T+10}, 7
s_add_u32 s{T+10}, s{T+10}, {F_G}
v_and_b32 v{vT0}, 1, v0
v_lshlrev_b32 v{vT0}, 7, v{vT0}
s_mul_i32 s{T+11}, s{T+8}, 4608
s_lshl_b32 s{T+12}, s{T+9}, 2
s_add_u32 s{T+11}, s{T+11}, s{T+12}
s_add_u32 s{T+11}, s{T+11}, {WS_GATE}
v_lshlrev_b32 v{vT2}, 3, v0""")
    wpoll(a, vT0, f"s{T+10}", vT1)
    a(f"""buffer_load_dwordx2 v[20:21], v{vT2}, {WS}, s{T+11} offen sc1
s_waitcnt vmcnt(0)
s_barrier
ds_write_b64 v{vT2}, v[20:21] offset:{L_GATE}
s_waitcnt lgkmcnt(0)
s_barrier
s_branch L_c_done
{lg4}:
s_barrier
s_barrier
s_branch L_c_done
{lnu}:""")
    if G1:
        hall()
    a(f"""s_barrier
s_barrier""")
    if SZ is not None:
        a("s_barrier")
    if HPWG:
        a("s_barrier")
    a("L_c_notu:")
    sQb, sKb, sKq, sJ, sK, sQ, sTy = T, T+1, T+2, T+3, T+5, T+6, T+9
    sM = T+10
    sK1 = T+12
    vS = 56
    RING = 15
    SW = OPT.get('sw', '1') == '1'
    SPW = f"""s_mul_i32 s{sOff}, s{sKq}, 18
s_add_u32 s{T+13}, s{sOff}, 17
s_lshr_b32 s{sOff}, s{sOff}, 2
s_lshr_b32 s{T+13}, s{T+13}, 2
v_add_u32 v{vT0}, s{sOff}, v{vTok}
v_min_u32 v{vT0}, s{T+13}, v{vT0}""" if SW else f"v_min_u32 v{vT0}, 17, v{vTok}"
    a(f"""s_sub_u32 s{sJ}, s{S_SLOT}, 18
s_lshr_b32 s{sTy}, s{sJ}, 2
s_and_b32 s{sKq}, s{S_W}, 3
s_and_b32 s{sQb}, s{S_G}, 1
s_lshl_b32 s{sQb}, s{sQb}, 2
s_and_b32 s{sOff}, s{sJ}, 3
s_add_u32 s{sQb}, s{sQb}, s{sOff}
s_and_b32 s{sKb}, s{S_G}, 2
s_lshl_b32 s{sKb}, s{sKb}, 1
s_lshr_b32 s{sOff}, s{S_G}, 2
s_lshl_b32 s{sOff}, s{sOff}, 3
s_add_u32 s{sQb}, s{sQb}, s{sOff}
s_add_u32 s{sKb}, s{sKb}, s{sOff}
s_min_u32 s{sK1}, s{sTy}, 1
s_add_u32 s{sK1}, s{sK1}, s{sTy}
s_mul_i32 s{sK}, s{sKb}, {216*1024}
s_mul_i32 s{sQ}, s{sQb}, {216*1024}
s_mul_i32 s{sOff}, s{sKq}, {18*1024}
s_add_u32 s{sK}, s{sK}, s{sOff}
s_add_u32 s{sQ}, s{sQ}, s{sOff}
s_add_u32 s{sK}, s{sK}, {WS_QKV + 72*1024}
s_add_u32 s{sQ}, s{sQ}, {WS_QKV}
s_mul_i32 s{sOff}, s{sKq}, 18
s_add_u32 s{T+13}, s{sOff}, 17
s_lshr_b32 s{sOff}, s{sOff}, 2
s_lshr_b32 s{T+13}, s{T+13}, 2
v_and_b32 v{vT0}, 7, v0
v_add_u32 v{vT0}, s{sOff}, v{vT0}
v_min_u32 v{vT0}, s{T+13}, v{vT0}
s_mul_i32 s{sOff}, s{sQb}, 54
v_mov_b32 v{vT1}, s{sOff}
s_add_u32 s{sOff}, s{sKb}, s{sK1}
s_mul_i32 s{sOff}, s{sOff}, 54
s_add_u32 s{sOff}, s{sOff}, 18
v_mov_b32 v{vT2}, s{sOff}
v_cmp_lt_u32 vcc, 7, v0
s_mul_i32 s{sOff}, s{sKb}, 54
s_add_u32 s{sOff}, s{sOff}, {54+18}
v_cndmask_b32 v{vT1}, v{vT1}, v{vT2}, vcc
v_mov_b32 v{vT2}, s{sOff}
v_cmp_lt_u32 vcc, 15, v0
s_nop 1
v_cndmask_b32 v{vT1}, v{vT1}, v{vT2}, vcc
v_add_u32 v{vT0}, v{vT0}, v{vT1}
v_lshlrev_b32 v{vT0}, 7, v{vT0}
v_and_b32 v{vT2}, 0x2ff, v{vP16}
v_and_b32 v{vT1}, 16, v0
v_lshl_add_u32 v{vT2}, v{vT1}, 6, v{vT2}
s_and_b32 s{sOff}, s{sTy}, 1
s_lshl_b32 s{sOff}, s{sOff}, 8
s_add_u32 s{sOff}, s{sOff}, {216*1024}
v_add_u32 v{vT2}, s{sOff}, v{vT2}
s_mul_i32 s{sOff}, s{sK1}, {216*1024}
v_add_u32 v{V0}, s{sOff}, v{vP16}
s_mov_b32 s{sOff}, {F_QKV}""")
    lsi = a.label("sidle")
    if not SW:
        poll(a, vT0, f"s{sOff}", vT1)
    a(f"s_cmp_ge_u32 s{S_W}, 4\ns_cbranch_scc1 {lsi}")
    if SW:
        wpoll(a, vT0, f"s{sOff}", vT1)
    stamp(a, 12)
    LA = int(OPT.get('las', 4))
    vS = 72; RING = 8
    vAc3 = 56
    assert LA < RING
    def sload(p):
        r = vS + 20*(p % RING)
        o = (p & 1)*2048
        a(f"""buffer_load_dwordx4 {vr(r,4)}, v{vL16}, {WS}, s{sQ} offen offset:{o} sc1
buffer_load_dwordx4 {vr(r+4,4)}, v{V0}, {WS}, s{sK} offen offset:{o} sc1
buffer_load_dwordx4 {vr(r+8,4)}, v{vT2}, {WS}, s{sK} offen offset:{o} sc1
buffer_load_dwordx4 {vr(r+12,4)}, v{vL16}, {WS}, s{sQ} offen offset:{o+1024} sc1
buffer_load_dwordx4 {vr(r+16,4)}, v{V0}, {WS}, s{sK} offen offset:{o+1024} sc1""")
        if p & 1:
            a(f"s_add_u32 s{sK}, s{sK}, 4096\ns_add_u32 s{sQ}, s{sQ}, 4096")
    for p in range(LA):
        sload(p)
    for p in range(9):
        y = 5*(min(9, p + LA) - p - 1)
        r = vS + 20*(p % RING)
        a(f"s_waitcnt vmcnt({y+3})")
        mfma(a, vAcc, r+4, r, p == 0)
        a(f"s_waitcnt vmcnt({y+2})")
        mfma(a, vAcc+16, r+8, r, p == 0)
        a(f"s_waitcnt vmcnt({y+1})")
        mfma(a, vAc3, r+8, r+12, p == 0)
        a(f"s_waitcnt vmcnt({y})")
        mfma(a, vAcc, r+16, r+12)
        if p + LA < 9:
            sload(p + LA)
    stamp(a, 13)
    QS, HS, PSZ = 1056, 528, 8448
    a(f"""s_mul_i32 s{sOff}, s{S_W}, {PSZ}
v_lshl_add_u32 v{vT0}, v{vHF}, 4, v{vL16}
v_add_u32 v{vT0}, s{sOff}, v{vT0}
s_nop 7""")
    for r in range(8):
        a(f"v_add_f32 v{vAcc+16+r}, v{vAcc+16+r}, v{vAc3+8+r}")
    for q in (4, 5, 0, 1, 2, 3):
        a(f"ds_write_b128 v{vT0}, {vr(vAcc+4*q,4)} offset:{q*QS}")
    a(f"""{lsi}:
v_bfe_u32 v{vT1}, v0, 2, 2
v_and_b32 v{vT2}, 1, v0
v_lshl_add_u32 v{vT1}, v{vT1}, 1, v{vT2}
v_mul_u32_u24 v{vT1}, {QS}, v{vT1}
v_bfe_u32 v{vT2}, v0, 1, 1
v_mul_u32_u24 v{vT2}, {HS}, v{vT2}
v_lshrrev_b32 v{vT0}, 4, v0
s_lshl_b32 s{sOff}, s{S_W}, 2
v_add_u32 v{vT0}, s{sOff}, v{vT0}
v_lshl_add_u32 v{vT1}, v{vT0}, 4, v{vT1}
v_add_u32 v{vT1}, v{vT1}, v{vT2}
v_and_b32 v{vT2}, 7, v0
v_lshlrev_b32 v{vT2}, 4, v{vT2}
v_lshl_add_u32 v{vT2}, v{vT0}, 10, v{vT2}
s_lshl_b32 s{sOff}, s{sK1}, 7
v_mov_b32 v{vT0}, s{sOff}
v_and_b32 v{vT3}, 8, v0
v_cmp_ne_u32 vcc, 0, v{vT3}
s_and_b32 s{sOff}, s{sTy}, 1
s_lshl_b32 s{sOff}, s{sOff}, 6
s_add_u32 s{sOff}, s{sOff}, 128
v_mov_b32 v{vT3}, s{sOff}
s_lshl_b32 s{sJ}, s{sQb}, 15
v_cndmask_b32 v{vT0}, v{vT0}, v{vT3}, vcc
v_add_u32 v{vT2}, v{vT2}, v{vT0}
s_and_b32 s{sOff}, s{sKb}, 7
s_lshl_b32 s{sOff}, s{sOff}, 7
s_add_u32 s{sJ}, s{sJ}, s{sOff}
s_add_u32 s{sJ}, s{sJ}, {WS_L}
s_lshl_b32 s{sK}, s{sQb}, 3
s_add_u32 s{sK}, s{sK}, s{S_W}
s_mul_i32 s{sK}, s{sK}, 6
s_bfe_u32 s{sOff}, s{sKb}, 0x10002
s_mul_i32 s{sOff}, s{sOff}, 3
s_add_u32 s{sK}, s{sK}, s{sOff}
s_add_u32 s{sK}, s{sK}, s{sTy}
s_lshl_b32 s{sK}, s{sK}, 7
s_add_u32 s{sK}, s{sK}, {F_LH}
s_mov_b32 s{sM}, 0x0fff0fff
s_cmp_eq_u32 s{sTy}, 2
s_cselect_b32 s{sM}, 0x00ff00ff, s{sM}
s_mov_b32 s{sM+1}, s{sM}
v_mov_b32 v53, v{vTAG}
v_mov_b32 v55, v{vTAG}
s_waitcnt lgkmcnt(0)
s_barrier""")
    for j in range(4):
        a(f"ds_read_b128 {vr(vAcc+4*j,4)}, v{vT1} offset:{j*PSZ}")
    a("s_waitcnt lgkmcnt(2)")
    for r in range(4):
        a(f"v_add_f32 v{vAcc+r}, v{vAcc+r}, v{vAcc+4+r}")
    a("s_waitcnt lgkmcnt(0)")
    for r in range(4):
        a(f"v_add_f32 v{vAcc+8+r}, v{vAcc+8+r}, v{vAcc+12+r}")
    for r in range(4):
        a(f"v_add_f32 v{vAcc+r}, v{vAcc+r}, v{vAcc+8+r}")
    sc = struct.unpack('<I', struct.pack('<f', D ** -0.5))[0]
    for r in range(2):
        a(f"v_cvt_pk_bf16_f32 v{52+2*r}, v{vAcc+2*r}, v{vAcc+2*r+1}")
    for r in range(2):
        unpack(a, vAcc+2*r, vAcc+2*r+1, 52+2*r)
    for r in range(4):
        a(f"v_mul_f32 v{vAcc+r}, {hex(sc)}, v{vAcc+r}")
    for r in range(2):
        a(f"v_cvt_pk_bf16_f32 v{52+2*r}, v{vAcc+2*r}, v{vAcc+2*r+1}")
    a(f"s_mov_b64 exec, s[{sM}:{sM+1}]\nbuffer_store_dwordx4 v[52:55], v{vT2}, {WS}, s{sJ} offen sc1\ns_mov_b64 exec, -1")
    raw_flag(a, f"s{sK}")
    a("L_c_done:")
    stamp(a, 14)

def phase_d(a):
    sQt, sCt, sCb, sKh, sOff, sXo, sJ, sU, sB, sCol = T, T+1, T+2, T+3, T+4, T+5, T+6, T+7, T+8, T+9
    vXo, vMx, vS, vLa, vPa, vLw = vDXO, V0+1, V0+2, V0+3, V0+4, V0+5
    vLd = 24
    vX = vDX
    vG = 44
    vF = 56
    vR = 72
    vAcc = 80
    vU = 96
    vP = 128
    PS = 1056
    L_P, L_EX = 40960, 65536
    srd(a, R_B, S_OUT, SZ_X)
    a(f"s_cmp_ge_u32 s{S_SLOT}, 18\ns_cbranch_scc1 L_fin")
    d_tile(a)
    a(f"""s_mul_i32 s{sU}, s{sB}, 36
s_lshl_b32 s{sOff}, s{sCt}, 2
s_add_u32 s{sU}, s{sU}, s{sOff}
s_add_u32 s{sU}, s{sU}, s{sCb}
s_lshl_b32 s{sU}, s{sU}, 4
s_lshl_b32 s{sOff}, s{sKh}, 3
s_add_u32 s{sU}, s{sU}, s{sOff}
s_lshl_b32 s{T+10}, s{sU}, 6
s_add_u32 s{T+10}, s{T+10}, {F_U}
s_lshl_b32 s{sU}, s{sU}, 10
s_add_u32 s{sU}, s{sU}, {WS_U}
v_and_b32 v{vT0}, 3, v0
v_lshlrev_b32 v{vT0}, 7, v{vT0}
v_add_u32 v{vT1}, s{T+10}, v{vT0}
s_lshl_b32 s{sOff}, s{sQt}, 3
s_add_u32 s{sOff}, s{sOff}, s{S_W}
s_mul_i32 s{sOff}, s{sOff}, {6*128}
s_add_u32 s{sOff}, s{sOff}, {F_LH}
v_min_u32 v{vT2}, 5, v0
v_lshlrev_b32 v{vT2}, 7, v{vT2}
v_add_u32 v{vT2}, s{sOff}, v{vT2}
v_cmp_gt_u32 vcc, 8, v0
v_and_b32 v{vT3}, 15, v0
v_lshrrev_b32 v{vT0}, 4, v0
v_cndmask_b32 v{vT1}, v{vT1}, v{vT2}, vcc
s_lshl_b32 s{sOff}, s{S_W}, 2
v_add_u32 v{vT0}, s{sOff}, v{vT0}
v_lshlrev_b32 v{vLa}, 10, v{vT0}
v_lshl_add_u32 v{vLa}, v{vT3}, 4, v{vLa}
v_lshrrev_b32 v{vT2}, 1, v{vT3}
v_mul_u32_u24 v{vLw}, {PS//2}, v{vT2}
v_lshl_add_u32 v{vLw}, v{vT0}, 4, v{vLw}
v_and_b32 v{vT2}, 1, v0
v_lshl_add_u32 v{vLw}, v{vT2}, 3, v{vLw}
v_lshl_add_u32 v{vPa}, v{vHF}, 4, v{vL16}
s_mul_i32 s{sOff}, s{sKh}, {8*PS}
v_add_u32 v{vPa}, s{sOff}, v{vPa}
v_lshlrev_b32 v{vT0}, 5, v{vT3}
ds_read_b128 {vr(vG,4)}, v{vT0} offset:{L_GATE}
ds_read_b128 {vr(vG+4,4)}, v{vT0} offset:{L_GATE+16}
s_lshl_b32 s{sOff}, s{sQt}, 15
s_add_u32 s{sOff}, s{sOff}, {WS_L}""")
    vFa, vFl = 22, 23
    sUd = T+12
    def uloads():
        for s in range(8):
            a(f"buffer_load_dwordx4 {vr(vU+4*s,4)}, v{vL16}, {WS}, s{sU} offen offset:{(s&3)*1024} sc1")
            if s == 3:
                a(f"s_add_u32 s{sU}, s{sU}, 4096")
        a(f"s_mov_b32 s{sUd}, 1")
        stamp(a, 8)
    l = a.label("lp"); d = a.label("lpd"); nu = a.label("nu"); l3 = a.label("lv"); d3 = a.label("lvd"); nu2 = a.label("nu2")
    def lloads():
        for n in range(4):
            a(f"buffer_load_dwordx4 {vr(vLd+4*n,4)}, v{vLa}, {WS}, s{sOff} offen offset:{256*n} sc1")
    a(f"""v_mov_b32 v{vFa}, v{vT1}
s_mov_b32 s{sUd}, 0
{l}:
buffer_load_dword v{vFl}, v{vFa}, {WS}, 0 offen {PF}
s_waitcnt vmcnt(0)
v_cmp_ne_u32 vcc, s{S_TAG}, v{vFl}
s_and_b32 s{T+13}, vcc_lo, 255
s_cbranch_scc0 {d}
s_lshr_b32 s{T+13}, vcc_lo, 8
s_or_b32 s{T+13}, s{T+13}, s{sUd}
s_cbranch_scc1 {nu}""")
    uloads()
    a(f"""{nu}:
s_sleep {OPT.get('lsleep', 1)}
s_sub_u32 s{S_TO}, s{S_TO}, 1
s_cmp_lg_u32 s{S_TO}, 0
s_cbranch_scc1 {l}
s_mov_b32 s{S_TO}, 1
{d}:""")
    lloads()
    a(f"""s_lshr_b32 s{T+13}, vcc_lo, 8
s_or_b32 s{T+13}, s{T+13}, s{sUd}
s_cbranch_scc1 {nu2}""")
    if 'ul' in OPT:
        a(f"s_waitcnt vmcnt({OPT['ul']})")
    uloads()
    a(f"""s_waitcnt vmcnt(8)
s_branch {l3}_c
{nu2}:
buffer_load_dword v{vFl}, v{vFa}, {WS}, 0 offen {PF}
s_waitcnt vmcnt(1)
s_branch {l3}_c
{l3}:""")
    lloads()
    a(f"""s_waitcnt vmcnt(0)
{l3}_c:
v_min_u32 v{vT1}, v{vLd+1}, v{vLd+3}
v_max_u32 v{vT2}, v{vLd+1}, v{vLd+3}""")
    for n in range(1, 4):
        a(f"v_min3_u32 v{vT1}, v{vT1}, v{vLd+4*n+1}, v{vLd+4*n+3}\nv_max3_u32 v{vT2}, v{vT2}, v{vLd+4*n+1}, v{vLd+4*n+3}")
    a(f"""v_cmp_ne_u32 vcc, s{S_TAG}, v{vT1}
v_cmp_ne_u32 s[{T+14}:{T+15}], s{S_TAG}, v{vT2}
s_or_b64 vcc, vcc, s[{T+14}:{T+15}]
s_cbranch_vccz {d3}
s_sub_u32 s{S_TO}, s{S_TO}, 1
s_cmp_lg_u32 s{S_TO}, 0
s_cbranch_scc1 {l3}
s_mov_b32 s{S_TO}, 1
{d3}:""")
    stamp(a, 9)
    for i in range(8):
        unpack(a, vF+2*i, vF+2*i+1, vLd+2*i)
    a(f"""v_max3_f32 v{vMx}, v{vF}, v{vF+1}, v{vF+2}
v_max3_f32 v{vS}, v{vF+3}, v{vF+4}, v{vF+5}
v_max3_f32 v{vMx}, v{vMx}, v{vF+6}, v{vF+7}
v_max3_f32 v{vS}, v{vS}, v{vF+8}, v{vF+9}
v_max3_f32 v{vMx}, v{vMx}, v{vF+10}, v{vF+11}
v_max3_f32 v{vS}, v{vS}, v{vF+12}, v{vF+13}
v_max3_f32 v{vMx}, v{vMx}, v{vF+14}, v{vF+15}
v_max_f32 v{vMx}, v{vMx}, v{vS}""")
    for m in ("quad_perm:[1,0,3,2]", "quad_perm:[2,3,0,1]", "row_half_mirror", "row_mirror"):
        a(f"s_nop 1\nv_max_f32_dpp v{vMx}, v{vMx}, v{vMx} {m} row_mask:0xf bank_mask:0xf")
    a(f"s_mov_b32 s{T+10}, {hex(LOG2E)}\nv_mul_f32 v{vMx}, s{T+10}, v{vMx}")
    for i in range(16):
        a(f"v_fma_f32 v{vF+i}, v{vF+i}, s{T+10}, -v{vMx}")
    for i in range(16):
        a(f"v_exp_f32 v{vF+i}, v{vF+i}")
    a(f"v_add_f32 v{vS}, v{vF}, v{vF+1}\nv_add_f32 v{vMx}, v{vF+2}, v{vF+3}")
    for i in range(4, 16, 2):
        a(f"v_add_f32 v{vS}, v{vS}, v{vF+i}\nv_add_f32 v{vMx}, v{vMx}, v{vF+i+1}")
    a(f"v_add_f32 v{vS}, v{vS}, v{vMx}")
    for m in ("quad_perm:[1,0,3,2]", "quad_perm:[2,3,0,1]", "row_half_mirror", "row_mirror"):
        a(f"s_nop 1\nv_add_f32_dpp v{vS}, v{vS}, v{vS} {m} row_mask:0xf bank_mask:0xf")
    a(f"v_rcp_f32 v{vS}, v{vS}\ns_nop 0")
    for i in range(16):
        a(f"v_mul_f32 v{vF+i}, v{vF+i}, v{vS}")
    for i in range(8):
        a(f"v_cvt_pk_bf16_f32 v{vLd+i}, v{vF+2*i}, v{vF+2*i+1}")
    for n in range(4):
        a(f"ds_write_b64 v{vLw}, {vr(vLd+2*n,2)} offset:{L_P+4*n*PS}")
    hu = a.label("hu"); l2 = a.label("up"); d2 = a.label("upd")
    a(f"""s_cmp_lg_u32 s{sUd}, 0
s_cbranch_scc1 {hu}
{l2}:
s_waitcnt vmcnt(0)
v_cmp_ne_u32 vcc, s{S_TAG}, v{vFl}
s_cbranch_vccz {d2}
buffer_load_dword v{vFl}, v{vFa}, {WS}, 0 offen {PF}
s_sub_u32 s{S_TO}, s{S_TO}, 1
s_cmp_lg_u32 s{S_TO}, 0
s_cbranch_scc1 {l2}
s_mov_b32 s{S_TO}, 1
{d2}:""")
    uloads()
    a(f"{hu}:\ns_waitcnt lgkmcnt(0)\ns_barrier")
    for s in range(8):
        a(f"ds_read_b128 {vr(vP+4*s,4)}, v{vPa} offset:{L_P+s*PS}")
    ROW = 528; EXS = 32*ROW
    a(f"""s_mul_i32 s{sOff}, s{sKh}, {EXS}
s_lshl_b32 s{T+10}, s{sCb}, 7
s_add_u32 s{sOff}, s{sOff}, s{T+10}
s_add_u32 s{sOff}, s{sOff}, {L_EX}
v_mul_u32_u24 v{vT1}, {ROW}, v{vTok}
v_lshl_add_u32 v{vT1}, v{vHF}, 5, v{vT1}
v_add_u32 v{vT1}, s{sOff}, v{vT1}
v_lshrrev_b32 v{vT2}, 4, v0
v_mul_u32_u24 v{vT2}, {ROW}, v{vT2}
s_mul_i32 s{sOff}, s{S_W}, {4*ROW}
s_add_u32 s{sOff}, s{sOff}, {L_EX}
v_add3_u32 v{vT2}, v{vT2}, v{vT0}, s{sOff}""")
    for s in range(8):
        a(f"s_waitcnt vmcnt({7-s}) lgkmcnt({7-s})")
        mfma(a, vAcc, vU+4*s, vP+4*s, s == 0)
    for i in range(4):
        unpack(a, vF+2*i, vF+2*i+1, vX+i)
    stamp(a, 10)
    a("s_nop 3")
    for q in range(4):
        a(f"ds_write_b128 v{vT1}, {vr(vAcc+4*q,4)} offset:{64*(q>>1) + 16*(q&1)}")
    a(f"""s_waitcnt lgkmcnt(0)
s_barrier
ds_read_b128 {vr(vAcc,4)}, v{vT2}
ds_read_b128 {vr(vR,4)}, v{vT2} offset:{EXS}
ds_read_b128 {vr(vAcc+4,4)}, v{vT2} offset:16
ds_read_b128 {vr(vR+4,4)}, v{vT2} offset:{EXS+16}
s_waitcnt vmcnt(0) lgkmcnt(2)""")
    for r in range(8):
        if r == 4:
            a("s_waitcnt lgkmcnt(0)")
        a(f"v_add_f32 v{vAcc+r}, v{vAcc+r}, v{vR+r}")
    def cv():
        for i in range(4):
            a(f"v_cvt_pk_bf16_f32 v{vR+i}, v{vAcc+2*i}, v{vAcc+2*i+1}")
    def up():
        for i in range(4):
            unpack(a, vAcc+2*i, vAcc+2*i+1, vR+i)
    cv(); up()
    for r in range(8):
        a(f"v_mul_f32 v{vAcc+r}, v{vAcc+r}, v{vG+r}")
    cv(); up()
    for r in range(8):
        a(f"v_add_f32 v{vAcc+r}, v{vAcc+r}, v{vF+r}")
    cv()
    a(f"buffer_store_dwordx4 {vr(vR,4)}, v{vXo}, {RB}, s{sXo} offen {OPT.get('oflag', '').replace('+', ' ')}")
    a("L_fin:")

def gemv_dma(a, sColA, vD):
    sRow0, sOff = T+2, T+3
    a(f"""v_lshlrev_b32 v{vD}, 4, v{vCH}
v_mul_u32_u24 v{vT0}, 13824, v{vR8}
v_add3_u32 v{vD}, v{vD}, v{vT0}, s{sColA}
s_mul_i32 s{sOff}, s{sRow0}, 13824
s_lshl_b32 m0, s{sRow0}, 7""")
    for t in range(18):
        a(f"""s_nop 0
buffer_load_dwordx4 v{vD}, {RA}, s{sOff} offen {NT} lds""")
        if t < 17:
            a(f"s_add_u32 s{sOff}, s{sOff}, {8*13824}\ns_add_u32 m0, m0, 1024")

def phase_owner(a):
    sColA, sB, sRow0, sOff, sO, sCs, sTb = T, T+1, T+2, T+3, T+4, T+5, T+6
    vD, vA0, vA1, vSil, vCs = V0, V0+1, V0+2, V0+3, V0+4
    vC = 24
    vST = 28
    vX = VOX
    vXN = 48
    vPt = 80
    vAcc = 112
    vWF = 144
    vSF = 160
    vM = 184
    a(f"""s_mov_b32 s{sO}, s2
s_cmp_ge_u32 s{sO}, 36
s_cbranch_scc1 L_o_pref
s_lshr_b32 s{sCs}, s{sO}, 1
s_and_b32 s{sB}, s{sO}, 1
s_waitcnt vmcnt(0)
s_barrier""")
    vST = 32
    vPt = 112
    SM = [32, 33, 34, 35, 36, 37, 38, 39, 40, 41, 42, 43, 9, 10, 11, 12]
    a(f"""v_and_b32 v{vT3}, 7, v0
v_xor_b32 v{vT0}, s{S_W}, v{vT3}
v_lshlrev_b32 v{vT0}, 4, v{vT0}
v_lshl_add_u32 v{vT0}, v0, 7, v{vT0}""")
    for q in range(4):
        a(f"ds_read_b128 {vr(vX+4*q,4)}, v{vT0} offset:{q*8192}")
    a(f"""s_lshl_b32 s{T+9}, s{sB}, 12
s_add_u32 s{T+9}, s{T+9}, {F_STAT}
s_mul_i32 s{T+10}, s{sO}, {18*1024}
s_lshl_b32 s{sOff}, s{S_W}, 7
s_add_u32 s{T+10}, s{T+10}, s{sOff}
s_add_u32 s{T+10}, s{T+10}, {WS_PART}
s_add_u32 s{T+11}, s{T+10}, 8192
v_lshlrev_b32 v{vT1}, 4, v{vT3}
v_min_u32 v{vT2}, 1, v{vR8}
v_lshl_add_u32 v{vT2}, v{vT2}, 10, v{vT1}
v_add_u32 v{vT2}, 16384, v{vT2}
v_lshl_add_u32 v{vT1}, v{vR8}, 10, v{vT1}
v_cmp_gt_u32 vcc, 16, v0
v_mul_u32_u24 v{vCs}, {72*1024}, v{vHF}
v_lshl_add_u32 v{vCs}, v{vTok}, 4, v{vCs}
v_cndmask_b32 v{vA0}, 0, 1.0, vcc
v_bfe_u32 v{vA1}, v0, 2, 1
v_cvt_f32_u32 v{vA1}, v{vA1}
s_mul_i32 s{sOff}, s{sB}, {8*72*1024}
s_lshl_b32 s{T+12}, s{sCs}, 12
s_add_u32 s{sOff}, s{sOff}, s{T+12}
s_lshl_b32 s{T+12}, s{S_W}, 9
s_add_u32 s{sOff}, s{sOff}, s{T+12}
s_add_u32 s{sOff}, s{sOff}, {WS_H}
s_waitcnt lgkmcnt(0)""")
    def stl():
        for q in range(4):
            a(f"buffer_load_dwordx4 {vr(vST+4*q,4)}, v{vL16}, {WS}, s{T+9} offen offset:{1024*q} sc1")
    def pl():
        a(f"""buffer_load_dwordx4 {vr(vPt,4)}, v{vT1}, {WS}, s{T+10} offen sc1
buffer_load_dwordx4 {vr(vPt+4,4)}, v{vT1}, {WS}, s{T+11} offen sc1
buffer_load_dwordx4 {vr(vPt+8,4)}, v{vT2}, {WS}, s{T+10} offen sc1""")
    P = [(q, i) for q in range(4) for i in range(4)]
    lo = lambda q, i: vXN+8*q+2*i
    hi = lambda q, i: vXN+8*q+2*i+1
    xs = lambda q, i: vX+4*q+i
    def st_unpack():
        for q, i in P: unpack(a, lo(q,i), hi(q,i), xs(q,i))
    def st_cvt():
        for q, i in P: a(f"v_cvt_pk_bf16_f32 v{xs(q,i)}, v{lo(q,i)}, v{hi(q,i)}")
    def st_op(op, f):
        for q, i in P:
            a(f"{op} v{lo(q,i)}, v{lo(q,i)}, v{f(q,2*i)}\n{op} v{hi(q,i)}, v{hi(q,i)}, v{f(q,2*i+1)}")
    st_unpack()
    if 'st1' in OPT:
        a(f"v_and_b32 v{vM}, 3, v0\ns_lshl_b32 s{T+12}, s{S_W}, 9\nv_lshlrev_b32 v{vM}, 7, v{vM}\ns_add_u32 s{T+12}, s{T+12}, s{T+9}\nv_add_u32 v{vM}, 124, v{vM}")
        wpoll(a, vM, f"s{T+12}", vM+1)
        a("s_barrier")
    if OPT.get('st2', '1') == '1':
        a(f"""s_lshl_b32 s{T+12}, s{S_W}, 9
v_lshlrev_b32 v{vM}, 4, v{vTok}
v_add_u32 v{vM}, s{T+12}, v{vM}
v_add_u32 v{vM+1}, {L_RED}, v{vM}
v_add_u32 v{vM+2}, {L_RED}, v{vL16}""")
        gpoll(a, lambda: a(f"buffer_load_dwordx4 {vr(vST,4)}, v{vM}, {WS}, s{T+9} offen sc1"), [vST+1, vST+3], OPT.get('ssleep'))
        a(f"""ds_write_b128 v{vM+1}, {vr(vST,4)}
s_waitcnt lgkmcnt(0)
s_barrier""")
        for q in range(4):
            a(f"ds_read_b128 {vr(vST+4*q,4)}, v{vM+2} offset:{1024*q}")
        a("s_waitcnt lgkmcnt(0)")
    else:
        gpoll(a, stl, [vST+4*q+j for q in range(4) for j in (1, 3)], OPT.get('ssleep'))
    stamp(a, 1)
    st_op("v_sub_f32", lambda q, j: vST+4*q); st_cvt()
    st_unpack()
    pl()
    st_op("v_mul_f32", lambda q, j: vST+4*q+2); st_cvt()
    st_unpack()
    stamp(a, 2)
    lp = a.label("pp"); ld = a.label("ppd")
    a(f"""{lp}:
s_waitcnt vmcnt(0)
v_min3_u32 v{vM}, v{vPt+1}, v{vPt+3}, v{vPt+5}
v_max3_u32 v{vM+1}, v{vPt+1}, v{vPt+3}, v{vPt+5}
v_min3_u32 v{vM}, v{vM}, v{vPt+7}, v{vPt+9}
v_max3_u32 v{vM+1}, v{vM+1}, v{vPt+7}, v{vPt+9}
v_min_u32 v{vM}, v{vM}, v{vPt+11}
v_max_u32 v{vM+1}, v{vM+1}, v{vPt+11}
v_cmp_ne_u32 vcc, s{S_TAG}, v{vM}
v_cmp_ne_u32 s[{T+14}:{T+15}], s{S_TAG}, v{vM+1}
s_or_b64 vcc, vcc, s[{T+14}:{T+15}]
s_cbranch_vccz {ld}
s_sub_u32 s{S_TO}, s{S_TO}, 1
s_cmp_eq_u32 s{S_TO}, 0
s_cbranch_scc1 {ld}""")
    pl()
    a(f"""s_branch {lp}
{ld}:
s_max_u32 s{S_TO}, s{S_TO}, 1
v_add_f32 v{vPt}, v{vPt}, v{vPt+4}
v_add_f32 v{vPt+2}, v{vPt+2}, v{vPt+6}
v_fmac_f32 v{vPt}, v{vA0}, v{vPt+8}
v_fmac_f32 v{vPt+2}, v{vA0}, v{vPt+10}
s_nop 1
v_permlane32_swap_b32 v{vPt}, v{vPt+2}
s_nop 0
v_add_f32 v{vPt}, v{vPt}, v{vPt+2}
v_mov_b32 v{vPt+2}, v{vPt}
s_nop 1
v_permlane16_swap_b32 v{vPt}, v{vPt+2}
s_nop 0
v_add_f32 v{vPt}, v{vPt}, v{vPt+2}
s_nop 1
v_add_f32_dpp v{vPt}, v{vPt}, v{vPt} row_ror:8 row_mask:0xf bank_mask:0xf""")
    round_bf16(a, vPt)
    a(f"v_add_f32 v{vPt}, v{vPt}, v{vA1}")
    round_bf16(a, vPt)
    a("s_nop 0")
    for u in (4, 5, 6, 7, 0, 1, 2, 3):
        a(f"v_readlane_b32 s{SM[2*u]}, v{vPt}, {u}\nv_readlane_b32 s{SM[2*u+1]}, v{vPt}, {32+u}")
    stamp(a, 3)
    for q, i in P:
        a(f"v_mul_f32 v{lo(q,i)}, s{SM[8+2*i]}, v{lo(q,i)}\nv_mul_f32 v{hi(q,i)}, s{SM[8+2*i+1]}, v{hi(q,i)}")
    st_cvt(); st_unpack()
    for q in range(4):
        for i in range(4):
            a(f"v_add_f32 v{lo(q,i)}, s{SM[2*i]}, v{lo(q,i)}\nv_add_f32 v{hi(q,i)}, s{SM[2*i+1]}, v{hi(q,i)}")
        for i in range(4):
            a(f"v_cvt_pk_bf16_f32 v{xs(q,i)}, v{lo(q,i)}, v{hi(q,i)}")
        a(f"buffer_store_dwordx4 {vr(vX+4*q,4)}, v{vCs}, {WS}, s{sOff} offen sc1")
        if q < 3:
            a(f"s_add_u32 s{sOff}, s{sOff}, {2*72*1024}")
    stamp(a, 4)
    a(f"""s_mul_i32 s{sOff}, s{sB}, 18
s_add_u32 s{sOff}, s{sOff}, s{sCs}
s_lshl_b32 s{sOff}, s{sOff}, 7
s_add_u32 s{sOff}, s{sOff}, {F_H}""")
    set_flag(a, f"s{sOff}")
    stamp(a, 5)
    if 'ob' in OPT:
        a("s_waitcnt vmcnt(0)\ns_barrier")
    a("L_o_pref:")
    srd(a, R_A, S_WMOD, SZ_WMOD)
    srd(a, R_C, S_C, SZ_C)
    a(f"""s_sub_u32 s{sOff}, s{sO}, 20
s_cmp_ge_u32 s{sO}, 16
s_cselect_b32 s{sO}, s{sOff}, s{sO}
s_cselect_b32 s{sOff}, 16, 0
s_cmp_lt_u32 s{sO}, s{sOff}
s_cbranch_scc1 L_o_upd
s_cmp_ge_u32 s{sO}, 18
s_cbranch_scc1 L_o_upd""")
    if 'gd' in OPT:
        a(f"v_min_u32 v{vT0}, 35, v0\nv_lshlrev_b32 v{vT0}, 7, v{vT0}\ns_movk_i32 s{sOff}, {F_H}")
        poll(a, vT0, f"s{sOff}", vT1)
    a(f"""s_mul_i32 s{sRow0}, s{S_W}, 144
v_min_u32 v{vT0}, 17, v{vTok}
v_lshlrev_b32 v{vT0}, 4, v{vT0}
v_mul_u32_u24 v{vT1}, 2304, v{vHF}
v_add_u32 v{vCs}, v{vT0}, v{vT1}
s_lshl_b32 s{sOff}, s{sRow0}, 1
buffer_load_dwordx4 {vr(vC,4)}, v{vCs}, {RC}, s{sOff} offen
s_lshl_b32 s{sColA}, s{sO}, 7
s_add_u32 s{sColA}, s{sColA}, 4608""")
    gemv_dma(a, sColA, vD)
    a(f"""s_lshl_b32 s{sOff}, s{sRow0}, 7
v_add_u32 v{vA0}, s{sOff}, v{vB0}
v_add_u32 v{vA1}, s{sOff}, v{vB1}
s_waitcnt vmcnt(18)""")
    for i in range(4):
        unpack(a, vM+2*i, vM+2*i+1, vC+i)
    silu8(a, vM, vM+8)
    for i in range(4):
        a(f"v_cvt_pk_bf16_f32 v{vC+i}, v{vM+2*i}, v{vM+2*i+1}")
    a(f"""s_lshl_b32 s{sOff}, s{sRow0}, 1
s_add_u32 s{sOff}, s{sOff}, {L_SIL}
v_add_u32 v{vCs}, s{sOff}, v{vCs}
ds_write_b128 v{vCs}, {vr(vC,4)}
v_and_b32 v{vT0}, 1, v0
v_mul_u32_u24 v{vT0}, 2304, v{vT0}
v_lshl_add_u32 v{vT0}, v{vHF}, 4, v{vT0}
v_add_u32 v{vSil}, s{sOff}, v{vT0}
s_waitcnt lgkmcnt(0)""")
    for s in range(9):
        wf = vWF + 8*(s & 1); sf = vSF + 4*(s & 1)
        a(f"s_waitcnt vmcnt({18-2*(s+1)})")
        a(f"ds_read_b128 {vr(sf,4)}, v{vSil} offset:{s*32}")
        trreads(a, wf, vA0, vA1, s*2048)
        a("s_waitcnt lgkmcnt(2)")
        mfma(a, vAcc, wf, sf, s == 0)
        a("s_waitcnt lgkmcnt(0)")
        mfma(a, vAcc+16, wf+4, sf, s == 0)
    a(f"""v_and_b32 v{vT0}, 1, v0
v_lshlrev_b32 v{vT0}, 8, v{vT0}
v_lshl_add_u32 v{vT0}, v{vHF}, 5, v{vT0}
s_lshl_b32 s{sOff}, s{S_W}, 9
s_add_u32 s{sOff}, s{sOff}, {L_RED}
v_add_u32 v{vT0}, s{sOff}, v{vT0}
s_mov_b32 exec_lo, 3
s_mov_b32 exec_hi, 3
s_nop 8""")
    for cb in range(2):
        for q, off in enumerate((0, 16, 64, 80)):
            a(f"ds_write_b128 v{vT0}, {vr(vAcc+16*cb+4*q,4)} offset:{cb*128+off}")
    a(f"""s_mov_b64 exec, -1
s_waitcnt lgkmcnt(0)
s_barrier
s_lshr_b32 s{sOff}, s{S_W}, 2
s_lshl_b32 s{sOff}, s{sOff}, 8
s_add_u32 s{sOff}, s{sOff}, {L_RED}
v_lshlrev_b32 v{vT0}, 2, v0
v_add_u32 v{vT1}, s{sOff}, v{vT0}""")
    for w in range(8):
        a(f"ds_read_b32 v{vAcc+w}, v{vT1} offset:{w*512}")
    a("s_waitcnt lgkmcnt(0)")
    for w in range(1, 8):
        a(f"v_add_f32 v{vAcc}, v{vAcc}, v{vAcc+w}")
    round_bf16(a, vAcc)
    lsk = a.label("gsk")
    a(f"""s_and_b32 s{sOff}, s{S_W}, 3
s_cmp_lg_u32 s{sOff}, 0
s_cbranch_scc1 {lsk}
s_lshr_b32 s{T+9}, s{S_W}, 2
s_mul_i32 s{sOff}, s{T+9}, 4608
s_lshl_b32 s{sColA}, s{sO}, 8
s_add_u32 s{sOff}, s{sOff}, s{sColA}
s_add_u32 s{sOff}, s{sOff}, {WS_GATE}
buffer_store_dword v{vAcc}, v{vT0}, {WS}, s{sOff} offen sc1
{lsk}:
s_lshl_b32 s{sOff}, s{sO}, 7
s_add_u32 s{sOff}, s{sOff}, {F_G}""")
    set_flag(a, f"s{sOff}")
    stamp(a, 7)
    lp = a.label("ep"); ld = a.label("epd")
    a(f"""L_o_upd:
s_add_u32 s{S_SLOT}, s{S_SLOT}, 25
s_cmp_ge_u32 s{S_SLOT}, 27
s_cbranch_scc1 L_c_notu
s_cmp_lg_u32 s2, 0
s_cbranch_scc1 L_fin
s_lshl_b32 s{sOff}, s{S_W}, 6
v_add_u32 v{vT0}, s{sOff}, v0
v_min_u32 v{vT0}, 431, v{vT0}
v_lshlrev_b32 v{vT0}, 8, v{vT0}
s_mov_b32 s{sOff}, {F_QKV}
{lp}:
s_sleep 16
buffer_load_dword v{vT1}, v{vT0}, {WS}, s{sOff} offen sc1
buffer_load_dword v{vT2}, v{vT0}, {WS}, s{sOff} offen offset:128 sc1
s_waitcnt vmcnt(0)
v_cmp_ne_u32 vcc, s{S_TAG}, v{vT1}
v_cmp_ne_u32 s[{T+14}:{T+15}], s{S_TAG}, v{vT2}
s_or_b64 vcc, vcc, s[{T+14}:{T+15}]
s_cbranch_vccz {ld}
s_sub_u32 s{S_TO}, s{S_TO}, 1
s_cmp_lg_u32 s{S_TO}, 0
s_cbranch_scc1 {lp}
{ld}:
s_mov_b32 s{sOff}, {EPOCH}""")
    set_flag(a, f"s{sOff}")
    a("s_branch L_fin")

def epilogue(a):
    if STAMP and 'probe' in OPT:
        i = int(OPT['probe']); lo, hi = [int(x) for x in OPT.get('prole', '0:256').split(':')]
        a(f"""s_waitcnt vmcnt(0) lgkmcnt(0)
s_cmp_lg_u32 s{S_W}, {OPT.get('stw', 0)}
s_cbranch_scc1 L_end
s_memrealtime s[{S_ST+30}:{S_ST+31}]
s_waitcnt lgkmcnt(0)
s_sub_u32 s{T}, s{S_ST+2*i}, s{S_ST}
s_cmp_eq_u32 s{S_ST+2*i}, 0
s_cselect_b32 s{T}, 0, s{T}
s_cmp_lt_u32 s2, {lo}
s_cselect_b32 s{T}, 0, s{T}
s_cmp_ge_u32 s2, {hi}
s_cselect_b32 s{T}, 0, s{T}
s_lshl_b32 s{T}, s{T}, 2
s_add_u32 s{T}, s{T}, 5000
L_spin:
s_memrealtime s[{T+2}:{T+3}]
s_waitcnt lgkmcnt(0)
s_sub_u32 s{T+2}, s{T+2}, s{S_ST}
s_cmp_lt_u32 s{T+2}, s{T}
s_cbranch_scc1 L_spin""")
    elif STAMP:
        a(f"""s_waitcnt vmcnt(0) lgkmcnt(0)
s_cmp_lg_u32 s{S_W}, {OPT.get('stw', 0)}
s_cbranch_scc1 L_end
{CLK} s[{S_ST+30}:{S_ST+31}]
s_memtime s[98:99]
s_waitcnt lgkmcnt(0)
s_sub_u32 s98, s98, s96""")
        for i in range(16):
            a(f"v_mov_b32 v{16+i}, s{S_ST+2*i}")
        a(f"""v_mov_b32 v32, s98
s_lshl_b32 s{T}, s2, 7
s_add_u32 s{T}, s{T}, {WS_STAMP}
v_mov_b32 v1, 0
s_mov_b64 exec, 1""")
        for i in range(4):
            a(f"buffer_store_dwordx4 v[{16+4*i}:{19+4*i}], v1, {WS}, s{T} offen offset:{16*i}")
        a(f"buffer_store_dword v32, v1, {WS}, s{T} offen offset:64")
    a("L_end:\ns_endpgm")

def main():
    a = Asm()
    a.raw("""; DiT adaLN attention block (B=2, N=256, D=1152) as ONE persistent launch, 256 workgroups x 8 waves (one per CU).
; Written by a generator script of my own (hand-designed schedule, no compiler output).
;  stage 0 : 162 WGs: split-K pieces of silu(c) @ w_mod[:, :2D] -> tagged granules; 64 WGs: LayerNorm row statistics
; @launch grid=(256,1,1) block=(512,1,1) lds=163840""")
    a.raw('.amdgcn_target "amdgcn-amd-amdhsa--gfx950"\n.text')
    prologue(a)
    phase_bc(a)
    NOD[0] = True
    phase_d(a)
    NOD[0] = False
    epilogue(a)
    a("L_owner:")
    phase_owner(a)
    a.raw(".p2align 4\nL_codeend:")
    out = a.text() + kd(NAME, 244, 102)
    path = [x for x in sys.argv[1:] if not x.startswith('--')][0]
    open(path, 'w').write(out)
main()
```

```python
import sys, struct
from asmlib import *

OPT = dict(la='12', nt='', cpf='1', umap='4', lfull='1', pack='0', ew='3')
for a_ in sys.argv[1:]:
    if a_.startswith('--'):
        k, _, v = a_[2:].partition('=')
        OPT[k] = v
STAMP = 'stamp' in OPT
NT = OPT['nt']
PF = OPT.get('pf', 'sc1').replace('+', ' ')
SF = OPT.get('sf', 'sc1').replace('+', ' ')
CLK = "s_memtime" if 'cyc' in OPT else "s_memrealtime"

NAME = "standalone__dit_adaln_block__diffusion_kernel"
D = 1152
SZ_X = 512*D*2; SZ_C = 2*D*2; SZ_WQKV = D*3*D*2; SZ_WO = D*D*2; SZ_WMOD = D*6*D*2
SZ_WS = 1 << 28
F_STAT = 0x0
F_H = 0x2000
F_L = 0x4000
F_U = 0x760000
F_G = 0x4000
F_QKV = 0x740000
EPOCH = 0x13000
WS_GATE = 0x14000
WS_H = 0x20000
WS_QKV = 0x140000
WS_L = 0x680000
WS_U = 0x550000
WS_PART = 0x4A0000
WS_STAMP = 0x700000
F_LH = 0x720000
LOG2E = 0x3fb8aa3b

S_W, S_TAG, S_G, S_SLOT, S_TO, S_TK = 3, 4, 5, 6, 7, 8
S_X, S_C, S_WQKV, S_WO, S_WMOD, S_OUT, S_DBG, S_WS = 16, 18, 20, 22, 24, 26, 28, 30
R_A, R_B, R_C, R_WS = 32, 36, 40, 44
T = 48
S_ST = 64
WS = f"s[{R_WS}:{R_WS+3}]"
RA = f"s[{R_A}:{R_A+3}]"; RB = f"s[{R_B}:{R_B+3}]"; RC = f"s[{R_C}:{R_C+3}]"
vL16, vP16, vB0, vB1, vCH, vR8, vHF, vTok = 1, 2, 3, 4, 5, 6, 7, 8
vT0, vT1, vT2, vT3 = 9, 10, 11, 12
vTAG = 13
V0 = 16

L_MISC = 147456
L_SIL = L_MISC
L_RED = L_SIL + 4608
L_FIN = L_RED + 4096
L_ROLE = L_FIN + 4096
L_STC = L_ROLE + 16
L_GATE = 36864
NO = 5

def srd(a, r, ptr, size):
    a(f"""s_mov_b32 s{r}, s{ptr}
s_and_b32 s{r+1}, s{ptr+1}, 0xffff
s_mov_b32 s{r+2}, {hex(size)}
s_mov_b32 s{r+3}, 0x20000""")

NOD = [False]
def stamp(a, i):
    if STAMP and not (NOD[0] and 'nod' in OPT):
        a(f"{CLK} s[{S_ST+2*i}:{S_ST+2*i+1}]")

def unpack(a, lo, hi, src):
    a(f"v_lshlrev_b32 v{lo}, 16, v{src}\nv_and_b32 v{hi}, 0xffff0000, v{src}")

def round_bf16(a, v):
    a(f"v_cvt_pk_bf16_f32 v{v}, v{v}, v{v}\nv_lshlrev_b32 v{v}, 16, v{v}")

HACK = [0]
def mfma(a, acc, A, B, first=False):
    if 'hack16' in OPT and not first:
        HACK[0] += 1
        o = 8*((HACK[0] >> 1) & 1)
        for j in range(2):
            a(f"v_mfma_f32_16x16x32_bf16 {vr(acc+o+4*j,4)}, {vr(A,4)}, {vr(B,4)}, {vr(acc+o+4*j,4)}")
        return
    c = "0" if first else vr(acc, 16)
    a(f"v_mfma_f32_32x32x16_bf16 {vr(acc,16)}, {vr(A,4)}, {vr(B,4)}, {c}")

def wrap_add(a, s, step, s_end, s_start):
    a(f"""s_add_u32 s{s}, s{s}, {step}
s_cmp_eq_u32 s{s}, s{s_end}
s_cselect_b32 s{s}, s{s_start}, s{s}""")

def mod9(a, dst, src, tmp):
    a(f"""s_mul_i32 s{tmp}, s{src}, 57
s_lshr_b32 s{tmp}, s{tmp}, 9
s_mul_i32 s{tmp}, s{tmp}, 9
s_sub_u32 s{dst}, s{src}, s{tmp}""")

def poll(a, vaddr, soff, vtmp):
    l = a.label("poll"); d = a.label("polld")
    a(f"""s_cmp_lg_u32 s{S_W}, 0
s_cbranch_scc1 {d}
{l}:
buffer_load_dword v{vtmp}, v{vaddr}, {WS}, {soff} offen {PF}
s_waitcnt vmcnt(0)
v_cmp_ne_u32 vcc, s{S_TAG}, v{vtmp}
s_cbranch_vccz {d}
s_sleep {OPT.get('sleep', 2)}
s_sub_u32 s{S_TO}, s{S_TO}, 1
s_cmp_lg_u32 s{S_TO}, 0
s_cbranch_scc1 {l}
s_mov_b32 s{S_TO}, 1
{d}:
s_barrier""")

def gpoll(a, loads, tagregs, slp=None):
    l = a.label("gp"); d = a.label("gpd")
    a(f"{l}:")
    loads()
    a(f"s_waitcnt vmcnt(0)\nv_cmp_ne_u32 vcc, s{S_TAG}, v{tagregs[0]}")
    for r in tagregs[1:]:
        a(f"v_cmp_ne_u32 s[{T+14}:{T+15}], s{S_TAG}, v{r}\ns_or_b64 vcc, vcc, s[{T+14}:{T+15}]")
    a(f"""s_cbranch_vccz {d}
s_sleep {slp if slp is not None else OPT.get('gsleep', 2)}
s_sub_u32 s{S_TO}, s{S_TO}, 1
s_cmp_lg_u32 s{S_TO}, 0
s_cbranch_scc1 {l}
s_mov_b32 s{S_TO}, 1
{d}:""")

def raw_flag(a, soff):
    a(f"""v_mov_b32 v{vT3}, 0
s_mov_b64 exec, 1
buffer_store_dword v{vTAG}, v{vT3}, {WS}, {soff} offen {SF}
s_mov_b64 exec, -1""")

def set_flag(a, soff, younger=0):
    d = a.label("fl")
    a(f"""s_waitcnt vmcnt({younger})
s_barrier
s_cmp_lg_u32 s{S_W}, 0
s_cbranch_scc1 {d}""")
    raw_flag(a, soff)
    a(f"{d}:")

def trreads(a, wf, b0, b1, off):
    a(f"""ds_read_b64_tr_b16 {vr(wf,2)}, v{b0} offset:{off}
ds_read_b64_tr_b16 {vr(wf+2,2)}, v{b0} offset:{off+512}
ds_read_b64_tr_b16 {vr(wf+4,2)}, v{b1} offset:{off}
ds_read_b64_tr_b16 {vr(wf+6,2)}, v{b1} offset:{off+512}""")

def dma_tile(a, srdname, vD, pitch, s_rot, flags, n0=0, n1=18):
    sN, sO = T+10, T+11
    if s_rot is None:
        a(f"s_add_u32 s{sN}, s{S_W}, {8*n0}")
    else:
        a(f"s_lshl_b32 s{sN}, s{s_rot}, 3\ns_add_u32 s{sN}, s{sN}, s{S_W}")
    for n in range(n0, n1):
        a(f"""s_lshl_b32 m0, s{sN}, 10
s_mul_i32 s{sO}, s{sN}, {8*pitch}
buffer_load_dwordx4 v{vD}, {srdname}, s{sO} offen {flags} lds""")
        if n < n1-1:
            a(f"s_add_u32 s{sN}, s{sN}, 8")
            if s_rot is not None:
                a(f"""s_sub_u32 s{sO}, s{sN}, 144
s_cmp_ge_u32 s{sN}, 144
s_cselect_b32 s{sN}, s{sO}, s{sN}""")

def wave_sum(a, v, sdst):
    for m in ("quad_perm:[1,0,3,2]", "quad_perm:[2,3,0,1]", "row_half_mirror", "row_mirror"):
        a(f"s_nop 1\nv_add_f32_dpp v{v}, v{v}, v{v} {m} row_mask:0xf bank_mask:0xf")
    a(f"s_nop 1\nv_add_f32_dpp v{v}, v{v}, v{v} row_bcast:15 row_mask:0xa bank_mask:0xf")
    a(f"s_nop 1\nv_add_f32_dpp v{v}, v{v}, v{v} row_bcast:31 row_mask:0xc bank_mask:0xf")
    a(f"s_nop 1\nv_readlane_b32 s{sdst}, v{v}, 63\ns_nop 1")

def silu8(a, f, t):
    for i in range(8):
        a(f"v_mul_f32 v{t+i}, 0xbfb8aa3b, v{f+i}")
    for i in range(8):
        a(f"v_exp_f32 v{t+i}, v{t+i}")
    for i in range(8):
        a(f"v_add_f32 v{t+i}, 1.0, v{t+i}")
    for i in range(8):
        a(f"v_rcp_f32 v{t+i}, v{t+i}")
    for i in range(8):
        a(f"v_mul_f32 v{f+i}, v{f+i}, v{t+i}")

def lane_consts(a):
    a(f"""v_lshrrev_b32 v{vR8}, 3, v0
v_and_b32 v{vP16}, 0x33, v0
v_and_b32 v{vT0}, 4, v0
v_lshl_or_b32 v{vP16}, v{vT0}, 1, v{vP16}
v_and_b32 v{vT0}, 8, v0
v_lshrrev_b32 v{vT0}, 1, v{vT0}
v_or_b32 v{vP16}, v{vP16}, v{vT0}
v_lshlrev_b32 v{vP16}, 4, v{vP16}
v_lshrrev_b32 v{vT0}, 2, v0
v_and_b32 v{vT0}, 4, v{vT0}
v_and_b32 v{vCH}, 7, v0
v_xor_b32 v{vCH}, v{vCH}, v{vT0}
v_lshlrev_b32 v{vB0}, 10, v{vHF}
v_and_b32 v{vT0}, 12, v0
v_lshl_or_b32 v{vB0}, v{vT0}, 5, v{vB0}
v_and_b32 v{vT0}, 8, v0
v_lshl_or_b32 v{vB0}, v{vT0}, 3, v{vB0}
v_and_b32 v{vT0}, 16, v0
v_lshl_or_b32 v{vB0}, v{vT0}, 1, v{vB0}
v_and_b32 v{vT0}, 1, v0
v_lshl_or_b32 v{vB0}, v{vT0}, 4, v{vB0}
v_and_b32 v{vT0}, 2, v0
v_lshl_or_b32 v{vB0}, v{vT0}, 2, v{vB0}
v_xor_b32 v{vB1}, 64, v{vB0}""")

def get_tag(a):
    a(f"""s_waitcnt lgkmcnt(0)
s_mul_i32 s{S_TAG}, s{S_TAG}, 1664525
s_add_u32 s{S_TAG}, s{S_TAG}, 1013904223
v_mov_b32 v{vTAG}, s{S_TAG}""")

def wpoll(a, vaddr, soff, vtmp):
    gpoll(a, lambda: a(f"buffer_load_dword v{vtmp}, v{vaddr}, {WS}, {soff} offen {PF}"), [vtmp])

S_BCT, S_BRT = 11, 12
vDW = 15
R0, R1 = [int(x) for x in OPT.get('wrot', '36,28').split(',')]
assert R0 + 3*R1 + 7 < 144
def b_setup(a):
    srd(a, R_B, S_WQKV, SZ_WQKV)
    a(f"""s_mul_i32 s{S_BCT}, s{S_G}, 27
s_add_u32 s{S_BCT}, s{S_BCT}, s{S_SLOT}
s_sub_u32 s{S_BCT}, s{S_BCT}, {NO}
s_and_b32 s{S_BRT}, s{S_BCT}, 3
s_lshr_b32 s{S_BCT}, s{S_BCT}, 2
s_mul_i32 s13, s{S_BRT}, {R1}
s_add_u32 s{T+14}, s13, {R0}
s_cmp_lg_u32 s{S_BRT}, 0
s_cselect_b32 s13, s{T+14}, s13
s_add_u32 s13, s13, s{S_W}
v_lshlrev_b32 v{vDW}, 4, v{vCH}
v_mul_u32_u24 v{vT0}, 6912, v{vR8}
s_lshl_b32 s{T+14}, s{S_BCT}, 7
v_add3_u32 v{vDW}, v{vDW}, v{vT0}, s{T+14}""")

THR = f"s_waitcnt vmcnt({OPT['thr']})" if 'thr' in OPT else ''
THRO = f"s_waitcnt vmcnt({OPT['thro']})" if 'thro' in OPT else ''
def w_dma(a, n):
    for i in range(n):
        a(f"""s_lshl_b32 m0, s13, 10
s_mul_i32 s{T+14}, s13, {8*6912}
buffer_load_dwordx4 v{vDW}, {RB}, s{T+14} offen lds
{THR}
s_add_u32 s13, s13, 8
s_sub_u32 s{T+14}, s13, 144
s_cmp_ge_u32 s13, 144
s_cselect_b32 s13, s{T+14}, s13""")

EW = int(OPT.get('ew', 0))
def prologue(a):
    a.raw(f".globl {NAME}\n.p2align 8\n.type {NAME},@function\n{NAME}:")
    a(f"""s_cmp_ge_u32 s2, 256
s_cbranch_scc1 L_end
s_load_dwordx16 s[16:31], s[0:1], 0""")
    if STAMP:
        a(f"{CLK} s[{S_ST}:{S_ST+1}]\ns_memtime s[96:97]")
        for i in range(1, 16):
            a(f"s_mov_b32 s{S_ST+2*i}, 0")
    a(f"""v_lshrrev_b32 v1, 6, v0
v_and_b32 v0, 63, v0
s_and_b32 s{S_G}, s2, 7
v_readfirstlane_b32 s{S_W}, v1
s_lshr_b32 s{S_SLOT}, s2, 3
s_mov_b32 s{S_TO}, 0x40000
v_lshlrev_b32 v{vL16}, 4, v0
v_lshrrev_b32 v{vHF}, 5, v0
v_and_b32 v{vTok}, 31, v0
s_mov_b32 s{S_TK}, s2""")
    if OPT.get('cpf') == '1':
        a(f"""s_cmp_lg_u32 s{S_W}, 7
s_cbranch_scc1 L_nocpf
s_getpc_b64 s[{T}:{T+1}]
L_pc:
s_sub_u32 s{T}, s{T}, L_pc-{NAME}
s_subb_u32 s{T+1}, s{T+1}, 0
s_lshl_b32 s{T+2}, s{S_SLOT}, 10
v_add_u32 v{vT0}, s{T+2}, v{vL16}
v_min_u32 v{vT0}, L_codeend-{NAME}-16, v{vT0}
global_load_dwordx4 v[240:243], v{vT0}, s[{T}:{T+1}]
L_nocpf:""")
    if OPT.get('lead', '1') == '1':
        a(f"""s_mul_i32 s{T}, s{S_G}, 27
s_add_u32 s{T}, s{T}, s{S_SLOT}
s_sub_u32 s{T}, s{T}, {NO}
s_lshr_b32 s{T+1}, s{T}, 2
s_sub_u32 s{T+2}, s{T}, s{T+1}
s_add_u32 s{T+2}, s{T+2}, 93
s_and_b32 s{T+3}, s{T+1}, 1
s_mul_i32 s{T+3}, s{T+3}, 27
s_lshr_b32 s{T+1}, s{T+1}, 1
s_add_u32 s{T+1}, s{T+1}, s{T+3}
s_add_u32 s{T+1}, s{T+1}, 40
s_and_b32 s{T}, s{T}, 3
s_cselect_b32 s{T+1}, s{T+2}, s{T+1}
s_cmp_ge_u32 s2, 40
s_cselect_b32 s{S_TK}, s{T+1}, s2""")
    sP, sCg, sKs, sOff, sRow = T, T+1, T+2, T+3, T+4
    a(f"""s_cmp_ge_u32 s{S_TK}, 64
s_cbranch_scc1 L_s0_nst""")
    vRW = 16
    a(f"""s_lshl_b32 s{sOff}, s{S_TK}, 3
s_add_u32 s{sOff}, s{sOff}, s{S_W}
s_mul_i32 s{sOff}, s{sOff}, 2304
v_mov_b32 v{vRW+8}, 0
v_mov_b32 v{vRW+9}, 0
v_mov_b32 v{vRW+10}, 0
v_mov_b32 v{vRW+11}, 0
s_and_b32 s{T+13}, s2, 1
s_lshr_b32 s{T+12}, s2, 1
s_lshl_b32 s{T+13}, s{T+13}, 3
s_add_u32 s{T+13}, s{T+13}, s{S_W}
v_lshrrev_b32 v{vR8}, 3, v0
v_mul_u32_u24 v{vT0}, 2304, v{vR8}
v_and_b32 v{vT1}, 7, v0
v_xor_b32 v{vT1}, v{vT1}, v{vR8}
v_lshl_add_u32 v{vT0}, v{vT1}, 4, v{vT0}
s_mul_i32 s{T+13}, s{T+13}, {32*2304}
s_lshl_b32 s{T+12}, s{T+12}, 7
s_add_u32 s{T+13}, s{T+13}, s{T+12}
s_lshl_b32 m0, s{S_W}, 12
s_waitcnt lgkmcnt(0)""")
    srd(a, R_C, S_X, SZ_X)
    a(f"""buffer_load_dwordx4 {vr(vRW,4)}, v{vL16}, {RC}, s{sOff} offen
buffer_load_dwordx4 {vr(vRW+4,4)}, v{vL16}, {RC}, s{sOff} offen offset:1024
s_mov_b64 exec, 0xffff
buffer_load_dwordx4 {vr(vRW+8,4)}, v{vL16}, {RC}, s{sOff} offen offset:2048
s_mov_b64 exec, -1
s_load_dword s{S_TAG}, s[{S_WS}:{S_WS+1}], {EPOCH}""")
    a(f"s_cmp_ge_u32 s2, 36\ns_cbranch_scc1 L_s0_stats")
    if OPT.get('xb', '1') == '1':
        a("s_barrier")
    for q in range(4):
        a(f"buffer_load_dwordx4 v{vT0}, {RC}, s{T+13} offen lds")
        if q < 3:
            a(f"s_add_u32 s{T+13}, s{T+13}, {8*2304}\ns_add_u32 m0, m0, 1024\ns_nop 0")
    a(f"""s_branch L_s0_stats
L_s0_nst:
s_cmp_lt_u32 s{S_TK}, 94
s_cbranch_scc1 L_s0_none""")
    vW = 16
    vC = 32
    vSc = 36
    vTm = 44
    vAc = 52
    a(f"""s_sub_u32 s{sP}, s{S_TK}, 94
s_mul_i32 s{sKs}, s{sP}, 57
s_lshr_b32 s{sKs}, s{sKs}, 9
s_mul_i32 s{sCg}, s{sKs}, 9
s_sub_u32 s{sCg}, s{sP}, s{sCg}
s_lshl_b32 s{sRow}, s{sKs}, 3
s_add_u32 s{sRow}, s{sRow}, s{S_W}
s_lshl_b32 s{sRow}, s{sRow}, 3
v_and_b32 v{vT0}, 15, v0
v_lshlrev_b32 v{vT0}, 4, v{vT0}
v_bfe_u32 v{vT1}, v0, 4, 1
v_mul_u32_u24 v{vT1}, 2304, v{vT1}
v_mul_u32_u24 v{vT2}, {4*13824}, v{vHF}
v_add3_u32 v{vT0}, v{vT0}, v{vT1}, v{vT2}
v_lshlrev_b32 v{vT1}, 3, v{vHF}
s_lshl_b32 s{T+5}, s{sRow}, 1
s_mul_i32 s{sOff}, s{sRow}, 13824
s_lshl_b32 s{sRow}, s{sCg}, 8
s_add_u32 s{sOff}, s{sOff}, s{sRow}
s_waitcnt lgkmcnt(0)""")
    srd(a, R_A, S_WMOD, SZ_WMOD)
    srd(a, R_C, S_C, SZ_C)
    a(f"""buffer_load_dwordx2 {vr(vC,2)}, v{vT1}, {RC}, s{T+5} offen
buffer_load_dwordx2 {vr(vC+2,2)}, v{vT1}, {RC}, s{T+5} offen offset:2304""")
    for n in range(4):
        a(f"buffer_load_dwordx4 {vr(vW+4*n,4)}, v{vT0}, {RA}, s{sOff} offen")
        if n < 3:
            a(f"s_add_u32 s{sOff}, s{sOff}, 13824")
    a(f"s_load_dword s{S_TAG}, s[{S_WS}:{S_WS+1}], {EPOCH}")
    srd(a, R_WS, S_WS, SZ_WS)
    lane_consts(a)
    b_setup(a)
    if EW:
        a("s_barrier")
        w_dma(a, EW)
    a(f"s_waitcnt vmcnt({4+EW})")
    for i in range(4):
        unpack(a, vSc+2*i, vSc+2*i+1, vC+i)
    silu8(a, vSc, vTm)
    for i in range(4):
        a(f"v_cvt_pk_bf16_f32 v{vC+i}, v{vSc+2*i}, v{vSc+2*i+1}")
    for i in range(4):
        unpack(a, vSc+2*i, vSc+2*i+1, vC+i)
    a(f"""s_lshl_b32 s{sOff}, s{S_W}, 11
s_add_u32 s{sOff}, s{sOff}, {L_MISC}
v_lshlrev_b32 v{vT2}, 5, v0
v_add_u32 v{vT2}, s{sOff}, v{vT2}
s_lshr_b32 s{sOff}, s{S_W}, 1
s_lshl_b32 s{sOff}, s{sOff}, 10
s_and_b32 s{sRow}, s{S_W}, 1
s_lshl_b32 s{sP}, s{sRow}, 8
s_add_u32 s{sOff}, s{sOff}, s{sP}
s_add_u32 s{sOff}, s{sOff}, {L_MISC}
v_lshlrev_b32 v{vT3}, 3, v{vTok}
v_lshl_add_u32 v{vT3}, v{vHF}, 9, v{vT3}
v_add_u32 v{vT3}, s{sOff}, v{vT3}
s_lshl_b32 s{sP}, s{sCg}, 1
s_add_u32 s{sP}, s{sP}, s{sRow}
s_lshl_b32 s{sP}, s{sP}, 1
s_lshr_b32 s{sOff}, s{S_W}, 1
s_add_u32 s{sP}, s{sP}, s{sOff}
s_mul_i32 s{sP}, s{sP}, 18
s_add_u32 s{sP}, s{sP}, s{sKs}
s_lshl_b32 s{sP}, s{sP}, 10
s_add_u32 s{sP}, s{sP}, {WS_PART}
v_and_b32 v{vT0}, 28, v0
v_lshlrev_b32 v{vT0}, 5, v{vT0}
v_lshl_add_u32 v{vT0}, v{vHF}, 6, v{vT0}
v_and_b32 v{vT1}, 3, v0
v_lshl_add_u32 v{vT0}, v{vT1}, 4, v{vT0}""")
    get_tag(a)
    E2 = int(OPT.get('ew2', 0)); E2AT = int(OPT.get('ew2at', 3))
    for n in range(4):
        a(f"s_waitcnt vmcnt({3-n+EW+(E2 if n > E2AT else 0)})")
        if n == E2AT and E2: w_dma(a, E2)
        if n == 3: stamp(a, 8)
        for i in range(4):
            unpack(a, vTm+2*i, vTm+2*i+1, vW+4*n+i)
        for b in range(2):
            for j in range(8):
                op = "v_mul_f32" if n == 0 else "v_fmac_f32"
                a(f"{op} v{vAc+8*b+j}, v{vTm+j}, v{vSc+4*b+n}")
    a("s_nop 1")
    for j in range(8):
        a(f"v_permlane32_swap_b32 v{vAc+j}, v{vAc+8+j}")
    for j in range(8):
        a(f"v_add_f32 v{vAc+j}, v{vAc+j}, v{vAc+8+j}")
    lsk = a.label("pubsk")
    a(f"""ds_write_b128 v{vT2}, {vr(vAc,4)}
ds_write_b128 v{vT2}, {vr(vAc+4,4)} offset:16
s_waitcnt lgkmcnt(0)
s_barrier
s_cmp_ge_u32 s{S_W}, 4
s_cbranch_scc1 {lsk}""")
    for w in range(8):
        a(f"ds_read_b64 {vr(vW+2*w,2)}, v{vT3} offset:{w*2048}")
    a(f"""v_mov_b32 v{vAc+1}, v{vTAG}
v_mov_b32 v{vAc+3}, v{vTAG}
s_waitcnt lgkmcnt(4)
v_add_f32 v{vW}, v{vW}, v{vW+2}
v_add_f32 v{vW+1}, v{vW+1}, v{vW+3}
v_add_f32 v{vW+4}, v{vW+4}, v{vW+6}
v_add_f32 v{vW+5}, v{vW+5}, v{vW+7}
s_waitcnt lgkmcnt(0)
v_add_f32 v{vW+8}, v{vW+8}, v{vW+10}
v_add_f32 v{vW+9}, v{vW+9}, v{vW+11}
v_add_f32 v{vW+12}, v{vW+12}, v{vW+14}
v_add_f32 v{vW+13}, v{vW+13}, v{vW+15}
v_add_f32 v{vW}, v{vW}, v{vW+4}
v_add_f32 v{vW+1}, v{vW+1}, v{vW+5}
v_add_f32 v{vW+8}, v{vW+8}, v{vW+12}
v_add_f32 v{vW+9}, v{vW+9}, v{vW+13}
v_add_f32 v{vAc}, v{vW}, v{vW+8}
v_add_f32 v{vAc+2}, v{vW+1}, v{vW+9}
buffer_store_dwordx4 {vr(vAc,4)}, v{vT0}, {WS}, s{sP} offen sc1
{lsk}:""")
    stamp(a, 9)
    if OPT.get('pack') == '1':
        a("s_waitcnt vmcnt(0)")
    if 'nopb' not in OPT:
        a("s_barrier")
    w_dma(a, 18-EW-E2)
    a("s_branch L_b")
    a("L_s0_stats:")
    srd(a, R_WS, S_WS, SZ_WS)
    lane_consts(a)
    lnx = a.label("nox"); ljx = a.label("jx")
    get_tag(a)
    a(f"s_cmp_ge_u32 s2, 36\ns_cbranch_scc1 {lnx}\ns_waitcnt vmcnt(4)\ns_branch {ljx}\n{lnx}:\ns_waitcnt vmcnt(0)\n{ljx}:")
    stamp(a, 8)
    s1, s2_, q1, q2 = 32, 33, 34, 35
    a(f"s_mov_b32 s{T+12}, 0x3f803f80")
    for i in range(0, 12, 2):
        c = lambda r: "0" if i == 0 else f"v{r}"
        a(f"""v_dot2_f32_bf16 v{s1}, v{vRW+i}, s{T+12}, {c(s1)}
v_dot2_f32_bf16 v{q1}, v{vRW+i}, v{vRW+i}, {c(q1)}
v_dot2_f32_bf16 v{s2_}, v{vRW+i+1}, s{T+12}, {c(s2_)}
v_dot2_f32_bf16 v{q2}, v{vRW+i+1}, v{vRW+i+1}, {c(q2)}""")
    a(f"""s_nop 2
v_add_f32 v{s1}, v{s1}, v{s2_}
v_add_f32 v{q1}, v{q1}, v{q2}""")
    for m in ("quad_perm:[1,0,3,2] row_mask:0xf", "quad_perm:[2,3,0,1] row_mask:0xf", "row_half_mirror row_mask:0xf", "row_mirror row_mask:0xf", "row_bcast:15 row_mask:0xa", "row_bcast:31 row_mask:0xc"):
        a(f"s_nop 0\nv_add_f32_dpp v{s1}, v{s1}, v{s1} {m} bank_mask:0xf\nv_add_f32_dpp v{q1}, v{q1}, v{q1} {m} bank_mask:0xf")
    g = 36
    a(f"""v_mul_f32 v{g}, 0x3a638e39, v{s1}
v_mul_f32 v{g+2}, 0x3a638e39, v{q1}
v_fma_f32 v{g+2}, -v{g}, v{g}, v{g+2}
v_max_f32 v{g+2}, 0, v{g+2}""")
    round_bf16(a, g+2)
    a(f"v_add_f32 v{g+2}, 0x3727c5ac, v{g+2}")
    round_bf16(a, g+2)
    a(f"v_sqrt_f32 v{g+2}, v{g+2}")
    round_bf16(a, g)
    round_bf16(a, g+2)
    lsk = a.label("stsk")
    a(f"""v_rcp_f32 v{g+2}, v{g+2}
v_mov_b32 v{g+1}, v{vTAG}
v_mov_b32 v{g+3}, v{vTAG}
s_lshl_b32 s{T+12}, s{S_W}, 4
s_add_u32 s{T+12}, s{T+12}, {L_STC}
v_mov_b32 v{vT0}, s{T+12}
s_mov_b32 exec_lo, 0
s_brev_b32 exec_hi, 1
ds_write_b128 v{vT0}, {vr(g,4)}
s_mov_b64 exec, -1
s_lshl_b32 s{T+12}, s{S_TK}, 7
s_add_u32 s{T+12}, s{T+12}, {F_STAT}
v_add_u32 v{vT0}, {L_STC}, v{vL16}
s_waitcnt lgkmcnt(0)
s_barrier
s_cmp_lg_u32 s{S_W}, 0
s_cbranch_scc1 {lsk}
s_mov_b64 exec, 0xff
ds_read_b128 {vr(g,4)}, v{vT0}
s_waitcnt lgkmcnt(0)
buffer_store_dwordx4 {vr(g,4)}, v{vL16}, {WS}, s{T+12} offen sc1
s_mov_b64 exec, -1
{lsk}:""")
    stamp(a, 9)
    a(f"s_cmp_lt_u32 s{S_SLOT}, {NO}\ns_cbranch_scc1 L_owner")
    if 'nopb' not in OPT:
        a("s_barrier")
    a("s_branch L_s0_w")
    a("L_s0_none:")
    a(f"s_waitcnt lgkmcnt(0)\ns_load_dword s{S_TAG}, s[{S_WS}:{S_WS+1}], {EPOCH}")
    srd(a, R_WS, S_WS, SZ_WS)
    lane_consts(a)
    get_tag(a)
    if 'cw' in OPT:
        srd(a, R_C, S_C, SZ_C)
        a(f"buffer_load_dword v{vT1}, v{vL16}, {RC}, 0 offen\ns_waitcnt vmcnt(0)")
    a("L_s0_w:")
    b_setup(a)
    w_dma(a, 18)

VOX = 96

S_UCT, S_UTB = 9, 10
vDU = 14
KE = int(OPT.get('ke', 12))
def wo_dma(a, n0, n1):
    a(f"s_add_u32 s{T+10}, s{S_W}, {4*n0-4}")
    for n in range(n0, n1):
        a(f"""s_lshl_b32 m0, s{T+10}, 10
s_mul_i32 s{T+11}, s{T+10}, {8*2304}
buffer_load_dwordx4 v{vDU}, {RB}, s{T+11} offen lds""")
        if n < n1-1:
            a(f"s_add_u32 s{T+10}, s{T+10}, 4")

def gemm_loop(a, nsteps, LA, RING, vAcc, vWF, vH, vA0, vA1, vaddr, sH, lds_first, w_is_a, pre=None, rot=None, bar_at=None):
    WA = int(OPT.get('wa', 2))
    state = dict(issued=0)
    if rot:
        sR, sHs, sHe, sLo, sZ, sLe, vC0, vC1 = rot
        a(f"""s_mov_b32 s{sHs}, s{sH}
s_add_u32 s{sHe}, s{sH}, {nsteps*1024}
s_lshl_b32 s{sLo}, s{sR}, 12
s_add_u32 s{sH}, s{sH}, s{sLo}
s_lshl_b32 s{sLo}, s{sR}, 13
s_mov_b32 s{sZ}, 0
s_mov_b32 s{sLe}, {nsteps*2048}""")
    def hload():
        s = state['issued']
        a(f"buffer_load_dwordx4 {vr(vH+4*(s % RING),4)}, v{vaddr}, {WS}, s{sH} offen offset:{(s&3)*1024} sc1")
        if (s & 3) == 3 and s < nsteps-1:
            if rot: wrap_add(a, sH, 4096, sHe, sHs)
            else: a(f"s_add_u32 s{sH}, s{sH}, 4096")
        state['issued'] += 1
    def wread(s):
        if rot:
            if (s & 3) == 0:
                a(f"v_add_u32 v{vC0}, s{sLo}, v{vA0}\nv_add_u32 v{vC1}, s{sLo}, v{vA1}")
                wrap_add(a, sLo, 8192, sLe, sZ)
            trreads(a, vWF + 8*(s & 3), vC0, vC1, (s & 3)*2048)
            return
        if s and (s & 31) == 0:
            a(f"v_add_u32 v{vA0}, 0x10000, v{vA0}\nv_add_u32 v{vA1}, 0x10000, v{vA1}")
        trreads(a, vWF + 8*(s & 3), vA0, vA1, (s & 31)*2048)
    if lds_first:
        for s in range(WA): wread(s)
    for s in range(LA): hload()
    if pre: pre()
    if not lds_first:
        for s in range(WA): wread(s)
    for s in range(nsteps):
        lg = 4*min(WA-1, nsteps-1 - s)
        a(f"s_waitcnt vmcnt({state['issued'] - s - 1}) lgkmcnt({lg})")
        if s == 0 and lds_first: stamp(a, 4)
        h = vH+4*(s % RING); w0 = vWF+8*(s & 3)
        mfma(a, vAcc, *((w0, h) if w_is_a else (h, w0)), s == 0)
        if s + WA < nsteps:
            wread(s + WA)
        mfma(a, vAcc+16, *((w0+4, h) if w_is_a else (h, w0+4)), s == 0)
        if state['issued'] < nsteps:
            hload()
        if bar_at is not None and s == bar_at:
            a("s_barrier")

SZ = int(OPT['sz']) if 'sz' in OPT else None
UM = int(OPT.get('umap', 2)); UML = UM.bit_length()-1
vDX, vDXO = 236, 235
def d_tile(a):
    sQt, sCt, sCb, sKh, sOff, sXo, sJ, sU, sB, sCol = T, T+1, T+2, T+3, T+4, T+5, T+6, T+7, T+8, T+9
    a(f"""s_and_b32 s{sOff}, s{S_G}, 3
s_mul_i32 s{sOff}, s{sOff}, 18
s_min_u32 s{sJ}, s{S_SLOT}, 17
s_add_u32 s{sOff}, s{sOff}, s{sJ}
s_lshr_b32 s{sCt}, s{sOff}, 3
s_and_b32 s{sJ}, s{sOff}, 7
s_lshr_b32 s{sB}, s{S_G}, 2
s_lshl_b32 s{sQt}, s{sB}, 3
s_add_u32 s{sQt}, s{sQt}, s{sJ}
s_and_b32 s{sCb}, s{S_W}, 3
s_lshr_b32 s{sKh}, s{S_W}, 2
s_lshl_b32 s{sCol}, s{sCt}, 7
s_lshl_b32 s{sXo}, s{sQt}, 3
s_add_u32 s{sXo}, s{sXo}, s{S_W}
s_mul_i32 s{sXo}, s{sXo}, {4*2304}
s_lshl_b32 s{sOff}, s{sCol}, 1
s_add_u32 s{sXo}, s{sXo}, s{sOff}
v_lshrrev_b32 v{vDXO}, 4, v0
v_mul_u32_u24 v{vDXO}, 2304, v{vDXO}
v_and_b32 v{vT3}, 15, v0
v_lshl_add_u32 v{vDXO}, v{vT3}, 4, v{vDXO}""")

def phase_bc(a):
    sTb, sOff, sH, sF = T+1, T+4, T+5, T+6
    vA0, vA1 = V0+1, V0+2
    vAcc = 20
    vWF = 52
    vH = 84
    a("L_b:")
    stamp(a, 1)
    srd(a, R_B, S_WO, SZ_WO)
    srd(a, R_A, S_X, SZ_X)
    a(f"s_sub_u32 s{S_SLOT}, s{S_SLOT}, {NO}")
    d_tile(a)
    XL = OPT.get('xl', '1') == '1'
    xload = lambda: a(f"buffer_load_dwordx4 {vr(vDX,4)}, v{vDXO}, {RA}, s14 offen")
    a(f"s_mov_b32 s14, s{T+5}")
    if not XL:
        xload()
    a(f"""s_and_b32 s{T+14}, s{S_G}, {UM-1}
s_mul_i32 s{T+14}, s{T+14}, 18
s_add_u32 s{T+14}, s{T+14}, s{S_SLOT}
s_lshr_b32 s{S_UCT}, s{T+14}, {UML}
s_and_b32 s{T+14}, s{T+14}, {UM-1}
s_lshr_b32 s{S_UTB}, s{S_G}, {UML}
s_lshl_b32 s{S_UTB}, s{S_UTB}, {UML}
s_add_u32 s{S_UTB}, s{S_UTB}, s{T+14}
s_lshl_b32 s{S_UTB}, s{S_UTB}, 1
s_and_b32 s{T+14}, s{S_W}, 1
s_add_u32 s{S_UTB}, s{S_UTB}, s{T+14}
v_lshlrev_b32 v{vDU}, 4, v{vCH}
v_mul_u32_u24 v{vT0}, 2304, v{vR8}
s_lshl_b32 s{T+14}, s{S_UCT}, 7
v_add3_u32 v{vDU}, v{vDU}, v{vT0}, s{T+14}
s_lshl_b32 s{sTb}, s{S_BRT}, 2
s_and_b32 s{sOff}, s{S_W}, 3
s_add_u32 s{sTb}, s{sTb}, s{sOff}
s_mul_i32 s{sH}, s{sTb}, {72*1024}
s_add_u32 s{sH}, s{sH}, {WS_H}
v_mov_b32 v{vA0}, v{vB0}
v_mov_b32 v{vA1}, v{vB1}
v_min_u32 v{vT0}, 17, v0
v_lshlrev_b32 v{vT0}, 7, v{vT0}
s_lshr_b32 s{sOff}, s{S_BRT}, 1
s_mul_i32 s{sOff}, s{sOff}, {18*128}
s_add_u32 s{sOff}, s{sOff}, {F_H}
s_mul_i32 s{sF}, s{sTb}, 54
s_add_u32 s{sF}, s{sF}, s{S_BCT}
s_lshl_b32 s{sF}, s{sF}, 7
s_add_u32 s{sF}, s{sF}, {F_QKV}
s_waitcnt vmcnt(0)""")
    a("s_barrier")
    stamp(a, 2)
    a(f"s_cmp_ge_u32 s{S_W}, 4\ns_cbranch_scc1 L_ld")
    HPWG = OPT.get('hp', 'w') == 'wg'
    G1 = int(OPT.get('g1', 8))
    if G1:
        assert SZ is None and not HPWG
        a(f"v_min_u32 v{vT0}, {(G1-1)*128}, v{vT0}")
    if HPWG:
        poll(a, vT0, f"s{sOff}", vT1)
    else:
        wpoll(a, vT0, f"s{sOff}", vT1)
    stamp(a, 3)
    LA = int(OPT['la'])
    BR = int(OPT.get('brot', 0))
    if BR:
        a(f"s_mul_i32 s{T+8}, s{S_G}, {BR}")
    gemm_loop(a, 72, LA, LA+4, vAcc, vWF, vH, vA0, vA1, vL16, sH, True, True, bar_at=(4*G1 - int(OPT['la']) - 1 if G1 else SZ),
              rot=(T+8, T+9, T+10, T+11, T+12, T+13, V0, V0+3) if BR else None)
    stamp(a, 5)
    a(f"""s_mul_i32 s{sH}, s{sTb}, {216*1024}
s_lshl_b32 s{sOff}, s{S_BCT}, 12
s_add_u32 s{sH}, s{sH}, s{sOff}
s_add_u32 s{sH}, s{sH}, {WS_QKV}
s_nop 7""")
    for u in range(4):
        if u == 2:
            a("s_nop 1")
        for r in range(4*u, 4*u+4):
            a(f"v_cvt_pk_bf16_f32 v{vWF+r}, v{vAcc+2*r}, v{vAcc+2*r+1}")
        a(f"buffer_store_dwordx4 {vr(vWF+4*u,4)}, v{vL16}, {WS}, s{sH} offen offset:{1024*u} sc1")
    a("s_barrier")
    stamp(a, 6)
    sKh = T+2
    a(f"""s_lshr_b32 s{sKh}, s{S_W}, 1
s_mul_i32 s{sH}, s{S_UTB}, {216*1024}
s_mul_i32 s{sOff}, s{sKh}, {36*1024}
s_add_u32 s{sH}, s{sH}, s{sOff}
s_add_u32 s{sH}, s{sH}, {WS_QKV + 144*1024}
s_mul_i32 s{sOff}, s{sKh}, {576*128}
v_add_u32 v{vA0}, s{sOff}, v{vB0}
v_add_u32 v{vA1}, s{sOff}, v{vB1}
v_min_u32 v{vT0}, 8, v0
v_lshlrev_b32 v{vT0}, 7, v{vT0}
s_mul_i32 s{T+7}, s{S_UTB}, {54*128}
s_mul_i32 s{sOff}, s{sKh}, {9*128}
s_add_u32 s{T+7}, s{T+7}, s{sOff}
s_add_u32 s{T+7}, s{T+7}, {F_QKV + 36*128}
s_waitcnt vmcnt(0)""")
    raw_flag(a, f"s{sF}")
    a("s_barrier")
    stamp(a, 7)
    a(f"s_cmp_ge_u32 s{S_SLOT}, 18\ns_cbranch_scc1 L_c_notu")
    if XL:
        xload()
    if 'udelay' in OPT:
        a(f"s_sleep {OPT['udelay']}")
    UROT = int(OPT.get('urot', 0))
    if UROT:
        a(f"s_mul_i32 s{T+8}, s{S_G if 'urg' in OPT else S_UCT}, {UROT}")
        mod9(a, T+8, T+8, T+9)
    wpoll(a, vT0, f"s{T+7}", vT1)
    stamp(a, 12)
    LA = int(OPT.get('lau', 12))
    gemm_loop(a, 36, LA, min(36, LA+4), vAcc, vWF, vH, vA0, vA1, vP16, sH, False, False, pre=lambda: (a("s_barrier"), stamp(a, 11)),
              rot=(T+8, T+9, T+10, T+11, T+12, T+13, V0, V0+3) if UROT else None)
    stamp(a, 13)
    lk1 = a.label("kh1"); lj = a.label("j")
    a(f"""s_lshl_b32 s{sOff}, s{S_W}, 12
s_add_u32 s{sOff}, s{sOff}, {L_MISC}
v_add_u32 v{vT0}, s{sOff}, v{vL16}
v_xor_b32 v{vT1}, {2*4096}, v{vT0}
s_lshr_b32 s{sH}, s{S_UTB}, 3
s_mul_i32 s{sF}, s{sH}, 18
s_add_u32 s{sF}, s{sF}, s{S_UCT}
s_lshl_b32 s{sH}, s{sF}, 1
s_add_u32 s{sH}, s{sH}, s{sKh}
s_lshl_b32 s{sH}, s{sH}, 3
s_and_b32 s{sOff}, s{S_UTB}, 7
s_add_u32 s{sH}, s{sH}, s{sOff}
s_lshl_b32 s{sF}, s{sH}, 7
s_add_u32 s{sF}, s{sF}, {F_U}
s_lshl_b32 s{sH}, s{sH}, 11
s_add_u32 s{sH}, s{sH}, {WS_U}
s_cmp_lg_u32 s{sKh}, 0
s_cbranch_scc1 {lk1}""")
    for q in range(4):
        a(f"ds_write_b128 v{vT0}, {vr(vAcc+16+4*q,4)} offset:{q*1024}")
    a(f"s_branch {lj}\n{lk1}:")
    for q in range(4):
        a(f"ds_write_b128 v{vT0}, {vr(vAcc+4*q,4)} offset:{q*1024}")
    for r in range(16):
        a(f"v_mov_b32 v{vAcc+r}, v{vAcc+16+r}")
    a(f"{lj}:\ns_waitcnt lgkmcnt(0)\ns_barrier")
    for q in range(4):
        a(f"ds_read_b128 {vr(vWF+4*q,4)}, v{vT1} offset:{q*1024}")
    for u in range(2):
        a(f"s_waitcnt lgkmcnt({2-2*u})")
        for r in range(8*u, 8*u+8):
            a(f"v_add_f32 v{vAcc+r}, v{vAcc+r}, v{vWF+r}")
        for r in range(4*u, 4*u+4):
            a(f"v_cvt_pk_bf16_f32 v{vWF+16+r}, v{vAcc+2*r}, v{vAcc+2*r+1}")
        a(f"buffer_store_dwordx4 {vr(vWF+16+4*u,4)}, v{vL16}, {WS}, s{sH} offen offset:{1024*u} sc1")
    if OPT.get('fb', '1') == '1':
        a("s_waitcnt vmcnt(0)")
        raw_flag(a, f"s{sF}")
        a("s_barrier")
    else:
        a("s_barrier\ns_waitcnt vmcnt(0)")
        raw_flag(a, f"s{sF}")
    a("s_branch L_c_done")
    lnu = a.label("ldnu")
    vWo = 20
    NE = int(OPT.get('ne', 18))
    a("L_ld:")
    if 'tlb' in OPT:
        sh = int(OPT['tlb'])
        lt = a.label("tlb")
        srd(a, R_A, S_OUT, SZ_X)
        srd(a, R_C, S_WS, 0x700000)
        a(f"s_cmp_lg_u32 s{S_W}, 7\ns_cbranch_scc1 {lt}\nv_lshlrev_b32 v{vT2}, {sh}, v0\nv_add_u32 v{vT2}, {(1<<sh)-128}, v{vT2}")
        a(f"buffer_load_dword v236, v{vT2}, {RA}, 0 offen")
        for off in range(0, 0x700000, 64 << sh):
            a(f"v_add_u32 v{vT1}, {off}, v{vT2}\nbuffer_load_dword v237, v{vT1}, {RC}, 0 offen sc1")
        a(f"{lt}:")
    NA = int(OPT.get('na', 0))
    a(f"""s_cmp_ge_u32 s{S_SLOT}, 18
s_cbranch_scc1 {lnu}
s_sub_u32 s{T+10}, s{S_W}, 4
s_lshl_b32 s{T+11}, s{T+10}, 10
v_add_u32 v{vT0}, s{T+11}, v{vL16}
s_bfe_u32 s{T+12}, s{S_UTB}, 0x10001
s_mul_i32 s{T+12}, s{T+12}, 72
s_bfe_u32 s{T+11}, s{S_UTB}, 0x10002
s_mul_i32 s{T+11}, s{T+11}, {36 if UM > 2 else 0}
s_add_u32 s{T+12}, s{T+12}, s{T+11}
s_add_u32 s{T+10}, s{T+10}, s{T+12}
s_lshl_b32 s{T+12}, s{T+12}, 10""")
    def nxt(n):
        if n < 35:
            a(f"s_add_u32 s{T+10}, s{T+10}, 4")
            if n % 9 == 8:
                a(f"""s_sub_u32 s{T+11}, s{T+10}, 144
s_cmp_ge_u32 s{T+10}, 144
s_cselect_b32 s{T+10}, s{T+11}, s{T+10}""")
    for n in range(NE):
        if SZ is not None and n == NA:
            a("s_barrier")
        a(f"""s_mul_i32 s{T+11}, s{T+10}, {8*2304}
buffer_load_dwordx4 {vr(vWo+4*n,4)}, v{vDU}, {RB}, s{T+11} offen
{THRO}""")
        nxt(n)
    stamp(a, 4)
    def hall():
        l7 = a.label("w7")
        a(f"""s_cmp_lg_u32 s{S_W}, 7
s_cbranch_scc1 {l7}
v_min_u32 v{vT2}, 17, v0
v_lshlrev_b32 v{vT2}, 7, v{vT2}""")
        wpoll(a, vT2, f"s{sOff}", vT1)
        a(f"{l7}:\ns_barrier")
    if G1:
        hall()
    if HPWG:
        a("s_barrier")
    a("s_barrier")
    stamp(a, 5)
    WS_ = min(NE, int(OPT.get('wsplit', 12)))
    def wr(n):
        if n % 9 == 0:
            a(f"v_add_u32 v{vT1}, s{T+12}, v{vT0}")
            a(f"""s_add_u32 s{T+12}, s{T+12}, {36*1024}
s_cmp_ge_u32 s{T+12}, {144*1024}
s_cselect_b32 s{T+12}, 0, s{T+12}""")
        a(f"ds_write_b128 v{vT1}, {vr(vWo+4*n,4)} offset:{(n % 9)*4096}")
    KD = min(36-NE, int(OPT.get('kd', 0)))
    def dm(n):
        a(f"""s_lshl_b32 m0, s{T+10}, 10
s_mul_i32 s{T+11}, s{T+10}, {8*2304}
buffer_load_dwordx4 v{vDU}, {RB}, s{T+11} offen lds""")
        nxt(n)
    a("s_waitcnt vmcnt(0)")
    for n in range(NE, NE+KD): dm(n)
    for n in range(WS_): wr(n)
    a("s_barrier")
    if 'dfirst' in OPT:
        a("s_nop 15")
        for n in range(NE+KD, 36): dm(n)
        for n in range(WS_, NE): wr(n)
    else:
        for n in range(WS_, NE): wr(n)
        for n in range(NE+KD, 36): dm(n)
    a(f"""s_waitcnt vmcnt(0) lgkmcnt(0)""")
    stamp(a, 11)
    lg4 = a.label("g4")
    a("s_barrier")
    if XL:
        xload()
        a("s_waitcnt vmcnt(0)")
    a(f"""s_cmp_lg_u32 s{S_W}, 4
s_cbranch_scc1 {lg4}""")
    d_tile(a)
    a(f"""s_lshr_b32 s{T+10}, s{T+9}, 6
s_lshl_b32 s{T+10}, s{T+10}, 7
s_add_u32 s{T+10}, s{T+10}, {F_G}
v_and_b32 v{vT0}, 1, v0
v_lshlrev_b32 v{vT0}, 7, v{vT0}
s_mul_i32 s{T+11}, s{T+8}, 4608
s_lshl_b32 s{T+12}, s{T+9}, 2
s_add_u32 s{T+11}, s{T+11}, s{T+12}
s_add_u32 s{T+11}, s{T+11}, {WS_GATE}
v_lshlrev_b32 v{vT2}, 3, v0""")
    wpoll(a, vT0, f"s{T+10}", vT1)
    a(f"""buffer_load_dwordx2 v[20:21], v{vT2}, {WS}, s{T+11} offen sc1
s_waitcnt vmcnt(0)
s_barrier
ds_write_b64 v{vT2}, v[20:21] offset:{L_GATE}
s_waitcnt lgkmcnt(0)
s_barrier
s_branch L_c_done
{lg4}:
s_barrier
s_barrier
s_branch L_c_done
{lnu}:""")
    if G1:
        hall()
    a(f"""s_barrier
s_barrier""")
    if SZ is not None:
        a("s_barrier")
    if HPWG:
        a("s_barrier")
    a("L_c_notu:")
    sQb, sKb, sKq, sJ, sK, sQ, sTy = T, T+1, T+2, T+3, T+5, T+6, T+9
    sM = T+10
    sK1 = T+12
    vS = 56
    RING = 15
    SW = OPT.get('sw', '1') == '1'
    SPW = f"""s_mul_i32 s{sOff}, s{sKq}, 18
s_add_u32 s{T+13}, s{sOff}, 17
s_lshr_b32 s{sOff}, s{sOff}, 2
s_lshr_b32 s{T+13}, s{T+13}, 2
v_add_u32 v{vT0}, s{sOff}, v{vTok}
v_min_u32 v{vT0}, s{T+13}, v{vT0}""" if SW else f"v_min_u32 v{vT0}, 17, v{vTok}"
    a(f"""s_sub_u32 s{sJ}, s{S_SLOT}, 18
s_lshr_b32 s{sTy}, s{sJ}, 2
s_and_b32 s{sKq}, s{S_W}, 3
s_and_b32 s{sQb}, s{S_G}, 1
s_lshl_b32 s{sQb}, s{sQb}, 2
s_and_b32 s{sOff}, s{sJ}, 3
s_add_u32 s{sQb}, s{sQb}, s{sOff}
s_and_b32 s{sKb}, s{S_G}, 2
s_lshl_b32 s{sKb}, s{sKb}, 1
s_lshr_b32 s{sOff}, s{S_G}, 2
s_lshl_b32 s{sOff}, s{sOff}, 3
s_add_u32 s{sQb}, s{sQb}, s{sOff}
s_add_u32 s{sKb}, s{sKb}, s{sOff}
s_min_u32 s{sK1}, s{sTy}, 1
s_add_u32 s{sK1}, s{sK1}, s{sTy}
s_mul_i32 s{sK}, s{sKb}, {216*1024}
s_mul_i32 s{sQ}, s{sQb}, {216*1024}
s_mul_i32 s{sOff}, s{sKq}, {18*1024}
s_add_u32 s{sK}, s{sK}, s{sOff}
s_add_u32 s{sQ}, s{sQ}, s{sOff}
s_add_u32 s{sK}, s{sK}, {WS_QKV + 72*1024}
s_add_u32 s{sQ}, s{sQ}, {WS_QKV}
s_mul_i32 s{sOff}, s{sKq}, 18
s_add_u32 s{T+13}, s{sOff}, 17
s_lshr_b32 s{sOff}, s{sOff}, 2
s_lshr_b32 s{T+13}, s{T+13}, 2
v_and_b32 v{vT0}, 7, v0
v_add_u32 v{vT0}, s{sOff}, v{vT0}
v_min_u32 v{vT0}, s{T+13}, v{vT0}
s_mul_i32 s{sOff}, s{sQb}, 54
v_mov_b32 v{vT1}, s{sOff}
s_add_u32 s{sOff}, s{sKb}, s{sK1}
s_mul_i32 s{sOff}, s{sOff}, 54
s_add_u32 s{sOff}, s{sOff}, 18
v_mov_b32 v{vT2}, s{sOff}
v_cmp_lt_u32 vcc, 7, v0
s_mul_i32 s{sOff}, s{sKb}, 54
s_add_u32 s{sOff}, s{sOff}, {54+18}
v_cndmask_b32 v{vT1}, v{vT1}, v{vT2}, vcc
v_mov_b32 v{vT2}, s{sOff}
v_cmp_lt_u32 vcc, 15, v0
s_nop 1
v_cndmask_b32 v{vT1}, v{vT1}, v{vT2}, vcc
v_add_u32 v{vT0}, v{vT0}, v{vT1}
v_lshlrev_b32 v{vT0}, 7, v{vT0}
v_and_b32 v{vT2}, 0x2ff, v{vP16}
v_and_b32 v{vT1}, 16, v0
v_lshl_add_u32 v{vT2}, v{vT1}, 6, v{vT2}
s_and_b32 s{sOff}, s{sTy}, 1
s_lshl_b32 s{sOff}, s{sOff}, 8
s_add_u32 s{sOff}, s{sOff}, {216*1024}
v_add_u32 v{vT2}, s{sOff}, v{vT2}
s_mul_i32 s{sOff}, s{sK1}, {216*1024}
v_add_u32 v{V0}, s{sOff}, v{vP16}
s_mov_b32 s{sOff}, {F_QKV}""")
    lsi = a.label("sidle")
    if not SW:
        poll(a, vT0, f"s{sOff}", vT1)
    a(f"s_cmp_ge_u32 s{S_W}, 4\ns_cbranch_scc1 {lsi}")
    if SW:
        wpoll(a, vT0, f"s{sOff}", vT1)
    stamp(a, 12)
    LA = int(OPT.get('las', 4))
    vS = 72; RING = 8
    vAc3 = 56
    assert LA < RING
    def sload(p):
        r = vS + 20*(p % RING)
        o = (p & 1)*2048
        a(f"""buffer_load_dwordx4 {vr(r,4)}, v{vL16}, {WS}, s{sQ} offen offset:{o} sc1
buffer_load_dwordx4 {vr(r+4,4)}, v{V0}, {WS}, s{sK} offen offset:{o} sc1
buffer_load_dwordx4 {vr(r+8,4)}, v{vT2}, {WS}, s{sK} offen offset:{o} sc1
buffer_load_dwordx4 {vr(r+12,4)}, v{vL16}, {WS}, s{sQ} offen offset:{o+1024} sc1
buffer_load_dwordx4 {vr(r+16,4)}, v{V0}, {WS}, s{sK} offen offset:{o+1024} sc1""")
        if p & 1:
            a(f"s_add_u32 s{sK}, s{sK}, 4096\ns_add_u32 s{sQ}, s{sQ}, 4096")
    for p in range(LA):
        sload(p)
    for p in range(9):
        y = 5*(min(9, p + LA) - p - 1)
        r = vS + 20*(p % RING)
        a(f"s_waitcnt vmcnt({y+3})")
        mfma(a, vAcc, r+4, r, p == 0)
        a(f"s_waitcnt vmcnt({y+2})")
        mfma(a, vAcc+16, r+8, r, p == 0)
        a(f"s_waitcnt vmcnt({y+1})")
        mfma(a, vAc3, r+8, r+12, p == 0)
        a(f"s_waitcnt vmcnt({y})")
        mfma(a, vAcc, r+16, r+12)
        if p + LA < 9:
            sload(p + LA)
    stamp(a, 13)
    QS, HS, PSZ = 1056, 528, 8448
    a(f"""s_mul_i32 s{sOff}, s{S_W}, {PSZ}
v_lshl_add_u32 v{vT0}, v{vHF}, 4, v{vL16}
v_add_u32 v{vT0}, s{sOff}, v{vT0}
s_nop 7""")
    for r in range(8):
        a(f"v_add_f32 v{vAcc+16+r}, v{vAcc+16+r}, v{vAc3+8+r}")
    for q in (4, 5, 0, 1, 2, 3):
        a(f"ds_write_b128 v{vT0}, {vr(vAcc+4*q,4)} offset:{q*QS}")
    a(f"""{lsi}:
v_bfe_u32 v{vT1}, v0, 2, 2
v_and_b32 v{vT2}, 1, v0
v_lshl_add_u32 v{vT1}, v{vT1}, 1, v{vT2}
v_mul_u32_u24 v{vT1}, {QS}, v{vT1}
v_bfe_u32 v{vT2}, v0, 1, 1
v_mul_u32_u24 v{vT2}, {HS}, v{vT2}
v_lshrrev_b32 v{vT0}, 4, v0
s_lshl_b32 s{sOff}, s{S_W}, 2
v_add_u32 v{vT0}, s{sOff}, v{vT0}
v_lshl_add_u32 v{vT1}, v{vT0}, 4, v{vT1}
v_add_u32 v{vT1}, v{vT1}, v{vT2}
v_and_b32 v{vT2}, 7, v0
v_lshlrev_b32 v{vT2}, 4, v{vT2}
v_lshl_add_u32 v{vT2}, v{vT0}, 10, v{vT2}
s_lshl_b32 s{sOff}, s{sK1}, 7
v_mov_b32 v{vT0}, s{sOff}
v_and_b32 v{vT3}, 8, v0
v_cmp_ne_u32 vcc, 0, v{vT3}
s_and_b32 s{sOff}, s{sTy}, 1
s_lshl_b32 s{sOff}, s{sOff}, 6
s_add_u32 s{sOff}, s{sOff}, 128
v_mov_b32 v{vT3}, s{sOff}
s_lshl_b32 s{sJ}, s{sQb}, 15
v_cndmask_b32 v{vT0}, v{vT0}, v{vT3}, vcc
v_add_u32 v{vT2}, v{vT2}, v{vT0}
s_and_b32 s{sOff}, s{sKb}, 7
s_lshl_b32 s{sOff}, s{sOff}, 7
s_add_u32 s{sJ}, s{sJ}, s{sOff}
s_add_u32 s{sJ}, s{sJ}, {WS_L}
s_lshl_b32 s{sK}, s{sQb}, 3
s_add_u32 s{sK}, s{sK}, s{S_W}
s_mul_i32 s{sK}, s{sK}, 6
s_bfe_u32 s{sOff}, s{sKb}, 0x10002
s_mul_i32 s{sOff}, s{sOff}, 3
s_add_u32 s{sK}, s{sK}, s{sOff}
s_add_u32 s{sK}, s{sK}, s{sTy}
s_lshl_b32 s{sK}, s{sK}, 7
s_add_u32 s{sK}, s{sK}, {F_LH}
s_mov_b32 s{sM}, 0x0fff0fff
s_cmp_eq_u32 s{sTy}, 2
s_cselect_b32 s{sM}, 0x00ff00ff, s{sM}
s_mov_b32 s{sM+1}, s{sM}
v_mov_b32 v53, v{vTAG}
v_mov_b32 v55, v{vTAG}
s_waitcnt lgkmcnt(0)
s_barrier""")
    for j in range(4):
        a(f"ds_read_b128 {vr(vAcc+4*j,4)}, v{vT1} offset:{j*PSZ}")
    a("s_waitcnt lgkmcnt(2)")
    for r in range(4):
        a(f"v_add_f32 v{vAcc+r}, v{vAcc+r}, v{vAcc+4+r}")
    a("s_waitcnt lgkmcnt(0)")
    for r in range(4):
        a(f"v_add_f32 v{vAcc+8+r}, v{vAcc+8+r}, v{vAcc+12+r}")
    for r in range(4):
        a(f"v_add_f32 v{vAcc+r}, v{vAcc+r}, v{vAcc+8+r}")
    sc = struct.unpack('<I', struct.pack('<f', D ** -0.5))[0]
    for r in range(2):
        a(f"v_cvt_pk_bf16_f32 v{52+2*r}, v{vAcc+2*r}, v{vAcc+2*r+1}")
    for r in range(2):
        unpack(a, vAcc+2*r, vAcc+2*r+1, 52+2*r)
    for r in range(4):
        a(f"v_mul_f32 v{vAcc+r}, {hex(sc)}, v{vAcc+r}")
    for r in range(2):
        a(f"v_cvt_pk_bf16_f32 v{52+2*r}, v{vAcc+2*r}, v{vAcc+2*r+1}")
    a(f"s_mov_b64 exec, s[{sM}:{sM+1}]\nbuffer_store_dwordx4 v[52:55], v{vT2}, {WS}, s{sJ} offen sc1\ns_mov_b64 exec, -1")
    raw_flag(a, f"s{sK}")
    a("L_c_done:")
    stamp(a, 14)

def phase_d(a):
    sQt, sCt, sCb, sKh, sOff, sXo, sJ, sU, sB, sCol = T, T+1, T+2, T+3, T+4, T+5, T+6, T+7, T+8, T+9
    vXo, vMx, vS, vLa, vPa, vLw = vDXO, V0+1, V0+2, V0+3, V0+4, V0+5
    vLd = 24
    vX = vDX
    vG = 44
    vF = 56
    vR = 72
    vAcc = 80
    vU = 96
    vP = 128
    PS = 1056
    L_P, L_EX = 40960, 65536
    srd(a, R_B, S_OUT, SZ_X)
    a(f"s_cmp_ge_u32 s{S_SLOT}, 18\ns_cbranch_scc1 L_fin")
    d_tile(a)
    a(f"""s_mul_i32 s{sU}, s{sB}, 36
s_lshl_b32 s{sOff}, s{sCt}, 2
s_add_u32 s{sU}, s{sU}, s{sOff}
s_add_u32 s{sU}, s{sU}, s{sCb}
s_lshl_b32 s{sU}, s{sU}, 4
s_lshl_b32 s{sOff}, s{sKh}, 3
s_add_u32 s{sU}, s{sU}, s{sOff}
s_lshl_b32 s{T+10}, s{sU}, 6
s_add_u32 s{T+10}, s{T+10}, {F_U}
s_lshl_b32 s{sU}, s{sU}, 10
s_add_u32 s{sU}, s{sU}, {WS_U}
v_and_b32 v{vT0}, 3, v0
v_lshlrev_b32 v{vT0}, 7, v{vT0}
v_add_u32 v{vT1}, s{T+10}, v{vT0}
s_lshl_b32 s{sOff}, s{sQt}, 3
s_add_u32 s{sOff}, s{sOff}, s{S_W}
s_mul_i32 s{sOff}, s{sOff}, {6*128}
s_add_u32 s{sOff}, s{sOff}, {F_LH}
v_min_u32 v{vT2}, 5, v0
v_lshlrev_b32 v{vT2}, 7, v{vT2}
v_add_u32 v{vT2}, s{sOff}, v{vT2}
v_cmp_gt_u32 vcc, 8, v0
v_and_b32 v{vT3}, 15, v0
v_lshrrev_b32 v{vT0}, 4, v0
v_cndmask_b32 v{vT1}, v{vT1}, v{vT2}, vcc
s_lshl_b32 s{sOff}, s{S_W}, 2
v_add_u32 v{vT0}, s{sOff}, v{vT0}
v_lshlrev_b32 v{vLa}, 10, v{vT0}
v_lshl_add_u32 v{vLa}, v{vT3}, 4, v{vLa}
v_lshrrev_b32 v{vT2}, 1, v{vT3}
v_mul_u32_u24 v{vLw}, {PS//2}, v{vT2}
v_lshl_add_u32 v{vLw}, v{vT0}, 4, v{vLw}
v_and_b32 v{vT2}, 1, v0
v_lshl_add_u32 v{vLw}, v{vT2}, 3, v{vLw}
v_lshl_add_u32 v{vPa}, v{vHF}, 4, v{vL16}
s_mul_i32 s{sOff}, s{sKh}, {8*PS}
v_add_u32 v{vPa}, s{sOff}, v{vPa}
v_lshlrev_b32 v{vT0}, 5, v{vT3}
ds_read_b128 {vr(vG,4)}, v{vT0} offset:{L_GATE}
ds_read_b128 {vr(vG+4,4)}, v{vT0} offset:{L_GATE+16}
s_lshl_b32 s{sOff}, s{sQt}, 15
s_add_u32 s{sOff}, s{sOff}, {WS_L}""")
    vFa, vFl = 22, 23
    sUd = T+12
    def uloads():
        for s in range(8):
            a(f"buffer_load_dwordx4 {vr(vU+4*s,4)}, v{vL16}, {WS}, s{sU} offen offset:{(s&3)*1024} sc1")
            if s == 3:
                a(f"s_add_u32 s{sU}, s{sU}, 4096")
        a(f"s_mov_b32 s{sUd}, 1")
        stamp(a, 8)
    l = a.label("lp"); d = a.label("lpd"); nu = a.label("nu"); l3 = a.label("lv"); d3 = a.label("lvd"); nu2 = a.label("nu2")
    def lloads():
        for n in range(4):
            a(f"buffer_load_dwordx4 {vr(vLd+4*n,4)}, v{vLa}, {WS}, s{sOff} offen offset:{256*n} sc1")
    a(f"""v_mov_b32 v{vFa}, v{vT1}
s_mov_b32 s{sUd}, 0
{l}:
buffer_load_dword v{vFl}, v{vFa}, {WS}, 0 offen {PF}
s_waitcnt vmcnt(0)
v_cmp_ne_u32 vcc, s{S_TAG}, v{vFl}
s_and_b32 s{T+13}, vcc_lo, 255
s_cbranch_scc0 {d}
s_lshr_b32 s{T+13}, vcc_lo, 8
s_or_b32 s{T+13}, s{T+13}, s{sUd}
s_cbranch_scc1 {nu}""")
    uloads()
    a(f"""{nu}:
s_sleep {OPT.get('lsleep', 1)}
s_sub_u32 s{S_TO}, s{S_TO}, 1
s_cmp_lg_u32 s{S_TO}, 0
s_cbranch_scc1 {l}
s_mov_b32 s{S_TO}, 1
{d}:""")
    lloads()
    a(f"""s_lshr_b32 s{T+13}, vcc_lo, 8
s_or_b32 s{T+13}, s{T+13}, s{sUd}
s_cbranch_scc1 {nu2}""")
    if 'ul' in OPT:
        a(f"s_waitcnt vmcnt({OPT['ul']})")
    uloads()
    a(f"""s_waitcnt vmcnt(8)
s_branch {l3}_c
{nu2}:
buffer_load_dword v{vFl}, v{vFa}, {WS}, 0 offen {PF}
s_waitcnt vmcnt(1)
s_branch {l3}_c
{l3}:""")
    lloads()
    a(f"""s_waitcnt vmcnt(0)
{l3}_c:
v_min_u32 v{vT1}, v{vLd+1}, v{vLd+3}
v_max_u32 v{vT2}, v{vLd+1}, v{vLd+3}""")
    for n in range(1, 4):
        a(f"v_min3_u32 v{vT1}, v{vT1}, v{vLd+4*n+1}, v{vLd+4*n+3}\nv_max3_u32 v{vT2}, v{vT2}, v{vLd+4*n+1}, v{vLd+4*n+3}")
    a(f"""v_cmp_ne_u32 vcc, s{S_TAG}, v{vT1}
v_cmp_ne_u32 s[{T+14}:{T+15}], s{S_TAG}, v{vT2}
s_or_b64 vcc, vcc, s[{T+14}:{T+15}]
s_cbranch_vccz {d3}
s_sub_u32 s{S_TO}, s{S_TO}, 1
s_cmp_lg_u32 s{S_TO}, 0
s_cbranch_scc1 {l3}
s_mov_b32 s{S_TO}, 1
{d3}:""")
    stamp(a, 9)
    for i in range(8):
        unpack(a, vF+2*i, vF+2*i+1, vLd+2*i)
    a(f"""v_max3_f32 v{vMx}, v{vF}, v{vF+1}, v{vF+2}
v_max3_f32 v{vS}, v{vF+3}, v{vF+4}, v{vF+5}
v_max3_f32 v{vMx}, v{vMx}, v{vF+6}, v{vF+7}
v_max3_f32 v{vS}, v{vS}, v{vF+8}, v{vF+9}
v_max3_f32 v{vMx}, v{vMx}, v{vF+10}, v{vF+11}
v_max3_f32 v{vS}, v{vS}, v{vF+12}, v{vF+13}
v_max3_f32 v{vMx}, v{vMx}, v{vF+14}, v{vF+15}
v_max_f32 v{vMx}, v{vMx}, v{vS}""")
    for m in ("quad_perm:[1,0,3,2]", "quad_perm:[2,3,0,1]", "row_half_mirror", "row_mirror"):
        a(f"s_nop 1\nv_max_f32_dpp v{vMx}, v{vMx}, v{vMx} {m} row_mask:0xf bank_mask:0xf")
    a(f"s_mov_b32 s{T+10}, {hex(LOG2E)}\nv_mul_f32 v{vMx}, s{T+10}, v{vMx}")
    for i in range(16):
        a(f"v_fma_f32 v{vF+i}, v{vF+i}, s{T+10}, -v{vMx}")
    for i in range(16):
        a(f"v_exp_f32 v{vF+i}, v{vF+i}")
    a(f"v_add_f32 v{vS}, v{vF}, v{vF+1}\nv_add_f32 v{vMx}, v{vF+2}, v{vF+3}")
    for i in range(4, 16, 2):
        a(f"v_add_f32 v{vS}, v{vS}, v{vF+i}\nv_add_f32 v{vMx}, v{vMx}, v{vF+i+1}")
    a(f"v_add_f32 v{vS}, v{vS}, v{vMx}")
    for m in ("quad_perm:[1,0,3,2]", "quad_perm:[2,3,0,1]", "row_half_mirror", "row_mirror"):
        a(f"s_nop 1\nv_add_f32_dpp v{vS}, v{vS}, v{vS} {m} row_mask:0xf bank_mask:0xf")
    a(f"v_rcp_f32 v{vS}, v{vS}\ns_nop 0")
    for i in range(16):
        a(f"v_mul_f32 v{vF+i}, v{vF+i}, v{vS}")
    for i in range(8):
        a(f"v_cvt_pk_bf16_f32 v{vLd+i}, v{vF+2*i}, v{vF+2*i+1}")
    for n in range(4):
        a(f"ds_write_b64 v{vLw}, {vr(vLd+2*n,2)} offset:{L_P+4*n*PS}")
    hu = a.label("hu"); l2 = a.label("up"); d2 = a.label("upd")
    a(f"""s_cmp_lg_u32 s{sUd}, 0
s_cbranch_scc1 {hu}
{l2}:
s_waitcnt vmcnt(0)
v_cmp_ne_u32 vcc, s{S_TAG}, v{vFl}
s_cbranch_vccz {d2}
buffer_load_dword v{vFl}, v{vFa}, {WS}, 0 offen {PF}
s_sub_u32 s{S_TO}, s{S_TO}, 1
s_cmp_lg_u32 s{S_TO}, 0
s_cbranch_scc1 {l2}
s_mov_b32 s{S_TO}, 1
{d2}:""")
    uloads()
    a(f"{hu}:\ns_waitcnt lgkmcnt(0)\ns_barrier")
    for s in range(8):
        a(f"ds_read_b128 {vr(vP+4*s,4)}, v{vPa} offset:{L_P+s*PS}")
    ROW = 528; EXS = 32*ROW
    a(f"""s_mul_i32 s{sOff}, s{sKh}, {EXS}
s_lshl_b32 s{T+10}, s{sCb}, 7
s_add_u32 s{sOff}, s{sOff}, s{T+10}
s_add_u32 s{sOff}, s{sOff}, {L_EX}
v_mul_u32_u24 v{vT1}, {ROW}, v{vTok}
v_lshl_add_u32 v{vT1}, v{vHF}, 5, v{vT1}
v_add_u32 v{vT1}, s{sOff}, v{vT1}
v_lshrrev_b32 v{vT2}, 4, v0
v_mul_u32_u24 v{vT2}, {ROW}, v{vT2}
s_mul_i32 s{sOff}, s{S_W}, {4*ROW}
s_add_u32 s{sOff}, s{sOff}, {L_EX}
v_add3_u32 v{vT2}, v{vT2}, v{vT0}, s{sOff}""")
    for s in range(8):
        a(f"s_waitcnt vmcnt({7-s}) lgkmcnt({7-s})")
        mfma(a, vAcc, vU+4*s, vP+4*s, s == 0)
    for i in range(4):
        unpack(a, vF+2*i, vF+2*i+1, vX+i)
    stamp(a, 10)
    a("s_nop 3")
    for q in range(4):
        a(f"ds_write_b128 v{vT1}, {vr(vAcc+4*q,4)} offset:{64*(q>>1) + 16*(q&1)}")
    a(f"""s_waitcnt lgkmcnt(0)
s_barrier
ds_read_b128 {vr(vAcc,4)}, v{vT2}
ds_read_b128 {vr(vR,4)}, v{vT2} offset:{EXS}
ds_read_b128 {vr(vAcc+4,4)}, v{vT2} offset:16
ds_read_b128 {vr(vR+4,4)}, v{vT2} offset:{EXS+16}
s_waitcnt vmcnt(0) lgkmcnt(2)""")
    for r in range(8):
        if r == 4:
            a("s_waitcnt lgkmcnt(0)")
        a(f"v_add_f32 v{vAcc+r}, v{vAcc+r}, v{vR+r}")
    def cv():
        for i in range(4):
            a(f"v_cvt_pk_bf16_f32 v{vR+i}, v{vAcc+2*i}, v{vAcc+2*i+1}")
    def up():
        for i in range(4):
            unpack(a, vAcc+2*i, vAcc+2*i+1, vR+i)
    cv(); up()
    for r in range(8):
        a(f"v_mul_f32 v{vAcc+r}, v{vAcc+r}, v{vG+r}")
    cv(); up()
    for r in range(8):
        a(f"v_add_f32 v{vAcc+r}, v{vAcc+r}, v{vF+r}")
    cv()
    a(f"buffer_store_dwordx4 {vr(vR,4)}, v{vXo}, {RB}, s{sXo} offen {OPT.get('oflag', '').replace('+', ' ')}")
    a("L_fin:")

def gemv_dma(a, sColA, vD):
    sRow0, sOff = T+2, T+3
    a(f"""v_lshlrev_b32 v{vD}, 4, v{vCH}
v_mul_u32_u24 v{vT0}, 13824, v{vR8}
v_add3_u32 v{vD}, v{vD}, v{vT0}, s{sColA}
s_mul_i32 s{sOff}, s{sRow0}, 13824
s_lshl_b32 m0, s{sRow0}, 7""")
    for t in range(18):
        a(f"""s_nop 0
buffer_load_dwordx4 v{vD}, {RA}, s{sOff} offen {NT} lds""")
        if t < 17:
            a(f"s_add_u32 s{sOff}, s{sOff}, {8*13824}\ns_add_u32 m0, m0, 1024")

def phase_owner(a):
    sColA, sB, sRow0, sOff, sO, sCs, sTb = T, T+1, T+2, T+3, T+4, T+5, T+6
    vD, vA0, vA1, vSil, vCs = V0, V0+1, V0+2, V0+3, V0+4
    vC = 24
    vST = 28
    vX = VOX
    vXN = 48
    vPt = 80
    vAcc = 112
    vWF = 144
    vSF = 160
    vM = 184
    a(f"""s_mov_b32 s{sO}, s2
s_cmp_ge_u32 s{sO}, 36
s_cbranch_scc1 L_o_pref
s_lshr_b32 s{sCs}, s{sO}, 1
s_and_b32 s{sB}, s{sO}, 1
s_waitcnt vmcnt(0)
s_barrier""")
    stamp(a, 6)
    vST = 32
    vPt = 112
    SM = [32, 33, 34, 35, 36, 37, 38, 39, 40, 41, 42, 43, 9, 10, 11, 12]
    a(f"""v_and_b32 v{vT3}, 7, v0
v_xor_b32 v{vT0}, s{S_W}, v{vT3}
v_lshlrev_b32 v{vT0}, 4, v{vT0}
v_lshl_add_u32 v{vT0}, v0, 7, v{vT0}""")
    for q in range(4):
        a(f"ds_read_b128 {vr(vX+4*q,4)}, v{vT0} offset:{q*8192}")
    a(f"""s_lshl_b32 s{T+9}, s{sB}, 12
s_add_u32 s{T+9}, s{T+9}, {F_STAT}
s_mul_i32 s{T+10}, s{sO}, {18*1024}
s_lshl_b32 s{sOff}, s{S_W}, 7
s_add_u32 s{T+10}, s{T+10}, s{sOff}
s_add_u32 s{T+10}, s{T+10}, {WS_PART}
s_add_u32 s{T+11}, s{T+10}, 8192
v_lshlrev_b32 v{vT1}, 4, v{vT3}
v_min_u32 v{vT2}, 1, v{vR8}
v_lshl_add_u32 v{vT2}, v{vT2}, 10, v{vT1}
v_add_u32 v{vT2}, 16384, v{vT2}
v_lshl_add_u32 v{vT1}, v{vR8}, 10, v{vT1}
v_cmp_gt_u32 vcc, 16, v0
v_mul_u32_u24 v{vCs}, {72*1024}, v{vHF}
v_lshl_add_u32 v{vCs}, v{vTok}, 4, v{vCs}
v_cndmask_b32 v{vA0}, 0, 1.0, vcc
v_bfe_u32 v{vA1}, v0, 2, 1
v_cvt_f32_u32 v{vA1}, v{vA1}
s_mul_i32 s{sOff}, s{sB}, {8*72*1024}
s_lshl_b32 s{T+12}, s{sCs}, 12
s_add_u32 s{sOff}, s{sOff}, s{T+12}
s_lshl_b32 s{T+12}, s{S_W}, 9
s_add_u32 s{sOff}, s{sOff}, s{T+12}
s_add_u32 s{sOff}, s{sOff}, {WS_H}
s_waitcnt lgkmcnt(0)""")
    def stl():
        for q in range(4):
            a(f"buffer_load_dwordx4 {vr(vST+4*q,4)}, v{vL16}, {WS}, s{T+9} offen offset:{1024*q} sc1")
    def pl():
        a(f"""buffer_load_dwordx4 {vr(vPt,4)}, v{vT1}, {WS}, s{T+10} offen sc1
buffer_load_dwordx4 {vr(vPt+4,4)}, v{vT1}, {WS}, s{T+11} offen sc1
buffer_load_dwordx4 {vr(vPt+8,4)}, v{vT2}, {WS}, s{T+10} offen sc1""")
    P = [(q, i) for q in range(4) for i in range(4)]
    lo = lambda q, i: vXN+8*q+2*i
    hi = lambda q, i: vXN+8*q+2*i+1
    xs = lambda q, i: vX+4*q+i
    def st_unpack():
        for q, i in P: unpack(a, lo(q,i), hi(q,i), xs(q,i))
    def st_cvt():
        for q, i in P: a(f"v_cvt_pk_bf16_f32 v{xs(q,i)}, v{lo(q,i)}, v{hi(q,i)}")
    def st_op(op, f):
        for q, i in P:
            a(f"{op} v{lo(q,i)}, v{lo(q,i)}, v{f(q,2*i)}\n{op} v{hi(q,i)}, v{hi(q,i)}, v{f(q,2*i+1)}")
    st_unpack()
    if 'st1' in OPT:
        a(f"v_and_b32 v{vM}, 3, v0\ns_lshl_b32 s{T+12}, s{S_W}, 9\nv_lshlrev_b32 v{vM}, 7, v{vM}\ns_add_u32 s{T+12}, s{T+12}, s{T+9}\nv_add_u32 v{vM}, 124, v{vM}")
        wpoll(a, vM, f"s{T+12}", vM+1)
        a("s_barrier")
    if OPT.get('st2', '1') == '1':
        a(f"""s_lshl_b32 s{T+12}, s{S_W}, 9
v_lshlrev_b32 v{vM}, 4, v{vTok}
v_add_u32 v{vM}, s{T+12}, v{vM}
v_add_u32 v{vM+1}, {L_RED}, v{vM}
v_add_u32 v{vM+2}, {L_RED}, v{vL16}""")
        gpoll(a, lambda: a(f"buffer_load_dwordx4 {vr(vST,4)}, v{vM}, {WS}, s{T+9} offen sc1"), [vST+1, vST+3], OPT.get('ssleep'))
        a(f"""ds_write_b128 v{vM+1}, {vr(vST,4)}
s_waitcnt lgkmcnt(0)
s_barrier""")
        for q in range(4):
            a(f"ds_read_b128 {vr(vST+4*q,4)}, v{vM+2} offset:{1024*q}")
        a("s_waitcnt lgkmcnt(0)")
    else:
        gpoll(a, stl, [vST+4*q+j for q in range(4) for j in (1, 3)], OPT.get('ssleep'))
    stamp(a, 1)
    st_op("v_sub_f32", lambda q, j: vST+4*q); st_cvt()
    st_unpack()
    pl()
    st_op("v_mul_f32", lambda q, j: vST+4*q+2); st_cvt()
    st_unpack()
    stamp(a, 2)
    lp = a.label("pp"); ld = a.label("ppd")
    a(f"""{lp}:
s_waitcnt vmcnt(0)
v_min3_u32 v{vM}, v{vPt+1}, v{vPt+3}, v{vPt+5}
v_max3_u32 v{vM+1}, v{vPt+1}, v{vPt+3}, v{vPt+5}
v_min3_u32 v{vM}, v{vM}, v{vPt+7}, v{vPt+9}
v_max3_u32 v{vM+1}, v{vM+1}, v{vPt+7}, v{vPt+9}
v_min_u32 v{vM}, v{vM}, v{vPt+11}
v_max_u32 v{vM+1}, v{vM+1}, v{vPt+11}
v_cmp_ne_u32 vcc, s{S_TAG}, v{vM}
v_cmp_ne_u32 s[{T+14}:{T+15}], s{S_TAG}, v{vM+1}
s_or_b64 vcc, vcc, s[{T+14}:{T+15}]
s_cbranch_vccz {ld}
s_sub_u32 s{S_TO}, s{S_TO}, 1
s_cmp_eq_u32 s{S_TO}, 0
s_cbranch_scc1 {ld}""")
    pl()
    a(f"""s_branch {lp}
{ld}:
s_max_u32 s{S_TO}, s{S_TO}, 1
v_add_f32 v{vPt}, v{vPt}, v{vPt+4}
v_add_f32 v{vPt+2}, v{vPt+2}, v{vPt+6}
v_fmac_f32 v{vPt}, v{vA0}, v{vPt+8}
v_fmac_f32 v{vPt+2}, v{vA0}, v{vPt+10}
s_nop 1
v_permlane32_swap_b32 v{vPt}, v{vPt+2}
s_nop 0
v_add_f32 v{vPt}, v{vPt}, v{vPt+2}
v_mov_b32 v{vPt+2}, v{vPt}
s_nop 1
v_permlane16_swap_b32 v{vPt}, v{vPt+2}
s_nop 0
v_add_f32 v{vPt}, v{vPt}, v{vPt+2}
s_nop 1
v_add_f32_dpp v{vPt}, v{vPt}, v{vPt} row_ror:8 row_mask:0xf bank_mask:0xf""")
    round_bf16(a, vPt)
    a(f"v_add_f32 v{vPt}, v{vPt}, v{vA1}")
    round_bf16(a, vPt)
    a("s_nop 0")
    for u in (4, 5, 6, 7, 0, 1, 2, 3):
        a(f"v_readlane_b32 s{SM[2*u]}, v{vPt}, {u}\nv_readlane_b32 s{SM[2*u+1]}, v{vPt}, {32+u}")
    stamp(a, 3)
    for q, i in P:
        a(f"v_mul_f32 v{lo(q,i)}, s{SM[8+2*i]}, v{lo(q,i)}\nv_mul_f32 v{hi(q,i)}, s{SM[8+2*i+1]}, v{hi(q,i)}")
    st_cvt(); st_unpack()
    for q in range(4):
        for i in range(4):
            a(f"v_add_f32 v{lo(q,i)}, s{SM[2*i]}, v{lo(q,i)}\nv_add_f32 v{hi(q,i)}, s{SM[2*i+1]}, v{hi(q,i)}")
        for i in range(4):
            a(f"v_cvt_pk_bf16_f32 v{xs(q,i)}, v{lo(q,i)}, v{hi(q,i)}")
        a(f"buffer_store_dwordx4 {vr(vX+4*q,4)}, v{vCs}, {WS}, s{sOff} offen sc1")
        if q < 3:
            a(f"s_add_u32 s{sOff}, s{sOff}, {2*72*1024}")
    stamp(a, 4)
    a(f"""s_mul_i32 s{sOff}, s{sB}, 18
s_add_u32 s{sOff}, s{sOff}, s{sCs}
s_lshl_b32 s{sOff}, s{sOff}, 7
s_add_u32 s{sOff}, s{sOff}, {F_H}""")
    set_flag(a, f"s{sOff}")
    stamp(a, 5)
    if 'ob' in OPT:
        a("s_waitcnt vmcnt(0)\ns_barrier")
    a("L_o_pref:")
    srd(a, R_A, S_WMOD, SZ_WMOD)
    srd(a, R_C, S_C, SZ_C)
    a(f"""s_sub_u32 s{sOff}, s{sO}, 20
s_cmp_ge_u32 s{sO}, 16
s_cselect_b32 s{sO}, s{sOff}, s{sO}
s_cselect_b32 s{sOff}, 16, 0
s_cmp_lt_u32 s{sO}, s{sOff}
s_cbranch_scc1 L_o_upd
s_cmp_ge_u32 s{sO}, 18
s_cbranch_scc1 L_o_upd""")
    if 'gd' in OPT:
        a(f"v_min_u32 v{vT0}, 35, v0\nv_lshlrev_b32 v{vT0}, 7, v{vT0}\ns_movk_i32 s{sOff}, {F_H}")
        poll(a, vT0, f"s{sOff}", vT1)
    a(f"""s_mul_i32 s{sRow0}, s{S_W}, 144
v_min_u32 v{vT0}, 17, v{vTok}
v_lshlrev_b32 v{vT0}, 4, v{vT0}
v_mul_u32_u24 v{vT1}, 2304, v{vHF}
v_add_u32 v{vCs}, v{vT0}, v{vT1}
s_lshl_b32 s{sOff}, s{sRow0}, 1
buffer_load_dwordx4 {vr(vC,4)}, v{vCs}, {RC}, s{sOff} offen
s_lshl_b32 s{sColA}, s{sO}, 7
s_add_u32 s{sColA}, s{sColA}, 4608""")
    gemv_dma(a, sColA, vD)
    a(f"""s_lshl_b32 s{sOff}, s{sRow0}, 7
v_add_u32 v{vA0}, s{sOff}, v{vB0}
v_add_u32 v{vA1}, s{sOff}, v{vB1}
s_waitcnt vmcnt(18)""")
    for i in range(4):
        unpack(a, vM+2*i, vM+2*i+1, vC+i)
    silu8(a, vM, vM+8)
    for i in range(4):
        a(f"v_cvt_pk_bf16_f32 v{vC+i}, v{vM+2*i}, v{vM+2*i+1}")
    a(f"""s_lshl_b32 s{sOff}, s{sRow0}, 1
s_add_u32 s{sOff}, s{sOff}, {L_SIL}
v_add_u32 v{vCs}, s{sOff}, v{vCs}
ds_write_b128 v{vCs}, {vr(vC,4)}
v_and_b32 v{vT0}, 1, v0
v_mul_u32_u24 v{vT0}, 2304, v{vT0}
v_lshl_add_u32 v{vT0}, v{vHF}, 4, v{vT0}
v_add_u32 v{vSil}, s{sOff}, v{vT0}
s_waitcnt lgkmcnt(0)""")
    for s in range(9):
        wf = vWF + 8*(s & 1); sf = vSF + 4*(s & 1)
        a(f"s_waitcnt vmcnt({18-2*(s+1)})")
        a(f"ds_read_b128 {vr(sf,4)}, v{vSil} offset:{s*32}")
        trreads(a, wf, vA0, vA1, s*2048)
        a("s_waitcnt lgkmcnt(2)")
        mfma(a, vAcc, wf, sf, s == 0)
        a("s_waitcnt lgkmcnt(0)")
        mfma(a, vAcc+16, wf+4, sf, s == 0)
    a(f"""v_and_b32 v{vT0}, 1, v0
v_lshlrev_b32 v{vT0}, 8, v{vT0}
v_lshl_add_u32 v{vT0}, v{vHF}, 5, v{vT0}
s_lshl_b32 s{sOff}, s{S_W}, 9
s_add_u32 s{sOff}, s{sOff}, {L_RED}
v_add_u32 v{vT0}, s{sOff}, v{vT0}
s_mov_b32 exec_lo, 3
s_mov_b32 exec_hi, 3
s_nop 8""")
    for cb in range(2):
        for q, off in enumerate((0, 16, 64, 80)):
            a(f"ds_write_b128 v{vT0}, {vr(vAcc+16*cb+4*q,4)} offset:{cb*128+off}")
    a(f"""s_mov_b64 exec, -1
s_waitcnt lgkmcnt(0)
s_barrier
s_lshr_b32 s{sOff}, s{S_W}, 2
s_lshl_b32 s{sOff}, s{sOff}, 8
s_add_u32 s{sOff}, s{sOff}, {L_RED}
v_lshlrev_b32 v{vT0}, 2, v0
v_add_u32 v{vT1}, s{sOff}, v{vT0}""")
    for w in range(8):
        a(f"ds_read_b32 v{vAcc+w}, v{vT1} offset:{w*512}")
    a("s_waitcnt lgkmcnt(0)")
    for w in range(1, 8):
        a(f"v_add_f32 v{vAcc}, v{vAcc}, v{vAcc+w}")
    round_bf16(a, vAcc)
    lsk = a.label("gsk")
    a(f"""s_and_b32 s{sOff}, s{S_W}, 3
s_cmp_lg_u32 s{sOff}, 0
s_cbranch_scc1 {lsk}
s_lshr_b32 s{T+9}, s{S_W}, 2
s_mul_i32 s{sOff}, s{T+9}, 4608
s_lshl_b32 s{sColA}, s{sO}, 8
s_add_u32 s{sOff}, s{sOff}, s{sColA}
s_add_u32 s{sOff}, s{sOff}, {WS_GATE}
buffer_store_dword v{vAcc}, v{vT0}, {WS}, s{sOff} offen sc1
{lsk}:
s_lshl_b32 s{sOff}, s{sO}, 7
s_add_u32 s{sOff}, s{sOff}, {F_G}""")
    set_flag(a, f"s{sOff}")
    stamp(a, 7)
    lp = a.label("ep"); ld = a.label("epd")
    a(f"""L_o_upd:
s_add_u32 s{S_SLOT}, s{S_SLOT}, 25
s_cmp_ge_u32 s{S_SLOT}, 27
s_cbranch_scc1 L_c_notu
s_cmp_lg_u32 s2, 0
s_cbranch_scc1 L_fin
s_lshl_b32 s{sOff}, s{S_W}, 6
v_add_u32 v{vT0}, s{sOff}, v0
v_min_u32 v{vT0}, 431, v{vT0}
v_lshlrev_b32 v{vT0}, 8, v{vT0}
s_mov_b32 s{sOff}, {F_QKV}
{lp}:
s_sleep 16
buffer_load_dword v{vT1}, v{vT0}, {WS}, s{sOff} offen sc1
buffer_load_dword v{vT2}, v{vT0}, {WS}, s{sOff} offen offset:128 sc1
s_waitcnt vmcnt(0)
v_cmp_ne_u32 vcc, s{S_TAG}, v{vT1}
v_cmp_ne_u32 s[{T+14}:{T+15}], s{S_TAG}, v{vT2}
s_or_b64 vcc, vcc, s[{T+14}:{T+15}]
s_cbranch_vccz {ld}
s_sub_u32 s{S_TO}, s{S_TO}, 1
s_cmp_lg_u32 s{S_TO}, 0
s_cbranch_scc1 {lp}
{ld}:
s_mov_b32 s{sOff}, {EPOCH}""")
    set_flag(a, f"s{sOff}")
    a("s_branch L_fin")

def epilogue(a):
    if STAMP and 'probe' in OPT:
        i = int(OPT['probe']); lo, hi = [int(x) for x in OPT.get('prole', '0:256').split(':')]
        a(f"""s_waitcnt vmcnt(0) lgkmcnt(0)
s_cmp_lg_u32 s{S_W}, {OPT.get('stw', 0)}
s_cbranch_scc1 L_end
s_memrealtime s[{S_ST+30}:{S_ST+31}]
s_waitcnt lgkmcnt(0)
s_sub_u32 s{T}, s{S_ST+2*i}, s{S_ST}
s_cmp_eq_u32 s{S_ST+2*i}, 0
s_cselect_b32 s{T}, 0, s{T}
s_cmp_lt_u32 s2, {lo}
s_cselect_b32 s{T}, 0, s{T}
s_cmp_ge_u32 s2, {hi}
s_cselect_b32 s{T}, 0, s{T}
s_lshl_b32 s{T}, s{T}, 2
s_add_u32 s{T}, s{T}, 5000
L_spin:
s_memrealtime s[{T+2}:{T+3}]
s_waitcnt lgkmcnt(0)
s_sub_u32 s{T+2}, s{T+2}, s{S_ST}
s_cmp_lt_u32 s{T+2}, s{T}
s_cbranch_scc1 L_spin""")
    elif STAMP:
        a(f"""s_waitcnt vmcnt(0) lgkmcnt(0)
s_cmp_lg_u32 s{S_W}, {OPT.get('stw', 0)}
s_cbranch_scc1 L_end
{CLK} s[{S_ST+30}:{S_ST+31}]
s_memtime s[98:99]
s_waitcnt lgkmcnt(0)
s_sub_u32 s98, s98, s96""")
        for i in range(16):
            a(f"v_mov_b32 v{16+i}, s{S_ST+2*i}")
        a(f"""v_mov_b32 v32, s98
s_lshl_b32 s{T}, s2, 7
s_add_u32 s{T}, s{T}, {WS_STAMP}
v_mov_b32 v1, 0
s_mov_b64 exec, 1""")
        for i in range(4):
            a(f"buffer_store_dwordx4 v[{16+4*i}:{19+4*i}], v1, {WS}, s{T} offen offset:{16*i}")
        a(f"buffer_store_dword v32, v1, {WS}, s{T} offen offset:64")
    a("L_end:\ns_endpgm")

def main():
    a = Asm()
    a.raw("""; DiT adaLN attention block (B=2, N=256, D=1152) as ONE persistent launch, 256 workgroups x 8 waves (one per CU).
; Written by a generator script of my own (hand-designed schedule, no compiler output).
;  stage 0 : 162 WGs: split-K pieces of silu(c) @ w_mod[:, :2D] -> tagged granules; 64 WGs: LayerNorm row statistics
; @launch grid=(256,1,1) block=(512,1,1) lds=163840""")
    a.raw('.amdgcn_target "amdgcn-amd-amdhsa--gfx950"\n.text')
    prologue(a)
    phase_bc(a)
    NOD[0] = True
    phase_d(a)
    NOD[0] = False
    epilogue(a)
    a("L_owner:")
    phase_owner(a)
    a.raw(".p2align 4\nL_codeend:")
    out = a.text() + kd(NAME, 244, 102)
    path = [x for x in sys.argv[1:] if not x.startswith('--')][0]
    open(path, 'w').write(out)
main()
```

```python
import sys, struct
from asmlib import *

OPT = dict(la='12', nt='', cpf='1', umap='4', lfull='1', pack='0', ew='3')
for a_ in sys.argv[1:]:
    if a_.startswith('--'):
        k, _, v = a_[2:].partition('=')
        OPT[k] = v
STAMP = 'stamp' in OPT
NT = OPT['nt']
PF = OPT.get('pf', 'sc1').replace('+', ' ')
SF = OPT.get('sf', 'sc1').replace('+', ' ')
NTW = 'nt' if 'ntw' in OPT else ''
NTO = 'nt' if 'nto' in OPT else ''
NTM = 'nt' if 'ntm' in OPT else ''
CLK = "s_memtime" if 'cyc' in OPT else "s_memrealtime"

NAME = "standalone__dit_adaln_block__diffusion_kernel"
D = 1152
SZ_X = 512*D*2; SZ_C = 2*D*2; SZ_WQKV = D*3*D*2; SZ_WO = D*D*2; SZ_WMOD = D*6*D*2
SZ_WS = 1 << 28
F_STAT = 0x0
F_H = 0x2000
F_L = 0x4000
F_U = 0x760000
F_G = 0x4000
F_QKV = 0x740000
EPOCH = 0x13000
WS_GATE = 0x14000
WS_H = 0x20000
WS_QKV = 0x140000
WS_L = 0x680000
WS_U = 0x550000
WS_PART = 0x4A0000
WS_STAMP = 0x700000
F_LH = 0x720000
LOG2E = 0x3fb8aa3b

S_W, S_TAG, S_G, S_SLOT, S_TO, S_TK = 3, 4, 5, 6, 7, 8
S_X, S_C, S_WQKV, S_WO, S_WMOD, S_OUT, S_DBG, S_WS = 16, 18, 20, 22, 24, 26, 28, 30
R_A, R_B, R_C, R_WS = 32, 36, 40, 44
T = 48
S_ST = 64
WS = f"s[{R_WS}:{R_WS+3}]"
RA = f"s[{R_A}:{R_A+3}]"; RB = f"s[{R_B}:{R_B+3}]"; RC = f"s[{R_C}:{R_C+3}]"
vL16, vP16, vB0, vB1, vCH, vR8, vHF, vTok = 1, 2, 3, 4, 5, 6, 7, 8
vT0, vT1, vT2, vT3 = 9, 10, 11, 12
vTAG = 13
V0 = 16

L_MISC = 147456
L_SIL = L_MISC
L_RED = L_SIL + 4608
L_FIN = L_RED + 4096
L_ROLE = L_FIN + 4096
L_STC = L_ROLE + 16
L_GATE = 36864
NO = 5

def srd(a, r, ptr, size):
    a(f"""s_mov_b32 s{r}, s{ptr}
s_and_b32 s{r+1}, s{ptr+1}, 0xffff
s_mov_b32 s{r+2}, {hex(size)}
s_mov_b32 s{r+3}, 0x20000""")

NOD = [False]
def stamp(a, i):
    if STAMP and not (NOD[0] and 'nod' in OPT):
        a(f"{CLK} s[{S_ST+2*i}:{S_ST+2*i+1}]")

def unpack(a, lo, hi, src):
    a(f"v_lshlrev_b32 v{lo}, 16, v{src}\nv_and_b32 v{hi}, 0xffff0000, v{src}")

def round_bf16(a, v):
    a(f"v_cvt_pk_bf16_f32 v{v}, v{v}, v{v}\nv_lshlrev_b32 v{v}, 16, v{v}")

HACK = [0]
def mfma(a, acc, A, B, first=False):
    if 'hack16' in OPT and not first:
        HACK[0] += 1
        o = 8*((HACK[0] >> 1) & 1)
        for j in range(2):
            a(f"v_mfma_f32_16x16x32_bf16 {vr(acc+o+4*j,4)}, {vr(A,4)}, {vr(B,4)}, {vr(acc+o+4*j,4)}")
        return
    c = "0" if first else vr(acc, 16)
    a(f"v_mfma_f32_32x32x16_bf16 {vr(acc,16)}, {vr(A,4)}, {vr(B,4)}, {c}")

def wrap_add(a, s, step, s_end, s_start):
    a(f"""s_add_u32 s{s}, s{s}, {step}
s_cmp_eq_u32 s{s}, s{s_end}
s_cselect_b32 s{s}, s{s_start}, s{s}""")

def mod9(a, dst, src, tmp):
    a(f"""s_mul_i32 s{tmp}, s{src}, 57
s_lshr_b32 s{tmp}, s{tmp}, 9
s_mul_i32 s{tmp}, s{tmp}, 9
s_sub_u32 s{dst}, s{src}, s{tmp}""")

def poll(a, vaddr, soff, vtmp):
    l = a.label("poll"); d = a.label("polld")
    a(f"""s_cmp_lg_u32 s{S_W}, 0
s_cbranch_scc1 {d}
{l}:
buffer_load_dword v{vtmp}, v{vaddr}, {WS}, {soff} offen {PF}
s_waitcnt vmcnt(0)
v_cmp_ne_u32 vcc, s{S_TAG}, v{vtmp}
s_cbranch_vccz {d}
s_sleep {OPT.get('sleep', 2)}
s_sub_u32 s{S_TO}, s{S_TO}, 1
s_cmp_lg_u32 s{S_TO}, 0
s_cbranch_scc1 {l}
s_mov_b32 s{S_TO}, 1
{d}:
s_barrier""")

def gpoll(a, loads, tagregs, slp=None):
    l = a.label("gp"); d = a.label("gpd")
    a(f"{l}:")
    loads()
    a(f"s_waitcnt vmcnt(0)\nv_cmp_ne_u32 vcc, s{S_TAG}, v{tagregs[0]}")
    for r in tagregs[1:]:
        a(f"v_cmp_ne_u32 s[{T+14}:{T+15}], s{S_TAG}, v{r}\ns_or_b64 vcc, vcc, s[{T+14}:{T+15}]")
    a(f"""s_cbranch_vccz {d}
s_sleep {slp if slp is not None else OPT.get('gsleep', 2)}
s_sub_u32 s{S_TO}, s{S_TO}, 1
s_cmp_lg_u32 s{S_TO}, 0
s_cbranch_scc1 {l}
s_mov_b32 s{S_TO}, 1
{d}:""")

def raw_flag(a, soff):
    a(f"""v_mov_b32 v{vT3}, 0
s_mov_b64 exec, 1
buffer_store_dword v{vTAG}, v{vT3}, {WS}, {soff} offen {SF}
s_mov_b64 exec, -1""")

def set_flag(a, soff, younger=0):
    d = a.label("fl")
    a(f"""s_waitcnt vmcnt({younger})
s_barrier
s_cmp_lg_u32 s{S_W}, 0
s_cbranch_scc1 {d}""")
    raw_flag(a, soff)
    a(f"{d}:")

def trreads(a, wf, b0, b1, off):
    a(f"""ds_read_b64_tr_b16 {vr(wf,2)}, v{b0} offset:{off}
ds_read_b64_tr_b16 {vr(wf+2,2)}, v{b0} offset:{off+512}
ds_read_b64_tr_b16 {vr(wf+4,2)}, v{b1} offset:{off}
ds_read_b64_tr_b16 {vr(wf+6,2)}, v{b1} offset:{off+512}""")

def dma_tile(a, srdname, vD, pitch, s_rot, flags, n0=0, n1=18):
    sN, sO = T+10, T+11
    if s_rot is None:
        a(f"s_add_u32 s{sN}, s{S_W}, {8*n0}")
    else:
        a(f"s_lshl_b32 s{sN}, s{s_rot}, 3\ns_add_u32 s{sN}, s{sN}, s{S_W}")
    for n in range(n0, n1):
        a(f"""s_lshl_b32 m0, s{sN}, 10
s_mul_i32 s{sO}, s{sN}, {8*pitch}
buffer_load_dwordx4 v{vD}, {srdname}, s{sO} offen {flags} lds""")
        if n < n1-1:
            a(f"s_add_u32 s{sN}, s{sN}, 8")
            if s_rot is not None:
                a(f"""s_sub_u32 s{sO}, s{sN}, 144
s_cmp_ge_u32 s{sN}, 144
s_cselect_b32 s{sN}, s{sO}, s{sN}""")

def wave_sum(a, v, sdst):
    for m in ("quad_perm:[1,0,3,2]", "quad_perm:[2,3,0,1]", "row_half_mirror", "row_mirror"):
        a(f"s_nop 1\nv_add_f32_dpp v{v}, v{v}, v{v} {m} row_mask:0xf bank_mask:0xf")
    a(f"s_nop 1\nv_add_f32_dpp v{v}, v{v}, v{v} row_bcast:15 row_mask:0xa bank_mask:0xf")
    a(f"s_nop 1\nv_add_f32_dpp v{v}, v{v}, v{v} row_bcast:31 row_mask:0xc bank_mask:0xf")
    a(f"s_nop 1\nv_readlane_b32 s{sdst}, v{v}, 63\ns_nop 1")

def silu8(a, f, t):
    for i in range(8):
        a(f"v_mul_f32 v{t+i}, 0xbfb8aa3b, v{f+i}")
    for i in range(8):
        a(f"v_exp_f32 v{t+i}, v{t+i}")
    for i in range(8):
        a(f"v_add_f32 v{t+i}, 1.0, v{t+i}")
    for i in range(8):
        a(f"v_rcp_f32 v{t+i}, v{t+i}")
    for i in range(8):
        a(f"v_mul_f32 v{f+i}, v{f+i}, v{t+i}")

def lane_consts(a):
    a(f"""v_lshrrev_b32 v{vR8}, 3, v0
v_and_b32 v{vP16}, 0x33, v0
v_and_b32 v{vT0}, 4, v0
v_lshl_or_b32 v{vP16}, v{vT0}, 1, v{vP16}
v_and_b32 v{vT0}, 8, v0
v_lshrrev_b32 v{vT0}, 1, v{vT0}
v_or_b32 v{vP16}, v{vP16}, v{vT0}
v_lshlrev_b32 v{vP16}, 4, v{vP16}
v_lshrrev_b32 v{vT0}, 2, v0
v_and_b32 v{vT0}, 4, v{vT0}
v_and_b32 v{vCH}, 7, v0
v_xor_b32 v{vCH}, v{vCH}, v{vT0}
v_lshlrev_b32 v{vB0}, 10, v{vHF}
v_and_b32 v{vT0}, 12, v0
v_lshl_or_b32 v{vB0}, v{vT0}, 5, v{vB0}
v_and_b32 v{vT0}, 8, v0
v_lshl_or_b32 v{vB0}, v{vT0}, 3, v{vB0}
v_and_b32 v{vT0}, 16, v0
v_lshl_or_b32 v{vB0}, v{vT0}, 1, v{vB0}
v_and_b32 v{vT0}, 1, v0
v_lshl_or_b32 v{vB0}, v{vT0}, 4, v{vB0}
v_and_b32 v{vT0}, 2, v0
v_lshl_or_b32 v{vB0}, v{vT0}, 2, v{vB0}
v_xor_b32 v{vB1}, 64, v{vB0}""")

def get_tag(a):
    a(f"""s_waitcnt lgkmcnt(0)
s_mul_i32 s{S_TAG}, s{S_TAG}, 1664525
s_add_u32 s{S_TAG}, s{S_TAG}, 1013904223
v_mov_b32 v{vTAG}, s{S_TAG}""")

def wpoll(a, vaddr, soff, vtmp):
    gpoll(a, lambda: a(f"buffer_load_dword v{vtmp}, v{vaddr}, {WS}, {soff} offen {PF}"), [vtmp])

S_BCT, S_BRT = 11, 12
vDW = 15
R0, R1 = [int(x) for x in OPT.get('wrot', '36,28').split(',')]
assert R0 + 3*R1 + 7 < 144
def b_setup(a):
    srd(a, R_B, S_WQKV, SZ_WQKV)
    a(f"""s_mul_i32 s{S_BCT}, s{S_G}, 27
s_add_u32 s{S_BCT}, s{S_BCT}, s{S_SLOT}
s_sub_u32 s{S_BCT}, s{S_BCT}, {NO}
s_and_b32 s{S_BRT}, s{S_BCT}, 3
s_lshr_b32 s{S_BCT}, s{S_BCT}, 2
s_mul_i32 s13, s{S_BRT}, {R1}
s_add_u32 s{T+14}, s13, {R0}
s_cmp_lg_u32 s{S_BRT}, 0
s_cselect_b32 s13, s{T+14}, s13
s_add_u32 s13, s13, s{S_W}
v_lshlrev_b32 v{vDW}, 4, v{vCH}
v_mul_u32_u24 v{vT0}, 6912, v{vR8}
s_lshl_b32 s{T+14}, s{S_BCT}, 7
v_add3_u32 v{vDW}, v{vDW}, v{vT0}, s{T+14}""")

THR = f"s_waitcnt vmcnt({OPT['thr']})" if 'thr' in OPT else ''
THRO = f"s_waitcnt vmcnt({OPT['thro']})" if 'thro' in OPT else ''
def w_dma(a, n):
    for i in range(n):
        a(f"""s_lshl_b32 m0, s13, 10
s_mul_i32 s{T+14}, s13, {8*6912}
buffer_load_dwordx4 v{vDW}, {RB}, s{T+14} offen {NTW} lds
{THR}
s_add_u32 s13, s13, 8
s_sub_u32 s{T+14}, s13, 144
s_cmp_ge_u32 s13, 144
s_cselect_b32 s13, s{T+14}, s13""")

EW = int(OPT.get('ew', 0))
def prologue(a):
    a.raw(f".globl {NAME}\n.p2align 8\n.type {NAME},@function\n{NAME}:")
    a(f"""s_cmp_ge_u32 s2, 256
s_cbranch_scc1 L_end
s_load_dwordx16 s[16:31], s[0:1], 0""")
    if STAMP:
        a(f"{CLK} s[{S_ST}:{S_ST+1}]\ns_memtime s[96:97]")
        for i in range(1, 16):
            a(f"s_mov_b32 s{S_ST+2*i}, 0")
    a(f"""v_lshrrev_b32 v1, 6, v0
v_and_b32 v0, 63, v0
s_and_b32 s{S_G}, s2, 7
v_readfirstlane_b32 s{S_W}, v1
s_lshr_b32 s{S_SLOT}, s2, 3
s_mov_b32 s{S_TO}, 0x40000
v_lshlrev_b32 v{vL16}, 4, v0
v_lshrrev_b32 v{vHF}, 5, v0
v_and_b32 v{vTok}, 31, v0
s_mov_b32 s{S_TK}, s2""")
    if OPT.get('cpf') == '1':
        a(f"""s_cmp_lg_u32 s{S_W}, 7
s_cbranch_scc1 L_nocpf
s_getpc_b64 s[{T}:{T+1}]
L_pc:
s_sub_u32 s{T}, s{T}, L_pc-{NAME}
s_subb_u32 s{T+1}, s{T+1}, 0
s_lshl_b32 s{T+2}, s{S_SLOT}, 10
v_add_u32 v{vT0}, s{T+2}, v{vL16}
v_min_u32 v{vT0}, L_codeend-{NAME}-16, v{vT0}
global_load_dwordx4 v[240:243], v{vT0}, s[{T}:{T+1}]
L_nocpf:""")
    if OPT.get('lead', '1') == '1':
        a(f"""s_mul_i32 s{T}, s{S_G}, 27
s_add_u32 s{T}, s{T}, s{S_SLOT}
s_sub_u32 s{T}, s{T}, {NO}
s_lshr_b32 s{T+1}, s{T}, 2
s_sub_u32 s{T+2}, s{T}, s{T+1}
s_add_u32 s{T+2}, s{T+2}, 93
s_and_b32 s{T+3}, s{T+1}, 1
s_mul_i32 s{T+3}, s{T+3}, 27
s_lshr_b32 s{T+1}, s{T+1}, 1
s_add_u32 s{T+1}, s{T+1}, s{T+3}
s_add_u32 s{T+1}, s{T+1}, 40
s_and_b32 s{T}, s{T}, 3
s_cselect_b32 s{T+1}, s{T+2}, s{T+1}
s_cmp_ge_u32 s2, 40
s_cselect_b32 s{S_TK}, s{T+1}, s2""")
    sP, sCg, sKs, sOff, sRow = T, T+1, T+2, T+3, T+4
    a(f"""s_cmp_ge_u32 s{S_TK}, 64
s_cbranch_scc1 L_s0_nst""")
    vRW = 16
    a(f"""s_lshl_b32 s{sOff}, s{S_TK}, 3
s_add_u32 s{sOff}, s{sOff}, s{S_W}
s_mul_i32 s{sOff}, s{sOff}, 2304
v_mov_b32 v{vRW+8}, 0
v_mov_b32 v{vRW+9}, 0
v_mov_b32 v{vRW+10}, 0
v_mov_b32 v{vRW+11}, 0
s_and_b32 s{T+13}, s2, 1
s_lshr_b32 s{T+12}, s2, 1
s_lshl_b32 s{T+13}, s{T+13}, 3
s_add_u32 s{T+13}, s{T+13}, s{S_W}
v_lshrrev_b32 v{vR8}, 3, v0
v_mul_u32_u24 v{vT0}, 2304, v{vR8}
v_and_b32 v{vT1}, 7, v0
v_xor_b32 v{vT1}, v{vT1}, v{vR8}
v_lshl_add_u32 v{vT0}, v{vT1}, 4, v{vT0}
s_mul_i32 s{T+13}, s{T+13}, {32*2304}
s_lshl_b32 s{T+12}, s{T+12}, 7
s_add_u32 s{T+13}, s{T+13}, s{T+12}
s_lshl_b32 m0, s{S_W}, 12
s_waitcnt lgkmcnt(0)""")
    srd(a, R_C, S_X, SZ_X)
    a(f"""buffer_load_dwordx4 {vr(vRW,4)}, v{vL16}, {RC}, s{sOff} offen
buffer_load_dwordx4 {vr(vRW+4,4)}, v{vL16}, {RC}, s{sOff} offen offset:1024
s_mov_b64 exec, 0xffff
buffer_load_dwordx4 {vr(vRW+8,4)}, v{vL16}, {RC}, s{sOff} offen offset:2048
s_mov_b64 exec, -1
s_load_dword s{S_TAG}, s[{S_WS}:{S_WS+1}], {EPOCH}""")
    a(f"s_cmp_ge_u32 s2, 36\ns_cbranch_scc1 L_s0_stats")
    if OPT.get('xb', '1') == '1':
        a("s_barrier")
    for q in range(4):
        a(f"buffer_load_dwordx4 v{vT0}, {RC}, s{T+13} offen lds")
        if q < 3:
            a(f"s_add_u32 s{T+13}, s{T+13}, {8*2304}\ns_add_u32 m0, m0, 1024\ns_nop 0")
    a(f"""s_branch L_s0_stats
L_s0_nst:
s_cmp_lt_u32 s{S_TK}, 94
s_cbranch_scc1 L_s0_none""")
    vW = 16
    vC = 32
    vSc = 36
    vTm = 44
    vAc = 52
    a(f"""s_sub_u32 s{sP}, s{S_TK}, 94
s_mul_i32 s{sKs}, s{sP}, 57
s_lshr_b32 s{sKs}, s{sKs}, 9
s_mul_i32 s{sCg}, s{sKs}, 9
s_sub_u32 s{sCg}, s{sP}, s{sCg}
s_lshl_b32 s{sRow}, s{sKs}, 3
s_add_u32 s{sRow}, s{sRow}, s{S_W}
s_lshl_b32 s{sRow}, s{sRow}, 3
v_and_b32 v{vT0}, 15, v0
v_lshlrev_b32 v{vT0}, 4, v{vT0}
v_bfe_u32 v{vT1}, v0, 4, 1
v_mul_u32_u24 v{vT1}, 2304, v{vT1}
v_mul_u32_u24 v{vT2}, {4*13824}, v{vHF}
v_add3_u32 v{vT0}, v{vT0}, v{vT1}, v{vT2}
v_lshlrev_b32 v{vT1}, 3, v{vHF}
s_lshl_b32 s{T+5}, s{sRow}, 1
s_mul_i32 s{sOff}, s{sRow}, 13824
s_lshl_b32 s{sRow}, s{sCg}, 8
s_add_u32 s{sOff}, s{sOff}, s{sRow}
s_waitcnt lgkmcnt(0)""")
    srd(a, R_A, S_WMOD, SZ_WMOD)
    srd(a, R_C, S_C, SZ_C)
    a(f"""buffer_load_dwordx2 {vr(vC,2)}, v{vT1}, {RC}, s{T+5} offen
buffer_load_dwordx2 {vr(vC+2,2)}, v{vT1}, {RC}, s{T+5} offen offset:2304""")
    for n in range(4):
        a(f"buffer_load_dwordx4 {vr(vW+4*n,4)}, v{vT0}, {RA}, s{sOff} offen {NTM}")
        if n < 3:
            a(f"s_add_u32 s{sOff}, s{sOff}, 13824")
    a(f"s_load_dword s{S_TAG}, s[{S_WS}:{S_WS+1}], {EPOCH}")
    srd(a, R_WS, S_WS, SZ_WS)
    lane_consts(a)
    b_setup(a)
    if EW:
        a("s_barrier")
        w_dma(a, EW)
    a(f"s_waitcnt vmcnt({4+EW})")
    for i in range(4):
        unpack(a, vSc+2*i, vSc+2*i+1, vC+i)
    silu8(a, vSc, vTm)
    for i in range(4):
        a(f"v_cvt_pk_bf16_f32 v{vC+i}, v{vSc+2*i}, v{vSc+2*i+1}")
    for i in range(4):
        unpack(a, vSc+2*i, vSc+2*i+1, vC+i)
    a(f"""s_lshl_b32 s{sOff}, s{S_W}, 11
s_add_u32 s{sOff}, s{sOff}, {L_MISC}
v_lshlrev_b32 v{vT2}, 5, v0
v_add_u32 v{vT2}, s{sOff}, v{vT2}
s_lshr_b32 s{sOff}, s{S_W}, 1
s_lshl_b32 s{sOff}, s{sOff}, 10
s_and_b32 s{sRow}, s{S_W}, 1
s_lshl_b32 s{sP}, s{sRow}, 8
s_add_u32 s{sOff}, s{sOff}, s{sP}
s_add_u32 s{sOff}, s{sOff}, {L_MISC}
v_lshlrev_b32 v{vT3}, 3, v{vTok}
v_lshl_add_u32 v{vT3}, v{vHF}, 9, v{vT3}
v_add_u32 v{vT3}, s{sOff}, v{vT3}
s_lshl_b32 s{sP}, s{sCg}, 1
s_add_u32 s{sP}, s{sP}, s{sRow}
s_lshl_b32 s{sP}, s{sP}, 1
s_lshr_b32 s{sOff}, s{S_W}, 1
s_add_u32 s{sP}, s{sP}, s{sOff}
s_mul_i32 s{sP}, s{sP}, 18
s_add_u32 s{sP}, s{sP}, s{sKs}
s_lshl_b32 s{sP}, s{sP}, 10
s_add_u32 s{sP}, s{sP}, {WS_PART}
v_and_b32 v{vT0}, 28, v0
v_lshlrev_b32 v{vT0}, 5, v{vT0}
v_lshl_add_u32 v{vT0}, v{vHF}, 6, v{vT0}
v_and_b32 v{vT1}, 3, v0
v_lshl_add_u32 v{vT0}, v{vT1}, 4, v{vT0}""")
    get_tag(a)
    E2 = int(OPT.get('ew2', 0)); E2AT = int(OPT.get('ew2at', 3))
    for n in range(4):
        a(f"s_waitcnt vmcnt({3-n+EW+(E2 if n > E2AT else 0)})")
        if n == E2AT and E2: w_dma(a, E2)
        if n == 3: stamp(a, 8)
        for i in range(4):
            unpack(a, vTm+2*i, vTm+2*i+1, vW+4*n+i)
        for b in range(2):
            for j in range(8):
                op = "v_mul_f32" if n == 0 else "v_fmac_f32"
                a(f"{op} v{vAc+8*b+j}, v{vTm+j}, v{vSc+4*b+n}")
    a("s_nop 1")
    for j in range(8):
        a(f"v_permlane32_swap_b32 v{vAc+j}, v{vAc+8+j}")
    for j in range(8):
        a(f"v_add_f32 v{vAc+j}, v{vAc+j}, v{vAc+8+j}")
    lsk = a.label("pubsk")
    a(f"""ds_write_b128 v{vT2}, {vr(vAc,4)}
ds_write_b128 v{vT2}, {vr(vAc+4,4)} offset:16
s_waitcnt lgkmcnt(0)
s_barrier
s_cmp_ge_u32 s{S_W}, 4
s_cbranch_scc1 {lsk}""")
    for w in range(8):
        a(f"ds_read_b64 {vr(vW+2*w,2)}, v{vT3} offset:{w*2048}")
    a(f"""v_mov_b32 v{vAc+1}, v{vTAG}
v_mov_b32 v{vAc+3}, v{vTAG}
s_waitcnt lgkmcnt(4)
v_add_f32 v{vW}, v{vW}, v{vW+2}
v_add_f32 v{vW+1}, v{vW+1}, v{vW+3}
v_add_f32 v{vW+4}, v{vW+4}, v{vW+6}
v_add_f32 v{vW+5}, v{vW+5}, v{vW+7}
s_waitcnt lgkmcnt(0)
v_add_f32 v{vW+8}, v{vW+8}, v{vW+10}
v_add_f32 v{vW+9}, v{vW+9}, v{vW+11}
v_add_f32 v{vW+12}, v{vW+12}, v{vW+14}
v_add_f32 v{vW+13}, v{vW+13}, v{vW+15}
v_add_f32 v{vW}, v{vW}, v{vW+4}
v_add_f32 v{vW+1}, v{vW+1}, v{vW+5}
v_add_f32 v{vW+8}, v{vW+8}, v{vW+12}
v_add_f32 v{vW+9}, v{vW+9}, v{vW+13}
v_add_f32 v{vAc}, v{vW}, v{vW+8}
v_add_f32 v{vAc+2}, v{vW+1}, v{vW+9}
buffer_store_dwordx4 {vr(vAc,4)}, v{vT0}, {WS}, s{sP} offen sc1
{lsk}:""")
    stamp(a, 9)
    if OPT.get('pack') == '1':
        a("s_waitcnt vmcnt(0)")
    if 'nopb' not in OPT:
        a("s_barrier")
    w_dma(a, 18-EW-E2)
    a("s_branch L_b")
    a("L_s0_stats:")
    srd(a, R_WS, S_WS, SZ_WS)
    lane_consts(a)
    lnx = a.label("nox"); ljx = a.label("jx")
    get_tag(a)
    a(f"s_cmp_ge_u32 s2, 36\ns_cbranch_scc1 {lnx}\ns_waitcnt vmcnt(4)\ns_branch {ljx}\n{lnx}:\ns_waitcnt vmcnt(0)\n{ljx}:")
    stamp(a, 8)
    s1, s2_, q1, q2 = 32, 33, 34, 35
    a(f"s_mov_b32 s{T+12}, 0x3f803f80")
    for i in range(0, 12, 2):
        c = lambda r: "0" if i == 0 else f"v{r}"
        a(f"""v_dot2_f32_bf16 v{s1}, v{vRW+i}, s{T+12}, {c(s1)}
v_dot2_f32_bf16 v{q1}, v{vRW+i}, v{vRW+i}, {c(q1)}
v_dot2_f32_bf16 v{s2_}, v{vRW+i+1}, s{T+12}, {c(s2_)}
v_dot2_f32_bf16 v{q2}, v{vRW+i+1}, v{vRW+i+1}, {c(q2)}""")
    a(f"""s_nop 2
v_add_f32 v{s1}, v{s1}, v{s2_}
v_add_f32 v{q1}, v{q1}, v{q2}""")
    for m in ("quad_perm:[1,0,3,2] row_mask:0xf", "quad_perm:[2,3,0,1] row_mask:0xf", "row_half_mirror row_mask:0xf", "row_mirror row_mask:0xf", "row_bcast:15 row_mask:0xa", "row_bcast:31 row_mask:0xc"):
        a(f"s_nop 0\nv_add_f32_dpp v{s1}, v{s1}, v{s1} {m} bank_mask:0xf\nv_add_f32_dpp v{q1}, v{q1}, v{q1} {m} bank_mask:0xf")
    g = 36
    a(f"""v_mul_f32 v{g}, 0x3a638e39, v{s1}
v_mul_f32 v{g+2}, 0x3a638e39, v{q1}
v_fma_f32 v{g+2}, -v{g}, v{g}, v{g+2}
v_max_f32 v{g+2}, 0, v{g+2}""")
    round_bf16(a, g+2)
    a(f"v_add_f32 v{g+2}, 0x3727c5ac, v{g+2}")
    round_bf16(a, g+2)
    a(f"v_sqrt_f32 v{g+2}, v{g+2}")
    round_bf16(a, g)
    round_bf16(a, g+2)
    lsk = a.label("stsk")
    a(f"""v_rcp_f32 v{g+2}, v{g+2}
v_mov_b32 v{g+1}, v{vTAG}
v_mov_b32 v{g+3}, v{vTAG}
s_lshl_b32 s{T+12}, s{S_W}, 4
s_add_u32 s{T+12}, s{T+12}, {L_STC}
v_mov_b32 v{vT0}, s{T+12}
s_mov_b32 exec_lo, 0
s_brev_b32 exec_hi, 1
ds_write_b128 v{vT0}, {vr(g,4)}
s_mov_b64 exec, -1
s_lshl_b32 s{T+12}, s{S_TK}, 7
s_add_u32 s{T+12}, s{T+12}, {F_STAT}
v_add_u32 v{vT0}, {L_STC}, v{vL16}
s_waitcnt lgkmcnt(0)
s_barrier
s_cmp_lg_u32 s{S_W}, 0
s_cbranch_scc1 {lsk}
s_mov_b64 exec, 0xff
ds_read_b128 {vr(g,4)}, v{vT0}
s_waitcnt lgkmcnt(0)
buffer_store_dwordx4 {vr(g,4)}, v{vL16}, {WS}, s{T+12} offen sc1
s_mov_b64 exec, -1
{lsk}:""")
    stamp(a, 9)
    a(f"s_cmp_lt_u32 s{S_SLOT}, {NO}\ns_cbranch_scc1 L_owner")
    if 'nopb' not in OPT:
        a("s_barrier")
    a("s_branch L_s0_w")
    a("L_s0_none:")
    a(f"s_waitcnt lgkmcnt(0)\ns_load_dword s{S_TAG}, s[{S_WS}:{S_WS+1}], {EPOCH}")
    srd(a, R_WS, S_WS, SZ_WS)
    lane_consts(a)
    get_tag(a)
    if 'cw' in OPT:
        srd(a, R_C, S_C, SZ_C)
        a(f"buffer_load_dword v{vT1}, v{vL16}, {RC}, 0 offen\ns_waitcnt vmcnt(0)")
    a("L_s0_w:")
    b_setup(a)
    w_dma(a, 18)

VOX = 96

S_UCT, S_UTB = 9, 10
vDU = 14
KE = int(OPT.get('ke', 12))
def wo_dma(a, n0, n1):
    a(f"s_add_u32 s{T+10}, s{S_W}, {4*n0-4}")
    for n in range(n0, n1):
        a(f"""s_lshl_b32 m0, s{T+10}, 10
s_mul_i32 s{T+11}, s{T+10}, {8*2304}
buffer_load_dwordx4 v{vDU}, {RB}, s{T+11} offen lds""")
        if n < n1-1:
            a(f"s_add_u32 s{T+10}, s{T+10}, 4")

def gemm_loop(a, nsteps, LA, RING, vAcc, vWF, vH, vA0, vA1, vaddr, sH, lds_first, w_is_a, pre=None, rot=None, bar_at=None):
    WA = int(OPT.get('wa', 2))
    state = dict(issued=0)
    if rot:
        sR, sHs, sHe, sLo, sZ, sLe, vC0, vC1 = rot
        a(f"""s_mov_b32 s{sHs}, s{sH}
s_add_u32 s{sHe}, s{sH}, {nsteps*1024}
s_lshl_b32 s{sLo}, s{sR}, 12
s_add_u32 s{sH}, s{sH}, s{sLo}
s_lshl_b32 s{sLo}, s{sR}, 13
s_mov_b32 s{sZ}, 0
s_mov_b32 s{sLe}, {nsteps*2048}""")
    def hload():
        s = state['issued']
        a(f"buffer_load_dwordx4 {vr(vH+4*(s % RING),4)}, v{vaddr}, {WS}, s{sH} offen offset:{(s&3)*1024} sc1")
        if (s & 3) == 3 and s < nsteps-1:
            if rot: wrap_add(a, sH, 4096, sHe, sHs)
            else: a(f"s_add_u32 s{sH}, s{sH}, 4096")
        state['issued'] += 1
    def wread(s):
        if rot:
            if (s & 3) == 0:
                a(f"v_add_u32 v{vC0}, s{sLo}, v{vA0}\nv_add_u32 v{vC1}, s{sLo}, v{vA1}")
                wrap_add(a, sLo, 8192, sLe, sZ)
            trreads(a, vWF + 8*(s & 3), vC0, vC1, (s & 3)*2048)
            return
        if s and (s & 31) == 0:
            a(f"v_add_u32 v{vA0}, 0x10000, v{vA0}\nv_add_u32 v{vA1}, 0x10000, v{vA1}")
        trreads(a, vWF + 8*(s & 3), vA0, vA1, (s & 31)*2048)
    if lds_first:
        for s in range(WA): wread(s)
    for s in range(LA): hload()
    if pre: pre()
    if not lds_first:
        for s in range(WA): wread(s)
    for s in range(nsteps):
        lg = 4*min(WA-1, nsteps-1 - s)
        a(f"s_waitcnt vmcnt({state['issued'] - s - 1}) lgkmcnt({lg})")
        if s == 0 and lds_first: stamp(a, 4)
        h = vH+4*(s % RING); w0 = vWF+8*(s & 3)
        mfma(a, vAcc, *((w0, h) if w_is_a else (h, w0)), s == 0)
        if s + WA < nsteps:
            wread(s + WA)
        mfma(a, vAcc+16, *((w0+4, h) if w_is_a else (h, w0+4)), s == 0)
        if state['issued'] < nsteps:
            hload()
        if bar_at is not None and s == bar_at:
            a("s_barrier")

SZ = int(OPT['sz']) if 'sz' in OPT else None
UM = int(OPT.get('umap', 2)); UML = UM.bit_length()-1
vDX, vDXO = 236, 235
def d_tile(a):
    sQt, sCt, sCb, sKh, sOff, sXo, sJ, sU, sB, sCol = T, T+1, T+2, T+3, T+4, T+5, T+6, T+7, T+8, T+9
    a(f"""s_and_b32 s{sOff}, s{S_G}, 3
s_mul_i32 s{sOff}, s{sOff}, 18
s_min_u32 s{sJ}, s{S_SLOT}, 17
s_add_u32 s{sOff}, s{sOff}, s{sJ}
s_lshr_b32 s{sCt}, s{sOff}, 3
s_and_b32 s{sJ}, s{sOff}, 7
s_lshr_b32 s{sB}, s{S_G}, 2
s_lshl_b32 s{sQt}, s{sB}, 3
s_add_u32 s{sQt}, s{sQt}, s{sJ}
s_and_b32 s{sCb}, s{S_W}, 3
s_lshr_b32 s{sKh}, s{S_W}, 2
s_lshl_b32 s{sCol}, s{sCt}, 7
s_lshl_b32 s{sXo}, s{sQt}, 3
s_add_u32 s{sXo}, s{sXo}, s{S_W}
s_mul_i32 s{sXo}, s{sXo}, {4*2304}
s_lshl_b32 s{sOff}, s{sCol}, 1
s_add_u32 s{sXo}, s{sXo}, s{sOff}
v_lshrrev_b32 v{vDXO}, 4, v0
v_mul_u32_u24 v{vDXO}, 2304, v{vDXO}
v_and_b32 v{vT3}, 15, v0
v_lshl_add_u32 v{vDXO}, v{vT3}, 4, v{vDXO}""")

def phase_bc(a):
    sTb, sOff, sH, sF = T+1, T+4, T+5, T+6
    vA0, vA1 = V0+1, V0+2
    vAcc = 20
    vWF = 52
    vH = 84
    a("L_b:")
    stamp(a, 1)
    srd(a, R_B, S_WO, SZ_WO)
    srd(a, R_A, S_X, SZ_X)
    a(f"s_sub_u32 s{S_SLOT}, s{S_SLOT}, {NO}")
    d_tile(a)
    XL = OPT.get('xl', '1') == '1'
    xload = lambda: a(f"buffer_load_dwordx4 {vr(vDX,4)}, v{vDXO}, {RA}, s14 offen")
    a(f"s_mov_b32 s14, s{T+5}")
    if not XL:
        xload()
    a(f"""s_and_b32 s{T+14}, s{S_G}, {UM-1}
s_mul_i32 s{T+14}, s{T+14}, 18
s_add_u32 s{T+14}, s{T+14}, s{S_SLOT}
s_lshr_b32 s{S_UCT}, s{T+14}, {UML}
s_and_b32 s{T+14}, s{T+14}, {UM-1}
s_lshr_b32 s{S_UTB}, s{S_G}, {UML}
s_lshl_b32 s{S_UTB}, s{S_UTB}, {UML}
s_add_u32 s{S_UTB}, s{S_UTB}, s{T+14}
s_lshl_b32 s{S_UTB}, s{S_UTB}, 1
s_and_b32 s{T+14}, s{S_W}, 1
s_add_u32 s{S_UTB}, s{S_UTB}, s{T+14}
v_lshlrev_b32 v{vDU}, 4, v{vCH}
v_mul_u32_u24 v{vT0}, 2304, v{vR8}
s_lshl_b32 s{T+14}, s{S_UCT}, 7
v_add3_u32 v{vDU}, v{vDU}, v{vT0}, s{T+14}
s_lshl_b32 s{sTb}, s{S_BRT}, 2
s_and_b32 s{sOff}, s{S_W}, 3
s_add_u32 s{sTb}, s{sTb}, s{sOff}
s_mul_i32 s{sH}, s{sTb}, {72*1024}
s_add_u32 s{sH}, s{sH}, {WS_H}
v_mov_b32 v{vA0}, v{vB0}
v_mov_b32 v{vA1}, v{vB1}
v_min_u32 v{vT0}, 17, v0
v_lshlrev_b32 v{vT0}, 7, v{vT0}
s_lshr_b32 s{sOff}, s{S_BRT}, 1
s_mul_i32 s{sOff}, s{sOff}, {18*128}
s_add_u32 s{sOff}, s{sOff}, {F_H}
s_mul_i32 s{sF}, s{sTb}, 54
s_add_u32 s{sF}, s{sF}, s{S_BCT}
s_lshl_b32 s{sF}, s{sF}, 7
s_add_u32 s{sF}, s{sF}, {F_QKV}
s_waitcnt vmcnt(0)""")
    a("s_barrier")
    stamp(a, 2)
    a(f"s_cmp_ge_u32 s{S_W}, 4\ns_cbranch_scc1 L_ld")
    HPWG = OPT.get('hp', 'w') == 'wg'
    G1 = int(OPT.get('g1', 8))
    if G1:
        assert SZ is None and not HPWG
        a(f"v_min_u32 v{vT0}, {(G1-1)*128}, v{vT0}")
    if HPWG:
        poll(a, vT0, f"s{sOff}", vT1)
    else:
        wpoll(a, vT0, f"s{sOff}", vT1)
    stamp(a, 3)
    LA = int(OPT['la'])
    BR = int(OPT.get('brot', 0))
    if BR:
        a(f"s_mul_i32 s{T+8}, s{S_G}, {BR}")
    gemm_loop(a, 72, LA, LA+4, vAcc, vWF, vH, vA0, vA1, vL16, sH, True, True, bar_at=(4*G1 - int(OPT['la']) - 1 if G1 else SZ),
              rot=(T+8, T+9, T+10, T+11, T+12, T+13, V0, V0+3) if BR else None)
    stamp(a, 5)
    a(f"""s_mul_i32 s{sH}, s{sTb}, {216*1024}
s_lshl_b32 s{sOff}, s{S_BCT}, 12
s_add_u32 s{sH}, s{sH}, s{sOff}
s_add_u32 s{sH}, s{sH}, {WS_QKV}
s_nop 7""")
    for u in range(4):
        if u == 2:
            a("s_nop 1")
        for r in range(4*u, 4*u+4):
            a(f"v_cvt_pk_bf16_f32 v{vWF+r}, v{vAcc+2*r}, v{vAcc+2*r+1}")
        a(f"buffer_store_dwordx4 {vr(vWF+4*u,4)}, v{vL16}, {WS}, s{sH} offen offset:{1024*u} sc1")
    a("s_barrier")
    stamp(a, 6)
    sKh = T+2
    a(f"""s_lshr_b32 s{sKh}, s{S_W}, 1
s_mul_i32 s{sH}, s{S_UTB}, {216*1024}
s_mul_i32 s{sOff}, s{sKh}, {36*1024}
s_add_u32 s{sH}, s{sH}, s{sOff}
s_add_u32 s{sH}, s{sH}, {WS_QKV + 144*1024}
s_mul_i32 s{sOff}, s{sKh}, {576*128}
v_add_u32 v{vA0}, s{sOff}, v{vB0}
v_add_u32 v{vA1}, s{sOff}, v{vB1}
v_min_u32 v{vT0}, 8, v0
v_lshlrev_b32 v{vT0}, 7, v{vT0}
s_mul_i32 s{T+7}, s{S_UTB}, {54*128}
s_mul_i32 s{sOff}, s{sKh}, {9*128}
s_add_u32 s{T+7}, s{T+7}, s{sOff}
s_add_u32 s{T+7}, s{T+7}, {F_QKV + 36*128}
s_waitcnt vmcnt(0)""")
    raw_flag(a, f"s{sF}")
    a("s_barrier")
    stamp(a, 7)
    a(f"s_cmp_ge_u32 s{S_SLOT}, 18\ns_cbranch_scc1 L_c_notu")
    if XL:
        xload()
    if 'udelay' in OPT:
        a(f"s_sleep {OPT['udelay']}")
    UROT = int(OPT.get('urot', 0))
    if UROT:
        a(f"s_mul_i32 s{T+8}, s{S_G if 'urg' in OPT else S_UCT}, {UROT}")
        mod9(a, T+8, T+8, T+9)
    wpoll(a, vT0, f"s{T+7}", vT1)
    stamp(a, 12)
    LA = int(OPT.get('lau', 12))
    gemm_loop(a, 36, LA, min(36, LA+4), vAcc, vWF, vH, vA0, vA1, vP16, sH, False, False, pre=lambda: (a("s_barrier"), stamp(a, 11)),
              rot=(T+8, T+9, T+10, T+11, T+12, T+13, V0, V0+3) if UROT else None)
    stamp(a, 13)
    lk1 = a.label("kh1"); lj = a.label("j")
    a(f"""s_lshl_b32 s{sOff}, s{S_W}, 12
s_add_u32 s{sOff}, s{sOff}, {L_MISC}
v_add_u32 v{vT0}, s{sOff}, v{vL16}
v_xor_b32 v{vT1}, {2*4096}, v{vT0}
s_lshr_b32 s{sH}, s{S_UTB}, 3
s_mul_i32 s{sF}, s{sH}, 18
s_add_u32 s{sF}, s{sF}, s{S_UCT}
s_lshl_b32 s{sH}, s{sF}, 1
s_add_u32 s{sH}, s{sH}, s{sKh}
s_lshl_b32 s{sH}, s{sH}, 3
s_and_b32 s{sOff}, s{S_UTB}, 7
s_add_u32 s{sH}, s{sH}, s{sOff}
s_lshl_b32 s{sF}, s{sH}, 7
s_add_u32 s{sF}, s{sF}, {F_U}
s_lshl_b32 s{sH}, s{sH}, 11
s_add_u32 s{sH}, s{sH}, {WS_U}
s_cmp_lg_u32 s{sKh}, 0
s_cbranch_scc1 {lk1}""")
    for q in range(4):
        a(f"ds_write_b128 v{vT0}, {vr(vAcc+16+4*q,4)} offset:{q*1024}")
    a(f"s_branch {lj}\n{lk1}:")
    for q in range(4):
        a(f"ds_write_b128 v{vT0}, {vr(vAcc+4*q,4)} offset:{q*1024}")
    for r in range(16):
        a(f"v_mov_b32 v{vAcc+r}, v{vAcc+16+r}")
    a(f"{lj}:\ns_waitcnt lgkmcnt(0)\ns_barrier")
    for q in range(4):
        a(f"ds_read_b128 {vr(vWF+4*q,4)}, v{vT1} offset:{q*1024}")
    for u in range(2):
        a(f"s_waitcnt lgkmcnt({2-2*u})")
        for r in range(8*u, 8*u+8):
            a(f"v_add_f32 v{vAcc+r}, v{vAcc+r}, v{vWF+r}")
        for r in range(4*u, 4*u+4):
            a(f"v_cvt_pk_bf16_f32 v{vWF+16+r}, v{vAcc+2*r}, v{vAcc+2*r+1}")
        a(f"buffer_store_dwordx4 {vr(vWF+16+4*u,4)}, v{vL16}, {WS}, s{sH} offen offset:{1024*u} sc1")
    if OPT.get('fb', '1') == '1':
        a("s_waitcnt vmcnt(0)")
        raw_flag(a, f"s{sF}")
        a("s_barrier")
    else:
        a("s_barrier\ns_waitcnt vmcnt(0)")
        raw_flag(a, f"s{sF}")
    a("s_branch L_c_done")
    lnu = a.label("ldnu")
    vWo = 20
    NE = int(OPT.get('ne', 18))
    a("L_ld:")
    if 'tlb' in OPT:
        sh = int(OPT['tlb'])
        lt = a.label("tlb")
        srd(a, R_A, S_OUT, SZ_X)
        srd(a, R_C, S_WS, 0x700000)
        a(f"s_cmp_lg_u32 s{S_W}, 7\ns_cbranch_scc1 {lt}\nv_lshlrev_b32 v{vT2}, {sh}, v0\nv_add_u32 v{vT2}, {(1<<sh)-128}, v{vT2}")
        a(f"buffer_load_dword v236, v{vT2}, {RA}, 0 offen")
        for off in range(0, 0x700000, 64 << sh):
            a(f"v_add_u32 v{vT1}, {off}, v{vT2}\nbuffer_load_dword v237, v{vT1}, {RC}, 0 offen sc1")
        a(f"{lt}:")
    NA = int(OPT.get('na', 0))
    a(f"""s_cmp_ge_u32 s{S_SLOT}, 18
s_cbranch_scc1 {lnu}
s_sub_u32 s{T+10}, s{S_W}, 4
s_lshl_b32 s{T+11}, s{T+10}, 10
v_add_u32 v{vT0}, s{T+11}, v{vL16}
s_bfe_u32 s{T+12}, s{S_UTB}, 0x10001
s_mul_i32 s{T+12}, s{T+12}, 72
s_bfe_u32 s{T+11}, s{S_UTB}, 0x10002
s_mul_i32 s{T+11}, s{T+11}, {36 if UM > 2 else 0}
s_add_u32 s{T+12}, s{T+12}, s{T+11}
s_add_u32 s{T+10}, s{T+10}, s{T+12}
s_lshl_b32 s{T+12}, s{T+12}, 10""")
    def nxt(n):
        if n < 35:
            a(f"s_add_u32 s{T+10}, s{T+10}, 4")
            if n % 9 == 8:
                a(f"""s_sub_u32 s{T+11}, s{T+10}, 144
s_cmp_ge_u32 s{T+10}, 144
s_cselect_b32 s{T+10}, s{T+11}, s{T+10}""")
    for n in range(NE):
        if SZ is not None and n == NA:
            a("s_barrier")
        a(f"""s_mul_i32 s{T+11}, s{T+10}, {8*2304}
buffer_load_dwordx4 {vr(vWo+4*n,4)}, v{vDU}, {RB}, s{T+11} offen {NTO}
{THRO}""")
        nxt(n)
    stamp(a, 4)
    def hall():
        l7 = a.label("w7")
        a(f"""s_cmp_lg_u32 s{S_W}, 7
s_cbranch_scc1 {l7}
v_min_u32 v{vT2}, 17, v0
v_lshlrev_b32 v{vT2}, 7, v{vT2}""")
        wpoll(a, vT2, f"s{sOff}", vT1)
        a(f"{l7}:\ns_barrier")
    if G1:
        hall()
    if HPWG:
        a("s_barrier")
    a("s_barrier")
    stamp(a, 5)
    WS_ = min(NE, int(OPT.get('wsplit', 12)))
    def wr(n):
        if n % 9 == 0:
            a(f"v_add_u32 v{vT1}, s{T+12}, v{vT0}")
            a(f"""s_add_u32 s{T+12}, s{T+12}, {36*1024}
s_cmp_ge_u32 s{T+12}, {144*1024}
s_cselect_b32 s{T+12}, 0, s{T+12}""")
        a(f"ds_write_b128 v{vT1}, {vr(vWo+4*n,4)} offset:{(n % 9)*4096}")
    KD = min(36-NE, int(OPT.get('kd', 0)))
    def dm(n):
        a(f"""s_lshl_b32 m0, s{T+10}, 10
s_mul_i32 s{T+11}, s{T+10}, {8*2304}
buffer_load_dwordx4 v{vDU}, {RB}, s{T+11} offen lds""")
        nxt(n)
    a("s_waitcnt vmcnt(0)")
    for n in range(NE, NE+KD): dm(n)
    for n in range(WS_): wr(n)
    a("s_barrier")
    if 'dfirst' in OPT:
        a("s_nop 15")
        for n in range(NE+KD, 36): dm(n)
        for n in range(WS_, NE): wr(n)
    else:
        for n in range(WS_, NE): wr(n)
        for n in range(NE+KD, 36): dm(n)
    a(f"""s_waitcnt vmcnt(0) lgkmcnt(0)""")
    stamp(a, 11)
    lg4 = a.label("g4")
    a("s_barrier")
    if XL:
        xload()
        a("s_waitcnt vmcnt(0)")
    a(f"""s_cmp_lg_u32 s{S_W}, 4
s_cbranch_scc1 {lg4}""")
    d_tile(a)
    a(f"""s_lshr_b32 s{T+10}, s{T+9}, 6
s_lshl_b32 s{T+10}, s{T+10}, 7
s_add_u32 s{T+10}, s{T+10}, {F_G}
v_and_b32 v{vT0}, 1, v0
v_lshlrev_b32 v{vT0}, 7, v{vT0}
s_mul_i32 s{T+11}, s{T+8}, 4608
s_lshl_b32 s{T+12}, s{T+9}, 2
s_add_u32 s{T+11}, s{T+11}, s{T+12}
s_add_u32 s{T+11}, s{T+11}, {WS_GATE}
v_lshlrev_b32 v{vT2}, 3, v0""")
    wpoll(a, vT0, f"s{T+10}", vT1)
    a(f"""buffer_load_dwordx2 v[20:21], v{vT2}, {WS}, s{T+11} offen sc1
s_waitcnt vmcnt(0)
s_barrier
ds_write_b64 v{vT2}, v[20:21] offset:{L_GATE}
s_waitcnt lgkmcnt(0)
s_barrier
s_branch L_c_done
{lg4}:
s_barrier
s_barrier
s_branch L_c_done
{lnu}:""")
    if G1:
        hall()
    a(f"""s_barrier
s_barrier""")
    if SZ is not None:
        a("s_barrier")
    if HPWG:
        a("s_barrier")
    a("L_c_notu:")
    sQb, sKb, sKq, sJ, sK, sQ, sTy = T, T+1, T+2, T+3, T+5, T+6, T+9
    sM = T+10
    sK1 = T+12
    vS = 56
    RING = 15
    SW = OPT.get('sw', '1') == '1'
    SPW = f"""s_mul_i32 s{sOff}, s{sKq}, 18
s_add_u32 s{T+13}, s{sOff}, 17
s_lshr_b32 s{sOff}, s{sOff}, 2
s_lshr_b32 s{T+13}, s{T+13}, 2
v_add_u32 v{vT0}, s{sOff}, v{vTok}
v_min_u32 v{vT0}, s{T+13}, v{vT0}""" if SW else f"v_min_u32 v{vT0}, 17, v{vTok}"
    a(f"""s_sub_u32 s{sJ}, s{S_SLOT}, 18
s_lshr_b32 s{sTy}, s{sJ}, 2
s_and_b32 s{sKq}, s{S_W}, 3
s_and_b32 s{sQb}, s{S_G}, 1
s_lshl_b32 s{sQb}, s{sQb}, 2
s_and_b32 s{sOff}, s{sJ}, 3
s_add_u32 s{sQb}, s{sQb}, s{sOff}
s_and_b32 s{sKb}, s{S_G}, 2
s_lshl_b32 s{sKb}, s{sKb}, 1
s_lshr_b32 s{sOff}, s{S_G}, 2
s_lshl_b32 s{sOff}, s{sOff}, 3
s_add_u32 s{sQb}, s{sQb}, s{sOff}
s_add_u32 s{sKb}, s{sKb}, s{sOff}
s_min_u32 s{sK1}, s{sTy}, 1
s_add_u32 s{sK1}, s{sK1}, s{sTy}
s_mul_i32 s{sK}, s{sKb}, {216*1024}
s_mul_i32 s{sQ}, s{sQb}, {216*1024}
s_mul_i32 s{sOff}, s{sKq}, {18*1024}
s_add_u32 s{sK}, s{sK}, s{sOff}
s_add_u32 s{sQ}, s{sQ}, s{sOff}
s_add_u32 s{sK}, s{sK}, {WS_QKV + 72*1024}
s_add_u32 s{sQ}, s{sQ}, {WS_QKV}
s_mul_i32 s{sOff}, s{sKq}, 18
s_add_u32 s{T+13}, s{sOff}, 17
s_lshr_b32 s{sOff}, s{sOff}, 2
s_lshr_b32 s{T+13}, s{T+13}, 2
v_and_b32 v{vT0}, 7, v0
v_add_u32 v{vT0}, s{sOff}, v{vT0}
v_min_u32 v{vT0}, s{T+13}, v{vT0}
s_mul_i32 s{sOff}, s{sQb}, 54
v_mov_b32 v{vT1}, s{sOff}
s_add_u32 s{sOff}, s{sKb}, s{sK1}
s_mul_i32 s{sOff}, s{sOff}, 54
s_add_u32 s{sOff}, s{sOff}, 18
v_mov_b32 v{vT2}, s{sOff}
v_cmp_lt_u32 vcc, 7, v0
s_mul_i32 s{sOff}, s{sKb}, 54
s_add_u32 s{sOff}, s{sOff}, {54+18}
v_cndmask_b32 v{vT1}, v{vT1}, v{vT2}, vcc
v_mov_b32 v{vT2}, s{sOff}
v_cmp_lt_u32 vcc, 15, v0
s_nop 1
v_cndmask_b32 v{vT1}, v{vT1}, v{vT2}, vcc
v_add_u32 v{vT0}, v{vT0}, v{vT1}
v_lshlrev_b32 v{vT0}, 7, v{vT0}
v_and_b32 v{vT2}, 0x2ff, v{vP16}
v_and_b32 v{vT1}, 16, v0
v_lshl_add_u32 v{vT2}, v{vT1}, 6, v{vT2}
s_and_b32 s{sOff}, s{sTy}, 1
s_lshl_b32 s{sOff}, s{sOff}, 8
s_add_u32 s{sOff}, s{sOff}, {216*1024}
v_add_u32 v{vT2}, s{sOff}, v{vT2}
s_mul_i32 s{sOff}, s{sK1}, {216*1024}
v_add_u32 v{V0}, s{sOff}, v{vP16}
s_mov_b32 s{sOff}, {F_QKV}""")
    lsi = a.label("sidle")
    if not SW:
        poll(a, vT0, f"s{sOff}", vT1)
    a(f"s_cmp_ge_u32 s{S_W}, 4\ns_cbranch_scc1 {lsi}")
    if SW:
        wpoll(a, vT0, f"s{sOff}", vT1)
    stamp(a, 12)
    LA = int(OPT.get('las', 4))
    vS = 72; RING = 8
    vAc3 = 56
    assert LA < RING
    def sload(p):
        r = vS + 20*(p % RING)
        o = (p & 1)*2048
        a(f"""buffer_load_dwordx4 {vr(r,4)}, v{vL16}, {WS}, s{sQ} offen offset:{o} sc1
buffer_load_dwordx4 {vr(r+4,4)}, v{V0}, {WS}, s{sK} offen offset:{o} sc1
buffer_load_dwordx4 {vr(r+8,4)}, v{vT2}, {WS}, s{sK} offen offset:{o} sc1
buffer_load_dwordx4 {vr(r+12,4)}, v{vL16}, {WS}, s{sQ} offen offset:{o+1024} sc1
buffer_load_dwordx4 {vr(r+16,4)}, v{V0}, {WS}, s{sK} offen offset:{o+1024} sc1""")
        if p & 1:
            a(f"s_add_u32 s{sK}, s{sK}, 4096\ns_add_u32 s{sQ}, s{sQ}, 4096")
    for p in range(LA):
        sload(p)
    for p in range(9):
        y = 5*(min(9, p + LA) - p - 1)
        r = vS + 20*(p % RING)
        a(f"s_waitcnt vmcnt({y+3})")
        mfma(a, vAcc, r+4, r, p == 0)
        a(f"s_waitcnt vmcnt({y+2})")
        mfma(a, vAcc+16, r+8, r, p == 0)
        a(f"s_waitcnt vmcnt({y+1})")
        mfma(a, vAc3, r+8, r+12, p == 0)
        a(f"s_waitcnt vmcnt({y})")
        mfma(a, vAcc, r+16, r+12)
        if p + LA < 9:
            sload(p + LA)
    stamp(a, 13)
    QS, HS, PSZ = 1056, 528, 8448
    a(f"""s_mul_i32 s{sOff}, s{S_W}, {PSZ}
v_lshl_add_u32 v{vT0}, v{vHF}, 4, v{vL16}
v_add_u32 v{vT0}, s{sOff}, v{vT0}
s_nop 7""")
    for r in range(8):
        a(f"v_add_f32 v{vAcc+16+r}, v{vAcc+16+r}, v{vAc3+8+r}")
    for q in (4, 5, 0, 1, 2, 3):
        a(f"ds_write_b128 v{vT0}, {vr(vAcc+4*q,4)} offset:{q*QS}")
    a(f"""{lsi}:
v_bfe_u32 v{vT1}, v0, 2, 2
v_and_b32 v{vT2}, 1, v0
v_lshl_add_u32 v{vT1}, v{vT1}, 1, v{vT2}
v_mul_u32_u24 v{vT1}, {QS}, v{vT1}
v_bfe_u32 v{vT2}, v0, 1, 1
v_mul_u32_u24 v{vT2}, {HS}, v{vT2}
v_lshrrev_b32 v{vT0}, 4, v0
s_lshl_b32 s{sOff}, s{S_W}, 2
v_add_u32 v{vT0}, s{sOff}, v{vT0}
v_lshl_add_u32 v{vT1}, v{vT0}, 4, v{vT1}
v_add_u32 v{vT1}, v{vT1}, v{vT2}
v_and_b32 v{vT2}, 7, v0
v_lshlrev_b32 v{vT2}, 4, v{vT2}
v_lshl_add_u32 v{vT2}, v{vT0}, 10, v{vT2}
s_lshl_b32 s{sOff}, s{sK1}, 7
v_mov_b32 v{vT0}, s{sOff}
v_and_b32 v{vT3}, 8, v0
v_cmp_ne_u32 vcc, 0, v{vT3}
s_and_b32 s{sOff}, s{sTy}, 1
s_lshl_b32 s{sOff}, s{sOff}, 6
s_add_u32 s{sOff}, s{sOff}, 128
v_mov_b32 v{vT3}, s{sOff}
s_lshl_b32 s{sJ}, s{sQb}, 15
v_cndmask_b32 v{vT0}, v{vT0}, v{vT3}, vcc
v_add_u32 v{vT2}, v{vT2}, v{vT0}
s_and_b32 s{sOff}, s{sKb}, 7
s_lshl_b32 s{sOff}, s{sOff}, 7
s_add_u32 s{sJ}, s{sJ}, s{sOff}
s_add_u32 s{sJ}, s{sJ}, {WS_L}
s_lshl_b32 s{sK}, s{sQb}, 3
s_add_u32 s{sK}, s{sK}, s{S_W}
s_mul_i32 s{sK}, s{sK}, 6
s_bfe_u32 s{sOff}, s{sKb}, 0x10002
s_mul_i32 s{sOff}, s{sOff}, 3
s_add_u32 s{sK}, s{sK}, s{sOff}
s_add_u32 s{sK}, s{sK}, s{sTy}
s_lshl_b32 s{sK}, s{sK}, 7
s_add_u32 s{sK}, s{sK}, {F_LH}
s_mov_b32 s{sM}, 0x0fff0fff
s_cmp_eq_u32 s{sTy}, 2
s_cselect_b32 s{sM}, 0x00ff00ff, s{sM}
s_mov_b32 s{sM+1}, s{sM}
v_mov_b32 v53, v{vTAG}
v_mov_b32 v55, v{vTAG}
s_waitcnt lgkmcnt(0)
s_barrier""")
    for j in range(4):
        a(f"ds_read_b128 {vr(vAcc+4*j,4)}, v{vT1} offset:{j*PSZ}")
    a("s_waitcnt lgkmcnt(2)")
    for r in range(4):
        a(f"v_add_f32 v{vAcc+r}, v{vAcc+r}, v{vAcc+4+r}")
    a("s_waitcnt lgkmcnt(0)")
    for r in range(4):
        a(f"v_add_f32 v{vAcc+8+r}, v{vAcc+8+r}, v{vAcc+12+r}")
    for r in range(4):
        a(f"v_add_f32 v{vAcc+r}, v{vAcc+r}, v{vAcc+8+r}")
    sc = struct.unpack('<I', struct.pack('<f', D ** -0.5))[0]
    for r in range(2):
        a(f"v_cvt_pk_bf16_f32 v{52+2*r}, v{vAcc+2*r}, v{vAcc+2*r+1}")
    for r in range(2):
        unpack(a, vAcc+2*r, vAcc+2*r+1, 52+2*r)
    for r in range(4):
        a(f"v_mul_f32 v{vAcc+r}, {hex(sc)}, v{vAcc+r}")
    for r in range(2):
        a(f"v_cvt_pk_bf16_f32 v{52+2*r}, v{vAcc+2*r}, v{vAcc+2*r+1}")
    a(f"s_mov_b64 exec, s[{sM}:{sM+1}]\nbuffer_store_dwordx4 v[52:55], v{vT2}, {WS}, s{sJ} offen sc1\ns_mov_b64 exec, -1")
    raw_flag(a, f"s{sK}")
    a("L_c_done:")
    stamp(a, 14)

def phase_d(a):
    sQt, sCt, sCb, sKh, sOff, sXo, sJ, sU, sB, sCol = T, T+1, T+2, T+3, T+4, T+5, T+6, T+7, T+8, T+9
    vXo, vMx, vS, vLa, vPa, vLw = vDXO, V0+1, V0+2, V0+3, V0+4, V0+5
    vLd = 24
    vX = vDX
    vG = 44
    vF = 56
    vR = 72
    vAcc = 80
    vU = 96
    vP = 128
    PS = 1056
    L_P, L_EX = 40960, 65536
    srd(a, R_B, S_OUT, SZ_X)
    a(f"s_cmp_ge_u32 s{S_SLOT}, 18\ns_cbranch_scc1 L_fin")
    d_tile(a)
    a(f"""s_mul_i32 s{sU}, s{sB}, 36
s_lshl_b32 s{sOff}, s{sCt}, 2
s_add_u32 s{sU}, s{sU}, s{sOff}
s_add_u32 s{sU}, s{sU}, s{sCb}
s_lshl_b32 s{sU}, s{sU}, 4
s_lshl_b32 s{sOff}, s{sKh}, 3
s_add_u32 s{sU}, s{sU}, s{sOff}
s_lshl_b32 s{T+10}, s{sU}, 6
s_add_u32 s{T+10}, s{T+10}, {F_U}
s_lshl_b32 s{sU}, s{sU}, 10
s_add_u32 s{sU}, s{sU}, {WS_U}
v_and_b32 v{vT0}, 3, v0
v_lshlrev_b32 v{vT0}, 7, v{vT0}
v_add_u32 v{vT1}, s{T+10}, v{vT0}
s_lshl_b32 s{sOff}, s{sQt}, 3
s_add_u32 s{sOff}, s{sOff}, s{S_W}
s_mul_i32 s{sOff}, s{sOff}, {6*128}
s_add_u32 s{sOff}, s{sOff}, {F_LH}
v_min_u32 v{vT2}, 5, v0
v_lshlrev_b32 v{vT2}, 7, v{vT2}
v_add_u32 v{vT2}, s{sOff}, v{vT2}
v_cmp_gt_u32 vcc, 8, v0
v_and_b32 v{vT3}, 15, v0
v_lshrrev_b32 v{vT0}, 4, v0
v_cndmask_b32 v{vT1}, v{vT1}, v{vT2}, vcc
s_lshl_b32 s{sOff}, s{S_W}, 2
v_add_u32 v{vT0}, s{sOff}, v{vT0}
v_lshlrev_b32 v{vLa}, 10, v{vT0}
v_lshl_add_u32 v{vLa}, v{vT3}, 4, v{vLa}
v_lshrrev_b32 v{vT2}, 1, v{vT3}
v_mul_u32_u24 v{vLw}, {PS//2}, v{vT2}
v_lshl_add_u32 v{vLw}, v{vT0}, 4, v{vLw}
v_and_b32 v{vT2}, 1, v0
v_lshl_add_u32 v{vLw}, v{vT2}, 3, v{vLw}
v_lshl_add_u32 v{vPa}, v{vHF}, 4, v{vL16}
s_mul_i32 s{sOff}, s{sKh}, {8*PS}
v_add_u32 v{vPa}, s{sOff}, v{vPa}
v_lshlrev_b32 v{vT0}, 5, v{vT3}
ds_read_b128 {vr(vG,4)}, v{vT0} offset:{L_GATE}
ds_read_b128 {vr(vG+4,4)}, v{vT0} offset:{L_GATE+16}
s_lshl_b32 s{sOff}, s{sQt}, 15
s_add_u32 s{sOff}, s{sOff}, {WS_L}""")
    vFa, vFl = 22, 23
    sUd = T+12
    def uloads():
        for s in range(8):
            a(f"buffer_load_dwordx4 {vr(vU+4*s,4)}, v{vL16}, {WS}, s{sU} offen offset:{(s&3)*1024} sc1")
            if s == 3:
                a(f"s_add_u32 s{sU}, s{sU}, 4096")
        a(f"s_mov_b32 s{sUd}, 1")
        stamp(a, 8)
    l = a.label("lp"); d = a.label("lpd"); nu = a.label("nu"); l3 = a.label("lv"); d3 = a.label("lvd"); nu2 = a.label("nu2")
    def lloads():
        for n in range(4):
            a(f"buffer_load_dwordx4 {vr(vLd+4*n,4)}, v{vLa}, {WS}, s{sOff} offen offset:{256*n} sc1")
    a(f"""v_mov_b32 v{vFa}, v{vT1}
s_mov_b32 s{sUd}, 0
{l}:
buffer_load_dword v{vFl}, v{vFa}, {WS}, 0 offen {PF}
s_waitcnt vmcnt(0)
v_cmp_ne_u32 vcc, s{S_TAG}, v{vFl}
s_and_b32 s{T+13}, vcc_lo, 255
s_cbranch_scc0 {d}
s_lshr_b32 s{T+13}, vcc_lo, 8
s_or_b32 s{T+13}, s{T+13}, s{sUd}
s_cbranch_scc1 {nu}""")
    uloads()
    a(f"""{nu}:
s_sleep {OPT.get('lsleep', 1)}
s_sub_u32 s{S_TO}, s{S_TO}, 1
s_cmp_lg_u32 s{S_TO}, 0
s_cbranch_scc1 {l}
s_mov_b32 s{S_TO}, 1
{d}:""")
    lloads()
    a(f"""s_lshr_b32 s{T+13}, vcc_lo, 8
s_or_b32 s{T+13}, s{T+13}, s{sUd}
s_cbranch_scc1 {nu2}""")
    if 'ul' in OPT:
        a(f"s_waitcnt vmcnt({OPT['ul']})")
    uloads()
    a(f"""s_waitcnt vmcnt(8)
s_branch {l3}_c
{nu2}:
buffer_load_dword v{vFl}, v{vFa}, {WS}, 0 offen {PF}
s_waitcnt vmcnt(1)
s_branch {l3}_c
{l3}:""")
    lloads()
    a(f"""s_waitcnt vmcnt(0)
{l3}_c:
v_min_u32 v{vT1}, v{vLd+1}, v{vLd+3}
v_max_u32 v{vT2}, v{vLd+1}, v{vLd+3}""")
    for n in range(1, 4):
        a(f"v_min3_u32 v{vT1}, v{vT1}, v{vLd+4*n+1}, v{vLd+4*n+3}\nv_max3_u32 v{vT2}, v{vT2}, v{vLd+4*n+1}, v{vLd+4*n+3}")
    a(f"""v_cmp_ne_u32 vcc, s{S_TAG}, v{vT1}
v_cmp_ne_u32 s[{T+14}:{T+15}], s{S_TAG}, v{vT2}
s_or_b64 vcc, vcc, s[{T+14}:{T+15}]
s_cbranch_vccz {d3}
s_sub_u32 s{S_TO}, s{S_TO}, 1
s_cmp_lg_u32 s{S_TO}, 0
s_cbranch_scc1 {l3}
s_mov_b32 s{S_TO}, 1
{d3}:""")
    stamp(a, 9)
    for i in range(8):
        unpack(a, vF+2*i, vF+2*i+1, vLd+2*i)
    a(f"""v_max3_f32 v{vMx}, v{vF}, v{vF+1}, v{vF+2}
v_max3_f32 v{vS}, v{vF+3}, v{vF+4}, v{vF+5}
v_max3_f32 v{vMx}, v{vMx}, v{vF+6}, v{vF+7}
v_max3_f32 v{vS}, v{vS}, v{vF+8}, v{vF+9}
v_max3_f32 v{vMx}, v{vMx}, v{vF+10}, v{vF+11}
v_max3_f32 v{vS}, v{vS}, v{vF+12}, v{vF+13}
v_max3_f32 v{vMx}, v{vMx}, v{vF+14}, v{vF+15}
v_max_f32 v{vMx}, v{vMx}, v{vS}""")
    for m in ("quad_perm:[1,0,3,2]", "quad_perm:[2,3,0,1]", "row_half_mirror", "row_mirror"):
        a(f"s_nop 1\nv_max_f32_dpp v{vMx}, v{vMx}, v{vMx} {m} row_mask:0xf bank_mask:0xf")
    a(f"s_mov_b32 s{T+10}, {hex(LOG2E)}\nv_mul_f32 v{vMx}, s{T+10}, v{vMx}")
    for i in range(16):
        a(f"v_fma_f32 v{vF+i}, v{vF+i}, s{T+10}, -v{vMx}")
    for i in range(16):
        a(f"v_exp_f32 v{vF+i}, v{vF+i}")
    a(f"v_add_f32 v{vS}, v{vF}, v{vF+1}\nv_add_f32 v{vMx}, v{vF+2}, v{vF+3}")
    for i in range(4, 16, 2):
        a(f"v_add_f32 v{vS}, v{vS}, v{vF+i}\nv_add_f32 v{vMx}, v{vMx}, v{vF+i+1}")
    a(f"v_add_f32 v{vS}, v{vS}, v{vMx}")
    for m in ("quad_perm:[1,0,3,2]", "quad_perm:[2,3,0,1]", "row_half_mirror", "row_mirror"):
        a(f"s_nop 1\nv_add_f32_dpp v{vS}, v{vS}, v{vS} {m} row_mask:0xf bank_mask:0xf")
    a(f"v_rcp_f32 v{vS}, v{vS}\ns_nop 0")
    for i in range(16):
        a(f"v_mul_f32 v{vF+i}, v{vF+i}, v{vS}")
    for i in range(8):
        a(f"v_cvt_pk_bf16_f32 v{vLd+i}, v{vF+2*i}, v{vF+2*i+1}")
    for n in range(4):
        a(f"ds_write_b64 v{vLw}, {vr(vLd+2*n,2)} offset:{L_P+4*n*PS}")
    hu = a.label("hu"); l2 = a.label("up"); d2 = a.label("upd")
    a(f"""s_cmp_lg_u32 s{sUd}, 0
s_cbranch_scc1 {hu}
{l2}:
s_waitcnt vmcnt(0)
v_cmp_ne_u32 vcc, s{S_TAG}, v{vFl}
s_cbranch_vccz {d2}
buffer_load_dword v{vFl}, v{vFa}, {WS}, 0 offen {PF}
s_sub_u32 s{S_TO}, s{S_TO}, 1
s_cmp_lg_u32 s{S_TO}, 0
s_cbranch_scc1 {l2}
s_mov_b32 s{S_TO}, 1
{d2}:""")
    uloads()
    a(f"{hu}:\ns_waitcnt lgkmcnt(0)\ns_barrier")
    for s in range(8):
        a(f"ds_read_b128 {vr(vP+4*s,4)}, v{vPa} offset:{L_P+s*PS}")
    ROW = 528; EXS = 32*ROW
    a(f"""s_mul_i32 s{sOff}, s{sKh}, {EXS}
s_lshl_b32 s{T+10}, s{sCb}, 7
s_add_u32 s{sOff}, s{sOff}, s{T+10}
s_add_u32 s{sOff}, s{sOff}, {L_EX}
v_mul_u32_u24 v{vT1}, {ROW}, v{vTok}
v_lshl_add_u32 v{vT1}, v{vHF}, 5, v{vT1}
v_add_u32 v{vT1}, s{sOff}, v{vT1}
v_lshrrev_b32 v{vT2}, 4, v0
v_mul_u32_u24 v{vT2}, {ROW}, v{vT2}
s_mul_i32 s{sOff}, s{S_W}, {4*ROW}
s_add_u32 s{sOff}, s{sOff}, {L_EX}
v_add3_u32 v{vT2}, v{vT2}, v{vT0}, s{sOff}""")
    for s in range(8):
        a(f"s_waitcnt vmcnt({7-s}) lgkmcnt({7-s})")
        mfma(a, vAcc, vU+4*s, vP+4*s, s == 0)
    for i in range(4):
        unpack(a, vF+2*i, vF+2*i+1, vX+i)
    stamp(a, 10)
    a("s_nop 3")
    for q in range(4):
        a(f"ds_write_b128 v{vT1}, {vr(vAcc+4*q,4)} offset:{64*(q>>1) + 16*(q&1)}")
    a(f"""s_waitcnt lgkmcnt(0)
s_barrier
ds_read_b128 {vr(vAcc,4)}, v{vT2}
ds_read_b128 {vr(vR,4)}, v{vT2} offset:{EXS}
ds_read_b128 {vr(vAcc+4,4)}, v{vT2} offset:16
ds_read_b128 {vr(vR+4,4)}, v{vT2} offset:{EXS+16}
s_waitcnt vmcnt(0) lgkmcnt(2)""")
    for r in range(8):
        if r == 4:
            a("s_waitcnt lgkmcnt(0)")
        a(f"v_add_f32 v{vAcc+r}, v{vAcc+r}, v{vR+r}")
    def cv():
        for i in range(4):
            a(f"v_cvt_pk_bf16_f32 v{vR+i}, v{vAcc+2*i}, v{vAcc+2*i+1}")
    def up():
        for i in range(4):
            unpack(a, vAcc+2*i, vAcc+2*i+1, vR+i)
    cv(); up()
    for r in range(8):
        a(f"v_mul_f32 v{vAcc+r}, v{vAcc+r}, v{vG+r}")
    cv(); up()
    for r in range(8):
        a(f"v_add_f32 v{vAcc+r}, v{vAcc+r}, v{vF+r}")
    cv()
    a(f"buffer_store_dwordx4 {vr(vR,4)}, v{vXo}, {RB}, s{sXo} offen {OPT.get('oflag', '').replace('+', ' ')}")
    a("L_fin:")

def gemv_dma(a, sColA, vD):
    sRow0, sOff = T+2, T+3
    a(f"""v_lshlrev_b32 v{vD}, 4, v{vCH}
v_mul_u32_u24 v{vT0}, 13824, v{vR8}
v_add3_u32 v{vD}, v{vD}, v{vT0}, s{sColA}
s_mul_i32 s{sOff}, s{sRow0}, 13824
s_lshl_b32 m0, s{sRow0}, 7""")
    for t in range(18):
        a(f"""s_nop 0
buffer_load_dwordx4 v{vD}, {RA}, s{sOff} offen {NT} lds""")
        if t < 17:
            a(f"s_add_u32 s{sOff}, s{sOff}, {8*13824}\ns_add_u32 m0, m0, 1024")

def phase_owner(a):
    sColA, sB, sRow0, sOff, sO, sCs, sTb = T, T+1, T+2, T+3, T+4, T+5, T+6
    vD, vA0, vA1, vSil, vCs = V0, V0+1, V0+2, V0+3, V0+4
    vC = 24
    vST = 28
    vX = VOX
    vXN = 48
    vPt = 80
    vAcc = 112
    vWF = 144
    vSF = 160
    vM = 184
    a(f"""s_mov_b32 s{sO}, s2
s_cmp_ge_u32 s{sO}, 36
s_cbranch_scc1 L_o_pref
s_lshr_b32 s{sCs}, s{sO}, 1
s_and_b32 s{sB}, s{sO}, 1
s_waitcnt vmcnt(0)
s_barrier""")
    stamp(a, 6)
    vST = 32
    vPt = 112
    SM = [32, 33, 34, 35, 36, 37, 38, 39, 40, 41, 42, 43, 9, 10, 11, 12]
    a(f"""v_and_b32 v{vT3}, 7, v0
v_xor_b32 v{vT0}, s{S_W}, v{vT3}
v_lshlrev_b32 v{vT0}, 4, v{vT0}
v_lshl_add_u32 v{vT0}, v0, 7, v{vT0}""")
    for q in range(4):
        a(f"ds_read_b128 {vr(vX+4*q,4)}, v{vT0} offset:{q*8192}")
    a(f"""s_lshl_b32 s{T+9}, s{sB}, 12
s_add_u32 s{T+9}, s{T+9}, {F_STAT}
s_mul_i32 s{T+10}, s{sO}, {18*1024}
s_lshl_b32 s{sOff}, s{S_W}, 7
s_add_u32 s{T+10}, s{T+10}, s{sOff}
s_add_u32 s{T+10}, s{T+10}, {WS_PART}
s_add_u32 s{T+11}, s{T+10}, 8192
v_lshlrev_b32 v{vT1}, 4, v{vT3}
v_min_u32 v{vT2}, 1, v{vR8}
v_lshl_add_u32 v{vT2}, v{vT2}, 10, v{vT1}
v_add_u32 v{vT2}, 16384, v{vT2}
v_lshl_add_u32 v{vT1}, v{vR8}, 10, v{vT1}
v_cmp_gt_u32 vcc, 16, v0
v_mul_u32_u24 v{vCs}, {72*1024}, v{vHF}
v_lshl_add_u32 v{vCs}, v{vTok}, 4, v{vCs}
v_cndmask_b32 v{vA0}, 0, 1.0, vcc
v_bfe_u32 v{vA1}, v0, 2, 1
v_cvt_f32_u32 v{vA1}, v{vA1}
s_mul_i32 s{sOff}, s{sB}, {8*72*1024}
s_lshl_b32 s{T+12}, s{sCs}, 12
s_add_u32 s{sOff}, s{sOff}, s{T+12}
s_lshl_b32 s{T+12}, s{S_W}, 9
s_add_u32 s{sOff}, s{sOff}, s{T+12}
s_add_u32 s{sOff}, s{sOff}, {WS_H}
s_waitcnt lgkmcnt(0)""")
    def stl():
        for q in range(4):
            a(f"buffer_load_dwordx4 {vr(vST+4*q,4)}, v{vL16}, {WS}, s{T+9} offen offset:{1024*q} sc1")
    def pl():
        a(f"""buffer_load_dwordx4 {vr(vPt,4)}, v{vT1}, {WS}, s{T+10} offen sc1
buffer_load_dwordx4 {vr(vPt+4,4)}, v{vT1}, {WS}, s{T+11} offen sc1
buffer_load_dwordx4 {vr(vPt+8,4)}, v{vT2}, {WS}, s{T+10} offen sc1""")
    P = [(q, i) for q in range(4) for i in range(4)]
    lo = lambda q, i: vXN+8*q+2*i
    hi = lambda q, i: vXN+8*q+2*i+1
    xs = lambda q, i: vX+4*q+i
    def st_unpack():
        for q, i in P: unpack(a, lo(q,i), hi(q,i), xs(q,i))
    def st_cvt():
        for q, i in P: a(f"v_cvt_pk_bf16_f32 v{xs(q,i)}, v{lo(q,i)}, v{hi(q,i)}")
    def st_op(op, f):
        for q, i in P:
            a(f"{op} v{lo(q,i)}, v{lo(q,i)}, v{f(q,2*i)}\n{op} v{hi(q,i)}, v{hi(q,i)}, v{f(q,2*i+1)}")
    st_unpack()
    if 'st1' in OPT:
        a(f"v_and_b32 v{vM}, 3, v0\ns_lshl_b32 s{T+12}, s{S_W}, 9\nv_lshlrev_b32 v{vM}, 7, v{vM}\ns_add_u32 s{T+12}, s{T+12}, s{T+9}\nv_add_u32 v{vM}, 124, v{vM}")
        wpoll(a, vM, f"s{T+12}", vM+1)
        a("s_barrier")
    if OPT.get('st2', '1') == '1':
        a(f"""s_lshl_b32 s{T+12}, s{S_W}, 9
v_lshlrev_b32 v{vM}, 4, v{vTok}
v_add_u32 v{vM}, s{T+12}, v{vM}
v_add_u32 v{vM+1}, {L_RED}, v{vM}
v_add_u32 v{vM+2}, {L_RED}, v{vL16}""")
        gpoll(a, lambda: a(f"buffer_load_dwordx4 {vr(vST,4)}, v{vM}, {WS}, s{T+9} offen sc1"), [vST+1, vST+3], OPT.get('ssleep'))
        a(f"""ds_write_b128 v{vM+1}, {vr(vST,4)}
s_waitcnt lgkmcnt(0)
s_barrier""")
        for q in range(4):
            a(f"ds_read_b128 {vr(vST+4*q,4)}, v{vM+2} offset:{1024*q}")
        a("s_waitcnt lgkmcnt(0)")
    else:
        gpoll(a, stl, [vST+4*q+j for q in range(4) for j in (1, 3)], OPT.get('ssleep'))
    stamp(a, 1)
    st_op("v_sub_f32", lambda q, j: vST+4*q); st_cvt()
    st_unpack()
    pl()
    st_op("v_mul_f32", lambda q, j: vST+4*q+2); st_cvt()
    st_unpack()
    stamp(a, 2)
    lp = a.label("pp"); ld = a.label("ppd")
    a(f"""{lp}:
s_waitcnt vmcnt(0)
v_min3_u32 v{vM}, v{vPt+1}, v{vPt+3}, v{vPt+5}
v_max3_u32 v{vM+1}, v{vPt+1}, v{vPt+3}, v{vPt+5}
v_min3_u32 v{vM}, v{vM}, v{vPt+7}, v{vPt+9}
v_max3_u32 v{vM+1}, v{vM+1}, v{vPt+7}, v{vPt+9}
v_min_u32 v{vM}, v{vM}, v{vPt+11}
v_max_u32 v{vM+1}, v{vM+1}, v{vPt+11}
v_cmp_ne_u32 vcc, s{S_TAG}, v{vM}
v_cmp_ne_u32 s[{T+14}:{T+15}], s{S_TAG}, v{vM+1}
s_or_b64 vcc, vcc, s[{T+14}:{T+15}]
s_cbranch_vccz {ld}
s_sub_u32 s{S_TO}, s{S_TO}, 1
s_cmp_eq_u32 s{S_TO}, 0
s_cbranch_scc1 {ld}""")
    pl()
    a(f"""s_branch {lp}
{ld}:
s_max_u32 s{S_TO}, s{S_TO}, 1
v_add_f32 v{vPt}, v{vPt}, v{vPt+4}
v_add_f32 v{vPt+2}, v{vPt+2}, v{vPt+6}
v_fmac_f32 v{vPt}, v{vA0}, v{vPt+8}
v_fmac_f32 v{vPt+2}, v{vA0}, v{vPt+10}
s_nop 1
v_permlane32_swap_b32 v{vPt}, v{vPt+2}
s_nop 0
v_add_f32 v{vPt}, v{vPt}, v{vPt+2}
v_mov_b32 v{vPt+2}, v{vPt}
s_nop 1
v_permlane16_swap_b32 v{vPt}, v{vPt+2}
s_nop 0
v_add_f32 v{vPt}, v{vPt}, v{vPt+2}
s_nop 1
v_add_f32_dpp v{vPt}, v{vPt}, v{vPt} row_ror:8 row_mask:0xf bank_mask:0xf""")
    round_bf16(a, vPt)
    a(f"v_add_f32 v{vPt}, v{vPt}, v{vA1}")
    round_bf16(a, vPt)
    a("s_nop 0")
    for u in (4, 5, 6, 7, 0, 1, 2, 3):
        a(f"v_readlane_b32 s{SM[2*u]}, v{vPt}, {u}\nv_readlane_b32 s{SM[2*u+1]}, v{vPt}, {32+u}")
    stamp(a, 3)
    for q, i in P:
        a(f"v_mul_f32 v{lo(q,i)}, s{SM[8+2*i]}, v{lo(q,i)}\nv_mul_f32 v{hi(q,i)}, s{SM[8+2*i+1]}, v{hi(q,i)}")
    st_cvt(); st_unpack()
    for q in range(4):
        for i in range(4):
            a(f"v_add_f32 v{lo(q,i)}, s{SM[2*i]}, v{lo(q,i)}\nv_add_f32 v{hi(q,i)}, s{SM[2*i+1]}, v{hi(q,i)}")
        for i in range(4):
            a(f"v_cvt_pk_bf16_f32 v{xs(q,i)}, v{lo(q,i)}, v{hi(q,i)}")
        a(f"buffer_store_dwordx4 {vr(vX+4*q,4)}, v{vCs}, {WS}, s{sOff} offen sc1")
        if q < 3:
            a(f"s_add_u32 s{sOff}, s{sOff}, {2*72*1024}")
    stamp(a, 4)
    a(f"""s_mul_i32 s{sOff}, s{sB}, 18
s_add_u32 s{sOff}, s{sOff}, s{sCs}
s_lshl_b32 s{sOff}, s{sOff}, 7
s_add_u32 s{sOff}, s{sOff}, {F_H}""")
    set_flag(a, f"s{sOff}")
    stamp(a, 5)
    if 'ob' in OPT:
        a("s_waitcnt vmcnt(0)\ns_barrier")
    a("L_o_pref:")
    srd(a, R_A, S_WMOD, SZ_WMOD)
    srd(a, R_C, S_C, SZ_C)
    a(f"""s_sub_u32 s{sOff}, s{sO}, 20
s_cmp_ge_u32 s{sO}, 16
s_cselect_b32 s{sO}, s{sOff}, s{sO}
s_cselect_b32 s{sOff}, 16, 0
s_cmp_lt_u32 s{sO}, s{sOff}
s_cbranch_scc1 L_o_upd
s_cmp_ge_u32 s{sO}, 18
s_cbranch_scc1 L_o_upd""")
    if 'gd' in OPT:
        a(f"v_min_u32 v{vT0}, 35, v0\nv_lshlrev_b32 v{vT0}, 7, v{vT0}\ns_movk_i32 s{sOff}, {F_H}")
        poll(a, vT0, f"s{sOff}", vT1)
    a(f"""s_mul_i32 s{sRow0}, s{S_W}, 144
v_min_u32 v{vT0}, 17, v{vTok}
v_lshlrev_b32 v{vT0}, 4, v{vT0}
v_mul_u32_u24 v{vT1}, 2304, v{vHF}
v_add_u32 v{vCs}, v{vT0}, v{vT1}
s_lshl_b32 s{sOff}, s{sRow0}, 1
buffer_load_dwordx4 {vr(vC,4)}, v{vCs}, {RC}, s{sOff} offen
s_lshl_b32 s{sColA}, s{sO}, 7
s_add_u32 s{sColA}, s{sColA}, 4608""")
    gemv_dma(a, sColA, vD)
    a(f"""s_lshl_b32 s{sOff}, s{sRow0}, 7
v_add_u32 v{vA0}, s{sOff}, v{vB0}
v_add_u32 v{vA1}, s{sOff}, v{vB1}
s_waitcnt vmcnt(18)""")
    for i in range(4):
        unpack(a, vM+2*i, vM+2*i+1, vC+i)
    silu8(a, vM, vM+8)
    for i in range(4):
        a(f"v_cvt_pk_bf16_f32 v{vC+i}, v{vM+2*i}, v{vM+2*i+1}")
    a(f"""s_lshl_b32 s{sOff}, s{sRow0}, 1
s_add_u32 s{sOff}, s{sOff}, {L_SIL}
v_add_u32 v{vCs}, s{sOff}, v{vCs}
ds_write_b128 v{vCs}, {vr(vC,4)}
v_and_b32 v{vT0}, 1, v0
v_mul_u32_u24 v{vT0}, 2304, v{vT0}
v_lshl_add_u32 v{vT0}, v{vHF}, 4, v{vT0}
v_add_u32 v{vSil}, s{sOff}, v{vT0}
s_waitcnt lgkmcnt(0)""")
    for s in range(9):
        wf = vWF + 8*(s & 1); sf = vSF + 4*(s & 1)
        a(f"s_waitcnt vmcnt({18-2*(s+1)})")
        a(f"ds_read_b128 {vr(sf,4)}, v{vSil} offset:{s*32}")
        trreads(a, wf, vA0, vA1, s*2048)
        a("s_waitcnt lgkmcnt(2)")
        mfma(a, vAcc, wf, sf, s == 0)
        a("s_waitcnt lgkmcnt(0)")
        mfma(a, vAcc+16, wf+4, sf, s == 0)
    a(f"""v_and_b32 v{vT0}, 1, v0
v_lshlrev_b32 v{vT0}, 8, v{vT0}
v_lshl_add_u32 v{vT0}, v{vHF}, 5, v{vT0}
s_lshl_b32 s{sOff}, s{S_W}, 9
s_add_u32 s{sOff}, s{sOff}, {L_RED}
v_add_u32 v{vT0}, s{sOff}, v{vT0}
s_mov_b32 exec_lo, 3
s_mov_b32 exec_hi, 3
s_nop 8""")
    for cb in range(2):
        for q, off in enumerate((0, 16, 64, 80)):
            a(f"ds_write_b128 v{vT0}, {vr(vAcc+16*cb+4*q,4)} offset:{cb*128+off}")
    a(f"""s_mov_b64 exec, -1
s_waitcnt lgkmcnt(0)
s_barrier
s_lshr_b32 s{sOff}, s{S_W}, 2
s_lshl_b32 s{sOff}, s{sOff}, 8
s_add_u32 s{sOff}, s{sOff}, {L_RED}
v_lshlrev_b32 v{vT0}, 2, v0
v_add_u32 v{vT1}, s{sOff}, v{vT0}""")
    for w in range(8):
        a(f"ds_read_b32 v{vAcc+w}, v{vT1} offset:{w*512}")
    a("s_waitcnt lgkmcnt(0)")
    for w in range(1, 8):
        a(f"v_add_f32 v{vAcc}, v{vAcc}, v{vAcc+w}")
    round_bf16(a, vAcc)
    lsk = a.label("gsk")
    a(f"""s_and_b32 s{sOff}, s{S_W}, 3
s_cmp_lg_u32 s{sOff}, 0
s_cbranch_scc1 {lsk}
s_lshr_b32 s{T+9}, s{S_W}, 2
s_mul_i32 s{sOff}, s{T+9}, 4608
s_lshl_b32 s{sColA}, s{sO}, 8
s_add_u32 s{sOff}, s{sOff}, s{sColA}
s_add_u32 s{sOff}, s{sOff}, {WS_GATE}
buffer_store_dword v{vAcc}, v{vT0}, {WS}, s{sOff} offen sc1
{lsk}:
s_lshl_b32 s{sOff}, s{sO}, 7
s_add_u32 s{sOff}, s{sOff}, {F_G}""")
    set_flag(a, f"s{sOff}")
    stamp(a, 7)
    lp = a.label("ep"); ld = a.label("epd")
    a(f"""L_o_upd:
s_add_u32 s{S_SLOT}, s{S_SLOT}, 25
s_cmp_ge_u32 s{S_SLOT}, 27
s_cbranch_scc1 L_c_notu
s_cmp_lg_u32 s2, 0
s_cbranch_scc1 L_fin
s_lshl_b32 s{sOff}, s{S_W}, 6
v_add_u32 v{vT0}, s{sOff}, v0
v_min_u32 v{vT0}, 431, v{vT0}
v_lshlrev_b32 v{vT0}, 8, v{vT0}
s_mov_b32 s{sOff}, {F_QKV}
{lp}:
s_sleep 16
buffer_load_dword v{vT1}, v{vT0}, {WS}, s{sOff} offen sc1
buffer_load_dword v{vT2}, v{vT0}, {WS}, s{sOff} offen offset:128 sc1
s_waitcnt vmcnt(0)
v_cmp_ne_u32 vcc, s{S_TAG}, v{vT1}
v_cmp_ne_u32 s[{T+14}:{T+15}], s{S_TAG}, v{vT2}
s_or_b64 vcc, vcc, s[{T+14}:{T+15}]
s_cbranch_vccz {ld}
s_sub_u32 s{S_TO}, s{S_TO}, 1
s_cmp_lg_u32 s{S_TO}, 0
s_cbranch_scc1 {lp}
{ld}:
s_mov_b32 s{sOff}, {EPOCH}""")
    set_flag(a, f"s{sOff}")
    a("s_branch L_fin")

def epilogue(a):
    if STAMP and 'probe' in OPT:
        i = int(OPT['probe']); lo, hi = [int(x) for x in OPT.get('prole', '0:256').split(':')]
        a(f"""s_waitcnt vmcnt(0) lgkmcnt(0)
s_cmp_lg_u32 s{S_W}, {OPT.get('stw', 0)}
s_cbranch_scc1 L_end
s_memrealtime s[{S_ST+30}:{S_ST+31}]
s_waitcnt lgkmcnt(0)
s_sub_u32 s{T}, s{S_ST+2*i}, s{S_ST}
s_cmp_eq_u32 s{S_ST+2*i}, 0
s_cselect_b32 s{T}, 0, s{T}
s_cmp_lt_u32 s2, {lo}
s_cselect_b32 s{T}, 0, s{T}
s_cmp_ge_u32 s2, {hi}
s_cselect_b32 s{T}, 0, s{T}
s_lshl_b32 s{T}, s{T}, 2
s_add_u32 s{T}, s{T}, 5000
L_spin:
s_memrealtime s[{T+2}:{T+3}]
s_waitcnt lgkmcnt(0)
s_sub_u32 s{T+2}, s{T+2}, s{S_ST}
s_cmp_lt_u32 s{T+2}, s{T}
s_cbranch_scc1 L_spin""")
    elif STAMP:
        a(f"""s_waitcnt vmcnt(0) lgkmcnt(0)
s_cmp_lg_u32 s{S_W}, {OPT.get('stw', 0)}
s_cbranch_scc1 L_end
{CLK} s[{S_ST+30}:{S_ST+31}]
s_memtime s[98:99]
s_waitcnt lgkmcnt(0)
s_sub_u32 s98, s98, s96""")
        for i in range(16):
            a(f"v_mov_b32 v{16+i}, s{S_ST+2*i}")
        a(f"""v_mov_b32 v32, s98
s_lshl_b32 s{T}, s2, 7
s_add_u32 s{T}, s{T}, {WS_STAMP}
v_mov_b32 v1, 0
s_mov_b64 exec, 1""")
        for i in range(4):
            a(f"buffer_store_dwordx4 v[{16+4*i}:{19+4*i}], v1, {WS}, s{T} offen offset:{16*i}")
        a(f"buffer_store_dword v32, v1, {WS}, s{T} offen offset:64")
    a("L_end:\ns_endpgm")

def main():
    a = Asm()
    a.raw("""; DiT adaLN attention block (B=2, N=256, D=1152) as ONE persistent launch, 256 workgroups x 8 waves (one per CU).
; Written by a generator script of my own (hand-designed schedule, no compiler output).
;  stage 0 : 162 WGs: split-K pieces of silu(c) @ w_mod[:, :2D] -> tagged granules; 64 WGs: LayerNorm row statistics
; @launch grid=(256,1,1) block=(512,1,1) lds=163840""")
    a.raw('.amdgcn_target "amdgcn-amd-amdhsa--gfx950"\n.text')
    prologue(a)
    phase_bc(a)
    NOD[0] = True
    phase_d(a)
    NOD[0] = False
    epilogue(a)
    a("L_owner:")
    phase_owner(a)
    a.raw(".p2align 4\nL_codeend:")
    out = a.text() + kd(NAME, 244, 102)
    path = [x for x in sys.argv[1:] if not x.startswith('--')][0]
    open(path, 'w').write(out)
main()
```

```python
import sys, struct
from asmlib import *

OPT = dict(la='12', nt='', cpf='1', umap='4', lfull='1', pack='0', ew='3')
for a_ in sys.argv[1:]:
    if a_.startswith('--'):
        k, _, v = a_[2:].partition('=')
        OPT[k] = v
STAMP = 'stamp' in OPT
NT = OPT['nt']
PF = OPT.get('pf', 'sc1').replace('+', ' ')
SF = OPT.get('sf', 'sc1').replace('+', ' ')
NTW = 'nt' if 'ntw' in OPT else ''
NTO = 'nt' if 'nto' in OPT else ''
NTM = 'nt' if 'ntm' in OPT else ''
CLK = "s_memtime" if 'cyc' in OPT else "s_memrealtime"

NAME = "standalone__dit_adaln_block__diffusion_kernel"
D = 1152
SZ_X = 512*D*2; SZ_C = 2*D*2; SZ_WQKV = D*3*D*2; SZ_WO = D*D*2; SZ_WMOD = D*6*D*2
SZ_WS = 1 << 28
F_STAT = 0x0
F_H = 0x2000
F_L = 0x4000
F_U = 0x760000
F_G = 0x4000
F_QKV = 0x740000
EPOCH = 0x13000
WS_GATE = 0x14000
WS_H = 0x20000
WS_QKV = 0x140000
WS_L = 0x680000
WS_U = 0x550000
WS_PART = 0x4A0000
WS_STAMP = 0x700000
F_LH = 0x720000
LOG2E = 0x3fb8aa3b

S_W, S_TAG, S_G, S_SLOT, S_TO, S_TK = 3, 4, 5, 6, 7, 8
S_X, S_C, S_WQKV, S_WO, S_WMOD, S_OUT, S_DBG, S_WS = 16, 18, 20, 22, 24, 26, 28, 30
R_A, R_B, R_C, R_WS = 32, 36, 40, 44
T = 48
S_ST = 64
WS = f"s[{R_WS}:{R_WS+3}]"
RA = f"s[{R_A}:{R_A+3}]"; RB = f"s[{R_B}:{R_B+3}]"; RC = f"s[{R_C}:{R_C+3}]"
vL16, vP16, vB0, vB1, vCH, vR8, vHF, vTok = 1, 2, 3, 4, 5, 6, 7, 8
vT0, vT1, vT2, vT3 = 9, 10, 11, 12
vTAG = 13
V0 = 16

L_MISC = 147456
L_SIL = L_MISC
L_RED = L_SIL + 4608
L_FIN = L_RED + 4096
L_ROLE = L_FIN + 4096
L_STC = L_ROLE + 16
L_GATE = 36864
NO = 5

WSB = int(OPT.get('wsb', '0'), 0)
def srd(a, r, ptr, size):
    if r == R_WS and WSB:
        a(f"""s_add_u32 s{r}, s{ptr}, {hex(WSB)}
s_addc_u32 s{r+1}, s{ptr+1}, 0
s_and_b32 s{r+1}, s{r+1}, 0xffff
s_mov_b32 s{r+2}, {hex(size - WSB)}
s_mov_b32 s{r+3}, 0x20000""")
        return
    a(f"""s_mov_b32 s{r}, s{ptr}
s_and_b32 s{r+1}, s{ptr+1}, 0xffff
s_mov_b32 s{r+2}, {hex(size)}
s_mov_b32 s{r+3}, 0x20000""")

NOD = [False]
def stamp(a, i):
    if STAMP and not (NOD[0] and 'nod' in OPT):
        a(f"{CLK} s[{S_ST+2*i}:{S_ST+2*i+1}]")

def unpack(a, lo, hi, src):
    a(f"v_lshlrev_b32 v{lo}, 16, v{src}\nv_and_b32 v{hi}, 0xffff0000, v{src}")

def round_bf16(a, v):
    a(f"v_cvt_pk_bf16_f32 v{v}, v{v}, v{v}\nv_lshlrev_b32 v{v}, 16, v{v}")

HACK = [0]
def mfma(a, acc, A, B, first=False):
    if 'hack16' in OPT and not first:
        HACK[0] += 1
        o = 8*((HACK[0] >> 1) & 1)
        for j in range(2):
            a(f"v_mfma_f32_16x16x32_bf16 {vr(acc+o+4*j,4)}, {vr(A,4)}, {vr(B,4)}, {vr(acc+o+4*j,4)}")
        return
    c = "0" if first else vr(acc, 16)
    a(f"v_mfma_f32_32x32x16_bf16 {vr(acc,16)}, {vr(A,4)}, {vr(B,4)}, {c}")

def wrap_add(a, s, step, s_end, s_start):
    a(f"""s_add_u32 s{s}, s{s}, {step}
s_cmp_eq_u32 s{s}, s{s_end}
s_cselect_b32 s{s}, s{s_start}, s{s}""")

def mod9(a, dst, src, tmp):
    a(f"""s_mul_i32 s{tmp}, s{src}, 57
s_lshr_b32 s{tmp}, s{tmp}, 9
s_mul_i32 s{tmp}, s{tmp}, 9
s_sub_u32 s{dst}, s{src}, s{tmp}""")

def poll(a, vaddr, soff, vtmp):
    l = a.label("poll"); d = a.label("polld")
    a(f"""s_cmp_lg_u32 s{S_W}, 0
s_cbranch_scc1 {d}
{l}:
buffer_load_dword v{vtmp}, v{vaddr}, {WS}, {soff} offen {PF}
s_waitcnt vmcnt(0)
v_cmp_ne_u32 vcc, s{S_TAG}, v{vtmp}
s_cbranch_vccz {d}
s_sleep {OPT.get('sleep', 2)}
s_sub_u32 s{S_TO}, s{S_TO}, 1
s_cmp_lg_u32 s{S_TO}, 0
s_cbranch_scc1 {l}
s_mov_b32 s{S_TO}, 1
{d}:
s_barrier""")

def gpoll(a, loads, tagregs, slp=None):
    l = a.label("gp"); d = a.label("gpd")
    a(f"{l}:")
    loads()
    a(f"s_waitcnt vmcnt(0)\nv_cmp_ne_u32 vcc, s{S_TAG}, v{tagregs[0]}")
    for r in tagregs[1:]:
        a(f"v_cmp_ne_u32 s[{T+14}:{T+15}], s{S_TAG}, v{r}\ns_or_b64 vcc, vcc, s[{T+14}:{T+15}]")
    a(f"""s_cbranch_vccz {d}
s_sleep {slp if slp is not None else OPT.get('gsleep', 2)}
s_sub_u32 s{S_TO}, s{S_TO}, 1
s_cmp_lg_u32 s{S_TO}, 0
s_cbranch_scc1 {l}
s_mov_b32 s{S_TO}, 1
{d}:""")

def raw_flag(a, soff):
    a(f"""v_mov_b32 v{vT3}, 0
s_mov_b64 exec, 1
buffer_store_dword v{vTAG}, v{vT3}, {WS}, {soff} offen {SF}
s_mov_b64 exec, -1""")

def set_flag(a, soff, younger=0):
    d = a.label("fl")
    a(f"""s_waitcnt vmcnt({younger})
s_barrier
s_cmp_lg_u32 s{S_W}, 0
s_cbranch_scc1 {d}""")
    raw_flag(a, soff)
    a(f"{d}:")

def trreads(a, wf, b0, b1, off):
    a(f"""ds_read_b64_tr_b16 {vr(wf,2)}, v{b0} offset:{off}
ds_read_b64_tr_b16 {vr(wf+2,2)}, v{b0} offset:{off+512}
ds_read_b64_tr_b16 {vr(wf+4,2)}, v{b1} offset:{off}
ds_read_b64_tr_b16 {vr(wf+6,2)}, v{b1} offset:{off+512}""")

def dma_tile(a, srdname, vD, pitch, s_rot, flags, n0=0, n1=18):
    sN, sO = T+10, T+11
    if s_rot is None:
        a(f"s_add_u32 s{sN}, s{S_W}, {8*n0}")
    else:
        a(f"s_lshl_b32 s{sN}, s{s_rot}, 3\ns_add_u32 s{sN}, s{sN}, s{S_W}")
    for n in range(n0, n1):
        a(f"""s_lshl_b32 m0, s{sN}, 10
s_mul_i32 s{sO}, s{sN}, {8*pitch}
buffer_load_dwordx4 v{vD}, {srdname}, s{sO} offen {flags} lds""")
        if n < n1-1:
            a(f"s_add_u32 s{sN}, s{sN}, 8")
            if s_rot is not None:
                a(f"""s_sub_u32 s{sO}, s{sN}, 144
s_cmp_ge_u32 s{sN}, 144
s_cselect_b32 s{sN}, s{sO}, s{sN}""")

def wave_sum(a, v, sdst):
    for m in ("quad_perm:[1,0,3,2]", "quad_perm:[2,3,0,1]", "row_half_mirror", "row_mirror"):
        a(f"s_nop 1\nv_add_f32_dpp v{v}, v{v}, v{v} {m} row_mask:0xf bank_mask:0xf")
    a(f"s_nop 1\nv_add_f32_dpp v{v}, v{v}, v{v} row_bcast:15 row_mask:0xa bank_mask:0xf")
    a(f"s_nop 1\nv_add_f32_dpp v{v}, v{v}, v{v} row_bcast:31 row_mask:0xc bank_mask:0xf")
    a(f"s_nop 1\nv_readlane_b32 s{sdst}, v{v}, 63\ns_nop 1")

def silu8(a, f, t):
    for i in range(8):
        a(f"v_mul_f32 v{t+i}, 0xbfb8aa3b, v{f+i}")
    for i in range(8):
        a(f"v_exp_f32 v{t+i}, v{t+i}")
    for i in range(8):
        a(f"v_add_f32 v{t+i}, 1.0, v{t+i}")
    for i in range(8):
        a(f"v_rcp_f32 v{t+i}, v{t+i}")
    for i in range(8):
        a(f"v_mul_f32 v{f+i}, v{f+i}, v{t+i}")

def lane_consts(a):
    a(f"""v_lshrrev_b32 v{vR8}, 3, v0
v_and_b32 v{vP16}, 0x33, v0
v_and_b32 v{vT0}, 4, v0
v_lshl_or_b32 v{vP16}, v{vT0}, 1, v{vP16}
v_and_b32 v{vT0}, 8, v0
v_lshrrev_b32 v{vT0}, 1, v{vT0}
v_or_b32 v{vP16}, v{vP16}, v{vT0}
v_lshlrev_b32 v{vP16}, 4, v{vP16}
v_lshrrev_b32 v{vT0}, 2, v0
v_and_b32 v{vT0}, 4, v{vT0}
v_and_b32 v{vCH}, 7, v0
v_xor_b32 v{vCH}, v{vCH}, v{vT0}
v_lshlrev_b32 v{vB0}, 10, v{vHF}
v_and_b32 v{vT0}, 12, v0
v_lshl_or_b32 v{vB0}, v{vT0}, 5, v{vB0}
v_and_b32 v{vT0}, 8, v0
v_lshl_or_b32 v{vB0}, v{vT0}, 3, v{vB0}
v_and_b32 v{vT0}, 16, v0
v_lshl_or_b32 v{vB0}, v{vT0}, 1, v{vB0}
v_and_b32 v{vT0}, 1, v0
v_lshl_or_b32 v{vB0}, v{vT0}, 4, v{vB0}
v_and_b32 v{vT0}, 2, v0
v_lshl_or_b32 v{vB0}, v{vT0}, 2, v{vB0}
v_xor_b32 v{vB1}, 64, v{vB0}""")

def get_tag(a):
    a(f"""s_waitcnt lgkmcnt(0)
s_mul_i32 s{S_TAG}, s{S_TAG}, 1664525
s_add_u32 s{S_TAG}, s{S_TAG}, 1013904223
v_mov_b32 v{vTAG}, s{S_TAG}""")

def wpoll(a, vaddr, soff, vtmp):
    gpoll(a, lambda: a(f"buffer_load_dword v{vtmp}, v{vaddr}, {WS}, {soff} offen {PF}"), [vtmp])

S_BCT, S_BRT = 11, 12
vDW = 15
R0, R1 = [int(x) for x in OPT.get('wrot', '36,28').split(',')]
assert R0 + 3*R1 + 7 < 144
def b_setup(a):
    srd(a, R_B, S_WQKV, SZ_WQKV)
    a(f"""s_mul_i32 s{S_BCT}, s{S_G}, 27
s_add_u32 s{S_BCT}, s{S_BCT}, s{S_SLOT}
s_sub_u32 s{S_BCT}, s{S_BCT}, {NO}
s_and_b32 s{S_BRT}, s{S_BCT}, 3
s_lshr_b32 s{S_BCT}, s{S_BCT}, 2
s_mul_i32 s13, s{S_BRT}, {R1}
s_add_u32 s{T+14}, s13, {R0}
s_cmp_lg_u32 s{S_BRT}, 0
s_cselect_b32 s13, s{T+14}, s13
s_add_u32 s13, s13, s{S_W}
v_lshlrev_b32 v{vDW}, 4, v{vCH}
v_mul_u32_u24 v{vT0}, 6912, v{vR8}
s_lshl_b32 s{T+14}, s{S_BCT}, 7
v_add3_u32 v{vDW}, v{vDW}, v{vT0}, s{T+14}""")

THR = f"s_waitcnt vmcnt({OPT['thr']})" if 'thr' in OPT else ''
THRO = f"s_waitcnt vmcnt({OPT['thro']})" if 'thro' in OPT else ''
def w_dma(a, n):
    for i in range(n):
        a(f"""s_lshl_b32 m0, s13, 10
s_mul_i32 s{T+14}, s13, {8*6912}
buffer_load_dwordx4 v{vDW}, {RB}, s{T+14} offen {NTW} lds
{THR}
s_add_u32 s13, s13, 8
s_sub_u32 s{T+14}, s13, 144
s_cmp_ge_u32 s13, 144
s_cselect_b32 s13, s{T+14}, s13""")

EW = int(OPT.get('ew', 0))
def prologue(a):
    a.raw(f".globl {NAME}\n.p2align 8\n.type {NAME},@function\n{NAME}:")
    a(f"""s_cmp_ge_u32 s2, 256
s_cbranch_scc1 L_end
s_load_dwordx16 s[16:31], s[0:1], 0""")
    if STAMP:
        a(f"{CLK} s[{S_ST}:{S_ST+1}]\ns_memtime s[96:97]")
        for i in range(1, 16):
            a(f"s_mov_b32 s{S_ST+2*i}, 0")
    a(f"""v_lshrrev_b32 v1, 6, v0
v_and_b32 v0, 63, v0
s_and_b32 s{S_G}, s2, 7
v_readfirstlane_b32 s{S_W}, v1
s_lshr_b32 s{S_SLOT}, s2, 3
s_mov_b32 s{S_TO}, 0x40000
v_lshlrev_b32 v{vL16}, 4, v0
v_lshrrev_b32 v{vHF}, 5, v0
v_and_b32 v{vTok}, 31, v0
s_mov_b32 s{S_TK}, s2""")
    if OPT.get('cpf') == '1':
        a(f"""s_cmp_lg_u32 s{S_W}, 7
s_cbranch_scc1 L_nocpf
s_getpc_b64 s[{T}:{T+1}]
L_pc:
s_sub_u32 s{T}, s{T}, L_pc-{NAME}
s_subb_u32 s{T+1}, s{T+1}, 0
s_lshl_b32 s{T+2}, s{S_SLOT}, 10
v_add_u32 v{vT0}, s{T+2}, v{vL16}
v_min_u32 v{vT0}, L_codeend-{NAME}-16, v{vT0}
global_load_dwordx4 v[240:243], v{vT0}, s[{T}:{T+1}]
L_nocpf:""")
    if OPT.get('lead', '1') == '1':
        a(f"""s_mul_i32 s{T}, s{S_G}, 27
s_add_u32 s{T}, s{T}, s{S_SLOT}
s_sub_u32 s{T}, s{T}, {NO}
s_lshr_b32 s{T+1}, s{T}, 2
s_sub_u32 s{T+2}, s{T}, s{T+1}
s_add_u32 s{T+2}, s{T+2}, 93
s_and_b32 s{T+3}, s{T+1}, 1
s_mul_i32 s{T+3}, s{T+3}, 27
s_lshr_b32 s{T+1}, s{T+1}, 1
s_add_u32 s{T+1}, s{T+1}, s{T+3}
s_add_u32 s{T+1}, s{T+1}, 40
s_and_b32 s{T}, s{T}, 3
s_cselect_b32 s{T+1}, s{T+2}, s{T+1}
s_cmp_ge_u32 s2, 40
s_cselect_b32 s{S_TK}, s{T+1}, s2""")
    sP, sCg, sKs, sOff, sRow = T, T+1, T+2, T+3, T+4
    a(f"""s_cmp_ge_u32 s{S_TK}, 64
s_cbranch_scc1 L_s0_nst""")
    vRW = 16
    a(f"""s_lshl_b32 s{sOff}, s{S_TK}, 3
s_add_u32 s{sOff}, s{sOff}, s{S_W}
s_mul_i32 s{sOff}, s{sOff}, 2304
v_mov_b32 v{vRW+8}, 0
v_mov_b32 v{vRW+9}, 0
v_mov_b32 v{vRW+10}, 0
v_mov_b32 v{vRW+11}, 0
s_and_b32 s{T+13}, s2, 1
s_lshr_b32 s{T+12}, s2, 1
s_lshl_b32 s{T+13}, s{T+13}, 3
s_add_u32 s{T+13}, s{T+13}, s{S_W}
v_lshrrev_b32 v{vR8}, 3, v0
v_mul_u32_u24 v{vT0}, 2304, v{vR8}
v_and_b32 v{vT1}, 7, v0
v_xor_b32 v{vT1}, v{vT1}, v{vR8}
v_lshl_add_u32 v{vT0}, v{vT1}, 4, v{vT0}
s_mul_i32 s{T+13}, s{T+13}, {32*2304}
s_lshl_b32 s{T+12}, s{T+12}, 7
s_add_u32 s{T+13}, s{T+13}, s{T+12}
s_lshl_b32 m0, s{S_W}, 12
s_waitcnt lgkmcnt(0)""")
    srd(a, R_C, S_X, SZ_X)
    a(f"""buffer_load_dwordx4 {vr(vRW,4)}, v{vL16}, {RC}, s{sOff} offen
buffer_load_dwordx4 {vr(vRW+4,4)}, v{vL16}, {RC}, s{sOff} offen offset:1024
s_mov_b64 exec, 0xffff
buffer_load_dwordx4 {vr(vRW+8,4)}, v{vL16}, {RC}, s{sOff} offen offset:2048
s_mov_b64 exec, -1
s_mov_b32 s{S_TAG}, {EPOCH + WSB}\ns_load_dword s{S_TAG}, s[{S_WS}:{S_WS+1}], s{S_TAG}""")
    a(f"s_cmp_ge_u32 s2, 36\ns_cbranch_scc1 L_s0_stats")
    if OPT.get('xb', '1') == '1':
        a("s_barrier")
    for q in range(4):
        a(f"buffer_load_dwordx4 v{vT0}, {RC}, s{T+13} offen lds")
        if q < 3:
            a(f"s_add_u32 s{T+13}, s{T+13}, {8*2304}\ns_add_u32 m0, m0, 1024\ns_nop 0")
    a(f"""s_branch L_s0_stats
L_s0_nst:
s_cmp_lt_u32 s{S_TK}, 94
s_cbranch_scc1 L_s0_none""")
    vW = 16
    vC = 32
    vSc = 36
    vTm = 44
    vAc = 52
    a(f"""s_sub_u32 s{sP}, s{S_TK}, 94
s_mul_i32 s{sKs}, s{sP}, 57
s_lshr_b32 s{sKs}, s{sKs}, 9
s_mul_i32 s{sCg}, s{sKs}, 9
s_sub_u32 s{sCg}, s{sP}, s{sCg}
s_lshl_b32 s{sRow}, s{sKs}, 3
s_add_u32 s{sRow}, s{sRow}, s{S_W}
s_lshl_b32 s{sRow}, s{sRow}, 3
v_and_b32 v{vT0}, 15, v0
v_lshlrev_b32 v{vT0}, 4, v{vT0}
v_bfe_u32 v{vT1}, v0, 4, 1
v_mul_u32_u24 v{vT1}, 2304, v{vT1}
v_mul_u32_u24 v{vT2}, {4*13824}, v{vHF}
v_add3_u32 v{vT0}, v{vT0}, v{vT1}, v{vT2}
v_lshlrev_b32 v{vT1}, 3, v{vHF}
s_lshl_b32 s{T+5}, s{sRow}, 1
s_mul_i32 s{sOff}, s{sRow}, 13824
s_lshl_b32 s{sRow}, s{sCg}, 8
s_add_u32 s{sOff}, s{sOff}, s{sRow}
s_waitcnt lgkmcnt(0)""")
    srd(a, R_A, S_WMOD, SZ_WMOD)
    srd(a, R_C, S_C, SZ_C)
    a(f"""buffer_load_dwordx2 {vr(vC,2)}, v{vT1}, {RC}, s{T+5} offen
buffer_load_dwordx2 {vr(vC+2,2)}, v{vT1}, {RC}, s{T+5} offen offset:2304""")
    for n in range(4):
        a(f"buffer_load_dwordx4 {vr(vW+4*n,4)}, v{vT0}, {RA}, s{sOff} offen {NTM}")
        if n < 3:
            a(f"s_add_u32 s{sOff}, s{sOff}, 13824")
    a(f"s_mov_b32 s{S_TAG}, {EPOCH + WSB}\ns_load_dword s{S_TAG}, s[{S_WS}:{S_WS+1}], s{S_TAG}")
    srd(a, R_WS, S_WS, SZ_WS)
    lane_consts(a)
    b_setup(a)
    if EW:
        a("s_barrier")
        w_dma(a, EW)
    a(f"s_waitcnt vmcnt({4+EW})")
    for i in range(4):
        unpack(a, vSc+2*i, vSc+2*i+1, vC+i)
    silu8(a, vSc, vTm)
    for i in range(4):
        a(f"v_cvt_pk_bf16_f32 v{vC+i}, v{vSc+2*i}, v{vSc+2*i+1}")
    for i in range(4):
        unpack(a, vSc+2*i, vSc+2*i+1, vC+i)
    a(f"""s_lshl_b32 s{sOff}, s{S_W}, 11
s_add_u32 s{sOff}, s{sOff}, {L_MISC}
v_lshlrev_b32 v{vT2}, 5, v0
v_add_u32 v{vT2}, s{sOff}, v{vT2}
s_lshr_b32 s{sOff}, s{S_W}, 1
s_lshl_b32 s{sOff}, s{sOff}, 10
s_and_b32 s{sRow}, s{S_W}, 1
s_lshl_b32 s{sP}, s{sRow}, 8
s_add_u32 s{sOff}, s{sOff}, s{sP}
s_add_u32 s{sOff}, s{sOff}, {L_MISC}
v_lshlrev_b32 v{vT3}, 3, v{vTok}
v_lshl_add_u32 v{vT3}, v{vHF}, 9, v{vT3}
v_add_u32 v{vT3}, s{sOff}, v{vT3}
s_lshl_b32 s{sP}, s{sCg}, 1
s_add_u32 s{sP}, s{sP}, s{sRow}
s_lshl_b32 s{sP}, s{sP}, 1
s_lshr_b32 s{sOff}, s{S_W}, 1
s_add_u32 s{sP}, s{sP}, s{sOff}
s_mul_i32 s{sP}, s{sP}, 18
s_add_u32 s{sP}, s{sP}, s{sKs}
s_lshl_b32 s{sP}, s{sP}, 10
s_add_u32 s{sP}, s{sP}, {WS_PART}
v_and_b32 v{vT0}, 28, v0
v_lshlrev_b32 v{vT0}, 5, v{vT0}
v_lshl_add_u32 v{vT0}, v{vHF}, 6, v{vT0}
v_and_b32 v{vT1}, 3, v0
v_lshl_add_u32 v{vT0}, v{vT1}, 4, v{vT0}""")
    get_tag(a)
    E2 = int(OPT.get('ew2', 0)); E2AT = int(OPT.get('ew2at', 3))
    for n in range(4):
        a(f"s_waitcnt vmcnt({3-n+EW+(E2 if n > E2AT else 0)})")
        if n == E2AT and E2: w_dma(a, E2)
        if n == 3: stamp(a, 8)
        for i in range(4):
            unpack(a, vTm+2*i, vTm+2*i+1, vW+4*n+i)
        for b in range(2):
            for j in range(8):
                op = "v_mul_f32" if n == 0 else "v_fmac_f32"
                a(f"{op} v{vAc+8*b+j}, v{vTm+j}, v{vSc+4*b+n}")
    a("s_nop 1")
    for j in range(8):
        a(f"v_permlane32_swap_b32 v{vAc+j}, v{vAc+8+j}")
    for j in range(8):
        a(f"v_add_f32 v{vAc+j}, v{vAc+j}, v{vAc+8+j}")
    lsk = a.label("pubsk")
    a(f"""ds_write_b128 v{vT2}, {vr(vAc,4)}
ds_write_b128 v{vT2}, {vr(vAc+4,4)} offset:16
s_waitcnt lgkmcnt(0)
s_barrier
s_cmp_ge_u32 s{S_W}, 4
s_cbranch_scc1 {lsk}""")
    for w in range(8):
        a(f"ds_read_b64 {vr(vW+2*w,2)}, v{vT3} offset:{w*2048}")
    a(f"""v_mov_b32 v{vAc+1}, v{vTAG}
v_mov_b32 v{vAc+3}, v{vTAG}
s_waitcnt lgkmcnt(4)
v_add_f32 v{vW}, v{vW}, v{vW+2}
v_add_f32 v{vW+1}, v{vW+1}, v{vW+3}
v_add_f32 v{vW+4}, v{vW+4}, v{vW+6}
v_add_f32 v{vW+5}, v{vW+5}, v{vW+7}
s_waitcnt lgkmcnt(0)
v_add_f32 v{vW+8}, v{vW+8}, v{vW+10}
v_add_f32 v{vW+9}, v{vW+9}, v{vW+11}
v_add_f32 v{vW+12}, v{vW+12}, v{vW+14}
v_add_f32 v{vW+13}, v{vW+13}, v{vW+15}
v_add_f32 v{vW}, v{vW}, v{vW+4}
v_add_f32 v{vW+1}, v{vW+1}, v{vW+5}
v_add_f32 v{vW+8}, v{vW+8}, v{vW+12}
v_add_f32 v{vW+9}, v{vW+9}, v{vW+13}
v_add_f32 v{vAc}, v{vW}, v{vW+8}
v_add_f32 v{vAc+2}, v{vW+1}, v{vW+9}
buffer_store_dwordx4 {vr(vAc,4)}, v{vT0}, {WS}, s{sP} offen sc1
{lsk}:""")
    stamp(a, 9)
    if OPT.get('pack') == '1':
        a("s_waitcnt vmcnt(0)")
    if 'nopb' not in OPT:
        a("s_barrier")
    w_dma(a, 18-EW-E2)
    a("s_branch L_b")
    a("L_s0_stats:")
    srd(a, R_WS, S_WS, SZ_WS)
    lane_consts(a)
    lnx = a.label("nox"); ljx = a.label("jx")
    get_tag(a)
    a(f"s_cmp_ge_u32 s2, 36\ns_cbranch_scc1 {lnx}\ns_waitcnt vmcnt(4)\ns_branch {ljx}\n{lnx}:\ns_waitcnt vmcnt(0)\n{ljx}:")
    stamp(a, 8)
    s1, s2_, q1, q2 = 32, 33, 34, 35
    a(f"s_mov_b32 s{T+12}, 0x3f803f80")
    for i in range(0, 12, 2):
        c = lambda r: "0" if i == 0 else f"v{r}"
        a(f"""v_dot2_f32_bf16 v{s1}, v{vRW+i}, s{T+12}, {c(s1)}
v_dot2_f32_bf16 v{q1}, v{vRW+i}, v{vRW+i}, {c(q1)}
v_dot2_f32_bf16 v{s2_}, v{vRW+i+1}, s{T+12}, {c(s2_)}
v_dot2_f32_bf16 v{q2}, v{vRW+i+1}, v{vRW+i+1}, {c(q2)}""")
    a(f"""s_nop 2
v_add_f32 v{s1}, v{s1}, v{s2_}
v_add_f32 v{q1}, v{q1}, v{q2}""")
    for m in ("quad_perm:[1,0,3,2] row_mask:0xf", "quad_perm:[2,3,0,1] row_mask:0xf", "row_half_mirror row_mask:0xf", "row_mirror row_mask:0xf", "row_bcast:15 row_mask:0xa", "row_bcast:31 row_mask:0xc"):
        a(f"s_nop 0\nv_add_f32_dpp v{s1}, v{s1}, v{s1} {m} bank_mask:0xf\nv_add_f32_dpp v{q1}, v{q1}, v{q1} {m} bank_mask:0xf")
    g = 36
    a(f"""v_mul_f32 v{g}, 0x3a638e39, v{s1}
v_mul_f32 v{g+2}, 0x3a638e39, v{q1}
v_fma_f32 v{g+2}, -v{g}, v{g}, v{g+2}
v_max_f32 v{g+2}, 0, v{g+2}""")
    round_bf16(a, g+2)
    a(f"v_add_f32 v{g+2}, 0x3727c5ac, v{g+2}")
    round_bf16(a, g+2)
    a(f"v_sqrt_f32 v{g+2}, v{g+2}")
    round_bf16(a, g)
    round_bf16(a, g+2)
    lsk = a.label("stsk")
    a(f"""v_rcp_f32 v{g+2}, v{g+2}
v_mov_b32 v{g+1}, v{vTAG}
v_mov_b32 v{g+3}, v{vTAG}
s_lshl_b32 s{T+12}, s{S_W}, 4
s_add_u32 s{T+12}, s{T+12}, {L_STC}
v_mov_b32 v{vT0}, s{T+12}
s_mov_b32 exec_lo, 0
s_brev_b32 exec_hi, 1
ds_write_b128 v{vT0}, {vr(g,4)}
s_mov_b64 exec, -1
s_lshl_b32 s{T+12}, s{S_TK}, 7
s_add_u32 s{T+12}, s{T+12}, {F_STAT}
v_add_u32 v{vT0}, {L_STC}, v{vL16}
s_waitcnt lgkmcnt(0)
s_barrier
s_cmp_lg_u32 s{S_W}, 0
s_cbranch_scc1 {lsk}
s_mov_b64 exec, 0xff
ds_read_b128 {vr(g,4)}, v{vT0}
s_waitcnt lgkmcnt(0)
buffer_store_dwordx4 {vr(g,4)}, v{vL16}, {WS}, s{T+12} offen sc1
s_mov_b64 exec, -1
{lsk}:""")
    stamp(a, 9)
    a(f"s_cmp_lt_u32 s{S_SLOT}, {NO}\ns_cbranch_scc1 L_owner")
    if 'nopb' not in OPT:
        a("s_barrier")
    a("s_branch L_s0_w")
    a("L_s0_none:")
    a(f"s_waitcnt lgkmcnt(0)\ns_mov_b32 s{S_TAG}, {EPOCH + WSB}\ns_load_dword s{S_TAG}, s[{S_WS}:{S_WS+1}], s{S_TAG}")
    srd(a, R_WS, S_WS, SZ_WS)
    lane_consts(a)
    get_tag(a)
    if 'cw' in OPT:
        srd(a, R_C, S_C, SZ_C)
        a(f"buffer_load_dword v{vT1}, v{vL16}, {RC}, 0 offen\ns_waitcnt vmcnt(0)")
    a("L_s0_w:")
    b_setup(a)
    w_dma(a, 18)

VOX = 96

S_UCT, S_UTB = 9, 10
vDU = 14
KE = int(OPT.get('ke', 12))
def wo_dma(a, n0, n1):
    a(f"s_add_u32 s{T+10}, s{S_W}, {4*n0-4}")
    for n in range(n0, n1):
        a(f"""s_lshl_b32 m0, s{T+10}, 10
s_mul_i32 s{T+11}, s{T+10}, {8*2304}
buffer_load_dwordx4 v{vDU}, {RB}, s{T+11} offen lds""")
        if n < n1-1:
            a(f"s_add_u32 s{T+10}, s{T+10}, 4")

def gemm_loop(a, nsteps, LA, RING, vAcc, vWF, vH, vA0, vA1, vaddr, sH, lds_first, w_is_a, pre=None, rot=None, bar_at=None):
    WA = int(OPT.get('wa', 2))
    state = dict(issued=0)
    if rot:
        sR, sHs, sHe, sLo, sZ, sLe, vC0, vC1 = rot
        a(f"""s_mov_b32 s{sHs}, s{sH}
s_add_u32 s{sHe}, s{sH}, {nsteps*1024}
s_lshl_b32 s{sLo}, s{sR}, 12
s_add_u32 s{sH}, s{sH}, s{sLo}
s_lshl_b32 s{sLo}, s{sR}, 13
s_mov_b32 s{sZ}, 0
s_mov_b32 s{sLe}, {nsteps*2048}""")
    def hload():
        s = state['issued']
        a(f"buffer_load_dwordx4 {vr(vH+4*(s % RING),4)}, v{vaddr}, {WS}, s{sH} offen offset:{(s&3)*1024} sc1")
        if (s & 3) == 3 and s < nsteps-1:
            if rot: wrap_add(a, sH, 4096, sHe, sHs)
            else: a(f"s_add_u32 s{sH}, s{sH}, 4096")
        state['issued'] += 1
    def wread(s):
        if rot:
            if (s & 3) == 0:
                a(f"v_add_u32 v{vC0}, s{sLo}, v{vA0}\nv_add_u32 v{vC1}, s{sLo}, v{vA1}")
                wrap_add(a, sLo, 8192, sLe, sZ)
            trreads(a, vWF + 8*(s & 3), vC0, vC1, (s & 3)*2048)
            return
        if s and (s & 31) == 0:
            a(f"v_add_u32 v{vA0}, 0x10000, v{vA0}\nv_add_u32 v{vA1}, 0x10000, v{vA1}")
        trreads(a, vWF + 8*(s & 3), vA0, vA1, (s & 31)*2048)
    if lds_first:
        for s in range(WA): wread(s)
    for s in range(LA): hload()
    if pre: pre()
    if not lds_first:
        for s in range(WA): wread(s)
    for s in range(nsteps):
        lg = 4*min(WA-1, nsteps-1 - s)
        a(f"s_waitcnt vmcnt({state['issued'] - s - 1}) lgkmcnt({lg})")
        if s == 0 and lds_first: stamp(a, 4)
        h = vH+4*(s % RING); w0 = vWF+8*(s & 3)
        mfma(a, vAcc, *((w0, h) if w_is_a else (h, w0)), s == 0)
        if s + WA < nsteps:
            wread(s + WA)
        mfma(a, vAcc+16, *((w0+4, h) if w_is_a else (h, w0+4)), s == 0)
        if state['issued'] < nsteps:
            hload()
        if bar_at is not None and s == bar_at:
            a("s_barrier")

SZ = int(OPT['sz']) if 'sz' in OPT else None
UM = int(OPT.get('umap', 2)); UML = UM.bit_length()-1
vDX, vDXO = 236, 235
def d_tile(a):
    sQt, sCt, sCb, sKh, sOff, sXo, sJ, sU, sB, sCol = T, T+1, T+2, T+3, T+4, T+5, T+6, T+7, T+8, T+9
    a(f"""s_and_b32 s{sOff}, s{S_G}, 3
s_mul_i32 s{sOff}, s{sOff}, 18
s_min_u32 s{sJ}, s{S_SLOT}, 17
s_add_u32 s{sOff}, s{sOff}, s{sJ}
s_lshr_b32 s{sCt}, s{sOff}, 3
s_and_b32 s{sJ}, s{sOff}, 7
s_lshr_b32 s{sB}, s{S_G}, 2
s_lshl_b32 s{sQt}, s{sB}, 3
s_add_u32 s{sQt}, s{sQt}, s{sJ}
s_and_b32 s{sCb}, s{S_W}, 3
s_lshr_b32 s{sKh}, s{S_W}, 2
s_lshl_b32 s{sCol}, s{sCt}, 7
s_lshl_b32 s{sXo}, s{sQt}, 3
s_add_u32 s{sXo}, s{sXo}, s{S_W}
s_mul_i32 s{sXo}, s{sXo}, {4*2304}
s_lshl_b32 s{sOff}, s{sCol}, 1
s_add_u32 s{sXo}, s{sXo}, s{sOff}
v_lshrrev_b32 v{vDXO}, 4, v0
v_mul_u32_u24 v{vDXO}, 2304, v{vDXO}
v_and_b32 v{vT3}, 15, v0
v_lshl_add_u32 v{vDXO}, v{vT3}, 4, v{vDXO}""")

def phase_bc(a):
    sTb, sOff, sH, sF = T+1, T+4, T+5, T+6
    vA0, vA1 = V0+1, V0+2
    vAcc = 20
    vWF = 52
    vH = 84
    a("L_b:")
    stamp(a, 1)
    srd(a, R_B, S_WO, SZ_WO)
    srd(a, R_A, S_X, SZ_X)
    a(f"s_sub_u32 s{S_SLOT}, s{S_SLOT}, {NO}")
    d_tile(a)
    XL = OPT.get('xl', '1') == '1'
    xload = lambda: a(f"buffer_load_dwordx4 {vr(vDX,4)}, v{vDXO}, {RA}, s14 offen")
    a(f"s_mov_b32 s14, s{T+5}")
    if not XL:
        xload()
    a(f"""s_and_b32 s{T+14}, s{S_G}, {UM-1}
s_mul_i32 s{T+14}, s{T+14}, 18
s_add_u32 s{T+14}, s{T+14}, s{S_SLOT}
s_lshr_b32 s{S_UCT}, s{T+14}, {UML}
s_and_b32 s{T+14}, s{T+14}, {UM-1}
s_lshr_b32 s{S_UTB}, s{S_G}, {UML}
s_lshl_b32 s{S_UTB}, s{S_UTB}, {UML}
s_add_u32 s{S_UTB}, s{S_UTB}, s{T+14}
s_lshl_b32 s{S_UTB}, s{S_UTB}, 1
s_and_b32 s{T+14}, s{S_W}, 1
s_add_u32 s{S_UTB}, s{S_UTB}, s{T+14}
v_lshlrev_b32 v{vDU}, 4, v{vCH}
v_mul_u32_u24 v{vT0}, 2304, v{vR8}
s_lshl_b32 s{T+14}, s{S_UCT}, 7
v_add3_u32 v{vDU}, v{vDU}, v{vT0}, s{T+14}
s_lshl_b32 s{sTb}, s{S_BRT}, 2
s_and_b32 s{sOff}, s{S_W}, 3
s_add_u32 s{sTb}, s{sTb}, s{sOff}
s_mul_i32 s{sH}, s{sTb}, {72*1024}
s_add_u32 s{sH}, s{sH}, {WS_H}
v_mov_b32 v{vA0}, v{vB0}
v_mov_b32 v{vA1}, v{vB1}
v_min_u32 v{vT0}, 17, v0
v_lshlrev_b32 v{vT0}, 7, v{vT0}
s_lshr_b32 s{sOff}, s{S_BRT}, 1
s_mul_i32 s{sOff}, s{sOff}, {18*128}
s_add_u32 s{sOff}, s{sOff}, {F_H}
s_mul_i32 s{sF}, s{sTb}, 54
s_add_u32 s{sF}, s{sF}, s{S_BCT}
s_lshl_b32 s{sF}, s{sF}, 7
s_add_u32 s{sF}, s{sF}, {F_QKV}
s_waitcnt vmcnt(0)""")
    a("s_barrier")
    stamp(a, 2)
    a(f"s_cmp_ge_u32 s{S_W}, 4\ns_cbranch_scc1 L_ld")
    HPWG = OPT.get('hp', 'w') == 'wg'
    G1 = int(OPT.get('g1', 8))
    if G1:
        assert SZ is None and not HPWG
        a(f"v_min_u32 v{vT0}, {(G1-1)*128}, v{vT0}")
    if HPWG:
        poll(a, vT0, f"s{sOff}", vT1)
    else:
        wpoll(a, vT0, f"s{sOff}", vT1)
    stamp(a, 3)
    LA = int(OPT['la'])
    BR = int(OPT.get('brot', 0))
    if BR:
        a(f"s_mul_i32 s{T+8}, s{S_G}, {BR}")
    gemm_loop(a, 72, LA, LA+4, vAcc, vWF, vH, vA0, vA1, vL16, sH, True, True, bar_at=(4*G1 - int(OPT['la']) - 1 if G1 else SZ),
              rot=(T+8, T+9, T+10, T+11, T+12, T+13, V0, V0+3) if BR else None)
    stamp(a, 5)
    a(f"""s_mul_i32 s{sH}, s{sTb}, {216*1024}
s_lshl_b32 s{sOff}, s{S_BCT}, 12
s_add_u32 s{sH}, s{sH}, s{sOff}
s_add_u32 s{sH}, s{sH}, {WS_QKV}
s_nop 7""")
    for u in range(4):
        if u == 2:
            a("s_nop 1")
        for r in range(4*u, 4*u+4):
            a(f"v_cvt_pk_bf16_f32 v{vWF+r}, v{vAcc+2*r}, v{vAcc+2*r+1}")
        a(f"buffer_store_dwordx4 {vr(vWF+4*u,4)}, v{vL16}, {WS}, s{sH} offen offset:{1024*u} sc1")
    a("s_barrier")
    stamp(a, 6)
    sKh = T+2
    a(f"""s_lshr_b32 s{sKh}, s{S_W}, 1
s_mul_i32 s{sH}, s{S_UTB}, {216*1024}
s_mul_i32 s{sOff}, s{sKh}, {36*1024}
s_add_u32 s{sH}, s{sH}, s{sOff}
s_add_u32 s{sH}, s{sH}, {WS_QKV + 144*1024}
s_mul_i32 s{sOff}, s{sKh}, {576*128}
v_add_u32 v{vA0}, s{sOff}, v{vB0}
v_add_u32 v{vA1}, s{sOff}, v{vB1}
v_min_u32 v{vT0}, 8, v0
v_lshlrev_b32 v{vT0}, 7, v{vT0}
s_mul_i32 s{T+7}, s{S_UTB}, {54*128}
s_mul_i32 s{sOff}, s{sKh}, {9*128}
s_add_u32 s{T+7}, s{T+7}, s{sOff}
s_add_u32 s{T+7}, s{T+7}, {F_QKV + 36*128}
s_waitcnt vmcnt(0)""")
    raw_flag(a, f"s{sF}")
    a("s_barrier")
    stamp(a, 7)
    a(f"s_cmp_ge_u32 s{S_SLOT}, 18\ns_cbranch_scc1 L_c_notu")
    if XL:
        xload()
    if 'udelay' in OPT:
        a(f"s_sleep {OPT['udelay']}")
    UROT = int(OPT.get('urot', 0))
    if UROT:
        a(f"s_mul_i32 s{T+8}, s{S_G if 'urg' in OPT else S_UCT}, {UROT}")
        mod9(a, T+8, T+8, T+9)
    wpoll(a, vT0, f"s{T+7}", vT1)
    stamp(a, 12)
    LA = int(OPT.get('lau', 12))
    gemm_loop(a, 36, LA, min(36, LA+4), vAcc, vWF, vH, vA0, vA1, vP16, sH, False, False, pre=lambda: (a("s_barrier"), stamp(a, 11)),
              rot=(T+8, T+9, T+10, T+11, T+12, T+13, V0, V0+3) if UROT else None)
    stamp(a, 13)
    lk1 = a.label("kh1"); lj = a.label("j")
    a(f"""s_lshl_b32 s{sOff}, s{S_W}, 12
s_add_u32 s{sOff}, s{sOff}, {L_MISC}
v_add_u32 v{vT0}, s{sOff}, v{vL16}
v_xor_b32 v{vT1}, {2*4096}, v{vT0}
s_lshr_b32 s{sH}, s{S_UTB}, 3
s_mul_i32 s{sF}, s{sH}, 18
s_add_u32 s{sF}, s{sF}, s{S_UCT}
s_lshl_b32 s{sH}, s{sF}, 1
s_add_u32 s{sH}, s{sH}, s{sKh}
s_lshl_b32 s{sH}, s{sH}, 3
s_and_b32 s{sOff}, s{S_UTB}, 7
s_add_u32 s{sH}, s{sH}, s{sOff}
s_lshl_b32 s{sF}, s{sH}, 7
s_add_u32 s{sF}, s{sF}, {F_U}
s_lshl_b32 s{sH}, s{sH}, 11
s_add_u32 s{sH}, s{sH}, {WS_U}
s_cmp_lg_u32 s{sKh}, 0
s_cbranch_scc1 {lk1}""")
    for q in range(4):
        a(f"ds_write_b128 v{vT0}, {vr(vAcc+16+4*q,4)} offset:{q*1024}")
    a(f"s_branch {lj}\n{lk1}:")
    for q in range(4):
        a(f"ds_write_b128 v{vT0}, {vr(vAcc+4*q,4)} offset:{q*1024}")
    for r in range(16):
        a(f"v_mov_b32 v{vAcc+r}, v{vAcc+16+r}")
    a(f"{lj}:\ns_waitcnt lgkmcnt(0)\ns_barrier")
    for q in range(4):
        a(f"ds_read_b128 {vr(vWF+4*q,4)}, v{vT1} offset:{q*1024}")
    for u in range(2):
        a(f"s_waitcnt lgkmcnt({2-2*u})")
        for r in range(8*u, 8*u+8):
            a(f"v_add_f32 v{vAcc+r}, v{vAcc+r}, v{vWF+r}")
        for r in range(4*u, 4*u+4):
            a(f"v_cvt_pk_bf16_f32 v{vWF+16+r}, v{vAcc+2*r}, v{vAcc+2*r+1}")
        a(f"buffer_store_dwordx4 {vr(vWF+16+4*u,4)}, v{vL16}, {WS}, s{sH} offen offset:{1024*u} sc1")
    if OPT.get('fb', '1') == '1':
        a("s_waitcnt vmcnt(0)")
        raw_flag(a, f"s{sF}")
        a("s_barrier")
    else:
        a("s_barrier\ns_waitcnt vmcnt(0)")
        raw_flag(a, f"s{sF}")
    a("s_branch L_c_done")
    lnu = a.label("ldnu")
    vWo = 20
    NE = int(OPT.get('ne', 18))
    a("L_ld:")
    if 'tlb' in OPT:
        sh = int(OPT['tlb'])
        lt = a.label("tlb")
        srd(a, R_A, S_OUT, SZ_X)
        srd(a, R_C, S_WS, 0x700000)
        a(f"s_cmp_lg_u32 s{S_W}, 7\ns_cbranch_scc1 {lt}\nv_lshlrev_b32 v{vT2}, {sh}, v0\nv_add_u32 v{vT2}, {(1<<sh)-128}, v{vT2}")
        a(f"buffer_load_dword v236, v{vT2}, {RA}, 0 offen")
        for off in range(0, 0x700000, 64 << sh):
            a(f"v_add_u32 v{vT1}, {off}, v{vT2}\nbuffer_load_dword v237, v{vT1}, {RC}, 0 offen sc1")
        a(f"{lt}:")
    NA = int(OPT.get('na', 0))
    a(f"""s_cmp_ge_u32 s{S_SLOT}, 18
s_cbranch_scc1 {lnu}
s_sub_u32 s{T+10}, s{S_W}, 4
s_lshl_b32 s{T+11}, s{T+10}, 10
v_add_u32 v{vT0}, s{T+11}, v{vL16}
s_bfe_u32 s{T+12}, s{S_UTB}, 0x10001
s_mul_i32 s{T+12}, s{T+12}, 72
s_bfe_u32 s{T+11}, s{S_UTB}, 0x10002
s_mul_i32 s{T+11}, s{T+11}, {36 if UM > 2 else 0}
s_add_u32 s{T+12}, s{T+12}, s{T+11}
s_add_u32 s{T+10}, s{T+10}, s{T+12}
s_lshl_b32 s{T+12}, s{T+12}, 10""")
    def nxt(n):
        if n < 35:
            a(f"s_add_u32 s{T+10}, s{T+10}, 4")
            if n % 9 == 8:
                a(f"""s_sub_u32 s{T+11}, s{T+10}, 144
s_cmp_ge_u32 s{T+10}, 144
s_cselect_b32 s{T+10}, s{T+11}, s{T+10}""")
    for n in range(NE):
        if SZ is not None and n == NA:
            a("s_barrier")
        a(f"""s_mul_i32 s{T+11}, s{T+10}, {8*2304}
buffer_load_dwordx4 {vr(vWo+4*n,4)}, v{vDU}, {RB}, s{T+11} offen {NTO}
{THRO}""")
        nxt(n)
    stamp(a, 4)
    def hall():
        l7 = a.label("w7")
        a(f"""s_cmp_lg_u32 s{S_W}, 7
s_cbranch_scc1 {l7}
v_min_u32 v{vT2}, 17, v0
v_lshlrev_b32 v{vT2}, 7, v{vT2}""")
        wpoll(a, vT2, f"s{sOff}", vT1)
        a(f"{l7}:\ns_barrier")
    if G1:
        hall()
    if HPWG:
        a("s_barrier")
    a("s_barrier")
    stamp(a, 5)
    WS_ = min(NE, int(OPT.get('wsplit', 12)))
    def wr(n):
        if n % 9 == 0:
            a(f"v_add_u32 v{vT1}, s{T+12}, v{vT0}")
            a(f"""s_add_u32 s{T+12}, s{T+12}, {36*1024}
s_cmp_ge_u32 s{T+12}, {144*1024}
s_cselect_b32 s{T+12}, 0, s{T+12}""")
        a(f"ds_write_b128 v{vT1}, {vr(vWo+4*n,4)} offset:{(n % 9)*4096}")
    KD = min(36-NE, int(OPT.get('kd', 0)))
    def dm(n):
        a(f"""s_lshl_b32 m0, s{T+10}, 10
s_mul_i32 s{T+11}, s{T+10}, {8*2304}
buffer_load_dwordx4 v{vDU}, {RB}, s{T+11} offen lds""")
        nxt(n)
    a("s_waitcnt vmcnt(0)")
    for n in range(NE, NE+KD): dm(n)
    for n in range(WS_): wr(n)
    a("s_barrier")
    if 'dfirst' in OPT:
        a("s_nop 15")
        for n in range(NE+KD, 36): dm(n)
        for n in range(WS_, NE): wr(n)
    else:
        for n in range(WS_, NE): wr(n)
        for n in range(NE+KD, 36): dm(n)
    a(f"""s_waitcnt vmcnt(0) lgkmcnt(0)""")
    stamp(a, 11)
    lg4 = a.label("g4")
    a("s_barrier")
    if XL:
        xload()
        a("s_waitcnt vmcnt(0)")
    a(f"""s_cmp_lg_u32 s{S_W}, 4
s_cbranch_scc1 {lg4}""")
    d_tile(a)
    a(f"""s_lshr_b32 s{T+10}, s{T+9}, 6
s_lshl_b32 s{T+10}, s{T+10}, 7
s_add_u32 s{T+10}, s{T+10}, {F_G}
v_and_b32 v{vT0}, 1, v0
v_lshlrev_b32 v{vT0}, 7, v{vT0}
s_mul_i32 s{T+11}, s{T+8}, 4608
s_lshl_b32 s{T+12}, s{T+9}, 2
s_add_u32 s{T+11}, s{T+11}, s{T+12}
s_add_u32 s{T+11}, s{T+11}, {WS_GATE}
v_lshlrev_b32 v{vT2}, 3, v0""")
    wpoll(a, vT0, f"s{T+10}", vT1)
    a(f"""buffer_load_dwordx2 v[20:21], v{vT2}, {WS}, s{T+11} offen sc1
s_waitcnt vmcnt(0)
s_barrier
ds_write_b64 v{vT2}, v[20:21] offset:{L_GATE}
s_waitcnt lgkmcnt(0)
s_barrier
s_branch L_c_done
{lg4}:
s_barrier
s_barrier
s_branch L_c_done
{lnu}:""")
    if G1:
        hall()
    a(f"""s_barrier
s_barrier""")
    if SZ is not None:
        a("s_barrier")
    if HPWG:
        a("s_barrier")
    a("L_c_notu:")
    sQb, sKb, sKq, sJ, sK, sQ, sTy = T, T+1, T+2, T+3, T+5, T+6, T+9
    sM = T+10
    sK1 = T+12
    vS = 56
    RING = 15
    SW = OPT.get('sw', '1') == '1'
    SPW = f"""s_mul_i32 s{sOff}, s{sKq}, 18
s_add_u32 s{T+13}, s{sOff}, 17
s_lshr_b32 s{sOff}, s{sOff}, 2
s_lshr_b32 s{T+13}, s{T+13}, 2
v_add_u32 v{vT0}, s{sOff}, v{vTok}
v_min_u32 v{vT0}, s{T+13}, v{vT0}""" if SW else f"v_min_u32 v{vT0}, 17, v{vTok}"
    a(f"""s_sub_u32 s{sJ}, s{S_SLOT}, 18
s_lshr_b32 s{sTy}, s{sJ}, 2
s_and_b32 s{sKq}, s{S_W}, 3
s_and_b32 s{sQb}, s{S_G}, 1
s_lshl_b32 s{sQb}, s{sQb}, 2
s_and_b32 s{sOff}, s{sJ}, 3
s_add_u32 s{sQb}, s{sQb}, s{sOff}
s_and_b32 s{sKb}, s{S_G}, 2
s_lshl_b32 s{sKb}, s{sKb}, 1
s_lshr_b32 s{sOff}, s{S_G}, 2
s_lshl_b32 s{sOff}, s{sOff}, 3
s_add_u32 s{sQb}, s{sQb}, s{sOff}
s_add_u32 s{sKb}, s{sKb}, s{sOff}
s_min_u32 s{sK1}, s{sTy}, 1
s_add_u32 s{sK1}, s{sK1}, s{sTy}
s_mul_i32 s{sK}, s{sKb}, {216*1024}
s_mul_i32 s{sQ}, s{sQb}, {216*1024}
s_mul_i32 s{sOff}, s{sKq}, {18*1024}
s_add_u32 s{sK}, s{sK}, s{sOff}
s_add_u32 s{sQ}, s{sQ}, s{sOff}
s_add_u32 s{sK}, s{sK}, {WS_QKV + 72*1024}
s_add_u32 s{sQ}, s{sQ}, {WS_QKV}
s_mul_i32 s{sOff}, s{sKq}, 18
s_add_u32 s{T+13}, s{sOff}, 17
s_lshr_b32 s{sOff}, s{sOff}, 2
s_lshr_b32 s{T+13}, s{T+13}, 2
v_and_b32 v{vT0}, 7, v0
v_add_u32 v{vT0}, s{sOff}, v{vT0}
v_min_u32 v{vT0}, s{T+13}, v{vT0}
s_mul_i32 s{sOff}, s{sQb}, 54
v_mov_b32 v{vT1}, s{sOff}
s_add_u32 s{sOff}, s{sKb}, s{sK1}
s_mul_i32 s{sOff}, s{sOff}, 54
s_add_u32 s{sOff}, s{sOff}, 18
v_mov_b32 v{vT2}, s{sOff}
v_cmp_lt_u32 vcc, 7, v0
s_mul_i32 s{sOff}, s{sKb}, 54
s_add_u32 s{sOff}, s{sOff}, {54+18}
v_cndmask_b32 v{vT1}, v{vT1}, v{vT2}, vcc
v_mov_b32 v{vT2}, s{sOff}
v_cmp_lt_u32 vcc, 15, v0
s_nop 1
v_cndmask_b32 v{vT1}, v{vT1}, v{vT2}, vcc
v_add_u32 v{vT0}, v{vT0}, v{vT1}
v_lshlrev_b32 v{vT0}, 7, v{vT0}
v_and_b32 v{vT2}, 0x2ff, v{vP16}
v_and_b32 v{vT1}, 16, v0
v_lshl_add_u32 v{vT2}, v{vT1}, 6, v{vT2}
s_and_b32 s{sOff}, s{sTy}, 1
s_lshl_b32 s{sOff}, s{sOff}, 8
s_add_u32 s{sOff}, s{sOff}, {216*1024}
v_add_u32 v{vT2}, s{sOff}, v{vT2}
s_mul_i32 s{sOff}, s{sK1}, {216*1024}
v_add_u32 v{V0}, s{sOff}, v{vP16}
s_mov_b32 s{sOff}, {F_QKV}""")
    lsi = a.label("sidle")
    if not SW:
        poll(a, vT0, f"s{sOff}", vT1)
    a(f"s_cmp_ge_u32 s{S_W}, 4\ns_cbranch_scc1 {lsi}")
    if SW:
        wpoll(a, vT0, f"s{sOff}", vT1)
    stamp(a, 12)
    LA = int(OPT.get('las', 4))
    vS = 72; RING = 8
    vAc3 = 56
    assert LA < RING
    def sload(p):
        r = vS + 20*(p % RING)
        o = (p & 1)*2048
        a(f"""buffer_load_dwordx4 {vr(r,4)}, v{vL16}, {WS}, s{sQ} offen offset:{o} sc1
buffer_load_dwordx4 {vr(r+4,4)}, v{V0}, {WS}, s{sK} offen offset:{o} sc1
buffer_load_dwordx4 {vr(r+8,4)}, v{vT2}, {WS}, s{sK} offen offset:{o} sc1
buffer_load_dwordx4 {vr(r+12,4)}, v{vL16}, {WS}, s{sQ} offen offset:{o+1024} sc1
buffer_load_dwordx4 {vr(r+16,4)}, v{V0}, {WS}, s{sK} offen offset:{o+1024} sc1""")
        if p & 1:
            a(f"s_add_u32 s{sK}, s{sK}, 4096\ns_add_u32 s{sQ}, s{sQ}, 4096")
    for p in range(LA):
        sload(p)
    for p in range(9):
        y = 5*(min(9, p + LA) - p - 1)
        r = vS + 20*(p % RING)
        a(f"s_waitcnt vmcnt({y+3})")
        mfma(a, vAcc, r+4, r, p == 0)
        a(f"s_waitcnt vmcnt({y+2})")
        mfma(a, vAcc+16, r+8, r, p == 0)
        a(f"s_waitcnt vmcnt({y+1})")
        mfma(a, vAc3, r+8, r+12, p == 0)
        a(f"s_waitcnt vmcnt({y})")
        mfma(a, vAcc, r+16, r+12)
        if p + LA < 9:
            sload(p + LA)
    stamp(a, 13)
    QS, HS, PSZ = 1056, 528, 8448
    a(f"""s_mul_i32 s{sOff}, s{S_W}, {PSZ}
v_lshl_add_u32 v{vT0}, v{vHF}, 4, v{vL16}
v_add_u32 v{vT0}, s{sOff}, v{vT0}
s_nop 7""")
    for r in range(8):
        a(f"v_add_f32 v{vAcc+16+r}, v{vAcc+16+r}, v{vAc3+8+r}")
    for q in (4, 5, 0, 1, 2, 3):
        a(f"ds_write_b128 v{vT0}, {vr(vAcc+4*q,4)} offset:{q*QS}")
    a(f"""{lsi}:
v_bfe_u32 v{vT1}, v0, 2, 2
v_and_b32 v{vT2}, 1, v0
v_lshl_add_u32 v{vT1}, v{vT1}, 1, v{vT2}
v_mul_u32_u24 v{vT1}, {QS}, v{vT1}
v_bfe_u32 v{vT2}, v0, 1, 1
v_mul_u32_u24 v{vT2}, {HS}, v{vT2}
v_lshrrev_b32 v{vT0}, 4, v0
s_lshl_b32 s{sOff}, s{S_W}, 2
v_add_u32 v{vT0}, s{sOff}, v{vT0}
v_lshl_add_u32 v{vT1}, v{vT0}, 4, v{vT1}
v_add_u32 v{vT1}, v{vT1}, v{vT2}
v_and_b32 v{vT2}, 7, v0
v_lshlrev_b32 v{vT2}, 4, v{vT2}
v_lshl_add_u32 v{vT2}, v{vT0}, 10, v{vT2}
s_lshl_b32 s{sOff}, s{sK1}, 7
v_mov_b32 v{vT0}, s{sOff}
v_and_b32 v{vT3}, 8, v0
v_cmp_ne_u32 vcc, 0, v{vT3}
s_and_b32 s{sOff}, s{sTy}, 1
s_lshl_b32 s{sOff}, s{sOff}, 6
s_add_u32 s{sOff}, s{sOff}, 128
v_mov_b32 v{vT3}, s{sOff}
s_lshl_b32 s{sJ}, s{sQb}, 15
v_cndmask_b32 v{vT0}, v{vT0}, v{vT3}, vcc
v_add_u32 v{vT2}, v{vT2}, v{vT0}
s_and_b32 s{sOff}, s{sKb}, 7
s_lshl_b32 s{sOff}, s{sOff}, 7
s_add_u32 s{sJ}, s{sJ}, s{sOff}
s_add_u32 s{sJ}, s{sJ}, {WS_L}
s_lshl_b32 s{sK}, s{sQb}, 3
s_add_u32 s{sK}, s{sK}, s{S_W}
s_mul_i32 s{sK}, s{sK}, 6
s_bfe_u32 s{sOff}, s{sKb}, 0x10002
s_mul_i32 s{sOff}, s{sOff}, 3
s_add_u32 s{sK}, s{sK}, s{sOff}
s_add_u32 s{sK}, s{sK}, s{sTy}
s_lshl_b32 s{sK}, s{sK}, 7
s_add_u32 s{sK}, s{sK}, {F_LH}
s_mov_b32 s{sM}, 0x0fff0fff
s_cmp_eq_u32 s{sTy}, 2
s_cselect_b32 s{sM}, 0x00ff00ff, s{sM}
s_mov_b32 s{sM+1}, s{sM}
v_mov_b32 v53, v{vTAG}
v_mov_b32 v55, v{vTAG}
s_waitcnt lgkmcnt(0)
s_barrier""")
    for j in range(4):
        a(f"ds_read_b128 {vr(vAcc+4*j,4)}, v{vT1} offset:{j*PSZ}")
    a("s_waitcnt lgkmcnt(2)")
    for r in range(4):
        a(f"v_add_f32 v{vAcc+r}, v{vAcc+r}, v{vAcc+4+r}")
    a("s_waitcnt lgkmcnt(0)")
    for r in range(4):
        a(f"v_add_f32 v{vAcc+8+r}, v{vAcc+8+r}, v{vAcc+12+r}")
    for r in range(4):
        a(f"v_add_f32 v{vAcc+r}, v{vAcc+r}, v{vAcc+8+r}")
    sc = struct.unpack('<I', struct.pack('<f', D ** -0.5))[0]
    for r in range(2):
        a(f"v_cvt_pk_bf16_f32 v{52+2*r}, v{vAcc+2*r}, v{vAcc+2*r+1}")
    for r in range(2):
        unpack(a, vAcc+2*r, vAcc+2*r+1, 52+2*r)
    for r in range(4):
        a(f"v_mul_f32 v{vAcc+r}, {hex(sc)}, v{vAcc+r}")
    for r in range(2):
        a(f"v_cvt_pk_bf16_f32 v{52+2*r}, v{vAcc+2*r}, v{vAcc+2*r+1}")
    a(f"s_mov_b64 exec, s[{sM}:{sM+1}]\nbuffer_store_dwordx4 v[52:55], v{vT2}, {WS}, s{sJ} offen sc1\ns_mov_b64 exec, -1")
    raw_flag(a, f"s{sK}")
    a("L_c_done:")
    stamp(a, 14)

def phase_d(a):
    sQt, sCt, sCb, sKh, sOff, sXo, sJ, sU, sB, sCol = T, T+1, T+2, T+3, T+4, T+5, T+6, T+7, T+8, T+9
    vXo, vMx, vS, vLa, vPa, vLw = vDXO, V0+1, V0+2, V0+3, V0+4, V0+5
    vLd = 24
    vX = vDX
    vG = 44
    vF = 56
    vR = 72
    vAcc = 80
    vU = 96
    vP = 128
    PS = 1056
    L_P, L_EX = 40960, 65536
    srd(a, R_B, S_OUT, SZ_X)
    a(f"s_cmp_ge_u32 s{S_SLOT}, 18\ns_cbranch_scc1 L_fin")
    d_tile(a)
    a(f"""s_mul_i32 s{sU}, s{sB}, 36
s_lshl_b32 s{sOff}, s{sCt}, 2
s_add_u32 s{sU}, s{sU}, s{sOff}
s_add_u32 s{sU}, s{sU}, s{sCb}
s_lshl_b32 s{sU}, s{sU}, 4
s_lshl_b32 s{sOff}, s{sKh}, 3
s_add_u32 s{sU}, s{sU}, s{sOff}
s_lshl_b32 s{T+10}, s{sU}, 6
s_add_u32 s{T+10}, s{T+10}, {F_U}
s_lshl_b32 s{sU}, s{sU}, 10
s_add_u32 s{sU}, s{sU}, {WS_U}
v_and_b32 v{vT0}, 3, v0
v_lshlrev_b32 v{vT0}, 7, v{vT0}
v_add_u32 v{vT1}, s{T+10}, v{vT0}
s_lshl_b32 s{sOff}, s{sQt}, 3
s_add_u32 s{sOff}, s{sOff}, s{S_W}
s_mul_i32 s{sOff}, s{sOff}, {6*128}
s_add_u32 s{sOff}, s{sOff}, {F_LH}
v_min_u32 v{vT2}, 5, v0
v_lshlrev_b32 v{vT2}, 7, v{vT2}
v_add_u32 v{vT2}, s{sOff}, v{vT2}
v_cmp_gt_u32 vcc, 8, v0
v_and_b32 v{vT3}, 15, v0
v_lshrrev_b32 v{vT0}, 4, v0
v_cndmask_b32 v{vT1}, v{vT1}, v{vT2}, vcc
s_lshl_b32 s{sOff}, s{S_W}, 2
v_add_u32 v{vT0}, s{sOff}, v{vT0}
v_lshlrev_b32 v{vLa}, 10, v{vT0}
v_lshl_add_u32 v{vLa}, v{vT3}, 4, v{vLa}
v_lshrrev_b32 v{vT2}, 1, v{vT3}
v_mul_u32_u24 v{vLw}, {PS//2}, v{vT2}
v_lshl_add_u32 v{vLw}, v{vT0}, 4, v{vLw}
v_and_b32 v{vT2}, 1, v0
v_lshl_add_u32 v{vLw}, v{vT2}, 3, v{vLw}
v_lshl_add_u32 v{vPa}, v{vHF}, 4, v{vL16}
s_mul_i32 s{sOff}, s{sKh}, {8*PS}
v_add_u32 v{vPa}, s{sOff}, v{vPa}
v_lshlrev_b32 v{vT0}, 5, v{vT3}
ds_read_b128 {vr(vG,4)}, v{vT0} offset:{L_GATE}
ds_read_b128 {vr(vG+4,4)}, v{vT0} offset:{L_GATE+16}
s_lshl_b32 s{sOff}, s{sQt}, 15
s_add_u32 s{sOff}, s{sOff}, {WS_L}""")
    vFa, vFl = 22, 23
    sUd = T+12
    def uloads():
        for s in range(8):
            a(f"buffer_load_dwordx4 {vr(vU+4*s,4)}, v{vL16}, {WS}, s{sU} offen offset:{(s&3)*1024} sc1")
            if s == 3:
                a(f"s_add_u32 s{sU}, s{sU}, 4096")
        a(f"s_mov_b32 s{sUd}, 1")
        stamp(a, 8)
    l = a.label("lp"); d = a.label("lpd"); nu = a.label("nu"); l3 = a.label("lv"); d3 = a.label("lvd"); nu2 = a.label("nu2")
    def lloads():
        for n in range(4):
            a(f"buffer_load_dwordx4 {vr(vLd+4*n,4)}, v{vLa}, {WS}, s{sOff} offen offset:{256*n} sc1")
    a(f"""v_mov_b32 v{vFa}, v{vT1}
s_mov_b32 s{sUd}, 0
{l}:
buffer_load_dword v{vFl}, v{vFa}, {WS}, 0 offen {PF}
s_waitcnt vmcnt(0)
v_cmp_ne_u32 vcc, s{S_TAG}, v{vFl}
s_and_b32 s{T+13}, vcc_lo, 255
s_cbranch_scc0 {d}
s_lshr_b32 s{T+13}, vcc_lo, 8
s_or_b32 s{T+13}, s{T+13}, s{sUd}
s_cbranch_scc1 {nu}""")
    uloads()
    a(f"""{nu}:
s_sleep {OPT.get('lsleep', 1)}
s_sub_u32 s{S_TO}, s{S_TO}, 1
s_cmp_lg_u32 s{S_TO}, 0
s_cbranch_scc1 {l}
s_mov_b32 s{S_TO}, 1
{d}:""")
    lloads()
    a(f"""s_lshr_b32 s{T+13}, vcc_lo, 8
s_or_b32 s{T+13}, s{T+13}, s{sUd}
s_cbranch_scc1 {nu2}""")
    if 'ul' in OPT:
        a(f"s_waitcnt vmcnt({OPT['ul']})")
    uloads()
    a(f"""s_waitcnt vmcnt(8)
s_branch {l3}_c
{nu2}:
buffer_load_dword v{vFl}, v{vFa}, {WS}, 0 offen {PF}
s_waitcnt vmcnt(1)
s_branch {l3}_c
{l3}:""")
    lloads()
    a(f"""s_waitcnt vmcnt(0)
{l3}_c:
v_min_u32 v{vT1}, v{vLd+1}, v{vLd+3}
v_max_u32 v{vT2}, v{vLd+1}, v{vLd+3}""")
    for n in range(1, 4):
        a(f"v_min3_u32 v{vT1}, v{vT1}, v{vLd+4*n+1}, v{vLd+4*n+3}\nv_max3_u32 v{vT2}, v{vT2}, v{vLd+4*n+1}, v{vLd+4*n+3}")
    a(f"""v_cmp_ne_u32 vcc, s{S_TAG}, v{vT1}
v_cmp_ne_u32 s[{T+14}:{T+15}], s{S_TAG}, v{vT2}
s_or_b64 vcc, vcc, s[{T+14}:{T+15}]
s_cbranch_vccz {d3}
s_sub_u32 s{S_TO}, s{S_TO}, 1
s_cmp_lg_u32 s{S_TO}, 0
s_cbranch_scc1 {l3}
s_mov_b32 s{S_TO}, 1
{d3}:""")
    stamp(a, 9)
    for i in range(8):
        unpack(a, vF+2*i, vF+2*i+1, vLd+2*i)
    a(f"""v_max3_f32 v{vMx}, v{vF}, v{vF+1}, v{vF+2}
v_max3_f32 v{vS}, v{vF+3}, v{vF+4}, v{vF+5}
v_max3_f32 v{vMx}, v{vMx}, v{vF+6}, v{vF+7}
v_max3_f32 v{vS}, v{vS}, v{vF+8}, v{vF+9}
v_max3_f32 v{vMx}, v{vMx}, v{vF+10}, v{vF+11}
v_max3_f32 v{vS}, v{vS}, v{vF+12}, v{vF+13}
v_max3_f32 v{vMx}, v{vMx}, v{vF+14}, v{vF+15}
v_max_f32 v{vMx}, v{vMx}, v{vS}""")
    for m in ("quad_perm:[1,0,3,2]", "quad_perm:[2,3,0,1]", "row_half_mirror", "row_mirror"):
        a(f"s_nop 1\nv_max_f32_dpp v{vMx}, v{vMx}, v{vMx} {m} row_mask:0xf bank_mask:0xf")
    a(f"s_mov_b32 s{T+10}, {hex(LOG2E)}\nv_mul_f32 v{vMx}, s{T+10}, v{vMx}")
    for i in range(16):
        a(f"v_fma_f32 v{vF+i}, v{vF+i}, s{T+10}, -v{vMx}")
    for i in range(16):
        a(f"v_exp_f32 v{vF+i}, v{vF+i}")
    a(f"v_add_f32 v{vS}, v{vF}, v{vF+1}\nv_add_f32 v{vMx}, v{vF+2}, v{vF+3}")
    for i in range(4, 16, 2):
        a(f"v_add_f32 v{vS}, v{vS}, v{vF+i}\nv_add_f32 v{vMx}, v{vMx}, v{vF+i+1}")
    a(f"v_add_f32 v{vS}, v{vS}, v{vMx}")
    for m in ("quad_perm:[1,0,3,2]", "quad_perm:[2,3,0,1]", "row_half_mirror", "row_mirror"):
        a(f"s_nop 1\nv_add_f32_dpp v{vS}, v{vS}, v{vS} {m} row_mask:0xf bank_mask:0xf")
    a(f"v_rcp_f32 v{vS}, v{vS}\ns_nop 0")
    for i in range(16):
        a(f"v_mul_f32 v{vF+i}, v{vF+i}, v{vS}")
    for i in range(8):
        a(f"v_cvt_pk_bf16_f32 v{vLd+i}, v{vF+2*i}, v{vF+2*i+1}")
    for n in range(4):
        a(f"ds_write_b64 v{vLw}, {vr(vLd+2*n,2)} offset:{L_P+4*n*PS}")
    hu = a.label("hu"); l2 = a.label("up"); d2 = a.label("upd")
    a(f"""s_cmp_lg_u32 s{sUd}, 0
s_cbranch_scc1 {hu}
{l2}:
s_waitcnt vmcnt(0)
v_cmp_ne_u32 vcc, s{S_TAG}, v{vFl}
s_cbranch_vccz {d2}
buffer_load_dword v{vFl}, v{vFa}, {WS}, 0 offen {PF}
s_sub_u32 s{S_TO}, s{S_TO}, 1
s_cmp_lg_u32 s{S_TO}, 0
s_cbranch_scc1 {l2}
s_mov_b32 s{S_TO}, 1
{d2}:""")
    uloads()
    a(f"{hu}:\ns_waitcnt lgkmcnt(0)\ns_barrier")
    for s in range(8):
        a(f"ds_read_b128 {vr(vP+4*s,4)}, v{vPa} offset:{L_P+s*PS}")
    ROW = 528; EXS = 32*ROW
    a(f"""s_mul_i32 s{sOff}, s{sKh}, {EXS}
s_lshl_b32 s{T+10}, s{sCb}, 7
s_add_u32 s{sOff}, s{sOff}, s{T+10}
s_add_u32 s{sOff}, s{sOff}, {L_EX}
v_mul_u32_u24 v{vT1}, {ROW}, v{vTok}
v_lshl_add_u32 v{vT1}, v{vHF}, 5, v{vT1}
v_add_u32 v{vT1}, s{sOff}, v{vT1}
v_lshrrev_b32 v{vT2}, 4, v0
v_mul_u32_u24 v{vT2}, {ROW}, v{vT2}
s_mul_i32 s{sOff}, s{S_W}, {4*ROW}
s_add_u32 s{sOff}, s{sOff}, {L_EX}
v_add3_u32 v{vT2}, v{vT2}, v{vT0}, s{sOff}""")
    for s in range(8):
        a(f"s_waitcnt vmcnt({7-s}) lgkmcnt({7-s})")
        mfma(a, vAcc, vU+4*s, vP+4*s, s == 0)
    for i in range(4):
        unpack(a, vF+2*i, vF+2*i+1, vX+i)
    stamp(a, 10)
    a("s_nop 3")
    for q in range(4):
        a(f"ds_write_b128 v{vT1}, {vr(vAcc+4*q,4)} offset:{64*(q>>1) + 16*(q&1)}")
    a(f"""s_waitcnt lgkmcnt(0)
s_barrier
ds_read_b128 {vr(vAcc,4)}, v{vT2}
ds_read_b128 {vr(vR,4)}, v{vT2} offset:{EXS}
ds_read_b128 {vr(vAcc+4,4)}, v{vT2} offset:16
ds_read_b128 {vr(vR+4,4)}, v{vT2} offset:{EXS+16}
s_waitcnt vmcnt(0) lgkmcnt(2)""")
    for r in range(8):
        if r == 4:
            a("s_waitcnt lgkmcnt(0)")
        a(f"v_add_f32 v{vAcc+r}, v{vAcc+r}, v{vR+r}")
    def cv():
        for i in range(4):
            a(f"v_cvt_pk_bf16_f32 v{vR+i}, v{vAcc+2*i}, v{vAcc+2*i+1}")
    def up():
        for i in range(4):
            unpack(a, vAcc+2*i, vAcc+2*i+1, vR+i)
    cv(); up()
    for r in range(8):
        a(f"v_mul_f32 v{vAcc+r}, v{vAcc+r}, v{vG+r}")
    cv(); up()
    for r in range(8):
        a(f"v_add_f32 v{vAcc+r}, v{vAcc+r}, v{vF+r}")
    cv()
    a(f"buffer_store_dwordx4 {vr(vR,4)}, v{vXo}, {RB}, s{sXo} offen {OPT.get('oflag', '').replace('+', ' ')}")
    a("L_fin:")

def gemv_dma(a, sColA, vD):
    sRow0, sOff = T+2, T+3
    a(f"""v_lshlrev_b32 v{vD}, 4, v{vCH}
v_mul_u32_u24 v{vT0}, 13824, v{vR8}
v_add3_u32 v{vD}, v{vD}, v{vT0}, s{sColA}
s_mul_i32 s{sOff}, s{sRow0}, 13824
s_lshl_b32 m0, s{sRow0}, 7""")
    for t in range(18):
        a(f"""s_nop 0
buffer_load_dwordx4 v{vD}, {RA}, s{sOff} offen {NT} lds""")
        if t < 17:
            a(f"s_add_u32 s{sOff}, s{sOff}, {8*13824}\ns_add_u32 m0, m0, 1024")

def phase_owner(a):
    sColA, sB, sRow0, sOff, sO, sCs, sTb = T, T+1, T+2, T+3, T+4, T+5, T+6
    vD, vA0, vA1, vSil, vCs = V0, V0+1, V0+2, V0+3, V0+4
    vC = 24
    vST = 28
    vX = VOX
    vXN = 48
    vPt = 80
    vAcc = 112
    vWF = 144
    vSF = 160
    vM = 184
    a(f"""s_mov_b32 s{sO}, s2
s_cmp_ge_u32 s{sO}, 36
s_cbranch_scc1 L_o_pref
s_lshr_b32 s{sCs}, s{sO}, 1
s_and_b32 s{sB}, s{sO}, 1
s_waitcnt vmcnt(0)
s_barrier""")
    stamp(a, 6)
    vST = 32
    vPt = 112
    SM = [32, 33, 34, 35, 36, 37, 38, 39, 40, 41, 42, 43, 9, 10, 11, 12]
    a(f"""v_and_b32 v{vT3}, 7, v0
v_xor_b32 v{vT0}, s{S_W}, v{vT3}
v_lshlrev_b32 v{vT0}, 4, v{vT0}
v_lshl_add_u32 v{vT0}, v0, 7, v{vT0}""")
    for q in range(4):
        a(f"ds_read_b128 {vr(vX+4*q,4)}, v{vT0} offset:{q*8192}")
    a(f"""s_lshl_b32 s{T+9}, s{sB}, 12
s_add_u32 s{T+9}, s{T+9}, {F_STAT}
s_mul_i32 s{T+10}, s{sO}, {18*1024}
s_lshl_b32 s{sOff}, s{S_W}, 7
s_add_u32 s{T+10}, s{T+10}, s{sOff}
s_add_u32 s{T+10}, s{T+10}, {WS_PART}
s_add_u32 s{T+11}, s{T+10}, 8192
v_lshlrev_b32 v{vT1}, 4, v{vT3}
v_min_u32 v{vT2}, 1, v{vR8}
v_lshl_add_u32 v{vT2}, v{vT2}, 10, v{vT1}
v_add_u32 v{vT2}, 16384, v{vT2}
v_lshl_add_u32 v{vT1}, v{vR8}, 10, v{vT1}
v_cmp_gt_u32 vcc, 16, v0
v_mul_u32_u24 v{vCs}, {72*1024}, v{vHF}
v_lshl_add_u32 v{vCs}, v{vTok}, 4, v{vCs}
v_cndmask_b32 v{vA0}, 0, 1.0, vcc
v_bfe_u32 v{vA1}, v0, 2, 1
v_cvt_f32_u32 v{vA1}, v{vA1}
s_mul_i32 s{sOff}, s{sB}, {8*72*1024}
s_lshl_b32 s{T+12}, s{sCs}, 12
s_add_u32 s{sOff}, s{sOff}, s{T+12}
s_lshl_b32 s{T+12}, s{S_W}, 9
s_add_u32 s{sOff}, s{sOff}, s{T+12}
s_add_u32 s{sOff}, s{sOff}, {WS_H}
s_waitcnt lgkmcnt(0)""")
    def stl():
        for q in range(4):
            a(f"buffer_load_dwordx4 {vr(vST+4*q,4)}, v{vL16}, {WS}, s{T+9} offen offset:{1024*q} sc1")
    def pl():
        a(f"""buffer_load_dwordx4 {vr(vPt,4)}, v{vT1}, {WS}, s{T+10} offen sc1
buffer_load_dwordx4 {vr(vPt+4,4)}, v{vT1}, {WS}, s{T+11} offen sc1
buffer_load_dwordx4 {vr(vPt+8,4)}, v{vT2}, {WS}, s{T+10} offen sc1""")
    P = [(q, i) for q in range(4) for i in range(4)]
    lo = lambda q, i: vXN+8*q+2*i
    hi = lambda q, i: vXN+8*q+2*i+1
    xs = lambda q, i: vX+4*q+i
    def st_unpack():
        for q, i in P: unpack(a, lo(q,i), hi(q,i), xs(q,i))
    def st_cvt():
        for q, i in P: a(f"v_cvt_pk_bf16_f32 v{xs(q,i)}, v{lo(q,i)}, v{hi(q,i)}")
    def st_op(op, f):
        for q, i in P:
            a(f"{op} v{lo(q,i)}, v{lo(q,i)}, v{f(q,2*i)}\n{op} v{hi(q,i)}, v{hi(q,i)}, v{f(q,2*i+1)}")
    st_unpack()
    if 'st1' in OPT:
        a(f"v_and_b32 v{vM}, 3, v0\ns_lshl_b32 s{T+12}, s{S_W}, 9\nv_lshlrev_b32 v{vM}, 7, v{vM}\ns_add_u32 s{T+12}, s{T+12}, s{T+9}\nv_add_u32 v{vM}, 124, v{vM}")
        wpoll(a, vM, f"s{T+12}", vM+1)
        a("s_barrier")
    if OPT.get('st2', '1') == '1':
        a(f"""s_lshl_b32 s{T+12}, s{S_W}, 9
v_lshlrev_b32 v{vM}, 4, v{vTok}
v_add_u32 v{vM}, s{T+12}, v{vM}
v_add_u32 v{vM+1}, {L_RED}, v{vM}
v_add_u32 v{vM+2}, {L_RED}, v{vL16}""")
        gpoll(a, lambda: a(f"buffer_load_dwordx4 {vr(vST,4)}, v{vM}, {WS}, s{T+9} offen sc1"), [vST+1, vST+3], OPT.get('ssleep'))
        a(f"""ds_write_b128 v{vM+1}, {vr(vST,4)}
s_waitcnt lgkmcnt(0)
s_barrier""")
        for q in range(4):
            a(f"ds_read_b128 {vr(vST+4*q,4)}, v{vM+2} offset:{1024*q}")
        a("s_waitcnt lgkmcnt(0)")
    else:
        gpoll(a, stl, [vST+4*q+j for q in range(4) for j in (1, 3)], OPT.get('ssleep'))
    stamp(a, 1)
    st_op("v_sub_f32", lambda q, j: vST+4*q); st_cvt()
    st_unpack()
    pl()
    st_op("v_mul_f32", lambda q, j: vST+4*q+2); st_cvt()
    st_unpack()
    stamp(a, 2)
    lp = a.label("pp"); ld = a.label("ppd")
    a(f"""{lp}:
s_waitcnt vmcnt(0)
v_min3_u32 v{vM}, v{vPt+1}, v{vPt+3}, v{vPt+5}
v_max3_u32 v{vM+1}, v{vPt+1}, v{vPt+3}, v{vPt+5}
v_min3_u32 v{vM}, v{vM}, v{vPt+7}, v{vPt+9}
v_max3_u32 v{vM+1}, v{vM+1}, v{vPt+7}, v{vPt+9}
v_min_u32 v{vM}, v{vM}, v{vPt+11}
v_max_u32 v{vM+1}, v{vM+1}, v{vPt+11}
v_cmp_ne_u32 vcc, s{S_TAG}, v{vM}
v_cmp_ne_u32 s[{T+14}:{T+15}], s{S_TAG}, v{vM+1}
s_or_b64 vcc, vcc, s[{T+14}:{T+15}]
s_cbranch_vccz {ld}
s_sub_u32 s{S_TO}, s{S_TO}, 1
s_cmp_eq_u32 s{S_TO}, 0
s_cbranch_scc1 {ld}""")
    pl()
    a(f"""s_branch {lp}
{ld}:
s_max_u32 s{S_TO}, s{S_TO}, 1
v_add_f32 v{vPt}, v{vPt}, v{vPt+4}
v_add_f32 v{vPt+2}, v{vPt+2}, v{vPt+6}
v_fmac_f32 v{vPt}, v{vA0}, v{vPt+8}
v_fmac_f32 v{vPt+2}, v{vA0}, v{vPt+10}
s_nop 1
v_permlane32_swap_b32 v{vPt}, v{vPt+2}
s_nop 0
v_add_f32 v{vPt}, v{vPt}, v{vPt+2}
v_mov_b32 v{vPt+2}, v{vPt}
s_nop 1
v_permlane16_swap_b32 v{vPt}, v{vPt+2}
s_nop 0
v_add_f32 v{vPt}, v{vPt}, v{vPt+2}
s_nop 1
v_add_f32_dpp v{vPt}, v{vPt}, v{vPt} row_ror:8 row_mask:0xf bank_mask:0xf""")
    round_bf16(a, vPt)
    a(f"v_add_f32 v{vPt}, v{vPt}, v{vA1}")
    round_bf16(a, vPt)
    a("s_nop 0")
    for u in (4, 5, 6, 7, 0, 1, 2, 3):
        a(f"v_readlane_b32 s{SM[2*u]}, v{vPt}, {u}\nv_readlane_b32 s{SM[2*u+1]}, v{vPt}, {32+u}")
    stamp(a, 3)
    for q, i in P:
        a(f"v_mul_f32 v{lo(q,i)}, s{SM[8+2*i]}, v{lo(q,i)}\nv_mul_f32 v{hi(q,i)}, s{SM[8+2*i+1]}, v{hi(q,i)}")
    st_cvt(); st_unpack()
    for q in range(4):
        for i in range(4):
            a(f"v_add_f32 v{lo(q,i)}, s{SM[2*i]}, v{lo(q,i)}\nv_add_f32 v{hi(q,i)}, s{SM[2*i+1]}, v{hi(q,i)}")
        for i in range(4):
            a(f"v_cvt_pk_bf16_f32 v{xs(q,i)}, v{lo(q,i)}, v{hi(q,i)}")
        a(f"buffer_store_dwordx4 {vr(vX+4*q,4)}, v{vCs}, {WS}, s{sOff} offen sc1")
        if q < 3:
            a(f"s_add_u32 s{sOff}, s{sOff}, {2*72*1024}")
    stamp(a, 4)
    a(f"""s_mul_i32 s{sOff}, s{sB}, 18
s_add_u32 s{sOff}, s{sOff}, s{sCs}
s_lshl_b32 s{sOff}, s{sOff}, 7
s_add_u32 s{sOff}, s{sOff}, {F_H}""")
    set_flag(a, f"s{sOff}")
    stamp(a, 5)
    if 'ob' in OPT:
        a("s_waitcnt vmcnt(0)\ns_barrier")
    a("L_o_pref:")
    srd(a, R_A, S_WMOD, SZ_WMOD)
    srd(a, R_C, S_C, SZ_C)
    a(f"""s_sub_u32 s{sOff}, s{sO}, 20
s_cmp_ge_u32 s{sO}, 16
s_cselect_b32 s{sO}, s{sOff}, s{sO}
s_cselect_b32 s{sOff}, 16, 0
s_cmp_lt_u32 s{sO}, s{sOff}
s_cbranch_scc1 L_o_upd
s_cmp_ge_u32 s{sO}, 18
s_cbranch_scc1 L_o_upd""")
    if 'gd' in OPT:
        a(f"v_min_u32 v{vT0}, 35, v0\nv_lshlrev_b32 v{vT0}, 7, v{vT0}\ns_movk_i32 s{sOff}, {F_H}")
        poll(a, vT0, f"s{sOff}", vT1)
    a(f"""s_mul_i32 s{sRow0}, s{S_W}, 144
v_min_u32 v{vT0}, 17, v{vTok}
v_lshlrev_b32 v{vT0}, 4, v{vT0}
v_mul_u32_u24 v{vT1}, 2304, v{vHF}
v_add_u32 v{vCs}, v{vT0}, v{vT1}
s_lshl_b32 s{sOff}, s{sRow0}, 1
buffer_load_dwordx4 {vr(vC,4)}, v{vCs}, {RC}, s{sOff} offen
s_lshl_b32 s{sColA}, s{sO}, 7
s_add_u32 s{sColA}, s{sColA}, 4608""")
    gemv_dma(a, sColA, vD)
    a(f"""s_lshl_b32 s{sOff}, s{sRow0}, 7
v_add_u32 v{vA0}, s{sOff}, v{vB0}
v_add_u32 v{vA1}, s{sOff}, v{vB1}
s_waitcnt vmcnt(18)""")
    for i in range(4):
        unpack(a, vM+2*i, vM+2*i+1, vC+i)
    silu8(a, vM, vM+8)
    for i in range(4):
        a(f"v_cvt_pk_bf16_f32 v{vC+i}, v{vM+2*i}, v{vM+2*i+1}")
    a(f"""s_lshl_b32 s{sOff}, s{sRow0}, 1
s_add_u32 s{sOff}, s{sOff}, {L_SIL}
v_add_u32 v{vCs}, s{sOff}, v{vCs}
ds_write_b128 v{vCs}, {vr(vC,4)}
v_and_b32 v{vT0}, 1, v0
v_mul_u32_u24 v{vT0}, 2304, v{vT0}
v_lshl_add_u32 v{vT0}, v{vHF}, 4, v{vT0}
v_add_u32 v{vSil}, s{sOff}, v{vT0}
s_waitcnt lgkmcnt(0)""")
    for s in range(9):
        wf = vWF + 8*(s & 1); sf = vSF + 4*(s & 1)
        a(f"s_waitcnt vmcnt({18-2*(s+1)})")
        a(f"ds_read_b128 {vr(sf,4)}, v{vSil} offset:{s*32}")
        trreads(a, wf, vA0, vA1, s*2048)
        a("s_waitcnt lgkmcnt(2)")
        mfma(a, vAcc, wf, sf, s == 0)
        a("s_waitcnt lgkmcnt(0)")
        mfma(a, vAcc+16, wf+4, sf, s == 0)
    a(f"""v_and_b32 v{vT0}, 1, v0
v_lshlrev_b32 v{vT0}, 8, v{vT0}
v_lshl_add_u32 v{vT0}, v{vHF}, 5, v{vT0}
s_lshl_b32 s{sOff}, s{S_W}, 9
s_add_u32 s{sOff}, s{sOff}, {L_RED}
v_add_u32 v{vT0}, s{sOff}, v{vT0}
s_mov_b32 exec_lo, 3
s_mov_b32 exec_hi, 3
s_nop 8""")
    for cb in range(2):
        for q, off in enumerate((0, 16, 64, 80)):
            a(f"ds_write_b128 v{vT0}, {vr(vAcc+16*cb+4*q,4)} offset:{cb*128+off}")
    a(f"""s_mov_b64 exec, -1
s_waitcnt lgkmcnt(0)
s_barrier
s_lshr_b32 s{sOff}, s{S_W}, 2
s_lshl_b32 s{sOff}, s{sOff}, 8
s_add_u32 s{sOff}, s{sOff}, {L_RED}
v_lshlrev_b32 v{vT0}, 2, v0
v_add_u32 v{vT1}, s{sOff}, v{vT0}""")
    for w in range(8):
        a(f"ds_read_b32 v{vAcc+w}, v{vT1} offset:{w*512}")
    a("s_waitcnt lgkmcnt(0)")
    for w in range(1, 8):
        a(f"v_add_f32 v{vAcc}, v{vAcc}, v{vAcc+w}")
    round_bf16(a, vAcc)
    lsk = a.label("gsk")
    a(f"""s_and_b32 s{sOff}, s{S_W}, 3
s_cmp_lg_u32 s{sOff}, 0
s_cbranch_scc1 {lsk}
s_lshr_b32 s{T+9}, s{S_W}, 2
s_mul_i32 s{sOff}, s{T+9}, 4608
s_lshl_b32 s{sColA}, s{sO}, 8
s_add_u32 s{sOff}, s{sOff}, s{sColA}
s_add_u32 s{sOff}, s{sOff}, {WS_GATE}
buffer_store_dword v{vAcc}, v{vT0}, {WS}, s{sOff} offen sc1
{lsk}:
s_lshl_b32 s{sOff}, s{sO}, 7
s_add_u32 s{sOff}, s{sOff}, {F_G}""")
    set_flag(a, f"s{sOff}")
    stamp(a, 7)
    lp = a.label("ep"); ld = a.label("epd")
    a(f"""L_o_upd:
s_add_u32 s{S_SLOT}, s{S_SLOT}, 25
s_cmp_ge_u32 s{S_SLOT}, 27
s_cbranch_scc1 L_c_notu
s_cmp_lg_u32 s2, 0
s_cbranch_scc1 L_fin
s_lshl_b32 s{sOff}, s{S_W}, 6
v_add_u32 v{vT0}, s{sOff}, v0
v_min_u32 v{vT0}, 431, v{vT0}
v_lshlrev_b32 v{vT0}, 8, v{vT0}
s_mov_b32 s{sOff}, {F_QKV}
{lp}:
s_sleep 16
buffer_load_dword v{vT1}, v{vT0}, {WS}, s{sOff} offen sc1
buffer_load_dword v{vT2}, v{vT0}, {WS}, s{sOff} offen offset:128 sc1
s_waitcnt vmcnt(0)
v_cmp_ne_u32 vcc, s{S_TAG}, v{vT1}
v_cmp_ne_u32 s[{T+14}:{T+15}], s{S_TAG}, v{vT2}
s_or_b64 vcc, vcc, s[{T+14}:{T+15}]
s_cbranch_vccz {ld}
s_sub_u32 s{S_TO}, s{S_TO}, 1
s_cmp_lg_u32 s{S_TO}, 0
s_cbranch_scc1 {lp}
{ld}:
s_mov_b32 s{sOff}, {EPOCH}""")
    set_flag(a, f"s{sOff}")
    a("s_branch L_fin")

def epilogue(a):
    if STAMP and 'probe' in OPT:
        i = int(OPT['probe']); lo, hi = [int(x) for x in OPT.get('prole', '0:256').split(':')]
        a(f"""s_waitcnt vmcnt(0) lgkmcnt(0)
s_cmp_lg_u32 s{S_W}, {OPT.get('stw', 0)}
s_cbranch_scc1 L_end
s_memrealtime s[{S_ST+30}:{S_ST+31}]
s_waitcnt lgkmcnt(0)
s_sub_u32 s{T}, s{S_ST+2*i}, s{S_ST}
s_cmp_eq_u32 s{S_ST+2*i}, 0
s_cselect_b32 s{T}, 0, s{T}
s_cmp_lt_u32 s2, {lo}
s_cselect_b32 s{T}, 0, s{T}
s_cmp_ge_u32 s2, {hi}
s_cselect_b32 s{T}, 0, s{T}
s_lshl_b32 s{T}, s{T}, 2
s_add_u32 s{T}, s{T}, 5000
L_spin:
s_memrealtime s[{T+2}:{T+3}]
s_waitcnt lgkmcnt(0)
s_sub_u32 s{T+2}, s{T+2}, s{S_ST}
s_cmp_lt_u32 s{T+2}, s{T}
s_cbranch_scc1 L_spin""")
    elif STAMP:
        a(f"""s_waitcnt vmcnt(0) lgkmcnt(0)
s_cmp_lg_u32 s{S_W}, {OPT.get('stw', 0)}
s_cbranch_scc1 L_end
{CLK} s[{S_ST+30}:{S_ST+31}]
s_memtime s[98:99]
s_waitcnt lgkmcnt(0)
s_sub_u32 s98, s98, s96""")
        for i in range(16):
            a(f"v_mov_b32 v{16+i}, s{S_ST+2*i}")
        a(f"""v_mov_b32 v32, s98
s_lshl_b32 s{T}, s2, 7
s_add_u32 s{T}, s{T}, {WS_STAMP}
v_mov_b32 v1, 0
s_mov_b64 exec, 1""")
        for i in range(4):
            a(f"buffer_store_dwordx4 v[{16+4*i}:{19+4*i}], v1, {WS}, s{T} offen offset:{16*i}")
        a(f"buffer_store_dword v32, v1, {WS}, s{T} offen offset:64")
    a("L_end:\ns_endpgm")

def main():
    a = Asm()
    a.raw("""; DiT adaLN attention block (B=2, N=256, D=1152) as ONE persistent launch, 256 workgroups x 8 waves (one per CU).
; Written by a generator script of my own (hand-designed schedule, no compiler output).
;  stage 0 : 162 WGs: split-K pieces of silu(c) @ w_mod[:, :2D] -> tagged granules; 64 WGs: LayerNorm row statistics
; @launch grid=(256,1,1) block=(512,1,1) lds=163840""")
    a.raw('.amdgcn_target "amdgcn-amd-amdhsa--gfx950"\n.text')
    prologue(a)
    phase_bc(a)
    NOD[0] = True
    phase_d(a)
    NOD[0] = False
    epilogue(a)
    a("L_owner:")
    phase_owner(a)
    a.raw(".p2align 4\nL_codeend:")
    out = a.text() + kd(NAME, 244, 102)
    path = [x for x in sys.argv[1:] if not x.startswith('--')][0]
    open(path, 'w').write(out)
main()
```

```python
import sys, struct
from asmlib import *

OPT = dict(la='12', nt='', cpf='1', umap='4', lfull='1', pack='0', ew='3')
for a_ in sys.argv[1:]:
    if a_.startswith('--'):
        k, _, v = a_[2:].partition('=')
        OPT[k] = v
STAMP = 'stamp' in OPT
NT = OPT['nt']
PF = OPT.get('pf', 'sc1').replace('+', ' ')
SF = OPT.get('sf', 'sc1').replace('+', ' ')
NTW = 'nt' if 'ntw' in OPT else ''
NTO = 'nt' if 'nto' in OPT else ''
NTM = 'nt' if 'ntm' in OPT else ''
CLK = "s_memtime" if 'cyc' in OPT else "s_memrealtime"

NAME = "standalone__dit_adaln_block__diffusion_kernel"
D = 1152
SZ_X = 512*D*2; SZ_C = 2*D*2; SZ_WQKV = D*3*D*2; SZ_WO = D*D*2; SZ_WMOD = D*6*D*2
SZ_WS = 1 << 28
F_STAT = 0x0
F_H = 0x2000
F_L = 0x4000
F_U = 0x760000
F_G = 0x4000
F_QKV = 0x740000
EPOCH = 0x13000
WS_GATE = 0x14000
WS_H = 0x20000
WS_QKV = 0x140000
WS_L = 0x680000
WS_U = 0x550000
WS_PART = 0x4A0000
WS_STAMP = 0x700000
F_LH = 0x720000
LOG2E = 0x3fb8aa3b

S_W, S_TAG, S_G, S_SLOT, S_TO, S_TK = 3, 4, 5, 6, 7, 8
S_X, S_C, S_WQKV, S_WO, S_WMOD, S_OUT, S_DBG, S_WS = 16, 18, 20, 22, 24, 26, 28, 30
R_A, R_B, R_C, R_WS = 32, 36, 40, 44
T = 48
S_ST = 64
WS = f"s[{R_WS}:{R_WS+3}]"
RA = f"s[{R_A}:{R_A+3}]"; RB = f"s[{R_B}:{R_B+3}]"; RC = f"s[{R_C}:{R_C+3}]"
vL16, vP16, vB0, vB1, vCH, vR8, vHF, vTok = 1, 2, 3, 4, 5, 6, 7, 8
vT0, vT1, vT2, vT3 = 9, 10, 11, 12
vTAG = 13
V0 = 16

L_MISC = 147456
L_SIL = L_MISC
L_RED = L_SIL + 4608
L_FIN = L_RED + 4096
L_ROLE = L_FIN + 4096
L_STC = L_ROLE + 16
L_GATE = 36864
NO = 5

WSB = int(OPT.get('wsb', '0'), 0)
def srd(a, r, ptr, size):
    if r == R_WS and WSB:
        a(f"""s_add_u32 s{r}, s{ptr}, {hex(WSB)}
s_addc_u32 s{r+1}, s{ptr+1}, 0
s_and_b32 s{r+1}, s{r+1}, 0xffff
s_mov_b32 s{r+2}, {hex(size - WSB)}
s_mov_b32 s{r+3}, 0x20000""")
        return
    a(f"""s_mov_b32 s{r}, s{ptr}
s_and_b32 s{r+1}, s{ptr+1}, 0xffff
s_mov_b32 s{r+2}, {hex(size)}
s_mov_b32 s{r+3}, 0x20000""")

NOD = [False]
def stamp(a, i):
    if STAMP and not (NOD[0] and 'nod' in OPT):
        a(f"{CLK} s[{S_ST+2*i}:{S_ST+2*i+1}]")

def unpack(a, lo, hi, src):
    a(f"v_lshlrev_b32 v{lo}, 16, v{src}\nv_and_b32 v{hi}, 0xffff0000, v{src}")

def round_bf16(a, v):
    a(f"v_cvt_pk_bf16_f32 v{v}, v{v}, v{v}\nv_lshlrev_b32 v{v}, 16, v{v}")

HACK = [0]
def mfma(a, acc, A, B, first=False):
    if 'hack16' in OPT and not first:
        HACK[0] += 1
        o = 8*((HACK[0] >> 1) & 1)
        for j in range(2):
            a(f"v_mfma_f32_16x16x32_bf16 {vr(acc+o+4*j,4)}, {vr(A,4)}, {vr(B,4)}, {vr(acc+o+4*j,4)}")
        return
    c = "0" if first else vr(acc, 16)
    a(f"v_mfma_f32_32x32x16_bf16 {vr(acc,16)}, {vr(A,4)}, {vr(B,4)}, {c}")

def wrap_add(a, s, step, s_end, s_start):
    a(f"""s_add_u32 s{s}, s{s}, {step}
s_cmp_eq_u32 s{s}, s{s_end}
s_cselect_b32 s{s}, s{s_start}, s{s}""")

def mod9(a, dst, src, tmp):
    a(f"""s_mul_i32 s{tmp}, s{src}, 57
s_lshr_b32 s{tmp}, s{tmp}, 9
s_mul_i32 s{tmp}, s{tmp}, 9
s_sub_u32 s{dst}, s{src}, s{tmp}""")

def poll(a, vaddr, soff, vtmp):
    l = a.label("poll"); d = a.label("polld")
    a(f"""s_cmp_lg_u32 s{S_W}, 0
s_cbranch_scc1 {d}
{l}:
buffer_load_dword v{vtmp}, v{vaddr}, {WS}, {soff} offen {PF}
s_waitcnt vmcnt(0)
v_cmp_ne_u32 vcc, s{S_TAG}, v{vtmp}
s_cbranch_vccz {d}
s_sleep {OPT.get('sleep', 2)}
s_sub_u32 s{S_TO}, s{S_TO}, 1
s_cmp_lg_u32 s{S_TO}, 0
s_cbranch_scc1 {l}
s_mov_b32 s{S_TO}, 1
{d}:
s_barrier""")

def gpoll(a, loads, tagregs, slp=None):
    l = a.label("gp"); d = a.label("gpd")
    a(f"{l}:")
    loads()
    a(f"s_waitcnt vmcnt(0)\nv_cmp_ne_u32 vcc, s{S_TAG}, v{tagregs[0]}")
    for r in tagregs[1:]:
        a(f"v_cmp_ne_u32 s[{T+14}:{T+15}], s{S_TAG}, v{r}\ns_or_b64 vcc, vcc, s[{T+14}:{T+15}]")
    a(f"""s_cbranch_vccz {d}
s_sleep {slp if slp is not None else OPT.get('gsleep', 2)}
s_sub_u32 s{S_TO}, s{S_TO}, 1
s_cmp_lg_u32 s{S_TO}, 0
s_cbranch_scc1 {l}
s_mov_b32 s{S_TO}, 1
{d}:""")

def raw_flag(a, soff):
    a(f"""v_mov_b32 v{vT3}, 0
s_mov_b64 exec, 1
buffer_store_dword v{vTAG}, v{vT3}, {WS}, {soff} offen {SF}
s_mov_b64 exec, -1""")

def set_flag(a, soff, younger=0):
    d = a.label("fl")
    a(f"""s_waitcnt vmcnt({younger})
s_barrier
s_cmp_lg_u32 s{S_W}, 0
s_cbranch_scc1 {d}""")
    raw_flag(a, soff)
    a(f"{d}:")

def trreads(a, wf, b0, b1, off):
    a(f"""ds_read_b64_tr_b16 {vr(wf,2)}, v{b0} offset:{off}
ds_read_b64_tr_b16 {vr(wf+2,2)}, v{b0} offset:{off+512}
ds_read_b64_tr_b16 {vr(wf+4,2)}, v{b1} offset:{off}
ds_read_b64_tr_b16 {vr(wf+6,2)}, v{b1} offset:{off+512}""")

def dma_tile(a, srdname, vD, pitch, s_rot, flags, n0=0, n1=18):
    sN, sO = T+10, T+11
    if s_rot is None:
        a(f"s_add_u32 s{sN}, s{S_W}, {8*n0}")
    else:
        a(f"s_lshl_b32 s{sN}, s{s_rot}, 3\ns_add_u32 s{sN}, s{sN}, s{S_W}")
    for n in range(n0, n1):
        a(f"""s_lshl_b32 m0, s{sN}, 10
s_mul_i32 s{sO}, s{sN}, {8*pitch}
buffer_load_dwordx4 v{vD}, {srdname}, s{sO} offen {flags} lds""")
        if n < n1-1:
            a(f"s_add_u32 s{sN}, s{sN}, 8")
            if s_rot is not None:
                a(f"""s_sub_u32 s{sO}, s{sN}, 144
s_cmp_ge_u32 s{sN}, 144
s_cselect_b32 s{sN}, s{sO}, s{sN}""")

def wave_sum(a, v, sdst):
    for m in ("quad_perm:[1,0,3,2]", "quad_perm:[2,3,0,1]", "row_half_mirror", "row_mirror"):
        a(f"s_nop 1\nv_add_f32_dpp v{v}, v{v}, v{v} {m} row_mask:0xf bank_mask:0xf")
    a(f"s_nop 1\nv_add_f32_dpp v{v}, v{v}, v{v} row_bcast:15 row_mask:0xa bank_mask:0xf")
    a(f"s_nop 1\nv_add_f32_dpp v{v}, v{v}, v{v} row_bcast:31 row_mask:0xc bank_mask:0xf")
    a(f"s_nop 1\nv_readlane_b32 s{sdst}, v{v}, 63\ns_nop 1")

def silu8(a, f, t):
    for i in range(8):
        a(f"v_mul_f32 v{t+i}, 0xbfb8aa3b, v{f+i}")
    for i in range(8):
        a(f"v_exp_f32 v{t+i}, v{t+i}")
    for i in range(8):
        a(f"v_add_f32 v{t+i}, 1.0, v{t+i}")
    for i in range(8):
        a(f"v_rcp_f32 v{t+i}, v{t+i}")
    for i in range(8):
        a(f"v_mul_f32 v{f+i}, v{f+i}, v{t+i}")

def lane_consts(a):
    a(f"""v_lshrrev_b32 v{vR8}, 3, v0
v_and_b32 v{vP16}, 0x33, v0
v_and_b32 v{vT0}, 4, v0
v_lshl_or_b32 v{vP16}, v{vT0}, 1, v{vP16}
v_and_b32 v{vT0}, 8, v0
v_lshrrev_b32 v{vT0}, 1, v{vT0}
v_or_b32 v{vP16}, v{vP16}, v{vT0}
v_lshlrev_b32 v{vP16}, 4, v{vP16}
v_lshrrev_b32 v{vT0}, 2, v0
v_and_b32 v{vT0}, 4, v{vT0}
v_and_b32 v{vCH}, 7, v0
v_xor_b32 v{vCH}, v{vCH}, v{vT0}
v_lshlrev_b32 v{vB0}, 10, v{vHF}
v_and_b32 v{vT0}, 12, v0
v_lshl_or_b32 v{vB0}, v{vT0}, 5, v{vB0}
v_and_b32 v{vT0}, 8, v0
v_lshl_or_b32 v{vB0}, v{vT0}, 3, v{vB0}
v_and_b32 v{vT0}, 16, v0
v_lshl_or_b32 v{vB0}, v{vT0}, 1, v{vB0}
v_and_b32 v{vT0}, 1, v0
v_lshl_or_b32 v{vB0}, v{vT0}, 4, v{vB0}
v_and_b32 v{vT0}, 2, v0
v_lshl_or_b32 v{vB0}, v{vT0}, 2, v{vB0}
v_xor_b32 v{vB1}, 64, v{vB0}""")

def get_tag(a):
    a(f"""s_waitcnt lgkmcnt(0)
s_mul_i32 s{S_TAG}, s{S_TAG}, 1664525
s_add_u32 s{S_TAG}, s{S_TAG}, 1013904223
v_mov_b32 v{vTAG}, s{S_TAG}""")

def wpoll(a, vaddr, soff, vtmp):
    gpoll(a, lambda: a(f"buffer_load_dword v{vtmp}, v{vaddr}, {WS}, {soff} offen {PF}"), [vtmp])

S_BCT, S_BRT = 11, 12
vDW = 15
R0, R1 = [int(x) for x in OPT.get('wrot', '36,28').split(',')]
assert R0 + 3*R1 + 7 < 144
def b_setup(a):
    srd(a, R_B, S_WQKV, SZ_WQKV)
    a(f"""s_mul_i32 s{S_BCT}, s{S_G}, 27
s_add_u32 s{S_BCT}, s{S_BCT}, s{S_SLOT}
s_sub_u32 s{S_BCT}, s{S_BCT}, {NO}
s_and_b32 s{S_BRT}, s{S_BCT}, 3
s_lshr_b32 s{S_BCT}, s{S_BCT}, 2
s_mul_i32 s13, s{S_BRT}, {R1}
s_add_u32 s{T+14}, s13, {R0}
s_cmp_lg_u32 s{S_BRT}, 0
s_cselect_b32 s13, s{T+14}, s13
s_add_u32 s13, s13, s{S_W}
v_lshlrev_b32 v{vDW}, 4, v{vCH}
v_mul_u32_u24 v{vT0}, 6912, v{vR8}
s_lshl_b32 s{T+14}, s{S_BCT}, 7
v_add3_u32 v{vDW}, v{vDW}, v{vT0}, s{T+14}""")

THR = f"s_waitcnt vmcnt({OPT['thr']})" if 'thr' in OPT else ''
THRO = f"s_waitcnt vmcnt({OPT['thro']})" if 'thro' in OPT else ''
def w_dma(a, n):
    for i in range(n):
        a(f"""s_lshl_b32 m0, s13, 10
s_mul_i32 s{T+14}, s13, {8*6912}
buffer_load_dwordx4 v{vDW}, {RB}, s{T+14} offen {NTW} lds
{THR}
s_add_u32 s13, s13, 8
s_sub_u32 s{T+14}, s13, 144
s_cmp_ge_u32 s13, 144
s_cselect_b32 s13, s{T+14}, s13""")

EW = int(OPT.get('ew', 0))
def prologue(a):
    a.raw(f".globl {NAME}\n.p2align 8\n.type {NAME},@function\n{NAME}:")
    a(f"""s_cmp_ge_u32 s2, 256
s_cbranch_scc1 L_end
s_load_dwordx16 s[16:31], s[0:1], 0""")
    if STAMP:
        a(f"{CLK} s[{S_ST}:{S_ST+1}]\ns_memtime s[96:97]")
        for i in range(1, 16):
            a(f"s_mov_b32 s{S_ST+2*i}, 0")
    a(f"""v_lshrrev_b32 v1, 6, v0
v_and_b32 v0, 63, v0
s_and_b32 s{S_G}, s2, 7
v_readfirstlane_b32 s{S_W}, v1
s_lshr_b32 s{S_SLOT}, s2, 3
s_mov_b32 s{S_TO}, 0x40000
v_lshlrev_b32 v{vL16}, 4, v0
v_lshrrev_b32 v{vHF}, 5, v0
v_and_b32 v{vTok}, 31, v0
s_mov_b32 s{S_TK}, s2""")
    if OPT.get('cpf') == '1':
        a(f"""s_cmp_lg_u32 s{S_W}, 7
s_cbranch_scc1 L_nocpf
s_getpc_b64 s[{T}:{T+1}]
L_pc:
s_sub_u32 s{T}, s{T}, L_pc-{NAME}
s_subb_u32 s{T+1}, s{T+1}, 0
s_lshl_b32 s{T+2}, s{S_SLOT}, 10
v_add_u32 v{vT0}, s{T+2}, v{vL16}
v_min_u32 v{vT0}, L_codeend-{NAME}-16, v{vT0}
global_load_dwordx4 v[240:243], v{vT0}, s[{T}:{T+1}]
L_nocpf:""")
    if OPT.get('lead', '1') == '1':
        a(f"""s_mul_i32 s{T}, s{S_G}, 27
s_add_u32 s{T}, s{T}, s{S_SLOT}
s_sub_u32 s{T}, s{T}, {NO}
s_lshr_b32 s{T+1}, s{T}, 2
s_sub_u32 s{T+2}, s{T}, s{T+1}
s_add_u32 s{T+2}, s{T+2}, 93
s_and_b32 s{T+3}, s{T+1}, 1
s_mul_i32 s{T+3}, s{T+3}, 27
s_lshr_b32 s{T+1}, s{T+1}, 1
s_add_u32 s{T+1}, s{T+1}, s{T+3}
s_add_u32 s{T+1}, s{T+1}, 40
s_and_b32 s{T}, s{T}, 3
s_cselect_b32 s{T+1}, s{T+2}, s{T+1}
s_cmp_ge_u32 s2, 40
s_cselect_b32 s{S_TK}, s{T+1}, s2""")
    sP, sCg, sKs, sOff, sRow = T, T+1, T+2, T+3, T+4
    a(f"""s_cmp_ge_u32 s{S_TK}, 64
s_cbranch_scc1 L_s0_nst""")
    vRW = 16
    a(f"""s_lshl_b32 s{sOff}, s{S_TK}, 3
s_add_u32 s{sOff}, s{sOff}, s{S_W}
s_mul_i32 s{sOff}, s{sOff}, 2304
v_mov_b32 v{vRW+8}, 0
v_mov_b32 v{vRW+9}, 0
v_mov_b32 v{vRW+10}, 0
v_mov_b32 v{vRW+11}, 0
s_and_b32 s{T+13}, s2, 1
s_lshr_b32 s{T+12}, s2, 1
s_lshl_b32 s{T+13}, s{T+13}, 3
s_add_u32 s{T+13}, s{T+13}, s{S_W}
v_lshrrev_b32 v{vR8}, 3, v0
v_mul_u32_u24 v{vT0}, 2304, v{vR8}
v_and_b32 v{vT1}, 7, v0
v_xor_b32 v{vT1}, v{vT1}, v{vR8}
v_lshl_add_u32 v{vT0}, v{vT1}, 4, v{vT0}
s_mul_i32 s{T+13}, s{T+13}, {32*2304}
s_lshl_b32 s{T+12}, s{T+12}, 7
s_add_u32 s{T+13}, s{T+13}, s{T+12}
s_lshl_b32 m0, s{S_W}, 12
s_waitcnt lgkmcnt(0)""")
    srd(a, R_C, S_X, SZ_X)
    a(f"""buffer_load_dwordx4 {vr(vRW,4)}, v{vL16}, {RC}, s{sOff} offen
buffer_load_dwordx4 {vr(vRW+4,4)}, v{vL16}, {RC}, s{sOff} offen offset:1024
s_mov_b64 exec, 0xffff
buffer_load_dwordx4 {vr(vRW+8,4)}, v{vL16}, {RC}, s{sOff} offen offset:2048
s_mov_b64 exec, -1
s_mov_b32 s{S_TAG}, {EPOCH + WSB}\ns_load_dword s{S_TAG}, s[{S_WS}:{S_WS+1}], s{S_TAG}""")
    a(f"s_cmp_ge_u32 s2, 36\ns_cbranch_scc1 L_s0_stats")
    if OPT.get('xb', '1') == '1':
        a("s_barrier")
    for q in range(4):
        a(f"buffer_load_dwordx4 v{vT0}, {RC}, s{T+13} offen lds")
        if q < 3:
            a(f"s_add_u32 s{T+13}, s{T+13}, {8*2304}\ns_add_u32 m0, m0, 1024\ns_nop 0")
    a(f"""s_branch L_s0_stats
L_s0_nst:
s_cmp_lt_u32 s{S_TK}, 94
s_cbranch_scc1 L_s0_none""")
    vW = 16
    vC = 32
    vSc = 36
    vTm = 44
    vAc = 52
    a(f"""s_sub_u32 s{sP}, s{S_TK}, 94
s_mul_i32 s{sKs}, s{sP}, 57
s_lshr_b32 s{sKs}, s{sKs}, 9
s_mul_i32 s{sCg}, s{sKs}, 9
s_sub_u32 s{sCg}, s{sP}, s{sCg}
s_lshl_b32 s{sRow}, s{sKs}, 3
s_add_u32 s{sRow}, s{sRow}, s{S_W}
s_lshl_b32 s{sRow}, s{sRow}, 3
v_and_b32 v{vT0}, 15, v0
v_lshlrev_b32 v{vT0}, 4, v{vT0}
v_bfe_u32 v{vT1}, v0, 4, 1
v_mul_u32_u24 v{vT1}, 2304, v{vT1}
v_mul_u32_u24 v{vT2}, {4*13824}, v{vHF}
v_add3_u32 v{vT0}, v{vT0}, v{vT1}, v{vT2}
v_lshlrev_b32 v{vT1}, 3, v{vHF}
s_lshl_b32 s{T+5}, s{sRow}, 1
s_mul_i32 s{sOff}, s{sRow}, 13824
s_lshl_b32 s{sRow}, s{sCg}, 8
s_add_u32 s{sOff}, s{sOff}, s{sRow}
s_waitcnt lgkmcnt(0)""")
    srd(a, R_A, S_WMOD, SZ_WMOD)
    srd(a, R_C, S_C, SZ_C)
    a(f"""buffer_load_dwordx2 {vr(vC,2)}, v{vT1}, {RC}, s{T+5} offen
buffer_load_dwordx2 {vr(vC+2,2)}, v{vT1}, {RC}, s{T+5} offen offset:2304""")
    for n in range(4):
        a(f"buffer_load_dwordx4 {vr(vW+4*n,4)}, v{vT0}, {RA}, s{sOff} offen {NTM}")
        if n < 3:
            a(f"s_add_u32 s{sOff}, s{sOff}, 13824")
    a(f"s_mov_b32 s{S_TAG}, {EPOCH + WSB}\ns_load_dword s{S_TAG}, s[{S_WS}:{S_WS+1}], s{S_TAG}")
    srd(a, R_WS, S_WS, SZ_WS)
    lane_consts(a)
    b_setup(a)
    if EW:
        a("s_barrier")
        w_dma(a, EW)
    a(f"s_waitcnt vmcnt({4+EW})")
    for i in range(4):
        unpack(a, vSc+2*i, vSc+2*i+1, vC+i)
    silu8(a, vSc, vTm)
    for i in range(4):
        a(f"v_cvt_pk_bf16_f32 v{vC+i}, v{vSc+2*i}, v{vSc+2*i+1}")
    for i in range(4):
        unpack(a, vSc+2*i, vSc+2*i+1, vC+i)
    a(f"""s_lshl_b32 s{sOff}, s{S_W}, 11
s_add_u32 s{sOff}, s{sOff}, {L_MISC}
v_lshlrev_b32 v{vT2}, 5, v0
v_add_u32 v{vT2}, s{sOff}, v{vT2}
s_lshr_b32 s{sOff}, s{S_W}, 1
s_lshl_b32 s{sOff}, s{sOff}, 10
s_and_b32 s{sRow}, s{S_W}, 1
s_lshl_b32 s{sP}, s{sRow}, 8
s_add_u32 s{sOff}, s{sOff}, s{sP}
s_add_u32 s{sOff}, s{sOff}, {L_MISC}
v_lshlrev_b32 v{vT3}, 3, v{vTok}
v_lshl_add_u32 v{vT3}, v{vHF}, 9, v{vT3}
v_add_u32 v{vT3}, s{sOff}, v{vT3}
s_lshl_b32 s{sP}, s{sCg}, 1
s_add_u32 s{sP}, s{sP}, s{sRow}
s_lshl_b32 s{sP}, s{sP}, 1
s_lshr_b32 s{sOff}, s{S_W}, 1
s_add_u32 s{sP}, s{sP}, s{sOff}
s_mul_i32 s{sP}, s{sP}, 18
s_add_u32 s{sP}, s{sP}, s{sKs}
s_lshl_b32 s{sP}, s{sP}, 10
s_add_u32 s{sP}, s{sP}, {WS_PART}
v_and_b32 v{vT0}, 28, v0
v_lshlrev_b32 v{vT0}, 5, v{vT0}
v_lshl_add_u32 v{vT0}, v{vHF}, 6, v{vT0}
v_and_b32 v{vT1}, 3, v0
v_lshl_add_u32 v{vT0}, v{vT1}, 4, v{vT0}""")
    get_tag(a)
    E2 = int(OPT.get('ew2', 0)); E2AT = int(OPT.get('ew2at', 3))
    for n in range(4):
        a(f"s_waitcnt vmcnt({3-n+EW+(E2 if n > E2AT else 0)})")
        if n == E2AT and E2: w_dma(a, E2)
        if n == 3: stamp(a, 8)
        for i in range(4):
            unpack(a, vTm+2*i, vTm+2*i+1, vW+4*n+i)
        for b in range(2):
            for j in range(8):
                op = "v_mul_f32" if n == 0 else "v_fmac_f32"
                a(f"{op} v{vAc+8*b+j}, v{vTm+j}, v{vSc+4*b+n}")
    a("s_nop 1")
    for j in range(8):
        a(f"v_permlane32_swap_b32 v{vAc+j}, v{vAc+8+j}")
    for j in range(8):
        a(f"v_add_f32 v{vAc+j}, v{vAc+j}, v{vAc+8+j}")
    lsk = a.label("pubsk")
    a(f"""ds_write_b128 v{vT2}, {vr(vAc,4)}
ds_write_b128 v{vT2}, {vr(vAc+4,4)} offset:16
s_waitcnt lgkmcnt(0)
s_barrier
s_cmp_ge_u32 s{S_W}, 4
s_cbranch_scc1 {lsk}""")
    for w in range(8):
        a(f"ds_read_b64 {vr(vW+2*w,2)}, v{vT3} offset:{w*2048}")
    a(f"""v_mov_b32 v{vAc+1}, v{vTAG}
v_mov_b32 v{vAc+3}, v{vTAG}
s_waitcnt lgkmcnt(4)
v_add_f32 v{vW}, v{vW}, v{vW+2}
v_add_f32 v{vW+1}, v{vW+1}, v{vW+3}
v_add_f32 v{vW+4}, v{vW+4}, v{vW+6}
v_add_f32 v{vW+5}, v{vW+5}, v{vW+7}
s_waitcnt lgkmcnt(0)
v_add_f32 v{vW+8}, v{vW+8}, v{vW+10}
v_add_f32 v{vW+9}, v{vW+9}, v{vW+11}
v_add_f32 v{vW+12}, v{vW+12}, v{vW+14}
v_add_f32 v{vW+13}, v{vW+13}, v{vW+15}
v_add_f32 v{vW}, v{vW}, v{vW+4}
v_add_f32 v{vW+1}, v{vW+1}, v{vW+5}
v_add_f32 v{vW+8}, v{vW+8}, v{vW+12}
v_add_f32 v{vW+9}, v{vW+9}, v{vW+13}
v_add_f32 v{vAc}, v{vW}, v{vW+8}
v_add_f32 v{vAc+2}, v{vW+1}, v{vW+9}
buffer_store_dwordx4 {vr(vAc,4)}, v{vT0}, {WS}, s{sP} offen sc1
{lsk}:""")
    stamp(a, 9)
    if OPT.get('pack') == '1':
        a("s_waitcnt vmcnt(0)")
    if 'nopb' not in OPT:
        a("s_barrier")
    w_dma(a, 18-EW-E2)
    a("s_branch L_b")
    a("L_s0_stats:")
    srd(a, R_WS, S_WS, SZ_WS)
    lane_consts(a)
    lnx = a.label("nox"); ljx = a.label("jx")
    get_tag(a)
    a(f"s_cmp_ge_u32 s2, 36\ns_cbranch_scc1 {lnx}\ns_waitcnt vmcnt(4)\ns_branch {ljx}\n{lnx}:\ns_waitcnt vmcnt(0)\n{ljx}:")
    stamp(a, 8)
    s1, s2_, q1, q2 = 32, 33, 34, 35
    a(f"s_mov_b32 s{T+12}, 0x3f803f80")
    for i in range(0, 12, 2):
        c = lambda r: "0" if i == 0 else f"v{r}"
        a(f"""v_dot2_f32_bf16 v{s1}, v{vRW+i}, s{T+12}, {c(s1)}
v_dot2_f32_bf16 v{q1}, v{vRW+i}, v{vRW+i}, {c(q1)}
v_dot2_f32_bf16 v{s2_}, v{vRW+i+1}, s{T+12}, {c(s2_)}
v_dot2_f32_bf16 v{q2}, v{vRW+i+1}, v{vRW+i+1}, {c(q2)}""")
    a(f"""s_nop 2
v_add_f32 v{s1}, v{s1}, v{s2_}
v_add_f32 v{q1}, v{q1}, v{q2}""")
    for m in ("quad_perm:[1,0,3,2] row_mask:0xf", "quad_perm:[2,3,0,1] row_mask:0xf", "row_half_mirror row_mask:0xf", "row_mirror row_mask:0xf", "row_bcast:15 row_mask:0xa", "row_bcast:31 row_mask:0xc"):
        a(f"s_nop 0\nv_add_f32_dpp v{s1}, v{s1}, v{s1} {m} bank_mask:0xf\nv_add_f32_dpp v{q1}, v{q1}, v{q1} {m} bank_mask:0xf")
    g = 36
    a(f"""v_mul_f32 v{g}, 0x3a638e39, v{s1}
v_mul_f32 v{g+2}, 0x3a638e39, v{q1}
v_fma_f32 v{g+2}, -v{g}, v{g}, v{g+2}
v_max_f32 v{g+2}, 0, v{g+2}""")
    round_bf16(a, g+2)
    a(f"v_add_f32 v{g+2}, 0x3727c5ac, v{g+2}")
    round_bf16(a, g+2)
    a(f"v_sqrt_f32 v{g+2}, v{g+2}")
    round_bf16(a, g)
    round_bf16(a, g+2)
    lsk = a.label("stsk")
    a(f"""v_rcp_f32 v{g+2}, v{g+2}
v_mov_b32 v{g+1}, v{vTAG}
v_mov_b32 v{g+3}, v{vTAG}
s_lshl_b32 s{T+12}, s{S_W}, 4
s_add_u32 s{T+12}, s{T+12}, {L_STC}
v_mov_b32 v{vT0}, s{T+12}
s_mov_b32 exec_lo, 0
s_brev_b32 exec_hi, 1
ds_write_b128 v{vT0}, {vr(g,4)}
s_mov_b64 exec, -1
s_lshl_b32 s{T+12}, s{S_TK}, 7
s_add_u32 s{T+12}, s{T+12}, {F_STAT}
v_add_u32 v{vT0}, {L_STC}, v{vL16}
s_waitcnt lgkmcnt(0)
s_barrier
s_cmp_lg_u32 s{S_W}, 0
s_cbranch_scc1 {lsk}
s_mov_b64 exec, 0xff
ds_read_b128 {vr(g,4)}, v{vT0}
s_waitcnt lgkmcnt(0)
buffer_store_dwordx4 {vr(g,4)}, v{vL16}, {WS}, s{T+12} offen sc1
s_mov_b64 exec, -1
{lsk}:""")
    stamp(a, 9)
    a(f"s_cmp_lt_u32 s{S_SLOT}, {NO}\ns_cbranch_scc1 L_owner")
    if 'nopb' not in OPT:
        a("s_barrier")
    a("s_branch L_s0_w")
    a("L_s0_none:")
    a(f"s_waitcnt lgkmcnt(0)\ns_mov_b32 s{S_TAG}, {EPOCH + WSB}\ns_load_dword s{S_TAG}, s[{S_WS}:{S_WS+1}], s{S_TAG}")
    srd(a, R_WS, S_WS, SZ_WS)
    lane_consts(a)
    get_tag(a)
    if 'cw' in OPT:
        srd(a, R_C, S_C, SZ_C)
        a(f"buffer_load_dword v{vT1}, v{vL16}, {RC}, 0 offen\ns_waitcnt vmcnt(0)")
    a("L_s0_w:")
    b_setup(a)
    w_dma(a, 18)

VOX = 96

S_UCT, S_UTB = 9, 10
vDU = 14
KE = int(OPT.get('ke', 12))
def wo_dma(a, n0, n1):
    a(f"s_add_u32 s{T+10}, s{S_W}, {4*n0-4}")
    for n in range(n0, n1):
        a(f"""s_lshl_b32 m0, s{T+10}, 10
s_mul_i32 s{T+11}, s{T+10}, {8*2304}
buffer_load_dwordx4 v{vDU}, {RB}, s{T+11} offen lds""")
        if n < n1-1:
            a(f"s_add_u32 s{T+10}, s{T+10}, 4")

def gemm_loop(a, nsteps, LA, RING, vAcc, vWF, vH, vA0, vA1, vaddr, sH, lds_first, w_is_a, pre=None, rot=None, bar_at=None):
    WA = int(OPT.get('wa', 2))
    state = dict(issued=0)
    if rot:
        sR, sHs, sHe, sLo, sZ, sLe, vC0, vC1 = rot
        a(f"""s_mov_b32 s{sHs}, s{sH}
s_add_u32 s{sHe}, s{sH}, {nsteps*1024}
s_lshl_b32 s{sLo}, s{sR}, 12
s_add_u32 s{sH}, s{sH}, s{sLo}
s_lshl_b32 s{sLo}, s{sR}, 13
s_mov_b32 s{sZ}, 0
s_mov_b32 s{sLe}, {nsteps*2048}""")
    def hload():
        s = state['issued']
        a(f"buffer_load_dwordx4 {vr(vH+4*(s % RING),4)}, v{vaddr}, {WS}, s{sH} offen offset:{(s&3)*1024} sc1")
        if (s & 3) == 3 and s < nsteps-1:
            if rot: wrap_add(a, sH, 4096, sHe, sHs)
            else: a(f"s_add_u32 s{sH}, s{sH}, 4096")
        state['issued'] += 1
    def wread(s):
        if rot:
            if (s & 3) == 0:
                a(f"v_add_u32 v{vC0}, s{sLo}, v{vA0}\nv_add_u32 v{vC1}, s{sLo}, v{vA1}")
                wrap_add(a, sLo, 8192, sLe, sZ)
            trreads(a, vWF + 8*(s & 3), vC0, vC1, (s & 3)*2048)
            return
        if s and (s & 31) == 0:
            a(f"v_add_u32 v{vA0}, 0x10000, v{vA0}\nv_add_u32 v{vA1}, 0x10000, v{vA1}")
        trreads(a, vWF + 8*(s & 3), vA0, vA1, (s & 31)*2048)
    if lds_first:
        for s in range(WA): wread(s)
    for s in range(LA): hload()
    if pre: pre()
    if not lds_first:
        for s in range(WA): wread(s)
    for s in range(nsteps):
        lg = 4*min(WA-1, nsteps-1 - s)
        a(f"s_waitcnt vmcnt({state['issued'] - s - 1}) lgkmcnt({lg})")
        if s == 0 and lds_first: stamp(a, 4)
        h = vH+4*(s % RING); w0 = vWF+8*(s & 3)
        mfma(a, vAcc, *((w0, h) if w_is_a else (h, w0)), s == 0)
        if s + WA < nsteps:
            wread(s + WA)
        mfma(a, vAcc+16, *((w0+4, h) if w_is_a else (h, w0+4)), s == 0)
        if state['issued'] < nsteps:
            hload()
        if bar_at is not None and s == bar_at:
            a("s_barrier")

SZ = int(OPT['sz']) if 'sz' in OPT else None
UM = int(OPT.get('umap', 2)); UML = UM.bit_length()-1
vDX, vDXO = 236, 235
def d_tile(a):
    sQt, sCt, sCb, sKh, sOff, sXo, sJ, sU, sB, sCol = T, T+1, T+2, T+3, T+4, T+5, T+6, T+7, T+8, T+9
    a(f"""s_and_b32 s{sOff}, s{S_G}, 3
s_mul_i32 s{sOff}, s{sOff}, 18
s_min_u32 s{sJ}, s{S_SLOT}, 17
s_add_u32 s{sOff}, s{sOff}, s{sJ}
s_lshr_b32 s{sCt}, s{sOff}, 3
s_and_b32 s{sJ}, s{sOff}, 7
s_lshr_b32 s{sB}, s{S_G}, 2
s_lshl_b32 s{sQt}, s{sB}, 3
s_add_u32 s{sQt}, s{sQt}, s{sJ}
s_and_b32 s{sCb}, s{S_W}, 3
s_lshr_b32 s{sKh}, s{S_W}, 2
s_lshl_b32 s{sCol}, s{sCt}, 7
s_lshl_b32 s{sXo}, s{sQt}, 3
s_add_u32 s{sXo}, s{sXo}, s{S_W}
s_mul_i32 s{sXo}, s{sXo}, {4*2304}
s_lshl_b32 s{sOff}, s{sCol}, 1
s_add_u32 s{sXo}, s{sXo}, s{sOff}
v_lshrrev_b32 v{vDXO}, 4, v0
v_mul_u32_u24 v{vDXO}, 2304, v{vDXO}
v_and_b32 v{vT3}, 15, v0
v_lshl_add_u32 v{vDXO}, v{vT3}, 4, v{vDXO}""")

def d_setup(a):
    sQt, sCt, sCb, sKh, sOff, sXo, sJ, sU, sB, sCol = T, T+1, T+2, T+3, T+4, T+5, T+6, T+7, T+8, T+9
    vXo, vMx, vS, vLa, vPa, vLw = vDXO, V0+1, V0+2, V0+3, V0+4, V0+5
    vLd = 24
    vX = vDX
    vG = 44
    vF = 56
    vR = 72
    vAcc = 80
    vU = 96
    vP = 128
    PS = 1056
    L_P, L_EX = 40960, 65536
    srd(a, R_B, S_OUT, SZ_X)
    d_tile(a)
    a(f"""s_mul_i32 s{sU}, s{sB}, 36
s_lshl_b32 s{sOff}, s{sCt}, 2
s_add_u32 s{sU}, s{sU}, s{sOff}
s_add_u32 s{sU}, s{sU}, s{sCb}
s_lshl_b32 s{sU}, s{sU}, 4
s_lshl_b32 s{sOff}, s{sKh}, 3
s_add_u32 s{sU}, s{sU}, s{sOff}
s_lshl_b32 s{T+10}, s{sU}, 6
s_add_u32 s{T+10}, s{T+10}, {F_U}
s_lshl_b32 s{sU}, s{sU}, 10
s_add_u32 s{sU}, s{sU}, {WS_U}
v_and_b32 v{vT0}, 3, v0
v_lshlrev_b32 v{vT0}, 7, v{vT0}
v_add_u32 v{vT1}, s{T+10}, v{vT0}
s_lshl_b32 s{sOff}, s{sQt}, 3
s_add_u32 s{sOff}, s{sOff}, s{S_W}
s_mul_i32 s{sOff}, s{sOff}, {6*128}
s_add_u32 s{sOff}, s{sOff}, {F_LH}
v_min_u32 v{vT2}, 5, v0
v_lshlrev_b32 v{vT2}, 7, v{vT2}
v_add_u32 v{vT2}, s{sOff}, v{vT2}
v_cmp_gt_u32 vcc, 8, v0
v_and_b32 v{vT3}, 15, v0
v_lshrrev_b32 v{vT0}, 4, v0
v_cndmask_b32 v{vT1}, v{vT1}, v{vT2}, vcc
s_lshl_b32 s{sOff}, s{S_W}, 2
v_add_u32 v{vT0}, s{sOff}, v{vT0}
v_lshlrev_b32 v{vLa}, 10, v{vT0}
v_lshl_add_u32 v{vLa}, v{vT3}, 4, v{vLa}
v_lshrrev_b32 v{vT2}, 1, v{vT3}
v_mul_u32_u24 v{vLw}, {PS//2}, v{vT2}
v_lshl_add_u32 v{vLw}, v{vT0}, 4, v{vLw}
v_and_b32 v{vT2}, 1, v0
v_lshl_add_u32 v{vLw}, v{vT2}, 3, v{vLw}
v_lshl_add_u32 v{vPa}, v{vHF}, 4, v{vL16}
s_mul_i32 s{sOff}, s{sKh}, {8*PS}
v_add_u32 v{vPa}, s{sOff}, v{vPa}
v_lshlrev_b32 v{vT0}, 5, v{vT3}
s_lshl_b32 s{sOff}, s{sQt}, 15
s_add_u32 s{sOff}, s{sOff}, {WS_L}""")
    a(f"v_mov_b32 v22, v{vT1}")

def phase_bc(a):
    sTb, sOff, sH, sF = T+1, T+4, T+5, T+6
    vA0, vA1 = V0+1, V0+2
    vAcc = 20
    vWF = 52
    vH = 84
    a("L_b:")
    stamp(a, 1)
    srd(a, R_B, S_WO, SZ_WO)
    srd(a, R_A, S_X, SZ_X)
    a(f"s_sub_u32 s{S_SLOT}, s{S_SLOT}, {NO}")
    d_tile(a)
    XL = OPT.get('xl', '1') == '1'
    xload = lambda: a(f"buffer_load_dwordx4 {vr(vDX,4)}, v{vDXO}, {RA}, s14 offen")
    a(f"s_mov_b32 s14, s{T+5}")
    if not XL:
        xload()
    a(f"""s_and_b32 s{T+14}, s{S_G}, {UM-1}
s_mul_i32 s{T+14}, s{T+14}, 18
s_add_u32 s{T+14}, s{T+14}, s{S_SLOT}
s_lshr_b32 s{S_UCT}, s{T+14}, {UML}
s_and_b32 s{T+14}, s{T+14}, {UM-1}
s_lshr_b32 s{S_UTB}, s{S_G}, {UML}
s_lshl_b32 s{S_UTB}, s{S_UTB}, {UML}
s_add_u32 s{S_UTB}, s{S_UTB}, s{T+14}
s_lshl_b32 s{S_UTB}, s{S_UTB}, 1
s_and_b32 s{T+14}, s{S_W}, 1
s_add_u32 s{S_UTB}, s{S_UTB}, s{T+14}
v_lshlrev_b32 v{vDU}, 4, v{vCH}
v_mul_u32_u24 v{vT0}, 2304, v{vR8}
s_lshl_b32 s{T+14}, s{S_UCT}, 7
v_add3_u32 v{vDU}, v{vDU}, v{vT0}, s{T+14}
s_lshl_b32 s{sTb}, s{S_BRT}, 2
s_and_b32 s{sOff}, s{S_W}, 3
s_add_u32 s{sTb}, s{sTb}, s{sOff}
s_mul_i32 s{sH}, s{sTb}, {72*1024}
s_add_u32 s{sH}, s{sH}, {WS_H}
v_mov_b32 v{vA0}, v{vB0}
v_mov_b32 v{vA1}, v{vB1}
v_min_u32 v{vT0}, 17, v0
v_lshlrev_b32 v{vT0}, 7, v{vT0}
s_lshr_b32 s{sOff}, s{S_BRT}, 1
s_mul_i32 s{sOff}, s{sOff}, {18*128}
s_add_u32 s{sOff}, s{sOff}, {F_H}
s_mul_i32 s{sF}, s{sTb}, 54
s_add_u32 s{sF}, s{sF}, s{S_BCT}
s_lshl_b32 s{sF}, s{sF}, 7
s_add_u32 s{sF}, s{sF}, {F_QKV}
s_waitcnt vmcnt(0)""")
    a("s_barrier")
    stamp(a, 2)
    a(f"s_cmp_ge_u32 s{S_W}, 4\ns_cbranch_scc1 L_ld")
    HPWG = OPT.get('hp', 'w') == 'wg'
    G1 = int(OPT.get('g1', 8))
    if G1:
        assert SZ is None and not HPWG
        a(f"v_min_u32 v{vT0}, {(G1-1)*128}, v{vT0}")
    if HPWG:
        poll(a, vT0, f"s{sOff}", vT1)
    else:
        wpoll(a, vT0, f"s{sOff}", vT1)
    stamp(a, 3)
    LA = int(OPT['la'])
    BR = int(OPT.get('brot', 0))
    if BR:
        a(f"s_mul_i32 s{T+8}, s{S_G}, {BR}")
    gemm_loop(a, 72, LA, LA+4, vAcc, vWF, vH, vA0, vA1, vL16, sH, True, True, bar_at=(4*G1 - int(OPT['la']) - 1 if G1 else SZ),
              rot=(T+8, T+9, T+10, T+11, T+12, T+13, V0, V0+3) if BR else None)
    stamp(a, 5)
    a(f"""s_mul_i32 s{sH}, s{sTb}, {216*1024}
s_lshl_b32 s{sOff}, s{S_BCT}, 12
s_add_u32 s{sH}, s{sH}, s{sOff}
s_add_u32 s{sH}, s{sH}, {WS_QKV}
s_nop 7""")
    for u in range(4):
        if u == 2:
            a("s_nop 1")
        for r in range(4*u, 4*u+4):
            a(f"v_cvt_pk_bf16_f32 v{vWF+r}, v{vAcc+2*r}, v{vAcc+2*r+1}")
        a(f"buffer_store_dwordx4 {vr(vWF+4*u,4)}, v{vL16}, {WS}, s{sH} offen offset:{1024*u} sc1")
    a("s_barrier")
    stamp(a, 6)
    sKh = T+2
    a(f"""s_lshr_b32 s{sKh}, s{S_W}, 1
s_mul_i32 s{sH}, s{S_UTB}, {216*1024}
s_mul_i32 s{sOff}, s{sKh}, {36*1024}
s_add_u32 s{sH}, s{sH}, s{sOff}
s_add_u32 s{sH}, s{sH}, {WS_QKV + 144*1024}
s_mul_i32 s{sOff}, s{sKh}, {576*128}
v_add_u32 v{vA0}, s{sOff}, v{vB0}
v_add_u32 v{vA1}, s{sOff}, v{vB1}
v_min_u32 v{vT0}, 8, v0
v_lshlrev_b32 v{vT0}, 7, v{vT0}
s_mul_i32 s{T+7}, s{S_UTB}, {54*128}
s_mul_i32 s{sOff}, s{sKh}, {9*128}
s_add_u32 s{T+7}, s{T+7}, s{sOff}
s_add_u32 s{T+7}, s{T+7}, {F_QKV + 36*128}
s_waitcnt vmcnt(0)""")
    raw_flag(a, f"s{sF}")
    a("s_barrier")
    stamp(a, 7)
    a(f"s_cmp_ge_u32 s{S_SLOT}, 18\ns_cbranch_scc1 L_c_notu")
    if XL:
        xload()
    if 'udelay' in OPT:
        a(f"s_sleep {OPT['udelay']}")
    UROT = int(OPT.get('urot', 0))
    if UROT:
        a(f"s_mul_i32 s{T+8}, s{S_G if 'urg' in OPT else S_UCT}, {UROT}")
        mod9(a, T+8, T+8, T+9)
    wpoll(a, vT0, f"s{T+7}", vT1)
    stamp(a, 12)
    LA = int(OPT.get('lau', 12))
    gemm_loop(a, 36, LA, min(36, LA+4), vAcc, vWF, vH, vA0, vA1, vP16, sH, False, False, pre=lambda: (a("s_barrier"), stamp(a, 11)),
              rot=(T+8, T+9, T+10, T+11, T+12, T+13, V0, V0+3) if UROT else None)
    stamp(a, 13)
    lk1 = a.label("kh1"); lj = a.label("j")
    a(f"""s_lshl_b32 s{sOff}, s{S_W}, 12
s_add_u32 s{sOff}, s{sOff}, {L_MISC}
v_add_u32 v{vT0}, s{sOff}, v{vL16}
v_xor_b32 v{vT1}, {2*4096}, v{vT0}
s_lshr_b32 s{sH}, s{S_UTB}, 3
s_mul_i32 s{sF}, s{sH}, 18
s_add_u32 s{sF}, s{sF}, s{S_UCT}
s_lshl_b32 s{sH}, s{sF}, 1
s_add_u32 s{sH}, s{sH}, s{sKh}
s_lshl_b32 s{sH}, s{sH}, 3
s_and_b32 s{sOff}, s{S_UTB}, 7
s_add_u32 s{sH}, s{sH}, s{sOff}
s_lshl_b32 s{sF}, s{sH}, 7
s_add_u32 s{sF}, s{sF}, {F_U}
s_lshl_b32 s{sH}, s{sH}, 11
s_add_u32 s{sH}, s{sH}, {WS_U}
s_cmp_lg_u32 s{sKh}, 0
s_cbranch_scc1 {lk1}""")
    for q in range(4):
        a(f"ds_write_b128 v{vT0}, {vr(vAcc+16+4*q,4)} offset:{q*1024}")
    a(f"s_branch {lj}\n{lk1}:")
    for q in range(4):
        a(f"ds_write_b128 v{vT0}, {vr(vAcc+4*q,4)} offset:{q*1024}")
    for r in range(16):
        a(f"v_mov_b32 v{vAcc+r}, v{vAcc+16+r}")
    a(f"{lj}:\ns_waitcnt lgkmcnt(0)\ns_barrier")
    for q in range(4):
        a(f"ds_read_b128 {vr(vWF+4*q,4)}, v{vT1} offset:{q*1024}")
    for u in range(2):
        a(f"s_waitcnt lgkmcnt({2-2*u})")
        for r in range(8*u, 8*u+8):
            a(f"v_add_f32 v{vAcc+r}, v{vAcc+r}, v{vWF+r}")
        for r in range(4*u, 4*u+4):
            a(f"v_cvt_pk_bf16_f32 v{vWF+16+r}, v{vAcc+2*r}, v{vAcc+2*r+1}")
        a(f"buffer_store_dwordx4 {vr(vWF+16+4*u,4)}, v{vL16}, {WS}, s{sH} offen offset:{1024*u} sc1")
    a(f"s_mov_b32 s13, s{sF}")
    d_setup(a)
    a("s_waitcnt vmcnt(0)")
    raw_flag(a, "s13")
    a("s_barrier")
    stamp(a, 14)
    a("s_branch L_d")
    lnu = a.label("ldnu")
    vWo = 20
    NE = int(OPT.get('ne', 18))
    a("L_ld:")
    if 'tlb' in OPT:
        sh = int(OPT['tlb'])
        lt = a.label("tlb")
        srd(a, R_A, S_OUT, SZ_X)
        srd(a, R_C, S_WS, 0x700000)
        a(f"s_cmp_lg_u32 s{S_W}, 7\ns_cbranch_scc1 {lt}\nv_lshlrev_b32 v{vT2}, {sh}, v0\nv_add_u32 v{vT2}, {(1<<sh)-128}, v{vT2}")
        a(f"buffer_load_dword v236, v{vT2}, {RA}, 0 offen")
        for off in range(0, 0x700000, 64 << sh):
            a(f"v_add_u32 v{vT1}, {off}, v{vT2}\nbuffer_load_dword v237, v{vT1}, {RC}, 0 offen sc1")
        a(f"{lt}:")
    NA = int(OPT.get('na', 0))
    a(f"""s_cmp_ge_u32 s{S_SLOT}, 18
s_cbranch_scc1 {lnu}
s_sub_u32 s{T+10}, s{S_W}, 4
s_lshl_b32 s{T+11}, s{T+10}, 10
v_add_u32 v{vT0}, s{T+11}, v{vL16}
s_bfe_u32 s{T+12}, s{S_UTB}, 0x10001
s_mul_i32 s{T+12}, s{T+12}, 72
s_bfe_u32 s{T+11}, s{S_UTB}, 0x10002
s_mul_i32 s{T+11}, s{T+11}, {36 if UM > 2 else 0}
s_add_u32 s{T+12}, s{T+12}, s{T+11}
s_add_u32 s{T+10}, s{T+10}, s{T+12}
s_lshl_b32 s{T+12}, s{T+12}, 10""")
    def nxt(n):
        if n < 35:
            a(f"s_add_u32 s{T+10}, s{T+10}, 4")
            if n % 9 == 8:
                a(f"""s_sub_u32 s{T+11}, s{T+10}, 144
s_cmp_ge_u32 s{T+10}, 144
s_cselect_b32 s{T+10}, s{T+11}, s{T+10}""")
    for n in range(NE):
        if SZ is not None and n == NA:
            a("s_barrier")
        a(f"""s_mul_i32 s{T+11}, s{T+10}, {8*2304}
buffer_load_dwordx4 {vr(vWo+4*n,4)}, v{vDU}, {RB}, s{T+11} offen {NTO}
{THRO}""")
        nxt(n)
    stamp(a, 4)
    def hall():
        l7 = a.label("w7")
        a(f"""s_cmp_lg_u32 s{S_W}, 7
s_cbranch_scc1 {l7}
v_min_u32 v{vT2}, 17, v0
v_lshlrev_b32 v{vT2}, 7, v{vT2}""")
        wpoll(a, vT2, f"s{sOff}", vT1)
        a(f"{l7}:\ns_barrier")
    if G1:
        hall()
    if HPWG:
        a("s_barrier")
    a("s_barrier")
    stamp(a, 5)
    WS_ = min(NE, int(OPT.get('wsplit', 12)))
    def wr(n):
        if n % 9 == 0:
            a(f"v_add_u32 v{vT1}, s{T+12}, v{vT0}")
            a(f"""s_add_u32 s{T+12}, s{T+12}, {36*1024}
s_cmp_ge_u32 s{T+12}, {144*1024}
s_cselect_b32 s{T+12}, 0, s{T+12}""")
        a(f"ds_write_b128 v{vT1}, {vr(vWo+4*n,4)} offset:{(n % 9)*4096}")
    KD = min(36-NE, int(OPT.get('kd', 0)))
    def dm(n):
        a(f"""s_lshl_b32 m0, s{T+10}, 10
s_mul_i32 s{T+11}, s{T+10}, {8*2304}
buffer_load_dwordx4 v{vDU}, {RB}, s{T+11} offen lds""")
        nxt(n)
    a("s_waitcnt vmcnt(0)")
    if 'lp' in OPT:
        a("s_setprio 3")
    for n in range(NE, NE+KD): dm(n)
    for n in range(WS_): wr(n)
    a("s_barrier")
    if 'dfirst' in OPT:
        a("s_nop 15")
        for n in range(NE+KD, 36): dm(n)
        for n in range(WS_, NE): wr(n)
    else:
        for n in range(WS_, NE): wr(n)
        for n in range(NE+KD, 36): dm(n)
    if 'lp' in OPT:
        a("s_setprio 0")
    a(f"""s_waitcnt vmcnt(0) lgkmcnt(0)""")
    stamp(a, 11)
    lg4 = a.label("g4")
    a("s_barrier")
    if XL:
        xload()
        a("s_waitcnt vmcnt(0)")
    a(f"""s_cmp_lg_u32 s{S_W}, 4
s_cbranch_scc1 {lg4}""")
    d_tile(a)
    a(f"""s_lshr_b32 s{T+10}, s{T+9}, 6
s_lshl_b32 s{T+10}, s{T+10}, 7
s_add_u32 s{T+10}, s{T+10}, {F_G}
v_and_b32 v{vT0}, 1, v0
v_lshlrev_b32 v{vT0}, 7, v{vT0}
s_mul_i32 s{T+11}, s{T+8}, 4608
s_lshl_b32 s{T+12}, s{T+9}, 2
s_add_u32 s{T+11}, s{T+11}, s{T+12}
s_add_u32 s{T+11}, s{T+11}, {WS_GATE}
v_lshlrev_b32 v{vT2}, 3, v0""")
    wpoll(a, vT0, f"s{T+10}", vT1)
    a(f"""buffer_load_dwordx2 v[20:21], v{vT2}, {WS}, s{T+11} offen sc1
s_waitcnt vmcnt(0)
s_barrier
ds_write_b64 v{vT2}, v[20:21] offset:{L_GATE}
s_waitcnt lgkmcnt(0)
s_branch {lg4}_j
{lg4}:
s_barrier
{lg4}_j:""")
    d_setup(a)
    a("s_barrier")
    stamp(a, 14)
    a(f"""s_branch L_d
{lnu}:""")
    if G1:
        hall()
    a(f"""s_barrier
s_barrier""")
    if SZ is not None:
        a("s_barrier")
    if HPWG:
        a("s_barrier")
    a("L_c_notu:")
    sQb, sKb, sKq, sJ, sK, sQ, sTy = T, T+1, T+2, T+3, T+5, T+6, T+9
    sM = T+10
    sK1 = T+12
    vS = 56
    RING = 15
    SW = OPT.get('sw', '1') == '1'
    SPW = f"""s_mul_i32 s{sOff}, s{sKq}, 18
s_add_u32 s{T+13}, s{sOff}, 17
s_lshr_b32 s{sOff}, s{sOff}, 2
s_lshr_b32 s{T+13}, s{T+13}, 2
v_add_u32 v{vT0}, s{sOff}, v{vTok}
v_min_u32 v{vT0}, s{T+13}, v{vT0}""" if SW else f"v_min_u32 v{vT0}, 17, v{vTok}"
    a(f"""s_sub_u32 s{sJ}, s{S_SLOT}, 18
s_lshr_b32 s{sTy}, s{sJ}, 2
s_and_b32 s{sKq}, s{S_W}, 3
s_and_b32 s{sQb}, s{S_G}, 1
s_lshl_b32 s{sQb}, s{sQb}, 2
s_and_b32 s{sOff}, s{sJ}, 3
s_add_u32 s{sQb}, s{sQb}, s{sOff}
s_and_b32 s{sKb}, s{S_G}, 2
s_lshl_b32 s{sKb}, s{sKb}, 1
s_lshr_b32 s{sOff}, s{S_G}, 2
s_lshl_b32 s{sOff}, s{sOff}, 3
s_add_u32 s{sQb}, s{sQb}, s{sOff}
s_add_u32 s{sKb}, s{sKb}, s{sOff}
s_min_u32 s{sK1}, s{sTy}, 1
s_add_u32 s{sK1}, s{sK1}, s{sTy}
s_mul_i32 s{sK}, s{sKb}, {216*1024}
s_mul_i32 s{sQ}, s{sQb}, {216*1024}
s_mul_i32 s{sOff}, s{sKq}, {18*1024}
s_add_u32 s{sK}, s{sK}, s{sOff}
s_add_u32 s{sQ}, s{sQ}, s{sOff}
s_add_u32 s{sK}, s{sK}, {WS_QKV + 72*1024}
s_add_u32 s{sQ}, s{sQ}, {WS_QKV}
s_mul_i32 s{sOff}, s{sKq}, 18
s_add_u32 s{T+13}, s{sOff}, 17
s_lshr_b32 s{sOff}, s{sOff}, 2
s_lshr_b32 s{T+13}, s{T+13}, 2
v_and_b32 v{vT0}, 7, v0
v_add_u32 v{vT0}, s{sOff}, v{vT0}
v_min_u32 v{vT0}, s{T+13}, v{vT0}
s_mul_i32 s{sOff}, s{sQb}, 54
v_mov_b32 v{vT1}, s{sOff}
s_add_u32 s{sOff}, s{sKb}, s{sK1}
s_mul_i32 s{sOff}, s{sOff}, 54
s_add_u32 s{sOff}, s{sOff}, 18
v_mov_b32 v{vT2}, s{sOff}
v_cmp_lt_u32 vcc, 7, v0
s_mul_i32 s{sOff}, s{sKb}, 54
s_add_u32 s{sOff}, s{sOff}, {54+18}
v_cndmask_b32 v{vT1}, v{vT1}, v{vT2}, vcc
v_mov_b32 v{vT2}, s{sOff}
v_cmp_lt_u32 vcc, 15, v0
s_nop 1
v_cndmask_b32 v{vT1}, v{vT1}, v{vT2}, vcc
v_add_u32 v{vT0}, v{vT0}, v{vT1}
v_lshlrev_b32 v{vT0}, 7, v{vT0}
v_and_b32 v{vT2}, 0x2ff, v{vP16}
v_and_b32 v{vT1}, 16, v0
v_lshl_add_u32 v{vT2}, v{vT1}, 6, v{vT2}
s_and_b32 s{sOff}, s{sTy}, 1
s_lshl_b32 s{sOff}, s{sOff}, 8
s_add_u32 s{sOff}, s{sOff}, {216*1024}
v_add_u32 v{vT2}, s{sOff}, v{vT2}
s_mul_i32 s{sOff}, s{sK1}, {216*1024}
v_add_u32 v{V0}, s{sOff}, v{vP16}
s_mov_b32 s{sOff}, {F_QKV}""")
    lsi = a.label("sidle")
    if not SW:
        poll(a, vT0, f"s{sOff}", vT1)
    a(f"s_cmp_ge_u32 s{S_W}, 4\ns_cbranch_scc1 {lsi}")
    if SW:
        wpoll(a, vT0, f"s{sOff}", vT1)
    stamp(a, 12)
    LA = int(OPT.get('las', 4))
    vS = 72; RING = 8
    vAc3 = 56
    assert LA < RING
    def sload(p):
        r = vS + 20*(p % RING)
        o = (p & 1)*2048
        a(f"""buffer_load_dwordx4 {vr(r,4)}, v{vL16}, {WS}, s{sQ} offen offset:{o} sc1
buffer_load_dwordx4 {vr(r+4,4)}, v{V0}, {WS}, s{sK} offen offset:{o} sc1
buffer_load_dwordx4 {vr(r+8,4)}, v{vT2}, {WS}, s{sK} offen offset:{o} sc1
buffer_load_dwordx4 {vr(r+12,4)}, v{vL16}, {WS}, s{sQ} offen offset:{o+1024} sc1
buffer_load_dwordx4 {vr(r+16,4)}, v{V0}, {WS}, s{sK} offen offset:{o+1024} sc1""")
        if p & 1:
            a(f"s_add_u32 s{sK}, s{sK}, 4096\ns_add_u32 s{sQ}, s{sQ}, 4096")
    for p in range(LA):
        sload(p)
    for p in range(9):
        y = 5*(min(9, p + LA) - p - 1)
        r = vS + 20*(p % RING)
        a(f"s_waitcnt vmcnt({y+3})")
        mfma(a, vAcc, r+4, r, p == 0)
        a(f"s_waitcnt vmcnt({y+2})")
        mfma(a, vAcc+16, r+8, r, p == 0)
        a(f"s_waitcnt vmcnt({y+1})")
        mfma(a, vAc3, r+8, r+12, p == 0)
        a(f"s_waitcnt vmcnt({y})")
        mfma(a, vAcc, r+16, r+12)
        if p + LA < 9:
            sload(p + LA)
    stamp(a, 13)
    QS, HS, PSZ = 1056, 528, 8448
    a(f"""s_mul_i32 s{sOff}, s{S_W}, {PSZ}
v_lshl_add_u32 v{vT0}, v{vHF}, 4, v{vL16}
v_add_u32 v{vT0}, s{sOff}, v{vT0}
s_nop 7""")
    for r in range(8):
        a(f"v_add_f32 v{vAcc+16+r}, v{vAcc+16+r}, v{vAc3+8+r}")
    for q in (4, 5, 0, 1, 2, 3):
        a(f"ds_write_b128 v{vT0}, {vr(vAcc+4*q,4)} offset:{q*QS}")
    a(f"""{lsi}:
v_bfe_u32 v{vT1}, v0, 2, 2
v_and_b32 v{vT2}, 1, v0
v_lshl_add_u32 v{vT1}, v{vT1}, 1, v{vT2}
v_mul_u32_u24 v{vT1}, {QS}, v{vT1}
v_bfe_u32 v{vT2}, v0, 1, 1
v_mul_u32_u24 v{vT2}, {HS}, v{vT2}
v_lshrrev_b32 v{vT0}, 4, v0
s_lshl_b32 s{sOff}, s{S_W}, 2
v_add_u32 v{vT0}, s{sOff}, v{vT0}
v_lshl_add_u32 v{vT1}, v{vT0}, 4, v{vT1}
v_add_u32 v{vT1}, v{vT1}, v{vT2}
v_and_b32 v{vT2}, 7, v0
v_lshlrev_b32 v{vT2}, 4, v{vT2}
v_lshl_add_u32 v{vT2}, v{vT0}, 10, v{vT2}
s_lshl_b32 s{sOff}, s{sK1}, 7
v_mov_b32 v{vT0}, s{sOff}
v_and_b32 v{vT3}, 8, v0
v_cmp_ne_u32 vcc, 0, v{vT3}
s_and_b32 s{sOff}, s{sTy}, 1
s_lshl_b32 s{sOff}, s{sOff}, 6
s_add_u32 s{sOff}, s{sOff}, 128
v_mov_b32 v{vT3}, s{sOff}
s_lshl_b32 s{sJ}, s{sQb}, 15
v_cndmask_b32 v{vT0}, v{vT0}, v{vT3}, vcc
v_add_u32 v{vT2}, v{vT2}, v{vT0}
s_and_b32 s{sOff}, s{sKb}, 7
s_lshl_b32 s{sOff}, s{sOff}, 7
s_add_u32 s{sJ}, s{sJ}, s{sOff}
s_add_u32 s{sJ}, s{sJ}, {WS_L}
s_lshl_b32 s{sK}, s{sQb}, 3
s_add_u32 s{sK}, s{sK}, s{S_W}
s_mul_i32 s{sK}, s{sK}, 6
s_bfe_u32 s{sOff}, s{sKb}, 0x10002
s_mul_i32 s{sOff}, s{sOff}, 3
s_add_u32 s{sK}, s{sK}, s{sOff}
s_add_u32 s{sK}, s{sK}, s{sTy}
s_lshl_b32 s{sK}, s{sK}, 7
s_add_u32 s{sK}, s{sK}, {F_LH}
s_mov_b32 s{sM}, 0x0fff0fff
s_cmp_eq_u32 s{sTy}, 2
s_cselect_b32 s{sM}, 0x00ff00ff, s{sM}
s_mov_b32 s{sM+1}, s{sM}
v_mov_b32 v53, v{vTAG}
v_mov_b32 v55, v{vTAG}
s_waitcnt lgkmcnt(0)
s_barrier""")
    for j in range(4):
        a(f"ds_read_b128 {vr(vAcc+4*j,4)}, v{vT1} offset:{j*PSZ}")
    a("s_waitcnt lgkmcnt(2)")
    for r in range(4):
        a(f"v_add_f32 v{vAcc+r}, v{vAcc+r}, v{vAcc+4+r}")
    a("s_waitcnt lgkmcnt(0)")
    for r in range(4):
        a(f"v_add_f32 v{vAcc+8+r}, v{vAcc+8+r}, v{vAcc+12+r}")
    for r in range(4):
        a(f"v_add_f32 v{vAcc+r}, v{vAcc+r}, v{vAcc+8+r}")
    sc = struct.unpack('<I', struct.pack('<f', D ** -0.5))[0]
    for r in range(2):
        a(f"v_cvt_pk_bf16_f32 v{52+2*r}, v{vAcc+2*r}, v{vAcc+2*r+1}")
    for r in range(2):
        unpack(a, vAcc+2*r, vAcc+2*r+1, 52+2*r)
    for r in range(4):
        a(f"v_mul_f32 v{vAcc+r}, {hex(sc)}, v{vAcc+r}")
    for r in range(2):
        a(f"v_cvt_pk_bf16_f32 v{52+2*r}, v{vAcc+2*r}, v{vAcc+2*r+1}")
    a(f"s_mov_b64 exec, s[{sM}:{sM+1}]\nbuffer_store_dwordx4 v[52:55], v{vT2}, {WS}, s{sJ} offen sc1\ns_mov_b64 exec, -1")
    raw_flag(a, f"s{sK}")
    stamp(a, 14)
    a("s_branch L_fin")

def phase_d(a):
    sQt, sCt, sCb, sKh, sOff, sXo, sJ, sU, sB, sCol = T, T+1, T+2, T+3, T+4, T+5, T+6, T+7, T+8, T+9
    vXo, vMx, vS, vLa, vPa, vLw = vDXO, V0+1, V0+2, V0+3, V0+4, V0+5
    vLd = 24
    vX = vDX
    vG = 44
    vF = 56
    vR = 72
    vAcc = 80
    vU = 96
    vP = 128
    PS = 1056
    L_P, L_EX = 40960, 65536
    a("L_d:")
    vFa, vFl = 22, 23
    sUd = T+12
    def uloads():
        for s in range(8):
            a(f"buffer_load_dwordx4 {vr(vU+4*s,4)}, v{vL16}, {WS}, s{sU} offen offset:{(s&3)*1024} sc1")
            if s == 3:
                a(f"s_add_u32 s{sU}, s{sU}, 4096")
        a(f"s_mov_b32 s{sUd}, 1")
        stamp(a, 8)
    l = a.label("lp"); d = a.label("lpd"); nu = a.label("nu"); l3 = a.label("lv"); d3 = a.label("lvd"); nu2 = a.label("nu2")
    def lloads():
        for n in range(4):
            a(f"buffer_load_dwordx4 {vr(vLd+4*n,4)}, v{vLa}, {WS}, s{sOff} offen offset:{256*n} sc1")
    a(f"""ds_read_b128 {vr(vG,4)}, v{vT0} offset:{L_GATE}
ds_read_b128 {vr(vG+4,4)}, v{vT0} offset:{L_GATE+16}
s_mov_b32 s{sUd}, 0""")
    if OPT.get('spec', '1') == '1':
        sp = a.label("sp")
        a(f"buffer_load_dword v{vFl}, v{vFa}, {WS}, 0 offen {PF}")
        lloads()
        a(f"""s_waitcnt vmcnt(4)
v_cmp_ne_u32 vcc, s{S_TAG}, v{vFl}
s_lshr_b32 s{T+13}, vcc_lo, 8
s_cbranch_scc1 {sp}""")
        uloads()
        a(f"""s_waitcnt vmcnt(8)
s_branch {sp}_c
{sp}:
buffer_load_dword v{vFl}, v{vFa}, {WS}, 0 offen {PF}
s_waitcnt vmcnt(1)
{sp}_c:
v_min_u32 v{vT1}, v{vLd+1}, v{vLd+3}
v_max_u32 v{vT2}, v{vLd+1}, v{vLd+3}""")
        for n in range(1, 4):
            a(f"v_min3_u32 v{vT1}, v{vT1}, v{vLd+4*n+1}, v{vLd+4*n+3}\nv_max3_u32 v{vT2}, v{vT2}, v{vLd+4*n+1}, v{vLd+4*n+3}")
        a(f"""v_cmp_ne_u32 vcc, s{S_TAG}, v{vT1}
v_cmp_ne_u32 s[{T+14}:{T+15}], s{S_TAG}, v{vT2}
s_or_b64 vcc, vcc, s[{T+14}:{T+15}]
s_cbranch_vccz {d3}""")
    a(f"""{l}:
buffer_load_dword v{vFl}, v{vFa}, {WS}, 0 offen {PF}
s_waitcnt vmcnt(0)
v_cmp_ne_u32 vcc, s{S_TAG}, v{vFl}
s_and_b32 s{T+13}, vcc_lo, 255
s_cbranch_scc0 {d}
s_lshr_b32 s{T+13}, vcc_lo, 8
s_or_b32 s{T+13}, s{T+13}, s{sUd}
s_cbranch_scc1 {nu}""")
    uloads()
    a(f"""{nu}:
s_sleep {OPT.get('lsleep', 1)}
s_sub_u32 s{S_TO}, s{S_TO}, 1
s_cmp_lg_u32 s{S_TO}, 0
s_cbranch_scc1 {l}
s_mov_b32 s{S_TO}, 1
{d}:""")
    lloads()
    a(f"""s_lshr_b32 s{T+13}, vcc_lo, 8
s_or_b32 s{T+13}, s{T+13}, s{sUd}
s_cbranch_scc1 {nu2}""")
    if 'ul' in OPT:
        a(f"s_waitcnt vmcnt({OPT['ul']})")
    uloads()
    a(f"""s_waitcnt vmcnt(8)
s_branch {l3}_c
{nu2}:
buffer_load_dword v{vFl}, v{vFa}, {WS}, 0 offen {PF}
s_waitcnt vmcnt(1)
s_branch {l3}_c
{l3}:""")
    lloads()
    a(f"""s_waitcnt vmcnt(0)
{l3}_c:
v_min_u32 v{vT1}, v{vLd+1}, v{vLd+3}
v_max_u32 v{vT2}, v{vLd+1}, v{vLd+3}""")
    for n in range(1, 4):
        a(f"v_min3_u32 v{vT1}, v{vT1}, v{vLd+4*n+1}, v{vLd+4*n+3}\nv_max3_u32 v{vT2}, v{vT2}, v{vLd+4*n+1}, v{vLd+4*n+3}")
    a(f"""v_cmp_ne_u32 vcc, s{S_TAG}, v{vT1}
v_cmp_ne_u32 s[{T+14}:{T+15}], s{S_TAG}, v{vT2}
s_or_b64 vcc, vcc, s[{T+14}:{T+15}]
s_cbranch_vccz {d3}
s_sub_u32 s{S_TO}, s{S_TO}, 1
s_cmp_lg_u32 s{S_TO}, 0
s_cbranch_scc1 {l3}
s_mov_b32 s{S_TO}, 1
{d3}:""")
    stamp(a, 9)
    for i in range(8):
        unpack(a, vF+2*i, vF+2*i+1, vLd+2*i)
    a(f"""v_max3_f32 v{vMx}, v{vF}, v{vF+1}, v{vF+2}
v_max3_f32 v{vS}, v{vF+3}, v{vF+4}, v{vF+5}
v_max3_f32 v{vMx}, v{vMx}, v{vF+6}, v{vF+7}
v_max3_f32 v{vS}, v{vS}, v{vF+8}, v{vF+9}
v_max3_f32 v{vMx}, v{vMx}, v{vF+10}, v{vF+11}
v_max3_f32 v{vS}, v{vS}, v{vF+12}, v{vF+13}
v_max3_f32 v{vMx}, v{vMx}, v{vF+14}, v{vF+15}
v_max_f32 v{vMx}, v{vMx}, v{vS}""")
    for m in ("quad_perm:[1,0,3,2]", "quad_perm:[2,3,0,1]", "row_half_mirror", "row_mirror"):
        a(f"s_nop 1\nv_max_f32_dpp v{vMx}, v{vMx}, v{vMx} {m} row_mask:0xf bank_mask:0xf")
    a(f"s_mov_b32 s{T+10}, {hex(LOG2E)}\nv_mul_f32 v{vMx}, s{T+10}, v{vMx}")
    for i in range(16):
        a(f"v_fma_f32 v{vF+i}, v{vF+i}, s{T+10}, -v{vMx}")
    for i in range(16):
        a(f"v_exp_f32 v{vF+i}, v{vF+i}")
    a(f"v_add_f32 v{vS}, v{vF}, v{vF+1}\nv_add_f32 v{vMx}, v{vF+2}, v{vF+3}")
    for i in range(4, 16, 2):
        a(f"v_add_f32 v{vS}, v{vS}, v{vF+i}\nv_add_f32 v{vMx}, v{vMx}, v{vF+i+1}")
    a(f"v_add_f32 v{vS}, v{vS}, v{vMx}")
    for m in ("quad_perm:[1,0,3,2]", "quad_perm:[2,3,0,1]", "row_half_mirror", "row_mirror"):
        a(f"s_nop 1\nv_add_f32_dpp v{vS}, v{vS}, v{vS} {m} row_mask:0xf bank_mask:0xf")
    a(f"v_rcp_f32 v{vS}, v{vS}\ns_nop 0")
    for i in range(16):
        a(f"v_mul_f32 v{vF+i}, v{vF+i}, v{vS}")
    for i in range(8):
        a(f"v_cvt_pk_bf16_f32 v{vLd+i}, v{vF+2*i}, v{vF+2*i+1}")
    for n in range(4):
        a(f"ds_write_b64 v{vLw}, {vr(vLd+2*n,2)} offset:{L_P+4*n*PS}")
    hu = a.label("hu"); l2 = a.label("up"); d2 = a.label("upd")
    a(f"""s_cmp_lg_u32 s{sUd}, 0
s_cbranch_scc1 {hu}
{l2}:
s_waitcnt vmcnt(0)
v_cmp_ne_u32 vcc, s{S_TAG}, v{vFl}
s_cbranch_vccz {d2}
buffer_load_dword v{vFl}, v{vFa}, {WS}, 0 offen {PF}
s_sub_u32 s{S_TO}, s{S_TO}, 1
s_cmp_lg_u32 s{S_TO}, 0
s_cbranch_scc1 {l2}
s_mov_b32 s{S_TO}, 1
{d2}:""")
    uloads()
    a(f"{hu}:\ns_waitcnt lgkmcnt(0)\ns_barrier")
    for s in range(8):
        a(f"ds_read_b128 {vr(vP+4*s,4)}, v{vPa} offset:{L_P+s*PS}")
    ROW = 528; EXS = 32*ROW
    a(f"""s_mul_i32 s{sOff}, s{sKh}, {EXS}
s_lshl_b32 s{T+10}, s{sCb}, 7
s_add_u32 s{sOff}, s{sOff}, s{T+10}
s_add_u32 s{sOff}, s{sOff}, {L_EX}
v_mul_u32_u24 v{vT1}, {ROW}, v{vTok}
v_lshl_add_u32 v{vT1}, v{vHF}, 5, v{vT1}
v_add_u32 v{vT1}, s{sOff}, v{vT1}
v_lshrrev_b32 v{vT2}, 4, v0
v_mul_u32_u24 v{vT2}, {ROW}, v{vT2}
s_mul_i32 s{sOff}, s{S_W}, {4*ROW}
s_add_u32 s{sOff}, s{sOff}, {L_EX}
v_add3_u32 v{vT2}, v{vT2}, v{vT0}, s{sOff}""")
    for s in range(8):
        a(f"s_waitcnt vmcnt({7-s}) lgkmcnt({7-s})")
        mfma(a, vAcc, vU+4*s, vP+4*s, s == 0)
    for i in range(4):
        unpack(a, vF+2*i, vF+2*i+1, vX+i)
    stamp(a, 10)
    a("s_nop 3")
    for q in range(4):
        a(f"ds_write_b128 v{vT1}, {vr(vAcc+4*q,4)} offset:{64*(q>>1) + 16*(q&1)}")
    a(f"""s_waitcnt lgkmcnt(0)
s_barrier
ds_read_b128 {vr(vAcc,4)}, v{vT2}
ds_read_b128 {vr(vR,4)}, v{vT2} offset:{EXS}
ds_read_b128 {vr(vAcc+4,4)}, v{vT2} offset:16
ds_read_b128 {vr(vR+4,4)}, v{vT2} offset:{EXS+16}
s_waitcnt vmcnt(0) lgkmcnt(2)""")
    for r in range(8):
        if r == 4:
            a("s_waitcnt lgkmcnt(0)")
        a(f"v_add_f32 v{vAcc+r}, v{vAcc+r}, v{vR+r}")
    def cv():
        for i in range(4):
            a(f"v_cvt_pk_bf16_f32 v{vR+i}, v{vAcc+2*i}, v{vAcc+2*i+1}")
    def up():
        for i in range(4):
            unpack(a, vAcc+2*i, vAcc+2*i+1, vR+i)
    cv(); up()
    for r in range(8):
        a(f"v_mul_f32 v{vAcc+r}, v{vAcc+r}, v{vG+r}")
    cv(); up()
    for r in range(8):
        a(f"v_add_f32 v{vAcc+r}, v{vAcc+r}, v{vF+r}")
    cv()
    a(f"buffer_store_dwordx4 {vr(vR,4)}, v{vXo}, {RB}, s{sXo} offen {OPT.get('oflag', '').replace('+', ' ')}")
    a("L_fin:")

def gemv_dma(a, sColA, vD):
    sRow0, sOff = T+2, T+3
    a(f"""v_lshlrev_b32 v{vD}, 4, v{vCH}
v_mul_u32_u24 v{vT0}, 13824, v{vR8}
v_add3_u32 v{vD}, v{vD}, v{vT0}, s{sColA}
s_mul_i32 s{sOff}, s{sRow0}, 13824
s_lshl_b32 m0, s{sRow0}, 7""")
    for t in range(18):
        a(f"""s_nop 0
buffer_load_dwordx4 v{vD}, {RA}, s{sOff} offen {NT} lds""")
        if t < 17:
            a(f"s_add_u32 s{sOff}, s{sOff}, {8*13824}\ns_add_u32 m0, m0, 1024")

def phase_owner(a):
    sColA, sB, sRow0, sOff, sO, sCs, sTb = T, T+1, T+2, T+3, T+4, T+5, T+6
    vD, vA0, vA1, vSil, vCs = V0, V0+1, V0+2, V0+3, V0+4
    vC = 24
    vST = 28
    vX = VOX
    vXN = 48
    vPt = 80
    vAcc = 112
    vWF = 144
    vSF = 160
    vM = 184
    a(f"""s_mov_b32 s{sO}, s2
s_cmp_ge_u32 s{sO}, 36
s_cbranch_scc1 L_o_pref
s_lshr_b32 s{sCs}, s{sO}, 1
s_and_b32 s{sB}, s{sO}, 1
s_waitcnt vmcnt(0)
s_barrier""")
    stamp(a, 6)
    vST = 32
    vPt = 112
    SM = [32, 33, 34, 35, 36, 37, 38, 39, 40, 41, 42, 43, 9, 10, 11, 12]
    a(f"""v_and_b32 v{vT3}, 7, v0
v_xor_b32 v{vT0}, s{S_W}, v{vT3}
v_lshlrev_b32 v{vT0}, 4, v{vT0}
v_lshl_add_u32 v{vT0}, v0, 7, v{vT0}""")
    for q in range(4):
        a(f"ds_read_b128 {vr(vX+4*q,4)}, v{vT0} offset:{q*8192}")
    a(f"""s_lshl_b32 s{T+9}, s{sB}, 12
s_add_u32 s{T+9}, s{T+9}, {F_STAT}
s_mul_i32 s{T+10}, s{sO}, {18*1024}
s_lshl_b32 s{sOff}, s{S_W}, 7
s_add_u32 s{T+10}, s{T+10}, s{sOff}
s_add_u32 s{T+10}, s{T+10}, {WS_PART}
s_add_u32 s{T+11}, s{T+10}, 8192
v_lshlrev_b32 v{vT1}, 4, v{vT3}
v_min_u32 v{vT2}, 1, v{vR8}
v_lshl_add_u32 v{vT2}, v{vT2}, 10, v{vT1}
v_add_u32 v{vT2}, 16384, v{vT2}
v_lshl_add_u32 v{vT1}, v{vR8}, 10, v{vT1}
v_cmp_gt_u32 vcc, 16, v0
v_mul_u32_u24 v{vCs}, {72*1024}, v{vHF}
v_lshl_add_u32 v{vCs}, v{vTok}, 4, v{vCs}
v_cndmask_b32 v{vA0}, 0, 1.0, vcc
v_bfe_u32 v{vA1}, v0, 2, 1
v_cvt_f32_u32 v{vA1}, v{vA1}
s_mul_i32 s{sOff}, s{sB}, {8*72*1024}
s_lshl_b32 s{T+12}, s{sCs}, 12
s_add_u32 s{sOff}, s{sOff}, s{T+12}
s_lshl_b32 s{T+12}, s{S_W}, 9
s_add_u32 s{sOff}, s{sOff}, s{T+12}
s_add_u32 s{sOff}, s{sOff}, {WS_H}
s_waitcnt lgkmcnt(0)""")
    def stl():
        for q in range(4):
            a(f"buffer_load_dwordx4 {vr(vST+4*q,4)}, v{vL16}, {WS}, s{T+9} offen offset:{1024*q} sc1")
    def pl():
        a(f"""buffer_load_dwordx4 {vr(vPt,4)}, v{vT1}, {WS}, s{T+10} offen sc1
buffer_load_dwordx4 {vr(vPt+4,4)}, v{vT1}, {WS}, s{T+11} offen sc1
buffer_load_dwordx4 {vr(vPt+8,4)}, v{vT2}, {WS}, s{T+10} offen sc1""")
    P = [(q, i) for q in range(4) for i in range(4)]
    lo = lambda q, i: vXN+8*q+2*i
    hi = lambda q, i: vXN+8*q+2*i+1
    xs = lambda q, i: vX+4*q+i
    def st_unpack():
        for q, i in P: unpack(a, lo(q,i), hi(q,i), xs(q,i))
    def st_cvt():
        for q, i in P: a(f"v_cvt_pk_bf16_f32 v{xs(q,i)}, v{lo(q,i)}, v{hi(q,i)}")
    def st_op(op, f):
        for q, i in P:
            a(f"{op} v{lo(q,i)}, v{lo(q,i)}, v{f(q,2*i)}\n{op} v{hi(q,i)}, v{hi(q,i)}, v{f(q,2*i+1)}")
    st_unpack()
    if 'st1' in OPT:
        a(f"v_and_b32 v{vM}, 3, v0\ns_lshl_b32 s{T+12}, s{S_W}, 9\nv_lshlrev_b32 v{vM}, 7, v{vM}\ns_add_u32 s{T+12}, s{T+12}, s{T+9}\nv_add_u32 v{vM}, 124, v{vM}")
        wpoll(a, vM, f"s{T+12}", vM+1)
        a("s_barrier")
    if OPT.get('st2', '1') == '1':
        a(f"""s_lshl_b32 s{T+12}, s{S_W}, 9
v_lshlrev_b32 v{vM}, 4, v{vTok}
v_add_u32 v{vM}, s{T+12}, v{vM}
v_add_u32 v{vM+1}, {L_RED}, v{vM}
v_add_u32 v{vM+2}, {L_RED}, v{vL16}""")
        gpoll(a, lambda: a(f"buffer_load_dwordx4 {vr(vST,4)}, v{vM}, {WS}, s{T+9} offen sc1"), [vST+1, vST+3], OPT.get('ssleep'))
        a(f"""ds_write_b128 v{vM+1}, {vr(vST,4)}
s_waitcnt lgkmcnt(0)
s_barrier""")
        for q in range(4):
            a(f"ds_read_b128 {vr(vST+4*q,4)}, v{vM+2} offset:{1024*q}")
        a("s_waitcnt lgkmcnt(0)")
    else:
        gpoll(a, stl, [vST+4*q+j for q in range(4) for j in (1, 3)], OPT.get('ssleep'))
    stamp(a, 1)
    st_op("v_sub_f32", lambda q, j: vST+4*q); st_cvt()
    st_unpack()
    pl()
    st_op("v_mul_f32", lambda q, j: vST+4*q+2); st_cvt()
    st_unpack()
    stamp(a, 2)
    lp = a.label("pp"); ld = a.label("ppd")
    a(f"""{lp}:
s_waitcnt vmcnt(0)
v_min3_u32 v{vM}, v{vPt+1}, v{vPt+3}, v{vPt+5}
v_max3_u32 v{vM+1}, v{vPt+1}, v{vPt+3}, v{vPt+5}
v_min3_u32 v{vM}, v{vM}, v{vPt+7}, v{vPt+9}
v_max3_u32 v{vM+1}, v{vM+1}, v{vPt+7}, v{vPt+9}
v_min_u32 v{vM}, v{vM}, v{vPt+11}
v_max_u32 v{vM+1}, v{vM+1}, v{vPt+11}
v_cmp_ne_u32 vcc, s{S_TAG}, v{vM}
v_cmp_ne_u32 s[{T+14}:{T+15}], s{S_TAG}, v{vM+1}
s_or_b64 vcc, vcc, s[{T+14}:{T+15}]
s_cbranch_vccz {ld}
s_sub_u32 s{S_TO}, s{S_TO}, 1
s_cmp_eq_u32 s{S_TO}, 0
s_cbranch_scc1 {ld}""")
    pl()
    a(f"""s_branch {lp}
{ld}:
s_max_u32 s{S_TO}, s{S_TO}, 1
v_add_f32 v{vPt}, v{vPt}, v{vPt+4}
v_add_f32 v{vPt+2}, v{vPt+2}, v{vPt+6}
v_fmac_f32 v{vPt}, v{vA0}, v{vPt+8}
v_fmac_f32 v{vPt+2}, v{vA0}, v{vPt+10}
s_nop 1
v_permlane32_swap_b32 v{vPt}, v{vPt+2}
s_nop 0
v_add_f32 v{vPt}, v{vPt}, v{vPt+2}
v_mov_b32 v{vPt+2}, v{vPt}
s_nop 1
v_permlane16_swap_b32 v{vPt}, v{vPt+2}
s_nop 0
v_add_f32 v{vPt}, v{vPt}, v{vPt+2}
s_nop 1
v_add_f32_dpp v{vPt}, v{vPt}, v{vPt} row_ror:8 row_mask:0xf bank_mask:0xf""")
    round_bf16(a, vPt)
    a(f"v_add_f32 v{vPt}, v{vPt}, v{vA1}")
    round_bf16(a, vPt)
    a("s_nop 0")
    for u in (4, 5, 6, 7, 0, 1, 2, 3):
        a(f"v_readlane_b32 s{SM[2*u]}, v{vPt}, {u}\nv_readlane_b32 s{SM[2*u+1]}, v{vPt}, {32+u}")
    stamp(a, 3)
    for q, i in P:
        a(f"v_mul_f32 v{lo(q,i)}, s{SM[8+2*i]}, v{lo(q,i)}\nv_mul_f32 v{hi(q,i)}, s{SM[8+2*i+1]}, v{hi(q,i)}")
    st_cvt(); st_unpack()
    for q in range(4):
        for i in range(4):
            a(f"v_add_f32 v{lo(q,i)}, s{SM[2*i]}, v{lo(q,i)}\nv_add_f32 v{hi(q,i)}, s{SM[2*i+1]}, v{hi(q,i)}")
        for i in range(4):
            a(f"v_cvt_pk_bf16_f32 v{xs(q,i)}, v{lo(q,i)}, v{hi(q,i)}")
        a(f"buffer_store_dwordx4 {vr(vX+4*q,4)}, v{vCs}, {WS}, s{sOff} offen sc1")
        if q < 3:
            a(f"s_add_u32 s{sOff}, s{sOff}, {2*72*1024}")
    stamp(a, 4)
    a(f"""s_mul_i32 s{sOff}, s{sB}, 18
s_add_u32 s{sOff}, s{sOff}, s{sCs}
s_lshl_b32 s{sOff}, s{sOff}, 7
s_add_u32 s{sOff}, s{sOff}, {F_H}""")
    set_flag(a, f"s{sOff}")
    stamp(a, 5)
    if 'ob' in OPT:
        a("s_waitcnt vmcnt(0)\ns_barrier")
    a("L_o_pref:")
    srd(a, R_A, S_WMOD, SZ_WMOD)
    srd(a, R_C, S_C, SZ_C)
    a(f"""s_sub_u32 s{sOff}, s{sO}, 20
s_cmp_ge_u32 s{sO}, 16
s_cselect_b32 s{sO}, s{sOff}, s{sO}
s_cselect_b32 s{sOff}, 16, 0
s_cmp_lt_u32 s{sO}, s{sOff}
s_cbranch_scc1 L_o_upd
s_cmp_ge_u32 s{sO}, 18
s_cbranch_scc1 L_o_upd""")
    if 'gd' in OPT:
        a(f"v_min_u32 v{vT0}, 35, v0\nv_lshlrev_b32 v{vT0}, 7, v{vT0}\ns_movk_i32 s{sOff}, {F_H}")
        poll(a, vT0, f"s{sOff}", vT1)
    a(f"""s_mul_i32 s{sRow0}, s{S_W}, 144
v_min_u32 v{vT0}, 17, v{vTok}
v_lshlrev_b32 v{vT0}, 4, v{vT0}
v_mul_u32_u24 v{vT1}, 2304, v{vHF}
v_add_u32 v{vCs}, v{vT0}, v{vT1}
s_lshl_b32 s{sOff}, s{sRow0}, 1
buffer_load_dwordx4 {vr(vC,4)}, v{vCs}, {RC}, s{sOff} offen
s_lshl_b32 s{sColA}, s{sO}, 7
s_add_u32 s{sColA}, s{sColA}, 4608""")
    gemv_dma(a, sColA, vD)
    a(f"""s_lshl_b32 s{sOff}, s{sRow0}, 7
v_add_u32 v{vA0}, s{sOff}, v{vB0}
v_add_u32 v{vA1}, s{sOff}, v{vB1}
s_waitcnt vmcnt(18)""")
    for i in range(4):
        unpack(a, vM+2*i, vM+2*i+1, vC+i)
    silu8(a, vM, vM+8)
    for i in range(4):
        a(f"v_cvt_pk_bf16_f32 v{vC+i}, v{vM+2*i}, v{vM+2*i+1}")
    a(f"""s_lshl_b32 s{sOff}, s{sRow0}, 1
s_add_u32 s{sOff}, s{sOff}, {L_SIL}
v_add_u32 v{vCs}, s{sOff}, v{vCs}
ds_write_b128 v{vCs}, {vr(vC,4)}
v_and_b32 v{vT0}, 1, v0
v_mul_u32_u24 v{vT0}, 2304, v{vT0}
v_lshl_add_u32 v{vT0}, v{vHF}, 4, v{vT0}
v_add_u32 v{vSil}, s{sOff}, v{vT0}
s_waitcnt lgkmcnt(0)""")
    for s in range(9):
        wf = vWF + 8*(s & 1); sf = vSF + 4*(s & 1)
        a(f"s_waitcnt vmcnt({18-2*(s+1)})")
        a(f"ds_read_b128 {vr(sf,4)}, v{vSil} offset:{s*32}")
        trreads(a, wf, vA0, vA1, s*2048)
        a("s_waitcnt lgkmcnt(2)")
        mfma(a, vAcc, wf, sf, s == 0)
        a("s_waitcnt lgkmcnt(0)")
        mfma(a, vAcc+16, wf+4, sf, s == 0)
    a(f"""v_and_b32 v{vT0}, 1, v0
v_lshlrev_b32 v{vT0}, 8, v{vT0}
v_lshl_add_u32 v{vT0}, v{vHF}, 5, v{vT0}
s_lshl_b32 s{sOff}, s{S_W}, 9
s_add_u32 s{sOff}, s{sOff}, {L_RED}
v_add_u32 v{vT0}, s{sOff}, v{vT0}
s_mov_b32 exec_lo, 3
s_mov_b32 exec_hi, 3
s_nop 8""")
    for cb in range(2):
        for q, off in enumerate((0, 16, 64, 80)):
            a(f"ds_write_b128 v{vT0}, {vr(vAcc+16*cb+4*q,4)} offset:{cb*128+off}")
    a(f"""s_mov_b64 exec, -1
s_waitcnt lgkmcnt(0)
s_barrier
s_lshr_b32 s{sOff}, s{S_W}, 2
s_lshl_b32 s{sOff}, s{sOff}, 8
s_add_u32 s{sOff}, s{sOff}, {L_RED}
v_lshlrev_b32 v{vT0}, 2, v0
v_add_u32 v{vT1}, s{sOff}, v{vT0}""")
    for w in range(8):
        a(f"ds_read_b32 v{vAcc+w}, v{vT1} offset:{w*512}")
    a("s_waitcnt lgkmcnt(0)")
    for w in range(1, 8):
        a(f"v_add_f32 v{vAcc}, v{vAcc}, v{vAcc+w}")
    round_bf16(a, vAcc)
    lsk = a.label("gsk")
    a(f"""s_and_b32 s{sOff}, s{S_W}, 3
s_cmp_lg_u32 s{sOff}, 0
s_cbranch_scc1 {lsk}
s_lshr_b32 s{T+9}, s{S_W}, 2
s_mul_i32 s{sOff}, s{T+9}, 4608
s_lshl_b32 s{sColA}, s{sO}, 8
s_add_u32 s{sOff}, s{sOff}, s{sColA}
s_add_u32 s{sOff}, s{sOff}, {WS_GATE}
buffer_store_dword v{vAcc}, v{vT0}, {WS}, s{sOff} offen sc1
{lsk}:
s_lshl_b32 s{sOff}, s{sO}, 7
s_add_u32 s{sOff}, s{sOff}, {F_G}""")
    set_flag(a, f"s{sOff}")
    stamp(a, 7)
    lp = a.label("ep"); ld = a.label("epd")
    a(f"""L_o_upd:
s_add_u32 s{S_SLOT}, s{S_SLOT}, 25
s_cmp_ge_u32 s{S_SLOT}, 27
s_cbranch_scc1 L_c_notu
s_cmp_lg_u32 s2, 0
s_cbranch_scc1 L_fin
s_lshl_b32 s{sOff}, s{S_W}, 6
v_add_u32 v{vT0}, s{sOff}, v0
v_min_u32 v{vT0}, 431, v{vT0}
v_lshlrev_b32 v{vT0}, 8, v{vT0}
s_mov_b32 s{sOff}, {F_QKV}
{lp}:
s_sleep 16
buffer_load_dword v{vT1}, v{vT0}, {WS}, s{sOff} offen sc1
buffer_load_dword v{vT2}, v{vT0}, {WS}, s{sOff} offen offset:128 sc1
s_waitcnt vmcnt(0)
v_cmp_ne_u32 vcc, s{S_TAG}, v{vT1}
v_cmp_ne_u32 s[{T+14}:{T+15}], s{S_TAG}, v{vT2}
s_or_b64 vcc, vcc, s[{T+14}:{T+15}]
s_cbranch_vccz {ld}
s_sub_u32 s{S_TO}, s{S_TO}, 1
s_cmp_lg_u32 s{S_TO}, 0
s_cbranch_scc1 {lp}
{ld}:
s_mov_b32 s{sOff}, {EPOCH}""")
    set_flag(a, f"s{sOff}")
    a("s_branch L_fin")

def epilogue(a):
    if STAMP and 'probe' in OPT:
        i = int(OPT['probe']); lo, hi = [int(x) for x in OPT.get('prole', '0:256').split(':')]
        a(f"""s_waitcnt vmcnt(0) lgkmcnt(0)
s_cmp_lg_u32 s{S_W}, {OPT.get('stw', 0)}
s_cbranch_scc1 L_end
s_memrealtime s[{S_ST+30}:{S_ST+31}]
s_waitcnt lgkmcnt(0)
s_sub_u32 s{T}, s{S_ST+2*i}, s{S_ST}
s_cmp_eq_u32 s{S_ST+2*i}, 0
s_cselect_b32 s{T}, 0, s{T}
s_cmp_lt_u32 s2, {lo}
s_cselect_b32 s{T}, 0, s{T}
s_cmp_ge_u32 s2, {hi}
s_cselect_b32 s{T}, 0, s{T}
s_lshl_b32 s{T}, s{T}, 2
s_add_u32 s{T}, s{T}, 5000
L_spin:
s_memrealtime s[{T+2}:{T+3}]
s_waitcnt lgkmcnt(0)
s_sub_u32 s{T+2}, s{T+2}, s{S_ST}
s_cmp_lt_u32 s{T+2}, s{T}
s_cbranch_scc1 L_spin""")
    elif STAMP:
        a(f"""s_waitcnt vmcnt(0) lgkmcnt(0)
s_cmp_lg_u32 s{S_W}, {OPT.get('stw', 0)}
s_cbranch_scc1 L_end
{CLK} s[{S_ST+30}:{S_ST+31}]
s_memtime s[98:99]
s_waitcnt lgkmcnt(0)
s_sub_u32 s98, s98, s96""")
        for i in range(16):
            a(f"v_mov_b32 v{16+i}, s{S_ST+2*i}")
        a(f"""v_mov_b32 v32, s98
s_lshl_b32 s{T}, s2, 7
s_add_u32 s{T}, s{T}, {WS_STAMP}
v_mov_b32 v1, 0
s_mov_b64 exec, 1""")
        for i in range(4):
            a(f"buffer_store_dwordx4 v[{16+4*i}:{19+4*i}], v1, {WS}, s{T} offen offset:{16*i}")
        a(f"buffer_store_dword v32, v1, {WS}, s{T} offen offset:64")
    a("L_end:\ns_endpgm")

def main():
    a = Asm()
    a.raw("""; DiT adaLN attention block (B=2, N=256, D=1152) as ONE persistent launch, 256 workgroups x 8 waves (one per CU).
; Written by a generator script of my own (hand-designed schedule, no compiler output).
;  stage 0 : 162 WGs: split-K pieces of silu(c) @ w_mod[:, :2D] -> tagged granules; 64 WGs: LayerNorm row statistics
; @launch grid=(256,1,1) block=(512,1,1) lds=163840""")
    a.raw('.amdgcn_target "amdgcn-amd-amdhsa--gfx950"\n.text')
    prologue(a)
    phase_bc(a)
    NOD[0] = True
    phase_d(a)
    NOD[0] = False
    epilogue(a)
    a("L_owner:")
    phase_owner(a)
    a.raw(".p2align 4\nL_codeend:")
    out = a.text() + kd(NAME, 244, 102)
    path = [x for x in sys.argv[1:] if not x.startswith('--')][0]
    open(path, 'w').write(out)
main()
```

```python
import sys, struct
from asmlib import *

OPT = dict(la='12', nt='', cpf='1', umap='4', lfull='1', pack='0', ew='3')
for a_ in sys.argv[1:]:
    if a_.startswith('--'):
        k, _, v = a_[2:].partition('=')
        OPT[k] = v
STAMP = 'stamp' in OPT
NT = OPT['nt']
PF = OPT.get('pf', 'sc1').replace('+', ' ')
SF = OPT.get('sf', 'sc1').replace('+', ' ')
NTW = 'nt' if 'ntw' in OPT else ''
NTO = 'nt' if 'nto' in OPT else ''
NTM = 'nt' if 'ntm' in OPT else ''
CLK = "s_memtime" if 'cyc' in OPT else "s_memrealtime"

NAME = "standalone__dit_adaln_block__diffusion_kernel"
D = 1152
SZ_X = 512*D*2; SZ_C = 2*D*2; SZ_WQKV = D*3*D*2; SZ_WO = D*D*2; SZ_WMOD = D*6*D*2
SZ_WS = 1 << 28
F_STAT = 0x0
F_H = 0x2000
F_L = 0x4000
F_U = 0x760000
F_G = 0x4000
F_QKV = 0x740000
EPOCH = 0x13000
WS_GATE = 0x14000
WS_H = 0x20000
WS_QKV = 0x140000
WS_L = 0x680000
WS_U = 0x550000
WS_PART = 0x4A0000
WS_STAMP = 0x700000
F_LH = 0x720000
LOG2E = 0x3fb8aa3b

S_W, S_TAG, S_G, S_SLOT, S_TO, S_TK = 3, 4, 5, 6, 7, 8
S_X, S_C, S_WQKV, S_WO, S_WMOD, S_OUT, S_DBG, S_WS = 16, 18, 20, 22, 24, 26, 28, 30
R_A, R_B, R_C, R_WS = 32, 36, 40, 44
T = 48
S_ST = 64
WS = f"s[{R_WS}:{R_WS+3}]"
RA = f"s[{R_A}:{R_A+3}]"; RB = f"s[{R_B}:{R_B+3}]"; RC = f"s[{R_C}:{R_C+3}]"
vL16, vP16, vB0, vB1, vCH, vR8, vHF, vTok = 1, 2, 3, 4, 5, 6, 7, 8
vT0, vT1, vT2, vT3 = 9, 10, 11, 12
vTAG = 13
V0 = 16

L_MISC = 147456
L_SIL = L_MISC
L_RED = L_SIL + 4608
L_FIN = L_RED + 4096
L_ROLE = L_FIN + 4096
L_STC = L_ROLE + 16
L_GATE = 36864
NO = 5

WSB = int(OPT.get('wsb', '0'), 0)
def srd(a, r, ptr, size):
    if r == R_WS and WSB:
        a(f"""s_add_u32 s{r}, s{ptr}, {hex(WSB)}
s_addc_u32 s{r+1}, s{ptr+1}, 0
s_and_b32 s{r+1}, s{r+1}, 0xffff
s_mov_b32 s{r+2}, {hex(size - WSB)}
s_mov_b32 s{r+3}, 0x20000""")
        return
    a(f"""s_mov_b32 s{r}, s{ptr}
s_and_b32 s{r+1}, s{ptr+1}, 0xffff
s_mov_b32 s{r+2}, {hex(size)}
s_mov_b32 s{r+3}, 0x20000""")

NOD = [False]
def stamp(a, i):
    if STAMP and not (NOD[0] and 'nod' in OPT):
        a(f"{CLK} s[{S_ST+2*i}:{S_ST+2*i+1}]")

def unpack(a, lo, hi, src):
    a(f"v_lshlrev_b32 v{lo}, 16, v{src}\nv_and_b32 v{hi}, 0xffff0000, v{src}")

def round_bf16(a, v):
    a(f"v_cvt_pk_bf16_f32 v{v}, v{v}, v{v}\nv_lshlrev_b32 v{v}, 16, v{v}")

HACK = [0]
def mfma(a, acc, A, B, first=False):
    if 'hack16' in OPT and not first:
        HACK[0] += 1
        o = 8*((HACK[0] >> 1) & 1)
        for j in range(2):
            a(f"v_mfma_f32_16x16x32_bf16 {vr(acc+o+4*j,4)}, {vr(A,4)}, {vr(B,4)}, {vr(acc+o+4*j,4)}")
        return
    c = "0" if first else vr(acc, 16)
    a(f"v_mfma_f32_32x32x16_bf16 {vr(acc,16)}, {vr(A,4)}, {vr(B,4)}, {c}")

def wrap_add(a, s, step, s_end, s_start):
    a(f"""s_add_u32 s{s}, s{s}, {step}
s_cmp_eq_u32 s{s}, s{s_end}
s_cselect_b32 s{s}, s{s_start}, s{s}""")

def mod9(a, dst, src, tmp):
    a(f"""s_mul_i32 s{tmp}, s{src}, 57
s_lshr_b32 s{tmp}, s{tmp}, 9
s_mul_i32 s{tmp}, s{tmp}, 9
s_sub_u32 s{dst}, s{src}, s{tmp}""")

def poll(a, vaddr, soff, vtmp):
    l = a.label("poll"); d = a.label("polld")
    a(f"""s_cmp_lg_u32 s{S_W}, 0
s_cbranch_scc1 {d}
{l}:
buffer_load_dword v{vtmp}, v{vaddr}, {WS}, {soff} offen {PF}
s_waitcnt vmcnt(0)
v_cmp_ne_u32 vcc, s{S_TAG}, v{vtmp}
s_cbranch_vccz {d}
s_sleep {OPT.get('sleep', 2)}
s_sub_u32 s{S_TO}, s{S_TO}, 1
s_cmp_lg_u32 s{S_TO}, 0
s_cbranch_scc1 {l}
s_mov_b32 s{S_TO}, 1
{d}:
s_barrier""")

def gpoll(a, loads, tagregs, slp=None):
    l = a.label("gp"); d = a.label("gpd")
    a(f"{l}:")
    loads()
    a(f"s_waitcnt vmcnt(0)\nv_cmp_ne_u32 vcc, s{S_TAG}, v{tagregs[0]}")
    for r in tagregs[1:]:
        a(f"v_cmp_ne_u32 s[{T+14}:{T+15}], s{S_TAG}, v{r}\ns_or_b64 vcc, vcc, s[{T+14}:{T+15}]")
    a(f"""s_cbranch_vccz {d}
s_sleep {slp if slp is not None else OPT.get('gsleep', 2)}
s_sub_u32 s{S_TO}, s{S_TO}, 1
s_cmp_lg_u32 s{S_TO}, 0
s_cbranch_scc1 {l}
s_mov_b32 s{S_TO}, 1
{d}:""")

def raw_flag(a, soff):
    a(f"""v_mov_b32 v{vT3}, 0
s_mov_b64 exec, 1
buffer_store_dword v{vTAG}, v{vT3}, {WS}, {soff} offen {SF}
s_mov_b64 exec, -1""")

def set_flag(a, soff, younger=0):
    d = a.label("fl")
    a(f"""s_waitcnt vmcnt({younger})
s_barrier
s_cmp_lg_u32 s{S_W}, 0
s_cbranch_scc1 {d}""")
    raw_flag(a, soff)
    a(f"{d}:")

def trreads(a, wf, b0, b1, off):
    a(f"""ds_read_b64_tr_b16 {vr(wf,2)}, v{b0} offset:{off}
ds_read_b64_tr_b16 {vr(wf+2,2)}, v{b0} offset:{off+512}
ds_read_b64_tr_b16 {vr(wf+4,2)}, v{b1} offset:{off}
ds_read_b64_tr_b16 {vr(wf+6,2)}, v{b1} offset:{off+512}""")

def dma_tile(a, srdname, vD, pitch, s_rot, flags, n0=0, n1=18):
    sN, sO = T+10, T+11
    if s_rot is None:
        a(f"s_add_u32 s{sN}, s{S_W}, {8*n0}")
    else:
        a(f"s_lshl_b32 s{sN}, s{s_rot}, 3\ns_add_u32 s{sN}, s{sN}, s{S_W}")
    for n in range(n0, n1):
        a(f"""s_lshl_b32 m0, s{sN}, 10
s_mul_i32 s{sO}, s{sN}, {8*pitch}
buffer_load_dwordx4 v{vD}, {srdname}, s{sO} offen {flags} lds""")
        if n < n1-1:
            a(f"s_add_u32 s{sN}, s{sN}, 8")
            if s_rot is not None:
                a(f"""s_sub_u32 s{sO}, s{sN}, 144
s_cmp_ge_u32 s{sN}, 144
s_cselect_b32 s{sN}, s{sO}, s{sN}""")

def wave_sum(a, v, sdst):
    for m in ("quad_perm:[1,0,3,2]", "quad_perm:[2,3,0,1]", "row_half_mirror", "row_mirror"):
        a(f"s_nop 1\nv_add_f32_dpp v{v}, v{v}, v{v} {m} row_mask:0xf bank_mask:0xf")
    a(f"s_nop 1\nv_add_f32_dpp v{v}, v{v}, v{v} row_bcast:15 row_mask:0xa bank_mask:0xf")
    a(f"s_nop 1\nv_add_f32_dpp v{v}, v{v}, v{v} row_bcast:31 row_mask:0xc bank_mask:0xf")
    a(f"s_nop 1\nv_readlane_b32 s{sdst}, v{v}, 63\ns_nop 1")

def silu8(a, f, t):
    for i in range(8):
        a(f"v_mul_f32 v{t+i}, 0xbfb8aa3b, v{f+i}")
    for i in range(8):
        a(f"v_exp_f32 v{t+i}, v{t+i}")
    for i in range(8):
        a(f"v_add_f32 v{t+i}, 1.0, v{t+i}")
    for i in range(8):
        a(f"v_rcp_f32 v{t+i}, v{t+i}")
    for i in range(8):
        a(f"v_mul_f32 v{f+i}, v{f+i}, v{t+i}")

def lane_consts(a):
    a(f"""v_lshrrev_b32 v{vR8}, 3, v0
v_and_b32 v{vP16}, 0x33, v0
v_and_b32 v{vT0}, 4, v0
v_lshl_or_b32 v{vP16}, v{vT0}, 1, v{vP16}
v_and_b32 v{vT0}, 8, v0
v_lshrrev_b32 v{vT0}, 1, v{vT0}
v_or_b32 v{vP16}, v{vP16}, v{vT0}
v_lshlrev_b32 v{vP16}, 4, v{vP16}
v_lshrrev_b32 v{vT0}, 2, v0
v_and_b32 v{vT0}, 4, v{vT0}
v_and_b32 v{vCH}, 7, v0
v_xor_b32 v{vCH}, v{vCH}, v{vT0}
v_lshlrev_b32 v{vB0}, 10, v{vHF}
v_and_b32 v{vT0}, 12, v0
v_lshl_or_b32 v{vB0}, v{vT0}, 5, v{vB0}
v_and_b32 v{vT0}, 8, v0
v_lshl_or_b32 v{vB0}, v{vT0}, 3, v{vB0}
v_and_b32 v{vT0}, 16, v0
v_lshl_or_b32 v{vB0}, v{vT0}, 1, v{vB0}
v_and_b32 v{vT0}, 1, v0
v_lshl_or_b32 v{vB0}, v{vT0}, 4, v{vB0}
v_and_b32 v{vT0}, 2, v0
v_lshl_or_b32 v{vB0}, v{vT0}, 2, v{vB0}
v_xor_b32 v{vB1}, 64, v{vB0}""")

def get_tag(a):
    a(f"""s_waitcnt lgkmcnt(0)
s_mul_i32 s{S_TAG}, s{S_TAG}, 1664525
s_add_u32 s{S_TAG}, s{S_TAG}, 1013904223
v_mov_b32 v{vTAG}, s{S_TAG}""")

def wpoll(a, vaddr, soff, vtmp):
    gpoll(a, lambda: a(f"buffer_load_dword v{vtmp}, v{vaddr}, {WS}, {soff} offen {PF}"), [vtmp])

S_BCT, S_BRT = 11, 12
vDW = 15
R0, R1 = [int(x) for x in OPT.get('wrot', '36,28').split(',')]
assert R0 + 3*R1 + 7 < 144
def b_setup(a):
    srd(a, R_B, S_WQKV, SZ_WQKV)
    a(f"""s_mul_i32 s{S_BCT}, s{S_G}, 27
s_add_u32 s{S_BCT}, s{S_BCT}, s{S_SLOT}
s_sub_u32 s{S_BCT}, s{S_BCT}, {NO}
s_and_b32 s{S_BRT}, s{S_BCT}, 3
s_lshr_b32 s{S_BCT}, s{S_BCT}, 2
s_mul_i32 s13, s{S_BRT}, {R1}
s_add_u32 s{T+14}, s13, {R0}
s_cmp_lg_u32 s{S_BRT}, 0
s_cselect_b32 s13, s{T+14}, s13
s_add_u32 s13, s13, s{S_W}
v_lshlrev_b32 v{vDW}, 4, v{vCH}
v_mul_u32_u24 v{vT0}, 6912, v{vR8}
s_lshl_b32 s{T+14}, s{S_BCT}, 7
v_add3_u32 v{vDW}, v{vDW}, v{vT0}, s{T+14}""")

THR = f"s_waitcnt vmcnt({OPT['thr']})" if 'thr' in OPT else ''
THRO = f"s_waitcnt vmcnt({OPT['thro']})" if 'thro' in OPT else ''
def w_dma(a, n):
    for i in range(n):
        a(f"""s_lshl_b32 m0, s13, 10
s_mul_i32 s{T+14}, s13, {8*6912}
buffer_load_dwordx4 v{vDW}, {RB}, s{T+14} offen {NTW} lds
{THR}
s_add_u32 s13, s13, 8
s_sub_u32 s{T+14}, s13, 144
s_cmp_ge_u32 s13, 144
s_cselect_b32 s13, s{T+14}, s13""")

EW = int(OPT.get('ew', 0))
def prologue(a):
    a.raw(f".globl {NAME}\n.p2align 8\n.type {NAME},@function\n{NAME}:")
    a(f"""s_cmp_ge_u32 s2, 256
s_cbranch_scc1 L_end
s_load_dwordx16 s[16:31], s[0:1], 0""")
    if STAMP:
        a(f"{CLK} s[{S_ST}:{S_ST+1}]\ns_memtime s[96:97]")
        for i in range(1, 16):
            a(f"s_mov_b32 s{S_ST+2*i}, 0")
    a(f"""v_lshrrev_b32 v1, 6, v0
v_and_b32 v0, 63, v0
s_and_b32 s{S_G}, s2, 7
v_readfirstlane_b32 s{S_W}, v1
s_lshr_b32 s{S_SLOT}, s2, 3
s_mov_b32 s{S_TO}, 0x40000
v_lshlrev_b32 v{vL16}, 4, v0
v_lshrrev_b32 v{vHF}, 5, v0
v_and_b32 v{vTok}, 31, v0
s_mov_b32 s{S_TK}, s2""")
    if OPT.get('cpf') == '1':
        a(f"""s_cmp_lg_u32 s{S_W}, 7
s_cbranch_scc1 L_nocpf
s_getpc_b64 s[{T}:{T+1}]
L_pc:
s_sub_u32 s{T}, s{T}, L_pc-{NAME}
s_subb_u32 s{T+1}, s{T+1}, 0
s_lshl_b32 s{T+2}, s{S_SLOT}, 10
v_add_u32 v{vT0}, s{T+2}, v{vL16}
v_min_u32 v{vT0}, L_codeend-{NAME}-16, v{vT0}
global_load_dwordx4 v[240:243], v{vT0}, s[{T}:{T+1}]
L_nocpf:""")
    if OPT.get('lead', '1') == '1':
        a(f"""s_mul_i32 s{T}, s{S_G}, 27
s_add_u32 s{T}, s{T}, s{S_SLOT}
s_sub_u32 s{T}, s{T}, {NO}
s_lshr_b32 s{T+1}, s{T}, 2
s_sub_u32 s{T+2}, s{T}, s{T+1}
s_add_u32 s{T+2}, s{T+2}, 93
s_and_b32 s{T+3}, s{T+1}, 1
s_mul_i32 s{T+3}, s{T+3}, 27
s_lshr_b32 s{T+1}, s{T+1}, 1
s_add_u32 s{T+1}, s{T+1}, s{T+3}
s_add_u32 s{T+1}, s{T+1}, 40
s_and_b32 s{T}, s{T}, 3
s_cselect_b32 s{T+1}, s{T+2}, s{T+1}
s_cmp_ge_u32 s2, 40
s_cselect_b32 s{S_TK}, s{T+1}, s2""")
    sP, sCg, sKs, sOff, sRow = T, T+1, T+2, T+3, T+4
    a(f"""s_cmp_ge_u32 s{S_TK}, 64
s_cbranch_scc1 L_s0_nst""")
    vRW = 16
    a(f"""s_lshl_b32 s{sOff}, s{S_TK}, 3
s_add_u32 s{sOff}, s{sOff}, s{S_W}
s_mul_i32 s{sOff}, s{sOff}, 2304
v_mov_b32 v{vRW+8}, 0
v_mov_b32 v{vRW+9}, 0
v_mov_b32 v{vRW+10}, 0
v_mov_b32 v{vRW+11}, 0
s_and_b32 s{T+13}, s2, 1
s_lshr_b32 s{T+12}, s2, 1
s_lshl_b32 s{T+13}, s{T+13}, 3
s_add_u32 s{T+13}, s{T+13}, s{S_W}
v_lshrrev_b32 v{vR8}, 3, v0
v_mul_u32_u24 v{vT0}, 2304, v{vR8}
v_and_b32 v{vT1}, 7, v0
v_xor_b32 v{vT1}, v{vT1}, v{vR8}
v_lshl_add_u32 v{vT0}, v{vT1}, 4, v{vT0}
s_mul_i32 s{T+13}, s{T+13}, {32*2304}
s_lshl_b32 s{T+12}, s{T+12}, 7
s_add_u32 s{T+13}, s{T+13}, s{T+12}
s_lshl_b32 m0, s{S_W}, 12
s_waitcnt lgkmcnt(0)""")
    srd(a, R_C, S_X, SZ_X)
    a(f"""buffer_load_dwordx4 {vr(vRW,4)}, v{vL16}, {RC}, s{sOff} offen
buffer_load_dwordx4 {vr(vRW+4,4)}, v{vL16}, {RC}, s{sOff} offen offset:1024
s_mov_b64 exec, 0xffff
buffer_load_dwordx4 {vr(vRW+8,4)}, v{vL16}, {RC}, s{sOff} offen offset:2048
s_mov_b64 exec, -1
s_mov_b32 s{S_TAG}, {EPOCH + WSB}\ns_load_dword s{S_TAG}, s[{S_WS}:{S_WS+1}], s{S_TAG}""")
    a(f"s_cmp_ge_u32 s2, 36\ns_cbranch_scc1 L_s0_stats")
    if OPT.get('xb', '1') == '1':
        a("s_barrier")
    for q in range(4):
        a(f"buffer_load_dwordx4 v{vT0}, {RC}, s{T+13} offen lds")
        if q < 3:
            a(f"s_add_u32 s{T+13}, s{T+13}, {8*2304}\ns_add_u32 m0, m0, 1024\ns_nop 0")
    a(f"""s_branch L_s0_stats
L_s0_nst:
s_cmp_lt_u32 s{S_TK}, 94
s_cbranch_scc1 L_s0_none""")
    vW = 16
    vC = 32
    vSc = 36
    vTm = 44
    vAc = 52
    a(f"""s_sub_u32 s{sP}, s{S_TK}, 94
s_mul_i32 s{sKs}, s{sP}, 57
s_lshr_b32 s{sKs}, s{sKs}, 9
s_mul_i32 s{sCg}, s{sKs}, 9
s_sub_u32 s{sCg}, s{sP}, s{sCg}
s_lshl_b32 s{sRow}, s{sKs}, 3
s_add_u32 s{sRow}, s{sRow}, s{S_W}
s_lshl_b32 s{sRow}, s{sRow}, 3
v_and_b32 v{vT0}, 15, v0
v_lshlrev_b32 v{vT0}, 4, v{vT0}
v_bfe_u32 v{vT1}, v0, 4, 1
v_mul_u32_u24 v{vT1}, 2304, v{vT1}
v_mul_u32_u24 v{vT2}, {4*13824}, v{vHF}
v_add3_u32 v{vT0}, v{vT0}, v{vT1}, v{vT2}
v_lshlrev_b32 v{vT1}, 3, v{vHF}
s_lshl_b32 s{T+5}, s{sRow}, 1
s_mul_i32 s{sOff}, s{sRow}, 13824
s_lshl_b32 s{sRow}, s{sCg}, 8
s_add_u32 s{sOff}, s{sOff}, s{sRow}
s_waitcnt lgkmcnt(0)""")
    srd(a, R_A, S_WMOD, SZ_WMOD)
    srd(a, R_C, S_C, SZ_C)
    a(f"""buffer_load_dwordx2 {vr(vC,2)}, v{vT1}, {RC}, s{T+5} offen
buffer_load_dwordx2 {vr(vC+2,2)}, v{vT1}, {RC}, s{T+5} offen offset:2304""")
    for n in range(4):
        a(f"buffer_load_dwordx4 {vr(vW+4*n,4)}, v{vT0}, {RA}, s{sOff} offen {NTM}")
        if n < 3:
            a(f"s_add_u32 s{sOff}, s{sOff}, 13824")
    a(f"s_mov_b32 s{S_TAG}, {EPOCH + WSB}\ns_load_dword s{S_TAG}, s[{S_WS}:{S_WS+1}], s{S_TAG}")
    srd(a, R_WS, S_WS, SZ_WS)
    lane_consts(a)
    b_setup(a)
    if EW:
        a("s_barrier")
        w_dma(a, EW)
    a(f"s_waitcnt vmcnt({4+EW})")
    for i in range(4):
        unpack(a, vSc+2*i, vSc+2*i+1, vC+i)
    silu8(a, vSc, vTm)
    for i in range(4):
        a(f"v_cvt_pk_bf16_f32 v{vC+i}, v{vSc+2*i}, v{vSc+2*i+1}")
    for i in range(4):
        unpack(a, vSc+2*i, vSc+2*i+1, vC+i)
    a(f"""s_lshl_b32 s{sOff}, s{S_W}, 11
s_add_u32 s{sOff}, s{sOff}, {L_MISC}
v_lshlrev_b32 v{vT2}, 5, v0
v_add_u32 v{vT2}, s{sOff}, v{vT2}
s_lshr_b32 s{sOff}, s{S_W}, 1
s_lshl_b32 s{sOff}, s{sOff}, 10
s_and_b32 s{sRow}, s{S_W}, 1
s_lshl_b32 s{sP}, s{sRow}, 8
s_add_u32 s{sOff}, s{sOff}, s{sP}
s_add_u32 s{sOff}, s{sOff}, {L_MISC}
v_lshlrev_b32 v{vT3}, 3, v{vTok}
v_lshl_add_u32 v{vT3}, v{vHF}, 9, v{vT3}
v_add_u32 v{vT3}, s{sOff}, v{vT3}
s_lshl_b32 s{sP}, s{sCg}, 1
s_add_u32 s{sP}, s{sP}, s{sRow}
s_lshl_b32 s{sP}, s{sP}, 1
s_lshr_b32 s{sOff}, s{S_W}, 1
s_add_u32 s{sP}, s{sP}, s{sOff}
s_mul_i32 s{sP}, s{sP}, 18
s_add_u32 s{sP}, s{sP}, s{sKs}
s_lshl_b32 s{sP}, s{sP}, 10
s_add_u32 s{sP}, s{sP}, {WS_PART}
v_and_b32 v{vT0}, 28, v0
v_lshlrev_b32 v{vT0}, 5, v{vT0}
v_lshl_add_u32 v{vT0}, v{vHF}, 6, v{vT0}
v_and_b32 v{vT1}, 3, v0
v_lshl_add_u32 v{vT0}, v{vT1}, 4, v{vT0}""")
    get_tag(a)
    E2 = int(OPT.get('ew2', 0)); E2AT = int(OPT.get('ew2at', 3))
    for n in range(4):
        a(f"s_waitcnt vmcnt({3-n+EW+(E2 if n > E2AT else 0)})")
        if n == E2AT and E2: w_dma(a, E2)
        if n == 3: stamp(a, 8)
        for i in range(4):
            unpack(a, vTm+2*i, vTm+2*i+1, vW+4*n+i)
        for b in range(2):
            for j in range(8):
                op = "v_mul_f32" if n == 0 else "v_fmac_f32"
                a(f"{op} v{vAc+8*b+j}, v{vTm+j}, v{vSc+4*b+n}")
    a("s_nop 1")
    for j in range(8):
        a(f"v_permlane32_swap_b32 v{vAc+j}, v{vAc+8+j}")
    for j in range(8):
        a(f"v_add_f32 v{vAc+j}, v{vAc+j}, v{vAc+8+j}")
    lsk = a.label("pubsk")
    a(f"""ds_write_b128 v{vT2}, {vr(vAc,4)}
ds_write_b128 v{vT2}, {vr(vAc+4,4)} offset:16
s_waitcnt lgkmcnt(0)
s_barrier
s_cmp_ge_u32 s{S_W}, 4
s_cbranch_scc1 {lsk}""")
    for w in range(8):
        a(f"ds_read_b64 {vr(vW+2*w,2)}, v{vT3} offset:{w*2048}")
    a(f"""v_mov_b32 v{vAc+1}, v{vTAG}
v_mov_b32 v{vAc+3}, v{vTAG}
s_waitcnt lgkmcnt(4)
v_add_f32 v{vW}, v{vW}, v{vW+2}
v_add_f32 v{vW+1}, v{vW+1}, v{vW+3}
v_add_f32 v{vW+4}, v{vW+4}, v{vW+6}
v_add_f32 v{vW+5}, v{vW+5}, v{vW+7}
s_waitcnt lgkmcnt(0)
v_add_f32 v{vW+8}, v{vW+8}, v{vW+10}
v_add_f32 v{vW+9}, v{vW+9}, v{vW+11}
v_add_f32 v{vW+12}, v{vW+12}, v{vW+14}
v_add_f32 v{vW+13}, v{vW+13}, v{vW+15}
v_add_f32 v{vW}, v{vW}, v{vW+4}
v_add_f32 v{vW+1}, v{vW+1}, v{vW+5}
v_add_f32 v{vW+8}, v{vW+8}, v{vW+12}
v_add_f32 v{vW+9}, v{vW+9}, v{vW+13}
v_add_f32 v{vAc}, v{vW}, v{vW+8}
v_add_f32 v{vAc+2}, v{vW+1}, v{vW+9}
buffer_store_dwordx4 {vr(vAc,4)}, v{vT0}, {WS}, s{sP} offen sc1
{lsk}:""")
    stamp(a, 9)
    if OPT.get('pack') == '1':
        a("s_waitcnt vmcnt(0)")
    if 'nopb' not in OPT:
        a("s_barrier")
    w_dma(a, 18-EW-E2)
    a("s_branch L_b")
    a("L_s0_stats:")
    srd(a, R_WS, S_WS, SZ_WS)
    lane_consts(a)
    lnx = a.label("nox"); ljx = a.label("jx")
    get_tag(a)
    a(f"s_cmp_ge_u32 s2, 36\ns_cbranch_scc1 {lnx}\ns_waitcnt vmcnt(4)\ns_branch {ljx}\n{lnx}:\ns_waitcnt vmcnt(0)\n{ljx}:")
    stamp(a, 8)
    s1, s2_, q1, q2 = 32, 33, 34, 35
    a(f"s_mov_b32 s{T+12}, 0x3f803f80")
    for i in range(0, 12, 2):
        c = lambda r: "0" if i == 0 else f"v{r}"
        a(f"""v_dot2_f32_bf16 v{s1}, v{vRW+i}, s{T+12}, {c(s1)}
v_dot2_f32_bf16 v{q1}, v{vRW+i}, v{vRW+i}, {c(q1)}
v_dot2_f32_bf16 v{s2_}, v{vRW+i+1}, s{T+12}, {c(s2_)}
v_dot2_f32_bf16 v{q2}, v{vRW+i+1}, v{vRW+i+1}, {c(q2)}""")
    a(f"""s_nop 2
v_add_f32 v{s1}, v{s1}, v{s2_}
v_add_f32 v{q1}, v{q1}, v{q2}""")
    for m in ("quad_perm:[1,0,3,2] row_mask:0xf", "quad_perm:[2,3,0,1] row_mask:0xf", "row_half_mirror row_mask:0xf", "row_mirror row_mask:0xf", "row_bcast:15 row_mask:0xa", "row_bcast:31 row_mask:0xc"):
        a(f"s_nop 0\nv_add_f32_dpp v{s1}, v{s1}, v{s1} {m} bank_mask:0xf\nv_add_f32_dpp v{q1}, v{q1}, v{q1} {m} bank_mask:0xf")
    g = 36
    a(f"""v_mul_f32 v{g}, 0x3a638e39, v{s1}
v_mul_f32 v{g+2}, 0x3a638e39, v{q1}
v_fma_f32 v{g+2}, -v{g}, v{g}, v{g+2}
v_max_f32 v{g+2}, 0, v{g+2}""")
    round_bf16(a, g+2)
    a(f"v_add_f32 v{g+2}, 0x3727c5ac, v{g+2}")
    round_bf16(a, g+2)
    a(f"v_sqrt_f32 v{g+2}, v{g+2}")
    round_bf16(a, g)
    round_bf16(a, g+2)
    lsk = a.label("stsk")
    a(f"""v_rcp_f32 v{g+2}, v{g+2}
v_mov_b32 v{g+1}, v{vTAG}
v_mov_b32 v{g+3}, v{vTAG}
s_lshl_b32 s{T+12}, s{S_W}, 4
s_add_u32 s{T+12}, s{T+12}, {L_STC}
v_mov_b32 v{vT0}, s{T+12}
s_mov_b32 exec_lo, 0
s_brev_b32 exec_hi, 1
ds_write_b128 v{vT0}, {vr(g,4)}
s_mov_b64 exec, -1
s_lshl_b32 s{T+12}, s{S_TK}, 7
s_add_u32 s{T+12}, s{T+12}, {F_STAT}
v_add_u32 v{vT0}, {L_STC}, v{vL16}
s_waitcnt lgkmcnt(0)
s_barrier
s_cmp_lg_u32 s{S_W}, 0
s_cbranch_scc1 {lsk}
s_mov_b64 exec, 0xff
ds_read_b128 {vr(g,4)}, v{vT0}
s_waitcnt lgkmcnt(0)
buffer_store_dwordx4 {vr(g,4)}, v{vL16}, {WS}, s{T+12} offen sc1
s_mov_b64 exec, -1
{lsk}:""")
    stamp(a, 9)
    a(f"s_cmp_lt_u32 s{S_SLOT}, {NO}\ns_cbranch_scc1 L_owner")
    if 'nopb' not in OPT:
        a("s_barrier")
    a("s_branch L_s0_w")
    a("L_s0_none:")
    a(f"s_waitcnt lgkmcnt(0)\ns_mov_b32 s{S_TAG}, {EPOCH + WSB}\ns_load_dword s{S_TAG}, s[{S_WS}:{S_WS+1}], s{S_TAG}")
    srd(a, R_WS, S_WS, SZ_WS)
    lane_consts(a)
    get_tag(a)
    if 'cw' in OPT:
        srd(a, R_C, S_C, SZ_C)
        a(f"buffer_load_dword v{vT1}, v{vL16}, {RC}, 0 offen\ns_waitcnt vmcnt(0)")
    a("L_s0_w:")
    b_setup(a)
    w_dma(a, 18)

VOX = 96

S_UCT, S_UTB = 9, 10
vDU = 14
KE = int(OPT.get('ke', 12))
def wo_dma(a, n0, n1):
    a(f"s_add_u32 s{T+10}, s{S_W}, {4*n0-4}")
    for n in range(n0, n1):
        a(f"""s_lshl_b32 m0, s{T+10}, 10
s_mul_i32 s{T+11}, s{T+10}, {8*2304}
buffer_load_dwordx4 v{vDU}, {RB}, s{T+11} offen lds""")
        if n < n1-1:
            a(f"s_add_u32 s{T+10}, s{T+10}, 4")

def gemm_loop(a, nsteps, LA, RING, vAcc, vWF, vH, vA0, vA1, vaddr, sH, lds_first, w_is_a, pre=None, rot=None, bar_at=None):
    WA = int(OPT.get('wa', 2))
    state = dict(issued=0)
    if rot:
        sR, sHs, sHe, sLo, sZ, sLe, vC0, vC1 = rot
        a(f"""s_mov_b32 s{sHs}, s{sH}
s_add_u32 s{sHe}, s{sH}, {nsteps*1024}
s_lshl_b32 s{sLo}, s{sR}, 12
s_add_u32 s{sH}, s{sH}, s{sLo}
s_lshl_b32 s{sLo}, s{sR}, 13
s_mov_b32 s{sZ}, 0
s_mov_b32 s{sLe}, {nsteps*2048}""")
    def hload():
        s = state['issued']
        a(f"buffer_load_dwordx4 {vr(vH+4*(s % RING),4)}, v{vaddr}, {WS}, s{sH} offen offset:{(s&3)*1024} sc1")
        if (s & 3) == 3 and s < nsteps-1:
            if rot: wrap_add(a, sH, 4096, sHe, sHs)
            else: a(f"s_add_u32 s{sH}, s{sH}, 4096")
        state['issued'] += 1
    def wread(s):
        if rot:
            if (s & 3) == 0:
                a(f"v_add_u32 v{vC0}, s{sLo}, v{vA0}\nv_add_u32 v{vC1}, s{sLo}, v{vA1}")
                wrap_add(a, sLo, 8192, sLe, sZ)
            trreads(a, vWF + 8*(s & 3), vC0, vC1, (s & 3)*2048)
            return
        if s and (s & 31) == 0:
            a(f"v_add_u32 v{vA0}, 0x10000, v{vA0}\nv_add_u32 v{vA1}, 0x10000, v{vA1}")
        trreads(a, vWF + 8*(s & 3), vA0, vA1, (s & 31)*2048)
    if lds_first:
        for s in range(WA): wread(s)
    for s in range(LA): hload()
    if pre: pre()
    if not lds_first:
        for s in range(WA): wread(s)
    for s in range(nsteps):
        lg = 4*min(WA-1, nsteps-1 - s)
        a(f"s_waitcnt vmcnt({state['issued'] - s - 1}) lgkmcnt({lg})")
        if s == 0 and lds_first: stamp(a, 4)
        h = vH+4*(s % RING); w0 = vWF+8*(s & 3)
        mfma(a, vAcc, *((w0, h) if w_is_a else (h, w0)), s == 0)
        if s + WA < nsteps:
            wread(s + WA)
        mfma(a, vAcc+16, *((w0+4, h) if w_is_a else (h, w0+4)), s == 0)
        if state['issued'] < nsteps:
            hload()
        if bar_at is not None and s == bar_at:
            a("s_barrier")

SZ = int(OPT['sz']) if 'sz' in OPT else None
UM = int(OPT.get('umap', 2)); UML = UM.bit_length()-1
vDX, vDXO = 236, 235
def d_tile(a):
    sQt, sCt, sCb, sKh, sOff, sXo, sJ, sU, sB, sCol = T, T+1, T+2, T+3, T+4, T+5, T+6, T+7, T+8, T+9
    a(f"""s_and_b32 s{sOff}, s{S_G}, 3
s_mul_i32 s{sOff}, s{sOff}, 18
s_min_u32 s{sJ}, s{S_SLOT}, 17
s_add_u32 s{sOff}, s{sOff}, s{sJ}
s_lshr_b32 s{sCt}, s{sOff}, 3
s_and_b32 s{sJ}, s{sOff}, 7
s_lshr_b32 s{sB}, s{S_G}, 2
s_lshl_b32 s{sQt}, s{sB}, 3
s_add_u32 s{sQt}, s{sQt}, s{sJ}
s_and_b32 s{sCb}, s{S_W}, 3
s_lshr_b32 s{sKh}, s{S_W}, 2
s_lshl_b32 s{sCol}, s{sCt}, 7
s_lshl_b32 s{sXo}, s{sQt}, 3
s_add_u32 s{sXo}, s{sXo}, s{S_W}
s_mul_i32 s{sXo}, s{sXo}, {4*2304}
s_lshl_b32 s{sOff}, s{sCol}, 1
s_add_u32 s{sXo}, s{sXo}, s{sOff}
v_lshrrev_b32 v{vDXO}, 4, v0
v_mul_u32_u24 v{vDXO}, 2304, v{vDXO}
v_and_b32 v{vT3}, 15, v0
v_lshl_add_u32 v{vDXO}, v{vT3}, 4, v{vDXO}""")

def phase_bc(a):
    sTb, sOff, sH, sF = T+1, T+4, T+5, T+6
    vA0, vA1 = V0+1, V0+2
    vAcc = 20
    vWF = 52
    vH = 84
    a("L_b:")
    stamp(a, 1)
    srd(a, R_B, S_WO, SZ_WO)
    srd(a, R_A, S_X, SZ_X)
    a(f"s_sub_u32 s{S_SLOT}, s{S_SLOT}, {NO}")
    d_tile(a)
    XL = OPT.get('xl', '1') == '1'
    xload = lambda: a(f"buffer_load_dwordx4 {vr(vDX,4)}, v{vDXO}, {RA}, s14 offen")
    a(f"s_mov_b32 s14, s{T+5}")
    if not XL:
        xload()
    a(f"""s_and_b32 s{T+14}, s{S_G}, {UM-1}
s_mul_i32 s{T+14}, s{T+14}, 18
s_add_u32 s{T+14}, s{T+14}, s{S_SLOT}
s_lshr_b32 s{S_UCT}, s{T+14}, {UML}
s_and_b32 s{T+14}, s{T+14}, {UM-1}
s_lshr_b32 s{S_UTB}, s{S_G}, {UML}
s_lshl_b32 s{S_UTB}, s{S_UTB}, {UML}
s_add_u32 s{S_UTB}, s{S_UTB}, s{T+14}
s_lshl_b32 s{S_UTB}, s{S_UTB}, 1
s_and_b32 s{T+14}, s{S_W}, 1
s_add_u32 s{S_UTB}, s{S_UTB}, s{T+14}
v_lshlrev_b32 v{vDU}, 4, v{vCH}
v_mul_u32_u24 v{vT0}, 2304, v{vR8}
s_lshl_b32 s{T+14}, s{S_UCT}, 7
v_add3_u32 v{vDU}, v{vDU}, v{vT0}, s{T+14}
s_lshl_b32 s{sTb}, s{S_BRT}, 2
s_and_b32 s{sOff}, s{S_W}, 3
s_add_u32 s{sTb}, s{sTb}, s{sOff}
s_mul_i32 s{sH}, s{sTb}, {72*1024}
s_add_u32 s{sH}, s{sH}, {WS_H}
v_mov_b32 v{vA0}, v{vB0}
v_mov_b32 v{vA1}, v{vB1}
v_min_u32 v{vT0}, 17, v0
v_lshlrev_b32 v{vT0}, 7, v{vT0}
s_lshr_b32 s{sOff}, s{S_BRT}, 1
s_mul_i32 s{sOff}, s{sOff}, {18*128}
s_add_u32 s{sOff}, s{sOff}, {F_H}
s_mul_i32 s{sF}, s{sTb}, 54
s_add_u32 s{sF}, s{sF}, s{S_BCT}
s_lshl_b32 s{sF}, s{sF}, 7
s_add_u32 s{sF}, s{sF}, {F_QKV}
s_waitcnt vmcnt(0)""")
    a("s_barrier")
    stamp(a, 2)
    a(f"s_cmp_ge_u32 s{S_W}, 4\ns_cbranch_scc1 L_ld")
    HPWG = OPT.get('hp', 'w') == 'wg'
    G1 = int(OPT.get('g1', 0))
    if G1:
        assert SZ is None and not HPWG
        a(f"v_min_u32 v{vT0}, {(G1-1)*128}, v{vT0}")
    if HPWG:
        poll(a, vT0, f"s{sOff}", vT1)
    else:
        wpoll(a, vT0, f"s{sOff}", vT1)
    stamp(a, 3)
    LA = int(OPT['la'])
    BR = int(OPT.get('brot', 0))
    if BR:
        a(f"s_mul_i32 s{T+8}, s{S_G}, {BR}")
    gemm_loop(a, 72, LA, LA+4, vAcc, vWF, vH, vA0, vA1, vL16, sH, True, True, bar_at=(4*G1 - int(OPT['la']) - 1 if G1 else SZ),
              rot=(T+8, T+9, T+10, T+11, T+12, T+13, V0, V0+3) if BR else None)
    stamp(a, 5)
    a(f"""s_mul_i32 s{sH}, s{sTb}, {216*1024}
s_lshl_b32 s{sOff}, s{S_BCT}, 12
s_add_u32 s{sH}, s{sH}, s{sOff}
s_add_u32 s{sH}, s{sH}, {WS_QKV}
s_nop 7""")
    for u in range(4):
        if u == 2:
            a("s_nop 1")
        for r in range(4*u, 4*u+4):
            a(f"v_cvt_pk_bf16_f32 v{vWF+r}, v{vAcc+2*r}, v{vAcc+2*r+1}")
        a(f"buffer_store_dwordx4 {vr(vWF+4*u,4)}, v{vL16}, {WS}, s{sH} offen offset:{1024*u} sc1")
    a("s_barrier")
    stamp(a, 6)
    sKh = T+2
    a(f"""s_lshr_b32 s{sKh}, s{S_W}, 1
s_mul_i32 s{sH}, s{S_UTB}, {216*1024}
s_mul_i32 s{sOff}, s{sKh}, {36*1024}
s_add_u32 s{sH}, s{sH}, s{sOff}
s_add_u32 s{sH}, s{sH}, {WS_QKV + 144*1024}
s_mul_i32 s{sOff}, s{sKh}, {576*128}
v_add_u32 v{vA0}, s{sOff}, v{vB0}
v_add_u32 v{vA1}, s{sOff}, v{vB1}
v_min_u32 v{vT0}, 8, v0
v_lshlrev_b32 v{vT0}, 7, v{vT0}
s_mul_i32 s{T+7}, s{S_UTB}, {54*128}
s_mul_i32 s{sOff}, s{sKh}, {9*128}
s_add_u32 s{T+7}, s{T+7}, s{sOff}
s_add_u32 s{T+7}, s{T+7}, {F_QKV + 36*128}
s_waitcnt vmcnt(0)""")
    raw_flag(a, f"s{sF}")
    a("s_barrier")
    stamp(a, 7)
    a(f"s_cmp_ge_u32 s{S_SLOT}, 18\ns_cbranch_scc1 L_c_notu")
    if XL:
        xload()
    if 'udelay' in OPT:
        a(f"s_sleep {OPT['udelay']}")
    UROT = int(OPT.get('urot', 0))
    if UROT:
        a(f"s_mul_i32 s{T+8}, s{S_G if 'urg' in OPT else S_UCT}, {UROT}")
        mod9(a, T+8, T+8, T+9)
    wpoll(a, vT0, f"s{T+7}", vT1)
    stamp(a, 12)
    LA = int(OPT.get('lau', 12))
    gemm_loop(a, 36, LA, min(36, LA+4), vAcc, vWF, vH, vA0, vA1, vP16, sH, False, False, pre=lambda: (a("s_barrier"), stamp(a, 11)),
              rot=(T+8, T+9, T+10, T+11, T+12, T+13, V0, V0+3) if UROT else None)
    stamp(a, 13)
    lk1 = a.label("kh1"); lj = a.label("j")
    a(f"""s_lshl_b32 s{sOff}, s{S_W}, 12
s_add_u32 s{sOff}, s{sOff}, {L_MISC}
v_add_u32 v{vT0}, s{sOff}, v{vL16}
v_xor_b32 v{vT1}, {2*4096}, v{vT0}
s_lshr_b32 s{sH}, s{S_UTB}, 3
s_mul_i32 s{sF}, s{sH}, 18
s_add_u32 s{sF}, s{sF}, s{S_UCT}
s_lshl_b32 s{sH}, s{sF}, 1
s_add_u32 s{sH}, s{sH}, s{sKh}
s_lshl_b32 s{sH}, s{sH}, 3
s_and_b32 s{sOff}, s{S_UTB}, 7
s_add_u32 s{sH}, s{sH}, s{sOff}
s_lshl_b32 s{sF}, s{sH}, 7
s_add_u32 s{sF}, s{sF}, {F_U}
s_lshl_b32 s{sH}, s{sH}, 11
s_add_u32 s{sH}, s{sH}, {WS_U}
s_cmp_lg_u32 s{sKh}, 0
s_cbranch_scc1 {lk1}""")
    for q in range(4):
        a(f"ds_write_b128 v{vT0}, {vr(vAcc+16+4*q,4)} offset:{q*1024}")
    a(f"s_branch {lj}\n{lk1}:")
    for q in range(4):
        a(f"ds_write_b128 v{vT0}, {vr(vAcc+4*q,4)} offset:{q*1024}")
    for r in range(16):
        a(f"v_mov_b32 v{vAcc+r}, v{vAcc+16+r}")
    a(f"{lj}:\ns_waitcnt lgkmcnt(0)\ns_barrier")
    for q in range(4):
        a(f"ds_read_b128 {vr(vWF+4*q,4)}, v{vT1} offset:{q*1024}")
    for u in range(2):
        a(f"s_waitcnt lgkmcnt({2-2*u})")
        for r in range(8*u, 8*u+8):
            a(f"v_add_f32 v{vAcc+r}, v{vAcc+r}, v{vWF+r}")
        for r in range(4*u, 4*u+4):
            a(f"v_cvt_pk_bf16_f32 v{vWF+16+r}, v{vAcc+2*r}, v{vAcc+2*r+1}")
        a(f"buffer_store_dwordx4 {vr(vWF+16+4*u,4)}, v{vL16}, {WS}, s{sH} offen offset:{1024*u} sc1")
    if OPT.get('fb', '1') == '1':
        a("s_waitcnt vmcnt(0)")
        raw_flag(a, f"s{sF}")
        a("s_barrier")
    else:
        a("s_barrier\ns_waitcnt vmcnt(0)")
        raw_flag(a, f"s{sF}")
    a("s_branch L_c_done")
    lnu = a.label("ldnu")
    vWo = 20
    NE = int(OPT.get('ne', 22))
    a("L_ld:")
    if 'tlb' in OPT:
        sh = int(OPT['tlb'])
        lt = a.label("tlb")
        srd(a, R_A, S_OUT, SZ_X)
        srd(a, R_C, S_WS, 0x700000)
        a(f"s_cmp_lg_u32 s{S_W}, 7\ns_cbranch_scc1 {lt}\nv_lshlrev_b32 v{vT2}, {sh}, v0\nv_add_u32 v{vT2}, {(1<<sh)-128}, v{vT2}")
        a(f"buffer_load_dword v236, v{vT2}, {RA}, 0 offen")
        for off in range(0, 0x700000, 64 << sh):
            a(f"v_add_u32 v{vT1}, {off}, v{vT2}\nbuffer_load_dword v237, v{vT1}, {RC}, 0 offen sc1")
        a(f"{lt}:")
    NA = int(OPT.get('na', 0))
    a(f"""s_cmp_ge_u32 s{S_SLOT}, 18
s_cbranch_scc1 {lnu}
s_sub_u32 s{T+10}, s{S_W}, 4
s_lshl_b32 s{T+11}, s{T+10}, 10
v_add_u32 v{vT0}, s{T+11}, v{vL16}
s_bfe_u32 s{T+12}, s{S_UTB}, 0x10001
s_mul_i32 s{T+12}, s{T+12}, 72
s_bfe_u32 s{T+11}, s{S_UTB}, 0x10002
s_mul_i32 s{T+11}, s{T+11}, {36 if UM > 2 else 0}
s_add_u32 s{T+12}, s{T+12}, s{T+11}
s_add_u32 s{T+10}, s{T+10}, s{T+12}
s_lshl_b32 s{T+12}, s{T+12}, 10""")
    def nxt(n):
        if n < 35:
            a(f"s_add_u32 s{T+10}, s{T+10}, 4")
            if n % 9 == 8:
                a(f"""s_sub_u32 s{T+11}, s{T+10}, 144
s_cmp_ge_u32 s{T+10}, 144
s_cselect_b32 s{T+10}, s{T+11}, s{T+10}""")
    for n in range(NE):
        if SZ is not None and n == NA:
            a("s_barrier")
        a(f"""s_mul_i32 s{T+11}, s{T+10}, {8*2304}
buffer_load_dwordx4 {vr(vWo+4*n,4)}, v{vDU}, {RB}, s{T+11} offen {NTO}
{THRO}""")
        nxt(n)
    stamp(a, 4)
    def hall():
        l7 = a.label("w7")
        a(f"""s_cmp_lg_u32 s{S_W}, 7
s_cbranch_scc1 {l7}
v_min_u32 v{vT2}, 17, v0
v_lshlrev_b32 v{vT2}, 7, v{vT2}""")
        wpoll(a, vT2, f"s{sOff}", vT1)
        a(f"{l7}:\ns_barrier")
    if G1:
        hall()
    if HPWG:
        a("s_barrier")
    a("s_barrier")
    stamp(a, 5)
    WS_ = min(NE, int(OPT.get('wsplit', 12)))
    def wr(n):
        if n % 9 == 0:
            a(f"v_add_u32 v{vT1}, s{T+12}, v{vT0}")
            a(f"""s_add_u32 s{T+12}, s{T+12}, {36*1024}
s_cmp_ge_u32 s{T+12}, {144*1024}
s_cselect_b32 s{T+12}, 0, s{T+12}""")
        a(f"ds_write_b128 v{vT1}, {vr(vWo+4*n,4)} offset:{(n % 9)*4096}")
    KD = min(36-NE, int(OPT.get('kd', 0)))
    def dm(n):
        a(f"""s_lshl_b32 m0, s{T+10}, 10
s_mul_i32 s{T+11}, s{T+10}, {8*2304}
buffer_load_dwordx4 v{vDU}, {RB}, s{T+11} offen lds""")
        nxt(n)
    a("s_waitcnt vmcnt(0)")
    for n in range(NE, NE+KD): dm(n)
    for n in range(WS_): wr(n)
    a("s_barrier")
    if 'dfirst' in OPT:
        a("s_nop 15")
        for n in range(NE+KD, 36): dm(n)
        for n in range(WS_, NE): wr(n)
    else:
        for n in range(WS_, NE): wr(n)
        for n in range(NE+KD, 36): dm(n)
    a(f"""s_waitcnt vmcnt(0) lgkmcnt(0)""")
    stamp(a, 11)
    lg4 = a.label("g4")
    a("s_barrier")
    if XL:
        xload()
        a("s_waitcnt vmcnt(0)")
    a(f"""s_cmp_lg_u32 s{S_W}, 4
s_cbranch_scc1 {lg4}""")
    d_tile(a)
    a(f"""s_lshr_b32 s{T+10}, s{T+9}, 6
s_lshl_b32 s{T+10}, s{T+10}, 7
s_add_u32 s{T+10}, s{T+10}, {F_G}
v_and_b32 v{vT0}, 1, v0
v_lshlrev_b32 v{vT0}, 7, v{vT0}
s_mul_i32 s{T+11}, s{T+8}, 4608
s_lshl_b32 s{T+12}, s{T+9}, 2
s_add_u32 s{T+11}, s{T+11}, s{T+12}
s_add_u32 s{T+11}, s{T+11}, {WS_GATE}
v_lshlrev_b32 v{vT2}, 3, v0""")
    wpoll(a, vT0, f"s{T+10}", vT1)
    a(f"""buffer_load_dwordx2 v[20:21], v{vT2}, {WS}, s{T+11} offen sc1
s_waitcnt vmcnt(0)
s_barrier
ds_write_b64 v{vT2}, v[20:21] offset:{L_GATE}
s_waitcnt lgkmcnt(0)
s_barrier
s_branch L_c_done
{lg4}:
s_barrier
s_barrier
s_branch L_c_done
{lnu}:""")
    if G1:
        hall()
    a(f"""s_barrier
s_barrier""")
    if SZ is not None:
        a("s_barrier")
    if HPWG:
        a("s_barrier")
    a("L_c_notu:")
    sQb, sKb, sKq, sJ, sK, sQ, sTy = T, T+1, T+2, T+3, T+5, T+6, T+9
    sM = T+10
    sK1 = T+12
    vS = 56
    RING = 15
    SW = OPT.get('sw', '1') == '1'
    SPW = f"""s_mul_i32 s{sOff}, s{sKq}, 18
s_add_u32 s{T+13}, s{sOff}, 17
s_lshr_b32 s{sOff}, s{sOff}, 2
s_lshr_b32 s{T+13}, s{T+13}, 2
v_add_u32 v{vT0}, s{sOff}, v{vTok}
v_min_u32 v{vT0}, s{T+13}, v{vT0}""" if SW else f"v_min_u32 v{vT0}, 17, v{vTok}"
    a(f"""s_sub_u32 s{sJ}, s{S_SLOT}, 18
s_lshr_b32 s{sTy}, s{sJ}, 2
s_and_b32 s{sKq}, s{S_W}, 3
s_and_b32 s{sQb}, s{S_G}, 1
s_lshl_b32 s{sQb}, s{sQb}, 2
s_and_b32 s{sOff}, s{sJ}, 3
s_add_u32 s{sQb}, s{sQb}, s{sOff}
s_and_b32 s{sKb}, s{S_G}, 2
s_lshl_b32 s{sKb}, s{sKb}, 1
s_lshr_b32 s{sOff}, s{S_G}, 2
s_lshl_b32 s{sOff}, s{sOff}, 3
s_add_u32 s{sQb}, s{sQb}, s{sOff}
s_add_u32 s{sKb}, s{sKb}, s{sOff}
s_min_u32 s{sK1}, s{sTy}, 1
s_add_u32 s{sK1}, s{sK1}, s{sTy}
s_mul_i32 s{sK}, s{sKb}, {216*1024}
s_mul_i32 s{sQ}, s{sQb}, {216*1024}
s_mul_i32 s{sOff}, s{sKq}, {18*1024}
s_add_u32 s{sK}, s{sK}, s{sOff}
s_add_u32 s{sQ}, s{sQ}, s{sOff}
s_add_u32 s{sK}, s{sK}, {WS_QKV + 72*1024}
s_add_u32 s{sQ}, s{sQ}, {WS_QKV}
s_mul_i32 s{sOff}, s{sKq}, 18
s_add_u32 s{T+13}, s{sOff}, 17
s_lshr_b32 s{sOff}, s{sOff}, 2
s_lshr_b32 s{T+13}, s{T+13}, 2
v_and_b32 v{vT0}, 7, v0
v_add_u32 v{vT0}, s{sOff}, v{vT0}
v_min_u32 v{vT0}, s{T+13}, v{vT0}
s_mul_i32 s{sOff}, s{sQb}, 54
v_mov_b32 v{vT1}, s{sOff}
s_add_u32 s{sOff}, s{sKb}, s{sK1}
s_mul_i32 s{sOff}, s{sOff}, 54
s_add_u32 s{sOff}, s{sOff}, 18
v_mov_b32 v{vT2}, s{sOff}
v_cmp_lt_u32 vcc, 7, v0
s_mul_i32 s{sOff}, s{sKb}, 54
s_add_u32 s{sOff}, s{sOff}, {54+18}
v_cndmask_b32 v{vT1}, v{vT1}, v{vT2}, vcc
v_mov_b32 v{vT2}, s{sOff}
v_cmp_lt_u32 vcc, 15, v0
s_nop 1
v_cndmask_b32 v{vT1}, v{vT1}, v{vT2}, vcc
v_add_u32 v{vT0}, v{vT0}, v{vT1}
v_lshlrev_b32 v{vT0}, 7, v{vT0}
v_and_b32 v{vT2}, 0x2ff, v{vP16}
v_and_b32 v{vT1}, 16, v0
v_lshl_add_u32 v{vT2}, v{vT1}, 6, v{vT2}
s_and_b32 s{sOff}, s{sTy}, 1
s_lshl_b32 s{sOff}, s{sOff}, 8
s_add_u32 s{sOff}, s{sOff}, {216*1024}
v_add_u32 v{vT2}, s{sOff}, v{vT2}
s_mul_i32 s{sOff}, s{sK1}, {216*1024}
v_add_u32 v{V0}, s{sOff}, v{vP16}
s_mov_b32 s{sOff}, {F_QKV}""")
    lsi = a.label("sidle")
    if not SW:
        poll(a, vT0, f"s{sOff}", vT1)
    a(f"s_cmp_ge_u32 s{S_W}, 4\ns_cbranch_scc1 {lsi}")
    if SW:
        wpoll(a, vT0, f"s{sOff}", vT1)
    stamp(a, 12)
    LA = int(OPT.get('las', 4))
    vS = 72; RING = 8
    vAc3 = 56
    assert LA < RING
    def sload(p):
        r = vS + 20*(p % RING)
        o = (p & 1)*2048
        a(f"""buffer_load_dwordx4 {vr(r,4)}, v{vL16}, {WS}, s{sQ} offen offset:{o} sc1
buffer_load_dwordx4 {vr(r+4,4)}, v{V0}, {WS}, s{sK} offen offset:{o} sc1
buffer_load_dwordx4 {vr(r+8,4)}, v{vT2}, {WS}, s{sK} offen offset:{o} sc1
buffer_load_dwordx4 {vr(r+12,4)}, v{vL16}, {WS}, s{sQ} offen offset:{o+1024} sc1
buffer_load_dwordx4 {vr(r+16,4)}, v{V0}, {WS}, s{sK} offen offset:{o+1024} sc1""")
        if p & 1:
            a(f"s_add_u32 s{sK}, s{sK}, 4096\ns_add_u32 s{sQ}, s{sQ}, 4096")
    for p in range(LA):
        sload(p)
    for p in range(9):
        y = 5*(min(9, p + LA) - p - 1)
        r = vS + 20*(p % RING)
        a(f"s_waitcnt vmcnt({y+3})")
        mfma(a, vAcc, r+4, r, p == 0)
        a(f"s_waitcnt vmcnt({y+2})")
        mfma(a, vAcc+16, r+8, r, p == 0)
        a(f"s_waitcnt vmcnt({y+1})")
        mfma(a, vAc3, r+8, r+12, p == 0)
        a(f"s_waitcnt vmcnt({y})")
        mfma(a, vAcc, r+16, r+12)
        if p + LA < 9:
            sload(p + LA)
    stamp(a, 13)
    QS, HS, PSZ = 1056, 528, 8448
    a(f"""s_mul_i32 s{sOff}, s{S_W}, {PSZ}
v_lshl_add_u32 v{vT0}, v{vHF}, 4, v{vL16}
v_add_u32 v{vT0}, s{sOff}, v{vT0}
s_nop 7""")
    for r in range(8):
        a(f"v_add_f32 v{vAcc+16+r}, v{vAcc+16+r}, v{vAc3+8+r}")
    for q in (4, 5, 0, 1, 2, 3):
        a(f"ds_write_b128 v{vT0}, {vr(vAcc+4*q,4)} offset:{q*QS}")
    a(f"""{lsi}:
v_bfe_u32 v{vT1}, v0, 2, 2
v_and_b32 v{vT2}, 1, v0
v_lshl_add_u32 v{vT1}, v{vT1}, 1, v{vT2}
v_mul_u32_u24 v{vT1}, {QS}, v{vT1}
v_bfe_u32 v{vT2}, v0, 1, 1
v_mul_u32_u24 v{vT2}, {HS}, v{vT2}
v_lshrrev_b32 v{vT0}, 4, v0
s_lshl_b32 s{sOff}, s{S_W}, 2
v_add_u32 v{vT0}, s{sOff}, v{vT0}
v_lshl_add_u32 v{vT1}, v{vT0}, 4, v{vT1}
v_add_u32 v{vT1}, v{vT1}, v{vT2}
v_and_b32 v{vT2}, 7, v0
v_lshlrev_b32 v{vT2}, 4, v{vT2}
v_lshl_add_u32 v{vT2}, v{vT0}, 10, v{vT2}
s_lshl_b32 s{sOff}, s{sK1}, 7
v_mov_b32 v{vT0}, s{sOff}
v_and_b32 v{vT3}, 8, v0
v_cmp_ne_u32 vcc, 0, v{vT3}
s_and_b32 s{sOff}, s{sTy}, 1
s_lshl_b32 s{sOff}, s{sOff}, 6
s_add_u32 s{sOff}, s{sOff}, 128
v_mov_b32 v{vT3}, s{sOff}
s_lshl_b32 s{sJ}, s{sQb}, 15
v_cndmask_b32 v{vT0}, v{vT0}, v{vT3}, vcc
v_add_u32 v{vT2}, v{vT2}, v{vT0}
s_and_b32 s{sOff}, s{sKb}, 7
s_lshl_b32 s{sOff}, s{sOff}, 7
s_add_u32 s{sJ}, s{sJ}, s{sOff}
s_add_u32 s{sJ}, s{sJ}, {WS_L}
s_lshl_b32 s{sK}, s{sQb}, 3
s_add_u32 s{sK}, s{sK}, s{S_W}
s_mul_i32 s{sK}, s{sK}, 6
s_bfe_u32 s{sOff}, s{sKb}, 0x10002
s_mul_i32 s{sOff}, s{sOff}, 3
s_add_u32 s{sK}, s{sK}, s{sOff}
s_add_u32 s{sK}, s{sK}, s{sTy}
s_lshl_b32 s{sK}, s{sK}, 7
s_add_u32 s{sK}, s{sK}, {F_LH}
s_mov_b32 s{sM}, 0x0fff0fff
s_cmp_eq_u32 s{sTy}, 2
s_cselect_b32 s{sM}, 0x00ff00ff, s{sM}
s_mov_b32 s{sM+1}, s{sM}
v_mov_b32 v53, v{vTAG}
v_mov_b32 v55, v{vTAG}
s_waitcnt lgkmcnt(0)
s_barrier""")
    for j in range(4):
        a(f"ds_read_b128 {vr(vAcc+4*j,4)}, v{vT1} offset:{j*PSZ}")
    a("s_waitcnt lgkmcnt(2)")
    for r in range(4):
        a(f"v_add_f32 v{vAcc+r}, v{vAcc+r}, v{vAcc+4+r}")
    a("s_waitcnt lgkmcnt(0)")
    for r in range(4):
        a(f"v_add_f32 v{vAcc+8+r}, v{vAcc+8+r}, v{vAcc+12+r}")
    for r in range(4):
        a(f"v_add_f32 v{vAcc+r}, v{vAcc+r}, v{vAcc+8+r}")
    sc = struct.unpack('<I', struct.pack('<f', D ** -0.5))[0]
    for r in range(2):
        a(f"v_cvt_pk_bf16_f32 v{52+2*r}, v{vAcc+2*r}, v{vAcc+2*r+1}")
    for r in range(2):
        unpack(a, vAcc+2*r, vAcc+2*r+1, 52+2*r)
    for r in range(4):
        a(f"v_mul_f32 v{vAcc+r}, {hex(sc)}, v{vAcc+r}")
    for r in range(2):
        a(f"v_cvt_pk_bf16_f32 v{52+2*r}, v{vAcc+2*r}, v{vAcc+2*r+1}")
    a(f"s_mov_b64 exec, s[{sM}:{sM+1}]\nbuffer_store_dwordx4 v[52:55], v{vT2}, {WS}, s{sJ} offen sc1\ns_mov_b64 exec, -1")
    raw_flag(a, f"s{sK}")
    a("L_c_done:")
    stamp(a, 14)

def phase_d(a):
    sQt, sCt, sCb, sKh, sOff, sXo, sJ, sU, sB, sCol = T, T+1, T+2, T+3, T+4, T+5, T+6, T+7, T+8, T+9
    vXo, vMx, vS, vLa, vPa, vLw = vDXO, V0+1, V0+2, V0+3, V0+4, V0+5
    vLd = 24
    vX = vDX
    vG = 44
    vF = 56
    vR = 72
    vAcc = 80
    vU = 96
    vP = 128
    PS = 1056
    L_P, L_EX = 40960, 65536
    srd(a, R_B, S_OUT, SZ_X)
    a(f"s_cmp_ge_u32 s{S_SLOT}, 18\ns_cbranch_scc1 L_fin")
    d_tile(a)
    a(f"""s_mul_i32 s{sU}, s{sB}, 36
s_lshl_b32 s{sOff}, s{sCt}, 2
s_add_u32 s{sU}, s{sU}, s{sOff}
s_add_u32 s{sU}, s{sU}, s{sCb}
s_lshl_b32 s{sU}, s{sU}, 4
s_lshl_b32 s{sOff}, s{sKh}, 3
s_add_u32 s{sU}, s{sU}, s{sOff}
s_lshl_b32 s{T+10}, s{sU}, 6
s_add_u32 s{T+10}, s{T+10}, {F_U}
s_lshl_b32 s{sU}, s{sU}, 10
s_add_u32 s{sU}, s{sU}, {WS_U}
v_and_b32 v{vT0}, 3, v0
v_lshlrev_b32 v{vT0}, 7, v{vT0}
v_add_u32 v{vT1}, s{T+10}, v{vT0}
s_lshl_b32 s{sOff}, s{sQt}, 3
s_add_u32 s{sOff}, s{sOff}, s{S_W}
s_mul_i32 s{sOff}, s{sOff}, {6*128}
s_add_u32 s{sOff}, s{sOff}, {F_LH}
v_min_u32 v{vT2}, 5, v0
v_lshlrev_b32 v{vT2}, 7, v{vT2}
v_add_u32 v{vT2}, s{sOff}, v{vT2}
v_cmp_gt_u32 vcc, 8, v0
v_and_b32 v{vT3}, 15, v0
v_lshrrev_b32 v{vT0}, 4, v0
v_cndmask_b32 v{vT1}, v{vT1}, v{vT2}, vcc
s_lshl_b32 s{sOff}, s{S_W}, 2
v_add_u32 v{vT0}, s{sOff}, v{vT0}
v_lshlrev_b32 v{vLa}, 10, v{vT0}
v_lshl_add_u32 v{vLa}, v{vT3}, 4, v{vLa}
v_lshrrev_b32 v{vT2}, 1, v{vT3}
v_mul_u32_u24 v{vLw}, {PS//2}, v{vT2}
v_lshl_add_u32 v{vLw}, v{vT0}, 4, v{vLw}
v_and_b32 v{vT2}, 1, v0
v_lshl_add_u32 v{vLw}, v{vT2}, 3, v{vLw}
v_lshl_add_u32 v{vPa}, v{vHF}, 4, v{vL16}
s_mul_i32 s{sOff}, s{sKh}, {8*PS}
v_add_u32 v{vPa}, s{sOff}, v{vPa}
v_lshlrev_b32 v{vT0}, 5, v{vT3}
ds_read_b128 {vr(vG,4)}, v{vT0} offset:{L_GATE}
ds_read_b128 {vr(vG+4,4)}, v{vT0} offset:{L_GATE+16}
s_lshl_b32 s{sOff}, s{sQt}, 15
s_add_u32 s{sOff}, s{sOff}, {WS_L}""")
    vFa, vFl = 22, 23
    sUd = T+12
    def uloads():
        for s in range(8):
            a(f"buffer_load_dwordx4 {vr(vU+4*s,4)}, v{vL16}, {WS}, s{sU} offen offset:{(s&3)*1024} sc1")
            if s == 3:
                a(f"s_add_u32 s{sU}, s{sU}, 4096")
        a(f"s_mov_b32 s{sUd}, 1")
        stamp(a, 8)
    l = a.label("lp"); d = a.label("lpd"); nu = a.label("nu"); l3 = a.label("lv"); d3 = a.label("lvd"); nu2 = a.label("nu2")
    def lloads():
        for n in range(4):
            a(f"buffer_load_dwordx4 {vr(vLd+4*n,4)}, v{vLa}, {WS}, s{sOff} offen offset:{256*n} sc1")
    a(f"""v_mov_b32 v{vFa}, v{vT1}
s_mov_b32 s{sUd}, 0
{l}:
buffer_load_dword v{vFl}, v{vFa}, {WS}, 0 offen {PF}
s_waitcnt vmcnt(0)
v_cmp_ne_u32 vcc, s{S_TAG}, v{vFl}
s_and_b32 s{T+13}, vcc_lo, 255
s_cbranch_scc0 {d}
s_lshr_b32 s{T+13}, vcc_lo, 8
s_or_b32 s{T+13}, s{T+13}, s{sUd}
s_cbranch_scc1 {nu}""")
    uloads()
    a(f"""{nu}:
s_sleep {OPT.get('lsleep', 1)}
s_sub_u32 s{S_TO}, s{S_TO}, 1
s_cmp_lg_u32 s{S_TO}, 0
s_cbranch_scc1 {l}
s_mov_b32 s{S_TO}, 1
{d}:""")
    lloads()
    a(f"""s_lshr_b32 s{T+13}, vcc_lo, 8
s_or_b32 s{T+13}, s{T+13}, s{sUd}
s_cbranch_scc1 {nu2}""")
    if 'ul' in OPT:
        a(f"s_waitcnt vmcnt({OPT['ul']})")
    uloads()
    a(f"""s_waitcnt vmcnt(8)
s_branch {l3}_c
{nu2}:
buffer_load_dword v{vFl}, v{vFa}, {WS}, 0 offen {PF}
s_waitcnt vmcnt(1)
s_branch {l3}_c
{l3}:""")
    lloads()
    a(f"""s_waitcnt vmcnt(0)
{l3}_c:
v_min_u32 v{vT1}, v{vLd+1}, v{vLd+3}
v_max_u32 v{vT2}, v{vLd+1}, v{vLd+3}""")
    for n in range(1, 4):
        a(f"v_min3_u32 v{vT1}, v{vT1}, v{vLd+4*n+1}, v{vLd+4*n+3}\nv_max3_u32 v{vT2}, v{vT2}, v{vLd+4*n+1}, v{vLd+4*n+3}")
    a(f"""v_cmp_ne_u32 vcc, s{S_TAG}, v{vT1}
v_cmp_ne_u32 s[{T+14}:{T+15}], s{S_TAG}, v{vT2}
s_or_b64 vcc, vcc, s[{T+14}:{T+15}]
s_cbranch_vccz {d3}
s_sub_u32 s{S_TO}, s{S_TO}, 1
s_cmp_lg_u32 s{S_TO}, 0
s_cbranch_scc1 {l3}
s_mov_b32 s{S_TO}, 1
{d3}:""")
    stamp(a, 9)
    for i in range(8):
        unpack(a, vF+2*i, vF+2*i+1, vLd+2*i)
    a(f"""v_max3_f32 v{vMx}, v{vF}, v{vF+1}, v{vF+2}
v_max3_f32 v{vS}, v{vF+3}, v{vF+4}, v{vF+5}
v_max3_f32 v{vMx}, v{vMx}, v{vF+6}, v{vF+7}
v_max3_f32 v{vS}, v{vS}, v{vF+8}, v{vF+9}
v_max3_f32 v{vMx}, v{vMx}, v{vF+10}, v{vF+11}
v_max3_f32 v{vS}, v{vS}, v{vF+12}, v{vF+13}
v_max3_f32 v{vMx}, v{vMx}, v{vF+14}, v{vF+15}
v_max_f32 v{vMx}, v{vMx}, v{vS}""")
    for m in ("quad_perm:[1,0,3,2]", "quad_perm:[2,3,0,1]", "row_half_mirror", "row_mirror"):
        a(f"s_nop 1\nv_max_f32_dpp v{vMx}, v{vMx}, v{vMx} {m} row_mask:0xf bank_mask:0xf")
    a(f"s_mov_b32 s{T+10}, {hex(LOG2E)}\nv_mul_f32 v{vMx}, s{T+10}, v{vMx}")
    for i in range(16):
        a(f"v_fma_f32 v{vF+i}, v{vF+i}, s{T+10}, -v{vMx}")
    for i in range(16):
        a(f"v_exp_f32 v{vF+i}, v{vF+i}")
    a(f"v_add_f32 v{vS}, v{vF}, v{vF+1}\nv_add_f32 v{vMx}, v{vF+2}, v{vF+3}")
    for i in range(4, 16, 2):
        a(f"v_add_f32 v{vS}, v{vS}, v{vF+i}\nv_add_f32 v{vMx}, v{vMx}, v{vF+i+1}")
    a(f"v_add_f32 v{vS}, v{vS}, v{vMx}")
    for m in ("quad_perm:[1,0,3,2]", "quad_perm:[2,3,0,1]", "row_half_mirror", "row_mirror"):
        a(f"s_nop 1\nv_add_f32_dpp v{vS}, v{vS}, v{vS} {m} row_mask:0xf bank_mask:0xf")
    a(f"v_rcp_f32 v{vS}, v{vS}\ns_nop 0")
    for i in range(16):
        a(f"v_mul_f32 v{vF+i}, v{vF+i}, v{vS}")
    for i in range(8):
        a(f"v_cvt_pk_bf16_f32 v{vLd+i}, v{vF+2*i}, v{vF+2*i+1}")
    for n in range(4):
        a(f"ds_write_b64 v{vLw}, {vr(vLd+2*n,2)} offset:{L_P+4*n*PS}")
    hu = a.label("hu"); l2 = a.label("up"); d2 = a.label("upd")
    a(f"""s_cmp_lg_u32 s{sUd}, 0
s_cbranch_scc1 {hu}
{l2}:
s_waitcnt vmcnt(0)
v_cmp_ne_u32 vcc, s{S_TAG}, v{vFl}
s_cbranch_vccz {d2}
buffer_load_dword v{vFl}, v{vFa}, {WS}, 0 offen {PF}
s_sub_u32 s{S_TO}, s{S_TO}, 1
s_cmp_lg_u32 s{S_TO}, 0
s_cbranch_scc1 {l2}
s_mov_b32 s{S_TO}, 1
{d2}:""")
    uloads()
    a(f"{hu}:\ns_waitcnt lgkmcnt(0)\ns_barrier")
    for s in range(8):
        a(f"ds_read_b128 {vr(vP+4*s,4)}, v{vPa} offset:{L_P+s*PS}")
    ROW = 528; EXS = 32*ROW
    a(f"""s_mul_i32 s{sOff}, s{sKh}, {EXS}
s_lshl_b32 s{T+10}, s{sCb}, 7
s_add_u32 s{sOff}, s{sOff}, s{T+10}
s_add_u32 s{sOff}, s{sOff}, {L_EX}
v_mul_u32_u24 v{vT1}, {ROW}, v{vTok}
v_lshl_add_u32 v{vT1}, v{vHF}, 5, v{vT1}
v_add_u32 v{vT1}, s{sOff}, v{vT1}
v_lshrrev_b32 v{vT2}, 4, v0
v_mul_u32_u24 v{vT2}, {ROW}, v{vT2}
s_mul_i32 s{sOff}, s{S_W}, {4*ROW}
s_add_u32 s{sOff}, s{sOff}, {L_EX}
v_add3_u32 v{vT2}, v{vT2}, v{vT0}, s{sOff}""")
    for s in range(8):
        a(f"s_waitcnt vmcnt({7-s}) lgkmcnt({7-s})")
        mfma(a, vAcc, vU+4*s, vP+4*s, s == 0)
    for i in range(4):
        unpack(a, vF+2*i, vF+2*i+1, vX+i)
    stamp(a, 10)
    a("s_nop 3")
    for q in range(4):
        a(f"ds_write_b128 v{vT1}, {vr(vAcc+4*q,4)} offset:{64*(q>>1) + 16*(q&1)}")
    a(f"""s_waitcnt lgkmcnt(0)
s_barrier
ds_read_b128 {vr(vAcc,4)}, v{vT2}
ds_read_b128 {vr(vR,4)}, v{vT2} offset:{EXS}
ds_read_b128 {vr(vAcc+4,4)}, v{vT2} offset:16
ds_read_b128 {vr(vR+4,4)}, v{vT2} offset:{EXS+16}
s_waitcnt vmcnt(0) lgkmcnt(2)""")
    for r in range(8):
        if r == 4:
            a("s_waitcnt lgkmcnt(0)")
        a(f"v_add_f32 v{vAcc+r}, v{vAcc+r}, v{vR+r}")
    def cv():
        for i in range(4):
            a(f"v_cvt_pk_bf16_f32 v{vR+i}, v{vAcc+2*i}, v{vAcc+2*i+1}")
    def up():
        for i in range(4):
            unpack(a, vAcc+2*i, vAcc+2*i+1, vR+i)
    cv(); up()
    for r in range(8):
        a(f"v_mul_f32 v{vAcc+r}, v{vAcc+r}, v{vG+r}")
    cv(); up()
    for r in range(8):
        a(f"v_add_f32 v{vAcc+r}, v{vAcc+r}, v{vF+r}")
    cv()
    a(f"buffer_store_dwordx4 {vr(vR,4)}, v{vXo}, {RB}, s{sXo} offen {OPT.get('oflag', '').replace('+', ' ')}")
    a("L_fin:")

def gemv_dma(a, sColA, vD):
    sRow0, sOff = T+2, T+3
    a(f"""v_lshlrev_b32 v{vD}, 4, v{vCH}
v_mul_u32_u24 v{vT0}, 13824, v{vR8}
v_add3_u32 v{vD}, v{vD}, v{vT0}, s{sColA}
s_mul_i32 s{sOff}, s{sRow0}, 13824
s_lshl_b32 m0, s{sRow0}, 7""")
    for t in range(18):
        a(f"""s_nop 0
buffer_load_dwordx4 v{vD}, {RA}, s{sOff} offen {NT} lds""")
        if t < 17:
            a(f"s_add_u32 s{sOff}, s{sOff}, {8*13824}\ns_add_u32 m0, m0, 1024")

def phase_owner(a):
    sColA, sB, sRow0, sOff, sO, sCs, sTb = T, T+1, T+2, T+3, T+4, T+5, T+6
    vD, vA0, vA1, vSil, vCs = V0, V0+1, V0+2, V0+3, V0+4
    vC = 24
    vST = 28
    vX = VOX
    vXN = 48
    vPt = 80
    vAcc = 112
    vWF = 144
    vSF = 160
    vM = 184
    a(f"""s_mov_b32 s{sO}, s2
s_cmp_ge_u32 s{sO}, 36
s_cbranch_scc1 L_o_pref
s_lshr_b32 s{sCs}, s{sO}, 1
s_and_b32 s{sB}, s{sO}, 1
""")
    ST3 = OPT.get('st3', '0') == '1'
    vST = 32
    if ST3:
        a(f"""s_lshl_b32 s{T+9}, s{sB}, 12
s_add_u32 s{T+9}, s{T+9}, {F_STAT}
s_lshl_b32 s{T+12}, s{S_W}, 9
v_lshlrev_b32 v{vM}, 4, v{vTok}
v_add_u32 v{vM}, s{T+12}, v{vM}
v_add_u32 v{vM+1}, {L_RED}, v{vM}
v_add_u32 v{vM+2}, {L_RED}, v{vL16}""")
        gpoll(a, lambda: a(f"buffer_load_dwordx4 {vr(vST,4)}, v{vM}, {WS}, s{T+9} offen sc1"), [vST+1, vST+3], OPT.get('ssleep'))
        a(f"ds_write_b128 v{vM+1}, {vr(vST,4)}\ns_waitcnt lgkmcnt(0)")
    a(f"""s_waitcnt vmcnt(0)
s_barrier""")
    stamp(a, 6)
    vST = 32
    vPt = 112
    SM = [32, 33, 34, 35, 36, 37, 38, 39, 40, 41, 42, 43, 9, 10, 11, 12]
    a(f"""v_and_b32 v{vT3}, 7, v0
v_xor_b32 v{vT0}, s{S_W}, v{vT3}
v_lshlrev_b32 v{vT0}, 4, v{vT0}
v_lshl_add_u32 v{vT0}, v0, 7, v{vT0}""")
    for q in range(4):
        a(f"ds_read_b128 {vr(vX+4*q,4)}, v{vT0} offset:{q*8192}")
    if ST3:
        for q in range(4):
            a(f"ds_read_b128 {vr(vST+4*q,4)}, v{vM+2} offset:{1024*q}")
    a(f"""s_lshl_b32 s{T+9}, s{sB}, 12
s_add_u32 s{T+9}, s{T+9}, {F_STAT}
s_mul_i32 s{T+10}, s{sO}, {18*1024}
s_lshl_b32 s{sOff}, s{S_W}, 7
s_add_u32 s{T+10}, s{T+10}, s{sOff}
s_add_u32 s{T+10}, s{T+10}, {WS_PART}
s_add_u32 s{T+11}, s{T+10}, 8192
v_lshlrev_b32 v{vT1}, 4, v{vT3}
v_min_u32 v{vT2}, 1, v{vR8}
v_lshl_add_u32 v{vT2}, v{vT2}, 10, v{vT1}
v_add_u32 v{vT2}, 16384, v{vT2}
v_lshl_add_u32 v{vT1}, v{vR8}, 10, v{vT1}
v_cmp_gt_u32 vcc, 16, v0
v_mul_u32_u24 v{vCs}, {72*1024}, v{vHF}
v_lshl_add_u32 v{vCs}, v{vTok}, 4, v{vCs}
v_cndmask_b32 v{vA0}, 0, 1.0, vcc
v_bfe_u32 v{vA1}, v0, 2, 1
v_cvt_f32_u32 v{vA1}, v{vA1}
s_mul_i32 s{sOff}, s{sB}, {8*72*1024}
s_lshl_b32 s{T+12}, s{sCs}, 12
s_add_u32 s{sOff}, s{sOff}, s{T+12}
s_lshl_b32 s{T+12}, s{S_W}, 9
s_add_u32 s{sOff}, s{sOff}, s{T+12}
s_add_u32 s{sOff}, s{sOff}, {WS_H}
s_waitcnt lgkmcnt(0)""")
    def stl():
        for q in range(4):
            a(f"buffer_load_dwordx4 {vr(vST+4*q,4)}, v{vL16}, {WS}, s{T+9} offen offset:{1024*q} sc1")
    def pl():
        a(f"""buffer_load_dwordx4 {vr(vPt,4)}, v{vT1}, {WS}, s{T+10} offen sc1
buffer_load_dwordx4 {vr(vPt+4,4)}, v{vT1}, {WS}, s{T+11} offen sc1
buffer_load_dwordx4 {vr(vPt+8,4)}, v{vT2}, {WS}, s{T+10} offen sc1""")
    P = [(q, i) for q in range(4) for i in range(4)]
    lo = lambda q, i: vXN+8*q+2*i
    hi = lambda q, i: vXN+8*q+2*i+1
    xs = lambda q, i: vX+4*q+i
    def st_unpack():
        for q, i in P: unpack(a, lo(q,i), hi(q,i), xs(q,i))
    def st_cvt():
        for q, i in P: a(f"v_cvt_pk_bf16_f32 v{xs(q,i)}, v{lo(q,i)}, v{hi(q,i)}")
    def st_op(op, f):
        for q, i in P:
            a(f"{op} v{lo(q,i)}, v{lo(q,i)}, v{f(q,2*i)}\n{op} v{hi(q,i)}, v{hi(q,i)}, v{f(q,2*i+1)}")
    st_unpack()
    if 'st1' in OPT:
        a(f"v_and_b32 v{vM}, 3, v0\ns_lshl_b32 s{T+12}, s{S_W}, 9\nv_lshlrev_b32 v{vM}, 7, v{vM}\ns_add_u32 s{T+12}, s{T+12}, s{T+9}\nv_add_u32 v{vM}, 124, v{vM}")
        wpoll(a, vM, f"s{T+12}", vM+1)
        a("s_barrier")
    if ST3:
        pass
    elif OPT.get('st2', '1') == '1':
        a(f"""s_lshl_b32 s{T+12}, s{S_W}, 9
v_lshlrev_b32 v{vM}, 4, v{vTok}
v_add_u32 v{vM}, s{T+12}, v{vM}
v_add_u32 v{vM+1}, {L_RED}, v{vM}
v_add_u32 v{vM+2}, {L_RED}, v{vL16}""")
        gpoll(a, lambda: a(f"buffer_load_dwordx4 {vr(vST,4)}, v{vM}, {WS}, s{T+9} offen sc1"), [vST+1, vST+3], OPT.get('ssleep'))
        a(f"""ds_write_b128 v{vM+1}, {vr(vST,4)}
s_waitcnt lgkmcnt(0)
s_barrier""")
        for q in range(4):
            a(f"ds_read_b128 {vr(vST+4*q,4)}, v{vM+2} offset:{1024*q}")
        a("s_waitcnt lgkmcnt(0)")
    else:
        gpoll(a, stl, [vST+4*q+j for q in range(4) for j in (1, 3)], OPT.get('ssleep'))
    stamp(a, 1)
    st_op("v_sub_f32", lambda q, j: vST+4*q); st_cvt()
    st_unpack()
    pl()
    st_op("v_mul_f32", lambda q, j: vST+4*q+2); st_cvt()
    st_unpack()
    stamp(a, 2)
    lp = a.label("pp"); ld = a.label("ppd")
    a(f"""{lp}:
s_waitcnt vmcnt(0)
v_min3_u32 v{vM}, v{vPt+1}, v{vPt+3}, v{vPt+5}
v_max3_u32 v{vM+1}, v{vPt+1}, v{vPt+3}, v{vPt+5}
v_min3_u32 v{vM}, v{vM}, v{vPt+7}, v{vPt+9}
v_max3_u32 v{vM+1}, v{vM+1}, v{vPt+7}, v{vPt+9}
v_min_u32 v{vM}, v{vM}, v{vPt+11}
v_max_u32 v{vM+1}, v{vM+1}, v{vPt+11}
v_cmp_ne_u32 vcc, s{S_TAG}, v{vM}
v_cmp_ne_u32 s[{T+14}:{T+15}], s{S_TAG}, v{vM+1}
s_or_b64 vcc, vcc, s[{T+14}:{T+15}]
s_cbranch_vccz {ld}
s_sub_u32 s{S_TO}, s{S_TO}, 1
s_cmp_eq_u32 s{S_TO}, 0
s_cbranch_scc1 {ld}""")
    pl()
    a(f"""s_branch {lp}
{ld}:
s_max_u32 s{S_TO}, s{S_TO}, 1
v_add_f32 v{vPt}, v{vPt}, v{vPt+4}
v_add_f32 v{vPt+2}, v{vPt+2}, v{vPt+6}
v_fmac_f32 v{vPt}, v{vA0}, v{vPt+8}
v_fmac_f32 v{vPt+2}, v{vA0}, v{vPt+10}
s_nop 1
v_permlane32_swap_b32 v{vPt}, v{vPt+2}
s_nop 0
v_add_f32 v{vPt}, v{vPt}, v{vPt+2}
v_mov_b32 v{vPt+2}, v{vPt}
s_nop 1
v_permlane16_swap_b32 v{vPt}, v{vPt+2}
s_nop 0
v_add_f32 v{vPt}, v{vPt}, v{vPt+2}
s_nop 1
v_add_f32_dpp v{vPt}, v{vPt}, v{vPt} row_ror:8 row_mask:0xf bank_mask:0xf""")
    round_bf16(a, vPt)
    a(f"v_add_f32 v{vPt}, v{vPt}, v{vA1}")
    round_bf16(a, vPt)
    a("s_nop 0")
    for u in (4, 5, 6, 7, 0, 1, 2, 3):
        a(f"v_readlane_b32 s{SM[2*u]}, v{vPt}, {u}\nv_readlane_b32 s{SM[2*u+1]}, v{vPt}, {32+u}")
    stamp(a, 3)
    PQ = OPT.get('pq', '1') == '1'
    if not PQ:
        for q, i in P:
            a(f"v_mul_f32 v{lo(q,i)}, s{SM[8+2*i]}, v{lo(q,i)}\nv_mul_f32 v{hi(q,i)}, s{SM[8+2*i+1]}, v{hi(q,i)}")
        st_cvt(); st_unpack()
    for q in range(4):
        if PQ:
            for i in range(4):
                a(f"v_mul_f32 v{lo(q,i)}, s{SM[8+2*i]}, v{lo(q,i)}\nv_mul_f32 v{hi(q,i)}, s{SM[8+2*i+1]}, v{hi(q,i)}")
            for i in range(4):
                a(f"v_cvt_pk_bf16_f32 v{xs(q,i)}, v{lo(q,i)}, v{hi(q,i)}")
            for i in range(4):
                unpack(a, lo(q,i), hi(q,i), xs(q,i))
        for i in range(4):
            a(f"v_add_f32 v{lo(q,i)}, s{SM[2*i]}, v{lo(q,i)}\nv_add_f32 v{hi(q,i)}, s{SM[2*i+1]}, v{hi(q,i)}")
        for i in range(4):
            a(f"v_cvt_pk_bf16_f32 v{xs(q,i)}, v{lo(q,i)}, v{hi(q,i)}")
        a(f"buffer_store_dwordx4 {vr(vX+4*q,4)}, v{vCs}, {WS}, s{sOff} offen sc1")
        if q < 3:
            a(f"s_add_u32 s{sOff}, s{sOff}, {2*72*1024}")
    stamp(a, 4)
    a(f"""s_mul_i32 s{sOff}, s{sB}, 18
s_add_u32 s{sOff}, s{sOff}, s{sCs}
s_lshl_b32 s{sOff}, s{sOff}, 7
s_add_u32 s{sOff}, s{sOff}, {F_H}""")
    set_flag(a, f"s{sOff}")
    stamp(a, 5)
    if 'ob' in OPT:
        a("s_waitcnt vmcnt(0)\ns_barrier")
    a("L_o_pref:")
    srd(a, R_A, S_WMOD, SZ_WMOD)
    srd(a, R_C, S_C, SZ_C)
    a(f"""s_sub_u32 s{sOff}, s{sO}, 20
s_cmp_ge_u32 s{sO}, 16
s_cselect_b32 s{sO}, s{sOff}, s{sO}
s_cselect_b32 s{sOff}, 16, 0
s_cmp_lt_u32 s{sO}, s{sOff}
s_cbranch_scc1 L_o_upd
s_cmp_ge_u32 s{sO}, 18
s_cbranch_scc1 L_o_upd""")
    if 'gd' in OPT:
        a(f"v_min_u32 v{vT0}, 35, v0\nv_lshlrev_b32 v{vT0}, 7, v{vT0}\ns_movk_i32 s{sOff}, {F_H}")
        poll(a, vT0, f"s{sOff}", vT1)
    a(f"""s_mul_i32 s{sRow0}, s{S_W}, 144
v_min_u32 v{vT0}, 17, v{vTok}
v_lshlrev_b32 v{vT0}, 4, v{vT0}
v_mul_u32_u24 v{vT1}, 2304, v{vHF}
v_add_u32 v{vCs}, v{vT0}, v{vT1}
s_lshl_b32 s{sOff}, s{sRow0}, 1
buffer_load_dwordx4 {vr(vC,4)}, v{vCs}, {RC}, s{sOff} offen
s_lshl_b32 s{sColA}, s{sO}, 7
s_add_u32 s{sColA}, s{sColA}, 4608""")
    gemv_dma(a, sColA, vD)
    a(f"""s_lshl_b32 s{sOff}, s{sRow0}, 7
v_add_u32 v{vA0}, s{sOff}, v{vB0}
v_add_u32 v{vA1}, s{sOff}, v{vB1}
s_waitcnt vmcnt(18)""")
    for i in range(4):
        unpack(a, vM+2*i, vM+2*i+1, vC+i)
    silu8(a, vM, vM+8)
    for i in range(4):
        a(f"v_cvt_pk_bf16_f32 v{vC+i}, v{vM+2*i}, v{vM+2*i+1}")
    a(f"""s_lshl_b32 s{sOff}, s{sRow0}, 1
s_add_u32 s{sOff}, s{sOff}, {L_SIL}
v_add_u32 v{vCs}, s{sOff}, v{vCs}
ds_write_b128 v{vCs}, {vr(vC,4)}
v_and_b32 v{vT0}, 1, v0
v_mul_u32_u24 v{vT0}, 2304, v{vT0}
v_lshl_add_u32 v{vT0}, v{vHF}, 4, v{vT0}
v_add_u32 v{vSil}, s{sOff}, v{vT0}
s_waitcnt lgkmcnt(0)""")
    for s in range(9):
        wf = vWF + 8*(s & 1); sf = vSF + 4*(s & 1)
        a(f"s_waitcnt vmcnt({18-2*(s+1)})")
        a(f"ds_read_b128 {vr(sf,4)}, v{vSil} offset:{s*32}")
        trreads(a, wf, vA0, vA1, s*2048)
        a("s_waitcnt lgkmcnt(2)")
        mfma(a, vAcc, wf, sf, s == 0)
        a("s_waitcnt lgkmcnt(0)")
        mfma(a, vAcc+16, wf+4, sf, s == 0)
    a(f"""v_and_b32 v{vT0}, 1, v0
v_lshlrev_b32 v{vT0}, 8, v{vT0}
v_lshl_add_u32 v{vT0}, v{vHF}, 5, v{vT0}
s_lshl_b32 s{sOff}, s{S_W}, 9
s_add_u32 s{sOff}, s{sOff}, {L_RED}
v_add_u32 v{vT0}, s{sOff}, v{vT0}
s_mov_b32 exec_lo, 3
s_mov_b32 exec_hi, 3
s_nop 8""")
    for cb in range(2):
        for q, off in enumerate((0, 16, 64, 80)):
            a(f"ds_write_b128 v{vT0}, {vr(vAcc+16*cb+4*q,4)} offset:{cb*128+off}")
    a(f"""s_mov_b64 exec, -1
s_waitcnt lgkmcnt(0)
s_barrier
s_lshr_b32 s{sOff}, s{S_W}, 2
s_lshl_b32 s{sOff}, s{sOff}, 8
s_add_u32 s{sOff}, s{sOff}, {L_RED}
v_lshlrev_b32 v{vT0}, 2, v0
v_add_u32 v{vT1}, s{sOff}, v{vT0}""")
    for w in range(8):
        a(f"ds_read_b32 v{vAcc+w}, v{vT1} offset:{w*512}")
    a("s_waitcnt lgkmcnt(0)")
    for w in range(1, 8):
        a(f"v_add_f32 v{vAcc}, v{vAcc}, v{vAcc+w}")
    round_bf16(a, vAcc)
    lsk = a.label("gsk")
    a(f"""s_and_b32 s{sOff}, s{S_W}, 3
s_cmp_lg_u32 s{sOff}, 0
s_cbranch_scc1 {lsk}
s_lshr_b32 s{T+9}, s{S_W}, 2
s_mul_i32 s{sOff}, s{T+9}, 4608
s_lshl_b32 s{sColA}, s{sO}, 8
s_add_u32 s{sOff}, s{sOff}, s{sColA}
s_add_u32 s{sOff}, s{sOff}, {WS_GATE}
buffer_store_dword v{vAcc}, v{vT0}, {WS}, s{sOff} offen sc1
{lsk}:
s_lshl_b32 s{sOff}, s{sO}, 7
s_add_u32 s{sOff}, s{sOff}, {F_G}""")
    set_flag(a, f"s{sOff}")
    stamp(a, 7)
    lp = a.label("ep"); ld = a.label("epd")
    a(f"""L_o_upd:
s_add_u32 s{S_SLOT}, s{S_SLOT}, 25
s_cmp_ge_u32 s{S_SLOT}, 27
s_cbranch_scc1 L_c_notu
s_cmp_lg_u32 s2, 0
s_cbranch_scc1 L_fin
s_lshl_b32 s{sOff}, s{S_W}, 6
v_add_u32 v{vT0}, s{sOff}, v0
v_min_u32 v{vT0}, 431, v{vT0}
v_lshlrev_b32 v{vT0}, 8, v{vT0}
s_mov_b32 s{sOff}, {F_QKV}
{lp}:
s_sleep 16
buffer_load_dword v{vT1}, v{vT0}, {WS}, s{sOff} offen sc1
buffer_load_dword v{vT2}, v{vT0}, {WS}, s{sOff} offen offset:128 sc1
s_waitcnt vmcnt(0)
v_cmp_ne_u32 vcc, s{S_TAG}, v{vT1}
v_cmp_ne_u32 s[{T+14}:{T+15}], s{S_TAG}, v{vT2}
s_or_b64 vcc, vcc, s[{T+14}:{T+15}]
s_cbranch_vccz {ld}
s_sub_u32 s{S_TO}, s{S_TO}, 1
s_cmp_lg_u32 s{S_TO}, 0
s_cbranch_scc1 {lp}
{ld}:
s_mov_b32 s{sOff}, {EPOCH}""")
    set_flag(a, f"s{sOff}")
    a("s_branch L_fin")

def epilogue(a):
    if STAMP and 'probe' in OPT:
        i = int(OPT['probe']); lo, hi = [int(x) for x in OPT.get('prole', '0:256').split(':')]
        a(f"""s_waitcnt vmcnt(0) lgkmcnt(0)
s_cmp_lg_u32 s{S_W}, {OPT.get('stw', 0)}
s_cbranch_scc1 L_end
s_memrealtime s[{S_ST+30}:{S_ST+31}]
s_waitcnt lgkmcnt(0)
s_sub_u32 s{T}, s{S_ST+2*i}, s{S_ST}
s_cmp_eq_u32 s{S_ST+2*i}, 0
s_cselect_b32 s{T}, 0, s{T}
s_cmp_lt_u32 s2, {lo}
s_cselect_b32 s{T}, 0, s{T}
s_cmp_ge_u32 s2, {hi}
s_cselect_b32 s{T}, 0, s{T}
s_lshl_b32 s{T}, s{T}, 2
s_add_u32 s{T}, s{T}, 5000
L_spin:
s_memrealtime s[{T+2}:{T+3}]
s_waitcnt lgkmcnt(0)
s_sub_u32 s{T+2}, s{T+2}, s{S_ST}
s_cmp_lt_u32 s{T+2}, s{T}
s_cbranch_scc1 L_spin""")
    elif STAMP:
        a(f"""s_waitcnt vmcnt(0) lgkmcnt(0)
s_cmp_lg_u32 s{S_W}, {OPT.get('stw', 0)}
s_cbranch_scc1 L_end
{CLK} s[{S_ST+30}:{S_ST+31}]
s_memtime s[98:99]
s_waitcnt lgkmcnt(0)
s_sub_u32 s98, s98, s96""")
        for i in range(16):
            a(f"v_mov_b32 v{16+i}, s{S_ST+2*i}")
        a(f"""v_mov_b32 v32, s98
s_lshl_b32 s{T}, s2, 7
s_add_u32 s{T}, s{T}, {WS_STAMP}
v_mov_b32 v1, 0
s_mov_b64 exec, 1""")
        for i in range(4):
            a(f"buffer_store_dwordx4 v[{16+4*i}:{19+4*i}], v1, {WS}, s{T} offen offset:{16*i}")
        a(f"buffer_store_dword v32, v1, {WS}, s{T} offen offset:64")
    a("L_end:\ns_endpgm")

def main():
    a = Asm()
    a.raw("""; DiT adaLN attention block (B=2, N=256, D=1152) as ONE persistent launch, 256 workgroups x 8 waves (one per CU).
; Written by a generator script of my own (hand-designed schedule, no compiler output).
;  stage 0 : 162 WGs: split-K pieces of silu(c) @ w_mod[:, :2D] -> tagged granules; 64 WGs: LayerNorm row statistics
; @launch grid=(256,1,1) block=(512,1,1) lds=163840""")
    a.raw('.amdgcn_target "amdgcn-amd-amdhsa--gfx950"\n.text')
    prologue(a)
    phase_bc(a)
    NOD[0] = True
    phase_d(a)
    NOD[0] = False
    epilogue(a)
    a("L_owner:")
    phase_owner(a)
    a.raw(".p2align 4\nL_codeend:")
    out = a.text() + kd(NAME, 244, 102)
    path = [x for x in sys.argv[1:] if not x.startswith('--')][0]
    open(path, 'w').write(out)
main()
```

```python
import sys, struct
from asmlib import *

OPT = dict(la='12', nt='', cpf='1', umap='4', lfull='1', pack='0', ew='3')
for a_ in sys.argv[1:]:
    if a_.startswith('--'):
        k, _, v = a_[2:].partition('=')
        OPT[k] = v
STAMP = 'stamp' in OPT
NT = OPT['nt']
PF = OPT.get('pf', 'sc1').replace('+', ' ')
SF = OPT.get('sf', 'sc1').replace('+', ' ')
NTW = 'nt' if 'ntw' in OPT else ''
NTO = 'nt' if 'nto' in OPT else ''
NTM = 'nt' if 'ntm' in OPT else ''
CLK = "s_memtime" if 'cyc' in OPT else "s_memrealtime"

NAME = "standalone__dit_adaln_block__diffusion_kernel"
D = 1152
SZ_X = 512*D*2; SZ_C = 2*D*2; SZ_WQKV = D*3*D*2; SZ_WO = D*D*2; SZ_WMOD = D*6*D*2
SZ_WS = 1 << 28
F_STAT = 0x0
F_H = 0x2000
F_L = 0x4000
F_U = 0x760000
F_G = 0x4000
F_QKV = 0x740000
EPOCH = 0x13000
WS_GATE = 0x14000
WS_H = 0x20000
WS_QKV = 0x140000
WS_L = 0x680000
WS_U = 0x550000
WS_PART = 0x4A0000
WS_STAMP = 0x700000
F_LH = 0x720000
LOG2E = 0x3fb8aa3b

S_W, S_TAG, S_G, S_SLOT, S_TO, S_TK = 3, 4, 5, 6, 7, 8
S_X, S_C, S_WQKV, S_WO, S_WMOD, S_OUT, S_DBG, S_WS = 16, 18, 20, 22, 24, 26, 28, 30
R_A, R_B, R_C, R_WS = 32, 36, 40, 44
T = 48
S_ST = 64
WS = f"s[{R_WS}:{R_WS+3}]"
RA = f"s[{R_A}:{R_A+3}]"; RB = f"s[{R_B}:{R_B+3}]"; RC = f"s[{R_C}:{R_C+3}]"
vL16, vP16, vB0, vB1, vCH, vR8, vHF, vTok = 1, 2, 3, 4, 5, 6, 7, 8
vT0, vT1, vT2, vT3 = 9, 10, 11, 12
vTAG = 13
V0 = 16

L_MISC = 147456
L_SIL = L_MISC
L_RED = L_SIL + 4608
L_FIN = L_RED + 4096
L_ROLE = L_FIN + 4096
L_STC = L_ROLE + 16
L_GATE = 36864
NO = 5

WSB = int(OPT.get('wsb', '0'), 0)
def srd(a, r, ptr, size):
    if r == R_WS and WSB:
        a(f"""s_add_u32 s{r}, s{ptr}, {hex(WSB)}
s_addc_u32 s{r+1}, s{ptr+1}, 0
s_and_b32 s{r+1}, s{r+1}, 0xffff
s_mov_b32 s{r+2}, {hex(size - WSB)}
s_mov_b32 s{r+3}, 0x20000""")
        return
    a(f"""s_mov_b32 s{r}, s{ptr}
s_and_b32 s{r+1}, s{ptr+1}, 0xffff
s_mov_b32 s{r+2}, {hex(size)}
s_mov_b32 s{r+3}, 0x20000""")

NOD = [False]
def stamp(a, i):
    if STAMP and not (NOD[0] and 'nod' in OPT):
        a(f"{CLK} s[{S_ST+2*i}:{S_ST+2*i+1}]")

def unpack(a, lo, hi, src):
    a(f"v_lshlrev_b32 v{lo}, 16, v{src}\nv_and_b32 v{hi}, 0xffff0000, v{src}")

def round_bf16(a, v):
    a(f"v_cvt_pk_bf16_f32 v{v}, v{v}, v{v}\nv_lshlrev_b32 v{v}, 16, v{v}")

HACK = [0]
def mfma(a, acc, A, B, first=False):
    if 'hack16' in OPT and not first:
        HACK[0] += 1
        o = 8*((HACK[0] >> 1) & 1)
        for j in range(2):
            a(f"v_mfma_f32_16x16x32_bf16 {vr(acc+o+4*j,4)}, {vr(A,4)}, {vr(B,4)}, {vr(acc+o+4*j,4)}")
        return
    c = "0" if first else vr(acc, 16)
    a(f"v_mfma_f32_32x32x16_bf16 {vr(acc,16)}, {vr(A,4)}, {vr(B,4)}, {c}")

def wrap_add(a, s, step, s_end, s_start):
    a(f"""s_add_u32 s{s}, s{s}, {step}
s_cmp_eq_u32 s{s}, s{s_end}
s_cselect_b32 s{s}, s{s_start}, s{s}""")

def mod9(a, dst, src, tmp):
    a(f"""s_mul_i32 s{tmp}, s{src}, 57
s_lshr_b32 s{tmp}, s{tmp}, 9
s_mul_i32 s{tmp}, s{tmp}, 9
s_sub_u32 s{dst}, s{src}, s{tmp}""")

def poll(a, vaddr, soff, vtmp):
    l = a.label("poll"); d = a.label("polld")
    a(f"""s_cmp_lg_u32 s{S_W}, 0
s_cbranch_scc1 {d}
{l}:
buffer_load_dword v{vtmp}, v{vaddr}, {WS}, {soff} offen {PF}
s_waitcnt vmcnt(0)
v_cmp_ne_u32 vcc, s{S_TAG}, v{vtmp}
s_cbranch_vccz {d}
s_sleep {OPT.get('sleep', 2)}
s_sub_u32 s{S_TO}, s{S_TO}, 1
s_cmp_lg_u32 s{S_TO}, 0
s_cbranch_scc1 {l}
s_mov_b32 s{S_TO}, 1
{d}:
s_barrier""")

def gpoll(a, loads, tagregs, slp=None):
    l = a.label("gp"); d = a.label("gpd")
    a(f"{l}:")
    loads()
    a(f"s_waitcnt vmcnt(0)\nv_cmp_ne_u32 vcc, s{S_TAG}, v{tagregs[0]}")
    for r in tagregs[1:]:
        a(f"v_cmp_ne_u32 s[{T+14}:{T+15}], s{S_TAG}, v{r}\ns_or_b64 vcc, vcc, s[{T+14}:{T+15}]")
    a(f"""s_cbranch_vccz {d}
s_sleep {slp if slp is not None else OPT.get('gsleep', 2)}
s_sub_u32 s{S_TO}, s{S_TO}, 1
s_cmp_lg_u32 s{S_TO}, 0
s_cbranch_scc1 {l}
s_mov_b32 s{S_TO}, 1
{d}:""")

def raw_flag(a, soff):
    a(f"""v_mov_b32 v{vT3}, 0
s_mov_b64 exec, 1
buffer_store_dword v{vTAG}, v{vT3}, {WS}, {soff} offen {SF}
s_mov_b64 exec, -1""")

def set_flag(a, soff, younger=0):
    d = a.label("fl")
    a(f"""s_waitcnt vmcnt({younger})
s_barrier
s_cmp_lg_u32 s{S_W}, 0
s_cbranch_scc1 {d}""")
    raw_flag(a, soff)
    a(f"{d}:")

def trreads(a, wf, b0, b1, off):
    a(f"""ds_read_b64_tr_b16 {vr(wf,2)}, v{b0} offset:{off}
ds_read_b64_tr_b16 {vr(wf+2,2)}, v{b0} offset:{off+512}
ds_read_b64_tr_b16 {vr(wf+4,2)}, v{b1} offset:{off}
ds_read_b64_tr_b16 {vr(wf+6,2)}, v{b1} offset:{off+512}""")

def dma_tile(a, srdname, vD, pitch, s_rot, flags, n0=0, n1=18):
    sN, sO = T+10, T+11
    if s_rot is None:
        a(f"s_add_u32 s{sN}, s{S_W}, {8*n0}")
    else:
        a(f"s_lshl_b32 s{sN}, s{s_rot}, 3\ns_add_u32 s{sN}, s{sN}, s{S_W}")
    for n in range(n0, n1):
        a(f"""s_lshl_b32 m0, s{sN}, 10
s_mul_i32 s{sO}, s{sN}, {8*pitch}
buffer_load_dwordx4 v{vD}, {srdname}, s{sO} offen {flags} lds""")
        if n < n1-1:
            a(f"s_add_u32 s{sN}, s{sN}, 8")
            if s_rot is not None:
                a(f"""s_sub_u32 s{sO}, s{sN}, 144
s_cmp_ge_u32 s{sN}, 144
s_cselect_b32 s{sN}, s{sO}, s{sN}""")

def wave_sum(a, v, sdst):
    for m in ("quad_perm:[1,0,3,2]", "quad_perm:[2,3,0,1]", "row_half_mirror", "row_mirror"):
        a(f"s_nop 1\nv_add_f32_dpp v{v}, v{v}, v{v} {m} row_mask:0xf bank_mask:0xf")
    a(f"s_nop 1\nv_add_f32_dpp v{v}, v{v}, v{v} row_bcast:15 row_mask:0xa bank_mask:0xf")
    a(f"s_nop 1\nv_add_f32_dpp v{v}, v{v}, v{v} row_bcast:31 row_mask:0xc bank_mask:0xf")
    a(f"s_nop 1\nv_readlane_b32 s{sdst}, v{v}, 63\ns_nop 1")

def silu8(a, f, t):
    for i in range(8):
        a(f"v_mul_f32 v{t+i}, 0xbfb8aa3b, v{f+i}")
    for i in range(8):
        a(f"v_exp_f32 v{t+i}, v{t+i}")
    for i in range(8):
        a(f"v_add_f32 v{t+i}, 1.0, v{t+i}")
    for i in range(8):
        a(f"v_rcp_f32 v{t+i}, v{t+i}")
    for i in range(8):
        a(f"v_mul_f32 v{f+i}, v{f+i}, v{t+i}")

def lane_consts(a):
    a(f"""v_lshrrev_b32 v{vR8}, 3, v0
v_and_b32 v{vP16}, 0x33, v0
v_and_b32 v{vT0}, 4, v0
v_lshl_or_b32 v{vP16}, v{vT0}, 1, v{vP16}
v_and_b32 v{vT0}, 8, v0
v_lshrrev_b32 v{vT0}, 1, v{vT0}
v_or_b32 v{vP16}, v{vP16}, v{vT0}
v_lshlrev_b32 v{vP16}, 4, v{vP16}
v_lshrrev_b32 v{vT0}, 2, v0
v_and_b32 v{vT0}, 4, v{vT0}
v_and_b32 v{vCH}, 7, v0
v_xor_b32 v{vCH}, v{vCH}, v{vT0}
v_lshlrev_b32 v{vB0}, 10, v{vHF}
v_and_b32 v{vT0}, 12, v0
v_lshl_or_b32 v{vB0}, v{vT0}, 5, v{vB0}
v_and_b32 v{vT0}, 8, v0
v_lshl_or_b32 v{vB0}, v{vT0}, 3, v{vB0}
v_and_b32 v{vT0}, 16, v0
v_lshl_or_b32 v{vB0}, v{vT0}, 1, v{vB0}
v_and_b32 v{vT0}, 1, v0
v_lshl_or_b32 v{vB0}, v{vT0}, 4, v{vB0}
v_and_b32 v{vT0}, 2, v0
v_lshl_or_b32 v{vB0}, v{vT0}, 2, v{vB0}
v_xor_b32 v{vB1}, 64, v{vB0}""")

def get_tag(a):
    a(f"""s_waitcnt lgkmcnt(0)
s_mul_i32 s{S_TAG}, s{S_TAG}, 1664525
s_add_u32 s{S_TAG}, s{S_TAG}, 1013904223
v_mov_b32 v{vTAG}, s{S_TAG}""")

def wpoll(a, vaddr, soff, vtmp):
    gpoll(a, lambda: a(f"buffer_load_dword v{vtmp}, v{vaddr}, {WS}, {soff} offen {PF}"), [vtmp])

S_BCT, S_BRT = 11, 12
vDW = 15
R0, R1 = [int(x) for x in OPT.get('wrot', '36,28').split(',')]
assert R0 + 3*R1 + 7 < 144
def b_setup(a):
    srd(a, R_B, S_WQKV, SZ_WQKV)
    a(f"""s_mul_i32 s{S_BCT}, s{S_G}, 27
s_add_u32 s{S_BCT}, s{S_BCT}, s{S_SLOT}
s_sub_u32 s{S_BCT}, s{S_BCT}, {NO}
s_and_b32 s{S_BRT}, s{S_BCT}, 3
s_lshr_b32 s{S_BCT}, s{S_BCT}, 2
s_mul_i32 s13, s{S_BRT}, {R1}
s_add_u32 s{T+14}, s13, {R0}
s_cmp_lg_u32 s{S_BRT}, 0
s_cselect_b32 s13, s{T+14}, s13
s_add_u32 s13, s13, s{S_W}
v_lshlrev_b32 v{vDW}, 4, v{vCH}
v_mul_u32_u24 v{vT0}, 6912, v{vR8}
s_lshl_b32 s{T+14}, s{S_BCT}, 7
v_add3_u32 v{vDW}, v{vDW}, v{vT0}, s{T+14}""")

THR = f"s_waitcnt vmcnt({OPT['thr']})" if 'thr' in OPT else ''
THRO = f"s_waitcnt vmcnt({OPT['thro']})" if 'thro' in OPT else ''
def w_dma(a, n):
    for i in range(n):
        a(f"""s_lshl_b32 m0, s13, 10
s_mul_i32 s{T+14}, s13, {8*6912}
buffer_load_dwordx4 v{vDW}, {RB}, s{T+14} offen {NTW} lds
{THR}
s_add_u32 s13, s13, 8
s_sub_u32 s{T+14}, s13, 144
s_cmp_ge_u32 s13, 144
s_cselect_b32 s13, s{T+14}, s13""")

EW = int(OPT.get('ew', 0))
def prologue(a):
    a.raw(f".globl {NAME}\n.p2align 8\n.type {NAME},@function\n{NAME}:")
    a(f"""s_cmp_ge_u32 s2, 256
s_cbranch_scc1 L_end
s_load_dwordx16 s[16:31], s[0:1], 0""")
    if STAMP:
        a(f"{CLK} s[{S_ST}:{S_ST+1}]\ns_memtime s[96:97]")
        for i in range(1, 16):
            a(f"s_mov_b32 s{S_ST+2*i}, 0")
    a(f"""v_lshrrev_b32 v1, 6, v0
v_and_b32 v0, 63, v0
s_and_b32 s{S_G}, s2, 7
v_readfirstlane_b32 s{S_W}, v1
s_lshr_b32 s{S_SLOT}, s2, 3
s_mov_b32 s{S_TO}, 0x40000
v_lshlrev_b32 v{vL16}, 4, v0
v_lshrrev_b32 v{vHF}, 5, v0
v_and_b32 v{vTok}, 31, v0
s_mov_b32 s{S_TK}, s2""")
    if OPT.get('cpf') == '1':
        a(f"""s_cmp_lg_u32 s{S_W}, 7
s_cbranch_scc1 L_nocpf
s_getpc_b64 s[{T}:{T+1}]
L_pc:
s_sub_u32 s{T}, s{T}, L_pc-{NAME}
s_subb_u32 s{T+1}, s{T+1}, 0
s_lshl_b32 s{T+2}, s{S_SLOT}, 10
v_add_u32 v{vT0}, s{T+2}, v{vL16}
v_min_u32 v{vT0}, L_codeend-{NAME}-16, v{vT0}
global_load_dwordx4 v[240:243], v{vT0}, s[{T}:{T+1}]
L_nocpf:""")
    if OPT.get('lead', '1') == '1':
        a(f"""s_mul_i32 s{T}, s{S_G}, 27
s_add_u32 s{T}, s{T}, s{S_SLOT}
s_sub_u32 s{T}, s{T}, {NO}
s_lshr_b32 s{T+1}, s{T}, 2
s_sub_u32 s{T+2}, s{T}, s{T+1}
s_add_u32 s{T+2}, s{T+2}, 93
s_and_b32 s{T+3}, s{T+1}, 1
s_mul_i32 s{T+3}, s{T+3}, 27
s_lshr_b32 s{T+1}, s{T+1}, 1
s_add_u32 s{T+1}, s{T+1}, s{T+3}
s_add_u32 s{T+1}, s{T+1}, 40
s_and_b32 s{T}, s{T}, 3
s_cselect_b32 s{T+1}, s{T+2}, s{T+1}
s_cmp_ge_u32 s2, 40
s_cselect_b32 s{S_TK}, s{T+1}, s2""")
    sP, sCg, sKs, sOff, sRow = T, T+1, T+2, T+3, T+4
    a(f"""s_cmp_ge_u32 s{S_TK}, 64
s_cbranch_scc1 L_s0_nst""")
    vRW = 16
    a(f"""s_lshl_b32 s{sOff}, s{S_TK}, 3
s_add_u32 s{sOff}, s{sOff}, s{S_W}
s_mul_i32 s{sOff}, s{sOff}, 2304
v_mov_b32 v{vRW+8}, 0
v_mov_b32 v{vRW+9}, 0
v_mov_b32 v{vRW+10}, 0
v_mov_b32 v{vRW+11}, 0
s_and_b32 s{T+13}, s2, 1
s_lshr_b32 s{T+12}, s2, 1
s_lshl_b32 s{T+13}, s{T+13}, 3
s_add_u32 s{T+13}, s{T+13}, s{S_W}
v_lshrrev_b32 v{vR8}, 3, v0
v_mul_u32_u24 v{vT0}, 2304, v{vR8}
v_and_b32 v{vT1}, 7, v0
v_xor_b32 v{vT1}, v{vT1}, v{vR8}
v_lshl_add_u32 v{vT0}, v{vT1}, 4, v{vT0}
s_mul_i32 s{T+13}, s{T+13}, {32*2304}
s_lshl_b32 s{T+12}, s{T+12}, 7
s_add_u32 s{T+13}, s{T+13}, s{T+12}
s_lshl_b32 m0, s{S_W}, 12
s_waitcnt lgkmcnt(0)""")
    srd(a, R_C, S_X, SZ_X)
    a(f"""buffer_load_dwordx4 {vr(vRW,4)}, v{vL16}, {RC}, s{sOff} offen
buffer_load_dwordx4 {vr(vRW+4,4)}, v{vL16}, {RC}, s{sOff} offen offset:1024
s_mov_b64 exec, 0xffff
buffer_load_dwordx4 {vr(vRW+8,4)}, v{vL16}, {RC}, s{sOff} offen offset:2048
s_mov_b64 exec, -1
s_mov_b32 s{S_TAG}, {EPOCH + WSB}\ns_load_dword s{S_TAG}, s[{S_WS}:{S_WS+1}], s{S_TAG}""")
    a(f"s_cmp_ge_u32 s2, 36\ns_cbranch_scc1 L_s0_stats")
    if OPT.get('xb', '1') == '1':
        a("s_barrier")
    for q in range(4):
        a(f"buffer_load_dwordx4 v{vT0}, {RC}, s{T+13} offen lds")
        if q < 3:
            a(f"s_add_u32 s{T+13}, s{T+13}, {8*2304}\ns_add_u32 m0, m0, 1024\ns_nop 0")
    a(f"""s_branch L_s0_stats
L_s0_nst:
s_cmp_lt_u32 s{S_TK}, 94
s_cbranch_scc1 L_s0_none""")
    vW = 16
    vC = 32
    vSc = 36
    vTm = 44
    vAc = 52
    vRd = 68
    a(f"""s_sub_u32 s{sP}, s{S_TK}, 94
s_mul_i32 s{sKs}, s{sP}, 57
s_lshr_b32 s{sKs}, s{sKs}, 9
s_mul_i32 s{sCg}, s{sKs}, 9
s_sub_u32 s{sCg}, s{sP}, s{sCg}
s_lshl_b32 s{sRow}, s{sKs}, 3
s_add_u32 s{sRow}, s{sRow}, s{S_W}
s_lshl_b32 s{sRow}, s{sRow}, 3
v_and_b32 v{vT0}, 7, v0
v_lshlrev_b32 v{vT0}, 4, v{vT0}
v_bfe_u32 v{vT1}, v0, 3, 1
v_mul_u32_u24 v{vT1}, 2304, v{vT1}
v_lshrrev_b32 v{vT3}, 4, v0
v_mul_u32_u24 v{vT2}, {2*13824}, v{vT3}
v_add3_u32 v{vTm}, v{vT0}, v{vT1}, v{vT2}
v_lshlrev_b32 v{vT1}, 2, v{vT3}
s_lshl_b32 s{T+5}, s{sRow}, 1
s_mul_i32 s{sOff}, s{sRow}, 13824
s_lshl_b32 s{sRow}, s{sCg}, 7
s_add_u32 s{sOff}, s{sOff}, s{sRow}
s_add_u32 s{T+6}, s{sOff}, 13824
s_waitcnt lgkmcnt(0)""")
    srd(a, R_A, S_WMOD, SZ_WMOD)
    srd(a, R_C, S_C, SZ_C)
    a(f"""buffer_load_dword v{vC}, v{vT1}, {RC}, s{T+5} offen
buffer_load_dword v{vC+1}, v{vT1}, {RC}, s{T+5} offen offset:2304
buffer_load_dwordx4 {vr(vW,4)}, v{vTm}, {RA}, s{sOff} offen
buffer_load_dwordx4 {vr(vW+4,4)}, v{vTm}, {RA}, s{T+6} offen
s_mov_b32 s{S_TAG}, {EPOCH + WSB}
s_load_dword s{S_TAG}, s[{S_WS}:{S_WS+1}], s{S_TAG}
s_barrier
buffer_load_dwordx4 {vr(vW+8,4)}, v{vTm}, {RA}, s{sOff} offen offset:1152
buffer_load_dwordx4 {vr(vW+12,4)}, v{vTm}, {RA}, s{T+6} offen offset:1152""")
    srd(a, R_WS, S_WS, SZ_WS)
    lane_consts(a)
    b_setup(a)
    if EW:
        a("s_barrier")
        w_dma(a, EW)
    a(f"s_waitcnt vmcnt({4+EW})")
    for i in range(2):
        unpack(a, vSc+2*i, vSc+2*i+1, vC+i)
    for i in range(4):
        a(f"v_mul_f32 v{vTm+i}, 0xbfb8aa3b, v{vSc+i}")
    for i in range(4):
        a(f"v_exp_f32 v{vTm+i}, v{vTm+i}")
    for i in range(4):
        a(f"v_add_f32 v{vTm+i}, 1.0, v{vTm+i}")
    for i in range(4):
        a(f"v_rcp_f32 v{vTm+i}, v{vTm+i}")
    for i in range(4):
        a(f"v_mul_f32 v{vSc+i}, v{vSc+i}, v{vTm+i}")
    for i in range(2):
        a(f"v_cvt_pk_bf16_f32 v{vC+i}, v{vSc+2*i}, v{vSc+2*i+1}")
    for i in range(2):
        unpack(a, vSc+2*i, vSc+2*i+1, vC+i)
    a(f"""s_lshl_b32 s{sOff}, s{S_W}, 10
s_add_u32 s{sOff}, s{sOff}, {L_MISC}
v_and_b32 v{vT2}, 15, v0
v_lshlrev_b32 v{vT2}, 5, v{vT2}
v_lshl_add_u32 v{vT2}, v{vHF}, 9, v{vT2}
v_and_b32 v{vT1}, 16, v0
v_add3_u32 v{vT2}, v{vT2}, v{vT1}, s{sOff}
s_and_b32 s{sRow}, s{S_W}, 1
s_lshl_b32 s{sOff}, s{sRow}, 9
s_lshr_b32 s{T+5}, s{S_W}, 1
s_lshl_b32 s{T+6}, s{T+5}, 13
s_add_u32 s{sOff}, s{sOff}, s{T+6}
s_add_u32 s{sOff}, s{sOff}, {L_MISC}
v_lshlrev_b32 v{vT3}, 3, v0
v_add_u32 v{vT3}, s{sOff}, v{vT3}
s_mul_i32 s{sP}, s{T+5}, 9
s_add_u32 s{sP}, s{sP}, s{sCg}
s_lshl_b32 s{sP}, s{sP}, 1
s_add_u32 s{sP}, s{sP}, s{sRow}
s_mul_i32 s{sP}, s{sP}, 18
s_add_u32 s{sP}, s{sP}, s{sKs}
s_lshl_b32 s{sP}, s{sP}, 10
s_add_u32 s{sP}, s{sP}, {WS_PART}
v_and_b32 v{vT0}, 28, v0
v_lshlrev_b32 v{vT0}, 5, v{vT0}
v_lshl_add_u32 v{vT0}, v{vHF}, 6, v{vT0}
v_and_b32 v{vT1}, 3, v0
v_lshl_add_u32 v{vT0}, v{vT1}, 4, v{vT0}""")
    get_tag(a)
    E2 = 0
    for t in range(2):
        for n in range(2):
            a(f"s_waitcnt vmcnt({3-2*t-n+EW})")
            if t == 1 and n == 1: stamp(a, 8)
            for i in range(4):
                unpack(a, vTm+2*i, vTm+2*i+1, vW+8*t+4*n+i)
            for b in range(2):
                for j in range(8):
                    op = "v_mul_f32" if n == 0 else "v_fmac_f32"
                    a(f"{op} v{vAc+8*b+j}, v{vTm+j}, v{vSc+2*b+n}")
        a("s_nop 1")
        for j in range(8):
            a(f"v_permlane32_swap_b32 v{vAc+j}, v{vAc+8+j}")
        for j in range(8):
            a(f"v_add_f32 v{vAc+j}, v{vAc+j}, v{vAc+8+j}")
        a("s_nop 1")
        for j in range(4):
            a(f"v_permlane16_swap_b32 v{vAc+j}, v{vAc+4+j}")
        for j in range(4):
            a(f"v_add_f32 v{vAc+j}, v{vAc+j}, v{vAc+4+j}")
        lsk = a.label("pubsk")
        a(f"""ds_write_b128 v{vT2}, {vr(vAc,4)} offset:{8192*t}
s_waitcnt lgkmcnt(0)
s_barrier
s_cmp_lg_u32 s{T+5}, {t}
s_cbranch_scc1 {lsk}""")
        for w in range(8):
            a(f"ds_read_b64 {vr(vRd+2*w,2)}, v{vT3} offset:{w*1024}")
        a(f"""v_mov_b32 v85, v{vTAG}
v_mov_b32 v87, v{vTAG}
s_waitcnt lgkmcnt(4)
v_add_f32 v{vRd}, v{vRd}, v{vRd+2}
v_add_f32 v{vRd+1}, v{vRd+1}, v{vRd+3}
v_add_f32 v{vRd+4}, v{vRd+4}, v{vRd+6}
v_add_f32 v{vRd+5}, v{vRd+5}, v{vRd+7}
s_waitcnt lgkmcnt(0)
v_add_f32 v{vRd+8}, v{vRd+8}, v{vRd+10}
v_add_f32 v{vRd+9}, v{vRd+9}, v{vRd+11}
v_add_f32 v{vRd+12}, v{vRd+12}, v{vRd+14}
v_add_f32 v{vRd+13}, v{vRd+13}, v{vRd+15}
v_add_f32 v{vRd}, v{vRd}, v{vRd+4}
v_add_f32 v{vRd+1}, v{vRd+1}, v{vRd+5}
v_add_f32 v{vRd+8}, v{vRd+8}, v{vRd+12}
v_add_f32 v{vRd+9}, v{vRd+9}, v{vRd+13}
v_add_f32 v84, v{vRd}, v{vRd+8}
v_add_f32 v86, v{vRd+1}, v{vRd+9}
buffer_store_dwordx4 v[84:87], v{vT0}, {WS}, s{sP} offen sc1
{lsk}:""")
        if t == 0: stamp(a, 10)
    stamp(a, 9)
    if OPT.get('pack') == '1':
        a("s_waitcnt vmcnt(0)")
    if 'nopb' not in OPT:
        a("s_barrier")
    w_dma(a, 18-EW-E2)
    a("s_branch L_b")
    a("L_s0_stats:")
    srd(a, R_WS, S_WS, SZ_WS)
    lane_consts(a)
    lnx = a.label("nox"); ljx = a.label("jx")
    get_tag(a)
    a(f"s_cmp_ge_u32 s2, 36\ns_cbranch_scc1 {lnx}\ns_waitcnt vmcnt(4)\ns_branch {ljx}\n{lnx}:\ns_waitcnt vmcnt(0)\n{ljx}:")
    stamp(a, 8)
    s1, s2_, q1, q2 = 32, 33, 34, 35
    a(f"s_mov_b32 s{T+12}, 0x3f803f80")
    for i in range(0, 12, 2):
        c = lambda r: "0" if i == 0 else f"v{r}"
        a(f"""v_dot2_f32_bf16 v{s1}, v{vRW+i}, s{T+12}, {c(s1)}
v_dot2_f32_bf16 v{q1}, v{vRW+i}, v{vRW+i}, {c(q1)}
v_dot2_f32_bf16 v{s2_}, v{vRW+i+1}, s{T+12}, {c(s2_)}
v_dot2_f32_bf16 v{q2}, v{vRW+i+1}, v{vRW+i+1}, {c(q2)}""")
    a(f"""s_nop 2
v_add_f32 v{s1}, v{s1}, v{s2_}
v_add_f32 v{q1}, v{q1}, v{q2}""")
    for m in ("quad_perm:[1,0,3,2] row_mask:0xf", "quad_perm:[2,3,0,1] row_mask:0xf", "row_half_mirror row_mask:0xf", "row_mirror row_mask:0xf", "row_bcast:15 row_mask:0xa", "row_bcast:31 row_mask:0xc"):
        a(f"s_nop 0\nv_add_f32_dpp v{s1}, v{s1}, v{s1} {m} bank_mask:0xf\nv_add_f32_dpp v{q1}, v{q1}, v{q1} {m} bank_mask:0xf")
    g = 36
    a(f"""v_mul_f32 v{g}, 0x3a638e39, v{s1}
v_mul_f32 v{g+2}, 0x3a638e39, v{q1}
v_fma_f32 v{g+2}, -v{g}, v{g}, v{g+2}
v_max_f32 v{g+2}, 0, v{g+2}""")
    round_bf16(a, g+2)
    a(f"v_add_f32 v{g+2}, 0x3727c5ac, v{g+2}")
    round_bf16(a, g+2)
    a(f"v_sqrt_f32 v{g+2}, v{g+2}")
    round_bf16(a, g)
    round_bf16(a, g+2)
    lsk = a.label("stsk")
    a(f"""v_rcp_f32 v{g+2}, v{g+2}
v_mov_b32 v{g+1}, v{vTAG}
v_mov_b32 v{g+3}, v{vTAG}
s_lshl_b32 s{T+12}, s{S_W}, 4
s_add_u32 s{T+12}, s{T+12}, {L_STC}
v_mov_b32 v{vT0}, s{T+12}
s_mov_b32 exec_lo, 0
s_brev_b32 exec_hi, 1
ds_write_b128 v{vT0}, {vr(g,4)}
s_mov_b64 exec, -1
s_lshl_b32 s{T+12}, s{S_TK}, 7
s_add_u32 s{T+12}, s{T+12}, {F_STAT}
v_add_u32 v{vT0}, {L_STC}, v{vL16}
s_waitcnt lgkmcnt(0)
s_barrier
s_cmp_lg_u32 s{S_W}, 0
s_cbranch_scc1 {lsk}
s_mov_b64 exec, 0xff
ds_read_b128 {vr(g,4)}, v{vT0}
s_waitcnt lgkmcnt(0)
buffer_store_dwordx4 {vr(g,4)}, v{vL16}, {WS}, s{T+12} offen sc1
s_mov_b64 exec, -1
{lsk}:""")
    stamp(a, 9)
    a(f"s_cmp_lt_u32 s{S_SLOT}, {NO}\ns_cbranch_scc1 L_owner")
    if 'nopb' not in OPT:
        a("s_barrier")
    a("s_branch L_s0_w")
    a("L_s0_none:")
    a(f"s_waitcnt lgkmcnt(0)\ns_mov_b32 s{S_TAG}, {EPOCH + WSB}\ns_load_dword s{S_TAG}, s[{S_WS}:{S_WS+1}], s{S_TAG}")
    srd(a, R_WS, S_WS, SZ_WS)
    lane_consts(a)
    get_tag(a)
    if 'cw' in OPT:
        srd(a, R_C, S_C, SZ_C)
        a(f"buffer_load_dword v{vT1}, v{vL16}, {RC}, 0 offen\ns_waitcnt vmcnt(0)")
    a("L_s0_w:")
    b_setup(a)
    w_dma(a, 18)

VOX = 96

S_UCT, S_UTB = 9, 10
vDU = 14
KE = int(OPT.get('ke', 12))
def wo_dma(a, n0, n1):
    a(f"s_add_u32 s{T+10}, s{S_W}, {4*n0-4}")
    for n in range(n0, n1):
        a(f"""s_lshl_b32 m0, s{T+10}, 10
s_mul_i32 s{T+11}, s{T+10}, {8*2304}
buffer_load_dwordx4 v{vDU}, {RB}, s{T+11} offen lds""")
        if n < n1-1:
            a(f"s_add_u32 s{T+10}, s{T+10}, 4")

def gemm_loop(a, nsteps, LA, RING, vAcc, vWF, vH, vA0, vA1, vaddr, sH, lds_first, w_is_a, pre=None, rot=None, bar_at=None):
    WA = int(OPT.get('wa', 2))
    state = dict(issued=0)
    if rot:
        sR, sHs, sHe, sLo, sZ, sLe, vC0, vC1 = rot
        a(f"""s_mov_b32 s{sHs}, s{sH}
s_add_u32 s{sHe}, s{sH}, {nsteps*1024}
s_lshl_b32 s{sLo}, s{sR}, 12
s_add_u32 s{sH}, s{sH}, s{sLo}
s_lshl_b32 s{sLo}, s{sR}, 13
s_mov_b32 s{sZ}, 0
s_mov_b32 s{sLe}, {nsteps*2048}""")
    def hload():
        s = state['issued']
        a(f"buffer_load_dwordx4 {vr(vH+4*(s % RING),4)}, v{vaddr}, {WS}, s{sH} offen offset:{(s&3)*1024} sc1")
        if (s & 3) == 3 and s < nsteps-1:
            if rot: wrap_add(a, sH, 4096, sHe, sHs)
            else: a(f"s_add_u32 s{sH}, s{sH}, 4096")
        state['issued'] += 1
    def wread(s):
        if rot:
            if (s & 3) == 0:
                a(f"v_add_u32 v{vC0}, s{sLo}, v{vA0}\nv_add_u32 v{vC1}, s{sLo}, v{vA1}")
                wrap_add(a, sLo, 8192, sLe, sZ)
            trreads(a, vWF + 8*(s & 3), vC0, vC1, (s & 3)*2048)
            return
        if s and (s & 31) == 0:
            a(f"v_add_u32 v{vA0}, 0x10000, v{vA0}\nv_add_u32 v{vA1}, 0x10000, v{vA1}")
        trreads(a, vWF + 8*(s & 3), vA0, vA1, (s & 31)*2048)
    if lds_first:
        for s in range(WA): wread(s)
    for s in range(LA): hload()
    if pre: pre()
    if not lds_first:
        for s in range(WA): wread(s)
    for s in range(nsteps):
        lg = 4*min(WA-1, nsteps-1 - s)
        a(f"s_waitcnt vmcnt({state['issued'] - s - 1}) lgkmcnt({lg})")
        if s == 0 and lds_first: stamp(a, 4)
        h = vH+4*(s % RING); w0 = vWF+8*(s & 3)
        mfma(a, vAcc, *((w0, h) if w_is_a else (h, w0)), s == 0)
        if s + WA < nsteps:
            wread(s + WA)
        mfma(a, vAcc+16, *((w0+4, h) if w_is_a else (h, w0+4)), s == 0)
        if state['issued'] < nsteps:
            hload()
        if bar_at is not None and s == bar_at:
            a("s_barrier")

SZ = int(OPT['sz']) if 'sz' in OPT else None
UM = int(OPT.get('umap', 2)); UML = UM.bit_length()-1
vDX, vDXO = 236, 235
def d_tile(a):
    sQt, sCt, sCb, sKh, sOff, sXo, sJ, sU, sB, sCol = T, T+1, T+2, T+3, T+4, T+5, T+6, T+7, T+8, T+9
    a(f"""s_and_b32 s{sOff}, s{S_G}, 3
s_mul_i32 s{sOff}, s{sOff}, 18
s_min_u32 s{sJ}, s{S_SLOT}, 17
s_add_u32 s{sOff}, s{sOff}, s{sJ}
s_lshr_b32 s{sCt}, s{sOff}, 3
s_and_b32 s{sJ}, s{sOff}, 7
s_lshr_b32 s{sB}, s{S_G}, 2
s_lshl_b32 s{sQt}, s{sB}, 3
s_add_u32 s{sQt}, s{sQt}, s{sJ}
s_and_b32 s{sCb}, s{S_W}, 3
s_lshr_b32 s{sKh}, s{S_W}, 2
s_lshl_b32 s{sCol}, s{sCt}, 7
s_lshl_b32 s{sXo}, s{sQt}, 3
s_add_u32 s{sXo}, s{sXo}, s{S_W}
s_mul_i32 s{sXo}, s{sXo}, {4*2304}
s_lshl_b32 s{sOff}, s{sCol}, 1
s_add_u32 s{sXo}, s{sXo}, s{sOff}
v_lshrrev_b32 v{vDXO}, 4, v0
v_mul_u32_u24 v{vDXO}, 2304, v{vDXO}
v_and_b32 v{vT3}, 15, v0
v_lshl_add_u32 v{vDXO}, v{vT3}, 4, v{vDXO}""")

def phase_bc(a):
    sTb, sOff, sH, sF = T+1, T+4, T+5, T+6
    vA0, vA1 = V0+1, V0+2
    vAcc = 20
    vWF = 52
    vH = 84
    a("L_b:")
    stamp(a, 1)
    srd(a, R_B, S_WO, SZ_WO)
    srd(a, R_A, S_X, SZ_X)
    a(f"s_sub_u32 s{S_SLOT}, s{S_SLOT}, {NO}")
    d_tile(a)
    XL = OPT.get('xl', '1') == '1'
    xload = lambda: a(f"buffer_load_dwordx4 {vr(vDX,4)}, v{vDXO}, {RA}, s14 offen")
    a(f"s_mov_b32 s14, s{T+5}")
    if not XL:
        xload()
    a(f"""s_and_b32 s{T+14}, s{S_G}, {UM-1}
s_mul_i32 s{T+14}, s{T+14}, 18
s_add_u32 s{T+14}, s{T+14}, s{S_SLOT}
s_lshr_b32 s{S_UCT}, s{T+14}, {UML}
s_and_b32 s{T+14}, s{T+14}, {UM-1}
s_lshr_b32 s{S_UTB}, s{S_G}, {UML}
s_lshl_b32 s{S_UTB}, s{S_UTB}, {UML}
s_add_u32 s{S_UTB}, s{S_UTB}, s{T+14}
s_lshl_b32 s{S_UTB}, s{S_UTB}, 1
s_and_b32 s{T+14}, s{S_W}, 1
s_add_u32 s{S_UTB}, s{S_UTB}, s{T+14}
v_lshlrev_b32 v{vDU}, 4, v{vCH}
v_mul_u32_u24 v{vT0}, 2304, v{vR8}
s_lshl_b32 s{T+14}, s{S_UCT}, 7
v_add3_u32 v{vDU}, v{vDU}, v{vT0}, s{T+14}
s_lshl_b32 s{sTb}, s{S_BRT}, 2
s_and_b32 s{sOff}, s{S_W}, 3
s_add_u32 s{sTb}, s{sTb}, s{sOff}
s_mul_i32 s{sH}, s{sTb}, {72*1024}
s_add_u32 s{sH}, s{sH}, {WS_H}
v_mov_b32 v{vA0}, v{vB0}
v_mov_b32 v{vA1}, v{vB1}
v_min_u32 v{vT0}, 17, v0
v_lshlrev_b32 v{vT0}, 7, v{vT0}
s_lshr_b32 s{sOff}, s{S_BRT}, 1
s_mul_i32 s{sOff}, s{sOff}, {18*128}
s_add_u32 s{sOff}, s{sOff}, {F_H}
s_mul_i32 s{sF}, s{sTb}, 54
s_add_u32 s{sF}, s{sF}, s{S_BCT}
s_lshl_b32 s{sF}, s{sF}, 7
s_add_u32 s{sF}, s{sF}, {F_QKV}
s_waitcnt vmcnt(0)""")
    a("s_barrier")
    stamp(a, 2)
    a(f"s_cmp_ge_u32 s{S_W}, 4\ns_cbranch_scc1 L_ld")
    HPWG = OPT.get('hp', 'w') == 'wg'
    G1 = int(OPT.get('g1', 9))
    if G1:
        assert SZ is None and not HPWG
        a(f"v_min_u32 v{vT0}, {(G1-1)*128}, v{vT0}")
    if HPWG:
        poll(a, vT0, f"s{sOff}", vT1)
    else:
        wpoll(a, vT0, f"s{sOff}", vT1)
    stamp(a, 3)
    LA = int(OPT['la'])
    BR = int(OPT.get('brot', 0))
    if BR:
        a(f"s_mul_i32 s{T+8}, s{S_G}, {BR}")
    gemm_loop(a, 72, LA, LA+4, vAcc, vWF, vH, vA0, vA1, vL16, sH, True, True, bar_at=(4*G1 - int(OPT['la']) - 1 if G1 else SZ),
              rot=(T+8, T+9, T+10, T+11, T+12, T+13, V0, V0+3) if BR else None)
    stamp(a, 5)
    a(f"""s_mul_i32 s{sH}, s{sTb}, {216*1024}
s_lshl_b32 s{sOff}, s{S_BCT}, 12
s_add_u32 s{sH}, s{sH}, s{sOff}
s_add_u32 s{sH}, s{sH}, {WS_QKV}
s_nop 7""")
    for u in range(4):
        if u == 2:
            a("s_nop 1")
        for r in range(4*u, 4*u+4):
            a(f"v_cvt_pk_bf16_f32 v{vWF+r}, v{vAcc+2*r}, v{vAcc+2*r+1}")
        a(f"buffer_store_dwordx4 {vr(vWF+4*u,4)}, v{vL16}, {WS}, s{sH} offen offset:{1024*u} sc1")
    a("s_barrier")
    stamp(a, 6)
    sKh = T+2
    a(f"""s_lshr_b32 s{sKh}, s{S_W}, 1
s_mul_i32 s{sH}, s{S_UTB}, {216*1024}
s_mul_i32 s{sOff}, s{sKh}, {36*1024}
s_add_u32 s{sH}, s{sH}, s{sOff}
s_add_u32 s{sH}, s{sH}, {WS_QKV + 144*1024}
s_mul_i32 s{sOff}, s{sKh}, {576*128}
v_add_u32 v{vA0}, s{sOff}, v{vB0}
v_add_u32 v{vA1}, s{sOff}, v{vB1}
v_min_u32 v{vT0}, 8, v0
v_lshlrev_b32 v{vT0}, 7, v{vT0}
s_mul_i32 s{T+7}, s{S_UTB}, {54*128}
s_mul_i32 s{sOff}, s{sKh}, {9*128}
s_add_u32 s{T+7}, s{T+7}, s{sOff}
s_add_u32 s{T+7}, s{T+7}, {F_QKV + 36*128}
s_waitcnt vmcnt(0)""")
    raw_flag(a, f"s{sF}")
    a("s_barrier")
    stamp(a, 7)
    a(f"s_cmp_ge_u32 s{S_SLOT}, 18\ns_cbranch_scc1 L_c_notu")
    if XL:
        xload()
    if 'udelay' in OPT:
        a(f"s_sleep {OPT['udelay']}")
    UROT = int(OPT.get('urot', 0))
    if UROT:
        a(f"s_mul_i32 s{T+8}, s{S_G if 'urg' in OPT else S_UCT}, {UROT}")
        mod9(a, T+8, T+8, T+9)
    wpoll(a, vT0, f"s{T+7}", vT1)
    stamp(a, 12)
    LA = int(OPT.get('lau', 12))
    gemm_loop(a, 36, LA, min(36, LA+4), vAcc, vWF, vH, vA0, vA1, vP16, sH, False, False, pre=lambda: (a("s_barrier"), stamp(a, 11)),
              rot=(T+8, T+9, T+10, T+11, T+12, T+13, V0, V0+3) if UROT else None)
    stamp(a, 13)
    lk1 = a.label("kh1"); lj = a.label("j")
    a(f"""s_lshl_b32 s{sOff}, s{S_W}, 12
s_add_u32 s{sOff}, s{sOff}, {L_MISC}
v_add_u32 v{vT0}, s{sOff}, v{vL16}
v_xor_b32 v{vT1}, {2*4096}, v{vT0}
s_lshr_b32 s{sH}, s{S_UTB}, 3
s_mul_i32 s{sF}, s{sH}, 18
s_add_u32 s{sF}, s{sF}, s{S_UCT}
s_lshl_b32 s{sH}, s{sF}, 1
s_add_u32 s{sH}, s{sH}, s{sKh}
s_lshl_b32 s{sH}, s{sH}, 3
s_and_b32 s{sOff}, s{S_UTB}, 7
s_add_u32 s{sH}, s{sH}, s{sOff}
s_lshl_b32 s{sF}, s{sH}, 7
s_add_u32 s{sF}, s{sF}, {F_U}
s_lshl_b32 s{sH}, s{sH}, 11
s_add_u32 s{sH}, s{sH}, {WS_U}
s_cmp_lg_u32 s{sKh}, 0
s_cbranch_scc1 {lk1}""")
    for q in range(4):
        a(f"ds_write_b128 v{vT0}, {vr(vAcc+16+4*q,4)} offset:{q*1024}")
    a(f"s_branch {lj}\n{lk1}:")
    for q in range(4):
        a(f"ds_write_b128 v{vT0}, {vr(vAcc+4*q,4)} offset:{q*1024}")
    for r in range(16):
        a(f"v_mov_b32 v{vAcc+r}, v{vAcc+16+r}")
    a(f"{lj}:\ns_waitcnt lgkmcnt(0)\ns_barrier")
    for q in range(4):
        a(f"ds_read_b128 {vr(vWF+4*q,4)}, v{vT1} offset:{q*1024}")
    for u in range(2):
        a(f"s_waitcnt lgkmcnt({2-2*u})")
        for r in range(8*u, 8*u+8):
            a(f"v_add_f32 v{vAcc+r}, v{vAcc+r}, v{vWF+r}")
        for r in range(4*u, 4*u+4):
            a(f"v_cvt_pk_bf16_f32 v{vWF+16+r}, v{vAcc+2*r}, v{vAcc+2*r+1}")
        a(f"buffer_store_dwordx4 {vr(vWF+16+4*u,4)}, v{vL16}, {WS}, s{sH} offen offset:{1024*u} sc1")
    if OPT.get('fb', '1') == '1':
        a("s_waitcnt vmcnt(0)")
        raw_flag(a, f"s{sF}")
        a("s_barrier")
    else:
        a("s_barrier\ns_waitcnt vmcnt(0)")
        raw_flag(a, f"s{sF}")
    a("s_branch L_c_done")
    lnu = a.label("ldnu")
    vWo = 20
    NE = int(OPT.get('ne', 18))
    a("L_ld:")
    if 'tlb' in OPT:
        sh = int(OPT['tlb'])
        lt = a.label("tlb")
        srd(a, R_A, S_OUT, SZ_X)
        srd(a, R_C, S_WS, 0x700000)
        a(f"s_cmp_lg_u32 s{S_W}, 7\ns_cbranch_scc1 {lt}\nv_lshlrev_b32 v{vT2}, {sh}, v0\nv_add_u32 v{vT2}, {(1<<sh)-128}, v{vT2}")
        a(f"buffer_load_dword v236, v{vT2}, {RA}, 0 offen")
        for off in range(0, 0x700000, 64 << sh):
            a(f"v_add_u32 v{vT1}, {off}, v{vT2}\nbuffer_load_dword v237, v{vT1}, {RC}, 0 offen sc1")
        a(f"{lt}:")
    NA = int(OPT.get('na', 0))
    a(f"""s_cmp_ge_u32 s{S_SLOT}, 18
s_cbranch_scc1 {lnu}
s_sub_u32 s{T+10}, s{S_W}, 4
s_lshl_b32 s{T+11}, s{T+10}, 10
v_add_u32 v{vT0}, s{T+11}, v{vL16}
s_bfe_u32 s{T+12}, s{S_UTB}, 0x10001
s_mul_i32 s{T+12}, s{T+12}, 72
s_bfe_u32 s{T+11}, s{S_UTB}, 0x10002
s_mul_i32 s{T+11}, s{T+11}, {36 if UM > 2 else 0}
s_add_u32 s{T+12}, s{T+12}, s{T+11}
s_add_u32 s{T+10}, s{T+10}, s{T+12}
s_lshl_b32 s{T+12}, s{T+12}, 10""")
    def nxt(n):
        if n < 35:
            a(f"s_add_u32 s{T+10}, s{T+10}, 4")
            if n % 9 == 8:
                a(f"""s_sub_u32 s{T+11}, s{T+10}, 144
s_cmp_ge_u32 s{T+10}, 144
s_cselect_b32 s{T+10}, s{T+11}, s{T+10}""")
    for n in range(NE):
        if SZ is not None and n == NA:
            a("s_barrier")
        a(f"""s_mul_i32 s{T+11}, s{T+10}, {8*2304}
buffer_load_dwordx4 {vr(vWo+4*n,4)}, v{vDU}, {RB}, s{T+11} offen {NTO}
{THRO}""")
        nxt(n)
    stamp(a, 4)
    def hall():
        l7 = a.label("w7")
        a(f"""s_cmp_lg_u32 s{S_W}, 7
s_cbranch_scc1 {l7}
v_min_u32 v{vT2}, 17, v0
v_lshlrev_b32 v{vT2}, 7, v{vT2}""")
        wpoll(a, vT2, f"s{sOff}", vT1)
        a(f"{l7}:\ns_barrier")
    if G1:
        hall()
    if HPWG:
        a("s_barrier")
    a("s_barrier")
    stamp(a, 5)
    WS_ = min(NE, int(OPT.get('wsplit', 12)))
    def wr(n):
        if n % 9 == 0:
            a(f"v_add_u32 v{vT1}, s{T+12}, v{vT0}")
            a(f"""s_add_u32 s{T+12}, s{T+12}, {36*1024}
s_cmp_ge_u32 s{T+12}, {144*1024}
s_cselect_b32 s{T+12}, 0, s{T+12}""")
        a(f"ds_write_b128 v{vT1}, {vr(vWo+4*n,4)} offset:{(n % 9)*4096}")
    KD = min(36-NE, int(OPT.get('kd', 0)))
    def dm(n):
        a(f"""s_lshl_b32 m0, s{T+10}, 10
s_mul_i32 s{T+11}, s{T+10}, {8*2304}
buffer_load_dwordx4 v{vDU}, {RB}, s{T+11} offen lds""")
        nxt(n)
    a("s_waitcnt vmcnt(0)")
    for n in range(NE, NE+KD): dm(n)
    for n in range(WS_): wr(n)
    a("s_barrier")
    if 'dfirst' in OPT:
        a("s_nop 15")
        for n in range(NE+KD, 36): dm(n)
        for n in range(WS_, NE): wr(n)
    else:
        for n in range(WS_, NE): wr(n)
        for n in range(NE+KD, 36): dm(n)
    a(f"""s_waitcnt vmcnt(0) lgkmcnt(0)""")
    stamp(a, 11)
    lg4 = a.label("g4")
    a("s_barrier")
    if XL:
        xload()
        a("s_waitcnt vmcnt(0)")
    a(f"""s_cmp_lg_u32 s{S_W}, 4
s_cbranch_scc1 {lg4}""")
    d_tile(a)
    a(f"""s_lshr_b32 s{T+10}, s{T+9}, 6
s_lshl_b32 s{T+10}, s{T+10}, 7
s_add_u32 s{T+10}, s{T+10}, {F_G}
v_and_b32 v{vT0}, 1, v0
v_lshlrev_b32 v{vT0}, 7, v{vT0}
s_mul_i32 s{T+11}, s{T+8}, 4608
s_lshl_b32 s{T+12}, s{T+9}, 2
s_add_u32 s{T+11}, s{T+11}, s{T+12}
s_add_u32 s{T+11}, s{T+11}, {WS_GATE}
v_lshlrev_b32 v{vT2}, 3, v0""")
    wpoll(a, vT0, f"s{T+10}", vT1)
    a(f"""buffer_load_dwordx2 v[20:21], v{vT2}, {WS}, s{T+11} offen sc1
s_waitcnt vmcnt(0)
s_barrier
ds_write_b64 v{vT2}, v[20:21] offset:{L_GATE}
s_waitcnt lgkmcnt(0)
s_barrier
s_branch L_c_done
{lg4}:
s_barrier
s_barrier
s_branch L_c_done
{lnu}:""")
    if G1:
        hall()
    a(f"""s_barrier
s_barrier""")
    if SZ is not None:
        a("s_barrier")
    if HPWG:
        a("s_barrier")
    a("L_c_notu:")
    sQb, sKb, sKq, sJ, sK, sQ, sTy = T, T+1, T+2, T+3, T+5, T+6, T+9
    sM = T+10
    sK1 = T+12
    vS = 56
    RING = 15
    SW = OPT.get('sw', '1') == '1'
    SPW = f"""s_mul_i32 s{sOff}, s{sKq}, 18
s_add_u32 s{T+13}, s{sOff}, 17
s_lshr_b32 s{sOff}, s{sOff}, 2
s_lshr_b32 s{T+13}, s{T+13}, 2
v_add_u32 v{vT0}, s{sOff}, v{vTok}
v_min_u32 v{vT0}, s{T+13}, v{vT0}""" if SW else f"v_min_u32 v{vT0}, 17, v{vTok}"
    a(f"""s_sub_u32 s{sJ}, s{S_SLOT}, 18
s_lshr_b32 s{sTy}, s{sJ}, 2
s_and_b32 s{sKq}, s{S_W}, 3
s_and_b32 s{sQb}, s{S_G}, 1
s_lshl_b32 s{sQb}, s{sQb}, 2
s_and_b32 s{sOff}, s{sJ}, 3
s_add_u32 s{sQb}, s{sQb}, s{sOff}
s_and_b32 s{sKb}, s{S_G}, 2
s_lshl_b32 s{sKb}, s{sKb}, 1
s_lshr_b32 s{sOff}, s{S_G}, 2
s_lshl_b32 s{sOff}, s{sOff}, 3
s_add_u32 s{sQb}, s{sQb}, s{sOff}
s_add_u32 s{sKb}, s{sKb}, s{sOff}
s_min_u32 s{sK1}, s{sTy}, 1
s_add_u32 s{sK1}, s{sK1}, s{sTy}
s_mul_i32 s{sK}, s{sKb}, {216*1024}
s_mul_i32 s{sQ}, s{sQb}, {216*1024}
s_mul_i32 s{sOff}, s{sKq}, {18*1024}
s_add_u32 s{sK}, s{sK}, s{sOff}
s_add_u32 s{sQ}, s{sQ}, s{sOff}
s_add_u32 s{sK}, s{sK}, {WS_QKV + 72*1024}
s_add_u32 s{sQ}, s{sQ}, {WS_QKV}
s_mul_i32 s{sOff}, s{sKq}, 18
s_add_u32 s{T+13}, s{sOff}, 17
s_lshr_b32 s{sOff}, s{sOff}, 2
s_lshr_b32 s{T+13}, s{T+13}, 2
v_and_b32 v{vT0}, 7, v0
v_add_u32 v{vT0}, s{sOff}, v{vT0}
v_min_u32 v{vT0}, s{T+13}, v{vT0}
s_mul_i32 s{sOff}, s{sQb}, 54
v_mov_b32 v{vT1}, s{sOff}
s_add_u32 s{sOff}, s{sKb}, s{sK1}
s_mul_i32 s{sOff}, s{sOff}, 54
s_add_u32 s{sOff}, s{sOff}, 18
v_mov_b32 v{vT2}, s{sOff}
v_cmp_lt_u32 vcc, 7, v0
s_mul_i32 s{sOff}, s{sKb}, 54
s_add_u32 s{sOff}, s{sOff}, {54+18}
v_cndmask_b32 v{vT1}, v{vT1}, v{vT2}, vcc
v_mov_b32 v{vT2}, s{sOff}
v_cmp_lt_u32 vcc, 15, v0
s_nop 1
v_cndmask_b32 v{vT1}, v{vT1}, v{vT2}, vcc
v_add_u32 v{vT0}, v{vT0}, v{vT1}
v_lshlrev_b32 v{vT0}, 7, v{vT0}
v_and_b32 v{vT2}, 0x2ff, v{vP16}
v_and_b32 v{vT1}, 16, v0
v_lshl_add_u32 v{vT2}, v{vT1}, 6, v{vT2}
s_and_b32 s{sOff}, s{sTy}, 1
s_lshl_b32 s{sOff}, s{sOff}, 8
s_add_u32 s{sOff}, s{sOff}, {216*1024}
v_add_u32 v{vT2}, s{sOff}, v{vT2}
s_mul_i32 s{sOff}, s{sK1}, {216*1024}
v_add_u32 v{V0}, s{sOff}, v{vP16}
s_mov_b32 s{sOff}, {F_QKV}""")
    lsi = a.label("sidle")
    if not SW:
        poll(a, vT0, f"s{sOff}", vT1)
    a(f"s_cmp_ge_u32 s{S_W}, 4\ns_cbranch_scc1 {lsi}")
    if SW:
        wpoll(a, vT0, f"s{sOff}", vT1)
    stamp(a, 12)
    LA = int(OPT.get('las', 4))
    vS = 72; RING = 8
    vAc3 = 56
    assert LA < RING
    def sload(p):
        r = vS + 20*(p % RING)
        o = (p & 1)*2048
        a(f"""buffer_load_dwordx4 {vr(r,4)}, v{vL16}, {WS}, s{sQ} offen offset:{o} sc1
buffer_load_dwordx4 {vr(r+4,4)}, v{V0}, {WS}, s{sK} offen offset:{o} sc1
buffer_load_dwordx4 {vr(r+8,4)}, v{vT2}, {WS}, s{sK} offen offset:{o} sc1
buffer_load_dwordx4 {vr(r+12,4)}, v{vL16}, {WS}, s{sQ} offen offset:{o+1024} sc1
buffer_load_dwordx4 {vr(r+16,4)}, v{V0}, {WS}, s{sK} offen offset:{o+1024} sc1""")
        if p & 1:
            a(f"s_add_u32 s{sK}, s{sK}, 4096\ns_add_u32 s{sQ}, s{sQ}, 4096")
    for p in range(LA):
        sload(p)
    for p in range(9):
        y = 5*(min(9, p + LA) - p - 1)
        r = vS + 20*(p % RING)
        a(f"s_waitcnt vmcnt({y+3})")
        mfma(a, vAcc, r+4, r, p == 0)
        a(f"s_waitcnt vmcnt({y+2})")
        mfma(a, vAcc+16, r+8, r, p == 0)
        a(f"s_waitcnt vmcnt({y+1})")
        mfma(a, vAc3, r+8, r+12, p == 0)
        a(f"s_waitcnt vmcnt({y})")
        mfma(a, vAcc, r+16, r+12)
        if p + LA < 9:
            sload(p + LA)
    stamp(a, 13)
    QS, HS, PSZ = 1056, 528, 8448
    a(f"""s_mul_i32 s{sOff}, s{S_W}, {PSZ}
v_lshl_add_u32 v{vT0}, v{vHF}, 4, v{vL16}
v_add_u32 v{vT0}, s{sOff}, v{vT0}
s_nop 7""")
    for r in range(8):
        a(f"v_add_f32 v{vAcc+16+r}, v{vAcc+16+r}, v{vAc3+8+r}")
    for q in (4, 5, 0, 1, 2, 3):
        a(f"ds_write_b128 v{vT0}, {vr(vAcc+4*q,4)} offset:{q*QS}")
    a(f"""{lsi}:
v_bfe_u32 v{vT1}, v0, 2, 2
v_and_b32 v{vT2}, 1, v0
v_lshl_add_u32 v{vT1}, v{vT1}, 1, v{vT2}
v_mul_u32_u24 v{vT1}, {QS}, v{vT1}
v_bfe_u32 v{vT2}, v0, 1, 1
v_mul_u32_u24 v{vT2}, {HS}, v{vT2}
v_lshrrev_b32 v{vT0}, 4, v0
s_lshl_b32 s{sOff}, s{S_W}, 2
v_add_u32 v{vT0}, s{sOff}, v{vT0}
v_lshl_add_u32 v{vT1}, v{vT0}, 4, v{vT1}
v_add_u32 v{vT1}, v{vT1}, v{vT2}
v_and_b32 v{vT2}, 7, v0
v_lshlrev_b32 v{vT2}, 4, v{vT2}
v_lshl_add_u32 v{vT2}, v{vT0}, 10, v{vT2}
s_lshl_b32 s{sOff}, s{sK1}, 7
v_mov_b32 v{vT0}, s{sOff}
v_and_b32 v{vT3}, 8, v0
v_cmp_ne_u32 vcc, 0, v{vT3}
s_and_b32 s{sOff}, s{sTy}, 1
s_lshl_b32 s{sOff}, s{sOff}, 6
s_add_u32 s{sOff}, s{sOff}, 128
v_mov_b32 v{vT3}, s{sOff}
s_lshl_b32 s{sJ}, s{sQb}, 15
v_cndmask_b32 v{vT0}, v{vT0}, v{vT3}, vcc
v_add_u32 v{vT2}, v{vT2}, v{vT0}
s_and_b32 s{sOff}, s{sKb}, 7
s_lshl_b32 s{sOff}, s{sOff}, 7
s_add_u32 s{sJ}, s{sJ}, s{sOff}
s_add_u32 s{sJ}, s{sJ}, {WS_L}
s_lshl_b32 s{sK}, s{sQb}, 3
s_add_u32 s{sK}, s{sK}, s{S_W}
s_mul_i32 s{sK}, s{sK}, 6
s_bfe_u32 s{sOff}, s{sKb}, 0x10002
s_mul_i32 s{sOff}, s{sOff}, 3
s_add_u32 s{sK}, s{sK}, s{sOff}
s_add_u32 s{sK}, s{sK}, s{sTy}
s_lshl_b32 s{sK}, s{sK}, 7
s_add_u32 s{sK}, s{sK}, {F_LH}
s_mov_b32 s{sM}, 0x0fff0fff
s_cmp_eq_u32 s{sTy}, 2
s_cselect_b32 s{sM}, 0x00ff00ff, s{sM}
s_mov_b32 s{sM+1}, s{sM}
v_mov_b32 v53, v{vTAG}
v_mov_b32 v55, v{vTAG}
s_waitcnt lgkmcnt(0)
s_barrier""")
    for j in range(4):
        a(f"ds_read_b128 {vr(vAcc+4*j,4)}, v{vT1} offset:{j*PSZ}")
    a("s_waitcnt lgkmcnt(2)")
    for r in range(4):
        a(f"v_add_f32 v{vAcc+r}, v{vAcc+r}, v{vAcc+4+r}")
    a("s_waitcnt lgkmcnt(0)")
    for r in range(4):
        a(f"v_add_f32 v{vAcc+8+r}, v{vAcc+8+r}, v{vAcc+12+r}")
    for r in range(4):
        a(f"v_add_f32 v{vAcc+r}, v{vAcc+r}, v{vAcc+8+r}")
    sc = struct.unpack('<I', struct.pack('<f', D ** -0.5))[0]
    for r in range(2):
        a(f"v_cvt_pk_bf16_f32 v{52+2*r}, v{vAcc+2*r}, v{vAcc+2*r+1}")
    for r in range(2):
        unpack(a, vAcc+2*r, vAcc+2*r+1, 52+2*r)
    for r in range(4):
        a(f"v_mul_f32 v{vAcc+r}, {hex(sc)}, v{vAcc+r}")
    for r in range(2):
        a(f"v_cvt_pk_bf16_f32 v{52+2*r}, v{vAcc+2*r}, v{vAcc+2*r+1}")
    a(f"s_mov_b64 exec, s[{sM}:{sM+1}]\nbuffer_store_dwordx4 v[52:55], v{vT2}, {WS}, s{sJ} offen sc1\ns_mov_b64 exec, -1")
    raw_flag(a, f"s{sK}")
    a("L_c_done:")
    stamp(a, 14)

def phase_d(a):
    sQt, sCt, sCb, sKh, sOff, sXo, sJ, sU, sB, sCol = T, T+1, T+2, T+3, T+4, T+5, T+6, T+7, T+8, T+9
    vXo, vMx, vS, vLa, vPa, vLw = vDXO, V0+1, V0+2, V0+3, V0+4, V0+5
    vLd = 24
    vX = vDX
    vG = 44
    vF = 56
    vR = 72
    vAcc = 80
    vU = 96
    vP = 128
    PS = 1056
    L_P, L_EX = 40960, 65536
    srd(a, R_B, S_OUT, SZ_X)
    a(f"s_cmp_ge_u32 s{S_SLOT}, 18\ns_cbranch_scc1 L_fin")
    d_tile(a)
    a(f"""s_mul_i32 s{sU}, s{sB}, 36
s_lshl_b32 s{sOff}, s{sCt}, 2
s_add_u32 s{sU}, s{sU}, s{sOff}
s_add_u32 s{sU}, s{sU}, s{sCb}
s_lshl_b32 s{sU}, s{sU}, 4
s_lshl_b32 s{sOff}, s{sKh}, 3
s_add_u32 s{sU}, s{sU}, s{sOff}
s_lshl_b32 s{T+10}, s{sU}, 6
s_add_u32 s{T+10}, s{T+10}, {F_U}
s_lshl_b32 s{sU}, s{sU}, 10
s_add_u32 s{sU}, s{sU}, {WS_U}
v_and_b32 v{vT0}, 3, v0
v_lshlrev_b32 v{vT0}, 7, v{vT0}
v_add_u32 v{vT1}, s{T+10}, v{vT0}
s_lshl_b32 s{sOff}, s{sQt}, 3
s_add_u32 s{sOff}, s{sOff}, s{S_W}
s_mul_i32 s{sOff}, s{sOff}, {6*128}
s_add_u32 s{sOff}, s{sOff}, {F_LH}
v_min_u32 v{vT2}, 5, v0
v_lshlrev_b32 v{vT2}, 7, v{vT2}
v_add_u32 v{vT2}, s{sOff}, v{vT2}
v_cmp_gt_u32 vcc, 8, v0
v_and_b32 v{vT3}, 15, v0
v_lshrrev_b32 v{vT0}, 4, v0
v_cndmask_b32 v{vT1}, v{vT1}, v{vT2}, vcc
s_lshl_b32 s{sOff}, s{S_W}, 2
v_add_u32 v{vT0}, s{sOff}, v{vT0}
v_lshlrev_b32 v{vLa}, 10, v{vT0}
v_lshl_add_u32 v{vLa}, v{vT3}, 4, v{vLa}
v_lshrrev_b32 v{vT2}, 1, v{vT3}
v_mul_u32_u24 v{vLw}, {PS//2}, v{vT2}
v_lshl_add_u32 v{vLw}, v{vT0}, 4, v{vLw}
v_and_b32 v{vT2}, 1, v0
v_lshl_add_u32 v{vLw}, v{vT2}, 3, v{vLw}
v_lshl_add_u32 v{vPa}, v{vHF}, 4, v{vL16}
s_mul_i32 s{sOff}, s{sKh}, {8*PS}
v_add_u32 v{vPa}, s{sOff}, v{vPa}
v_lshlrev_b32 v{vT0}, 5, v{vT3}
ds_read_b128 {vr(vG,4)}, v{vT0} offset:{L_GATE}
ds_read_b128 {vr(vG+4,4)}, v{vT0} offset:{L_GATE+16}
s_lshl_b32 s{sOff}, s{sQt}, 15
s_add_u32 s{sOff}, s{sOff}, {WS_L}""")
    vFa, vFl = 22, 23
    sUd = T+12
    def uloads():
        for s in range(8):
            a(f"buffer_load_dwordx4 {vr(vU+4*s,4)}, v{vL16}, {WS}, s{sU} offen offset:{(s&3)*1024} sc1")
            if s == 3:
                a(f"s_add_u32 s{sU}, s{sU}, 4096")
        a(f"s_mov_b32 s{sUd}, 1")
        stamp(a, 8)
    l = a.label("lp"); d = a.label("lpd"); nu = a.label("nu"); l3 = a.label("lv"); d3 = a.label("lvd"); nu2 = a.label("nu2")
    def lloads():
        for n in range(4):
            a(f"buffer_load_dwordx4 {vr(vLd+4*n,4)}, v{vLa}, {WS}, s{sOff} offen offset:{256*n} sc1")
    a(f"""v_mov_b32 v{vFa}, v{vT1}
s_mov_b32 s{sUd}, 0
{l}:
buffer_load_dword v{vFl}, v{vFa}, {WS}, 0 offen {PF}
s_waitcnt vmcnt(0)
v_cmp_ne_u32 vcc, s{S_TAG}, v{vFl}
s_and_b32 s{T+13}, vcc_lo, 255
s_cbranch_scc0 {d}
s_lshr_b32 s{T+13}, vcc_lo, 8
s_or_b32 s{T+13}, s{T+13}, s{sUd}
s_cbranch_scc1 {nu}""")
    uloads()
    a(f"""{nu}:
s_sleep {OPT.get('lsleep', 1)}
s_sub_u32 s{S_TO}, s{S_TO}, 1
s_cmp_lg_u32 s{S_TO}, 0
s_cbranch_scc1 {l}
s_mov_b32 s{S_TO}, 1
{d}:""")
    lloads()
    a(f"""s_lshr_b32 s{T+13}, vcc_lo, 8
s_or_b32 s{T+13}, s{T+13}, s{sUd}
s_cbranch_scc1 {nu2}""")
    if 'ul' in OPT:
        a(f"s_waitcnt vmcnt({OPT['ul']})")
    uloads()
    a(f"""s_waitcnt vmcnt(8)
s_branch {l3}_c
{nu2}:
buffer_load_dword v{vFl}, v{vFa}, {WS}, 0 offen {PF}
s_waitcnt vmcnt(1)
s_branch {l3}_c
{l3}:""")
    lloads()
    a(f"""s_waitcnt vmcnt(0)
{l3}_c:
v_min_u32 v{vT1}, v{vLd+1}, v{vLd+3}
v_max_u32 v{vT2}, v{vLd+1}, v{vLd+3}""")
    for n in range(1, 4):
        a(f"v_min3_u32 v{vT1}, v{vT1}, v{vLd+4*n+1}, v{vLd+4*n+3}\nv_max3_u32 v{vT2}, v{vT2}, v{vLd+4*n+1}, v{vLd+4*n+3}")
    a(f"""v_cmp_ne_u32 vcc, s{S_TAG}, v{vT1}
v_cmp_ne_u32 s[{T+14}:{T+15}], s{S_TAG}, v{vT2}
s_or_b64 vcc, vcc, s[{T+14}:{T+15}]
s_cbranch_vccz {d3}
s_sub_u32 s{S_TO}, s{S_TO}, 1
s_cmp_lg_u32 s{S_TO}, 0
s_cbranch_scc1 {l3}
s_mov_b32 s{S_TO}, 1
{d3}:""")
    stamp(a, 9)
    for i in range(8):
        unpack(a, vF+2*i, vF+2*i+1, vLd+2*i)
    a(f"""v_max3_f32 v{vMx}, v{vF}, v{vF+1}, v{vF+2}
v_max3_f32 v{vS}, v{vF+3}, v{vF+4}, v{vF+5}
v_max3_f32 v{vMx}, v{vMx}, v{vF+6}, v{vF+7}
v_max3_f32 v{vS}, v{vS}, v{vF+8}, v{vF+9}
v_max3_f32 v{vMx}, v{vMx}, v{vF+10}, v{vF+11}
v_max3_f32 v{vS}, v{vS}, v{vF+12}, v{vF+13}
v_max3_f32 v{vMx}, v{vMx}, v{vF+14}, v{vF+15}
v_max_f32 v{vMx}, v{vMx}, v{vS}""")
    for m in ("quad_perm:[1,0,3,2]", "quad_perm:[2,3,0,1]", "row_half_mirror", "row_mirror"):
        a(f"s_nop 1\nv_max_f32_dpp v{vMx}, v{vMx}, v{vMx} {m} row_mask:0xf bank_mask:0xf")
    a(f"s_mov_b32 s{T+10}, {hex(LOG2E)}\nv_mul_f32 v{vMx}, s{T+10}, v{vMx}")
    for i in range(16):
        a(f"v_fma_f32 v{vF+i}, v{vF+i}, s{T+10}, -v{vMx}")
    for i in range(16):
        a(f"v_exp_f32 v{vF+i}, v{vF+i}")
    a(f"v_add_f32 v{vS}, v{vF}, v{vF+1}\nv_add_f32 v{vMx}, v{vF+2}, v{vF+3}")
    for i in range(4, 16, 2):
        a(f"v_add_f32 v{vS}, v{vS}, v{vF+i}\nv_add_f32 v{vMx}, v{vMx}, v{vF+i+1}")
    a(f"v_add_f32 v{vS}, v{vS}, v{vMx}")
    for m in ("quad_perm:[1,0,3,2]", "quad_perm:[2,3,0,1]", "row_half_mirror", "row_mirror"):
        a(f"s_nop 1\nv_add_f32_dpp v{vS}, v{vS}, v{vS} {m} row_mask:0xf bank_mask:0xf")
    a(f"v_rcp_f32 v{vS}, v{vS}\ns_nop 0")
    for i in range(16):
        a(f"v_mul_f32 v{vF+i}, v{vF+i}, v{vS}")
    for i in range(8):
        a(f"v_cvt_pk_bf16_f32 v{vLd+i}, v{vF+2*i}, v{vF+2*i+1}")
    for n in range(4):
        a(f"ds_write_b64 v{vLw}, {vr(vLd+2*n,2)} offset:{L_P+4*n*PS}")
    hu = a.label("hu"); l2 = a.label("up"); d2 = a.label("upd")
    a(f"""s_cmp_lg_u32 s{sUd}, 0
s_cbranch_scc1 {hu}
{l2}:
s_waitcnt vmcnt(0)
v_cmp_ne_u32 vcc, s{S_TAG}, v{vFl}
s_cbranch_vccz {d2}
buffer_load_dword v{vFl}, v{vFa}, {WS}, 0 offen {PF}
s_sub_u32 s{S_TO}, s{S_TO}, 1
s_cmp_lg_u32 s{S_TO}, 0
s_cbranch_scc1 {l2}
s_mov_b32 s{S_TO}, 1
{d2}:""")
    uloads()
    a(f"{hu}:\ns_waitcnt lgkmcnt(0)\ns_barrier")
    for s in range(8):
        a(f"ds_read_b128 {vr(vP+4*s,4)}, v{vPa} offset:{L_P+s*PS}")
    ROW = 528; EXS = 32*ROW
    a(f"""s_mul_i32 s{sOff}, s{sKh}, {EXS}
s_lshl_b32 s{T+10}, s{sCb}, 7
s_add_u32 s{sOff}, s{sOff}, s{T+10}
s_add_u32 s{sOff}, s{sOff}, {L_EX}
v_mul_u32_u24 v{vT1}, {ROW}, v{vTok}
v_lshl_add_u32 v{vT1}, v{vHF}, 5, v{vT1}
v_add_u32 v{vT1}, s{sOff}, v{vT1}
v_lshrrev_b32 v{vT2}, 4, v0
v_mul_u32_u24 v{vT2}, {ROW}, v{vT2}
s_mul_i32 s{sOff}, s{S_W}, {4*ROW}
s_add_u32 s{sOff}, s{sOff}, {L_EX}
v_add3_u32 v{vT2}, v{vT2}, v{vT0}, s{sOff}""")
    for s in range(8):
        a(f"s_waitcnt vmcnt({7-s}) lgkmcnt({7-s})")
        mfma(a, vAcc, vU+4*s, vP+4*s, s == 0)
    for i in range(4):
        unpack(a, vF+2*i, vF+2*i+1, vX+i)
    stamp(a, 10)
    a("s_nop 3")
    for q in range(4):
        a(f"ds_write_b128 v{vT1}, {vr(vAcc+4*q,4)} offset:{64*(q>>1) + 16*(q&1)}")
    a(f"""s_waitcnt lgkmcnt(0)
s_barrier
ds_read_b128 {vr(vAcc,4)}, v{vT2}
ds_read_b128 {vr(vR,4)}, v{vT2} offset:{EXS}
ds_read_b128 {vr(vAcc+4,4)}, v{vT2} offset:16
ds_read_b128 {vr(vR+4,4)}, v{vT2} offset:{EXS+16}
s_waitcnt vmcnt(0) lgkmcnt(2)""")
    for r in range(8):
        if r == 4:
            a("s_waitcnt lgkmcnt(0)")
        a(f"v_add_f32 v{vAcc+r}, v{vAcc+r}, v{vR+r}")
    def cv():
        for i in range(4):
            a(f"v_cvt_pk_bf16_f32 v{vR+i}, v{vAcc+2*i}, v{vAcc+2*i+1}")
    def up():
        for i in range(4):
            unpack(a, vAcc+2*i, vAcc+2*i+1, vR+i)
    cv(); up()
    for r in range(8):
        a(f"v_mul_f32 v{vAcc+r}, v{vAcc+r}, v{vG+r}")
    cv(); up()
    for r in range(8):
        a(f"v_add_f32 v{vAcc+r}, v{vAcc+r}, v{vF+r}")
    cv()
    a(f"buffer_store_dwordx4 {vr(vR,4)}, v{vXo}, {RB}, s{sXo} offen {OPT.get('oflag', '').replace('+', ' ')}")
    a("L_fin:")

def gemv_dma(a, sColA, vD):
    sRow0, sOff = T+2, T+3
    a(f"""v_lshlrev_b32 v{vD}, 4, v{vCH}
v_mul_u32_u24 v{vT0}, 13824, v{vR8}
v_add3_u32 v{vD}, v{vD}, v{vT0}, s{sColA}
s_mul_i32 s{sOff}, s{sRow0}, 13824
s_lshl_b32 m0, s{sRow0}, 7""")
    for t in range(18):
        a(f"""s_nop 0
buffer_load_dwordx4 v{vD}, {RA}, s{sOff} offen {NT} lds""")
        if t < 17:
            a(f"s_add_u32 s{sOff}, s{sOff}, {8*13824}\ns_add_u32 m0, m0, 1024")

def phase_owner(a):
    sColA, sB, sRow0, sOff, sO, sCs, sTb = T, T+1, T+2, T+3, T+4, T+5, T+6
    vD, vA0, vA1, vSil, vCs = V0, V0+1, V0+2, V0+3, V0+4
    vC = 24
    vST = 28
    vX = VOX
    vXN = 48
    vPt = 80
    vAcc = 112
    vWF = 144
    vSF = 160
    vM = 184
    a(f"""s_mov_b32 s{sO}, s2
s_cmp_ge_u32 s{sO}, 36
s_cbranch_scc1 L_o_pref
s_lshr_b32 s{sCs}, s{sO}, 1
s_and_b32 s{sB}, s{sO}, 1
""")
    ST3 = OPT.get('st3', '0') == '1'
    vST = 32
    if ST3:
        a(f"""s_lshl_b32 s{T+9}, s{sB}, 12
s_add_u32 s{T+9}, s{T+9}, {F_STAT}
s_lshl_b32 s{T+12}, s{S_W}, 9
v_lshlrev_b32 v{vM}, 4, v{vTok}
v_add_u32 v{vM}, s{T+12}, v{vM}
v_add_u32 v{vM+1}, {L_RED}, v{vM}
v_add_u32 v{vM+2}, {L_RED}, v{vL16}""")
        gpoll(a, lambda: a(f"buffer_load_dwordx4 {vr(vST,4)}, v{vM}, {WS}, s{T+9} offen sc1"), [vST+1, vST+3], OPT.get('ssleep'))
        a(f"ds_write_b128 v{vM+1}, {vr(vST,4)}\ns_waitcnt lgkmcnt(0)")
    a(f"""s_waitcnt vmcnt(0)
s_barrier""")
    stamp(a, 6)
    vST = 32
    vPt = 112
    SM = [32, 33, 34, 35, 36, 37, 38, 39, 40, 41, 42, 43, 9, 10, 11, 12]
    a(f"""v_and_b32 v{vT3}, 7, v0
v_xor_b32 v{vT0}, s{S_W}, v{vT3}
v_lshlrev_b32 v{vT0}, 4, v{vT0}
v_lshl_add_u32 v{vT0}, v0, 7, v{vT0}""")
    for q in range(4):
        a(f"ds_read_b128 {vr(vX+4*q,4)}, v{vT0} offset:{q*8192}")
    if ST3:
        for q in range(4):
            a(f"ds_read_b128 {vr(vST+4*q,4)}, v{vM+2} offset:{1024*q}")
    a(f"""s_lshl_b32 s{T+9}, s{sB}, 12
s_add_u32 s{T+9}, s{T+9}, {F_STAT}
s_mul_i32 s{T+10}, s{sO}, {18*1024}
s_lshl_b32 s{sOff}, s{S_W}, 7
s_add_u32 s{T+10}, s{T+10}, s{sOff}
s_add_u32 s{T+10}, s{T+10}, {WS_PART}
s_add_u32 s{T+11}, s{T+10}, 8192
v_lshlrev_b32 v{vT1}, 4, v{vT3}
v_min_u32 v{vT2}, 1, v{vR8}
v_lshl_add_u32 v{vT2}, v{vT2}, 10, v{vT1}
v_add_u32 v{vT2}, 16384, v{vT2}
v_lshl_add_u32 v{vT1}, v{vR8}, 10, v{vT1}
v_cmp_gt_u32 vcc, 16, v0
v_mul_u32_u24 v{vCs}, {72*1024}, v{vHF}
v_lshl_add_u32 v{vCs}, v{vTok}, 4, v{vCs}
v_cndmask_b32 v{vA0}, 0, 1.0, vcc
v_bfe_u32 v{vA1}, v0, 2, 1
v_cvt_f32_u32 v{vA1}, v{vA1}
s_mul_i32 s{sOff}, s{sB}, {8*72*1024}
s_lshl_b32 s{T+12}, s{sCs}, 12
s_add_u32 s{sOff}, s{sOff}, s{T+12}
s_lshl_b32 s{T+12}, s{S_W}, 9
s_add_u32 s{sOff}, s{sOff}, s{T+12}
s_add_u32 s{sOff}, s{sOff}, {WS_H}
s_waitcnt lgkmcnt(0)""")
    def stl():
        for q in range(4):
            a(f"buffer_load_dwordx4 {vr(vST+4*q,4)}, v{vL16}, {WS}, s{T+9} offen offset:{1024*q} sc1")
    def pl():
        a(f"""buffer_load_dwordx4 {vr(vPt,4)}, v{vT1}, {WS}, s{T+10} offen sc1
buffer_load_dwordx4 {vr(vPt+4,4)}, v{vT1}, {WS}, s{T+11} offen sc1
buffer_load_dwordx4 {vr(vPt+8,4)}, v{vT2}, {WS}, s{T+10} offen sc1""")
    P = [(q, i) for q in range(4) for i in range(4)]
    lo = lambda q, i: vXN+8*q+2*i
    hi = lambda q, i: vXN+8*q+2*i+1
    xs = lambda q, i: vX+4*q+i
    def st_unpack():
        for q, i in P: unpack(a, lo(q,i), hi(q,i), xs(q,i))
    def st_cvt():
        for q, i in P: a(f"v_cvt_pk_bf16_f32 v{xs(q,i)}, v{lo(q,i)}, v{hi(q,i)}")
    def st_op(op, f):
        for q, i in P:
            a(f"{op} v{lo(q,i)}, v{lo(q,i)}, v{f(q,2*i)}\n{op} v{hi(q,i)}, v{hi(q,i)}, v{f(q,2*i+1)}")
    st_unpack()
    if 'st1' in OPT:
        a(f"v_and_b32 v{vM}, 3, v0\ns_lshl_b32 s{T+12}, s{S_W}, 9\nv_lshlrev_b32 v{vM}, 7, v{vM}\ns_add_u32 s{T+12}, s{T+12}, s{T+9}\nv_add_u32 v{vM}, 124, v{vM}")
        wpoll(a, vM, f"s{T+12}", vM+1)
        a("s_barrier")
    if ST3:
        pass
    elif OPT.get('st2', '1') == '1':
        a(f"""s_lshl_b32 s{T+12}, s{S_W}, 9
v_lshlrev_b32 v{vM}, 4, v{vTok}
v_add_u32 v{vM}, s{T+12}, v{vM}
v_add_u32 v{vM+1}, {L_RED}, v{vM}
v_add_u32 v{vM+2}, {L_RED}, v{vL16}""")
        gpoll(a, lambda: a(f"buffer_load_dwordx4 {vr(vST,4)}, v{vM}, {WS}, s{T+9} offen sc1"), [vST+1, vST+3], OPT.get('ssleep'))
        a(f"""ds_write_b128 v{vM+1}, {vr(vST,4)}
s_waitcnt lgkmcnt(0)
s_barrier""")
        for q in range(4):
            a(f"ds_read_b128 {vr(vST+4*q,4)}, v{vM+2} offset:{1024*q}")
        a("s_waitcnt lgkmcnt(0)")
    else:
        gpoll(a, stl, [vST+4*q+j for q in range(4) for j in (1, 3)], OPT.get('ssleep'))
    stamp(a, 1)
    PE = OPT.get('pe', '1') == '1'
    if PE: pl()
    st_op("v_sub_f32", lambda q, j: vST+4*q); st_cvt()
    st_unpack()
    if not PE: pl()
    st_op("v_mul_f32", lambda q, j: vST+4*q+2); st_cvt()
    st_unpack()
    stamp(a, 2)
    lp = a.label("pp"); ld = a.label("ppd")
    a(f"""{lp}:
s_waitcnt vmcnt(0)
v_min3_u32 v{vM}, v{vPt+1}, v{vPt+3}, v{vPt+5}
v_max3_u32 v{vM+1}, v{vPt+1}, v{vPt+3}, v{vPt+5}
v_min3_u32 v{vM}, v{vM}, v{vPt+7}, v{vPt+9}
v_max3_u32 v{vM+1}, v{vM+1}, v{vPt+7}, v{vPt+9}
v_min_u32 v{vM}, v{vM}, v{vPt+11}
v_max_u32 v{vM+1}, v{vM+1}, v{vPt+11}
v_cmp_ne_u32 vcc, s{S_TAG}, v{vM}
v_cmp_ne_u32 s[{T+14}:{T+15}], s{S_TAG}, v{vM+1}
s_or_b64 vcc, vcc, s[{T+14}:{T+15}]
s_cbranch_vccz {ld}
s_sub_u32 s{S_TO}, s{S_TO}, 1
s_cmp_eq_u32 s{S_TO}, 0
s_cbranch_scc1 {ld}""")
    pl()
    a(f"""s_branch {lp}
{ld}:
s_max_u32 s{S_TO}, s{S_TO}, 1
v_add_f32 v{vPt}, v{vPt}, v{vPt+4}
v_add_f32 v{vPt+2}, v{vPt+2}, v{vPt+6}
v_fmac_f32 v{vPt}, v{vA0}, v{vPt+8}
v_fmac_f32 v{vPt+2}, v{vA0}, v{vPt+10}
s_nop 1
v_permlane32_swap_b32 v{vPt}, v{vPt+2}
s_nop 0
v_add_f32 v{vPt}, v{vPt}, v{vPt+2}
v_mov_b32 v{vPt+2}, v{vPt}
s_nop 1
v_permlane16_swap_b32 v{vPt}, v{vPt+2}
s_nop 0
v_add_f32 v{vPt}, v{vPt}, v{vPt+2}
s_nop 1
v_add_f32_dpp v{vPt}, v{vPt}, v{vPt} row_ror:8 row_mask:0xf bank_mask:0xf""")
    round_bf16(a, vPt)
    a(f"v_add_f32 v{vPt}, v{vPt}, v{vA1}")
    round_bf16(a, vPt)
    a("s_nop 0")
    for u in (4, 5, 6, 7, 0, 1, 2, 3):
        a(f"v_readlane_b32 s{SM[2*u]}, v{vPt}, {u}\nv_readlane_b32 s{SM[2*u+1]}, v{vPt}, {32+u}")
    stamp(a, 3)
    PQ = OPT.get('pq', '1') == '1'
    if not PQ:
        for q, i in P:
            a(f"v_mul_f32 v{lo(q,i)}, s{SM[8+2*i]}, v{lo(q,i)}\nv_mul_f32 v{hi(q,i)}, s{SM[8+2*i+1]}, v{hi(q,i)}")
        st_cvt(); st_unpack()
    for q in range(4):
        if PQ:
            for i in range(4):
                a(f"v_mul_f32 v{lo(q,i)}, s{SM[8+2*i]}, v{lo(q,i)}\nv_mul_f32 v{hi(q,i)}, s{SM[8+2*i+1]}, v{hi(q,i)}")
            for i in range(4):
                a(f"v_cvt_pk_bf16_f32 v{xs(q,i)}, v{lo(q,i)}, v{hi(q,i)}")
            for i in range(4):
                unpack(a, lo(q,i), hi(q,i), xs(q,i))
        for i in range(4):
            a(f"v_add_f32 v{lo(q,i)}, s{SM[2*i]}, v{lo(q,i)}\nv_add_f32 v{hi(q,i)}, s{SM[2*i+1]}, v{hi(q,i)}")
        for i in range(4):
            a(f"v_cvt_pk_bf16_f32 v{xs(q,i)}, v{lo(q,i)}, v{hi(q,i)}")
        a(f"buffer_store_dwordx4 {vr(vX+4*q,4)}, v{vCs}, {WS}, s{sOff} offen sc1")
        if q < 3:
            a(f"s_add_u32 s{sOff}, s{sOff}, {2*72*1024}")
    stamp(a, 4)
    a(f"""s_mul_i32 s{sOff}, s{sB}, 18
s_add_u32 s{sOff}, s{sOff}, s{sCs}
s_lshl_b32 s{sOff}, s{sOff}, 7
s_add_u32 s{sOff}, s{sOff}, {F_H}""")
    set_flag(a, f"s{sOff}")
    stamp(a, 5)
    if 'ob' in OPT:
        a("s_waitcnt vmcnt(0)\ns_barrier")
    a("L_o_pref:")
    srd(a, R_A, S_WMOD, SZ_WMOD)
    srd(a, R_C, S_C, SZ_C)
    a(f"""s_sub_u32 s{sOff}, s{sO}, 20
s_cmp_ge_u32 s{sO}, 16
s_cselect_b32 s{sO}, s{sOff}, s{sO}
s_cselect_b32 s{sOff}, 16, 0
s_cmp_lt_u32 s{sO}, s{sOff}
s_cbranch_scc1 L_o_upd
s_cmp_ge_u32 s{sO}, 18
s_cbranch_scc1 L_o_upd""")
    if 'gd' in OPT:
        a(f"v_min_u32 v{vT0}, 35, v0\nv_lshlrev_b32 v{vT0}, 7, v{vT0}\ns_movk_i32 s{sOff}, {F_H}")
        poll(a, vT0, f"s{sOff}", vT1)
    a(f"""s_mul_i32 s{sRow0}, s{S_W}, 144
v_min_u32 v{vT0}, 17, v{vTok}
v_lshlrev_b32 v{vT0}, 4, v{vT0}
v_mul_u32_u24 v{vT1}, 2304, v{vHF}
v_add_u32 v{vCs}, v{vT0}, v{vT1}
s_lshl_b32 s{sOff}, s{sRow0}, 1
buffer_load_dwordx4 {vr(vC,4)}, v{vCs}, {RC}, s{sOff} offen
s_lshl_b32 s{sColA}, s{sO}, 7
s_add_u32 s{sColA}, s{sColA}, 4608""")
    gemv_dma(a, sColA, vD)
    a(f"""s_lshl_b32 s{sOff}, s{sRow0}, 7
v_add_u32 v{vA0}, s{sOff}, v{vB0}
v_add_u32 v{vA1}, s{sOff}, v{vB1}
s_waitcnt vmcnt(18)""")
    for i in range(4):
        unpack(a, vM+2*i, vM+2*i+1, vC+i)
    silu8(a, vM, vM+8)
    for i in range(4):
        a(f"v_cvt_pk_bf16_f32 v{vC+i}, v{vM+2*i}, v{vM+2*i+1}")
    a(f"""s_lshl_b32 s{sOff}, s{sRow0}, 1
s_add_u32 s{sOff}, s{sOff}, {L_SIL}
v_add_u32 v{vCs}, s{sOff}, v{vCs}
ds_write_b128 v{vCs}, {vr(vC,4)}
v_and_b32 v{vT0}, 1, v0
v_mul_u32_u24 v{vT0}, 2304, v{vT0}
v_lshl_add_u32 v{vT0}, v{vHF}, 4, v{vT0}
v_add_u32 v{vSil}, s{sOff}, v{vT0}
s_waitcnt lgkmcnt(0)""")
    for s in range(9):
        wf = vWF + 8*(s & 1); sf = vSF + 4*(s & 1)
        a(f"s_waitcnt vmcnt({18-2*(s+1)})")
        a(f"ds_read_b128 {vr(sf,4)}, v{vSil} offset:{s*32}")
        trreads(a, wf, vA0, vA1, s*2048)
        a("s_waitcnt lgkmcnt(2)")
        mfma(a, vAcc, wf, sf, s == 0)
        a("s_waitcnt lgkmcnt(0)")
        mfma(a, vAcc+16, wf+4, sf, s == 0)
    a(f"""v_and_b32 v{vT0}, 1, v0
v_lshlrev_b32 v{vT0}, 8, v{vT0}
v_lshl_add_u32 v{vT0}, v{vHF}, 5, v{vT0}
s_lshl_b32 s{sOff}, s{S_W}, 9
s_add_u32 s{sOff}, s{sOff}, {L_RED}
v_add_u32 v{vT0}, s{sOff}, v{vT0}
s_mov_b32 exec_lo, 3
s_mov_b32 exec_hi, 3
s_nop 8""")
    for cb in range(2):
        for q, off in enumerate((0, 16, 64, 80)):
            a(f"ds_write_b128 v{vT0}, {vr(vAcc+16*cb+4*q,4)} offset:{cb*128+off}")
    a(f"""s_mov_b64 exec, -1
s_waitcnt lgkmcnt(0)
s_barrier
s_lshr_b32 s{sOff}, s{S_W}, 2
s_lshl_b32 s{sOff}, s{sOff}, 8
s_add_u32 s{sOff}, s{sOff}, {L_RED}
v_lshlrev_b32 v{vT0}, 2, v0
v_add_u32 v{vT1}, s{sOff}, v{vT0}""")
    for w in range(8):
        a(f"ds_read_b32 v{vAcc+w}, v{vT1} offset:{w*512}")
    a("s_waitcnt lgkmcnt(0)")
    for w in range(1, 8):
        a(f"v_add_f32 v{vAcc}, v{vAcc}, v{vAcc+w}")
    round_bf16(a, vAcc)
    lsk = a.label("gsk")
    a(f"""s_and_b32 s{sOff}, s{S_W}, 3
s_cmp_lg_u32 s{sOff}, 0
s_cbranch_scc1 {lsk}
s_lshr_b32 s{T+9}, s{S_W}, 2
s_mul_i32 s{sOff}, s{T+9}, 4608
s_lshl_b32 s{sColA}, s{sO}, 8
s_add_u32 s{sOff}, s{sOff}, s{sColA}
s_add_u32 s{sOff}, s{sOff}, {WS_GATE}
buffer_store_dword v{vAcc}, v{vT0}, {WS}, s{sOff} offen sc1
{lsk}:
s_lshl_b32 s{sOff}, s{sO}, 7
s_add_u32 s{sOff}, s{sOff}, {F_G}""")
    set_flag(a, f"s{sOff}")
    stamp(a, 7)
    lp = a.label("ep"); ld = a.label("epd")
    a(f"""L_o_upd:
s_add_u32 s{S_SLOT}, s{S_SLOT}, 25
s_cmp_ge_u32 s{S_SLOT}, 27
s_cbranch_scc1 L_c_notu
s_cmp_lg_u32 s2, 0
s_cbranch_scc1 L_fin
s_lshl_b32 s{sOff}, s{S_W}, 6
v_add_u32 v{vT0}, s{sOff}, v0
v_min_u32 v{vT0}, 431, v{vT0}
v_lshlrev_b32 v{vT0}, 8, v{vT0}
s_mov_b32 s{sOff}, {F_QKV}
{lp}:
s_sleep 16
buffer_load_dword v{vT1}, v{vT0}, {WS}, s{sOff} offen sc1
buffer_load_dword v{vT2}, v{vT0}, {WS}, s{sOff} offen offset:128 sc1
s_waitcnt vmcnt(0)
v_cmp_ne_u32 vcc, s{S_TAG}, v{vT1}
v_cmp_ne_u32 s[{T+14}:{T+15}], s{S_TAG}, v{vT2}
s_or_b64 vcc, vcc, s[{T+14}:{T+15}]
s_cbranch_vccz {ld}
s_sub_u32 s{S_TO}, s{S_TO}, 1
s_cmp_lg_u32 s{S_TO}, 0
s_cbranch_scc1 {lp}
{ld}:
s_mov_b32 s{sOff}, {EPOCH}""")
    set_flag(a, f"s{sOff}")
    a("s_branch L_fin")

def epilogue(a):
    if STAMP and 'probe' in OPT:
        i = int(OPT['probe']); lo, hi = [int(x) for x in OPT.get('prole', '0:256').split(':')]
        a(f"""s_waitcnt vmcnt(0) lgkmcnt(0)
s_cmp_lg_u32 s{S_W}, {OPT.get('stw', 0)}
s_cbranch_scc1 L_end
s_memrealtime s[{S_ST+30}:{S_ST+31}]
s_waitcnt lgkmcnt(0)
s_sub_u32 s{T}, s{S_ST+2*i}, s{S_ST}
s_cmp_eq_u32 s{S_ST+2*i}, 0
s_cselect_b32 s{T}, 0, s{T}
s_cmp_lt_u32 s2, {lo}
s_cselect_b32 s{T}, 0, s{T}
s_cmp_ge_u32 s2, {hi}
s_cselect_b32 s{T}, 0, s{T}
s_lshl_b32 s{T}, s{T}, 2
s_add_u32 s{T}, s{T}, 5000
L_spin:
s_memrealtime s[{T+2}:{T+3}]
s_waitcnt lgkmcnt(0)
s_sub_u32 s{T+2}, s{T+2}, s{S_ST}
s_cmp_lt_u32 s{T+2}, s{T}
s_cbranch_scc1 L_spin""")
    elif STAMP:
        a(f"""s_waitcnt vmcnt(0) lgkmcnt(0)
s_cmp_lg_u32 s{S_W}, {OPT.get('stw', 0)}
s_cbranch_scc1 L_end
{CLK} s[{S_ST+30}:{S_ST+31}]
s_memtime s[98:99]
s_waitcnt lgkmcnt(0)
s_sub_u32 s98, s98, s96""")
        for i in range(16):
            a(f"v_mov_b32 v{16+i}, s{S_ST+2*i}")
        a(f"""v_mov_b32 v32, s98
s_lshl_b32 s{T}, s2, 7
s_add_u32 s{T}, s{T}, {WS_STAMP}
v_mov_b32 v1, 0
s_mov_b64 exec, 1""")
        for i in range(4):
            a(f"buffer_store_dwordx4 v[{16+4*i}:{19+4*i}], v1, {WS}, s{T} offen offset:{16*i}")
        a(f"buffer_store_dword v32, v1, {WS}, s{T} offen offset:64")
    a("L_end:\ns_endpgm")

def main():
    a = Asm()
    a.raw("""; DiT adaLN attention block (B=2, N=256, D=1152) as ONE persistent launch, 256 workgroups x 8 waves (one per CU).
; Written by a generator script of my own (hand-designed schedule, no compiler output).
;  stage 0 : 162 WGs: split-K pieces of silu(c) @ w_mod[:, :2D] -> tagged granules; 64 WGs: LayerNorm row statistics
; @launch grid=(256,1,1) block=(512,1,1) lds=163840""")
    a.raw('.amdgcn_target "amdgcn-amd-amdhsa--gfx950"\n.text')
    prologue(a)
    phase_bc(a)
    NOD[0] = True
    phase_d(a)
    NOD[0] = False
    epilogue(a)
    a("L_owner:")
    phase_owner(a)
    a.raw(".p2align 4\nL_codeend:")
    out = a.text() + kd(NAME, 244, 102)
    path = [x for x in sys.argv[1:] if not x.startswith('--')][0]
    open(path, 'w').write(out)
main()
```
